```python
import torch

def _softmax(x, axis=-1):
    return torch.softmax(x, dim=axis)
def _gelu(x):
    return torch.nn.functional.gelu(x, approximate="tanh")
def _silu(x):
    return torch.nn.functional.silu(x)
def _sigmoid(x):
    return torch.sigmoid(x)
def _layernorm(x, axis=-1, eps=1e-5):
    m = x.mean(dim=axis, keepdim=True)
    v = x.var(dim=axis, keepdim=True, unbiased=False)
    return (x - m) / torch.sqrt(v + eps)
def _scatter_add(tgt, idx, src, axis=0):
    return tgt.clone().index_add_(axis, idx, src)
def _segment_sum(src, seg, n):
    out = torch.zeros((n,) + src.shape[1:], dtype=src.dtype)
    return out.index_add_(0, seg, src)
def _pad(x, pw):
    flat = tuple(v for pair in reversed(pw) for v in pair)
    return torch.nn.functional.pad(x, flat)

kernel_name = 'sequential_preLN__sliding_local_dilated__geglu_ffn__prompt'

def setup_inputs():

    _w = (lambda a: (lambda t: t.to(torch.bfloat16) if t.is_floating_point() else t)(torch.as_tensor(a)))
    def _A_setup():
        B, S, D = 1, 2048, 576
        return {
            "x": _w((lambda *s: torch.randn(*s, dtype=torch.bfloat16) * 0.05)(B, S, D)),
            "wqkv": _w((lambda *s: torch.randn(*s, dtype=torch.bfloat16) * 0.05)(D, 3 * D)),
            "wo": _w((lambda *s: torch.randn(*s, dtype=torch.bfloat16) * 0.05)(D, D)),
        }
    _A_in = _A_setup()

    def _B_setup():
        B, S, D, F = 1, 2048, 576, 4608
        return {
            "x": _w((lambda *s: torch.randn(*s, dtype=torch.bfloat16) * 0.05)(B, S, D)),
            "w_gate": _w((lambda *s: torch.randn(*s, dtype=torch.bfloat16) * 0.05)(D, F)),
            "w_up": _w((lambda *s: torch.randn(*s, dtype=torch.bfloat16) * 0.05)(D, F)),
            "w_down": _w((lambda *s: torch.randn(*s, dtype=torch.bfloat16) * 0.05)(F, D)),
        }
    _B_in = _B_setup()

    return {
        "A_x": _A_in["x"],
        "A_wqkv": _A_in["wqkv"],
        "A_wo": _A_in["wo"],
        "B_x": _B_in["x"],
        "B_w_gate": _B_in["w_gate"],
        "B_w_up": _B_in["w_up"],
        "B_w_down": _B_in["w_down"],
    }

def reference(A_x, A_wqkv, A_wo, B_x, B_w_gate, B_w_up, B_w_down):
    def _A_ref(x, wqkv, wo):
        B, S, D = x.shape
        H = 32; Dh = D // H
        W, dil = 8, 2
        qkv = (lambda x, *d: x.permute(*d))((x @ wqkv).reshape(B, S, 3, H, Dh), 2, 0, 3, 1, 4)
        q, k, v = qkv[0], qkv[1], qkv[2]
        scale = Dh ** -0.5
        pos = torch.arange(S)
        off = torch.arange(W) * dil
        idx = pos[:, None] - off[None, :]
        mask = idx >= 0
        idx_c = torch.where(mask, idx, 0).reshape(-1)
        kg = k[:, :, idx_c, :].reshape(B, H, S, W, Dh)
        vg = v[:, :, idx_c, :].reshape(B, H, S, W, Dh)
        logits = torch.einsum("bhsd,bhswd->bhsw", q, kg) * scale
        logits = torch.where(mask[None, None, :, :], logits, -1e9)
        attn = _softmax(logits, axis=-1)
        o = torch.einsum("bhsw,bhswd->bhsd", attn, vg)
        return (lambda x, *d: x.permute(*d))(o, 0, 2, 1, 3).reshape(B, S, D) @ wo

    def _B_ref(x, w_gate, w_up, w_down):
        return (_gelu(x @ w_gate) * (x @ w_up)) @ w_down

    x = A_x
    h = x + _A_ref(_layernorm(x, axis=-1), A_wqkv, A_wo)
    h2 = h + _B_ref(_layernorm(h, axis=-1), B_w_gate, B_w_up, B_w_down)
    return h2
```

```python
import sys, struct, math

KN = "sequential_preLN__sliding_local_dilated__geglu_ffn__prompt"

O_OFF  = 0
O_SZ   = 2048*576*2
H1_OFF = O_OFF + O_SZ
H1_SZ  = 2048*576*2
ST_OFF = H1_OFF + H1_SZ
ST_SZ  = 2048*6*8
HH_OFF = ST_OFF + ST_SZ
HH_SZ  = 2048*4608*2
P_OFF  = HH_OFF + HH_SZ
P_SZ   = 4*2048*576*4

def f32(x):
    return struct.unpack("<I", struct.pack("<f", x))[0]

class A:
    def __init__(self):
        self.l = []
    def __call__(self, s):
        self.l.append("    " + s)
    def lab(self, s):
        self.l.append(s + ":")
    def c(self, s):
        self.l.append("    ; " + s)
    def text(self):
        return "\n".join(self.l) + "\n"

def vr(b, n=1):
    return f"v{b}" if n == 1 else f"v[{b}:{b+n-1}]"
def sr(b, n=1):
    return f"s{b}" if n == 1 else f"s[{b}:{b+n-1}]"

def kernel_head(a, name):
    a.l.append(f".globl {name}")
    a.l.append(".p2align 8")
    a.l.append(f".type {name},@function")
    a.lab(name)

def kernel_desc(name, vgpr, sgpr=96, accum=None):
    if accum is None:
        accum = (vgpr + 3) // 4 * 4
    return f""".amdhsa_kernel {name}
  .amdhsa_next_free_vgpr {vgpr}
  .amdhsa_next_free_sgpr {sgpr}
  .amdhsa_accum_offset {accum}
  .amdhsa_group_segment_fixed_size 0
  .amdhsa_kernarg_size 80
  .amdhsa_user_sgpr_count 2
  .amdhsa_user_sgpr_kernarg_segment_ptr 1
  .amdhsa_system_sgpr_workgroup_id_x 1
.end_amdhsa_kernel
"""

def srd(a, d, base, size, off=0):
    if off:
        a(f"s_add_u32 s{d}, s{base}, {off}")
        a(f"s_addc_u32 s{d+1}, s{base+1}, 0")
    else:
        a(f"s_mov_b32 s{d}, s{base}")
        a(f"s_mov_b32 s{d+1}, s{base+1}")
    a(f"s_and_b32 s{d+1}, s{d+1}, 0xffff")
    a(f"s_mov_b32 s{d+2}, {size}")
    a(f"s_mov_b32 s{d+3}, 0x00020000")

def round_bf16(a, d, s, tmp=None):
    a(f"v_cvt_pk_bf16_f32 v{d}, v{s}, v{s}")
    a(f"v_lshlrev_b32 v{d}, 16, v{d}")

GELU_A = -2.0 * math.log2(math.e) * math.sqrt(2.0 / math.pi)
GELU_B = GELU_A * 0.044715

import os
OPT = set(os.environ.get("GENOPT", "").split(","))
def stamp(a, i, real=False):
    if "stamp" in OPT:
        a(f"s_mem{'real' if real else ''}time s[{60+2*i}:{61+2*i}]")
def stamp_dump(a, n, sWs, sWave, tmpv):
    if "stamp" in OPT:
        a("s_waitcnt lgkmcnt(0)")
        srd(a, 80, sWs, 1<<20, 200<<20)
        a(f"s_lshl_b32 s84, s2, 4")
        a(f"s_add_u32 s84, s84, s{sWave}")
        a(f"s_lshl_b32 s84, s84, 6")
        a(f"v_mov_b32 v{tmpv}, s84")
        for i in range(n):
            a(f"v_mov_b32 v{tmpv+2}, s{60+2*i}")
            a(f"v_mov_b32 v{tmpv+3}, s{61+2*i}")
            a(f"buffer_store_dwordx2 v[{tmpv+2}:{tmpv+3}], v{tmpv}, s[80:83], 0 offen offset:{8*i}")
            a("s_nop 1")
def gen_k3(name="k3_kernel"):
    a = A()
    kernel_head(a, name)
    NST = 6
    STG = 18432
    RING = 6
    ACC = 0
    XS = 144
    WR = 192
    vWa = 216
    vWb = 217
    vD0, vD1, vD2 = 218, 219, 220
    vX0, vX1 = 221, 222
    vM0, vR0, vM1, vR1 = 223, 224, 225, 226
    vT = 228
    vLane = 244
    NV = 246
    def acc(nt, mat, mt):
        return ACC + ((nt * 2 + mat) * 2 + mt) * 4
    sW, sX, sST, sH = 12, 16, 20, 24
    sWave, sFb, sMb = 28, 29, 30
    sWoff, sXoff, sIt = 31, 32, 33
    sM0b = 34
    sT = 36
    sA_, sB_ = 48, 49
    sExec = 50
    sHb = 52

    a("s_cmp_ge_u32 s2, 256")
    a(f"s_cbranch_scc1 L_{name}_done")
    stamp(a, 0)
    stamp(a, 5, True)
    a("s_load_dwordx4 s[4:7], s[0:1], 32")
    a("s_load_dwordx2 s[8:9], s[0:1], 72")
    a("v_lshrrev_b32 v1, 6, v0")
    a("v_and_b32 v0, 63, v0")
    a("s_nop 0")
    a(f"v_readfirstlane_b32 s{sWave}, v1")
    a(f"s_and_b32 s{sT}, s2, 7")
    a(f"s_lshr_b32 s{sT+1}, s2, 3")
    a(f"s_and_b32 s{sFb}, s{sT+1}, 3")
    a(f"s_lshl_b32 s{sT}, s{sT}, 2")
    a(f"s_add_u32 s{sFb}, s{sFb}, s{sT}")
    a(f"s_lshr_b32 s{sMb}, s{sT+1}, 2")
    a("s_waitcnt lgkmcnt(0)")
    a(f"s_cmp_ge_u32 s{sWave}, 4")
    a(f"s_cselect_b32 s{sT}, s6, s4")
    a(f"s_cselect_b32 s{sT+1}, s7, s5")
    srd(a, sW, sT, 576*4608*2)
    srd(a, sX, 8, H1_SZ, H1_OFF)
    srd(a, sST, 8, ST_SZ, ST_OFF)
    srd(a, sH, 8, HH_SZ, HH_OFF)
    a(f"v_and_b32 v{vT}, 15, v0")
    a(f"s_lshl_b32 s{sT}, s{sMb}, 8")
    a(f"s_lshl_b32 s{sT+1}, s{sWave}, 5")
    a(f"s_add_u32 s{sT}, s{sT}, s{sT+1}")
    a(f"v_add_u32 v{vT}, s{sT}, v{vT}")
    a(f"v_mul_u32_u24 v{vT}, 48, v{vT}")
    for mt in range(2):
        for q in range(3):
            a(f"buffer_load_dwordx4 {vr(WR+mt*12+q*4,4)}, v{vT}, {sr(sST,4)}, 0 offen offset:{mt*768+q*16}")
    for t, vd in enumerate((vD0, vD1, vD2)):
        a(f"v_add_u32 v{vT+1}, {t*64}, v0")
        a(f"v_mul_u32_u24 v{vT+2}, 3641, v{vT+1}")
        a(f"v_lshrrev_b32 v{vT+2}, 16, v{vT+2}")
        a(f"v_mul_u32_u24 v{vT+3}, 18, v{vT+2}")
        a(f"v_sub_u32 v{vT+3}, v{vT+1}, v{vT+3}")
        a(f"v_mul_u32_u24 v{vT+2}, 9216, v{vT+2}")
        a(f"v_lshl_add_u32 v{vd}, v{vT+3}, 4, v{vT+2}")
    a(f"s_and_b32 s{sT}, s{sWave}, 3")
    a(f"s_mul_i32 s{sT+1}, s{sT}, {8*9216}")
    a(f"s_mul_i32 s{sT+2}, s{sFb}, 288")
    a(f"s_add_u32 s{sT+1}, s{sT+1}, s{sT+2}")
    for vd in (vD0, vD1, vD2):
        a(f"v_add_u32 v{vd}, s{sT+1}, v{vd}")
    a(f"s_mul_i32 s{sM0b}, s{sWave}, 2304")
    a(f"s_lshl_b32 s{sT}, s{sMb}, 4")
    a(f"s_lshl_b32 s{sT+1}, s{sWave}, 1")
    a(f"s_add_u32 s{sT}, s{sT}, s{sT+1}")
    a(f"s_mul_i32 s{sT+1}, s{sT}, 18432")
    a(f"v_lshlrev_b32 v{vX0}, 4, v0")
    a(f"v_add_u32 v{vX0}, s{sT+1}, v{vX0}")
    a(f"v_add_u32 v{vX1}, 18432, v{vX0}")
    a(f"s_mul_i32 s{sHb}, s{sT}, 144")
    a(f"s_lshr_b32 s{sT+1}, s{sFb}, 1")
    a(f"s_mul_i32 s{sT+1}, s{sT+1}, 9")
    a(f"s_add_u32 s{sHb}, s{sHb}, s{sT+1}")
    a(f"s_lshl_b32 s{sHb}, s{sHb}, 10")
    a(f"v_lshrrev_b32 v{vT+1}, 2, v0")
    a(f"v_mul_u32_u24 v{vT+1}, 288, v{vT+1}")
    a(f"v_and_b32 v{vT+2}, 3, v0")
    a(f"v_lshl_add_u32 v{vWa}, v{vT+2}, 3, v{vT+1}")
    a(f"v_add_u32 v{vWb}, {3*STG}, v{vWa}")
    a(f"s_mov_b32 s{sWoff}, 0")
    a(f"s_mov_b32 s{sXoff}, 0")
    a(f"s_mov_b64 s[{sExec}:{sExec+1}], 0xffff")
    a(f"v_mov_b32 v{vLane}, v0")

    def load_groups(stage, xset):
        gs = []
        for t, vd in enumerate((vD0, vD1, vD2)):
            g = [f"s_add_u32 m0, s{sM0b}, {stage*STG + t*1024}"]
            if t == 2:
                g.append(f"s_mov_b64 exec, s[{sExec}:{sExec+1}]")
            else:
                g.append("s_nop 0")
            g.append(f"buffer_load_dwordx4 v{vd}, {sr(sW,4)}, s{sWoff} offen lds")
            if t == 2:
                g.append("s_mov_b64 exec, -1")
                g.append(f"s_add_u32 s{sWoff}, s{sWoff}, {32*9216}")
            gs.append(g)
        gs.append([f"buffer_load_dwordx4 {vr(XS+xset*8,4)}, v{vX0}, {sr(sX,4)}, s{sXoff} offen"])
        gs.append([f"buffer_load_dwordx4 {vr(XS+xset*8+4,4)}, v{vX1}, {sr(sX,4)}, s{sXoff} offen",
                   f"s_add_u32 s{sXoff}, s{sXoff}, 1024",
                   f"s_min_u32 s{sXoff}, s{sXoff}, {17*1024}"])
        return gs
    def issue_loads(stage, xset):
        for g in load_groups(stage, xset):
            for x in g: a(x)

    for s in range(5):
        issue_loads(s, s)
    a("s_waitcnt vmcnt(25)")
    for mt, (vM, vR) in enumerate(((vM0, vR0), (vM1, vR1))):
        b = WR + mt * 12
        a(f"v_add_f32 v{vT}, v{b}, v{b+2}")
        a(f"v_add_f32 v{vT+1}, v{b+4}, v{b+6}")
        a(f"v_add_f32 v{vT+2}, v{b+8}, v{b+10}")
        a(f"v_add_f32 v{vT}, v{vT}, v{vT+1}")
        a(f"v_add_f32 v{vT}, v{vT}, v{vT+2}")
        a(f"v_mul_f32 v{vT}, {f32(1.0/6.0)}, v{vT}")
        a(f"v_add_f32 v{vT+1}, v{b+1}, v{b+3}")
        a(f"v_add_f32 v{vT+2}, v{b+5}, v{b+7}")
        a(f"v_add_f32 v{vT+3}, v{b+9}, v{b+11}")
        a(f"v_add_f32 v{vT+1}, v{vT+1}, v{vT+2}")
        a(f"v_add_f32 v{vT+1}, v{vT+1}, v{vT+3}")
        a(f"v_mov_b32 v{vT+2}, 0")
        for t in range(6):
            a(f"v_sub_f32 v{vT+3}, v{b+2*t}, v{vT}")
            a(f"v_fmac_f32 v{vT+2}, v{vT+3}, v{vT+3}")
        a(f"v_fmac_f32 v{vT+1}, {f32(96.0)}, v{vT+2}")
        a(f"v_mul_f32 v{vT+1}, {f32(1.0/576.0)}, v{vT+1}")
        round_bf16(a, vM, vT)
        round_bf16(a, vT+1, vT+1)
        a(f"v_add_f32 v{vT+1}, {f32(1e-5)}, v{vT+1}")
        round_bf16(a, vT+1, vT+1)
        a(f"v_sqrt_f32 v{vT+1}, v{vT+1}")
        a("s_nop 0")
        round_bf16(a, vT+1, vT+1)
        a(f"v_rcp_f32 v{vR}, v{vT+1}")
    for i in range(0, 144, 2):
        a(f"v_mov_b64 {vr(ACC+i,2)}, 0")

    def norm_ops(xset):
        ops = []
        for mt, (vM, vR) in enumerate(((vM0, vR0), (vM1, vR1))):
            for d in range(4):
                x = XS + xset * 8 + mt * 4 + d
                t0 = vT + (d % 2) * 2
                t1 = t0 + 1
                ops.append(f"v_lshlrev_b32 v{t0}, 16, v{x}")
                ops.append(f"v_and_b32 v{t1}, 0xffff0000, v{x}")
                if "fastnorm" in OPT:
                    ops.append(f"v_sub_f32 v{t0}, v{t0}, v{vM}")
                    ops.append(f"v_sub_f32 v{t1}, v{t1}, v{vM}")
                    ops.append(f"v_cvt_pk_bf16_f32 v{x}, v{t0}, v{t1}")
                    continue
                ops.append(f"v_sub_f32 v{t0}, v{t0}, v{vM}")
                ops.append(f"v_sub_f32 v{t1}, v{t1}, v{vM}")
                ops.append(f"v_cvt_pk_bf16_f32 v{t0}, v{t0}, v{t1}")
                ops.append(f"v_and_b32 v{t1}, 0xffff0000, v{t0}")
                ops.append(f"v_lshlrev_b32 v{t0}, 16, v{t0}")
                ops.append(f"v_mul_f32 v{t0}, v{t0}, v{vR}")
                ops.append(f"v_mul_f32 v{t1}, v{t1}, v{vR}")
                ops.append(f"v_cvt_pk_bf16_f32 v{x}, v{t0}, v{t1}")
        return ops

    def wread(fidx_global):
        st = (fidx_global // 18) % NST
        f = fidx_global % 18
        nt, mat = f // 2, f % 2
        slot = fidx_global % RING
        base = vWa if st < 3 else vWb
        off = (st % 3) * STG + mat * 9216 + nt * 32
        a(f"ds_read_b64_tr_b16 {vr(WR+slot*4,2)}, v{base} offset:{off}")
        a(f"ds_read_b64_tr_b16 {vr(WR+slot*4+2,2)}, v{base} offset:{off+4608}")

    PF = RING - 1
    a("s_waitcnt vmcnt(15)")
    for op in norm_ops(0):
        a(op)
    a("s_barrier")
    for f in range(PF):
        wread(f)
    stamp(a, 1)
    a(f"s_mov_b32 s{sIt}, 0")
    a(".p2align 6")
    a.lab(f"L_{name}_loop")
    for ph in range(NST):
        lg = load_groups((ph + 5) % NST, (ph + 5) % NST)
        spread = "spread" in OPT
        if not spread:
            issue_loads((ph + 5) % NST, (ph + 5) % NST)
        nops = norm_ops((ph + 1) % NST)
        if "nonorm" in OPT: nops = []
        ni = 0
        for f in range(18):
            g = ph * 18 + f
            nt, mat = f // 2, f % 2
            slot = g % RING
            wread(g + PF)
            a(f"s_waitcnt lgkmcnt({2*PF})")
            a(f"v_mfma_f32_16x16x32_bf16 {vr(acc(nt,mat,0),4)}, {vr(WR+slot*4,4)}, {vr(XS+ph*8,4)}, {vr(acc(nt,mat,0),4)}")
            a(f"v_mfma_f32_16x16x32_bf16 {vr(acc(nt,mat,1),4)}, {vr(WR+slot*4,4)}, {vr(XS+ph*8+4,4)}, {vr(acc(nt,mat,1),4)}")
            if f == 1:
                a("s_waitcnt vmcnt(%d)" % (15 if spread else 20))
            if spread and f % 3 == 2 and f // 3 < 5:
                for x in lg[f // 3]: a(x)
            if f >= 1:
                for _ in range(5):
                    if ni < len(nops):
                        a(nops[ni]); ni += 1
        assert ni == len(nops)
        a("s_waitcnt vmcnt(17)")
        a("s_barrier")
    a(f"s_add_u32 s{sIt}, s{sIt}, 1")
    a(f"s_cmp_lt_u32 s{sIt}, 3")
    a(f"s_cbranch_scc1 L_{name}_loop")
    stamp(a, 2)
    a("s_waitcnt vmcnt(0) lgkmcnt(0)")
    a(f"s_mov_b32 s{sA_}, {f32(GELU_A)}")
    a(f"s_mov_b32 s{sB_}, {f32(GELU_B)}")
    a(f"v_lshlrev_b32 v{vX0}, 4, v{vLane}")
    a(f"s_and_b32 s{sT}, s{sFb}, 1")
    a(f"s_lshl_b32 s{sT+1}, s{sT}, 12")
    a(f"s_add_u32 s{sT+1}, s{sT+1}, s{sHb}")
    a(f"s_lshl_b32 s{sT+2}, s{sT}, 3")
    a(f"s_add_u32 s{sT+2}, s{sT+2}, s{sHb}")
    a(f"s_add_u32 s{sT+2}, s{sT+2}, {8*1024}")
    a(f"s_add_u32 s{sT+3}, s{sT+1}, {144*1024}")
    a(f"s_add_u32 s{sT+4}, s{sT+2}, {144*1024}")
    OUT = XS
    def gelu_tile(nt, mt, dst):
        g = acc(nt, 0, mt); u = acc(nt, 1, mt)
        T = WR
        for h in range(2):
            g0, g1, u0, u1 = g+2*h, g+2*h+1, u+2*h, u+2*h+1
            x0, x1, y0, y1, t0, t1 = T+h*8, T+h*8+1, T+h*8+2, T+h*8+3, T+h*8+4, T+h*8+5
            a(f"v_cvt_pk_bf16_f32 v{x0}, v{g0}, v{g1}")
            a(f"v_cvt_pk_bf16_f32 v{y0}, v{u0}, v{u1}")
            a(f"v_and_b32 v{x1}, 0xffff0000, v{x0}")
            a(f"v_lshlrev_b32 v{x0}, 16, v{x0}")
            a(f"v_and_b32 v{y1}, 0xffff0000, v{y0}")
            a(f"v_lshlrev_b32 v{y0}, 16, v{y0}")
            a(f"v_mul_f32 v{t0}, v{x0}, v{x0}")
            a(f"v_mul_f32 v{t1}, v{x1}, v{x1}")
            a(f"v_fma_f32 v{t0}, v{t0}, s{sB_}, v{vT}")
            a(f"v_fma_f32 v{t1}, v{t1}, s{sB_}, v{vT}")
            a(f"v_mul_f32 v{t0}, v{t0}, v{x0}")
            a(f"v_mul_f32 v{t1}, v{t1}, v{x1}")
            a(f"v_exp_f32 v{t0}, v{t0}")
            a(f"v_exp_f32 v{t1}, v{t1}")
            a("s_nop 0")
            a(f"v_add_f32 v{t0}, 1.0, v{t0}")
            a(f"v_add_f32 v{t1}, 1.0, v{t1}")
            a(f"v_rcp_f32 v{t0}, v{t0}")
            a(f"v_rcp_f32 v{t1}, v{t1}")
            a("s_nop 0")
            a(f"v_mul_f32 v{t0}, v{t0}, v{x0}")
            a(f"v_mul_f32 v{t1}, v{t1}, v{x1}")
            a(f"v_cvt_pk_bf16_f32 v{t0}, v{t0}, v{t1}")
            a(f"v_and_b32 v{t1}, 0xffff0000, v{t0}")
            a(f"v_lshlrev_b32 v{t0}, 16, v{t0}")
            a(f"v_mul_f32 v{t0}, v{t0}, v{y0}")
            a(f"v_mul_f32 v{t1}, v{t1}, v{y1}")
            a(f"v_cvt_pk_bf16_f32 v{dst+h}, v{t0}, v{t1}")
    a(f"v_mov_b32 v{vT}, s{sA_}")
    a("s_nop 7")
    k = 0
    for mt in range(2):
        for p in range(4):
            o = OUT + (k % 12) * 4; k += 1
            gelu_tile(2*p, mt, o)
            gelu_tile(2*p+1, mt, o+2)
            a(f"buffer_store_dwordx4 {vr(o,4)}, v{vX0}, {sr(sH,4)}, s{sT+1+2*mt} offen offset:{p*1024}")
        o = OUT + (k % 12) * 4; k += 1
        gelu_tile(8, mt, o)
        a(f"buffer_store_dwordx2 {vr(o,2)}, v{vX0}, {sr(sH,4)}, s{sT+2+2*mt} offen")
    stamp(a, 3)
    a("s_waitcnt vmcnt(0)")
    stamp(a, 4)
    stamp(a, 6, True)
    stamp_dump(a, 7, 8, sWave, vT)
    a.lab(f"L_{name}_done")
    a("s_endpgm")
    return a.text(), kernel_desc(name, NV), f"; @launch kernel={name} grid=(256,1,1) block=(512,1,1) lds={NST*STG}"


def lds_dump(a, nbytes, wg, tidv, tv, off_mb, nthreads=512, tag="d"):
    a(f"s_cmp_lg_u32 s2, {wg}")
    a(f"s_cbranch_scc1 L_dump_{tag}")
    srd(a, 80, 8, 1 << 20, off_mb << 20)
    a(f"v_lshlrev_b32 v{tv}, 4, v{tidv}")
    for i in range(0, nbytes, nthreads*16):
        a(f"v_add_u32 v{tv+1}, {i}, v{tv}")
        a(f"ds_read_b128 v[{tv+2}:{tv+5}], v{tv+1}")
        a("s_waitcnt lgkmcnt(0)")
        a(f"buffer_store_dwordx4 v[{tv+2}:{tv+5}], v{tv+1}, s[80:83], 0 offen")
        a("s_waitcnt vmcnt(0)")
    a.lab(f"L_dump_{tag}")
    a("s_barrier")

class VM:
    def __init__(self, a):
        self.a = a; self.ops = []
    def op(self, tag, text):
        self.a(text); self.ops.append(tag)
    def wait(self, tagpred, extra=""):
        last = -1
        for i, t in enumerate(self.ops):
            if tagpred(t): last = i
        n = len(self.ops) - 1 - last
        assert n <= 63
        if last >= 0:
            self.a(f"s_waitcnt vmcnt({n}){extra}")
            self.ops = self.ops[last+1:]

def gen_k4(name="k4_kernel"):
    a = A(); vm = VM(a)
    kernel_head(a, name)
    NST = 6; STG = 18432; RING = 6; PFD = 5
    ACC = 4
    XS = 76
    WR = 124
    vWa, vWb = 148, 149
    vD0, vD1, vD2 = 150, 151, 152
    vX0, vX1 = 153, 154
    vT = 156
    NV = 172
    def acc(nt, mt): return ACC + (nt*2+mt)*4
    sW, sX, sP = 12, 16, 20
    sWave, sKs, sMb, sNb = 28, 29, 30, 31
    sWb1, sWb2, sXb, sM0b = 32, 33, 34, 35
    sT = 36
    sExec = 50
    sWo = 52
    a("s_cmp_ge_u32 s2, 256")
    a(f"s_cbranch_scc1 L_{name}_done")
    a("s_load_dwordx2 s[4:5], s[0:1], 48")
    a("s_load_dwordx2 s[8:9], s[0:1], 72")
    a("v_lshrrev_b32 v1, 6, v0")
    a("v_and_b32 v0, 63, v0")
    a("s_nop 0")
    a(f"v_readfirstlane_b32 s{sWave}, v1")
    a(f"s_and_b32 s{sT}, s2, 7")
    a(f"s_lshr_b32 s{sT+1}, s2, 3")
    a(f"s_lshr_b32 s{sKs}, s{sT}, 1")
    a(f"s_and_b32 s{sNb}, s{sT+1}, 3")
    a(f"s_and_b32 s{sT}, s{sT}, 1")
    a(f"s_lshl_b32 s{sT}, s{sT}, 3")
    a(f"s_lshr_b32 s{sMb}, s{sT+1}, 2")
    a(f"s_add_u32 s{sMb}, s{sMb}, s{sT}")
    a("s_waitcnt lgkmcnt(0)")
    srd(a, sW, 4, 4608*576*2)
    srd(a, sX, 8, HH_SZ, HH_OFF)
    srd(a, sP, 8, P_SZ, P_OFF)
    for t, vd in enumerate((vD0, vD1, vD2)):
        a(f"v_add_u32 v{vT+1}, {t*64}, v0")
        a(f"v_mul_u32_u24 v{vT+2}, 3641, v{vT+1}")
        a(f"v_lshrrev_b32 v{vT+2}, 16, v{vT+2}")
        a(f"v_mul_u32_u24 v{vT+3}, 18, v{vT+2}")
        a(f"v_sub_u32 v{vT+3}, v{vT+1}, v{vT+3}")
        a(f"v_mul_u32_u24 v{vT+2}, 1152, v{vT+2}")
        a(f"v_lshl_add_u32 v{vd}, v{vT+3}, 4, v{vT+2}")
    a(f"s_lshr_b32 s{sT}, s{sWave}, 2")
    a(f"s_lshl_b32 s{sT+1}, s{sKs}, 1")
    a(f"s_add_u32 s{sT+1}, s{sT+1}, s{sT}")
    a(f"s_mul_i32 s{sWb1}, s{sT+1}, {576*1152}")
    a(f"s_and_b32 s{sT+2}, s{sWave}, 3")
    a(f"s_mul_i32 s{sT+3}, s{sT+2}, {8*1152}")
    a(f"s_add_u32 s{sWb1}, s{sWb1}, s{sT+3}")
    a(f"s_mul_i32 s{sT+3}, s{sNb}, 288")
    a(f"s_add_u32 s{sWb1}, s{sWb1}, s{sT+3}")
    a(f"s_cmp_ge_u32 s{sT+2}, 2")
    a(f"s_cselect_b32 s{sT+3}, {128*1152}, 0")
    a(f"s_add_u32 s{sWb2}, s{sWb1}, s{sT+3}")
    a(f"s_mul_i32 s{sM0b}, s{sWave}, 2304")
    a(f"s_lshl_b32 s{sXb}, s{sMb}, 3")
    a(f"s_lshl_b32 s{sT+3}, s{sT+2}, 1")
    a(f"s_add_u32 s{sXb}, s{sXb}, s{sT+3}")
    a(f"s_mov_b32 s{sT+4}, s{sXb}")
    a(f"s_mul_i32 s{sXb}, s{sXb}, 144")
    a(f"s_mul_i32 s{sT+3}, s{sT+1}, 18")
    a(f"s_add_u32 s{sXb}, s{sXb}, s{sT+3}")
    a(f"s_lshl_b32 s{sXb}, s{sXb}, 10")
    a(f"v_lshlrev_b32 v{vX0}, 4, v0")
    a(f"v_add_u32 v{vX0}, s{sXb}, v{vX0}")
    a(f"v_add_u32 v{vX1}, {144*1024}, v{vX0}")
    a(f"s_lshl_b32 s{sT+5}, s{sKs}, 7")
    a(f"s_add_u32 s{sT+5}, s{sT+5}, s{sT+4}")
    a(f"s_add_u32 s{sT+5}, s{sT+5}, s{sT}")
    a(f"s_mul_i32 s{sT+5}, s{sT+5}, 36")
    a(f"s_mul_i32 s{sT+6}, s{sNb}, 9")
    a(f"s_add_u32 s{sT+5}, s{sT+5}, s{sT+6}")
    a(f"s_lshl_b32 s{sT+5}, s{sT+5}, 10")
    a(f"v_lshrrev_b32 v{vT+1}, 2, v0")
    a(f"v_mul_u32_u24 v{vT+1}, 288, v{vT+1}")
    a(f"v_and_b32 v{vT+2}, 3, v0")
    a(f"v_lshl_add_u32 v{vWa}, v{vT+2}, 3, v{vT+1}")
    a(f"s_mul_i32 s{sT+6}, s{sT}, 9216")
    a(f"v_add_u32 v{vWa}, s{sT+6}, v{vWa}")
    a(f"v_add_u32 v{vWb}, {3*STG}, v{vWa}")
    a(f"s_mov_b64 s[{sExec}:{sExec+1}], 0xffff")

    def fa_rel(i):
        q, ii = divmod(i, 9)
        if ii < 4: return 288*q + 32*ii
        if ii < 8: return 288*q + 144 + 32*(ii-4)
        return 288*q + 128
    def load_groups(i):
        if i >= 18: return []
        st = i % NST
        gs = []
        base = sWb2 if i % 9 == 8 else sWb1
        for t, vd in enumerate((vD0, vD1, vD2)):
            g = []
            if t == 0:
                g.append(("s", f"s_add_u32 s{sWo}, s{base}, {fa_rel(i)*1152}"))
            g.append(("s", f"s_add_u32 m0, s{sM0b}, {st*STG + t*1024}"))
            g.append(("s", f"s_mov_b64 exec, s[{sExec}:{sExec+1}]" if t == 2 else "s_nop 0"))
            g.append((("W", i), f"buffer_load_dwordx4 v{vd}, {sr(sW,4)}, s{sWo} offen lds"))
            if t == 2: g.append(("s", "s_mov_b64 exec, -1"))
            gs.append(g)
        xs = XS + (i % NST) * 8
        gs.append([("s", f"s_mov_b32 s{sWo+1}, {i*1024}"),
                   (("X", i), f"buffer_load_dwordx4 {vr(xs,4)}, v{vX0}, {sr(sX,4)}, s{sWo+1} offen")])
        gs.append([(("X", i), f"buffer_load_dwordx4 {vr(xs+4,4)}, v{vX1}, {sr(sX,4)}, s{sWo+1} offen")])
        return gs
    def emit_group(g):
        for tag, txt in g:
            if tag == "s": a(txt)
            else: vm.op(tag, txt)
    for i in range(PFD):
        for g in load_groups(i): emit_group(g)
    for i in range(0, 72, 2):
        a(f"v_mov_b64 {vr(ACC+i,2)}, 0")
    def wread(gidx):
        i, nt = divmod(gidx, 9)
        if i >= 18: return False
        st = i % NST; slot = gidx % RING
        base = vWa if st < 3 else vWb
        off = (st % 3) * STG + nt * 32
        a(f"ds_read_b64_tr_b16 {vr(WR+slot*4,2)}, v{base} offset:{off}")
        a(f"ds_read_b64_tr_b16 {vr(WR+slot*4+2,2)}, v{base} offset:{off+4608}")
        return True
    PF = RING - 1
    vm.wait(lambda t: t[1] <= 1)
    a("s_barrier")
    for f in range(PF): wread(f)
    for i in range(18):
        lg = load_groups(i + PFD)
        vm.wait(lambda t: t[0] == "X" and t[1] <= i)
        for nt in range(9):
            g = i*9 + nt; slot = g % RING
            ok = wread(g + PF)
            rem = min(PF, 18*9 - 1 - g)
            a(f"s_waitcnt lgkmcnt({2*rem})")
            xs = XS + (i % NST) * 8
            a(f"v_mfma_f32_16x16x32_bf16 {vr(acc(nt,0),4)}, {vr(WR+slot*4,4)}, {vr(xs,4)}, {vr(acc(nt,0),4)}")
            a(f"v_mfma_f32_16x16x32_bf16 {vr(acc(nt,1),4)}, {vr(WR+slot*4,4)}, {vr(xs+4,4)}, {vr(acc(nt,1),4)}")
            if nt % 2 == 0 and nt // 2 < len(lg):
                emit_group(lg[nt // 2])
        vm.wait(lambda t: t[0] == "W" and t[1] <= i + 2)
        a("s_barrier")
    a(f"s_lshr_b32 s{sT}, s{sWave}, 2")
    a(f"v_lshlrev_b32 v{vT}, 4, v0")
    a(f"s_mul_i32 s{sT+1}, s{sWave}, 9216")
    a(f"v_add_u32 v{vT+1}, s{sT+1}, v{vT}")
    a(f"s_xor_b32 s{sT+2}, s{sWave}, 4")
    a(f"s_mul_i32 s{sT+2}, s{sT+2}, 9216")
    a(f"v_add_u32 v{vT+2}, s{sT+2}, v{vT}")
    a(f"s_cmp_eq_u32 s{sT}, 0")
    a("s_nop 4")
    a(f"s_cbranch_scc0 L_{name}_kh1")
    for kh in range(2):
        if kh == 1: a.lab(f"L_{name}_kh1")
        for nt in range(9):
            a(f"ds_write_b128 v{vT+1}, {vr(acc(nt,1-kh),4)} offset:{nt*1024}")
        a("s_waitcnt lgkmcnt(0)")
        a("s_barrier")
        for nt in range(9):
            a(f"ds_read_b128 {vr(XS+nt*4,4)}, v{vT+2} offset:{nt*1024}")
        for nt in range(9):
            a(f"s_waitcnt lgkmcnt({8-nt})")
            for r in range(4):
                a(f"v_add_f32 v{XS+nt*4+r}, v{XS+nt*4+r}, v{acc(nt,kh)+r}")
            if nt < 4:
                a(f"buffer_store_dwordx4 {vr(XS+nt*4,4)}, v{vT}, {sr(sP,4)}, s{sT+5} offen offset:{nt*1024}")
            else:
                if nt in (4, 8): a(f"s_add_u32 s{sT+5}, s{sT+5}, 4096")
                a(f"buffer_store_dwordx4 {vr(XS+nt*4,4)}, v{vT}, {sr(sP,4)}, s{sT+5} offen offset:{(nt%4)*1024}")
        a("s_endpgm")
    a.lab(f"L_{name}_done")
    a("s_endpgm")
    return a.text(), kernel_desc(name, NV), f"; @launch kernel={name} grid=(256,1,1) block=(512,1,1) lds={NST*STG}"

def gen_k5(name="k5_kernel"):
    a = A()
    kernel_head(a, name)
    sH, sP, sO = 12, 16, 20
    a("s_cmp_ge_u32 s2, 576")
    a(f"s_cbranch_scc1 L_{name}_done")
    a("s_load_dwordx2 s[4:5], s[0:1], 56")
    a("s_load_dwordx2 s[8:9], s[0:1], 72")
    a("v_lshrrev_b32 v1, 6, v0")
    a("v_and_b32 v0, 63, v0")
    a("s_nop 0")
    a("v_readfirstlane_b32 s28, v1")
    a("s_lshl_b32 s29, s2, 2")
    a("s_add_u32 s29, s29, s28")
    a("s_mul_i32 s30, s29, 3641")
    a("s_lshr_b32 s30, s30, 16")
    a("s_mul_i32 s31, s30, 18")
    a("s_sub_u32 s31, s29, s31")
    a("s_waitcnt lgkmcnt(0)")
    srd(a, sH, 8, H1_SZ, H1_OFF)
    srd(a, sP, 8, P_SZ, P_OFF)
    srd(a, sO, 4, 2048*576*2)
    a("v_lshlrev_b32 v1, 4, v0")
    a("s_lshl_b32 s32, s29, 10")
    a("s_lshl_b32 s33, s29, 11")
    a(f"buffer_load_dwordx4 v[4:7], v1, {sr(sH,4)}, s32 offen")
    for k in range(4):
        a(f"buffer_load_dwordx4 v[{8+k*8}:{11+k*8}], v1, {sr(sP,4)}, s33 offen")
        a(f"buffer_load_dwordx4 v[{12+k*8}:{15+k*8}], v1, {sr(sP,4)}, s33 offen offset:1024")
        if k < 3: a(f"s_add_u32 s33, s33, {128*36*1024}")
    a("v_and_b32 v2, 15, v0")
    a("s_lshl_b32 s34, s30, 4")
    a("v_add_u32 v2, s34, v2")
    a("v_mul_u32_u24 v2, 1152, v2")
    a("v_lshrrev_b32 v3, 4, v0")
    a("v_lshl_add_u32 v2, v3, 3, v2")
    a("s_lshl_b32 s34, s31, 6")
    a("s_waitcnt vmcnt(0)")
    for i in range(8):
        a(f"v_add_f32 v{8+i}, v{8+i}, v{16+i}")
        a(f"v_add_f32 v{24+i}, v{24+i}, v{32+i}")
    for i in range(8):
        a(f"v_add_f32 v{8+i}, v{8+i}, v{24+i}")
    for p in range(4):
        a(f"v_cvt_pk_bf16_f32 v{16+p}, v{8+2*p}, v{9+2*p}")
    for p in range(4):
        a(f"v_lshlrev_b32 v{24+2*p}, 16, v{16+p}")
        a(f"v_and_b32 v{25+2*p}, 0xffff0000, v{16+p}")
        a(f"v_lshlrev_b32 v{32+2*p}, 16, v{4+p}")
        a(f"v_and_b32 v{33+2*p}, 0xffff0000, v{4+p}")
    for i in range(8):
        a(f"v_add_f32 v{24+i}, v{24+i}, v{32+i}")
    for p in range(4):
        a(f"v_cvt_pk_bf16_f32 v{16+p}, v{24+2*p}, v{25+2*p}")
    a(f"buffer_store_dwordx2 v[16:17], v2, {sr(sO,4)}, s34 offen")
    a(f"buffer_store_dwordx2 v[18:19], v2, {sr(sO,4)}, s34 offen offset:32")
    a.lab(f"L_{name}_done")
    a("s_endpgm")
    return a.text(), kernel_desc(name, 40, 48), f"; @launch kernel={name} grid=(576,1,1) block=(256,1,1) lds=0"


def gen_k2(name="k2_kernel"):
    a = A(); vm = VM(a)
    kernel_head(a, name)
    PITCH = 224; BLK = 32*PITCH
    ACC = 4
    OF = 28
    XR = 100
    WR = 112
    vD = 160
    vWa, vWb = 167, 168
    vT = 170
    NV = 188
    sW, sO, sXs, sH, sST = 12, 16, 20, 24, 28
    sWave, sRb, sNb, sT = 32, 33, 34, 36
    a("s_cmp_ge_u32 s2, 192")
    a(f"s_cbranch_scc1 L_{name}_done")
    a("s_load_dwordx2 s[4:5], s[0:1], 0")
    a("s_load_dwordx2 s[6:7], s[0:1], 16")
    a("s_load_dwordx2 s[8:9], s[0:1], 72")
    a("v_lshrrev_b32 v1, 6, v0")
    a("v_and_b32 v0, 63, v0")
    a("s_nop 0")
    a(f"v_readfirstlane_b32 s{sWave}, v1")
    a(f"s_mul_i32 s{sRb}, s2, 10923")
    a(f"s_lshr_b32 s{sRb}, s{sRb}, 16")
    a(f"s_mul_i32 s{sT}, s{sRb}, 6")
    a(f"s_sub_u32 s{sNb}, s2, s{sT}")
    a("s_waitcnt lgkmcnt(0)")
    srd(a, sW, 6, 576*576*2)
    srd(a, sO, 8, O_SZ, O_OFF)
    srd(a, sXs, 4, 2048*576*2)
    srd(a, sH, 8, H1_SZ, H1_OFF)
    srd(a, sST, 8, ST_SZ, ST_OFF)
    a(f"s_mul_i32 s{sT}, s{sNb}, 192")
    a(f"s_mov_b32 s{sT+1}, 0x40000000")
    for t in range(7):
        a(f"v_add_u32 v{vT}, {t*64}, v0")
        a(f"v_mul_u32_u24 v{vT+1}, 4682, v{vT}")
        a(f"v_lshrrev_b32 v{vT+1}, 16, v{vT+1}")
        a(f"v_mul_u32_u24 v{vT+2}, 14, v{vT+1}")
        a(f"v_sub_u32 v{vT+2}, v{vT}, v{vT+2}")
        a(f"v_and_b32 v{vT+3}, 4, v{vT+1}")
        a(f"v_lshlrev_b32 v{vT+3}, 1, v{vT+3}")
        a(f"v_and_b32 v{vT+4}, 8, v{vT+1}")
        a(f"v_lshrrev_b32 v{vT+4}, 1, v{vT+4}")
        a(f"v_and_b32 v{vT+1}, 0x13, v{vT+1}")
        a(f"v_or3_b32 v{vT+1}, v{vT+1}, v{vT+3}, v{vT+4}")
        a(f"v_mul_u32_u24 v{vT+1}, 1152, v{vT+1}")
        a(f"v_lshl_add_u32 v{vT+1}, v{vT+2}, 4, v{vT+1}")
        a(f"v_add_u32 v{vT+1}, s{sT}, v{vT+1}")
        a(f"v_cmp_gt_u32 vcc, 12, v{vT+2}")
        a(f"v_mov_b32 v{vT+3}, s{sT+1}")
        a("s_nop 0")
        a(f"v_cndmask_b32 v{vD+t}, v{vT+3}, v{vT+1}, vcc")
    a(f"s_mul_i32 s{sT+2}, s{sWave}, {32*1152}")
    a(f"s_mul_i32 s{sT+3}, s{sWave}, {BLK}")
    for bi in range(5):
        if bi == 4:
            a(f"s_cmp_ge_u32 s{sWave}, 2")
            a(f"s_cbranch_scc1 L_{name}_skipdma")
        for t in range(7):
            a(f"s_add_u32 m0, s{sT+3}, {bi*4*BLK + t*1024}")
            a("s_nop 0")
            a(f"buffer_load_dwordx4 v{vD+t}, {sr(sW,4)}, s{sT+2} offen lds")
        a(f"s_add_u32 s{sT+2}, s{sT+2}, {4*32*1152}")
    a.lab(f"L_{name}_skipdma")
    a(f"s_lshl_b32 s{sT}, s{sRb}, 6")
    a(f"s_lshl_b32 s{sT+1}, s{sWave}, 4")
    a(f"s_add_u32 s{sT}, s{sT}, s{sT+1}")
    a(f"v_and_b32 v{vT}, 15, v0")
    a(f"v_add_u32 v{vT}, s{sT}, v{vT}")
    a(f"v_mul_u32_u24 v{vT+1}, 1152, v{vT}")
    a(f"v_lshrrev_b32 v{vT+2}, 4, v0")
    a(f"v_lshl_add_u32 v{vT+3}, v{vT+2}, 4, v{vT+1}")
    for s_ in range(18):
        a(f"buffer_load_dwordx4 {vr(OF+s_*4,4)}, v{vT+3}, {sr(sO,4)}, 0 offen offset:{s_*64}")
    a(f"v_lshl_add_u32 v{vT+4}, v{vT+2}, 3, v{vT+1}")
    a(f"s_mul_i32 s{sT+1}, s{sNb}, 192")
    for nt in range(6):
        a(f"buffer_load_dwordx2 {vr(XR+nt*2,2)}, v{vT+4}, {sr(sXs,4)}, s{sT+1} offen offset:{nt*32}")
    a(f"v_lshrrev_b32 v{vT+5}, 5, v0")
    a(f"v_lshlrev_b32 v{vT+5}, 4, v{vT+5}")
    a(f"v_bfe_u32 v{vT+6}, v0, 2, 3")
    a(f"v_add_u32 v{vT+5}, v{vT+5}, v{vT+6}")
    a(f"v_mul_u32_u24 v{vT+5}, {PITCH}, v{vT+5}")
    a(f"v_and_b32 v{vT+6}, 3, v0")
    a(f"v_lshl_add_u32 v{vWa}, v{vT+6}, 3, v{vT+5}")
    a(f"v_add_u32 v{vWb}, {9*BLK}, v{vWa}")
    for i in range(0, 24, 2):
        a(f"v_mov_b64 {vr(ACC+i,2)}, 0")
    a("s_waitcnt vmcnt(0)")
    a("s_barrier")
    def wread(s_, buf):
        base = vWa if s_ < 9 else vWb
        for nt in range(6):
            off = (s_ % 9) * BLK + nt * 32
            a(f"ds_read_b64_tr_b16 {vr(WR+buf*24+nt*4,2)}, v{base} offset:{off}")
            a(f"ds_read_b64_tr_b16 {vr(WR+buf*24+nt*4+2,2)}, v{base} offset:{off+8*PITCH}")
    wread(0, 0)
    for s_ in range(18):
        if s_ < 17:
            wread(s_+1, (s_+1) % 2)
            a("s_waitcnt lgkmcnt(12)")
        else:
            a("s_waitcnt lgkmcnt(0)")
        for nt in range(6):
            a(f"v_mfma_f32_16x16x32_bf16 {vr(ACC+nt*4,4)}, {vr(WR+(s_%2)*24+nt*4,4)}, {vr(OF+s_*4,4)}, {vr(ACC+nt*4,4)}")
    a("s_nop 7")
    HP = WR
    for nt in range(6):
        for p in range(2):
            c0 = ACC + nt*4 + 2*p
            a(f"v_cvt_pk_bf16_f32 v{vT}, v{c0}, v{c0+1}")
            a(f"v_lshlrev_b32 v{c0}, 16, v{vT}")
            a(f"v_and_b32 v{c0+1}, 0xffff0000, v{vT}")
            a(f"v_lshlrev_b32 v{vT+1}, 16, v{XR+nt*2+p}")
            a(f"v_and_b32 v{vT+2}, 0xffff0000, v{XR+nt*2+p}")
            a(f"v_add_f32 v{c0}, v{c0}, v{vT+1}")
            a(f"v_add_f32 v{c0+1}, v{c0+1}, v{vT+2}")
            a(f"v_cvt_pk_bf16_f32 v{HP+nt*2+p}, v{c0}, v{c0+1}")
            a(f"v_lshlrev_b32 v{c0}, 16, v{HP+nt*2+p}")
            a(f"v_and_b32 v{c0+1}, 0xffff0000, v{HP+nt*2+p}")
    a(f"s_lshl_b32 s{sT}, s{sRb}, 2")
    a(f"s_add_u32 s{sT}, s{sT}, s{sWave}")
    a(f"s_mul_i32 s{sT+1}, s{sT}, 18")
    a(f"s_mul_i32 s{sT+2}, s{sNb}, 3")
    a(f"s_add_u32 s{sT+1}, s{sT+1}, s{sT+2}")
    a(f"s_lshl_b32 s{sT+1}, s{sT+1}, 10")
    a(f"v_lshlrev_b32 v{vT}, 4, v0")
    for p in range(3):
        a(f"buffer_store_dwordx4 {vr(HP+p*4,4)}, v{vT}, {sr(sH,4)}, s{sT+1} offen offset:{p*1024}")
    def xreduce(v, t):
        a(f"v_xor_b32 v{t}, 16, v0")
        a(f"v_lshlrev_b32 v{t}, 2, v{t}")
        a(f"ds_bpermute_b32 v{t+1}, v{t}, v{v}")
        a("s_waitcnt lgkmcnt(0)")
        a(f"v_add_f32 v{v}, v{v}, v{t+1}")
        a(f"v_xor_b32 v{t}, 32, v0")
        a(f"v_lshlrev_b32 v{t}, 2, v{t}")
        a(f"ds_bpermute_b32 v{t+1}, v{t}, v{v}")
        a("s_waitcnt lgkmcnt(0)")
        a(f"v_add_f32 v{v}, v{v}, v{t+1}")
    S0, S1 = vT+4, vT+5
    a(f"v_add_f32 v{S0}, v{ACC}, v{ACC+1}")
    for i in range(2, 24):
        a(f"v_add_f32 v{S0}, v{S0}, v{ACC+i}")
    xreduce(S0, vT+6)
    a(f"v_mul_f32 v{S0}, {f32(1.0/96.0)}, v{S0}")
    a(f"v_mov_b32 v{S1}, 0")
    for i in range(24):
        a(f"v_sub_f32 v{vT+1}, v{ACC+i}, v{S0}")
        a(f"v_fmac_f32 v{S1}, v{vT+1}, v{vT+1}")
    xreduce(S1, vT+6)
    a(f"s_lshl_b32 s{sT}, s{sT}, 4")
    a(f"v_add_u32 v{vT}, s{sT}, v0")
    a(f"v_mul_u32_u24 v{vT}, 48, v{vT}")
    a(f"s_lshl_b32 s{sT+1}, s{sNb}, 3")
    a("s_mov_b64 exec, 0xffff")
    a(f"buffer_store_dwordx2 {vr(S0,2)}, v{vT}, {sr(sST,4)}, s{sT+1} offen")
    a.lab(f"L_{name}_done")
    a("s_endpgm")
    return a.text(), kernel_desc(name, NV, 48), f"; @launch kernel={name} grid=(192,1,1) block=(256,1,1) lds={18*BLK}"

def gen_k1(name="k1_kernel"):
    a = A(); vm = VM(a)
    kernel_head(a, name)
    XT = 0
    WB = 92160; STG = 16384; NST = 4; PITCH = 480
    QP = 624
    ACC = 4
    XF = 44
    WF = 84
    RAW = 100
    vD0, vD1 = 150, 151
    vWa, vXa = 152, 153
    vT = 156
    NV = 200
    sW, sXs, sO = 12, 16, 20
    sWave, sRb, sHg, sT = 28, 29, 30, 36
    sWo, sM0b = 31, 32
    a("s_cmp_ge_u32 s2, 256")
    a(f"s_cbranch_scc1 L_{name}_done")
    a("s_load_dwordx4 s[4:7], s[0:1], 0")
    a("s_load_dwordx2 s[8:9], s[0:1], 72")
    a("v_lshrrev_b32 v1, 6, v0")
    a("v_mov_b32 v3, v0")
    a("v_and_b32 v0, 63, v0")
    a(f"v_readfirstlane_b32 s{sWave}, v1")
    a(f"s_and_b32 s{sHg}, s2, 7")
    a(f"s_lshr_b32 s{sRb}, s2, 3")
    a("s_waitcnt lgkmcnt(0)")
    srd(a, sW, 6, 576*1728*2)
    srd(a, sXs, 4, 2048*576*2)
    srd(a, sO, 8, O_SZ, O_OFF)
    a(f"v_mul_u32_u24 v{vT}, 10923, v0")
    a(f"v_lshrrev_b32 v{vT}, 16, v{vT}")
    a(f"v_mul_u32_u24 v{vT+1}, 6, v{vT}")
    a(f"v_sub_u32 v{vT+1}, v0, v{vT+1}")
    a(f"s_mul_i32 s{sT}, s{sWave}, 10")
    a(f"v_add_u32 v{vT+2}, s{sT}, v{vT}")
    a(f"s_lshl_b32 s{sT+1}, s{sRb}, 6")
    a(f"s_sub_u32 s{sT+1}, s{sT+1}, 16")
    a(f"v_add_u32 v{vT+3}, s{sT+1}, v{vT+2}")
    a(f"s_movk_i32 s{sT+2}, 1152")
    a(f"v_mul_lo_u32 v{vT+3}, v{vT+3}, s{sT+2}")
    a(f"v_lshl_add_u32 v{vT+3}, v{vT+1}, 4, v{vT+3}")
    for i in range(12):
        vm.op(("x", i), f"buffer_load_dwordx4 {vr(RAW+i*4,4)}, v{vT+3}, {sr(sXs,4)}, 0 offen offset:{i*96}")
    a(f"s_lshl_b32 s{sT}, s{sWave}, 7")
    a(f"s_mul_i32 s{sT+1}, s{sHg}, 144")
    a(f"s_mov_b32 s{sT+2}, 0x40000000")
    for t, vd in enumerate((vD0, vD1)):
        a(f"v_add_u32 v{vT+4}, s{sT}, v0")
        if t: a(f"v_add_u32 v{vT+4}, 64, v{vT+4}")
        a(f"v_mul_u32_u24 v{vT+5}, 2185, v{vT+4}")
        a(f"v_lshrrev_b32 v{vT+5}, 16, v{vT+5}")
        a(f"v_mul_u32_u24 v{vT+6}, 30, v{vT+5}")
        a(f"v_sub_u32 v{vT+6}, v{vT+4}, v{vT+6}")
        a(f"v_mul_u32_u24 v{vT+7}, 7282, v{vT+6}")
        a(f"v_lshrrev_b32 v{vT+7}, 16, v{vT+7}")
        a(f"v_mul_u32_u24 v{vT+8}, 9, v{vT+7}")
        a(f"v_sub_u32 v{vT+8}, v{vT+6}, v{vT+8}")
        a(f"v_mul_u32_u24 v{vT+7}, 1152, v{vT+7}")
        a(f"v_lshl_add_u32 v{vT+7}, v{vT+8}, 4, v{vT+7}")
        a(f"v_and_b32 v{vT+8}, 4, v{vT+5}")
        a(f"v_lshlrev_b32 v{vT+8}, 1, v{vT+8}")
        a(f"v_and_b32 v{vT+9}, 8, v{vT+5}")
        a(f"v_lshrrev_b32 v{vT+9}, 1, v{vT+9}")
        a(f"v_and_b32 v{vT+10}, 0x13, v{vT+5}")
        a(f"v_or3_b32 v{vT+8}, v{vT+8}, v{vT+9}, v{vT+10}")
        a(f"v_mul_u32_u24 v{vT+8}, 3456, v{vT+8}")
        a(f"v_add3_u32 v{vT+7}, v{vT+7}, v{vT+8}, s{sT+1}")
        a(f"v_cmp_gt_u32 vcc, 27, v{vT+6}")
        a(f"v_cmp_gt_u32 s[{sT+4}:{sT+5}], 32, v{vT+5}")
        a(f"s_and_b64 vcc, vcc, s[{sT+4}:{sT+5}]")
        a(f"v_mov_b32 v{vT+8}, s{sT+2}")
        a("s_nop 1")
        a(f"v_cndmask_b32 v{vd}, v{vT+8}, v{vT+7}, vcc")
    a(f"s_lshl_b32 s{sM0b}, s{sWave}, 11")
    a(f"s_add_u32 s{sM0b}, s{sM0b}, {WB}")
    def wdma(i):
        if i >= 18: return
        st = i % NST
        a(f"s_mov_b32 s{sWo}, {i*32*3456}")
        for t, vd in enumerate((vD0, vD1)):
            a(f"s_add_u32 m0, s{sM0b}, {st*STG + t*1024}")
            a("s_nop 0")
            vm.op(("W", i), f"buffer_load_dwordx4 v{vd}, {sr(sW,4)}, s{sWo} offen lds")
    for i in range(3): wdma(i)
    ONES_LO, ONES_HI, ONES = sT+6, sT+7, sT+8
    a(f"s_mov_b32 s{ONES}, 0x3f803f80")
    S, M, Q = vT+4, vT+5, vT+6
    B3, B1, B2 = vT+8, vT+9, vT+10
    for d_, vb in ((3, B3), (1, B1), (2, B2)):
        a(f"v_add_u32 v{vb}, {d_}, v{vT+1}")
        a(f"v_subrev_u32 v{vT+11}, 6, v{vb}")
        a(f"v_min_u32 v{vb}, v{vb}, v{vT+11}")
        a(f"v_mad_u32_u24 v{vb}, v{vT}, 6, v{vb}")
        a(f"v_lshlrev_b32 v{vb}, 2, v{vb}")
    def reduce6(v):
        a(f"ds_bpermute_b32 v{vT+11}, v{B3}, v{v}")
        a("s_waitcnt lgkmcnt(0)")
        a(f"v_add_f32 v{v}, v{v}, v{vT+11}")
        a(f"ds_bpermute_b32 v{vT+11}, v{B1}, v{v}")
        a(f"ds_bpermute_b32 v{vT+12}, v{B2}, v{v}")
        a("s_waitcnt lgkmcnt(0)")
        a(f"v_add_f32 v{v}, v{v}, v{vT+11}")
        a(f"v_add_f32 v{v}, v{v}, v{vT+12}")
    vm.wait(lambda t: t[0] == "x")
    a(f"v_mov_b32 v{S}, 0")
    a(f"v_mov_b32 v{Q}, 0")
    for i in range(48):
        a(f"v_dot2_f32_bf16 v{S if i%2==0 else Q}, v{RAW+i}, s{ONES}, v{S if i%2==0 else Q}")
    a("s_nop 2")
    a(f"v_add_f32 v{S}, v{S}, v{Q}")
    reduce6(S)
    a(f"v_mul_f32 v{S}, {f32(1.0/576.0)}, v{S}")
    a(f"v_mov_b32 v{Q}, 0")
    a(f"v_mov_b32 v{vT+13}, 0")
    for i in range(48):
        a(f"v_lshlrev_b32 v{vT+11}, 16, v{RAW+i}")
        a(f"v_and_b32 v{vT+12}, 0xffff0000, v{RAW+i}")
        a(f"v_sub_f32 v{vT+11}, v{vT+11}, v{S}")
        a(f"v_sub_f32 v{vT+12}, v{vT+12}, v{S}")
        a(f"v_fmac_f32 v{Q}, v{vT+11}, v{vT+11}")
        a(f"v_fmac_f32 v{vT+13}, v{vT+12}, v{vT+12}")
    a(f"v_add_f32 v{Q}, v{Q}, v{vT+13}")
    reduce6(Q)
    a(f"v_mul_f32 v{Q}, {f32(1.0/576.0)}, v{Q}")
    round_bf16(a, M, S)
    round_bf16(a, Q, Q)
    a(f"v_add_f32 v{Q}, {f32(1e-5)}, v{Q}")
    round_bf16(a, Q, Q)
    a(f"v_sqrt_f32 v{Q}, v{Q}")
    a("s_nop 0")
    round_bf16(a, Q, Q)
    a(f"v_rcp_f32 v{Q}, v{Q}")
    a(f"v_lshrrev_b32 v{vT+11}, 4, v{vT+2}")
    a(f"v_mul_u32_u24 v{vT+11}, 18432, v{vT+11}")
    a(f"v_and_b32 v{vT+12}, 15, v{vT+2}")
    a(f"v_lshl_add_u32 v{vT+11}, v{vT+12}, 4, v{vT+11}")
    a(f"v_lshl_add_u32 v{vT+14}, v{vT+1}, 8, v{vT+11}")
    a(f"v_cmp_gt_u32 vcc, 60, v0")
    a(f"s_and_saveexec_b64 s[{sT+4}:{sT+5}], vcc")
    for i in range(12):
        for d_ in range(4):
            x = RAW + i*4 + d_
            t0, t1 = vT+11, vT+12
            a(f"v_lshlrev_b32 v{t0}, 16, v{x}")
            a(f"v_and_b32 v{t1}, 0xffff0000, v{x}")
            a(f"v_sub_f32 v{t0}, v{t0}, v{M}")
            a(f"v_sub_f32 v{t1}, v{t1}, v{M}")
            a(f"v_cvt_pk_bf16_f32 v{t0}, v{t0}, v{t1}")
            a(f"v_and_b32 v{t1}, 0xffff0000, v{t0}")
            a(f"v_lshlrev_b32 v{t0}, 16, v{t0}")
            a(f"v_mul_f32 v{t0}, v{t0}, v{Q}")
            a(f"v_mul_f32 v{t1}, v{t1}, v{Q}")
            a(f"v_cvt_pk_bf16_f32 v{x}, v{t0}, v{t1}")
        a(f"ds_write_b128 v{vT+14}, {vr(RAW+i*4,4)} offset:{XT + i*6*256}")
    a(f"s_mov_b64 exec, s[{sT+4}:{sT+5}]")
    a(f"v_lshrrev_b32 v{vT+5}, 5, v0")
    a(f"v_lshlrev_b32 v{vT+5}, 4, v{vT+5}")
    a(f"v_bfe_u32 v{vT+6}, v0, 2, 3")
    a(f"v_add_u32 v{vT+5}, v{vT+5}, v{vT+6}")
    a(f"v_mul_u32_u24 v{vT+5}, {PITCH}, v{vT+5}")
    a(f"v_and_b32 v{vT+6}, 3, v0")
    a(f"v_lshl_add_u32 v{vWa}, v{vT+6}, 3, v{vT+5}")
    a(f"s_lshl_b32 s{sT}, s{sWave}, 6")
    a(f"s_add_u32 s{sT}, s{sT}, {WB}")
    a(f"v_add_u32 v{vWa}, s{sT}, v{vWa}")
    a(f"v_lshlrev_b32 v{vXa}, 4, v0")
    for i in range(0, 40, 2):
        a(f"v_mov_b64 {vr(ACC+i,2)}, 0")
    vm.wait(lambda t: t[0] == "W" and t[1] <= 0, " lgkmcnt(0)")
    a("s_barrier")
    if "dbg1" in OPT:
        lds_dump(a, 98304+16384, 9, 3, 190, 211, tag="x")
    def reads(i):
        b = i % 2; st = i % NST
        for n in range(2):
            a(f"ds_read_b64_tr_b16 {vr(WF+b*8+n*4,2)}, v{vWa} offset:{st*STG + n*32}")
            a(f"ds_read_b64_tr_b16 {vr(WF+b*8+n*4+2,2)}, v{vWa} offset:{st*STG + n*32 + 8*PITCH}")
        for mt in range(5):
            off = (mt*18 + i)*1024
            if off < 65536:
                a(f"ds_read_b128 {vr(XF+b*20+mt*4,4)}, v{vXa} offset:{off}")
            else:
                a(f"ds_read_b128 {vr(XF+b*20+mt*4,4)}, v{vT} offset:{off-65536}")
    a(f"v_add_u32 v{vT}, 65536, v{vXa}")
    for i in range(18):
        reads(i)
        wdma(i+3)
        a("s_waitcnt lgkmcnt(0)")
        b = i % 2
        for mt in range(5):
            for n in range(2):
                a(f"v_mfma_f32_16x16x32_bf16 {vr(ACC+(mt*2+n)*4,4)}, {vr(WF+b*8+n*4,4)}, {vr(XF+b*20+mt*4,4)}, {vr(ACC+(mt*2+n)*4,4)}")
        vm.wait(lambda t: t[0] == "W" and t[1] <= i+1)
        a("s_barrier")
    a(f"v_lshrrev_b32 v{vT}, 4, v0")
    a(f"v_lshlrev_b32 v{vT}, 2, v{vT}")
    a(f"s_lshl_b32 s{sT}, s{sWave}, 5")
    a(f"v_add_u32 v{vT}, s{sT}, v{vT}")
    a(f"v_and_b32 v{vT+1}, 15, v0")
    a(f"v_mul_u32_u24 v{vT+1}, {QP}, v{vT+1}")
    AD = vT + 4
    for n in range(2):
        for p in range(2):
            ad = AD + n*2 + p
            a(f"v_add_u32 v{vT+2}, {n*16+p*2}, v{vT}")
            a(f"v_mul_u32_u24 v{vT+3}, 3641, v{vT+2}")
            a(f"v_lshrrev_b32 v{vT+3}, 16, v{vT+3}")
            a(f"v_mul_u32_u24 v{ad}, 18, v{vT+3}")
            a(f"v_sub_u32 v{ad}, v{vT+2}, v{ad}")
            a(f"v_lshl_add_u32 v{ad}, v{ad}, 1, v{vT+1}")
            a(f"v_mad_u32_u24 v{ad}, v{vT+3}, 48, v{ad}")
    a(f"s_cmp_ge_u32 s{sWave}, 7")
    a("s_nop 4")
    a(f"s_cbranch_scc1 L_{name}_skipq")
    for mt in range(5):
        for n in range(2):
            c = ACC + (mt*2+n)*4
            a(f"v_cvt_pk_bf16_f32 v{vT+8}, v{c}, v{c+1}")
            a(f"v_cvt_pk_bf16_f32 v{vT+9}, v{c+2}, v{c+3}")
            a(f"ds_write_b32 v{AD+n*2}, v{vT+8} offset:{mt*16*QP}")
            a(f"ds_write_b32 v{AD+n*2+1}, v{vT+9} offset:{mt*16*QP}")
    a.lab(f"L_{name}_skipq")
    a("s_waitcnt lgkmcnt(0)")
    a("s_barrier")
    if "dbg1" in OPT:
        lds_dump(a, 57344, 9, 3, 190, 210, tag="q")
    a(f"s_cmp_ge_u32 s{sWave}, 4")
    a(f"s_cbranch_scc1 L_{name}_done")
    QR = 4; KR = 16; LG = 120; OA = 130; VR_ = 16
    a(f"v_lshrrev_b32 v{vT}, 2, v3")
    a(f"v_and_b32 v{vT+1}, 3, v3")
    a(f"v_add_u32 v{vT+2}, 2, v{vT}")
    a(f"v_mul_u32_u24 v{vT+2}, {QP}, v{vT+2}")
    a(f"v_mad_u32_u24 v{vT+2}, v{vT+1}, 48, v{vT+2}")
    for j in range(3):
        a(f"ds_read_b128 {vr(QR+j*4,4)}, v{vT+2} offset:{14*QP + j*16}")
    for w in range(8):
        for j in range(3):
            a(f"ds_read_b128 {vr(KR+w*12+j*4,4)}, v{vT+2} offset:{(14-2*w)*QP + 192 + j*16}")
    a(f"s_lshl_b32 s{sT}, s{sRb}, 6")
    a(f"v_add_u32 v{vT+3}, s{sT}, v{vT}")
    a(f"s_mov_b32 s{sT+1}, {f32(18.0**-0.5)}")
    a(f"s_mov_b32 s{sT+2}, {f32(-1e9)}")
    a(f"v_cvt_pk_bf16_f32 v{vT+4}, s{sT+2}, s{sT+2}")
    a(f"v_lshlrev_b32 v{vT+4}, 16, v{vT+4}")
    for w in range(8):
        a(f"s_waitcnt lgkmcnt({min(15, (7-w)*3)})")
        a(f"v_mov_b32 v{LG+w}, 0")
        for d_ in range(9):
            a(f"v_dot2_f32_bf16 v{LG+w}, v{QR+d_}, v{KR+w*12+d_}, v{LG+w}")
        a("s_nop 2")
        round_bf16(a, LG+w, LG+w)
        a(f"v_mul_f32 v{LG+w}, s{sT+1}, v{LG+w}")
        round_bf16(a, LG+w, LG+w)
        a(f"v_cmp_le_u32 vcc, {2*w}, v{vT+3}")
        a("s_nop 1")
        a(f"v_cndmask_b32 v{LG+w}, v{vT+4}, v{LG+w}, vcc")
    for w in range(8):
        for j in range(3):
            a(f"ds_read_b128 {vr(VR_+w*12+j*4,4)}, v{vT+2} offset:{(14-2*w)*QP + 384 + j*16}")
    a(f"v_max3_f32 v{vT+5}, v{LG}, v{LG+1}, v{LG+2}")
    a(f"v_max3_f32 v{vT+5}, v{vT+5}, v{LG+3}, v{LG+4}")
    a(f"v_max3_f32 v{vT+5}, v{vT+5}, v{LG+5}, v{LG+6}")
    a(f"v_max_f32 v{vT+5}, v{vT+5}, v{LG+7}")
    a(f"s_mov_b32 s{sT+3}, {f32(math.log2(math.e))}")
    for w in range(8):
        a(f"v_sub_f32 v{LG+w}, v{LG+w}, v{vT+5}")
        a(f"v_mul_f32 v{LG+w}, s{sT+3}, v{LG+w}")
        a(f"v_exp_f32 v{LG+w}, v{LG+w}")
    a("s_nop 0")
    a(f"v_add_f32 v{vT+6}, v{LG}, v{LG+1}")
    for w in range(2, 8):
        a(f"v_add_f32 v{vT+6}, v{vT+6}, v{LG+w}")
    a(f"v_rcp_f32 v{vT+6}, v{vT+6}")
    a("s_nop 0")
    for w in range(8):
        a(f"v_mul_f32 v{LG+w}, v{LG+w}, v{vT+6}")
        round_bf16(a, LG+w, LG+w)
    for d_ in range(18):
        a(f"v_mov_b32 v{OA+d_}, 0")
    for w in range(8):
        a(f"s_waitcnt lgkmcnt({min(15, (7-w)*3)})")
        for d_ in range(9):
            x = VR_ + w*12 + d_
            a(f"v_lshlrev_b32 v{vT+7}, 16, v{x}")
            a(f"v_and_b32 v{vT+8}, 0xffff0000, v{x}")
            a(f"v_fmac_f32 v{OA+2*d_}, v{LG+w}, v{vT+7}")
            a(f"v_fmac_f32 v{OA+2*d_+1}, v{LG+w}, v{vT+8}")
    for d_ in range(9):
        a(f"v_cvt_pk_bf16_f32 v{QR+d_}, v{OA+2*d_}, v{OA+2*d_+1}")
    a(f"v_mul_u32_u24 v{vT+3}, 1152, v{vT+3}")
    a(f"v_mad_u32_u24 v{vT+3}, v{vT+1}, 36, v{vT+3}")
    a(f"s_mul_i32 s{sT}, s{sHg}, 144")
    a(f"buffer_store_dwordx4 {vr(QR,4)}, v{vT+3}, {sr(sO,4)}, s{sT} offen")
    a(f"buffer_store_dwordx4 {vr(QR+4,4)}, v{vT+3}, {sr(sO,4)}, s{sT} offen offset:16")
    a(f"buffer_store_dword v{QR+8}, v{vT+3}, {sr(sO,4)}, s{sT} offen offset:32")
    a.lab(f"L_{name}_done")
    a("s_endpgm")
    return a.text(), kernel_desc(name, NV, 96), f"; @launch kernel={name} grid=(256,1,1) block=(512,1,1) lds={WB + NST*STG}"

GENS = {"k1": gen_k1, "k2": gen_k2, "k3": gen_k3, "k4": gen_k4, "k5": gen_k5}


def build(which):
    heads, texts, descs = [], [], []
    for w in which:
        t, d, h = GENS[w]()
        heads.append(h); texts.append(t); descs.append(d)
    out = "; generated by dev/gen.py\n" + "\n".join(heads) + "\n"
    out += '.amdgcn_target "amdgcn-amd-amdhsa--gfx950"\n.text\n'
    out += "\n".join(texts)
    out += '.section .rodata,"a"\n'
    for d in descs:
        out += ".p2align 6\n" + d
    return out

if __name__ == "__main__":
    which = sys.argv[2].split(",")
    open(sys.argv[1], "w").write(build(which))
```

```python
import sys, struct, math, os
OPT = set(os.environ.get("GENOPT", "").split(","))

KN = "sequential_preLN__sliding_local_dilated__geglu_ffn__prompt"

O_OFF  = 0
O_SZ   = 2048*576*2
H1_OFF = O_OFF + O_SZ
H1_SZ  = 2048*576*2
ST_OFF = H1_OFF + H1_SZ
ST_SZ  = 2048*6*8
HH_OFF = ST_OFF + ST_SZ
HH_SZ  = 2048*4608*2
P_OFF  = HH_OFF + HH_SZ
P_SZ   = 4*2048*576*4

def f32(x):
    return struct.unpack("<I", struct.pack("<f", x))[0]

class A:
    def __init__(self):
        self.l = []
    def __call__(self, s):
        if "nomfma" in OPT and s.startswith("v_mfma"): return
        if "nods" in OPT and s.startswith("ds_read_b64_tr"): return
        if "now" in OPT and s.startswith("buffer_load_dwordx4") and s.endswith("lds"): return
        if "nox" in OPT and s.startswith("buffer_load_dwordx4 v[") and "s[16:19]" in s: return
        self.l.append("    " + s)
    def lab(self, s):
        self.l.append(s + ":")
    def c(self, s):
        self.l.append("    ; " + s)
    def text(self):
        return "\n".join(self.l) + "\n"

def vr(b, n=1):
    return f"v{b}" if n == 1 else f"v[{b}:{b+n-1}]"
def sr(b, n=1):
    return f"s{b}" if n == 1 else f"s[{b}:{b+n-1}]"

def kernel_head(a, name):
    a.l.append(f".globl {name}")
    a.l.append(".p2align 8")
    a.l.append(f".type {name},@function")
    a.lab(name)

def kernel_desc(name, vgpr, sgpr=96, accum=None):
    if accum is None:
        accum = (vgpr + 3) // 4 * 4
    return f""".amdhsa_kernel {name}
  .amdhsa_next_free_vgpr {vgpr}
  .amdhsa_next_free_sgpr {sgpr}
  .amdhsa_accum_offset {accum}
  .amdhsa_group_segment_fixed_size 0
  .amdhsa_kernarg_size 80
  .amdhsa_user_sgpr_count 2
  .amdhsa_user_sgpr_kernarg_segment_ptr 1
  .amdhsa_system_sgpr_workgroup_id_x 1
.end_amdhsa_kernel
"""

def srd(a, d, base, size, off=0):
    if off:
        a(f"s_add_u32 s{d}, s{base}, {off}")
        a(f"s_addc_u32 s{d+1}, s{base+1}, 0")
    else:
        a(f"s_mov_b32 s{d}, s{base}")
        a(f"s_mov_b32 s{d+1}, s{base+1}")
    a(f"s_and_b32 s{d+1}, s{d+1}, 0xffff")
    a(f"s_mov_b32 s{d+2}, {size}")
    a(f"s_mov_b32 s{d+3}, 0x00020000")

def round_bf16(a, d, s, tmp=None):
    a(f"v_cvt_pk_bf16_f32 v{d}, v{s}, v{s}")
    a(f"v_lshlrev_b32 v{d}, 16, v{d}")

GELU_A = -2.0 * math.log2(math.e) * math.sqrt(2.0 / math.pi)
GELU_B = GELU_A * 0.044715

import os
OPT = set(os.environ.get("GENOPT", "").split(","))
def stamp(a, i, real=False):
    if "stamp" in OPT:
        a(f"s_mem{'real' if real else ''}time s[{60+2*i}:{61+2*i}]")
def stamp_dump(a, n, sWs, sWave, tmpv, region=0):
    if "stamp" in OPT:
        a("s_waitcnt lgkmcnt(0)")
        a("s_mov_b64 exec, -1")
        srd(a, 80, sWs, 1<<20, (200+region)<<20)
        a(f"s_lshl_b32 s84, s2, 4")
        a(f"s_add_u32 s84, s84, s{sWave}")
        a(f"s_lshl_b32 s84, s84, 6")
        a(f"v_mov_b32 v{tmpv}, s84")
        for i in range(n):
            a(f"v_mov_b32 v{tmpv+2}, s{60+2*i}")
            a(f"v_mov_b32 v{tmpv+3}, s{61+2*i}")
            a(f"buffer_store_dwordx2 v[{tmpv+2}:{tmpv+3}], v{tmpv}, s[80:83], 0 offen offset:{8*i}")
            a("s_nop 1")
def gen_k3(name="k3_kernel"):
    a = A()
    kernel_head(a, name)
    NST = 6
    STG = 18432
    RING = 6
    ACC = 0
    XS = 144
    WR = 192
    vWa = 216
    vWb = 217
    vD0, vD1, vD2 = 218, 219, 220
    vX0, vX1 = 221, 222
    vM0, vR0, vM1, vR1 = 223, 224, 225, 226
    vT = 228
    vLane = 244
    NV = 246
    def acc(nt, mat, mt):
        return ACC + ((nt * 2 + mat) * 2 + mt) * 4
    sW, sX, sST, sH = 12, 16, 20, 24
    sWave, sFb, sMb = 28, 29, 30
    sWoff, sXoff, sIt = 31, 32, 33
    sM0b = 34
    sT = 36
    sA_, sB_ = 48, 49
    sExec = 50
    sHb = 52

    a("s_cmp_ge_u32 s2, 256")
    a(f"s_cbranch_scc1 L_{name}_done")
    stamp(a, 0)
    stamp(a, 5, True)
    a("s_load_dwordx4 s[4:7], s[0:1], 32")
    a("s_load_dwordx2 s[8:9], s[0:1], 72")
    a("v_lshrrev_b32 v1, 6, v0")
    a("v_and_b32 v0, 63, v0")
    a("s_nop 0")
    a(f"v_readfirstlane_b32 s{sWave}, v1")
    a(f"s_and_b32 s{sT}, s2, 7")
    a(f"s_lshr_b32 s{sT+1}, s2, 3")
    a(f"s_and_b32 s{sFb}, s{sT+1}, 3")
    a(f"s_lshl_b32 s{sT}, s{sT}, 2")
    a(f"s_add_u32 s{sFb}, s{sFb}, s{sT}")
    a(f"s_lshr_b32 s{sMb}, s{sT+1}, 2")
    a("s_waitcnt lgkmcnt(0)")
    a(f"s_cmp_ge_u32 s{sWave}, 4")
    a(f"s_cselect_b32 s{sT}, s6, s4")
    a(f"s_cselect_b32 s{sT+1}, s7, s5")
    srd(a, sW, sT, 576*4608*2)
    srd(a, sX, 8, H1_SZ, H1_OFF)
    srd(a, sST, 8, ST_SZ, ST_OFF)
    srd(a, sH, 8, HH_SZ, HH_OFF)
    a(f"v_and_b32 v{vT}, 15, v0")
    a(f"s_lshl_b32 s{sT}, s{sMb}, 8")
    a(f"s_lshl_b32 s{sT+1}, s{sWave}, 5")
    a(f"s_add_u32 s{sT}, s{sT}, s{sT+1}")
    a(f"v_add_u32 v{vT}, s{sT}, v{vT}")
    a(f"v_mul_u32_u24 v{vT}, 48, v{vT}")
    for mt in range(2):
        for q in range(3):
            a(f"buffer_load_dwordx4 {vr(WR+mt*12+q*4,4)}, v{vT}, {sr(sST,4)}, 0 offen offset:{mt*768+q*16}")
    for t, vd in enumerate((vD0, vD1, vD2)):
        a(f"v_add_u32 v{vT+1}, {t*64}, v0")
        a(f"v_mul_u32_u24 v{vT+2}, 3641, v{vT+1}")
        a(f"v_lshrrev_b32 v{vT+2}, 16, v{vT+2}")
        a(f"v_mul_u32_u24 v{vT+3}, 18, v{vT+2}")
        a(f"v_sub_u32 v{vT+3}, v{vT+1}, v{vT+3}")
        a(f"v_mul_u32_u24 v{vT+2}, 9216, v{vT+2}")
        a(f"v_lshl_add_u32 v{vd}, v{vT+3}, 4, v{vT+2}")
    a(f"s_and_b32 s{sT}, s{sWave}, 3")
    a(f"s_mul_i32 s{sT+1}, s{sT}, {8*9216}")
    a(f"s_mul_i32 s{sT+2}, s{sFb}, 288")
    a(f"s_add_u32 s{sT+1}, s{sT+1}, s{sT+2}")
    for vd in (vD0, vD1, vD2):
        a(f"v_add_u32 v{vd}, s{sT+1}, v{vd}")
    a(f"s_mul_i32 s{sM0b}, s{sWave}, 2304")
    a(f"s_lshl_b32 s{sT}, s{sMb}, 4")
    a(f"s_lshl_b32 s{sT+1}, s{sWave}, 1")
    a(f"s_add_u32 s{sT}, s{sT}, s{sT+1}")
    a(f"s_mul_i32 s{sT+1}, s{sT}, 18432")
    a(f"v_lshlrev_b32 v{vX0}, 4, v0")
    a(f"v_add_u32 v{vX0}, s{sT+1}, v{vX0}")
    a(f"v_add_u32 v{vX1}, 18432, v{vX0}")
    a(f"s_mul_i32 s{sHb}, s{sT}, 144")
    a(f"s_lshr_b32 s{sT+1}, s{sFb}, 1")
    a(f"s_mul_i32 s{sT+1}, s{sT+1}, 9")
    a(f"s_add_u32 s{sHb}, s{sHb}, s{sT+1}")
    a(f"s_lshl_b32 s{sHb}, s{sHb}, 10")
    a(f"v_lshrrev_b32 v{vT+1}, 2, v0")
    a(f"v_mul_u32_u24 v{vT+1}, 288, v{vT+1}")
    a(f"v_and_b32 v{vT+2}, 3, v0")
    a(f"v_lshl_add_u32 v{vWa}, v{vT+2}, 3, v{vT+1}")
    a(f"v_add_u32 v{vWb}, {3*STG}, v{vWa}")
    sRot, sCnt = 54, 55
    if "rot" in OPT:
        a(f"s_mul_i32 s{sRot}, s{sMb}, 9")
        a(f"s_and_b32 s{sT}, s{sFb}, 3")
        a(f"s_mul_i32 s{sT}, s{sT}, 18")
        a(f"s_add_u32 s{sRot}, s{sRot}, s{sT}")
        a(f"s_lshr_b32 s{sRot}, s{sRot}, 2")
        a(f"s_sub_u32 s{sT}, s{sRot}, 18")
        a(f"s_cmp_ge_u32 s{sRot}, 18")
        a(f"s_cselect_b32 s{sRot}, s{sT}, s{sRot}")
    else:
        a(f"s_mov_b32 s{sRot}, 0")
    if "samew" in OPT:
        a(f"s_mov_b32 s{sRot}, 0")
    a(f"s_mov_b32 s{sCnt}, 0")
    a(f"s_mul_i32 s{sWoff}, s{sRot}, {32*9216}")
    a(f"s_lshl_b32 s{sXoff}, s{sRot}, 10")
    a(f"s_mov_b64 s[{sExec}:{sExec+1}], 0xffff")
    a(f"v_mov_b32 v{vLane}, v0")

    def load_groups(stage, xset):
        gs = []
        for t, vd in enumerate((vD0, vD1, vD2)):
            g = [f"s_add_u32 m0, s{sM0b}, {stage*STG + t*1024}"]
            if t == 2:
                g.append(f"s_mov_b64 exec, s[{sExec}:{sExec+1}]")
            else:
                g.append("s_nop 0")
            g.append(f"buffer_load_dwordx4 v{vd}, {sr(sW,4)}, s{sWoff} offen lds")
            if t == 2:
                g.append("s_mov_b64 exec, -1")
            gs.append(g)
        gs.append([f"buffer_load_dwordx4 {vr(XS+xset*8,4)}, v{vX0}, {sr(sX,4)}, s{sXoff} offen"])
        gs.append([f"buffer_load_dwordx4 {vr(XS+xset*8+4,4)}, v{vX1}, {sr(sX,4)}, s{sXoff} offen",
                   f"s_add_u32 s{sRot}, s{sRot}, 1",
                   f"s_cmp_eq_u32 s{sRot}, {4 if 'hot4' in OPT else 18}",
                   f"s_cselect_b32 s{sRot}, 0, s{sRot}",
                   f"s_add_u32 s{sCnt}, s{sCnt}, 1",
                   f"s_mul_i32 s{sWoff}, s{sRot}, {32*9216}",
                   f"s_lshl_b32 s{sXoff}, s{sRot}, 10",
                   f"s_cmp_ge_u32 s{sCnt}, 18",
                   f"s_cselect_b32 s{sWoff}, 0x7f000000, s{sWoff}",
                   f"s_cselect_b32 s{sXoff}, 0x7f000000, s{sXoff}"])
        return gs
    def issue_loads(stage, xset):
        for g in load_groups(stage, xset):
            for x in g: a(x)

    for s in range(5):
        issue_loads(s, s)
    a("s_waitcnt vmcnt(25)")
    for mt, (vM, vR) in enumerate(((vM0, vR0), (vM1, vR1))):
        b = WR + mt * 12
        a(f"v_add_f32 v{vT}, v{b}, v{b+2}")
        a(f"v_add_f32 v{vT+1}, v{b+4}, v{b+6}")
        a(f"v_add_f32 v{vT+2}, v{b+8}, v{b+10}")
        a(f"v_add_f32 v{vT}, v{vT}, v{vT+1}")
        a(f"v_add_f32 v{vT}, v{vT}, v{vT+2}")
        a(f"v_mul_f32 v{vT}, {f32(1.0/6.0)}, v{vT}")
        a(f"v_add_f32 v{vT+1}, v{b+1}, v{b+3}")
        a(f"v_add_f32 v{vT+2}, v{b+5}, v{b+7}")
        a(f"v_add_f32 v{vT+3}, v{b+9}, v{b+11}")
        a(f"v_add_f32 v{vT+1}, v{vT+1}, v{vT+2}")
        a(f"v_add_f32 v{vT+1}, v{vT+1}, v{vT+3}")
        a(f"v_mov_b32 v{vT+2}, 0")
        for t in range(6):
            a(f"v_sub_f32 v{vT+3}, v{b+2*t}, v{vT}")
            a(f"v_fmac_f32 v{vT+2}, v{vT+3}, v{vT+3}")
        a(f"v_fmac_f32 v{vT+1}, {f32(96.0)}, v{vT+2}")
        a(f"v_mul_f32 v{vT+1}, {f32(1.0/576.0)}, v{vT+1}")
        round_bf16(a, vM, vT)
        round_bf16(a, vT+1, vT+1)
        a(f"v_add_f32 v{vT+1}, {f32(1e-5)}, v{vT+1}")
        round_bf16(a, vT+1, vT+1)
        a(f"v_sqrt_f32 v{vT+1}, v{vT+1}")
        a("s_nop 0")
        round_bf16(a, vT+1, vT+1)
        a(f"v_rcp_f32 v{vR}, v{vT+1}")
    for i in range(0, 144, 2):
        a(f"v_mov_b64 {vr(ACC+i,2)}, 0")

    def norm_ops(xset):
        ops = []
        for mt, (vM, vR) in enumerate(((vM0, vR0), (vM1, vR1))):
            for d in range(4):
                x = XS + xset * 8 + mt * 4 + d
                t0 = vT + (d % 2) * 2
                t1 = t0 + 1
                ops.append(f"v_lshlrev_b32 v{t0}, 16, v{x}")
                ops.append(f"v_and_b32 v{t1}, 0xffff0000, v{x}")
                if "fastnorm" in OPT:
                    ops.append(f"v_sub_f32 v{t0}, v{t0}, v{vM}")
                    ops.append(f"v_sub_f32 v{t1}, v{t1}, v{vM}")
                    ops.append(f"v_cvt_pk_bf16_f32 v{x}, v{t0}, v{t1}")
                    continue
                ops.append(f"v_sub_f32 v{t0}, v{t0}, v{vM}")
                ops.append(f"v_sub_f32 v{t1}, v{t1}, v{vM}")
                ops.append(f"v_cvt_pk_bf16_f32 v{t0}, v{t0}, v{t1}")
                ops.append(f"v_and_b32 v{t1}, 0xffff0000, v{t0}")
                ops.append(f"v_lshlrev_b32 v{t0}, 16, v{t0}")
                ops.append(f"v_mul_f32 v{t0}, v{t0}, v{vR}")
                ops.append(f"v_mul_f32 v{t1}, v{t1}, v{vR}")
                ops.append(f"v_cvt_pk_bf16_f32 v{x}, v{t0}, v{t1}")
        return ops

    def wread(fidx_global):
        st = (fidx_global // 18) % NST
        f = fidx_global % 18
        nt, mat = f // 2, f % 2
        slot = fidx_global % RING
        base = vWa if st < 3 else vWb
        off = (st % 3) * STG + mat * 9216 + nt * 32
        a(f"ds_read_b64_tr_b16 {vr(WR+slot*4,2)}, v{base} offset:{off}")
        a(f"ds_read_b64_tr_b16 {vr(WR+slot*4+2,2)}, v{base} offset:{off+4608}")

    PF = RING - 1
    a("s_waitcnt vmcnt(15)")
    for op in norm_ops(0):
        a(op)
    a("s_barrier")
    for f in range(PF):
        wread(f)
    stamp(a, 1)
    a(f"s_mov_b32 s{sIt}, 0")
    a(".p2align 6")
    a.lab(f"L_{name}_loop")
    for ph in range(NST):
        lg = load_groups((ph + 5) % NST, (ph + 5) % NST)
        spread = "spread" in OPT
        if not spread:
            issue_loads((ph + 5) % NST, (ph + 5) % NST)
        nops = norm_ops((ph + 1) % NST)
        if "nonorm" in OPT: nops = []
        ni = 0
        for f in range(18):
            g = ph * 18 + f
            nt, mat = f // 2, f % 2
            slot = g % RING
            wread(g + PF)
            a(f"s_waitcnt lgkmcnt({2*PF})")
            a(f"v_mfma_f32_16x16x32_bf16 {vr(acc(nt,mat,0),4)}, {vr(WR+slot*4,4)}, {vr(XS+ph*8,4)}, {vr(acc(nt,mat,0),4)}")
            a(f"v_mfma_f32_16x16x32_bf16 {vr(acc(nt,mat,1),4)}, {vr(WR+slot*4,4)}, {vr(XS+ph*8+4,4)}, {vr(acc(nt,mat,1),4)}")
            if f == 1:
                a("s_waitcnt vmcnt(%d)" % (15 if spread else 20))
            if spread and f % 3 == 2 and f // 3 < 5:
                for x in lg[f // 3]: a(x)
            if f >= 1:
                for _ in range(5):
                    if ni < len(nops):
                        a(nops[ni]); ni += 1
        assert ni == len(nops)
        a("s_waitcnt vmcnt(17)")
        a("s_barrier")
    a(f"s_add_u32 s{sIt}, s{sIt}, 1")
    a(f"s_cmp_lt_u32 s{sIt}, 3")
    a(f"s_cbranch_scc1 L_{name}_loop")
    stamp(a, 2)
    a("s_waitcnt vmcnt(0) lgkmcnt(0)")
    a(f"s_mov_b32 s{sA_}, {f32(GELU_A)}")
    a(f"s_mov_b32 s{sB_}, {f32(GELU_B)}")
    a(f"v_lshlrev_b32 v{vX0}, 4, v{vLane}")
    a(f"s_and_b32 s{sT}, s{sFb}, 1")
    a(f"s_lshl_b32 s{sT+1}, s{sT}, 12")
    a(f"s_add_u32 s{sT+1}, s{sT+1}, s{sHb}")
    a(f"s_lshl_b32 s{sT+2}, s{sT}, 3")
    a(f"s_add_u32 s{sT+2}, s{sT+2}, s{sHb}")
    a(f"s_add_u32 s{sT+2}, s{sT+2}, {8*1024}")
    a(f"s_add_u32 s{sT+3}, s{sT+1}, {144*1024}")
    a(f"s_add_u32 s{sT+4}, s{sT+2}, {144*1024}")
    OUT = XS
    def gelu_tile(nt, mt, dst):
        g = acc(nt, 0, mt); u = acc(nt, 1, mt)
        T = WR
        for h in range(2):
            g0, g1, u0, u1 = g+2*h, g+2*h+1, u+2*h, u+2*h+1
            x0, x1, y0, y1, t0, t1 = T+h*8, T+h*8+1, T+h*8+2, T+h*8+3, T+h*8+4, T+h*8+5
            if "relax" in OPT:
                x0, x1, y0, y1 = g0, g1, u0, u1
            else:
                a(f"v_cvt_pk_bf16_f32 v{x0}, v{g0}, v{g1}")
                a(f"v_cvt_pk_bf16_f32 v{y0}, v{u0}, v{u1}")
                a(f"v_and_b32 v{x1}, 0xffff0000, v{x0}")
                a(f"v_lshlrev_b32 v{x0}, 16, v{x0}")
                a(f"v_and_b32 v{y1}, 0xffff0000, v{y0}")
                a(f"v_lshlrev_b32 v{y0}, 16, v{y0}")
            a(f"v_mul_f32 v{t0}, v{x0}, v{x0}")
            a(f"v_mul_f32 v{t1}, v{x1}, v{x1}")
            a(f"v_fma_f32 v{t0}, v{t0}, s{sB_}, v{vT}")
            a(f"v_fma_f32 v{t1}, v{t1}, s{sB_}, v{vT}")
            a(f"v_mul_f32 v{t0}, v{t0}, v{x0}")
            a(f"v_mul_f32 v{t1}, v{t1}, v{x1}")
            a(f"v_exp_f32 v{t0}, v{t0}")
            a(f"v_exp_f32 v{t1}, v{t1}")
            a("s_nop 0")
            a(f"v_add_f32 v{t0}, 1.0, v{t0}")
            a(f"v_add_f32 v{t1}, 1.0, v{t1}")
            a(f"v_rcp_f32 v{t0}, v{t0}")
            a(f"v_rcp_f32 v{t1}, v{t1}")
            a("s_nop 0")
            a(f"v_mul_f32 v{t0}, v{t0}, v{x0}")
            a(f"v_mul_f32 v{t1}, v{t1}, v{x1}")
            if "relax" not in OPT:
                a(f"v_cvt_pk_bf16_f32 v{t0}, v{t0}, v{t1}")
                a(f"v_and_b32 v{t1}, 0xffff0000, v{t0}")
                a(f"v_lshlrev_b32 v{t0}, 16, v{t0}")
            a(f"v_mul_f32 v{t0}, v{t0}, v{y0}")
            a(f"v_mul_f32 v{t1}, v{t1}, v{y1}")
            a(f"v_cvt_pk_bf16_f32 v{dst+h}, v{t0}, v{t1}")
    a(f"v_mov_b32 v{vT}, s{sA_}")
    a("s_nop 7")
    k = 0
    for mt in range(2):
        for p in range(4):
            o = OUT + (k % 12) * 4; k += 1
            gelu_tile(2*p, mt, o)
            gelu_tile(2*p+1, mt, o+2)
            a(f"buffer_store_dwordx4 {vr(o,4)}, v{vX0}, {sr(sH,4)}, s{sT+1+2*mt} offen offset:{p*1024}")
        o = OUT + (k % 12) * 4; k += 1
        gelu_tile(8, mt, o)
        a(f"buffer_store_dwordx2 {vr(o,2)}, v{vX0}, {sr(sH,4)}, s{sT+2+2*mt} offen")
    stamp(a, 3)
    a("s_waitcnt vmcnt(0)")
    stamp(a, 4)
    stamp(a, 6, True)
    stamp_dump(a, 7, 8, sWave, vT)
    a.lab(f"L_{name}_done")
    a("s_endpgm")
    return a.text(), kernel_desc(name, NV), f"; @launch kernel={name} grid=(256,1,1) block=(512,1,1) lds={NST*STG}"


def lds_dump(a, nbytes, wg, tidv, tv, off_mb, nthreads=512, tag="d"):
    a(f"s_cmp_lg_u32 s2, {wg}")
    a(f"s_cbranch_scc1 L_dump_{tag}")
    srd(a, 80, 8, 1 << 20, off_mb << 20)
    a(f"v_lshlrev_b32 v{tv}, 4, v{tidv}")
    for i in range(0, nbytes, nthreads*16):
        a(f"v_add_u32 v{tv+1}, {i}, v{tv}")
        a(f"ds_read_b128 v[{tv+2}:{tv+5}], v{tv+1}")
        a("s_waitcnt lgkmcnt(0)")
        a(f"buffer_store_dwordx4 v[{tv+2}:{tv+5}], v{tv+1}, s[80:83], 0 offen")
        a("s_waitcnt vmcnt(0)")
    a.lab(f"L_dump_{tag}")
    a("s_barrier")

class VM:
    def __init__(self, a):
        self.a = a; self.ops = []
    def op(self, tag, text):
        self.a(text); self.ops.append(tag)
    def wait(self, tagpred, extra=""):
        last = -1
        for i, t in enumerate(self.ops):
            if tagpred(t): last = i
        n = len(self.ops) - 1 - last
        assert n <= 63
        if last >= 0:
            self.a(f"s_waitcnt vmcnt({n}){extra}")
            self.ops = self.ops[last+1:]

def gen_k4(name="k4_kernel"):
    a = A(); vm = VM(a)
    kernel_head(a, name)
    NST = 6; STG = 18432; RING = 6; PFD = 5
    ACC = 4
    XS = 76
    WR = 124
    vWa, vWb = 148, 149
    vD0, vD1, vD2 = 150, 151, 152
    vX0, vX1 = 153, 154
    vT = 156
    NV = 172
    def acc(nt, mt): return ACC + (nt*2+mt)*4
    sW, sX, sP = 12, 16, 20
    sWave, sKs, sMb, sNb = 28, 29, 30, 31
    sWb1, sWb2, sXb, sM0b = 32, 33, 34, 35
    sT = 36
    sExec = 50
    sWo = 52
    a("s_cmp_ge_u32 s2, 256")
    a(f"s_cbranch_scc1 L_{name}_done")
    stamp(a, 0); stamp(a, 5, True)
    a("s_load_dwordx2 s[4:5], s[0:1], 48")
    a("s_load_dwordx2 s[8:9], s[0:1], 72")
    a("v_lshrrev_b32 v1, 6, v0")
    a("v_and_b32 v0, 63, v0")
    a("s_nop 0")
    a(f"v_readfirstlane_b32 s{sWave}, v1")
    a(f"s_and_b32 s{sT}, s2, 7")
    a(f"s_lshr_b32 s{sT+1}, s2, 3")
    a(f"s_lshr_b32 s{sKs}, s{sT}, 1")
    a(f"s_and_b32 s{sNb}, s{sT+1}, 3")
    a(f"s_and_b32 s{sT}, s{sT}, 1")
    a(f"s_lshl_b32 s{sT}, s{sT}, 3")
    a(f"s_lshr_b32 s{sMb}, s{sT+1}, 2")
    a(f"s_add_u32 s{sMb}, s{sMb}, s{sT}")
    a("s_waitcnt lgkmcnt(0)")
    srd(a, sW, 4, 4608*576*2)
    srd(a, sX, 8, HH_SZ, HH_OFF)
    srd(a, sP, 8, P_SZ, P_OFF)
    for t, vd in enumerate((vD0, vD1, vD2)):
        a(f"v_add_u32 v{vT+1}, {t*64}, v0")
        a(f"v_mul_u32_u24 v{vT+2}, 3641, v{vT+1}")
        a(f"v_lshrrev_b32 v{vT+2}, 16, v{vT+2}")
        a(f"v_mul_u32_u24 v{vT+3}, 18, v{vT+2}")
        a(f"v_sub_u32 v{vT+3}, v{vT+1}, v{vT+3}")
        a(f"v_mul_u32_u24 v{vT+2}, 1152, v{vT+2}")
        a(f"v_lshl_add_u32 v{vd}, v{vT+3}, 4, v{vT+2}")
    a(f"s_lshr_b32 s{sT}, s{sWave}, 2")
    a(f"s_lshl_b32 s{sT+1}, s{sKs}, 1")
    a(f"s_add_u32 s{sT+1}, s{sT+1}, s{sT}")
    a(f"s_mul_i32 s{sWb1}, s{sT+1}, {576*1152}")
    a(f"s_and_b32 s{sT+2}, s{sWave}, 3")
    a(f"s_mul_i32 s{sT+3}, s{sT+2}, {8*1152}")
    a(f"s_add_u32 s{sWb1}, s{sWb1}, s{sT+3}")
    a(f"s_mul_i32 s{sT+3}, s{sNb}, 288")
    a(f"s_add_u32 s{sWb1}, s{sWb1}, s{sT+3}")
    a(f"s_cmp_ge_u32 s{sT+2}, 2")
    a(f"s_cselect_b32 s{sT+3}, {128*1152}, 0")
    a(f"s_add_u32 s{sWb2}, s{sWb1}, s{sT+3}")
    a(f"s_mul_i32 s{sM0b}, s{sWave}, 2304")
    a(f"s_lshl_b32 s{sXb}, s{sMb}, 3")
    a(f"s_lshl_b32 s{sT+3}, s{sT+2}, 1")
    a(f"s_add_u32 s{sXb}, s{sXb}, s{sT+3}")
    a(f"s_mov_b32 s{sT+4}, s{sXb}")
    a(f"s_mul_i32 s{sXb}, s{sXb}, 144")
    a(f"s_mul_i32 s{sT+3}, s{sT+1}, 18")
    a(f"s_add_u32 s{sXb}, s{sXb}, s{sT+3}")
    a(f"s_lshl_b32 s{sXb}, s{sXb}, 10")
    a(f"v_lshlrev_b32 v{vX0}, 4, v0")
    a(f"v_add_u32 v{vX0}, s{sXb}, v{vX0}")
    a(f"v_add_u32 v{vX1}, {144*1024}, v{vX0}")
    a(f"s_lshl_b32 s{sT+5}, s{sKs}, 7")
    a(f"s_add_u32 s{sT+5}, s{sT+5}, s{sT+4}")
    a(f"s_add_u32 s{sT+5}, s{sT+5}, s{sT}")
    a(f"s_mul_i32 s{sT+5}, s{sT+5}, 36")
    a(f"s_mul_i32 s{sT+6}, s{sNb}, 9")
    a(f"s_add_u32 s{sT+5}, s{sT+5}, s{sT+6}")
    a(f"s_lshl_b32 s{sT+5}, s{sT+5}, 10")
    a(f"v_lshrrev_b32 v{vT+1}, 2, v0")
    a(f"v_mul_u32_u24 v{vT+1}, 288, v{vT+1}")
    a(f"v_and_b32 v{vT+2}, 3, v0")
    a(f"v_lshl_add_u32 v{vWa}, v{vT+2}, 3, v{vT+1}")
    a(f"s_mul_i32 s{sT+6}, s{sT}, 9216")
    a(f"v_add_u32 v{vWa}, s{sT+6}, v{vWa}")
    a(f"v_add_u32 v{vWb}, {3*STG}, v{vWa}")
    a(f"s_mov_b64 s[{sExec}:{sExec+1}], 0xffff")

    def fa_rel(i):
        q, ii = divmod(i, 9)
        if ii < 4: return 288*q + 32*ii
        if ii < 8: return 288*q + 144 + 32*(ii-4)
        return 288*q + 128
    def load_groups(i):
        if i >= 18: return []
        st = i % NST
        gs = []
        base = sWb2 if i % 9 == 8 else sWb1
        for t, vd in enumerate((vD0, vD1, vD2)):
            g = []
            if t == 0:
                g.append(("s", f"s_add_u32 s{sWo}, s{base}, {fa_rel(i)*1152}"))
            g.append(("s", f"s_add_u32 m0, s{sM0b}, {st*STG + t*1024}"))
            g.append(("s", f"s_mov_b64 exec, s[{sExec}:{sExec+1}]" if t == 2 else "s_nop 0"))
            g.append((("W", i), f"buffer_load_dwordx4 v{vd}, {sr(sW,4)}, s{sWo} offen lds"))
            if t == 2: g.append(("s", "s_mov_b64 exec, -1"))
            gs.append(g)
        xs = XS + (i % NST) * 8
        gs.append([("s", f"s_mov_b32 s{sWo+1}, {i*1024}"),
                   (("X", i), f"buffer_load_dwordx4 {vr(xs,4)}, v{vX0}, {sr(sX,4)}, s{sWo+1} offen")])
        gs.append([(("X", i), f"buffer_load_dwordx4 {vr(xs+4,4)}, v{vX1}, {sr(sX,4)}, s{sWo+1} offen")])
        return gs
    def emit_group(g):
        for tag, txt in g:
            if tag == "s": a(txt)
            else: vm.op(tag, txt)
    for i in range(PFD):
        for g in load_groups(i): emit_group(g)
    for i in range(0, 72, 2):
        a(f"v_mov_b64 {vr(ACC+i,2)}, 0")
    def wread(gidx):
        i, nt = divmod(gidx, 9)
        if i >= 18: return False
        st = i % NST; slot = gidx % RING
        base = vWa if st < 3 else vWb
        off = (st % 3) * STG + nt * 32
        a(f"ds_read_b64_tr_b16 {vr(WR+slot*4,2)}, v{base} offset:{off}")
        a(f"ds_read_b64_tr_b16 {vr(WR+slot*4+2,2)}, v{base} offset:{off+4608}")
        return True
    PF = RING - 1
    vm.wait(lambda t: t[1] <= 1)
    a("s_barrier")
    for f in range(PF): wread(f)
    stamp(a, 1)
    for i in range(18):
        lg = load_groups(i + PFD)
        vm.wait(lambda t: t[0] == "X" and t[1] <= i)
        for nt in range(9):
            g = i*9 + nt; slot = g % RING
            ok = wread(g + PF)
            rem = min(PF, 18*9 - 1 - g)
            a(f"s_waitcnt lgkmcnt({2*rem})")
            xs = XS + (i % NST) * 8
            a(f"v_mfma_f32_16x16x32_bf16 {vr(acc(nt,0),4)}, {vr(WR+slot*4,4)}, {vr(xs,4)}, {vr(acc(nt,0),4)}")
            a(f"v_mfma_f32_16x16x32_bf16 {vr(acc(nt,1),4)}, {vr(WR+slot*4,4)}, {vr(xs+4,4)}, {vr(acc(nt,1),4)}")
            if nt % 2 == 0 and nt // 2 < len(lg):
                emit_group(lg[nt // 2])
        vm.wait(lambda t: t[0] == "W" and t[1] <= i + 2)
        a("s_barrier")
    stamp(a, 2)
    a(f"s_lshr_b32 s{sT}, s{sWave}, 2")
    a(f"v_lshlrev_b32 v{vT}, 4, v0")
    a(f"s_mul_i32 s{sT+1}, s{sWave}, 9216")
    a(f"v_add_u32 v{vT+1}, s{sT+1}, v{vT}")
    a(f"s_xor_b32 s{sT+2}, s{sWave}, 4")
    a(f"s_mul_i32 s{sT+2}, s{sT+2}, 9216")
    a(f"v_add_u32 v{vT+2}, s{sT+2}, v{vT}")
    a(f"s_cmp_eq_u32 s{sT}, 0")
    a("s_nop 4")
    a(f"s_cbranch_scc0 L_{name}_kh1")
    for kh in range(2):
        if kh == 1: a.lab(f"L_{name}_kh1")
        for nt in range(9):
            a(f"ds_write_b128 v{vT+1}, {vr(acc(nt,1-kh),4)} offset:{nt*1024}")
        a("s_waitcnt lgkmcnt(0)")
        a("s_barrier")
        for nt in range(9):
            a(f"ds_read_b128 {vr(XS+nt*4,4)}, v{vT+2} offset:{nt*1024}")
        for nt in range(9):
            a(f"s_waitcnt lgkmcnt({8-nt})")
            for r in range(4):
                a(f"v_add_f32 v{XS+nt*4+r}, v{XS+nt*4+r}, v{acc(nt,kh)+r}")
            if nt < 4:
                a(f"buffer_store_dwordx4 {vr(XS+nt*4,4)}, v{vT}, {sr(sP,4)}, s{sT+5} offen offset:{nt*1024}")
            else:
                if nt in (4, 8): a(f"s_add_u32 s{sT+5}, s{sT+5}, 4096")
                a(f"buffer_store_dwordx4 {vr(XS+nt*4,4)}, v{vT}, {sr(sP,4)}, s{sT+5} offen offset:{(nt%4)*1024}")
        stamp(a, 3)
        if "stamp" in OPT: a("s_waitcnt vmcnt(0)")
        stamp(a, 4); stamp(a, 6, True)
        stamp_dump(a, 7, 8, sWave, vT+4, 1)
        a("s_endpgm")
    a.lab(f"L_{name}_done")
    a("s_endpgm")
    return a.text(), kernel_desc(name, NV), f"; @launch kernel={name} grid=(256,1,1) block=(512,1,1) lds={NST*STG}"

def gen_k5(name="k5_kernel"):
    a = A()
    kernel_head(a, name)
    sH, sP, sO = 12, 16, 20
    a("s_cmp_ge_u32 s2, 576")
    a(f"s_cbranch_scc1 L_{name}_done")
    a("s_load_dwordx2 s[4:5], s[0:1], 56")
    a("s_load_dwordx2 s[8:9], s[0:1], 72")
    a("v_lshrrev_b32 v1, 6, v0")
    a("v_and_b32 v0, 63, v0")
    a("s_nop 0")
    a("v_readfirstlane_b32 s28, v1")
    a("s_lshl_b32 s29, s2, 2")
    a("s_add_u32 s29, s29, s28")
    a("s_mul_i32 s30, s29, 3641")
    a("s_lshr_b32 s30, s30, 16")
    a("s_mul_i32 s31, s30, 18")
    a("s_sub_u32 s31, s29, s31")
    a("s_waitcnt lgkmcnt(0)")
    srd(a, sH, 8, H1_SZ, H1_OFF)
    srd(a, sP, 8, P_SZ, P_OFF)
    srd(a, sO, 4, 2048*576*2)
    a("v_lshlrev_b32 v1, 4, v0")
    a("s_lshl_b32 s32, s29, 10")
    a("s_lshl_b32 s33, s29, 11")
    a(f"buffer_load_dwordx4 v[4:7], v1, {sr(sH,4)}, s32 offen")
    for k in range(4):
        a(f"buffer_load_dwordx4 v[{8+k*8}:{11+k*8}], v1, {sr(sP,4)}, s33 offen")
        a(f"buffer_load_dwordx4 v[{12+k*8}:{15+k*8}], v1, {sr(sP,4)}, s33 offen offset:1024")
        if k < 3: a(f"s_add_u32 s33, s33, {128*36*1024}")
    a("v_and_b32 v2, 15, v0")
    a("s_lshl_b32 s34, s30, 4")
    a("v_add_u32 v2, s34, v2")
    a("v_mul_u32_u24 v2, 1152, v2")
    a("v_lshrrev_b32 v3, 4, v0")
    a("v_lshl_add_u32 v2, v3, 3, v2")
    a("s_lshl_b32 s34, s31, 6")
    a("s_waitcnt vmcnt(0)")
    for i in range(8):
        a(f"v_add_f32 v{8+i}, v{8+i}, v{16+i}")
        a(f"v_add_f32 v{24+i}, v{24+i}, v{32+i}")
    for i in range(8):
        a(f"v_add_f32 v{8+i}, v{8+i}, v{24+i}")
    for p in range(4):
        a(f"v_cvt_pk_bf16_f32 v{16+p}, v{8+2*p}, v{9+2*p}")
    for p in range(4):
        a(f"v_lshlrev_b32 v{24+2*p}, 16, v{16+p}")
        a(f"v_and_b32 v{25+2*p}, 0xffff0000, v{16+p}")
        a(f"v_lshlrev_b32 v{32+2*p}, 16, v{4+p}")
        a(f"v_and_b32 v{33+2*p}, 0xffff0000, v{4+p}")
    for i in range(8):
        a(f"v_add_f32 v{24+i}, v{24+i}, v{32+i}")
    for p in range(4):
        a(f"v_cvt_pk_bf16_f32 v{16+p}, v{24+2*p}, v{25+2*p}")
    a(f"buffer_store_dwordx2 v[16:17], v2, {sr(sO,4)}, s34 offen")
    a(f"buffer_store_dwordx2 v[18:19], v2, {sr(sO,4)}, s34 offen offset:32")
    a.lab(f"L_{name}_done")
    a("s_endpgm")
    return a.text(), kernel_desc(name, 40, 48), f"; @launch kernel={name} grid=(576,1,1) block=(256,1,1) lds=0"


def gen_k2(name="k2_kernel"):
    a = A(); vm = VM(a)
    kernel_head(a, name)
    PITCH = 224; BLK = 32*PITCH
    ACC = 4
    OF = 28
    XR = 100
    WR = 112
    vD = 160
    vWa, vWb = 167, 168
    vT = 170
    NV = 188
    sW, sO, sXs, sH, sST = 12, 16, 20, 24, 28
    sWave, sRb, sNb, sT = 32, 33, 34, 36
    a("s_cmp_ge_u32 s2, 192")
    a(f"s_cbranch_scc1 L_{name}_done")
    stamp(a, 0); stamp(a, 5, True)
    a("s_load_dwordx2 s[4:5], s[0:1], 0")
    a("s_load_dwordx2 s[6:7], s[0:1], 16")
    a("s_load_dwordx2 s[8:9], s[0:1], 72")
    a("v_lshrrev_b32 v1, 6, v0")
    a("v_and_b32 v0, 63, v0")
    a("s_nop 0")
    a(f"v_readfirstlane_b32 s{sWave}, v1")
    a(f"s_lshr_b32 s{sT+1}, s2, 3")
    a(f"s_mul_i32 s{sRb}, s{sT+1}, 10923")
    a(f"s_lshr_b32 s{sRb}, s{sRb}, 16")
    a(f"s_mul_i32 s{sT}, s{sRb}, 6")
    a(f"s_sub_u32 s{sNb}, s{sT+1}, s{sT}")
    a(f"s_and_b32 s{sT}, s2, 7")
    a(f"s_lshl_b32 s{sT}, s{sT}, 2")
    a(f"s_add_u32 s{sRb}, s{sRb}, s{sT}")
    a("s_waitcnt lgkmcnt(0)")
    srd(a, sW, 6, 576*576*2)
    srd(a, sO, 8, O_SZ, O_OFF)
    srd(a, sXs, 4, 2048*576*2)
    srd(a, sH, 8, H1_SZ, H1_OFF)
    srd(a, sST, 8, ST_SZ, ST_OFF)
    a(f"s_mul_i32 s{sT}, s{sNb}, 192")
    a(f"s_mov_b32 s{sT+1}, 0x40000000")
    for t in range(7):
        a(f"v_add_u32 v{vT}, {t*64}, v0")
        a(f"v_mul_u32_u24 v{vT+1}, 4682, v{vT}")
        a(f"v_lshrrev_b32 v{vT+1}, 16, v{vT+1}")
        a(f"v_mul_u32_u24 v{vT+2}, 14, v{vT+1}")
        a(f"v_sub_u32 v{vT+2}, v{vT}, v{vT+2}")
        a(f"v_and_b32 v{vT+3}, 4, v{vT+1}")
        a(f"v_lshlrev_b32 v{vT+3}, 1, v{vT+3}")
        a(f"v_and_b32 v{vT+4}, 8, v{vT+1}")
        a(f"v_lshrrev_b32 v{vT+4}, 1, v{vT+4}")
        a(f"v_and_b32 v{vT+1}, 0x13, v{vT+1}")
        a(f"v_or3_b32 v{vT+1}, v{vT+1}, v{vT+3}, v{vT+4}")
        a(f"v_mul_u32_u24 v{vT+1}, 1152, v{vT+1}")
        a(f"v_lshl_add_u32 v{vT+1}, v{vT+2}, 4, v{vT+1}")
        a(f"v_add_u32 v{vT+1}, s{sT}, v{vT+1}")
        a(f"v_cmp_gt_u32 vcc, 12, v{vT+2}")
        a(f"v_mov_b32 v{vT+3}, s{sT+1}")
        a("s_nop 0")
        a(f"v_cndmask_b32 v{vD+t}, v{vT+3}, v{vT+1}, vcc")
    a(f"s_lshl_b32 s{sT}, s{sRb}, 6")
    a(f"s_lshl_b32 s{sT+1}, s{sWave}, 4")
    a(f"s_add_u32 s{sT}, s{sT}, s{sT+1}")
    a(f"v_and_b32 v{vT}, 15, v0")
    a(f"v_add_u32 v{vT}, s{sT}, v{vT}")
    a(f"v_mul_u32_u24 v{vT+1}, 1152, v{vT}")
    a(f"v_lshrrev_b32 v{vT+2}, 4, v0")
    a(f"v_lshl_add_u32 v{vT+3}, v{vT+2}, 4, v{vT+1}")
    a(f"v_lshl_add_u32 v{vT+4}, v{vT+2}, 3, v{vT+1}")
    a(f"s_mul_i32 s{sT+1}, s{sNb}, 192")
    a(f"s_mul_i32 s{sT+2}, s{sWave}, {32*1152}")
    a(f"s_mul_i32 s{sT+3}, s{sWave}, {BLK}")
    def wblk(bi):
        for t in range(7):
            a(f"s_add_u32 m0, s{sT+3}, {bi*4*BLK + t*1024}")
            a("s_nop 0")
            a(f"buffer_load_dwordx4 v{vD+t}, {sr(sW,4)}, s{sT+2} offen lds")
        a(f"s_add_u32 s{sT+2}, s{sT+2}, {4*32*1152}")
    for bi in range(4):
        wblk(bi)
        for s_ in range(4*bi, 4*bi+4):
            a(f"buffer_load_dwordx4 {vr(OF+s_*4,4)}, v{vT+3}, {sr(sO,4)}, 0 offen offset:{s_*64}")
    for s_ in (16, 17):
        a(f"buffer_load_dwordx4 {vr(OF+s_*4,4)}, v{vT+3}, {sr(sO,4)}, 0 offen offset:{s_*64}")
    for nt in range(6):
        a(f"buffer_load_dwordx2 {vr(XR+nt*2,2)}, v{vT+4}, {sr(sXs,4)}, s{sT+1} offen offset:{nt*32}")
    a(f"s_cmp_ge_u32 s{sWave}, 2")
    a(f"s_cbranch_scc1 L_{name}_skipdma")
    wblk(4)
    a.lab(f"L_{name}_skipdma")
    a(f"v_lshrrev_b32 v{vT+5}, 5, v0")
    a(f"v_lshlrev_b32 v{vT+5}, 4, v{vT+5}")
    a(f"v_bfe_u32 v{vT+6}, v0, 2, 3")
    a(f"v_add_u32 v{vT+5}, v{vT+5}, v{vT+6}")
    a(f"v_mul_u32_u24 v{vT+5}, {PITCH}, v{vT+5}")
    a(f"v_and_b32 v{vT+6}, 3, v0")
    a(f"v_lshl_add_u32 v{vWa}, v{vT+6}, 3, v{vT+5}")
    a(f"v_add_u32 v{vWb}, {9*BLK}, v{vWa}")
    for i in range(0, 24, 2):
        a(f"v_mov_b64 {vr(ACC+i,2)}, 0")
    def wread(s_, buf):
        base = vWa if s_ < 9 else vWb
        for nt in range(6):
            off = (s_ % 9) * BLK + nt * 32
            a(f"ds_read_b64_tr_b16 {vr(WR+buf*24+nt*4,2)}, v{base} offset:{off}")
            a(f"ds_read_b64_tr_b16 {vr(WR+buf*24+nt*4+2,2)}, v{base} offset:{off+8*PITCH}")
    for c in range(5):
        a(f"s_waitcnt vmcnt({(3-c)*11+8 if c < 4 else 0})")
        a("s_barrier")
        if c == 0: stamp(a, 1)
        steps = list(range(4*c, min(4*c+4, 18)))
        wread(steps[0], steps[0] % 2)
        for s_ in steps:
            if s_ != steps[-1]:
                wread(s_+1, (s_+1) % 2)
                a("s_waitcnt lgkmcnt(12)")
            else:
                a("s_waitcnt lgkmcnt(0)")
            for nt in range(6):
                a(f"v_mfma_f32_16x16x32_bf16 {vr(ACC+nt*4,4)}, {vr(WR+(s_%2)*24+nt*4,4)}, {vr(OF+s_*4,4)}, {vr(ACC+nt*4,4)}")
    a("s_nop 7")
    stamp(a, 2)
    HP = WR
    for nt in range(6):
        for p in range(2):
            c0 = ACC + nt*4 + 2*p
            a(f"v_cvt_pk_bf16_f32 v{vT}, v{c0}, v{c0+1}")
            a(f"v_lshlrev_b32 v{c0}, 16, v{vT}")
            a(f"v_and_b32 v{c0+1}, 0xffff0000, v{vT}")
            a(f"v_lshlrev_b32 v{vT+1}, 16, v{XR+nt*2+p}")
            a(f"v_and_b32 v{vT+2}, 0xffff0000, v{XR+nt*2+p}")
            a(f"v_add_f32 v{c0}, v{c0}, v{vT+1}")
            a(f"v_add_f32 v{c0+1}, v{c0+1}, v{vT+2}")
            a(f"v_cvt_pk_bf16_f32 v{HP+nt*2+p}, v{c0}, v{c0+1}")
            a(f"v_lshlrev_b32 v{c0}, 16, v{HP+nt*2+p}")
            a(f"v_and_b32 v{c0+1}, 0xffff0000, v{HP+nt*2+p}")
    a(f"s_lshl_b32 s{sT}, s{sRb}, 2")
    a(f"s_add_u32 s{sT}, s{sT}, s{sWave}")
    a(f"s_mul_i32 s{sT+1}, s{sT}, 18")
    a(f"s_mul_i32 s{sT+2}, s{sNb}, 3")
    a(f"s_add_u32 s{sT+1}, s{sT+1}, s{sT+2}")
    a(f"s_lshl_b32 s{sT+1}, s{sT+1}, 10")
    a(f"v_lshlrev_b32 v{vT}, 4, v0")
    for p in range(3):
        a(f"buffer_store_dwordx4 {vr(HP+p*4,4)}, v{vT}, {sr(sH,4)}, s{sT+1} offen offset:{p*1024}")
    def xreduce(v, t):
        a(f"v_xor_b32 v{t}, 16, v0")
        a(f"v_lshlrev_b32 v{t}, 2, v{t}")
        a(f"ds_bpermute_b32 v{t+1}, v{t}, v{v}")
        a("s_waitcnt lgkmcnt(0)")
        a(f"v_add_f32 v{v}, v{v}, v{t+1}")
        a(f"v_xor_b32 v{t}, 32, v0")
        a(f"v_lshlrev_b32 v{t}, 2, v{t}")
        a(f"ds_bpermute_b32 v{t+1}, v{t}, v{v}")
        a("s_waitcnt lgkmcnt(0)")
        a(f"v_add_f32 v{v}, v{v}, v{t+1}")
    S0, S1 = vT+4, vT+5
    a(f"v_add_f32 v{S0}, v{ACC}, v{ACC+1}")
    for i in range(2, 24):
        a(f"v_add_f32 v{S0}, v{S0}, v{ACC+i}")
    xreduce(S0, vT+6)
    a(f"v_mul_f32 v{S0}, {f32(1.0/96.0)}, v{S0}")
    a(f"v_mov_b32 v{S1}, 0")
    for i in range(24):
        a(f"v_sub_f32 v{vT+1}, v{ACC+i}, v{S0}")
        a(f"v_fmac_f32 v{S1}, v{vT+1}, v{vT+1}")
    xreduce(S1, vT+6)
    a(f"s_lshl_b32 s{sT}, s{sT}, 4")
    a(f"v_add_u32 v{vT}, s{sT}, v0")
    a(f"v_mul_u32_u24 v{vT}, 48, v{vT}")
    a(f"s_lshl_b32 s{sT+1}, s{sNb}, 3")
    a("s_mov_b64 exec, 0xffff")
    a(f"buffer_store_dwordx2 {vr(S0,2)}, v{vT}, {sr(sST,4)}, s{sT+1} offen")
    stamp(a, 3)
    if "stamp" in OPT: a("s_waitcnt vmcnt(0)")
    stamp(a, 4); stamp(a, 6, True)
    stamp_dump(a, 7, 8, sWave, vT+8, 2)
    a.lab(f"L_{name}_done")
    a("s_endpgm")
    return a.text(), kernel_desc(name, NV, 96), f"; @launch kernel={name} grid=(192,1,1) block=(256,1,1) lds={18*BLK}"

def gen_k1(name="k1_kernel"):
    a = A(); vm = VM(a)
    kernel_head(a, name)
    XT = 0
    WB = 92160; STG = 16384; NST = 4; PITCH = 480
    QP = 624
    ACC = 4
    XF = 44
    WF = 84
    RAW = 100
    vD0, vD1 = 150, 151
    vWa, vXa = 152, 153
    vT = 156
    NV = 200
    sW, sXs, sO = 12, 16, 20
    sWave, sRb, sHg, sT = 28, 29, 30, 36
    sWo, sM0b = 31, 32
    a("s_cmp_ge_u32 s2, 256")
    a(f"s_cbranch_scc1 L_{name}_done")
    stamp(a, 0); stamp(a, 5, True)
    a("s_load_dwordx4 s[4:7], s[0:1], 0")
    a("s_load_dwordx2 s[8:9], s[0:1], 72")
    a("v_lshrrev_b32 v1, 6, v0")
    a("v_mov_b32 v3, v0")
    a("v_and_b32 v0, 63, v0")
    a(f"v_readfirstlane_b32 s{sWave}, v1")
    a(f"s_lshr_b32 s{sT}, s2, 3")
    a(f"s_and_b32 s{sHg}, s{sT}, 3")
    a(f"s_and_b32 s{sT+1}, s2, 1")
    a(f"s_lshl_b32 s{sT+1}, s{sT+1}, 2")
    a(f"s_add_u32 s{sHg}, s{sHg}, s{sT+1}")
    a(f"s_lshr_b32 s{sRb}, s{sT}, 2")
    a(f"s_bfe_u32 s{sT+1}, s2, 0x20001")
    a(f"s_lshl_b32 s{sT+1}, s{sT+1}, 3")
    a(f"s_add_u32 s{sRb}, s{sRb}, s{sT+1}")
    a("s_waitcnt lgkmcnt(0)")
    srd(a, sW, 6, 576*1728*2)
    srd(a, sXs, 4, 2048*576*2)
    srd(a, sO, 8, O_SZ, O_OFF)
    a(f"v_mul_u32_u24 v{vT}, 10923, v0")
    a(f"v_lshrrev_b32 v{vT}, 16, v{vT}")
    a(f"v_mul_u32_u24 v{vT+1}, 6, v{vT}")
    a(f"v_sub_u32 v{vT+1}, v0, v{vT+1}")
    a(f"s_mul_i32 s{sT}, s{sWave}, 10")
    a(f"v_add_u32 v{vT+2}, s{sT}, v{vT}")
    a(f"s_lshl_b32 s{sT+1}, s{sRb}, 6")
    a(f"s_sub_u32 s{sT+1}, s{sT+1}, 16")
    a(f"v_add_u32 v{vT+3}, s{sT+1}, v{vT+2}")
    a(f"s_movk_i32 s{sT+2}, 1152")
    a(f"v_mul_lo_u32 v{vT+3}, v{vT+3}, s{sT+2}")
    a(f"v_lshl_add_u32 v{vT+3}, v{vT+1}, 4, v{vT+3}")
    for i in range(12):
        vm.op(("x", i), f"buffer_load_dwordx4 {vr(RAW+i*4,4)}, v{vT+3}, {sr(sXs,4)}, 0 offen offset:{i*96}")
    a(f"s_lshl_b32 s{sT}, s{sWave}, 7")
    a(f"s_mul_i32 s{sT+1}, s{sHg}, 144")
    a(f"s_mov_b32 s{sT+2}, 0x40000000")
    for t, vd in enumerate((vD0, vD1)):
        a(f"v_add_u32 v{vT+4}, s{sT}, v0")
        if t: a(f"v_add_u32 v{vT+4}, 64, v{vT+4}")
        a(f"v_mul_u32_u24 v{vT+5}, 2185, v{vT+4}")
        a(f"v_lshrrev_b32 v{vT+5}, 16, v{vT+5}")
        a(f"v_mul_u32_u24 v{vT+6}, 30, v{vT+5}")
        a(f"v_sub_u32 v{vT+6}, v{vT+4}, v{vT+6}")
        a(f"v_mul_u32_u24 v{vT+7}, 7282, v{vT+6}")
        a(f"v_lshrrev_b32 v{vT+7}, 16, v{vT+7}")
        a(f"v_mul_u32_u24 v{vT+8}, 9, v{vT+7}")
        a(f"v_sub_u32 v{vT+8}, v{vT+6}, v{vT+8}")
        a(f"v_mul_u32_u24 v{vT+7}, 1152, v{vT+7}")
        a(f"v_lshl_add_u32 v{vT+7}, v{vT+8}, 4, v{vT+7}")
        a(f"v_and_b32 v{vT+8}, 4, v{vT+5}")
        a(f"v_lshlrev_b32 v{vT+8}, 1, v{vT+8}")
        a(f"v_and_b32 v{vT+9}, 8, v{vT+5}")
        a(f"v_lshrrev_b32 v{vT+9}, 1, v{vT+9}")
        a(f"v_and_b32 v{vT+10}, 0x13, v{vT+5}")
        a(f"v_or3_b32 v{vT+8}, v{vT+8}, v{vT+9}, v{vT+10}")
        a(f"v_mul_u32_u24 v{vT+8}, 3456, v{vT+8}")
        a(f"v_add3_u32 v{vT+7}, v{vT+7}, v{vT+8}, s{sT+1}")
        a(f"v_cmp_gt_u32 vcc, 27, v{vT+6}")
        a(f"v_cmp_gt_u32 s[{sT+4}:{sT+5}], 32, v{vT+5}")
        a(f"s_and_b64 vcc, vcc, s[{sT+4}:{sT+5}]")
        a(f"v_mov_b32 v{vT+8}, s{sT+2}")
        a("s_nop 1")
        a(f"v_cndmask_b32 v{vd}, v{vT+8}, v{vT+7}, vcc")
    a(f"s_lshl_b32 s{sM0b}, s{sWave}, 11")
    a(f"s_add_u32 s{sM0b}, s{sM0b}, {WB}")
    def wdma(i):
        if i >= 18: return
        st = i % NST
        a(f"s_mov_b32 s{sWo}, {i*32*3456}")
        for t, vd in enumerate((vD0, vD1)):
            a(f"s_add_u32 m0, s{sM0b}, {st*STG + t*1024}")
            a("s_nop 0")
            vm.op(("W", i), f"buffer_load_dwordx4 v{vd}, {sr(sW,4)}, s{sWo} offen lds")
    for i in range(4): wdma(i)
    ONES_LO, ONES_HI, ONES = sT+6, sT+7, sT+8
    a(f"s_mov_b32 s{ONES}, 0x3f803f80")
    S, M, Q = vT+4, vT+5, vT+6
    B3, B1, B2 = vT+8, vT+9, vT+10
    for d_, vb in ((3, B3), (1, B1), (2, B2)):
        a(f"v_add_u32 v{vb}, {d_}, v{vT+1}")
        a(f"v_subrev_u32 v{vT+11}, 6, v{vb}")
        a(f"v_min_u32 v{vb}, v{vb}, v{vT+11}")
        a(f"v_mad_u32_u24 v{vb}, v{vT}, 6, v{vb}")
        a(f"v_lshlrev_b32 v{vb}, 2, v{vb}")
    def reduce6(v):
        a(f"ds_bpermute_b32 v{vT+11}, v{B3}, v{v}")
        a("s_waitcnt lgkmcnt(0)")
        a(f"v_add_f32 v{v}, v{v}, v{vT+11}")
        a(f"ds_bpermute_b32 v{vT+11}, v{B1}, v{v}")
        a(f"ds_bpermute_b32 v{vT+12}, v{B2}, v{v}")
        a("s_waitcnt lgkmcnt(0)")
        a(f"v_add_f32 v{v}, v{v}, v{vT+11}")
        a(f"v_add_f32 v{v}, v{v}, v{vT+12}")
    vm.wait(lambda t: t[0] == "x")
    stamp(a, 1)
    if "wtest" in OPT:
        a("s_waitcnt vmcnt(6)")
        stamp(a, 2)
        a("s_waitcnt vmcnt(0)")
        stamp(a, 3)
        stamp(a, 4)
        OPT.discard("stamp"); OPT.add("stamp_off")
    a(f"v_mov_b32 v{S}, 0")
    a(f"v_mov_b32 v{Q}, 0")
    for i in range(48):
        a(f"v_dot2_f32_bf16 v{S if i%2==0 else Q}, v{RAW+i}, s{ONES}, v{S if i%2==0 else Q}")
    a("s_nop 2")
    a(f"v_add_f32 v{S}, v{S}, v{Q}")
    reduce6(S)
    a(f"v_mul_f32 v{S}, {f32(1.0/576.0)}, v{S}")
    round_bf16(a, M, S)
    PM, PQ = 172, 174
    a(f"v_sub_f32 v{PM}, 0, v{M}")
    a(f"v_mov_b32 v{PM+1}, v{PM}")
    a(f"v_mov_b64 {vr(PQ,2)}, 0")
    a(f"v_mov_b64 {vr(PQ+2,2)}, 0")
    for i in range(48):
        t = 178 + (i % 4) * 2
        q = PQ + (i % 2) * 2
        a(f"v_lshlrev_b32 v{t}, 16, v{RAW+i}")
        a(f"v_and_b32 v{t+1}, 0xffff0000, v{RAW+i}")
        a(f"v_pk_add_f32 {vr(t,2)}, {vr(t,2)}, {vr(PM,2)}")
        a(f"v_pk_fma_f32 {vr(q,2)}, {vr(t,2)}, {vr(t,2)}, {vr(q,2)}")
        a(f"v_cvt_pk_bf16_f32 v{RAW+i}, v{t}, v{t+1}")
    a(f"v_add_f32 v{Q}, v{PQ}, v{PQ+1}")
    a(f"v_add_f32 v{vT+13}, v{PQ+2}, v{PQ+3}")
    a(f"v_add_f32 v{Q}, v{Q}, v{vT+13}")
    reduce6(Q)
    a(f"v_mul_f32 v{Q}, {f32(1.0/576.0)}, v{Q}")
    a(f"v_sub_f32 v{vT+13}, v{S}, v{M}")
    a(f"v_fma_f32 v{Q}, -v{vT+13}, v{vT+13}, v{Q}")
    a(f"v_max_f32 v{Q}, 0, v{Q}")
    round_bf16(a, Q, Q)
    a(f"v_add_f32 v{Q}, {f32(1e-5)}, v{Q}")
    round_bf16(a, Q, Q)
    a(f"v_sqrt_f32 v{Q}, v{Q}")
    a("s_nop 0")
    round_bf16(a, Q, Q)
    a(f"v_rcp_f32 v{PM}, v{Q}")
    a(f"v_lshrrev_b32 v{vT+11}, 4, v{vT+2}")
    a(f"v_mov_b32 v{PM+1}, v{PM}")
    a(f"v_mul_u32_u24 v{vT+11}, 18432, v{vT+11}")
    a(f"v_and_b32 v{vT+12}, 15, v{vT+2}")
    a(f"v_lshl_add_u32 v{vT+11}, v{vT+12}, 4, v{vT+11}")
    a(f"v_lshl_add_u32 v{vT+14}, v{vT+1}, 8, v{vT+11}")
    a(f"v_cmp_gt_u32 vcc, 60, v0")
    a(f"s_and_saveexec_b64 s[{sT+4}:{sT+5}], vcc")
    for i in range(12):
        for d_ in range(4):
            x = RAW + i*4 + d_
            t = 178 + d_ * 2
            a(f"v_lshlrev_b32 v{t}, 16, v{x}")
            a(f"v_and_b32 v{t+1}, 0xffff0000, v{x}")
            a(f"v_pk_mul_f32 {vr(t,2)}, {vr(t,2)}, {vr(PM,2)}")
            a(f"v_cvt_pk_bf16_f32 v{x}, v{t}, v{t+1}")
        a(f"ds_write_b128 v{vT+14}, {vr(RAW+i*4,4)} offset:{XT + i*6*256}")
    a(f"s_mov_b64 exec, s[{sT+4}:{sT+5}]")
    stamp(a, 2)
    a(f"v_lshrrev_b32 v{vT+5}, 5, v0")
    a(f"v_lshlrev_b32 v{vT+5}, 4, v{vT+5}")
    a(f"v_bfe_u32 v{vT+6}, v0, 2, 3")
    a(f"v_add_u32 v{vT+5}, v{vT+5}, v{vT+6}")
    a(f"v_mul_u32_u24 v{vT+5}, {PITCH}, v{vT+5}")
    a(f"v_and_b32 v{vT+6}, 3, v0")
    a(f"v_lshl_add_u32 v{vWa}, v{vT+6}, 3, v{vT+5}")
    a(f"s_lshl_b32 s{sT}, s{sWave}, 6")
    a(f"s_add_u32 s{sT}, s{sT}, {WB}")
    a(f"v_add_u32 v{vWa}, s{sT}, v{vWa}")
    a(f"v_lshlrev_b32 v{vXa}, 4, v0")
    for i in range(0, 40, 2):
        a(f"v_mov_b64 {vr(ACC+i,2)}, 0")
    vm.wait(lambda t: t[0] == "W" and t[1] <= 1, " lgkmcnt(0)")
    a("s_barrier")
    def reads(i):
        b = i % 2; st = i % NST
        for n in range(2):
            a(f"ds_read_b64_tr_b16 {vr(WF+b*8+n*4,2)}, v{vWa} offset:{st*STG + n*32}")
            a(f"ds_read_b64_tr_b16 {vr(WF+b*8+n*4+2,2)}, v{vWa} offset:{st*STG + n*32 + 8*PITCH}")
        for mt in range(5):
            off = (mt*18 + i)*1024
            if off < 65536:
                a(f"ds_read_b128 {vr(XF+b*20+mt*4,4)}, v{vXa} offset:{off}")
            else:
                a(f"ds_read_b128 {vr(XF+b*20+mt*4,4)}, v{vT} offset:{off-65536}")
    a(f"v_add_u32 v{vT}, 65536, v{vXa}")
    stamp(a, 3)
    reads(0)
    for i in range(18):
        if i < 17:
            reads(i+1)
            a("s_waitcnt lgkmcnt(9)")
        else:
            a("s_waitcnt lgkmcnt(0)")
        b = i % 2
        k = 0
        for mt in range(5):
            for n in range(2):
                a(f"v_mfma_f32_16x16x32_bf16 {vr(ACC+(mt*2+n)*4,4)}, {vr(WF+b*8+n*4,4)}, {vr(XF+b*20+mt*4,4)}, {vr(ACC+(mt*2+n)*4,4)}")
                k += 1
                if k == 2 and i >= 1:
                    wdma(i+3)
        if i < 17:
            vm.wait(lambda t: t[0] == "W" and t[1] <= i+2)
            a("s_barrier")
    a("s_barrier")
    stamp(a, 4)
    a(f"v_lshrrev_b32 v{vT}, 4, v0")
    a(f"v_lshlrev_b32 v{vT}, 2, v{vT}")
    a(f"s_lshl_b32 s{sT}, s{sWave}, 5")
    a(f"v_add_u32 v{vT}, s{sT}, v{vT}")
    a(f"v_and_b32 v{vT+1}, 15, v0")
    a(f"v_mul_u32_u24 v{vT+1}, {QP}, v{vT+1}")
    AD = vT + 4
    for n in range(2):
        for p in range(2):
            ad = AD + n*2 + p
            a(f"v_add_u32 v{vT+2}, {n*16+p*2}, v{vT}")
            a(f"v_mul_u32_u24 v{vT+3}, 3641, v{vT+2}")
            a(f"v_lshrrev_b32 v{vT+3}, 16, v{vT+3}")
            a(f"v_mul_u32_u24 v{ad}, 18, v{vT+3}")
            a(f"v_sub_u32 v{ad}, v{vT+2}, v{ad}")
            a(f"v_lshl_add_u32 v{ad}, v{ad}, 1, v{vT+1}")
            a(f"v_mad_u32_u24 v{ad}, v{vT+3}, 48, v{ad}")
    a(f"s_cmp_ge_u32 s{sWave}, 7")
    a("s_nop 4")
    a(f"s_cbranch_scc1 L_{name}_skipq")
    for mt in range(5):
        for n in range(2):
            c = ACC + (mt*2+n)*4
            a(f"v_cvt_pk_bf16_f32 v{vT+8}, v{c}, v{c+1}")
            a(f"v_cvt_pk_bf16_f32 v{vT+9}, v{c+2}, v{c+3}")
            a(f"ds_write_b32 v{AD+n*2}, v{vT+8} offset:{mt*16*QP}")
            a(f"ds_write_b32 v{AD+n*2+1}, v{vT+9} offset:{mt*16*QP}")
    a.lab(f"L_{name}_skipq")
    a("s_waitcnt lgkmcnt(0)")
    a("s_barrier")
    if "dbg1" in OPT:
        lds_dump(a, 57344, 9, 3, 190, 210, tag="q")
    a(f"s_cmp_ge_u32 s{sWave}, 4")
    a(f"s_cbranch_scc1 L_{name}_done")
    QR = 4; KR = 16; LG = 120; OA = 130; VR_ = 16
    a(f"v_lshrrev_b32 v{vT}, 2, v3")
    a(f"v_and_b32 v{vT+1}, 3, v3")
    a(f"v_add_u32 v{vT+2}, 2, v{vT}")
    a(f"v_mul_u32_u24 v{vT+2}, {QP}, v{vT+2}")
    a(f"v_mad_u32_u24 v{vT+2}, v{vT+1}, 48, v{vT+2}")
    for j in range(3):
        a(f"ds_read_b128 {vr(QR+j*4,4)}, v{vT+2} offset:{14*QP + j*16}")
    for w in range(8):
        for j in range(3):
            a(f"ds_read_b128 {vr(KR+w*12+j*4,4)}, v{vT+2} offset:{(14-2*w)*QP + 192 + j*16}")
    a(f"s_lshl_b32 s{sT}, s{sRb}, 6")
    a(f"v_add_u32 v{vT+3}, s{sT}, v{vT}")
    a(f"s_mov_b32 s{sT+1}, {f32(18.0**-0.5)}")
    a(f"s_mov_b32 s{sT+2}, {f32(-1e9)}")
    a(f"v_cvt_pk_bf16_f32 v{vT+4}, s{sT+2}, s{sT+2}")
    a(f"v_lshlrev_b32 v{vT+4}, 16, v{vT+4}")
    for w in range(8):
        a(f"s_waitcnt lgkmcnt({min(15, (7-w)*3)})")
        a(f"v_mov_b32 v{LG+w}, 0")
        for d_ in range(9):
            a(f"v_dot2_f32_bf16 v{LG+w}, v{QR+d_}, v{KR+w*12+d_}, v{LG+w}")
        a("s_nop 2")
        round_bf16(a, LG+w, LG+w)
        a(f"v_mul_f32 v{LG+w}, s{sT+1}, v{LG+w}")
        round_bf16(a, LG+w, LG+w)
        a(f"v_cmp_le_u32 vcc, {2*w}, v{vT+3}")
        a("s_nop 1")
        a(f"v_cndmask_b32 v{LG+w}, v{vT+4}, v{LG+w}, vcc")
    for w in range(8):
        for j in range(3):
            a(f"ds_read_b128 {vr(VR_+w*12+j*4,4)}, v{vT+2} offset:{(14-2*w)*QP + 384 + j*16}")
    a(f"v_max3_f32 v{vT+5}, v{LG}, v{LG+1}, v{LG+2}")
    a(f"v_max3_f32 v{vT+5}, v{vT+5}, v{LG+3}, v{LG+4}")
    a(f"v_max3_f32 v{vT+5}, v{vT+5}, v{LG+5}, v{LG+6}")
    a(f"v_max_f32 v{vT+5}, v{vT+5}, v{LG+7}")
    a(f"s_mov_b32 s{sT+3}, {f32(math.log2(math.e))}")
    for w in range(8):
        a(f"v_sub_f32 v{LG+w}, v{LG+w}, v{vT+5}")
        a(f"v_mul_f32 v{LG+w}, s{sT+3}, v{LG+w}")
        a(f"v_exp_f32 v{LG+w}, v{LG+w}")
    a("s_nop 0")
    a(f"v_add_f32 v{vT+6}, v{LG}, v{LG+1}")
    for w in range(2, 8):
        a(f"v_add_f32 v{vT+6}, v{vT+6}, v{LG+w}")
    a(f"v_rcp_f32 v{vT+6}, v{vT+6}")
    a("s_nop 0")
    for w in range(8):
        a(f"v_mul_f32 v{LG+w}, v{LG+w}, v{vT+6}")
    for wp in range(4):
        a(f"v_cvt_pk_bf16_f32 v{LG+wp}, v{LG+2*wp}, v{LG+2*wp+1}")
    for d_ in range(18):
        a(f"v_mov_b32 v{OA+d_}, 0")
    a(f"s_mov_b32 s{sT+4}, 0x05040100")
    a(f"s_mov_b32 s{sT+5}, 0x07060302")
    for wp in range(4):
        a(f"s_waitcnt lgkmcnt({min(15, (3-wp)*6)})")
        for d_ in range(9):
            x0 = VR_ + (2*wp)*12 + d_; x1 = VR_ + (2*wp+1)*12 + d_
            t = vT + 8 + (d_ % 2) * 2
            a(f"v_perm_b32 v{t}, v{x1}, v{x0}, s{sT+4}")
            a(f"v_perm_b32 v{t+1}, v{x1}, v{x0}, s{sT+5}")
            a(f"v_dot2_f32_bf16 v{OA+2*d_}, v{t}, v{LG+wp}, v{OA+2*d_}")
            a(f"v_dot2_f32_bf16 v{OA+2*d_+1}, v{t+1}, v{LG+wp}, v{OA+2*d_+1}")
    a("s_nop 2")
    for d_ in range(9):
        a(f"v_cvt_pk_bf16_f32 v{QR+d_}, v{OA+2*d_}, v{OA+2*d_+1}")
    a(f"v_mul_u32_u24 v{vT+3}, 1152, v{vT+3}")
    a(f"v_mad_u32_u24 v{vT+3}, v{vT+1}, 36, v{vT+3}")
    a(f"s_mul_i32 s{sT}, s{sHg}, 144")
    a(f"buffer_store_dwordx4 {vr(QR,4)}, v{vT+3}, {sr(sO,4)}, s{sT} offen")
    a(f"buffer_store_dwordx4 {vr(QR+4,4)}, v{vT+3}, {sr(sO,4)}, s{sT} offen offset:16")
    a(f"buffer_store_dword v{QR+8}, v{vT+3}, {sr(sO,4)}, s{sT} offen offset:32")
    if "stamp_off" in OPT: OPT.add("stamp")
    if "stamp" in OPT: a("s_waitcnt vmcnt(0)")
    stamp(a, 6, True)
    stamp_dump(a, 7, 8, sWave, vT+8, 3)
    a.lab(f"L_{name}_done")
    a("s_endpgm")
    return a.text(), kernel_desc(name, NV, 96), f"; @launch kernel={name} grid=(256,1,1) block=(512,1,1) lds={WB + NST*STG}"

GENS = {"k1": gen_k1, "k2": gen_k2, "k3": gen_k3, "k4": gen_k4, "k5": gen_k5}


def build(which):
    heads, texts, descs = [], [], []
    for w in which:
        t, d, h = GENS[w]()
        heads.append(h); texts.append(t); descs.append(d)
    out = "; generated by dev/gen.py\n" + "\n".join(heads) + "\n"
    out += '.amdgcn_target "amdgcn-amd-amdhsa--gfx950"\n.text\n'
    out += "\n".join(texts)
    out += '.section .rodata,"a"\n'
    for d in descs:
        out += ".p2align 6\n" + d
    return out

if __name__ == "__main__":
    which = sys.argv[2].split(",")
    open(sys.argv[1], "w").write(build(which))
```

```python
import sys, struct, math, os
OPT = set(os.environ.get("GENOPT", "").split(","))

KN = "sequential_preLN__sliding_local_dilated__geglu_ffn__prompt"

O_OFF  = 0
O_SZ   = 2048*576*2
H1_OFF = O_OFF + O_SZ
H1_SZ  = 2048*576*2
ST_OFF = H1_OFF + H1_SZ
ST_SZ  = 2048*6*8
HH_OFF = ST_OFF + ST_SZ
HH_SZ  = 2048*4608*2
P_OFF  = HH_OFF + HH_SZ
P_SZ   = 4*2048*576*4

def f32(x):
    return struct.unpack("<I", struct.pack("<f", x))[0]

class A:
    def __init__(self):
        self.l = []
    def __call__(self, s):
        if "nomfma" in OPT and s.startswith("v_mfma"): return
        if "nods" in OPT and s.startswith("ds_read_b64_tr"): return
        if "now" in OPT and s.startswith("buffer_load_dwordx4") and s.endswith("lds"): return
        if "nox" in OPT and s.startswith("buffer_load_dwordx4 v[") and "s[16:19]" in s: return
        self.l.append("    " + s)
    def lab(self, s):
        self.l.append(s + ":")
    def c(self, s):
        self.l.append("    ; " + s)
    def text(self):
        return "\n".join(self.l) + "\n"

def vr(b, n=1):
    return f"v{b}" if n == 1 else f"v[{b}:{b+n-1}]"
def sr(b, n=1):
    return f"s{b}" if n == 1 else f"s[{b}:{b+n-1}]"

def kernel_head(a, name):
    a.l.append(f".globl {name}")
    a.l.append(".p2align 8")
    a.l.append(f".type {name},@function")
    a.lab(name)

def kernel_desc(name, vgpr, sgpr=96, accum=None):
    if accum is None:
        accum = (vgpr + 3) // 4 * 4
    return f""".amdhsa_kernel {name}
  .amdhsa_next_free_vgpr {vgpr}
  .amdhsa_next_free_sgpr {sgpr}
  .amdhsa_accum_offset {accum}
  .amdhsa_group_segment_fixed_size 0
  .amdhsa_kernarg_size 80
  .amdhsa_user_sgpr_count 2
  .amdhsa_user_sgpr_kernarg_segment_ptr 1
  .amdhsa_system_sgpr_workgroup_id_x 1
.end_amdhsa_kernel
"""

def srd(a, d, base, size, off=0):
    if off:
        a(f"s_add_u32 s{d}, s{base}, {off}")
        a(f"s_addc_u32 s{d+1}, s{base+1}, 0")
    else:
        a(f"s_mov_b32 s{d}, s{base}")
        a(f"s_mov_b32 s{d+1}, s{base+1}")
    a(f"s_and_b32 s{d+1}, s{d+1}, 0xffff")
    a(f"s_mov_b32 s{d+2}, {size}")
    a(f"s_mov_b32 s{d+3}, 0x00020000")

def round_bf16(a, d, s, tmp=None):
    a(f"v_cvt_pk_bf16_f32 v{d}, v{s}, v{s}")
    a(f"v_lshlrev_b32 v{d}, 16, v{d}")

GELU_A = -2.0 * math.log2(math.e) * math.sqrt(2.0 / math.pi)
GELU_B = GELU_A * 0.044715

import os
OPT = set(os.environ.get("GENOPT", "").split(","))
def stamp(a, i, real=False):
    if "stamp" in OPT:
        a(f"s_mem{'real' if real else ''}time s[{60+2*i}:{61+2*i}]")
def stamp_dump(a, n, sWs, sWave, tmpv, region=0):
    if "stamp" in OPT:
        a("s_waitcnt lgkmcnt(0)")
        a("s_mov_b64 exec, -1")
        srd(a, 80, sWs, 1<<20, (200+region)<<20)
        a(f"s_lshl_b32 s84, s2, 4")
        a(f"s_add_u32 s84, s84, s{sWave}")
        a(f"s_lshl_b32 s84, s84, 6")
        a(f"v_mov_b32 v{tmpv}, s84")
        for i in range(n):
            a(f"v_mov_b32 v{tmpv+2}, s{60+2*i}")
            a(f"v_mov_b32 v{tmpv+3}, s{61+2*i}")
            a(f"buffer_store_dwordx2 v[{tmpv+2}:{tmpv+3}], v{tmpv}, s[80:83], 0 offen offset:{8*i}")
            a("s_nop 1")
def gen_k3(name="k3_kernel"):
    a = A()
    kernel_head(a, name)
    NST = 6
    STG = 18432
    RING = 6
    ACC = 0
    XS = 144
    WR = 192
    vWa = 216
    vWb = 217
    vD0, vD1, vD2 = 218, 219, 220
    vX0, vX1 = 221, 222
    vM0, vR0, vM1, vR1 = 223, 224, 225, 226
    vT = 228
    vLane = 244
    NV = 246
    def acc(nt, mat, mt):
        return ACC + ((nt * 2 + mat) * 2 + mt) * 4
    sW, sX, sST, sH = 12, 16, 20, 24
    sWave, sFb, sMb = 28, 29, 30
    sWoff, sXoff, sIt = 31, 32, 33
    sM0b = 34
    sT = 36
    sA_, sB_ = 48, 49
    sExec = 50
    sHb = 52

    a("s_cmp_ge_u32 s2, 256")
    a(f"s_cbranch_scc1 L_{name}_done")
    stamp(a, 0)
    stamp(a, 5, True)
    a("s_load_dwordx4 s[4:7], s[0:1], 32")
    a("s_load_dwordx2 s[8:9], s[0:1], 72")
    a("v_lshrrev_b32 v1, 6, v0")
    a("v_and_b32 v0, 63, v0")
    a("s_nop 0")
    a(f"v_readfirstlane_b32 s{sWave}, v1")
    a(f"s_and_b32 s{sT}, s2, 7")
    a(f"s_lshr_b32 s{sT+1}, s2, 3")
    a(f"s_and_b32 s{sFb}, s{sT+1}, 3")
    a(f"s_lshl_b32 s{sT}, s{sT}, 2")
    a(f"s_add_u32 s{sFb}, s{sFb}, s{sT}")
    a(f"s_lshr_b32 s{sMb}, s{sT+1}, 2")
    a("s_waitcnt lgkmcnt(0)")
    a(f"s_cmp_ge_u32 s{sWave}, 4")
    a(f"s_cselect_b32 s{sT}, s6, s4")
    a(f"s_cselect_b32 s{sT+1}, s7, s5")
    srd(a, sW, sT, 576*4608*2)
    srd(a, sX, 8, H1_SZ, H1_OFF)
    srd(a, sST, 8, ST_SZ, ST_OFF)
    srd(a, sH, 8, HH_SZ, HH_OFF)
    a(f"v_and_b32 v{vT}, 15, v0")
    a(f"s_lshl_b32 s{sT}, s{sMb}, 8")
    a(f"s_lshl_b32 s{sT+1}, s{sWave}, 5")
    a(f"s_add_u32 s{sT}, s{sT}, s{sT+1}")
    a(f"v_add_u32 v{vT}, s{sT}, v{vT}")
    a(f"v_mul_u32_u24 v{vT}, 48, v{vT}")
    for mt in range(2):
        for q in range(3):
            a(f"buffer_load_dwordx4 {vr(WR+mt*12+q*4,4)}, v{vT}, {sr(sST,4)}, 0 offen offset:{mt*768+q*16}")
    for t, vd in enumerate((vD0, vD1, vD2)):
        a(f"v_add_u32 v{vT+1}, {t*64}, v0")
        a(f"v_mul_u32_u24 v{vT+2}, 3641, v{vT+1}")
        a(f"v_lshrrev_b32 v{vT+2}, 16, v{vT+2}")
        a(f"v_mul_u32_u24 v{vT+3}, 18, v{vT+2}")
        a(f"v_sub_u32 v{vT+3}, v{vT+1}, v{vT+3}")
        a(f"v_mul_u32_u24 v{vT+2}, 9216, v{vT+2}")
        a(f"v_lshl_add_u32 v{vd}, v{vT+3}, 4, v{vT+2}")
    a(f"s_and_b32 s{sT}, s{sWave}, 3")
    a(f"s_mul_i32 s{sT+1}, s{sT}, {8*9216}")
    a(f"s_mul_i32 s{sT+2}, s{sFb}, 288")
    a(f"s_add_u32 s{sT+1}, s{sT+1}, s{sT+2}")
    for vd in (vD0, vD1, vD2):
        a(f"v_add_u32 v{vd}, s{sT+1}, v{vd}")
    a(f"s_mul_i32 s{sM0b}, s{sWave}, 2304")
    a(f"s_lshl_b32 s{sT}, s{sMb}, 4")
    a(f"s_lshl_b32 s{sT+1}, s{sWave}, 1")
    a(f"s_add_u32 s{sT}, s{sT}, s{sT+1}")
    a(f"s_mul_i32 s{sT+1}, s{sT}, 18432")
    a(f"v_lshlrev_b32 v{vX0}, 4, v0")
    a(f"v_add_u32 v{vX0}, s{sT+1}, v{vX0}")
    a(f"v_add_u32 v{vX1}, 18432, v{vX0}")
    a(f"s_mul_i32 s{sHb}, s{sT}, 144")
    a(f"s_lshr_b32 s{sT+1}, s{sFb}, 1")
    a(f"s_mul_i32 s{sT+1}, s{sT+1}, 9")
    a(f"s_add_u32 s{sHb}, s{sHb}, s{sT+1}")
    a(f"s_lshl_b32 s{sHb}, s{sHb}, 10")
    a(f"v_lshrrev_b32 v{vT+1}, 2, v0")
    a(f"v_mul_u32_u24 v{vT+1}, 288, v{vT+1}")
    a(f"v_and_b32 v{vT+2}, 3, v0")
    a(f"v_lshl_add_u32 v{vWa}, v{vT+2}, 3, v{vT+1}")
    a(f"v_add_u32 v{vWb}, {3*STG}, v{vWa}")
    sRot, sCnt = 54, 55
    if "rot" in OPT:
        a(f"s_mul_i32 s{sRot}, s{sMb}, 9")
        a(f"s_and_b32 s{sT}, s{sFb}, 3")
        a(f"s_mul_i32 s{sT}, s{sT}, 18")
        a(f"s_add_u32 s{sRot}, s{sRot}, s{sT}")
        a(f"s_lshr_b32 s{sRot}, s{sRot}, 2")
        a(f"s_sub_u32 s{sT}, s{sRot}, 18")
        a(f"s_cmp_ge_u32 s{sRot}, 18")
        a(f"s_cselect_b32 s{sRot}, s{sT}, s{sRot}")
    else:
        a(f"s_mov_b32 s{sRot}, 0")
    if "samew" in OPT:
        a(f"s_mov_b32 s{sRot}, 0")
    a(f"s_mov_b32 s{sCnt}, 0")
    a(f"s_mul_i32 s{sWoff}, s{sRot}, {32*9216}")
    a(f"s_lshl_b32 s{sXoff}, s{sRot}, 10")
    a(f"s_mov_b64 s[{sExec}:{sExec+1}], 0xffff")
    a(f"v_mov_b32 v{vLane}, v0")

    def load_groups(stage, xset):
        gs = []
        for t, vd in enumerate((vD0, vD1, vD2)):
            g = [f"s_add_u32 m0, s{sM0b}, {stage*STG + t*1024}"]
            if t == 2:
                g.append(f"s_mov_b64 exec, s[{sExec}:{sExec+1}]")
            else:
                g.append("s_nop 0")
            g.append(f"buffer_load_dwordx4 v{vd}, {sr(sW,4)}, s{sWoff} offen lds")
            if t == 2:
                g.append("s_mov_b64 exec, -1")
            gs.append(g)
        gs.append([f"buffer_load_dwordx4 {vr(XS+xset*8,4)}, v{vX0}, {sr(sX,4)}, s{sXoff} offen"])
        gs.append([f"buffer_load_dwordx4 {vr(XS+xset*8+4,4)}, v{vX1}, {sr(sX,4)}, s{sXoff} offen",
                   f"s_add_u32 s{sRot}, s{sRot}, 1",
                   f"s_cmp_eq_u32 s{sRot}, {4 if 'hot4' in OPT else 18}",
                   f"s_cselect_b32 s{sRot}, 0, s{sRot}",
                   f"s_add_u32 s{sCnt}, s{sCnt}, 1",
                   f"s_mul_i32 s{sWoff}, s{sRot}, {32*9216}",
                   f"s_lshl_b32 s{sXoff}, s{sRot}, 10",
                   f"s_cmp_ge_u32 s{sCnt}, 18",
                   f"s_cselect_b32 s{sWoff}, 0x7f000000, s{sWoff}",
                   f"s_cselect_b32 s{sXoff}, 0x7f000000, s{sXoff}"])
        return gs
    def issue_loads(stage, xset):
        for g in load_groups(stage, xset):
            for x in g: a(x)

    for s in range(5):
        issue_loads(s, s)
    a("s_waitcnt vmcnt(25)")
    for mt, (vM, vR) in enumerate(((vM0, vR0), (vM1, vR1))):
        b = WR + mt * 12
        a(f"v_add_f32 v{vT}, v{b}, v{b+2}")
        a(f"v_add_f32 v{vT+1}, v{b+4}, v{b+6}")
        a(f"v_add_f32 v{vT+2}, v{b+8}, v{b+10}")
        a(f"v_add_f32 v{vT}, v{vT}, v{vT+1}")
        a(f"v_add_f32 v{vT}, v{vT}, v{vT+2}")
        a(f"v_mul_f32 v{vT}, {f32(1.0/6.0)}, v{vT}")
        a(f"v_add_f32 v{vT+1}, v{b+1}, v{b+3}")
        a(f"v_add_f32 v{vT+2}, v{b+5}, v{b+7}")
        a(f"v_add_f32 v{vT+3}, v{b+9}, v{b+11}")
        a(f"v_add_f32 v{vT+1}, v{vT+1}, v{vT+2}")
        a(f"v_add_f32 v{vT+1}, v{vT+1}, v{vT+3}")
        a(f"v_mov_b32 v{vT+2}, 0")
        for t in range(6):
            a(f"v_sub_f32 v{vT+3}, v{b+2*t}, v{vT}")
            a(f"v_fmac_f32 v{vT+2}, v{vT+3}, v{vT+3}")
        a(f"v_fmac_f32 v{vT+1}, {f32(96.0)}, v{vT+2}")
        a(f"v_mul_f32 v{vT+1}, {f32(1.0/576.0)}, v{vT+1}")
        round_bf16(a, vM, vT)
        round_bf16(a, vT+1, vT+1)
        a(f"v_add_f32 v{vT+1}, {f32(1e-5)}, v{vT+1}")
        round_bf16(a, vT+1, vT+1)
        a(f"v_sqrt_f32 v{vT+1}, v{vT+1}")
        a("s_nop 0")
        round_bf16(a, vT+1, vT+1)
        a(f"v_rcp_f32 v{vR}, v{vT+1}")
    for i in range(0, 144, 2):
        a(f"v_mov_b64 {vr(ACC+i,2)}, 0")

    def norm_ops(xset):
        ops = []
        for mt, (vM, vR) in enumerate(((vM0, vR0), (vM1, vR1))):
            for d in range(4):
                x = XS + xset * 8 + mt * 4 + d
                t0 = vT + (d % 2) * 2
                t1 = t0 + 1
                ops.append(f"v_lshlrev_b32 v{t0}, 16, v{x}")
                ops.append(f"v_and_b32 v{t1}, 0xffff0000, v{x}")
                if "fastnorm" in OPT:
                    ops.append(f"v_sub_f32 v{t0}, v{t0}, v{vM}")
                    ops.append(f"v_sub_f32 v{t1}, v{t1}, v{vM}")
                    ops.append(f"v_cvt_pk_bf16_f32 v{x}, v{t0}, v{t1}")
                    continue
                ops.append(f"v_sub_f32 v{t0}, v{t0}, v{vM}")
                ops.append(f"v_sub_f32 v{t1}, v{t1}, v{vM}")
                ops.append(f"v_cvt_pk_bf16_f32 v{t0}, v{t0}, v{t1}")
                ops.append(f"v_and_b32 v{t1}, 0xffff0000, v{t0}")
                ops.append(f"v_lshlrev_b32 v{t0}, 16, v{t0}")
                ops.append(f"v_mul_f32 v{t0}, v{t0}, v{vR}")
                ops.append(f"v_mul_f32 v{t1}, v{t1}, v{vR}")
                ops.append(f"v_cvt_pk_bf16_f32 v{x}, v{t0}, v{t1}")
        return ops

    def wread(fidx_global):
        st = (fidx_global // 18) % NST
        f = fidx_global % 18
        nt, mat = f // 2, f % 2
        slot = fidx_global % RING
        base = vWa if st < 3 else vWb
        off = (st % 3) * STG + mat * 9216 + nt * 32
        a(f"ds_read_b64_tr_b16 {vr(WR+slot*4,2)}, v{base} offset:{off}")
        a(f"ds_read_b64_tr_b16 {vr(WR+slot*4+2,2)}, v{base} offset:{off+4608}")

    PF = RING - 1
    a("s_waitcnt vmcnt(15)")
    for op in norm_ops(0):
        a(op)
    a("s_barrier")
    for f in range(PF):
        wread(f)
    stamp(a, 1)
    a(f"s_mov_b32 s{sIt}, 0")
    a(".p2align 6")
    a.lab(f"L_{name}_loop")
    for ph in range(NST):
        lg = load_groups((ph + 5) % NST, (ph + 5) % NST)
        spread = "spread" in OPT
        if not spread:
            issue_loads((ph + 5) % NST, (ph + 5) % NST)
        nops = norm_ops((ph + 1) % NST)
        if "nonorm" in OPT: nops = []
        ni = 0
        for f in range(18):
            g = ph * 18 + f
            nt, mat = f // 2, f % 2
            slot = g % RING
            wread(g + PF)
            a(f"s_waitcnt lgkmcnt({2*PF})")
            a(f"v_mfma_f32_16x16x32_bf16 {vr(acc(nt,mat,0),4)}, {vr(WR+slot*4,4)}, {vr(XS+ph*8,4)}, {vr(acc(nt,mat,0),4)}")
            a(f"v_mfma_f32_16x16x32_bf16 {vr(acc(nt,mat,1),4)}, {vr(WR+slot*4,4)}, {vr(XS+ph*8+4,4)}, {vr(acc(nt,mat,1),4)}")
            if f == 1:
                a("s_waitcnt vmcnt(%d)" % (15 if spread else 20))
            if spread and f % 3 == 2 and f // 3 < 5:
                for x in lg[f // 3]: a(x)
            if f >= 1:
                for _ in range(5):
                    if ni < len(nops):
                        a(nops[ni]); ni += 1
        assert ni == len(nops)
        a("s_waitcnt vmcnt(17)")
        a("s_barrier")
    a(f"s_add_u32 s{sIt}, s{sIt}, 1")
    a(f"s_cmp_lt_u32 s{sIt}, 3")
    a(f"s_cbranch_scc1 L_{name}_loop")
    stamp(a, 2)
    a("s_waitcnt vmcnt(0) lgkmcnt(0)")
    a(f"s_mov_b32 s{sA_}, {f32(GELU_A)}")
    a(f"s_mov_b32 s{sB_}, {f32(GELU_B)}")
    a(f"v_lshlrev_b32 v{vX0}, 4, v{vLane}")
    a(f"s_and_b32 s{sT}, s{sFb}, 1")
    a(f"s_lshl_b32 s{sT+1}, s{sT}, 12")
    a(f"s_add_u32 s{sT+1}, s{sT+1}, s{sHb}")
    a(f"s_lshl_b32 s{sT+2}, s{sT}, 3")
    a(f"s_add_u32 s{sT+2}, s{sT+2}, s{sHb}")
    a(f"s_add_u32 s{sT+2}, s{sT+2}, {8*1024}")
    a(f"s_add_u32 s{sT+3}, s{sT+1}, {144*1024}")
    a(f"s_add_u32 s{sT+4}, s{sT+2}, {144*1024}")
    OUT = XS
    def gelu_tile(nt, mt, dst):
        g = acc(nt, 0, mt); u = acc(nt, 1, mt)
        T = WR
        for h in range(2):
            g0, g1, u0, u1 = g+2*h, g+2*h+1, u+2*h, u+2*h+1
            x0, x1, y0, y1, t0, t1 = T+h*8, T+h*8+1, T+h*8+2, T+h*8+3, T+h*8+4, T+h*8+5
            if "relax" in OPT:
                x0, x1, y0, y1 = g0, g1, u0, u1
            else:
                a(f"v_cvt_pk_bf16_f32 v{x0}, v{g0}, v{g1}")
                a(f"v_cvt_pk_bf16_f32 v{y0}, v{u0}, v{u1}")
                a(f"v_and_b32 v{x1}, 0xffff0000, v{x0}")
                a(f"v_lshlrev_b32 v{x0}, 16, v{x0}")
                a(f"v_and_b32 v{y1}, 0xffff0000, v{y0}")
                a(f"v_lshlrev_b32 v{y0}, 16, v{y0}")
            a(f"v_mul_f32 v{t0}, v{x0}, v{x0}")
            a(f"v_mul_f32 v{t1}, v{x1}, v{x1}")
            a(f"v_fma_f32 v{t0}, v{t0}, s{sB_}, v{vT}")
            a(f"v_fma_f32 v{t1}, v{t1}, s{sB_}, v{vT}")
            a(f"v_mul_f32 v{t0}, v{t0}, v{x0}")
            a(f"v_mul_f32 v{t1}, v{t1}, v{x1}")
            a(f"v_exp_f32 v{t0}, v{t0}")
            a(f"v_exp_f32 v{t1}, v{t1}")
            a("s_nop 0")
            a(f"v_add_f32 v{t0}, 1.0, v{t0}")
            a(f"v_add_f32 v{t1}, 1.0, v{t1}")
            a(f"v_rcp_f32 v{t0}, v{t0}")
            a(f"v_rcp_f32 v{t1}, v{t1}")
            a("s_nop 0")
            a(f"v_mul_f32 v{t0}, v{t0}, v{x0}")
            a(f"v_mul_f32 v{t1}, v{t1}, v{x1}")
            if "relax" not in OPT:
                a(f"v_cvt_pk_bf16_f32 v{t0}, v{t0}, v{t1}")
                a(f"v_and_b32 v{t1}, 0xffff0000, v{t0}")
                a(f"v_lshlrev_b32 v{t0}, 16, v{t0}")
            a(f"v_mul_f32 v{t0}, v{t0}, v{y0}")
            a(f"v_mul_f32 v{t1}, v{t1}, v{y1}")
            a(f"v_cvt_pk_bf16_f32 v{dst+h}, v{t0}, v{t1}")
    a(f"v_mov_b32 v{vT}, s{sA_}")
    a("s_nop 7")
    k = 0
    for mt in range(2):
        for p in range(4):
            o = OUT + (k % 12) * 4; k += 1
            gelu_tile(2*p, mt, o)
            gelu_tile(2*p+1, mt, o+2)
            a(f"buffer_store_dwordx4 {vr(o,4)}, v{vX0}, {sr(sH,4)}, s{sT+1+2*mt} offen offset:{p*1024}")
        o = OUT + (k % 12) * 4; k += 1
        gelu_tile(8, mt, o)
        a(f"buffer_store_dwordx2 {vr(o,2)}, v{vX0}, {sr(sH,4)}, s{sT+2+2*mt} offen")
    stamp(a, 3)
    a("s_waitcnt vmcnt(0)")
    stamp(a, 4)
    stamp(a, 6, True)
    stamp_dump(a, 7, 8, sWave, vT)
    a.lab(f"L_{name}_done")
    a("s_endpgm")
    return a.text(), kernel_desc(name, NV), f"; @launch kernel={name} grid=(256,1,1) block=(512,1,1) lds={NST*STG}"


def lds_dump(a, nbytes, wg, tidv, tv, off_mb, nthreads=512, tag="d"):
    a(f"s_cmp_lg_u32 s2, {wg}")
    a(f"s_cbranch_scc1 L_dump_{tag}")
    srd(a, 80, 8, 1 << 20, off_mb << 20)
    a(f"v_lshlrev_b32 v{tv}, 4, v{tidv}")
    for i in range(0, nbytes, nthreads*16):
        a(f"v_add_u32 v{tv+1}, {i}, v{tv}")
        a(f"ds_read_b128 v[{tv+2}:{tv+5}], v{tv+1}")
        a("s_waitcnt lgkmcnt(0)")
        a(f"buffer_store_dwordx4 v[{tv+2}:{tv+5}], v{tv+1}, s[80:83], 0 offen")
        a("s_waitcnt vmcnt(0)")
    a.lab(f"L_dump_{tag}")
    a("s_barrier")

class VM:
    def __init__(self, a):
        self.a = a; self.ops = []
    def op(self, tag, text):
        if "noload" in OPT and tag[0] in ("W", "X") and tag[1] >= 2 and getattr(self.a, "k3", False): return
        self.a(text); self.ops.append(tag)
    def wait(self, tagpred, extra=""):
        last = -1
        for i, t in enumerate(self.ops):
            if tagpred(t): last = i
        n = len(self.ops) - 1 - last
        assert n <= 63
        if last >= 0:
            self.a(f"s_waitcnt vmcnt({n}){extra}")
            self.ops = self.ops[last+1:]

def gen_k4(name="k4_kernel"):
    a = A(); vm = VM(a)
    kernel_head(a, name)
    NST = 6; STG = 18432; RING = 6; PFD = 5
    ACC = 4
    XS = 76
    WR = 124
    vWa, vWb = 148, 149
    vD0, vD1, vD2 = 150, 151, 152
    vX0, vX1 = 153, 154
    vT = 156
    NV = 172
    def acc(nt, mt): return ACC + (nt*2+mt)*4
    sW, sX, sP = 12, 16, 20
    sWave, sKs, sMb, sNb = 28, 29, 30, 31
    sWb1, sWb2, sXb, sM0b = 32, 33, 34, 35
    sT = 36
    sExec = 50
    sWo = 52
    a("s_cmp_ge_u32 s2, 256")
    a(f"s_cbranch_scc1 L_{name}_done")
    stamp(a, 0); stamp(a, 5, True)
    a("s_load_dwordx2 s[4:5], s[0:1], 48")
    a("s_load_dwordx2 s[8:9], s[0:1], 72")
    a("v_lshrrev_b32 v1, 6, v0")
    a("v_and_b32 v0, 63, v0")
    a("s_nop 0")
    a(f"v_readfirstlane_b32 s{sWave}, v1")
    a(f"s_and_b32 s{sT}, s2, 7")
    a(f"s_lshr_b32 s{sT+1}, s2, 3")
    a(f"s_lshr_b32 s{sKs}, s{sT}, 1")
    a(f"s_and_b32 s{sNb}, s{sT+1}, 3")
    a(f"s_and_b32 s{sT}, s{sT}, 1")
    a(f"s_lshl_b32 s{sT}, s{sT}, 3")
    a(f"s_lshr_b32 s{sMb}, s{sT+1}, 2")
    a(f"s_add_u32 s{sMb}, s{sMb}, s{sT}")
    a("s_waitcnt lgkmcnt(0)")
    srd(a, sW, 4, 4608*576*2)
    srd(a, sX, 8, HH_SZ, HH_OFF)
    srd(a, sP, 8, P_SZ, P_OFF)
    for t, vd in enumerate((vD0, vD1, vD2)):
        a(f"v_add_u32 v{vT+1}, {t*64}, v0")
        a(f"v_mul_u32_u24 v{vT+2}, 3641, v{vT+1}")
        a(f"v_lshrrev_b32 v{vT+2}, 16, v{vT+2}")
        a(f"v_mul_u32_u24 v{vT+3}, 18, v{vT+2}")
        a(f"v_sub_u32 v{vT+3}, v{vT+1}, v{vT+3}")
        a(f"v_mul_u32_u24 v{vT+2}, 1152, v{vT+2}")
        a(f"v_lshl_add_u32 v{vd}, v{vT+3}, 4, v{vT+2}")
    a(f"s_lshr_b32 s{sT}, s{sWave}, 2")
    a(f"s_lshl_b32 s{sT+1}, s{sKs}, 1")
    a(f"s_add_u32 s{sT+1}, s{sT+1}, s{sT}")
    a(f"s_mul_i32 s{sWb1}, s{sT+1}, {576*1152}")
    a(f"s_and_b32 s{sT+2}, s{sWave}, 3")
    a(f"s_mul_i32 s{sT+3}, s{sT+2}, {8*1152}")
    a(f"s_add_u32 s{sWb1}, s{sWb1}, s{sT+3}")
    a(f"s_mul_i32 s{sT+3}, s{sNb}, 288")
    a(f"s_add_u32 s{sWb1}, s{sWb1}, s{sT+3}")
    a(f"s_cmp_ge_u32 s{sT+2}, 2")
    a(f"s_cselect_b32 s{sT+3}, {128*1152}, 0")
    a(f"s_add_u32 s{sWb2}, s{sWb1}, s{sT+3}")
    a(f"s_mul_i32 s{sM0b}, s{sWave}, 2304")
    a(f"s_lshl_b32 s{sXb}, s{sMb}, 3")
    a(f"s_lshl_b32 s{sT+3}, s{sT+2}, 1")
    a(f"s_add_u32 s{sXb}, s{sXb}, s{sT+3}")
    a(f"s_mov_b32 s{sT+4}, s{sXb}")
    a(f"s_mul_i32 s{sXb}, s{sXb}, 144")
    a(f"s_mul_i32 s{sT+3}, s{sT+1}, 18")
    a(f"s_add_u32 s{sXb}, s{sXb}, s{sT+3}")
    a(f"s_lshl_b32 s{sXb}, s{sXb}, 10")
    a(f"v_lshlrev_b32 v{vX0}, 4, v0")
    a(f"v_add_u32 v{vX0}, s{sXb}, v{vX0}")
    a(f"v_add_u32 v{vX1}, {144*1024}, v{vX0}")
    a(f"s_lshl_b32 s{sT+5}, s{sKs}, 7")
    a(f"s_add_u32 s{sT+5}, s{sT+5}, s{sT+4}")
    a(f"s_add_u32 s{sT+5}, s{sT+5}, s{sT}")
    a(f"s_mul_i32 s{sT+5}, s{sT+5}, 36")
    a(f"s_mul_i32 s{sT+6}, s{sNb}, 9")
    a(f"s_add_u32 s{sT+5}, s{sT+5}, s{sT+6}")
    a(f"s_lshl_b32 s{sT+5}, s{sT+5}, 10")
    a(f"v_lshrrev_b32 v{vT+1}, 2, v0")
    a(f"v_mul_u32_u24 v{vT+1}, 288, v{vT+1}")
    a(f"v_and_b32 v{vT+2}, 3, v0")
    a(f"v_lshl_add_u32 v{vWa}, v{vT+2}, 3, v{vT+1}")
    a(f"s_mul_i32 s{sT+6}, s{sT}, 9216")
    a(f"v_add_u32 v{vWa}, s{sT+6}, v{vWa}")
    a(f"v_add_u32 v{vWb}, {3*STG}, v{vWa}")
    a(f"s_mov_b64 s[{sExec}:{sExec+1}], 0xffff")

    def fa_rel(i):
        q, ii = divmod(i, 9)
        if ii < 4: return 288*q + 32*ii
        if ii < 8: return 288*q + 144 + 32*(ii-4)
        return 288*q + 128
    def load_groups(i):
        if i >= 18: return []
        st = i % NST
        gs = []
        base = sWb2 if i % 9 == 8 else sWb1
        for t, vd in enumerate((vD0, vD1, vD2)):
            g = []
            if t == 0:
                g.append(("s", f"s_add_u32 s{sWo}, s{base}, {fa_rel(i)*1152}"))
            g.append(("s", f"s_add_u32 m0, s{sM0b}, {st*STG + t*1024}"))
            g.append(("s", f"s_mov_b64 exec, s[{sExec}:{sExec+1}]" if t == 2 else "s_nop 0"))
            g.append((("W", i), f"buffer_load_dwordx4 v{vd}, {sr(sW,4)}, s{sWo} offen lds"))
            if t == 2: g.append(("s", "s_mov_b64 exec, -1"))
            gs.append(g)
        xs = XS + (i % NST) * 8
        gs.append([("s", f"s_mov_b32 s{sWo+1}, {i*1024}"),
                   (("X", i), f"buffer_load_dwordx4 {vr(xs,4)}, v{vX0}, {sr(sX,4)}, s{sWo+1} offen")])
        gs.append([(("X", i), f"buffer_load_dwordx4 {vr(xs+4,4)}, v{vX1}, {sr(sX,4)}, s{sWo+1} offen")])
        return gs
    def emit_group(g):
        for tag, txt in g:
            if tag == "s": a(txt)
            else: vm.op(tag, txt)
    for i in range(PFD):
        for g in load_groups(i): emit_group(g)
    for i in range(0, 72, 2):
        a(f"v_mov_b64 {vr(ACC+i,2)}, 0")
    def wread(gidx):
        i, nt = divmod(gidx, 9)
        if i >= 18: return False
        st = i % NST; slot = gidx % RING
        base = vWa if st < 3 else vWb
        off = (st % 3) * STG + nt * 32
        a(f"ds_read_b64_tr_b16 {vr(WR+slot*4,2)}, v{base} offset:{off}")
        a(f"ds_read_b64_tr_b16 {vr(WR+slot*4+2,2)}, v{base} offset:{off+4608}")
        return True
    PF = RING - 1
    vm.wait(lambda t: t[1] <= 1)
    a("s_barrier")
    for f in range(PF): wread(f)
    stamp(a, 1)
    for i in range(18):
        lg = load_groups(i + PFD)
        vm.wait(lambda t: t[0] == "X" and t[1] <= i)
        for nt in range(9):
            g = i*9 + nt; slot = g % RING
            ok = wread(g + PF)
            rem = min(PF, 18*9 - 1 - g)
            a(f"s_waitcnt lgkmcnt({2*rem})")
            xs = XS + (i % NST) * 8
            a(f"v_mfma_f32_16x16x32_bf16 {vr(acc(nt,0),4)}, {vr(WR+slot*4,4)}, {vr(xs,4)}, {vr(acc(nt,0),4)}")
            a(f"v_mfma_f32_16x16x32_bf16 {vr(acc(nt,1),4)}, {vr(WR+slot*4,4)}, {vr(xs+4,4)}, {vr(acc(nt,1),4)}")
            if nt % 2 == 0 and nt // 2 < len(lg):
                emit_group(lg[nt // 2])
        vm.wait(lambda t: t[0] == "W" and t[1] <= i + 2)
        a("s_barrier")
    stamp(a, 2)
    a(f"s_lshr_b32 s{sT}, s{sWave}, 2")
    a(f"v_lshlrev_b32 v{vT}, 4, v0")
    a(f"s_mul_i32 s{sT+1}, s{sWave}, 9216")
    a(f"v_add_u32 v{vT+1}, s{sT+1}, v{vT}")
    a(f"s_xor_b32 s{sT+2}, s{sWave}, 4")
    a(f"s_mul_i32 s{sT+2}, s{sT+2}, 9216")
    a(f"v_add_u32 v{vT+2}, s{sT+2}, v{vT}")
    a(f"s_cmp_eq_u32 s{sT}, 0")
    a("s_nop 4")
    a(f"s_cbranch_scc0 L_{name}_kh1")
    for kh in range(2):
        if kh == 1: a.lab(f"L_{name}_kh1")
        for nt in range(9):
            a(f"ds_write_b128 v{vT+1}, {vr(acc(nt,1-kh),4)} offset:{nt*1024}")
        a("s_waitcnt lgkmcnt(0)")
        a("s_barrier")
        for nt in range(9):
            a(f"ds_read_b128 {vr(XS+nt*4,4)}, v{vT+2} offset:{nt*1024}")
        for nt in range(9):
            a(f"s_waitcnt lgkmcnt({8-nt})")
            for r in range(4):
                a(f"v_add_f32 v{XS+nt*4+r}, v{XS+nt*4+r}, v{acc(nt,kh)+r}")
            if nt < 4:
                a(f"buffer_store_dwordx4 {vr(XS+nt*4,4)}, v{vT}, {sr(sP,4)}, s{sT+5} offen offset:{nt*1024}")
            else:
                if nt in (4, 8): a(f"s_add_u32 s{sT+5}, s{sT+5}, 4096")
                a(f"buffer_store_dwordx4 {vr(XS+nt*4,4)}, v{vT}, {sr(sP,4)}, s{sT+5} offen offset:{(nt%4)*1024}")
        stamp(a, 3)
        if "stamp" in OPT: a("s_waitcnt vmcnt(0)")
        stamp(a, 4); stamp(a, 6, True)
        stamp_dump(a, 7, 8, sWave, vT+4, 1)
        a("s_endpgm")
    a.lab(f"L_{name}_done")
    a("s_endpgm")
    return a.text(), kernel_desc(name, NV), f"; @launch kernel={name} grid=(256,1,1) block=(512,1,1) lds={NST*STG}"

def gen_k5(name="k5_kernel"):
    a = A()
    kernel_head(a, name)
    sH, sP, sO = 12, 16, 20
    a("s_cmp_ge_u32 s2, 576")
    a(f"s_cbranch_scc1 L_{name}_done")
    a("s_load_dwordx2 s[4:5], s[0:1], 56")
    a("s_load_dwordx2 s[8:9], s[0:1], 72")
    a("v_lshrrev_b32 v1, 6, v0")
    a("v_and_b32 v0, 63, v0")
    a("s_nop 0")
    a("v_readfirstlane_b32 s28, v1")
    a("s_lshl_b32 s29, s2, 2")
    a("s_add_u32 s29, s29, s28")
    a("s_mul_i32 s30, s29, 3641")
    a("s_lshr_b32 s30, s30, 16")
    a("s_mul_i32 s31, s30, 18")
    a("s_sub_u32 s31, s29, s31")
    a("s_waitcnt lgkmcnt(0)")
    srd(a, sH, 8, H1_SZ, H1_OFF)
    srd(a, sP, 8, P_SZ, P_OFF)
    srd(a, sO, 4, 2048*576*2)
    a("v_lshlrev_b32 v1, 4, v0")
    a("s_lshl_b32 s32, s29, 10")
    a("s_lshl_b32 s33, s29, 11")
    a(f"buffer_load_dwordx4 v[4:7], v1, {sr(sH,4)}, s32 offen")
    for k in range(4):
        a(f"buffer_load_dwordx4 v[{8+k*8}:{11+k*8}], v1, {sr(sP,4)}, s33 offen")
        a(f"buffer_load_dwordx4 v[{12+k*8}:{15+k*8}], v1, {sr(sP,4)}, s33 offen offset:1024")
        if k < 3: a(f"s_add_u32 s33, s33, {128*36*1024}")
    a("v_and_b32 v2, 15, v0")
    a("s_lshl_b32 s34, s30, 4")
    a("v_add_u32 v2, s34, v2")
    a("v_mul_u32_u24 v2, 1152, v2")
    a("v_lshrrev_b32 v3, 4, v0")
    a("v_lshl_add_u32 v2, v3, 3, v2")
    a("s_lshl_b32 s34, s31, 6")
    a("s_waitcnt vmcnt(0)")
    for i in range(8):
        a(f"v_add_f32 v{8+i}, v{8+i}, v{16+i}")
        a(f"v_add_f32 v{24+i}, v{24+i}, v{32+i}")
    for i in range(8):
        a(f"v_add_f32 v{8+i}, v{8+i}, v{24+i}")
    for p in range(4):
        a(f"v_cvt_pk_bf16_f32 v{16+p}, v{8+2*p}, v{9+2*p}")
    for p in range(4):
        a(f"v_lshlrev_b32 v{24+2*p}, 16, v{16+p}")
        a(f"v_and_b32 v{25+2*p}, 0xffff0000, v{16+p}")
        a(f"v_lshlrev_b32 v{32+2*p}, 16, v{4+p}")
        a(f"v_and_b32 v{33+2*p}, 0xffff0000, v{4+p}")
    for i in range(8):
        a(f"v_add_f32 v{24+i}, v{24+i}, v{32+i}")
    for p in range(4):
        a(f"v_cvt_pk_bf16_f32 v{16+p}, v{24+2*p}, v{25+2*p}")
    a(f"buffer_store_dwordx2 v[16:17], v2, {sr(sO,4)}, s34 offen")
    a(f"buffer_store_dwordx2 v[18:19], v2, {sr(sO,4)}, s34 offen offset:32")
    a.lab(f"L_{name}_done")
    a("s_endpgm")
    return a.text(), kernel_desc(name, 40, 48), f"; @launch kernel={name} grid=(576,1,1) block=(256,1,1) lds=0"


def gen_k2(name="k2_kernel"):
    a = A(); vm = VM(a)
    kernel_head(a, name)
    PITCH = 224; BLK = 32*PITCH
    ACC = 4
    OF = 28
    XR = 100
    WR = 112
    vD = 160
    vWa, vWb = 167, 168
    vT = 170
    NV = 188
    sW, sO, sXs, sH, sST = 12, 16, 20, 24, 28
    sWave, sRb, sNb, sT = 32, 33, 34, 36
    a("s_cmp_ge_u32 s2, 192")
    a(f"s_cbranch_scc1 L_{name}_done")
    stamp(a, 0); stamp(a, 5, True)
    a("s_load_dwordx2 s[4:5], s[0:1], 0")
    a("s_load_dwordx2 s[6:7], s[0:1], 16")
    a("s_load_dwordx2 s[8:9], s[0:1], 72")
    a("v_lshrrev_b32 v1, 6, v0")
    a("v_and_b32 v0, 63, v0")
    a("s_nop 0")
    a(f"v_readfirstlane_b32 s{sWave}, v1")
    a(f"s_lshr_b32 s{sT+1}, s2, 3")
    a(f"s_mul_i32 s{sRb}, s{sT+1}, 10923")
    a(f"s_lshr_b32 s{sRb}, s{sRb}, 16")
    a(f"s_mul_i32 s{sT}, s{sRb}, 6")
    a(f"s_sub_u32 s{sNb}, s{sT+1}, s{sT}")
    a(f"s_and_b32 s{sT}, s2, 7")
    a(f"s_lshl_b32 s{sT}, s{sT}, 2")
    a(f"s_add_u32 s{sRb}, s{sRb}, s{sT}")
    a("s_waitcnt lgkmcnt(0)")
    srd(a, sW, 6, 576*576*2)
    srd(a, sO, 8, O_SZ, O_OFF)
    srd(a, sXs, 4, 2048*576*2)
    srd(a, sH, 8, H1_SZ, H1_OFF)
    srd(a, sST, 8, ST_SZ, ST_OFF)
    a(f"s_mul_i32 s{sT}, s{sNb}, 192")
    a(f"s_mov_b32 s{sT+1}, 0x40000000")
    for t in range(7):
        a(f"v_add_u32 v{vT}, {t*64}, v0")
        a(f"v_mul_u32_u24 v{vT+1}, 4682, v{vT}")
        a(f"v_lshrrev_b32 v{vT+1}, 16, v{vT+1}")
        a(f"v_mul_u32_u24 v{vT+2}, 14, v{vT+1}")
        a(f"v_sub_u32 v{vT+2}, v{vT}, v{vT+2}")
        a(f"v_and_b32 v{vT+3}, 4, v{vT+1}")
        a(f"v_lshlrev_b32 v{vT+3}, 1, v{vT+3}")
        a(f"v_and_b32 v{vT+4}, 8, v{vT+1}")
        a(f"v_lshrrev_b32 v{vT+4}, 1, v{vT+4}")
        a(f"v_and_b32 v{vT+1}, 0x13, v{vT+1}")
        a(f"v_or3_b32 v{vT+1}, v{vT+1}, v{vT+3}, v{vT+4}")
        a(f"v_mul_u32_u24 v{vT+1}, 1152, v{vT+1}")
        a(f"v_lshl_add_u32 v{vT+1}, v{vT+2}, 4, v{vT+1}")
        a(f"v_add_u32 v{vT+1}, s{sT}, v{vT+1}")
        a(f"v_cmp_gt_u32 vcc, 12, v{vT+2}")
        a(f"v_mov_b32 v{vT+3}, s{sT+1}")
        a("s_nop 0")
        a(f"v_cndmask_b32 v{vD+t}, v{vT+3}, v{vT+1}, vcc")
    a(f"s_lshl_b32 s{sT}, s{sRb}, 6")
    a(f"s_lshl_b32 s{sT+1}, s{sWave}, 4")
    a(f"s_add_u32 s{sT}, s{sT}, s{sT+1}")
    a(f"v_and_b32 v{vT}, 15, v0")
    a(f"v_add_u32 v{vT}, s{sT}, v{vT}")
    a(f"v_mul_u32_u24 v{vT+1}, 1152, v{vT}")
    a(f"v_lshrrev_b32 v{vT+2}, 4, v0")
    a(f"v_lshl_add_u32 v{vT+3}, v{vT+2}, 4, v{vT+1}")
    a(f"v_lshl_add_u32 v{vT+4}, v{vT+2}, 3, v{vT+1}")
    a(f"s_mul_i32 s{sT+1}, s{sNb}, 192")
    a(f"s_mul_i32 s{sT+2}, s{sWave}, {32*1152}")
    a(f"s_mul_i32 s{sT+3}, s{sWave}, {BLK}")
    def wblk(bi):
        for t in range(7):
            a(f"s_add_u32 m0, s{sT+3}, {bi*4*BLK + t*1024}")
            a("s_nop 0")
            a(f"buffer_load_dwordx4 v{vD+t}, {sr(sW,4)}, s{sT+2} offen lds")
        a(f"s_add_u32 s{sT+2}, s{sT+2}, {4*32*1152}")
    for bi in range(4):
        wblk(bi)
        for s_ in range(4*bi, 4*bi+4):
            a(f"buffer_load_dwordx4 {vr(OF+s_*4,4)}, v{vT+3}, {sr(sO,4)}, 0 offen offset:{s_*64}")
    for s_ in (16, 17):
        a(f"buffer_load_dwordx4 {vr(OF+s_*4,4)}, v{vT+3}, {sr(sO,4)}, 0 offen offset:{s_*64}")
    for nt in range(6):
        a(f"buffer_load_dwordx2 {vr(XR+nt*2,2)}, v{vT+4}, {sr(sXs,4)}, s{sT+1} offen offset:{nt*32}")
    a(f"s_cmp_ge_u32 s{sWave}, 2")
    a(f"s_cbranch_scc1 L_{name}_skipdma")
    wblk(4)
    a.lab(f"L_{name}_skipdma")
    a(f"v_lshrrev_b32 v{vT+5}, 5, v0")
    a(f"v_lshlrev_b32 v{vT+5}, 4, v{vT+5}")
    a(f"v_bfe_u32 v{vT+6}, v0, 2, 3")
    a(f"v_add_u32 v{vT+5}, v{vT+5}, v{vT+6}")
    a(f"v_mul_u32_u24 v{vT+5}, {PITCH}, v{vT+5}")
    a(f"v_and_b32 v{vT+6}, 3, v0")
    a(f"v_lshl_add_u32 v{vWa}, v{vT+6}, 3, v{vT+5}")
    a(f"v_add_u32 v{vWb}, {9*BLK}, v{vWa}")
    for i in range(0, 24, 2):
        a(f"v_mov_b64 {vr(ACC+i,2)}, 0")
    def wread(s_, buf):
        base = vWa if s_ < 9 else vWb
        for nt in range(6):
            off = (s_ % 9) * BLK + nt * 32
            a(f"ds_read_b64_tr_b16 {vr(WR+buf*24+nt*4,2)}, v{base} offset:{off}")
            a(f"ds_read_b64_tr_b16 {vr(WR+buf*24+nt*4+2,2)}, v{base} offset:{off+8*PITCH}")
    for c in range(5):
        a(f"s_waitcnt vmcnt({(3-c)*11+8 if c < 4 else 0})")
        a("s_barrier")
        if c == 0: stamp(a, 1)
        steps = list(range(4*c, min(4*c+4, 18)))
        wread(steps[0], steps[0] % 2)
        for s_ in steps:
            if s_ != steps[-1]:
                wread(s_+1, (s_+1) % 2)
                a("s_waitcnt lgkmcnt(12)")
            else:
                a("s_waitcnt lgkmcnt(0)")
            for nt in range(6):
                a(f"v_mfma_f32_16x16x32_bf16 {vr(ACC+nt*4,4)}, {vr(WR+(s_%2)*24+nt*4,4)}, {vr(OF+s_*4,4)}, {vr(ACC+nt*4,4)}")
    a("s_nop 7")
    stamp(a, 2)
    HP = WR
    for nt in range(6):
        for p in range(2):
            c0 = ACC + nt*4 + 2*p
            a(f"v_cvt_pk_bf16_f32 v{vT}, v{c0}, v{c0+1}")
            a(f"v_lshlrev_b32 v{c0}, 16, v{vT}")
            a(f"v_and_b32 v{c0+1}, 0xffff0000, v{vT}")
            a(f"v_lshlrev_b32 v{vT+1}, 16, v{XR+nt*2+p}")
            a(f"v_and_b32 v{vT+2}, 0xffff0000, v{XR+nt*2+p}")
            a(f"v_add_f32 v{c0}, v{c0}, v{vT+1}")
            a(f"v_add_f32 v{c0+1}, v{c0+1}, v{vT+2}")
            a(f"v_cvt_pk_bf16_f32 v{HP+nt*2+p}, v{c0}, v{c0+1}")
            a(f"v_lshlrev_b32 v{c0}, 16, v{HP+nt*2+p}")
            a(f"v_and_b32 v{c0+1}, 0xffff0000, v{HP+nt*2+p}")
    a(f"s_lshl_b32 s{sT}, s{sRb}, 2")
    a(f"s_add_u32 s{sT}, s{sT}, s{sWave}")
    a(f"s_mul_i32 s{sT+1}, s{sT}, 18")
    a(f"s_mul_i32 s{sT+2}, s{sNb}, 3")
    a(f"s_add_u32 s{sT+1}, s{sT+1}, s{sT+2}")
    a(f"s_lshl_b32 s{sT+1}, s{sT+1}, 10")
    a(f"v_lshlrev_b32 v{vT}, 4, v0")
    for p in range(3):
        a(f"buffer_store_dwordx4 {vr(HP+p*4,4)}, v{vT}, {sr(sH,4)}, s{sT+1} offen offset:{p*1024}")
    def xreduce(v, t):
        a(f"v_xor_b32 v{t}, 16, v0")
        a(f"v_lshlrev_b32 v{t}, 2, v{t}")
        a(f"ds_bpermute_b32 v{t+1}, v{t}, v{v}")
        a("s_waitcnt lgkmcnt(0)")
        a(f"v_add_f32 v{v}, v{v}, v{t+1}")
        a(f"v_xor_b32 v{t}, 32, v0")
        a(f"v_lshlrev_b32 v{t}, 2, v{t}")
        a(f"ds_bpermute_b32 v{t+1}, v{t}, v{v}")
        a("s_waitcnt lgkmcnt(0)")
        a(f"v_add_f32 v{v}, v{v}, v{t+1}")
    S0, S1 = vT+4, vT+5
    a(f"v_add_f32 v{S0}, v{ACC}, v{ACC+1}")
    for i in range(2, 24):
        a(f"v_add_f32 v{S0}, v{S0}, v{ACC+i}")
    xreduce(S0, vT+6)
    a(f"v_mul_f32 v{S0}, {f32(1.0/96.0)}, v{S0}")
    a(f"v_mov_b32 v{S1}, 0")
    for i in range(24):
        a(f"v_sub_f32 v{vT+1}, v{ACC+i}, v{S0}")
        a(f"v_fmac_f32 v{S1}, v{vT+1}, v{vT+1}")
    xreduce(S1, vT+6)
    a(f"s_lshl_b32 s{sT}, s{sT}, 4")
    a(f"v_add_u32 v{vT}, s{sT}, v0")
    a(f"v_mul_u32_u24 v{vT}, 48, v{vT}")
    a(f"s_lshl_b32 s{sT+1}, s{sNb}, 3")
    a("s_mov_b64 exec, 0xffff")
    a(f"buffer_store_dwordx2 {vr(S0,2)}, v{vT}, {sr(sST,4)}, s{sT+1} offen")
    stamp(a, 3)
    if "stamp" in OPT: a("s_waitcnt vmcnt(0)")
    stamp(a, 4); stamp(a, 6, True)
    stamp_dump(a, 7, 8, sWave, vT+8, 2)
    a.lab(f"L_{name}_done")
    a("s_endpgm")
    return a.text(), kernel_desc(name, NV, 96), f"; @launch kernel={name} grid=(192,1,1) block=(256,1,1) lds={18*BLK}"

def gen_k1(name="k1_kernel"):
    a = A(); vm = VM(a)
    kernel_head(a, name)
    XT = 0
    WB = 92160; STG = 16384; NST = 4; PITCH = 480
    QP = 624
    ACC = 4
    XF = 44
    WF = 84
    RAW = 100
    vD0, vD1 = 150, 151
    vWa, vXa = 152, 153
    vT = 156
    NV = 200
    sW, sXs, sO = 12, 16, 20
    sWave, sRb, sHg, sT = 28, 29, 30, 36
    sWo, sM0b = 31, 32
    a("s_cmp_ge_u32 s2, 256")
    a(f"s_cbranch_scc1 L_{name}_done")
    stamp(a, 0); stamp(a, 5, True)
    a("s_load_dwordx4 s[4:7], s[0:1], 0")
    a("s_load_dwordx2 s[8:9], s[0:1], 72")
    a("v_lshrrev_b32 v1, 6, v0")
    a("v_mov_b32 v3, v0")
    a("v_and_b32 v0, 63, v0")
    a(f"v_readfirstlane_b32 s{sWave}, v1")
    a(f"s_lshr_b32 s{sT}, s2, 3")
    a(f"s_and_b32 s{sHg}, s{sT}, 3")
    a(f"s_and_b32 s{sT+1}, s2, 1")
    a(f"s_lshl_b32 s{sT+1}, s{sT+1}, 2")
    a(f"s_add_u32 s{sHg}, s{sHg}, s{sT+1}")
    a(f"s_lshr_b32 s{sRb}, s{sT}, 2")
    a(f"s_bfe_u32 s{sT+1}, s2, 0x20001")
    a(f"s_lshl_b32 s{sT+1}, s{sT+1}, 3")
    a(f"s_add_u32 s{sRb}, s{sRb}, s{sT+1}")
    a("s_waitcnt lgkmcnt(0)")
    srd(a, sW, 6, 576*1728*2)
    srd(a, sXs, 4, 2048*576*2)
    srd(a, sO, 8, O_SZ, O_OFF)
    a(f"v_mul_u32_u24 v{vT}, 10923, v0")
    a(f"v_lshrrev_b32 v{vT}, 16, v{vT}")
    a(f"v_mul_u32_u24 v{vT+1}, 6, v{vT}")
    a(f"v_sub_u32 v{vT+1}, v0, v{vT+1}")
    a(f"s_mul_i32 s{sT}, s{sWave}, 10")
    a(f"v_add_u32 v{vT+2}, s{sT}, v{vT}")
    a(f"s_lshl_b32 s{sT+1}, s{sRb}, 6")
    a(f"s_sub_u32 s{sT+1}, s{sT+1}, 16")
    a(f"v_add_u32 v{vT+3}, s{sT+1}, v{vT+2}")
    a(f"s_movk_i32 s{sT+2}, 1152")
    a(f"v_mul_lo_u32 v{vT+3}, v{vT+3}, s{sT+2}")
    a(f"v_lshl_add_u32 v{vT+3}, v{vT+1}, 4, v{vT+3}")
    for i in range(12):
        vm.op(("x", i), f"buffer_load_dwordx4 {vr(RAW+i*4,4)}, v{vT+3}, {sr(sXs,4)}, 0 offen offset:{i*96}")
    a(f"s_lshl_b32 s{sT}, s{sWave}, 7")
    a(f"s_mul_i32 s{sT+1}, s{sHg}, 144")
    a(f"s_mov_b32 s{sT+2}, 0x40000000")
    for t, vd in enumerate((vD0, vD1)):
        a(f"v_add_u32 v{vT+4}, s{sT}, v0")
        if t: a(f"v_add_u32 v{vT+4}, 64, v{vT+4}")
        a(f"v_mul_u32_u24 v{vT+5}, 2185, v{vT+4}")
        a(f"v_lshrrev_b32 v{vT+5}, 16, v{vT+5}")
        a(f"v_mul_u32_u24 v{vT+6}, 30, v{vT+5}")
        a(f"v_sub_u32 v{vT+6}, v{vT+4}, v{vT+6}")
        a(f"v_mul_u32_u24 v{vT+7}, 7282, v{vT+6}")
        a(f"v_lshrrev_b32 v{vT+7}, 16, v{vT+7}")
        a(f"v_mul_u32_u24 v{vT+8}, 9, v{vT+7}")
        a(f"v_sub_u32 v{vT+8}, v{vT+6}, v{vT+8}")
        a(f"v_mul_u32_u24 v{vT+7}, 1152, v{vT+7}")
        a(f"v_lshl_add_u32 v{vT+7}, v{vT+8}, 4, v{vT+7}")
        a(f"v_and_b32 v{vT+8}, 4, v{vT+5}")
        a(f"v_lshlrev_b32 v{vT+8}, 1, v{vT+8}")
        a(f"v_and_b32 v{vT+9}, 8, v{vT+5}")
        a(f"v_lshrrev_b32 v{vT+9}, 1, v{vT+9}")
        a(f"v_and_b32 v{vT+10}, 0x13, v{vT+5}")
        a(f"v_or3_b32 v{vT+8}, v{vT+8}, v{vT+9}, v{vT+10}")
        a(f"v_mul_u32_u24 v{vT+8}, 3456, v{vT+8}")
        a(f"v_add3_u32 v{vT+7}, v{vT+7}, v{vT+8}, s{sT+1}")
        a(f"v_cmp_gt_u32 vcc, 27, v{vT+6}")
        a(f"v_cmp_gt_u32 s[{sT+4}:{sT+5}], 32, v{vT+5}")
        a(f"s_and_b64 vcc, vcc, s[{sT+4}:{sT+5}]")
        a(f"v_mov_b32 v{vT+8}, s{sT+2}")
        a("s_nop 1")
        a(f"v_cndmask_b32 v{vd}, v{vT+8}, v{vT+7}, vcc")
    a(f"s_lshl_b32 s{sM0b}, s{sWave}, 11")
    a(f"s_add_u32 s{sM0b}, s{sM0b}, {WB}")
    def wdma(i):
        if i >= 18: return
        st = i % NST
        a(f"s_mov_b32 s{sWo}, {i*32*3456}")
        for t, vd in enumerate((vD0, vD1)):
            a(f"s_add_u32 m0, s{sM0b}, {st*STG + t*1024}")
            a("s_nop 0")
            vm.op(("W", i), f"buffer_load_dwordx4 v{vd}, {sr(sW,4)}, s{sWo} offen lds")
    for i in range(4): wdma(i)
    ONES_LO, ONES_HI, ONES = sT+6, sT+7, sT+8
    a(f"s_mov_b32 s{ONES}, 0x3f803f80")
    S, M, Q = vT+4, vT+5, vT+6
    B3, B1, B2 = vT+8, vT+9, vT+10
    for d_, vb in ((3, B3), (1, B1), (2, B2)):
        a(f"v_add_u32 v{vb}, {d_}, v{vT+1}")
        a(f"v_subrev_u32 v{vT+11}, 6, v{vb}")
        a(f"v_min_u32 v{vb}, v{vb}, v{vT+11}")
        a(f"v_mad_u32_u24 v{vb}, v{vT}, 6, v{vb}")
        a(f"v_lshlrev_b32 v{vb}, 2, v{vb}")
    def reduce6(v):
        a(f"ds_bpermute_b32 v{vT+11}, v{B3}, v{v}")
        a("s_waitcnt lgkmcnt(0)")
        a(f"v_add_f32 v{v}, v{v}, v{vT+11}")
        a(f"ds_bpermute_b32 v{vT+11}, v{B1}, v{v}")
        a(f"ds_bpermute_b32 v{vT+12}, v{B2}, v{v}")
        a("s_waitcnt lgkmcnt(0)")
        a(f"v_add_f32 v{v}, v{v}, v{vT+11}")
        a(f"v_add_f32 v{v}, v{v}, v{vT+12}")
    vm.wait(lambda t: t[0] == "x")
    stamp(a, 1)
    if "wtest" in OPT:
        a("s_waitcnt vmcnt(6)")
        stamp(a, 2)
        a("s_waitcnt vmcnt(0)")
        stamp(a, 3)
        stamp(a, 4)
        OPT.discard("stamp"); OPT.add("stamp_off")
    a(f"v_mov_b32 v{S}, 0")
    a(f"v_mov_b32 v{Q}, 0")
    for i in range(48):
        a(f"v_dot2_f32_bf16 v{S if i%2==0 else Q}, v{RAW+i}, s{ONES}, v{S if i%2==0 else Q}")
    a("s_nop 2")
    a(f"v_add_f32 v{S}, v{S}, v{Q}")
    reduce6(S)
    a(f"v_mul_f32 v{S}, {f32(1.0/576.0)}, v{S}")
    round_bf16(a, M, S)
    PM, PQ = 172, 174
    a(f"v_sub_f32 v{PM}, 0, v{M}")
    a(f"v_mov_b32 v{PM+1}, v{PM}")
    a(f"v_mov_b64 {vr(PQ,2)}, 0")
    a(f"v_mov_b64 {vr(PQ+2,2)}, 0")
    for i in range(48):
        t = 178 + (i % 4) * 2
        q = PQ + (i % 2) * 2
        a(f"v_lshlrev_b32 v{t}, 16, v{RAW+i}")
        a(f"v_and_b32 v{t+1}, 0xffff0000, v{RAW+i}")
        a(f"v_pk_add_f32 {vr(t,2)}, {vr(t,2)}, {vr(PM,2)}")
        a(f"v_pk_fma_f32 {vr(q,2)}, {vr(t,2)}, {vr(t,2)}, {vr(q,2)}")
        a(f"v_cvt_pk_bf16_f32 v{RAW+i}, v{t}, v{t+1}")
    a(f"v_add_f32 v{Q}, v{PQ}, v{PQ+1}")
    a(f"v_add_f32 v{vT+13}, v{PQ+2}, v{PQ+3}")
    a(f"v_add_f32 v{Q}, v{Q}, v{vT+13}")
    reduce6(Q)
    a(f"v_mul_f32 v{Q}, {f32(1.0/576.0)}, v{Q}")
    a(f"v_sub_f32 v{vT+13}, v{S}, v{M}")
    a(f"v_fma_f32 v{Q}, -v{vT+13}, v{vT+13}, v{Q}")
    a(f"v_max_f32 v{Q}, 0, v{Q}")
    round_bf16(a, Q, Q)
    a(f"v_add_f32 v{Q}, {f32(1e-5)}, v{Q}")
    round_bf16(a, Q, Q)
    a(f"v_sqrt_f32 v{Q}, v{Q}")
    a("s_nop 0")
    round_bf16(a, Q, Q)
    a(f"v_rcp_f32 v{PM}, v{Q}")
    a(f"v_lshrrev_b32 v{vT+11}, 4, v{vT+2}")
    a(f"v_mov_b32 v{PM+1}, v{PM}")
    a(f"v_mul_u32_u24 v{vT+11}, 18432, v{vT+11}")
    a(f"v_and_b32 v{vT+12}, 15, v{vT+2}")
    a(f"v_lshl_add_u32 v{vT+11}, v{vT+12}, 4, v{vT+11}")
    a(f"v_lshl_add_u32 v{vT+14}, v{vT+1}, 8, v{vT+11}")
    a(f"v_cmp_gt_u32 vcc, 60, v0")
    a(f"s_and_saveexec_b64 s[{sT+4}:{sT+5}], vcc")
    for i in range(12):
        for d_ in range(4):
            x = RAW + i*4 + d_
            t = 178 + d_ * 2
            a(f"v_lshlrev_b32 v{t}, 16, v{x}")
            a(f"v_and_b32 v{t+1}, 0xffff0000, v{x}")
            a(f"v_pk_mul_f32 {vr(t,2)}, {vr(t,2)}, {vr(PM,2)}")
            a(f"v_cvt_pk_bf16_f32 v{x}, v{t}, v{t+1}")
        a(f"ds_write_b128 v{vT+14}, {vr(RAW+i*4,4)} offset:{XT + i*6*256}")
    a(f"s_mov_b64 exec, s[{sT+4}:{sT+5}]")
    stamp(a, 2)
    a(f"v_lshrrev_b32 v{vT+5}, 5, v0")
    a(f"v_lshlrev_b32 v{vT+5}, 4, v{vT+5}")
    a(f"v_bfe_u32 v{vT+6}, v0, 2, 3")
    a(f"v_add_u32 v{vT+5}, v{vT+5}, v{vT+6}")
    a(f"v_mul_u32_u24 v{vT+5}, {PITCH}, v{vT+5}")
    a(f"v_and_b32 v{vT+6}, 3, v0")
    a(f"v_lshl_add_u32 v{vWa}, v{vT+6}, 3, v{vT+5}")
    a(f"s_lshl_b32 s{sT}, s{sWave}, 6")
    a(f"s_add_u32 s{sT}, s{sT}, {WB}")
    a(f"v_add_u32 v{vWa}, s{sT}, v{vWa}")
    a(f"v_lshlrev_b32 v{vXa}, 4, v0")
    for i in range(0, 40, 2):
        a(f"v_mov_b64 {vr(ACC+i,2)}, 0")
    vm.wait(lambda t: t[0] == "W" and t[1] <= 1, " lgkmcnt(0)")
    a("s_barrier")
    def reads(i):
        b = i % 2; st = i % NST
        for n in range(2):
            a(f"ds_read_b64_tr_b16 {vr(WF+b*8+n*4,2)}, v{vWa} offset:{st*STG + n*32}")
            a(f"ds_read_b64_tr_b16 {vr(WF+b*8+n*4+2,2)}, v{vWa} offset:{st*STG + n*32 + 8*PITCH}")
        for mt in range(5):
            off = (mt*18 + i)*1024
            if off < 65536:
                a(f"ds_read_b128 {vr(XF+b*20+mt*4,4)}, v{vXa} offset:{off}")
            else:
                a(f"ds_read_b128 {vr(XF+b*20+mt*4,4)}, v{vT} offset:{off-65536}")
    a(f"v_add_u32 v{vT}, 65536, v{vXa}")
    stamp(a, 3)
    reads(0)
    for i in range(18):
        if i < 17:
            reads(i+1)
            a("s_waitcnt lgkmcnt(9)")
        else:
            a("s_waitcnt lgkmcnt(0)")
        b = i % 2
        k = 0
        for mt in range(5):
            for n in range(2):
                a(f"v_mfma_f32_16x16x32_bf16 {vr(ACC+(mt*2+n)*4,4)}, {vr(WF+b*8+n*4,4)}, {vr(XF+b*20+mt*4,4)}, {vr(ACC+(mt*2+n)*4,4)}")
                k += 1
                if k == 2 and i >= 1:
                    wdma(i+3)
        if i < 17:
            vm.wait(lambda t: t[0] == "W" and t[1] <= i+2)
            a("s_barrier")
    a("s_barrier")
    stamp(a, 4)
    a(f"v_lshrrev_b32 v{vT}, 4, v0")
    a(f"v_lshlrev_b32 v{vT}, 2, v{vT}")
    a(f"s_lshl_b32 s{sT}, s{sWave}, 5")
    a(f"v_add_u32 v{vT}, s{sT}, v{vT}")
    a(f"v_and_b32 v{vT+1}, 15, v0")
    a(f"v_mul_u32_u24 v{vT+1}, {QP}, v{vT+1}")
    AD = vT + 4
    for n in range(2):
        for p in range(2):
            ad = AD + n*2 + p
            a(f"v_add_u32 v{vT+2}, {n*16+p*2}, v{vT}")
            a(f"v_mul_u32_u24 v{vT+3}, 3641, v{vT+2}")
            a(f"v_lshrrev_b32 v{vT+3}, 16, v{vT+3}")
            a(f"v_mul_u32_u24 v{ad}, 18, v{vT+3}")
            a(f"v_sub_u32 v{ad}, v{vT+2}, v{ad}")
            a(f"v_lshl_add_u32 v{ad}, v{ad}, 1, v{vT+1}")
            a(f"v_mad_u32_u24 v{ad}, v{vT+3}, 48, v{ad}")
    a(f"s_cmp_ge_u32 s{sWave}, 7")
    a("s_nop 4")
    a(f"s_cbranch_scc1 L_{name}_skipq")
    for mt in range(5):
        for n in range(2):
            c = ACC + (mt*2+n)*4
            a(f"v_cvt_pk_bf16_f32 v{vT+8}, v{c}, v{c+1}")
            a(f"v_cvt_pk_bf16_f32 v{vT+9}, v{c+2}, v{c+3}")
            a(f"ds_write_b32 v{AD+n*2}, v{vT+8} offset:{mt*16*QP}")
            a(f"ds_write_b32 v{AD+n*2+1}, v{vT+9} offset:{mt*16*QP}")
    a.lab(f"L_{name}_skipq")
    a("s_waitcnt lgkmcnt(0)")
    a("s_barrier")
    if "dbg1" in OPT:
        lds_dump(a, 57344, 9, 3, 190, 210, tag="q")
    a(f"s_cmp_ge_u32 s{sWave}, 4")
    a(f"s_cbranch_scc1 L_{name}_done")
    QR = 4; KR = 16; LG = 120; OA = 130; VR_ = 16
    a(f"v_lshrrev_b32 v{vT}, 2, v3")
    a(f"v_and_b32 v{vT+1}, 3, v3")
    a(f"v_add_u32 v{vT+2}, 2, v{vT}")
    a(f"v_mul_u32_u24 v{vT+2}, {QP}, v{vT+2}")
    a(f"v_mad_u32_u24 v{vT+2}, v{vT+1}, 48, v{vT+2}")
    for j in range(3):
        a(f"ds_read_b128 {vr(QR+j*4,4)}, v{vT+2} offset:{14*QP + j*16}")
    for w in range(8):
        for j in range(3):
            a(f"ds_read_b128 {vr(KR+w*12+j*4,4)}, v{vT+2} offset:{(14-2*w)*QP + 192 + j*16}")
    a(f"s_lshl_b32 s{sT}, s{sRb}, 6")
    a(f"v_add_u32 v{vT+3}, s{sT}, v{vT}")
    a(f"s_mov_b32 s{sT+1}, {f32(18.0**-0.5)}")
    a(f"s_mov_b32 s{sT+2}, {f32(-1e9)}")
    a(f"v_cvt_pk_bf16_f32 v{vT+4}, s{sT+2}, s{sT+2}")
    a(f"v_lshlrev_b32 v{vT+4}, 16, v{vT+4}")
    for w in range(8):
        a(f"s_waitcnt lgkmcnt({min(15, (7-w)*3)})")
        a(f"v_mov_b32 v{LG+w}, 0")
        for d_ in range(9):
            a(f"v_dot2_f32_bf16 v{LG+w}, v{QR+d_}, v{KR+w*12+d_}, v{LG+w}")
        a("s_nop 2")
        round_bf16(a, LG+w, LG+w)
        a(f"v_mul_f32 v{LG+w}, s{sT+1}, v{LG+w}")
        round_bf16(a, LG+w, LG+w)
        a(f"v_cmp_le_u32 vcc, {2*w}, v{vT+3}")
        a("s_nop 1")
        a(f"v_cndmask_b32 v{LG+w}, v{vT+4}, v{LG+w}, vcc")
    for w in range(8):
        for j in range(3):
            a(f"ds_read_b128 {vr(VR_+w*12+j*4,4)}, v{vT+2} offset:{(14-2*w)*QP + 384 + j*16}")
    a(f"v_max3_f32 v{vT+5}, v{LG}, v{LG+1}, v{LG+2}")
    a(f"v_max3_f32 v{vT+5}, v{vT+5}, v{LG+3}, v{LG+4}")
    a(f"v_max3_f32 v{vT+5}, v{vT+5}, v{LG+5}, v{LG+6}")
    a(f"v_max_f32 v{vT+5}, v{vT+5}, v{LG+7}")
    a(f"s_mov_b32 s{sT+3}, {f32(math.log2(math.e))}")
    for w in range(8):
        a(f"v_sub_f32 v{LG+w}, v{LG+w}, v{vT+5}")
        a(f"v_mul_f32 v{LG+w}, s{sT+3}, v{LG+w}")
        a(f"v_exp_f32 v{LG+w}, v{LG+w}")
    a("s_nop 0")
    a(f"v_add_f32 v{vT+6}, v{LG}, v{LG+1}")
    for w in range(2, 8):
        a(f"v_add_f32 v{vT+6}, v{vT+6}, v{LG+w}")
    a(f"v_rcp_f32 v{vT+6}, v{vT+6}")
    a("s_nop 0")
    for w in range(8):
        a(f"v_mul_f32 v{LG+w}, v{LG+w}, v{vT+6}")
    for wp in range(4):
        a(f"v_cvt_pk_bf16_f32 v{LG+wp}, v{LG+2*wp}, v{LG+2*wp+1}")
    for d_ in range(18):
        a(f"v_mov_b32 v{OA+d_}, 0")
    a(f"s_mov_b32 s{sT+4}, 0x05040100")
    a(f"s_mov_b32 s{sT+5}, 0x07060302")
    for wp in range(4):
        a(f"s_waitcnt lgkmcnt({min(15, (3-wp)*6)})")
        for d_ in range(9):
            x0 = VR_ + (2*wp)*12 + d_; x1 = VR_ + (2*wp+1)*12 + d_
            t = vT + 8 + (d_ % 2) * 2
            a(f"v_perm_b32 v{t}, v{x1}, v{x0}, s{sT+4}")
            a(f"v_perm_b32 v{t+1}, v{x1}, v{x0}, s{sT+5}")
            a(f"v_dot2_f32_bf16 v{OA+2*d_}, v{t}, v{LG+wp}, v{OA+2*d_}")
            a(f"v_dot2_f32_bf16 v{OA+2*d_+1}, v{t+1}, v{LG+wp}, v{OA+2*d_+1}")
    a("s_nop 2")
    for d_ in range(9):
        a(f"v_cvt_pk_bf16_f32 v{QR+d_}, v{OA+2*d_}, v{OA+2*d_+1}")
    a(f"v_mul_u32_u24 v{vT+3}, 1152, v{vT+3}")
    a(f"v_mad_u32_u24 v{vT+3}, v{vT+1}, 36, v{vT+3}")
    a(f"s_mul_i32 s{sT}, s{sHg}, 144")
    a(f"buffer_store_dwordx4 {vr(QR,4)}, v{vT+3}, {sr(sO,4)}, s{sT} offen")
    a(f"buffer_store_dwordx4 {vr(QR+4,4)}, v{vT+3}, {sr(sO,4)}, s{sT} offen offset:16")
    a(f"buffer_store_dword v{QR+8}, v{vT+3}, {sr(sO,4)}, s{sT} offen offset:32")
    if "stamp_off" in OPT: OPT.add("stamp")
    if "stamp" in OPT: a("s_waitcnt vmcnt(0)")
    stamp(a, 6, True)
    stamp_dump(a, 7, 8, sWave, vT+8, 3)
    a.lab(f"L_{name}_done")
    a("s_endpgm")
    return a.text(), kernel_desc(name, NV, 96), f"; @launch kernel={name} grid=(256,1,1) block=(512,1,1) lds={WB + NST*STG}"


def dma_slots_setup(a, sWave, sT, vT, vD, rowbytes, sM0, upshift, extra_s=None):
    a(f"s_lshl_b32 s{sT}, s{sWave}, 6")
    a(f"s_sub_u32 s{sT+1}, s{sT}, 64")
    a(f"s_cmp_eq_u32 s{sWave}, 0")
    a(f"s_cselect_b32 s{sT+1}, 512, s{sT+1}")
    a(f"s_cselect_b32 s{sT+3}, 0, {upshift}")
    a(f"s_add_u32 s{sT+2}, s{sT}, 448")
    a(f"s_lshl_b32 s{sM0}, s{sWave}, 10")
    a(f"s_add_u32 s{sM0+1}, s{sM0}, 8192")
    a(f"s_add_u32 s{sM0+1}, s{sM0+1}, s{sT+3}")
    a(f"s_add_u32 s{sM0+2}, s{sM0}, {16384+upshift}")
    for k in range(3):
        a(f"v_add_u32 v{vT+1}, s{sT+k}, v0")
        a(f"v_mul_u32_u24 v{vT+2}, 3641, v{vT+1}")
        a(f"v_lshrrev_b32 v{vT+8+k}, 16, v{vT+2}")
        a(f"v_mul_u32_u24 v{vT+3}, 18, v{vT+8+k}")
        a(f"v_sub_u32 v{vT+3}, v{vT+1}, v{vT+3}")
        a(f"v_mul_u32_u24 v{vT+2}, {rowbytes}, v{vT+8+k}")
        a(f"v_lshl_add_u32 v{vD+k}, v{vT+3}, 4, v{vT+2}")

def gen_k3v2(name="k3_kernel"):
    a = A(); a.k3 = True
    kernel_head(a, name)
    NST = 6; STG = 18560; UP = 9344; RING = 6; PF = RING - 1
    ACC = 4; XS = 148; WR = 196
    vWa, vWb = 220, 221
    vD = 222
    vX0 = 225
    vNM, vR = 226, 227
    vT = 228
    NV = 244
    def acc(nt): return ACC + nt*16
    sWa, sWb_, sWc, sX, sST, sH = 12, 16, 20, 24, 28, 32
    sWave, sFb, sMb = 36, 37, 38
    sWoff, sXoff, sIt = 39, 40, 41
    sM0 = 42
    sT = 46
    sRot, sCnt, sHb = 56, 57, 58
    a("s_cmp_ge_u32 s2, 256")
    a(f"s_cbranch_scc1 L_{name}_done")
    stamp(a, 0); stamp(a, 5, True)
    a("s_load_dwordx4 s[4:7], s[0:1], 32")
    a("s_load_dwordx2 s[8:9], s[0:1], 72")
    a("v_lshrrev_b32 v1, 6, v0")
    a("v_and_b32 v0, 63, v0")
    a("s_nop 0")
    a(f"v_readfirstlane_b32 s{sWave}, v1")
    a(f"s_and_b32 s{sT}, s2, 7")
    a(f"s_lshr_b32 s{sT+1}, s2, 3")
    a(f"s_and_b32 s{sFb}, s{sT+1}, 3")
    a(f"s_lshl_b32 s{sT}, s{sT}, 2")
    a(f"s_add_u32 s{sFb}, s{sFb}, s{sT}")
    a(f"s_lshr_b32 s{sMb}, s{sT+1}, 2")
    dma_slots_setup(a, sWave, sT, vT, vD, 9216, sM0, 128)
    a(f"s_mul_i32 s{sT}, s{sFb}, 288")
    for k in range(3):
        a(f"v_add_u32 v{vD+k}, s{sT}, v{vD+k}")
    a(f"s_lshl_b32 s{sT}, s{sMb}, 4")
    a(f"s_lshl_b32 s{sT+1}, s{sWave}, 1")
    a(f"s_add_u32 s{sT}, s{sT}, s{sT+1}")
    a(f"s_mul_i32 s{sT+1}, s{sT}, 18432")
    a(f"v_bfe_u32 v{vT}, v0, 4, 1")
    a(f"v_mul_u32_u24 v{vT}, 18432, v{vT}")
    a(f"v_lshrrev_b32 v{vT+1}, 5, v0")
    a(f"v_lshl_add_u32 v{vT}, v{vT+1}, 8, v{vT}")
    a(f"v_and_b32 v{vT+1}, 15, v0")
    a(f"v_lshl_add_u32 v{vT}, v{vT+1}, 4, v{vT}")
    a(f"v_add_u32 v{vX0}, s{sT+1}, v{vT}")
    a(f"s_mul_i32 s{sHb}, s{sT}, 144")
    a(f"s_lshr_b32 s{sT+1}, s{sFb}, 1")
    a(f"s_mul_i32 s{sT+1}, s{sT+1}, 9")
    a(f"s_add_u32 s{sHb}, s{sHb}, s{sT+1}")
    a(f"s_lshl_b32 s{sHb}, s{sHb}, 10")
    a(f"s_lshl_b32 s{sT}, s{sT}, 4")
    a(f"v_and_b32 v{vT+4}, 31, v0")
    a(f"v_add_u32 v{vT+4}, s{sT}, v{vT+4}")
    a(f"v_mul_u32_u24 v{vT+4}, 48, v{vT+4}")
    a(f"v_bfe_u32 v{vT}, v0, 4, 1")
    a(f"v_mul_u32_u24 v{vT}, {UP}, v{vT}")
    a(f"v_lshrrev_b32 v{vT+1}, 5, v0")
    a(f"v_bfe_u32 v{vT+2}, v0, 2, 2")
    a(f"v_lshl_add_u32 v{vT+1}, v{vT+1}, 2, v{vT+2}")
    a(f"v_mad_u32_u24 v{vT}, v{vT+1}, 288, v{vT}") if False else None
    a(f"v_mul_u32_u24 v{vT+1}, 288, v{vT+1}")
    a(f"v_add_u32 v{vT}, v{vT}, v{vT+1}")
    a(f"v_and_b32 v{vT+2}, 3, v0")
    a(f"v_lshl_add_u32 v{vWa}, v{vT+2}, 3, v{vT}")
    a(f"v_add_u32 v{vWb}, {3*STG}, v{vWa}")
    if "rot" in OPT:
        a(f"s_mul_i32 s{sRot}, s{sMb}, 9")
        a(f"s_and_b32 s{sT}, s{sFb}, 3")
        a(f"s_mul_i32 s{sT}, s{sT}, 18")
        a(f"s_add_u32 s{sRot}, s{sRot}, s{sT}")
        a(f"s_lshr_b32 s{sRot}, s{sRot}, 2")
        a(f"s_sub_u32 s{sT}, s{sRot}, 18")
        a(f"s_cmp_ge_u32 s{sRot}, 18")
        a(f"s_cselect_b32 s{sRot}, s{sT}, s{sRot}")
    else:
        a(f"s_mov_b32 s{sRot}, 0")
    a(f"s_mov_b32 s{sCnt}, 0")
    a(f"s_mul_i32 s{sWoff}, s{sRot}, {32*9216}")
    a(f"s_lshl_b32 s{sXoff}, s{sRot}, 10")
    a("s_waitcnt lgkmcnt(0)")
    if "pstamp" in OPT: stamp(a, 1)
    srd(a, sWa, 4, 576*4608*2)
    srd(a, sWc, 6, 576*4608*2)
    a(f"s_cmp_eq_u32 s{sWave}, 0")
    a(f"s_cselect_b32 s{sT}, s4, s6")
    a(f"s_cselect_b32 s{sT+1}, s5, s7")
    srd(a, sWb_, sT, 576*4608*2)
    srd(a, sX, 8, H1_SZ, H1_OFF)
    srd(a, sST, 8, ST_SZ, ST_OFF)
    srd(a, sH, 8, HH_SZ, HH_OFF)
    for q in range(3):
        a(f"buffer_load_dwordx4 {vr(WR+q*4,4)}, v{vT+4}, {sr(sST,4)}, 0 offen offset:{q*16}")
    a(f"s_cmp_ge_u32 s{sWave}, 2")
    a(f"s_cbranch_scc1 L_{name}_typeB")

    M16 = "m16" in OPT
    def body(nd, tag):
        vm = VM(a)
        vm.ops = [("S", 0)] * 3
        srds = (sWa, sWb_, sWc)
        def load_groups(i):
            if i >= 18: return []
            st = i % NST
            gs = []
            for k in range(nd):
                gs.append([("s", f"s_add_u32 m0, s{sM0+k}, {st*STG}"), ("s", "s_nop 0"),
                           (("W", i), f"buffer_load_dwordx4 v{vD+k}, {sr(srds[k],4)}, s{sWoff} offen lds")])
            gs.append([(("X", i), f"buffer_load_dwordx4 {vr(XS+st*8,4)}, v{vX0}, {sr(sX,4)}, s{sXoff} offen")])
            gs.append([(("X", i), f"buffer_load_dwordx4 {vr(XS+st*8+4,4)}, v{vX0}, {sr(sX,4)}, s{sXoff} offen offset:512"),
                       ("s", f"s_add_u32 s{sRot}, s{sRot}, 1"),
                       ("s", f"s_cmp_eq_u32 s{sRot}, {4 if 'hot4' in OPT else 18}"),
                       ("s", f"s_cselect_b32 s{sRot}, 0, s{sRot}"),
                       ("s", f"s_mul_i32 s{sWoff}, s{sRot}, {32*9216}"),
                       ("s", f"s_lshl_b32 s{sXoff}, s{sRot}, 10")])
            return gs
        def emit_group(g):
            for tg, txt in g:
                if tg == "s": a(txt)
                else: vm.op(tg, txt)
        for i in range(2):
            for g in load_groups(i): emit_group(g)
        vm.wait(lambda t: t[0] == "S")
        b = WR
        a(f"v_add_f32 v{vT}, v{b}, v{b+2}")
        a(f"v_add_f32 v{vT+1}, v{b+4}, v{b+6}")
        a(f"v_add_f32 v{vT+2}, v{b+8}, v{b+10}")
        a(f"v_add_f32 v{vT}, v{vT}, v{vT+1}")
        a(f"v_add_f32 v{vT}, v{vT}, v{vT+2}")
        a(f"v_mul_f32 v{vT}, {f32(1.0/6.0)}, v{vT}")
        a(f"v_add_f32 v{vT+1}, v{b+1}, v{b+3}")
        a(f"v_add_f32 v{vT+2}, v{b+5}, v{b+7}")
        a(f"v_add_f32 v{vT+3}, v{b+9}, v{b+11}")
        a(f"v_add_f32 v{vT+1}, v{vT+1}, v{vT+2}")
        a(f"v_add_f32 v{vT+1}, v{vT+1}, v{vT+3}")
        a(f"v_mov_b32 v{vT+2}, 0")
        for t in range(6):
            a(f"v_sub_f32 v{vT+3}, v{b+2*t}, v{vT}")
            a(f"v_fmac_f32 v{vT+2}, v{vT+3}, v{vT+3}")
        a(f"v_fmac_f32 v{vT+1}, {f32(96.0)}, v{vT+2}")
        a(f"v_mul_f32 v{vT+1}, {f32(1.0/576.0)}, v{vT+1}")
        round_bf16(a, vNM, vT)
        round_bf16(a, vT+1, vT+1)
        a(f"v_add_f32 v{vT+1}, {f32(1e-5)}, v{vT+1}")
        round_bf16(a, vT+1, vT+1)
        a(f"v_sqrt_f32 v{vT+1}, v{vT+1}")
        a("s_nop 0")
        round_bf16(a, vT+1, vT+1)
        a(f"v_rcp_f32 v{vR}, v{vT+1}")
        if "exactnorm" not in OPT:
            a("s_nop 0")
            a(f"v_mul_f32 v{vNM}, v{vNM}, v{vR}")
            a(f"v_sub_f32 v{vNM}, 0, v{vNM}")
        def norm_ops(i):
            ops = []
            if i >= 18: return ops
            for d in range(8):
                x = XS + (i % NST)*8 + d
                t0 = vT + (d % 2) * 2; t1 = t0 + 1
                ops.append(f"v_lshlrev_b32 v{t0}, 16, v{x}")
                ops.append(f"v_and_b32 v{t1}, 0xffff0000, v{x}")
                if "exactnorm" in OPT:
                    ops.append(f"v_sub_f32 v{t0}, v{t0}, v{vNM}")
                    ops.append(f"v_sub_f32 v{t1}, v{t1}, v{vNM}")
                    ops.append(f"v_cvt_pk_bf16_f32 v{t0}, v{t0}, v{t1}")
                    ops.append(f"v_and_b32 v{t1}, 0xffff0000, v{t0}")
                    ops.append(f"v_lshlrev_b32 v{t0}, 16, v{t0}")
                    ops.append(f"v_mul_f32 v{t0}, v{t0}, v{vR}")
                    ops.append(f"v_mul_f32 v{t1}, v{t1}, v{vR}")
                else:
                    ops.append(f"v_fma_f32 v{t0}, v{t0}, v{vR}, v{vNM}")
                    ops.append(f"v_fma_f32 v{t1}, v{t1}, v{vR}, v{vNM}")
                ops.append(f"v_cvt_pk_bf16_f32 v{x}, v{t0}, v{t1}")
            return ops
        def wread(g):
            i, f = divmod(g, 18)
            if i >= 18: return
            st = i % NST
            half, nt = divmod(f, 9)
            slot = g % RING
            base = vWa if st < 3 else vWb
            off = (st % 3) * STG + half * 8 * 288 + nt * 32
            a(f"ds_read_b64_tr_b16 {vr(WR+slot*4,2)}, v{base} offset:{off}")
            a(f"ds_read_b64_tr_b16 {vr(WR+slot*4+2,2)}, v{base} offset:{off+4608}")
        vm.wait(lambda t: t[1] <= 0)
        for op in norm_ops(0): a(op)
        a("s_barrier")
        for f in range(PF): wread(f)
        stamp(a, 1)
        sched = {0: [2, 3], 1: [4, 5], 2: [6, 7]}
        for i in range(18):
            lg = []
            for j in sched.get(i, [i + 5]): lg += load_groups(j)
            nops = norm_ops(i + 1)
            ni = 0; gi = 0
            gpos = [1 + (k * 16) // max(1, len(lg)) for k in range(len(lg))]
            nstart = 6 if i < 3 else 1
            per = (len(nops) + (16 - nstart)) // (17 - nstart) if nops else 0
            for f in range(18):
                g = i*18 + f
                half, nt = divmod(f, 9)
                slot = g % RING
                if i == 0 and f == 18 - PF:
                    vm.wait(lambda t: t[0] == "W" and t[1] <= 1)
                    a("s_barrier")
                wread(g + PF)
                rem = min(PF, 18*18 - 1 - g)
                a(f"s_waitcnt lgkmcnt({2*rem})")
                if i == 0:
                    a(f"v_mfma_f32_32x32x16_bf16 {vr(acc(nt),16)}, {vr(WR+slot*4,4)}, {vr(XS+(i%NST)*8+half*4,4)}, " + ("0" if half == 0 else vr(acc(nt),16)))
                else:
                    a(f"v_mfma_f32_32x32x16_bf16 {vr(acc(nt),16)}, {vr(WR+slot*4,4)}, {vr(XS+(i%NST)*8+half*4,4)}, {vr(acc(nt),16)}")
                if f == nstart and nops:
                    vm.wait(lambda t: t[0] == "X" and t[1] <= i + 1)
                while gi < len(lg) and gpos[gi] <= f:
                    emit_group(lg[gi]); gi += 1
                if f >= nstart:
                    for _ in range(per):
                        if ni < len(nops):
                            a(nops[ni]); ni += 1
            assert ni == len(nops) and gi == len(lg), (i, ni, len(nops), gi, len(lg))
            if i < 17:
                vm.wait(lambda t: t[0] == "W" and t[1] <= i + 2)
                a("s_barrier")
    body(3, "A")
    a(f"s_branch L_{name}_epi")
    a.lab(f"L_{name}_typeB")
    body(2, "B")
    a.lab(f"L_{name}_epi")
    if "pstamp" not in OPT: stamp(a, 2)
    a("s_waitcnt vmcnt(0) lgkmcnt(0)")
    sA_, sB_ = sT+6, sT+7
    a(f"s_mov_b32 s{sA_}, {f32(GELU_A)}")
    a(f"s_mov_b32 s{sB_}, {f32(GELU_B)}")
    a(f"v_bfe_u32 v{vX0}, v0, 4, 1")
    a(f"v_mul_u32_u24 v{vX0}, 147456, v{vX0}")
    a(f"v_lshrrev_b32 v{vT+1}, 5, v0")
    a(f"v_lshl_add_u32 v{vX0}, v{vT+1}, 8, v{vX0}")
    a(f"v_and_b32 v{vT+1}, 15, v0")
    a(f"v_lshl_add_u32 v{vX0}, v{vT+1}, 4, v{vX0}")
    a(f"s_and_b32 s{sT}, s{sFb}, 1")
    a(f"s_lshl_b32 s{sT+1}, s{sT}, 12")
    a(f"s_add_u32 s{sT+1}, s{sT+1}, s{sHb}")
    a(f"s_lshl_b32 s{sT+2}, s{sT}, 9")
    a(f"s_add_u32 s{sT+2}, s{sT+2}, s{sHb}")
    a(f"s_add_u32 s{sT+2}, s{sT+2}, {8*1024}")
    a(f"v_mov_b32 v{vT}, s{sA_}")
    a("s_nop 7")
    exact = "exactepi" in OPT
    for nt in range(9):
        o = XS + (nt % 12) * 4
        T = WR
        for hh in range(2):
            lines = [[], []]
            for c in range(2):
                p = hh*2 + c
                g0, g1 = acc(nt) + 2*p, acc(nt) + 2*p + 1
                u0, u1 = g0 + 8, g1 + 8
                x0, x1, y0, y1, t0, t1 = [T + c*8 + k for k in range(6)]
                L = lines[c]
                if exact:
                    L += [f"v_cvt_pk_bf16_f32 v{x0}, v{g0}, v{g1}", f"v_cvt_pk_bf16_f32 v{y0}, v{u0}, v{u1}",
                          f"v_and_b32 v{x1}, 0xffff0000, v{x0}", f"v_lshlrev_b32 v{x0}, 16, v{x0}",
                          f"v_and_b32 v{y1}, 0xffff0000, v{y0}", f"v_lshlrev_b32 v{y0}, 16, v{y0}"]
                else:
                    x0, x1, y0, y1 = g0, g1, u0, u1
                L += [f"v_mul_f32 v{t0}, v{x0}, v{x0}", f"v_mul_f32 v{t1}, v{x1}, v{x1}",
                      f"v_fma_f32 v{t0}, v{t0}, s{sB_}, v{vT}", f"v_fma_f32 v{t1}, v{t1}, s{sB_}, v{vT}",
                      f"v_mul_f32 v{t0}, v{t0}, v{x0}", f"v_mul_f32 v{t1}, v{t1}, v{x1}",
                      f"v_exp_f32 v{t0}, v{t0}", f"v_exp_f32 v{t1}, v{t1}"]
                if not exact:
                    L += [f"v_mul_f32 v{y0}, v{y0}, v{x0}", f"v_mul_f32 v{y1}, v{y1}, v{x1}"]
                L += [f"v_add_f32 v{t0}, 1.0, v{t0}", f"v_add_f32 v{t1}, 1.0, v{t1}",
                      f"v_rcp_f32 v{t0}, v{t0}", f"v_rcp_f32 v{t1}, v{t1}"]
                if exact:
                    L += [f"v_mul_f32 v{t0}, v{t0}, v{x0}", f"v_mul_f32 v{t1}, v{t1}, v{x1}",
                          f"v_cvt_pk_bf16_f32 v{t0}, v{t0}, v{t1}",
                          f"v_and_b32 v{t1}, 0xffff0000, v{t0}", f"v_lshlrev_b32 v{t0}, 16, v{t0}"]
                L += [f"v_mul_f32 v{t0}, v{t0}, v{y0}", f"v_mul_f32 v{t1}, v{t1}, v{y1}",
                      f"v_cvt_pk_bf16_f32 v{o+p}, v{t0}, v{t1}"]
            i0 = i1 = 0
            while i0 < len(lines[0]) or i1 < len(lines[1]):
                for _ in range(2):
                    if i0 < len(lines[0]): a(lines[0][i0]); i0 += 1
                for _ in range(2):
                    if i1 < len(lines[1]): a(lines[1][i1]); i1 += 1
        if nt < 8:
            a(f"buffer_store_dwordx4 {vr(o,4)}, v{vX0}, {sr(sH,4)}, s{sT+1} offen offset:{(nt//2)*1024 + (nt%2)*512}")
        else:
            a(f"buffer_store_dwordx4 {vr(o,4)}, v{vX0}, {sr(sH,4)}, s{sT+2} offen")
    if "pstamp" not in OPT: stamp(a, 3)
    if "stamp" in OPT: a("s_waitcnt vmcnt(0)")
    if "pstamp" not in OPT: stamp(a, 4)
    stamp(a, 6, True)
    stamp_dump(a, 7, 8, sWave, vT+4)
    a.lab(f"L_{name}_done")
    a("s_endpgm")
    return a.text(), kernel_desc(name, NV), f"; @launch kernel={name} grid=(256,1,1) block=(512,1,1) lds={NST*STG}"

def gen_k3m(name="k3_kernel"):
    a = A()
    kernel_head(a, name)
    NST = 6; STG = 18560; UP = 9344; RING = 6; PF = RING - 1
    ACC = 4; XS = 148; WR = 196
    vWa, vWb = 220, 221
    vD = 222
    vX0 = 225
    vNM, vR = 226, 227
    vT = 228
    vX1, vNM1, vR1 = 244, 245, 246
    NV = 248
    def acc(nt, mat, mt): return ACC + ((nt*2+mat)*2+mt)*4
    sWa, sWb_, sWc, sX, sST, sH = 12, 16, 20, 24, 28, 32
    sWave, sFb, sMb = 36, 37, 38
    sWoff, sXoff, sIt = 39, 40, 41
    sM0 = 42
    sT = 46
    sRot, sCnt, sHb = 56, 57, 58
    a("s_cmp_ge_u32 s2, 256")
    a(f"s_cbranch_scc1 L_{name}_done")
    stamp(a, 0); stamp(a, 5, True)
    a("s_load_dwordx4 s[4:7], s[0:1], 32")
    a("s_load_dwordx2 s[8:9], s[0:1], 72")
    a("v_lshrrev_b32 v1, 6, v0")
    a("v_and_b32 v0, 63, v0")
    a("s_nop 0")
    a(f"v_readfirstlane_b32 s{sWave}, v1")
    a(f"s_and_b32 s{sT}, s2, 7")
    a(f"s_lshr_b32 s{sT+1}, s2, 3")
    a(f"s_and_b32 s{sFb}, s{sT+1}, 3")
    a(f"s_lshl_b32 s{sT}, s{sT}, 2")
    a(f"s_add_u32 s{sFb}, s{sFb}, s{sT}")
    a(f"s_lshr_b32 s{sMb}, s{sT+1}, 2")
    dma_slots_setup(a, sWave, sT, vT, vD, 9216, sM0, 128)
    a(f"s_mul_i32 s{sT}, s{sFb}, 288")
    for k in range(3):
        a(f"v_add_u32 v{vD+k}, s{sT}, v{vD+k}")
    a(f"s_lshl_b32 s{sT}, s{sMb}, 4")
    a(f"s_lshl_b32 s{sT+1}, s{sWave}, 1")
    a(f"s_add_u32 s{sT}, s{sT}, s{sT+1}")
    a(f"s_mul_i32 s{sT+1}, s{sT}, 18432")
    a(f"v_lshlrev_b32 v{vT}, 4, v0")
    a(f"v_add_u32 v{vX0}, s{sT+1}, v{vT}")
    a(f"v_add_u32 v{vX1}, 18432, v{vX0}")
    a(f"s_mul_i32 s{sHb}, s{sT}, 144")
    a(f"s_lshr_b32 s{sT+1}, s{sFb}, 1")
    a(f"s_mul_i32 s{sT+1}, s{sT+1}, 9")
    a(f"s_add_u32 s{sHb}, s{sHb}, s{sT+1}")
    a(f"s_lshl_b32 s{sHb}, s{sHb}, 10")
    a(f"s_lshl_b32 s{sT}, s{sT}, 4")
    a(f"v_and_b32 v{vT+4}, 15, v0")
    a(f"v_add_u32 v{vT+4}, s{sT}, v{vT+4}")
    a(f"v_mul_u32_u24 v{vT+4}, 48, v{vT+4}")
    a(f"v_lshrrev_b32 v{vT+1}, 2, v0")
    a(f"v_mul_u32_u24 v{vT+1}, 288, v{vT+1}")
    a(f"v_and_b32 v{vT+2}, 3, v0")
    a(f"v_lshl_add_u32 v{vWa}, v{vT+2}, 3, v{vT+1}")
    a(f"v_add_u32 v{vWb}, {3*STG}, v{vWa}")
    if "rot" in OPT:
        a(f"s_mul_i32 s{sRot}, s{sMb}, 9")
        a(f"s_and_b32 s{sT}, s{sFb}, 3")
        a(f"s_mul_i32 s{sT}, s{sT}, 18")
        a(f"s_add_u32 s{sRot}, s{sRot}, s{sT}")
        a(f"s_lshr_b32 s{sRot}, s{sRot}, 2")
        a(f"s_sub_u32 s{sT}, s{sRot}, 18")
        a(f"s_cmp_ge_u32 s{sRot}, 18")
        a(f"s_cselect_b32 s{sRot}, s{sT}, s{sRot}")
    else:
        a(f"s_mov_b32 s{sRot}, 0")
    a(f"s_mov_b32 s{sCnt}, 0")
    a(f"s_mul_i32 s{sWoff}, s{sRot}, {32*9216}")
    a(f"s_lshl_b32 s{sXoff}, s{sRot}, 10")
    a("s_waitcnt lgkmcnt(0)")
    if "pstamp" in OPT: stamp(a, 1)
    srd(a, sWa, 4, 576*4608*2)
    srd(a, sWc, 6, 576*4608*2)
    a(f"s_cmp_eq_u32 s{sWave}, 0")
    a(f"s_cselect_b32 s{sT}, s4, s6")
    a(f"s_cselect_b32 s{sT+1}, s5, s7")
    srd(a, sWb_, sT, 576*4608*2)
    srd(a, sX, 8, H1_SZ, H1_OFF)
    srd(a, sST, 8, ST_SZ, ST_OFF)
    srd(a, sH, 8, HH_SZ, HH_OFF)
    for mt in range(2):
        for q in range(3):
            a(f"buffer_load_dwordx4 {vr(WR+mt*12+q*4,4)}, v{vT+4}, {sr(sST,4)}, 0 offen offset:{mt*768+q*16}")
    a(f"s_cmp_ge_u32 s{sWave}, 2")
    a(f"s_cbranch_scc1 L_{name}_typeB")

    M16 = "m16" in OPT
    def body(nd, tag):
        vm = VM(a)
        vm.ops = [("S", 0)] * 6
        srds = (sWa, sWb_, sWc)
        def load_groups(i):
            if i >= 18: return []
            st = i % NST
            gs = []
            for k in range(nd):
                gs.append([("s", f"s_add_u32 m0, s{sM0+k}, {st*STG}"), ("s", "s_nop 0"),
                           (("W", i), f"buffer_load_dwordx4 v{vD+k}, {sr(srds[k],4)}, s{sWoff} offen lds")])
            gs.append([(("X", i), f"buffer_load_dwordx4 {vr(XS+st*8,4)}, v{vX0}, {sr(sX,4)}, s{sXoff} offen")])
            gs.append([(("X", i), f"buffer_load_dwordx4 {vr(XS+st*8+4,4)}, v{vX1}, {sr(sX,4)}, s{sXoff} offen"),
                       ("s", f"s_add_u32 s{sRot}, s{sRot}, 1"),
                       ("s", f"s_cmp_eq_u32 s{sRot}, {4 if 'hot4' in OPT else 18}"),
                       ("s", f"s_cselect_b32 s{sRot}, 0, s{sRot}"),
                       ("s", f"s_mul_i32 s{sWoff}, s{sRot}, {32*9216}"),
                       ("s", f"s_lshl_b32 s{sXoff}, s{sRot}, 10")])
            return gs
        def emit_group(g):
            for tg, txt in g:
                if tg == "s": a(txt)
                else: vm.op(tg, txt)
        for i in range(2):
            for g in load_groups(i): emit_group(g)
        vm.wait(lambda t: t[0] == "S")
        for b, vNM_, vR_ in ((WR, vNM, vR), (WR+12, vNM1, vR1)):
            a(f"v_add_f32 v{vT}, v{b}, v{b+2}")
            a(f"v_add_f32 v{vT+1}, v{b+4}, v{b+6}")
            a(f"v_add_f32 v{vT+2}, v{b+8}, v{b+10}")
            a(f"v_add_f32 v{vT}, v{vT}, v{vT+1}")
            a(f"v_add_f32 v{vT}, v{vT}, v{vT+2}")
            a(f"v_mul_f32 v{vT}, {f32(1.0/6.0)}, v{vT}")
            a(f"v_add_f32 v{vT+1}, v{b+1}, v{b+3}")
            a(f"v_add_f32 v{vT+2}, v{b+5}, v{b+7}")
            a(f"v_add_f32 v{vT+3}, v{b+9}, v{b+11}")
            a(f"v_add_f32 v{vT+1}, v{vT+1}, v{vT+2}")
            a(f"v_add_f32 v{vT+1}, v{vT+1}, v{vT+3}")
            a(f"v_mov_b32 v{vT+2}, 0")
            for t in range(6):
                a(f"v_sub_f32 v{vT+3}, v{b+2*t}, v{vT}")
                a(f"v_fmac_f32 v{vT+2}, v{vT+3}, v{vT+3}")
            a(f"v_fmac_f32 v{vT+1}, {f32(96.0)}, v{vT+2}")
            a(f"v_mul_f32 v{vT+1}, {f32(1.0/576.0)}, v{vT+1}")
            round_bf16(a, vNM_, vT)
            round_bf16(a, vT+1, vT+1)
            a(f"v_add_f32 v{vT+1}, {f32(1e-5)}, v{vT+1}")
            round_bf16(a, vT+1, vT+1)
            a(f"v_sqrt_f32 v{vT+1}, v{vT+1}")
            a("s_nop 0")
            round_bf16(a, vT+1, vT+1)
            a(f"v_rcp_f32 v{vR_}, v{vT+1}")
            if "exactnorm" not in OPT:
                a("s_nop 0")
                a(f"v_mul_f32 v{vNM_}, v{vNM_}, v{vR_}")
                a(f"v_sub_f32 v{vNM_}, 0, v{vNM_}")
        def norm_ops(i):
            ops = []
            if i >= 18: return ops
            for d in range(8):
                x = XS + (i % NST)*8 + d
                t0 = vT + (d % 2) * 2; t1 = t0 + 1
                vNM, vR = (226, 227) if d < 4 else (vNM1, vR1)
                ops.append(f"v_lshlrev_b32 v{t0}, 16, v{x}")
                ops.append(f"v_and_b32 v{t1}, 0xffff0000, v{x}")
                if "exactnorm" in OPT:
                    ops.append(f"v_sub_f32 v{t0}, v{t0}, v{vNM}")
                    ops.append(f"v_sub_f32 v{t1}, v{t1}, v{vNM}")
                    ops.append(f"v_cvt_pk_bf16_f32 v{t0}, v{t0}, v{t1}")
                    ops.append(f"v_and_b32 v{t1}, 0xffff0000, v{t0}")
                    ops.append(f"v_lshlrev_b32 v{t0}, 16, v{t0}")
                    ops.append(f"v_mul_f32 v{t0}, v{t0}, v{vR}")
                    ops.append(f"v_mul_f32 v{t1}, v{t1}, v{vR}")
                else:
                    ops.append(f"v_fma_f32 v{t0}, v{t0}, v{vR}, v{vNM}")
                    ops.append(f"v_fma_f32 v{t1}, v{t1}, v{vR}, v{vNM}")
                ops.append(f"v_cvt_pk_bf16_f32 v{x}, v{t0}, v{t1}")
            return ops
        def wread(g):
            i, f = divmod(g, 18)
            if i >= 18: return
            st = i % NST
            nt, mat = divmod(f, 2)
            slot = g % RING
            base = vWa if st < 3 else vWb
            off = (st % 3) * STG + mat * UP + nt * 32
            a(f"ds_read_b64_tr_b16 {vr(WR+slot*4,2)}, v{base} offset:{off}")
            a(f"ds_read_b64_tr_b16 {vr(WR+slot*4+2,2)}, v{base} offset:{off+4608}")
        vm.wait(lambda t: t[1] <= 0)
        for op in norm_ops(0): a(op)
        a("s_barrier")
        for f in range(PF): wread(f)
        stamp(a, 1)
        sched = {0: [2, 3], 1: [4, 5], 2: [6, 7]}
        for i in range(18):
            lg = []
            for j in sched.get(i, [i + 5]): lg += load_groups(j)
            nops = norm_ops(i + 1)
            ni = 0; gi = 0
            gpos = [1 + (k * 16) // max(1, len(lg)) for k in range(len(lg))]
            nstart = 6 if i < 3 else 1
            per = (len(nops) + (16 - nstart)) // (17 - nstart) if nops else 0
            for f in range(18):
                g = i*18 + f
                half, nt = divmod(f, 9)
                slot = g % RING
                if i == 0 and f == 18 - PF:
                    vm.wait(lambda t: t[0] == "W" and t[1] <= 1)
                    a("s_barrier")
                wread(g + PF)
                rem = min(PF, 18*18 - 1 - g)
                a(f"s_waitcnt lgkmcnt({2*rem})")
                nt, mat = divmod(f, 2)
                for mt in range(2):
                    a(f"v_mfma_f32_16x16x32_bf16 {vr(acc(nt,mat,mt),4)}, {vr(WR+slot*4,4)}, {vr(XS+(i%NST)*8+mt*4,4)}, " + ("0" if i == 0 else vr(acc(nt,mat,mt),4)))
                if f == nstart and nops:
                    vm.wait(lambda t: t[0] == "X" and t[1] <= i + 1)
                while gi < len(lg) and gpos[gi] <= f:
                    emit_group(lg[gi]); gi += 1
                if f >= nstart:
                    for _ in range(per):
                        if ni < len(nops):
                            a(nops[ni]); ni += 1
            assert ni == len(nops) and gi == len(lg), (i, ni, len(nops), gi, len(lg))
            if i < 17:
                vm.wait(lambda t: t[0] == "W" and t[1] <= i + 2)
                a("s_barrier")
    body(3, "A")
    a(f"s_branch L_{name}_epi")
    a.lab(f"L_{name}_typeB")
    body(2, "B")
    a.lab(f"L_{name}_epi")
    if "pstamp" not in OPT: stamp(a, 2)
    a("s_waitcnt vmcnt(0) lgkmcnt(0)")
    sA_, sB_ = sT+6, sT+7
    a(f"s_mov_b32 s{sA_}, {f32(GELU_A)}")
    a(f"s_mov_b32 s{sB_}, {f32(GELU_B)}")
    a(f"v_lshlrev_b32 v{vX0}, 4, v0")
    a(f"s_and_b32 s{sT}, s{sFb}, 1")
    a(f"s_lshl_b32 s{sT+1}, s{sT}, 12")
    a(f"s_add_u32 s{sT+1}, s{sT+1}, s{sHb}")
    a(f"s_lshl_b32 s{sT+2}, s{sT}, 3")
    a(f"s_add_u32 s{sT+2}, s{sT+2}, s{sHb}")
    a(f"s_add_u32 s{sT+2}, s{sT+2}, {8*1024}")
    a(f"s_add_u32 s{sT+3}, s{sT+1}, {144*1024}")
    a(f"s_add_u32 s{sT+4}, s{sT+2}, {144*1024}")
    a(f"v_mov_b32 v{vT}, s{sA_}")
    a("s_nop 7")
    def gelu_tile(nt, mt, dst):
        T = WR
        lines = [[], []]
        for c in range(2):
            g0, g1 = acc(nt,0,mt) + 2*c, acc(nt,0,mt) + 2*c + 1
            u0, u1 = acc(nt,1,mt) + 2*c, acc(nt,1,mt) + 2*c + 1
            t0, t1 = T + c*8 + 4, T + c*8 + 5
            x0, x1, y0, y1 = g0, g1, u0, u1
            L = lines[c]
            L += [f"v_mul_f32 v{t0}, v{x0}, v{x0}", f"v_mul_f32 v{t1}, v{x1}, v{x1}",
                  f"v_fma_f32 v{t0}, v{t0}, s{sB_}, v{vT}", f"v_fma_f32 v{t1}, v{t1}, s{sB_}, v{vT}",
                  f"v_mul_f32 v{t0}, v{t0}, v{x0}", f"v_mul_f32 v{t1}, v{t1}, v{x1}",
                  f"v_exp_f32 v{t0}, v{t0}", f"v_exp_f32 v{t1}, v{t1}",
                  f"v_mul_f32 v{y0}, v{y0}, v{x0}", f"v_mul_f32 v{y1}, v{y1}, v{x1}",
                  f"v_add_f32 v{t0}, 1.0, v{t0}", f"v_add_f32 v{t1}, 1.0, v{t1}",
                  f"v_rcp_f32 v{t0}, v{t0}", f"v_rcp_f32 v{t1}, v{t1}",
                  f"v_mul_f32 v{t0}, v{t0}, v{y0}", f"v_mul_f32 v{t1}, v{t1}, v{y1}",
                  f"v_cvt_pk_bf16_f32 v{dst+c}, v{t0}, v{t1}"]
        i0 = i1 = 0
        while i0 < len(lines[0]) or i1 < len(lines[1]):
            for _ in range(2):
                if i0 < len(lines[0]): a(lines[0][i0]); i0 += 1
            for _ in range(2):
                if i1 < len(lines[1]): a(lines[1][i1]); i1 += 1
    k = 0
    for mt in range(2):
        for p in range(4):
            o = XS + (k % 12) * 4; k += 1
            gelu_tile(2*p, mt, o)
            gelu_tile(2*p+1, mt, o+2)
            a(f"buffer_store_dwordx4 {vr(o,4)}, v{vX0}, {sr(sH,4)}, s{sT+1+2*mt} offen offset:{p*1024}")
        o = XS + (k % 12) * 4; k += 1
        gelu_tile(8, mt, o)
        a(f"buffer_store_dwordx2 {vr(o,2)}, v{vX0}, {sr(sH,4)}, s{sT+2+2*mt} offen")
    if "pstamp" not in OPT: stamp(a, 3)
    if "stamp" in OPT: a("s_waitcnt vmcnt(0)")
    if "pstamp" not in OPT: stamp(a, 4)
    stamp(a, 6, True)
    stamp_dump(a, 7, 8, sWave, vT+4)
    a.lab(f"L_{name}_done")
    a("s_endpgm")
    return a.text(), kernel_desc(name, NV), f"; @launch kernel={name} grid=(256,1,1) block=(512,1,1) lds={NST*STG}"

def gen_k4v2(name="k4_kernel"):
    a = A()
    kernel_head(a, name)
    NST = 6; STG = 18432; RING = 6; PFD = 5; PF = RING - 1
    ROWB = 4608 if "m16" in OPT else 2304
    ACC = 4; XS = 76; WR = 124
    vWa, vWb = 148, 149
    vD = 150; vDm = 153
    vX0, vX1 = 156, 157
    vT = 160
    NV = 176
    def acc(nt, mt): return ACC + (nt*2+mt)*4
    sW, sX, sP = 12, 16, 20
    sWave, sKs, sMb, sNb = 28, 29, 30, 31
    sWb1, sXb, sPb = 32, 33, 34
    sM0 = 36
    sT = 40
    sWo = 52
    a("s_cmp_ge_u32 s2, 256")
    a(f"s_cbranch_scc1 L_{name}_done")
    stamp(a, 0); stamp(a, 5, True)
    a("s_load_dwordx2 s[4:5], s[0:1], 48")
    a("s_load_dwordx2 s[8:9], s[0:1], 72")
    a("v_lshrrev_b32 v1, 6, v0")
    a("v_and_b32 v0, 63, v0")
    a("s_nop 0")
    a(f"v_readfirstlane_b32 s{sWave}, v1")
    a(f"s_and_b32 s{sT}, s2, 7")
    a(f"s_lshr_b32 s{sT+1}, s2, 3")
    a(f"s_lshr_b32 s{sKs}, s{sT}, 1")
    a(f"s_and_b32 s{sNb}, s{sT+1}, 3")
    a(f"s_and_b32 s{sT}, s{sT}, 1")
    a(f"s_lshl_b32 s{sT}, s{sT}, 3")
    a(f"s_lshr_b32 s{sMb}, s{sT+1}, 2")
    a(f"s_add_u32 s{sMb}, s{sMb}, s{sT}")
    dma_slots_setup(a, sWave, sT, vT, vD, 1152, sM0, 0)
    a(f"s_cmp_eq_u32 s{sWave}, 0")
    a(f"s_cselect_b32 s{sT}, 0, {576*1152}")
    a(f"v_add_u32 v{vD+1}, s{sT}, v{vD+1}")
    a(f"v_add_u32 v{vD+2}, {576*1152}, v{vD+2}")
    a(f"s_mov_b32 s{sT}, {128*1152}")
    for k in range(3):
        a(f"v_cmp_lt_u32 vcc, 15, v{vT+8+k}")
        a(f"v_mov_b32 v{vT+1}, s{sT}")
        a("s_nop 0")
        a(f"v_cndmask_b32 v{vT+1}, 0, v{vT+1}, vcc")
        a(f"v_add_u32 v{vDm+k}, v{vD+k}, v{vT+1}")
    a(f"s_mul_i32 s{sWb1}, s{sKs}, {2*576*1152}")
    a(f"s_mul_i32 s{sT}, s{sNb}, 288")
    a(f"s_add_u32 s{sWb1}, s{sWb1}, s{sT}")
    a(f"s_lshr_b32 s{sT}, s{sWave}, 2")
    a(f"s_lshl_b32 s{sT+1}, s{sKs}, 1")
    a(f"s_add_u32 s{sT+1}, s{sT+1}, s{sT}")
    a(f"s_and_b32 s{sT+2}, s{sWave}, 3")
    a(f"s_lshl_b32 s{sXb}, s{sMb}, 3")
    a(f"s_lshl_b32 s{sT+3}, s{sT+2}, 1")
    a(f"s_add_u32 s{sXb}, s{sXb}, s{sT+3}")
    a(f"s_mov_b32 s{sT+4}, s{sXb}")
    a(f"s_mul_i32 s{sXb}, s{sXb}, 144")
    a(f"s_mul_i32 s{sT+3}, s{sT+1}, 18")
    a(f"s_add_u32 s{sXb}, s{sXb}, s{sT+3}")
    a(f"s_lshl_b32 s{sXb}, s{sXb}, 10")
    a(f"v_lshlrev_b32 v{vX0}, 4, v0")
    a(f"v_add_u32 v{vX0}, s{sXb}, v{vX0}")
    a(f"v_add_u32 v{vX1}, {144*1024}, v{vX0}")
    a(f"s_lshl_b32 s{sPb}, s{sKs}, 7")
    a(f"s_add_u32 s{sPb}, s{sPb}, s{sT+4}")
    a(f"s_add_u32 s{sPb}, s{sPb}, s{sT}")
    a(f"s_mul_i32 s{sPb}, s{sPb}, 36")
    a(f"s_mul_i32 s{sT+6}, s{sNb}, 9")
    a(f"s_add_u32 s{sPb}, s{sPb}, s{sT+6}")
    a(f"s_lshl_b32 s{sPb}, s{sPb}, 10")
    if "m16" in OPT:
        a(f"v_lshrrev_b32 v{vT+5}, 2, v0")
    else:
        a(f"v_lshrrev_b32 v{vT+5}, 5, v0")
        a(f"v_lshlrev_b32 v{vT+5}, 4, v{vT+5}")
        a(f"v_bfe_u32 v{vT+6}, v0, 2, 3")
        a(f"v_add_u32 v{vT+5}, v{vT+5}, v{vT+6}")
    a(f"v_mul_u32_u24 v{vT+5}, 288, v{vT+5}")
    a(f"v_and_b32 v{vT+6}, 3, v0")
    a(f"v_lshl_add_u32 v{vWa}, v{vT+6}, 3, v{vT+5}")
    a(f"s_mul_i32 s{sT+6}, s{sT}, 9216")
    a(f"v_add_u32 v{vWa}, s{sT+6}, v{vWa}")
    a(f"v_add_u32 v{vWb}, {3*STG}, v{vWa}")
    a("s_waitcnt lgkmcnt(0)")
    srd(a, sW, 4, 4608*576*2)
    srd(a, sX, 8, HH_SZ, HH_OFF)
    srd(a, sP, 8, P_SZ, P_OFF)
    a(f"s_cmp_ge_u32 s{sWave}, 2")
    a(f"s_cbranch_scc1 L_{name}_typeB")
    def fa_rel(i):
        q, ii = divmod(i, 9)
        if ii < 4: return 288*q + 32*ii
        if ii < 8: return 288*q + 144 + 32*(ii-4)
        return 288*q + 128
    def body(nd, tag):
        vm = VM(a)
        def load_groups(i):
            if i >= 18: return []
            st = i % NST
            gs = []
            vv = vDm if i % 9 == 8 else vD
            for k in range(nd):
                g = []
                if k == 0:
                    g.append(("s", f"s_add_u32 s{sWo}, s{sWb1}, {fa_rel(i)*1152}"))
                g.append(("s", f"s_add_u32 m0, s{sM0+k}, {st*STG}"))
                g.append(("s", "s_nop 0"))
                g.append((("W", i), f"buffer_load_dwordx4 v{vv+k}, {sr(sW,4)}, s{sWo} offen lds"))
                gs.append(g)
            xs = XS + (i % NST) * 8
            gs.append([("s", f"s_mov_b32 s{sWo+1}, {i*1024}"),
                       (("X", i), f"buffer_load_dwordx4 {vr(xs,4)}, v{vX0}, {sr(sX,4)}, s{sWo+1} offen")])
            gs.append([(("X", i), f"buffer_load_dwordx4 {vr(xs+4,4)}, v{vX1}, {sr(sX,4)}, s{sWo+1} offen")])
            return gs
        def emit_group(g):
            for tg, txt in g:
                if tg == "s": a(txt)
                else: vm.op(tg, txt)
        for i in range(2):
            for g in load_groups(i): emit_group(g)
        for i in range(0, 72, 2):
            a(f"v_mov_b64 {vr(ACC+i,2)}, 0")
        sched = {0: [2, 3], 1: [4, 5], 2: [6, 7]}
        def wread(gidx):
            i, nt = divmod(gidx, 9)
            if i >= 18: return
            st = i % NST; slot = gidx % RING
            base = vWa if st < 3 else vWb
            off = (st % 3) * STG + nt * 32
            a(f"ds_read_b64_tr_b16 {vr(WR+slot*4,2)}, v{base} offset:{off}")
            a(f"ds_read_b64_tr_b16 {vr(WR+slot*4+2,2)}, v{base} offset:{off+ROWB}")
        vm.wait(lambda t: t[1] <= 0)
        a("s_barrier")
        for f in range(PF): wread(f)
        stamp(a, 1)
        for i in range(18):
            lg = []
            for j in sched.get(i, [i + PFD]): lg += load_groups(j)
            vm.wait(lambda t: t[0] == "X" and t[1] <= i)
            gi = 0
            gpos = [(k * 9) // max(1, len(lg)) for k in range(len(lg))]
            for nt in range(9):
                g = i*9 + nt; slot = g % RING
                if i == 0 and nt == 9 - PF:
                    vm.wait(lambda t: t[0] == "W" and t[1] <= 1)
                    a("s_barrier")
                wread(g + PF)
                rem = min(PF, 18*9 - 1 - g)
                a(f"s_waitcnt lgkmcnt({2*rem})")
                xs = XS + (i % NST) * 8
                a(f"v_mfma_f32_16x16x32_bf16 {vr(acc(nt,0),4)}, {vr(WR+slot*4,4)}, {vr(xs,4)}, {vr(acc(nt,0),4)}")
                a(f"v_mfma_f32_16x16x32_bf16 {vr(acc(nt,1),4)}, {vr(WR+slot*4,4)}, {vr(xs+4,4)}, {vr(acc(nt,1),4)}")
                while gi < len(lg) and gpos[gi] <= nt:
                    emit_group(lg[gi]); gi += 1
            assert gi == len(lg)
            vm.wait(lambda t: t[0] == "W" and t[1] <= i + 2)
            a("s_barrier")
    body(3, "A")
    a(f"s_branch L_{name}_epi")
    a.lab(f"L_{name}_typeB")
    body(2, "B")
    a.lab(f"L_{name}_epi")
    stamp(a, 2)
    a(f"s_lshr_b32 s{sT}, s{sWave}, 2")
    a(f"v_lshlrev_b32 v{vT}, 4, v0")
    a(f"s_mul_i32 s{sT+1}, s{sWave}, 9216")
    a(f"v_add_u32 v{vT+1}, s{sT+1}, v{vT}")
    a(f"s_xor_b32 s{sT+2}, s{sWave}, 4")
    a(f"s_mul_i32 s{sT+2}, s{sT+2}, 9216")
    a(f"v_add_u32 v{vT+2}, s{sT+2}, v{vT}")
    a(f"s_cmp_eq_u32 s{sT}, 0")
    a("s_nop 4")
    a(f"s_cbranch_scc0 L_{name}_kh1")
    for kh in range(2):
        if kh == 1: a.lab(f"L_{name}_kh1")
        for nt in range(9):
            a(f"ds_write_b128 v{vT+1}, {vr(acc(nt,1-kh),4)} offset:{nt*1024}")
        a("s_waitcnt lgkmcnt(0)")
        a("s_barrier")
        for nt in range(9):
            a(f"ds_read_b128 {vr(XS+nt*4,4)}, v{vT+2} offset:{nt*1024}")
        for nt in range(9):
            a(f"s_waitcnt lgkmcnt({8-nt})")
            for r in range(4):
                a(f"v_add_f32 v{XS+nt*4+r}, v{XS+nt*4+r}, v{acc(nt,kh)+r}")
            if nt in (4, 8): a(f"s_add_u32 s{sPb}, s{sPb}, 4096")
            a(f"buffer_store_dwordx4 {vr(XS+nt*4,4)}, v{vT}, {sr(sP,4)}, s{sPb} offen offset:{(nt%4)*1024}")
        stamp(a, 3)
        if "stamp" in OPT: a("s_waitcnt vmcnt(0)")
        stamp(a, 4); stamp(a, 6, True)
        stamp_dump(a, 7, 8, sWave, vT+4, 1)
        a("s_endpgm")
    a.lab(f"L_{name}_done")
    a("s_endpgm")
    return a.text(), kernel_desc(name, NV), f"; @launch kernel={name} grid=(256,1,1) block=(512,1,1) lds={NST*STG}"

GENS = {"k1": gen_k1, "k2": gen_k2, "k3": gen_k3, "k4": gen_k4, "k5": gen_k5, "k3v2": gen_k3v2, "k3m": gen_k3m, "k4v2": gen_k4v2}


def build(which):
    heads, texts, descs = [], [], []
    for w in which:
        t, d, h = GENS[w]()
        heads.append(h); texts.append(t); descs.append(d)
    out = "; generated by dev/gen.py\n" + "\n".join(heads) + "\n"
    out += '.amdgcn_target "amdgcn-amd-amdhsa--gfx950"\n.text\n'
    out += "\n".join(texts)
    out += '.section .rodata,"a"\n'
    for d in descs:
        out += ".p2align 6\n" + d
    return out

if __name__ == "__main__":
    which = sys.argv[2].split(",")
    open(sys.argv[1], "w").write(build(which))
```

```python
import sys, struct, math, os
OPT = set(os.environ.get("GENOPT", "").split(","))

KN = "sequential_preLN__sliding_local_dilated__geglu_ffn__prompt"

O_OFF  = 0
O_SZ   = 2048*576*2
H1_OFF = O_OFF + O_SZ
H1_SZ  = 2048*576*2
ST_OFF = H1_OFF + H1_SZ
ST_SZ  = 2048*6*8
HH_OFF = ST_OFF + ST_SZ
HH_SZ  = 2048*4608*2
P_OFF  = HH_OFF + HH_SZ
P_SZ   = 4*2048*576*4

def f32(x):
    return struct.unpack("<I", struct.pack("<f", x))[0]

class A:
    def __init__(self):
        self.l = []
    def __call__(self, s):
        if "nomfma" in OPT and s.startswith("v_mfma"): return
        if s.startswith("buffer_store_dwordx4") and "s[80:83]" not in s:
            pol = getattr(self, "stpol", "")
            if pol: s += " " + pol
        if "nods" in OPT and s.startswith("ds_read_b64_tr"): return
        if "now" in OPT and s.startswith("buffer_load_dwordx4") and s.endswith("lds"): return
        if "nox" in OPT and s.startswith("buffer_load_dwordx4 v[") and "s[16:19]" in s: return
        self.l.append("    " + s)
    def lab(self, s):
        self.l.append(s + ":")
    def c(self, s):
        self.l.append("    ; " + s)
    def text(self):
        return "\n".join(self.l) + "\n"

def vr(b, n=1):
    return f"v{b}" if n == 1 else f"v[{b}:{b+n-1}]"
def sr(b, n=1):
    return f"s{b}" if n == 1 else f"s[{b}:{b+n-1}]"

def kernel_head(a, name):
    a.l.append(f".globl {name}")
    a.l.append(".p2align 8")
    a.l.append(f".type {name},@function")
    a.lab(name)

def kernel_desc(name, vgpr, sgpr=96, accum=None):
    if accum is None:
        accum = (vgpr + 3) // 4 * 4
    return f""".amdhsa_kernel {name}
  .amdhsa_next_free_vgpr {vgpr}
  .amdhsa_next_free_sgpr {sgpr}
  .amdhsa_accum_offset {accum}
  .amdhsa_group_segment_fixed_size 0
  .amdhsa_kernarg_size 80
  .amdhsa_user_sgpr_count 2
  .amdhsa_user_sgpr_kernarg_segment_ptr 1
  .amdhsa_system_sgpr_workgroup_id_x 1
.end_amdhsa_kernel
"""

def srd(a, d, base, size, off=0):
    if off:
        a(f"s_add_u32 s{d}, s{base}, {off}")
        a(f"s_addc_u32 s{d+1}, s{base+1}, 0")
    else:
        a(f"s_mov_b32 s{d}, s{base}")
        a(f"s_mov_b32 s{d+1}, s{base+1}")
    a(f"s_and_b32 s{d+1}, s{d+1}, 0xffff")
    a(f"s_mov_b32 s{d+2}, {size}")
    a(f"s_mov_b32 s{d+3}, 0x00020000")

def round_bf16(a, d, s, tmp=None):
    a(f"v_cvt_pk_bf16_f32 v{d}, v{s}, v{s}")
    a(f"v_lshlrev_b32 v{d}, 16, v{d}")

GELU_A = -2.0 * math.log2(math.e) * math.sqrt(2.0 / math.pi)
GELU_B = GELU_A * 0.044715

import os
OPT = set(os.environ.get("GENOPT", "").split(","))
def stamp(a, i, real=False):
    if "stamp" in OPT:
        a(f"s_mem{'real' if real else ''}time s[{60+2*i}:{61+2*i}]")
def stamp_dump(a, n, sWs, sWave, tmpv, region=0):
    if "stamp" in OPT:
        a("s_waitcnt lgkmcnt(0)")
        a("s_mov_b64 exec, -1")
        srd(a, 80, sWs, 1<<20, (200+region)<<20)
        a(f"s_lshl_b32 s84, s2, 4")
        a(f"s_add_u32 s84, s84, s{sWave}")
        a(f"s_lshl_b32 s84, s84, 6")
        a(f"v_mov_b32 v{tmpv}, s84")
        for i in range(n):
            a(f"v_mov_b32 v{tmpv+2}, s{60+2*i}")
            a(f"v_mov_b32 v{tmpv+3}, s{61+2*i}")
            a(f"buffer_store_dwordx2 v[{tmpv+2}:{tmpv+3}], v{tmpv}, s[80:83], 0 offen offset:{8*i}")
            a("s_nop 1")
def gen_k3(name="k3_kernel"):
    a = A()
    kernel_head(a, name)
    NST = 6
    STG = 18432
    RING = 6
    ACC = 0
    XS = 144
    WR = 192
    vWa = 216
    vWb = 217
    vD0, vD1, vD2 = 218, 219, 220
    vX0, vX1 = 221, 222
    vM0, vR0, vM1, vR1 = 223, 224, 225, 226
    vT = 228
    vLane = 244
    NV = 246
    def acc(nt, mat, mt):
        return ACC + ((nt * 2 + mat) * 2 + mt) * 4
    sW, sX, sST, sH = 12, 16, 20, 24
    sWave, sFb, sMb = 28, 29, 30
    sWoff, sXoff, sIt = 31, 32, 33
    sM0b = 34
    sT = 36
    sA_, sB_ = 48, 49
    sExec = 50
    sHb = 52

    a("s_cmp_ge_u32 s2, 256")
    a(f"s_cbranch_scc1 L_{name}_done")
    stamp(a, 0)
    stamp(a, 5, True)
    a("s_load_dwordx4 s[4:7], s[0:1], 32")
    a("s_load_dwordx2 s[8:9], s[0:1], 72")
    a("v_lshrrev_b32 v1, 6, v0")
    a("v_and_b32 v0, 63, v0")
    a("s_nop 0")
    a(f"v_readfirstlane_b32 s{sWave}, v1")
    a(f"s_and_b32 s{sT}, s2, 7")
    a(f"s_lshr_b32 s{sT+1}, s2, 3")
    a(f"s_and_b32 s{sFb}, s{sT+1}, 3")
    a(f"s_lshl_b32 s{sT}, s{sT}, 2")
    a(f"s_add_u32 s{sFb}, s{sFb}, s{sT}")
    a(f"s_lshr_b32 s{sMb}, s{sT+1}, 2")
    a("s_waitcnt lgkmcnt(0)")
    a(f"s_cmp_ge_u32 s{sWave}, 4")
    a(f"s_cselect_b32 s{sT}, s6, s4")
    a(f"s_cselect_b32 s{sT+1}, s7, s5")
    srd(a, sW, sT, 576*4608*2)
    srd(a, sX, 8, H1_SZ, H1_OFF)
    srd(a, sST, 8, ST_SZ, ST_OFF)
    srd(a, sH, 8, HH_SZ, HH_OFF)
    a(f"v_and_b32 v{vT}, 15, v0")
    a(f"s_lshl_b32 s{sT}, s{sMb}, 8")
    a(f"s_lshl_b32 s{sT+1}, s{sWave}, 5")
    a(f"s_add_u32 s{sT}, s{sT}, s{sT+1}")
    a(f"v_add_u32 v{vT}, s{sT}, v{vT}")
    a(f"v_mul_u32_u24 v{vT}, 48, v{vT}")
    for mt in range(2):
        for q in range(3):
            a(f"buffer_load_dwordx4 {vr(WR+mt*12+q*4,4)}, v{vT}, {sr(sST,4)}, 0 offen offset:{mt*768+q*16}")
    for t, vd in enumerate((vD0, vD1, vD2)):
        a(f"v_add_u32 v{vT+1}, {t*64}, v0")
        a(f"v_mul_u32_u24 v{vT+2}, 3641, v{vT+1}")
        a(f"v_lshrrev_b32 v{vT+2}, 16, v{vT+2}")
        a(f"v_mul_u32_u24 v{vT+3}, 18, v{vT+2}")
        a(f"v_sub_u32 v{vT+3}, v{vT+1}, v{vT+3}")
        a(f"v_mul_u32_u24 v{vT+2}, 9216, v{vT+2}")
        a(f"v_lshl_add_u32 v{vd}, v{vT+3}, 4, v{vT+2}")
    a(f"s_and_b32 s{sT}, s{sWave}, 3")
    a(f"s_mul_i32 s{sT+1}, s{sT}, {8*9216}")
    a(f"s_mul_i32 s{sT+2}, s{sFb}, 288")
    a(f"s_add_u32 s{sT+1}, s{sT+1}, s{sT+2}")
    for vd in (vD0, vD1, vD2):
        a(f"v_add_u32 v{vd}, s{sT+1}, v{vd}")
    a(f"s_mul_i32 s{sM0b}, s{sWave}, 2304")
    a(f"s_lshl_b32 s{sT}, s{sMb}, 4")
    a(f"s_lshl_b32 s{sT+1}, s{sWave}, 1")
    a(f"s_add_u32 s{sT}, s{sT}, s{sT+1}")
    a(f"s_mul_i32 s{sT+1}, s{sT}, 18432")
    a(f"v_lshlrev_b32 v{vX0}, 4, v0")
    a(f"v_add_u32 v{vX0}, s{sT+1}, v{vX0}")
    a(f"v_add_u32 v{vX1}, 18432, v{vX0}")
    a(f"s_mul_i32 s{sHb}, s{sT}, 144")
    a(f"s_lshr_b32 s{sT+1}, s{sFb}, 1")
    a(f"s_mul_i32 s{sT+1}, s{sT+1}, 9")
    a(f"s_add_u32 s{sHb}, s{sHb}, s{sT+1}")
    a(f"s_lshl_b32 s{sHb}, s{sHb}, 10")
    a(f"v_lshrrev_b32 v{vT+1}, 2, v0")
    a(f"v_mul_u32_u24 v{vT+1}, 288, v{vT+1}")
    a(f"v_and_b32 v{vT+2}, 3, v0")
    a(f"v_lshl_add_u32 v{vWa}, v{vT+2}, 3, v{vT+1}")
    a(f"v_add_u32 v{vWb}, {3*STG}, v{vWa}")
    sRot, sCnt = 54, 55
    if "rot" in OPT:
        a(f"s_mul_i32 s{sRot}, s{sMb}, 9")
        a(f"s_and_b32 s{sT}, s{sFb}, 3")
        a(f"s_mul_i32 s{sT}, s{sT}, 18")
        a(f"s_add_u32 s{sRot}, s{sRot}, s{sT}")
        a(f"s_lshr_b32 s{sRot}, s{sRot}, 2")
        a(f"s_sub_u32 s{sT}, s{sRot}, 18")
        a(f"s_cmp_ge_u32 s{sRot}, 18")
        a(f"s_cselect_b32 s{sRot}, s{sT}, s{sRot}")
    else:
        a(f"s_mov_b32 s{sRot}, 0")
    if "samew" in OPT:
        a(f"s_mov_b32 s{sRot}, 0")
    a(f"s_mov_b32 s{sCnt}, 0")
    a(f"s_mul_i32 s{sWoff}, s{sRot}, {32*9216}")
    a(f"s_lshl_b32 s{sXoff}, s{sRot}, 10")
    a(f"s_mov_b64 s[{sExec}:{sExec+1}], 0xffff")
    a(f"v_mov_b32 v{vLane}, v0")

    def load_groups(stage, xset):
        gs = []
        for t, vd in enumerate((vD0, vD1, vD2)):
            g = [f"s_add_u32 m0, s{sM0b}, {stage*STG + t*1024}"]
            if t == 2:
                g.append(f"s_mov_b64 exec, s[{sExec}:{sExec+1}]")
            else:
                g.append("s_nop 0")
            g.append(f"buffer_load_dwordx4 v{vd}, {sr(sW,4)}, s{sWoff} offen lds")
            if t == 2:
                g.append("s_mov_b64 exec, -1")
            gs.append(g)
        gs.append([f"buffer_load_dwordx4 {vr(XS+xset*8,4)}, v{vX0}, {sr(sX,4)}, s{sXoff} offen"])
        gs.append([f"buffer_load_dwordx4 {vr(XS+xset*8+4,4)}, v{vX1}, {sr(sX,4)}, s{sXoff} offen",
                   f"s_add_u32 s{sRot}, s{sRot}, 1",
                   f"s_cmp_eq_u32 s{sRot}, {4 if 'hot4' in OPT else 18}",
                   f"s_cselect_b32 s{sRot}, 0, s{sRot}",
                   f"s_add_u32 s{sCnt}, s{sCnt}, 1",
                   f"s_mul_i32 s{sWoff}, s{sRot}, {32*9216}",
                   f"s_lshl_b32 s{sXoff}, s{sRot}, 10",
                   f"s_cmp_ge_u32 s{sCnt}, 18",
                   f"s_cselect_b32 s{sWoff}, 0x7f000000, s{sWoff}",
                   f"s_cselect_b32 s{sXoff}, 0x7f000000, s{sXoff}"])
        return gs
    def issue_loads(stage, xset):
        for g in load_groups(stage, xset):
            for x in g: a(x)

    for s in range(5):
        issue_loads(s, s)
    a("s_waitcnt vmcnt(25)")
    for mt, (vM, vR) in enumerate(((vM0, vR0), (vM1, vR1))):
        b = WR + mt * 12
        a(f"v_add_f32 v{vT}, v{b}, v{b+2}")
        a(f"v_add_f32 v{vT+1}, v{b+4}, v{b+6}")
        a(f"v_add_f32 v{vT+2}, v{b+8}, v{b+10}")
        a(f"v_add_f32 v{vT}, v{vT}, v{vT+1}")
        a(f"v_add_f32 v{vT}, v{vT}, v{vT+2}")
        a(f"v_mul_f32 v{vT}, {f32(1.0/6.0)}, v{vT}")
        a(f"v_add_f32 v{vT+1}, v{b+1}, v{b+3}")
        a(f"v_add_f32 v{vT+2}, v{b+5}, v{b+7}")
        a(f"v_add_f32 v{vT+3}, v{b+9}, v{b+11}")
        a(f"v_add_f32 v{vT+1}, v{vT+1}, v{vT+2}")
        a(f"v_add_f32 v{vT+1}, v{vT+1}, v{vT+3}")
        a(f"v_mov_b32 v{vT+2}, 0")
        for t in range(6):
            a(f"v_sub_f32 v{vT+3}, v{b+2*t}, v{vT}")
            a(f"v_fmac_f32 v{vT+2}, v{vT+3}, v{vT+3}")
        a(f"v_fmac_f32 v{vT+1}, {f32(96.0)}, v{vT+2}")
        a(f"v_mul_f32 v{vT+1}, {f32(1.0/576.0)}, v{vT+1}")
        round_bf16(a, vM, vT)
        round_bf16(a, vT+1, vT+1)
        a(f"v_add_f32 v{vT+1}, {f32(1e-5)}, v{vT+1}")
        round_bf16(a, vT+1, vT+1)
        a(f"v_sqrt_f32 v{vT+1}, v{vT+1}")
        a("s_nop 0")
        round_bf16(a, vT+1, vT+1)
        a(f"v_rcp_f32 v{vR}, v{vT+1}")
    for i in range(0, 144, 2):
        a(f"v_mov_b64 {vr(ACC+i,2)}, 0")

    def norm_ops(xset):
        ops = []
        for mt, (vM, vR) in enumerate(((vM0, vR0), (vM1, vR1))):
            for d in range(4):
                x = XS + xset * 8 + mt * 4 + d
                t0 = vT + (d % 2) * 2
                t1 = t0 + 1
                ops.append(f"v_lshlrev_b32 v{t0}, 16, v{x}")
                ops.append(f"v_and_b32 v{t1}, 0xffff0000, v{x}")
                if "fastnorm" in OPT:
                    ops.append(f"v_sub_f32 v{t0}, v{t0}, v{vM}")
                    ops.append(f"v_sub_f32 v{t1}, v{t1}, v{vM}")
                    ops.append(f"v_cvt_pk_bf16_f32 v{x}, v{t0}, v{t1}")
                    continue
                ops.append(f"v_sub_f32 v{t0}, v{t0}, v{vM}")
                ops.append(f"v_sub_f32 v{t1}, v{t1}, v{vM}")
                ops.append(f"v_cvt_pk_bf16_f32 v{t0}, v{t0}, v{t1}")
                ops.append(f"v_and_b32 v{t1}, 0xffff0000, v{t0}")
                ops.append(f"v_lshlrev_b32 v{t0}, 16, v{t0}")
                ops.append(f"v_mul_f32 v{t0}, v{t0}, v{vR}")
                ops.append(f"v_mul_f32 v{t1}, v{t1}, v{vR}")
                ops.append(f"v_cvt_pk_bf16_f32 v{x}, v{t0}, v{t1}")
        return ops

    def wread(fidx_global):
        st = (fidx_global // 18) % NST
        f = fidx_global % 18
        nt, mat = f // 2, f % 2
        slot = fidx_global % RING
        base = vWa if st < 3 else vWb
        off = (st % 3) * STG + mat * 9216 + nt * 32
        a(f"ds_read_b64_tr_b16 {vr(WR+slot*4,2)}, v{base} offset:{off}")
        a(f"ds_read_b64_tr_b16 {vr(WR+slot*4+2,2)}, v{base} offset:{off+4608}")

    PF = RING - 1
    a("s_waitcnt vmcnt(15)")
    for op in norm_ops(0):
        a(op)
    a("s_barrier")
    for f in range(PF):
        wread(f)
    stamp(a, 1)
    a(f"s_mov_b32 s{sIt}, 0")
    a(".p2align 6")
    a.lab(f"L_{name}_loop")
    for ph in range(NST):
        lg = load_groups((ph + 5) % NST, (ph + 5) % NST)
        spread = "spread" in OPT
        if not spread:
            issue_loads((ph + 5) % NST, (ph + 5) % NST)
        nops = norm_ops((ph + 1) % NST)
        if "nonorm" in OPT: nops = []
        ni = 0
        for f in range(18):
            g = ph * 18 + f
            nt, mat = f // 2, f % 2
            slot = g % RING
            wread(g + PF)
            a(f"s_waitcnt lgkmcnt({2*PF})")
            a(f"v_mfma_f32_16x16x32_bf16 {vr(acc(nt,mat,0),4)}, {vr(WR+slot*4,4)}, {vr(XS+ph*8,4)}, {vr(acc(nt,mat,0),4)}")
            a(f"v_mfma_f32_16x16x32_bf16 {vr(acc(nt,mat,1),4)}, {vr(WR+slot*4,4)}, {vr(XS+ph*8+4,4)}, {vr(acc(nt,mat,1),4)}")
            if f == 1:
                a("s_waitcnt vmcnt(%d)" % (15 if spread else 20))
            if spread and f % 3 == 2 and f // 3 < 5:
                for x in lg[f // 3]: a(x)
            if f >= 1:
                for _ in range(5):
                    if ni < len(nops):
                        a(nops[ni]); ni += 1
        assert ni == len(nops)
        a("s_waitcnt vmcnt(17)")
        a("s_barrier")
    a(f"s_add_u32 s{sIt}, s{sIt}, 1")
    a(f"s_cmp_lt_u32 s{sIt}, 3")
    a(f"s_cbranch_scc1 L_{name}_loop")
    stamp(a, 2)
    a("s_waitcnt vmcnt(0) lgkmcnt(0)")
    a(f"s_mov_b32 s{sA_}, {f32(GELU_A)}")
    a(f"s_mov_b32 s{sB_}, {f32(GELU_B)}")
    a(f"v_lshlrev_b32 v{vX0}, 4, v{vLane}")
    a(f"s_and_b32 s{sT}, s{sFb}, 1")
    a(f"s_lshl_b32 s{sT+1}, s{sT}, 12")
    a(f"s_add_u32 s{sT+1}, s{sT+1}, s{sHb}")
    a(f"s_lshl_b32 s{sT+2}, s{sT}, 3")
    a(f"s_add_u32 s{sT+2}, s{sT+2}, s{sHb}")
    a(f"s_add_u32 s{sT+2}, s{sT+2}, {8*1024}")
    a(f"s_add_u32 s{sT+3}, s{sT+1}, {144*1024}")
    a(f"s_add_u32 s{sT+4}, s{sT+2}, {144*1024}")
    OUT = XS
    def gelu_tile(nt, mt, dst):
        g = acc(nt, 0, mt); u = acc(nt, 1, mt)
        T = WR
        for h in range(2):
            g0, g1, u0, u1 = g+2*h, g+2*h+1, u+2*h, u+2*h+1
            x0, x1, y0, y1, t0, t1 = T+h*8, T+h*8+1, T+h*8+2, T+h*8+3, T+h*8+4, T+h*8+5
            if "relax" in OPT:
                x0, x1, y0, y1 = g0, g1, u0, u1
            else:
                a(f"v_cvt_pk_bf16_f32 v{x0}, v{g0}, v{g1}")
                a(f"v_cvt_pk_bf16_f32 v{y0}, v{u0}, v{u1}")
                a(f"v_and_b32 v{x1}, 0xffff0000, v{x0}")
                a(f"v_lshlrev_b32 v{x0}, 16, v{x0}")
                a(f"v_and_b32 v{y1}, 0xffff0000, v{y0}")
                a(f"v_lshlrev_b32 v{y0}, 16, v{y0}")
            a(f"v_mul_f32 v{t0}, v{x0}, v{x0}")
            a(f"v_mul_f32 v{t1}, v{x1}, v{x1}")
            a(f"v_fma_f32 v{t0}, v{t0}, s{sB_}, v{vT}")
            a(f"v_fma_f32 v{t1}, v{t1}, s{sB_}, v{vT}")
            a(f"v_mul_f32 v{t0}, v{t0}, v{x0}")
            a(f"v_mul_f32 v{t1}, v{t1}, v{x1}")
            a(f"v_exp_f32 v{t0}, v{t0}")
            a(f"v_exp_f32 v{t1}, v{t1}")
            a("s_nop 0")
            a(f"v_add_f32 v{t0}, 1.0, v{t0}")
            a(f"v_add_f32 v{t1}, 1.0, v{t1}")
            a(f"v_rcp_f32 v{t0}, v{t0}")
            a(f"v_rcp_f32 v{t1}, v{t1}")
            a("s_nop 0")
            a(f"v_mul_f32 v{t0}, v{t0}, v{x0}")
            a(f"v_mul_f32 v{t1}, v{t1}, v{x1}")
            if "relax" not in OPT:
                a(f"v_cvt_pk_bf16_f32 v{t0}, v{t0}, v{t1}")
                a(f"v_and_b32 v{t1}, 0xffff0000, v{t0}")
                a(f"v_lshlrev_b32 v{t0}, 16, v{t0}")
            a(f"v_mul_f32 v{t0}, v{t0}, v{y0}")
            a(f"v_mul_f32 v{t1}, v{t1}, v{y1}")
            a(f"v_cvt_pk_bf16_f32 v{dst+h}, v{t0}, v{t1}")
    a(f"v_mov_b32 v{vT}, s{sA_}")
    a("s_nop 7")
    k = 0
    for mt in range(2):
        for p in range(4):
            o = OUT + (k % 12) * 4; k += 1
            gelu_tile(2*p, mt, o)
            gelu_tile(2*p+1, mt, o+2)
            a(f"buffer_store_dwordx4 {vr(o,4)}, v{vX0}, {sr(sH,4)}, s{sT+1+2*mt} offen offset:{p*1024}")
        o = OUT + (k % 12) * 4; k += 1
        gelu_tile(8, mt, o)
        a(f"buffer_store_dwordx2 {vr(o,2)}, v{vX0}, {sr(sH,4)}, s{sT+2+2*mt} offen")
    stamp(a, 3)
    a("s_waitcnt vmcnt(0)")
    stamp(a, 4)
    stamp(a, 6, True)
    stamp_dump(a, 7, 8, sWave, vT)
    a.lab(f"L_{name}_done")
    a("s_endpgm")
    return a.text(), kernel_desc(name, NV), f"; @launch kernel={name} grid=(256,1,1) block=(512,1,1) lds={NST*STG}"


def lds_dump(a, nbytes, wg, tidv, tv, off_mb, nthreads=512, tag="d"):
    a(f"s_cmp_lg_u32 s2, {wg}")
    a(f"s_cbranch_scc1 L_dump_{tag}")
    srd(a, 80, 8, 1 << 20, off_mb << 20)
    a(f"v_lshlrev_b32 v{tv}, 4, v{tidv}")
    for i in range(0, nbytes, nthreads*16):
        a(f"v_add_u32 v{tv+1}, {i}, v{tv}")
        a(f"ds_read_b128 v[{tv+2}:{tv+5}], v{tv+1}")
        a("s_waitcnt lgkmcnt(0)")
        a(f"buffer_store_dwordx4 v[{tv+2}:{tv+5}], v{tv+1}, s[80:83], 0 offen")
        a("s_waitcnt vmcnt(0)")
    a.lab(f"L_dump_{tag}")
    a("s_barrier")

class VM:
    def __init__(self, a):
        self.a = a; self.ops = []
    def op(self, tag, text):
        if "noload" in OPT and tag[0] in ("W", "X") and tag[1] >= 2 and getattr(self.a, "k3", False): return
        self.a(text); self.ops.append(tag)
    def wait(self, tagpred, extra=""):
        last = -1
        for i, t in enumerate(self.ops):
            if tagpred(t): last = i
        n = len(self.ops) - 1 - last
        assert n <= 63
        if last >= 0:
            self.a(f"s_waitcnt vmcnt({n}){extra}")
            self.ops = self.ops[last+1:]

def gen_k4(name="k4_kernel"):
    a = A(); vm = VM(a)
    kernel_head(a, name)
    NST = 6; STG = 18432; RING = 6; PFD = 5
    ACC = 4
    XS = 76
    WR = 124
    vWa, vWb = 148, 149
    vD0, vD1, vD2 = 150, 151, 152
    vX0, vX1 = 153, 154
    vT = 156
    NV = 172
    def acc(nt, mt): return ACC + (nt*2+mt)*4
    sW, sX, sP = 12, 16, 20
    sWave, sKs, sMb, sNb = 28, 29, 30, 31
    sWb1, sWb2, sXb, sM0b = 32, 33, 34, 35
    sT = 36
    sExec = 50
    sWo = 52
    a("s_cmp_ge_u32 s2, 256")
    a(f"s_cbranch_scc1 L_{name}_done")
    stamp(a, 0); stamp(a, 5, True)
    a("s_load_dwordx2 s[4:5], s[0:1], 48")
    a("s_load_dwordx2 s[8:9], s[0:1], 72")
    a("v_lshrrev_b32 v1, 6, v0")
    a("v_and_b32 v0, 63, v0")
    a("s_nop 0")
    a(f"v_readfirstlane_b32 s{sWave}, v1")
    a(f"s_and_b32 s{sT}, s2, 7")
    a(f"s_lshr_b32 s{sT+1}, s2, 3")
    a(f"s_lshr_b32 s{sKs}, s{sT}, 1")
    a(f"s_and_b32 s{sNb}, s{sT+1}, 3")
    a(f"s_and_b32 s{sT}, s{sT}, 1")
    a(f"s_lshl_b32 s{sT}, s{sT}, 3")
    a(f"s_lshr_b32 s{sMb}, s{sT+1}, 2")
    a(f"s_add_u32 s{sMb}, s{sMb}, s{sT}")
    a("s_waitcnt lgkmcnt(0)")
    srd(a, sW, 4, 4608*576*2)
    srd(a, sX, 8, HH_SZ, HH_OFF)
    srd(a, sP, 8, P_SZ, P_OFF)
    for t, vd in enumerate((vD0, vD1, vD2)):
        a(f"v_add_u32 v{vT+1}, {t*64}, v0")
        a(f"v_mul_u32_u24 v{vT+2}, 3641, v{vT+1}")
        a(f"v_lshrrev_b32 v{vT+2}, 16, v{vT+2}")
        a(f"v_mul_u32_u24 v{vT+3}, 18, v{vT+2}")
        a(f"v_sub_u32 v{vT+3}, v{vT+1}, v{vT+3}")
        a(f"v_mul_u32_u24 v{vT+2}, 1152, v{vT+2}")
        a(f"v_lshl_add_u32 v{vd}, v{vT+3}, 4, v{vT+2}")
    a(f"s_lshr_b32 s{sT}, s{sWave}, 2")
    a(f"s_lshl_b32 s{sT+1}, s{sKs}, 1")
    a(f"s_add_u32 s{sT+1}, s{sT+1}, s{sT}")
    a(f"s_mul_i32 s{sWb1}, s{sT+1}, {576*1152}")
    a(f"s_and_b32 s{sT+2}, s{sWave}, 3")
    a(f"s_mul_i32 s{sT+3}, s{sT+2}, {8*1152}")
    a(f"s_add_u32 s{sWb1}, s{sWb1}, s{sT+3}")
    a(f"s_mul_i32 s{sT+3}, s{sNb}, 288")
    a(f"s_add_u32 s{sWb1}, s{sWb1}, s{sT+3}")
    a(f"s_cmp_ge_u32 s{sT+2}, 2")
    a(f"s_cselect_b32 s{sT+3}, {128*1152}, 0")
    a(f"s_add_u32 s{sWb2}, s{sWb1}, s{sT+3}")
    a(f"s_mul_i32 s{sM0b}, s{sWave}, 2304")
    a(f"s_lshl_b32 s{sXb}, s{sMb}, 3")
    a(f"s_lshl_b32 s{sT+3}, s{sT+2}, 1")
    a(f"s_add_u32 s{sXb}, s{sXb}, s{sT+3}")
    a(f"s_mov_b32 s{sT+4}, s{sXb}")
    a(f"s_mul_i32 s{sXb}, s{sXb}, 144")
    a(f"s_mul_i32 s{sT+3}, s{sT+1}, 18")
    a(f"s_add_u32 s{sXb}, s{sXb}, s{sT+3}")
    a(f"s_lshl_b32 s{sXb}, s{sXb}, 10")
    a(f"v_lshlrev_b32 v{vX0}, 4, v0")
    a(f"v_add_u32 v{vX0}, s{sXb}, v{vX0}")
    a(f"v_add_u32 v{vX1}, {144*1024}, v{vX0}")
    a(f"s_lshl_b32 s{sT+5}, s{sKs}, 7")
    a(f"s_add_u32 s{sT+5}, s{sT+5}, s{sT+4}")
    a(f"s_add_u32 s{sT+5}, s{sT+5}, s{sT}")
    a(f"s_mul_i32 s{sT+5}, s{sT+5}, 36")
    a(f"s_mul_i32 s{sT+6}, s{sNb}, 9")
    a(f"s_add_u32 s{sT+5}, s{sT+5}, s{sT+6}")
    a(f"s_lshl_b32 s{sT+5}, s{sT+5}, 10")
    a(f"v_lshrrev_b32 v{vT+1}, 2, v0")
    a(f"v_mul_u32_u24 v{vT+1}, 288, v{vT+1}")
    a(f"v_and_b32 v{vT+2}, 3, v0")
    a(f"v_lshl_add_u32 v{vWa}, v{vT+2}, 3, v{vT+1}")
    a(f"s_mul_i32 s{sT+6}, s{sT}, 9216")
    a(f"v_add_u32 v{vWa}, s{sT+6}, v{vWa}")
    a(f"v_add_u32 v{vWb}, {3*STG}, v{vWa}")
    a(f"s_mov_b64 s[{sExec}:{sExec+1}], 0xffff")

    def fa_rel(i):
        q, ii = divmod(i, 9)
        if ii < 4: return 288*q + 32*ii
        if ii < 8: return 288*q + 144 + 32*(ii-4)
        return 288*q + 128
    def load_groups(i):
        if i >= 18: return []
        st = i % NST
        gs = []
        base = sWb2 if i % 9 == 8 else sWb1
        for t, vd in enumerate((vD0, vD1, vD2)):
            g = []
            if t == 0:
                g.append(("s", f"s_add_u32 s{sWo}, s{base}, {fa_rel(i)*1152}"))
            g.append(("s", f"s_add_u32 m0, s{sM0b}, {st*STG + t*1024}"))
            g.append(("s", f"s_mov_b64 exec, s[{sExec}:{sExec+1}]" if t == 2 else "s_nop 0"))
            g.append((("W", i), f"buffer_load_dwordx4 v{vd}, {sr(sW,4)}, s{sWo} offen lds"))
            if t == 2: g.append(("s", "s_mov_b64 exec, -1"))
            gs.append(g)
        xs = XS + (i % NST) * 8
        gs.append([("s", f"s_mov_b32 s{sWo+1}, {i*1024}"),
                   (("X", i), f"buffer_load_dwordx4 {vr(xs,4)}, v{vX0}, {sr(sX,4)}, s{sWo+1} offen")])
        gs.append([(("X", i), f"buffer_load_dwordx4 {vr(xs+4,4)}, v{vX1}, {sr(sX,4)}, s{sWo+1} offen")])
        return gs
    def emit_group(g):
        for tag, txt in g:
            if tag == "s": a(txt)
            else: vm.op(tag, txt)
    for i in range(PFD):
        for g in load_groups(i): emit_group(g)
    for i in range(0, 72, 2):
        a(f"v_mov_b64 {vr(ACC+i,2)}, 0")
    def wread(gidx):
        i, nt = divmod(gidx, 9)
        if i >= 18: return False
        st = i % NST; slot = gidx % RING
        base = vWa if st < 3 else vWb
        off = (st % 3) * STG + nt * 32
        a(f"ds_read_b64_tr_b16 {vr(WR+slot*4,2)}, v{base} offset:{off}")
        a(f"ds_read_b64_tr_b16 {vr(WR+slot*4+2,2)}, v{base} offset:{off+4608}")
        return True
    PF = RING - 1
    vm.wait(lambda t: t[1] <= 1)
    a("s_barrier")
    for f in range(PF): wread(f)
    stamp(a, 1)
    for i in range(18):
        lg = load_groups(i + PFD)
        vm.wait(lambda t: t[0] == "X" and t[1] <= i)
        for nt in range(9):
            g = i*9 + nt; slot = g % RING
            ok = wread(g + PF)
            rem = min(PF, 18*9 - 1 - g)
            a(f"s_waitcnt lgkmcnt({2*rem})")
            xs = XS + (i % NST) * 8
            a(f"v_mfma_f32_16x16x32_bf16 {vr(acc(nt,0),4)}, {vr(WR+slot*4,4)}, {vr(xs,4)}, {vr(acc(nt,0),4)}")
            a(f"v_mfma_f32_16x16x32_bf16 {vr(acc(nt,1),4)}, {vr(WR+slot*4,4)}, {vr(xs+4,4)}, {vr(acc(nt,1),4)}")
            if nt % 2 == 0 and nt // 2 < len(lg):
                emit_group(lg[nt // 2])
        vm.wait(lambda t: t[0] == "W" and t[1] <= i + 2)
        a("s_barrier")
    stamp(a, 2)
    a(f"s_lshr_b32 s{sT}, s{sWave}, 2")
    a(f"v_lshlrev_b32 v{vT}, 4, v0")
    a(f"s_mul_i32 s{sT+1}, s{sWave}, 9216")
    a(f"v_add_u32 v{vT+1}, s{sT+1}, v{vT}")
    a(f"s_xor_b32 s{sT+2}, s{sWave}, 4")
    a(f"s_mul_i32 s{sT+2}, s{sT+2}, 9216")
    a(f"v_add_u32 v{vT+2}, s{sT+2}, v{vT}")
    a(f"s_cmp_eq_u32 s{sT}, 0")
    a("s_nop 4")
    a(f"s_cbranch_scc0 L_{name}_kh1")
    for kh in range(2):
        if kh == 1: a.lab(f"L_{name}_kh1")
        for nt in range(9):
            a(f"ds_write_b128 v{vT+1}, {vr(acc(nt,1-kh),4)} offset:{nt*1024}")
        a("s_waitcnt lgkmcnt(0)")
        a("s_barrier")
        for nt in range(9):
            a(f"ds_read_b128 {vr(XS+nt*4,4)}, v{vT+2} offset:{nt*1024}")
        for nt in range(9):
            a(f"s_waitcnt lgkmcnt({8-nt})")
            for r in range(4):
                a(f"v_add_f32 v{XS+nt*4+r}, v{XS+nt*4+r}, v{acc(nt,kh)+r}")
            if nt < 4:
                a(f"buffer_store_dwordx4 {vr(XS+nt*4,4)}, v{vT}, {sr(sP,4)}, s{sT+5} offen offset:{nt*1024}")
            else:
                if nt in (4, 8): a(f"s_add_u32 s{sT+5}, s{sT+5}, 4096")
                a(f"buffer_store_dwordx4 {vr(XS+nt*4,4)}, v{vT}, {sr(sP,4)}, s{sT+5} offen offset:{(nt%4)*1024}")
        stamp(a, 3)
        if "stamp" in OPT: a("s_waitcnt vmcnt(0)")
        stamp(a, 4); stamp(a, 6, True)
        stamp_dump(a, 7, 8, sWave, vT+4, 1)
        a("s_endpgm")
    a.lab(f"L_{name}_done")
    a("s_endpgm")
    return a.text(), kernel_desc(name, NV), f"; @launch kernel={name} grid=(256,1,1) block=(512,1,1) lds={NST*STG}"

def gen_k5(name="k5_kernel"):
    a = A()
    kernel_head(a, name)
    sH, sP, sO = 12, 16, 20
    a("s_cmp_ge_u32 s2, 576")
    a(f"s_cbranch_scc1 L_{name}_done")
    a("s_load_dwordx2 s[4:5], s[0:1], 56")
    a("s_load_dwordx2 s[8:9], s[0:1], 72")
    a("v_lshrrev_b32 v1, 6, v0")
    a("v_and_b32 v0, 63, v0")
    a("s_nop 0")
    a("v_readfirstlane_b32 s28, v1")
    a("s_lshl_b32 s29, s2, 2")
    a("s_add_u32 s29, s29, s28")
    a("s_mul_i32 s30, s29, 3641")
    a("s_lshr_b32 s30, s30, 16")
    a("s_mul_i32 s31, s30, 18")
    a("s_sub_u32 s31, s29, s31")
    a("s_waitcnt lgkmcnt(0)")
    srd(a, sH, 8, H1_SZ, H1_OFF)
    srd(a, sP, 8, P_SZ, P_OFF)
    srd(a, sO, 4, 2048*576*2)
    a("v_lshlrev_b32 v1, 4, v0")
    a("s_lshl_b32 s32, s29, 10")
    a("s_lshl_b32 s33, s29, 11")
    a(f"buffer_load_dwordx4 v[4:7], v1, {sr(sH,4)}, s32 offen")
    for k in range(4):
        a(f"buffer_load_dwordx4 v[{8+k*8}:{11+k*8}], v1, {sr(sP,4)}, s33 offen")
        a(f"buffer_load_dwordx4 v[{12+k*8}:{15+k*8}], v1, {sr(sP,4)}, s33 offen offset:1024")
        if k < 3: a(f"s_add_u32 s33, s33, {128*36*1024}")
    a("v_and_b32 v2, 15, v0")
    a("s_lshl_b32 s34, s30, 4")
    a("v_add_u32 v2, s34, v2")
    a("v_mul_u32_u24 v2, 1152, v2")
    a("v_lshrrev_b32 v3, 4, v0")
    a("v_lshl_add_u32 v2, v3, 3, v2")
    a("s_lshl_b32 s34, s31, 6")
    a("s_waitcnt vmcnt(0)")
    for i in range(8):
        a(f"v_add_f32 v{8+i}, v{8+i}, v{16+i}")
        a(f"v_add_f32 v{24+i}, v{24+i}, v{32+i}")
    for i in range(8):
        a(f"v_add_f32 v{8+i}, v{8+i}, v{24+i}")
    for p in range(4):
        a(f"v_cvt_pk_bf16_f32 v{16+p}, v{8+2*p}, v{9+2*p}")
    for p in range(4):
        a(f"v_lshlrev_b32 v{24+2*p}, 16, v{16+p}")
        a(f"v_and_b32 v{25+2*p}, 0xffff0000, v{16+p}")
        a(f"v_lshlrev_b32 v{32+2*p}, 16, v{4+p}")
        a(f"v_and_b32 v{33+2*p}, 0xffff0000, v{4+p}")
    for i in range(8):
        a(f"v_add_f32 v{24+i}, v{24+i}, v{32+i}")
    for p in range(4):
        a(f"v_cvt_pk_bf16_f32 v{16+p}, v{24+2*p}, v{25+2*p}")
    a(f"buffer_store_dwordx2 v[16:17], v2, {sr(sO,4)}, s34 offen")
    a(f"buffer_store_dwordx2 v[18:19], v2, {sr(sO,4)}, s34 offen offset:32")
    a.lab(f"L_{name}_done")
    a("s_endpgm")
    return a.text(), kernel_desc(name, 40, 48), f"; @launch kernel={name} grid=(576,1,1) block=(256,1,1) lds=0"


def gen_k2(name="k2_kernel"):
    a = A(); vm = VM(a)
    kernel_head(a, name)
    PITCH = 224; BLK = 32*PITCH
    ACC = 4
    OF = 28
    XR = 100
    WR = 112
    vD = 160
    vWa, vWb = 167, 168
    vT = 170
    NV = 188
    sW, sO, sXs, sH, sST = 12, 16, 20, 24, 28
    sWave, sRb, sNb, sT = 32, 33, 34, 36
    a("s_cmp_ge_u32 s2, 192")
    a(f"s_cbranch_scc1 L_{name}_done")
    stamp(a, 0); stamp(a, 5, True)
    a("s_load_dwordx2 s[4:5], s[0:1], 0")
    a("s_load_dwordx2 s[6:7], s[0:1], 16")
    a("s_load_dwordx2 s[8:9], s[0:1], 72")
    a("v_lshrrev_b32 v1, 6, v0")
    a("v_and_b32 v0, 63, v0")
    a("s_nop 0")
    a(f"v_readfirstlane_b32 s{sWave}, v1")
    a(f"s_lshr_b32 s{sT+1}, s2, 3")
    a(f"s_mul_i32 s{sRb}, s{sT+1}, 10923")
    a(f"s_lshr_b32 s{sRb}, s{sRb}, 16")
    a(f"s_mul_i32 s{sT}, s{sRb}, 6")
    a(f"s_sub_u32 s{sNb}, s{sT+1}, s{sT}")
    a(f"s_and_b32 s{sT}, s2, 7")
    a(f"s_lshl_b32 s{sT}, s{sT}, 2")
    a(f"s_add_u32 s{sRb}, s{sRb}, s{sT}")
    a("s_waitcnt lgkmcnt(0)")
    srd(a, sW, 6, 576*576*2)
    srd(a, sO, 8, O_SZ, O_OFF)
    srd(a, sXs, 4, 2048*576*2)
    srd(a, sH, 8, H1_SZ, H1_OFF)
    srd(a, sST, 8, ST_SZ, ST_OFF)
    a(f"s_mul_i32 s{sT}, s{sNb}, 192")
    a(f"s_mov_b32 s{sT+1}, 0x40000000")
    for t in range(7):
        a(f"v_add_u32 v{vT}, {t*64}, v0")
        a(f"v_mul_u32_u24 v{vT+1}, 4682, v{vT}")
        a(f"v_lshrrev_b32 v{vT+1}, 16, v{vT+1}")
        a(f"v_mul_u32_u24 v{vT+2}, 14, v{vT+1}")
        a(f"v_sub_u32 v{vT+2}, v{vT}, v{vT+2}")
        a(f"v_and_b32 v{vT+3}, 4, v{vT+1}")
        a(f"v_lshlrev_b32 v{vT+3}, 1, v{vT+3}")
        a(f"v_and_b32 v{vT+4}, 8, v{vT+1}")
        a(f"v_lshrrev_b32 v{vT+4}, 1, v{vT+4}")
        a(f"v_and_b32 v{vT+1}, 0x13, v{vT+1}")
        a(f"v_or3_b32 v{vT+1}, v{vT+1}, v{vT+3}, v{vT+4}")
        a(f"v_mul_u32_u24 v{vT+1}, 1152, v{vT+1}")
        a(f"v_lshl_add_u32 v{vT+1}, v{vT+2}, 4, v{vT+1}")
        a(f"v_add_u32 v{vT+1}, s{sT}, v{vT+1}")
        a(f"v_cmp_gt_u32 vcc, 12, v{vT+2}")
        a(f"v_mov_b32 v{vT+3}, s{sT+1}")
        a("s_nop 0")
        a(f"v_cndmask_b32 v{vD+t}, v{vT+3}, v{vT+1}, vcc")
    a(f"s_lshl_b32 s{sT}, s{sRb}, 6")
    a(f"s_lshl_b32 s{sT+1}, s{sWave}, 4")
    a(f"s_add_u32 s{sT}, s{sT}, s{sT+1}")
    a(f"v_and_b32 v{vT}, 15, v0")
    a(f"v_add_u32 v{vT}, s{sT}, v{vT}")
    a(f"v_mul_u32_u24 v{vT+1}, 1152, v{vT}")
    a(f"v_lshrrev_b32 v{vT+2}, 4, v0")
    a(f"v_lshl_add_u32 v{vT+3}, v{vT+2}, 4, v{vT+1}")
    a(f"v_lshl_add_u32 v{vT+4}, v{vT+2}, 3, v{vT+1}")
    a(f"s_mul_i32 s{sT+1}, s{sNb}, 192")
    a(f"s_mul_i32 s{sT+2}, s{sWave}, {32*1152}")
    a(f"s_mul_i32 s{sT+3}, s{sWave}, {BLK}")
    def chunk_ops(c):
        gs = []
        if c > 4: return gs
        for t in range(7):
            g = [("s", f"s_add_u32 m0, s{sT+3}, {c*4*BLK + t*1024}"), ("s", "s_nop 0"),
                 (("W", c), f"buffer_load_dwordx4 v{vD+t}, {sr(sW,4)}, s{sT+2} offen lds")]
            if t == 6: g.append(("s", f"s_add_u32 s{sT+2}, s{sT+2}, {4*32*1152}"))
            gs.append(g)
        for s_ in range(4*c, min(4*c+4, 18)):
            gs.append([(("O", c), f"buffer_load_dwordx4 {vr(OF+s_*4,4)}, v{vT+3}, {sr(sO,4)}, 0 offen offset:{s_*64}")])
        return gs
    def emit_group(g):
        for tg, txt in g:
            if tg == "s": a(txt)
            else: vm.op(tg, txt)
    for c in range(2):
        for g in chunk_ops(c): emit_group(g)
    a(f"v_lshrrev_b32 v{vT+5}, 5, v0")
    a(f"v_lshlrev_b32 v{vT+5}, 4, v{vT+5}")
    a(f"v_bfe_u32 v{vT+6}, v0, 2, 3")
    a(f"v_add_u32 v{vT+5}, v{vT+5}, v{vT+6}")
    a(f"v_mul_u32_u24 v{vT+5}, {PITCH}, v{vT+5}")
    a(f"v_and_b32 v{vT+6}, 3, v0")
    a(f"v_lshl_add_u32 v{vWa}, v{vT+6}, 3, v{vT+5}")
    a(f"v_add_u32 v{vWb}, {9*BLK}, v{vWa}")
    def wread(s_, buf):
        base = vWa if s_ < 9 else vWb
        for nt in range(6):
            off = (s_ % 9) * BLK + nt * 32
            a(f"ds_read_b64_tr_b16 {vr(WR+buf*24+nt*4,2)}, v{base} offset:{off}")
            a(f"ds_read_b64_tr_b16 {vr(WR+buf*24+nt*4+2,2)}, v{base} offset:{off+8*PITCH}")
    for c in range(5):
        vm.wait(lambda t: t[1] <= c)
        a("s_barrier")
        if c == 0: stamp(a, 1)
        lg = chunk_ops(c+2)
        if c == 2:
            for nt in range(6):
                lg.append([(("X", 9), f"buffer_load_dwordx2 {vr(XR+nt*2,2)}, v{vT+4}, {sr(sXs,4)}, s{sT+1} offen offset:{nt*32}")])
        gi = 0
        steps = list(range(4*c, min(4*c+4, 18)))
        wread(steps[0], steps[0] % 2)
        for s_ in steps:
            if s_ != steps[-1]:
                wread(s_+1, (s_+1) % 2)
                a("s_waitcnt lgkmcnt(12)")
            else:
                a("s_waitcnt lgkmcnt(0)")
            for nt in range(6):
                cc = vr(ACC+nt*4,4)
                a(f"v_mfma_f32_16x16x32_bf16 {cc}, {vr(WR+(s_%2)*24+nt*4,4)}, {vr(OF+s_*4,4)}, " + ("0" if s_ == 0 else cc))
                if gi < len(lg):
                    emit_group(lg[gi]); gi += 1
        assert gi == len(lg)
    a("s_waitcnt vmcnt(0)")
    a("s_nop 7")
    stamp(a, 2)
    HP = WR
    for nt in range(6):
        for p in range(2):
            c0 = ACC + nt*4 + 2*p
            a(f"v_cvt_pk_bf16_f32 v{vT}, v{c0}, v{c0+1}")
            a(f"v_lshlrev_b32 v{c0}, 16, v{vT}")
            a(f"v_and_b32 v{c0+1}, 0xffff0000, v{vT}")
            a(f"v_lshlrev_b32 v{vT+1}, 16, v{XR+nt*2+p}")
            a(f"v_and_b32 v{vT+2}, 0xffff0000, v{XR+nt*2+p}")
            a(f"v_add_f32 v{c0}, v{c0}, v{vT+1}")
            a(f"v_add_f32 v{c0+1}, v{c0+1}, v{vT+2}")
            a(f"v_cvt_pk_bf16_f32 v{HP+nt*2+p}, v{c0}, v{c0+1}")
            a(f"v_lshlrev_b32 v{c0}, 16, v{HP+nt*2+p}")
            a(f"v_and_b32 v{c0+1}, 0xffff0000, v{HP+nt*2+p}")
    a(f"s_lshl_b32 s{sT}, s{sRb}, 2")
    a(f"s_add_u32 s{sT}, s{sT}, s{sWave}")
    a(f"s_mul_i32 s{sT+1}, s{sT}, 18")
    a(f"s_mul_i32 s{sT+2}, s{sNb}, 3")
    a(f"s_add_u32 s{sT+1}, s{sT+1}, s{sT+2}")
    a(f"s_lshl_b32 s{sT+1}, s{sT+1}, 10")
    a(f"v_lshlrev_b32 v{vT}, 4, v0")
    for p in range(3):
        a(f"buffer_store_dwordx4 {vr(HP+p*4,4)}, v{vT}, {sr(sH,4)}, s{sT+1} offen offset:{p*1024}")
    def xreduce(v, t):
        a(f"v_xor_b32 v{t}, 16, v0")
        a(f"v_lshlrev_b32 v{t}, 2, v{t}")
        a(f"ds_bpermute_b32 v{t+1}, v{t}, v{v}")
        a("s_waitcnt lgkmcnt(0)")
        a(f"v_add_f32 v{v}, v{v}, v{t+1}")
        a(f"v_xor_b32 v{t}, 32, v0")
        a(f"v_lshlrev_b32 v{t}, 2, v{t}")
        a(f"ds_bpermute_b32 v{t+1}, v{t}, v{v}")
        a("s_waitcnt lgkmcnt(0)")
        a(f"v_add_f32 v{v}, v{v}, v{t+1}")
    S0, S1 = vT+4, vT+5
    a(f"v_add_f32 v{S0}, v{ACC}, v{ACC+1}")
    for i in range(2, 24):
        a(f"v_add_f32 v{S0}, v{S0}, v{ACC+i}")
    xreduce(S0, vT+6)
    a(f"v_mul_f32 v{S0}, {f32(1.0/96.0)}, v{S0}")
    a(f"v_mov_b32 v{S1}, 0")
    for i in range(24):
        a(f"v_sub_f32 v{vT+1}, v{ACC+i}, v{S0}")
        a(f"v_fmac_f32 v{S1}, v{vT+1}, v{vT+1}")
    xreduce(S1, vT+6)
    a(f"s_lshl_b32 s{sT}, s{sT}, 4")
    a(f"v_add_u32 v{vT}, s{sT}, v0")
    a(f"v_mul_u32_u24 v{vT}, 48, v{vT}")
    a(f"s_lshl_b32 s{sT+1}, s{sNb}, 3")
    a("s_mov_b64 exec, 0xffff")
    a(f"buffer_store_dwordx2 {vr(S0,2)}, v{vT}, {sr(sST,4)}, s{sT+1} offen")
    stamp(a, 3)
    if "stamp" in OPT: a("s_waitcnt vmcnt(0)")
    stamp(a, 4); stamp(a, 6, True)
    stamp_dump(a, 7, 8, sWave, vT+8, 2)
    a.lab(f"L_{name}_done")
    a("s_endpgm")
    return a.text(), kernel_desc(name, NV, 96), f"; @launch kernel={name} grid=(192,1,1) block=(256,1,1) lds={20*BLK}"

def gen_k1(name="k1_kernel"):
    a = A(); vm = VM(a)
    kernel_head(a, name)
    XT = 0
    WB = 92160; STG = 16384; NST = 4; PITCH = 480
    QP = 624
    ACC = 4
    XF = 44
    WF = 84
    RAW = 100
    vD0, vD1 = 150, 151
    vWa, vXa = 152, 153
    vT = 156
    NV = 200
    sW, sXs, sO = 12, 16, 20
    sWave, sRb, sHg, sT = 28, 29, 30, 36
    sWo, sM0b = 31, 32
    a("s_cmp_ge_u32 s2, 256")
    a(f"s_cbranch_scc1 L_{name}_done")
    stamp(a, 0); stamp(a, 5, True)
    a("s_load_dwordx4 s[4:7], s[0:1], 0")
    a("s_load_dwordx2 s[8:9], s[0:1], 72")
    a("v_lshrrev_b32 v1, 6, v0")
    a("v_mov_b32 v3, v0")
    a("v_and_b32 v0, 63, v0")
    a(f"v_readfirstlane_b32 s{sWave}, v1")
    a(f"s_lshr_b32 s{sT}, s2, 3")
    a(f"s_and_b32 s{sHg}, s{sT}, 3")
    a(f"s_and_b32 s{sT+1}, s2, 1")
    a(f"s_lshl_b32 s{sT+1}, s{sT+1}, 2")
    a(f"s_add_u32 s{sHg}, s{sHg}, s{sT+1}")
    a(f"s_lshr_b32 s{sRb}, s{sT}, 2")
    a(f"s_bfe_u32 s{sT+1}, s2, 0x20001")
    a(f"s_lshl_b32 s{sT+1}, s{sT+1}, 3")
    a(f"s_add_u32 s{sRb}, s{sRb}, s{sT+1}")
    a("s_waitcnt lgkmcnt(0)")
    srd(a, sW, 6, 576*1728*2)
    srd(a, sXs, 4, 2048*576*2)
    srd(a, sO, 8, O_SZ, O_OFF)
    a(f"v_mul_u32_u24 v{vT}, 10923, v0")
    a(f"v_lshrrev_b32 v{vT}, 16, v{vT}")
    a(f"v_mul_u32_u24 v{vT+1}, 6, v{vT}")
    a(f"v_sub_u32 v{vT+1}, v0, v{vT+1}")
    a(f"s_mul_i32 s{sT}, s{sWave}, 10")
    a(f"v_add_u32 v{vT+2}, s{sT}, v{vT}")
    a(f"s_lshl_b32 s{sT+1}, s{sRb}, 6")
    a(f"s_sub_u32 s{sT+1}, s{sT+1}, 16")
    a(f"v_add_u32 v{vT+3}, s{sT+1}, v{vT+2}")
    a(f"s_movk_i32 s{sT+2}, 1152")
    a(f"v_mul_lo_u32 v{vT+3}, v{vT+3}, s{sT+2}")
    a(f"v_lshl_add_u32 v{vT+3}, v{vT+1}, 4, v{vT+3}")
    for i in range(12):
        vm.op(("x", i), f"buffer_load_dwordx4 {vr(RAW+i*4,4)}, v{vT+3}, {sr(sXs,4)}, 0 offen offset:{i*96}")
    a(f"s_lshl_b32 s{sT}, s{sWave}, 7")
    a(f"s_mul_i32 s{sT+1}, s{sHg}, 144")
    a(f"s_mov_b32 s{sT+2}, 0x40000000")
    for t, vd in enumerate((vD0, vD1)):
        a(f"v_add_u32 v{vT+4}, s{sT}, v0")
        if t: a(f"v_add_u32 v{vT+4}, 64, v{vT+4}")
        a(f"v_mul_u32_u24 v{vT+5}, 2185, v{vT+4}")
        a(f"v_lshrrev_b32 v{vT+5}, 16, v{vT+5}")
        a(f"v_mul_u32_u24 v{vT+6}, 30, v{vT+5}")
        a(f"v_sub_u32 v{vT+6}, v{vT+4}, v{vT+6}")
        a(f"v_mul_u32_u24 v{vT+7}, 7282, v{vT+6}")
        a(f"v_lshrrev_b32 v{vT+7}, 16, v{vT+7}")
        a(f"v_mul_u32_u24 v{vT+8}, 9, v{vT+7}")
        a(f"v_sub_u32 v{vT+8}, v{vT+6}, v{vT+8}")
        a(f"v_mul_u32_u24 v{vT+7}, 1152, v{vT+7}")
        a(f"v_lshl_add_u32 v{vT+7}, v{vT+8}, 4, v{vT+7}")
        a(f"v_and_b32 v{vT+8}, 4, v{vT+5}")
        a(f"v_lshlrev_b32 v{vT+8}, 1, v{vT+8}")
        a(f"v_and_b32 v{vT+9}, 8, v{vT+5}")
        a(f"v_lshrrev_b32 v{vT+9}, 1, v{vT+9}")
        a(f"v_and_b32 v{vT+10}, 0x13, v{vT+5}")
        a(f"v_or3_b32 v{vT+8}, v{vT+8}, v{vT+9}, v{vT+10}")
        a(f"v_mul_u32_u24 v{vT+8}, 3456, v{vT+8}")
        a(f"v_add3_u32 v{vT+7}, v{vT+7}, v{vT+8}, s{sT+1}")
        a(f"v_cmp_gt_u32 vcc, 27, v{vT+6}")
        a(f"v_cmp_gt_u32 s[{sT+4}:{sT+5}], 32, v{vT+5}")
        a(f"s_and_b64 vcc, vcc, s[{sT+4}:{sT+5}]")
        a(f"v_mov_b32 v{vT+8}, s{sT+2}")
        a("s_nop 1")
        a(f"v_cndmask_b32 v{vd}, v{vT+8}, v{vT+7}, vcc")
    a(f"s_lshl_b32 s{sM0b}, s{sWave}, 11")
    a(f"s_add_u32 s{sM0b}, s{sM0b}, {WB}")
    def wdma(i):
        if i >= 18: return
        st = i % NST
        a(f"s_mov_b32 s{sWo}, {i*32*3456}")
        for t, vd in enumerate((vD0, vD1)):
            a(f"s_add_u32 m0, s{sM0b}, {st*STG + t*1024}")
            a("s_nop 0")
            vm.op(("W", i), f"buffer_load_dwordx4 v{vd}, {sr(sW,4)}, s{sWo} offen lds")
    for i in range(4): wdma(i)
    ONES_LO, ONES_HI, ONES = sT+6, sT+7, sT+8
    a(f"s_mov_b32 s{ONES}, 0x3f803f80")
    S, M, Q = vT+4, vT+5, vT+6
    B3, B1, B2 = vT+8, vT+9, vT+10
    for d_, vb in ((3, B3), (1, B1), (2, B2)):
        a(f"v_add_u32 v{vb}, {d_}, v{vT+1}")
        a(f"v_subrev_u32 v{vT+11}, 6, v{vb}")
        a(f"v_min_u32 v{vb}, v{vb}, v{vT+11}")
        a(f"v_mad_u32_u24 v{vb}, v{vT}, 6, v{vb}")
        a(f"v_lshlrev_b32 v{vb}, 2, v{vb}")
    def reduce6(v):
        a(f"ds_bpermute_b32 v{vT+11}, v{B3}, v{v}")
        a("s_waitcnt lgkmcnt(0)")
        a(f"v_add_f32 v{v}, v{v}, v{vT+11}")
        a(f"ds_bpermute_b32 v{vT+11}, v{B1}, v{v}")
        a(f"ds_bpermute_b32 v{vT+12}, v{B2}, v{v}")
        a("s_waitcnt lgkmcnt(0)")
        a(f"v_add_f32 v{v}, v{v}, v{vT+11}")
        a(f"v_add_f32 v{v}, v{v}, v{vT+12}")
    vm.wait(lambda t: t[0] == "x")
    stamp(a, 1)
    if "wtest" in OPT:
        a("s_waitcnt vmcnt(6)")
        stamp(a, 2)
        a("s_waitcnt vmcnt(0)")
        stamp(a, 3)
        stamp(a, 4)
        OPT.discard("stamp"); OPT.add("stamp_off")
    a(f"v_mov_b32 v{S}, 0")
    a(f"v_mov_b32 v{Q}, 0")
    for i in range(48):
        a(f"v_dot2_f32_bf16 v{S if i%2==0 else Q}, v{RAW+i}, s{ONES}, v{S if i%2==0 else Q}")
    a("s_nop 2")
    a(f"v_add_f32 v{S}, v{S}, v{Q}")
    reduce6(S)
    a(f"v_mul_f32 v{S}, {f32(1.0/576.0)}, v{S}")
    round_bf16(a, M, S)
    PM, PQ = 172, 174
    a(f"v_sub_f32 v{PM}, 0, v{M}")
    a(f"v_mov_b32 v{PM+1}, v{PM}")
    a(f"v_mov_b64 {vr(PQ,2)}, 0")
    a(f"v_mov_b64 {vr(PQ+2,2)}, 0")
    for i in range(48):
        t = 178 + (i % 4) * 2
        q = PQ + (i % 2) * 2
        a(f"v_lshlrev_b32 v{t}, 16, v{RAW+i}")
        a(f"v_and_b32 v{t+1}, 0xffff0000, v{RAW+i}")
        a(f"v_pk_add_f32 {vr(t,2)}, {vr(t,2)}, {vr(PM,2)}")
        a(f"v_pk_fma_f32 {vr(q,2)}, {vr(t,2)}, {vr(t,2)}, {vr(q,2)}")
        a(f"v_cvt_pk_bf16_f32 v{RAW+i}, v{t}, v{t+1}")
    a(f"v_add_f32 v{Q}, v{PQ}, v{PQ+1}")
    a(f"v_add_f32 v{vT+13}, v{PQ+2}, v{PQ+3}")
    a(f"v_add_f32 v{Q}, v{Q}, v{vT+13}")
    reduce6(Q)
    a(f"v_mul_f32 v{Q}, {f32(1.0/576.0)}, v{Q}")
    a(f"v_sub_f32 v{vT+13}, v{S}, v{M}")
    a(f"v_fma_f32 v{Q}, -v{vT+13}, v{vT+13}, v{Q}")
    a(f"v_max_f32 v{Q}, 0, v{Q}")
    round_bf16(a, Q, Q)
    a(f"v_add_f32 v{Q}, {f32(1e-5)}, v{Q}")
    round_bf16(a, Q, Q)
    a(f"v_sqrt_f32 v{Q}, v{Q}")
    a("s_nop 0")
    round_bf16(a, Q, Q)
    a(f"v_rcp_f32 v{PM}, v{Q}")
    a(f"v_lshrrev_b32 v{vT+11}, 4, v{vT+2}")
    a(f"v_mov_b32 v{PM+1}, v{PM}")
    a(f"v_mul_u32_u24 v{vT+11}, 18432, v{vT+11}")
    a(f"v_and_b32 v{vT+12}, 15, v{vT+2}")
    a(f"v_lshl_add_u32 v{vT+11}, v{vT+12}, 4, v{vT+11}")
    a(f"v_lshl_add_u32 v{vT+14}, v{vT+1}, 8, v{vT+11}")
    a(f"v_cmp_gt_u32 vcc, 60, v0")
    a(f"s_and_saveexec_b64 s[{sT+4}:{sT+5}], vcc")
    for i in range(12):
        for d_ in range(4):
            x = RAW + i*4 + d_
            t = 178 + d_ * 2
            a(f"v_lshlrev_b32 v{t}, 16, v{x}")
            a(f"v_and_b32 v{t+1}, 0xffff0000, v{x}")
            a(f"v_pk_mul_f32 {vr(t,2)}, {vr(t,2)}, {vr(PM,2)}")
            a(f"v_cvt_pk_bf16_f32 v{x}, v{t}, v{t+1}")
        a(f"ds_write_b128 v{vT+14}, {vr(RAW+i*4,4)} offset:{XT + i*6*256}")
    a(f"s_mov_b64 exec, s[{sT+4}:{sT+5}]")
    stamp(a, 2)
    a(f"v_lshrrev_b32 v{vT+5}, 5, v0")
    a(f"v_lshlrev_b32 v{vT+5}, 4, v{vT+5}")
    a(f"v_bfe_u32 v{vT+6}, v0, 2, 3")
    a(f"v_add_u32 v{vT+5}, v{vT+5}, v{vT+6}")
    a(f"v_mul_u32_u24 v{vT+5}, {PITCH}, v{vT+5}")
    a(f"v_and_b32 v{vT+6}, 3, v0")
    a(f"v_lshl_add_u32 v{vWa}, v{vT+6}, 3, v{vT+5}")
    a(f"s_lshl_b32 s{sT}, s{sWave}, 6")
    a(f"s_add_u32 s{sT}, s{sT}, {WB}")
    a(f"v_add_u32 v{vWa}, s{sT}, v{vWa}")
    a(f"v_lshlrev_b32 v{vXa}, 4, v0")
    for i in range(0, 40, 2):
        a(f"v_mov_b64 {vr(ACC+i,2)}, 0")
    vm.wait(lambda t: t[0] == "W" and t[1] <= 1, " lgkmcnt(0)")
    a("s_barrier")
    def reads(i):
        b = i % 2; st = i % NST
        for n in range(2):
            a(f"ds_read_b64_tr_b16 {vr(WF+b*8+n*4,2)}, v{vWa} offset:{st*STG + n*32}")
            a(f"ds_read_b64_tr_b16 {vr(WF+b*8+n*4+2,2)}, v{vWa} offset:{st*STG + n*32 + 8*PITCH}")
        for mt in range(5):
            off = (mt*18 + i)*1024
            if off < 65536:
                a(f"ds_read_b128 {vr(XF+b*20+mt*4,4)}, v{vXa} offset:{off}")
            else:
                a(f"ds_read_b128 {vr(XF+b*20+mt*4,4)}, v{vT} offset:{off-65536}")
    a(f"v_add_u32 v{vT}, 65536, v{vXa}")
    stamp(a, 3)
    reads(0)
    for i in range(18):
        if i < 17:
            reads(i+1)
            a("s_waitcnt lgkmcnt(9)")
        else:
            a("s_waitcnt lgkmcnt(0)")
        b = i % 2
        k = 0
        for mt in range(5):
            for n in range(2):
                a(f"v_mfma_f32_16x16x32_bf16 {vr(ACC+(mt*2+n)*4,4)}, {vr(WF+b*8+n*4,4)}, {vr(XF+b*20+mt*4,4)}, {vr(ACC+(mt*2+n)*4,4)}")
                k += 1
                if k == 2 and i >= 1:
                    wdma(i+3)
        if i < 17:
            vm.wait(lambda t: t[0] == "W" and t[1] <= i+2)
            a("s_barrier")
    a("s_barrier")
    stamp(a, 4)
    a(f"v_lshrrev_b32 v{vT}, 4, v0")
    a(f"v_lshlrev_b32 v{vT}, 2, v{vT}")
    a(f"s_lshl_b32 s{sT}, s{sWave}, 5")
    a(f"v_add_u32 v{vT}, s{sT}, v{vT}")
    a(f"v_and_b32 v{vT+1}, 15, v0")
    a(f"v_mul_u32_u24 v{vT+1}, {QP}, v{vT+1}")
    AD = vT + 4
    for n in range(2):
        for p in range(2):
            ad = AD + n*2 + p
            a(f"v_add_u32 v{vT+2}, {n*16+p*2}, v{vT}")
            a(f"v_mul_u32_u24 v{vT+3}, 3641, v{vT+2}")
            a(f"v_lshrrev_b32 v{vT+3}, 16, v{vT+3}")
            a(f"v_mul_u32_u24 v{ad}, 18, v{vT+3}")
            a(f"v_sub_u32 v{ad}, v{vT+2}, v{ad}")
            a(f"v_lshl_add_u32 v{ad}, v{ad}, 1, v{vT+1}")
            a(f"v_mad_u32_u24 v{ad}, v{vT+3}, 48, v{ad}")
    a(f"s_cmp_ge_u32 s{sWave}, 7")
    a("s_nop 4")
    a(f"s_cbranch_scc1 L_{name}_skipq")
    for mt in range(5):
        for n in range(2):
            c = ACC + (mt*2+n)*4
            a(f"v_cvt_pk_bf16_f32 v{vT+8}, v{c}, v{c+1}")
            a(f"v_cvt_pk_bf16_f32 v{vT+9}, v{c+2}, v{c+3}")
            a(f"ds_write_b32 v{AD+n*2}, v{vT+8} offset:{mt*16*QP}")
            a(f"ds_write_b32 v{AD+n*2+1}, v{vT+9} offset:{mt*16*QP}")
    a.lab(f"L_{name}_skipq")
    a("s_waitcnt lgkmcnt(0)")
    a("s_barrier")
    if "dbg1" in OPT:
        lds_dump(a, 57344, 9, 3, 190, 210, tag="q")
    a(f"s_cmp_ge_u32 s{sWave}, 4")
    a(f"s_cbranch_scc1 L_{name}_done")
    QR = 4; KR = 16; LG = 120; OA = 130; VR_ = 16
    a(f"v_lshrrev_b32 v{vT}, 2, v3")
    a(f"v_and_b32 v{vT+1}, 3, v3")
    a(f"v_add_u32 v{vT+2}, 2, v{vT}")
    a(f"v_mul_u32_u24 v{vT+2}, {QP}, v{vT+2}")
    a(f"v_mad_u32_u24 v{vT+2}, v{vT+1}, 48, v{vT+2}")
    for j in range(3):
        a(f"ds_read_b128 {vr(QR+j*4,4)}, v{vT+2} offset:{14*QP + j*16}")
    for w in range(8):
        for j in range(3):
            a(f"ds_read_b128 {vr(KR+w*12+j*4,4)}, v{vT+2} offset:{(14-2*w)*QP + 192 + j*16}")
    a(f"s_lshl_b32 s{sT}, s{sRb}, 6")
    a(f"v_add_u32 v{vT+3}, s{sT}, v{vT}")
    a(f"s_mov_b32 s{sT+1}, {f32(18.0**-0.5)}")
    a(f"s_mov_b32 s{sT+2}, {f32(-1e9)}")
    a(f"v_cvt_pk_bf16_f32 v{vT+4}, s{sT+2}, s{sT+2}")
    a(f"v_lshlrev_b32 v{vT+4}, 16, v{vT+4}")
    for w in range(8):
        a(f"s_waitcnt lgkmcnt({min(15, (7-w)*3)})")
        a(f"v_mov_b32 v{LG+w}, 0")
        for d_ in range(9):
            a(f"v_dot2_f32_bf16 v{LG+w}, v{QR+d_}, v{KR+w*12+d_}, v{LG+w}")
        a("s_nop 2")
        round_bf16(a, LG+w, LG+w)
        a(f"v_mul_f32 v{LG+w}, s{sT+1}, v{LG+w}")
        round_bf16(a, LG+w, LG+w)
        a(f"v_cmp_le_u32 vcc, {2*w}, v{vT+3}")
        a("s_nop 1")
        a(f"v_cndmask_b32 v{LG+w}, v{vT+4}, v{LG+w}, vcc")
    for w in range(8):
        for j in range(3):
            a(f"ds_read_b128 {vr(VR_+w*12+j*4,4)}, v{vT+2} offset:{(14-2*w)*QP + 384 + j*16}")
    a(f"v_max3_f32 v{vT+5}, v{LG}, v{LG+1}, v{LG+2}")
    a(f"v_max3_f32 v{vT+5}, v{vT+5}, v{LG+3}, v{LG+4}")
    a(f"v_max3_f32 v{vT+5}, v{vT+5}, v{LG+5}, v{LG+6}")
    a(f"v_max_f32 v{vT+5}, v{vT+5}, v{LG+7}")
    a(f"s_mov_b32 s{sT+3}, {f32(math.log2(math.e))}")
    for w in range(8):
        a(f"v_sub_f32 v{LG+w}, v{LG+w}, v{vT+5}")
        a(f"v_mul_f32 v{LG+w}, s{sT+3}, v{LG+w}")
        a(f"v_exp_f32 v{LG+w}, v{LG+w}")
    a("s_nop 0")
    a(f"v_add_f32 v{vT+6}, v{LG}, v{LG+1}")
    for w in range(2, 8):
        a(f"v_add_f32 v{vT+6}, v{vT+6}, v{LG+w}")
    a(f"v_rcp_f32 v{vT+6}, v{vT+6}")
    a("s_nop 0")
    for w in range(8):
        a(f"v_mul_f32 v{LG+w}, v{LG+w}, v{vT+6}")
    for wp in range(4):
        a(f"v_cvt_pk_bf16_f32 v{LG+wp}, v{LG+2*wp}, v{LG+2*wp+1}")
    for d_ in range(18):
        a(f"v_mov_b32 v{OA+d_}, 0")
    a(f"s_mov_b32 s{sT+4}, 0x05040100")
    a(f"s_mov_b32 s{sT+5}, 0x07060302")
    for wp in range(4):
        a(f"s_waitcnt lgkmcnt({min(15, (3-wp)*6)})")
        for d_ in range(9):
            x0 = VR_ + (2*wp)*12 + d_; x1 = VR_ + (2*wp+1)*12 + d_
            t = vT + 8 + (d_ % 2) * 2
            a(f"v_perm_b32 v{t}, v{x1}, v{x0}, s{sT+4}")
            a(f"v_perm_b32 v{t+1}, v{x1}, v{x0}, s{sT+5}")
            a(f"v_dot2_f32_bf16 v{OA+2*d_}, v{t}, v{LG+wp}, v{OA+2*d_}")
            a(f"v_dot2_f32_bf16 v{OA+2*d_+1}, v{t+1}, v{LG+wp}, v{OA+2*d_+1}")
    a("s_nop 2")
    for d_ in range(9):
        a(f"v_cvt_pk_bf16_f32 v{QR+d_}, v{OA+2*d_}, v{OA+2*d_+1}")
    a(f"v_mul_u32_u24 v{vT+3}, 1152, v{vT+3}")
    a(f"v_mad_u32_u24 v{vT+3}, v{vT+1}, 36, v{vT+3}")
    a(f"s_mul_i32 s{sT}, s{sHg}, 144")
    a(f"buffer_store_dwordx4 {vr(QR,4)}, v{vT+3}, {sr(sO,4)}, s{sT} offen")
    a(f"buffer_store_dwordx4 {vr(QR+4,4)}, v{vT+3}, {sr(sO,4)}, s{sT} offen offset:16")
    a(f"buffer_store_dword v{QR+8}, v{vT+3}, {sr(sO,4)}, s{sT} offen offset:32")
    if "stamp_off" in OPT: OPT.add("stamp")
    if "stamp" in OPT: a("s_waitcnt vmcnt(0)")
    stamp(a, 6, True)
    stamp_dump(a, 7, 8, sWave, vT+8, 3)
    a.lab(f"L_{name}_done")
    a("s_endpgm")
    return a.text(), kernel_desc(name, NV, 96), f"; @launch kernel={name} grid=(256,1,1) block=(512,1,1) lds={WB + NST*STG}"


def dma_slots_setup(a, sWave, sT, vT, vD, rowbytes, sM0, upshift, extra_s=None):
    a(f"s_lshl_b32 s{sT}, s{sWave}, 6")
    a(f"s_sub_u32 s{sT+1}, s{sT}, 64")
    a(f"s_cmp_eq_u32 s{sWave}, 0")
    a(f"s_cselect_b32 s{sT+1}, 512, s{sT+1}")
    a(f"s_cselect_b32 s{sT+3}, 0, {upshift}")
    a(f"s_add_u32 s{sT+2}, s{sT}, 448")
    a(f"s_lshl_b32 s{sM0}, s{sWave}, 10")
    a(f"s_add_u32 s{sM0+1}, s{sM0}, 8192")
    a(f"s_add_u32 s{sM0+1}, s{sM0+1}, s{sT+3}")
    a(f"s_add_u32 s{sM0+2}, s{sM0}, {16384+upshift}")
    for k in range(3):
        a(f"v_add_u32 v{vT+1}, s{sT+k}, v0")
        a(f"v_mul_u32_u24 v{vT+2}, 3641, v{vT+1}")
        a(f"v_lshrrev_b32 v{vT+8+k}, 16, v{vT+2}")
        a(f"v_mul_u32_u24 v{vT+3}, 18, v{vT+8+k}")
        a(f"v_sub_u32 v{vT+3}, v{vT+1}, v{vT+3}")
        a(f"v_mul_u32_u24 v{vT+2}, {rowbytes}, v{vT+8+k}")
        a(f"v_lshl_add_u32 v{vD+k}, v{vT+3}, 4, v{vT+2}")

def gen_k3v2(name="k3_kernel"):
    a = A(); a.k3 = True; a.stpol = os.environ.get("K3ST", "nt")
    kernel_head(a, name)
    NST = 6; STG = 18560; UP = 9344; RING = 6; PF = RING - 1
    ACC = 4; XS = 148; WR = 196
    vWa, vWb = 220, 221
    vD = 222
    vX0 = 225
    vNM, vR = 226, 227
    vT = 228
    NV = 244
    def acc(nt): return ACC + nt*16
    sWa, sWb_, sWc, sX, sST, sH = 12, 16, 20, 24, 28, 32
    sWave, sFb, sMb = 36, 37, 38
    sWoff, sXoff, sIt = 39, 40, 41
    sM0 = 42
    sT = 46
    sRot, sCnt, sHb = 56, 57, 58
    a("s_cmp_ge_u32 s2, 256")
    a(f"s_cbranch_scc1 L_{name}_done")
    stamp(a, 0); stamp(a, 5, True)
    a("s_load_dwordx4 s[4:7], s[0:1], 32")
    a("s_load_dwordx2 s[8:9], s[0:1], 72")
    a("v_lshrrev_b32 v1, 6, v0")
    a("v_and_b32 v0, 63, v0")
    a("s_nop 0")
    a(f"v_readfirstlane_b32 s{sWave}, v1")
    a(f"s_and_b32 s{sT}, s2, 7")
    a(f"s_lshr_b32 s{sT+1}, s2, 3")
    a(f"s_and_b32 s{sFb}, s{sT+1}, 3")
    a(f"s_lshl_b32 s{sT}, s{sT}, 2")
    a(f"s_add_u32 s{sFb}, s{sFb}, s{sT}")
    a(f"s_lshr_b32 s{sMb}, s{sT+1}, 2")
    dma_slots_setup(a, sWave, sT, vT, vD, 9216, sM0, 128)
    a(f"s_mul_i32 s{sT}, s{sFb}, 288")
    for k in range(3):
        a(f"v_add_u32 v{vD+k}, s{sT}, v{vD+k}")
    a(f"s_lshl_b32 s{sT}, s{sMb}, 4")
    a(f"s_lshl_b32 s{sT+1}, s{sWave}, 1")
    a(f"s_add_u32 s{sT}, s{sT}, s{sT+1}")
    a(f"s_mul_i32 s{sT+1}, s{sT}, 18432")
    a(f"v_bfe_u32 v{vT}, v0, 4, 1")
    a(f"v_mul_u32_u24 v{vT}, 18432, v{vT}")
    a(f"v_lshrrev_b32 v{vT+1}, 5, v0")
    a(f"v_lshl_add_u32 v{vT}, v{vT+1}, 8, v{vT}")
    a(f"v_and_b32 v{vT+1}, 15, v0")
    a(f"v_lshl_add_u32 v{vT}, v{vT+1}, 4, v{vT}")
    a(f"v_add_u32 v{vX0}, s{sT+1}, v{vT}")
    a(f"s_mul_i32 s{sHb}, s{sT}, 144")
    a(f"s_lshr_b32 s{sT+1}, s{sFb}, 1")
    a(f"s_mul_i32 s{sT+1}, s{sT+1}, 9")
    a(f"s_add_u32 s{sHb}, s{sHb}, s{sT+1}")
    a(f"s_lshl_b32 s{sHb}, s{sHb}, 10")
    a(f"s_lshl_b32 s{sT}, s{sT}, 4")
    a(f"v_and_b32 v{vT+4}, 31, v0")
    a(f"v_add_u32 v{vT+4}, s{sT}, v{vT+4}")
    a(f"v_mul_u32_u24 v{vT+4}, 48, v{vT+4}")
    a(f"v_bfe_u32 v{vT}, v0, 4, 1")
    a(f"v_mul_u32_u24 v{vT}, {UP}, v{vT}")
    a(f"v_lshrrev_b32 v{vT+1}, 5, v0")
    a(f"v_bfe_u32 v{vT+2}, v0, 2, 2")
    a(f"v_lshl_add_u32 v{vT+1}, v{vT+1}, 2, v{vT+2}")
    a(f"v_mad_u32_u24 v{vT}, v{vT+1}, 288, v{vT}") if False else None
    a(f"v_mul_u32_u24 v{vT+1}, 288, v{vT+1}")
    a(f"v_add_u32 v{vT}, v{vT}, v{vT+1}")
    a(f"v_and_b32 v{vT+2}, 3, v0")
    a(f"v_lshl_add_u32 v{vWa}, v{vT+2}, 3, v{vT}")
    a(f"v_add_u32 v{vWb}, {3*STG}, v{vWa}")
    if "rot" in OPT:
        a(f"s_mul_i32 s{sRot}, s{sMb}, 9")
        a(f"s_and_b32 s{sT}, s{sFb}, 3")
        a(f"s_mul_i32 s{sT}, s{sT}, 18")
        a(f"s_add_u32 s{sRot}, s{sRot}, s{sT}")
        a(f"s_lshr_b32 s{sRot}, s{sRot}, 2")
        a(f"s_sub_u32 s{sT}, s{sRot}, 18")
        a(f"s_cmp_ge_u32 s{sRot}, 18")
        a(f"s_cselect_b32 s{sRot}, s{sT}, s{sRot}")
    else:
        a(f"s_mov_b32 s{sRot}, 0")
    a(f"s_mov_b32 s{sCnt}, 0")
    a(f"s_mul_i32 s{sWoff}, s{sRot}, {32*9216}")
    a(f"s_lshl_b32 s{sXoff}, s{sRot}, 10")
    a("s_waitcnt lgkmcnt(0)")
    if "pstamp" in OPT: stamp(a, 1)
    srd(a, sWa, 4, 576*4608*2)
    srd(a, sWc, 6, 576*4608*2)
    a(f"s_cmp_eq_u32 s{sWave}, 0")
    a(f"s_cselect_b32 s{sT}, s4, s6")
    a(f"s_cselect_b32 s{sT+1}, s5, s7")
    srd(a, sWb_, sT, 576*4608*2)
    srd(a, sX, 8, H1_SZ, H1_OFF)
    srd(a, sST, 8, ST_SZ, ST_OFF)
    srd(a, sH, 8, HH_SZ, HH_OFF)
    for q in range(3):
        a(f"buffer_load_dwordx4 {vr(WR+q*4,4)}, v{vT+4}, {sr(sST,4)}, 0 offen offset:{q*16}")
    a(f"s_cmp_ge_u32 s{sWave}, 2")
    a(f"s_cbranch_scc1 L_{name}_typeB")

    M16 = "m16" in OPT
    def body(nd, tag):
        vm = VM(a)
        vm.ops = [("S", 0)] * 3
        srds = (sWa, sWb_, sWc)
        def load_groups(i):
            if i >= 18: return []
            st = i % NST
            gs = []
            for k in range(nd):
                gs.append([("s", f"s_add_u32 m0, s{sM0+k}, {st*STG}"), ("s", "s_nop 0"),
                           (("W", i), f"buffer_load_dwordx4 v{vD+k}, {sr(srds[k],4)}, s{sWoff} offen lds")])
            gs.append([(("X", i), f"buffer_load_dwordx4 {vr(XS+st*8,4)}, v{vX0}, {sr(sX,4)}, s{sXoff} offen")])
            gs.append([(("X", i), f"buffer_load_dwordx4 {vr(XS+st*8+4,4)}, v{vX0}, {sr(sX,4)}, s{sXoff} offen offset:512"),
                       ("s", f"s_add_u32 s{sRot}, s{sRot}, 1"),
                       ("s", f"s_cmp_eq_u32 s{sRot}, {4 if 'hot4' in OPT else 18}"),
                       ("s", f"s_cselect_b32 s{sRot}, 0, s{sRot}"),
                       ("s", f"s_mul_i32 s{sWoff}, s{sRot}, {32*9216}"),
                       ("s", f"s_lshl_b32 s{sXoff}, s{sRot}, 10")])
            return gs
        def emit_group(g):
            for tg, txt in g:
                if tg == "s": a(txt)
                else: vm.op(tg, txt)
        for i in range(2):
            for g in load_groups(i): emit_group(g)
        vm.wait(lambda t: t[0] == "S")
        b = WR
        a(f"v_add_f32 v{vT}, v{b}, v{b+2}")
        a(f"v_add_f32 v{vT+1}, v{b+4}, v{b+6}")
        a(f"v_add_f32 v{vT+2}, v{b+8}, v{b+10}")
        a(f"v_add_f32 v{vT}, v{vT}, v{vT+1}")
        a(f"v_add_f32 v{vT}, v{vT}, v{vT+2}")
        a(f"v_mul_f32 v{vT}, {f32(1.0/6.0)}, v{vT}")
        a(f"v_add_f32 v{vT+1}, v{b+1}, v{b+3}")
        a(f"v_add_f32 v{vT+2}, v{b+5}, v{b+7}")
        a(f"v_add_f32 v{vT+3}, v{b+9}, v{b+11}")
        a(f"v_add_f32 v{vT+1}, v{vT+1}, v{vT+2}")
        a(f"v_add_f32 v{vT+1}, v{vT+1}, v{vT+3}")
        a(f"v_mov_b32 v{vT+2}, 0")
        for t in range(6):
            a(f"v_sub_f32 v{vT+3}, v{b+2*t}, v{vT}")
            a(f"v_fmac_f32 v{vT+2}, v{vT+3}, v{vT+3}")
        a(f"v_fmac_f32 v{vT+1}, {f32(96.0)}, v{vT+2}")
        a(f"v_mul_f32 v{vT+1}, {f32(1.0/576.0)}, v{vT+1}")
        round_bf16(a, vNM, vT)
        round_bf16(a, vT+1, vT+1)
        a(f"v_add_f32 v{vT+1}, {f32(1e-5)}, v{vT+1}")
        round_bf16(a, vT+1, vT+1)
        a(f"v_sqrt_f32 v{vT+1}, v{vT+1}")
        a("s_nop 0")
        round_bf16(a, vT+1, vT+1)
        a(f"v_rcp_f32 v{vR}, v{vT+1}")
        if "exactnorm" not in OPT:
            a("s_nop 0")
            a(f"v_mul_f32 v{vNM}, v{vNM}, v{vR}")
            a(f"v_sub_f32 v{vNM}, 0, v{vNM}")
        def norm_ops(i):
            ops = []
            if i >= 18: return ops
            for d in range(8):
                x = XS + (i % NST)*8 + d
                t0 = vT + (d % 2) * 2; t1 = t0 + 1
                ops.append(f"v_lshlrev_b32 v{t0}, 16, v{x}")
                ops.append(f"v_and_b32 v{t1}, 0xffff0000, v{x}")
                if "exactnorm" in OPT:
                    ops.append(f"v_sub_f32 v{t0}, v{t0}, v{vNM}")
                    ops.append(f"v_sub_f32 v{t1}, v{t1}, v{vNM}")
                    ops.append(f"v_cvt_pk_bf16_f32 v{t0}, v{t0}, v{t1}")
                    ops.append(f"v_and_b32 v{t1}, 0xffff0000, v{t0}")
                    ops.append(f"v_lshlrev_b32 v{t0}, 16, v{t0}")
                    ops.append(f"v_mul_f32 v{t0}, v{t0}, v{vR}")
                    ops.append(f"v_mul_f32 v{t1}, v{t1}, v{vR}")
                else:
                    ops.append(f"v_fma_f32 v{t0}, v{t0}, v{vR}, v{vNM}")
                    ops.append(f"v_fma_f32 v{t1}, v{t1}, v{vR}, v{vNM}")
                ops.append(f"v_cvt_pk_bf16_f32 v{x}, v{t0}, v{t1}")
            return ops
        def wread(g):
            i, f = divmod(g, 18)
            if i >= 18: return
            st = i % NST
            half, nt = divmod(f, 9)
            slot = g % RING
            base = vWa if st < 3 else vWb
            off = (st % 3) * STG + half * 8 * 288 + nt * 32
            a(f"ds_read_b64_tr_b16 {vr(WR+slot*4,2)}, v{base} offset:{off}")
            a(f"ds_read_b64_tr_b16 {vr(WR+slot*4+2,2)}, v{base} offset:{off+4608}")
        vm.wait(lambda t: t[1] <= 0)
        for op in norm_ops(0): a(op)
        a("s_barrier")
        for f in range(PF): wread(f)
        stamp(a, 1)
        sched = {0: [2, 3], 1: [4, 5], 2: [6, 7]}
        for i in range(18):
            lg = []
            for j in sched.get(i, [i + 5]): lg += load_groups(j)
            nops = norm_ops(i + 1)
            ni = 0; gi = 0
            gpos = [1 + (k * 16) // max(1, len(lg)) for k in range(len(lg))]
            nstart = 6 if i < 3 else 1
            per = (len(nops) + (16 - nstart)) // (17 - nstart) if nops else 0
            for f in range(18):
                g = i*18 + f
                half, nt = divmod(f, 9)
                slot = g % RING
                if i == 0 and f == 18 - PF:
                    vm.wait(lambda t: t[0] == "W" and t[1] <= 1)
                    a("s_barrier")
                wread(g + PF)
                rem = min(PF, 18*18 - 1 - g)
                a(f"s_waitcnt lgkmcnt({2*rem})")
                if i == 0:
                    a(f"v_mfma_f32_32x32x16_bf16 {vr(acc(nt),16)}, {vr(WR+slot*4,4)}, {vr(XS+(i%NST)*8+half*4,4)}, " + ("0" if half == 0 else vr(acc(nt),16)))
                else:
                    a(f"v_mfma_f32_32x32x16_bf16 {vr(acc(nt),16)}, {vr(WR+slot*4,4)}, {vr(XS+(i%NST)*8+half*4,4)}, {vr(acc(nt),16)}")
                if f == nstart and nops:
                    vm.wait(lambda t: t[0] == "X" and t[1] <= i + 1)
                while gi < len(lg) and gpos[gi] <= f:
                    emit_group(lg[gi]); gi += 1
                if f >= nstart:
                    for _ in range(per):
                        if ni < len(nops):
                            a(nops[ni]); ni += 1
            assert ni == len(nops) and gi == len(lg), (i, ni, len(nops), gi, len(lg))
            if i < 17:
                vm.wait(lambda t: t[0] == "W" and t[1] <= i + 2)
                a("s_barrier")
    body(3, "A")
    a(f"s_branch L_{name}_epi")
    a.lab(f"L_{name}_typeB")
    body(2, "B")
    a.lab(f"L_{name}_epi")
    if "pstamp" not in OPT: stamp(a, 2)
    a("s_waitcnt vmcnt(0) lgkmcnt(0)")
    sA_, sB_ = sT+6, sT+7
    a(f"s_mov_b32 s{sA_}, {f32(GELU_A)}")
    a(f"s_mov_b32 s{sB_}, {f32(GELU_B)}")
    a(f"v_bfe_u32 v{vX0}, v0, 4, 1")
    a(f"v_mul_u32_u24 v{vX0}, 147456, v{vX0}")
    a(f"v_lshrrev_b32 v{vT+1}, 5, v0")
    a(f"v_lshl_add_u32 v{vX0}, v{vT+1}, 8, v{vX0}")
    a(f"v_and_b32 v{vT+1}, 15, v0")
    a(f"v_lshl_add_u32 v{vX0}, v{vT+1}, 4, v{vX0}")
    a(f"s_and_b32 s{sT}, s{sFb}, 1")
    a(f"s_lshl_b32 s{sT+1}, s{sT}, 12")
    a(f"s_add_u32 s{sT+1}, s{sT+1}, s{sHb}")
    a(f"s_lshl_b32 s{sT+2}, s{sT}, 9")
    a(f"s_add_u32 s{sT+2}, s{sT+2}, s{sHb}")
    a(f"s_add_u32 s{sT+2}, s{sT+2}, {8*1024}")
    a(f"v_mov_b32 v{vT}, s{sA_}")
    a("s_nop 7")
    exact = "exactepi" in OPT
    for nt in range(9):
        o = XS + (nt % 12) * 4
        T = WR
        for hh in range(2):
            lines = [[], []]
            for c in range(2):
                p = hh*2 + c
                g0, g1 = acc(nt) + 2*p, acc(nt) + 2*p + 1
                u0, u1 = g0 + 8, g1 + 8
                x0, x1, y0, y1, t0, t1 = [T + c*8 + k for k in range(6)]
                L = lines[c]
                if exact:
                    L += [f"v_cvt_pk_bf16_f32 v{x0}, v{g0}, v{g1}", f"v_cvt_pk_bf16_f32 v{y0}, v{u0}, v{u1}",
                          f"v_and_b32 v{x1}, 0xffff0000, v{x0}", f"v_lshlrev_b32 v{x0}, 16, v{x0}",
                          f"v_and_b32 v{y1}, 0xffff0000, v{y0}", f"v_lshlrev_b32 v{y0}, 16, v{y0}"]
                else:
                    x0, x1, y0, y1 = g0, g1, u0, u1
                L += [f"v_mul_f32 v{t0}, v{x0}, v{x0}", f"v_mul_f32 v{t1}, v{x1}, v{x1}",
                      f"v_fma_f32 v{t0}, v{t0}, s{sB_}, v{vT}", f"v_fma_f32 v{t1}, v{t1}, s{sB_}, v{vT}",
                      f"v_mul_f32 v{t0}, v{t0}, v{x0}", f"v_mul_f32 v{t1}, v{t1}, v{x1}",
                      f"v_exp_f32 v{t0}, v{t0}", f"v_exp_f32 v{t1}, v{t1}"]
                if not exact:
                    L += [f"v_mul_f32 v{y0}, v{y0}, v{x0}", f"v_mul_f32 v{y1}, v{y1}, v{x1}"]
                L += [f"v_add_f32 v{t0}, 1.0, v{t0}", f"v_add_f32 v{t1}, 1.0, v{t1}",
                      f"v_rcp_f32 v{t0}, v{t0}", f"v_rcp_f32 v{t1}, v{t1}"]
                if exact:
                    L += [f"v_mul_f32 v{t0}, v{t0}, v{x0}", f"v_mul_f32 v{t1}, v{t1}, v{x1}",
                          f"v_cvt_pk_bf16_f32 v{t0}, v{t0}, v{t1}",
                          f"v_and_b32 v{t1}, 0xffff0000, v{t0}", f"v_lshlrev_b32 v{t0}, 16, v{t0}"]
                L += [f"v_mul_f32 v{t0}, v{t0}, v{y0}", f"v_mul_f32 v{t1}, v{t1}, v{y1}",
                      f"v_cvt_pk_bf16_f32 v{o+p}, v{t0}, v{t1}"]
            i0 = i1 = 0
            while i0 < len(lines[0]) or i1 < len(lines[1]):
                for _ in range(2):
                    if i0 < len(lines[0]): a(lines[0][i0]); i0 += 1
                for _ in range(2):
                    if i1 < len(lines[1]): a(lines[1][i1]); i1 += 1
        if nt < 8:
            a(f"buffer_store_dwordx4 {vr(o,4)}, v{vX0}, {sr(sH,4)}, s{sT+1} offen offset:{(nt//2)*1024 + (nt%2)*512}")
        else:
            a(f"buffer_store_dwordx4 {vr(o,4)}, v{vX0}, {sr(sH,4)}, s{sT+2} offen")
    if "pstamp" not in OPT: stamp(a, 3)
    if "stamp" in OPT: a("s_waitcnt vmcnt(0)")
    if "pstamp" not in OPT: stamp(a, 4)
    stamp(a, 6, True)
    stamp_dump(a, 7, 8, sWave, vT+4)
    a.lab(f"L_{name}_done")
    a("s_endpgm")
    return a.text(), kernel_desc(name, NV), f"; @launch kernel={name} grid=(256,1,1) block=(512,1,1) lds={NST*STG}"

def gen_k3m(name="k3_kernel"):
    a = A()
    kernel_head(a, name)
    NST = 6; STG = 18560; UP = 9344; RING = 6; PF = RING - 1
    ACC = 4; XS = 148; WR = 196
    vWa, vWb = 220, 221
    vD = 222
    vX0 = 225
    vNM, vR = 226, 227
    vT = 228
    vX1, vNM1, vR1 = 244, 245, 246
    NV = 248
    def acc(nt, mat, mt): return ACC + ((nt*2+mat)*2+mt)*4
    sWa, sWb_, sWc, sX, sST, sH = 12, 16, 20, 24, 28, 32
    sWave, sFb, sMb = 36, 37, 38
    sWoff, sXoff, sIt = 39, 40, 41
    sM0 = 42
    sT = 46
    sRot, sCnt, sHb = 56, 57, 58
    a("s_cmp_ge_u32 s2, 256")
    a(f"s_cbranch_scc1 L_{name}_done")
    stamp(a, 0); stamp(a, 5, True)
    a("s_load_dwordx4 s[4:7], s[0:1], 32")
    a("s_load_dwordx2 s[8:9], s[0:1], 72")
    a("v_lshrrev_b32 v1, 6, v0")
    a("v_and_b32 v0, 63, v0")
    a("s_nop 0")
    a(f"v_readfirstlane_b32 s{sWave}, v1")
    a(f"s_and_b32 s{sT}, s2, 7")
    a(f"s_lshr_b32 s{sT+1}, s2, 3")
    a(f"s_and_b32 s{sFb}, s{sT+1}, 3")
    a(f"s_lshl_b32 s{sT}, s{sT}, 2")
    a(f"s_add_u32 s{sFb}, s{sFb}, s{sT}")
    a(f"s_lshr_b32 s{sMb}, s{sT+1}, 2")
    dma_slots_setup(a, sWave, sT, vT, vD, 9216, sM0, 128)
    a(f"s_mul_i32 s{sT}, s{sFb}, 288")
    for k in range(3):
        a(f"v_add_u32 v{vD+k}, s{sT}, v{vD+k}")
    a(f"s_lshl_b32 s{sT}, s{sMb}, 4")
    a(f"s_lshl_b32 s{sT+1}, s{sWave}, 1")
    a(f"s_add_u32 s{sT}, s{sT}, s{sT+1}")
    a(f"s_mul_i32 s{sT+1}, s{sT}, 18432")
    a(f"v_lshlrev_b32 v{vT}, 4, v0")
    a(f"v_add_u32 v{vX0}, s{sT+1}, v{vT}")
    a(f"v_add_u32 v{vX1}, 18432, v{vX0}")
    a(f"s_mul_i32 s{sHb}, s{sT}, 144")
    a(f"s_lshr_b32 s{sT+1}, s{sFb}, 1")
    a(f"s_mul_i32 s{sT+1}, s{sT+1}, 9")
    a(f"s_add_u32 s{sHb}, s{sHb}, s{sT+1}")
    a(f"s_lshl_b32 s{sHb}, s{sHb}, 10")
    a(f"s_lshl_b32 s{sT}, s{sT}, 4")
    a(f"v_and_b32 v{vT+4}, 15, v0")
    a(f"v_add_u32 v{vT+4}, s{sT}, v{vT+4}")
    a(f"v_mul_u32_u24 v{vT+4}, 48, v{vT+4}")
    a(f"v_lshrrev_b32 v{vT+1}, 2, v0")
    a(f"v_mul_u32_u24 v{vT+1}, 288, v{vT+1}")
    a(f"v_and_b32 v{vT+2}, 3, v0")
    a(f"v_lshl_add_u32 v{vWa}, v{vT+2}, 3, v{vT+1}")
    a(f"v_add_u32 v{vWb}, {3*STG}, v{vWa}")
    if "rot" in OPT:
        a(f"s_mul_i32 s{sRot}, s{sMb}, 9")
        a(f"s_and_b32 s{sT}, s{sFb}, 3")
        a(f"s_mul_i32 s{sT}, s{sT}, 18")
        a(f"s_add_u32 s{sRot}, s{sRot}, s{sT}")
        a(f"s_lshr_b32 s{sRot}, s{sRot}, 2")
        a(f"s_sub_u32 s{sT}, s{sRot}, 18")
        a(f"s_cmp_ge_u32 s{sRot}, 18")
        a(f"s_cselect_b32 s{sRot}, s{sT}, s{sRot}")
    else:
        a(f"s_mov_b32 s{sRot}, 0")
    a(f"s_mov_b32 s{sCnt}, 0")
    a(f"s_mul_i32 s{sWoff}, s{sRot}, {32*9216}")
    a(f"s_lshl_b32 s{sXoff}, s{sRot}, 10")
    a("s_waitcnt lgkmcnt(0)")
    if "pstamp" in OPT: stamp(a, 1)
    srd(a, sWa, 4, 576*4608*2)
    srd(a, sWc, 6, 576*4608*2)
    a(f"s_cmp_eq_u32 s{sWave}, 0")
    a(f"s_cselect_b32 s{sT}, s4, s6")
    a(f"s_cselect_b32 s{sT+1}, s5, s7")
    srd(a, sWb_, sT, 576*4608*2)
    srd(a, sX, 8, H1_SZ, H1_OFF)
    srd(a, sST, 8, ST_SZ, ST_OFF)
    srd(a, sH, 8, HH_SZ, HH_OFF)
    for mt in range(2):
        for q in range(3):
            a(f"buffer_load_dwordx4 {vr(WR+mt*12+q*4,4)}, v{vT+4}, {sr(sST,4)}, 0 offen offset:{mt*768+q*16}")
    a(f"s_cmp_ge_u32 s{sWave}, 2")
    a(f"s_cbranch_scc1 L_{name}_typeB")

    M16 = "m16" in OPT
    def body(nd, tag):
        vm = VM(a)
        vm.ops = [("S", 0)] * 6
        srds = (sWa, sWb_, sWc)
        def load_groups(i):
            if i >= 18: return []
            st = i % NST
            gs = []
            for k in range(nd):
                gs.append([("s", f"s_add_u32 m0, s{sM0+k}, {st*STG}"), ("s", "s_nop 0"),
                           (("W", i), f"buffer_load_dwordx4 v{vD+k}, {sr(srds[k],4)}, s{sWoff} offen lds")])
            gs.append([(("X", i), f"buffer_load_dwordx4 {vr(XS+st*8,4)}, v{vX0}, {sr(sX,4)}, s{sXoff} offen")])
            gs.append([(("X", i), f"buffer_load_dwordx4 {vr(XS+st*8+4,4)}, v{vX1}, {sr(sX,4)}, s{sXoff} offen"),
                       ("s", f"s_add_u32 s{sRot}, s{sRot}, 1"),
                       ("s", f"s_cmp_eq_u32 s{sRot}, {4 if 'hot4' in OPT else 18}"),
                       ("s", f"s_cselect_b32 s{sRot}, 0, s{sRot}"),
                       ("s", f"s_mul_i32 s{sWoff}, s{sRot}, {32*9216}"),
                       ("s", f"s_lshl_b32 s{sXoff}, s{sRot}, 10")])
            return gs
        def emit_group(g):
            for tg, txt in g:
                if tg == "s": a(txt)
                else: vm.op(tg, txt)
        for i in range(2):
            for g in load_groups(i): emit_group(g)
        vm.wait(lambda t: t[0] == "S")
        for b, vNM_, vR_ in ((WR, vNM, vR), (WR+12, vNM1, vR1)):
            a(f"v_add_f32 v{vT}, v{b}, v{b+2}")
            a(f"v_add_f32 v{vT+1}, v{b+4}, v{b+6}")
            a(f"v_add_f32 v{vT+2}, v{b+8}, v{b+10}")
            a(f"v_add_f32 v{vT}, v{vT}, v{vT+1}")
            a(f"v_add_f32 v{vT}, v{vT}, v{vT+2}")
            a(f"v_mul_f32 v{vT}, {f32(1.0/6.0)}, v{vT}")
            a(f"v_add_f32 v{vT+1}, v{b+1}, v{b+3}")
            a(f"v_add_f32 v{vT+2}, v{b+5}, v{b+7}")
            a(f"v_add_f32 v{vT+3}, v{b+9}, v{b+11}")
            a(f"v_add_f32 v{vT+1}, v{vT+1}, v{vT+2}")
            a(f"v_add_f32 v{vT+1}, v{vT+1}, v{vT+3}")
            a(f"v_mov_b32 v{vT+2}, 0")
            for t in range(6):
                a(f"v_sub_f32 v{vT+3}, v{b+2*t}, v{vT}")
                a(f"v_fmac_f32 v{vT+2}, v{vT+3}, v{vT+3}")
            a(f"v_fmac_f32 v{vT+1}, {f32(96.0)}, v{vT+2}")
            a(f"v_mul_f32 v{vT+1}, {f32(1.0/576.0)}, v{vT+1}")
            round_bf16(a, vNM_, vT)
            round_bf16(a, vT+1, vT+1)
            a(f"v_add_f32 v{vT+1}, {f32(1e-5)}, v{vT+1}")
            round_bf16(a, vT+1, vT+1)
            a(f"v_sqrt_f32 v{vT+1}, v{vT+1}")
            a("s_nop 0")
            round_bf16(a, vT+1, vT+1)
            a(f"v_rcp_f32 v{vR_}, v{vT+1}")
            if "exactnorm" not in OPT:
                a("s_nop 0")
                a(f"v_mul_f32 v{vNM_}, v{vNM_}, v{vR_}")
                a(f"v_sub_f32 v{vNM_}, 0, v{vNM_}")
        def norm_ops(i):
            ops = []
            if i >= 18: return ops
            for d in range(8):
                x = XS + (i % NST)*8 + d
                t0 = vT + (d % 2) * 2; t1 = t0 + 1
                vNM, vR = (226, 227) if d < 4 else (vNM1, vR1)
                ops.append(f"v_lshlrev_b32 v{t0}, 16, v{x}")
                ops.append(f"v_and_b32 v{t1}, 0xffff0000, v{x}")
                if "exactnorm" in OPT:
                    ops.append(f"v_sub_f32 v{t0}, v{t0}, v{vNM}")
                    ops.append(f"v_sub_f32 v{t1}, v{t1}, v{vNM}")
                    ops.append(f"v_cvt_pk_bf16_f32 v{t0}, v{t0}, v{t1}")
                    ops.append(f"v_and_b32 v{t1}, 0xffff0000, v{t0}")
                    ops.append(f"v_lshlrev_b32 v{t0}, 16, v{t0}")
                    ops.append(f"v_mul_f32 v{t0}, v{t0}, v{vR}")
                    ops.append(f"v_mul_f32 v{t1}, v{t1}, v{vR}")
                else:
                    ops.append(f"v_fma_f32 v{t0}, v{t0}, v{vR}, v{vNM}")
                    ops.append(f"v_fma_f32 v{t1}, v{t1}, v{vR}, v{vNM}")
                ops.append(f"v_cvt_pk_bf16_f32 v{x}, v{t0}, v{t1}")
            return ops
        def wread(g):
            i, f = divmod(g, 18)
            if i >= 18: return
            st = i % NST
            nt, mat = divmod(f, 2)
            slot = g % RING
            base = vWa if st < 3 else vWb
            off = (st % 3) * STG + mat * UP + nt * 32
            a(f"ds_read_b64_tr_b16 {vr(WR+slot*4,2)}, v{base} offset:{off}")
            a(f"ds_read_b64_tr_b16 {vr(WR+slot*4+2,2)}, v{base} offset:{off+4608}")
        vm.wait(lambda t: t[1] <= 0)
        for op in norm_ops(0): a(op)
        a("s_barrier")
        for f in range(PF): wread(f)
        stamp(a, 1)
        sched = {0: [2, 3], 1: [4, 5], 2: [6, 7]}
        for i in range(18):
            lg = []
            for j in sched.get(i, [i + 5]): lg += load_groups(j)
            nops = norm_ops(i + 1)
            ni = 0; gi = 0
            gpos = [1 + (k * 16) // max(1, len(lg)) for k in range(len(lg))]
            nstart = 6 if i < 3 else 1
            per = (len(nops) + (16 - nstart)) // (17 - nstart) if nops else 0
            for f in range(18):
                g = i*18 + f
                half, nt = divmod(f, 9)
                slot = g % RING
                if i == 0 and f == 18 - PF:
                    vm.wait(lambda t: t[0] == "W" and t[1] <= 1)
                    a("s_barrier")
                wread(g + PF)
                rem = min(PF, 18*18 - 1 - g)
                a(f"s_waitcnt lgkmcnt({2*rem})")
                nt, mat = divmod(f, 2)
                for mt in range(2):
                    a(f"v_mfma_f32_16x16x32_bf16 {vr(acc(nt,mat,mt),4)}, {vr(WR+slot*4,4)}, {vr(XS+(i%NST)*8+mt*4,4)}, " + ("0" if i == 0 else vr(acc(nt,mat,mt),4)))
                if f == nstart and nops:
                    vm.wait(lambda t: t[0] == "X" and t[1] <= i + 1)
                while gi < len(lg) and gpos[gi] <= f:
                    emit_group(lg[gi]); gi += 1
                if f >= nstart:
                    for _ in range(per):
                        if ni < len(nops):
                            a(nops[ni]); ni += 1
            assert ni == len(nops) and gi == len(lg), (i, ni, len(nops), gi, len(lg))
            if i < 17:
                vm.wait(lambda t: t[0] == "W" and t[1] <= i + 2)
                a("s_barrier")
    body(3, "A")
    a(f"s_branch L_{name}_epi")
    a.lab(f"L_{name}_typeB")
    body(2, "B")
    a.lab(f"L_{name}_epi")
    if "pstamp" not in OPT: stamp(a, 2)
    a("s_waitcnt vmcnt(0) lgkmcnt(0)")
    sA_, sB_ = sT+6, sT+7
    a(f"s_mov_b32 s{sA_}, {f32(GELU_A)}")
    a(f"s_mov_b32 s{sB_}, {f32(GELU_B)}")
    a(f"v_lshlrev_b32 v{vX0}, 4, v0")
    a(f"s_and_b32 s{sT}, s{sFb}, 1")
    a(f"s_lshl_b32 s{sT+1}, s{sT}, 12")
    a(f"s_add_u32 s{sT+1}, s{sT+1}, s{sHb}")
    a(f"s_lshl_b32 s{sT+2}, s{sT}, 3")
    a(f"s_add_u32 s{sT+2}, s{sT+2}, s{sHb}")
    a(f"s_add_u32 s{sT+2}, s{sT+2}, {8*1024}")
    a(f"s_add_u32 s{sT+3}, s{sT+1}, {144*1024}")
    a(f"s_add_u32 s{sT+4}, s{sT+2}, {144*1024}")
    a(f"v_mov_b32 v{vT}, s{sA_}")
    a("s_nop 7")
    def gelu_tile(nt, mt, dst):
        T = WR
        lines = [[], []]
        for c in range(2):
            g0, g1 = acc(nt,0,mt) + 2*c, acc(nt,0,mt) + 2*c + 1
            u0, u1 = acc(nt,1,mt) + 2*c, acc(nt,1,mt) + 2*c + 1
            t0, t1 = T + c*8 + 4, T + c*8 + 5
            x0, x1, y0, y1 = g0, g1, u0, u1
            L = lines[c]
            L += [f"v_mul_f32 v{t0}, v{x0}, v{x0}", f"v_mul_f32 v{t1}, v{x1}, v{x1}",
                  f"v_fma_f32 v{t0}, v{t0}, s{sB_}, v{vT}", f"v_fma_f32 v{t1}, v{t1}, s{sB_}, v{vT}",
                  f"v_mul_f32 v{t0}, v{t0}, v{x0}", f"v_mul_f32 v{t1}, v{t1}, v{x1}",
                  f"v_exp_f32 v{t0}, v{t0}", f"v_exp_f32 v{t1}, v{t1}",
                  f"v_mul_f32 v{y0}, v{y0}, v{x0}", f"v_mul_f32 v{y1}, v{y1}, v{x1}",
                  f"v_add_f32 v{t0}, 1.0, v{t0}", f"v_add_f32 v{t1}, 1.0, v{t1}",
                  f"v_rcp_f32 v{t0}, v{t0}", f"v_rcp_f32 v{t1}, v{t1}",
                  f"v_mul_f32 v{t0}, v{t0}, v{y0}", f"v_mul_f32 v{t1}, v{t1}, v{y1}",
                  f"v_cvt_pk_bf16_f32 v{dst+c}, v{t0}, v{t1}"]
        i0 = i1 = 0
        while i0 < len(lines[0]) or i1 < len(lines[1]):
            for _ in range(2):
                if i0 < len(lines[0]): a(lines[0][i0]); i0 += 1
            for _ in range(2):
                if i1 < len(lines[1]): a(lines[1][i1]); i1 += 1
    k = 0
    for mt in range(2):
        for p in range(4):
            o = XS + (k % 12) * 4; k += 1
            gelu_tile(2*p, mt, o)
            gelu_tile(2*p+1, mt, o+2)
            a(f"buffer_store_dwordx4 {vr(o,4)}, v{vX0}, {sr(sH,4)}, s{sT+1+2*mt} offen offset:{p*1024}")
        o = XS + (k % 12) * 4; k += 1
        gelu_tile(8, mt, o)
        a(f"buffer_store_dwordx2 {vr(o,2)}, v{vX0}, {sr(sH,4)}, s{sT+2+2*mt} offen")
    if "pstamp" not in OPT: stamp(a, 3)
    if "stamp" in OPT: a("s_waitcnt vmcnt(0)")
    if "pstamp" not in OPT: stamp(a, 4)
    stamp(a, 6, True)
    stamp_dump(a, 7, 8, sWave, vT+4)
    a.lab(f"L_{name}_done")
    a("s_endpgm")
    return a.text(), kernel_desc(name, NV), f"; @launch kernel={name} grid=(256,1,1) block=(512,1,1) lds={NST*STG}"

def gen_k4v2(name="k4_kernel"):
    a = A(); a.stpol = os.environ.get("K4ST", "sc1")
    kernel_head(a, name)
    NST = 6; STG = 18432; RING = 6; PFD = 5; PF = RING - 1
    ROWB = 4608 if "m16" in OPT else 2304
    ACC = 4; XS = 76; WR = 124
    vWa, vWb = 148, 149
    vD = 150; vDm = 153
    vX0, vX1 = 156, 157
    vT = 160
    NV = 176
    def acc(nt, mt): return ACC + (nt*2+mt)*4
    sW, sX, sP = 12, 16, 20
    sWave, sKs, sMb, sNb = 28, 29, 30, 31
    sWb1, sXb, sPb = 32, 33, 34
    sM0 = 36
    sT = 40
    sWo = 52
    a("s_cmp_ge_u32 s2, 256")
    a(f"s_cbranch_scc1 L_{name}_done")
    stamp(a, 0); stamp(a, 5, True)
    a("s_load_dwordx2 s[4:5], s[0:1], 48")
    a("s_load_dwordx2 s[8:9], s[0:1], 72")
    a("v_lshrrev_b32 v1, 6, v0")
    a("v_and_b32 v0, 63, v0")
    a("s_nop 0")
    a(f"v_readfirstlane_b32 s{sWave}, v1")
    a(f"s_and_b32 s{sT}, s2, 7")
    a(f"s_lshr_b32 s{sT+1}, s2, 3")
    a(f"s_lshr_b32 s{sKs}, s{sT}, 1")
    a(f"s_and_b32 s{sNb}, s{sT+1}, 3")
    a(f"s_and_b32 s{sT}, s{sT}, 1")
    a(f"s_lshl_b32 s{sT}, s{sT}, 3")
    a(f"s_lshr_b32 s{sMb}, s{sT+1}, 2")
    a(f"s_add_u32 s{sMb}, s{sMb}, s{sT}")
    dma_slots_setup(a, sWave, sT, vT, vD, 1152, sM0, 0)
    a(f"s_cmp_eq_u32 s{sWave}, 0")
    a(f"s_cselect_b32 s{sT}, 0, {576*1152}")
    a(f"v_add_u32 v{vD+1}, s{sT}, v{vD+1}")
    a(f"v_add_u32 v{vD+2}, {576*1152}, v{vD+2}")
    a(f"s_mov_b32 s{sT}, {128*1152}")
    for k in range(3):
        a(f"v_cmp_lt_u32 vcc, 15, v{vT+8+k}")
        a(f"v_mov_b32 v{vT+1}, s{sT}")
        a("s_nop 0")
        a(f"v_cndmask_b32 v{vT+1}, 0, v{vT+1}, vcc")
        a(f"v_add_u32 v{vDm+k}, v{vD+k}, v{vT+1}")
    a(f"s_mul_i32 s{sWb1}, s{sKs}, {2*576*1152}")
    a(f"s_mul_i32 s{sT}, s{sNb}, 288")
    a(f"s_add_u32 s{sWb1}, s{sWb1}, s{sT}")
    a(f"s_lshr_b32 s{sT}, s{sWave}, 2")
    a(f"s_lshl_b32 s{sT+1}, s{sKs}, 1")
    a(f"s_add_u32 s{sT+1}, s{sT+1}, s{sT}")
    a(f"s_and_b32 s{sT+2}, s{sWave}, 3")
    a(f"s_lshl_b32 s{sXb}, s{sMb}, 3")
    a(f"s_lshl_b32 s{sT+3}, s{sT+2}, 1")
    a(f"s_add_u32 s{sXb}, s{sXb}, s{sT+3}")
    a(f"s_mov_b32 s{sT+4}, s{sXb}")
    a(f"s_mul_i32 s{sXb}, s{sXb}, 144")
    a(f"s_mul_i32 s{sT+3}, s{sT+1}, 18")
    a(f"s_add_u32 s{sXb}, s{sXb}, s{sT+3}")
    a(f"s_lshl_b32 s{sXb}, s{sXb}, 10")
    a(f"v_lshlrev_b32 v{vX0}, 4, v0")
    a(f"v_add_u32 v{vX0}, s{sXb}, v{vX0}")
    a(f"v_add_u32 v{vX1}, {144*1024}, v{vX0}")
    a(f"s_lshl_b32 s{sPb}, s{sKs}, 7")
    a(f"s_add_u32 s{sPb}, s{sPb}, s{sT+4}")
    a(f"s_add_u32 s{sPb}, s{sPb}, s{sT}")
    a(f"s_mul_i32 s{sPb}, s{sPb}, 36")
    a(f"s_mul_i32 s{sT+6}, s{sNb}, 9")
    a(f"s_add_u32 s{sPb}, s{sPb}, s{sT+6}")
    a(f"s_lshl_b32 s{sPb}, s{sPb}, 10")
    if "m16" in OPT:
        a(f"v_lshrrev_b32 v{vT+5}, 2, v0")
    else:
        a(f"v_lshrrev_b32 v{vT+5}, 5, v0")
        a(f"v_lshlrev_b32 v{vT+5}, 4, v{vT+5}")
        a(f"v_bfe_u32 v{vT+6}, v0, 2, 3")
        a(f"v_add_u32 v{vT+5}, v{vT+5}, v{vT+6}")
    a(f"v_mul_u32_u24 v{vT+5}, 288, v{vT+5}")
    a(f"v_and_b32 v{vT+6}, 3, v0")
    a(f"v_lshl_add_u32 v{vWa}, v{vT+6}, 3, v{vT+5}")
    a(f"s_mul_i32 s{sT+6}, s{sT}, 9216")
    a(f"v_add_u32 v{vWa}, s{sT+6}, v{vWa}")
    a(f"v_add_u32 v{vWb}, {3*STG}, v{vWa}")
    a("s_waitcnt lgkmcnt(0)")
    srd(a, sW, 4, 4608*576*2)
    srd(a, sX, 8, HH_SZ, HH_OFF)
    srd(a, sP, 8, P_SZ, P_OFF)
    a(f"s_cmp_ge_u32 s{sWave}, 2")
    a(f"s_cbranch_scc1 L_{name}_typeB")
    def fa_rel(i):
        q, ii = divmod(i, 9)
        if ii < 4: return 288*q + 32*ii
        if ii < 8: return 288*q + 144 + 32*(ii-4)
        return 288*q + 128
    def body(nd, tag):
        vm = VM(a)
        def load_groups(i):
            if i >= 18: return []
            st = i % NST
            gs = []
            vv = vDm if i % 9 == 8 else vD
            for k in range(nd):
                g = []
                if k == 0:
                    g.append(("s", f"s_add_u32 s{sWo}, s{sWb1}, {fa_rel(i)*1152}"))
                g.append(("s", f"s_add_u32 m0, s{sM0+k}, {st*STG}"))
                g.append(("s", "s_nop 0"))
                g.append((("W", i), f"buffer_load_dwordx4 v{vv+k}, {sr(sW,4)}, s{sWo} offen lds"))
                gs.append(g)
            xs = XS + (i % NST) * 8
            gs.append([("s", f"s_mov_b32 s{sWo+1}, {i*1024}"),
                       (("X", i), f"buffer_load_dwordx4 {vr(xs,4)}, v{vX0}, {sr(sX,4)}, s{sWo+1} offen")])
            gs.append([(("X", i), f"buffer_load_dwordx4 {vr(xs+4,4)}, v{vX1}, {sr(sX,4)}, s{sWo+1} offen")])
            return gs
        def emit_group(g):
            for tg, txt in g:
                if tg == "s": a(txt)
                else: vm.op(tg, txt)
        for i in range(2):
            for g in load_groups(i): emit_group(g)
        for i in range(0, 72, 2):
            a(f"v_mov_b64 {vr(ACC+i,2)}, 0")
        sched = {0: [2, 3], 1: [4, 5], 2: [6, 7]}
        def wread(gidx):
            i, nt = divmod(gidx, 9)
            if i >= 18: return
            st = i % NST; slot = gidx % RING
            base = vWa if st < 3 else vWb
            off = (st % 3) * STG + nt * 32
            a(f"ds_read_b64_tr_b16 {vr(WR+slot*4,2)}, v{base} offset:{off}")
            a(f"ds_read_b64_tr_b16 {vr(WR+slot*4+2,2)}, v{base} offset:{off+ROWB}")
        vm.wait(lambda t: t[1] <= 0)
        a("s_barrier")
        for f in range(PF): wread(f)
        stamp(a, 1)
        for i in range(18):
            lg = []
            for j in sched.get(i, [i + PFD]): lg += load_groups(j)
            vm.wait(lambda t: t[0] == "X" and t[1] <= i)
            gi = 0
            gpos = [(k * 9) // max(1, len(lg)) for k in range(len(lg))]
            for nt in range(9):
                g = i*9 + nt; slot = g % RING
                if i == 0 and nt == 9 - PF:
                    vm.wait(lambda t: t[0] == "W" and t[1] <= 1)
                    a("s_barrier")
                wread(g + PF)
                rem = min(PF, 18*9 - 1 - g)
                a(f"s_waitcnt lgkmcnt({2*rem})")
                xs = XS + (i % NST) * 8
                a(f"v_mfma_f32_16x16x32_bf16 {vr(acc(nt,0),4)}, {vr(WR+slot*4,4)}, {vr(xs,4)}, {vr(acc(nt,0),4)}")
                a(f"v_mfma_f32_16x16x32_bf16 {vr(acc(nt,1),4)}, {vr(WR+slot*4,4)}, {vr(xs+4,4)}, {vr(acc(nt,1),4)}")
                while gi < len(lg) and gpos[gi] <= nt:
                    emit_group(lg[gi]); gi += 1
            assert gi == len(lg)
            vm.wait(lambda t: t[0] == "W" and t[1] <= i + 2)
            a("s_barrier")
    body(3, "A")
    a(f"s_branch L_{name}_epi")
    a.lab(f"L_{name}_typeB")
    body(2, "B")
    a.lab(f"L_{name}_epi")
    stamp(a, 2)
    a(f"s_lshr_b32 s{sT}, s{sWave}, 2")
    a(f"v_lshlrev_b32 v{vT}, 4, v0")
    a(f"s_mul_i32 s{sT+1}, s{sWave}, 9216")
    a(f"v_add_u32 v{vT+1}, s{sT+1}, v{vT}")
    a(f"s_xor_b32 s{sT+2}, s{sWave}, 4")
    a(f"s_mul_i32 s{sT+2}, s{sT+2}, 9216")
    a(f"v_add_u32 v{vT+2}, s{sT+2}, v{vT}")
    a(f"s_cmp_eq_u32 s{sT}, 0")
    a("s_nop 4")
    a(f"s_cbranch_scc0 L_{name}_kh1")
    for kh in range(2):
        if kh == 1: a.lab(f"L_{name}_kh1")
        for nt in range(9):
            a(f"ds_write_b128 v{vT+1}, {vr(acc(nt,1-kh),4)} offset:{nt*1024}")
        a("s_waitcnt lgkmcnt(0)")
        a("s_barrier")
        for nt in range(9):
            a(f"ds_read_b128 {vr(XS+nt*4,4)}, v{vT+2} offset:{nt*1024}")
        for nt in range(9):
            a(f"s_waitcnt lgkmcnt({8-nt})")
            for r in range(4):
                a(f"v_add_f32 v{XS+nt*4+r}, v{XS+nt*4+r}, v{acc(nt,kh)+r}")
            if nt in (4, 8): a(f"s_add_u32 s{sPb}, s{sPb}, 4096")
            a(f"buffer_store_dwordx4 {vr(XS+nt*4,4)}, v{vT}, {sr(sP,4)}, s{sPb} offen offset:{(nt%4)*1024}")
        stamp(a, 3)
        if "stamp" in OPT: a("s_waitcnt vmcnt(0)")
        stamp(a, 4); stamp(a, 6, True)
        stamp_dump(a, 7, 8, sWave, vT+4, 1)
        a("s_endpgm")
    a.lab(f"L_{name}_done")
    a("s_endpgm")
    return a.text(), kernel_desc(name, NV), f"; @launch kernel={name} grid=(256,1,1) block=(512,1,1) lds={NST*STG}"


def gen_k1v3(name="k1_kernel"):
    a = A(); vm = VM(a)
    kernel_head(a, name)
    XT = 0
    WB = 92160; STG = 16384; NST = 4; PITCH = 480
    QP = 624
    ACC = 4
    XF = 44
    WF = 84
    RAW = 100
    vD0, vD1 = 150, 151
    vWa, vXa, vXb = 152, 153, 154
    vNM, vR, vLW = 155, 156, 157
    vT = 160
    NV = 184
    sW, sXs, sO = 12, 16, 20
    sWave, sRb, sHg, sT = 28, 29, 30, 36
    sWo, sM0b = 31, 32
    a("s_cmp_ge_u32 s2, 256")
    a(f"s_cbranch_scc1 L_{name}_done")
    stamp(a, 0); stamp(a, 5, True)
    a("s_load_dwordx4 s[4:7], s[0:1], 0")
    a("s_load_dwordx2 s[8:9], s[0:1], 72")
    a("v_lshrrev_b32 v1, 6, v0")
    a("v_mov_b32 v3, v0")
    a("v_and_b32 v0, 63, v0")
    a(f"v_readfirstlane_b32 s{sWave}, v1")
    a(f"s_lshr_b32 s{sT}, s2, 3")
    a(f"s_and_b32 s{sHg}, s{sT}, 3")
    a(f"s_and_b32 s{sT+1}, s2, 1")
    a(f"s_lshl_b32 s{sT+1}, s{sT+1}, 2")
    a(f"s_add_u32 s{sHg}, s{sHg}, s{sT+1}")
    a(f"s_lshr_b32 s{sRb}, s{sT}, 2")
    a(f"s_bfe_u32 s{sT+1}, s2, 0x20001")
    a(f"s_lshl_b32 s{sT+1}, s{sT+1}, 3")
    a(f"s_add_u32 s{sRb}, s{sRb}, s{sT+1}")
    a(f"v_min_u32 v{vT+4}, 59, v0")
    a(f"v_mul_u32_u24 v{vT}, 10923, v{vT+4}")
    a(f"v_lshrrev_b32 v{vT}, 16, v{vT}")
    a(f"v_mul_u32_u24 v{vT+1}, 6, v{vT}")
    a(f"v_sub_u32 v{vT+1}, v{vT+4}, v{vT+1}")
    a(f"s_mul_i32 s{sT}, s{sWave}, 10")
    a(f"v_add_u32 v{vT+2}, s{sT}, v{vT}")
    a(f"s_lshl_b32 s{sT+1}, s{sRb}, 6")
    a(f"s_sub_u32 s{sT+1}, s{sT+1}, 16")
    a(f"v_add_u32 v{vT+3}, s{sT+1}, v{vT+2}")
    a(f"s_movk_i32 s{sT+2}, 1152")
    a(f"v_mul_lo_u32 v{vT+3}, v{vT+3}, s{sT+2}")
    a(f"v_lshl_add_u32 v{vT+3}, v{vT+1}, 4, v{vT+3}")
    a("s_waitcnt lgkmcnt(0)")
    srd(a, sXs, 4, 2048*576*2)
    for i in range(12):
        vm.op(("x", i), f"buffer_load_dwordx4 {vr(RAW+i*4,4)}, v{vT+3}, {sr(sXs,4)}, 0 offen offset:{i*96}")
    srd(a, sW, 6, 576*1728*2)
    srd(a, sO, 8, O_SZ, O_OFF)
    a(f"s_lshl_b32 s{sT}, s{sWave}, 7")
    a(f"s_mul_i32 s{sT+1}, s{sHg}, 144")
    a(f"s_mov_b32 s{sT+2}, 0x40000000")
    for t, vd in enumerate((vD0, vD1)):
        a(f"v_add_u32 v{vT+4}, s{sT}, v0")
        if t: a(f"v_add_u32 v{vT+4}, 64, v{vT+4}")
        a(f"v_mul_u32_u24 v{vT+5}, 2185, v{vT+4}")
        a(f"v_lshrrev_b32 v{vT+5}, 16, v{vT+5}")
        a(f"v_mul_u32_u24 v{vT+6}, 30, v{vT+5}")
        a(f"v_sub_u32 v{vT+6}, v{vT+4}, v{vT+6}")
        a(f"v_mul_u32_u24 v{vT+7}, 7282, v{vT+6}")
        a(f"v_lshrrev_b32 v{vT+7}, 16, v{vT+7}")
        a(f"v_mul_u32_u24 v{vT+8}, 9, v{vT+7}")
        a(f"v_sub_u32 v{vT+8}, v{vT+6}, v{vT+8}")
        a(f"v_mul_u32_u24 v{vT+7}, 1152, v{vT+7}")
        a(f"v_lshl_add_u32 v{vT+7}, v{vT+8}, 4, v{vT+7}")
        a(f"v_and_b32 v{vT+8}, 4, v{vT+5}")
        a(f"v_lshlrev_b32 v{vT+8}, 1, v{vT+8}")
        a(f"v_and_b32 v{vT+9}, 8, v{vT+5}")
        a(f"v_lshrrev_b32 v{vT+9}, 1, v{vT+9}")
        a(f"v_and_b32 v{vT+10}, 0x13, v{vT+5}")
        a(f"v_or3_b32 v{vT+8}, v{vT+8}, v{vT+9}, v{vT+10}")
        a(f"v_mul_u32_u24 v{vT+8}, 3456, v{vT+8}")
        a(f"v_add3_u32 v{vT+7}, v{vT+7}, v{vT+8}, s{sT+1}")
        a(f"v_cmp_gt_u32 vcc, 27, v{vT+6}")
        a(f"v_cmp_gt_u32 s[{sT+4}:{sT+5}], 32, v{vT+5}")
        a(f"s_and_b64 vcc, vcc, s[{sT+4}:{sT+5}]")
        a(f"v_mov_b32 v{vT+8}, s{sT+2}")
        a("s_nop 1")
        a(f"v_cndmask_b32 v{vd}, v{vT+8}, v{vT+7}, vcc")
    a(f"s_lshl_b32 s{sM0b}, s{sWave}, 11")
    a(f"s_add_u32 s{sM0b}, s{sM0b}, {WB}")
    def wdma(i):
        if i >= 18: return
        st = i % NST
        a(f"s_mov_b32 s{sWo}, {i*32*3456}")
        for t, vd in enumerate((vD0, vD1)):
            a(f"s_add_u32 m0, s{sM0b}, {st*STG + t*1024}")
            a("s_nop 0")
            vm.op(("W", i), f"buffer_load_dwordx4 v{vd}, {sr(sW,4)}, s{sWo} offen lds")
    for i in range(4): wdma(i)
    if "nopf" not in OPT:
        a(f"s_and_b32 s{sT+3}, s{sRb}, 7")
        a(f"s_mul_i32 s{sT+3}, s{sT+3}, {72*3456}")
        a(f"s_add_u32 s{sT+3}, s{sT+3}, s{sT+1}")
        for t in range(2):
            a(f"v_add_u32 v{vT+4}, s{sT}, v0")
            if t: a(f"v_add_u32 v{vT+4}, 64, v{vT+4}")
            a(f"v_mul_u32_u24 v{vT+5}, 7282, v{vT+4}")
            a(f"v_lshrrev_b32 v{vT+5}, 16, v{vT+5}")
            a(f"v_mul_u32_u24 v{vT+6}, 9, v{vT+5}")
            a(f"v_sub_u32 v{vT+6}, v{vT+4}, v{vT+6}")
            a(f"v_mul_u32_u24 v{vT+7}, 21846, v{vT+6}")
            a(f"v_lshrrev_b32 v{vT+7}, 16, v{vT+7}")
            a(f"v_mul_u32_u24 v{vT+8}, 3, v{vT+7}")
            a(f"v_sub_u32 v{vT+8}, v{vT+6}, v{vT+8}")
            a(f"v_mul_u32_u24 v{vT+8}, 70, v{vT+8}")
            a(f"v_and_b32 v{vT+8}, 0xfc, v{vT+8}")
            a(f"v_mul_u32_u24 v{vT+5}, 3456, v{vT+5}")
            a(f"v_mad_u32_u24 v{vT+5}, v{vT+7}, 1152, v{vT+5}") if False else None
            a(f"v_mul_u32_u24 v{vT+7}, 1152, v{vT+7}")
            a(f"v_add3_u32 v{vT+5}, v{vT+5}, v{vT+7}, v{vT+8}")
            a(f"v_cmp_gt_u32 vcc, 648, v{vT+4}")
            a(f"v_mov_b32 v{vT+8}, s{sT+2}")
            a("s_nop 1")
            a(f"v_cndmask_b32 v{vT+5}, v{vT+8}, v{vT+5}, vcc")
            vm.op(("P", t), f"buffer_load_dword v{vT+18+t}, v{vT+5}, {sr(sW,4)}, s{sT+3} offen")
    ONES = sT+8
    a(f"s_mov_b32 s{ONES}, 0x3f803f80")
    S, Q, S2, Q2 = vT+4, vT+5, vT+6, vT+7
    B3, B1, B2 = vT+8, vT+9, vT+10
    for d_, vb in ((3, B3), (1, B1), (2, B2)):
        a(f"v_add_u32 v{vb}, {d_}, v{vT+1}")
        a(f"v_subrev_u32 v{vT+11}, 6, v{vb}")
        a(f"v_min_u32 v{vb}, v{vb}, v{vT+11}")
        a(f"v_mad_u32_u24 v{vb}, v{vT}, 6, v{vb}")
        a(f"v_lshlrev_b32 v{vb}, 2, v{vb}")
    a(f"v_lshrrev_b32 v{vT+11}, 4, v{vT+2}")
    a(f"v_mul_u32_u24 v{vT+11}, 18432, v{vT+11}")
    a(f"v_and_b32 v{vT+12}, 15, v{vT+2}")
    a(f"v_lshl_add_u32 v{vT+11}, v{vT+12}, 4, v{vT+11}")
    a(f"v_lshl_add_u32 v{vLW}, v{vT+1}, 8, v{vT+11}")
    a(f"v_lshrrev_b32 v{vT+11}, 5, v0")
    a(f"v_lshlrev_b32 v{vT+11}, 4, v{vT+11}")
    a(f"v_bfe_u32 v{vT+12}, v0, 2, 3")
    a(f"v_add_u32 v{vT+11}, v{vT+11}, v{vT+12}")
    a(f"v_mul_u32_u24 v{vT+11}, {PITCH}, v{vT+11}")
    a(f"v_and_b32 v{vT+12}, 3, v0")
    a(f"v_lshl_add_u32 v{vWa}, v{vT+12}, 3, v{vT+11}")
    a(f"s_lshl_b32 s{sT}, s{sWave}, 6")
    a(f"s_add_u32 s{sT}, s{sT}, {WB}")
    a(f"v_add_u32 v{vWa}, s{sT}, v{vWa}")
    a(f"v_lshlrev_b32 v{vXa}, 4, v0")
    a(f"v_add_u32 v{vXb}, 65536, v{vXa}")
    for r in (S, Q, S2, Q2): a(f"v_mov_b32 v{r}, 0")
    for i in range(12):
        vm.wait(lambda t: t[0] == "x" and t[1] <= i)
        if i == 11: stamp(a, 1)
        for d_ in range(4):
            x = RAW + i*4 + d_
            s_, q_ = (S, Q) if d_ % 2 == 0 else (S2, Q2)
            a(f"v_dot2_f32_bf16 v{s_}, v{x}, s{ONES}, v{s_}")
            a(f"v_dot2_f32_bf16 v{q_}, v{x}, v{x}, v{q_}")
    a("s_nop 2")
    a(f"v_add_f32 v{S}, v{S}, v{S2}")
    a(f"v_add_f32 v{Q}, v{Q}, v{Q2}")
    a(f"ds_bpermute_b32 v{S2}, v{B3}, v{S}")
    a(f"ds_bpermute_b32 v{Q2}, v{B3}, v{Q}")
    a("s_waitcnt lgkmcnt(0)")
    a(f"v_add_f32 v{S}, v{S}, v{S2}")
    a(f"v_add_f32 v{Q}, v{Q}, v{Q2}")
    a(f"ds_bpermute_b32 v{S2}, v{B1}, v{S}")
    a(f"ds_bpermute_b32 v{Q2}, v{B1}, v{Q}")
    a(f"ds_bpermute_b32 v{vT+11}, v{B2}, v{S}")
    a(f"ds_bpermute_b32 v{vT+12}, v{B2}, v{Q}")
    a("s_waitcnt lgkmcnt(0)")
    a(f"v_add3_u32 v{vT+13}, 0, 0, 0") if False else None
    a(f"v_add_f32 v{S}, v{S}, v{S2}")
    a(f"v_add_f32 v{Q}, v{Q}, v{Q2}")
    a(f"v_add_f32 v{S}, v{S}, v{vT+11}")
    a(f"v_add_f32 v{Q}, v{Q}, v{vT+12}")
    a(f"v_mul_f32 v{S}, {f32(1.0/576.0)}, v{S}")
    a(f"v_mul_f32 v{Q}, {f32(1.0/576.0)}, v{Q}")
    a(f"v_fma_f32 v{Q}, -v{S}, v{S}, v{Q}")
    a(f"v_max_f32 v{Q}, 0, v{Q}")
    round_bf16(a, vNM, S)
    round_bf16(a, Q, Q)
    a(f"v_add_f32 v{Q}, {f32(1e-5)}, v{Q}")
    round_bf16(a, Q, Q)
    a(f"v_sqrt_f32 v{Q}, v{Q}")
    a("s_nop 0")
    round_bf16(a, Q, Q)
    a(f"v_rcp_f32 v{vR}, v{Q}")
    a("s_nop 0")
    def norm_group(i):
        ops = []
        for d_ in range(4):
            x = RAW + i*4 + d_
            t = vT + 12 + (d_ % 2) * 2
            ops += [f"v_lshlrev_b32 v{t}, 16, v{x}", f"v_and_b32 v{t+1}, 0xffff0000, v{x}",
                    f"v_sub_f32 v{t}, v{t}, v{vNM}", f"v_sub_f32 v{t+1}, v{t+1}, v{vNM}",
                    f"v_cvt_pk_bf16_f32 v{t}, v{t}, v{t+1}",
                    f"v_and_b32 v{t+1}, 0xffff0000, v{t}", f"v_lshlrev_b32 v{t}, 16, v{t}",
                    f"v_mul_f32 v{t}, v{t}, v{vR}", f"v_mul_f32 v{t+1}, v{t+1}, v{vR}",
                    f"v_cvt_pk_bf16_f32 v{x}, v{t}, v{t+1}"]
        ops.append(f"ds_write_b128 v{vLW}, {vr(RAW+i*4,4)} offset:{XT + i*6*256}")
        return ops
    gdone = 2
    for g in range(2):
        for op in norm_group(g): a(op)
    stamp(a, 2)
    vm.wait(lambda t: t[0] == "W" and t[1] <= 1)
    a("s_waitcnt lgkmcnt(0)")
    a("s_barrier")
    stamp(a, 3)
    def reads(i):
        b = i % 2; st = i % NST
        for n in range(2):
            a(f"ds_read_b64_tr_b16 {vr(WF+b*8+n*4,2)}, v{vWa} offset:{st*STG + n*32}")
            a(f"ds_read_b64_tr_b16 {vr(WF+b*8+n*4+2,2)}, v{vWa} offset:{st*STG + n*32 + 8*PITCH}")
        for mt in range(5):
            off = (mt*18 + i)*1024
            if off < 65536:
                a(f"ds_read_b128 {vr(XF+b*20+mt*4,4)}, v{vXa} offset:{off}")
            else:
                a(f"ds_read_b128 {vr(XF+b*20+mt*4,4)}, v{vXb} offset:{off-65536}")
    reads(0)
    for i in range(18):
        if i < 17:
            reads(i+1)
            a("s_waitcnt lgkmcnt(9)")
        else:
            a("s_waitcnt lgkmcnt(0)")
        b = i % 2
        need = min(11, (4*(i+2)+3)//6)
        nops = []
        while gdone <= need:
            nops += norm_group(gdone); gdone += 1
        ni = 0; k = 0
        for mt in range(5):
            for n in range(2):
                c = vr(ACC+(mt*2+n)*4,4)
                a(f"v_mfma_f32_16x16x32_bf16 {c}, {vr(WF+b*8+n*4,4)}, {vr(XF+b*20+mt*4,4)}, " + ("0" if i == 0 else c))
                k += 1
                if k == 2 and i >= 1:
                    wdma(i+3)
                for _ in range(5):
                    if ni < len(nops): a(nops[ni]); ni += 1
        assert ni == len(nops)
        if i < 17:
            vm.wait(lambda t: t[0] == "W" and t[1] <= i+2)
            if nops: a("s_waitcnt lgkmcnt(0)")
            a("s_barrier")
    a("s_barrier")
    stamp(a, 4)
    a(f"v_lshrrev_b32 v{vT}, 4, v0")
    a(f"v_lshlrev_b32 v{vT}, 2, v{vT}")
    a(f"s_lshl_b32 s{sT}, s{sWave}, 5")
    a(f"v_add_u32 v{vT}, s{sT}, v{vT}")
    a(f"v_and_b32 v{vT+1}, 15, v0")
    a(f"v_mul_u32_u24 v{vT+1}, {QP}, v{vT+1}")
    AD = vT + 4
    for n in range(2):
        for p in range(2):
            ad = AD + n*2 + p
            a(f"v_add_u32 v{vT+2}, {n*16+p*2}, v{vT}")
            a(f"v_mul_u32_u24 v{vT+3}, 3641, v{vT+2}")
            a(f"v_lshrrev_b32 v{vT+3}, 16, v{vT+3}")
            a(f"v_mul_u32_u24 v{ad}, 18, v{vT+3}")
            a(f"v_sub_u32 v{ad}, v{vT+2}, v{ad}")
            a(f"v_lshl_add_u32 v{ad}, v{ad}, 1, v{vT+1}")
            a(f"v_mad_u32_u24 v{ad}, v{vT+3}, 48, v{ad}")
    a(f"s_cmp_ge_u32 s{sWave}, 7")
    a(f"s_cbranch_scc1 L_{name}_skipq")
    for mt in range(5):
        for n in range(2):
            c = ACC + (mt*2+n)*4
            t = vT + 8 + ((mt*2+n) % 2) * 2
            a(f"v_cvt_pk_bf16_f32 v{t}, v{c}, v{c+1}")
            a(f"v_cvt_pk_bf16_f32 v{t+1}, v{c+2}, v{c+3}")
            a(f"ds_write_b32 v{AD+n*2}, v{t} offset:{mt*16*QP}")
            a(f"ds_write_b32 v{AD+n*2+1}, v{t+1} offset:{mt*16*QP}")
    a.lab(f"L_{name}_skipq")
    QR = 4; KR = 16; LG = 64; LX = 68; VO = 72; VX = 104; OA = 136
    vAo, vAx, vPos, vHd, vHf = vT, vT+1, vT+2, vT+3, vT+12
    a(f"v_lshrrev_b32 v{vPos}, 3, v3")
    a(f"v_bfe_u32 v{vHd}, v3, 1, 2")
    a(f"v_and_b32 v{vHf}, 1, v3")
    a(f"v_add_u32 v{vT+13}, 2, v{vPos}")
    a(f"v_mul_u32_u24 v{vT+13}, {QP}, v{vT+13}")
    a(f"v_mad_u32_u24 v{vT+13}, v{vHd}, 48, v{vT+13}")
    a(f"v_xor_b32 v{vT+14}, 1, v{vHf}")
    a(f"s_movk_i32 s{sT}, {8*QP}")
    a(f"v_mad_u32_u24 v{vAo}, v{vT+14}, s{sT}, v{vT+13}")
    a(f"v_mad_u32_u24 v{vAx}, v{vHf}, s{sT}, v{vT+13}")
    a("s_waitcnt lgkmcnt(0)")
    a("s_barrier")
    for j in range(3):
        a(f"ds_read_b128 {vr(QR+j*4,4)}, v{vT+13} offset:{14*QP + j*16}")
    for i in range(4):
        for j in range(3):
            a(f"ds_read_b128 {vr(KR+i*12+j*4,4)}, v{vAo} offset:{(6-2*i)*QP + 192 + j*16}")
    a(f"v_lshl_add_u32 v{vAo}, v{vHf}, 4, v{vAo}")
    a(f"v_lshl_add_u32 v{vAx}, v{vHf}, 4, v{vAx}")
    a(f"s_lshl_b32 s{sT}, s{sRb}, 6")
    a(f"v_add_u32 v{vPos}, s{sT}, v{vPos}")
    a(f"v_lshlrev_b32 v{vT+14}, 3, v{vHf}")
    a(f"v_sub_u32 v{vT+14}, v{vPos}, v{vT+14}")
    a(f"s_mov_b32 s{sT+1}, {f32(18.0**-0.5)}")
    a(f"s_mov_b32 s{sT+2}, {f32(-1e9)}")
    a(f"v_cvt_pk_bf16_f32 v{vT+15}, s{sT+2}, s{sT+2}")
    a(f"v_lshlrev_b32 v{vT+15}, 16, v{vT+15}")
    for i in range(4): a(f"v_mov_b32 v{LG+i}, 0")
    a("s_waitcnt lgkmcnt(0)")
    for i in range(4):
        a(f"ds_read_b128 {vr(VO+i*8,4)}, v{vAo} offset:{(6-2*i)*QP + 384}")
        a(f"ds_read_b32 v{VO+i*8+4}, v{vAo} offset:{(6-2*i)*QP + 384 + 16}")
    for i in range(4):
        a(f"ds_read_b128 {vr(VX+i*8,4)}, v{vAx} offset:{(6-2*i)*QP + 384}")
        a(f"ds_read_b32 v{VX+i*8+4}, v{vAx} offset:{(6-2*i)*QP + 384 + 16}")
    for d_ in range(9):
        for i in range(4):
            a(f"v_dot2_f32_bf16 v{LG+i}, v{QR+d_}, v{KR+i*12+d_}, v{LG+i}")
    a("s_nop 2")
    a(f"v_cvt_pk_bf16_f32 v{LG}, v{LG}, v{LG+1}")
    a(f"v_cvt_pk_bf16_f32 v{LG+2}, v{LG+2}, v{LG+3}")
    a(f"v_and_b32 v{LG+1}, 0xffff0000, v{LG}")
    a(f"v_lshlrev_b32 v{LG}, 16, v{LG}")
    a(f"v_and_b32 v{LG+3}, 0xffff0000, v{LG+2}")
    a(f"v_lshlrev_b32 v{LG+2}, 16, v{LG+2}")
    for i in range(4): a(f"v_mul_f32 v{LG+i}, s{sT+1}, v{LG+i}")
    a(f"v_cvt_pk_bf16_f32 v{LG}, v{LG}, v{LG+1}")
    a(f"v_cvt_pk_bf16_f32 v{LG+2}, v{LG+2}, v{LG+3}")
    a(f"v_and_b32 v{LG+1}, 0xffff0000, v{LG}")
    a(f"v_lshlrev_b32 v{LG}, 16, v{LG}")
    a(f"v_and_b32 v{LG+3}, 0xffff0000, v{LG+2}")
    a(f"v_lshlrev_b32 v{LG+2}, 16, v{LG+2}")
    for i in range(4):
        a(f"v_cmp_le_i32 vcc, {2*i}, v{vT+14}")
        a("s_nop 1")
        a(f"v_cndmask_b32 v{LG+i}, v{vT+15}, v{LG+i}, vcc")
    a("s_nop 1")
    for i in range(4):
        a(f"v_mov_b32_dpp v{LX+i}, v{LG+i} quad_perm:[1,0,3,2] row_mask:0xf bank_mask:0xf")
    M_, SUM = vT+13, vT+14
    a(f"v_max3_f32 v{M_}, v{LG}, v{LG+1}, v{LG+2}")
    a(f"v_max3_f32 v{M_}, v{M_}, v{LG+3}, v{LX}")
    a(f"v_max3_f32 v{M_}, v{M_}, v{LX+1}, v{LX+2}")
    a(f"v_max_f32 v{M_}, v{M_}, v{LX+3}")
    a(f"s_mov_b32 s{sT+3}, {f32(math.log2(math.e))}")
    for w in range(8):
        a(f"v_sub_f32 v{LG+w}, v{LG+w}, v{M_}")
    for w in range(8):
        a(f"v_mul_f32 v{LG+w}, s{sT+3}, v{LG+w}")
    for w in range(8):
        a(f"v_exp_f32 v{LG+w}, v{LG+w}")
    a("s_nop 0")
    a(f"v_add_f32 v{SUM}, v{LG}, v{LX}")
    a(f"v_add_f32 v{M_}, v{LG+1}, v{LX+1}")
    a(f"v_add_f32 v{vT+15}, v{LG+2}, v{LX+2}")
    a(f"v_add_f32 v{vT+16}, v{LG+3}, v{LX+3}")
    a(f"v_add_f32 v{SUM}, v{SUM}, v{M_}")
    a(f"v_add_f32 v{vT+15}, v{vT+15}, v{vT+16}")
    a(f"v_add_f32 v{SUM}, v{SUM}, v{vT+15}")
    a(f"v_rcp_f32 v{SUM}, v{SUM}")
    a("s_nop 0")
    for w in range(8):
        a(f"v_mul_f32 v{LG+w}, v{LG+w}, v{SUM}")
    for wp in range(4):
        a(f"v_cvt_pk_bf16_f32 v{LG+wp}, v{LG+2*wp}, v{LG+2*wp+1}")
    a(f"s_mov_b32 s{sT+4}, 0x05040100")
    a(f"s_mov_b32 s{sT+5}, 0x07060302")
    a("s_waitcnt lgkmcnt(0)")
    for wp in range(4):
        base = (VO if wp < 2 else VX) + (wp % 2) * 16
        for d_ in range(5):
            x0 = base + d_; x1 = base + 8 + d_
            t = vT + 13 + (d_ % 2) * 2
            a(f"v_perm_b32 v{t}, v{x1}, v{x0}, s{sT+4}")
            a(f"v_perm_b32 v{t+1}, v{x1}, v{x0}, s{sT+5}")
            a(f"v_dot2_f32_bf16 v{OA+2*d_}, v{t}, v{LG+wp}, " + ("0" if wp == 0 else f"v{OA+2*d_}"))
            a(f"v_dot2_f32_bf16 v{OA+2*d_+1}, v{t+1}, v{LG+wp}, " + ("0" if wp == 0 else f"v{OA+2*d_+1}"))
    a("s_nop 2")
    for d_ in range(5):
        a(f"v_cvt_pk_bf16_f32 v{QR+d_}, v{OA+2*d_}, v{OA+2*d_+1}")
    a(f"v_mul_u32_u24 v{vPos}, 1152, v{vPos}")
    a(f"v_mad_u32_u24 v{vPos}, v{vHd}, 36, v{vPos}")
    a(f"v_lshl_add_u32 v{vPos}, v{vHf}, 4, v{vPos}")
    a(f"s_mul_i32 s{sT}, s{sHg}, 144")
    a.l.append(f"    buffer_store_dwordx4 {vr(QR,4)}, v{vPos}, {sr(sO,4)}, s{sT} offen")
    a(f"buffer_store_dword v{QR+4}, v{vPos}, {sr(sO,4)}, s{sT} offen offset:16")
    if "stamp" in OPT: a("s_waitcnt vmcnt(0)")
    stamp(a, 6, True)
    stamp_dump(a, 7, 8, sWave, vT+8, 3)
    a.lab(f"L_{name}_done")
    a("s_endpgm")
    return a.text(), kernel_desc(name, NV, 96), f"; @launch kernel={name} grid=(256,1,1) block=(512,1,1) lds={WB + NST*STG}"

GENS = {"k1v3": gen_k1v3, "k1": gen_k1, "k2": gen_k2, "k3": gen_k3, "k4": gen_k4, "k5": gen_k5, "k3v2": gen_k3v2, "k3m": gen_k3m, "k4v2": gen_k4v2}


def build(which):
    heads, texts, descs = [], [], []
    for w in which:
        t, d, h = GENS[w]()
        heads.append(h); texts.append(t); descs.append(d)
    out = "; generated by dev/gen.py\n" + "\n".join(heads) + "\n"
    out += '.amdgcn_target "amdgcn-amd-amdhsa--gfx950"\n.text\n'
    out += "\n".join(texts)
    out += '.section .rodata,"a"\n'
    for d in descs:
        out += ".p2align 6\n" + d
    return out

if __name__ == "__main__":
    which = sys.argv[2].split(",")
    open(sys.argv[1], "w").write(build(which))
```

```python
import sys, struct, math, os
OPT = set(os.environ.get("GENOPT", "").split(","))

KN = "sequential_preLN__sliding_local_dilated__geglu_ffn__prompt"

O_OFF  = 0
O_SZ   = 2048*576*2
H1_OFF = O_OFF + O_SZ
H1_SZ  = 2048*576*2
ST_OFF = H1_OFF + H1_SZ
ST_SZ  = 2048*6*8
HH_OFF = ST_OFF + ST_SZ
HH_SZ  = 2048*4608*2
P_OFF  = HH_OFF + HH_SZ
P_SZ   = 4*2048*576*4

def f32(x):
    return struct.unpack("<I", struct.pack("<f", x))[0]

class A:
    def __init__(self):
        self.l = []
    def __call__(self, s):
        if "nomfma" in OPT and s.startswith("v_mfma"): return
        if s.startswith("buffer_store_dwordx4") and "s[80:83]" not in s:
            pol = getattr(self, "stpol", "")
            if pol: s += " " + pol
        if "nods" in OPT and s.startswith("ds_read_b64_tr"): return
        if "now" in OPT and s.startswith("buffer_load_dwordx4") and s.endswith("lds"): return
        if "nox" in OPT and s.startswith("buffer_load_dwordx4 v[") and "s[16:19]" in s: return
        self.l.append("    " + s)
    def lab(self, s):
        self.l.append(s + ":")
    def c(self, s):
        self.l.append("    ; " + s)
    def text(self):
        return "\n".join(self.l) + "\n"

def vr(b, n=1):
    return f"v{b}" if n == 1 else f"v[{b}:{b+n-1}]"
def sr(b, n=1):
    return f"s{b}" if n == 1 else f"s[{b}:{b+n-1}]"

def kernel_head(a, name):
    a.l.append(f".globl {name}")
    a.l.append(".p2align 8")
    a.l.append(f".type {name},@function")
    a.lab(name)

def kernel_desc(name, vgpr, sgpr=96, accum=None):
    if accum is None:
        accum = (vgpr + 3) // 4 * 4
    return f""".amdhsa_kernel {name}
  .amdhsa_next_free_vgpr {vgpr}
  .amdhsa_next_free_sgpr {sgpr}
  .amdhsa_accum_offset {accum}
  .amdhsa_group_segment_fixed_size 0
  .amdhsa_kernarg_size 80
  .amdhsa_user_sgpr_count 2
  .amdhsa_user_sgpr_kernarg_segment_ptr 1
  .amdhsa_system_sgpr_workgroup_id_x 1
.end_amdhsa_kernel
"""

def srd(a, d, base, size, off=0):
    if off:
        a(f"s_add_u32 s{d}, s{base}, {off}")
        a(f"s_addc_u32 s{d+1}, s{base+1}, 0")
    else:
        a(f"s_mov_b32 s{d}, s{base}")
        a(f"s_mov_b32 s{d+1}, s{base+1}")
    a(f"s_and_b32 s{d+1}, s{d+1}, 0xffff")
    a(f"s_mov_b32 s{d+2}, {size}")
    a(f"s_mov_b32 s{d+3}, 0x00020000")

def round_bf16(a, d, s, tmp=None):
    a(f"v_cvt_pk_bf16_f32 v{d}, v{s}, v{s}")
    a(f"v_lshlrev_b32 v{d}, 16, v{d}")

GELU_A = -2.0 * math.log2(math.e) * math.sqrt(2.0 / math.pi)
GELU_B = GELU_A * 0.044715

import os
OPT = set(os.environ.get("GENOPT", "").split(","))
def stamp(a, i, real=False):
    if "stamp" in OPT:
        a(f"s_mem{'real' if real else ''}time s[{60+2*i}:{61+2*i}]")
def stamp_dump(a, n, sWs, sWave, tmpv, region=0):
    if "stamp" in OPT:
        a("s_waitcnt lgkmcnt(0)")
        a("s_mov_b64 exec, -1")
        srd(a, 80, sWs, 1<<20, (200+region)<<20)
        a(f"s_lshl_b32 s84, s2, 4")
        a(f"s_add_u32 s84, s84, s{sWave}")
        a(f"s_lshl_b32 s84, s84, 6")
        a(f"v_mov_b32 v{tmpv}, s84")
        for i in range(n):
            a(f"v_mov_b32 v{tmpv+2}, s{60+2*i}")
            a(f"v_mov_b32 v{tmpv+3}, s{61+2*i}")
            a(f"buffer_store_dwordx2 v[{tmpv+2}:{tmpv+3}], v{tmpv}, s[80:83], 0 offen offset:{8*i}")
            a("s_nop 1")
def gen_k3(name="k3_kernel"):
    a = A()
    kernel_head(a, name)
    NST = 6
    STG = 18432
    RING = 6
    ACC = 0
    XS = 144
    WR = 192
    vWa = 216
    vWb = 217
    vD0, vD1, vD2 = 218, 219, 220
    vX0, vX1 = 221, 222
    vM0, vR0, vM1, vR1 = 223, 224, 225, 226
    vT = 228
    vLane = 244
    NV = 246
    def acc(nt, mat, mt):
        return ACC + ((nt * 2 + mat) * 2 + mt) * 4
    sW, sX, sST, sH = 12, 16, 20, 24
    sWave, sFb, sMb = 28, 29, 30
    sWoff, sXoff, sIt = 31, 32, 33
    sM0b = 34
    sT = 36
    sA_, sB_ = 48, 49
    sExec = 50
    sHb = 52

    a("s_cmp_ge_u32 s2, 256")
    a(f"s_cbranch_scc1 L_{name}_done")
    stamp(a, 0)
    stamp(a, 5, True)
    a("s_load_dwordx4 s[4:7], s[0:1], 32")
    a("s_load_dwordx2 s[8:9], s[0:1], 72")
    a("v_lshrrev_b32 v1, 6, v0")
    a("v_and_b32 v0, 63, v0")
    a("s_nop 0")
    a(f"v_readfirstlane_b32 s{sWave}, v1")
    a(f"s_and_b32 s{sT}, s2, 7")
    a(f"s_lshr_b32 s{sT+1}, s2, 3")
    a(f"s_and_b32 s{sFb}, s{sT+1}, 3")
    a(f"s_lshl_b32 s{sT}, s{sT}, 2")
    a(f"s_add_u32 s{sFb}, s{sFb}, s{sT}")
    a(f"s_lshr_b32 s{sMb}, s{sT+1}, 2")
    a("s_waitcnt lgkmcnt(0)")
    a(f"s_cmp_ge_u32 s{sWave}, 4")
    a(f"s_cselect_b32 s{sT}, s6, s4")
    a(f"s_cselect_b32 s{sT+1}, s7, s5")
    srd(a, sW, sT, 576*4608*2)
    srd(a, sX, 8, H1_SZ, H1_OFF)
    srd(a, sST, 8, ST_SZ, ST_OFF)
    srd(a, sH, 8, HH_SZ, HH_OFF)
    a(f"v_and_b32 v{vT}, 15, v0")
    a(f"s_lshl_b32 s{sT}, s{sMb}, 8")
    a(f"s_lshl_b32 s{sT+1}, s{sWave}, 5")
    a(f"s_add_u32 s{sT}, s{sT}, s{sT+1}")
    a(f"v_add_u32 v{vT}, s{sT}, v{vT}")
    a(f"v_mul_u32_u24 v{vT}, 48, v{vT}")
    for mt in range(2):
        for q in range(3):
            a(f"buffer_load_dwordx4 {vr(WR+mt*12+q*4,4)}, v{vT}, {sr(sST,4)}, 0 offen offset:{mt*768+q*16}")
    for t, vd in enumerate((vD0, vD1, vD2)):
        a(f"v_add_u32 v{vT+1}, {t*64}, v0")
        a(f"v_mul_u32_u24 v{vT+2}, 3641, v{vT+1}")
        a(f"v_lshrrev_b32 v{vT+2}, 16, v{vT+2}")
        a(f"v_mul_u32_u24 v{vT+3}, 18, v{vT+2}")
        a(f"v_sub_u32 v{vT+3}, v{vT+1}, v{vT+3}")
        a(f"v_mul_u32_u24 v{vT+2}, 9216, v{vT+2}")
        a(f"v_lshl_add_u32 v{vd}, v{vT+3}, 4, v{vT+2}")
    a(f"s_and_b32 s{sT}, s{sWave}, 3")
    a(f"s_mul_i32 s{sT+1}, s{sT}, {8*9216}")
    a(f"s_mul_i32 s{sT+2}, s{sFb}, 288")
    a(f"s_add_u32 s{sT+1}, s{sT+1}, s{sT+2}")
    for vd in (vD0, vD1, vD2):
        a(f"v_add_u32 v{vd}, s{sT+1}, v{vd}")
    a(f"s_mul_i32 s{sM0b}, s{sWave}, 2304")
    a(f"s_lshl_b32 s{sT}, s{sMb}, 4")
    a(f"s_lshl_b32 s{sT+1}, s{sWave}, 1")
    a(f"s_add_u32 s{sT}, s{sT}, s{sT+1}")
    a(f"s_mul_i32 s{sT+1}, s{sT}, 18432")
    a(f"v_lshlrev_b32 v{vX0}, 4, v0")
    a(f"v_add_u32 v{vX0}, s{sT+1}, v{vX0}")
    a(f"v_add_u32 v{vX1}, 18432, v{vX0}")
    a(f"s_mul_i32 s{sHb}, s{sT}, 144")
    a(f"s_lshr_b32 s{sT+1}, s{sFb}, 1")
    a(f"s_mul_i32 s{sT+1}, s{sT+1}, 9")
    a(f"s_add_u32 s{sHb}, s{sHb}, s{sT+1}")
    a(f"s_lshl_b32 s{sHb}, s{sHb}, 10")
    a(f"v_lshrrev_b32 v{vT+1}, 2, v0")
    a(f"v_mul_u32_u24 v{vT+1}, 288, v{vT+1}")
    a(f"v_and_b32 v{vT+2}, 3, v0")
    a(f"v_lshl_add_u32 v{vWa}, v{vT+2}, 3, v{vT+1}")
    a(f"v_add_u32 v{vWb}, {3*STG}, v{vWa}")
    sRot, sCnt = 54, 55
    if "rot" in OPT:
        a(f"s_mul_i32 s{sRot}, s{sMb}, 9")
        a(f"s_and_b32 s{sT}, s{sFb}, 3")
        a(f"s_mul_i32 s{sT}, s{sT}, 18")
        a(f"s_add_u32 s{sRot}, s{sRot}, s{sT}")
        a(f"s_lshr_b32 s{sRot}, s{sRot}, 2")
        a(f"s_sub_u32 s{sT}, s{sRot}, 18")
        a(f"s_cmp_ge_u32 s{sRot}, 18")
        a(f"s_cselect_b32 s{sRot}, s{sT}, s{sRot}")
    else:
        a(f"s_mov_b32 s{sRot}, 0")
    if "samew" in OPT:
        a(f"s_mov_b32 s{sRot}, 0")
    a(f"s_mov_b32 s{sCnt}, 0")
    a(f"s_mul_i32 s{sWoff}, s{sRot}, {32*9216}")
    a(f"s_lshl_b32 s{sXoff}, s{sRot}, 10")
    a(f"s_mov_b64 s[{sExec}:{sExec+1}], 0xffff")
    a(f"v_mov_b32 v{vLane}, v0")

    def load_groups(stage, xset):
        gs = []
        for t, vd in enumerate((vD0, vD1, vD2)):
            g = [f"s_add_u32 m0, s{sM0b}, {stage*STG + t*1024}"]
            if t == 2:
                g.append(f"s_mov_b64 exec, s[{sExec}:{sExec+1}]")
            else:
                g.append("s_nop 0")
            g.append(f"buffer_load_dwordx4 v{vd}, {sr(sW,4)}, s{sWoff} offen lds")
            if t == 2:
                g.append("s_mov_b64 exec, -1")
            gs.append(g)
        gs.append([f"buffer_load_dwordx4 {vr(XS+xset*8,4)}, v{vX0}, {sr(sX,4)}, s{sXoff} offen"])
        gs.append([f"buffer_load_dwordx4 {vr(XS+xset*8+4,4)}, v{vX1}, {sr(sX,4)}, s{sXoff} offen",
                   f"s_add_u32 s{sRot}, s{sRot}, 1",
                   f"s_cmp_eq_u32 s{sRot}, {4 if 'hot4' in OPT else 18}",
                   f"s_cselect_b32 s{sRot}, 0, s{sRot}",
                   f"s_add_u32 s{sCnt}, s{sCnt}, 1",
                   f"s_mul_i32 s{sWoff}, s{sRot}, {32*9216}",
                   f"s_lshl_b32 s{sXoff}, s{sRot}, 10",
                   f"s_cmp_ge_u32 s{sCnt}, 18",
                   f"s_cselect_b32 s{sWoff}, 0x7f000000, s{sWoff}",
                   f"s_cselect_b32 s{sXoff}, 0x7f000000, s{sXoff}"])
        return gs
    def issue_loads(stage, xset):
        for g in load_groups(stage, xset):
            for x in g: a(x)

    for s in range(5):
        issue_loads(s, s)
    a("s_waitcnt vmcnt(25)")
    for mt, (vM, vR) in enumerate(((vM0, vR0), (vM1, vR1))):
        b = WR + mt * 12
        a(f"v_add_f32 v{vT}, v{b}, v{b+2}")
        a(f"v_add_f32 v{vT+1}, v{b+4}, v{b+6}")
        a(f"v_add_f32 v{vT+2}, v{b+8}, v{b+10}")
        a(f"v_add_f32 v{vT}, v{vT}, v{vT+1}")
        a(f"v_add_f32 v{vT}, v{vT}, v{vT+2}")
        a(f"v_mul_f32 v{vT}, {f32(1.0/6.0)}, v{vT}")
        a(f"v_add_f32 v{vT+1}, v{b+1}, v{b+3}")
        a(f"v_add_f32 v{vT+2}, v{b+5}, v{b+7}")
        a(f"v_add_f32 v{vT+3}, v{b+9}, v{b+11}")
        a(f"v_add_f32 v{vT+1}, v{vT+1}, v{vT+2}")
        a(f"v_add_f32 v{vT+1}, v{vT+1}, v{vT+3}")
        a(f"v_mov_b32 v{vT+2}, 0")
        for t in range(6):
            a(f"v_sub_f32 v{vT+3}, v{b+2*t}, v{vT}")
            a(f"v_fmac_f32 v{vT+2}, v{vT+3}, v{vT+3}")
        a(f"v_fmac_f32 v{vT+1}, {f32(96.0)}, v{vT+2}")
        a(f"v_mul_f32 v{vT+1}, {f32(1.0/576.0)}, v{vT+1}")
        round_bf16(a, vM, vT)
        round_bf16(a, vT+1, vT+1)
        a(f"v_add_f32 v{vT+1}, {f32(1e-5)}, v{vT+1}")
        round_bf16(a, vT+1, vT+1)
        a(f"v_sqrt_f32 v{vT+1}, v{vT+1}")
        a("s_nop 0")
        round_bf16(a, vT+1, vT+1)
        a(f"v_rcp_f32 v{vR}, v{vT+1}")
    for i in range(0, 144, 2):
        a(f"v_mov_b64 {vr(ACC+i,2)}, 0")

    def norm_ops(xset):
        ops = []
        for mt, (vM, vR) in enumerate(((vM0, vR0), (vM1, vR1))):
            for d in range(4):
                x = XS + xset * 8 + mt * 4 + d
                t0 = vT + (d % 2) * 2
                t1 = t0 + 1
                ops.append(f"v_lshlrev_b32 v{t0}, 16, v{x}")
                ops.append(f"v_and_b32 v{t1}, 0xffff0000, v{x}")
                if "fastnorm" in OPT:
                    ops.append(f"v_sub_f32 v{t0}, v{t0}, v{vM}")
                    ops.append(f"v_sub_f32 v{t1}, v{t1}, v{vM}")
                    ops.append(f"v_cvt_pk_bf16_f32 v{x}, v{t0}, v{t1}")
                    continue
                ops.append(f"v_sub_f32 v{t0}, v{t0}, v{vM}")
                ops.append(f"v_sub_f32 v{t1}, v{t1}, v{vM}")
                ops.append(f"v_cvt_pk_bf16_f32 v{t0}, v{t0}, v{t1}")
                ops.append(f"v_and_b32 v{t1}, 0xffff0000, v{t0}")
                ops.append(f"v_lshlrev_b32 v{t0}, 16, v{t0}")
                ops.append(f"v_mul_f32 v{t0}, v{t0}, v{vR}")
                ops.append(f"v_mul_f32 v{t1}, v{t1}, v{vR}")
                ops.append(f"v_cvt_pk_bf16_f32 v{x}, v{t0}, v{t1}")
        return ops

    def wread(fidx_global):
        st = (fidx_global // 18) % NST
        f = fidx_global % 18
        nt, mat = f // 2, f % 2
        slot = fidx_global % RING
        base = vWa if st < 3 else vWb
        off = (st % 3) * STG + mat * 9216 + nt * 32
        a(f"ds_read_b64_tr_b16 {vr(WR+slot*4,2)}, v{base} offset:{off}")
        a(f"ds_read_b64_tr_b16 {vr(WR+slot*4+2,2)}, v{base} offset:{off+4608}")

    PF = RING - 1
    a("s_waitcnt vmcnt(15)")
    for op in norm_ops(0):
        a(op)
    a("s_barrier")
    for f in range(PF):
        wread(f)
    stamp(a, 1)
    a(f"s_mov_b32 s{sIt}, 0")
    a(".p2align 6")
    a.lab(f"L_{name}_loop")
    for ph in range(NST):
        lg = load_groups((ph + 5) % NST, (ph + 5) % NST)
        spread = "spread" in OPT
        if not spread:
            issue_loads((ph + 5) % NST, (ph + 5) % NST)
        nops = norm_ops((ph + 1) % NST)
        if "nonorm" in OPT: nops = []
        ni = 0
        for f in range(18):
            g = ph * 18 + f
            nt, mat = f // 2, f % 2
            slot = g % RING
            wread(g + PF)
            a(f"s_waitcnt lgkmcnt({2*PF})")
            a(f"v_mfma_f32_16x16x32_bf16 {vr(acc(nt,mat,0),4)}, {vr(WR+slot*4,4)}, {vr(XS+ph*8,4)}, {vr(acc(nt,mat,0),4)}")
            a(f"v_mfma_f32_16x16x32_bf16 {vr(acc(nt,mat,1),4)}, {vr(WR+slot*4,4)}, {vr(XS+ph*8+4,4)}, {vr(acc(nt,mat,1),4)}")
            if f == 1:
                a("s_waitcnt vmcnt(%d)" % (15 if spread else 20))
            if spread and f % 3 == 2 and f // 3 < 5:
                for x in lg[f // 3]: a(x)
            if f >= 1:
                for _ in range(5):
                    if ni < len(nops):
                        a(nops[ni]); ni += 1
        assert ni == len(nops)
        a("s_waitcnt vmcnt(17)")
        a("s_barrier")
    a(f"s_add_u32 s{sIt}, s{sIt}, 1")
    a(f"s_cmp_lt_u32 s{sIt}, 3")
    a(f"s_cbranch_scc1 L_{name}_loop")
    stamp(a, 2)
    a("s_waitcnt vmcnt(0) lgkmcnt(0)")
    a(f"s_mov_b32 s{sA_}, {f32(GELU_A)}")
    a(f"s_mov_b32 s{sB_}, {f32(GELU_B)}")
    a(f"v_lshlrev_b32 v{vX0}, 4, v{vLane}")
    a(f"s_and_b32 s{sT}, s{sFb}, 1")
    a(f"s_lshl_b32 s{sT+1}, s{sT}, 12")
    a(f"s_add_u32 s{sT+1}, s{sT+1}, s{sHb}")
    a(f"s_lshl_b32 s{sT+2}, s{sT}, 3")
    a(f"s_add_u32 s{sT+2}, s{sT+2}, s{sHb}")
    a(f"s_add_u32 s{sT+2}, s{sT+2}, {8*1024}")
    a(f"s_add_u32 s{sT+3}, s{sT+1}, {144*1024}")
    a(f"s_add_u32 s{sT+4}, s{sT+2}, {144*1024}")
    OUT = XS
    def gelu_tile(nt, mt, dst):
        g = acc(nt, 0, mt); u = acc(nt, 1, mt)
        T = WR
        for h in range(2):
            g0, g1, u0, u1 = g+2*h, g+2*h+1, u+2*h, u+2*h+1
            x0, x1, y0, y1, t0, t1 = T+h*8, T+h*8+1, T+h*8+2, T+h*8+3, T+h*8+4, T+h*8+5
            if "relax" in OPT:
                x0, x1, y0, y1 = g0, g1, u0, u1
            else:
                a(f"v_cvt_pk_bf16_f32 v{x0}, v{g0}, v{g1}")
                a(f"v_cvt_pk_bf16_f32 v{y0}, v{u0}, v{u1}")
                a(f"v_and_b32 v{x1}, 0xffff0000, v{x0}")
                a(f"v_lshlrev_b32 v{x0}, 16, v{x0}")
                a(f"v_and_b32 v{y1}, 0xffff0000, v{y0}")
                a(f"v_lshlrev_b32 v{y0}, 16, v{y0}")
            a(f"v_mul_f32 v{t0}, v{x0}, v{x0}")
            a(f"v_mul_f32 v{t1}, v{x1}, v{x1}")
            a(f"v_fma_f32 v{t0}, v{t0}, s{sB_}, v{vT}")
            a(f"v_fma_f32 v{t1}, v{t1}, s{sB_}, v{vT}")
            a(f"v_mul_f32 v{t0}, v{t0}, v{x0}")
            a(f"v_mul_f32 v{t1}, v{t1}, v{x1}")
            a(f"v_exp_f32 v{t0}, v{t0}")
            a(f"v_exp_f32 v{t1}, v{t1}")
            a("s_nop 0")
            a(f"v_add_f32 v{t0}, 1.0, v{t0}")
            a(f"v_add_f32 v{t1}, 1.0, v{t1}")
            a(f"v_rcp_f32 v{t0}, v{t0}")
            a(f"v_rcp_f32 v{t1}, v{t1}")
            a("s_nop 0")
            a(f"v_mul_f32 v{t0}, v{t0}, v{x0}")
            a(f"v_mul_f32 v{t1}, v{t1}, v{x1}")
            if "relax" not in OPT:
                a(f"v_cvt_pk_bf16_f32 v{t0}, v{t0}, v{t1}")
                a(f"v_and_b32 v{t1}, 0xffff0000, v{t0}")
                a(f"v_lshlrev_b32 v{t0}, 16, v{t0}")
            a(f"v_mul_f32 v{t0}, v{t0}, v{y0}")
            a(f"v_mul_f32 v{t1}, v{t1}, v{y1}")
            a(f"v_cvt_pk_bf16_f32 v{dst+h}, v{t0}, v{t1}")
    a(f"v_mov_b32 v{vT}, s{sA_}")
    a("s_nop 7")
    k = 0
    for mt in range(2):
        for p in range(4):
            o = OUT + (k % 12) * 4; k += 1
            gelu_tile(2*p, mt, o)
            gelu_tile(2*p+1, mt, o+2)
            a(f"buffer_store_dwordx4 {vr(o,4)}, v{vX0}, {sr(sH,4)}, s{sT+1+2*mt} offen offset:{p*1024}")
        o = OUT + (k % 12) * 4; k += 1
        gelu_tile(8, mt, o)
        a(f"buffer_store_dwordx2 {vr(o,2)}, v{vX0}, {sr(sH,4)}, s{sT+2+2*mt} offen")
    stamp(a, 3)
    a("s_waitcnt vmcnt(0)")
    stamp(a, 4)
    stamp(a, 6, True)
    stamp_dump(a, 7, 8, sWave, vT)
    a.lab(f"L_{name}_done")
    a("s_endpgm")
    return a.text(), kernel_desc(name, NV), f"; @launch kernel={name} grid=(256,1,1) block=(512,1,1) lds={NST*STG}"


def lds_dump(a, nbytes, wg, tidv, tv, off_mb, nthreads=512, tag="d"):
    a(f"s_cmp_lg_u32 s2, {wg}")
    a(f"s_cbranch_scc1 L_dump_{tag}")
    srd(a, 80, 8, 1 << 20, off_mb << 20)
    a(f"v_lshlrev_b32 v{tv}, 4, v{tidv}")
    for i in range(0, nbytes, nthreads*16):
        a(f"v_add_u32 v{tv+1}, {i}, v{tv}")
        a(f"ds_read_b128 v[{tv+2}:{tv+5}], v{tv+1}")
        a("s_waitcnt lgkmcnt(0)")
        a(f"buffer_store_dwordx4 v[{tv+2}:{tv+5}], v{tv+1}, s[80:83], 0 offen")
        a("s_waitcnt vmcnt(0)")
    a.lab(f"L_dump_{tag}")
    a("s_barrier")

class VM:
    def __init__(self, a):
        self.a = a; self.ops = []
    def op(self, tag, text):
        if "noload" in OPT and tag[0] in ("W", "X") and tag[1] >= 2 and getattr(self.a, "k3", False): return
        self.a(text); self.ops.append(tag)
    def wait(self, tagpred, extra=""):
        last = -1
        for i, t in enumerate(self.ops):
            if tagpred(t): last = i
        n = len(self.ops) - 1 - last
        assert n <= 63
        if last >= 0:
            self.a(f"s_waitcnt vmcnt({n}){extra}")
            self.ops = self.ops[last+1:]

def gen_k4(name="k4_kernel"):
    a = A(); vm = VM(a)
    kernel_head(a, name)
    NST = 6; STG = 18432; RING = 6; PFD = 5
    ACC = 4
    XS = 76
    WR = 124
    vWa, vWb = 148, 149
    vD0, vD1, vD2 = 150, 151, 152
    vX0, vX1 = 153, 154
    vT = 156
    NV = 172
    def acc(nt, mt): return ACC + (nt*2+mt)*4
    sW, sX, sP = 12, 16, 20
    sWave, sKs, sMb, sNb = 28, 29, 30, 31
    sWb1, sWb2, sXb, sM0b = 32, 33, 34, 35
    sT = 36
    sExec = 50
    sWo = 52
    a("s_cmp_ge_u32 s2, 256")
    a(f"s_cbranch_scc1 L_{name}_done")
    stamp(a, 0); stamp(a, 5, True)
    a("s_load_dwordx2 s[4:5], s[0:1], 48")
    a("s_load_dwordx2 s[8:9], s[0:1], 72")
    a("v_lshrrev_b32 v1, 6, v0")
    a("v_and_b32 v0, 63, v0")
    a("s_nop 0")
    a(f"v_readfirstlane_b32 s{sWave}, v1")
    a(f"s_and_b32 s{sT}, s2, 7")
    a(f"s_lshr_b32 s{sT+1}, s2, 3")
    a(f"s_lshr_b32 s{sKs}, s{sT}, 1")
    a(f"s_and_b32 s{sNb}, s{sT+1}, 3")
    a(f"s_and_b32 s{sT}, s{sT}, 1")
    a(f"s_lshl_b32 s{sT}, s{sT}, 3")
    a(f"s_lshr_b32 s{sMb}, s{sT+1}, 2")
    a(f"s_add_u32 s{sMb}, s{sMb}, s{sT}")
    a("s_waitcnt lgkmcnt(0)")
    srd(a, sW, 4, 4608*576*2)
    srd(a, sX, 8, HH_SZ, HH_OFF)
    srd(a, sP, 8, P_SZ, P_OFF)
    for t, vd in enumerate((vD0, vD1, vD2)):
        a(f"v_add_u32 v{vT+1}, {t*64}, v0")
        a(f"v_mul_u32_u24 v{vT+2}, 3641, v{vT+1}")
        a(f"v_lshrrev_b32 v{vT+2}, 16, v{vT+2}")
        a(f"v_mul_u32_u24 v{vT+3}, 18, v{vT+2}")
        a(f"v_sub_u32 v{vT+3}, v{vT+1}, v{vT+3}")
        a(f"v_mul_u32_u24 v{vT+2}, 1152, v{vT+2}")
        a(f"v_lshl_add_u32 v{vd}, v{vT+3}, 4, v{vT+2}")
    a(f"s_lshr_b32 s{sT}, s{sWave}, 2")
    a(f"s_lshl_b32 s{sT+1}, s{sKs}, 1")
    a(f"s_add_u32 s{sT+1}, s{sT+1}, s{sT}")
    a(f"s_mul_i32 s{sWb1}, s{sT+1}, {576*1152}")
    a(f"s_and_b32 s{sT+2}, s{sWave}, 3")
    a(f"s_mul_i32 s{sT+3}, s{sT+2}, {8*1152}")
    a(f"s_add_u32 s{sWb1}, s{sWb1}, s{sT+3}")
    a(f"s_mul_i32 s{sT+3}, s{sNb}, 288")
    a(f"s_add_u32 s{sWb1}, s{sWb1}, s{sT+3}")
    a(f"s_cmp_ge_u32 s{sT+2}, 2")
    a(f"s_cselect_b32 s{sT+3}, {128*1152}, 0")
    a(f"s_add_u32 s{sWb2}, s{sWb1}, s{sT+3}")
    a(f"s_mul_i32 s{sM0b}, s{sWave}, 2304")
    a(f"s_lshl_b32 s{sXb}, s{sMb}, 3")
    a(f"s_lshl_b32 s{sT+3}, s{sT+2}, 1")
    a(f"s_add_u32 s{sXb}, s{sXb}, s{sT+3}")
    a(f"s_mov_b32 s{sT+4}, s{sXb}")
    a(f"s_mul_i32 s{sXb}, s{sXb}, 144")
    a(f"s_mul_i32 s{sT+3}, s{sT+1}, 18")
    a(f"s_add_u32 s{sXb}, s{sXb}, s{sT+3}")
    a(f"s_lshl_b32 s{sXb}, s{sXb}, 10")
    a(f"v_lshlrev_b32 v{vX0}, 4, v0")
    a(f"v_add_u32 v{vX0}, s{sXb}, v{vX0}")
    a(f"v_add_u32 v{vX1}, {144*1024}, v{vX0}")
    a(f"s_lshl_b32 s{sT+5}, s{sKs}, 7")
    a(f"s_add_u32 s{sT+5}, s{sT+5}, s{sT+4}")
    a(f"s_add_u32 s{sT+5}, s{sT+5}, s{sT}")
    a(f"s_mul_i32 s{sT+5}, s{sT+5}, 36")
    a(f"s_mul_i32 s{sT+6}, s{sNb}, 9")
    a(f"s_add_u32 s{sT+5}, s{sT+5}, s{sT+6}")
    a(f"s_lshl_b32 s{sT+5}, s{sT+5}, 10")
    a(f"v_lshrrev_b32 v{vT+1}, 2, v0")
    a(f"v_mul_u32_u24 v{vT+1}, 288, v{vT+1}")
    a(f"v_and_b32 v{vT+2}, 3, v0")
    a(f"v_lshl_add_u32 v{vWa}, v{vT+2}, 3, v{vT+1}")
    a(f"s_mul_i32 s{sT+6}, s{sT}, 9216")
    a(f"v_add_u32 v{vWa}, s{sT+6}, v{vWa}")
    a(f"v_add_u32 v{vWb}, {3*STG}, v{vWa}")
    a(f"s_mov_b64 s[{sExec}:{sExec+1}], 0xffff")

    def fa_rel(i):
        q, ii = divmod(i, 9)
        if ii < 4: return 288*q + 32*ii
        if ii < 8: return 288*q + 144 + 32*(ii-4)
        return 288*q + 128
    def load_groups(i):
        if i >= 18: return []
        st = i % NST
        gs = []
        base = sWb2 if i % 9 == 8 else sWb1
        for t, vd in enumerate((vD0, vD1, vD2)):
            g = []
            if t == 0:
                g.append(("s", f"s_add_u32 s{sWo}, s{base}, {fa_rel(i)*1152}"))
            g.append(("s", f"s_add_u32 m0, s{sM0b}, {st*STG + t*1024}"))
            g.append(("s", f"s_mov_b64 exec, s[{sExec}:{sExec+1}]" if t == 2 else "s_nop 0"))
            g.append((("W", i), f"buffer_load_dwordx4 v{vd}, {sr(sW,4)}, s{sWo} offen lds"))
            if t == 2: g.append(("s", "s_mov_b64 exec, -1"))
            gs.append(g)
        xs = XS + (i % NST) * 8
        gs.append([("s", f"s_mov_b32 s{sWo+1}, {i*1024}"),
                   (("X", i), f"buffer_load_dwordx4 {vr(xs,4)}, v{vX0}, {sr(sX,4)}, s{sWo+1} offen")])
        gs.append([(("X", i), f"buffer_load_dwordx4 {vr(xs+4,4)}, v{vX1}, {sr(sX,4)}, s{sWo+1} offen")])
        return gs
    def emit_group(g):
        for tag, txt in g:
            if tag == "s": a(txt)
            else: vm.op(tag, txt)
    for i in range(PFD):
        for g in load_groups(i): emit_group(g)
    for i in range(0, 72, 2):
        a(f"v_mov_b64 {vr(ACC+i,2)}, 0")
    def wread(gidx):
        i, nt = divmod(gidx, 9)
        if i >= 18: return False
        st = i % NST; slot = gidx % RING
        base = vWa if st < 3 else vWb
        off = (st % 3) * STG + nt * 32
        a(f"ds_read_b64_tr_b16 {vr(WR+slot*4,2)}, v{base} offset:{off}")
        a(f"ds_read_b64_tr_b16 {vr(WR+slot*4+2,2)}, v{base} offset:{off+4608}")
        return True
    PF = RING - 1
    vm.wait(lambda t: t[1] <= 1)
    a("s_barrier")
    for f in range(PF): wread(f)
    stamp(a, 1)
    for i in range(18):
        lg = load_groups(i + PFD)
        vm.wait(lambda t: t[0] == "X" and t[1] <= i)
        for nt in range(9):
            g = i*9 + nt; slot = g % RING
            ok = wread(g + PF)
            rem = min(PF, 18*9 - 1 - g)
            a(f"s_waitcnt lgkmcnt({2*rem})")
            xs = XS + (i % NST) * 8
            a(f"v_mfma_f32_16x16x32_bf16 {vr(acc(nt,0),4)}, {vr(WR+slot*4,4)}, {vr(xs,4)}, {vr(acc(nt,0),4)}")
            a(f"v_mfma_f32_16x16x32_bf16 {vr(acc(nt,1),4)}, {vr(WR+slot*4,4)}, {vr(xs+4,4)}, {vr(acc(nt,1),4)}")
            if nt % 2 == 0 and nt // 2 < len(lg):
                emit_group(lg[nt // 2])
        vm.wait(lambda t: t[0] == "W" and t[1] <= i + 2)
        a("s_barrier")
    stamp(a, 2)
    a(f"s_lshr_b32 s{sT}, s{sWave}, 2")
    a(f"v_lshlrev_b32 v{vT}, 4, v0")
    a(f"s_mul_i32 s{sT+1}, s{sWave}, 9216")
    a(f"v_add_u32 v{vT+1}, s{sT+1}, v{vT}")
    a(f"s_xor_b32 s{sT+2}, s{sWave}, 4")
    a(f"s_mul_i32 s{sT+2}, s{sT+2}, 9216")
    a(f"v_add_u32 v{vT+2}, s{sT+2}, v{vT}")
    a(f"s_cmp_eq_u32 s{sT}, 0")
    a("s_nop 4")
    a(f"s_cbranch_scc0 L_{name}_kh1")
    for kh in range(2):
        if kh == 1: a.lab(f"L_{name}_kh1")
        for nt in range(9):
            a(f"ds_write_b128 v{vT+1}, {vr(acc(nt,1-kh),4)} offset:{nt*1024}")
        a("s_waitcnt lgkmcnt(0)")
        a("s_barrier")
        for nt in range(9):
            a(f"ds_read_b128 {vr(XS+nt*4,4)}, v{vT+2} offset:{nt*1024}")
        for nt in range(9):
            a(f"s_waitcnt lgkmcnt({8-nt})")
            for r in range(4):
                a(f"v_add_f32 v{XS+nt*4+r}, v{XS+nt*4+r}, v{acc(nt,kh)+r}")
            if nt < 4:
                a(f"buffer_store_dwordx4 {vr(XS+nt*4,4)}, v{vT}, {sr(sP,4)}, s{sT+5} offen offset:{nt*1024}")
            else:
                if nt in (4, 8): a(f"s_add_u32 s{sT+5}, s{sT+5}, 4096")
                a(f"buffer_store_dwordx4 {vr(XS+nt*4,4)}, v{vT}, {sr(sP,4)}, s{sT+5} offen offset:{(nt%4)*1024}")
        stamp(a, 3)
        if "stamp" in OPT: a("s_waitcnt vmcnt(0)")
        stamp(a, 4); stamp(a, 6, True)
        stamp_dump(a, 7, 8, sWave, vT+4, 1)
        a("s_endpgm")
    a.lab(f"L_{name}_done")
    a("s_endpgm")
    return a.text(), kernel_desc(name, NV), f"; @launch kernel={name} grid=(256,1,1) block=(512,1,1) lds={NST*STG}"

def gen_k5(name="k5_kernel"):
    a = A()
    kernel_head(a, name)
    sH, sP, sO = 12, 16, 20
    a("s_cmp_ge_u32 s2, 576")
    a(f"s_cbranch_scc1 L_{name}_done")
    a("s_load_dwordx2 s[4:5], s[0:1], 56")
    a("s_load_dwordx2 s[8:9], s[0:1], 72")
    a("v_lshrrev_b32 v1, 6, v0")
    a("v_and_b32 v0, 63, v0")
    a("s_nop 0")
    a("v_readfirstlane_b32 s28, v1")
    a("s_lshl_b32 s29, s2, 2")
    a("s_add_u32 s29, s29, s28")
    a("s_mul_i32 s30, s29, 3641")
    a("s_lshr_b32 s30, s30, 16")
    a("s_mul_i32 s31, s30, 18")
    a("s_sub_u32 s31, s29, s31")
    a("s_waitcnt lgkmcnt(0)")
    srd(a, sH, 8, H1_SZ, H1_OFF)
    srd(a, sP, 8, P_SZ, P_OFF)
    srd(a, sO, 4, 2048*576*2)
    a("v_lshlrev_b32 v1, 4, v0")
    a("s_lshl_b32 s32, s29, 10")
    a("s_lshl_b32 s33, s29, 11")
    a(f"buffer_load_dwordx4 v[4:7], v1, {sr(sH,4)}, s32 offen")
    for k in range(4):
        a(f"buffer_load_dwordx4 v[{8+k*8}:{11+k*8}], v1, {sr(sP,4)}, s33 offen")
        a(f"buffer_load_dwordx4 v[{12+k*8}:{15+k*8}], v1, {sr(sP,4)}, s33 offen offset:1024")
        if k < 3: a(f"s_add_u32 s33, s33, {128*36*1024}")
    a("v_and_b32 v2, 15, v0")
    a("s_lshl_b32 s34, s30, 4")
    a("v_add_u32 v2, s34, v2")
    a("v_mul_u32_u24 v2, 1152, v2")
    a("v_lshrrev_b32 v3, 4, v0")
    a("v_lshl_add_u32 v2, v3, 3, v2")
    a("s_lshl_b32 s34, s31, 6")
    a("s_waitcnt vmcnt(0)")
    for i in range(8):
        a(f"v_add_f32 v{8+i}, v{8+i}, v{16+i}")
        a(f"v_add_f32 v{24+i}, v{24+i}, v{32+i}")
    for i in range(8):
        a(f"v_add_f32 v{8+i}, v{8+i}, v{24+i}")
    for p in range(4):
        a(f"v_cvt_pk_bf16_f32 v{16+p}, v{8+2*p}, v{9+2*p}")
    for p in range(4):
        a(f"v_lshlrev_b32 v{24+2*p}, 16, v{16+p}")
        a(f"v_and_b32 v{25+2*p}, 0xffff0000, v{16+p}")
        a(f"v_lshlrev_b32 v{32+2*p}, 16, v{4+p}")
        a(f"v_and_b32 v{33+2*p}, 0xffff0000, v{4+p}")
    for i in range(8):
        a(f"v_add_f32 v{24+i}, v{24+i}, v{32+i}")
    for p in range(4):
        a(f"v_cvt_pk_bf16_f32 v{16+p}, v{24+2*p}, v{25+2*p}")
    a(f"buffer_store_dwordx2 v[16:17], v2, {sr(sO,4)}, s34 offen")
    a(f"buffer_store_dwordx2 v[18:19], v2, {sr(sO,4)}, s34 offen offset:32")
    a.lab(f"L_{name}_done")
    a("s_endpgm")
    return a.text(), kernel_desc(name, 40, 48), f"; @launch kernel={name} grid=(576,1,1) block=(256,1,1) lds=0"


def gen_k2(name="k2_kernel"):
    a = A(); vm = VM(a)
    kernel_head(a, name)
    PITCH = 224; BLK = 32*PITCH
    ACC = 4
    OF = 28
    XR = 100
    WR = 112
    vD = 160
    vWa, vWb = 167, 168
    vT = 170
    NV = 188
    sW, sO, sXs, sH, sST = 12, 16, 20, 24, 28
    sWave, sRb, sNb, sT = 32, 33, 34, 36
    a("s_cmp_ge_u32 s2, 192")
    a(f"s_cbranch_scc1 L_{name}_done")
    stamp(a, 0); stamp(a, 5, True)
    a("s_load_dwordx2 s[4:5], s[0:1], 0")
    a("s_load_dwordx2 s[6:7], s[0:1], 16")
    a("s_load_dwordx2 s[8:9], s[0:1], 72")
    a("v_lshrrev_b32 v1, 6, v0")
    a("v_and_b32 v0, 63, v0")
    a("s_nop 0")
    a(f"v_readfirstlane_b32 s{sWave}, v1")
    a(f"s_lshr_b32 s{sT+1}, s2, 3")
    a(f"s_mul_i32 s{sRb}, s{sT+1}, 10923")
    a(f"s_lshr_b32 s{sRb}, s{sRb}, 16")
    a(f"s_mul_i32 s{sT}, s{sRb}, 6")
    a(f"s_sub_u32 s{sNb}, s{sT+1}, s{sT}")
    a(f"s_and_b32 s{sT}, s2, 7")
    a(f"s_lshl_b32 s{sT}, s{sT}, 2")
    a(f"s_add_u32 s{sRb}, s{sRb}, s{sT}")
    a("s_waitcnt lgkmcnt(0)")
    srd(a, sW, 6, 576*576*2)
    srd(a, sO, 8, O_SZ, O_OFF)
    srd(a, sXs, 4, 2048*576*2)
    srd(a, sH, 8, H1_SZ, H1_OFF)
    srd(a, sST, 8, ST_SZ, ST_OFF)
    a(f"s_mul_i32 s{sT}, s{sNb}, 192")
    a(f"s_mov_b32 s{sT+1}, 0x40000000")
    for t in range(7):
        a(f"v_add_u32 v{vT}, {t*64}, v0")
        a(f"v_mul_u32_u24 v{vT+1}, 4682, v{vT}")
        a(f"v_lshrrev_b32 v{vT+1}, 16, v{vT+1}")
        a(f"v_mul_u32_u24 v{vT+2}, 14, v{vT+1}")
        a(f"v_sub_u32 v{vT+2}, v{vT}, v{vT+2}")
        a(f"v_and_b32 v{vT+3}, 4, v{vT+1}")
        a(f"v_lshlrev_b32 v{vT+3}, 1, v{vT+3}")
        a(f"v_and_b32 v{vT+4}, 8, v{vT+1}")
        a(f"v_lshrrev_b32 v{vT+4}, 1, v{vT+4}")
        a(f"v_and_b32 v{vT+1}, 0x13, v{vT+1}")
        a(f"v_or3_b32 v{vT+1}, v{vT+1}, v{vT+3}, v{vT+4}")
        a(f"v_mul_u32_u24 v{vT+1}, 1152, v{vT+1}")
        a(f"v_lshl_add_u32 v{vT+1}, v{vT+2}, 4, v{vT+1}")
        a(f"v_add_u32 v{vT+1}, s{sT}, v{vT+1}")
        a(f"v_cmp_gt_u32 vcc, 12, v{vT+2}")
        a(f"v_mov_b32 v{vT+3}, s{sT+1}")
        a("s_nop 0")
        a(f"v_cndmask_b32 v{vD+t}, v{vT+3}, v{vT+1}, vcc")
    a(f"s_lshl_b32 s{sT}, s{sRb}, 6")
    a(f"s_lshl_b32 s{sT+1}, s{sWave}, 4")
    a(f"s_add_u32 s{sT}, s{sT}, s{sT+1}")
    a(f"v_and_b32 v{vT}, 15, v0")
    a(f"v_add_u32 v{vT}, s{sT}, v{vT}")
    a(f"v_mul_u32_u24 v{vT+1}, 1152, v{vT}")
    a(f"v_lshrrev_b32 v{vT+2}, 4, v0")
    a(f"v_lshl_add_u32 v{vT+3}, v{vT+2}, 4, v{vT+1}")
    a(f"v_lshl_add_u32 v{vT+4}, v{vT+2}, 3, v{vT+1}")
    a(f"s_mul_i32 s{sT+1}, s{sNb}, 192")
    a(f"s_mul_i32 s{sT+2}, s{sWave}, {32*1152}")
    a(f"s_mul_i32 s{sT+3}, s{sWave}, {BLK}")
    def chunk_ops(c):
        gs = []
        if c > 4: return gs
        for t in range(7):
            g = [("s", f"s_add_u32 m0, s{sT+3}, {c*4*BLK + t*1024}"), ("s", "s_nop 0"),
                 (("W", c), f"buffer_load_dwordx4 v{vD+t}, {sr(sW,4)}, s{sT+2} offen lds")]
            if t == 6: g.append(("s", f"s_add_u32 s{sT+2}, s{sT+2}, {4*32*1152}"))
            gs.append(g)
        for s_ in range(4*c, min(4*c+4, 18)):
            gs.append([(("O", c), f"buffer_load_dwordx4 {vr(OF+s_*4,4)}, v{vT+3}, {sr(sO,4)}, 0 offen offset:{s_*64}")])
        return gs
    def emit_group(g):
        for tg, txt in g:
            if tg == "s": a(txt)
            else: vm.op(tg, txt)
    for c in range(2):
        for g in chunk_ops(c): emit_group(g)
    a(f"v_lshrrev_b32 v{vT+5}, 5, v0")
    a(f"v_lshlrev_b32 v{vT+5}, 4, v{vT+5}")
    a(f"v_bfe_u32 v{vT+6}, v0, 2, 3")
    a(f"v_add_u32 v{vT+5}, v{vT+5}, v{vT+6}")
    a(f"v_mul_u32_u24 v{vT+5}, {PITCH}, v{vT+5}")
    a(f"v_and_b32 v{vT+6}, 3, v0")
    a(f"v_lshl_add_u32 v{vWa}, v{vT+6}, 3, v{vT+5}")
    a(f"v_add_u32 v{vWb}, {9*BLK}, v{vWa}")
    def wread(s_, buf):
        base = vWa if s_ < 9 else vWb
        for nt in range(6):
            off = (s_ % 9) * BLK + nt * 32
            a(f"ds_read_b64_tr_b16 {vr(WR+buf*24+nt*4,2)}, v{base} offset:{off}")
            a(f"ds_read_b64_tr_b16 {vr(WR+buf*24+nt*4+2,2)}, v{base} offset:{off+8*PITCH}")
    for c in range(5):
        vm.wait(lambda t: t[1] <= c)
        a("s_barrier")
        if c == 0: stamp(a, 1)
        lg = chunk_ops(c+2)
        if c == 2:
            for nt in range(6):
                lg.append([(("X", 9), f"buffer_load_dwordx2 {vr(XR+nt*2,2)}, v{vT+4}, {sr(sXs,4)}, s{sT+1} offen offset:{nt*32}")])
        gi = 0
        steps = list(range(4*c, min(4*c+4, 18)))
        wread(steps[0], steps[0] % 2)
        for s_ in steps:
            if s_ != steps[-1]:
                wread(s_+1, (s_+1) % 2)
                a("s_waitcnt lgkmcnt(12)")
            else:
                a("s_waitcnt lgkmcnt(0)")
            for nt in range(6):
                cc = vr(ACC+nt*4,4)
                a(f"v_mfma_f32_16x16x32_bf16 {cc}, {vr(WR+(s_%2)*24+nt*4,4)}, {vr(OF+s_*4,4)}, " + ("0" if s_ == 0 else cc))
                if gi < len(lg):
                    emit_group(lg[gi]); gi += 1
        assert gi == len(lg)
    a("s_waitcnt vmcnt(0)")
    a("s_nop 7")
    stamp(a, 2)
    HP = WR
    for nt in range(6):
        for p in range(2):
            c0 = ACC + nt*4 + 2*p
            a(f"v_cvt_pk_bf16_f32 v{vT}, v{c0}, v{c0+1}")
            a(f"v_lshlrev_b32 v{c0}, 16, v{vT}")
            a(f"v_and_b32 v{c0+1}, 0xffff0000, v{vT}")
            a(f"v_lshlrev_b32 v{vT+1}, 16, v{XR+nt*2+p}")
            a(f"v_and_b32 v{vT+2}, 0xffff0000, v{XR+nt*2+p}")
            a(f"v_add_f32 v{c0}, v{c0}, v{vT+1}")
            a(f"v_add_f32 v{c0+1}, v{c0+1}, v{vT+2}")
            a(f"v_cvt_pk_bf16_f32 v{HP+nt*2+p}, v{c0}, v{c0+1}")
            a(f"v_lshlrev_b32 v{c0}, 16, v{HP+nt*2+p}")
            a(f"v_and_b32 v{c0+1}, 0xffff0000, v{HP+nt*2+p}")
    a(f"s_lshl_b32 s{sT}, s{sRb}, 2")
    a(f"s_add_u32 s{sT}, s{sT}, s{sWave}")
    a(f"s_mul_i32 s{sT+1}, s{sT}, 18")
    a(f"s_mul_i32 s{sT+2}, s{sNb}, 3")
    a(f"s_add_u32 s{sT+1}, s{sT+1}, s{sT+2}")
    a(f"s_lshl_b32 s{sT+1}, s{sT+1}, 10")
    a(f"v_lshlrev_b32 v{vT}, 4, v0")
    for p in range(3):
        a(f"buffer_store_dwordx4 {vr(HP+p*4,4)}, v{vT}, {sr(sH,4)}, s{sT+1} offen offset:{p*1024}")
    def xreduce(v, t):
        a(f"v_xor_b32 v{t}, 16, v0")
        a(f"v_lshlrev_b32 v{t}, 2, v{t}")
        a(f"ds_bpermute_b32 v{t+1}, v{t}, v{v}")
        a("s_waitcnt lgkmcnt(0)")
        a(f"v_add_f32 v{v}, v{v}, v{t+1}")
        a(f"v_xor_b32 v{t}, 32, v0")
        a(f"v_lshlrev_b32 v{t}, 2, v{t}")
        a(f"ds_bpermute_b32 v{t+1}, v{t}, v{v}")
        a("s_waitcnt lgkmcnt(0)")
        a(f"v_add_f32 v{v}, v{v}, v{t+1}")
    S0, S1 = vT+4, vT+5
    a(f"v_add_f32 v{S0}, v{ACC}, v{ACC+1}")
    for i in range(2, 24):
        a(f"v_add_f32 v{S0}, v{S0}, v{ACC+i}")
    xreduce(S0, vT+6)
    a(f"v_mul_f32 v{S0}, {f32(1.0/96.0)}, v{S0}")
    a(f"v_mov_b32 v{S1}, 0")
    for i in range(24):
        a(f"v_sub_f32 v{vT+1}, v{ACC+i}, v{S0}")
        a(f"v_fmac_f32 v{S1}, v{vT+1}, v{vT+1}")
    xreduce(S1, vT+6)
    a(f"s_lshl_b32 s{sT}, s{sT}, 4")
    a(f"v_add_u32 v{vT}, s{sT}, v0")
    a(f"v_mul_u32_u24 v{vT}, 48, v{vT}")
    a(f"s_lshl_b32 s{sT+1}, s{sNb}, 3")
    a("s_mov_b64 exec, 0xffff")
    a(f"buffer_store_dwordx2 {vr(S0,2)}, v{vT}, {sr(sST,4)}, s{sT+1} offen")
    stamp(a, 3)
    if "stamp" in OPT: a("s_waitcnt vmcnt(0)")
    stamp(a, 4); stamp(a, 6, True)
    stamp_dump(a, 7, 8, sWave, vT+8, 2)
    a.lab(f"L_{name}_done")
    a("s_endpgm")
    return a.text(), kernel_desc(name, NV, 96), f"; @launch kernel={name} grid=(192,1,1) block=(256,1,1) lds={20*BLK}"

def gen_k1(name="k1_kernel"):
    a = A(); vm = VM(a)
    kernel_head(a, name)
    XT = 0
    WB = 92160; STG = 16384; NST = 4; PITCH = 480
    QP = 624
    ACC = 4
    XF = 44
    WF = 84
    RAW = 100
    vD0, vD1 = 150, 151
    vWa, vXa = 152, 153
    vT = 156
    NV = 200
    sW, sXs, sO = 12, 16, 20
    sWave, sRb, sHg, sT = 28, 29, 30, 36
    sWo, sM0b = 31, 32
    a("s_cmp_ge_u32 s2, 256")
    a(f"s_cbranch_scc1 L_{name}_done")
    stamp(a, 0); stamp(a, 5, True)
    a("s_load_dwordx4 s[4:7], s[0:1], 0")
    a("s_load_dwordx2 s[8:9], s[0:1], 72")
    a("v_lshrrev_b32 v1, 6, v0")
    a("v_mov_b32 v3, v0")
    a("v_and_b32 v0, 63, v0")
    a(f"v_readfirstlane_b32 s{sWave}, v1")
    a(f"s_lshr_b32 s{sT}, s2, 3")
    a(f"s_and_b32 s{sHg}, s{sT}, 3")
    a(f"s_and_b32 s{sT+1}, s2, 1")
    a(f"s_lshl_b32 s{sT+1}, s{sT+1}, 2")
    a(f"s_add_u32 s{sHg}, s{sHg}, s{sT+1}")
    a(f"s_lshr_b32 s{sRb}, s{sT}, 2")
    a(f"s_bfe_u32 s{sT+1}, s2, 0x20001")
    a(f"s_lshl_b32 s{sT+1}, s{sT+1}, 3")
    a(f"s_add_u32 s{sRb}, s{sRb}, s{sT+1}")
    a("s_waitcnt lgkmcnt(0)")
    srd(a, sW, 6, 576*1728*2)
    srd(a, sXs, 4, 2048*576*2)
    srd(a, sO, 8, O_SZ, O_OFF)
    a(f"v_mul_u32_u24 v{vT}, 10923, v0")
    a(f"v_lshrrev_b32 v{vT}, 16, v{vT}")
    a(f"v_mul_u32_u24 v{vT+1}, 6, v{vT}")
    a(f"v_sub_u32 v{vT+1}, v0, v{vT+1}")
    a(f"s_mul_i32 s{sT}, s{sWave}, 10")
    a(f"v_add_u32 v{vT+2}, s{sT}, v{vT}")
    a(f"s_lshl_b32 s{sT+1}, s{sRb}, 6")
    a(f"s_sub_u32 s{sT+1}, s{sT+1}, 16")
    a(f"v_add_u32 v{vT+3}, s{sT+1}, v{vT+2}")
    a(f"s_movk_i32 s{sT+2}, 1152")
    a(f"v_mul_lo_u32 v{vT+3}, v{vT+3}, s{sT+2}")
    a(f"v_lshl_add_u32 v{vT+3}, v{vT+1}, 4, v{vT+3}")
    for i in range(12):
        vm.op(("x", i), f"buffer_load_dwordx4 {vr(RAW+i*4,4)}, v{vT+3}, {sr(sXs,4)}, 0 offen offset:{i*96}")
    a(f"s_lshl_b32 s{sT}, s{sWave}, 7")
    a(f"s_mul_i32 s{sT+1}, s{sHg}, 144")
    a(f"s_mov_b32 s{sT+2}, 0x40000000")
    for t, vd in enumerate((vD0, vD1)):
        a(f"v_add_u32 v{vT+4}, s{sT}, v0")
        if t: a(f"v_add_u32 v{vT+4}, 64, v{vT+4}")
        a(f"v_mul_u32_u24 v{vT+5}, 2185, v{vT+4}")
        a(f"v_lshrrev_b32 v{vT+5}, 16, v{vT+5}")
        a(f"v_mul_u32_u24 v{vT+6}, 30, v{vT+5}")
        a(f"v_sub_u32 v{vT+6}, v{vT+4}, v{vT+6}")
        a(f"v_mul_u32_u24 v{vT+7}, 7282, v{vT+6}")
        a(f"v_lshrrev_b32 v{vT+7}, 16, v{vT+7}")
        a(f"v_mul_u32_u24 v{vT+8}, 9, v{vT+7}")
        a(f"v_sub_u32 v{vT+8}, v{vT+6}, v{vT+8}")
        a(f"v_mul_u32_u24 v{vT+7}, 1152, v{vT+7}")
        a(f"v_lshl_add_u32 v{vT+7}, v{vT+8}, 4, v{vT+7}")
        a(f"v_and_b32 v{vT+8}, 4, v{vT+5}")
        a(f"v_lshlrev_b32 v{vT+8}, 1, v{vT+8}")
        a(f"v_and_b32 v{vT+9}, 8, v{vT+5}")
        a(f"v_lshrrev_b32 v{vT+9}, 1, v{vT+9}")
        a(f"v_and_b32 v{vT+10}, 0x13, v{vT+5}")
        a(f"v_or3_b32 v{vT+8}, v{vT+8}, v{vT+9}, v{vT+10}")
        a(f"v_mul_u32_u24 v{vT+8}, 3456, v{vT+8}")
        a(f"v_add3_u32 v{vT+7}, v{vT+7}, v{vT+8}, s{sT+1}")
        a(f"v_cmp_gt_u32 vcc, 27, v{vT+6}")
        a(f"v_cmp_gt_u32 s[{sT+4}:{sT+5}], 32, v{vT+5}")
        a(f"s_and_b64 vcc, vcc, s[{sT+4}:{sT+5}]")
        a(f"v_mov_b32 v{vT+8}, s{sT+2}")
        a("s_nop 1")
        a(f"v_cndmask_b32 v{vd}, v{vT+8}, v{vT+7}, vcc")
    a(f"s_lshl_b32 s{sM0b}, s{sWave}, 11")
    a(f"s_add_u32 s{sM0b}, s{sM0b}, {WB}")
    def wdma(i):
        if i >= 18: return
        st = i % NST
        a(f"s_mov_b32 s{sWo}, {i*32*3456}")
        for t, vd in enumerate((vD0, vD1)):
            a(f"s_add_u32 m0, s{sM0b}, {st*STG + t*1024}")
            a("s_nop 0")
            vm.op(("W", i), f"buffer_load_dwordx4 v{vd}, {sr(sW,4)}, s{sWo} offen lds")
    for i in range(4): wdma(i)
    ONES_LO, ONES_HI, ONES = sT+6, sT+7, sT+8
    a(f"s_mov_b32 s{ONES}, 0x3f803f80")
    S, M, Q = vT+4, vT+5, vT+6
    B3, B1, B2 = vT+8, vT+9, vT+10
    for d_, vb in ((3, B3), (1, B1), (2, B2)):
        a(f"v_add_u32 v{vb}, {d_}, v{vT+1}")
        a(f"v_subrev_u32 v{vT+11}, 6, v{vb}")
        a(f"v_min_u32 v{vb}, v{vb}, v{vT+11}")
        a(f"v_mad_u32_u24 v{vb}, v{vT}, 6, v{vb}")
        a(f"v_lshlrev_b32 v{vb}, 2, v{vb}")
    def reduce6(v):
        a(f"ds_bpermute_b32 v{vT+11}, v{B3}, v{v}")
        a("s_waitcnt lgkmcnt(0)")
        a(f"v_add_f32 v{v}, v{v}, v{vT+11}")
        a(f"ds_bpermute_b32 v{vT+11}, v{B1}, v{v}")
        a(f"ds_bpermute_b32 v{vT+12}, v{B2}, v{v}")
        a("s_waitcnt lgkmcnt(0)")
        a(f"v_add_f32 v{v}, v{v}, v{vT+11}")
        a(f"v_add_f32 v{v}, v{v}, v{vT+12}")
    vm.wait(lambda t: t[0] == "x")
    stamp(a, 1)
    if "wtest" in OPT:
        a("s_waitcnt vmcnt(6)")
        stamp(a, 2)
        a("s_waitcnt vmcnt(0)")
        stamp(a, 3)
        stamp(a, 4)
        OPT.discard("stamp"); OPT.add("stamp_off")
    a(f"v_mov_b32 v{S}, 0")
    a(f"v_mov_b32 v{Q}, 0")
    for i in range(48):
        a(f"v_dot2_f32_bf16 v{S if i%2==0 else Q}, v{RAW+i}, s{ONES}, v{S if i%2==0 else Q}")
    a("s_nop 2")
    a(f"v_add_f32 v{S}, v{S}, v{Q}")
    reduce6(S)
    a(f"v_mul_f32 v{S}, {f32(1.0/576.0)}, v{S}")
    round_bf16(a, M, S)
    PM, PQ = 172, 174
    a(f"v_sub_f32 v{PM}, 0, v{M}")
    a(f"v_mov_b32 v{PM+1}, v{PM}")
    a(f"v_mov_b64 {vr(PQ,2)}, 0")
    a(f"v_mov_b64 {vr(PQ+2,2)}, 0")
    for i in range(48):
        t = 178 + (i % 4) * 2
        q = PQ + (i % 2) * 2
        a(f"v_lshlrev_b32 v{t}, 16, v{RAW+i}")
        a(f"v_and_b32 v{t+1}, 0xffff0000, v{RAW+i}")
        a(f"v_pk_add_f32 {vr(t,2)}, {vr(t,2)}, {vr(PM,2)}")
        a(f"v_pk_fma_f32 {vr(q,2)}, {vr(t,2)}, {vr(t,2)}, {vr(q,2)}")
        a(f"v_cvt_pk_bf16_f32 v{RAW+i}, v{t}, v{t+1}")
    a(f"v_add_f32 v{Q}, v{PQ}, v{PQ+1}")
    a(f"v_add_f32 v{vT+13}, v{PQ+2}, v{PQ+3}")
    a(f"v_add_f32 v{Q}, v{Q}, v{vT+13}")
    reduce6(Q)
    a(f"v_mul_f32 v{Q}, {f32(1.0/576.0)}, v{Q}")
    a(f"v_sub_f32 v{vT+13}, v{S}, v{M}")
    a(f"v_fma_f32 v{Q}, -v{vT+13}, v{vT+13}, v{Q}")
    a(f"v_max_f32 v{Q}, 0, v{Q}")
    round_bf16(a, Q, Q)
    a(f"v_add_f32 v{Q}, {f32(1e-5)}, v{Q}")
    round_bf16(a, Q, Q)
    a(f"v_sqrt_f32 v{Q}, v{Q}")
    a("s_nop 0")
    round_bf16(a, Q, Q)
    a(f"v_rcp_f32 v{PM}, v{Q}")
    a(f"v_lshrrev_b32 v{vT+11}, 4, v{vT+2}")
    a(f"v_mov_b32 v{PM+1}, v{PM}")
    a(f"v_mul_u32_u24 v{vT+11}, 18432, v{vT+11}")
    a(f"v_and_b32 v{vT+12}, 15, v{vT+2}")
    a(f"v_lshl_add_u32 v{vT+11}, v{vT+12}, 4, v{vT+11}")
    a(f"v_lshl_add_u32 v{vT+14}, v{vT+1}, 8, v{vT+11}")
    a(f"v_cmp_gt_u32 vcc, 60, v0")
    a(f"s_and_saveexec_b64 s[{sT+4}:{sT+5}], vcc")
    for i in range(12):
        for d_ in range(4):
            x = RAW + i*4 + d_
            t = 178 + d_ * 2
            a(f"v_lshlrev_b32 v{t}, 16, v{x}")
            a(f"v_and_b32 v{t+1}, 0xffff0000, v{x}")
            a(f"v_pk_mul_f32 {vr(t,2)}, {vr(t,2)}, {vr(PM,2)}")
            a(f"v_cvt_pk_bf16_f32 v{x}, v{t}, v{t+1}")
        a(f"ds_write_b128 v{vT+14}, {vr(RAW+i*4,4)} offset:{XT + i*6*256}")
    a(f"s_mov_b64 exec, s[{sT+4}:{sT+5}]")
    stamp(a, 2)
    a(f"v_lshrrev_b32 v{vT+5}, 5, v0")
    a(f"v_lshlrev_b32 v{vT+5}, 4, v{vT+5}")
    a(f"v_bfe_u32 v{vT+6}, v0, 2, 3")
    a(f"v_add_u32 v{vT+5}, v{vT+5}, v{vT+6}")
    a(f"v_mul_u32_u24 v{vT+5}, {PITCH}, v{vT+5}")
    a(f"v_and_b32 v{vT+6}, 3, v0")
    a(f"v_lshl_add_u32 v{vWa}, v{vT+6}, 3, v{vT+5}")
    a(f"s_lshl_b32 s{sT}, s{sWave}, 6")
    a(f"s_add_u32 s{sT}, s{sT}, {WB}")
    a(f"v_add_u32 v{vWa}, s{sT}, v{vWa}")
    a(f"v_lshlrev_b32 v{vXa}, 4, v0")
    for i in range(0, 40, 2):
        a(f"v_mov_b64 {vr(ACC+i,2)}, 0")
    vm.wait(lambda t: t[0] == "W" and t[1] <= 1, " lgkmcnt(0)")
    a("s_barrier")
    def reads(i):
        b = i % 2; st = i % NST
        for n in range(2):
            a(f"ds_read_b64_tr_b16 {vr(WF+b*8+n*4,2)}, v{vWa} offset:{st*STG + n*32}")
            a(f"ds_read_b64_tr_b16 {vr(WF+b*8+n*4+2,2)}, v{vWa} offset:{st*STG + n*32 + 8*PITCH}")
        for mt in range(5):
            off = (mt*18 + i)*1024
            if off < 65536:
                a(f"ds_read_b128 {vr(XF+b*20+mt*4,4)}, v{vXa} offset:{off}")
            else:
                a(f"ds_read_b128 {vr(XF+b*20+mt*4,4)}, v{vT} offset:{off-65536}")
    a(f"v_add_u32 v{vT}, 65536, v{vXa}")
    stamp(a, 3)
    reads(0)
    for i in range(18):
        if i < 17:
            reads(i+1)
            a("s_waitcnt lgkmcnt(9)")
        else:
            a("s_waitcnt lgkmcnt(0)")
        b = i % 2
        k = 0
        for mt in range(5):
            for n in range(2):
                a(f"v_mfma_f32_16x16x32_bf16 {vr(ACC+(mt*2+n)*4,4)}, {vr(WF+b*8+n*4,4)}, {vr(XF+b*20+mt*4,4)}, {vr(ACC+(mt*2+n)*4,4)}")
                k += 1
                if k == 2 and i >= 1:
                    wdma(i+3)
        if i < 17:
            vm.wait(lambda t: t[0] == "W" and t[1] <= i+2)
            a("s_barrier")
    a("s_barrier")
    stamp(a, 4)
    a(f"v_lshrrev_b32 v{vT}, 4, v0")
    a(f"v_lshlrev_b32 v{vT}, 2, v{vT}")
    a(f"s_lshl_b32 s{sT}, s{sWave}, 5")
    a(f"v_add_u32 v{vT}, s{sT}, v{vT}")
    a(f"v_and_b32 v{vT+1}, 15, v0")
    a(f"v_mul_u32_u24 v{vT+1}, {QP}, v{vT+1}")
    AD = vT + 4
    for n in range(2):
        for p in range(2):
            ad = AD + n*2 + p
            a(f"v_add_u32 v{vT+2}, {n*16+p*2}, v{vT}")
            a(f"v_mul_u32_u24 v{vT+3}, 3641, v{vT+2}")
            a(f"v_lshrrev_b32 v{vT+3}, 16, v{vT+3}")
            a(f"v_mul_u32_u24 v{ad}, 18, v{vT+3}")
            a(f"v_sub_u32 v{ad}, v{vT+2}, v{ad}")
            a(f"v_lshl_add_u32 v{ad}, v{ad}, 1, v{vT+1}")
            a(f"v_mad_u32_u24 v{ad}, v{vT+3}, 48, v{ad}")
    a(f"s_cmp_ge_u32 s{sWave}, 7")
    a("s_nop 4")
    a(f"s_cbranch_scc1 L_{name}_skipq")
    for mt in range(5):
        for n in range(2):
            c = ACC + (mt*2+n)*4
            a(f"v_cvt_pk_bf16_f32 v{vT+8}, v{c}, v{c+1}")
            a(f"v_cvt_pk_bf16_f32 v{vT+9}, v{c+2}, v{c+3}")
            a(f"ds_write_b32 v{AD+n*2}, v{vT+8} offset:{mt*16*QP}")
            a(f"ds_write_b32 v{AD+n*2+1}, v{vT+9} offset:{mt*16*QP}")
    a.lab(f"L_{name}_skipq")
    a("s_waitcnt lgkmcnt(0)")
    a("s_barrier")
    if "dbg1" in OPT:
        lds_dump(a, 57344, 9, 3, 190, 210, tag="q")
    a(f"s_cmp_ge_u32 s{sWave}, 4")
    a(f"s_cbranch_scc1 L_{name}_done")
    QR = 4; KR = 16; LG = 120; OA = 130; VR_ = 16
    a(f"v_lshrrev_b32 v{vT}, 2, v3")
    a(f"v_and_b32 v{vT+1}, 3, v3")
    a(f"v_add_u32 v{vT+2}, 2, v{vT}")
    a(f"v_mul_u32_u24 v{vT+2}, {QP}, v{vT+2}")
    a(f"v_mad_u32_u24 v{vT+2}, v{vT+1}, 48, v{vT+2}")
    for j in range(3):
        a(f"ds_read_b128 {vr(QR+j*4,4)}, v{vT+2} offset:{14*QP + j*16}")
    for w in range(8):
        for j in range(3):
            a(f"ds_read_b128 {vr(KR+w*12+j*4,4)}, v{vT+2} offset:{(14-2*w)*QP + 192 + j*16}")
    a(f"s_lshl_b32 s{sT}, s{sRb}, 6")
    a(f"v_add_u32 v{vT+3}, s{sT}, v{vT}")
    a(f"s_mov_b32 s{sT+1}, {f32(18.0**-0.5)}")
    a(f"s_mov_b32 s{sT+2}, {f32(-1e9)}")
    a(f"v_cvt_pk_bf16_f32 v{vT+4}, s{sT+2}, s{sT+2}")
    a(f"v_lshlrev_b32 v{vT+4}, 16, v{vT+4}")
    for w in range(8):
        a(f"s_waitcnt lgkmcnt({min(15, (7-w)*3)})")
        a(f"v_mov_b32 v{LG+w}, 0")
        for d_ in range(9):
            a(f"v_dot2_f32_bf16 v{LG+w}, v{QR+d_}, v{KR+w*12+d_}, v{LG+w}")
        a("s_nop 2")
        round_bf16(a, LG+w, LG+w)
        a(f"v_mul_f32 v{LG+w}, s{sT+1}, v{LG+w}")
        round_bf16(a, LG+w, LG+w)
        a(f"v_cmp_le_u32 vcc, {2*w}, v{vT+3}")
        a("s_nop 1")
        a(f"v_cndmask_b32 v{LG+w}, v{vT+4}, v{LG+w}, vcc")
    for w in range(8):
        for j in range(3):
            a(f"ds_read_b128 {vr(VR_+w*12+j*4,4)}, v{vT+2} offset:{(14-2*w)*QP + 384 + j*16}")
    a(f"v_max3_f32 v{vT+5}, v{LG}, v{LG+1}, v{LG+2}")
    a(f"v_max3_f32 v{vT+5}, v{vT+5}, v{LG+3}, v{LG+4}")
    a(f"v_max3_f32 v{vT+5}, v{vT+5}, v{LG+5}, v{LG+6}")
    a(f"v_max_f32 v{vT+5}, v{vT+5}, v{LG+7}")
    a(f"s_mov_b32 s{sT+3}, {f32(math.log2(math.e))}")
    for w in range(8):
        a(f"v_sub_f32 v{LG+w}, v{LG+w}, v{vT+5}")
        a(f"v_mul_f32 v{LG+w}, s{sT+3}, v{LG+w}")
        a(f"v_exp_f32 v{LG+w}, v{LG+w}")
    a("s_nop 0")
    a(f"v_add_f32 v{vT+6}, v{LG}, v{LG+1}")
    for w in range(2, 8):
        a(f"v_add_f32 v{vT+6}, v{vT+6}, v{LG+w}")
    a(f"v_rcp_f32 v{vT+6}, v{vT+6}")
    a("s_nop 0")
    for w in range(8):
        a(f"v_mul_f32 v{LG+w}, v{LG+w}, v{vT+6}")
    for wp in range(4):
        a(f"v_cvt_pk_bf16_f32 v{LG+wp}, v{LG+2*wp}, v{LG+2*wp+1}")
    for d_ in range(18):
        a(f"v_mov_b32 v{OA+d_}, 0")
    a(f"s_mov_b32 s{sT+4}, 0x05040100")
    a(f"s_mov_b32 s{sT+5}, 0x07060302")
    for wp in range(4):
        a(f"s_waitcnt lgkmcnt({min(15, (3-wp)*6)})")
        for d_ in range(9):
            x0 = VR_ + (2*wp)*12 + d_; x1 = VR_ + (2*wp+1)*12 + d_
            t = vT + 8 + (d_ % 2) * 2
            a(f"v_perm_b32 v{t}, v{x1}, v{x0}, s{sT+4}")
            a(f"v_perm_b32 v{t+1}, v{x1}, v{x0}, s{sT+5}")
            a(f"v_dot2_f32_bf16 v{OA+2*d_}, v{t}, v{LG+wp}, v{OA+2*d_}")
            a(f"v_dot2_f32_bf16 v{OA+2*d_+1}, v{t+1}, v{LG+wp}, v{OA+2*d_+1}")
    a("s_nop 2")
    for d_ in range(9):
        a(f"v_cvt_pk_bf16_f32 v{QR+d_}, v{OA+2*d_}, v{OA+2*d_+1}")
    a(f"v_mul_u32_u24 v{vT+3}, 1152, v{vT+3}")
    a(f"v_mad_u32_u24 v{vT+3}, v{vT+1}, 36, v{vT+3}")
    a(f"s_mul_i32 s{sT}, s{sHg}, 144")
    a(f"buffer_store_dwordx4 {vr(QR,4)}, v{vT+3}, {sr(sO,4)}, s{sT} offen")
    a(f"buffer_store_dwordx4 {vr(QR+4,4)}, v{vT+3}, {sr(sO,4)}, s{sT} offen offset:16")
    a(f"buffer_store_dword v{QR+8}, v{vT+3}, {sr(sO,4)}, s{sT} offen offset:32")
    if "stamp_off" in OPT: OPT.add("stamp")
    if "stamp" in OPT: a("s_waitcnt vmcnt(0)")
    stamp(a, 6, True)
    stamp_dump(a, 7, 8, sWave, vT+8, 3)
    a.lab(f"L_{name}_done")
    a("s_endpgm")
    return a.text(), kernel_desc(name, NV, 96), f"; @launch kernel={name} grid=(256,1,1) block=(512,1,1) lds={WB + NST*STG}"


def dma_slots_setup(a, sWave, sT, vT, vD, rowbytes, sM0, upshift, extra_s=None):
    a(f"s_lshl_b32 s{sT}, s{sWave}, 6")
    a(f"s_sub_u32 s{sT+1}, s{sT}, 64")
    a(f"s_cmp_eq_u32 s{sWave}, 0")
    a(f"s_cselect_b32 s{sT+1}, 512, s{sT+1}")
    a(f"s_cselect_b32 s{sT+3}, 0, {upshift}")
    a(f"s_add_u32 s{sT+2}, s{sT}, 448")
    a(f"s_lshl_b32 s{sM0}, s{sWave}, 10")
    a(f"s_add_u32 s{sM0+1}, s{sM0}, 8192")
    a(f"s_add_u32 s{sM0+1}, s{sM0+1}, s{sT+3}")
    a(f"s_add_u32 s{sM0+2}, s{sM0}, {16384+upshift}")
    for k in range(3):
        a(f"v_add_u32 v{vT+1}, s{sT+k}, v0")
        a(f"v_mul_u32_u24 v{vT+2}, 3641, v{vT+1}")
        a(f"v_lshrrev_b32 v{vT+8+k}, 16, v{vT+2}")
        a(f"v_mul_u32_u24 v{vT+3}, 18, v{vT+8+k}")
        a(f"v_sub_u32 v{vT+3}, v{vT+1}, v{vT+3}")
        a(f"v_mul_u32_u24 v{vT+2}, {rowbytes}, v{vT+8+k}")
        a(f"v_lshl_add_u32 v{vD+k}, v{vT+3}, 4, v{vT+2}")

def gen_k3v2(name="k3_kernel"):
    a = A(); a.k3 = True; a.stpol = os.environ.get("K3ST", "nt")
    kernel_head(a, name)
    NST = 6; STG = 18560; UP = 9344; RING = 6; PF = RING - 1
    ACC = 4; XS = 148; WR = 196
    vWa, vWb = 220, 221
    vD = 222
    vX0 = 225
    vNM, vR = 226, 227
    vT = 228
    NV = 254
    def acc(nt): return ACC + nt*16
    sWa, sWb_, sWc, sX, sST, sH = 12, 16, 20, 24, 28, 32
    sWave, sFb, sMb = 36, 37, 38
    sWoff, sXoff, sIt = 39, 40, 41
    sM0 = 42
    sT = 46
    sRot, sCnt, sHb = 56, 57, 58
    a("s_cmp_ge_u32 s2, 256")
    a(f"s_cbranch_scc1 L_{name}_done")
    stamp(a, 0); stamp(a, 5, True)
    a("s_load_dwordx4 s[4:7], s[0:1], 32")
    a("s_load_dwordx2 s[8:9], s[0:1], 72")
    a("v_lshrrev_b32 v1, 6, v0")
    a("v_and_b32 v0, 63, v0")
    a("s_nop 0")
    a(f"v_readfirstlane_b32 s{sWave}, v1")
    a(f"s_and_b32 s{sT}, s2, 7")
    a(f"s_lshr_b32 s{sT+1}, s2, 3")
    a(f"s_and_b32 s{sFb}, s{sT+1}, 3")
    a(f"s_lshl_b32 s{sT}, s{sT}, 2")
    a(f"s_add_u32 s{sFb}, s{sFb}, s{sT}")
    a(f"s_lshr_b32 s{sMb}, s{sT+1}, 2")
    dma_slots_setup(a, sWave, sT, vT, vD, 9216, sM0, 128)
    a(f"s_mul_i32 s{sT}, s{sFb}, 288")
    for k in range(3):
        a(f"v_add_u32 v{vD+k}, s{sT}, v{vD+k}")
    a(f"s_lshl_b32 s{sT}, s{sMb}, 4")
    a(f"s_lshl_b32 s{sT+1}, s{sWave}, 1")
    a(f"s_add_u32 s{sT}, s{sT}, s{sT+1}")
    a(f"s_mul_i32 s{sT+1}, s{sT}, 18432")
    a(f"v_bfe_u32 v{vT}, v0, 4, 1")
    a(f"v_mul_u32_u24 v{vT}, 18432, v{vT}")
    a(f"v_lshrrev_b32 v{vT+1}, 5, v0")
    a(f"v_lshl_add_u32 v{vT}, v{vT+1}, 8, v{vT}")
    a(f"v_and_b32 v{vT+1}, 15, v0")
    a(f"v_lshl_add_u32 v{vT}, v{vT+1}, 4, v{vT}")
    a(f"v_add_u32 v{vX0}, s{sT+1}, v{vT}")
    a(f"s_mul_i32 s{sHb}, s{sT}, 144")
    a(f"s_lshr_b32 s{sT+1}, s{sFb}, 1")
    a(f"s_mul_i32 s{sT+1}, s{sT+1}, 9")
    a(f"s_add_u32 s{sHb}, s{sHb}, s{sT+1}")
    a(f"s_lshl_b32 s{sHb}, s{sHb}, 10")
    a(f"s_lshl_b32 s{sT}, s{sT}, 4")
    a(f"v_and_b32 v{vT+4}, 31, v0")
    a(f"v_add_u32 v{vT+4}, s{sT}, v{vT+4}")
    a(f"v_mul_u32_u24 v{vT+4}, 48, v{vT+4}")
    a(f"v_bfe_u32 v{vT}, v0, 4, 1")
    a(f"v_mul_u32_u24 v{vT}, {UP}, v{vT}")
    a(f"v_lshrrev_b32 v{vT+1}, 5, v0")
    a(f"v_bfe_u32 v{vT+2}, v0, 2, 2")
    a(f"v_lshl_add_u32 v{vT+1}, v{vT+1}, 2, v{vT+2}")
    a(f"v_mad_u32_u24 v{vT}, v{vT+1}, 288, v{vT}") if False else None
    a(f"v_mul_u32_u24 v{vT+1}, 288, v{vT+1}")
    a(f"v_add_u32 v{vT}, v{vT}, v{vT+1}")
    a(f"v_and_b32 v{vT+2}, 3, v0")
    a(f"v_lshl_add_u32 v{vWa}, v{vT+2}, 3, v{vT}")
    a(f"v_add_u32 v{vWb}, {3*STG}, v{vWa}")
    if "rot" in OPT:
        a(f"s_mul_i32 s{sRot}, s{sMb}, 9")
        a(f"s_and_b32 s{sT}, s{sFb}, 3")
        a(f"s_mul_i32 s{sT}, s{sT}, 18")
        a(f"s_add_u32 s{sRot}, s{sRot}, s{sT}")
        a(f"s_lshr_b32 s{sRot}, s{sRot}, 2")
        a(f"s_sub_u32 s{sT}, s{sRot}, 18")
        a(f"s_cmp_ge_u32 s{sRot}, 18")
        a(f"s_cselect_b32 s{sRot}, s{sT}, s{sRot}")
    else:
        a(f"s_mov_b32 s{sRot}, 0")
    a(f"s_mov_b32 s{sCnt}, 0")
    a(f"s_mul_i32 s{sWoff}, s{sRot}, {32*9216}")
    a(f"s_lshl_b32 s{sXoff}, s{sRot}, 10")
    a("s_waitcnt lgkmcnt(0)")
    if "pstamp" in OPT: stamp(a, 1)
    srd(a, sWa, 4, 576*4608*2)
    srd(a, sWc, 6, 576*4608*2)
    a(f"s_cmp_eq_u32 s{sWave}, 0")
    a(f"s_cselect_b32 s{sT}, s4, s6")
    a(f"s_cselect_b32 s{sT+1}, s5, s7")
    srd(a, sWb_, sT, 576*4608*2)
    srd(a, sX, 8, H1_SZ, H1_OFF)
    srd(a, sST, 8, ST_SZ, ST_OFF)
    srd(a, sH, 8, HH_SZ, HH_OFF)
    for q in range(3):
        a(f"buffer_load_dwordx4 {vr(WR+q*4,4)}, v{vT+4}, {sr(sST,4)}, 0 offen offset:{q*16}")
    M16 = "m16" in OPT
    TM = int(os.environ.get("TM", "4"))
    sA_, sB_, sE1, sE2 = 60-1, 59-1, 57, 56
    sA_, sB_, sE1, sE2 = 88, 89, 90, 91
    vA, vHo = 244, 245
    EO = 246
    ET = vT + 4
    a(f"s_mov_b32 s{sA_}, {f32(GELU_A)}")
    a(f"s_mov_b32 s{sB_}, {f32(GELU_B)}")
    a(f"v_mov_b32 v{vA}, s{sA_}")
    a(f"v_bfe_u32 v{vHo}, v0, 4, 1")
    a(f"v_mul_u32_u24 v{vHo}, 147456, v{vHo}")
    a(f"v_lshrrev_b32 v{vT+8}, 5, v0")
    a(f"v_lshl_add_u32 v{vHo}, v{vT+8}, 8, v{vHo}")
    a(f"v_and_b32 v{vT+8}, 15, v0")
    a(f"v_lshl_add_u32 v{vHo}, v{vT+8}, 4, v{vHo}")
    a(f"s_and_b32 s{sE2}, s{sFb}, 1")
    a(f"s_lshl_b32 s{sE1}, s{sE2}, 12")
    a(f"s_add_u32 s{sE1}, s{sE1}, s{sHb}")
    a(f"s_lshl_b32 s{sE2}, s{sE2}, 9")
    a(f"s_add_u32 s{sE2}, s{sE2}, s{sHb}")
    a(f"s_add_u32 s{sE2}, s{sE2}, {8*1024}")
    a(f"s_cmp_ge_u32 s{sWave}, 2")
    a(f"s_cbranch_scc1 L_{name}_typeB")
    def epi_ops(nt):
        o = EO + (nt % 2) * 4
        out = []
        for hh in range(2):
            lines = [[], []]
            for c in range(2):
                p = hh*2 + c
                x0, x1 = acc(nt) + 2*p, acc(nt) + 2*p + 1
                y0, y1 = x0 + 8, x1 + 8
                t0, t1 = ET + c*2, ET + c*2 + 1
                lines[c] = [f"v_mul_f32 v{t0}, v{x0}, v{x0}", f"v_mul_f32 v{t1}, v{x1}, v{x1}",
                      f"v_fma_f32 v{t0}, v{t0}, s{sB_}, v{vA}", f"v_fma_f32 v{t1}, v{t1}, s{sB_}, v{vA}",
                      f"v_mul_f32 v{t0}, v{t0}, v{x0}", f"v_mul_f32 v{t1}, v{t1}, v{x1}",
                      f"v_exp_f32 v{t0}, v{t0}", f"v_exp_f32 v{t1}, v{t1}",
                      f"v_mul_f32 v{y0}, v{y0}, v{x0}", f"v_mul_f32 v{y1}, v{y1}, v{x1}",
                      f"v_add_f32 v{t0}, 1.0, v{t0}", f"v_add_f32 v{t1}, 1.0, v{t1}",
                      f"v_rcp_f32 v{t0}, v{t0}", f"v_rcp_f32 v{t1}, v{t1}",
                      f"v_mul_f32 v{t0}, v{t0}, v{y0}", f"v_mul_f32 v{t1}, v{t1}, v{y1}",
                      f"v_cvt_pk_bf16_f32 v{o+p}, v{t0}, v{t1}"]
            i0 = i1 = 0
            while i0 < len(lines[0]) or i1 < len(lines[1]):
                for _ in range(2):
                    if i0 < len(lines[0]): out.append(lines[0][i0]); i0 += 1
                for _ in range(2):
                    if i1 < len(lines[1]): out.append(lines[1][i1]); i1 += 1
        if nt < 8:
            out.append(f"buffer_store_dwordx4 {vr(o,4)}, v{vHo}, {sr(sH,4)}, s{sE1} offen offset:{(nt//2)*1024 + (nt%2)*512}")
        else:
            out.append(f"buffer_store_dwordx4 {vr(o,4)}, v{vHo}, {sr(sH,4)}, s{sE2} offen")
        return out
    def body(nd, tag):
        vm = VM(a)
        vm.ops = [("S", 0)] * 3
        srds = (sWa, sWb_, sWc)
        def load_groups(i):
            if i >= 18: return []
            st = i % NST
            gs = []
            for k in range(nd):
                gs.append([("s", f"s_add_u32 m0, s{sM0+k}, {st*STG}"), ("s", "s_nop 0"),
                           (("W", i), f"buffer_load_dwordx4 v{vD+k}, {sr(srds[k],4)}, s{sWoff} offen lds")])
            gs.append([(("X", i), f"buffer_load_dwordx4 {vr(XS+st*8,4)}, v{vX0}, {sr(sX,4)}, s{sXoff} offen")])
            gs.append([(("X", i), f"buffer_load_dwordx4 {vr(XS+st*8+4,4)}, v{vX0}, {sr(sX,4)}, s{sXoff} offen offset:512"),
                       ("s", f"s_add_u32 s{sRot}, s{sRot}, 1"),
                       ("s", f"s_cmp_eq_u32 s{sRot}, {4 if 'hot4' in OPT else 18}"),
                       ("s", f"s_cselect_b32 s{sRot}, 0, s{sRot}"),
                       ("s", f"s_mul_i32 s{sWoff}, s{sRot}, {32*9216}"),
                       ("s", f"s_lshl_b32 s{sXoff}, s{sRot}, 10")])
            return gs
        def emit_group(g):
            for tg, txt in g:
                if tg == "s": a(txt)
                else: vm.op(tg, txt)
        for i in range(2):
            for g in load_groups(i): emit_group(g)
        vm.wait(lambda t: t[0] == "S")
        b = WR
        a(f"v_add_f32 v{vT}, v{b}, v{b+2}")
        a(f"v_add_f32 v{vT+1}, v{b+4}, v{b+6}")
        a(f"v_add_f32 v{vT+2}, v{b+8}, v{b+10}")
        a(f"v_add_f32 v{vT}, v{vT}, v{vT+1}")
        a(f"v_add_f32 v{vT}, v{vT}, v{vT+2}")
        a(f"v_mul_f32 v{vT}, {f32(1.0/6.0)}, v{vT}")
        a(f"v_add_f32 v{vT+1}, v{b+1}, v{b+3}")
        a(f"v_add_f32 v{vT+2}, v{b+5}, v{b+7}")
        a(f"v_add_f32 v{vT+3}, v{b+9}, v{b+11}")
        a(f"v_add_f32 v{vT+1}, v{vT+1}, v{vT+2}")
        a(f"v_add_f32 v{vT+1}, v{vT+1}, v{vT+3}")
        a(f"v_mov_b32 v{vT+2}, 0")
        for t in range(6):
            a(f"v_sub_f32 v{vT+3}, v{b+2*t}, v{vT}")
            a(f"v_fmac_f32 v{vT+2}, v{vT+3}, v{vT+3}")
        a(f"v_fmac_f32 v{vT+1}, {f32(96.0)}, v{vT+2}")
        a(f"v_mul_f32 v{vT+1}, {f32(1.0/576.0)}, v{vT+1}")
        round_bf16(a, vNM, vT)
        round_bf16(a, vT+1, vT+1)
        a(f"v_add_f32 v{vT+1}, {f32(1e-5)}, v{vT+1}")
        round_bf16(a, vT+1, vT+1)
        a(f"v_sqrt_f32 v{vT+1}, v{vT+1}")
        a("s_nop 0")
        round_bf16(a, vT+1, vT+1)
        a(f"v_rcp_f32 v{vR}, v{vT+1}")
        if "exactnorm" not in OPT:
            a("s_nop 0")
            a(f"v_mul_f32 v{vNM}, v{vNM}, v{vR}")
            a(f"v_sub_f32 v{vNM}, 0, v{vNM}")
        def norm_ops(i):
            ops = []
            if i >= 18: return ops
            for h4 in range(2):
                chains = []
                for d in range(4):
                    x = XS + (i % NST)*8 + h4*4 + d
                    t0 = vT + 8 + d * 2; t1 = t0 + 1
                    chains.append([f"v_lshlrev_b32 v{t0}, 16, v{x}", f"v_and_b32 v{t1}, 0xffff0000, v{x}",
                                   f"v_fma_f32 v{t0}, v{t0}, v{vR}, v{vNM}", f"v_fma_f32 v{t1}, v{t1}, v{vR}, v{vNM}",
                                   f"v_cvt_pk_bf16_f32 v{x}, v{t0}, v{t1}"])
                for stage in ((0, 1), (2, 3), (4,)):
                    for c in chains:
                        for j in stage: ops.append(c[j])
            return ops
        NS = 18 - TM
        seq = [(i, f // 9, f % 9) for i in range(NS) for f in range(18)]
        seq += [(i, half, nt) for nt in range(9) for i in range(NS, 18) for half in range(2)]
        def wread(g):
            if g >= len(seq): return
            i, half, nt = seq[g]
            st = i % NST
            slot = g % RING
            base = vWa if st < 3 else vWb
            off = (st % 3) * STG + half * 8 * 288 + nt * 32
            a(f"ds_read_b64_tr_b16 {vr(WR+slot*4,2)}, v{base} offset:{off}")
            a(f"ds_read_b64_tr_b16 {vr(WR+slot*4+2,2)}, v{base} offset:{off+4608}")
        vm.wait(lambda t: t[1] <= 0)
        for op in norm_ops(0): a(op)
        a("s_barrier")
        for f in range(PF): wread(f)
        stamp(a, 1)
        sched = {0: [2, 3], 1: [4, 5], 2: [6, 7]}
        nsched = {i: [i + 1] for i in range(NS)}
        if TM:
            extra = list(range(NS + 1, 18))
            nsched[NS-1] = [NS] + extra[-2:]
            nsched[NS-2] = [NS-1] + extra[:-2]
        for i in range(NS):
            lg = []
            for j in sched.get(i, [i + 5]): lg += load_groups(j)
            nlist = nsched[i]
            ni = 0; gi = 0
            gpos = [1 + (k_ * 16) // max(1, len(lg)) for k_ in range(len(lg))]
            nstart = 6 if i < 3 else 1
            nops = []
            for j in nlist: nops += [("w", j)] + norm_ops(j)
            per = (len(nops) + (16 - nstart)) // (17 - nstart) if nops else 0
            for f in range(18):
                g = i*18 + f
                half, nt = divmod(f, 9)
                slot = g % RING
                if i == 0 and f == 18 - PF:
                    vm.wait(lambda t: t[0] == "W" and t[1] <= 1)
                    a("s_barrier")
                if TM and i == NS - 1 and f == 18 - PF:
                    vm.wait(lambda t: t[0] == "W")
                    a("s_barrier")
                wread(g + PF)
                rem = min(PF, len(seq) - 1 - g)
                a(f"s_waitcnt lgkmcnt({2*rem})")
                if i == 0:
                    a(f"v_mfma_f32_32x32x16_bf16 {vr(acc(nt),16)}, {vr(WR+slot*4,4)}, {vr(XS+(i%NST)*8+half*4,4)}, " + ("0" if half == 0 else vr(acc(nt),16)))
                else:
                    a(f"v_mfma_f32_32x32x16_bf16 {vr(acc(nt),16)}, {vr(WR+slot*4,4)}, {vr(XS+(i%NST)*8+half*4,4)}, {vr(acc(nt),16)}")
                while gi < len(lg) and gpos[gi] <= f:
                    emit_group(lg[gi]); gi += 1
                if f >= nstart:
                    for _ in range(per):
                        if ni < len(nops):
                            op = nops[ni]; ni += 1
                            if isinstance(op, tuple):
                                vm.wait(lambda t: t[0] == "X" and t[1] <= op[1])
                            else: a(op)
            assert ni == len(nops) and gi == len(lg), (i, ni, len(nops), gi, len(lg))
            if i < 17 and not (TM and i == NS - 1):
                vm.wait(lambda t: t[0] == "W" and t[1] <= i + 2)
                a("s_barrier")
        stamp(a, 2)
        g = NS * 18
        pend = []
        for nt in range(9):
            nm = 2 * TM
            per = (len(pend) + nm - 3) // max(1, nm - 2) if pend else 0
            pi = 0
            for q in range(nm):
                i, half, nt_ = seq[g]
                assert nt_ == nt
                slot = g % RING
                wread(g + PF)
                rem = min(PF, len(seq) - 1 - g)
                a(f"s_waitcnt lgkmcnt({2*rem})")
                a(f"v_mfma_f32_32x32x16_bf16 {vr(acc(nt),16)}, {vr(WR+slot*4,4)}, {vr(XS+(i%NST)*8+half*4,4)}, {vr(acc(nt),16)}")
                g += 1
                if q >= 2:
                    for _ in range(per):
                        if pi < len(pend): a(pend[pi]); pi += 1
            assert pi == len(pend)
            pend = epi_ops(nt)
        if not TM:
            a("s_nop 7"); a("s_nop 7")
            for nt in range(8):
                for op in epi_ops(nt): a(op)
        a("s_nop 7"); a("s_nop 7")
        for op in pend: a(op)
    body(3, "A")
    a(f"s_branch L_{name}_epi")
    a.lab(f"L_{name}_typeB")
    body(2, "B")
    a.lab(f"L_{name}_epi")
    if "pstamp" not in OPT: stamp(a, 3)
    if "stamp" in OPT: a("s_waitcnt vmcnt(0)")
    if "pstamp" not in OPT: stamp(a, 4)
    stamp(a, 6, True)
    stamp_dump(a, 7, 8, sWave, vT+4)
    a.lab(f"L_{name}_done")
    a("s_endpgm")
    return a.text(), kernel_desc(name, NV), f"; @launch kernel={name} grid=(256,1,1) block=(512,1,1) lds={NST*STG}"

def gen_k3m(name="k3_kernel"):
    a = A()
    kernel_head(a, name)
    NST = 6; STG = 18560; UP = 9344; RING = 6; PF = RING - 1
    ACC = 4; XS = 148; WR = 196
    vWa, vWb = 220, 221
    vD = 222
    vX0 = 225
    vNM, vR = 226, 227
    vT = 228
    vX1, vNM1, vR1 = 244, 245, 246
    NV = 248
    def acc(nt, mat, mt): return ACC + ((nt*2+mat)*2+mt)*4
    sWa, sWb_, sWc, sX, sST, sH = 12, 16, 20, 24, 28, 32
    sWave, sFb, sMb = 36, 37, 38
    sWoff, sXoff, sIt = 39, 40, 41
    sM0 = 42
    sT = 46
    sRot, sCnt, sHb = 56, 57, 58
    a("s_cmp_ge_u32 s2, 256")
    a(f"s_cbranch_scc1 L_{name}_done")
    stamp(a, 0); stamp(a, 5, True)
    a("s_load_dwordx4 s[4:7], s[0:1], 32")
    a("s_load_dwordx2 s[8:9], s[0:1], 72")
    a("v_lshrrev_b32 v1, 6, v0")
    a("v_and_b32 v0, 63, v0")
    a("s_nop 0")
    a(f"v_readfirstlane_b32 s{sWave}, v1")
    a(f"s_and_b32 s{sT}, s2, 7")
    a(f"s_lshr_b32 s{sT+1}, s2, 3")
    a(f"s_and_b32 s{sFb}, s{sT+1}, 3")
    a(f"s_lshl_b32 s{sT}, s{sT}, 2")
    a(f"s_add_u32 s{sFb}, s{sFb}, s{sT}")
    a(f"s_lshr_b32 s{sMb}, s{sT+1}, 2")
    dma_slots_setup(a, sWave, sT, vT, vD, 9216, sM0, 128)
    a(f"s_mul_i32 s{sT}, s{sFb}, 288")
    for k in range(3):
        a(f"v_add_u32 v{vD+k}, s{sT}, v{vD+k}")
    a(f"s_lshl_b32 s{sT}, s{sMb}, 4")
    a(f"s_lshl_b32 s{sT+1}, s{sWave}, 1")
    a(f"s_add_u32 s{sT}, s{sT}, s{sT+1}")
    a(f"s_mul_i32 s{sT+1}, s{sT}, 18432")
    a(f"v_lshlrev_b32 v{vT}, 4, v0")
    a(f"v_add_u32 v{vX0}, s{sT+1}, v{vT}")
    a(f"v_add_u32 v{vX1}, 18432, v{vX0}")
    a(f"s_mul_i32 s{sHb}, s{sT}, 144")
    a(f"s_lshr_b32 s{sT+1}, s{sFb}, 1")
    a(f"s_mul_i32 s{sT+1}, s{sT+1}, 9")
    a(f"s_add_u32 s{sHb}, s{sHb}, s{sT+1}")
    a(f"s_lshl_b32 s{sHb}, s{sHb}, 10")
    a(f"s_lshl_b32 s{sT}, s{sT}, 4")
    a(f"v_and_b32 v{vT+4}, 15, v0")
    a(f"v_add_u32 v{vT+4}, s{sT}, v{vT+4}")
    a(f"v_mul_u32_u24 v{vT+4}, 48, v{vT+4}")
    a(f"v_lshrrev_b32 v{vT+1}, 2, v0")
    a(f"v_mul_u32_u24 v{vT+1}, 288, v{vT+1}")
    a(f"v_and_b32 v{vT+2}, 3, v0")
    a(f"v_lshl_add_u32 v{vWa}, v{vT+2}, 3, v{vT+1}")
    a(f"v_add_u32 v{vWb}, {3*STG}, v{vWa}")
    if "rot" in OPT:
        a(f"s_mul_i32 s{sRot}, s{sMb}, 9")
        a(f"s_and_b32 s{sT}, s{sFb}, 3")
        a(f"s_mul_i32 s{sT}, s{sT}, 18")
        a(f"s_add_u32 s{sRot}, s{sRot}, s{sT}")
        a(f"s_lshr_b32 s{sRot}, s{sRot}, 2")
        a(f"s_sub_u32 s{sT}, s{sRot}, 18")
        a(f"s_cmp_ge_u32 s{sRot}, 18")
        a(f"s_cselect_b32 s{sRot}, s{sT}, s{sRot}")
    else:
        a(f"s_mov_b32 s{sRot}, 0")
    a(f"s_mov_b32 s{sCnt}, 0")
    a(f"s_mul_i32 s{sWoff}, s{sRot}, {32*9216}")
    a(f"s_lshl_b32 s{sXoff}, s{sRot}, 10")
    a("s_waitcnt lgkmcnt(0)")
    if "pstamp" in OPT: stamp(a, 1)
    srd(a, sWa, 4, 576*4608*2)
    srd(a, sWc, 6, 576*4608*2)
    a(f"s_cmp_eq_u32 s{sWave}, 0")
    a(f"s_cselect_b32 s{sT}, s4, s6")
    a(f"s_cselect_b32 s{sT+1}, s5, s7")
    srd(a, sWb_, sT, 576*4608*2)
    srd(a, sX, 8, H1_SZ, H1_OFF)
    srd(a, sST, 8, ST_SZ, ST_OFF)
    srd(a, sH, 8, HH_SZ, HH_OFF)
    for mt in range(2):
        for q in range(3):
            a(f"buffer_load_dwordx4 {vr(WR+mt*12+q*4,4)}, v{vT+4}, {sr(sST,4)}, 0 offen offset:{mt*768+q*16}")
    a(f"s_cmp_ge_u32 s{sWave}, 2")
    a(f"s_cbranch_scc1 L_{name}_typeB")

    M16 = "m16" in OPT
    def body(nd, tag):
        vm = VM(a)
        vm.ops = [("S", 0)] * 6
        srds = (sWa, sWb_, sWc)
        def load_groups(i):
            if i >= 18: return []
            st = i % NST
            gs = []
            for k in range(nd):
                gs.append([("s", f"s_add_u32 m0, s{sM0+k}, {st*STG}"), ("s", "s_nop 0"),
                           (("W", i), f"buffer_load_dwordx4 v{vD+k}, {sr(srds[k],4)}, s{sWoff} offen lds")])
            gs.append([(("X", i), f"buffer_load_dwordx4 {vr(XS+st*8,4)}, v{vX0}, {sr(sX,4)}, s{sXoff} offen")])
            gs.append([(("X", i), f"buffer_load_dwordx4 {vr(XS+st*8+4,4)}, v{vX1}, {sr(sX,4)}, s{sXoff} offen"),
                       ("s", f"s_add_u32 s{sRot}, s{sRot}, 1"),
                       ("s", f"s_cmp_eq_u32 s{sRot}, {4 if 'hot4' in OPT else 18}"),
                       ("s", f"s_cselect_b32 s{sRot}, 0, s{sRot}"),
                       ("s", f"s_mul_i32 s{sWoff}, s{sRot}, {32*9216}"),
                       ("s", f"s_lshl_b32 s{sXoff}, s{sRot}, 10")])
            return gs
        def emit_group(g):
            for tg, txt in g:
                if tg == "s": a(txt)
                else: vm.op(tg, txt)
        for i in range(2):
            for g in load_groups(i): emit_group(g)
        vm.wait(lambda t: t[0] == "S")
        for b, vNM_, vR_ in ((WR, vNM, vR), (WR+12, vNM1, vR1)):
            a(f"v_add_f32 v{vT}, v{b}, v{b+2}")
            a(f"v_add_f32 v{vT+1}, v{b+4}, v{b+6}")
            a(f"v_add_f32 v{vT+2}, v{b+8}, v{b+10}")
            a(f"v_add_f32 v{vT}, v{vT}, v{vT+1}")
            a(f"v_add_f32 v{vT}, v{vT}, v{vT+2}")
            a(f"v_mul_f32 v{vT}, {f32(1.0/6.0)}, v{vT}")
            a(f"v_add_f32 v{vT+1}, v{b+1}, v{b+3}")
            a(f"v_add_f32 v{vT+2}, v{b+5}, v{b+7}")
            a(f"v_add_f32 v{vT+3}, v{b+9}, v{b+11}")
            a(f"v_add_f32 v{vT+1}, v{vT+1}, v{vT+2}")
            a(f"v_add_f32 v{vT+1}, v{vT+1}, v{vT+3}")
            a(f"v_mov_b32 v{vT+2}, 0")
            for t in range(6):
                a(f"v_sub_f32 v{vT+3}, v{b+2*t}, v{vT}")
                a(f"v_fmac_f32 v{vT+2}, v{vT+3}, v{vT+3}")
            a(f"v_fmac_f32 v{vT+1}, {f32(96.0)}, v{vT+2}")
            a(f"v_mul_f32 v{vT+1}, {f32(1.0/576.0)}, v{vT+1}")
            round_bf16(a, vNM_, vT)
            round_bf16(a, vT+1, vT+1)
            a(f"v_add_f32 v{vT+1}, {f32(1e-5)}, v{vT+1}")
            round_bf16(a, vT+1, vT+1)
            a(f"v_sqrt_f32 v{vT+1}, v{vT+1}")
            a("s_nop 0")
            round_bf16(a, vT+1, vT+1)
            a(f"v_rcp_f32 v{vR_}, v{vT+1}")
            if "exactnorm" not in OPT:
                a("s_nop 0")
                a(f"v_mul_f32 v{vNM_}, v{vNM_}, v{vR_}")
                a(f"v_sub_f32 v{vNM_}, 0, v{vNM_}")
        def norm_ops(i):
            ops = []
            if i >= 18: return ops
            for d in range(8):
                x = XS + (i % NST)*8 + d
                t0 = vT + (d % 2) * 2; t1 = t0 + 1
                vNM, vR = (226, 227) if d < 4 else (vNM1, vR1)
                ops.append(f"v_lshlrev_b32 v{t0}, 16, v{x}")
                ops.append(f"v_and_b32 v{t1}, 0xffff0000, v{x}")
                if "exactnorm" in OPT:
                    ops.append(f"v_sub_f32 v{t0}, v{t0}, v{vNM}")
                    ops.append(f"v_sub_f32 v{t1}, v{t1}, v{vNM}")
                    ops.append(f"v_cvt_pk_bf16_f32 v{t0}, v{t0}, v{t1}")
                    ops.append(f"v_and_b32 v{t1}, 0xffff0000, v{t0}")
                    ops.append(f"v_lshlrev_b32 v{t0}, 16, v{t0}")
                    ops.append(f"v_mul_f32 v{t0}, v{t0}, v{vR}")
                    ops.append(f"v_mul_f32 v{t1}, v{t1}, v{vR}")
                else:
                    ops.append(f"v_fma_f32 v{t0}, v{t0}, v{vR}, v{vNM}")
                    ops.append(f"v_fma_f32 v{t1}, v{t1}, v{vR}, v{vNM}")
                ops.append(f"v_cvt_pk_bf16_f32 v{x}, v{t0}, v{t1}")
            return ops
        def wread(g):
            i, f = divmod(g, 18)
            if i >= 18: return
            st = i % NST
            nt, mat = divmod(f, 2)
            slot = g % RING
            base = vWa if st < 3 else vWb
            off = (st % 3) * STG + mat * UP + nt * 32
            a(f"ds_read_b64_tr_b16 {vr(WR+slot*4,2)}, v{base} offset:{off}")
            a(f"ds_read_b64_tr_b16 {vr(WR+slot*4+2,2)}, v{base} offset:{off+4608}")
        vm.wait(lambda t: t[1] <= 0)
        for op in norm_ops(0): a(op)
        a("s_barrier")
        for f in range(PF): wread(f)
        stamp(a, 1)
        sched = {0: [2, 3], 1: [4, 5], 2: [6, 7]}
        for i in range(18):
            lg = []
            for j in sched.get(i, [i + 5]): lg += load_groups(j)
            nops = norm_ops(i + 1)
            ni = 0; gi = 0
            gpos = [1 + (k * 16) // max(1, len(lg)) for k in range(len(lg))]
            nstart = 6 if i < 3 else 1
            per = (len(nops) + (16 - nstart)) // (17 - nstart) if nops else 0
            for f in range(18):
                g = i*18 + f
                half, nt = divmod(f, 9)
                slot = g % RING
                if i == 0 and f == 18 - PF:
                    vm.wait(lambda t: t[0] == "W" and t[1] <= 1)
                    a("s_barrier")
                wread(g + PF)
                rem = min(PF, 18*18 - 1 - g)
                a(f"s_waitcnt lgkmcnt({2*rem})")
                nt, mat = divmod(f, 2)
                for mt in range(2):
                    a(f"v_mfma_f32_16x16x32_bf16 {vr(acc(nt,mat,mt),4)}, {vr(WR+slot*4,4)}, {vr(XS+(i%NST)*8+mt*4,4)}, " + ("0" if i == 0 else vr(acc(nt,mat,mt),4)))
                if f == nstart and nops:
                    vm.wait(lambda t: t[0] == "X" and t[1] <= i + 1)
                while gi < len(lg) and gpos[gi] <= f:
                    emit_group(lg[gi]); gi += 1
                if f >= nstart:
                    for _ in range(per):
                        if ni < len(nops):
                            a(nops[ni]); ni += 1
            assert ni == len(nops) and gi == len(lg), (i, ni, len(nops), gi, len(lg))
            if i < 17:
                vm.wait(lambda t: t[0] == "W" and t[1] <= i + 2)
                a("s_barrier")
    body(3, "A")
    a(f"s_branch L_{name}_epi")
    a.lab(f"L_{name}_typeB")
    body(2, "B")
    a.lab(f"L_{name}_epi")
    if "pstamp" not in OPT: stamp(a, 2)
    a("s_waitcnt vmcnt(0) lgkmcnt(0)")
    sA_, sB_ = sT+6, sT+7
    a(f"s_mov_b32 s{sA_}, {f32(GELU_A)}")
    a(f"s_mov_b32 s{sB_}, {f32(GELU_B)}")
    a(f"v_lshlrev_b32 v{vX0}, 4, v0")
    a(f"s_and_b32 s{sT}, s{sFb}, 1")
    a(f"s_lshl_b32 s{sT+1}, s{sT}, 12")
    a(f"s_add_u32 s{sT+1}, s{sT+1}, s{sHb}")
    a(f"s_lshl_b32 s{sT+2}, s{sT}, 3")
    a(f"s_add_u32 s{sT+2}, s{sT+2}, s{sHb}")
    a(f"s_add_u32 s{sT+2}, s{sT+2}, {8*1024}")
    a(f"s_add_u32 s{sT+3}, s{sT+1}, {144*1024}")
    a(f"s_add_u32 s{sT+4}, s{sT+2}, {144*1024}")
    a(f"v_mov_b32 v{vT}, s{sA_}")
    a("s_nop 7")
    def gelu_tile(nt, mt, dst):
        T = WR
        lines = [[], []]
        for c in range(2):
            g0, g1 = acc(nt,0,mt) + 2*c, acc(nt,0,mt) + 2*c + 1
            u0, u1 = acc(nt,1,mt) + 2*c, acc(nt,1,mt) + 2*c + 1
            t0, t1 = T + c*8 + 4, T + c*8 + 5
            x0, x1, y0, y1 = g0, g1, u0, u1
            L = lines[c]
            L += [f"v_mul_f32 v{t0}, v{x0}, v{x0}", f"v_mul_f32 v{t1}, v{x1}, v{x1}",
                  f"v_fma_f32 v{t0}, v{t0}, s{sB_}, v{vT}", f"v_fma_f32 v{t1}, v{t1}, s{sB_}, v{vT}",
                  f"v_mul_f32 v{t0}, v{t0}, v{x0}", f"v_mul_f32 v{t1}, v{t1}, v{x1}",
                  f"v_exp_f32 v{t0}, v{t0}", f"v_exp_f32 v{t1}, v{t1}",
                  f"v_mul_f32 v{y0}, v{y0}, v{x0}", f"v_mul_f32 v{y1}, v{y1}, v{x1}",
                  f"v_add_f32 v{t0}, 1.0, v{t0}", f"v_add_f32 v{t1}, 1.0, v{t1}",
                  f"v_rcp_f32 v{t0}, v{t0}", f"v_rcp_f32 v{t1}, v{t1}",
                  f"v_mul_f32 v{t0}, v{t0}, v{y0}", f"v_mul_f32 v{t1}, v{t1}, v{y1}",
                  f"v_cvt_pk_bf16_f32 v{dst+c}, v{t0}, v{t1}"]
        i0 = i1 = 0
        while i0 < len(lines[0]) or i1 < len(lines[1]):
            for _ in range(2):
                if i0 < len(lines[0]): a(lines[0][i0]); i0 += 1
            for _ in range(2):
                if i1 < len(lines[1]): a(lines[1][i1]); i1 += 1
    k = 0
    for mt in range(2):
        for p in range(4):
            o = XS + (k % 12) * 4; k += 1
            gelu_tile(2*p, mt, o)
            gelu_tile(2*p+1, mt, o+2)
            a(f"buffer_store_dwordx4 {vr(o,4)}, v{vX0}, {sr(sH,4)}, s{sT+1+2*mt} offen offset:{p*1024}")
        o = XS + (k % 12) * 4; k += 1
        gelu_tile(8, mt, o)
        a(f"buffer_store_dwordx2 {vr(o,2)}, v{vX0}, {sr(sH,4)}, s{sT+2+2*mt} offen")
    if "pstamp" not in OPT: stamp(a, 3)
    if "stamp" in OPT: a("s_waitcnt vmcnt(0)")
    if "pstamp" not in OPT: stamp(a, 4)
    stamp(a, 6, True)
    stamp_dump(a, 7, 8, sWave, vT+4)
    a.lab(f"L_{name}_done")
    a("s_endpgm")
    return a.text(), kernel_desc(name, NV), f"; @launch kernel={name} grid=(256,1,1) block=(512,1,1) lds={NST*STG}"

def gen_k4v2(name="k4_kernel"):
    a = A(); a.stpol = os.environ.get("K4ST", "sc1")
    kernel_head(a, name)
    NST = 6; STG = 18432; RING = 6; PFD = 5; PF = RING - 1
    ROWB = 4608 if "m16" in OPT else 2304
    ACC = 4; XS = 76; WR = 124
    vWa, vWb = 148, 149
    vD = 150; vDm = 153
    vX0, vX1 = 156, 157
    vT = 160
    NV = 176
    def acc(nt, mt): return ACC + (nt*2+mt)*4
    sW, sX, sP = 12, 16, 20
    sWave, sKs, sMb, sNb = 28, 29, 30, 31
    sWb1, sXb, sPb = 32, 33, 34
    sM0 = 36
    sT = 40
    sWo = 52
    a("s_cmp_ge_u32 s2, 256")
    a(f"s_cbranch_scc1 L_{name}_done")
    stamp(a, 0); stamp(a, 5, True)
    a("s_load_dwordx2 s[4:5], s[0:1], 48")
    a("s_load_dwordx2 s[8:9], s[0:1], 72")
    a("v_lshrrev_b32 v1, 6, v0")
    a("v_and_b32 v0, 63, v0")
    a("s_nop 0")
    a(f"v_readfirstlane_b32 s{sWave}, v1")
    a(f"s_and_b32 s{sT}, s2, 7")
    a(f"s_lshr_b32 s{sT+1}, s2, 3")
    a(f"s_lshr_b32 s{sKs}, s{sT}, 1")
    a(f"s_and_b32 s{sNb}, s{sT+1}, 3")
    a(f"s_and_b32 s{sT}, s{sT}, 1")
    a(f"s_lshl_b32 s{sT}, s{sT}, 3")
    a(f"s_lshr_b32 s{sMb}, s{sT+1}, 2")
    a(f"s_add_u32 s{sMb}, s{sMb}, s{sT}")
    dma_slots_setup(a, sWave, sT, vT, vD, 1152, sM0, 0)
    a(f"s_cmp_eq_u32 s{sWave}, 0")
    a(f"s_cselect_b32 s{sT}, 0, {576*1152}")
    a(f"v_add_u32 v{vD+1}, s{sT}, v{vD+1}")
    a(f"v_add_u32 v{vD+2}, {576*1152}, v{vD+2}")
    a(f"s_mov_b32 s{sT}, {128*1152}")
    for k in range(3):
        a(f"v_cmp_lt_u32 vcc, 15, v{vT+8+k}")
        a(f"v_mov_b32 v{vT+1}, s{sT}")
        a("s_nop 0")
        a(f"v_cndmask_b32 v{vT+1}, 0, v{vT+1}, vcc")
        a(f"v_add_u32 v{vDm+k}, v{vD+k}, v{vT+1}")
    a(f"s_mul_i32 s{sWb1}, s{sKs}, {2*576*1152}")
    a(f"s_mul_i32 s{sT}, s{sNb}, 288")
    a(f"s_add_u32 s{sWb1}, s{sWb1}, s{sT}")
    a(f"s_lshr_b32 s{sT}, s{sWave}, 2")
    a(f"s_lshl_b32 s{sT+1}, s{sKs}, 1")
    a(f"s_add_u32 s{sT+1}, s{sT+1}, s{sT}")
    a(f"s_and_b32 s{sT+2}, s{sWave}, 3")
    a(f"s_lshl_b32 s{sXb}, s{sMb}, 3")
    a(f"s_lshl_b32 s{sT+3}, s{sT+2}, 1")
    a(f"s_add_u32 s{sXb}, s{sXb}, s{sT+3}")
    a(f"s_mov_b32 s{sT+4}, s{sXb}")
    a(f"s_mul_i32 s{sXb}, s{sXb}, 144")
    a(f"s_mul_i32 s{sT+3}, s{sT+1}, 18")
    a(f"s_add_u32 s{sXb}, s{sXb}, s{sT+3}")
    a(f"s_lshl_b32 s{sXb}, s{sXb}, 10")
    a(f"v_lshlrev_b32 v{vX0}, 4, v0")
    a(f"v_add_u32 v{vX0}, s{sXb}, v{vX0}")
    a(f"v_add_u32 v{vX1}, {144*1024}, v{vX0}")
    a(f"s_lshl_b32 s{sPb}, s{sKs}, 7")
    a(f"s_add_u32 s{sPb}, s{sPb}, s{sT+4}")
    a(f"s_add_u32 s{sPb}, s{sPb}, s{sT}")
    a(f"s_mul_i32 s{sPb}, s{sPb}, 36")
    a(f"s_mul_i32 s{sT+6}, s{sNb}, 9")
    a(f"s_add_u32 s{sPb}, s{sPb}, s{sT+6}")
    a(f"s_lshl_b32 s{sPb}, s{sPb}, 10")
    if "m16" in OPT:
        a(f"v_lshrrev_b32 v{vT+5}, 2, v0")
    else:
        a(f"v_lshrrev_b32 v{vT+5}, 5, v0")
        a(f"v_lshlrev_b32 v{vT+5}, 4, v{vT+5}")
        a(f"v_bfe_u32 v{vT+6}, v0, 2, 3")
        a(f"v_add_u32 v{vT+5}, v{vT+5}, v{vT+6}")
    a(f"v_mul_u32_u24 v{vT+5}, 288, v{vT+5}")
    a(f"v_and_b32 v{vT+6}, 3, v0")
    a(f"v_lshl_add_u32 v{vWa}, v{vT+6}, 3, v{vT+5}")
    a(f"s_mul_i32 s{sT+6}, s{sT}, 9216")
    a(f"v_add_u32 v{vWa}, s{sT+6}, v{vWa}")
    a(f"v_add_u32 v{vWb}, {3*STG}, v{vWa}")
    a("s_waitcnt lgkmcnt(0)")
    srd(a, sW, 4, 4608*576*2)
    srd(a, sX, 8, HH_SZ, HH_OFF)
    srd(a, sP, 8, P_SZ, P_OFF)
    a(f"s_cmp_ge_u32 s{sWave}, 2")
    a(f"s_cbranch_scc1 L_{name}_typeB")
    def fa_rel(i):
        q, ii = divmod(i, 9)
        if ii < 4: return 288*q + 32*ii
        if ii < 8: return 288*q + 144 + 32*(ii-4)
        return 288*q + 128
    def body(nd, tag):
        vm = VM(a)
        def load_groups(i):
            if i >= 18: return []
            st = i % NST
            gs = []
            vv = vDm if i % 9 == 8 else vD
            for k in range(nd):
                g = []
                if k == 0:
                    g.append(("s", f"s_add_u32 s{sWo}, s{sWb1}, {fa_rel(i)*1152}"))
                g.append(("s", f"s_add_u32 m0, s{sM0+k}, {st*STG}"))
                g.append(("s", "s_nop 0"))
                g.append((("W", i), f"buffer_load_dwordx4 v{vv+k}, {sr(sW,4)}, s{sWo} offen lds"))
                gs.append(g)
            xs = XS + (i % NST) * 8
            gs.append([("s", f"s_mov_b32 s{sWo+1}, {i*1024}"),
                       (("X", i), f"buffer_load_dwordx4 {vr(xs,4)}, v{vX0}, {sr(sX,4)}, s{sWo+1} offen")])
            gs.append([(("X", i), f"buffer_load_dwordx4 {vr(xs+4,4)}, v{vX1}, {sr(sX,4)}, s{sWo+1} offen")])
            return gs
        def emit_group(g):
            for tg, txt in g:
                if tg == "s": a(txt)
                else: vm.op(tg, txt)
        for i in range(2):
            for g in load_groups(i): emit_group(g)
        for i in range(0, 72, 2):
            a(f"v_mov_b64 {vr(ACC+i,2)}, 0")
        sched = {0: [2, 3], 1: [4, 5], 2: [6, 7]}
        def wread(gidx):
            i, nt = divmod(gidx, 9)
            if i >= 18: return
            st = i % NST; slot = gidx % RING
            base = vWa if st < 3 else vWb
            off = (st % 3) * STG + nt * 32
            a(f"ds_read_b64_tr_b16 {vr(WR+slot*4,2)}, v{base} offset:{off}")
            a(f"ds_read_b64_tr_b16 {vr(WR+slot*4+2,2)}, v{base} offset:{off+ROWB}")
        vm.wait(lambda t: t[1] <= 0)
        a("s_barrier")
        for f in range(PF): wread(f)
        stamp(a, 1)
        for i in range(18):
            lg = []
            for j in sched.get(i, [i + PFD]): lg += load_groups(j)
            vm.wait(lambda t: t[0] == "X" and t[1] <= i)
            gi = 0
            gpos = [(k * 9) // max(1, len(lg)) for k in range(len(lg))]
            for nt in range(9):
                g = i*9 + nt; slot = g % RING
                if i == 0 and nt == 9 - PF:
                    vm.wait(lambda t: t[0] == "W" and t[1] <= 1)
                    a("s_barrier")
                wread(g + PF)
                rem = min(PF, 18*9 - 1 - g)
                a(f"s_waitcnt lgkmcnt({2*rem})")
                xs = XS + (i % NST) * 8
                a(f"v_mfma_f32_16x16x32_bf16 {vr(acc(nt,0),4)}, {vr(WR+slot*4,4)}, {vr(xs,4)}, {vr(acc(nt,0),4)}")
                a(f"v_mfma_f32_16x16x32_bf16 {vr(acc(nt,1),4)}, {vr(WR+slot*4,4)}, {vr(xs+4,4)}, {vr(acc(nt,1),4)}")
                while gi < len(lg) and gpos[gi] <= nt:
                    emit_group(lg[gi]); gi += 1
            assert gi == len(lg)
            vm.wait(lambda t: t[0] == "W" and t[1] <= i + 2)
            a("s_barrier")
    body(3, "A")
    a(f"s_branch L_{name}_epi")
    a.lab(f"L_{name}_typeB")
    body(2, "B")
    a.lab(f"L_{name}_epi")
    stamp(a, 2)
    a(f"s_lshr_b32 s{sT}, s{sWave}, 2")
    a(f"v_lshlrev_b32 v{vT}, 4, v0")
    a(f"s_mul_i32 s{sT+1}, s{sWave}, 9216")
    a(f"v_add_u32 v{vT+1}, s{sT+1}, v{vT}")
    a(f"s_xor_b32 s{sT+2}, s{sWave}, 4")
    a(f"s_mul_i32 s{sT+2}, s{sT+2}, 9216")
    a(f"v_add_u32 v{vT+2}, s{sT+2}, v{vT}")
    a(f"s_cmp_eq_u32 s{sT}, 0")
    a("s_nop 4")
    a(f"s_cbranch_scc0 L_{name}_kh1")
    for kh in range(2):
        if kh == 1: a.lab(f"L_{name}_kh1")
        for nt in range(9):
            a(f"ds_write_b128 v{vT+1}, {vr(acc(nt,1-kh),4)} offset:{nt*1024}")
        a("s_waitcnt lgkmcnt(0)")
        a("s_barrier")
        for nt in range(9):
            a(f"ds_read_b128 {vr(XS+nt*4,4)}, v{vT+2} offset:{nt*1024}")
        for nt in range(9):
            a(f"s_waitcnt lgkmcnt({8-nt})")
            for r in range(4):
                a(f"v_add_f32 v{XS+nt*4+r}, v{XS+nt*4+r}, v{acc(nt,kh)+r}")
            if nt in (4, 8): a(f"s_add_u32 s{sPb}, s{sPb}, 4096")
            a(f"buffer_store_dwordx4 {vr(XS+nt*4,4)}, v{vT}, {sr(sP,4)}, s{sPb} offen offset:{(nt%4)*1024}")
        stamp(a, 3)
        if "stamp" in OPT: a("s_waitcnt vmcnt(0)")
        stamp(a, 4); stamp(a, 6, True)
        stamp_dump(a, 7, 8, sWave, vT+4, 1)
        a("s_endpgm")
    a.lab(f"L_{name}_done")
    a("s_endpgm")
    return a.text(), kernel_desc(name, NV), f"; @launch kernel={name} grid=(256,1,1) block=(512,1,1) lds={NST*STG}"


def gen_k1v3(name="k1_kernel"):
    a = A(); vm = VM(a)
    kernel_head(a, name)
    XT = 0
    WB = 92160; STG = 16384; NST = 4; PITCH = 480
    QP = 624
    ACC = 4
    XF = 44
    WF = 84
    RAW = 100
    vD0, vD1 = 150, 151
    vWa, vXa, vXb = 152, 153, 154
    vNM, vR, vLW = 155, 156, 157
    vT = 160
    NV = 184
    sW, sXs, sO = 12, 16, 20
    sWave, sRb, sHg, sT = 28, 29, 30, 36
    sWo, sM0b = 31, 32
    a("s_cmp_ge_u32 s2, 256")
    a(f"s_cbranch_scc1 L_{name}_done")
    stamp(a, 0); stamp(a, 5, True)
    a("s_load_dwordx4 s[4:7], s[0:1], 0")
    a("s_load_dwordx2 s[8:9], s[0:1], 72")
    a("v_lshrrev_b32 v1, 6, v0")
    a("v_mov_b32 v3, v0")
    a("v_and_b32 v0, 63, v0")
    a(f"v_readfirstlane_b32 s{sWave}, v1")
    a(f"s_lshr_b32 s{sT}, s2, 3")
    a(f"s_and_b32 s{sHg}, s{sT}, 3")
    a(f"s_and_b32 s{sT+1}, s2, 1")
    a(f"s_lshl_b32 s{sT+1}, s{sT+1}, 2")
    a(f"s_add_u32 s{sHg}, s{sHg}, s{sT+1}")
    a(f"s_lshr_b32 s{sRb}, s{sT}, 2")
    a(f"s_bfe_u32 s{sT+1}, s2, 0x20001")
    a(f"s_lshl_b32 s{sT+1}, s{sT+1}, 3")
    a(f"s_add_u32 s{sRb}, s{sRb}, s{sT+1}")
    a(f"v_min_u32 v{vT+4}, 59, v0")
    a(f"v_mul_u32_u24 v{vT}, 10923, v{vT+4}")
    a(f"v_lshrrev_b32 v{vT}, 16, v{vT}")
    a(f"v_mul_u32_u24 v{vT+1}, 6, v{vT}")
    a(f"v_sub_u32 v{vT+1}, v{vT+4}, v{vT+1}")
    a(f"s_mul_i32 s{sT}, s{sWave}, 10")
    a(f"v_add_u32 v{vT+2}, s{sT}, v{vT}")
    a(f"s_lshl_b32 s{sT+1}, s{sRb}, 6")
    a(f"s_sub_u32 s{sT+1}, s{sT+1}, 16")
    a(f"v_add_u32 v{vT+3}, s{sT+1}, v{vT+2}")
    a(f"s_movk_i32 s{sT+2}, 1152")
    a(f"v_mul_lo_u32 v{vT+3}, v{vT+3}, s{sT+2}")
    a(f"v_lshl_add_u32 v{vT+3}, v{vT+1}, 4, v{vT+3}")
    a("s_waitcnt lgkmcnt(0)")
    srd(a, sXs, 4, 2048*576*2)
    for i in range(12):
        vm.op(("x", i), f"buffer_load_dwordx4 {vr(RAW+i*4,4)}, v{vT+3}, {sr(sXs,4)}, 0 offen offset:{i*96}")
    srd(a, sW, 6, 576*1728*2)
    srd(a, sO, 8, O_SZ, O_OFF)
    a(f"s_lshl_b32 s{sT}, s{sWave}, 7")
    a(f"s_mul_i32 s{sT+1}, s{sHg}, 144")
    a(f"s_mov_b32 s{sT+2}, 0x40000000")
    for t, vd in enumerate((vD0, vD1)):
        a(f"v_add_u32 v{vT+4}, s{sT}, v0")
        if t: a(f"v_add_u32 v{vT+4}, 64, v{vT+4}")
        a(f"v_mul_u32_u24 v{vT+5}, 2185, v{vT+4}")
        a(f"v_lshrrev_b32 v{vT+5}, 16, v{vT+5}")
        a(f"v_mul_u32_u24 v{vT+6}, 30, v{vT+5}")
        a(f"v_sub_u32 v{vT+6}, v{vT+4}, v{vT+6}")
        a(f"v_mul_u32_u24 v{vT+7}, 7282, v{vT+6}")
        a(f"v_lshrrev_b32 v{vT+7}, 16, v{vT+7}")
        a(f"v_mul_u32_u24 v{vT+8}, 9, v{vT+7}")
        a(f"v_sub_u32 v{vT+8}, v{vT+6}, v{vT+8}")
        a(f"v_mul_u32_u24 v{vT+7}, 1152, v{vT+7}")
        a(f"v_lshl_add_u32 v{vT+7}, v{vT+8}, 4, v{vT+7}")
        a(f"v_and_b32 v{vT+8}, 4, v{vT+5}")
        a(f"v_lshlrev_b32 v{vT+8}, 1, v{vT+8}")
        a(f"v_and_b32 v{vT+9}, 8, v{vT+5}")
        a(f"v_lshrrev_b32 v{vT+9}, 1, v{vT+9}")
        a(f"v_and_b32 v{vT+10}, 0x13, v{vT+5}")
        a(f"v_or3_b32 v{vT+8}, v{vT+8}, v{vT+9}, v{vT+10}")
        a(f"v_mul_u32_u24 v{vT+8}, 3456, v{vT+8}")
        a(f"v_add3_u32 v{vT+7}, v{vT+7}, v{vT+8}, s{sT+1}")
        a(f"v_cmp_gt_u32 vcc, 27, v{vT+6}")
        a(f"v_cmp_gt_u32 s[{sT+4}:{sT+5}], 32, v{vT+5}")
        a(f"s_and_b64 vcc, vcc, s[{sT+4}:{sT+5}]")
        a(f"v_mov_b32 v{vT+8}, s{sT+2}")
        a("s_nop 1")
        a(f"v_cndmask_b32 v{vd}, v{vT+8}, v{vT+7}, vcc")
    a(f"s_lshl_b32 s{sM0b}, s{sWave}, 11")
    a(f"s_add_u32 s{sM0b}, s{sM0b}, {WB}")
    def wdma(i):
        if i >= 18: return
        st = i % NST
        a(f"s_mov_b32 s{sWo}, {i*32*3456}")
        for t, vd in enumerate((vD0, vD1)):
            a(f"s_add_u32 m0, s{sM0b}, {st*STG + t*1024}")
            a("s_nop 0")
            vm.op(("W", i), f"buffer_load_dwordx4 v{vd}, {sr(sW,4)}, s{sWo} offen lds")
    for i in range(2): wdma(i)
    if "k1pf" in OPT:
        a(f"s_and_b32 s{sT+3}, s{sRb}, 7")
        a(f"s_mul_i32 s{sT+3}, s{sT+3}, {72*3456}")
        a(f"s_add_u32 s{sT+3}, s{sT+3}, s{sT+1}")
        for t in range(2):
            a(f"v_add_u32 v{vT+4}, s{sT}, v0")
            if t: a(f"v_add_u32 v{vT+4}, 64, v{vT+4}")
            a(f"v_mul_u32_u24 v{vT+5}, 7282, v{vT+4}")
            a(f"v_lshrrev_b32 v{vT+5}, 16, v{vT+5}")
            a(f"v_mul_u32_u24 v{vT+6}, 9, v{vT+5}")
            a(f"v_sub_u32 v{vT+6}, v{vT+4}, v{vT+6}")
            a(f"v_mul_u32_u24 v{vT+7}, 21846, v{vT+6}")
            a(f"v_lshrrev_b32 v{vT+7}, 16, v{vT+7}")
            a(f"v_mul_u32_u24 v{vT+8}, 3, v{vT+7}")
            a(f"v_sub_u32 v{vT+8}, v{vT+6}, v{vT+8}")
            a(f"v_mul_u32_u24 v{vT+8}, 70, v{vT+8}")
            a(f"v_and_b32 v{vT+8}, 0xfc, v{vT+8}")
            a(f"v_mul_u32_u24 v{vT+5}, 3456, v{vT+5}")
            a(f"v_mad_u32_u24 v{vT+5}, v{vT+7}, 1152, v{vT+5}") if False else None
            a(f"v_mul_u32_u24 v{vT+7}, 1152, v{vT+7}")
            a(f"v_add3_u32 v{vT+5}, v{vT+5}, v{vT+7}, v{vT+8}")
            a(f"v_cmp_gt_u32 vcc, 648, v{vT+4}")
            a(f"v_mov_b32 v{vT+8}, s{sT+2}")
            a("s_nop 1")
            a(f"v_cndmask_b32 v{vT+5}, v{vT+8}, v{vT+5}, vcc")
            vm.op(("P", t), f"buffer_load_dword v{vT+18+t}, v{vT+5}, {sr(sW,4)}, s{sT+3} offen")
    ONES = sT+8
    a(f"s_mov_b32 s{ONES}, 0x3f803f80")
    S, Q, S2, Q2 = vT+4, vT+5, vT+6, vT+7
    B3, B1, B2 = vT+8, vT+9, vT+10
    for d_, vb in ((3, B3), (1, B1), (2, B2)):
        a(f"v_add_u32 v{vb}, {d_}, v{vT+1}")
        a(f"v_subrev_u32 v{vT+11}, 6, v{vb}")
        a(f"v_min_u32 v{vb}, v{vb}, v{vT+11}")
        a(f"v_mad_u32_u24 v{vb}, v{vT}, 6, v{vb}")
        a(f"v_lshlrev_b32 v{vb}, 2, v{vb}")
    a(f"v_lshrrev_b32 v{vT+11}, 4, v{vT+2}")
    a(f"v_mul_u32_u24 v{vT+11}, 18432, v{vT+11}")
    a(f"v_and_b32 v{vT+12}, 15, v{vT+2}")
    a(f"v_lshl_add_u32 v{vT+11}, v{vT+12}, 4, v{vT+11}")
    a(f"v_lshl_add_u32 v{vLW}, v{vT+1}, 8, v{vT+11}")
    a(f"v_lshrrev_b32 v{vT+11}, 5, v0")
    a(f"v_lshlrev_b32 v{vT+11}, 4, v{vT+11}")
    a(f"v_bfe_u32 v{vT+12}, v0, 2, 3")
    a(f"v_add_u32 v{vT+11}, v{vT+11}, v{vT+12}")
    a(f"v_mul_u32_u24 v{vT+11}, {PITCH}, v{vT+11}")
    a(f"v_and_b32 v{vT+12}, 3, v0")
    a(f"v_lshl_add_u32 v{vWa}, v{vT+12}, 3, v{vT+11}")
    a(f"s_lshl_b32 s{sT}, s{sWave}, 6")
    a(f"s_add_u32 s{sT}, s{sT}, {WB}")
    a(f"v_add_u32 v{vWa}, s{sT}, v{vWa}")
    a(f"v_lshlrev_b32 v{vXa}, 4, v0")
    a(f"v_add_u32 v{vXb}, 65536, v{vXa}")
    for r in (S, Q, S2, Q2): a(f"v_mov_b32 v{r}, 0")
    for i in range(12):
        vm.wait(lambda t: t[0] == "x" and t[1] <= i)
        if i == 11 and "astamp" not in OPT: stamp(a, 1)
        for d_ in range(4):
            x = RAW + i*4 + d_
            s_, q_ = (S, Q) if d_ % 2 == 0 else (S2, Q2)
            a(f"v_dot2_f32_bf16 v{s_}, v{x}, s{ONES}, v{s_}")
            a(f"v_dot2_f32_bf16 v{q_}, v{x}, v{x}, v{q_}")
    wdma(2); wdma(3)
    a(f"v_add_f32 v{S}, v{S}, v{S2}")
    a(f"v_add_f32 v{Q}, v{Q}, v{Q2}")
    a(f"ds_bpermute_b32 v{S2}, v{B3}, v{S}")
    a(f"ds_bpermute_b32 v{Q2}, v{B3}, v{Q}")
    a("s_waitcnt lgkmcnt(0)")
    a(f"v_add_f32 v{S}, v{S}, v{S2}")
    a(f"v_add_f32 v{Q}, v{Q}, v{Q2}")
    a(f"ds_bpermute_b32 v{S2}, v{B1}, v{S}")
    a(f"ds_bpermute_b32 v{Q2}, v{B1}, v{Q}")
    a(f"ds_bpermute_b32 v{vT+11}, v{B2}, v{S}")
    a(f"ds_bpermute_b32 v{vT+12}, v{B2}, v{Q}")
    a("s_waitcnt lgkmcnt(0)")
    a(f"v_add3_u32 v{vT+13}, 0, 0, 0") if False else None
    a(f"v_add_f32 v{S}, v{S}, v{S2}")
    a(f"v_add_f32 v{Q}, v{Q}, v{Q2}")
    a(f"v_add_f32 v{S}, v{S}, v{vT+11}")
    a(f"v_add_f32 v{Q}, v{Q}, v{vT+12}")
    a(f"v_mul_f32 v{S}, {f32(1.0/576.0)}, v{S}")
    a(f"v_mul_f32 v{Q}, {f32(1.0/576.0)}, v{Q}")
    a(f"v_fma_f32 v{Q}, -v{S}, v{S}, v{Q}")
    a(f"v_max_f32 v{Q}, 0, v{Q}")
    round_bf16(a, vNM, S)
    round_bf16(a, Q, Q)
    a(f"v_add_f32 v{Q}, {f32(1e-5)}, v{Q}")
    round_bf16(a, Q, Q)
    a(f"v_sqrt_f32 v{Q}, v{Q}")
    a("s_nop 0")
    round_bf16(a, Q, Q)
    a(f"v_rcp_f32 v{vR}, v{Q}")
    a("s_nop 0")
    def norm_group(i):
        chains = []
        for d_ in range(4):
            x = RAW + i*4 + d_
            t = vT + 12 + d_ * 2
            chains.append([f"v_lshlrev_b32 v{t}, 16, v{x}", f"v_and_b32 v{t+1}, 0xffff0000, v{x}",
                    f"v_sub_f32 v{t}, v{t}, v{vNM}", f"v_sub_f32 v{t+1}, v{t+1}, v{vNM}",
                    f"v_cvt_pk_bf16_f32 v{t}, v{t}, v{t+1}",
                    f"v_and_b32 v{t+1}, 0xffff0000, v{t}", f"v_lshlrev_b32 v{t}, 16, v{t}",
                    f"v_mul_f32 v{t}, v{t}, v{vR}", f"v_mul_f32 v{t+1}, v{t+1}, v{vR}",
                    f"v_cvt_pk_bf16_f32 v{x}, v{t}, v{t+1}"])
        ops = []
        for stage in ((0, 1), (2, 3), (4,), (5, 6), (7, 8), (9,)):
            for c in chains:
                for j in stage: ops.append(c[j])
        ops.append(f"ds_write_b128 v{vLW}, {vr(RAW+i*4,4)} offset:{XT + i*6*256}")
        return ops
    gdone = 12
    for g_ in range(12):
        for op in norm_group(g_): a(op)
    if "astamp" not in OPT: stamp(a, 2)
    vm.wait(lambda t: t[0] == "W" and t[1] <= 0)
    a("s_waitcnt lgkmcnt(0)")
    a("s_barrier")
    if "astamp" not in OPT: stamp(a, 3)
    def reads(i):
        b = i % 2; st = i % NST
        for n in range(2):
            a(f"ds_read_b64_tr_b16 {vr(WF+b*8+n*4,2)}, v{vWa} offset:{st*STG + n*32}")
            a(f"ds_read_b64_tr_b16 {vr(WF+b*8+n*4+2,2)}, v{vWa} offset:{st*STG + n*32 + 8*PITCH}")
        for mt in range(5):
            off = (mt*18 + i)*1024
            if off < 65536:
                a(f"ds_read_b128 {vr(XF+b*20+mt*4,4)}, v{vXa} offset:{off}")
            else:
                a(f"ds_read_b128 {vr(XF+b*20+mt*4,4)}, v{vXb} offset:{off-65536}")
    for i in range(18):
        reads(i)
        if i >= 1: wdma(i+3)
        b = i % 2
        need = min(11, (4*(i+1)+3)//6)
        nops = []
        while gdone <= need:
            nops += norm_group(gdone); gdone += 1
        if "k1nonorm" in OPT: nops = []
        ni = 0
        for _ in range(10):
            if ni < len(nops) - 1: a(nops[ni]); ni += 1
        for mt in range(5):
            a(f"s_waitcnt lgkmcnt({4-mt})")
            for n in range(2):
                c = vr(ACC+(mt*2+n)*4,4)
                a(f"v_mfma_f32_16x16x32_bf16 {c}, {vr(WF+b*8+n*4,4)}, {vr(XF+b*20+mt*4,4)}, " + ("0" if i == 0 else c))
                for _ in range(3):
                    if ni < len(nops) - 1: a(nops[ni]); ni += 1
        while ni < len(nops):
            a(nops[ni]); ni += 1
        if i < 17:
            vm.wait(lambda t: t[0] == "W" and t[1] <= i+1)
            if nops: a("s_waitcnt lgkmcnt(0)")
            a("s_barrier")
    a("s_barrier")
    stamp(a, 1 if "astamp" in OPT else 4)
    a(f"v_lshrrev_b32 v{vT}, 4, v0")
    a(f"v_lshlrev_b32 v{vT}, 2, v{vT}")
    a(f"s_lshl_b32 s{sT}, s{sWave}, 5")
    a(f"v_add_u32 v{vT}, s{sT}, v{vT}")
    a(f"v_and_b32 v{vT+1}, 15, v0")
    a(f"v_mul_u32_u24 v{vT+1}, {QP}, v{vT+1}")
    AD = vT + 4
    for n in range(2):
        for p in range(2):
            ad = AD + n*2 + p
            a(f"v_add_u32 v{vT+2}, {n*16+p*2}, v{vT}")
            a(f"v_mul_u32_u24 v{vT+3}, 3641, v{vT+2}")
            a(f"v_lshrrev_b32 v{vT+3}, 16, v{vT+3}")
            a(f"v_mul_u32_u24 v{ad}, 18, v{vT+3}")
            a(f"v_sub_u32 v{ad}, v{vT+2}, v{ad}")
            a(f"v_lshl_add_u32 v{ad}, v{ad}, 1, v{vT+1}")
            a(f"v_mad_u32_u24 v{ad}, v{vT+3}, 48, v{ad}")
    a(f"s_cmp_ge_u32 s{sWave}, 7")
    a(f"s_cbranch_scc1 L_{name}_skipq")
    for mt in range(5):
        for n in range(2):
            c = ACC + (mt*2+n)*4
            t = vT + 8 + ((mt*2+n) % 2) * 2
            a(f"v_cvt_pk_bf16_f32 v{t}, v{c}, v{c+1}")
            a(f"v_cvt_pk_bf16_f32 v{t+1}, v{c+2}, v{c+3}")
            a(f"ds_write_b32 v{AD+n*2}, v{t} offset:{mt*16*QP}")
            a(f"ds_write_b32 v{AD+n*2+1}, v{t+1} offset:{mt*16*QP}")
    a.lab(f"L_{name}_skipq")
    QR = 4; KR = 16; LG = 64; LX = 68; VO = 72; VX = 104; OA = 136
    vAo, vAx, vPos, vHd, vHf = vT, vT+1, vT+2, vT+3, vT+12
    a(f"v_lshrrev_b32 v{vPos}, 3, v3")
    a(f"v_bfe_u32 v{vHd}, v3, 1, 2")
    a(f"v_and_b32 v{vHf}, 1, v3")
    a(f"v_add_u32 v{vT+13}, 2, v{vPos}")
    a(f"v_mul_u32_u24 v{vT+13}, {QP}, v{vT+13}")
    a(f"v_mad_u32_u24 v{vT+13}, v{vHd}, 48, v{vT+13}")
    a(f"v_xor_b32 v{vT+14}, 1, v{vHf}")
    a(f"s_movk_i32 s{sT}, {8*QP}")
    a(f"v_mad_u32_u24 v{vAo}, v{vT+14}, s{sT}, v{vT+13}")
    a(f"v_mad_u32_u24 v{vAx}, v{vHf}, s{sT}, v{vT+13}")
    a("s_waitcnt lgkmcnt(0)")
    a("s_barrier")
    if "astamp" in OPT: stamp(a, 2)
    for j in range(3):
        a(f"ds_read_b128 {vr(QR+j*4,4)}, v{vT+13} offset:{14*QP + j*16}")
    for i in range(4):
        for j in range(3):
            a(f"ds_read_b128 {vr(KR+i*12+j*4,4)}, v{vAo} offset:{(6-2*i)*QP + 192 + j*16}")
    a(f"v_lshl_add_u32 v{vAo}, v{vHf}, 4, v{vAo}")
    a(f"v_lshl_add_u32 v{vAx}, v{vHf}, 4, v{vAx}")
    a(f"s_lshl_b32 s{sT}, s{sRb}, 6")
    a(f"v_add_u32 v{vPos}, s{sT}, v{vPos}")
    a(f"v_lshlrev_b32 v{vT+14}, 3, v{vHf}")
    a(f"v_sub_u32 v{vT+14}, v{vPos}, v{vT+14}")
    a(f"s_mov_b32 s{sT+1}, {f32(18.0**-0.5)}")
    a(f"s_mov_b32 s{sT+2}, {f32(-1e9)}")
    a(f"v_cvt_pk_bf16_f32 v{vT+15}, s{sT+2}, s{sT+2}")
    a(f"v_lshlrev_b32 v{vT+15}, 16, v{vT+15}")
    for i in range(4): a(f"v_mov_b32 v{LG+i}, 0")
    a("s_waitcnt lgkmcnt(0)")
    for i in range(4):
        a(f"ds_read_b128 {vr(VO+i*8,4)}, v{vAo} offset:{(6-2*i)*QP + 384}")
        a(f"ds_read_b32 v{VO+i*8+4}, v{vAo} offset:{(6-2*i)*QP + 384 + 16}")
    for i in range(4):
        a(f"ds_read_b128 {vr(VX+i*8,4)}, v{vAx} offset:{(6-2*i)*QP + 384}")
        a(f"ds_read_b32 v{VX+i*8+4}, v{vAx} offset:{(6-2*i)*QP + 384 + 16}")
    for d_ in range(9):
        for i in range(4):
            a(f"v_dot2_f32_bf16 v{LG+i}, v{QR+d_}, v{KR+i*12+d_}, v{LG+i}")
    a("s_nop 2")
    a(f"v_cvt_pk_bf16_f32 v{LG}, v{LG}, v{LG+1}")
    a(f"v_cvt_pk_bf16_f32 v{LG+2}, v{LG+2}, v{LG+3}")
    a(f"v_and_b32 v{LG+1}, 0xffff0000, v{LG}")
    a(f"v_lshlrev_b32 v{LG}, 16, v{LG}")
    a(f"v_and_b32 v{LG+3}, 0xffff0000, v{LG+2}")
    a(f"v_lshlrev_b32 v{LG+2}, 16, v{LG+2}")
    for i in range(4): a(f"v_mul_f32 v{LG+i}, s{sT+1}, v{LG+i}")
    a(f"v_cvt_pk_bf16_f32 v{LG}, v{LG}, v{LG+1}")
    a(f"v_cvt_pk_bf16_f32 v{LG+2}, v{LG+2}, v{LG+3}")
    a(f"v_and_b32 v{LG+1}, 0xffff0000, v{LG}")
    a(f"v_lshlrev_b32 v{LG}, 16, v{LG}")
    a(f"v_and_b32 v{LG+3}, 0xffff0000, v{LG+2}")
    a(f"v_lshlrev_b32 v{LG+2}, 16, v{LG+2}")
    for i in range(4):
        a(f"v_cmp_le_i32 vcc, {2*i}, v{vT+14}")
        a("s_nop 1")
        a(f"v_cndmask_b32 v{LG+i}, v{vT+15}, v{LG+i}, vcc")
    a("s_nop 1")
    for i in range(4):
        a(f"v_mov_b32_dpp v{LX+i}, v{LG+i} quad_perm:[1,0,3,2] row_mask:0xf bank_mask:0xf")
    M_, SUM = vT+13, vT+14
    a(f"v_max3_f32 v{M_}, v{LG}, v{LG+1}, v{LG+2}")
    a(f"v_max3_f32 v{M_}, v{M_}, v{LG+3}, v{LX}")
    a(f"v_max3_f32 v{M_}, v{M_}, v{LX+1}, v{LX+2}")
    a(f"v_max_f32 v{M_}, v{M_}, v{LX+3}")
    a(f"s_mov_b32 s{sT+3}, {f32(math.log2(math.e))}")
    for w in range(8):
        a(f"v_sub_f32 v{LG+w}, v{LG+w}, v{M_}")
    for w in range(8):
        a(f"v_mul_f32 v{LG+w}, s{sT+3}, v{LG+w}")
    for w in range(8):
        a(f"v_exp_f32 v{LG+w}, v{LG+w}")
    a("s_nop 0")
    a(f"v_add_f32 v{SUM}, v{LG}, v{LX}")
    a(f"v_add_f32 v{M_}, v{LG+1}, v{LX+1}")
    a(f"v_add_f32 v{vT+15}, v{LG+2}, v{LX+2}")
    a(f"v_add_f32 v{vT+16}, v{LG+3}, v{LX+3}")
    a(f"v_add_f32 v{SUM}, v{SUM}, v{M_}")
    a(f"v_add_f32 v{vT+15}, v{vT+15}, v{vT+16}")
    a(f"v_add_f32 v{SUM}, v{SUM}, v{vT+15}")
    a(f"v_rcp_f32 v{SUM}, v{SUM}")
    a("s_nop 0")
    for w in range(8):
        a(f"v_mul_f32 v{LG+w}, v{LG+w}, v{SUM}")
    for wp in range(4):
        a(f"v_cvt_pk_bf16_f32 v{LG+wp}, v{LG+2*wp}, v{LG+2*wp+1}")
    if "astamp" in OPT: stamp(a, 3)
    a(f"s_mov_b32 s{sT+4}, 0x05040100")
    a(f"s_mov_b32 s{sT+5}, 0x07060302")
    a("s_waitcnt lgkmcnt(0)")
    for wp in range(4):
        base = (VO if wp < 2 else VX) + (wp % 2) * 16
        for d_ in range(5):
            x0 = base + d_; x1 = base + 8 + d_
            t = vT + 13 + (d_ % 2) * 2
            a(f"v_perm_b32 v{t}, v{x1}, v{x0}, s{sT+4}")
            a(f"v_perm_b32 v{t+1}, v{x1}, v{x0}, s{sT+5}")
            a(f"v_dot2_f32_bf16 v{OA+2*d_}, v{t}, v{LG+wp}, " + ("0" if wp == 0 else f"v{OA+2*d_}"))
            a(f"v_dot2_f32_bf16 v{OA+2*d_+1}, v{t+1}, v{LG+wp}, " + ("0" if wp == 0 else f"v{OA+2*d_+1}"))
    a("s_nop 2")
    for d_ in range(5):
        a(f"v_cvt_pk_bf16_f32 v{QR+d_}, v{OA+2*d_}, v{OA+2*d_+1}")
    a(f"v_mul_u32_u24 v{vPos}, 1152, v{vPos}")
    a(f"v_mad_u32_u24 v{vPos}, v{vHd}, 36, v{vPos}")
    a(f"v_lshl_add_u32 v{vPos}, v{vHf}, 4, v{vPos}")
    a(f"s_mul_i32 s{sT}, s{sHg}, 144")
    a.l.append(f"    buffer_store_dwordx4 {vr(QR,4)}, v{vPos}, {sr(sO,4)}, s{sT} offen")
    a(f"buffer_store_dword v{QR+4}, v{vPos}, {sr(sO,4)}, s{sT} offen offset:16")
    if "astamp" in OPT: stamp(a, 4)
    if "stamp" in OPT: a("s_waitcnt vmcnt(0)")
    stamp(a, 6, True)
    stamp_dump(a, 7, 8, sWave, vT+8, 3)
    a.lab(f"L_{name}_done")
    a("s_endpgm")
    return a.text(), kernel_desc(name, NV, 96), f"; @launch kernel={name} grid=(256,1,1) block=(512,1,1) lds={WB + NST*STG}"

GENS = {"k1v3": gen_k1v3, "k1": gen_k1, "k2": gen_k2, "k3": gen_k3, "k4": gen_k4, "k5": gen_k5, "k3v2": gen_k3v2, "k3m": gen_k3m, "k4v2": gen_k4v2}


def build(which):
    heads, texts, descs = [], [], []
    for w in which:
        t, d, h = GENS[w]()
        heads.append(h); texts.append(t); descs.append(d)
    out = "; generated by dev/gen.py\n" + "\n".join(heads) + "\n"
    out += '.amdgcn_target "amdgcn-amd-amdhsa--gfx950"\n.text\n'
    out += "\n".join(texts)
    out += '.section .rodata,"a"\n'
    for d in descs:
        out += ".p2align 6\n" + d
    return out

if __name__ == "__main__":
    which = sys.argv[2].split(",")
    open(sys.argv[1], "w").write(build(which))
```

```python
import sys, struct, math, os
OPT = set(os.environ.get("GENOPT", "").split(","))

KN = "sequential_preLN__sliding_local_dilated__geglu_ffn__prompt"

O_OFF  = 0
O_SZ   = 2048*576*2
H1_OFF = O_OFF + O_SZ
H1_SZ  = 2048*576*2
ST_OFF = H1_OFF + H1_SZ
ST_SZ  = 2048*6*8
HH_OFF = ST_OFF + ST_SZ
HH_SZ  = 2048*4608*2
P_OFF  = HH_OFF + HH_SZ
P_SZ   = 4*2048*576*4

def f32(x):
    return struct.unpack("<I", struct.pack("<f", x))[0]

class A:
    def __init__(self):
        self.l = []
    def __call__(self, s):
        if "nomfma" in OPT and s.startswith("v_mfma"): return
        if s.startswith("buffer_store_dwordx4") and "s[80:83]" not in s:
            pol = getattr(self, "stpol", "")
            if pol: s += " " + pol
        if "nods" in OPT and s.startswith("ds_read_b64_tr"): return
        if "now" in OPT and s.startswith("buffer_load_dwordx4") and s.endswith("lds"): return
        if "nox" in OPT and s.startswith("buffer_load_dwordx4 v[") and "s[16:19]" in s: return
        self.l.append("    " + s)
    def lab(self, s):
        self.l.append(s + ":")
    def c(self, s):
        self.l.append("    ; " + s)
    def text(self):
        return "\n".join(self.l) + "\n"

def vr(b, n=1):
    return f"v{b}" if n == 1 else f"v[{b}:{b+n-1}]"
def sr(b, n=1):
    return f"s{b}" if n == 1 else f"s[{b}:{b+n-1}]"

def kernel_head(a, name):
    a.l.append(f".globl {name}")
    a.l.append(".p2align 8")
    a.l.append(f".type {name},@function")
    a.lab(name)

def kernel_desc(name, vgpr, sgpr=96, accum=None):
    if accum is None:
        accum = (vgpr + 3) // 4 * 4
    return f""".amdhsa_kernel {name}
  .amdhsa_next_free_vgpr {vgpr}
  .amdhsa_next_free_sgpr {sgpr}
  .amdhsa_accum_offset {accum}
  .amdhsa_group_segment_fixed_size 0
  .amdhsa_kernarg_size 80
  .amdhsa_user_sgpr_count 2
  .amdhsa_user_sgpr_kernarg_segment_ptr 1
  .amdhsa_system_sgpr_workgroup_id_x 1
.end_amdhsa_kernel
"""

def srd(a, d, base, size, off=0):
    if off:
        a(f"s_add_u32 s{d}, s{base}, {off}")
        a(f"s_addc_u32 s{d+1}, s{base+1}, 0")
    else:
        a(f"s_mov_b32 s{d}, s{base}")
        a(f"s_mov_b32 s{d+1}, s{base+1}")
    a(f"s_and_b32 s{d+1}, s{d+1}, 0xffff")
    a(f"s_mov_b32 s{d+2}, {size}")
    a(f"s_mov_b32 s{d+3}, 0x00020000")

def round_bf16(a, d, s, tmp=None):
    a(f"v_cvt_pk_bf16_f32 v{d}, v{s}, v{s}")
    a(f"v_lshlrev_b32 v{d}, 16, v{d}")

GELU_A = -2.0 * math.log2(math.e) * math.sqrt(2.0 / math.pi)
GELU_B = GELU_A * 0.044715

import os
OPT = set(os.environ.get("GENOPT", "").split(","))
def stamp(a, i, real=False):
    if "stamp" in OPT:
        a(f"s_mem{'real' if real else ''}time s[{60+2*i}:{61+2*i}]")
def stamp_dump(a, n, sWs, sWave, tmpv, region=0):
    if "stamp" in OPT:
        a("s_waitcnt lgkmcnt(0)")
        a("s_mov_b64 exec, -1")
        srd(a, 80, sWs, 1<<20, (200+region)<<20)
        a(f"s_lshl_b32 s84, s2, 4")
        a(f"s_add_u32 s84, s84, s{sWave}")
        a(f"s_lshl_b32 s84, s84, 6")
        a(f"v_mov_b32 v{tmpv}, s84")
        for i in range(n):
            a(f"v_mov_b32 v{tmpv+2}, s{60+2*i}")
            a(f"v_mov_b32 v{tmpv+3}, s{61+2*i}")
            a(f"buffer_store_dwordx2 v[{tmpv+2}:{tmpv+3}], v{tmpv}, s[80:83], 0 offen offset:{8*i}")
            a("s_nop 1")
def gen_k3(name="k3_kernel"):
    a = A()
    kernel_head(a, name)
    NST = 6
    STG = 18432
    RING = 6
    ACC = 0
    XS = 144
    WR = 192
    vWa = 216
    vWb = 217
    vD0, vD1, vD2 = 218, 219, 220
    vX0, vX1 = 221, 222
    vM0, vR0, vM1, vR1 = 223, 224, 225, 226
    vT = 228
    vLane = 244
    NV = 246
    def acc(nt, mat, mt):
        return ACC + ((nt * 2 + mat) * 2 + mt) * 4
    sW, sX, sST, sH = 12, 16, 20, 24
    sWave, sFb, sMb = 28, 29, 30
    sWoff, sXoff, sIt = 31, 32, 33
    sM0b = 34
    sT = 36
    sA_, sB_ = 48, 49
    sExec = 50
    sHb = 52

    a("s_cmp_ge_u32 s2, 256")
    a(f"s_cbranch_scc1 L_{name}_done")
    stamp(a, 0)
    stamp(a, 5, True)
    a("s_load_dwordx4 s[4:7], s[0:1], 32")
    a("s_load_dwordx2 s[8:9], s[0:1], 72")
    a("v_lshrrev_b32 v1, 6, v0")
    a("v_and_b32 v0, 63, v0")
    a("s_nop 0")
    a(f"v_readfirstlane_b32 s{sWave}, v1")
    a(f"s_and_b32 s{sT}, s2, 7")
    a(f"s_lshr_b32 s{sT+1}, s2, 3")
    a(f"s_and_b32 s{sFb}, s{sT+1}, 3")
    a(f"s_lshl_b32 s{sT}, s{sT}, 2")
    a(f"s_add_u32 s{sFb}, s{sFb}, s{sT}")
    a(f"s_lshr_b32 s{sMb}, s{sT+1}, 2")
    a("s_waitcnt lgkmcnt(0)")
    a(f"s_cmp_ge_u32 s{sWave}, 4")
    a(f"s_cselect_b32 s{sT}, s6, s4")
    a(f"s_cselect_b32 s{sT+1}, s7, s5")
    srd(a, sW, sT, 576*4608*2)
    srd(a, sX, 8, H1_SZ, H1_OFF)
    srd(a, sST, 8, ST_SZ, ST_OFF)
    srd(a, sH, 8, HH_SZ, HH_OFF)
    a(f"v_and_b32 v{vT}, 15, v0")
    a(f"s_lshl_b32 s{sT}, s{sMb}, 8")
    a(f"s_lshl_b32 s{sT+1}, s{sWave}, 5")
    a(f"s_add_u32 s{sT}, s{sT}, s{sT+1}")
    a(f"v_add_u32 v{vT}, s{sT}, v{vT}")
    a(f"v_mul_u32_u24 v{vT}, 48, v{vT}")
    for mt in range(2):
        for q in range(3):
            a(f"buffer_load_dwordx4 {vr(WR+mt*12+q*4,4)}, v{vT}, {sr(sST,4)}, 0 offen offset:{mt*768+q*16}")
    for t, vd in enumerate((vD0, vD1, vD2)):
        a(f"v_add_u32 v{vT+1}, {t*64}, v0")
        a(f"v_mul_u32_u24 v{vT+2}, 3641, v{vT+1}")
        a(f"v_lshrrev_b32 v{vT+2}, 16, v{vT+2}")
        a(f"v_mul_u32_u24 v{vT+3}, 18, v{vT+2}")
        a(f"v_sub_u32 v{vT+3}, v{vT+1}, v{vT+3}")
        a(f"v_mul_u32_u24 v{vT+2}, 9216, v{vT+2}")
        a(f"v_lshl_add_u32 v{vd}, v{vT+3}, 4, v{vT+2}")
    a(f"s_and_b32 s{sT}, s{sWave}, 3")
    a(f"s_mul_i32 s{sT+1}, s{sT}, {8*9216}")
    a(f"s_mul_i32 s{sT+2}, s{sFb}, 288")
    a(f"s_add_u32 s{sT+1}, s{sT+1}, s{sT+2}")
    for vd in (vD0, vD1, vD2):
        a(f"v_add_u32 v{vd}, s{sT+1}, v{vd}")
    a(f"s_mul_i32 s{sM0b}, s{sWave}, 2304")
    a(f"s_lshl_b32 s{sT}, s{sMb}, 4")
    a(f"s_lshl_b32 s{sT+1}, s{sWave}, 1")
    a(f"s_add_u32 s{sT}, s{sT}, s{sT+1}")
    a(f"s_mul_i32 s{sT+1}, s{sT}, 18432")
    a(f"v_lshlrev_b32 v{vX0}, 4, v0")
    a(f"v_add_u32 v{vX0}, s{sT+1}, v{vX0}")
    a(f"v_add_u32 v{vX1}, 18432, v{vX0}")
    a(f"s_mul_i32 s{sHb}, s{sT}, 144")
    a(f"s_lshr_b32 s{sT+1}, s{sFb}, 1")
    a(f"s_mul_i32 s{sT+1}, s{sT+1}, 9")
    a(f"s_add_u32 s{sHb}, s{sHb}, s{sT+1}")
    a(f"s_lshl_b32 s{sHb}, s{sHb}, 10")
    a(f"v_lshrrev_b32 v{vT+1}, 2, v0")
    a(f"v_mul_u32_u24 v{vT+1}, 288, v{vT+1}")
    a(f"v_and_b32 v{vT+2}, 3, v0")
    a(f"v_lshl_add_u32 v{vWa}, v{vT+2}, 3, v{vT+1}")
    a(f"v_add_u32 v{vWb}, {3*STG}, v{vWa}")
    sRot, sCnt = 54, 55
    if "rot" in OPT:
        a(f"s_mul_i32 s{sRot}, s{sMb}, 9")
        a(f"s_and_b32 s{sT}, s{sFb}, 3")
        a(f"s_mul_i32 s{sT}, s{sT}, 18")
        a(f"s_add_u32 s{sRot}, s{sRot}, s{sT}")
        a(f"s_lshr_b32 s{sRot}, s{sRot}, 2")
        a(f"s_sub_u32 s{sT}, s{sRot}, 18")
        a(f"s_cmp_ge_u32 s{sRot}, 18")
        a(f"s_cselect_b32 s{sRot}, s{sT}, s{sRot}")
    else:
        a(f"s_mov_b32 s{sRot}, 0")
    if "samew" in OPT:
        a(f"s_mov_b32 s{sRot}, 0")
    a(f"s_mov_b32 s{sCnt}, 0")
    a(f"s_mul_i32 s{sWoff}, s{sRot}, {32*9216}")
    a(f"s_lshl_b32 s{sXoff}, s{sRot}, 10")
    a(f"s_mov_b64 s[{sExec}:{sExec+1}], 0xffff")
    a(f"v_mov_b32 v{vLane}, v0")

    def load_groups(stage, xset):
        gs = []
        for t, vd in enumerate((vD0, vD1, vD2)):
            g = [f"s_add_u32 m0, s{sM0b}, {stage*STG + t*1024}"]
            if t == 2:
                g.append(f"s_mov_b64 exec, s[{sExec}:{sExec+1}]")
            else:
                g.append("s_nop 0")
            g.append(f"buffer_load_dwordx4 v{vd}, {sr(sW,4)}, s{sWoff} offen lds")
            if t == 2:
                g.append("s_mov_b64 exec, -1")
            gs.append(g)
        gs.append([f"buffer_load_dwordx4 {vr(XS+xset*8,4)}, v{vX0}, {sr(sX,4)}, s{sXoff} offen"])
        gs.append([f"buffer_load_dwordx4 {vr(XS+xset*8+4,4)}, v{vX1}, {sr(sX,4)}, s{sXoff} offen",
                   f"s_add_u32 s{sRot}, s{sRot}, 1",
                   f"s_cmp_eq_u32 s{sRot}, {4 if 'hot4' in OPT else 18}",
                   f"s_cselect_b32 s{sRot}, 0, s{sRot}",
                   f"s_add_u32 s{sCnt}, s{sCnt}, 1",
                   f"s_mul_i32 s{sWoff}, s{sRot}, {32*9216}",
                   f"s_lshl_b32 s{sXoff}, s{sRot}, 10",
                   f"s_cmp_ge_u32 s{sCnt}, 18",
                   f"s_cselect_b32 s{sWoff}, 0x7f000000, s{sWoff}",
                   f"s_cselect_b32 s{sXoff}, 0x7f000000, s{sXoff}"])
        return gs
    def issue_loads(stage, xset):
        for g in load_groups(stage, xset):
            for x in g: a(x)

    for s in range(5):
        issue_loads(s, s)
    a("s_waitcnt vmcnt(25)")
    for mt, (vM, vR) in enumerate(((vM0, vR0), (vM1, vR1))):
        b = WR + mt * 12
        a(f"v_add_f32 v{vT}, v{b}, v{b+2}")
        a(f"v_add_f32 v{vT+1}, v{b+4}, v{b+6}")
        a(f"v_add_f32 v{vT+2}, v{b+8}, v{b+10}")
        a(f"v_add_f32 v{vT}, v{vT}, v{vT+1}")
        a(f"v_add_f32 v{vT}, v{vT}, v{vT+2}")
        a(f"v_mul_f32 v{vT}, {f32(1.0/6.0)}, v{vT}")
        a(f"v_add_f32 v{vT+1}, v{b+1}, v{b+3}")
        a(f"v_add_f32 v{vT+2}, v{b+5}, v{b+7}")
        a(f"v_add_f32 v{vT+3}, v{b+9}, v{b+11}")
        a(f"v_add_f32 v{vT+1}, v{vT+1}, v{vT+2}")
        a(f"v_add_f32 v{vT+1}, v{vT+1}, v{vT+3}")
        a(f"v_mov_b32 v{vT+2}, 0")
        for t in range(6):
            a(f"v_sub_f32 v{vT+3}, v{b+2*t}, v{vT}")
            a(f"v_fmac_f32 v{vT+2}, v{vT+3}, v{vT+3}")
        a(f"v_fmac_f32 v{vT+1}, {f32(96.0)}, v{vT+2}")
        a(f"v_mul_f32 v{vT+1}, {f32(1.0/576.0)}, v{vT+1}")
        round_bf16(a, vM, vT)
        round_bf16(a, vT+1, vT+1)
        a(f"v_add_f32 v{vT+1}, {f32(1e-5)}, v{vT+1}")
        round_bf16(a, vT+1, vT+1)
        a(f"v_sqrt_f32 v{vT+1}, v{vT+1}")
        a("s_nop 0")
        round_bf16(a, vT+1, vT+1)
        a(f"v_rcp_f32 v{vR}, v{vT+1}")
    for i in range(0, 144, 2):
        a(f"v_mov_b64 {vr(ACC+i,2)}, 0")

    def norm_ops(xset):
        ops = []
        for mt, (vM, vR) in enumerate(((vM0, vR0), (vM1, vR1))):
            for d in range(4):
                x = XS + xset * 8 + mt * 4 + d
                t0 = vT + (d % 2) * 2
                t1 = t0 + 1
                ops.append(f"v_lshlrev_b32 v{t0}, 16, v{x}")
                ops.append(f"v_and_b32 v{t1}, 0xffff0000, v{x}")
                if "fastnorm" in OPT:
                    ops.append(f"v_sub_f32 v{t0}, v{t0}, v{vM}")
                    ops.append(f"v_sub_f32 v{t1}, v{t1}, v{vM}")
                    ops.append(f"v_cvt_pk_bf16_f32 v{x}, v{t0}, v{t1}")
                    continue
                ops.append(f"v_sub_f32 v{t0}, v{t0}, v{vM}")
                ops.append(f"v_sub_f32 v{t1}, v{t1}, v{vM}")
                ops.append(f"v_cvt_pk_bf16_f32 v{t0}, v{t0}, v{t1}")
                ops.append(f"v_and_b32 v{t1}, 0xffff0000, v{t0}")
                ops.append(f"v_lshlrev_b32 v{t0}, 16, v{t0}")
                ops.append(f"v_mul_f32 v{t0}, v{t0}, v{vR}")
                ops.append(f"v_mul_f32 v{t1}, v{t1}, v{vR}")
                ops.append(f"v_cvt_pk_bf16_f32 v{x}, v{t0}, v{t1}")
        return ops

    def wread(fidx_global):
        st = (fidx_global // 18) % NST
        f = fidx_global % 18
        nt, mat = f // 2, f % 2
        slot = fidx_global % RING
        base = vWa if st < 3 else vWb
        off = (st % 3) * STG + mat * 9216 + nt * 32
        a(f"ds_read_b64_tr_b16 {vr(WR+slot*4,2)}, v{base} offset:{off}")
        a(f"ds_read_b64_tr_b16 {vr(WR+slot*4+2,2)}, v{base} offset:{off+4608}")

    PF = RING - 1
    a("s_waitcnt vmcnt(15)")
    for op in norm_ops(0):
        a(op)
    a("s_barrier")
    for f in range(PF):
        wread(f)
    stamp(a, 1)
    a(f"s_mov_b32 s{sIt}, 0")
    a(".p2align 6")
    a.lab(f"L_{name}_loop")
    for ph in range(NST):
        lg = load_groups((ph + 5) % NST, (ph + 5) % NST)
        spread = "spread" in OPT
        if not spread:
            issue_loads((ph + 5) % NST, (ph + 5) % NST)
        nops = norm_ops((ph + 1) % NST)
        if "nonorm" in OPT: nops = []
        ni = 0
        for f in range(18):
            g = ph * 18 + f
            nt, mat = f // 2, f % 2
            slot = g % RING
            wread(g + PF)
            a(f"s_waitcnt lgkmcnt({2*PF})")
            a(f"v_mfma_f32_16x16x32_bf16 {vr(acc(nt,mat,0),4)}, {vr(WR+slot*4,4)}, {vr(XS+ph*8,4)}, {vr(acc(nt,mat,0),4)}")
            a(f"v_mfma_f32_16x16x32_bf16 {vr(acc(nt,mat,1),4)}, {vr(WR+slot*4,4)}, {vr(XS+ph*8+4,4)}, {vr(acc(nt,mat,1),4)}")
            if f == 1:
                a("s_waitcnt vmcnt(%d)" % (15 if spread else 20))
            if spread and f % 3 == 2 and f // 3 < 5:
                for x in lg[f // 3]: a(x)
            if f >= 1:
                for _ in range(5):
                    if ni < len(nops):
                        a(nops[ni]); ni += 1
        assert ni == len(nops)
        a("s_waitcnt vmcnt(17)")
        a("s_barrier")
    a(f"s_add_u32 s{sIt}, s{sIt}, 1")
    a(f"s_cmp_lt_u32 s{sIt}, 3")
    a(f"s_cbranch_scc1 L_{name}_loop")
    stamp(a, 2)
    a("s_waitcnt vmcnt(0) lgkmcnt(0)")
    a(f"s_mov_b32 s{sA_}, {f32(GELU_A)}")
    a(f"s_mov_b32 s{sB_}, {f32(GELU_B)}")
    a(f"v_lshlrev_b32 v{vX0}, 4, v{vLane}")
    a(f"s_and_b32 s{sT}, s{sFb}, 1")
    a(f"s_lshl_b32 s{sT+1}, s{sT}, 12")
    a(f"s_add_u32 s{sT+1}, s{sT+1}, s{sHb}")
    a(f"s_lshl_b32 s{sT+2}, s{sT}, 3")
    a(f"s_add_u32 s{sT+2}, s{sT+2}, s{sHb}")
    a(f"s_add_u32 s{sT+2}, s{sT+2}, {8*1024}")
    a(f"s_add_u32 s{sT+3}, s{sT+1}, {144*1024}")
    a(f"s_add_u32 s{sT+4}, s{sT+2}, {144*1024}")
    OUT = XS
    def gelu_tile(nt, mt, dst):
        g = acc(nt, 0, mt); u = acc(nt, 1, mt)
        T = WR
        for h in range(2):
            g0, g1, u0, u1 = g+2*h, g+2*h+1, u+2*h, u+2*h+1
            x0, x1, y0, y1, t0, t1 = T+h*8, T+h*8+1, T+h*8+2, T+h*8+3, T+h*8+4, T+h*8+5
            if "relax" in OPT:
                x0, x1, y0, y1 = g0, g1, u0, u1
            else:
                a(f"v_cvt_pk_bf16_f32 v{x0}, v{g0}, v{g1}")
                a(f"v_cvt_pk_bf16_f32 v{y0}, v{u0}, v{u1}")
                a(f"v_and_b32 v{x1}, 0xffff0000, v{x0}")
                a(f"v_lshlrev_b32 v{x0}, 16, v{x0}")
                a(f"v_and_b32 v{y1}, 0xffff0000, v{y0}")
                a(f"v_lshlrev_b32 v{y0}, 16, v{y0}")
            a(f"v_mul_f32 v{t0}, v{x0}, v{x0}")
            a(f"v_mul_f32 v{t1}, v{x1}, v{x1}")
            a(f"v_fma_f32 v{t0}, v{t0}, s{sB_}, v{vT}")
            a(f"v_fma_f32 v{t1}, v{t1}, s{sB_}, v{vT}")
            a(f"v_mul_f32 v{t0}, v{t0}, v{x0}")
            a(f"v_mul_f32 v{t1}, v{t1}, v{x1}")
            a(f"v_exp_f32 v{t0}, v{t0}")
            a(f"v_exp_f32 v{t1}, v{t1}")
            a("s_nop 0")
            a(f"v_add_f32 v{t0}, 1.0, v{t0}")
            a(f"v_add_f32 v{t1}, 1.0, v{t1}")
            a(f"v_rcp_f32 v{t0}, v{t0}")
            a(f"v_rcp_f32 v{t1}, v{t1}")
            a("s_nop 0")
            a(f"v_mul_f32 v{t0}, v{t0}, v{x0}")
            a(f"v_mul_f32 v{t1}, v{t1}, v{x1}")
            if "relax" not in OPT:
                a(f"v_cvt_pk_bf16_f32 v{t0}, v{t0}, v{t1}")
                a(f"v_and_b32 v{t1}, 0xffff0000, v{t0}")
                a(f"v_lshlrev_b32 v{t0}, 16, v{t0}")
            a(f"v_mul_f32 v{t0}, v{t0}, v{y0}")
            a(f"v_mul_f32 v{t1}, v{t1}, v{y1}")
            a(f"v_cvt_pk_bf16_f32 v{dst+h}, v{t0}, v{t1}")
    a(f"v_mov_b32 v{vT}, s{sA_}")
    a("s_nop 7")
    k = 0
    for mt in range(2):
        for p in range(4):
            o = OUT + (k % 12) * 4; k += 1
            gelu_tile(2*p, mt, o)
            gelu_tile(2*p+1, mt, o+2)
            a(f"buffer_store_dwordx4 {vr(o,4)}, v{vX0}, {sr(sH,4)}, s{sT+1+2*mt} offen offset:{p*1024}")
        o = OUT + (k % 12) * 4; k += 1
        gelu_tile(8, mt, o)
        a(f"buffer_store_dwordx2 {vr(o,2)}, v{vX0}, {sr(sH,4)}, s{sT+2+2*mt} offen")
    stamp(a, 3)
    a("s_waitcnt vmcnt(0)")
    stamp(a, 4)
    stamp(a, 6, True)
    stamp_dump(a, 7, 8, sWave, vT)
    a.lab(f"L_{name}_done")
    a("s_endpgm")
    return a.text(), kernel_desc(name, NV), f"; @launch kernel={name} grid=(256,1,1) block=(512,1,1) lds={NST*STG}"


def lds_dump(a, nbytes, wg, tidv, tv, off_mb, nthreads=512, tag="d"):
    a(f"s_cmp_lg_u32 s2, {wg}")
    a(f"s_cbranch_scc1 L_dump_{tag}")
    srd(a, 80, 8, 1 << 20, off_mb << 20)
    a(f"v_lshlrev_b32 v{tv}, 4, v{tidv}")
    for i in range(0, nbytes, nthreads*16):
        a(f"v_add_u32 v{tv+1}, {i}, v{tv}")
        a(f"ds_read_b128 v[{tv+2}:{tv+5}], v{tv+1}")
        a("s_waitcnt lgkmcnt(0)")
        a(f"buffer_store_dwordx4 v[{tv+2}:{tv+5}], v{tv+1}, s[80:83], 0 offen")
        a("s_waitcnt vmcnt(0)")
    a.lab(f"L_dump_{tag}")
    a("s_barrier")

class VM:
    def __init__(self, a):
        self.a = a; self.ops = []
    def op(self, tag, text):
        if "noload" in OPT and tag[0] in ("W", "X") and tag[1] >= 2 and getattr(self.a, "k3", False): return
        self.a(text); self.ops.append(tag)
    def wait(self, tagpred, extra=""):
        last = -1
        for i, t in enumerate(self.ops):
            if tagpred(t): last = i
        n = len(self.ops) - 1 - last
        assert n <= 63
        if last >= 0:
            self.a(f"s_waitcnt vmcnt({n}){extra}")
            self.ops = self.ops[last+1:]

def gen_k4(name="k4_kernel"):
    a = A(); vm = VM(a)
    kernel_head(a, name)
    NST = 6; STG = 18432; RING = 6; PFD = 5
    ACC = 4
    XS = 76
    WR = 124
    vWa, vWb = 148, 149
    vD0, vD1, vD2 = 150, 151, 152
    vX0, vX1 = 153, 154
    vT = 156
    NV = 172
    def acc(nt, mt): return ACC + (nt*2+mt)*4
    sW, sX, sP = 12, 16, 20
    sWave, sKs, sMb, sNb = 28, 29, 30, 31
    sWb1, sWb2, sXb, sM0b = 32, 33, 34, 35
    sT = 36
    sExec = 50
    sWo = 52
    a("s_cmp_ge_u32 s2, 256")
    a(f"s_cbranch_scc1 L_{name}_done")
    stamp(a, 0); stamp(a, 5, True)
    a("s_load_dwordx2 s[4:5], s[0:1], 48")
    a("s_load_dwordx2 s[8:9], s[0:1], 72")
    a("v_lshrrev_b32 v1, 6, v0")
    a("v_and_b32 v0, 63, v0")
    a("s_nop 0")
    a(f"v_readfirstlane_b32 s{sWave}, v1")
    a(f"s_and_b32 s{sT}, s2, 7")
    a(f"s_lshr_b32 s{sT+1}, s2, 3")
    a(f"s_lshr_b32 s{sKs}, s{sT}, 1")
    a(f"s_and_b32 s{sNb}, s{sT+1}, 3")
    a(f"s_and_b32 s{sT}, s{sT}, 1")
    a(f"s_lshl_b32 s{sT}, s{sT}, 3")
    a(f"s_lshr_b32 s{sMb}, s{sT+1}, 2")
    a(f"s_add_u32 s{sMb}, s{sMb}, s{sT}")
    a("s_waitcnt lgkmcnt(0)")
    srd(a, sW, 4, 4608*576*2)
    srd(a, sX, 8, HH_SZ, HH_OFF)
    srd(a, sP, 8, P_SZ, P_OFF)
    for t, vd in enumerate((vD0, vD1, vD2)):
        a(f"v_add_u32 v{vT+1}, {t*64}, v0")
        a(f"v_mul_u32_u24 v{vT+2}, 3641, v{vT+1}")
        a(f"v_lshrrev_b32 v{vT+2}, 16, v{vT+2}")
        a(f"v_mul_u32_u24 v{vT+3}, 18, v{vT+2}")
        a(f"v_sub_u32 v{vT+3}, v{vT+1}, v{vT+3}")
        a(f"v_mul_u32_u24 v{vT+2}, 1152, v{vT+2}")
        a(f"v_lshl_add_u32 v{vd}, v{vT+3}, 4, v{vT+2}")
    a(f"s_lshr_b32 s{sT}, s{sWave}, 2")
    a(f"s_lshl_b32 s{sT+1}, s{sKs}, 1")
    a(f"s_add_u32 s{sT+1}, s{sT+1}, s{sT}")
    a(f"s_mul_i32 s{sWb1}, s{sT+1}, {576*1152}")
    a(f"s_and_b32 s{sT+2}, s{sWave}, 3")
    a(f"s_mul_i32 s{sT+3}, s{sT+2}, {8*1152}")
    a(f"s_add_u32 s{sWb1}, s{sWb1}, s{sT+3}")
    a(f"s_mul_i32 s{sT+3}, s{sNb}, 288")
    a(f"s_add_u32 s{sWb1}, s{sWb1}, s{sT+3}")
    a(f"s_cmp_ge_u32 s{sT+2}, 2")
    a(f"s_cselect_b32 s{sT+3}, {128*1152}, 0")
    a(f"s_add_u32 s{sWb2}, s{sWb1}, s{sT+3}")
    a(f"s_mul_i32 s{sM0b}, s{sWave}, 2304")
    a(f"s_lshl_b32 s{sXb}, s{sMb}, 3")
    a(f"s_lshl_b32 s{sT+3}, s{sT+2}, 1")
    a(f"s_add_u32 s{sXb}, s{sXb}, s{sT+3}")
    a(f"s_mov_b32 s{sT+4}, s{sXb}")
    a(f"s_mul_i32 s{sXb}, s{sXb}, 144")
    a(f"s_mul_i32 s{sT+3}, s{sT+1}, 18")
    a(f"s_add_u32 s{sXb}, s{sXb}, s{sT+3}")
    a(f"s_lshl_b32 s{sXb}, s{sXb}, 10")
    a(f"v_lshlrev_b32 v{vX0}, 4, v0")
    a(f"v_add_u32 v{vX0}, s{sXb}, v{vX0}")
    a(f"v_add_u32 v{vX1}, {144*1024}, v{vX0}")
    a(f"s_lshl_b32 s{sT+5}, s{sKs}, 7")
    a(f"s_add_u32 s{sT+5}, s{sT+5}, s{sT+4}")
    a(f"s_add_u32 s{sT+5}, s{sT+5}, s{sT}")
    a(f"s_mul_i32 s{sT+5}, s{sT+5}, 36")
    a(f"s_mul_i32 s{sT+6}, s{sNb}, 9")
    a(f"s_add_u32 s{sT+5}, s{sT+5}, s{sT+6}")
    a(f"s_lshl_b32 s{sT+5}, s{sT+5}, 10")
    a(f"v_lshrrev_b32 v{vT+1}, 2, v0")
    a(f"v_mul_u32_u24 v{vT+1}, 288, v{vT+1}")
    a(f"v_and_b32 v{vT+2}, 3, v0")
    a(f"v_lshl_add_u32 v{vWa}, v{vT+2}, 3, v{vT+1}")
    a(f"s_mul_i32 s{sT+6}, s{sT}, 9216")
    a(f"v_add_u32 v{vWa}, s{sT+6}, v{vWa}")
    a(f"v_add_u32 v{vWb}, {3*STG}, v{vWa}")
    a(f"s_mov_b64 s[{sExec}:{sExec+1}], 0xffff")

    def fa_rel(i):
        q, ii = divmod(i, 9)
        if ii < 4: return 288*q + 32*ii
        if ii < 8: return 288*q + 144 + 32*(ii-4)
        return 288*q + 128
    def load_groups(i):
        if i >= 18: return []
        st = i % NST
        gs = []
        base = sWb2 if i % 9 == 8 else sWb1
        for t, vd in enumerate((vD0, vD1, vD2)):
            g = []
            if t == 0:
                g.append(("s", f"s_add_u32 s{sWo}, s{base}, {fa_rel(i)*1152}"))
            g.append(("s", f"s_add_u32 m0, s{sM0b}, {st*STG + t*1024}"))
            g.append(("s", f"s_mov_b64 exec, s[{sExec}:{sExec+1}]" if t == 2 else "s_nop 0"))
            g.append((("W", i), f"buffer_load_dwordx4 v{vd}, {sr(sW,4)}, s{sWo} offen lds"))
            if t == 2: g.append(("s", "s_mov_b64 exec, -1"))
            gs.append(g)
        xs = XS + (i % NST) * 8
        gs.append([("s", f"s_mov_b32 s{sWo+1}, {i*1024}"),
                   (("X", i), f"buffer_load_dwordx4 {vr(xs,4)}, v{vX0}, {sr(sX,4)}, s{sWo+1} offen")])
        gs.append([(("X", i), f"buffer_load_dwordx4 {vr(xs+4,4)}, v{vX1}, {sr(sX,4)}, s{sWo+1} offen")])
        return gs
    def emit_group(g):
        for tag, txt in g:
            if tag == "s": a(txt)
            else: vm.op(tag, txt)
    for i in range(PFD):
        for g in load_groups(i): emit_group(g)
    for i in range(0, 72, 2):
        a(f"v_mov_b64 {vr(ACC+i,2)}, 0")
    def wread(gidx):
        i, nt = divmod(gidx, 9)
        if i >= 18: return False
        st = i % NST; slot = gidx % RING
        base = vWa if st < 3 else vWb
        off = (st % 3) * STG + nt * 32
        a(f"ds_read_b64_tr_b16 {vr(WR+slot*4,2)}, v{base} offset:{off}")
        a(f"ds_read_b64_tr_b16 {vr(WR+slot*4+2,2)}, v{base} offset:{off+4608}")
        return True
    PF = RING - 1
    vm.wait(lambda t: t[1] <= 1)
    a("s_barrier")
    for f in range(PF): wread(f)
    stamp(a, 1)
    for i in range(18):
        lg = load_groups(i + PFD)
        vm.wait(lambda t: t[0] == "X" and t[1] <= i)
        for nt in range(9):
            g = i*9 + nt; slot = g % RING
            ok = wread(g + PF)
            rem = min(PF, 18*9 - 1 - g)
            a(f"s_waitcnt lgkmcnt({2*rem})")
            xs = XS + (i % NST) * 8
            a(f"v_mfma_f32_16x16x32_bf16 {vr(acc(nt,0),4)}, {vr(WR+slot*4,4)}, {vr(xs,4)}, {vr(acc(nt,0),4)}")
            a(f"v_mfma_f32_16x16x32_bf16 {vr(acc(nt,1),4)}, {vr(WR+slot*4,4)}, {vr(xs+4,4)}, {vr(acc(nt,1),4)}")
            if nt % 2 == 0 and nt // 2 < len(lg):
                emit_group(lg[nt // 2])
        vm.wait(lambda t: t[0] == "W" and t[1] <= i + 2)
        a("s_barrier")
    stamp(a, 2)
    a(f"s_lshr_b32 s{sT}, s{sWave}, 2")
    a(f"v_lshlrev_b32 v{vT}, 4, v0")
    a(f"s_mul_i32 s{sT+1}, s{sWave}, 9216")
    a(f"v_add_u32 v{vT+1}, s{sT+1}, v{vT}")
    a(f"s_xor_b32 s{sT+2}, s{sWave}, 4")
    a(f"s_mul_i32 s{sT+2}, s{sT+2}, 9216")
    a(f"v_add_u32 v{vT+2}, s{sT+2}, v{vT}")
    a(f"s_cmp_eq_u32 s{sT}, 0")
    a("s_nop 4")
    a(f"s_cbranch_scc0 L_{name}_kh1")
    for kh in range(2):
        if kh == 1: a.lab(f"L_{name}_kh1")
        for nt in range(9):
            a(f"ds_write_b128 v{vT+1}, {vr(acc(nt,1-kh),4)} offset:{nt*1024}")
        a("s_waitcnt lgkmcnt(0)")
        a("s_barrier")
        for nt in range(9):
            a(f"ds_read_b128 {vr(XS+nt*4,4)}, v{vT+2} offset:{nt*1024}")
        for nt in range(9):
            a(f"s_waitcnt lgkmcnt({8-nt})")
            for r in range(4):
                a(f"v_add_f32 v{XS+nt*4+r}, v{XS+nt*4+r}, v{acc(nt,kh)+r}")
            if nt < 4:
                a(f"buffer_store_dwordx4 {vr(XS+nt*4,4)}, v{vT}, {sr(sP,4)}, s{sT+5} offen offset:{nt*1024}")
            else:
                if nt in (4, 8): a(f"s_add_u32 s{sT+5}, s{sT+5}, 4096")
                a(f"buffer_store_dwordx4 {vr(XS+nt*4,4)}, v{vT}, {sr(sP,4)}, s{sT+5} offen offset:{(nt%4)*1024}")
        stamp(a, 3)
        if "stamp" in OPT: a("s_waitcnt vmcnt(0)")
        stamp(a, 4); stamp(a, 6, True)
        stamp_dump(a, 7, 8, sWave, vT+4, 1)
        a("s_endpgm")
    a.lab(f"L_{name}_done")
    a("s_endpgm")
    return a.text(), kernel_desc(name, NV), f"; @launch kernel={name} grid=(256,1,1) block=(512,1,1) lds={NST*STG}"

def gen_k5(name="k5_kernel"):
    a = A()
    kernel_head(a, name)
    sH, sP, sO = 12, 16, 20
    a("s_cmp_ge_u32 s2, 576")
    a(f"s_cbranch_scc1 L_{name}_done")
    a("s_load_dwordx2 s[4:5], s[0:1], 56")
    a("s_load_dwordx2 s[8:9], s[0:1], 72")
    a("v_lshrrev_b32 v1, 6, v0")
    a("v_and_b32 v0, 63, v0")
    a("s_nop 0")
    a("v_readfirstlane_b32 s28, v1")
    a("s_lshl_b32 s29, s2, 2")
    a("s_add_u32 s29, s29, s28")
    a("s_mul_i32 s30, s29, 3641")
    a("s_lshr_b32 s30, s30, 16")
    a("s_mul_i32 s31, s30, 18")
    a("s_sub_u32 s31, s29, s31")
    a("s_waitcnt lgkmcnt(0)")
    srd(a, sH, 8, H1_SZ, H1_OFF)
    srd(a, sP, 8, P_SZ, P_OFF)
    srd(a, sO, 4, 2048*576*2)
    a("v_lshlrev_b32 v1, 4, v0")
    a("s_lshl_b32 s32, s29, 10")
    a("s_lshl_b32 s33, s29, 11")
    a(f"buffer_load_dwordx4 v[4:7], v1, {sr(sH,4)}, s32 offen")
    for k in range(4):
        a(f"buffer_load_dwordx4 v[{8+k*8}:{11+k*8}], v1, {sr(sP,4)}, s33 offen")
        a(f"buffer_load_dwordx4 v[{12+k*8}:{15+k*8}], v1, {sr(sP,4)}, s33 offen offset:1024")
        if k < 3: a(f"s_add_u32 s33, s33, {128*36*1024}")
    a("v_and_b32 v2, 15, v0")
    a("s_lshl_b32 s34, s30, 4")
    a("v_add_u32 v2, s34, v2")
    a("v_mul_u32_u24 v2, 1152, v2")
    a("v_lshrrev_b32 v3, 4, v0")
    a("v_lshl_add_u32 v2, v3, 3, v2")
    a("s_lshl_b32 s34, s31, 6")
    a("s_waitcnt vmcnt(0)")
    for i in range(8):
        a(f"v_add_f32 v{8+i}, v{8+i}, v{16+i}")
        a(f"v_add_f32 v{24+i}, v{24+i}, v{32+i}")
    for i in range(8):
        a(f"v_add_f32 v{8+i}, v{8+i}, v{24+i}")
    for p in range(4):
        a(f"v_cvt_pk_bf16_f32 v{16+p}, v{8+2*p}, v{9+2*p}")
    for p in range(4):
        a(f"v_lshlrev_b32 v{24+2*p}, 16, v{16+p}")
        a(f"v_and_b32 v{25+2*p}, 0xffff0000, v{16+p}")
        a(f"v_lshlrev_b32 v{32+2*p}, 16, v{4+p}")
        a(f"v_and_b32 v{33+2*p}, 0xffff0000, v{4+p}")
    for i in range(8):
        a(f"v_add_f32 v{24+i}, v{24+i}, v{32+i}")
    for p in range(4):
        a(f"v_cvt_pk_bf16_f32 v{16+p}, v{24+2*p}, v{25+2*p}")
    a(f"buffer_store_dwordx2 v[16:17], v2, {sr(sO,4)}, s34 offen")
    a(f"buffer_store_dwordx2 v[18:19], v2, {sr(sO,4)}, s34 offen offset:32")
    a.lab(f"L_{name}_done")
    a("s_endpgm")
    return a.text(), kernel_desc(name, 40, 48), f"; @launch kernel={name} grid=(576,1,1) block=(256,1,1) lds=0"


def gen_k2(name="k2_kernel"):
    a = A(); vm = VM(a)
    kernel_head(a, name)
    PITCH = 224; BLK = 32*PITCH
    ACC = 4
    OF = 28
    XR = 100
    WR = 112
    vD = 160
    vWa, vWb = 167, 168
    vT = 170
    NV = 188
    sW, sO, sXs, sH, sST = 12, 16, 20, 24, 28
    sWave, sRb, sNb, sT = 32, 33, 34, 36
    a("s_cmp_ge_u32 s2, 192")
    a(f"s_cbranch_scc1 L_{name}_done")
    stamp(a, 0); stamp(a, 5, True)
    a("s_load_dwordx2 s[4:5], s[0:1], 0")
    a("s_load_dwordx2 s[6:7], s[0:1], 16")
    a("s_load_dwordx2 s[8:9], s[0:1], 72")
    a("v_lshrrev_b32 v1, 6, v0")
    a("v_and_b32 v0, 63, v0")
    a("s_nop 0")
    a(f"v_readfirstlane_b32 s{sWave}, v1")
    a(f"s_lshr_b32 s{sT+1}, s2, 3")
    a(f"s_mul_i32 s{sRb}, s{sT+1}, 10923")
    a(f"s_lshr_b32 s{sRb}, s{sRb}, 16")
    a(f"s_mul_i32 s{sT}, s{sRb}, 6")
    a(f"s_sub_u32 s{sNb}, s{sT+1}, s{sT}")
    a(f"s_and_b32 s{sT}, s2, 7")
    a(f"s_lshl_b32 s{sT}, s{sT}, 2")
    a(f"s_add_u32 s{sRb}, s{sRb}, s{sT}")
    a("s_waitcnt lgkmcnt(0)")
    srd(a, sW, 6, 576*576*2)
    srd(a, sO, 8, O_SZ, O_OFF)
    srd(a, sXs, 4, 2048*576*2)
    srd(a, sH, 8, H1_SZ, H1_OFF)
    srd(a, sST, 8, ST_SZ, ST_OFF)
    a(f"s_mul_i32 s{sT}, s{sNb}, 192")
    a(f"s_mov_b32 s{sT+1}, 0x40000000")
    for t in range(7):
        a(f"v_add_u32 v{vT}, {t*64}, v0")
        a(f"v_mul_u32_u24 v{vT+1}, 4682, v{vT}")
        a(f"v_lshrrev_b32 v{vT+1}, 16, v{vT+1}")
        a(f"v_mul_u32_u24 v{vT+2}, 14, v{vT+1}")
        a(f"v_sub_u32 v{vT+2}, v{vT}, v{vT+2}")
        a(f"v_and_b32 v{vT+3}, 4, v{vT+1}")
        a(f"v_lshlrev_b32 v{vT+3}, 1, v{vT+3}")
        a(f"v_and_b32 v{vT+4}, 8, v{vT+1}")
        a(f"v_lshrrev_b32 v{vT+4}, 1, v{vT+4}")
        a(f"v_and_b32 v{vT+1}, 0x13, v{vT+1}")
        a(f"v_or3_b32 v{vT+1}, v{vT+1}, v{vT+3}, v{vT+4}")
        a(f"v_mul_u32_u24 v{vT+1}, 1152, v{vT+1}")
        a(f"v_lshl_add_u32 v{vT+1}, v{vT+2}, 4, v{vT+1}")
        a(f"v_add_u32 v{vT+1}, s{sT}, v{vT+1}")
        a(f"v_cmp_gt_u32 vcc, 12, v{vT+2}")
        a(f"v_mov_b32 v{vT+3}, s{sT+1}")
        a("s_nop 0")
        a(f"v_cndmask_b32 v{vD+t}, v{vT+3}, v{vT+1}, vcc")
    a(f"s_lshl_b32 s{sT}, s{sRb}, 6")
    a(f"s_lshl_b32 s{sT+1}, s{sWave}, 4")
    a(f"s_add_u32 s{sT}, s{sT}, s{sT+1}")
    a(f"v_and_b32 v{vT}, 15, v0")
    a(f"v_add_u32 v{vT}, s{sT}, v{vT}")
    a(f"v_mul_u32_u24 v{vT+1}, 1152, v{vT}")
    a(f"v_lshrrev_b32 v{vT+2}, 4, v0")
    a(f"s_lshr_b32 s{sT+4}, s{sT}, 4")
    a(f"s_mul_i32 s{sT+4}, s{sT+4}, 18432")
    a(f"v_lshlrev_b32 v{vT+3}, 4, v0")
    a(f"v_add_u32 v{vT+3}, s{sT+4}, v{vT+3}")
    a(f"v_lshl_add_u32 v{vT+4}, v{vT+2}, 3, v{vT+1}")
    for q in range(1, 5): a(f"s_movk_i32 s{sT+4+q}, {q*4096}")
    def osoff(s_): return ("s%d" % (sT+4+s_//4)) if s_ >= 4 else "0"
    a(f"s_mul_i32 s{sT+1}, s{sNb}, 192")
    a(f"s_mul_i32 s{sT+2}, s{sWave}, {32*1152}")
    a(f"s_mul_i32 s{sT+3}, s{sWave}, {BLK}")
    def chunk_ops(c):
        gs = []
        if c > 4: return gs
        for t in range(7):
            g = [("s", f"s_add_u32 m0, s{sT+3}, {c*4*BLK + t*1024}"), ("s", "s_nop 0"),
                 (("W", c), f"buffer_load_dwordx4 v{vD+t}, {sr(sW,4)}, s{sT+2} offen lds")]
            if t == 6: g.append(("s", f"s_add_u32 s{sT+2}, s{sT+2}, {4*32*1152}"))
            gs.append(g)
        for s_ in range(4*c, min(4*c+4, 18)):
            gs.append([(("O", c), f"buffer_load_dwordx4 {vr(OF+s_*4,4)}, v{vT+3}, {sr(sO,4)}, {osoff(s_)} offen offset:{(s_%4)*1024}")])
        return gs
    def emit_group(g):
        for tg, txt in g:
            if tg == "s": a(txt)
            else: vm.op(tg, txt)
    for c in range(2):
        for g in chunk_ops(c): emit_group(g)
    a(f"v_lshrrev_b32 v{vT+5}, 5, v0")
    a(f"v_lshlrev_b32 v{vT+5}, 4, v{vT+5}")
    a(f"v_bfe_u32 v{vT+6}, v0, 2, 3")
    a(f"v_add_u32 v{vT+5}, v{vT+5}, v{vT+6}")
    a(f"v_mul_u32_u24 v{vT+5}, {PITCH}, v{vT+5}")
    a(f"v_and_b32 v{vT+6}, 3, v0")
    a(f"v_lshl_add_u32 v{vWa}, v{vT+6}, 3, v{vT+5}")
    a(f"v_add_u32 v{vWb}, {9*BLK}, v{vWa}")
    def wread(s_, buf):
        base = vWa if s_ < 9 else vWb
        for nt in range(6):
            off = (s_ % 9) * BLK + nt * 32
            a(f"ds_read_b64_tr_b16 {vr(WR+buf*24+nt*4,2)}, v{base} offset:{off}")
            a(f"ds_read_b64_tr_b16 {vr(WR+buf*24+nt*4+2,2)}, v{base} offset:{off+8*PITCH}")
    for c in range(5):
        vm.wait(lambda t: t[1] <= c)
        a("s_barrier")
        if c == 0: stamp(a, 1)
        lg = chunk_ops(c+2)
        if c == 2:
            for nt in range(6):
                lg.append([(("X", 9), f"buffer_load_dwordx2 {vr(XR+nt*2,2)}, v{vT+4}, {sr(sXs,4)}, s{sT+1} offen offset:{nt*32}")])
        gi = 0
        steps = list(range(4*c, min(4*c+4, 18)))
        wread(steps[0], steps[0] % 2)
        for s_ in steps:
            if s_ != steps[-1]:
                wread(s_+1, (s_+1) % 2)
                a("s_waitcnt lgkmcnt(12)")
            else:
                a("s_waitcnt lgkmcnt(0)")
            for nt in range(6):
                cc = vr(ACC+nt*4,4)
                a(f"v_mfma_f32_16x16x32_bf16 {cc}, {vr(WR+(s_%2)*24+nt*4,4)}, {vr(OF+s_*4,4)}, " + ("0" if s_ == 0 else cc))
                if gi < len(lg):
                    emit_group(lg[gi]); gi += 1
        assert gi == len(lg)
    a("s_waitcnt vmcnt(0)")
    a("s_nop 7")
    stamp(a, 2)
    HP = WR
    for nt in range(6):
        for p in range(2):
            c0 = ACC + nt*4 + 2*p
            a(f"v_cvt_pk_bf16_f32 v{vT}, v{c0}, v{c0+1}")
            a(f"v_lshlrev_b32 v{c0}, 16, v{vT}")
            a(f"v_and_b32 v{c0+1}, 0xffff0000, v{vT}")
            a(f"v_lshlrev_b32 v{vT+1}, 16, v{XR+nt*2+p}")
            a(f"v_and_b32 v{vT+2}, 0xffff0000, v{XR+nt*2+p}")
            a(f"v_add_f32 v{c0}, v{c0}, v{vT+1}")
            a(f"v_add_f32 v{c0+1}, v{c0+1}, v{vT+2}")
            a(f"v_cvt_pk_bf16_f32 v{HP+nt*2+p}, v{c0}, v{c0+1}")
            a(f"v_lshlrev_b32 v{c0}, 16, v{HP+nt*2+p}")
            a(f"v_and_b32 v{c0+1}, 0xffff0000, v{HP+nt*2+p}")
    a(f"s_lshl_b32 s{sT}, s{sRb}, 2")
    a(f"s_add_u32 s{sT}, s{sT}, s{sWave}")
    a(f"s_mul_i32 s{sT+1}, s{sT}, 18")
    a(f"s_mul_i32 s{sT+2}, s{sNb}, 3")
    a(f"s_add_u32 s{sT+1}, s{sT+1}, s{sT+2}")
    a(f"s_lshl_b32 s{sT+1}, s{sT+1}, 10")
    a(f"v_lshlrev_b32 v{vT}, 4, v0")
    for p in range(3):
        a(f"buffer_store_dwordx4 {vr(HP+p*4,4)}, v{vT}, {sr(sH,4)}, s{sT+1} offen offset:{p*1024}")
    def xreduce(v, t):
        a(f"v_xor_b32 v{t}, 16, v0")
        a(f"v_lshlrev_b32 v{t}, 2, v{t}")
        a(f"ds_bpermute_b32 v{t+1}, v{t}, v{v}")
        a("s_waitcnt lgkmcnt(0)")
        a(f"v_add_f32 v{v}, v{v}, v{t+1}")
        a(f"v_xor_b32 v{t}, 32, v0")
        a(f"v_lshlrev_b32 v{t}, 2, v{t}")
        a(f"ds_bpermute_b32 v{t+1}, v{t}, v{v}")
        a("s_waitcnt lgkmcnt(0)")
        a(f"v_add_f32 v{v}, v{v}, v{t+1}")
    S0, S1 = vT+4, vT+5
    a(f"v_add_f32 v{S0}, v{ACC}, v{ACC+1}")
    for i in range(2, 24):
        a(f"v_add_f32 v{S0}, v{S0}, v{ACC+i}")
    xreduce(S0, vT+6)
    a(f"v_mul_f32 v{S0}, {f32(1.0/96.0)}, v{S0}")
    a(f"v_mov_b32 v{S1}, 0")
    for i in range(24):
        a(f"v_sub_f32 v{vT+1}, v{ACC+i}, v{S0}")
        a(f"v_fmac_f32 v{S1}, v{vT+1}, v{vT+1}")
    xreduce(S1, vT+6)
    a(f"s_lshl_b32 s{sT}, s{sT}, 4")
    a(f"v_add_u32 v{vT}, s{sT}, v0")
    a(f"v_mul_u32_u24 v{vT}, 48, v{vT}")
    a(f"s_lshl_b32 s{sT+1}, s{sNb}, 3")
    a("s_mov_b64 exec, 0xffff")
    a(f"buffer_store_dwordx2 {vr(S0,2)}, v{vT}, {sr(sST,4)}, s{sT+1} offen")
    stamp(a, 3)
    if "stamp" in OPT: a("s_waitcnt vmcnt(0)")
    stamp(a, 4); stamp(a, 6, True)
    stamp_dump(a, 7, 8, sWave, vT+8, 2)
    a.lab(f"L_{name}_done")
    a("s_endpgm")
    return a.text(), kernel_desc(name, NV, 96), f"; @launch kernel={name} grid=(192,1,1) block=(256,1,1) lds={20*BLK}"

def gen_k2v2(name="k2_kernel"):
    a = A(); vm = VM(a)
    kernel_head(a, name)
    PITCH = 224; BLK = 32*PITCH
    ACC = 4
    OF = 28
    XR = 100
    WR = 112
    vD = 160
    vWa, vWb = 167, 168
    vT = 170
    NV = 188
    sW, sO, sXs, sH, sST = 12, 16, 20, 24, 28
    sWave, sRb, sNb, sT = 32, 33, 34, 36
    a("s_cmp_ge_u32 s2, 192")
    a(f"s_cbranch_scc1 L_{name}_done")
    stamp(a, 0); stamp(a, 5, True)
    a("s_load_dwordx2 s[4:5], s[0:1], 0")
    a("s_load_dwordx2 s[6:7], s[0:1], 16")
    a("s_load_dwordx2 s[8:9], s[0:1], 72")
    a("v_lshrrev_b32 v1, 6, v0")
    a("v_and_b32 v0, 63, v0")
    a("s_nop 0")
    a(f"v_readfirstlane_b32 s{sWave}, v1")
    a(f"s_lshr_b32 s35, s{sWave}, 2")
    a(f"s_and_b32 s{sWave}, s{sWave}, 3")
    a(f"s_lshr_b32 s{sT+1}, s2, 3")
    a(f"s_mul_i32 s{sRb}, s{sT+1}, 10923")
    a(f"s_lshr_b32 s{sRb}, s{sRb}, 16")
    a(f"s_mul_i32 s{sT}, s{sRb}, 6")
    a(f"s_sub_u32 s{sNb}, s{sT+1}, s{sT}")
    a(f"s_and_b32 s{sT}, s2, 7")
    a(f"s_lshl_b32 s{sT}, s{sT}, 2")
    a(f"s_add_u32 s{sRb}, s{sRb}, s{sT}")
    a("s_waitcnt lgkmcnt(0)")
    srd(a, sW, 6, 576*576*2)
    srd(a, sO, 8, O_SZ, O_OFF)
    srd(a, sXs, 4, 2048*576*2)
    srd(a, sH, 8, H1_SZ, H1_OFF)
    srd(a, sST, 8, ST_SZ, ST_OFF)
    a(f"s_mul_i32 s{sT}, s{sNb}, 192")
    a(f"s_mov_b32 s{sT+1}, 0x40000000")
    for t in range(7):
        a(f"v_add_u32 v{vT}, {t*64}, v0")
        a(f"v_mul_u32_u24 v{vT+1}, 4682, v{vT}")
        a(f"v_lshrrev_b32 v{vT+1}, 16, v{vT+1}")
        a(f"v_mul_u32_u24 v{vT+2}, 14, v{vT+1}")
        a(f"v_sub_u32 v{vT+2}, v{vT}, v{vT+2}")
        a(f"v_and_b32 v{vT+3}, 4, v{vT+1}")
        a(f"v_lshlrev_b32 v{vT+3}, 1, v{vT+3}")
        a(f"v_and_b32 v{vT+4}, 8, v{vT+1}")
        a(f"v_lshrrev_b32 v{vT+4}, 1, v{vT+4}")
        a(f"v_and_b32 v{vT+1}, 0x13, v{vT+1}")
        a(f"v_or3_b32 v{vT+1}, v{vT+1}, v{vT+3}, v{vT+4}")
        a(f"v_mul_u32_u24 v{vT+1}, 1152, v{vT+1}")
        a(f"v_lshl_add_u32 v{vT+1}, v{vT+2}, 4, v{vT+1}")
        a(f"v_add_u32 v{vT+1}, s{sT}, v{vT+1}")
        a(f"v_cmp_gt_u32 vcc, 12, v{vT+2}")
        a(f"v_mov_b32 v{vT+3}, s{sT+1}")
        a("s_nop 0")
        a(f"v_cndmask_b32 v{vD+t}, v{vT+3}, v{vT+1}, vcc")
    a(f"s_lshl_b32 s{sT}, s{sRb}, 6")
    a(f"s_lshl_b32 s{sT+1}, s{sWave}, 4")
    a(f"s_add_u32 s{sT}, s{sT}, s{sT+1}")
    a(f"v_and_b32 v{vT}, 15, v0")
    a(f"v_add_u32 v{vT}, s{sT}, v{vT}")
    a(f"v_mul_u32_u24 v{vT+1}, 1152, v{vT}")
    a(f"v_lshrrev_b32 v{vT+2}, 4, v0")
    a(f"s_lshr_b32 s{sT+4}, s{sT}, 4")
    a(f"s_mul_i32 s{sT+4}, s{sT+4}, 18432")
    a(f"v_lshlrev_b32 v{vT+3}, 4, v0")
    a(f"v_add_u32 v{vT+3}, s{sT+4}, v{vT+3}")
    a(f"v_lshl_add_u32 v{vT+4}, v{vT+2}, 3, v{vT+1}")
    for q in range(1, 5): a(f"s_movk_i32 s{sT+4+q}, {q*4096}")
    def osoff(s_): return ("s%d" % (sT+4+s_//4)) if s_ >= 4 else "0"
    a(f"s_mul_i32 s{sT+1}, s{sNb}, 192")
    a(f"s_mul_i32 s{sT+2}, s{sWave}, {32*1152}")
    a(f"s_mul_i32 s{sT+3}, s{sWave}, {BLK}")
    a("s_cmp_eq_u32 s35, 0")
    a(f"s_cbranch_scc1 L_{name}_comp")
    for c in range(5):
        for t in range(7):
            a(f"s_add_u32 m0, s{sT+3}, {c*4*BLK + t*1024}")
            a("s_nop 0")
            a(f"buffer_load_dwordx4 v{vD+t}, {sr(sW,4)}, s{sT+2} offen lds")
        a(f"s_add_u32 s{sT+2}, s{sT+2}, {4*32*1152}")
    for c in range(5):
        a(f"s_waitcnt vmcnt({(4-c)*7})")
        a("s_barrier")
    a("s_endpgm")
    a.lab(f"L_{name}_comp")
    for s_ in range(18):
        vm.op(("O", s_), f"buffer_load_dwordx4 {vr(OF+s_*4,4)}, v{vT+3}, {sr(sO,4)}, {osoff(s_)} offen offset:{(s_%4)*1024}")
    for nt in range(6):
        vm.op(("X", 99), f"buffer_load_dwordx2 {vr(XR+nt*2,2)}, v{vT+4}, {sr(sXs,4)}, s{sT+1} offen offset:{nt*32}")
    a(f"v_lshrrev_b32 v{vT+5}, 5, v0")
    a(f"v_lshlrev_b32 v{vT+5}, 4, v{vT+5}")
    a(f"v_bfe_u32 v{vT+6}, v0, 2, 3")
    a(f"v_add_u32 v{vT+5}, v{vT+5}, v{vT+6}")
    a(f"v_mul_u32_u24 v{vT+5}, {PITCH}, v{vT+5}")
    a(f"v_and_b32 v{vT+6}, 3, v0")
    a(f"v_lshl_add_u32 v{vWa}, v{vT+6}, 3, v{vT+5}")
    a(f"v_add_u32 v{vWb}, {9*BLK}, v{vWa}")
    def wread(s_, buf):
        base = vWa if s_ < 9 else vWb
        for nt in range(6):
            off = (s_ % 9) * BLK + nt * 32
            a(f"ds_read_b64_tr_b16 {vr(WR+buf*24+nt*4,2)}, v{base} offset:{off}")
            a(f"ds_read_b64_tr_b16 {vr(WR+buf*24+nt*4+2,2)}, v{base} offset:{off+8*PITCH}")
    for c in range(5):
        a("s_barrier")
        if c == 0: stamp(a, 1)
        steps = list(range(4*c, min(4*c+4, 18)))
        wread(steps[0], steps[0] % 2)
        vm.wait(lambda t: t[0] == "O" and t[1] <= steps[-1])
        for s_ in steps:
            if s_ != steps[-1]:
                wread(s_+1, (s_+1) % 2)
                a("s_waitcnt lgkmcnt(12)")
            else:
                a("s_waitcnt lgkmcnt(0)")
            for nt in range(6):
                cc = vr(ACC+nt*4,4)
                a(f"v_mfma_f32_16x16x32_bf16 {cc}, {vr(WR+(s_%2)*24+nt*4,4)}, {vr(OF+s_*4,4)}, " + ("0" if s_ == 0 else cc))
    a("s_waitcnt vmcnt(0)")
    a("s_nop 7")
    stamp(a, 2)
    HP = WR
    for nt in range(6):
        for p in range(2):
            c0 = ACC + nt*4 + 2*p
            a(f"v_cvt_pk_bf16_f32 v{vT}, v{c0}, v{c0+1}")
            a(f"v_lshlrev_b32 v{c0}, 16, v{vT}")
            a(f"v_and_b32 v{c0+1}, 0xffff0000, v{vT}")
            a(f"v_lshlrev_b32 v{vT+1}, 16, v{XR+nt*2+p}")
            a(f"v_and_b32 v{vT+2}, 0xffff0000, v{XR+nt*2+p}")
            a(f"v_add_f32 v{c0}, v{c0}, v{vT+1}")
            a(f"v_add_f32 v{c0+1}, v{c0+1}, v{vT+2}")
            a(f"v_cvt_pk_bf16_f32 v{HP+nt*2+p}, v{c0}, v{c0+1}")
            a(f"v_lshlrev_b32 v{c0}, 16, v{HP+nt*2+p}")
            a(f"v_and_b32 v{c0+1}, 0xffff0000, v{HP+nt*2+p}")
    a(f"s_lshl_b32 s{sT}, s{sRb}, 2")
    a(f"s_add_u32 s{sT}, s{sT}, s{sWave}")
    a(f"s_mul_i32 s{sT+1}, s{sT}, 18")
    a(f"s_mul_i32 s{sT+2}, s{sNb}, 3")
    a(f"s_add_u32 s{sT+1}, s{sT+1}, s{sT+2}")
    a(f"s_lshl_b32 s{sT+1}, s{sT+1}, 10")
    a(f"v_lshlrev_b32 v{vT}, 4, v0")
    for p in range(3):
        a(f"buffer_store_dwordx4 {vr(HP+p*4,4)}, v{vT}, {sr(sH,4)}, s{sT+1} offen offset:{p*1024}")
    def xreduce(v, t):
        a(f"v_xor_b32 v{t}, 16, v0")
        a(f"v_lshlrev_b32 v{t}, 2, v{t}")
        a(f"ds_bpermute_b32 v{t+1}, v{t}, v{v}")
        a("s_waitcnt lgkmcnt(0)")
        a(f"v_add_f32 v{v}, v{v}, v{t+1}")
        a(f"v_xor_b32 v{t}, 32, v0")
        a(f"v_lshlrev_b32 v{t}, 2, v{t}")
        a(f"ds_bpermute_b32 v{t+1}, v{t}, v{v}")
        a("s_waitcnt lgkmcnt(0)")
        a(f"v_add_f32 v{v}, v{v}, v{t+1}")
    S0, S1 = vT+4, vT+5
    a(f"v_add_f32 v{S0}, v{ACC}, v{ACC+1}")
    for i in range(2, 24):
        a(f"v_add_f32 v{S0}, v{S0}, v{ACC+i}")
    xreduce(S0, vT+6)
    a(f"v_mul_f32 v{S0}, {f32(1.0/96.0)}, v{S0}")
    a(f"v_mov_b32 v{S1}, 0")
    for i in range(24):
        a(f"v_sub_f32 v{vT+1}, v{ACC+i}, v{S0}")
        a(f"v_fmac_f32 v{S1}, v{vT+1}, v{vT+1}")
    xreduce(S1, vT+6)
    a(f"s_lshl_b32 s{sT}, s{sT}, 4")
    a(f"v_add_u32 v{vT}, s{sT}, v0")
    a(f"v_mul_u32_u24 v{vT}, 48, v{vT}")
    a(f"s_lshl_b32 s{sT+1}, s{sNb}, 3")
    a("s_mov_b64 exec, 0xffff")
    a(f"buffer_store_dwordx2 {vr(S0,2)}, v{vT}, {sr(sST,4)}, s{sT+1} offen")
    stamp(a, 3)
    if "stamp" in OPT: a("s_waitcnt vmcnt(0)")
    stamp(a, 4); stamp(a, 6, True)
    stamp_dump(a, 7, 8, sWave, vT+8, 2)
    a.lab(f"L_{name}_done")
    a("s_endpgm")
    return a.text(), kernel_desc(name, NV, 96), f"; @launch kernel={name} grid=(192,1,1) block=(512,1,1) lds={20*BLK}"

def gen_k1(name="k1_kernel"):
    a = A(); vm = VM(a)
    kernel_head(a, name)
    XT = 0
    WB = 92160; STG = 16384; NST = 4; PITCH = 480
    QP = 624
    ACC = 4
    XF = 44
    WF = 84
    RAW = 100
    vD0, vD1 = 150, 151
    vWa, vXa = 152, 153
    vT = 156
    NV = 200
    sW, sXs, sO = 12, 16, 20
    sWave, sRb, sHg, sT = 28, 29, 30, 36
    sWo, sM0b = 31, 32
    a("s_cmp_ge_u32 s2, 256")
    a(f"s_cbranch_scc1 L_{name}_done")
    stamp(a, 0); stamp(a, 5, True)
    a("s_load_dwordx4 s[4:7], s[0:1], 0")
    a("s_load_dwordx2 s[8:9], s[0:1], 72")
    a("v_lshrrev_b32 v1, 6, v0")
    a("v_mov_b32 v3, v0")
    a("v_and_b32 v0, 63, v0")
    a(f"v_readfirstlane_b32 s{sWave}, v1")
    a(f"s_lshr_b32 s{sT}, s2, 3")
    a(f"s_and_b32 s{sHg}, s{sT}, 3")
    a(f"s_and_b32 s{sT+1}, s2, 1")
    a(f"s_lshl_b32 s{sT+1}, s{sT+1}, 2")
    a(f"s_add_u32 s{sHg}, s{sHg}, s{sT+1}")
    a(f"s_lshr_b32 s{sRb}, s{sT}, 2")
    a(f"s_bfe_u32 s{sT+1}, s2, 0x20001")
    a(f"s_lshl_b32 s{sT+1}, s{sT+1}, 3")
    a(f"s_add_u32 s{sRb}, s{sRb}, s{sT+1}")
    a("s_waitcnt lgkmcnt(0)")
    srd(a, sW, 6, 576*1728*2)
    srd(a, sXs, 4, 2048*576*2)
    srd(a, sO, 8, O_SZ, O_OFF)
    a(f"v_mul_u32_u24 v{vT}, 10923, v0")
    a(f"v_lshrrev_b32 v{vT}, 16, v{vT}")
    a(f"v_mul_u32_u24 v{vT+1}, 6, v{vT}")
    a(f"v_sub_u32 v{vT+1}, v0, v{vT+1}")
    a(f"s_mul_i32 s{sT}, s{sWave}, 10")
    a(f"v_add_u32 v{vT+2}, s{sT}, v{vT}")
    a(f"s_lshl_b32 s{sT+1}, s{sRb}, 6")
    a(f"s_sub_u32 s{sT+1}, s{sT+1}, 16")
    a(f"v_add_u32 v{vT+3}, s{sT+1}, v{vT+2}")
    a(f"s_movk_i32 s{sT+2}, 1152")
    a(f"v_mul_lo_u32 v{vT+3}, v{vT+3}, s{sT+2}")
    a(f"v_lshl_add_u32 v{vT+3}, v{vT+1}, 4, v{vT+3}")
    for i in range(12):
        vm.op(("x", i), f"buffer_load_dwordx4 {vr(RAW+i*4,4)}, v{vT+3}, {sr(sXs,4)}, 0 offen offset:{i*96}")
    a(f"s_lshl_b32 s{sT}, s{sWave}, 7")
    a(f"s_mul_i32 s{sT+1}, s{sHg}, 144")
    a(f"s_mov_b32 s{sT+2}, 0x40000000")
    for t, vd in enumerate((vD0, vD1)):
        a(f"v_add_u32 v{vT+4}, s{sT}, v0")
        if t: a(f"v_add_u32 v{vT+4}, 64, v{vT+4}")
        a(f"v_mul_u32_u24 v{vT+5}, 2185, v{vT+4}")
        a(f"v_lshrrev_b32 v{vT+5}, 16, v{vT+5}")
        a(f"v_mul_u32_u24 v{vT+6}, 30, v{vT+5}")
        a(f"v_sub_u32 v{vT+6}, v{vT+4}, v{vT+6}")
        a(f"v_mul_u32_u24 v{vT+7}, 7282, v{vT+6}")
        a(f"v_lshrrev_b32 v{vT+7}, 16, v{vT+7}")
        a(f"v_mul_u32_u24 v{vT+8}, 9, v{vT+7}")
        a(f"v_sub_u32 v{vT+8}, v{vT+6}, v{vT+8}")
        a(f"v_mul_u32_u24 v{vT+7}, 1152, v{vT+7}")
        a(f"v_lshl_add_u32 v{vT+7}, v{vT+8}, 4, v{vT+7}")
        a(f"v_and_b32 v{vT+8}, 4, v{vT+5}")
        a(f"v_lshlrev_b32 v{vT+8}, 1, v{vT+8}")
        a(f"v_and_b32 v{vT+9}, 8, v{vT+5}")
        a(f"v_lshrrev_b32 v{vT+9}, 1, v{vT+9}")
        a(f"v_and_b32 v{vT+10}, 0x13, v{vT+5}")
        a(f"v_or3_b32 v{vT+8}, v{vT+8}, v{vT+9}, v{vT+10}")
        a(f"v_mul_u32_u24 v{vT+8}, 3456, v{vT+8}")
        a(f"v_add3_u32 v{vT+7}, v{vT+7}, v{vT+8}, s{sT+1}")
        a(f"v_cmp_gt_u32 vcc, 27, v{vT+6}")
        a(f"v_cmp_gt_u32 s[{sT+4}:{sT+5}], 32, v{vT+5}")
        a(f"s_and_b64 vcc, vcc, s[{sT+4}:{sT+5}]")
        a(f"v_mov_b32 v{vT+8}, s{sT+2}")
        a("s_nop 1")
        a(f"v_cndmask_b32 v{vd}, v{vT+8}, v{vT+7}, vcc")
    a(f"s_lshl_b32 s{sM0b}, s{sWave}, 11")
    a(f"s_add_u32 s{sM0b}, s{sM0b}, {WB}")
    def wdma(i):
        if i >= 18: return
        st = i % NST
        a(f"s_mov_b32 s{sWo}, {i*32*3456}")
        for t, vd in enumerate((vD0, vD1)):
            a(f"s_add_u32 m0, s{sM0b}, {st*STG + t*1024}")
            a("s_nop 0")
            vm.op(("W", i), f"buffer_load_dwordx4 v{vd}, {sr(sW,4)}, s{sWo} offen lds")
    for i in range(4): wdma(i)
    ONES_LO, ONES_HI, ONES = sT+6, sT+7, sT+8
    a(f"s_mov_b32 s{ONES}, 0x3f803f80")
    S, M, Q = vT+4, vT+5, vT+6
    B3, B1, B2 = vT+8, vT+9, vT+10
    for d_, vb in ((3, B3), (1, B1), (2, B2)):
        a(f"v_add_u32 v{vb}, {d_}, v{vT+1}")
        a(f"v_subrev_u32 v{vT+11}, 6, v{vb}")
        a(f"v_min_u32 v{vb}, v{vb}, v{vT+11}")
        a(f"v_mad_u32_u24 v{vb}, v{vT}, 6, v{vb}")
        a(f"v_lshlrev_b32 v{vb}, 2, v{vb}")
    def reduce6(v):
        a(f"ds_bpermute_b32 v{vT+11}, v{B3}, v{v}")
        a("s_waitcnt lgkmcnt(0)")
        a(f"v_add_f32 v{v}, v{v}, v{vT+11}")
        a(f"ds_bpermute_b32 v{vT+11}, v{B1}, v{v}")
        a(f"ds_bpermute_b32 v{vT+12}, v{B2}, v{v}")
        a("s_waitcnt lgkmcnt(0)")
        a(f"v_add_f32 v{v}, v{v}, v{vT+11}")
        a(f"v_add_f32 v{v}, v{v}, v{vT+12}")
    vm.wait(lambda t: t[0] == "x")
    stamp(a, 1)
    if "wtest" in OPT:
        a("s_waitcnt vmcnt(6)")
        stamp(a, 2)
        a("s_waitcnt vmcnt(0)")
        stamp(a, 3)
        stamp(a, 4)
        OPT.discard("stamp"); OPT.add("stamp_off")
    a(f"v_mov_b32 v{S}, 0")
    a(f"v_mov_b32 v{Q}, 0")
    for i in range(48):
        a(f"v_dot2_f32_bf16 v{S if i%2==0 else Q}, v{RAW+i}, s{ONES}, v{S if i%2==0 else Q}")
    a("s_nop 2")
    a(f"v_add_f32 v{S}, v{S}, v{Q}")
    reduce6(S)
    a(f"v_mul_f32 v{S}, {f32(1.0/576.0)}, v{S}")
    round_bf16(a, M, S)
    PM, PQ = 172, 174
    a(f"v_sub_f32 v{PM}, 0, v{M}")
    a(f"v_mov_b32 v{PM+1}, v{PM}")
    a(f"v_mov_b64 {vr(PQ,2)}, 0")
    a(f"v_mov_b64 {vr(PQ+2,2)}, 0")
    for i in range(48):
        t = 178 + (i % 4) * 2
        q = PQ + (i % 2) * 2
        a(f"v_lshlrev_b32 v{t}, 16, v{RAW+i}")
        a(f"v_and_b32 v{t+1}, 0xffff0000, v{RAW+i}")
        a(f"v_pk_add_f32 {vr(t,2)}, {vr(t,2)}, {vr(PM,2)}")
        a(f"v_pk_fma_f32 {vr(q,2)}, {vr(t,2)}, {vr(t,2)}, {vr(q,2)}")
        a(f"v_cvt_pk_bf16_f32 v{RAW+i}, v{t}, v{t+1}")
    a(f"v_add_f32 v{Q}, v{PQ}, v{PQ+1}")
    a(f"v_add_f32 v{vT+13}, v{PQ+2}, v{PQ+3}")
    a(f"v_add_f32 v{Q}, v{Q}, v{vT+13}")
    reduce6(Q)
    a(f"v_mul_f32 v{Q}, {f32(1.0/576.0)}, v{Q}")
    a(f"v_sub_f32 v{vT+13}, v{S}, v{M}")
    a(f"v_fma_f32 v{Q}, -v{vT+13}, v{vT+13}, v{Q}")
    a(f"v_max_f32 v{Q}, 0, v{Q}")
    round_bf16(a, Q, Q)
    a(f"v_add_f32 v{Q}, {f32(1e-5)}, v{Q}")
    round_bf16(a, Q, Q)
    a(f"v_sqrt_f32 v{Q}, v{Q}")
    a("s_nop 0")
    round_bf16(a, Q, Q)
    a(f"v_rcp_f32 v{PM}, v{Q}")
    a(f"v_lshrrev_b32 v{vT+11}, 4, v{vT+2}")
    a(f"v_mov_b32 v{PM+1}, v{PM}")
    a(f"v_mul_u32_u24 v{vT+11}, 18432, v{vT+11}")
    a(f"v_and_b32 v{vT+12}, 15, v{vT+2}")
    a(f"v_lshl_add_u32 v{vT+11}, v{vT+12}, 4, v{vT+11}")
    a(f"v_lshl_add_u32 v{vT+14}, v{vT+1}, 8, v{vT+11}")
    a(f"v_cmp_gt_u32 vcc, 60, v0")
    a(f"s_and_saveexec_b64 s[{sT+4}:{sT+5}], vcc")
    for i in range(12):
        for d_ in range(4):
            x = RAW + i*4 + d_
            t = 178 + d_ * 2
            a(f"v_lshlrev_b32 v{t}, 16, v{x}")
            a(f"v_and_b32 v{t+1}, 0xffff0000, v{x}")
            a(f"v_pk_mul_f32 {vr(t,2)}, {vr(t,2)}, {vr(PM,2)}")
            a(f"v_cvt_pk_bf16_f32 v{x}, v{t}, v{t+1}")
        a(f"ds_write_b128 v{vT+14}, {vr(RAW+i*4,4)} offset:{XT + i*6*256}")
    a(f"s_mov_b64 exec, s[{sT+4}:{sT+5}]")
    stamp(a, 2)
    a(f"v_lshrrev_b32 v{vT+5}, 5, v0")
    a(f"v_lshlrev_b32 v{vT+5}, 4, v{vT+5}")
    a(f"v_bfe_u32 v{vT+6}, v0, 2, 3")
    a(f"v_add_u32 v{vT+5}, v{vT+5}, v{vT+6}")
    a(f"v_mul_u32_u24 v{vT+5}, {PITCH}, v{vT+5}")
    a(f"v_and_b32 v{vT+6}, 3, v0")
    a(f"v_lshl_add_u32 v{vWa}, v{vT+6}, 3, v{vT+5}")
    a(f"s_lshl_b32 s{sT}, s{sWave}, 6")
    a(f"s_add_u32 s{sT}, s{sT}, {WB}")
    a(f"v_add_u32 v{vWa}, s{sT}, v{vWa}")
    a(f"v_lshlrev_b32 v{vXa}, 4, v0")
    for i in range(0, 40, 2):
        a(f"v_mov_b64 {vr(ACC+i,2)}, 0")
    vm.wait(lambda t: t[0] == "W" and t[1] <= 1, " lgkmcnt(0)")
    a("s_barrier")
    def reads(i):
        b = i % 2; st = i % NST
        for n in range(2):
            a(f"ds_read_b64_tr_b16 {vr(WF+b*8+n*4,2)}, v{vWa} offset:{st*STG + n*32}")
            a(f"ds_read_b64_tr_b16 {vr(WF+b*8+n*4+2,2)}, v{vWa} offset:{st*STG + n*32 + 8*PITCH}")
        for mt in range(5):
            off = (mt*18 + i)*1024
            if off < 65536:
                a(f"ds_read_b128 {vr(XF+b*20+mt*4,4)}, v{vXa} offset:{off}")
            else:
                a(f"ds_read_b128 {vr(XF+b*20+mt*4,4)}, v{vT} offset:{off-65536}")
    a(f"v_add_u32 v{vT}, 65536, v{vXa}")
    stamp(a, 3)
    reads(0)
    for i in range(18):
        if i < 17:
            reads(i+1)
            a("s_waitcnt lgkmcnt(9)")
        else:
            a("s_waitcnt lgkmcnt(0)")
        b = i % 2
        k = 0
        for mt in range(5):
            for n in range(2):
                a(f"v_mfma_f32_16x16x32_bf16 {vr(ACC+(mt*2+n)*4,4)}, {vr(WF+b*8+n*4,4)}, {vr(XF+b*20+mt*4,4)}, {vr(ACC+(mt*2+n)*4,4)}")
                k += 1
                if k == 2 and i >= 1:
                    wdma(i+3)
        if i < 17:
            vm.wait(lambda t: t[0] == "W" and t[1] <= i+2)
            a("s_barrier")
    a("s_barrier")
    stamp(a, 4)
    a(f"v_lshrrev_b32 v{vT}, 4, v0")
    a(f"v_lshlrev_b32 v{vT}, 2, v{vT}")
    a(f"s_lshl_b32 s{sT}, s{sWave}, 5")
    a(f"v_add_u32 v{vT}, s{sT}, v{vT}")
    a(f"v_and_b32 v{vT+1}, 15, v0")
    a(f"v_mul_u32_u24 v{vT+1}, {QP}, v{vT+1}")
    AD = vT + 4
    for n in range(2):
        for p in range(2):
            ad = AD + n*2 + p
            a(f"v_add_u32 v{vT+2}, {n*16+p*2}, v{vT}")
            a(f"v_mul_u32_u24 v{vT+3}, 3641, v{vT+2}")
            a(f"v_lshrrev_b32 v{vT+3}, 16, v{vT+3}")
            a(f"v_mul_u32_u24 v{ad}, 18, v{vT+3}")
            a(f"v_sub_u32 v{ad}, v{vT+2}, v{ad}")
            a(f"v_lshl_add_u32 v{ad}, v{ad}, 1, v{vT+1}")
            a(f"v_mad_u32_u24 v{ad}, v{vT+3}, 48, v{ad}")
    a(f"s_cmp_ge_u32 s{sWave}, 7")
    a("s_nop 4")
    a(f"s_cbranch_scc1 L_{name}_skipq")
    for mt in range(5):
        for n in range(2):
            c = ACC + (mt*2+n)*4
            a(f"v_cvt_pk_bf16_f32 v{vT+8}, v{c}, v{c+1}")
            a(f"v_cvt_pk_bf16_f32 v{vT+9}, v{c+2}, v{c+3}")
            a(f"ds_write_b32 v{AD+n*2}, v{vT+8} offset:{mt*16*QP}")
            a(f"ds_write_b32 v{AD+n*2+1}, v{vT+9} offset:{mt*16*QP}")
    a.lab(f"L_{name}_skipq")
    a("s_waitcnt lgkmcnt(0)")
    a("s_barrier")
    if "dbg1" in OPT:
        lds_dump(a, 57344, 9, 3, 190, 210, tag="q")
    a(f"s_cmp_ge_u32 s{sWave}, 4")
    a(f"s_cbranch_scc1 L_{name}_done")
    QR = 4; KR = 16; LG = 120; OA = 130; VR_ = 16
    a(f"v_lshrrev_b32 v{vT}, 2, v3")
    a(f"v_and_b32 v{vT+1}, 3, v3")
    a(f"v_add_u32 v{vT+2}, 2, v{vT}")
    a(f"v_mul_u32_u24 v{vT+2}, {QP}, v{vT+2}")
    a(f"v_mad_u32_u24 v{vT+2}, v{vT+1}, 48, v{vT+2}")
    for j in range(3):
        a(f"ds_read_b128 {vr(QR+j*4,4)}, v{vT+2} offset:{14*QP + j*16}")
    for w in range(8):
        for j in range(3):
            a(f"ds_read_b128 {vr(KR+w*12+j*4,4)}, v{vT+2} offset:{(14-2*w)*QP + 192 + j*16}")
    a(f"s_lshl_b32 s{sT}, s{sRb}, 6")
    a(f"v_add_u32 v{vT+3}, s{sT}, v{vT}")
    a(f"s_mov_b32 s{sT+1}, {f32(18.0**-0.5)}")
    a(f"s_mov_b32 s{sT+2}, {f32(-1e9)}")
    a(f"v_cvt_pk_bf16_f32 v{vT+4}, s{sT+2}, s{sT+2}")
    a(f"v_lshlrev_b32 v{vT+4}, 16, v{vT+4}")
    for w in range(8):
        a(f"s_waitcnt lgkmcnt({min(15, (7-w)*3)})")
        a(f"v_mov_b32 v{LG+w}, 0")
        for d_ in range(9):
            a(f"v_dot2_f32_bf16 v{LG+w}, v{QR+d_}, v{KR+w*12+d_}, v{LG+w}")
        a("s_nop 2")
        round_bf16(a, LG+w, LG+w)
        a(f"v_mul_f32 v{LG+w}, s{sT+1}, v{LG+w}")
        round_bf16(a, LG+w, LG+w)
        a(f"v_cmp_le_u32 vcc, {2*w}, v{vT+3}")
        a("s_nop 1")
        a(f"v_cndmask_b32 v{LG+w}, v{vT+4}, v{LG+w}, vcc")
    for w in range(8):
        for j in range(3):
            a(f"ds_read_b128 {vr(VR_+w*12+j*4,4)}, v{vT+2} offset:{(14-2*w)*QP + 384 + j*16}")
    a(f"v_max3_f32 v{vT+5}, v{LG}, v{LG+1}, v{LG+2}")
    a(f"v_max3_f32 v{vT+5}, v{vT+5}, v{LG+3}, v{LG+4}")
    a(f"v_max3_f32 v{vT+5}, v{vT+5}, v{LG+5}, v{LG+6}")
    a(f"v_max_f32 v{vT+5}, v{vT+5}, v{LG+7}")
    a(f"s_mov_b32 s{sT+3}, {f32(math.log2(math.e))}")
    for w in range(8):
        a(f"v_sub_f32 v{LG+w}, v{LG+w}, v{vT+5}")
        a(f"v_mul_f32 v{LG+w}, s{sT+3}, v{LG+w}")
        a(f"v_exp_f32 v{LG+w}, v{LG+w}")
    a("s_nop 0")
    a(f"v_add_f32 v{vT+6}, v{LG}, v{LG+1}")
    for w in range(2, 8):
        a(f"v_add_f32 v{vT+6}, v{vT+6}, v{LG+w}")
    a(f"v_rcp_f32 v{vT+6}, v{vT+6}")
    a("s_nop 0")
    for w in range(8):
        a(f"v_mul_f32 v{LG+w}, v{LG+w}, v{vT+6}")
    for wp in range(4):
        a(f"v_cvt_pk_bf16_f32 v{LG+wp}, v{LG+2*wp}, v{LG+2*wp+1}")
    for d_ in range(18):
        a(f"v_mov_b32 v{OA+d_}, 0")
    a(f"s_mov_b32 s{sT+4}, 0x05040100")
    a(f"s_mov_b32 s{sT+5}, 0x07060302")
    for wp in range(4):
        a(f"s_waitcnt lgkmcnt({min(15, (3-wp)*6)})")
        for d_ in range(9):
            x0 = VR_ + (2*wp)*12 + d_; x1 = VR_ + (2*wp+1)*12 + d_
            t = vT + 8 + (d_ % 2) * 2
            a(f"v_perm_b32 v{t}, v{x1}, v{x0}, s{sT+4}")
            a(f"v_perm_b32 v{t+1}, v{x1}, v{x0}, s{sT+5}")
            a(f"v_dot2_f32_bf16 v{OA+2*d_}, v{t}, v{LG+wp}, v{OA+2*d_}")
            a(f"v_dot2_f32_bf16 v{OA+2*d_+1}, v{t+1}, v{LG+wp}, v{OA+2*d_+1}")
    a("s_nop 2")
    for d_ in range(9):
        a(f"v_cvt_pk_bf16_f32 v{QR+d_}, v{OA+2*d_}, v{OA+2*d_+1}")
    a(f"v_mul_u32_u24 v{vT+3}, 1152, v{vT+3}")
    a(f"v_mad_u32_u24 v{vT+3}, v{vT+1}, 36, v{vT+3}")
    a(f"s_mul_i32 s{sT}, s{sHg}, 144")
    a(f"buffer_store_dwordx4 {vr(QR,4)}, v{vT+3}, {sr(sO,4)}, s{sT} offen")
    a(f"buffer_store_dwordx4 {vr(QR+4,4)}, v{vT+3}, {sr(sO,4)}, s{sT} offen offset:16")
    a(f"buffer_store_dword v{QR+8}, v{vT+3}, {sr(sO,4)}, s{sT} offen offset:32")
    if "stamp_off" in OPT: OPT.add("stamp")
    if "stamp" in OPT: a("s_waitcnt vmcnt(0)")
    stamp(a, 6, True)
    stamp_dump(a, 7, 8, sWave, vT+8, 3)
    a.lab(f"L_{name}_done")
    a("s_endpgm")
    return a.text(), kernel_desc(name, NV, 96), f"; @launch kernel={name} grid=(256,1,1) block=(512,1,1) lds={WB + NST*STG}"


def dma_slots_setup(a, sWave, sT, vT, vD, rowbytes, sM0, upshift, extra_s=None):
    a(f"s_lshl_b32 s{sT}, s{sWave}, 6")
    a(f"s_sub_u32 s{sT+1}, s{sT}, 64")
    a(f"s_cmp_eq_u32 s{sWave}, 0")
    a(f"s_cselect_b32 s{sT+1}, 512, s{sT+1}")
    a(f"s_cselect_b32 s{sT+3}, 0, {upshift}")
    a(f"s_add_u32 s{sT+2}, s{sT}, 448")
    a(f"s_lshl_b32 s{sM0}, s{sWave}, 10")
    a(f"s_add_u32 s{sM0+1}, s{sM0}, 8192")
    a(f"s_add_u32 s{sM0+1}, s{sM0+1}, s{sT+3}")
    a(f"s_add_u32 s{sM0+2}, s{sM0}, {16384+upshift}")
    for k in range(3):
        a(f"v_add_u32 v{vT+1}, s{sT+k}, v0")
        a(f"v_mul_u32_u24 v{vT+2}, 3641, v{vT+1}")
        a(f"v_lshrrev_b32 v{vT+8+k}, 16, v{vT+2}")
        a(f"v_mul_u32_u24 v{vT+3}, 18, v{vT+8+k}")
        a(f"v_sub_u32 v{vT+3}, v{vT+1}, v{vT+3}")
        a(f"v_mul_u32_u24 v{vT+2}, {rowbytes}, v{vT+8+k}")
        a(f"v_lshl_add_u32 v{vD+k}, v{vT+3}, 4, v{vT+2}")

def gen_k3v2(name="k3_kernel"):
    a = A(); a.k3 = True; a.stpol = os.environ.get("K3ST", "sc1")
    kernel_head(a, name)
    NST = 6; STG = 18560; UP = 9344; RING = 6; PF = RING - 1
    ACC = 4; XS = 148; WR = 196
    vWa, vWb = 220, 221
    vD = 222
    vX0 = 225
    vNM, vR = 226, 227
    vT = 228
    NV = 254
    def acc(nt): return ACC + nt*16
    sWa, sWb_, sWc, sX, sST, sH = 12, 16, 20, 24, 28, 32
    sWave, sFb, sMb = 36, 37, 38
    sWoff, sXoff, sIt = 39, 40, 41
    sM0 = 42
    sT = 46
    sRot, sCnt, sHb = 56, 57, 58
    a("s_cmp_ge_u32 s2, 256")
    a(f"s_cbranch_scc1 L_{name}_done")
    stamp(a, 0); stamp(a, 5, True)
    a("s_load_dwordx4 s[4:7], s[0:1], 32")
    a("s_load_dwordx2 s[8:9], s[0:1], 72")
    a("v_lshrrev_b32 v1, 6, v0")
    a("v_and_b32 v0, 63, v0")
    a("s_nop 0")
    a(f"v_readfirstlane_b32 s{sWave}, v1")
    a(f"s_and_b32 s{sT}, s2, 7")
    a(f"s_lshr_b32 s{sT+1}, s2, 3")
    a(f"s_and_b32 s{sFb}, s{sT+1}, 3")
    a(f"s_lshl_b32 s{sT}, s{sT}, 2")
    a(f"s_add_u32 s{sFb}, s{sFb}, s{sT}")
    a(f"s_lshr_b32 s{sMb}, s{sT+1}, 2")
    dma_slots_setup(a, sWave, sT, vT, vD, 9216, sM0, 128)
    a(f"s_mul_i32 s{sT}, s{sFb}, 288")
    for k in range(3):
        a(f"v_add_u32 v{vD+k}, s{sT}, v{vD+k}")
    a(f"s_lshl_b32 s{sT}, s{sMb}, 4")
    a(f"s_lshl_b32 s{sT+1}, s{sWave}, 1")
    a(f"s_add_u32 s{sT}, s{sT}, s{sT+1}")
    a(f"s_mul_i32 s{sT+1}, s{sT}, 18432")
    a(f"v_bfe_u32 v{vT}, v0, 4, 1")
    a(f"v_mul_u32_u24 v{vT}, 18432, v{vT}")
    a(f"v_lshrrev_b32 v{vT+1}, 5, v0")
    a(f"v_lshl_add_u32 v{vT}, v{vT+1}, 8, v{vT}")
    a(f"v_and_b32 v{vT+1}, 15, v0")
    a(f"v_lshl_add_u32 v{vT}, v{vT+1}, 4, v{vT}")
    a(f"v_add_u32 v{vX0}, s{sT+1}, v{vT}")
    a(f"s_mul_i32 s{sHb}, s{sT}, 144")
    a(f"s_lshr_b32 s{sT+1}, s{sFb}, 1")
    a(f"s_mul_i32 s{sT+1}, s{sT+1}, 9")
    a(f"s_add_u32 s{sHb}, s{sHb}, s{sT+1}")
    a(f"s_lshl_b32 s{sHb}, s{sHb}, 10")
    a(f"s_lshl_b32 s{sT}, s{sT}, 4")
    a(f"v_and_b32 v{vT+4}, 31, v0")
    a(f"v_add_u32 v{vT+4}, s{sT}, v{vT+4}")
    a(f"v_mul_u32_u24 v{vT+4}, 48, v{vT+4}")
    a(f"v_bfe_u32 v{vT}, v0, 4, 1")
    a(f"v_mul_u32_u24 v{vT}, {UP}, v{vT}")
    a(f"v_lshrrev_b32 v{vT+1}, 5, v0")
    a(f"v_bfe_u32 v{vT+2}, v0, 2, 2")
    a(f"v_lshl_add_u32 v{vT+1}, v{vT+1}, 2, v{vT+2}")
    a(f"v_mad_u32_u24 v{vT}, v{vT+1}, 288, v{vT}") if False else None
    a(f"v_mul_u32_u24 v{vT+1}, 288, v{vT+1}")
    a(f"v_add_u32 v{vT}, v{vT}, v{vT+1}")
    a(f"v_and_b32 v{vT+2}, 3, v0")
    a(f"v_lshl_add_u32 v{vWa}, v{vT+2}, 3, v{vT}")
    a(f"v_add_u32 v{vWb}, {3*STG}, v{vWa}")
    if "rot" in OPT:
        a(f"s_mul_i32 s{sRot}, s{sMb}, 9")
        a(f"s_and_b32 s{sT}, s{sFb}, 3")
        a(f"s_mul_i32 s{sT}, s{sT}, 18")
        a(f"s_add_u32 s{sRot}, s{sRot}, s{sT}")
        a(f"s_lshr_b32 s{sRot}, s{sRot}, 2")
        a(f"s_sub_u32 s{sT}, s{sRot}, 18")
        a(f"s_cmp_ge_u32 s{sRot}, 18")
        a(f"s_cselect_b32 s{sRot}, s{sT}, s{sRot}")
    else:
        a(f"s_mov_b32 s{sRot}, 0")
    a(f"s_mov_b32 s{sCnt}, 0")
    a(f"s_mul_i32 s{sWoff}, s{sRot}, {32*9216}")
    a(f"s_lshl_b32 s{sXoff}, s{sRot}, 10")
    a("s_waitcnt lgkmcnt(0)")
    if "pstamp" in OPT: stamp(a, 1)
    srd(a, sWa, 4, 576*4608*2)
    srd(a, sWc, 6, 576*4608*2)
    a(f"s_cmp_eq_u32 s{sWave}, 0")
    a(f"s_cselect_b32 s{sT}, s4, s6")
    a(f"s_cselect_b32 s{sT+1}, s5, s7")
    srd(a, sWb_, sT, 576*4608*2)
    srd(a, sX, 8, H1_SZ, H1_OFF)
    srd(a, sST, 8, ST_SZ, ST_OFF)
    srd(a, sH, 8, HH_SZ, HH_OFF)
    for q in range(3):
        a(f"buffer_load_dwordx4 {vr(WR+q*4,4)}, v{vT+4}, {sr(sST,4)}, 0 offen offset:{q*16}")
    M16 = "m16" in OPT
    TM = int(os.environ.get("TM", "4"))
    sA_, sB_, sE1, sE2 = 60-1, 59-1, 57, 56
    sA_, sB_, sE1, sE2 = 88, 89, 90, 91
    vA, vHo = 244, 245
    EO = 246
    ET = vT + 4
    a(f"s_mov_b32 s{sA_}, {f32(GELU_A)}")
    a(f"s_mov_b32 s{sB_}, {f32(GELU_B)}")
    a(f"v_mov_b32 v{vA}, s{sA_}")
    a(f"v_bfe_u32 v{vHo}, v0, 4, 1")
    a(f"v_mul_u32_u24 v{vHo}, 147456, v{vHo}")
    a(f"v_lshrrev_b32 v{vT+8}, 5, v0")
    a(f"v_lshl_add_u32 v{vHo}, v{vT+8}, 8, v{vHo}")
    a(f"v_and_b32 v{vT+8}, 15, v0")
    a(f"v_lshl_add_u32 v{vHo}, v{vT+8}, 4, v{vHo}")
    a(f"s_and_b32 s{sE2}, s{sFb}, 1")
    a(f"s_lshl_b32 s{sE1}, s{sE2}, 12")
    a(f"s_add_u32 s{sE1}, s{sE1}, s{sHb}")
    a(f"s_lshl_b32 s{sE2}, s{sE2}, 9")
    a(f"s_add_u32 s{sE2}, s{sE2}, s{sHb}")
    a(f"s_add_u32 s{sE2}, s{sE2}, {8*1024}")
    a(f"s_cmp_ge_u32 s{sWave}, 2")
    a(f"s_cbranch_scc1 L_{name}_typeB")
    def epi_ops(nt):
        o = EO + (nt % 2) * 4
        out = []
        for hh in range(2):
            lines = [[], []]
            for c in range(2):
                p = hh*2 + c
                x0, x1 = acc(nt) + 2*p, acc(nt) + 2*p + 1
                y0, y1 = x0 + 8, x1 + 8
                t0, t1 = ET + c*2, ET + c*2 + 1
                lines[c] = [f"v_mul_f32 v{t0}, v{x0}, v{x0}", f"v_mul_f32 v{t1}, v{x1}, v{x1}",
                      f"v_fma_f32 v{t0}, v{t0}, s{sB_}, v{vA}", f"v_fma_f32 v{t1}, v{t1}, s{sB_}, v{vA}",
                      f"v_mul_f32 v{t0}, v{t0}, v{x0}", f"v_mul_f32 v{t1}, v{t1}, v{x1}",
                      f"v_exp_f32 v{t0}, v{t0}", f"v_exp_f32 v{t1}, v{t1}",
                      f"v_mul_f32 v{y0}, v{y0}, v{x0}", f"v_mul_f32 v{y1}, v{y1}, v{x1}",
                      f"v_add_f32 v{t0}, 1.0, v{t0}", f"v_add_f32 v{t1}, 1.0, v{t1}",
                      f"v_rcp_f32 v{t0}, v{t0}", f"v_rcp_f32 v{t1}, v{t1}",
                      f"v_mul_f32 v{t0}, v{t0}, v{y0}", f"v_mul_f32 v{t1}, v{t1}, v{y1}",
                      f"v_cvt_pk_bf16_f32 v{o+p}, v{t0}, v{t1}"]
            i0 = i1 = 0
            while i0 < len(lines[0]) or i1 < len(lines[1]):
                for _ in range(2):
                    if i0 < len(lines[0]): out.append(lines[0][i0]); i0 += 1
                for _ in range(2):
                    if i1 < len(lines[1]): out.append(lines[1][i1]); i1 += 1
        if nt < 8:
            out.append(f"buffer_store_dwordx4 {vr(o,4)}, v{vHo}, {sr(sH,4)}, s{sE1} offen offset:{(nt//2)*1024 + (nt%2)*512}")
        else:
            out.append(f"buffer_store_dwordx4 {vr(o,4)}, v{vHo}, {sr(sH,4)}, s{sE2} offen")
        return out
    def body(nd, tag):
        vm = VM(a)
        vm.ops = [("S", 0)] * 3
        srds = (sWa, sWb_, sWc)
        def load_groups(i):
            if i >= 18: return []
            st = i % NST
            gs = []
            for k in range(nd):
                gs.append([("s", f"s_add_u32 m0, s{sM0+k}, {st*STG}"), ("s", "s_nop 0"),
                           (("W", i), f"buffer_load_dwordx4 v{vD+k}, {sr(srds[k],4)}, s{sWoff} offen lds")])
            gs.append([(("X", i), f"buffer_load_dwordx4 {vr(XS+st*8,4)}, v{vX0}, {sr(sX,4)}, s{sXoff} offen")])
            gs.append([(("X", i), f"buffer_load_dwordx4 {vr(XS+st*8+4,4)}, v{vX0}, {sr(sX,4)}, s{sXoff} offen offset:512"),
                       ("s", f"s_add_u32 s{sRot}, s{sRot}, 1"),
                       ("s", f"s_cmp_eq_u32 s{sRot}, {4 if 'hot4' in OPT else 18}"),
                       ("s", f"s_cselect_b32 s{sRot}, 0, s{sRot}"),
                       ("s", f"s_mul_i32 s{sWoff}, s{sRot}, {32*9216}"),
                       ("s", f"s_lshl_b32 s{sXoff}, s{sRot}, 10")])
            return gs
        def emit_group(g):
            for tg, txt in g:
                if tg == "s": a(txt)
                else: vm.op(tg, txt)
        for i in range(2):
            for g in load_groups(i): emit_group(g)
        vm.wait(lambda t: t[0] == "S")
        b = WR
        a(f"v_add_f32 v{vT}, v{b}, v{b+2}")
        a(f"v_add_f32 v{vT+1}, v{b+4}, v{b+6}")
        a(f"v_add_f32 v{vT+2}, v{b+8}, v{b+10}")
        a(f"v_add_f32 v{vT}, v{vT}, v{vT+1}")
        a(f"v_add_f32 v{vT}, v{vT}, v{vT+2}")
        a(f"v_mul_f32 v{vT}, {f32(1.0/6.0)}, v{vT}")
        a(f"v_add_f32 v{vT+1}, v{b+1}, v{b+3}")
        a(f"v_add_f32 v{vT+2}, v{b+5}, v{b+7}")
        a(f"v_add_f32 v{vT+3}, v{b+9}, v{b+11}")
        a(f"v_add_f32 v{vT+1}, v{vT+1}, v{vT+2}")
        a(f"v_add_f32 v{vT+1}, v{vT+1}, v{vT+3}")
        a(f"v_mov_b32 v{vT+2}, 0")
        for t in range(6):
            a(f"v_sub_f32 v{vT+3}, v{b+2*t}, v{vT}")
            a(f"v_fmac_f32 v{vT+2}, v{vT+3}, v{vT+3}")
        a(f"v_fmac_f32 v{vT+1}, {f32(96.0)}, v{vT+2}")
        a(f"v_mul_f32 v{vT+1}, {f32(1.0/576.0)}, v{vT+1}")
        round_bf16(a, vNM, vT)
        round_bf16(a, vT+1, vT+1)
        a(f"v_add_f32 v{vT+1}, {f32(1e-5)}, v{vT+1}")
        round_bf16(a, vT+1, vT+1)
        a(f"v_sqrt_f32 v{vT+1}, v{vT+1}")
        a("s_nop 0")
        round_bf16(a, vT+1, vT+1)
        a(f"v_rcp_f32 v{vR}, v{vT+1}")
        if "exactnorm" not in OPT:
            a("s_nop 0")
            a(f"v_mul_f32 v{vNM}, v{vNM}, v{vR}")
            a(f"v_sub_f32 v{vNM}, 0, v{vNM}")
        def norm_ops(i):
            ops = []
            if i >= 18: return ops
            for h4 in range(2):
                chains = []
                for d in range(4):
                    x = XS + (i % NST)*8 + h4*4 + d
                    t0 = vT + 8 + d * 2; t1 = t0 + 1
                    chains.append([f"v_lshlrev_b32 v{t0}, 16, v{x}", f"v_and_b32 v{t1}, 0xffff0000, v{x}",
                                   f"v_fma_f32 v{t0}, v{t0}, v{vR}, v{vNM}", f"v_fma_f32 v{t1}, v{t1}, v{vR}, v{vNM}",
                                   f"v_cvt_pk_bf16_f32 v{x}, v{t0}, v{t1}"])
                for stage in ((0, 1), (2, 3), (4,)):
                    for c in chains:
                        for j in stage: ops.append(c[j])
            return ops
        NS = 18 - TM
        seq = [(i, f // 9, f % 9) for i in range(NS) for f in range(18)]
        seq += [(i, half, nt) for nt in range(9) for i in range(NS, 18) for half in range(2)]
        def wread(g):
            if g >= len(seq): return
            i, half, nt = seq[g]
            st = i % NST
            slot = g % RING
            base = vWa if st < 3 else vWb
            off = (st % 3) * STG + half * 8 * 288 + nt * 32
            a(f"ds_read_b64_tr_b16 {vr(WR+slot*4,2)}, v{base} offset:{off}")
            a(f"ds_read_b64_tr_b16 {vr(WR+slot*4+2,2)}, v{base} offset:{off+4608}")
        vm.wait(lambda t: t[1] <= 0)
        for op in norm_ops(0): a(op)
        a("s_barrier")
        for f in range(PF): wread(f)
        stamp(a, 1)
        sched = {0: [2, 3], 1: [4, 5], 2: [6, 7]}
        nsched = {i: [i + 1] for i in range(NS)}
        if TM:
            extra = list(range(NS + 1, 18))
            nsched[NS-1] = [NS] + extra[-2:]
            nsched[NS-2] = [NS-1] + extra[:-2]
        for i in range(NS):
            lg = []
            for j in sched.get(i, [i + 5]): lg += load_groups(j)
            nlist = nsched[i]
            ni = 0; gi = 0
            gpos = [1 + (k_ * 16) // max(1, len(lg)) for k_ in range(len(lg))]
            nstart = 6 if i < 3 else 1
            nops = []
            for j in nlist: nops += [("w", j)] + norm_ops(j)
            per = (len(nops) + (16 - nstart)) // (17 - nstart) if nops else 0
            for f in range(18):
                g = i*18 + f
                half, nt = divmod(f, 9)
                slot = g % RING
                if i == 0 and f == 18 - PF:
                    vm.wait(lambda t: t[0] == "W" and t[1] <= 1)
                    a("s_barrier")
                if TM and i == NS - 1 and f == 18 - PF:
                    vm.wait(lambda t: t[0] == "W")
                    a("s_barrier")
                wread(g + PF)
                rem = min(PF, len(seq) - 1 - g)
                a(f"s_waitcnt lgkmcnt({2*rem})")
                if i == 0:
                    a(f"v_mfma_f32_32x32x16_bf16 {vr(acc(nt),16)}, {vr(WR+slot*4,4)}, {vr(XS+(i%NST)*8+half*4,4)}, " + ("0" if half == 0 else vr(acc(nt),16)))
                else:
                    a(f"v_mfma_f32_32x32x16_bf16 {vr(acc(nt),16)}, {vr(WR+slot*4,4)}, {vr(XS+(i%NST)*8+half*4,4)}, {vr(acc(nt),16)}")
                while gi < len(lg) and gpos[gi] <= f:
                    emit_group(lg[gi]); gi += 1
                if f >= nstart:
                    for _ in range(per):
                        if ni < len(nops):
                            op = nops[ni]; ni += 1
                            if isinstance(op, tuple):
                                vm.wait(lambda t: t[0] == "X" and t[1] <= op[1])
                            else: a(op)
            assert ni == len(nops) and gi == len(lg), (i, ni, len(nops), gi, len(lg))
            if i < 17 and not (TM and i == NS - 1):
                vm.wait(lambda t: t[0] == "W" and t[1] <= i + 2)
                a("s_barrier")
        stamp(a, 2)
        g = NS * 18
        pend = []
        for nt in range(9):
            nm = 2 * TM
            per = (len(pend) + nm - 3) // max(1, nm - 2) if pend else 0
            pi = 0
            for q in range(nm):
                i, half, nt_ = seq[g]
                assert nt_ == nt
                slot = g % RING
                wread(g + PF)
                rem = min(PF, len(seq) - 1 - g)
                a(f"s_waitcnt lgkmcnt({2*rem})")
                a(f"v_mfma_f32_32x32x16_bf16 {vr(acc(nt),16)}, {vr(WR+slot*4,4)}, {vr(XS+(i%NST)*8+half*4,4)}, {vr(acc(nt),16)}")
                g += 1
                if q >= 2:
                    for _ in range(per):
                        if pi < len(pend): a(pend[pi]); pi += 1
            assert pi == len(pend)
            pend = epi_ops(nt)
        if not TM:
            a("s_nop 7"); a("s_nop 7")
            for nt in range(8):
                for op in epi_ops(nt): a(op)
        a("s_nop 7"); a("s_nop 7")
        for op in pend: a(op)
    body(3, "A")
    a(f"s_branch L_{name}_epi")
    a.lab(f"L_{name}_typeB")
    body(2, "B")
    a.lab(f"L_{name}_epi")
    if "pstamp" not in OPT: stamp(a, 3)
    if "stamp" in OPT: a("s_waitcnt vmcnt(0)")
    if "pstamp" not in OPT: stamp(a, 4)
    stamp(a, 6, True)
    stamp_dump(a, 7, 8, sWave, vT+4)
    a.lab(f"L_{name}_done")
    a("s_endpgm")
    return a.text(), kernel_desc(name, NV), f"; @launch kernel={name} grid=(256,1,1) block=(512,1,1) lds={NST*STG}"

def gen_k3m(name="k3_kernel"):
    a = A()
    kernel_head(a, name)
    NST = 6; STG = 18560; UP = 9344; RING = 6; PF = RING - 1
    ACC = 4; XS = 148; WR = 196
    vWa, vWb = 220, 221
    vD = 222
    vX0 = 225
    vNM, vR = 226, 227
    vT = 228
    vX1, vNM1, vR1 = 244, 245, 246
    NV = 248
    def acc(nt, mat, mt): return ACC + ((nt*2+mat)*2+mt)*4
    sWa, sWb_, sWc, sX, sST, sH = 12, 16, 20, 24, 28, 32
    sWave, sFb, sMb = 36, 37, 38
    sWoff, sXoff, sIt = 39, 40, 41
    sM0 = 42
    sT = 46
    sRot, sCnt, sHb = 56, 57, 58
    a("s_cmp_ge_u32 s2, 256")
    a(f"s_cbranch_scc1 L_{name}_done")
    stamp(a, 0); stamp(a, 5, True)
    a("s_load_dwordx4 s[4:7], s[0:1], 32")
    a("s_load_dwordx2 s[8:9], s[0:1], 72")
    a("v_lshrrev_b32 v1, 6, v0")
    a("v_and_b32 v0, 63, v0")
    a("s_nop 0")
    a(f"v_readfirstlane_b32 s{sWave}, v1")
    a(f"s_and_b32 s{sT}, s2, 7")
    a(f"s_lshr_b32 s{sT+1}, s2, 3")
    a(f"s_and_b32 s{sFb}, s{sT+1}, 3")
    a(f"s_lshl_b32 s{sT}, s{sT}, 2")
    a(f"s_add_u32 s{sFb}, s{sFb}, s{sT}")
    a(f"s_lshr_b32 s{sMb}, s{sT+1}, 2")
    dma_slots_setup(a, sWave, sT, vT, vD, 9216, sM0, 128)
    a(f"s_mul_i32 s{sT}, s{sFb}, 288")
    for k in range(3):
        a(f"v_add_u32 v{vD+k}, s{sT}, v{vD+k}")
    a(f"s_lshl_b32 s{sT}, s{sMb}, 4")
    a(f"s_lshl_b32 s{sT+1}, s{sWave}, 1")
    a(f"s_add_u32 s{sT}, s{sT}, s{sT+1}")
    a(f"s_mul_i32 s{sT+1}, s{sT}, 18432")
    a(f"v_lshlrev_b32 v{vT}, 4, v0")
    a(f"v_add_u32 v{vX0}, s{sT+1}, v{vT}")
    a(f"v_add_u32 v{vX1}, 18432, v{vX0}")
    a(f"s_mul_i32 s{sHb}, s{sT}, 144")
    a(f"s_lshr_b32 s{sT+1}, s{sFb}, 1")
    a(f"s_mul_i32 s{sT+1}, s{sT+1}, 9")
    a(f"s_add_u32 s{sHb}, s{sHb}, s{sT+1}")
    a(f"s_lshl_b32 s{sHb}, s{sHb}, 10")
    a(f"s_lshl_b32 s{sT}, s{sT}, 4")
    a(f"v_and_b32 v{vT+4}, 15, v0")
    a(f"v_add_u32 v{vT+4}, s{sT}, v{vT+4}")
    a(f"v_mul_u32_u24 v{vT+4}, 48, v{vT+4}")
    a(f"v_lshrrev_b32 v{vT+1}, 2, v0")
    a(f"v_mul_u32_u24 v{vT+1}, 288, v{vT+1}")
    a(f"v_and_b32 v{vT+2}, 3, v0")
    a(f"v_lshl_add_u32 v{vWa}, v{vT+2}, 3, v{vT+1}")
    a(f"v_add_u32 v{vWb}, {3*STG}, v{vWa}")
    if "rot" in OPT:
        a(f"s_mul_i32 s{sRot}, s{sMb}, 9")
        a(f"s_and_b32 s{sT}, s{sFb}, 3")
        a(f"s_mul_i32 s{sT}, s{sT}, 18")
        a(f"s_add_u32 s{sRot}, s{sRot}, s{sT}")
        a(f"s_lshr_b32 s{sRot}, s{sRot}, 2")
        a(f"s_sub_u32 s{sT}, s{sRot}, 18")
        a(f"s_cmp_ge_u32 s{sRot}, 18")
        a(f"s_cselect_b32 s{sRot}, s{sT}, s{sRot}")
    else:
        a(f"s_mov_b32 s{sRot}, 0")
    a(f"s_mov_b32 s{sCnt}, 0")
    a(f"s_mul_i32 s{sWoff}, s{sRot}, {32*9216}")
    a(f"s_lshl_b32 s{sXoff}, s{sRot}, 10")
    a("s_waitcnt lgkmcnt(0)")
    if "pstamp" in OPT: stamp(a, 1)
    srd(a, sWa, 4, 576*4608*2)
    srd(a, sWc, 6, 576*4608*2)
    a(f"s_cmp_eq_u32 s{sWave}, 0")
    a(f"s_cselect_b32 s{sT}, s4, s6")
    a(f"s_cselect_b32 s{sT+1}, s5, s7")
    srd(a, sWb_, sT, 576*4608*2)
    srd(a, sX, 8, H1_SZ, H1_OFF)
    srd(a, sST, 8, ST_SZ, ST_OFF)
    srd(a, sH, 8, HH_SZ, HH_OFF)
    for mt in range(2):
        for q in range(3):
            a(f"buffer_load_dwordx4 {vr(WR+mt*12+q*4,4)}, v{vT+4}, {sr(sST,4)}, 0 offen offset:{mt*768+q*16}")
    a(f"s_cmp_ge_u32 s{sWave}, 2")
    a(f"s_cbranch_scc1 L_{name}_typeB")

    M16 = "m16" in OPT
    def body(nd, tag):
        vm = VM(a)
        vm.ops = [("S", 0)] * 6
        srds = (sWa, sWb_, sWc)
        def load_groups(i):
            if i >= 18: return []
            st = i % NST
            gs = []
            for k in range(nd):
                gs.append([("s", f"s_add_u32 m0, s{sM0+k}, {st*STG}"), ("s", "s_nop 0"),
                           (("W", i), f"buffer_load_dwordx4 v{vD+k}, {sr(srds[k],4)}, s{sWoff} offen lds")])
            gs.append([(("X", i), f"buffer_load_dwordx4 {vr(XS+st*8,4)}, v{vX0}, {sr(sX,4)}, s{sXoff} offen")])
            gs.append([(("X", i), f"buffer_load_dwordx4 {vr(XS+st*8+4,4)}, v{vX1}, {sr(sX,4)}, s{sXoff} offen"),
                       ("s", f"s_add_u32 s{sRot}, s{sRot}, 1"),
                       ("s", f"s_cmp_eq_u32 s{sRot}, {4 if 'hot4' in OPT else 18}"),
                       ("s", f"s_cselect_b32 s{sRot}, 0, s{sRot}"),
                       ("s", f"s_mul_i32 s{sWoff}, s{sRot}, {32*9216}"),
                       ("s", f"s_lshl_b32 s{sXoff}, s{sRot}, 10")])
            return gs
        def emit_group(g):
            for tg, txt in g:
                if tg == "s": a(txt)
                else: vm.op(tg, txt)
        for i in range(2):
            for g in load_groups(i): emit_group(g)
        vm.wait(lambda t: t[0] == "S")
        for b, vNM_, vR_ in ((WR, vNM, vR), (WR+12, vNM1, vR1)):
            a(f"v_add_f32 v{vT}, v{b}, v{b+2}")
            a(f"v_add_f32 v{vT+1}, v{b+4}, v{b+6}")
            a(f"v_add_f32 v{vT+2}, v{b+8}, v{b+10}")
            a(f"v_add_f32 v{vT}, v{vT}, v{vT+1}")
            a(f"v_add_f32 v{vT}, v{vT}, v{vT+2}")
            a(f"v_mul_f32 v{vT}, {f32(1.0/6.0)}, v{vT}")
            a(f"v_add_f32 v{vT+1}, v{b+1}, v{b+3}")
            a(f"v_add_f32 v{vT+2}, v{b+5}, v{b+7}")
            a(f"v_add_f32 v{vT+3}, v{b+9}, v{b+11}")
            a(f"v_add_f32 v{vT+1}, v{vT+1}, v{vT+2}")
            a(f"v_add_f32 v{vT+1}, v{vT+1}, v{vT+3}")
            a(f"v_mov_b32 v{vT+2}, 0")
            for t in range(6):
                a(f"v_sub_f32 v{vT+3}, v{b+2*t}, v{vT}")
                a(f"v_fmac_f32 v{vT+2}, v{vT+3}, v{vT+3}")
            a(f"v_fmac_f32 v{vT+1}, {f32(96.0)}, v{vT+2}")
            a(f"v_mul_f32 v{vT+1}, {f32(1.0/576.0)}, v{vT+1}")
            round_bf16(a, vNM_, vT)
            round_bf16(a, vT+1, vT+1)
            a(f"v_add_f32 v{vT+1}, {f32(1e-5)}, v{vT+1}")
            round_bf16(a, vT+1, vT+1)
            a(f"v_sqrt_f32 v{vT+1}, v{vT+1}")
            a("s_nop 0")
            round_bf16(a, vT+1, vT+1)
            a(f"v_rcp_f32 v{vR_}, v{vT+1}")
            if "exactnorm" not in OPT:
                a("s_nop 0")
                a(f"v_mul_f32 v{vNM_}, v{vNM_}, v{vR_}")
                a(f"v_sub_f32 v{vNM_}, 0, v{vNM_}")
        def norm_ops(i):
            ops = []
            if i >= 18: return ops
            for d in range(8):
                x = XS + (i % NST)*8 + d
                t0 = vT + (d % 2) * 2; t1 = t0 + 1
                vNM, vR = (226, 227) if d < 4 else (vNM1, vR1)
                ops.append(f"v_lshlrev_b32 v{t0}, 16, v{x}")
                ops.append(f"v_and_b32 v{t1}, 0xffff0000, v{x}")
                if "exactnorm" in OPT:
                    ops.append(f"v_sub_f32 v{t0}, v{t0}, v{vNM}")
                    ops.append(f"v_sub_f32 v{t1}, v{t1}, v{vNM}")
                    ops.append(f"v_cvt_pk_bf16_f32 v{t0}, v{t0}, v{t1}")
                    ops.append(f"v_and_b32 v{t1}, 0xffff0000, v{t0}")
                    ops.append(f"v_lshlrev_b32 v{t0}, 16, v{t0}")
                    ops.append(f"v_mul_f32 v{t0}, v{t0}, v{vR}")
                    ops.append(f"v_mul_f32 v{t1}, v{t1}, v{vR}")
                else:
                    ops.append(f"v_fma_f32 v{t0}, v{t0}, v{vR}, v{vNM}")
                    ops.append(f"v_fma_f32 v{t1}, v{t1}, v{vR}, v{vNM}")
                ops.append(f"v_cvt_pk_bf16_f32 v{x}, v{t0}, v{t1}")
            return ops
        def wread(g):
            i, f = divmod(g, 18)
            if i >= 18: return
            st = i % NST
            nt, mat = divmod(f, 2)
            slot = g % RING
            base = vWa if st < 3 else vWb
            off = (st % 3) * STG + mat * UP + nt * 32
            a(f"ds_read_b64_tr_b16 {vr(WR+slot*4,2)}, v{base} offset:{off}")
            a(f"ds_read_b64_tr_b16 {vr(WR+slot*4+2,2)}, v{base} offset:{off+4608}")
        vm.wait(lambda t: t[1] <= 0)
        for op in norm_ops(0): a(op)
        a("s_barrier")
        for f in range(PF): wread(f)
        stamp(a, 1)
        sched = {0: [2, 3], 1: [4, 5], 2: [6, 7]}
        for i in range(18):
            lg = []
            for j in sched.get(i, [i + 5]): lg += load_groups(j)
            nops = norm_ops(i + 1)
            ni = 0; gi = 0
            gpos = [1 + (k * 16) // max(1, len(lg)) for k in range(len(lg))]
            nstart = 6 if i < 3 else 1
            per = (len(nops) + (16 - nstart)) // (17 - nstart) if nops else 0
            for f in range(18):
                g = i*18 + f
                half, nt = divmod(f, 9)
                slot = g % RING
                if i == 0 and f == 18 - PF:
                    vm.wait(lambda t: t[0] == "W" and t[1] <= 1)
                    a("s_barrier")
                wread(g + PF)
                rem = min(PF, 18*18 - 1 - g)
                a(f"s_waitcnt lgkmcnt({2*rem})")
                nt, mat = divmod(f, 2)
                for mt in range(2):
                    a(f"v_mfma_f32_16x16x32_bf16 {vr(acc(nt,mat,mt),4)}, {vr(WR+slot*4,4)}, {vr(XS+(i%NST)*8+mt*4,4)}, " + ("0" if i == 0 else vr(acc(nt,mat,mt),4)))
                if f == nstart and nops:
                    vm.wait(lambda t: t[0] == "X" and t[1] <= i + 1)
                while gi < len(lg) and gpos[gi] <= f:
                    emit_group(lg[gi]); gi += 1
                if f >= nstart:
                    for _ in range(per):
                        if ni < len(nops):
                            a(nops[ni]); ni += 1
            assert ni == len(nops) and gi == len(lg), (i, ni, len(nops), gi, len(lg))
            if i < 17:
                vm.wait(lambda t: t[0] == "W" and t[1] <= i + 2)
                a("s_barrier")
    body(3, "A")
    a(f"s_branch L_{name}_epi")
    a.lab(f"L_{name}_typeB")
    body(2, "B")
    a.lab(f"L_{name}_epi")
    if "pstamp" not in OPT: stamp(a, 2)
    a("s_waitcnt vmcnt(0) lgkmcnt(0)")
    sA_, sB_ = sT+6, sT+7
    a(f"s_mov_b32 s{sA_}, {f32(GELU_A)}")
    a(f"s_mov_b32 s{sB_}, {f32(GELU_B)}")
    a(f"v_lshlrev_b32 v{vX0}, 4, v0")
    a(f"s_and_b32 s{sT}, s{sFb}, 1")
    a(f"s_lshl_b32 s{sT+1}, s{sT}, 12")
    a(f"s_add_u32 s{sT+1}, s{sT+1}, s{sHb}")
    a(f"s_lshl_b32 s{sT+2}, s{sT}, 3")
    a(f"s_add_u32 s{sT+2}, s{sT+2}, s{sHb}")
    a(f"s_add_u32 s{sT+2}, s{sT+2}, {8*1024}")
    a(f"s_add_u32 s{sT+3}, s{sT+1}, {144*1024}")
    a(f"s_add_u32 s{sT+4}, s{sT+2}, {144*1024}")
    a(f"v_mov_b32 v{vT}, s{sA_}")
    a("s_nop 7")
    def gelu_tile(nt, mt, dst):
        T = WR
        lines = [[], []]
        for c in range(2):
            g0, g1 = acc(nt,0,mt) + 2*c, acc(nt,0,mt) + 2*c + 1
            u0, u1 = acc(nt,1,mt) + 2*c, acc(nt,1,mt) + 2*c + 1
            t0, t1 = T + c*8 + 4, T + c*8 + 5
            x0, x1, y0, y1 = g0, g1, u0, u1
            L = lines[c]
            L += [f"v_mul_f32 v{t0}, v{x0}, v{x0}", f"v_mul_f32 v{t1}, v{x1}, v{x1}",
                  f"v_fma_f32 v{t0}, v{t0}, s{sB_}, v{vT}", f"v_fma_f32 v{t1}, v{t1}, s{sB_}, v{vT}",
                  f"v_mul_f32 v{t0}, v{t0}, v{x0}", f"v_mul_f32 v{t1}, v{t1}, v{x1}",
                  f"v_exp_f32 v{t0}, v{t0}", f"v_exp_f32 v{t1}, v{t1}",
                  f"v_mul_f32 v{y0}, v{y0}, v{x0}", f"v_mul_f32 v{y1}, v{y1}, v{x1}",
                  f"v_add_f32 v{t0}, 1.0, v{t0}", f"v_add_f32 v{t1}, 1.0, v{t1}",
                  f"v_rcp_f32 v{t0}, v{t0}", f"v_rcp_f32 v{t1}, v{t1}",
                  f"v_mul_f32 v{t0}, v{t0}, v{y0}", f"v_mul_f32 v{t1}, v{t1}, v{y1}",
                  f"v_cvt_pk_bf16_f32 v{dst+c}, v{t0}, v{t1}"]
        i0 = i1 = 0
        while i0 < len(lines[0]) or i1 < len(lines[1]):
            for _ in range(2):
                if i0 < len(lines[0]): a(lines[0][i0]); i0 += 1
            for _ in range(2):
                if i1 < len(lines[1]): a(lines[1][i1]); i1 += 1
    k = 0
    for mt in range(2):
        for p in range(4):
            o = XS + (k % 12) * 4; k += 1
            gelu_tile(2*p, mt, o)
            gelu_tile(2*p+1, mt, o+2)
            a(f"buffer_store_dwordx4 {vr(o,4)}, v{vX0}, {sr(sH,4)}, s{sT+1+2*mt} offen offset:{p*1024}")
        o = XS + (k % 12) * 4; k += 1
        gelu_tile(8, mt, o)
        a(f"buffer_store_dwordx2 {vr(o,2)}, v{vX0}, {sr(sH,4)}, s{sT+2+2*mt} offen")
    if "pstamp" not in OPT: stamp(a, 3)
    if "stamp" in OPT: a("s_waitcnt vmcnt(0)")
    if "pstamp" not in OPT: stamp(a, 4)
    stamp(a, 6, True)
    stamp_dump(a, 7, 8, sWave, vT+4)
    a.lab(f"L_{name}_done")
    a("s_endpgm")
    return a.text(), kernel_desc(name, NV), f"; @launch kernel={name} grid=(256,1,1) block=(512,1,1) lds={NST*STG}"

def gen_k4v2(name="k4_kernel"):
    a = A(); a.stpol = os.environ.get("K4ST", "sc1")
    kernel_head(a, name)
    NST = 6; STG = 18432; RING = 6; PFD = 5; PF = RING - 1
    ROWB = 4608 if "m16" in OPT else 2304
    ACC = 4; XS = 76; WR = 124
    vWa, vWb = 148, 149
    vD = 150; vDm = 153
    vX0, vX1 = 156, 157
    vT = 160
    NV = 176
    def acc(nt, mt): return ACC + (nt*2+mt)*4
    sW, sX, sP = 12, 16, 20
    sWave, sKs, sMb, sNb = 28, 29, 30, 31
    sWb1, sXb, sPb = 32, 33, 34
    sM0 = 36
    sT = 40
    sWo = 52
    a("s_cmp_ge_u32 s2, 256")
    a(f"s_cbranch_scc1 L_{name}_done")
    stamp(a, 0); stamp(a, 5, True)
    a("s_load_dwordx2 s[4:5], s[0:1], 48")
    a("s_load_dwordx2 s[8:9], s[0:1], 72")
    a("v_lshrrev_b32 v1, 6, v0")
    a("v_and_b32 v0, 63, v0")
    a("s_nop 0")
    a(f"v_readfirstlane_b32 s{sWave}, v1")
    a(f"s_and_b32 s{sT}, s2, 7")
    a(f"s_lshr_b32 s{sT+1}, s2, 3")
    a(f"s_lshr_b32 s{sKs}, s{sT}, 1")
    a(f"s_and_b32 s{sNb}, s{sT+1}, 3")
    a(f"s_and_b32 s{sT}, s{sT}, 1")
    a(f"s_lshl_b32 s{sT}, s{sT}, 3")
    a(f"s_lshr_b32 s{sMb}, s{sT+1}, 2")
    a(f"s_add_u32 s{sMb}, s{sMb}, s{sT}")
    dma_slots_setup(a, sWave, sT, vT, vD, 1152, sM0, 0)
    a(f"s_cmp_eq_u32 s{sWave}, 0")
    a(f"s_cselect_b32 s{sT}, 0, {576*1152}")
    a(f"v_add_u32 v{vD+1}, s{sT}, v{vD+1}")
    a(f"v_add_u32 v{vD+2}, {576*1152}, v{vD+2}")
    a(f"s_mov_b32 s{sT}, {128*1152}")
    for k in range(3):
        a(f"v_cmp_lt_u32 vcc, 15, v{vT+8+k}")
        a(f"v_mov_b32 v{vT+1}, s{sT}")
        a("s_nop 0")
        a(f"v_cndmask_b32 v{vT+1}, 0, v{vT+1}, vcc")
        a(f"v_add_u32 v{vDm+k}, v{vD+k}, v{vT+1}")
    a(f"s_mul_i32 s{sWb1}, s{sKs}, {2*576*1152}")
    a(f"s_mul_i32 s{sT}, s{sNb}, 288")
    a(f"s_add_u32 s{sWb1}, s{sWb1}, s{sT}")
    a(f"s_lshr_b32 s{sT}, s{sWave}, 2")
    a(f"s_lshl_b32 s{sT+1}, s{sKs}, 1")
    a(f"s_add_u32 s{sT+1}, s{sT+1}, s{sT}")
    a(f"s_and_b32 s{sT+2}, s{sWave}, 3")
    a(f"s_lshl_b32 s{sXb}, s{sMb}, 3")
    a(f"s_lshl_b32 s{sT+3}, s{sT+2}, 1")
    a(f"s_add_u32 s{sXb}, s{sXb}, s{sT+3}")
    a(f"s_mov_b32 s{sT+4}, s{sXb}")
    a(f"s_mul_i32 s{sXb}, s{sXb}, 144")
    a(f"s_mul_i32 s{sT+3}, s{sT+1}, 18")
    a(f"s_add_u32 s{sXb}, s{sXb}, s{sT+3}")
    a(f"s_lshl_b32 s{sXb}, s{sXb}, 10")
    a(f"v_lshlrev_b32 v{vX0}, 4, v0")
    a(f"v_add_u32 v{vX0}, s{sXb}, v{vX0}")
    a(f"v_add_u32 v{vX1}, {144*1024}, v{vX0}")
    a(f"s_lshl_b32 s{sPb}, s{sKs}, 7")
    a(f"s_add_u32 s{sPb}, s{sPb}, s{sT+4}")
    a(f"s_add_u32 s{sPb}, s{sPb}, s{sT}")
    a(f"s_mul_i32 s{sPb}, s{sPb}, 36")
    a(f"s_mul_i32 s{sT+6}, s{sNb}, 9")
    a(f"s_add_u32 s{sPb}, s{sPb}, s{sT+6}")
    a(f"s_lshl_b32 s{sPb}, s{sPb}, 10")
    if "m16" in OPT:
        a(f"v_lshrrev_b32 v{vT+5}, 2, v0")
    else:
        a(f"v_lshrrev_b32 v{vT+5}, 5, v0")
        a(f"v_lshlrev_b32 v{vT+5}, 4, v{vT+5}")
        a(f"v_bfe_u32 v{vT+6}, v0, 2, 3")
        a(f"v_add_u32 v{vT+5}, v{vT+5}, v{vT+6}")
    a(f"v_mul_u32_u24 v{vT+5}, 288, v{vT+5}")
    a(f"v_and_b32 v{vT+6}, 3, v0")
    a(f"v_lshl_add_u32 v{vWa}, v{vT+6}, 3, v{vT+5}")
    a(f"s_mul_i32 s{sT+6}, s{sT}, 9216")
    a(f"v_add_u32 v{vWa}, s{sT+6}, v{vWa}")
    a(f"v_add_u32 v{vWb}, {3*STG}, v{vWa}")
    a("s_waitcnt lgkmcnt(0)")
    srd(a, sW, 4, 4608*576*2)
    srd(a, sX, 8, HH_SZ, HH_OFF)
    srd(a, sP, 8, P_SZ, P_OFF)
    a(f"s_cmp_ge_u32 s{sWave}, 2")
    a(f"s_cbranch_scc1 L_{name}_typeB")
    def fa_rel(i):
        q, ii = divmod(i, 9)
        if ii < 4: return 288*q + 32*ii
        if ii < 8: return 288*q + 144 + 32*(ii-4)
        return 288*q + 128
    def body(nd, tag):
        vm = VM(a)
        def load_groups(i):
            if i >= 18: return []
            st = i % NST
            gs = []
            vv = vDm if i % 9 == 8 else vD
            for k in range(nd):
                g = []
                if k == 0:
                    g.append(("s", f"s_add_u32 s{sWo}, s{sWb1}, {fa_rel(i)*1152}"))
                g.append(("s", f"s_add_u32 m0, s{sM0+k}, {st*STG}"))
                g.append(("s", "s_nop 0"))
                g.append((("W", i), f"buffer_load_dwordx4 v{vv+k}, {sr(sW,4)}, s{sWo} offen lds"))
                gs.append(g)
            xs = XS + (i % NST) * 8
            gs.append([("s", f"s_mov_b32 s{sWo+1}, {i*1024}"),
                       (("X", i), f"buffer_load_dwordx4 {vr(xs,4)}, v{vX0}, {sr(sX,4)}, s{sWo+1} offen")])
            gs.append([(("X", i), f"buffer_load_dwordx4 {vr(xs+4,4)}, v{vX1}, {sr(sX,4)}, s{sWo+1} offen")])
            return gs
        def emit_group(g):
            for tg, txt in g:
                if tg == "s": a(txt)
                else: vm.op(tg, txt)
        for i in range(2):
            for g in load_groups(i): emit_group(g)
        for i in range(0, 72, 2):
            a(f"v_mov_b64 {vr(ACC+i,2)}, 0")
        sched = {0: [2, 3], 1: [4, 5], 2: [6, 7]}
        def wread(gidx):
            i, nt = divmod(gidx, 9)
            if i >= 18: return
            st = i % NST; slot = gidx % RING
            base = vWa if st < 3 else vWb
            off = (st % 3) * STG + nt * 32
            a(f"ds_read_b64_tr_b16 {vr(WR+slot*4,2)}, v{base} offset:{off}")
            a(f"ds_read_b64_tr_b16 {vr(WR+slot*4+2,2)}, v{base} offset:{off+ROWB}")
        vm.wait(lambda t: t[1] <= 0)
        a("s_barrier")
        for f in range(PF): wread(f)
        stamp(a, 1)
        for i in range(18):
            lg = []
            for j in sched.get(i, [i + PFD]): lg += load_groups(j)
            vm.wait(lambda t: t[0] == "X" and t[1] <= i)
            gi = 0
            gpos = [(k * 9) // max(1, len(lg)) for k in range(len(lg))]
            for nt in range(9):
                g = i*9 + nt; slot = g % RING
                if i == 0 and nt == 9 - PF:
                    vm.wait(lambda t: t[0] == "W" and t[1] <= 1)
                    a("s_barrier")
                wread(g + PF)
                rem = min(PF, 18*9 - 1 - g)
                a(f"s_waitcnt lgkmcnt({2*rem})")
                xs = XS + (i % NST) * 8
                a(f"v_mfma_f32_16x16x32_bf16 {vr(acc(nt,0),4)}, {vr(WR+slot*4,4)}, {vr(xs,4)}, {vr(acc(nt,0),4)}")
                a(f"v_mfma_f32_16x16x32_bf16 {vr(acc(nt,1),4)}, {vr(WR+slot*4,4)}, {vr(xs+4,4)}, {vr(acc(nt,1),4)}")
                while gi < len(lg) and gpos[gi] <= nt:
                    emit_group(lg[gi]); gi += 1
            assert gi == len(lg)
            vm.wait(lambda t: t[0] == "W" and t[1] <= i + 2)
            a("s_barrier")
    body(3, "A")
    a(f"s_branch L_{name}_epi")
    a.lab(f"L_{name}_typeB")
    body(2, "B")
    a.lab(f"L_{name}_epi")
    stamp(a, 2)
    a(f"s_lshr_b32 s{sT}, s{sWave}, 2")
    a(f"v_lshlrev_b32 v{vT}, 4, v0")
    a(f"s_mul_i32 s{sT+1}, s{sWave}, 9216")
    a(f"v_add_u32 v{vT+1}, s{sT+1}, v{vT}")
    a(f"s_xor_b32 s{sT+2}, s{sWave}, 4")
    a(f"s_mul_i32 s{sT+2}, s{sT+2}, 9216")
    a(f"v_add_u32 v{vT+2}, s{sT+2}, v{vT}")
    a(f"s_cmp_eq_u32 s{sT}, 0")
    a("s_nop 4")
    a(f"s_cbranch_scc0 L_{name}_kh1")
    for kh in range(2):
        if kh == 1: a.lab(f"L_{name}_kh1")
        for nt in range(9):
            a(f"ds_write_b128 v{vT+1}, {vr(acc(nt,1-kh),4)} offset:{nt*1024}")
        a("s_waitcnt lgkmcnt(0)")
        a("s_barrier")
        for nt in range(9):
            a(f"ds_read_b128 {vr(XS+nt*4,4)}, v{vT+2} offset:{nt*1024}")
        for nt in range(9):
            a(f"s_waitcnt lgkmcnt({8-nt})")
            for r in range(4):
                a(f"v_add_f32 v{XS+nt*4+r}, v{XS+nt*4+r}, v{acc(nt,kh)+r}")
            if nt in (4, 8): a(f"s_add_u32 s{sPb}, s{sPb}, 4096")
            a(f"buffer_store_dwordx4 {vr(XS+nt*4,4)}, v{vT}, {sr(sP,4)}, s{sPb} offen offset:{(nt%4)*1024}")
        stamp(a, 3)
        if "stamp" in OPT: a("s_waitcnt vmcnt(0)")
        stamp(a, 4); stamp(a, 6, True)
        stamp_dump(a, 7, 8, sWave, vT+4, 1)
        a("s_endpgm")
    a.lab(f"L_{name}_done")
    a("s_endpgm")
    return a.text(), kernel_desc(name, NV), f"; @launch kernel={name} grid=(256,1,1) block=(512,1,1) lds={NST*STG}"


def gen_k45(name="k4_kernel"):
    a = A(); a.stpol = os.environ.get("K4ST", "sc1")
    kernel_head(a, name)
    NST = 6; STG = 18432; RING = 6; PFD = 5; PF = RING - 1
    ROWB = 4608 if "m16" in OPT else 2304
    ACC = 4; XS = 76; WR = 124
    vWa, vWb = 148, 149
    vD = 150; vDm = 153
    vX0, vX1 = 156, 157
    vT = 160
    NV = 176
    def acc(nt, mt): return ACC + (nt*2+mt)*4
    sW, sX, sP = 12, 16, 20
    sWave, sKs, sMb, sNb = 28, 29, 30, 31
    sWb1, sXb, sPb = 32, 33, 34
    sM0 = 36
    sT = 40
    sWo = 52
    NC = 144
    a(f"s_cmp_ge_u32 s2, {256+NC}")
    a(f"s_cbranch_scc1 L_{name}_done")
    a("s_cmp_ge_u32 s2, 256")
    a(f"s_cbranch_scc1 L_{name}_cons")
    stamp(a, 0); stamp(a, 5, True)
    a("s_load_dwordx2 s[4:5], s[0:1], 48")
    a("s_load_dwordx2 s[8:9], s[0:1], 72")
    a("s_load_dwordx2 s[10:11], s[0:1], 64")
    a("v_lshrrev_b32 v1, 6, v0")
    a("v_and_b32 v0, 63, v0")
    a("s_nop 0")
    a(f"v_readfirstlane_b32 s{sWave}, v1")
    a(f"s_and_b32 s{sT}, s2, 7")
    a(f"s_lshr_b32 s{sT+1}, s2, 3")
    a(f"s_lshr_b32 s{sKs}, s{sT}, 1")
    a(f"s_and_b32 s{sNb}, s{sT+1}, 3")
    a(f"s_and_b32 s{sT}, s{sT}, 1")
    a(f"s_lshl_b32 s{sT}, s{sT}, 3")
    a(f"s_lshr_b32 s{sMb}, s{sT+1}, 2")
    a(f"s_add_u32 s{sMb}, s{sMb}, s{sT}")
    dma_slots_setup(a, sWave, sT, vT, vD, 1152, sM0, 0)
    a(f"s_cmp_eq_u32 s{sWave}, 0")
    a(f"s_cselect_b32 s{sT}, 0, {576*1152}")
    a(f"v_add_u32 v{vD+1}, s{sT}, v{vD+1}")
    a(f"v_add_u32 v{vD+2}, {576*1152}, v{vD+2}")
    a(f"s_mov_b32 s{sT}, {128*1152}")
    for k in range(3):
        a(f"v_cmp_lt_u32 vcc, 15, v{vT+8+k}")
        a(f"v_mov_b32 v{vT+1}, s{sT}")
        a("s_nop 0")
        a(f"v_cndmask_b32 v{vT+1}, 0, v{vT+1}, vcc")
        a(f"v_add_u32 v{vDm+k}, v{vD+k}, v{vT+1}")
    a(f"s_mul_i32 s{sWb1}, s{sKs}, {2*576*1152}")
    a(f"s_mul_i32 s{sT}, s{sNb}, 288")
    a(f"s_add_u32 s{sWb1}, s{sWb1}, s{sT}")
    a(f"s_lshr_b32 s{sT}, s{sWave}, 2")
    a(f"s_lshl_b32 s{sT+1}, s{sKs}, 1")
    a(f"s_add_u32 s{sT+1}, s{sT+1}, s{sT}")
    a(f"s_and_b32 s{sT+2}, s{sWave}, 3")
    a(f"s_lshl_b32 s{sXb}, s{sMb}, 3")
    a(f"s_lshl_b32 s{sT+3}, s{sT+2}, 1")
    a(f"s_add_u32 s{sXb}, s{sXb}, s{sT+3}")
    a(f"s_mov_b32 s{sT+4}, s{sXb}")
    a(f"s_mul_i32 s{sXb}, s{sXb}, 144")
    a(f"s_mul_i32 s{sT+3}, s{sT+1}, 18")
    a(f"s_add_u32 s{sXb}, s{sXb}, s{sT+3}")
    a(f"s_lshl_b32 s{sXb}, s{sXb}, 10")
    a(f"v_lshlrev_b32 v{vX0}, 4, v0")
    a(f"v_add_u32 v{vX0}, s{sXb}, v{vX0}")
    a(f"v_add_u32 v{vX1}, {144*1024}, v{vX0}")
    a(f"s_lshl_b32 s{sPb}, s{sKs}, 7")
    a(f"s_add_u32 s{sPb}, s{sPb}, s{sT+4}")
    a(f"s_add_u32 s{sPb}, s{sPb}, s{sT}")
    a(f"s_mul_i32 s{sPb}, s{sPb}, 36")
    a(f"s_mul_i32 s{sT+6}, s{sNb}, 9")
    a(f"s_add_u32 s{sPb}, s{sPb}, s{sT+6}")
    a(f"s_lshl_b32 s{sPb}, s{sPb}, 10")
    if "m16" in OPT:
        a(f"v_lshrrev_b32 v{vT+5}, 2, v0")
    else:
        a(f"v_lshrrev_b32 v{vT+5}, 5, v0")
        a(f"v_lshlrev_b32 v{vT+5}, 4, v{vT+5}")
        a(f"v_bfe_u32 v{vT+6}, v0, 2, 3")
        a(f"v_add_u32 v{vT+5}, v{vT+5}, v{vT+6}")
    a(f"v_mul_u32_u24 v{vT+5}, 288, v{vT+5}")
    a(f"v_and_b32 v{vT+6}, 3, v0")
    a(f"v_lshl_add_u32 v{vWa}, v{vT+6}, 3, v{vT+5}")
    a(f"s_mul_i32 s{sT+6}, s{sT}, 9216")
    a(f"v_add_u32 v{vWa}, s{sT+6}, v{vWa}")
    a(f"v_add_u32 v{vWb}, {3*STG}, v{vWa}")
    a("s_waitcnt lgkmcnt(0)")
    srd(a, sW, 4, 4608*576*2)
    srd(a, sX, 8, HH_SZ, HH_OFF)
    srd(a, sP, 8, P_SZ, P_OFF)
    a(f"s_cmp_ge_u32 s{sWave}, 2")
    a(f"s_cbranch_scc1 L_{name}_typeB")
    def fa_rel(i):
        q, ii = divmod(i, 9)
        if ii < 4: return 288*q + 32*ii
        if ii < 8: return 288*q + 144 + 32*(ii-4)
        return 288*q + 128
    def body(nd, tag):
        vm = VM(a)
        def load_groups(i):
            if i >= 18: return []
            st = i % NST
            gs = []
            vv = vDm if i % 9 == 8 else vD
            for k in range(nd):
                g = []
                if k == 0:
                    g.append(("s", f"s_add_u32 s{sWo}, s{sWb1}, {fa_rel(i)*1152}"))
                g.append(("s", f"s_add_u32 m0, s{sM0+k}, {st*STG}"))
                g.append(("s", "s_nop 0"))
                g.append((("W", i), f"buffer_load_dwordx4 v{vv+k}, {sr(sW,4)}, s{sWo} offen lds"))
                gs.append(g)
            xs = XS + (i % NST) * 8
            gs.append([("s", f"s_mov_b32 s{sWo+1}, {i*1024}"),
                       (("X", i), f"buffer_load_dwordx4 {vr(xs,4)}, v{vX0}, {sr(sX,4)}, s{sWo+1} offen")])
            gs.append([(("X", i), f"buffer_load_dwordx4 {vr(xs+4,4)}, v{vX1}, {sr(sX,4)}, s{sWo+1} offen")])
            return gs
        def emit_group(g):
            for tg, txt in g:
                if tg == "s": a(txt)
                else: vm.op(tg, txt)
        for i in range(2):
            for g in load_groups(i): emit_group(g)
        for i in range(0, 72, 2):
            a(f"v_mov_b64 {vr(ACC+i,2)}, 0")
        sched = {0: [2, 3], 1: [4, 5], 2: [6, 7]}
        def wread(gidx):
            i, nt = divmod(gidx, 9)
            if i >= 18: return
            st = i % NST; slot = gidx % RING
            base = vWa if st < 3 else vWb
            off = (st % 3) * STG + nt * 32
            a(f"ds_read_b64_tr_b16 {vr(WR+slot*4,2)}, v{base} offset:{off}")
            a(f"ds_read_b64_tr_b16 {vr(WR+slot*4+2,2)}, v{base} offset:{off+ROWB}")
        vm.wait(lambda t: t[1] <= 0)
        a("s_barrier")
        for f in range(PF): wread(f)
        stamp(a, 1)
        for i in range(18):
            lg = []
            for j in sched.get(i, [i + PFD]): lg += load_groups(j)
            vm.wait(lambda t: t[0] == "X" and t[1] <= i)
            gi = 0
            gpos = [(k * 9) // max(1, len(lg)) for k in range(len(lg))]
            for nt in range(9):
                g = i*9 + nt; slot = g % RING
                if i == 0 and nt == 9 - PF:
                    vm.wait(lambda t: t[0] == "W" and t[1] <= 1)
                    a("s_barrier")
                wread(g + PF)
                rem = min(PF, 18*9 - 1 - g)
                a(f"s_waitcnt lgkmcnt({2*rem})")
                xs = XS + (i % NST) * 8
                a(f"v_mfma_f32_16x16x32_bf16 {vr(acc(nt,0),4)}, {vr(WR+slot*4,4)}, {vr(xs,4)}, {vr(acc(nt,0),4)}")
                a(f"v_mfma_f32_16x16x32_bf16 {vr(acc(nt,1),4)}, {vr(WR+slot*4,4)}, {vr(xs+4,4)}, {vr(acc(nt,1),4)}")
                while gi < len(lg) and gpos[gi] <= nt:
                    emit_group(lg[gi]); gi += 1
            assert gi == len(lg)
            vm.wait(lambda t: t[0] == "W" and t[1] <= i + 2)
            a("s_barrier")
    body(3, "A")
    a(f"s_branch L_{name}_epi")
    a.lab(f"L_{name}_typeB")
    body(2, "B")
    a.lab(f"L_{name}_epi")
    stamp(a, 2)
    a(f"s_lshr_b32 s{sT}, s{sWave}, 2")
    a(f"v_lshlrev_b32 v{vT}, 4, v0")
    a(f"s_mul_i32 s{sT+1}, s{sWave}, 9216")
    a(f"v_add_u32 v{vT+1}, s{sT+1}, v{vT}")
    a(f"s_xor_b32 s{sT+2}, s{sWave}, 4")
    a(f"s_mul_i32 s{sT+2}, s{sT+2}, 9216")
    a(f"v_add_u32 v{vT+2}, s{sT+2}, v{vT}")
    a(f"s_cmp_eq_u32 s{sT}, 0")
    a("s_nop 4")
    a(f"s_cbranch_scc0 L_{name}_kh1")
    for kh in range(2):
        if kh == 1: a.lab(f"L_{name}_kh1")
        for nt in range(9):
            a(f"ds_write_b128 v{vT+1}, {vr(acc(nt,1-kh),4)} offset:{nt*1024}")
        a("s_waitcnt lgkmcnt(0)")
        a("s_barrier")
        for nt in range(9):
            a(f"ds_read_b128 {vr(XS+nt*4,4)}, v{vT+2} offset:{nt*1024}")
        for nt in range(9):
            a(f"s_waitcnt lgkmcnt({8-nt})")
            for r in range(4):
                a(f"v_add_f32 v{XS+nt*4+r}, v{XS+nt*4+r}, v{acc(nt,kh)+r}")
            if nt in (4, 8): a(f"s_add_u32 s{sPb}, s{sPb}, 4096")
            a(f"buffer_store_dwordx4 {vr(XS+nt*4,4)}, v{vT}, {sr(sP,4)}, s{sPb} offen offset:{(nt%4)*1024}")
        stamp(a, 3)
        a("s_waitcnt vmcnt(0)")
        a("s_barrier")
        stamp(a, 4); stamp(a, 6, True)
        stamp_dump(a, 7, 8, sWave, vT+4, 1)
        if kh == 0:
            a(f"s_cmp_lg_u32 s{sWave}, 0")
            a(f"s_cbranch_scc1 L_{name}_done")
            srd(a, 24, 10, 256)
            a(f"s_lshl_b32 s{sT}, s{sMb}, 2")
            a(f"v_mov_b32 v{vT}, s{sT}")
            a(f"v_mov_b32 v{vT+1}, 1")
            a("s_mov_b64 exec, 1")
            a(f"buffer_atomic_add v{vT+1}, v{vT}, s[24:27], 0 offen sc1")
        a("s_endpgm")
    a.lab(f"L_{name}_cons")
    a("s_load_dwordx2 s[4:5], s[0:1], 56")
    a("s_load_dwordx4 s[8:11], s[0:1], 64")
    a("v_lshrrev_b32 v1, 6, v0")
    a("v_and_b32 v0, 63, v0")
    a("s_sub_u32 s28, s2, 256")
    a("v_readfirstlane_b32 s29, v1")
    a("s_mul_i32 s30, s28, 7282")
    a("s_lshr_b32 s30, s30, 16")
    a("s_lshl_b32 s31, s28, 4")
    a("s_lshl_b32 s32, s29, 1")
    a("s_add_u32 s31, s31, s32")
    a("s_waitcnt lgkmcnt(0)")
    srd(a, 12, 10, H1_SZ, H1_OFF)
    srd(a, 16, 10, P_SZ, P_OFF)
    srd(a, 20, 4, 2048*576*2)
    srd(a, 24, 8, 256)
    a("v_lshlrev_b32 v1, 4, v0")
    a("s_lshl_b32 s32, s31, 10")
    a("buffer_load_dwordx4 v[4:7], v1, s[12:15], s32 offen")
    a("buffer_load_dwordx4 v[44:47], v1, s[12:15], s32 offen offset:1024")
    a("s_cmp_lg_u32 s29, 0")
    a(f"s_cbranch_scc1 L_{name}_wait")
    a("s_lshl_b32 s33, s30, 2")
    a("v_mov_b32 v2, s33")
    a.lab(f"L_{name}_poll")
    a("buffer_load_dword v3, v2, s[24:27], 0 offen sc1")
    a("s_waitcnt vmcnt(0)")
    a("v_readfirstlane_b32 s34, v3")
    a("s_cmp_ge_u32 s34, 16")
    a(f"s_cbranch_scc1 L_{name}_wait")
    a("s_sleep 2")
    a(f"s_branch L_{name}_poll")
    a.lab(f"L_{name}_wait")
    a("s_barrier")
    a("s_lshl_b32 s33, s31, 11")
    for t in range(2):
        B = 8 + t*40
        for k_ in range(4):
            a.l.append(f"    buffer_load_dwordx4 v[{B+k_*8}:{B+3+k_*8}], v1, s[16:19], s33 offen offset:{t*2048} sc1")
            a.l.append(f"    buffer_load_dwordx4 v[{B+4+k_*8}:{B+7+k_*8}], v1, s[16:19], s33 offen offset:{t*2048+1024} sc1")
            a(f"s_add_u32 s33, s33, {128*36*1024}")
        a(f"s_sub_u32 s33, s33, {4*128*36*1024}")
    for t in range(2):
        B = 8 + t*40; Hh = 4 + t*40
        a(f"s_add_u32 s35, s31, {t}")
        a("s_mul_i32 s36, s35, 3641")
        a("s_lshr_b32 s36, s36, 16")
        a("s_mul_i32 s37, s36, 18")
        a("s_sub_u32 s37, s35, s37")
        a("v_and_b32 v2, 15, v0")
        a("s_lshl_b32 s38, s36, 4")
        a("v_add_u32 v2, s38, v2")
        a("v_mul_u32_u24 v2, 1152, v2")
        a("v_lshrrev_b32 v3, 4, v0")
        a("v_lshl_add_u32 v2, v3, 3, v2")
        a("s_lshl_b32 s38, s37, 6")
        a(f"s_waitcnt vmcnt({8 if t == 0 else 2})")
        for i in range(8):
            a(f"v_add_f32 v{B+i}, v{B+i}, v{B+8+i}")
            a(f"v_add_f32 v{B+16+i}, v{B+16+i}, v{B+24+i}")
        for i in range(8):
            a(f"v_add_f32 v{B+i}, v{B+i}, v{B+16+i}")
        for p in range(4):
            a(f"v_cvt_pk_bf16_f32 v{B+8+p}, v{B+2*p}, v{B+1+2*p}")
        for p in range(4):
            a(f"v_lshlrev_b32 v{B+16+2*p}, 16, v{B+8+p}")
            a(f"v_and_b32 v{B+17+2*p}, 0xffff0000, v{B+8+p}")
            a(f"v_lshlrev_b32 v{B+24+2*p}, 16, v{Hh+p}")
            a(f"v_and_b32 v{B+25+2*p}, 0xffff0000, v{Hh+p}")
        for i in range(8):
            a(f"v_add_f32 v{B+16+i}, v{B+16+i}, v{B+24+i}")
        for p in range(4):
            a(f"v_cvt_pk_bf16_f32 v{B+8+p}, v{B+16+2*p}, v{B+17+2*p}")
        a(f"buffer_store_dwordx2 v[{B+8}:{B+9}], v2, s[20:23], s38 offen")
        a(f"buffer_store_dwordx2 v[{B+10}:{B+11}], v2, s[20:23], s38 offen offset:32")
    a.lab(f"L_{name}_done")
    a("s_endpgm")
    return a.text(), kernel_desc(name, NV), f"; @launch kernel={name} grid=({256+NC},1,1) block=(512,1,1) lds={NST*STG}"


def gen_k1v3(name="k1_kernel"):
    a = A(); vm = VM(a)
    kernel_head(a, name)
    XT = 0
    WB = 92160; STG = 16384; NST = 4; PITCH = 480
    QP = 624
    ACC = 4
    XF = 44
    WF = 84
    RAW = 100
    vD0, vD1 = 150, 151
    vWa, vXa, vXb = 152, 153, 154
    vNM, vR, vLW = 155, 156, 157
    vT = 160
    NV = 184
    sW, sXs, sO = 12, 16, 20
    sWave, sRb, sHg, sT = 28, 29, 30, 36
    sWo, sM0b = 31, 32
    a("s_cmp_ge_u32 s2, 256")
    a(f"s_cbranch_scc1 L_{name}_done")
    stamp(a, 0); stamp(a, 5, True)
    a("s_load_dwordx4 s[4:7], s[0:1], 0")
    a("s_load_dwordx2 s[8:9], s[0:1], 72")
    a("v_lshrrev_b32 v1, 6, v0")
    a("v_mov_b32 v3, v0")
    a("v_and_b32 v0, 63, v0")
    a(f"v_readfirstlane_b32 s{sWave}, v1")
    a(f"s_lshr_b32 s{sT}, s2, 3")
    a(f"s_and_b32 s{sHg}, s{sT}, 3")
    a(f"s_and_b32 s{sT+1}, s2, 1")
    a(f"s_lshl_b32 s{sT+1}, s{sT+1}, 2")
    a(f"s_add_u32 s{sHg}, s{sHg}, s{sT+1}")
    a(f"s_lshr_b32 s{sRb}, s{sT}, 2")
    a(f"s_bfe_u32 s{sT+1}, s2, 0x20001")
    a(f"s_lshl_b32 s{sT+1}, s{sT+1}, 3")
    a(f"s_add_u32 s{sRb}, s{sRb}, s{sT+1}")
    a(f"v_min_u32 v{vT+4}, 59, v0")
    a(f"v_mul_u32_u24 v{vT}, 10923, v{vT+4}")
    a(f"v_lshrrev_b32 v{vT}, 16, v{vT}")
    a(f"v_mul_u32_u24 v{vT+1}, 6, v{vT}")
    a(f"v_sub_u32 v{vT+1}, v{vT+4}, v{vT+1}")
    a(f"s_mul_i32 s{sT}, s{sWave}, 10")
    a(f"v_add_u32 v{vT+2}, s{sT}, v{vT}")
    a(f"s_lshl_b32 s{sT+1}, s{sRb}, 6")
    a(f"s_sub_u32 s{sT+1}, s{sT+1}, 16")
    a(f"v_add_u32 v{vT+3}, s{sT+1}, v{vT+2}")
    a(f"s_movk_i32 s{sT+2}, 1152")
    a(f"v_mul_lo_u32 v{vT+3}, v{vT+3}, s{sT+2}")
    a(f"v_lshl_add_u32 v{vT+3}, v{vT+1}, 4, v{vT+3}")
    a("s_waitcnt lgkmcnt(0)")
    srd(a, sXs, 4, 2048*576*2)
    for i in range(12):
        vm.op(("x", i), f"buffer_load_dwordx4 {vr(RAW+i*4,4)}, v{vT+3}, {sr(sXs,4)}, 0 offen offset:{i*96}")
    srd(a, sW, 6, 576*1728*2)
    srd(a, sO, 8, O_SZ, O_OFF)
    a(f"s_lshl_b32 s{sT}, s{sWave}, 7")
    a(f"s_mul_i32 s{sT+1}, s{sHg}, 144")
    a(f"s_mov_b32 s{sT+2}, 0x40000000")
    for t, vd in enumerate((vD0, vD1)):
        a(f"v_add_u32 v{vT+4}, s{sT}, v0")
        if t: a(f"v_add_u32 v{vT+4}, 64, v{vT+4}")
        a(f"v_mul_u32_u24 v{vT+5}, 2185, v{vT+4}")
        a(f"v_lshrrev_b32 v{vT+5}, 16, v{vT+5}")
        a(f"v_mul_u32_u24 v{vT+6}, 30, v{vT+5}")
        a(f"v_sub_u32 v{vT+6}, v{vT+4}, v{vT+6}")
        a(f"v_mul_u32_u24 v{vT+7}, 7282, v{vT+6}")
        a(f"v_lshrrev_b32 v{vT+7}, 16, v{vT+7}")
        a(f"v_mul_u32_u24 v{vT+8}, 9, v{vT+7}")
        a(f"v_sub_u32 v{vT+8}, v{vT+6}, v{vT+8}")
        a(f"v_mul_u32_u24 v{vT+7}, 1152, v{vT+7}")
        a(f"v_lshl_add_u32 v{vT+7}, v{vT+8}, 4, v{vT+7}")
        a(f"v_and_b32 v{vT+8}, 4, v{vT+5}")
        a(f"v_lshlrev_b32 v{vT+8}, 1, v{vT+8}")
        a(f"v_and_b32 v{vT+9}, 8, v{vT+5}")
        a(f"v_lshrrev_b32 v{vT+9}, 1, v{vT+9}")
        a(f"v_and_b32 v{vT+10}, 0x13, v{vT+5}")
        a(f"v_or3_b32 v{vT+8}, v{vT+8}, v{vT+9}, v{vT+10}")
        a(f"v_mul_u32_u24 v{vT+8}, 3456, v{vT+8}")
        a(f"v_add3_u32 v{vT+7}, v{vT+7}, v{vT+8}, s{sT+1}")
        a(f"v_cmp_gt_u32 vcc, 27, v{vT+6}")
        a(f"v_cmp_gt_u32 s[{sT+4}:{sT+5}], 32, v{vT+5}")
        a(f"s_and_b64 vcc, vcc, s[{sT+4}:{sT+5}]")
        a(f"v_mov_b32 v{vT+8}, s{sT+2}")
        a("s_nop 1")
        a(f"v_cndmask_b32 v{vd}, v{vT+8}, v{vT+7}, vcc")
    a(f"s_lshl_b32 s{sM0b}, s{sWave}, 11")
    a(f"s_add_u32 s{sM0b}, s{sM0b}, {WB}")
    def wdma(i):
        if i >= 18: return
        st = i % NST
        a(f"s_mov_b32 s{sWo}, {i*32*3456}")
        for t, vd in enumerate((vD0, vD1)):
            a(f"s_add_u32 m0, s{sM0b}, {st*STG + t*1024}")
            a("s_nop 0")
            vm.op(("W", i), f"buffer_load_dwordx4 v{vd}, {sr(sW,4)}, s{sWo} offen lds")
    for i in range(2): wdma(i)
    if "k1pf" in OPT:
        a(f"s_and_b32 s{sT+3}, s{sRb}, 7")
        a(f"s_mul_i32 s{sT+3}, s{sT+3}, {72*3456}")
        a(f"s_add_u32 s{sT+3}, s{sT+3}, s{sT+1}")
        for t in range(2):
            a(f"v_add_u32 v{vT+4}, s{sT}, v0")
            if t: a(f"v_add_u32 v{vT+4}, 64, v{vT+4}")
            a(f"v_mul_u32_u24 v{vT+5}, 7282, v{vT+4}")
            a(f"v_lshrrev_b32 v{vT+5}, 16, v{vT+5}")
            a(f"v_mul_u32_u24 v{vT+6}, 9, v{vT+5}")
            a(f"v_sub_u32 v{vT+6}, v{vT+4}, v{vT+6}")
            a(f"v_mul_u32_u24 v{vT+7}, 21846, v{vT+6}")
            a(f"v_lshrrev_b32 v{vT+7}, 16, v{vT+7}")
            a(f"v_mul_u32_u24 v{vT+8}, 3, v{vT+7}")
            a(f"v_sub_u32 v{vT+8}, v{vT+6}, v{vT+8}")
            a(f"v_mul_u32_u24 v{vT+8}, 70, v{vT+8}")
            a(f"v_and_b32 v{vT+8}, 0xfc, v{vT+8}")
            a(f"v_mul_u32_u24 v{vT+5}, 3456, v{vT+5}")
            a(f"v_mad_u32_u24 v{vT+5}, v{vT+7}, 1152, v{vT+5}") if False else None
            a(f"v_mul_u32_u24 v{vT+7}, 1152, v{vT+7}")
            a(f"v_add3_u32 v{vT+5}, v{vT+5}, v{vT+7}, v{vT+8}")
            a(f"v_cmp_gt_u32 vcc, 648, v{vT+4}")
            a(f"v_mov_b32 v{vT+8}, s{sT+2}")
            a("s_nop 1")
            a(f"v_cndmask_b32 v{vT+5}, v{vT+8}, v{vT+5}, vcc")
            vm.op(("P", t), f"buffer_load_dword v{vT+18+t}, v{vT+5}, {sr(sW,4)}, s{sT+3} offen")
    ONES = sT+8
    a(f"s_mov_b32 s{ONES}, 0x3f803f80")
    S, Q, S2, Q2 = vT+4, vT+5, vT+6, vT+7
    B3, B1, B2 = vT+8, vT+9, vT+10
    for d_, vb in ((3, B3), (1, B1), (2, B2)):
        a(f"v_add_u32 v{vb}, {d_}, v{vT+1}")
        a(f"v_subrev_u32 v{vT+11}, 6, v{vb}")
        a(f"v_min_u32 v{vb}, v{vb}, v{vT+11}")
        a(f"v_mad_u32_u24 v{vb}, v{vT}, 6, v{vb}")
        a(f"v_lshlrev_b32 v{vb}, 2, v{vb}")
    a(f"v_lshrrev_b32 v{vT+11}, 4, v{vT+2}")
    a(f"v_mul_u32_u24 v{vT+11}, 18432, v{vT+11}")
    a(f"v_and_b32 v{vT+12}, 15, v{vT+2}")
    a(f"v_lshl_add_u32 v{vT+11}, v{vT+12}, 4, v{vT+11}")
    a(f"v_lshl_add_u32 v{vLW}, v{vT+1}, 8, v{vT+11}")
    a(f"v_lshrrev_b32 v{vT+11}, 5, v0")
    a(f"v_lshlrev_b32 v{vT+11}, 4, v{vT+11}")
    a(f"v_bfe_u32 v{vT+12}, v0, 2, 3")
    a(f"v_add_u32 v{vT+11}, v{vT+11}, v{vT+12}")
    a(f"v_mul_u32_u24 v{vT+11}, {PITCH}, v{vT+11}")
    a(f"v_and_b32 v{vT+12}, 3, v0")
    a(f"v_lshl_add_u32 v{vWa}, v{vT+12}, 3, v{vT+11}")
    a(f"s_lshl_b32 s{sT}, s{sWave}, 6")
    a(f"s_add_u32 s{sT}, s{sT}, {WB}")
    a(f"v_add_u32 v{vWa}, s{sT}, v{vWa}")
    a(f"v_lshlrev_b32 v{vXa}, 4, v0")
    a(f"v_add_u32 v{vXb}, 65536, v{vXa}")
    for r in (S, Q, S2, Q2): a(f"v_mov_b32 v{r}, 0")
    for i in range(12):
        vm.wait(lambda t: t[0] == "x" and t[1] <= i)
        if i == 11 and "astamp" not in OPT: stamp(a, 1)
        for d_ in range(4):
            x = RAW + i*4 + d_
            s_, q_ = (S, Q) if d_ % 2 == 0 else (S2, Q2)
            a(f"v_dot2_f32_bf16 v{s_}, v{x}, s{ONES}, v{s_}")
            a(f"v_dot2_f32_bf16 v{q_}, v{x}, v{x}, v{q_}")
    wdma(2); wdma(3)
    a(f"v_add_f32 v{S}, v{S}, v{S2}")
    a(f"v_add_f32 v{Q}, v{Q}, v{Q2}")
    a(f"ds_bpermute_b32 v{S2}, v{B3}, v{S}")
    a(f"ds_bpermute_b32 v{Q2}, v{B3}, v{Q}")
    a("s_waitcnt lgkmcnt(0)")
    a(f"v_add_f32 v{S}, v{S}, v{S2}")
    a(f"v_add_f32 v{Q}, v{Q}, v{Q2}")
    a(f"ds_bpermute_b32 v{S2}, v{B1}, v{S}")
    a(f"ds_bpermute_b32 v{Q2}, v{B1}, v{Q}")
    a(f"ds_bpermute_b32 v{vT+11}, v{B2}, v{S}")
    a(f"ds_bpermute_b32 v{vT+12}, v{B2}, v{Q}")
    a("s_waitcnt lgkmcnt(0)")
    a(f"v_add3_u32 v{vT+13}, 0, 0, 0") if False else None
    a(f"v_add_f32 v{S}, v{S}, v{S2}")
    a(f"v_add_f32 v{Q}, v{Q}, v{Q2}")
    a(f"v_add_f32 v{S}, v{S}, v{vT+11}")
    a(f"v_add_f32 v{Q}, v{Q}, v{vT+12}")
    a(f"v_mul_f32 v{S}, {f32(1.0/576.0)}, v{S}")
    a(f"v_mul_f32 v{Q}, {f32(1.0/576.0)}, v{Q}")
    a(f"v_fma_f32 v{Q}, -v{S}, v{S}, v{Q}")
    a(f"v_max_f32 v{Q}, 0, v{Q}")
    round_bf16(a, vNM, S)
    round_bf16(a, Q, Q)
    a(f"v_add_f32 v{Q}, {f32(1e-5)}, v{Q}")
    round_bf16(a, Q, Q)
    a(f"v_sqrt_f32 v{Q}, v{Q}")
    a("s_nop 0")
    round_bf16(a, Q, Q)
    a(f"v_rcp_f32 v{vR}, v{Q}")
    a("s_nop 0")
    def norm_group(i):
        chains = []
        for d_ in range(4):
            x = RAW + i*4 + d_
            t = vT + 12 + d_ * 2
            chains.append([f"v_lshlrev_b32 v{t}, 16, v{x}", f"v_and_b32 v{t+1}, 0xffff0000, v{x}",
                    f"v_sub_f32 v{t}, v{t}, v{vNM}", f"v_sub_f32 v{t+1}, v{t+1}, v{vNM}",
                    f"v_cvt_pk_bf16_f32 v{t}, v{t}, v{t+1}",
                    f"v_and_b32 v{t+1}, 0xffff0000, v{t}", f"v_lshlrev_b32 v{t}, 16, v{t}",
                    f"v_mul_f32 v{t}, v{t}, v{vR}", f"v_mul_f32 v{t+1}, v{t+1}, v{vR}",
                    f"v_cvt_pk_bf16_f32 v{x}, v{t}, v{t+1}"])
        ops = []
        for stage in ((0, 1), (2, 3), (4,), (5, 6), (7, 8), (9,)):
            for c in chains:
                for j in stage: ops.append(c[j])
        ops.append(f"ds_write_b128 v{vLW}, {vr(RAW+i*4,4)} offset:{XT + i*6*256}")
        return ops
    gdone = 12
    for g_ in range(12):
        for op in norm_group(g_): a(op)
    if "astamp" not in OPT: stamp(a, 2)
    vm.wait(lambda t: t[0] == "W" and t[1] <= 0)
    a("s_waitcnt lgkmcnt(0)")
    a("s_barrier")
    if "astamp" not in OPT: stamp(a, 3)
    def reads(i):
        b = i % 2; st = i % NST
        for n in range(2):
            a(f"ds_read_b64_tr_b16 {vr(WF+b*8+n*4,2)}, v{vWa} offset:{st*STG + n*32}")
            a(f"ds_read_b64_tr_b16 {vr(WF+b*8+n*4+2,2)}, v{vWa} offset:{st*STG + n*32 + 8*PITCH}")
        for mt in range(5):
            off = (mt*18 + i)*1024
            if off < 65536:
                a(f"ds_read_b128 {vr(XF+b*20+mt*4,4)}, v{vXa} offset:{off}")
            else:
                a(f"ds_read_b128 {vr(XF+b*20+mt*4,4)}, v{vXb} offset:{off-65536}")
    for i in range(18):
        reads(i)
        if i >= 1: wdma(i+3)
        b = i % 2
        need = min(11, (4*(i+1)+3)//6)
        nops = []
        while gdone <= need:
            nops += norm_group(gdone); gdone += 1
        if "k1nonorm" in OPT: nops = []
        ni = 0
        for _ in range(10):
            if ni < len(nops) - 1: a(nops[ni]); ni += 1
        for mt in range(5):
            a(f"s_waitcnt lgkmcnt({4-mt})")
            for n in range(2):
                c = vr(ACC+(mt*2+n)*4,4)
                a(f"v_mfma_f32_16x16x32_bf16 {c}, {vr(WF+b*8+n*4,4)}, {vr(XF+b*20+mt*4,4)}, " + ("0" if i == 0 else c))
                for _ in range(3):
                    if ni < len(nops) - 1: a(nops[ni]); ni += 1
        while ni < len(nops):
            a(nops[ni]); ni += 1
        if i < 17:
            vm.wait(lambda t: t[0] == "W" and t[1] <= i+1)
            if nops: a("s_waitcnt lgkmcnt(0)")
            a("s_barrier")
    a("s_barrier")
    stamp(a, 1 if "astamp" in OPT else 4)
    a(f"v_lshrrev_b32 v{vT}, 4, v0")
    a(f"v_lshlrev_b32 v{vT}, 2, v{vT}")
    a(f"s_lshl_b32 s{sT}, s{sWave}, 5")
    a(f"v_add_u32 v{vT}, s{sT}, v{vT}")
    a(f"v_and_b32 v{vT+1}, 15, v0")
    a(f"v_mul_u32_u24 v{vT+1}, {QP}, v{vT+1}")
    AD = vT + 4
    for n in range(2):
        for p in range(2):
            ad = AD + n*2 + p
            a(f"v_add_u32 v{vT+2}, {n*16+p*2}, v{vT}")
            a(f"v_mul_u32_u24 v{vT+3}, 3641, v{vT+2}")
            a(f"v_lshrrev_b32 v{vT+3}, 16, v{vT+3}")
            a(f"v_mul_u32_u24 v{ad}, 18, v{vT+3}")
            a(f"v_sub_u32 v{ad}, v{vT+2}, v{ad}")
            a(f"v_lshl_add_u32 v{ad}, v{ad}, 1, v{vT+1}")
            a(f"v_mad_u32_u24 v{ad}, v{vT+3}, 48, v{ad}")
    a(f"s_cmp_ge_u32 s{sWave}, 7")
    a(f"s_cbranch_scc1 L_{name}_skipq")
    for mt in range(5):
        for n in range(2):
            c = ACC + (mt*2+n)*4
            t = vT + 8 + ((mt*2+n) % 2) * 2
            a(f"v_cvt_pk_bf16_f32 v{t}, v{c}, v{c+1}")
            a(f"v_cvt_pk_bf16_f32 v{t+1}, v{c+2}, v{c+3}")
            a(f"ds_write_b32 v{AD+n*2}, v{t} offset:{mt*16*QP}")
            a(f"ds_write_b32 v{AD+n*2+1}, v{t+1} offset:{mt*16*QP}")
    a.lab(f"L_{name}_skipq")
    QR = 4; KR = 16; LG = 64; LX = 68; VO = 72; VX = 104; OA = 136
    vAo, vAx, vPos, vHd, vHf = vT, vT+1, vT+2, vT+3, vT+12
    a(f"v_lshrrev_b32 v{vPos}, 3, v3")
    a(f"v_bfe_u32 v{vHd}, v3, 1, 2")
    a(f"v_and_b32 v{vHf}, 1, v3")
    a(f"v_add_u32 v{vT+13}, 2, v{vPos}")
    a(f"v_mul_u32_u24 v{vT+13}, {QP}, v{vT+13}")
    a(f"v_mad_u32_u24 v{vT+13}, v{vHd}, 48, v{vT+13}")
    a(f"v_xor_b32 v{vT+14}, 1, v{vHf}")
    a(f"s_movk_i32 s{sT}, {8*QP}")
    a(f"v_mad_u32_u24 v{vAo}, v{vT+14}, s{sT}, v{vT+13}")
    a(f"v_mad_u32_u24 v{vAx}, v{vHf}, s{sT}, v{vT+13}")
    a("s_waitcnt lgkmcnt(0)")
    a("s_barrier")
    if "astamp" in OPT: stamp(a, 2)
    for j in range(3):
        a(f"ds_read_b128 {vr(QR+j*4,4)}, v{vT+13} offset:{14*QP + j*16}")
    for i in range(4):
        for j in range(3):
            a(f"ds_read_b128 {vr(KR+i*12+j*4,4)}, v{vAo} offset:{(6-2*i)*QP + 192 + j*16}")
    a(f"v_lshl_add_u32 v{vAo}, v{vHf}, 4, v{vAo}")
    a(f"v_lshl_add_u32 v{vAx}, v{vHf}, 4, v{vAx}")
    a(f"s_lshl_b32 s{sT}, s{sRb}, 6")
    a(f"v_add_u32 v{vPos}, s{sT}, v{vPos}")
    a(f"v_lshlrev_b32 v{vT+14}, 3, v{vHf}")
    a(f"v_sub_u32 v{vT+14}, v{vPos}, v{vT+14}")
    a(f"s_mov_b32 s{sT+1}, {f32(18.0**-0.5)}")
    a(f"s_mov_b32 s{sT+2}, {f32(-1e9)}")
    a(f"v_cvt_pk_bf16_f32 v{vT+15}, s{sT+2}, s{sT+2}")
    a(f"v_lshlrev_b32 v{vT+15}, 16, v{vT+15}")
    for i in range(4): a(f"v_mov_b32 v{LG+i}, 0")
    a("s_waitcnt lgkmcnt(0)")
    for i in range(4):
        a(f"ds_read_b128 {vr(VO+i*8,4)}, v{vAo} offset:{(6-2*i)*QP + 384}")
        a(f"ds_read_b32 v{VO+i*8+4}, v{vAo} offset:{(6-2*i)*QP + 384 + 16}")
    for i in range(4):
        a(f"ds_read_b128 {vr(VX+i*8,4)}, v{vAx} offset:{(6-2*i)*QP + 384}")
        a(f"ds_read_b32 v{VX+i*8+4}, v{vAx} offset:{(6-2*i)*QP + 384 + 16}")
    for d_ in range(9):
        for i in range(4):
            a(f"v_dot2_f32_bf16 v{LG+i}, v{QR+d_}, v{KR+i*12+d_}, v{LG+i}")
    a("s_nop 2")
    a(f"v_cvt_pk_bf16_f32 v{LG}, v{LG}, v{LG+1}")
    a(f"v_cvt_pk_bf16_f32 v{LG+2}, v{LG+2}, v{LG+3}")
    a(f"v_and_b32 v{LG+1}, 0xffff0000, v{LG}")
    a(f"v_lshlrev_b32 v{LG}, 16, v{LG}")
    a(f"v_and_b32 v{LG+3}, 0xffff0000, v{LG+2}")
    a(f"v_lshlrev_b32 v{LG+2}, 16, v{LG+2}")
    for i in range(4): a(f"v_mul_f32 v{LG+i}, s{sT+1}, v{LG+i}")
    a(f"v_cvt_pk_bf16_f32 v{LG}, v{LG}, v{LG+1}")
    a(f"v_cvt_pk_bf16_f32 v{LG+2}, v{LG+2}, v{LG+3}")
    a(f"v_and_b32 v{LG+1}, 0xffff0000, v{LG}")
    a(f"v_lshlrev_b32 v{LG}, 16, v{LG}")
    a(f"v_and_b32 v{LG+3}, 0xffff0000, v{LG+2}")
    a(f"v_lshlrev_b32 v{LG+2}, 16, v{LG+2}")
    for i in range(4):
        a(f"v_cmp_le_i32 vcc, {2*i}, v{vT+14}")
        a("s_nop 1")
        a(f"v_cndmask_b32 v{LG+i}, v{vT+15}, v{LG+i}, vcc")
    a("s_nop 1")
    for i in range(4):
        a(f"v_mov_b32_dpp v{LX+i}, v{LG+i} quad_perm:[1,0,3,2] row_mask:0xf bank_mask:0xf")
    M_, SUM = vT+13, vT+14
    a(f"v_max3_f32 v{M_}, v{LG}, v{LG+1}, v{LG+2}")
    a(f"v_max3_f32 v{M_}, v{M_}, v{LG+3}, v{LX}")
    a(f"v_max3_f32 v{M_}, v{M_}, v{LX+1}, v{LX+2}")
    a(f"v_max_f32 v{M_}, v{M_}, v{LX+3}")
    a(f"s_mov_b32 s{sT+3}, {f32(math.log2(math.e))}")
    for w in range(8):
        a(f"v_sub_f32 v{LG+w}, v{LG+w}, v{M_}")
    for w in range(8):
        a(f"v_mul_f32 v{LG+w}, s{sT+3}, v{LG+w}")
    for w in range(8):
        a(f"v_exp_f32 v{LG+w}, v{LG+w}")
    a("s_nop 0")
    a(f"v_add_f32 v{SUM}, v{LG}, v{LX}")
    a(f"v_add_f32 v{M_}, v{LG+1}, v{LX+1}")
    a(f"v_add_f32 v{vT+15}, v{LG+2}, v{LX+2}")
    a(f"v_add_f32 v{vT+16}, v{LG+3}, v{LX+3}")
    a(f"v_add_f32 v{SUM}, v{SUM}, v{M_}")
    a(f"v_add_f32 v{vT+15}, v{vT+15}, v{vT+16}")
    a(f"v_add_f32 v{SUM}, v{SUM}, v{vT+15}")
    a(f"v_rcp_f32 v{SUM}, v{SUM}")
    a("s_nop 0")
    for w in range(8):
        a(f"v_mul_f32 v{LG+w}, v{LG+w}, v{SUM}")
    for wp in range(4):
        a(f"v_cvt_pk_bf16_f32 v{LG+wp}, v{LG+2*wp}, v{LG+2*wp+1}")
    if "astamp" in OPT: stamp(a, 3)
    a(f"s_mov_b32 s{sT+4}, 0x05040100")
    a(f"s_mov_b32 s{sT+5}, 0x07060302")
    a("s_waitcnt lgkmcnt(0)")
    for wp in range(4):
        base = (VO if wp < 2 else VX) + (wp % 2) * 16
        for d_ in range(5):
            x0 = base + d_; x1 = base + 8 + d_
            t = vT + 13 + (d_ % 2) * 2
            a(f"v_perm_b32 v{t}, v{x1}, v{x0}, s{sT+4}")
            a(f"v_perm_b32 v{t+1}, v{x1}, v{x0}, s{sT+5}")
            a(f"v_dot2_f32_bf16 v{OA+2*d_}, v{t}, v{LG+wp}, " + ("0" if wp == 0 else f"v{OA+2*d_}"))
            a(f"v_dot2_f32_bf16 v{OA+2*d_+1}, v{t+1}, v{LG+wp}, " + ("0" if wp == 0 else f"v{OA+2*d_+1}"))
    a("s_nop 2")
    for d_ in range(5):
        a(f"v_cvt_pk_bf16_f32 v{QR+d_}, v{OA+2*d_}, v{OA+2*d_+1}")
    OB = 65536; OP = 160
    a(f"v_lshrrev_b32 v{vT+13}, 3, v3")
    a(f"v_mul_u32_u24 v{vT+13}, {OP}, v{vT+13}")
    a(f"v_mad_u32_u24 v{vT+13}, v{vHd}, 36, v{vT+13}")
    a(f"v_lshl_add_u32 v{vT+13}, v{vHf}, 4, v{vT+13}")
    a(f"v_add_u32 v{vT+13}, {OB}, v{vT+13}")
    a(f"ds_write2_b32 v{vT+13}, v{QR}, v{QR+1} offset0:0 offset1:1")
    a(f"ds_write2_b32 v{vT+13}, v{QR+2}, v{QR+3} offset0:2 offset1:3")
    a(f"ds_write_b32 v{vT+13}, v{QR+4} offset:16")
    a(f"s_lshl_b32 s{sT}, s{sWave}, 2")
    a(f"v_lshrrev_b32 v{vT+14}, 4, v0")
    a(f"v_add_u32 v{vT+14}, s{sT}, v{vT+14}")
    a(f"s_mul_i32 s{sT+1}, s{sHg}, 9")
    a(f"s_lshl_b32 s{sT+2}, s{sRb}, 2")
    a(f"s_mul_i32 s{sT+2}, s{sT+2}, 18432")
    def piece_addr(vp, vl, vg):
        a(f"v_mul_u32_u24 v{vT+15}, 7282, v{vp}")
        a(f"v_lshrrev_b32 v{vT+15}, 16, v{vT+15}")
        a(f"v_mul_u32_u24 v{vT+16}, 9, v{vT+15}")
        a(f"v_sub_u32 v{vT+16}, v{vp}, v{vT+16}")
        a(f"v_and_b32 v{vT+17}, 15, v0")
        a(f"v_lshl_add_u32 v{vl}, v{vT+15}, 4, v{vT+17}")
        a(f"v_mul_u32_u24 v{vl}, {OP}, v{vl}")
        a(f"v_lshl_add_u32 v{vl}, v{vT+16}, 4, v{vl}")
        a(f"v_add_u32 v{vl}, {OB}, v{vl}")
        a(f"v_add_u32 v{vT+16}, s{sT+1}, v{vT+16}")
        a(f"v_mul_u32_u24 v{vg}, 18432, v{vT+15}")
        a(f"v_lshl_add_u32 v{vg}, v{vT+16}, 8, v{vg}")
        a(f"v_lshl_add_u32 v{vg}, v{vT+17}, 4, v{vg}")
    piece_addr(vT+14, vT+4, vT+5)
    a(f"v_add_u32 v{vT+14}, 32, v{vT+14}")
    piece_addr(vT+14, vT+6, vT+7)
    a("s_waitcnt lgkmcnt(0)")
    a("s_barrier")
    a(f"ds_read_b128 {vr(QR,4)}, v{vT+4}")
    a(f"ds_read_b128 {vr(QR+4,4)}, v{vT+6}")
    a("s_waitcnt lgkmcnt(1)")
    a(f"buffer_store_dwordx4 {vr(QR,4)}, v{vT+5}, {sr(sO,4)}, s{sT+2} offen")
    a(f"s_cmp_lg_u32 s{sWave}, 0")
    a(f"s_cbranch_scc1 L_{name}_nost2")
    a("s_waitcnt lgkmcnt(0)")
    a(f"buffer_store_dwordx4 {vr(QR+4,4)}, v{vT+7}, {sr(sO,4)}, s{sT+2} offen")
    a.lab(f"L_{name}_nost2")
    if "astamp" in OPT: stamp(a, 4)
    if "stamp" in OPT: a("s_waitcnt vmcnt(0)")
    stamp(a, 6, True)
    stamp_dump(a, 7, 8, sWave, vT+8, 3)
    a.lab(f"L_{name}_done")
    a("s_endpgm")
    return a.text(), kernel_desc(name, NV, 96), f"; @launch kernel={name} grid=(256,1,1) block=(512,1,1) lds={WB + NST*STG}"

GENS = {"k45": gen_k45, "k2v2": gen_k2v2, "k1v3": gen_k1v3, "k1": gen_k1, "k2": gen_k2, "k3": gen_k3, "k4": gen_k4, "k5": gen_k5, "k3v2": gen_k3v2, "k3m": gen_k3m, "k4v2": gen_k4v2}


def build(which):
    heads, texts, descs = [], [], []
    for w in which:
        t, d, h = GENS[w]()
        heads.append(h); texts.append(t); descs.append(d)
    out = "; generated by dev/gen.py\n" + "\n".join(heads) + "\n"
    out += '.amdgcn_target "amdgcn-amd-amdhsa--gfx950"\n.text\n'
    out += "\n".join(texts)
    out += '.section .rodata,"a"\n'
    for d in descs:
        out += ".p2align 6\n" + d
    return out

if __name__ == "__main__":
    which = sys.argv[2].split(",")
    open(sys.argv[1], "w").write(build(which))
```

```python
import sys, struct, math, os
OPT = set(os.environ.get("GENOPT", "").split(","))

KN = "sequential_preLN__sliding_local_dilated__geglu_ffn__prompt"

O_OFF  = 0
O_SZ   = 2048*576*2
H1_OFF = O_OFF + O_SZ
H1_SZ  = 2048*576*2
ST_OFF = H1_OFF + H1_SZ
ST_SZ  = 2048*6*8
HH_OFF = ST_OFF + ST_SZ
HH_SZ  = 2048*4608*2
P_OFF  = HH_OFF + HH_SZ
P_SZ   = 4*2048*576*4

def f32(x):
    return struct.unpack("<I", struct.pack("<f", x))[0]

class A:
    def __init__(self):
        self.l = []
    def __call__(self, s):
        if "nomfma" in OPT and s.startswith("v_mfma"): return
        if s.startswith("buffer_store_dwordx4") and "s[80:83]" not in s:
            pol = getattr(self, "stpol", "")
            if pol: s += " " + pol
        if "nods" in OPT and s.startswith("ds_read_b64_tr"): return
        if "now" in OPT and s.startswith("buffer_load_dwordx4") and s.endswith("lds"): return
        if "nox" in OPT and s.startswith("buffer_load_dwordx4 v[") and "s[16:19]" in s: return
        self.l.append("    " + s)
    def lab(self, s):
        self.l.append(s + ":")
    def c(self, s):
        self.l.append("    ; " + s)
    def text(self):
        return "\n".join(self.l) + "\n"

def vr(b, n=1):
    return f"v{b}" if n == 1 else f"v[{b}:{b+n-1}]"
def sr(b, n=1):
    return f"s{b}" if n == 1 else f"s[{b}:{b+n-1}]"

def kernel_head(a, name):
    a.l.append(f".globl {name}")
    a.l.append(".p2align 8")
    a.l.append(f".type {name},@function")
    a.lab(name)

def kernel_desc(name, vgpr, sgpr=96, accum=None):
    if accum is None:
        accum = (vgpr + 3) // 4 * 4
    return f""".amdhsa_kernel {name}
  .amdhsa_next_free_vgpr {vgpr}
  .amdhsa_next_free_sgpr {sgpr}
  .amdhsa_accum_offset {accum}
  .amdhsa_group_segment_fixed_size 0
  .amdhsa_kernarg_size 80
  .amdhsa_user_sgpr_count 2
  .amdhsa_user_sgpr_kernarg_segment_ptr 1
  .amdhsa_system_sgpr_workgroup_id_x 1
.end_amdhsa_kernel
"""

def srd(a, d, base, size, off=0):
    if off:
        a(f"s_add_u32 s{d}, s{base}, {off}")
        a(f"s_addc_u32 s{d+1}, s{base+1}, 0")
    else:
        a(f"s_mov_b32 s{d}, s{base}")
        a(f"s_mov_b32 s{d+1}, s{base+1}")
    a(f"s_and_b32 s{d+1}, s{d+1}, 0xffff")
    a(f"s_mov_b32 s{d+2}, {size}")
    a(f"s_mov_b32 s{d+3}, 0x00020000")

def round_bf16(a, d, s, tmp=None):
    a(f"v_cvt_pk_bf16_f32 v{d}, v{s}, v{s}")
    a(f"v_lshlrev_b32 v{d}, 16, v{d}")

GELU_A = -2.0 * math.log2(math.e) * math.sqrt(2.0 / math.pi)
GELU_B = GELU_A * 0.044715

import os
OPT = set(os.environ.get("GENOPT", "").split(","))
def stamp(a, i, real=False):
    if "stamp" in OPT:
        a(f"s_mem{'real' if real else ''}time s[{60+2*i}:{61+2*i}]")
def stamp_dump(a, n, sWs, sWave, tmpv, region=0):
    if "stamp" in OPT:
        a("s_waitcnt lgkmcnt(0)")
        a("s_mov_b64 exec, -1")
        srd(a, 80, sWs, 1<<20, (200+region)<<20)
        a(f"s_lshl_b32 s84, s2, 4")
        a(f"s_add_u32 s84, s84, s{sWave}")
        a(f"s_lshl_b32 s84, s84, 6")
        a(f"v_mov_b32 v{tmpv}, s84")
        for i in range(n):
            a(f"v_mov_b32 v{tmpv+2}, s{60+2*i}")
            a(f"v_mov_b32 v{tmpv+3}, s{61+2*i}")
            a(f"buffer_store_dwordx2 v[{tmpv+2}:{tmpv+3}], v{tmpv}, s[80:83], 0 offen offset:{8*i}")
            a("s_nop 1")
def gen_k3(name="k3_kernel"):
    a = A()
    kernel_head(a, name)
    NST = 6
    STG = 18432
    RING = 6
    ACC = 0
    XS = 144
    WR = 192
    vWa = 216
    vWb = 217
    vD0, vD1, vD2 = 218, 219, 220
    vX0, vX1 = 221, 222
    vM0, vR0, vM1, vR1 = 223, 224, 225, 226
    vT = 228
    vLane = 244
    NV = 246
    def acc(nt, mat, mt):
        return ACC + ((nt * 2 + mat) * 2 + mt) * 4
    sW, sX, sST, sH = 12, 16, 20, 24
    sWave, sFb, sMb = 28, 29, 30
    sWoff, sXoff, sIt = 31, 32, 33
    sM0b = 34
    sT = 36
    sA_, sB_ = 48, 49
    sExec = 50
    sHb = 52

    a("s_cmp_ge_u32 s2, 256")
    a(f"s_cbranch_scc1 L_{name}_done")
    stamp(a, 0)
    stamp(a, 5, True)
    a("s_load_dwordx4 s[4:7], s[0:1], 32")
    a("s_load_dwordx2 s[8:9], s[0:1], 72")
    a("v_lshrrev_b32 v1, 6, v0")
    a("v_and_b32 v0, 63, v0")
    a("s_nop 0")
    a(f"v_readfirstlane_b32 s{sWave}, v1")
    a(f"s_and_b32 s{sT}, s2, 7")
    a(f"s_lshr_b32 s{sT+1}, s2, 3")
    a(f"s_and_b32 s{sFb}, s{sT+1}, 3")
    a(f"s_lshl_b32 s{sT}, s{sT}, 2")
    a(f"s_add_u32 s{sFb}, s{sFb}, s{sT}")
    a(f"s_lshr_b32 s{sMb}, s{sT+1}, 2")
    a("s_waitcnt lgkmcnt(0)")
    a(f"s_cmp_ge_u32 s{sWave}, 4")
    a(f"s_cselect_b32 s{sT}, s6, s4")
    a(f"s_cselect_b32 s{sT+1}, s7, s5")
    srd(a, sW, sT, 576*4608*2)
    srd(a, sX, 8, H1_SZ, H1_OFF)
    srd(a, sST, 8, ST_SZ, ST_OFF)
    srd(a, sH, 8, HH_SZ, HH_OFF)
    a(f"v_and_b32 v{vT}, 15, v0")
    a(f"s_lshl_b32 s{sT}, s{sMb}, 8")
    a(f"s_lshl_b32 s{sT+1}, s{sWave}, 5")
    a(f"s_add_u32 s{sT}, s{sT}, s{sT+1}")
    a(f"v_add_u32 v{vT}, s{sT}, v{vT}")
    a(f"v_mul_u32_u24 v{vT}, 48, v{vT}")
    for mt in range(2):
        for q in range(3):
            a(f"buffer_load_dwordx4 {vr(WR+mt*12+q*4,4)}, v{vT}, {sr(sST,4)}, 0 offen offset:{mt*768+q*16}")
    for t, vd in enumerate((vD0, vD1, vD2)):
        a(f"v_add_u32 v{vT+1}, {t*64}, v0")
        a(f"v_mul_u32_u24 v{vT+2}, 3641, v{vT+1}")
        a(f"v_lshrrev_b32 v{vT+2}, 16, v{vT+2}")
        a(f"v_mul_u32_u24 v{vT+3}, 18, v{vT+2}")
        a(f"v_sub_u32 v{vT+3}, v{vT+1}, v{vT+3}")
        a(f"v_mul_u32_u24 v{vT+2}, 9216, v{vT+2}")
        a(f"v_lshl_add_u32 v{vd}, v{vT+3}, 4, v{vT+2}")
    a(f"s_and_b32 s{sT}, s{sWave}, 3")
    a(f"s_mul_i32 s{sT+1}, s{sT}, {8*9216}")
    a(f"s_mul_i32 s{sT+2}, s{sFb}, 288")
    a(f"s_add_u32 s{sT+1}, s{sT+1}, s{sT+2}")
    for vd in (vD0, vD1, vD2):
        a(f"v_add_u32 v{vd}, s{sT+1}, v{vd}")
    a(f"s_mul_i32 s{sM0b}, s{sWave}, 2304")
    a(f"s_lshl_b32 s{sT}, s{sMb}, 4")
    a(f"s_lshl_b32 s{sT+1}, s{sWave}, 1")
    a(f"s_add_u32 s{sT}, s{sT}, s{sT+1}")
    a(f"s_mul_i32 s{sT+1}, s{sT}, 18432")
    a(f"v_lshlrev_b32 v{vX0}, 4, v0")
    a(f"v_add_u32 v{vX0}, s{sT+1}, v{vX0}")
    a(f"v_add_u32 v{vX1}, 18432, v{vX0}")
    a(f"s_mul_i32 s{sHb}, s{sT}, 144")
    a(f"s_lshr_b32 s{sT+1}, s{sFb}, 1")
    a(f"s_mul_i32 s{sT+1}, s{sT+1}, 9")
    a(f"s_add_u32 s{sHb}, s{sHb}, s{sT+1}")
    a(f"s_lshl_b32 s{sHb}, s{sHb}, 10")
    a(f"v_lshrrev_b32 v{vT+1}, 2, v0")
    a(f"v_mul_u32_u24 v{vT+1}, 288, v{vT+1}")
    a(f"v_and_b32 v{vT+2}, 3, v0")
    a(f"v_lshl_add_u32 v{vWa}, v{vT+2}, 3, v{vT+1}")
    a(f"v_add_u32 v{vWb}, {3*STG}, v{vWa}")
    sRot, sCnt = 54, 55
    if "rot" in OPT:
        a(f"s_mul_i32 s{sRot}, s{sMb}, 9")
        a(f"s_and_b32 s{sT}, s{sFb}, 3")
        a(f"s_mul_i32 s{sT}, s{sT}, 18")
        a(f"s_add_u32 s{sRot}, s{sRot}, s{sT}")
        a(f"s_lshr_b32 s{sRot}, s{sRot}, 2")
        a(f"s_sub_u32 s{sT}, s{sRot}, 18")
        a(f"s_cmp_ge_u32 s{sRot}, 18")
        a(f"s_cselect_b32 s{sRot}, s{sT}, s{sRot}")
    else:
        a(f"s_mov_b32 s{sRot}, 0")
    if "samew" in OPT:
        a(f"s_mov_b32 s{sRot}, 0")
    a(f"s_mov_b32 s{sCnt}, 0")
    a(f"s_mul_i32 s{sWoff}, s{sRot}, {32*9216}")
    a(f"s_lshl_b32 s{sXoff}, s{sRot}, 10")
    a(f"s_mov_b64 s[{sExec}:{sExec+1}], 0xffff")
    a(f"v_mov_b32 v{vLane}, v0")

    def load_groups(stage, xset):
        gs = []
        for t, vd in enumerate((vD0, vD1, vD2)):
            g = [f"s_add_u32 m0, s{sM0b}, {stage*STG + t*1024}"]
            if t == 2:
                g.append(f"s_mov_b64 exec, s[{sExec}:{sExec+1}]")
            else:
                g.append("s_nop 0")
            g.append(f"buffer_load_dwordx4 v{vd}, {sr(sW,4)}, s{sWoff} offen lds")
            if t == 2:
                g.append("s_mov_b64 exec, -1")
            gs.append(g)
        gs.append([f"buffer_load_dwordx4 {vr(XS+xset*8,4)}, v{vX0}, {sr(sX,4)}, s{sXoff} offen"])
        gs.append([f"buffer_load_dwordx4 {vr(XS+xset*8+4,4)}, v{vX1}, {sr(sX,4)}, s{sXoff} offen",
                   f"s_add_u32 s{sRot}, s{sRot}, 1",
                   f"s_cmp_eq_u32 s{sRot}, {4 if 'hot4' in OPT else 18}",
                   f"s_cselect_b32 s{sRot}, 0, s{sRot}",
                   f"s_add_u32 s{sCnt}, s{sCnt}, 1",
                   f"s_mul_i32 s{sWoff}, s{sRot}, {32*9216}",
                   f"s_lshl_b32 s{sXoff}, s{sRot}, 10",
                   f"s_cmp_ge_u32 s{sCnt}, 18",
                   f"s_cselect_b32 s{sWoff}, 0x7f000000, s{sWoff}",
                   f"s_cselect_b32 s{sXoff}, 0x7f000000, s{sXoff}"])
        return gs
    def issue_loads(stage, xset):
        for g in load_groups(stage, xset):
            for x in g: a(x)

    for s in range(5):
        issue_loads(s, s)
    a("s_waitcnt vmcnt(25)")
    for mt, (vM, vR) in enumerate(((vM0, vR0), (vM1, vR1))):
        b = WR + mt * 12
        a(f"v_add_f32 v{vT}, v{b}, v{b+2}")
        a(f"v_add_f32 v{vT+1}, v{b+4}, v{b+6}")
        a(f"v_add_f32 v{vT+2}, v{b+8}, v{b+10}")
        a(f"v_add_f32 v{vT}, v{vT}, v{vT+1}")
        a(f"v_add_f32 v{vT}, v{vT}, v{vT+2}")
        a(f"v_mul_f32 v{vT}, {f32(1.0/6.0)}, v{vT}")
        a(f"v_add_f32 v{vT+1}, v{b+1}, v{b+3}")
        a(f"v_add_f32 v{vT+2}, v{b+5}, v{b+7}")
        a(f"v_add_f32 v{vT+3}, v{b+9}, v{b+11}")
        a(f"v_add_f32 v{vT+1}, v{vT+1}, v{vT+2}")
        a(f"v_add_f32 v{vT+1}, v{vT+1}, v{vT+3}")
        a(f"v_mov_b32 v{vT+2}, 0")
        for t in range(6):
            a(f"v_sub_f32 v{vT+3}, v{b+2*t}, v{vT}")
            a(f"v_fmac_f32 v{vT+2}, v{vT+3}, v{vT+3}")
        a(f"v_fmac_f32 v{vT+1}, {f32(96.0)}, v{vT+2}")
        a(f"v_mul_f32 v{vT+1}, {f32(1.0/576.0)}, v{vT+1}")
        round_bf16(a, vM, vT)
        round_bf16(a, vT+1, vT+1)
        a(f"v_add_f32 v{vT+1}, {f32(1e-5)}, v{vT+1}")
        round_bf16(a, vT+1, vT+1)
        a(f"v_sqrt_f32 v{vT+1}, v{vT+1}")
        a("s_nop 0")
        round_bf16(a, vT+1, vT+1)
        a(f"v_rcp_f32 v{vR}, v{vT+1}")
    for i in range(0, 144, 2):
        a(f"v_mov_b64 {vr(ACC+i,2)}, 0")

    def norm_ops(xset):
        ops = []
        for mt, (vM, vR) in enumerate(((vM0, vR0), (vM1, vR1))):
            for d in range(4):
                x = XS + xset * 8 + mt * 4 + d
                t0 = vT + (d % 2) * 2
                t1 = t0 + 1
                ops.append(f"v_lshlrev_b32 v{t0}, 16, v{x}")
                ops.append(f"v_and_b32 v{t1}, 0xffff0000, v{x}")
                if "fastnorm" in OPT:
                    ops.append(f"v_sub_f32 v{t0}, v{t0}, v{vM}")
                    ops.append(f"v_sub_f32 v{t1}, v{t1}, v{vM}")
                    ops.append(f"v_cvt_pk_bf16_f32 v{x}, v{t0}, v{t1}")
                    continue
                ops.append(f"v_sub_f32 v{t0}, v{t0}, v{vM}")
                ops.append(f"v_sub_f32 v{t1}, v{t1}, v{vM}")
                ops.append(f"v_cvt_pk_bf16_f32 v{t0}, v{t0}, v{t1}")
                ops.append(f"v_and_b32 v{t1}, 0xffff0000, v{t0}")
                ops.append(f"v_lshlrev_b32 v{t0}, 16, v{t0}")
                ops.append(f"v_mul_f32 v{t0}, v{t0}, v{vR}")
                ops.append(f"v_mul_f32 v{t1}, v{t1}, v{vR}")
                ops.append(f"v_cvt_pk_bf16_f32 v{x}, v{t0}, v{t1}")
        return ops

    def wread(fidx_global):
        st = (fidx_global // 18) % NST
        f = fidx_global % 18
        nt, mat = f // 2, f % 2
        slot = fidx_global % RING
        base = vWa if st < 3 else vWb
        off = (st % 3) * STG + mat * 9216 + nt * 32
        a(f"ds_read_b64_tr_b16 {vr(WR+slot*4,2)}, v{base} offset:{off}")
        a(f"ds_read_b64_tr_b16 {vr(WR+slot*4+2,2)}, v{base} offset:{off+4608}")

    PF = RING - 1
    a("s_waitcnt vmcnt(15)")
    for op in norm_ops(0):
        a(op)
    a("s_barrier")
    for f in range(PF):
        wread(f)
    stamp(a, 1)
    a(f"s_mov_b32 s{sIt}, 0")
    a(".p2align 6")
    a.lab(f"L_{name}_loop")
    for ph in range(NST):
        lg = load_groups((ph + 5) % NST, (ph + 5) % NST)
        spread = "spread" in OPT
        if not spread:
            issue_loads((ph + 5) % NST, (ph + 5) % NST)
        nops = norm_ops((ph + 1) % NST)
        if "nonorm" in OPT: nops = []
        ni = 0
        for f in range(18):
            g = ph * 18 + f
            nt, mat = f // 2, f % 2
            slot = g % RING
            wread(g + PF)
            a(f"s_waitcnt lgkmcnt({2*PF})")
            a(f"v_mfma_f32_16x16x32_bf16 {vr(acc(nt,mat,0),4)}, {vr(WR+slot*4,4)}, {vr(XS+ph*8,4)}, {vr(acc(nt,mat,0),4)}")
            a(f"v_mfma_f32_16x16x32_bf16 {vr(acc(nt,mat,1),4)}, {vr(WR+slot*4,4)}, {vr(XS+ph*8+4,4)}, {vr(acc(nt,mat,1),4)}")
            if f == 1:
                a("s_waitcnt vmcnt(%d)" % (15 if spread else 20))
            if spread and f % 3 == 2 and f // 3 < 5:
                for x in lg[f // 3]: a(x)
            if f >= 1:
                for _ in range(5):
                    if ni < len(nops):
                        a(nops[ni]); ni += 1
        assert ni == len(nops)
        a("s_waitcnt vmcnt(17)")
        a("s_barrier")
    a(f"s_add_u32 s{sIt}, s{sIt}, 1")
    a(f"s_cmp_lt_u32 s{sIt}, 3")
    a(f"s_cbranch_scc1 L_{name}_loop")
    stamp(a, 2)
    a("s_waitcnt vmcnt(0) lgkmcnt(0)")
    a(f"s_mov_b32 s{sA_}, {f32(GELU_A)}")
    a(f"s_mov_b32 s{sB_}, {f32(GELU_B)}")
    a(f"v_lshlrev_b32 v{vX0}, 4, v{vLane}")
    a(f"s_and_b32 s{sT}, s{sFb}, 1")
    a(f"s_lshl_b32 s{sT+1}, s{sT}, 12")
    a(f"s_add_u32 s{sT+1}, s{sT+1}, s{sHb}")
    a(f"s_lshl_b32 s{sT+2}, s{sT}, 3")
    a(f"s_add_u32 s{sT+2}, s{sT+2}, s{sHb}")
    a(f"s_add_u32 s{sT+2}, s{sT+2}, {8*1024}")
    a(f"s_add_u32 s{sT+3}, s{sT+1}, {144*1024}")
    a(f"s_add_u32 s{sT+4}, s{sT+2}, {144*1024}")
    OUT = XS
    def gelu_tile(nt, mt, dst):
        g = acc(nt, 0, mt); u = acc(nt, 1, mt)
        T = WR
        for h in range(2):
            g0, g1, u0, u1 = g+2*h, g+2*h+1, u+2*h, u+2*h+1
            x0, x1, y0, y1, t0, t1 = T+h*8, T+h*8+1, T+h*8+2, T+h*8+3, T+h*8+4, T+h*8+5
            if "relax" in OPT:
                x0, x1, y0, y1 = g0, g1, u0, u1
            else:
                a(f"v_cvt_pk_bf16_f32 v{x0}, v{g0}, v{g1}")
                a(f"v_cvt_pk_bf16_f32 v{y0}, v{u0}, v{u1}")
                a(f"v_and_b32 v{x1}, 0xffff0000, v{x0}")
                a(f"v_lshlrev_b32 v{x0}, 16, v{x0}")
                a(f"v_and_b32 v{y1}, 0xffff0000, v{y0}")
                a(f"v_lshlrev_b32 v{y0}, 16, v{y0}")
            a(f"v_mul_f32 v{t0}, v{x0}, v{x0}")
            a(f"v_mul_f32 v{t1}, v{x1}, v{x1}")
            a(f"v_fma_f32 v{t0}, v{t0}, s{sB_}, v{vT}")
            a(f"v_fma_f32 v{t1}, v{t1}, s{sB_}, v{vT}")
            a(f"v_mul_f32 v{t0}, v{t0}, v{x0}")
            a(f"v_mul_f32 v{t1}, v{t1}, v{x1}")
            a(f"v_exp_f32 v{t0}, v{t0}")
            a(f"v_exp_f32 v{t1}, v{t1}")
            a("s_nop 0")
            a(f"v_add_f32 v{t0}, 1.0, v{t0}")
            a(f"v_add_f32 v{t1}, 1.0, v{t1}")
            a(f"v_rcp_f32 v{t0}, v{t0}")
            a(f"v_rcp_f32 v{t1}, v{t1}")
            a("s_nop 0")
            a(f"v_mul_f32 v{t0}, v{t0}, v{x0}")
            a(f"v_mul_f32 v{t1}, v{t1}, v{x1}")
            if "relax" not in OPT:
                a(f"v_cvt_pk_bf16_f32 v{t0}, v{t0}, v{t1}")
                a(f"v_and_b32 v{t1}, 0xffff0000, v{t0}")
                a(f"v_lshlrev_b32 v{t0}, 16, v{t0}")
            a(f"v_mul_f32 v{t0}, v{t0}, v{y0}")
            a(f"v_mul_f32 v{t1}, v{t1}, v{y1}")
            a(f"v_cvt_pk_bf16_f32 v{dst+h}, v{t0}, v{t1}")
    a(f"v_mov_b32 v{vT}, s{sA_}")
    a("s_nop 7")
    k = 0
    for mt in range(2):
        for p in range(4):
            o = OUT + (k % 12) * 4; k += 1
            gelu_tile(2*p, mt, o)
            gelu_tile(2*p+1, mt, o+2)
            a(f"buffer_store_dwordx4 {vr(o,4)}, v{vX0}, {sr(sH,4)}, s{sT+1+2*mt} offen offset:{p*1024}")
        o = OUT + (k % 12) * 4; k += 1
        gelu_tile(8, mt, o)
        a(f"buffer_store_dwordx2 {vr(o,2)}, v{vX0}, {sr(sH,4)}, s{sT+2+2*mt} offen")
    stamp(a, 3)
    a("s_waitcnt vmcnt(0)")
    stamp(a, 4)
    stamp(a, 6, True)
    stamp_dump(a, 7, 8, sWave, vT)
    a.lab(f"L_{name}_done")
    a("s_endpgm")
    return a.text(), kernel_desc(name, NV), f"; @launch kernel={name} grid=(256,1,1) block=(512,1,1) lds={NST*STG}"


def lds_dump(a, nbytes, wg, tidv, tv, off_mb, nthreads=512, tag="d"):
    a(f"s_cmp_lg_u32 s2, {wg}")
    a(f"s_cbranch_scc1 L_dump_{tag}")
    srd(a, 80, 8, 1 << 20, off_mb << 20)
    a(f"v_lshlrev_b32 v{tv}, 4, v{tidv}")
    for i in range(0, nbytes, nthreads*16):
        a(f"v_add_u32 v{tv+1}, {i}, v{tv}")
        a(f"ds_read_b128 v[{tv+2}:{tv+5}], v{tv+1}")
        a("s_waitcnt lgkmcnt(0)")
        a(f"buffer_store_dwordx4 v[{tv+2}:{tv+5}], v{tv+1}, s[80:83], 0 offen")
        a("s_waitcnt vmcnt(0)")
    a.lab(f"L_dump_{tag}")
    a("s_barrier")

class VM:
    def __init__(self, a):
        self.a = a; self.ops = []
    def op(self, tag, text):
        if "noload" in OPT and tag[0] in ("W", "X") and tag[1] >= 2 and getattr(self.a, "k3", False): return
        self.a(text); self.ops.append(tag)
    def wait(self, tagpred, extra=""):
        last = -1
        for i, t in enumerate(self.ops):
            if tagpred(t): last = i
        n = len(self.ops) - 1 - last
        assert n <= 63
        if last >= 0:
            self.a(f"s_waitcnt vmcnt({n}){extra}")
            self.ops = self.ops[last+1:]

def gen_k4(name="k4_kernel"):
    a = A(); vm = VM(a)
    kernel_head(a, name)
    NST = 6; STG = 18432; RING = 6; PFD = 5
    ACC = 4
    XS = 76
    WR = 124
    vWa, vWb = 148, 149
    vD0, vD1, vD2 = 150, 151, 152
    vX0, vX1 = 153, 154
    vT = 156
    NV = 172
    def acc(nt, mt): return ACC + (nt*2+mt)*4
    sW, sX, sP = 12, 16, 20
    sWave, sKs, sMb, sNb = 28, 29, 30, 31
    sWb1, sWb2, sXb, sM0b = 32, 33, 34, 35
    sT = 36
    sExec = 50
    sWo = 52
    a("s_cmp_ge_u32 s2, 256")
    a(f"s_cbranch_scc1 L_{name}_done")
    stamp(a, 0); stamp(a, 5, True)
    a("s_load_dwordx2 s[4:5], s[0:1], 48")
    a("s_load_dwordx2 s[8:9], s[0:1], 72")
    a("v_lshrrev_b32 v1, 6, v0")
    a("v_and_b32 v0, 63, v0")
    a("s_nop 0")
    a(f"v_readfirstlane_b32 s{sWave}, v1")
    a(f"s_and_b32 s{sT}, s2, 7")
    a(f"s_lshr_b32 s{sT+1}, s2, 3")
    a(f"s_lshr_b32 s{sKs}, s{sT}, 1")
    a(f"s_and_b32 s{sNb}, s{sT+1}, 3")
    a(f"s_and_b32 s{sT}, s{sT}, 1")
    a(f"s_lshl_b32 s{sT}, s{sT}, 3")
    a(f"s_lshr_b32 s{sMb}, s{sT+1}, 2")
    a(f"s_add_u32 s{sMb}, s{sMb}, s{sT}")
    a("s_waitcnt lgkmcnt(0)")
    srd(a, sW, 4, 4608*576*2)
    srd(a, sX, 8, HH_SZ, HH_OFF)
    srd(a, sP, 8, P_SZ, P_OFF)
    for t, vd in enumerate((vD0, vD1, vD2)):
        a(f"v_add_u32 v{vT+1}, {t*64}, v0")
        a(f"v_mul_u32_u24 v{vT+2}, 3641, v{vT+1}")
        a(f"v_lshrrev_b32 v{vT+2}, 16, v{vT+2}")
        a(f"v_mul_u32_u24 v{vT+3}, 18, v{vT+2}")
        a(f"v_sub_u32 v{vT+3}, v{vT+1}, v{vT+3}")
        a(f"v_mul_u32_u24 v{vT+2}, 1152, v{vT+2}")
        a(f"v_lshl_add_u32 v{vd}, v{vT+3}, 4, v{vT+2}")
    a(f"s_lshr_b32 s{sT}, s{sWave}, 2")
    a(f"s_lshl_b32 s{sT+1}, s{sKs}, 1")
    a(f"s_add_u32 s{sT+1}, s{sT+1}, s{sT}")
    a(f"s_mul_i32 s{sWb1}, s{sT+1}, {576*1152}")
    a(f"s_and_b32 s{sT+2}, s{sWave}, 3")
    a(f"s_mul_i32 s{sT+3}, s{sT+2}, {8*1152}")
    a(f"s_add_u32 s{sWb1}, s{sWb1}, s{sT+3}")
    a(f"s_mul_i32 s{sT+3}, s{sNb}, 288")
    a(f"s_add_u32 s{sWb1}, s{sWb1}, s{sT+3}")
    a(f"s_cmp_ge_u32 s{sT+2}, 2")
    a(f"s_cselect_b32 s{sT+3}, {128*1152}, 0")
    a(f"s_add_u32 s{sWb2}, s{sWb1}, s{sT+3}")
    a(f"s_mul_i32 s{sM0b}, s{sWave}, 2304")
    a(f"s_lshl_b32 s{sXb}, s{sMb}, 3")
    a(f"s_lshl_b32 s{sT+3}, s{sT+2}, 1")
    a(f"s_add_u32 s{sXb}, s{sXb}, s{sT+3}")
    a(f"s_mov_b32 s{sT+4}, s{sXb}")
    a(f"s_mul_i32 s{sXb}, s{sXb}, 144")
    a(f"s_mul_i32 s{sT+3}, s{sT+1}, 18")
    a(f"s_add_u32 s{sXb}, s{sXb}, s{sT+3}")
    a(f"s_lshl_b32 s{sXb}, s{sXb}, 10")
    a(f"v_lshlrev_b32 v{vX0}, 4, v0")
    a(f"v_add_u32 v{vX0}, s{sXb}, v{vX0}")
    a(f"v_add_u32 v{vX1}, {144*1024}, v{vX0}")
    a(f"s_lshl_b32 s{sT+5}, s{sKs}, 7")
    a(f"s_add_u32 s{sT+5}, s{sT+5}, s{sT+4}")
    a(f"s_add_u32 s{sT+5}, s{sT+5}, s{sT}")
    a(f"s_mul_i32 s{sT+5}, s{sT+5}, 36")
    a(f"s_mul_i32 s{sT+6}, s{sNb}, 9")
    a(f"s_add_u32 s{sT+5}, s{sT+5}, s{sT+6}")
    a(f"s_lshl_b32 s{sT+5}, s{sT+5}, 10")
    a(f"v_lshrrev_b32 v{vT+1}, 2, v0")
    a(f"v_mul_u32_u24 v{vT+1}, 288, v{vT+1}")
    a(f"v_and_b32 v{vT+2}, 3, v0")
    a(f"v_lshl_add_u32 v{vWa}, v{vT+2}, 3, v{vT+1}")
    a(f"s_mul_i32 s{sT+6}, s{sT}, 9216")
    a(f"v_add_u32 v{vWa}, s{sT+6}, v{vWa}")
    a(f"v_add_u32 v{vWb}, {3*STG}, v{vWa}")
    a(f"s_mov_b64 s[{sExec}:{sExec+1}], 0xffff")

    def fa_rel(i):
        q, ii = divmod(i, 9)
        if ii < 4: return 288*q + 32*ii
        if ii < 8: return 288*q + 144 + 32*(ii-4)
        return 288*q + 128
    def load_groups(i):
        if i >= 18: return []
        st = i % NST
        gs = []
        base = sWb2 if i % 9 == 8 else sWb1
        for t, vd in enumerate((vD0, vD1, vD2)):
            g = []
            if t == 0:
                g.append(("s", f"s_add_u32 s{sWo}, s{base}, {fa_rel(i)*1152}"))
            g.append(("s", f"s_add_u32 m0, s{sM0b}, {st*STG + t*1024}"))
            g.append(("s", f"s_mov_b64 exec, s[{sExec}:{sExec+1}]" if t == 2 else "s_nop 0"))
            g.append((("W", i), f"buffer_load_dwordx4 v{vd}, {sr(sW,4)}, s{sWo} offen lds"))
            if t == 2: g.append(("s", "s_mov_b64 exec, -1"))
            gs.append(g)
        xs = XS + (i % NST) * 8
        gs.append([("s", f"s_mov_b32 s{sWo+1}, {i*1024}"),
                   (("X", i), f"buffer_load_dwordx4 {vr(xs,4)}, v{vX0}, {sr(sX,4)}, s{sWo+1} offen")])
        gs.append([(("X", i), f"buffer_load_dwordx4 {vr(xs+4,4)}, v{vX1}, {sr(sX,4)}, s{sWo+1} offen")])
        return gs
    def emit_group(g):
        for tag, txt in g:
            if tag == "s": a(txt)
            else: vm.op(tag, txt)
    for i in range(PFD):
        for g in load_groups(i): emit_group(g)
    for i in range(0, 72, 2):
        a(f"v_mov_b64 {vr(ACC+i,2)}, 0")
    def wread(gidx):
        i, nt = divmod(gidx, 9)
        if i >= 18: return False
        st = i % NST; slot = gidx % RING
        base = vWa if st < 3 else vWb
        off = (st % 3) * STG + nt * 32
        a(f"ds_read_b64_tr_b16 {vr(WR+slot*4,2)}, v{base} offset:{off}")
        a(f"ds_read_b64_tr_b16 {vr(WR+slot*4+2,2)}, v{base} offset:{off+4608}")
        return True
    PF = RING - 1
    vm.wait(lambda t: t[1] <= 1)
    a("s_barrier")
    for f in range(PF): wread(f)
    stamp(a, 1)
    for i in range(18):
        lg = load_groups(i + PFD)
        vm.wait(lambda t: t[0] == "X" and t[1] <= i)
        for nt in range(9):
            g = i*9 + nt; slot = g % RING
            ok = wread(g + PF)
            rem = min(PF, 18*9 - 1 - g)
            a(f"s_waitcnt lgkmcnt({2*rem})")
            xs = XS + (i % NST) * 8
            a(f"v_mfma_f32_16x16x32_bf16 {vr(acc(nt,0),4)}, {vr(WR+slot*4,4)}, {vr(xs,4)}, {vr(acc(nt,0),4)}")
            a(f"v_mfma_f32_16x16x32_bf16 {vr(acc(nt,1),4)}, {vr(WR+slot*4,4)}, {vr(xs+4,4)}, {vr(acc(nt,1),4)}")
            if nt % 2 == 0 and nt // 2 < len(lg):
                emit_group(lg[nt // 2])
        vm.wait(lambda t: t[0] == "W" and t[1] <= i + 2)
        a("s_barrier")
    stamp(a, 2)
    a(f"s_lshr_b32 s{sT}, s{sWave}, 2")
    a(f"v_lshlrev_b32 v{vT}, 4, v0")
    a(f"s_mul_i32 s{sT+1}, s{sWave}, 9216")
    a(f"v_add_u32 v{vT+1}, s{sT+1}, v{vT}")
    a(f"s_xor_b32 s{sT+2}, s{sWave}, 4")
    a(f"s_mul_i32 s{sT+2}, s{sT+2}, 9216")
    a(f"v_add_u32 v{vT+2}, s{sT+2}, v{vT}")
    a(f"s_cmp_eq_u32 s{sT}, 0")
    a("s_nop 4")
    a(f"s_cbranch_scc0 L_{name}_kh1")
    for kh in range(2):
        if kh == 1: a.lab(f"L_{name}_kh1")
        for nt in range(9):
            a(f"ds_write_b128 v{vT+1}, {vr(acc(nt,1-kh),4)} offset:{nt*1024}")
        a("s_waitcnt lgkmcnt(0)")
        a("s_barrier")
        for nt in range(9):
            a(f"ds_read_b128 {vr(XS+nt*4,4)}, v{vT+2} offset:{nt*1024}")
        for nt in range(9):
            a(f"s_waitcnt lgkmcnt({8-nt})")
            for r in range(4):
                a(f"v_add_f32 v{XS+nt*4+r}, v{XS+nt*4+r}, v{acc(nt,kh)+r}")
            if nt < 4:
                a(f"buffer_store_dwordx4 {vr(XS+nt*4,4)}, v{vT}, {sr(sP,4)}, s{sT+5} offen offset:{nt*1024}")
            else:
                if nt in (4, 8): a(f"s_add_u32 s{sT+5}, s{sT+5}, 4096")
                a(f"buffer_store_dwordx4 {vr(XS+nt*4,4)}, v{vT}, {sr(sP,4)}, s{sT+5} offen offset:{(nt%4)*1024}")
        stamp(a, 3)
        if "stamp" in OPT: a("s_waitcnt vmcnt(0)")
        stamp(a, 4); stamp(a, 6, True)
        stamp_dump(a, 7, 8, sWave, vT+4, 1)
        a("s_endpgm")
    a.lab(f"L_{name}_done")
    a("s_endpgm")
    return a.text(), kernel_desc(name, NV), f"; @launch kernel={name} grid=(256,1,1) block=(512,1,1) lds={NST*STG}"

def gen_k5(name="k5_kernel"):
    a = A()
    kernel_head(a, name)
    sH, sP, sO = 12, 16, 20
    a("s_cmp_ge_u32 s2, 576")
    a(f"s_cbranch_scc1 L_{name}_done")
    a("s_load_dwordx2 s[4:5], s[0:1], 56")
    a("s_load_dwordx2 s[8:9], s[0:1], 72")
    a("v_lshrrev_b32 v1, 6, v0")
    a("v_and_b32 v0, 63, v0")
    a("s_nop 0")
    a("v_readfirstlane_b32 s28, v1")
    a("s_lshl_b32 s29, s2, 2")
    a("s_add_u32 s29, s29, s28")
    a("s_mul_i32 s30, s29, 3641")
    a("s_lshr_b32 s30, s30, 16")
    a("s_mul_i32 s31, s30, 18")
    a("s_sub_u32 s31, s29, s31")
    a("s_waitcnt lgkmcnt(0)")
    srd(a, sH, 8, H1_SZ, H1_OFF)
    srd(a, sP, 8, P_SZ, P_OFF)
    srd(a, sO, 4, 2048*576*2)
    a("v_lshlrev_b32 v1, 4, v0")
    a("s_lshl_b32 s32, s29, 10")
    a("s_lshl_b32 s33, s29, 11")
    a(f"buffer_load_dwordx4 v[4:7], v1, {sr(sH,4)}, s32 offen")
    for k in range(4):
        a(f"buffer_load_dwordx4 v[{8+k*8}:{11+k*8}], v1, {sr(sP,4)}, s33 offen")
        a(f"buffer_load_dwordx4 v[{12+k*8}:{15+k*8}], v1, {sr(sP,4)}, s33 offen offset:1024")
        if k < 3: a(f"s_add_u32 s33, s33, {128*36*1024}")
    a("v_and_b32 v2, 15, v0")
    a("s_lshl_b32 s34, s30, 4")
    a("v_add_u32 v2, s34, v2")
    a("v_mul_u32_u24 v2, 1152, v2")
    a("v_lshrrev_b32 v3, 4, v0")
    a("v_lshl_add_u32 v2, v3, 3, v2")
    a("s_lshl_b32 s34, s31, 6")
    a("s_waitcnt vmcnt(0)")
    for i in range(8):
        a(f"v_add_f32 v{8+i}, v{8+i}, v{16+i}")
        a(f"v_add_f32 v{24+i}, v{24+i}, v{32+i}")
    for i in range(8):
        a(f"v_add_f32 v{8+i}, v{8+i}, v{24+i}")
    for p in range(4):
        a(f"v_cvt_pk_bf16_f32 v{16+p}, v{8+2*p}, v{9+2*p}")
    for p in range(4):
        a(f"v_lshlrev_b32 v{24+2*p}, 16, v{16+p}")
        a(f"v_and_b32 v{25+2*p}, 0xffff0000, v{16+p}")
        a(f"v_lshlrev_b32 v{32+2*p}, 16, v{4+p}")
        a(f"v_and_b32 v{33+2*p}, 0xffff0000, v{4+p}")
    for i in range(8):
        a(f"v_add_f32 v{24+i}, v{24+i}, v{32+i}")
    for p in range(4):
        a(f"v_cvt_pk_bf16_f32 v{16+p}, v{24+2*p}, v{25+2*p}")
    a(f"buffer_store_dwordx2 v[16:17], v2, {sr(sO,4)}, s34 offen")
    a(f"buffer_store_dwordx2 v[18:19], v2, {sr(sO,4)}, s34 offen offset:32")
    a.lab(f"L_{name}_done")
    a("s_endpgm")
    return a.text(), kernel_desc(name, 40, 48), f"; @launch kernel={name} grid=(576,1,1) block=(256,1,1) lds=0"


def gen_k2(name="k2_kernel"):
    a = A(); vm = VM(a)
    kernel_head(a, name)
    PITCH = 224; BLK = 32*PITCH
    ACC = 4
    OF = 28
    XR = 100
    WR = 112
    vD = 160
    vWa, vWb = 167, 168
    vT = 170
    NV = 188
    sW, sO, sXs, sH, sST = 12, 16, 20, 24, 28
    sWave, sRb, sNb, sT = 32, 33, 34, 36
    a("s_cmp_ge_u32 s2, 192")
    a(f"s_cbranch_scc1 L_{name}_done")
    stamp(a, 0); stamp(a, 5, True)
    a("s_load_dwordx2 s[4:5], s[0:1], 0")
    a("s_load_dwordx2 s[6:7], s[0:1], 16")
    a("s_load_dwordx2 s[8:9], s[0:1], 72")
    a("v_lshrrev_b32 v1, 6, v0")
    a("v_and_b32 v0, 63, v0")
    a("s_nop 0")
    a(f"v_readfirstlane_b32 s{sWave}, v1")
    a(f"s_lshr_b32 s{sT+1}, s2, 3")
    a(f"s_mul_i32 s{sRb}, s{sT+1}, 10923")
    a(f"s_lshr_b32 s{sRb}, s{sRb}, 16")
    a(f"s_mul_i32 s{sT}, s{sRb}, 6")
    a(f"s_sub_u32 s{sNb}, s{sT+1}, s{sT}")
    a(f"s_and_b32 s{sT}, s2, 7")
    a(f"s_lshl_b32 s{sT}, s{sT}, 2")
    a(f"s_add_u32 s{sRb}, s{sRb}, s{sT}")
    a("s_waitcnt lgkmcnt(0)")
    srd(a, sW, 6, 576*576*2)
    srd(a, sO, 8, O_SZ, O_OFF)
    srd(a, sXs, 4, 2048*576*2)
    srd(a, sH, 8, H1_SZ, H1_OFF)
    srd(a, sST, 8, ST_SZ, ST_OFF)
    a(f"s_mul_i32 s{sT}, s{sNb}, 192")
    a(f"s_mov_b32 s{sT+1}, 0x40000000")
    for t in range(7):
        a(f"v_add_u32 v{vT}, {t*64}, v0")
        a(f"v_mul_u32_u24 v{vT+1}, 4682, v{vT}")
        a(f"v_lshrrev_b32 v{vT+1}, 16, v{vT+1}")
        a(f"v_mul_u32_u24 v{vT+2}, 14, v{vT+1}")
        a(f"v_sub_u32 v{vT+2}, v{vT}, v{vT+2}")
        a(f"v_and_b32 v{vT+3}, 4, v{vT+1}")
        a(f"v_lshlrev_b32 v{vT+3}, 1, v{vT+3}")
        a(f"v_and_b32 v{vT+4}, 8, v{vT+1}")
        a(f"v_lshrrev_b32 v{vT+4}, 1, v{vT+4}")
        a(f"v_and_b32 v{vT+1}, 0x13, v{vT+1}")
        a(f"v_or3_b32 v{vT+1}, v{vT+1}, v{vT+3}, v{vT+4}")
        a(f"v_mul_u32_u24 v{vT+1}, 1152, v{vT+1}")
        a(f"v_lshl_add_u32 v{vT+1}, v{vT+2}, 4, v{vT+1}")
        a(f"v_add_u32 v{vT+1}, s{sT}, v{vT+1}")
        a(f"v_cmp_gt_u32 vcc, 12, v{vT+2}")
        a(f"v_mov_b32 v{vT+3}, s{sT+1}")
        a("s_nop 0")
        a(f"v_cndmask_b32 v{vD+t}, v{vT+3}, v{vT+1}, vcc")
    a(f"s_lshl_b32 s{sT}, s{sRb}, 6")
    a(f"s_lshl_b32 s{sT+1}, s{sWave}, 4")
    a(f"s_add_u32 s{sT}, s{sT}, s{sT+1}")
    a(f"v_and_b32 v{vT}, 15, v0")
    a(f"v_add_u32 v{vT}, s{sT}, v{vT}")
    a(f"v_mul_u32_u24 v{vT+1}, 1152, v{vT}")
    a(f"v_lshrrev_b32 v{vT+2}, 4, v0")
    a(f"s_lshr_b32 s{sT+4}, s{sT}, 4")
    a(f"s_mul_i32 s{sT+4}, s{sT+4}, 18432")
    a(f"v_lshlrev_b32 v{vT+3}, 4, v0")
    a(f"v_add_u32 v{vT+3}, s{sT+4}, v{vT+3}")
    a(f"v_lshl_add_u32 v{vT+4}, v{vT+2}, 3, v{vT+1}")
    for q in range(1, 5): a(f"s_movk_i32 s{sT+4+q}, {q*4096}")
    def osoff(s_): return ("s%d" % (sT+4+s_//4)) if s_ >= 4 else "0"
    a(f"s_mul_i32 s{sT+1}, s{sNb}, 192")
    a(f"s_mul_i32 s{sT+2}, s{sWave}, {32*1152}")
    a(f"s_mul_i32 s{sT+3}, s{sWave}, {BLK}")
    def chunk_ops(c):
        gs = []
        if c > 4: return gs
        for t in range(7):
            g = [("s", f"s_add_u32 m0, s{sT+3}, {c*4*BLK + t*1024}"), ("s", "s_nop 0"),
                 (("W", c), f"buffer_load_dwordx4 v{vD+t}, {sr(sW,4)}, s{sT+2} offen lds")]
            if t == 6: g.append(("s", f"s_add_u32 s{sT+2}, s{sT+2}, {4*32*1152}"))
            gs.append(g)
        for s_ in range(4*c, min(4*c+4, 18)):
            gs.append([(("O", c), f"buffer_load_dwordx4 {vr(OF+s_*4,4)}, v{vT+3}, {sr(sO,4)}, {osoff(s_)} offen offset:{(s_%4)*1024}")])
        return gs
    def emit_group(g):
        for tg, txt in g:
            if tg == "s": a(txt)
            else: vm.op(tg, txt)
    for c in range(2):
        for g in chunk_ops(c): emit_group(g)
    a(f"v_lshrrev_b32 v{vT+5}, 5, v0")
    a(f"v_lshlrev_b32 v{vT+5}, 4, v{vT+5}")
    a(f"v_bfe_u32 v{vT+6}, v0, 2, 3")
    a(f"v_add_u32 v{vT+5}, v{vT+5}, v{vT+6}")
    a(f"v_mul_u32_u24 v{vT+5}, {PITCH}, v{vT+5}")
    a(f"v_and_b32 v{vT+6}, 3, v0")
    a(f"v_lshl_add_u32 v{vWa}, v{vT+6}, 3, v{vT+5}")
    a(f"v_add_u32 v{vWb}, {9*BLK}, v{vWa}")
    def wread(s_, buf):
        base = vWa if s_ < 9 else vWb
        for nt in range(6):
            off = (s_ % 9) * BLK + nt * 32
            a(f"ds_read_b64_tr_b16 {vr(WR+buf*24+nt*4,2)}, v{base} offset:{off}")
            a(f"ds_read_b64_tr_b16 {vr(WR+buf*24+nt*4+2,2)}, v{base} offset:{off+8*PITCH}")
    for c in range(5):
        vm.wait(lambda t: t[1] <= c)
        a("s_barrier")
        if c == 0: stamp(a, 1)
        lg = chunk_ops(c+2)
        if c == 2:
            for nt in range(6):
                lg.append([(("X", 9), f"buffer_load_dwordx2 {vr(XR+nt*2,2)}, v{vT+4}, {sr(sXs,4)}, s{sT+1} offen offset:{nt*32}")])
        gi = 0
        steps = list(range(4*c, min(4*c+4, 18)))
        wread(steps[0], steps[0] % 2)
        for s_ in steps:
            if s_ != steps[-1]:
                wread(s_+1, (s_+1) % 2)
                a("s_waitcnt lgkmcnt(12)")
            else:
                a("s_waitcnt lgkmcnt(0)")
            for nt in range(6):
                cc = vr(ACC+nt*4,4)
                a(f"v_mfma_f32_16x16x32_bf16 {cc}, {vr(WR+(s_%2)*24+nt*4,4)}, {vr(OF+s_*4,4)}, " + ("0" if s_ == 0 else cc))
                if gi < len(lg):
                    emit_group(lg[gi]); gi += 1
        assert gi == len(lg)
    a("s_waitcnt vmcnt(0)")
    a("s_nop 7")
    stamp(a, 2)
    HP = WR
    for nt in range(6):
        for p in range(2):
            c0 = ACC + nt*4 + 2*p
            a(f"v_cvt_pk_bf16_f32 v{vT}, v{c0}, v{c0+1}")
            a(f"v_lshlrev_b32 v{c0}, 16, v{vT}")
            a(f"v_and_b32 v{c0+1}, 0xffff0000, v{vT}")
            a(f"v_lshlrev_b32 v{vT+1}, 16, v{XR+nt*2+p}")
            a(f"v_and_b32 v{vT+2}, 0xffff0000, v{XR+nt*2+p}")
            a(f"v_add_f32 v{c0}, v{c0}, v{vT+1}")
            a(f"v_add_f32 v{c0+1}, v{c0+1}, v{vT+2}")
            a(f"v_cvt_pk_bf16_f32 v{HP+nt*2+p}, v{c0}, v{c0+1}")
            a(f"v_lshlrev_b32 v{c0}, 16, v{HP+nt*2+p}")
            a(f"v_and_b32 v{c0+1}, 0xffff0000, v{HP+nt*2+p}")
    a(f"s_lshl_b32 s{sT}, s{sRb}, 2")
    a(f"s_add_u32 s{sT}, s{sT}, s{sWave}")
    a(f"s_mul_i32 s{sT+1}, s{sT}, 18")
    a(f"s_mul_i32 s{sT+2}, s{sNb}, 3")
    a(f"s_add_u32 s{sT+1}, s{sT+1}, s{sT+2}")
    a(f"s_lshl_b32 s{sT+1}, s{sT+1}, 10")
    a(f"v_lshlrev_b32 v{vT}, 4, v0")
    for p in range(3):
        a(f"buffer_store_dwordx4 {vr(HP+p*4,4)}, v{vT}, {sr(sH,4)}, s{sT+1} offen offset:{p*1024}")
    def xreduce(v, t):
        a(f"v_xor_b32 v{t}, 16, v0")
        a(f"v_lshlrev_b32 v{t}, 2, v{t}")
        a(f"ds_bpermute_b32 v{t+1}, v{t}, v{v}")
        a("s_waitcnt lgkmcnt(0)")
        a(f"v_add_f32 v{v}, v{v}, v{t+1}")
        a(f"v_xor_b32 v{t}, 32, v0")
        a(f"v_lshlrev_b32 v{t}, 2, v{t}")
        a(f"ds_bpermute_b32 v{t+1}, v{t}, v{v}")
        a("s_waitcnt lgkmcnt(0)")
        a(f"v_add_f32 v{v}, v{v}, v{t+1}")
    S0, S1 = vT+4, vT+5
    a(f"v_add_f32 v{S0}, v{ACC}, v{ACC+1}")
    for i in range(2, 24):
        a(f"v_add_f32 v{S0}, v{S0}, v{ACC+i}")
    xreduce(S0, vT+6)
    a(f"v_mul_f32 v{S0}, {f32(1.0/96.0)}, v{S0}")
    a(f"v_mov_b32 v{S1}, 0")
    for i in range(24):
        a(f"v_sub_f32 v{vT+1}, v{ACC+i}, v{S0}")
        a(f"v_fmac_f32 v{S1}, v{vT+1}, v{vT+1}")
    xreduce(S1, vT+6)
    a(f"s_lshl_b32 s{sT}, s{sT}, 4")
    a(f"v_add_u32 v{vT}, s{sT}, v0")
    a(f"v_mul_u32_u24 v{vT}, 48, v{vT}")
    a(f"s_lshl_b32 s{sT+1}, s{sNb}, 3")
    a("s_mov_b64 exec, 0xffff")
    a(f"buffer_store_dwordx2 {vr(S0,2)}, v{vT}, {sr(sST,4)}, s{sT+1} offen")
    stamp(a, 3)
    if "stamp" in OPT: a("s_waitcnt vmcnt(0)")
    stamp(a, 4); stamp(a, 6, True)
    stamp_dump(a, 7, 8, sWave, vT+8, 2)
    a.lab(f"L_{name}_done")
    a("s_endpgm")
    return a.text(), kernel_desc(name, NV, 96), f"; @launch kernel={name} grid=(192,1,1) block=(256,1,1) lds={20*BLK}"

def gen_k2v2(name="k2_kernel"):
    a = A(); vm = VM(a)
    kernel_head(a, name)
    PITCH = 224; BLK = 32*PITCH
    ACC = 4
    OF = 28
    XR = 100
    WR = 112
    vD = 160
    vWa, vWb = 167, 168
    vT = 170
    NV = 188
    sW, sO, sXs, sH, sST = 12, 16, 20, 24, 28
    sWave, sRb, sNb, sT = 32, 33, 34, 36
    a("s_cmp_ge_u32 s2, 192")
    a(f"s_cbranch_scc1 L_{name}_done")
    stamp(a, 0); stamp(a, 5, True)
    a("s_load_dwordx2 s[4:5], s[0:1], 0")
    a("s_load_dwordx2 s[6:7], s[0:1], 16")
    a("s_load_dwordx2 s[8:9], s[0:1], 72")
    a("v_lshrrev_b32 v1, 6, v0")
    a("v_and_b32 v0, 63, v0")
    a("s_nop 0")
    a(f"v_readfirstlane_b32 s{sWave}, v1")
    a(f"s_lshr_b32 s35, s{sWave}, 2")
    a(f"s_and_b32 s{sWave}, s{sWave}, 3")
    a(f"s_lshr_b32 s{sT+1}, s2, 3")
    a(f"s_mul_i32 s{sRb}, s{sT+1}, 10923")
    a(f"s_lshr_b32 s{sRb}, s{sRb}, 16")
    a(f"s_mul_i32 s{sT}, s{sRb}, 6")
    a(f"s_sub_u32 s{sNb}, s{sT+1}, s{sT}")
    a(f"s_and_b32 s{sT}, s2, 7")
    a(f"s_lshl_b32 s{sT}, s{sT}, 2")
    a(f"s_add_u32 s{sRb}, s{sRb}, s{sT}")
    a("s_waitcnt lgkmcnt(0)")
    srd(a, sW, 6, 576*576*2)
    srd(a, sO, 8, O_SZ, O_OFF)
    srd(a, sXs, 4, 2048*576*2)
    srd(a, sH, 8, H1_SZ, H1_OFF)
    srd(a, sST, 8, ST_SZ, ST_OFF)
    a(f"s_mul_i32 s{sT}, s{sNb}, 192")
    a(f"s_mov_b32 s{sT+1}, 0x40000000")
    for t in range(7):
        a(f"v_add_u32 v{vT}, {t*64}, v0")
        a(f"v_mul_u32_u24 v{vT+1}, 4682, v{vT}")
        a(f"v_lshrrev_b32 v{vT+1}, 16, v{vT+1}")
        a(f"v_mul_u32_u24 v{vT+2}, 14, v{vT+1}")
        a(f"v_sub_u32 v{vT+2}, v{vT}, v{vT+2}")
        a(f"v_and_b32 v{vT+3}, 4, v{vT+1}")
        a(f"v_lshlrev_b32 v{vT+3}, 1, v{vT+3}")
        a(f"v_and_b32 v{vT+4}, 8, v{vT+1}")
        a(f"v_lshrrev_b32 v{vT+4}, 1, v{vT+4}")
        a(f"v_and_b32 v{vT+1}, 0x13, v{vT+1}")
        a(f"v_or3_b32 v{vT+1}, v{vT+1}, v{vT+3}, v{vT+4}")
        a(f"v_mul_u32_u24 v{vT+1}, 1152, v{vT+1}")
        a(f"v_lshl_add_u32 v{vT+1}, v{vT+2}, 4, v{vT+1}")
        a(f"v_add_u32 v{vT+1}, s{sT}, v{vT+1}")
        a(f"v_cmp_gt_u32 vcc, 12, v{vT+2}")
        a(f"v_mov_b32 v{vT+3}, s{sT+1}")
        a("s_nop 0")
        a(f"v_cndmask_b32 v{vD+t}, v{vT+3}, v{vT+1}, vcc")
    a(f"s_lshl_b32 s{sT}, s{sRb}, 6")
    a(f"s_lshl_b32 s{sT+1}, s{sWave}, 4")
    a(f"s_add_u32 s{sT}, s{sT}, s{sT+1}")
    a(f"v_and_b32 v{vT}, 15, v0")
    a(f"v_add_u32 v{vT}, s{sT}, v{vT}")
    a(f"v_mul_u32_u24 v{vT+1}, 1152, v{vT}")
    a(f"v_lshrrev_b32 v{vT+2}, 4, v0")
    a(f"s_lshr_b32 s{sT+4}, s{sT}, 4")
    a(f"s_mul_i32 s{sT+4}, s{sT+4}, 18432")
    a(f"v_lshlrev_b32 v{vT+3}, 4, v0")
    a(f"v_add_u32 v{vT+3}, s{sT+4}, v{vT+3}")
    a(f"v_lshl_add_u32 v{vT+4}, v{vT+2}, 3, v{vT+1}")
    for q in range(1, 5): a(f"s_movk_i32 s{sT+4+q}, {q*4096}")
    def osoff(s_): return ("s%d" % (sT+4+s_//4)) if s_ >= 4 else "0"
    a(f"s_mul_i32 s{sT+1}, s{sNb}, 192")
    a(f"s_mul_i32 s{sT+2}, s{sWave}, {32*1152}")
    a(f"s_mul_i32 s{sT+3}, s{sWave}, {BLK}")
    a("s_cmp_eq_u32 s35, 0")
    a(f"s_cbranch_scc1 L_{name}_comp")
    for c in range(5):
        for t in range(7):
            a(f"s_add_u32 m0, s{sT+3}, {c*4*BLK + t*1024}")
            a("s_nop 0")
            a(f"buffer_load_dwordx4 v{vD+t}, {sr(sW,4)}, s{sT+2} offen lds")
        a(f"s_add_u32 s{sT+2}, s{sT+2}, {4*32*1152}")
    for c in range(5):
        a(f"s_waitcnt vmcnt({(4-c)*7})")
        a("s_barrier")
    a("s_endpgm")
    a.lab(f"L_{name}_comp")
    for s_ in range(18):
        vm.op(("O", s_), f"buffer_load_dwordx4 {vr(OF+s_*4,4)}, v{vT+3}, {sr(sO,4)}, {osoff(s_)} offen offset:{(s_%4)*1024}")
    for nt in range(6):
        vm.op(("X", 99), f"buffer_load_dwordx2 {vr(XR+nt*2,2)}, v{vT+4}, {sr(sXs,4)}, s{sT+1} offen offset:{nt*32}")
    a(f"v_lshrrev_b32 v{vT+5}, 5, v0")
    a(f"v_lshlrev_b32 v{vT+5}, 4, v{vT+5}")
    a(f"v_bfe_u32 v{vT+6}, v0, 2, 3")
    a(f"v_add_u32 v{vT+5}, v{vT+5}, v{vT+6}")
    a(f"v_mul_u32_u24 v{vT+5}, {PITCH}, v{vT+5}")
    a(f"v_and_b32 v{vT+6}, 3, v0")
    a(f"v_lshl_add_u32 v{vWa}, v{vT+6}, 3, v{vT+5}")
    a(f"v_add_u32 v{vWb}, {9*BLK}, v{vWa}")
    def wread(s_, buf):
        base = vWa if s_ < 9 else vWb
        for nt in range(6):
            off = (s_ % 9) * BLK + nt * 32
            a(f"ds_read_b64_tr_b16 {vr(WR+buf*24+nt*4,2)}, v{base} offset:{off}")
            a(f"ds_read_b64_tr_b16 {vr(WR+buf*24+nt*4+2,2)}, v{base} offset:{off+8*PITCH}")
    for c in range(5):
        a("s_barrier")
        if c == 0: stamp(a, 1)
        steps = list(range(4*c, min(4*c+4, 18)))
        wread(steps[0], steps[0] % 2)
        vm.wait(lambda t: t[0] == "O" and t[1] <= steps[-1])
        for s_ in steps:
            if s_ != steps[-1]:
                wread(s_+1, (s_+1) % 2)
                a("s_waitcnt lgkmcnt(12)")
            else:
                a("s_waitcnt lgkmcnt(0)")
            for nt in range(6):
                cc = vr(ACC+nt*4,4)
                a(f"v_mfma_f32_16x16x32_bf16 {cc}, {vr(WR+(s_%2)*24+nt*4,4)}, {vr(OF+s_*4,4)}, " + ("0" if s_ == 0 else cc))
    a("s_waitcnt vmcnt(0)")
    a("s_nop 7")
    stamp(a, 2)
    HP = WR
    for nt in range(6):
        for p in range(2):
            c0 = ACC + nt*4 + 2*p
            a(f"v_cvt_pk_bf16_f32 v{vT}, v{c0}, v{c0+1}")
            a(f"v_lshlrev_b32 v{c0}, 16, v{vT}")
            a(f"v_and_b32 v{c0+1}, 0xffff0000, v{vT}")
            a(f"v_lshlrev_b32 v{vT+1}, 16, v{XR+nt*2+p}")
            a(f"v_and_b32 v{vT+2}, 0xffff0000, v{XR+nt*2+p}")
            a(f"v_add_f32 v{c0}, v{c0}, v{vT+1}")
            a(f"v_add_f32 v{c0+1}, v{c0+1}, v{vT+2}")
            a(f"v_cvt_pk_bf16_f32 v{HP+nt*2+p}, v{c0}, v{c0+1}")
            a(f"v_lshlrev_b32 v{c0}, 16, v{HP+nt*2+p}")
            a(f"v_and_b32 v{c0+1}, 0xffff0000, v{HP+nt*2+p}")
    a(f"s_lshl_b32 s{sT}, s{sRb}, 2")
    a(f"s_add_u32 s{sT}, s{sT}, s{sWave}")
    a(f"s_mul_i32 s{sT+1}, s{sT}, 18")
    a(f"s_mul_i32 s{sT+2}, s{sNb}, 3")
    a(f"s_add_u32 s{sT+1}, s{sT+1}, s{sT+2}")
    a(f"s_lshl_b32 s{sT+1}, s{sT+1}, 10")
    a(f"v_lshlrev_b32 v{vT}, 4, v0")
    for p in range(3):
        a(f"buffer_store_dwordx4 {vr(HP+p*4,4)}, v{vT}, {sr(sH,4)}, s{sT+1} offen offset:{p*1024}")
    def xreduce(v, t):
        a(f"v_xor_b32 v{t}, 16, v0")
        a(f"v_lshlrev_b32 v{t}, 2, v{t}")
        a(f"ds_bpermute_b32 v{t+1}, v{t}, v{v}")
        a("s_waitcnt lgkmcnt(0)")
        a(f"v_add_f32 v{v}, v{v}, v{t+1}")
        a(f"v_xor_b32 v{t}, 32, v0")
        a(f"v_lshlrev_b32 v{t}, 2, v{t}")
        a(f"ds_bpermute_b32 v{t+1}, v{t}, v{v}")
        a("s_waitcnt lgkmcnt(0)")
        a(f"v_add_f32 v{v}, v{v}, v{t+1}")
    S0, S1 = vT+4, vT+5
    a(f"v_add_f32 v{S0}, v{ACC}, v{ACC+1}")
    for i in range(2, 24):
        a(f"v_add_f32 v{S0}, v{S0}, v{ACC+i}")
    xreduce(S0, vT+6)
    a(f"v_mul_f32 v{S0}, {f32(1.0/96.0)}, v{S0}")
    a(f"v_mov_b32 v{S1}, 0")
    for i in range(24):
        a(f"v_sub_f32 v{vT+1}, v{ACC+i}, v{S0}")
        a(f"v_fmac_f32 v{S1}, v{vT+1}, v{vT+1}")
    xreduce(S1, vT+6)
    a(f"s_lshl_b32 s{sT}, s{sT}, 4")
    a(f"v_add_u32 v{vT}, s{sT}, v0")
    a(f"v_mul_u32_u24 v{vT}, 48, v{vT}")
    a(f"s_lshl_b32 s{sT+1}, s{sNb}, 3")
    a("s_mov_b64 exec, 0xffff")
    a(f"buffer_store_dwordx2 {vr(S0,2)}, v{vT}, {sr(sST,4)}, s{sT+1} offen")
    stamp(a, 3)
    if "stamp" in OPT: a("s_waitcnt vmcnt(0)")
    stamp(a, 4); stamp(a, 6, True)
    stamp_dump(a, 7, 8, sWave, vT+8, 2)
    a.lab(f"L_{name}_done")
    a("s_endpgm")
    return a.text(), kernel_desc(name, NV, 96), f"; @launch kernel={name} grid=(192,1,1) block=(512,1,1) lds={20*BLK}"

def gen_k1(name="k1_kernel"):
    a = A(); vm = VM(a)
    kernel_head(a, name)
    XT = 0
    WB = 92160; STG = 16384; NST = 4; PITCH = 480
    QP = 624
    ACC = 4
    XF = 44
    WF = 84
    RAW = 100
    vD0, vD1 = 150, 151
    vWa, vXa = 152, 153
    vT = 156
    NV = 200
    sW, sXs, sO = 12, 16, 20
    sWave, sRb, sHg, sT = 28, 29, 30, 36
    sWo, sM0b = 31, 32
    a("s_cmp_ge_u32 s2, 256")
    a(f"s_cbranch_scc1 L_{name}_done")
    stamp(a, 0); stamp(a, 5, True)
    a("s_load_dwordx4 s[4:7], s[0:1], 0")
    a("s_load_dwordx2 s[8:9], s[0:1], 72")
    a("v_lshrrev_b32 v1, 6, v0")
    a("v_mov_b32 v3, v0")
    a("v_and_b32 v0, 63, v0")
    a(f"v_readfirstlane_b32 s{sWave}, v1")
    a(f"s_lshr_b32 s{sT}, s2, 3")
    a(f"s_and_b32 s{sHg}, s{sT}, 3")
    a(f"s_and_b32 s{sT+1}, s2, 1")
    a(f"s_lshl_b32 s{sT+1}, s{sT+1}, 2")
    a(f"s_add_u32 s{sHg}, s{sHg}, s{sT+1}")
    a(f"s_lshr_b32 s{sRb}, s{sT}, 2")
    a(f"s_bfe_u32 s{sT+1}, s2, 0x20001")
    a(f"s_lshl_b32 s{sT+1}, s{sT+1}, 3")
    a(f"s_add_u32 s{sRb}, s{sRb}, s{sT+1}")
    a("s_waitcnt lgkmcnt(0)")
    srd(a, sW, 6, 576*1728*2)
    srd(a, sXs, 4, 2048*576*2)
    srd(a, sO, 8, O_SZ, O_OFF)
    a(f"v_mul_u32_u24 v{vT}, 10923, v0")
    a(f"v_lshrrev_b32 v{vT}, 16, v{vT}")
    a(f"v_mul_u32_u24 v{vT+1}, 6, v{vT}")
    a(f"v_sub_u32 v{vT+1}, v0, v{vT+1}")
    a(f"s_mul_i32 s{sT}, s{sWave}, 10")
    a(f"v_add_u32 v{vT+2}, s{sT}, v{vT}")
    a(f"s_lshl_b32 s{sT+1}, s{sRb}, 6")
    a(f"s_sub_u32 s{sT+1}, s{sT+1}, 16")
    a(f"v_add_u32 v{vT+3}, s{sT+1}, v{vT+2}")
    a(f"s_movk_i32 s{sT+2}, 1152")
    a(f"v_mul_lo_u32 v{vT+3}, v{vT+3}, s{sT+2}")
    a(f"v_lshl_add_u32 v{vT+3}, v{vT+1}, 4, v{vT+3}")
    for i in range(12):
        vm.op(("x", i), f"buffer_load_dwordx4 {vr(RAW+i*4,4)}, v{vT+3}, {sr(sXs,4)}, 0 offen offset:{i*96}")
    a(f"s_lshl_b32 s{sT}, s{sWave}, 7")
    a(f"s_mul_i32 s{sT+1}, s{sHg}, 144")
    a(f"s_mov_b32 s{sT+2}, 0x40000000")
    for t, vd in enumerate((vD0, vD1)):
        a(f"v_add_u32 v{vT+4}, s{sT}, v0")
        if t: a(f"v_add_u32 v{vT+4}, 64, v{vT+4}")
        a(f"v_mul_u32_u24 v{vT+5}, 2185, v{vT+4}")
        a(f"v_lshrrev_b32 v{vT+5}, 16, v{vT+5}")
        a(f"v_mul_u32_u24 v{vT+6}, 30, v{vT+5}")
        a(f"v_sub_u32 v{vT+6}, v{vT+4}, v{vT+6}")
        a(f"v_mul_u32_u24 v{vT+7}, 7282, v{vT+6}")
        a(f"v_lshrrev_b32 v{vT+7}, 16, v{vT+7}")
        a(f"v_mul_u32_u24 v{vT+8}, 9, v{vT+7}")
        a(f"v_sub_u32 v{vT+8}, v{vT+6}, v{vT+8}")
        a(f"v_mul_u32_u24 v{vT+7}, 1152, v{vT+7}")
        a(f"v_lshl_add_u32 v{vT+7}, v{vT+8}, 4, v{vT+7}")
        a(f"v_and_b32 v{vT+8}, 4, v{vT+5}")
        a(f"v_lshlrev_b32 v{vT+8}, 1, v{vT+8}")
        a(f"v_and_b32 v{vT+9}, 8, v{vT+5}")
        a(f"v_lshrrev_b32 v{vT+9}, 1, v{vT+9}")
        a(f"v_and_b32 v{vT+10}, 0x13, v{vT+5}")
        a(f"v_or3_b32 v{vT+8}, v{vT+8}, v{vT+9}, v{vT+10}")
        a(f"v_mul_u32_u24 v{vT+8}, 3456, v{vT+8}")
        a(f"v_add3_u32 v{vT+7}, v{vT+7}, v{vT+8}, s{sT+1}")
        a(f"v_cmp_gt_u32 vcc, 27, v{vT+6}")
        a(f"v_cmp_gt_u32 s[{sT+4}:{sT+5}], 32, v{vT+5}")
        a(f"s_and_b64 vcc, vcc, s[{sT+4}:{sT+5}]")
        a(f"v_mov_b32 v{vT+8}, s{sT+2}")
        a("s_nop 1")
        a(f"v_cndmask_b32 v{vd}, v{vT+8}, v{vT+7}, vcc")
    a(f"s_lshl_b32 s{sM0b}, s{sWave}, 11")
    a(f"s_add_u32 s{sM0b}, s{sM0b}, {WB}")
    def wdma(i):
        if i >= 18: return
        st = i % NST
        a(f"s_mov_b32 s{sWo}, {i*32*3456}")
        for t, vd in enumerate((vD0, vD1)):
            a(f"s_add_u32 m0, s{sM0b}, {st*STG + t*1024}")
            a("s_nop 0")
            vm.op(("W", i), f"buffer_load_dwordx4 v{vd}, {sr(sW,4)}, s{sWo} offen lds")
    for i in range(4): wdma(i)
    ONES_LO, ONES_HI, ONES = sT+6, sT+7, sT+8
    a(f"s_mov_b32 s{ONES}, 0x3f803f80")
    S, M, Q = vT+4, vT+5, vT+6
    B3, B1, B2 = vT+8, vT+9, vT+10
    for d_, vb in ((3, B3), (1, B1), (2, B2)):
        a(f"v_add_u32 v{vb}, {d_}, v{vT+1}")
        a(f"v_subrev_u32 v{vT+11}, 6, v{vb}")
        a(f"v_min_u32 v{vb}, v{vb}, v{vT+11}")
        a(f"v_mad_u32_u24 v{vb}, v{vT}, 6, v{vb}")
        a(f"v_lshlrev_b32 v{vb}, 2, v{vb}")
    def reduce6(v):
        a(f"ds_bpermute_b32 v{vT+11}, v{B3}, v{v}")
        a("s_waitcnt lgkmcnt(0)")
        a(f"v_add_f32 v{v}, v{v}, v{vT+11}")
        a(f"ds_bpermute_b32 v{vT+11}, v{B1}, v{v}")
        a(f"ds_bpermute_b32 v{vT+12}, v{B2}, v{v}")
        a("s_waitcnt lgkmcnt(0)")
        a(f"v_add_f32 v{v}, v{v}, v{vT+11}")
        a(f"v_add_f32 v{v}, v{v}, v{vT+12}")
    vm.wait(lambda t: t[0] == "x")
    stamp(a, 1)
    if "wtest" in OPT:
        a("s_waitcnt vmcnt(6)")
        stamp(a, 2)
        a("s_waitcnt vmcnt(0)")
        stamp(a, 3)
        stamp(a, 4)
        OPT.discard("stamp"); OPT.add("stamp_off")
    a(f"v_mov_b32 v{S}, 0")
    a(f"v_mov_b32 v{Q}, 0")
    for i in range(48):
        a(f"v_dot2_f32_bf16 v{S if i%2==0 else Q}, v{RAW+i}, s{ONES}, v{S if i%2==0 else Q}")
    a("s_nop 2")
    a(f"v_add_f32 v{S}, v{S}, v{Q}")
    reduce6(S)
    a(f"v_mul_f32 v{S}, {f32(1.0/576.0)}, v{S}")
    round_bf16(a, M, S)
    PM, PQ = 172, 174
    a(f"v_sub_f32 v{PM}, 0, v{M}")
    a(f"v_mov_b32 v{PM+1}, v{PM}")
    a(f"v_mov_b64 {vr(PQ,2)}, 0")
    a(f"v_mov_b64 {vr(PQ+2,2)}, 0")
    for i in range(48):
        t = 178 + (i % 4) * 2
        q = PQ + (i % 2) * 2
        a(f"v_lshlrev_b32 v{t}, 16, v{RAW+i}")
        a(f"v_and_b32 v{t+1}, 0xffff0000, v{RAW+i}")
        a(f"v_pk_add_f32 {vr(t,2)}, {vr(t,2)}, {vr(PM,2)}")
        a(f"v_pk_fma_f32 {vr(q,2)}, {vr(t,2)}, {vr(t,2)}, {vr(q,2)}")
        a(f"v_cvt_pk_bf16_f32 v{RAW+i}, v{t}, v{t+1}")
    a(f"v_add_f32 v{Q}, v{PQ}, v{PQ+1}")
    a(f"v_add_f32 v{vT+13}, v{PQ+2}, v{PQ+3}")
    a(f"v_add_f32 v{Q}, v{Q}, v{vT+13}")
    reduce6(Q)
    a(f"v_mul_f32 v{Q}, {f32(1.0/576.0)}, v{Q}")
    a(f"v_sub_f32 v{vT+13}, v{S}, v{M}")
    a(f"v_fma_f32 v{Q}, -v{vT+13}, v{vT+13}, v{Q}")
    a(f"v_max_f32 v{Q}, 0, v{Q}")
    round_bf16(a, Q, Q)
    a(f"v_add_f32 v{Q}, {f32(1e-5)}, v{Q}")
    round_bf16(a, Q, Q)
    a(f"v_sqrt_f32 v{Q}, v{Q}")
    a("s_nop 0")
    round_bf16(a, Q, Q)
    a(f"v_rcp_f32 v{PM}, v{Q}")
    a(f"v_lshrrev_b32 v{vT+11}, 4, v{vT+2}")
    a(f"v_mov_b32 v{PM+1}, v{PM}")
    a(f"v_mul_u32_u24 v{vT+11}, 18432, v{vT+11}")
    a(f"v_and_b32 v{vT+12}, 15, v{vT+2}")
    a(f"v_lshl_add_u32 v{vT+11}, v{vT+12}, 4, v{vT+11}")
    a(f"v_lshl_add_u32 v{vT+14}, v{vT+1}, 8, v{vT+11}")
    a(f"v_cmp_gt_u32 vcc, 60, v0")
    a(f"s_and_saveexec_b64 s[{sT+4}:{sT+5}], vcc")
    for i in range(12):
        for d_ in range(4):
            x = RAW + i*4 + d_
            t = 178 + d_ * 2
            a(f"v_lshlrev_b32 v{t}, 16, v{x}")
            a(f"v_and_b32 v{t+1}, 0xffff0000, v{x}")
            a(f"v_pk_mul_f32 {vr(t,2)}, {vr(t,2)}, {vr(PM,2)}")
            a(f"v_cvt_pk_bf16_f32 v{x}, v{t}, v{t+1}")
        a(f"ds_write_b128 v{vT+14}, {vr(RAW+i*4,4)} offset:{XT + i*6*256}")
    a(f"s_mov_b64 exec, s[{sT+4}:{sT+5}]")
    stamp(a, 2)
    a(f"v_lshrrev_b32 v{vT+5}, 5, v0")
    a(f"v_lshlrev_b32 v{vT+5}, 4, v{vT+5}")
    a(f"v_bfe_u32 v{vT+6}, v0, 2, 3")
    a(f"v_add_u32 v{vT+5}, v{vT+5}, v{vT+6}")
    a(f"v_mul_u32_u24 v{vT+5}, {PITCH}, v{vT+5}")
    a(f"v_and_b32 v{vT+6}, 3, v0")
    a(f"v_lshl_add_u32 v{vWa}, v{vT+6}, 3, v{vT+5}")
    a(f"s_lshl_b32 s{sT}, s{sWave}, 6")
    a(f"s_add_u32 s{sT}, s{sT}, {WB}")
    a(f"v_add_u32 v{vWa}, s{sT}, v{vWa}")
    a(f"v_lshlrev_b32 v{vXa}, 4, v0")
    for i in range(0, 40, 2):
        a(f"v_mov_b64 {vr(ACC+i,2)}, 0")
    vm.wait(lambda t: t[0] == "W" and t[1] <= 1, " lgkmcnt(0)")
    a("s_barrier")
    def reads(i):
        b = i % 2; st = i % NST
        for n in range(2):
            a(f"ds_read_b64_tr_b16 {vr(WF+b*8+n*4,2)}, v{vWa} offset:{st*STG + n*32}")
            a(f"ds_read_b64_tr_b16 {vr(WF+b*8+n*4+2,2)}, v{vWa} offset:{st*STG + n*32 + 8*PITCH}")
        for mt in range(5):
            off = (mt*18 + i)*1024
            if off < 65536:
                a(f"ds_read_b128 {vr(XF+b*20+mt*4,4)}, v{vXa} offset:{off}")
            else:
                a(f"ds_read_b128 {vr(XF+b*20+mt*4,4)}, v{vT} offset:{off-65536}")
    a(f"v_add_u32 v{vT}, 65536, v{vXa}")
    stamp(a, 3)
    reads(0)
    for i in range(18):
        if i < 17:
            reads(i+1)
            a("s_waitcnt lgkmcnt(9)")
        else:
            a("s_waitcnt lgkmcnt(0)")
        b = i % 2
        k = 0
        for mt in range(5):
            for n in range(2):
                a(f"v_mfma_f32_16x16x32_bf16 {vr(ACC+(mt*2+n)*4,4)}, {vr(WF+b*8+n*4,4)}, {vr(XF+b*20+mt*4,4)}, {vr(ACC+(mt*2+n)*4,4)}")
                k += 1
                if k == 2 and i >= 1:
                    wdma(i+3)
        if i < 17:
            vm.wait(lambda t: t[0] == "W" and t[1] <= i+2)
            a("s_barrier")
    a("s_barrier")
    stamp(a, 4)
    a(f"v_lshrrev_b32 v{vT}, 4, v0")
    a(f"v_lshlrev_b32 v{vT}, 2, v{vT}")
    a(f"s_lshl_b32 s{sT}, s{sWave}, 5")
    a(f"v_add_u32 v{vT}, s{sT}, v{vT}")
    a(f"v_and_b32 v{vT+1}, 15, v0")
    a(f"v_mul_u32_u24 v{vT+1}, {QP}, v{vT+1}")
    AD = vT + 4
    for n in range(2):
        for p in range(2):
            ad = AD + n*2 + p
            a(f"v_add_u32 v{vT+2}, {n*16+p*2}, v{vT}")
            a(f"v_mul_u32_u24 v{vT+3}, 3641, v{vT+2}")
            a(f"v_lshrrev_b32 v{vT+3}, 16, v{vT+3}")
            a(f"v_mul_u32_u24 v{ad}, 18, v{vT+3}")
            a(f"v_sub_u32 v{ad}, v{vT+2}, v{ad}")
            a(f"v_lshl_add_u32 v{ad}, v{ad}, 1, v{vT+1}")
            a(f"v_mad_u32_u24 v{ad}, v{vT+3}, 48, v{ad}")
    a(f"s_cmp_ge_u32 s{sWave}, 7")
    a("s_nop 4")
    a(f"s_cbranch_scc1 L_{name}_skipq")
    for mt in range(5):
        for n in range(2):
            c = ACC + (mt*2+n)*4
            a(f"v_cvt_pk_bf16_f32 v{vT+8}, v{c}, v{c+1}")
            a(f"v_cvt_pk_bf16_f32 v{vT+9}, v{c+2}, v{c+3}")
            a(f"ds_write_b32 v{AD+n*2}, v{vT+8} offset:{mt*16*QP}")
            a(f"ds_write_b32 v{AD+n*2+1}, v{vT+9} offset:{mt*16*QP}")
    a.lab(f"L_{name}_skipq")
    a("s_waitcnt lgkmcnt(0)")
    a("s_barrier")
    if "dbg1" in OPT:
        lds_dump(a, 57344, 9, 3, 190, 210, tag="q")
    a(f"s_cmp_ge_u32 s{sWave}, 4")
    a(f"s_cbranch_scc1 L_{name}_done")
    QR = 4; KR = 16; LG = 120; OA = 130; VR_ = 16
    a(f"v_lshrrev_b32 v{vT}, 2, v3")
    a(f"v_and_b32 v{vT+1}, 3, v3")
    a(f"v_add_u32 v{vT+2}, 2, v{vT}")
    a(f"v_mul_u32_u24 v{vT+2}, {QP}, v{vT+2}")
    a(f"v_mad_u32_u24 v{vT+2}, v{vT+1}, 48, v{vT+2}")
    for j in range(3):
        a(f"ds_read_b128 {vr(QR+j*4,4)}, v{vT+2} offset:{14*QP + j*16}")
    for w in range(8):
        for j in range(3):
            a(f"ds_read_b128 {vr(KR+w*12+j*4,4)}, v{vT+2} offset:{(14-2*w)*QP + 192 + j*16}")
    a(f"s_lshl_b32 s{sT}, s{sRb}, 6")
    a(f"v_add_u32 v{vT+3}, s{sT}, v{vT}")
    a(f"s_mov_b32 s{sT+1}, {f32(18.0**-0.5)}")
    a(f"s_mov_b32 s{sT+2}, {f32(-1e9)}")
    a(f"v_cvt_pk_bf16_f32 v{vT+4}, s{sT+2}, s{sT+2}")
    a(f"v_lshlrev_b32 v{vT+4}, 16, v{vT+4}")
    for w in range(8):
        a(f"s_waitcnt lgkmcnt({min(15, (7-w)*3)})")
        a(f"v_mov_b32 v{LG+w}, 0")
        for d_ in range(9):
            a(f"v_dot2_f32_bf16 v{LG+w}, v{QR+d_}, v{KR+w*12+d_}, v{LG+w}")
        a("s_nop 2")
        round_bf16(a, LG+w, LG+w)
        a(f"v_mul_f32 v{LG+w}, s{sT+1}, v{LG+w}")
        round_bf16(a, LG+w, LG+w)
        a(f"v_cmp_le_u32 vcc, {2*w}, v{vT+3}")
        a("s_nop 1")
        a(f"v_cndmask_b32 v{LG+w}, v{vT+4}, v{LG+w}, vcc")
    for w in range(8):
        for j in range(3):
            a(f"ds_read_b128 {vr(VR_+w*12+j*4,4)}, v{vT+2} offset:{(14-2*w)*QP + 384 + j*16}")
    a(f"v_max3_f32 v{vT+5}, v{LG}, v{LG+1}, v{LG+2}")
    a(f"v_max3_f32 v{vT+5}, v{vT+5}, v{LG+3}, v{LG+4}")
    a(f"v_max3_f32 v{vT+5}, v{vT+5}, v{LG+5}, v{LG+6}")
    a(f"v_max_f32 v{vT+5}, v{vT+5}, v{LG+7}")
    a(f"s_mov_b32 s{sT+3}, {f32(math.log2(math.e))}")
    for w in range(8):
        a(f"v_sub_f32 v{LG+w}, v{LG+w}, v{vT+5}")
        a(f"v_mul_f32 v{LG+w}, s{sT+3}, v{LG+w}")
        a(f"v_exp_f32 v{LG+w}, v{LG+w}")
    a("s_nop 0")
    a(f"v_add_f32 v{vT+6}, v{LG}, v{LG+1}")
    for w in range(2, 8):
        a(f"v_add_f32 v{vT+6}, v{vT+6}, v{LG+w}")
    a(f"v_rcp_f32 v{vT+6}, v{vT+6}")
    a("s_nop 0")
    for w in range(8):
        a(f"v_mul_f32 v{LG+w}, v{LG+w}, v{vT+6}")
    for wp in range(4):
        a(f"v_cvt_pk_bf16_f32 v{LG+wp}, v{LG+2*wp}, v{LG+2*wp+1}")
    for d_ in range(18):
        a(f"v_mov_b32 v{OA+d_}, 0")
    a(f"s_mov_b32 s{sT+4}, 0x05040100")
    a(f"s_mov_b32 s{sT+5}, 0x07060302")
    for wp in range(4):
        a(f"s_waitcnt lgkmcnt({min(15, (3-wp)*6)})")
        for d_ in range(9):
            x0 = VR_ + (2*wp)*12 + d_; x1 = VR_ + (2*wp+1)*12 + d_
            t = vT + 8 + (d_ % 2) * 2
            a(f"v_perm_b32 v{t}, v{x1}, v{x0}, s{sT+4}")
            a(f"v_perm_b32 v{t+1}, v{x1}, v{x0}, s{sT+5}")
            a(f"v_dot2_f32_bf16 v{OA+2*d_}, v{t}, v{LG+wp}, v{OA+2*d_}")
            a(f"v_dot2_f32_bf16 v{OA+2*d_+1}, v{t+1}, v{LG+wp}, v{OA+2*d_+1}")
    a("s_nop 2")
    for d_ in range(9):
        a(f"v_cvt_pk_bf16_f32 v{QR+d_}, v{OA+2*d_}, v{OA+2*d_+1}")
    a(f"v_mul_u32_u24 v{vT+3}, 1152, v{vT+3}")
    a(f"v_mad_u32_u24 v{vT+3}, v{vT+1}, 36, v{vT+3}")
    a(f"s_mul_i32 s{sT}, s{sHg}, 144")
    a(f"buffer_store_dwordx4 {vr(QR,4)}, v{vT+3}, {sr(sO,4)}, s{sT} offen")
    a(f"buffer_store_dwordx4 {vr(QR+4,4)}, v{vT+3}, {sr(sO,4)}, s{sT} offen offset:16")
    a(f"buffer_store_dword v{QR+8}, v{vT+3}, {sr(sO,4)}, s{sT} offen offset:32")
    if "stamp_off" in OPT: OPT.add("stamp")
    if "stamp" in OPT: a("s_waitcnt vmcnt(0)")
    stamp(a, 6, True)
    stamp_dump(a, 7, 8, sWave, vT+8, 3)
    a.lab(f"L_{name}_done")
    a("s_endpgm")
    return a.text(), kernel_desc(name, NV, 96), f"; @launch kernel={name} grid=(256,1,1) block=(512,1,1) lds={WB + NST*STG}"


def dma_slots_setup(a, sWave, sT, vT, vD, rowbytes, sM0, upshift, extra_s=None):
    a(f"s_lshl_b32 s{sT}, s{sWave}, 6")
    a(f"s_sub_u32 s{sT+1}, s{sT}, 64")
    a(f"s_cmp_eq_u32 s{sWave}, 0")
    a(f"s_cselect_b32 s{sT+1}, 512, s{sT+1}")
    a(f"s_cselect_b32 s{sT+3}, 0, {upshift}")
    a(f"s_add_u32 s{sT+2}, s{sT}, 448")
    a(f"s_lshl_b32 s{sM0}, s{sWave}, 10")
    a(f"s_add_u32 s{sM0+1}, s{sM0}, 8192")
    a(f"s_add_u32 s{sM0+1}, s{sM0+1}, s{sT+3}")
    a(f"s_add_u32 s{sM0+2}, s{sM0}, {16384+upshift}")
    for k in range(3):
        a(f"v_add_u32 v{vT+1}, s{sT+k}, v0")
        a(f"v_mul_u32_u24 v{vT+2}, 3641, v{vT+1}")
        a(f"v_lshrrev_b32 v{vT+8+k}, 16, v{vT+2}")
        a(f"v_mul_u32_u24 v{vT+3}, 18, v{vT+8+k}")
        a(f"v_sub_u32 v{vT+3}, v{vT+1}, v{vT+3}")
        a(f"v_mul_u32_u24 v{vT+2}, {rowbytes}, v{vT+8+k}")
        a(f"v_lshl_add_u32 v{vD+k}, v{vT+3}, 4, v{vT+2}")

def gen_k3v2(name="k3_kernel"):
    a = A(); a.k3 = True; a.stpol = os.environ.get("K3ST", "sc1")
    kernel_head(a, name)
    NST = 6; STG = 18560; UP = 9344; RING = 6; PF = RING - 1
    ACC = 4; XS = 148; WR = 196
    vWa, vWb = 220, 221
    vD = 222
    vX0 = 225
    vNM, vR = 226, 227
    vT = 228
    NV = 254
    def acc(nt): return ACC + nt*16
    sWa, sWb_, sWc, sX, sST, sH = 12, 16, 20, 24, 28, 32
    sWave, sFb, sMb = 36, 37, 38
    sWoff, sXoff, sIt = 39, 40, 41
    sM0 = 42
    sT = 46
    sRot, sCnt, sHb = 56, 57, 58
    a("s_cmp_ge_u32 s2, 256")
    a(f"s_cbranch_scc1 L_{name}_done")
    stamp(a, 0); stamp(a, 5, True)
    a("s_load_dwordx4 s[4:7], s[0:1], 32")
    a("s_load_dwordx2 s[8:9], s[0:1], 72")
    a("v_lshrrev_b32 v1, 6, v0")
    a("v_and_b32 v0, 63, v0")
    a("s_nop 0")
    a(f"v_readfirstlane_b32 s{sWave}, v1")
    a(f"s_and_b32 s{sT}, s2, 7")
    a(f"s_lshr_b32 s{sT+1}, s2, 3")
    a(f"s_and_b32 s{sFb}, s{sT+1}, 3")
    a(f"s_lshl_b32 s{sT}, s{sT}, 2")
    a(f"s_add_u32 s{sFb}, s{sFb}, s{sT}")
    a(f"s_lshr_b32 s{sMb}, s{sT+1}, 2")
    dma_slots_setup(a, sWave, sT, vT, vD, 9216, sM0, 128)
    a(f"s_mul_i32 s{sT}, s{sFb}, 288")
    for k in range(3):
        a(f"v_add_u32 v{vD+k}, s{sT}, v{vD+k}")
    a(f"s_lshl_b32 s{sT}, s{sMb}, 4")
    a(f"s_lshl_b32 s{sT+1}, s{sWave}, 1")
    a(f"s_add_u32 s{sT}, s{sT}, s{sT+1}")
    a(f"s_mul_i32 s{sT+1}, s{sT}, 18432")
    a(f"v_bfe_u32 v{vT}, v0, 4, 1")
    a(f"v_mul_u32_u24 v{vT}, 18432, v{vT}")
    a(f"v_lshrrev_b32 v{vT+1}, 5, v0")
    a(f"v_lshl_add_u32 v{vT}, v{vT+1}, 8, v{vT}")
    a(f"v_and_b32 v{vT+1}, 15, v0")
    a(f"v_lshl_add_u32 v{vT}, v{vT+1}, 4, v{vT}")
    a(f"v_add_u32 v{vX0}, s{sT+1}, v{vT}")
    a(f"s_mul_i32 s{sHb}, s{sT}, 144")
    a(f"s_lshr_b32 s{sT+1}, s{sFb}, 1")
    a(f"s_mul_i32 s{sT+1}, s{sT+1}, 9")
    a(f"s_add_u32 s{sHb}, s{sHb}, s{sT+1}")
    a(f"s_lshl_b32 s{sHb}, s{sHb}, 10")
    a(f"s_lshl_b32 s{sT}, s{sT}, 4")
    a(f"v_and_b32 v{vT+4}, 31, v0")
    a(f"v_add_u32 v{vT+4}, s{sT}, v{vT+4}")
    a(f"v_mul_u32_u24 v{vT+4}, 48, v{vT+4}")
    a(f"v_bfe_u32 v{vT}, v0, 4, 1")
    a(f"v_mul_u32_u24 v{vT}, {UP}, v{vT}")
    a(f"v_lshrrev_b32 v{vT+1}, 5, v0")
    a(f"v_bfe_u32 v{vT+2}, v0, 2, 2")
    a(f"v_lshl_add_u32 v{vT+1}, v{vT+1}, 2, v{vT+2}")
    a(f"v_mad_u32_u24 v{vT}, v{vT+1}, 288, v{vT}") if False else None
    a(f"v_mul_u32_u24 v{vT+1}, 288, v{vT+1}")
    a(f"v_add_u32 v{vT}, v{vT}, v{vT+1}")
    a(f"v_and_b32 v{vT+2}, 3, v0")
    a(f"v_lshl_add_u32 v{vWa}, v{vT+2}, 3, v{vT}")
    a(f"v_add_u32 v{vWb}, {3*STG}, v{vWa}")
    if "rot" in OPT:
        a(f"s_mul_i32 s{sRot}, s{sMb}, 9")
        a(f"s_and_b32 s{sT}, s{sFb}, 3")
        a(f"s_mul_i32 s{sT}, s{sT}, 18")
        a(f"s_add_u32 s{sRot}, s{sRot}, s{sT}")
        a(f"s_lshr_b32 s{sRot}, s{sRot}, 2")
        a(f"s_sub_u32 s{sT}, s{sRot}, 18")
        a(f"s_cmp_ge_u32 s{sRot}, 18")
        a(f"s_cselect_b32 s{sRot}, s{sT}, s{sRot}")
    else:
        a(f"s_mov_b32 s{sRot}, 0")
    a(f"s_mov_b32 s{sCnt}, 0")
    a(f"s_mul_i32 s{sWoff}, s{sRot}, {32*9216}")
    a(f"s_lshl_b32 s{sXoff}, s{sRot}, 10")
    a("s_waitcnt lgkmcnt(0)")
    if "pstamp" in OPT: stamp(a, 1)
    srd(a, sWa, 4, 576*4608*2)
    srd(a, sWc, 6, 576*4608*2)
    a(f"s_cmp_eq_u32 s{sWave}, 0")
    a(f"s_cselect_b32 s{sT}, s4, s6")
    a(f"s_cselect_b32 s{sT+1}, s5, s7")
    srd(a, sWb_, sT, 576*4608*2)
    srd(a, sX, 8, H1_SZ, H1_OFF)
    srd(a, sST, 8, ST_SZ, ST_OFF)
    srd(a, sH, 8, HH_SZ, HH_OFF)
    for q in range(3):
        a(f"buffer_load_dwordx4 {vr(WR+q*4,4)}, v{vT+4}, {sr(sST,4)}, 0 offen offset:{q*16}")
    M16 = "m16" in OPT
    TM = int(os.environ.get("TM", "4"))
    sA_, sB_, sE1, sE2 = 60-1, 59-1, 57, 56
    sA_, sB_, sE1, sE2 = 88, 89, 90, 91
    vA, vHo = 244, 245
    EO = 246
    ET = vT + 4
    a(f"s_mov_b32 s{sA_}, {f32(GELU_A)}")
    a(f"s_mov_b32 s{sB_}, {f32(GELU_B)}")
    a(f"v_mov_b32 v{vA}, s{sA_}")
    a(f"v_bfe_u32 v{vHo}, v0, 4, 1")
    a(f"v_mul_u32_u24 v{vHo}, 147456, v{vHo}")
    a(f"v_lshrrev_b32 v{vT+8}, 5, v0")
    a(f"v_lshl_add_u32 v{vHo}, v{vT+8}, 8, v{vHo}")
    a(f"v_and_b32 v{vT+8}, 15, v0")
    a(f"v_lshl_add_u32 v{vHo}, v{vT+8}, 4, v{vHo}")
    a(f"s_and_b32 s{sE2}, s{sFb}, 1")
    a(f"s_lshl_b32 s{sE1}, s{sE2}, 12")
    a(f"s_add_u32 s{sE1}, s{sE1}, s{sHb}")
    a(f"s_lshl_b32 s{sE2}, s{sE2}, 9")
    a(f"s_add_u32 s{sE2}, s{sE2}, s{sHb}")
    a(f"s_add_u32 s{sE2}, s{sE2}, {8*1024}")
    def epi_ops(nt):
        o = EO + (nt % 2) * 4
        out = []
        for hh in range(2):
            lines = [[], []]
            for c in range(2):
                p = hh*2 + c
                x0, x1 = acc(nt) + 2*p, acc(nt) + 2*p + 1
                y0, y1 = x0 + 8, x1 + 8
                t0, t1 = ET + c*2, ET + c*2 + 1
                lines[c] = [f"v_mul_f32 v{t0}, v{x0}, v{x0}", f"v_mul_f32 v{t1}, v{x1}, v{x1}",
                      f"v_fma_f32 v{t0}, v{t0}, s{sB_}, v{vA}", f"v_fma_f32 v{t1}, v{t1}, s{sB_}, v{vA}",
                      f"v_mul_f32 v{t0}, v{t0}, v{x0}", f"v_mul_f32 v{t1}, v{t1}, v{x1}",
                      f"v_exp_f32 v{t0}, v{t0}", f"v_exp_f32 v{t1}, v{t1}",
                      f"v_mul_f32 v{y0}, v{y0}, v{x0}", f"v_mul_f32 v{y1}, v{y1}, v{x1}",
                      f"v_add_f32 v{t0}, 1.0, v{t0}", f"v_add_f32 v{t1}, 1.0, v{t1}",
                      f"v_rcp_f32 v{t0}, v{t0}", f"v_rcp_f32 v{t1}, v{t1}",
                      f"v_mul_f32 v{t0}, v{t0}, v{y0}", f"v_mul_f32 v{t1}, v{t1}, v{y1}",
                      f"v_cvt_pk_bf16_f32 v{o+p}, v{t0}, v{t1}"]
            i0 = i1 = 0
            while i0 < len(lines[0]) or i1 < len(lines[1]):
                for _ in range(2):
                    if i0 < len(lines[0]): out.append(lines[0][i0]); i0 += 1
                for _ in range(2):
                    if i1 < len(lines[1]): out.append(lines[1][i1]); i1 += 1
        if nt < 8:
            out.append(f"buffer_store_dwordx4 {vr(o,4)}, v{vHo}, {sr(sH,4)}, s{sE1} offen offset:{(nt//2)*1024 + (nt%2)*512}")
        else:
            out.append(f"buffer_store_dwordx4 {vr(o,4)}, v{vHo}, {sr(sH,4)}, s{sE2} offen")
        return out
    def body(nd, tag):
        vm = VM(a)
        vm.ops = [("S", 0)] * 3
        srds = (sWa, sWb_, sWc)
        def load_groups(i):
            if i >= 18: return []
            st = i % NST
            gs = []
            for k in range(2):
                gs.append([("s", f"s_add_u32 m0, s{sM0+k}, {st*STG}"), ("s", "s_nop 0"),
                           (("W", i), f"buffer_load_dwordx4 v{vD+k}, {sr(srds[k],4)}, s{sWoff} offen lds")])
            gs[0] = [("s", f"s_cmp_ge_u32 s{sWave}, 2"), ("s", f"s_cbranch_scc1 L_{name}_sk{i}"),
                     ("s", f"s_add_u32 m0, s{sM0+2}, {st*STG}"), ("s", "s_nop 0"),
                     ("s", f"buffer_load_dwordx4 v{vD+2}, {sr(srds[2],4)}, s{sWoff} offen lds"),
                     ("l", f"L_{name}_sk{i}")] + gs[0]
            gs.append([(("X", i), f"buffer_load_dwordx4 {vr(XS+st*8,4)}, v{vX0}, {sr(sX,4)}, s{sXoff} offen")])
            gs.append([(("X", i), f"buffer_load_dwordx4 {vr(XS+st*8+4,4)}, v{vX0}, {sr(sX,4)}, s{sXoff} offen offset:512"),
                       ("s", f"s_add_u32 s{sRot}, s{sRot}, 1"),
                       ("s", f"s_cmp_eq_u32 s{sRot}, {4 if 'hot4' in OPT else 18}"),
                       ("s", f"s_cselect_b32 s{sRot}, 0, s{sRot}"),
                       ("s", f"s_mul_i32 s{sWoff}, s{sRot}, {32*9216}"),
                       ("s", f"s_lshl_b32 s{sXoff}, s{sRot}, 10")])
            return gs
        def emit_group(g):
            for tg, txt in g:
                if tg == "s": a(txt)
                elif tg == "l": a.lab(txt)
                else: vm.op(tg, txt)
        for i in range(2):
            for g in load_groups(i): emit_group(g)
        vm.wait(lambda t: t[0] == "S")
        b = WR
        a(f"v_add_f32 v{vT}, v{b}, v{b+2}")
        a(f"v_add_f32 v{vT+1}, v{b+4}, v{b+6}")
        a(f"v_add_f32 v{vT+2}, v{b+8}, v{b+10}")
        a(f"v_add_f32 v{vT}, v{vT}, v{vT+1}")
        a(f"v_add_f32 v{vT}, v{vT}, v{vT+2}")
        a(f"v_mul_f32 v{vT}, {f32(1.0/6.0)}, v{vT}")
        a(f"v_add_f32 v{vT+1}, v{b+1}, v{b+3}")
        a(f"v_add_f32 v{vT+2}, v{b+5}, v{b+7}")
        a(f"v_add_f32 v{vT+3}, v{b+9}, v{b+11}")
        a(f"v_add_f32 v{vT+1}, v{vT+1}, v{vT+2}")
        a(f"v_add_f32 v{vT+1}, v{vT+1}, v{vT+3}")
        a(f"v_mov_b32 v{vT+2}, 0")
        for t in range(6):
            a(f"v_sub_f32 v{vT+3}, v{b+2*t}, v{vT}")
            a(f"v_fmac_f32 v{vT+2}, v{vT+3}, v{vT+3}")
        a(f"v_fmac_f32 v{vT+1}, {f32(96.0)}, v{vT+2}")
        a(f"v_mul_f32 v{vT+1}, {f32(1.0/576.0)}, v{vT+1}")
        round_bf16(a, vNM, vT)
        round_bf16(a, vT+1, vT+1)
        a(f"v_add_f32 v{vT+1}, {f32(1e-5)}, v{vT+1}")
        round_bf16(a, vT+1, vT+1)
        a(f"v_sqrt_f32 v{vT+1}, v{vT+1}")
        a("s_nop 0")
        round_bf16(a, vT+1, vT+1)
        a(f"v_rcp_f32 v{vR}, v{vT+1}")
        if "exactnorm" not in OPT:
            a("s_nop 0")
            a(f"v_mul_f32 v{vNM}, v{vNM}, v{vR}")
            a(f"v_sub_f32 v{vNM}, 0, v{vNM}")
        def norm_ops(i):
            ops = []
            if i >= 18: return ops
            for h4 in range(2):
                chains = []
                for d in range(4):
                    x = XS + (i % NST)*8 + h4*4 + d
                    t0 = vT + 8 + d * 2; t1 = t0 + 1
                    chains.append([f"v_lshlrev_b32 v{t0}, 16, v{x}", f"v_and_b32 v{t1}, 0xffff0000, v{x}",
                                   f"v_fma_f32 v{t0}, v{t0}, v{vR}, v{vNM}", f"v_fma_f32 v{t1}, v{t1}, v{vR}, v{vNM}",
                                   f"v_cvt_pk_bf16_f32 v{x}, v{t0}, v{t1}"])
                for stage in ((0, 1), (2, 3), (4,)):
                    for c in chains:
                        for j in stage: ops.append(c[j])
            return ops
        NS = 18 - TM
        seq = [(i, f // 9, f % 9) for i in range(NS) for f in range(18)]
        seq += [(i, half, nt) for nt in range(9) for i in range(NS, 18) for half in range(2)]
        def wread(g):
            if g >= len(seq): return
            i, half, nt = seq[g]
            st = i % NST
            slot = g % RING
            base = vWa if st < 3 else vWb
            off = (st % 3) * STG + half * 8 * 288 + nt * 32
            a(f"ds_read_b64_tr_b16 {vr(WR+slot*4,2)}, v{base} offset:{off}")
            a(f"ds_read_b64_tr_b16 {vr(WR+slot*4+2,2)}, v{base} offset:{off+4608}")
        vm.wait(lambda t: t[1] <= 0)
        for op in norm_ops(0): a(op)
        a("s_barrier")
        for f in range(PF): wread(f)
        stamp(a, 1)
        sched = {0: [2, 3], 1: [4, 5], 2: [6, 7]}
        nsched = {i: [i + 1] for i in range(NS)}
        if TM:
            extra = list(range(NS + 1, 18))
            nsched[NS-1] = [NS] + extra[-2:]
            nsched[NS-2] = [NS-1] + extra[:-2]
        for i in range(NS):
            lg = []
            for j in sched.get(i, [i + 5]): lg += load_groups(j)
            nlist = nsched[i]
            ni = 0; gi = 0
            gpos = [1 + (k_ * 16) // max(1, len(lg)) for k_ in range(len(lg))]
            nstart = 6 if i < 3 else 1
            nops = []
            for j in nlist: nops += [("w", j)] + norm_ops(j)
            per = (len(nops) + (16 - nstart)) // (17 - nstart) if nops else 0
            for f in range(18):
                g = i*18 + f
                half, nt = divmod(f, 9)
                slot = g % RING
                if i == 0 and f == 18 - PF:
                    vm.wait(lambda t: t[0] == "W" and t[1] <= 1)
                    a("s_barrier")
                if TM and i == NS - 1 and f == 18 - PF:
                    vm.wait(lambda t: t[0] == "W")
                    a("s_barrier")
                wread(g + PF)
                rem = min(PF, len(seq) - 1 - g)
                a(f"s_waitcnt lgkmcnt({2*rem})")
                if i == 0:
                    a(f"v_mfma_f32_32x32x16_bf16 {vr(acc(nt),16)}, {vr(WR+slot*4,4)}, {vr(XS+(i%NST)*8+half*4,4)}, " + ("0" if half == 0 else vr(acc(nt),16)))
                else:
                    a(f"v_mfma_f32_32x32x16_bf16 {vr(acc(nt),16)}, {vr(WR+slot*4,4)}, {vr(XS+(i%NST)*8+half*4,4)}, {vr(acc(nt),16)}")
                while gi < len(lg) and gpos[gi] <= f:
                    emit_group(lg[gi]); gi += 1
                if f >= nstart:
                    for _ in range(per):
                        if ni < len(nops):
                            op = nops[ni]; ni += 1
                            if isinstance(op, tuple):
                                vm.wait(lambda t: t[0] == "X" and t[1] <= op[1])
                            else: a(op)
            assert ni == len(nops) and gi == len(lg), (i, ni, len(nops), gi, len(lg))
            if i < 17 and not (TM and i == NS - 1):
                vm.wait(lambda t: t[0] == "W" and t[1] <= i + 2)
                a("s_barrier")
        stamp(a, 2)
        g = NS * 18
        pend = []
        for nt in range(9):
            nm = 2 * TM
            per = (len(pend) + nm - 3) // max(1, nm - 2) if pend else 0
            pi = 0
            for q in range(nm):
                i, half, nt_ = seq[g]
                assert nt_ == nt
                slot = g % RING
                wread(g + PF)
                rem = min(PF, len(seq) - 1 - g)
                a(f"s_waitcnt lgkmcnt({2*rem})")
                a(f"v_mfma_f32_32x32x16_bf16 {vr(acc(nt),16)}, {vr(WR+slot*4,4)}, {vr(XS+(i%NST)*8+half*4,4)}, {vr(acc(nt),16)}")
                g += 1
                if q >= 2:
                    for _ in range(per):
                        if pi < len(pend): a(pend[pi]); pi += 1
            assert pi == len(pend)
            pend = epi_ops(nt)
        if not TM:
            a("s_nop 7"); a("s_nop 7")
            for nt in range(8):
                for op in epi_ops(nt): a(op)
        a("s_nop 7"); a("s_nop 7")
        for op in pend: a(op)
    body(2, "B")
    a.lab(f"L_{name}_epi")
    if "pstamp" not in OPT: stamp(a, 3)
    if "stamp" in OPT: a("s_waitcnt vmcnt(0)")
    if "pstamp" not in OPT: stamp(a, 4)
    stamp(a, 6, True)
    stamp_dump(a, 7, 8, sWave, vT+4)
    a.lab(f"L_{name}_done")
    a("s_endpgm")
    return a.text(), kernel_desc(name, NV), f"; @launch kernel={name} grid=(256,1,1) block=(512,1,1) lds={NST*STG}"

def gen_k3m(name="k3_kernel"):
    a = A()
    kernel_head(a, name)
    NST = 6; STG = 18560; UP = 9344; RING = 6; PF = RING - 1
    ACC = 4; XS = 148; WR = 196
    vWa, vWb = 220, 221
    vD = 222
    vX0 = 225
    vNM, vR = 226, 227
    vT = 228
    vX1, vNM1, vR1 = 244, 245, 246
    NV = 248
    def acc(nt, mat, mt): return ACC + ((nt*2+mat)*2+mt)*4
    sWa, sWb_, sWc, sX, sST, sH = 12, 16, 20, 24, 28, 32
    sWave, sFb, sMb = 36, 37, 38
    sWoff, sXoff, sIt = 39, 40, 41
    sM0 = 42
    sT = 46
    sRot, sCnt, sHb = 56, 57, 58
    a("s_cmp_ge_u32 s2, 256")
    a(f"s_cbranch_scc1 L_{name}_done")
    stamp(a, 0); stamp(a, 5, True)
    a("s_load_dwordx4 s[4:7], s[0:1], 32")
    a("s_load_dwordx2 s[8:9], s[0:1], 72")
    a("v_lshrrev_b32 v1, 6, v0")
    a("v_and_b32 v0, 63, v0")
    a("s_nop 0")
    a(f"v_readfirstlane_b32 s{sWave}, v1")
    a(f"s_and_b32 s{sT}, s2, 7")
    a(f"s_lshr_b32 s{sT+1}, s2, 3")
    a(f"s_and_b32 s{sFb}, s{sT+1}, 3")
    a(f"s_lshl_b32 s{sT}, s{sT}, 2")
    a(f"s_add_u32 s{sFb}, s{sFb}, s{sT}")
    a(f"s_lshr_b32 s{sMb}, s{sT+1}, 2")
    dma_slots_setup(a, sWave, sT, vT, vD, 9216, sM0, 128)
    a(f"s_mul_i32 s{sT}, s{sFb}, 288")
    for k in range(3):
        a(f"v_add_u32 v{vD+k}, s{sT}, v{vD+k}")
    a(f"s_lshl_b32 s{sT}, s{sMb}, 4")
    a(f"s_lshl_b32 s{sT+1}, s{sWave}, 1")
    a(f"s_add_u32 s{sT}, s{sT}, s{sT+1}")
    a(f"s_mul_i32 s{sT+1}, s{sT}, 18432")
    a(f"v_lshlrev_b32 v{vT}, 4, v0")
    a(f"v_add_u32 v{vX0}, s{sT+1}, v{vT}")
    a(f"v_add_u32 v{vX1}, 18432, v{vX0}")
    a(f"s_mul_i32 s{sHb}, s{sT}, 144")
    a(f"s_lshr_b32 s{sT+1}, s{sFb}, 1")
    a(f"s_mul_i32 s{sT+1}, s{sT+1}, 9")
    a(f"s_add_u32 s{sHb}, s{sHb}, s{sT+1}")
    a(f"s_lshl_b32 s{sHb}, s{sHb}, 10")
    a(f"s_lshl_b32 s{sT}, s{sT}, 4")
    a(f"v_and_b32 v{vT+4}, 15, v0")
    a(f"v_add_u32 v{vT+4}, s{sT}, v{vT+4}")
    a(f"v_mul_u32_u24 v{vT+4}, 48, v{vT+4}")
    a(f"v_lshrrev_b32 v{vT+1}, 2, v0")
    a(f"v_mul_u32_u24 v{vT+1}, 288, v{vT+1}")
    a(f"v_and_b32 v{vT+2}, 3, v0")
    a(f"v_lshl_add_u32 v{vWa}, v{vT+2}, 3, v{vT+1}")
    a(f"v_add_u32 v{vWb}, {3*STG}, v{vWa}")
    if "rot" in OPT:
        a(f"s_mul_i32 s{sRot}, s{sMb}, 9")
        a(f"s_and_b32 s{sT}, s{sFb}, 3")
        a(f"s_mul_i32 s{sT}, s{sT}, 18")
        a(f"s_add_u32 s{sRot}, s{sRot}, s{sT}")
        a(f"s_lshr_b32 s{sRot}, s{sRot}, 2")
        a(f"s_sub_u32 s{sT}, s{sRot}, 18")
        a(f"s_cmp_ge_u32 s{sRot}, 18")
        a(f"s_cselect_b32 s{sRot}, s{sT}, s{sRot}")
    else:
        a(f"s_mov_b32 s{sRot}, 0")
    a(f"s_mov_b32 s{sCnt}, 0")
    a(f"s_mul_i32 s{sWoff}, s{sRot}, {32*9216}")
    a(f"s_lshl_b32 s{sXoff}, s{sRot}, 10")
    a("s_waitcnt lgkmcnt(0)")
    if "pstamp" in OPT: stamp(a, 1)
    srd(a, sWa, 4, 576*4608*2)
    srd(a, sWc, 6, 576*4608*2)
    a(f"s_cmp_eq_u32 s{sWave}, 0")
    a(f"s_cselect_b32 s{sT}, s4, s6")
    a(f"s_cselect_b32 s{sT+1}, s5, s7")
    srd(a, sWb_, sT, 576*4608*2)
    srd(a, sX, 8, H1_SZ, H1_OFF)
    srd(a, sST, 8, ST_SZ, ST_OFF)
    srd(a, sH, 8, HH_SZ, HH_OFF)
    for mt in range(2):
        for q in range(3):
            a(f"buffer_load_dwordx4 {vr(WR+mt*12+q*4,4)}, v{vT+4}, {sr(sST,4)}, 0 offen offset:{mt*768+q*16}")
    a(f"s_cmp_ge_u32 s{sWave}, 2")
    a(f"s_cbranch_scc1 L_{name}_typeB")

    M16 = "m16" in OPT
    def body(nd, tag):
        vm = VM(a)
        vm.ops = [("S", 0)] * 6
        srds = (sWa, sWb_, sWc)
        def load_groups(i):
            if i >= 18: return []
            st = i % NST
            gs = []
            for k in range(nd):
                gs.append([("s", f"s_add_u32 m0, s{sM0+k}, {st*STG}"), ("s", "s_nop 0"),
                           (("W", i), f"buffer_load_dwordx4 v{vD+k}, {sr(srds[k],4)}, s{sWoff} offen lds")])
            gs.append([(("X", i), f"buffer_load_dwordx4 {vr(XS+st*8,4)}, v{vX0}, {sr(sX,4)}, s{sXoff} offen")])
            gs.append([(("X", i), f"buffer_load_dwordx4 {vr(XS+st*8+4,4)}, v{vX1}, {sr(sX,4)}, s{sXoff} offen"),
                       ("s", f"s_add_u32 s{sRot}, s{sRot}, 1"),
                       ("s", f"s_cmp_eq_u32 s{sRot}, {4 if 'hot4' in OPT else 18}"),
                       ("s", f"s_cselect_b32 s{sRot}, 0, s{sRot}"),
                       ("s", f"s_mul_i32 s{sWoff}, s{sRot}, {32*9216}"),
                       ("s", f"s_lshl_b32 s{sXoff}, s{sRot}, 10")])
            return gs
        def emit_group(g):
            for tg, txt in g:
                if tg == "s": a(txt)
                else: vm.op(tg, txt)
        for i in range(2):
            for g in load_groups(i): emit_group(g)
        vm.wait(lambda t: t[0] == "S")
        for b, vNM_, vR_ in ((WR, vNM, vR), (WR+12, vNM1, vR1)):
            a(f"v_add_f32 v{vT}, v{b}, v{b+2}")
            a(f"v_add_f32 v{vT+1}, v{b+4}, v{b+6}")
            a(f"v_add_f32 v{vT+2}, v{b+8}, v{b+10}")
            a(f"v_add_f32 v{vT}, v{vT}, v{vT+1}")
            a(f"v_add_f32 v{vT}, v{vT}, v{vT+2}")
            a(f"v_mul_f32 v{vT}, {f32(1.0/6.0)}, v{vT}")
            a(f"v_add_f32 v{vT+1}, v{b+1}, v{b+3}")
            a(f"v_add_f32 v{vT+2}, v{b+5}, v{b+7}")
            a(f"v_add_f32 v{vT+3}, v{b+9}, v{b+11}")
            a(f"v_add_f32 v{vT+1}, v{vT+1}, v{vT+2}")
            a(f"v_add_f32 v{vT+1}, v{vT+1}, v{vT+3}")
            a(f"v_mov_b32 v{vT+2}, 0")
            for t in range(6):
                a(f"v_sub_f32 v{vT+3}, v{b+2*t}, v{vT}")
                a(f"v_fmac_f32 v{vT+2}, v{vT+3}, v{vT+3}")
            a(f"v_fmac_f32 v{vT+1}, {f32(96.0)}, v{vT+2}")
            a(f"v_mul_f32 v{vT+1}, {f32(1.0/576.0)}, v{vT+1}")
            round_bf16(a, vNM_, vT)
            round_bf16(a, vT+1, vT+1)
            a(f"v_add_f32 v{vT+1}, {f32(1e-5)}, v{vT+1}")
            round_bf16(a, vT+1, vT+1)
            a(f"v_sqrt_f32 v{vT+1}, v{vT+1}")
            a("s_nop 0")
            round_bf16(a, vT+1, vT+1)
            a(f"v_rcp_f32 v{vR_}, v{vT+1}")
            if "exactnorm" not in OPT:
                a("s_nop 0")
                a(f"v_mul_f32 v{vNM_}, v{vNM_}, v{vR_}")
                a(f"v_sub_f32 v{vNM_}, 0, v{vNM_}")
        def norm_ops(i):
            ops = []
            if i >= 18: return ops
            for d in range(8):
                x = XS + (i % NST)*8 + d
                t0 = vT + (d % 2) * 2; t1 = t0 + 1
                vNM, vR = (226, 227) if d < 4 else (vNM1, vR1)
                ops.append(f"v_lshlrev_b32 v{t0}, 16, v{x}")
                ops.append(f"v_and_b32 v{t1}, 0xffff0000, v{x}")
                if "exactnorm" in OPT:
                    ops.append(f"v_sub_f32 v{t0}, v{t0}, v{vNM}")
                    ops.append(f"v_sub_f32 v{t1}, v{t1}, v{vNM}")
                    ops.append(f"v_cvt_pk_bf16_f32 v{t0}, v{t0}, v{t1}")
                    ops.append(f"v_and_b32 v{t1}, 0xffff0000, v{t0}")
                    ops.append(f"v_lshlrev_b32 v{t0}, 16, v{t0}")
                    ops.append(f"v_mul_f32 v{t0}, v{t0}, v{vR}")
                    ops.append(f"v_mul_f32 v{t1}, v{t1}, v{vR}")
                else:
                    ops.append(f"v_fma_f32 v{t0}, v{t0}, v{vR}, v{vNM}")
                    ops.append(f"v_fma_f32 v{t1}, v{t1}, v{vR}, v{vNM}")
                ops.append(f"v_cvt_pk_bf16_f32 v{x}, v{t0}, v{t1}")
            return ops
        def wread(g):
            i, f = divmod(g, 18)
            if i >= 18: return
            st = i % NST
            nt, mat = divmod(f, 2)
            slot = g % RING
            base = vWa if st < 3 else vWb
            off = (st % 3) * STG + mat * UP + nt * 32
            a(f"ds_read_b64_tr_b16 {vr(WR+slot*4,2)}, v{base} offset:{off}")
            a(f"ds_read_b64_tr_b16 {vr(WR+slot*4+2,2)}, v{base} offset:{off+4608}")
        vm.wait(lambda t: t[1] <= 0)
        for op in norm_ops(0): a(op)
        a("s_barrier")
        for f in range(PF): wread(f)
        stamp(a, 1)
        sched = {0: [2, 3], 1: [4, 5], 2: [6, 7]}
        for i in range(18):
            lg = []
            for j in sched.get(i, [i + 5]): lg += load_groups(j)
            nops = norm_ops(i + 1)
            ni = 0; gi = 0
            gpos = [1 + (k * 16) // max(1, len(lg)) for k in range(len(lg))]
            nstart = 6 if i < 3 else 1
            per = (len(nops) + (16 - nstart)) // (17 - nstart) if nops else 0
            for f in range(18):
                g = i*18 + f
                half, nt = divmod(f, 9)
                slot = g % RING
                if i == 0 and f == 18 - PF:
                    vm.wait(lambda t: t[0] == "W" and t[1] <= 1)
                    a("s_barrier")
                wread(g + PF)
                rem = min(PF, 18*18 - 1 - g)
                a(f"s_waitcnt lgkmcnt({2*rem})")
                nt, mat = divmod(f, 2)
                for mt in range(2):
                    a(f"v_mfma_f32_16x16x32_bf16 {vr(acc(nt,mat,mt),4)}, {vr(WR+slot*4,4)}, {vr(XS+(i%NST)*8+mt*4,4)}, " + ("0" if i == 0 else vr(acc(nt,mat,mt),4)))
                if f == nstart and nops:
                    vm.wait(lambda t: t[0] == "X" and t[1] <= i + 1)
                while gi < len(lg) and gpos[gi] <= f:
                    emit_group(lg[gi]); gi += 1
                if f >= nstart:
                    for _ in range(per):
                        if ni < len(nops):
                            a(nops[ni]); ni += 1
            assert ni == len(nops) and gi == len(lg), (i, ni, len(nops), gi, len(lg))
            if i < 17:
                vm.wait(lambda t: t[0] == "W" and t[1] <= i + 2)
                a("s_barrier")
    body(3, "A")
    a(f"s_branch L_{name}_epi")
    a.lab(f"L_{name}_typeB")
    body(2, "B")
    a.lab(f"L_{name}_epi")
    if "pstamp" not in OPT: stamp(a, 2)
    a("s_waitcnt vmcnt(0) lgkmcnt(0)")
    sA_, sB_ = sT+6, sT+7
    a(f"s_mov_b32 s{sA_}, {f32(GELU_A)}")
    a(f"s_mov_b32 s{sB_}, {f32(GELU_B)}")
    a(f"v_lshlrev_b32 v{vX0}, 4, v0")
    a(f"s_and_b32 s{sT}, s{sFb}, 1")
    a(f"s_lshl_b32 s{sT+1}, s{sT}, 12")
    a(f"s_add_u32 s{sT+1}, s{sT+1}, s{sHb}")
    a(f"s_lshl_b32 s{sT+2}, s{sT}, 3")
    a(f"s_add_u32 s{sT+2}, s{sT+2}, s{sHb}")
    a(f"s_add_u32 s{sT+2}, s{sT+2}, {8*1024}")
    a(f"s_add_u32 s{sT+3}, s{sT+1}, {144*1024}")
    a(f"s_add_u32 s{sT+4}, s{sT+2}, {144*1024}")
    a(f"v_mov_b32 v{vT}, s{sA_}")
    a("s_nop 7")
    def gelu_tile(nt, mt, dst):
        T = WR
        lines = [[], []]
        for c in range(2):
            g0, g1 = acc(nt,0,mt) + 2*c, acc(nt,0,mt) + 2*c + 1
            u0, u1 = acc(nt,1,mt) + 2*c, acc(nt,1,mt) + 2*c + 1
            t0, t1 = T + c*8 + 4, T + c*8 + 5
            x0, x1, y0, y1 = g0, g1, u0, u1
            L = lines[c]
            L += [f"v_mul_f32 v{t0}, v{x0}, v{x0}", f"v_mul_f32 v{t1}, v{x1}, v{x1}",
                  f"v_fma_f32 v{t0}, v{t0}, s{sB_}, v{vT}", f"v_fma_f32 v{t1}, v{t1}, s{sB_}, v{vT}",
                  f"v_mul_f32 v{t0}, v{t0}, v{x0}", f"v_mul_f32 v{t1}, v{t1}, v{x1}",
                  f"v_exp_f32 v{t0}, v{t0}", f"v_exp_f32 v{t1}, v{t1}",
                  f"v_mul_f32 v{y0}, v{y0}, v{x0}", f"v_mul_f32 v{y1}, v{y1}, v{x1}",
                  f"v_add_f32 v{t0}, 1.0, v{t0}", f"v_add_f32 v{t1}, 1.0, v{t1}",
                  f"v_rcp_f32 v{t0}, v{t0}", f"v_rcp_f32 v{t1}, v{t1}",
                  f"v_mul_f32 v{t0}, v{t0}, v{y0}", f"v_mul_f32 v{t1}, v{t1}, v{y1}",
                  f"v_cvt_pk_bf16_f32 v{dst+c}, v{t0}, v{t1}"]
        i0 = i1 = 0
        while i0 < len(lines[0]) or i1 < len(lines[1]):
            for _ in range(2):
                if i0 < len(lines[0]): a(lines[0][i0]); i0 += 1
            for _ in range(2):
                if i1 < len(lines[1]): a(lines[1][i1]); i1 += 1
    k = 0
    for mt in range(2):
        for p in range(4):
            o = XS + (k % 12) * 4; k += 1
            gelu_tile(2*p, mt, o)
            gelu_tile(2*p+1, mt, o+2)
            a(f"buffer_store_dwordx4 {vr(o,4)}, v{vX0}, {sr(sH,4)}, s{sT+1+2*mt} offen offset:{p*1024}")
        o = XS + (k % 12) * 4; k += 1
        gelu_tile(8, mt, o)
        a(f"buffer_store_dwordx2 {vr(o,2)}, v{vX0}, {sr(sH,4)}, s{sT+2+2*mt} offen")
    if "pstamp" not in OPT: stamp(a, 3)
    if "stamp" in OPT: a("s_waitcnt vmcnt(0)")
    if "pstamp" not in OPT: stamp(a, 4)
    stamp(a, 6, True)
    stamp_dump(a, 7, 8, sWave, vT+4)
    a.lab(f"L_{name}_done")
    a("s_endpgm")
    return a.text(), kernel_desc(name, NV), f"; @launch kernel={name} grid=(256,1,1) block=(512,1,1) lds={NST*STG}"

def gen_k4v2(name="k4_kernel"):
    a = A(); a.stpol = os.environ.get("K4ST", "sc1")
    kernel_head(a, name)
    NST = 6; STG = 18432; RING = 6; PFD = 5; PF = RING - 1
    ROWB = 4608 if "m16" in OPT else 2304
    ACC = 4; XS = 76; WR = 124
    vWa, vWb = 148, 149
    vD = 150; vDm = 153
    vX0, vX1 = 156, 157
    vT = 160
    NV = 176
    def acc(nt, mt): return ACC + (nt*2+mt)*4
    sW, sX, sP = 12, 16, 20
    sWave, sKs, sMb, sNb = 28, 29, 30, 31
    sWb1, sXb, sPb = 32, 33, 34
    sM0 = 36
    sT = 40
    sWo = 52
    a("s_cmp_ge_u32 s2, 256")
    a(f"s_cbranch_scc1 L_{name}_done")
    stamp(a, 0); stamp(a, 5, True)
    a("s_load_dwordx2 s[4:5], s[0:1], 48")
    a("s_load_dwordx2 s[8:9], s[0:1], 72")
    a("v_lshrrev_b32 v1, 6, v0")
    a("v_and_b32 v0, 63, v0")
    a("s_nop 0")
    a(f"v_readfirstlane_b32 s{sWave}, v1")
    a(f"s_and_b32 s{sT}, s2, 7")
    a(f"s_lshr_b32 s{sT+1}, s2, 3")
    a(f"s_lshr_b32 s{sKs}, s{sT}, 1")
    a(f"s_and_b32 s{sNb}, s{sT+1}, 3")
    a(f"s_and_b32 s{sT}, s{sT}, 1")
    a(f"s_lshl_b32 s{sT}, s{sT}, 3")
    a(f"s_lshr_b32 s{sMb}, s{sT+1}, 2")
    a(f"s_add_u32 s{sMb}, s{sMb}, s{sT}")
    dma_slots_setup(a, sWave, sT, vT, vD, 1152, sM0, 0)
    a(f"s_cmp_eq_u32 s{sWave}, 0")
    a(f"s_cselect_b32 s{sT}, 0, {576*1152}")
    a(f"v_add_u32 v{vD+1}, s{sT}, v{vD+1}")
    a(f"v_add_u32 v{vD+2}, {576*1152}, v{vD+2}")
    a(f"s_mov_b32 s{sT}, {128*1152}")
    for k in range(3):
        a(f"v_cmp_lt_u32 vcc, 15, v{vT+8+k}")
        a(f"v_mov_b32 v{vT+1}, s{sT}")
        a("s_nop 0")
        a(f"v_cndmask_b32 v{vT+1}, 0, v{vT+1}, vcc")
        a(f"v_add_u32 v{vDm+k}, v{vD+k}, v{vT+1}")
    a(f"s_mul_i32 s{sWb1}, s{sKs}, {2*576*1152}")
    a(f"s_mul_i32 s{sT}, s{sNb}, 288")
    a(f"s_add_u32 s{sWb1}, s{sWb1}, s{sT}")
    a(f"s_lshr_b32 s{sT}, s{sWave}, 2")
    a(f"s_lshl_b32 s{sT+1}, s{sKs}, 1")
    a(f"s_add_u32 s{sT+1}, s{sT+1}, s{sT}")
    a(f"s_and_b32 s{sT+2}, s{sWave}, 3")
    a(f"s_lshl_b32 s{sXb}, s{sMb}, 3")
    a(f"s_lshl_b32 s{sT+3}, s{sT+2}, 1")
    a(f"s_add_u32 s{sXb}, s{sXb}, s{sT+3}")
    a(f"s_mov_b32 s{sT+4}, s{sXb}")
    a(f"s_mul_i32 s{sXb}, s{sXb}, 144")
    a(f"s_mul_i32 s{sT+3}, s{sT+1}, 18")
    a(f"s_add_u32 s{sXb}, s{sXb}, s{sT+3}")
    a(f"s_lshl_b32 s{sXb}, s{sXb}, 10")
    a(f"v_lshlrev_b32 v{vX0}, 4, v0")
    a(f"v_add_u32 v{vX0}, s{sXb}, v{vX0}")
    a(f"v_add_u32 v{vX1}, {144*1024}, v{vX0}")
    a(f"s_lshl_b32 s{sPb}, s{sKs}, 7")
    a(f"s_add_u32 s{sPb}, s{sPb}, s{sT+4}")
    a(f"s_add_u32 s{sPb}, s{sPb}, s{sT}")
    a(f"s_mul_i32 s{sPb}, s{sPb}, 36")
    a(f"s_mul_i32 s{sT+6}, s{sNb}, 9")
    a(f"s_add_u32 s{sPb}, s{sPb}, s{sT+6}")
    a(f"s_lshl_b32 s{sPb}, s{sPb}, 10")
    if "m16" in OPT:
        a(f"v_lshrrev_b32 v{vT+5}, 2, v0")
    else:
        a(f"v_lshrrev_b32 v{vT+5}, 5, v0")
        a(f"v_lshlrev_b32 v{vT+5}, 4, v{vT+5}")
        a(f"v_bfe_u32 v{vT+6}, v0, 2, 3")
        a(f"v_add_u32 v{vT+5}, v{vT+5}, v{vT+6}")
    a(f"v_mul_u32_u24 v{vT+5}, 288, v{vT+5}")
    a(f"v_and_b32 v{vT+6}, 3, v0")
    a(f"v_lshl_add_u32 v{vWa}, v{vT+6}, 3, v{vT+5}")
    a(f"s_mul_i32 s{sT+6}, s{sT}, 9216")
    a(f"v_add_u32 v{vWa}, s{sT+6}, v{vWa}")
    a(f"v_add_u32 v{vWb}, {3*STG}, v{vWa}")
    a("s_waitcnt lgkmcnt(0)")
    srd(a, sW, 4, 4608*576*2)
    srd(a, sX, 8, HH_SZ, HH_OFF)
    srd(a, sP, 8, P_SZ, P_OFF)
    def fa_rel(i):
        q, ii = divmod(i, 9)
        if ii < 4: return 288*q + 32*ii
        if ii < 8: return 288*q + 144 + 32*(ii-4)
        return 288*q + 128
    def body(nd, tag):
        vm = VM(a)
        def load_groups(i):
            if i >= 18: return []
            st = i % NST
            gs = []
            vv = vDm if i % 9 == 8 else vD
            for k in range(2):
                g = []
                if k == 0:
                    g.append(("s", f"s_add_u32 s{sWo}, s{sWb1}, {fa_rel(i)*1152}"))
                    g += [("s", f"s_cmp_ge_u32 s{sWave}, 2"), ("s", f"s_cbranch_scc1 L_{name}_sk{i}"),
                          ("s", f"s_add_u32 m0, s{sM0+2}, {st*STG}"), ("s", "s_nop 0"),
                          ("s", f"buffer_load_dwordx4 v{vv+2}, {sr(sW,4)}, s{sWo} offen lds"),
                          ("l", f"L_{name}_sk{i}")]
                g.append(("s", f"s_add_u32 m0, s{sM0+k}, {st*STG}"))
                g.append(("s", "s_nop 0"))
                g.append((("W", i), f"buffer_load_dwordx4 v{vv+k}, {sr(sW,4)}, s{sWo} offen lds"))
                gs.append(g)
            xs = XS + (i % NST) * 8
            gs.append([("s", f"s_mov_b32 s{sWo+1}, {i*1024}"),
                       (("X", i), f"buffer_load_dwordx4 {vr(xs,4)}, v{vX0}, {sr(sX,4)}, s{sWo+1} offen")])
            gs.append([(("X", i), f"buffer_load_dwordx4 {vr(xs+4,4)}, v{vX1}, {sr(sX,4)}, s{sWo+1} offen")])
            return gs
        def emit_group(g):
            for tg, txt in g:
                if tg == "s": a(txt)
                elif tg == "l": a.lab(txt)
                else: vm.op(tg, txt)
        for i in range(2):
            for g in load_groups(i): emit_group(g)
        for i in range(0, 72, 2):
            a(f"v_mov_b64 {vr(ACC+i,2)}, 0")
        sched = {0: [2, 3], 1: [4, 5], 2: [6, 7]}
        def wread(gidx):
            i, nt = divmod(gidx, 9)
            if i >= 18: return
            st = i % NST; slot = gidx % RING
            base = vWa if st < 3 else vWb
            off = (st % 3) * STG + nt * 32
            a(f"ds_read_b64_tr_b16 {vr(WR+slot*4,2)}, v{base} offset:{off}")
            a(f"ds_read_b64_tr_b16 {vr(WR+slot*4+2,2)}, v{base} offset:{off+ROWB}")
        vm.wait(lambda t: t[1] <= 0)
        a("s_barrier")
        for f in range(PF): wread(f)
        stamp(a, 1)
        for i in range(18):
            lg = []
            for j in sched.get(i, [i + PFD]): lg += load_groups(j)
            vm.wait(lambda t: t[0] == "X" and t[1] <= i)
            gi = 0
            gpos = [(k * 9) // max(1, len(lg)) for k in range(len(lg))]
            for nt in range(9):
                g = i*9 + nt; slot = g % RING
                if i == 0 and nt == 9 - PF:
                    vm.wait(lambda t: t[0] == "W" and t[1] <= 1)
                    a("s_barrier")
                wread(g + PF)
                rem = min(PF, 18*9 - 1 - g)
                a(f"s_waitcnt lgkmcnt({2*rem})")
                xs = XS + (i % NST) * 8
                a(f"v_mfma_f32_16x16x32_bf16 {vr(acc(nt,0),4)}, {vr(WR+slot*4,4)}, {vr(xs,4)}, {vr(acc(nt,0),4)}")
                a(f"v_mfma_f32_16x16x32_bf16 {vr(acc(nt,1),4)}, {vr(WR+slot*4,4)}, {vr(xs+4,4)}, {vr(acc(nt,1),4)}")
                while gi < len(lg) and gpos[gi] <= nt:
                    emit_group(lg[gi]); gi += 1
            assert gi == len(lg)
            vm.wait(lambda t: t[0] == "W" and t[1] <= i + 2)
            a("s_barrier")
    body(2, "B")
    a.lab(f"L_{name}_epi")
    stamp(a, 2)
    a(f"s_lshr_b32 s{sT}, s{sWave}, 2")
    a(f"v_lshlrev_b32 v{vT}, 4, v0")
    a(f"s_mul_i32 s{sT+1}, s{sWave}, 9216")
    a(f"v_add_u32 v{vT+1}, s{sT+1}, v{vT}")
    a(f"s_xor_b32 s{sT+2}, s{sWave}, 4")
    a(f"s_mul_i32 s{sT+2}, s{sT+2}, 9216")
    a(f"v_add_u32 v{vT+2}, s{sT+2}, v{vT}")
    a(f"s_cmp_eq_u32 s{sT}, 0")
    a("s_nop 4")
    a(f"s_cbranch_scc0 L_{name}_kh1")
    for kh in range(2):
        if kh == 1: a.lab(f"L_{name}_kh1")
        for nt in range(9):
            a(f"ds_write_b128 v{vT+1}, {vr(acc(nt,1-kh),4)} offset:{nt*1024}")
        a("s_waitcnt lgkmcnt(0)")
        a("s_barrier")
        for nt in range(9):
            a(f"ds_read_b128 {vr(XS+nt*4,4)}, v{vT+2} offset:{nt*1024}")
        for nt in range(9):
            a(f"s_waitcnt lgkmcnt({8-nt})")
            for r in range(4):
                a(f"v_add_f32 v{XS+nt*4+r}, v{XS+nt*4+r}, v{acc(nt,kh)+r}")
            if nt in (4, 8): a(f"s_add_u32 s{sPb}, s{sPb}, 4096")
            a(f"buffer_store_dwordx4 {vr(XS+nt*4,4)}, v{vT}, {sr(sP,4)}, s{sPb} offen offset:{(nt%4)*1024}")
        stamp(a, 3)
        if "stamp" in OPT: a("s_waitcnt vmcnt(0)")
        stamp(a, 4); stamp(a, 6, True)
        stamp_dump(a, 7, 8, sWave, vT+4, 1)
        a("s_endpgm")
    a.lab(f"L_{name}_done")
    a("s_endpgm")
    return a.text(), kernel_desc(name, NV), f"; @launch kernel={name} grid=(256,1,1) block=(512,1,1) lds={NST*STG}"


def gen_k45(name="k4_kernel"):
    a = A(); a.stpol = os.environ.get("K4ST", "sc1")
    kernel_head(a, name)
    NST = 6; STG = 18432; RING = 6; PFD = 5; PF = RING - 1
    ROWB = 4608 if "m16" in OPT else 2304
    ACC = 4; XS = 76; WR = 124
    vWa, vWb = 148, 149
    vD = 150; vDm = 153
    vX0, vX1 = 156, 157
    vT = 160
    NV = 176
    def acc(nt, mt): return ACC + (nt*2+mt)*4
    sW, sX, sP = 12, 16, 20
    sWave, sKs, sMb, sNb = 28, 29, 30, 31
    sWb1, sXb, sPb = 32, 33, 34
    sM0 = 36
    sT = 40
    sWo = 52
    NC = 144
    a(f"s_cmp_ge_u32 s2, {256+NC}")
    a(f"s_cbranch_scc1 L_{name}_done")
    a("s_cmp_ge_u32 s2, 256")
    a(f"s_cbranch_scc1 L_{name}_cons")
    stamp(a, 0); stamp(a, 5, True)
    a("s_load_dwordx2 s[4:5], s[0:1], 48")
    a("s_load_dwordx2 s[8:9], s[0:1], 72")
    a("s_load_dwordx2 s[10:11], s[0:1], 64")
    a("v_lshrrev_b32 v1, 6, v0")
    a("v_and_b32 v0, 63, v0")
    a("s_nop 0")
    a(f"v_readfirstlane_b32 s{sWave}, v1")
    a(f"s_and_b32 s{sT}, s2, 7")
    a(f"s_lshr_b32 s{sT+1}, s2, 3")
    a(f"s_lshr_b32 s{sKs}, s{sT}, 1")
    a(f"s_and_b32 s{sNb}, s{sT+1}, 3")
    a(f"s_and_b32 s{sT}, s{sT}, 1")
    a(f"s_lshl_b32 s{sT}, s{sT}, 3")
    a(f"s_lshr_b32 s{sMb}, s{sT+1}, 2")
    a(f"s_add_u32 s{sMb}, s{sMb}, s{sT}")
    dma_slots_setup(a, sWave, sT, vT, vD, 1152, sM0, 0)
    a(f"s_cmp_eq_u32 s{sWave}, 0")
    a(f"s_cselect_b32 s{sT}, 0, {576*1152}")
    a(f"v_add_u32 v{vD+1}, s{sT}, v{vD+1}")
    a(f"v_add_u32 v{vD+2}, {576*1152}, v{vD+2}")
    a(f"s_mov_b32 s{sT}, {128*1152}")
    for k in range(3):
        a(f"v_cmp_lt_u32 vcc, 15, v{vT+8+k}")
        a(f"v_mov_b32 v{vT+1}, s{sT}")
        a("s_nop 0")
        a(f"v_cndmask_b32 v{vT+1}, 0, v{vT+1}, vcc")
        a(f"v_add_u32 v{vDm+k}, v{vD+k}, v{vT+1}")
    a(f"s_mul_i32 s{sWb1}, s{sKs}, {2*576*1152}")
    a(f"s_mul_i32 s{sT}, s{sNb}, 288")
    a(f"s_add_u32 s{sWb1}, s{sWb1}, s{sT}")
    a(f"s_lshr_b32 s{sT}, s{sWave}, 2")
    a(f"s_lshl_b32 s{sT+1}, s{sKs}, 1")
    a(f"s_add_u32 s{sT+1}, s{sT+1}, s{sT}")
    a(f"s_and_b32 s{sT+2}, s{sWave}, 3")
    a(f"s_lshl_b32 s{sXb}, s{sMb}, 3")
    a(f"s_lshl_b32 s{sT+3}, s{sT+2}, 1")
    a(f"s_add_u32 s{sXb}, s{sXb}, s{sT+3}")
    a(f"s_mov_b32 s{sT+4}, s{sXb}")
    a(f"s_mul_i32 s{sXb}, s{sXb}, 144")
    a(f"s_mul_i32 s{sT+3}, s{sT+1}, 18")
    a(f"s_add_u32 s{sXb}, s{sXb}, s{sT+3}")
    a(f"s_lshl_b32 s{sXb}, s{sXb}, 10")
    a(f"v_lshlrev_b32 v{vX0}, 4, v0")
    a(f"v_add_u32 v{vX0}, s{sXb}, v{vX0}")
    a(f"v_add_u32 v{vX1}, {144*1024}, v{vX0}")
    a(f"s_lshl_b32 s{sPb}, s{sKs}, 7")
    a(f"s_add_u32 s{sPb}, s{sPb}, s{sT+4}")
    a(f"s_add_u32 s{sPb}, s{sPb}, s{sT}")
    a(f"s_mul_i32 s{sPb}, s{sPb}, 36")
    a(f"s_mul_i32 s{sT+6}, s{sNb}, 9")
    a(f"s_add_u32 s{sPb}, s{sPb}, s{sT+6}")
    a(f"s_lshl_b32 s{sPb}, s{sPb}, 10")
    if "m16" in OPT:
        a(f"v_lshrrev_b32 v{vT+5}, 2, v0")
    else:
        a(f"v_lshrrev_b32 v{vT+5}, 5, v0")
        a(f"v_lshlrev_b32 v{vT+5}, 4, v{vT+5}")
        a(f"v_bfe_u32 v{vT+6}, v0, 2, 3")
        a(f"v_add_u32 v{vT+5}, v{vT+5}, v{vT+6}")
    a(f"v_mul_u32_u24 v{vT+5}, 288, v{vT+5}")
    a(f"v_and_b32 v{vT+6}, 3, v0")
    a(f"v_lshl_add_u32 v{vWa}, v{vT+6}, 3, v{vT+5}")
    a(f"s_mul_i32 s{sT+6}, s{sT}, 9216")
    a(f"v_add_u32 v{vWa}, s{sT+6}, v{vWa}")
    a(f"v_add_u32 v{vWb}, {3*STG}, v{vWa}")
    a("s_waitcnt lgkmcnt(0)")
    srd(a, sW, 4, 4608*576*2)
    srd(a, sX, 8, HH_SZ, HH_OFF)
    srd(a, sP, 8, P_SZ, P_OFF)
    a(f"s_cmp_ge_u32 s{sWave}, 2")
    a(f"s_cbranch_scc1 L_{name}_typeB")
    def fa_rel(i):
        q, ii = divmod(i, 9)
        if ii < 4: return 288*q + 32*ii
        if ii < 8: return 288*q + 144 + 32*(ii-4)
        return 288*q + 128
    def body(nd, tag):
        vm = VM(a)
        def load_groups(i):
            if i >= 18: return []
            st = i % NST
            gs = []
            vv = vDm if i % 9 == 8 else vD
            for k in range(nd):
                g = []
                if k == 0:
                    g.append(("s", f"s_add_u32 s{sWo}, s{sWb1}, {fa_rel(i)*1152}"))
                g.append(("s", f"s_add_u32 m0, s{sM0+k}, {st*STG}"))
                g.append(("s", "s_nop 0"))
                g.append((("W", i), f"buffer_load_dwordx4 v{vv+k}, {sr(sW,4)}, s{sWo} offen lds"))
                gs.append(g)
            xs = XS + (i % NST) * 8
            gs.append([("s", f"s_mov_b32 s{sWo+1}, {i*1024}"),
                       (("X", i), f"buffer_load_dwordx4 {vr(xs,4)}, v{vX0}, {sr(sX,4)}, s{sWo+1} offen")])
            gs.append([(("X", i), f"buffer_load_dwordx4 {vr(xs+4,4)}, v{vX1}, {sr(sX,4)}, s{sWo+1} offen")])
            return gs
        def emit_group(g):
            for tg, txt in g:
                if tg == "s": a(txt)
                else: vm.op(tg, txt)
        for i in range(2):
            for g in load_groups(i): emit_group(g)
        for i in range(0, 72, 2):
            a(f"v_mov_b64 {vr(ACC+i,2)}, 0")
        sched = {0: [2, 3], 1: [4, 5], 2: [6, 7]}
        def wread(gidx):
            i, nt = divmod(gidx, 9)
            if i >= 18: return
            st = i % NST; slot = gidx % RING
            base = vWa if st < 3 else vWb
            off = (st % 3) * STG + nt * 32
            a(f"ds_read_b64_tr_b16 {vr(WR+slot*4,2)}, v{base} offset:{off}")
            a(f"ds_read_b64_tr_b16 {vr(WR+slot*4+2,2)}, v{base} offset:{off+ROWB}")
        vm.wait(lambda t: t[1] <= 0)
        a("s_barrier")
        for f in range(PF): wread(f)
        stamp(a, 1)
        for i in range(18):
            lg = []
            for j in sched.get(i, [i + PFD]): lg += load_groups(j)
            vm.wait(lambda t: t[0] == "X" and t[1] <= i)
            gi = 0
            gpos = [(k * 9) // max(1, len(lg)) for k in range(len(lg))]
            for nt in range(9):
                g = i*9 + nt; slot = g % RING
                if i == 0 and nt == 9 - PF:
                    vm.wait(lambda t: t[0] == "W" and t[1] <= 1)
                    a("s_barrier")
                wread(g + PF)
                rem = min(PF, 18*9 - 1 - g)
                a(f"s_waitcnt lgkmcnt({2*rem})")
                xs = XS + (i % NST) * 8
                a(f"v_mfma_f32_16x16x32_bf16 {vr(acc(nt,0),4)}, {vr(WR+slot*4,4)}, {vr(xs,4)}, {vr(acc(nt,0),4)}")
                a(f"v_mfma_f32_16x16x32_bf16 {vr(acc(nt,1),4)}, {vr(WR+slot*4,4)}, {vr(xs+4,4)}, {vr(acc(nt,1),4)}")
                while gi < len(lg) and gpos[gi] <= nt:
                    emit_group(lg[gi]); gi += 1
            assert gi == len(lg)
            vm.wait(lambda t: t[0] == "W" and t[1] <= i + 2)
            a("s_barrier")
    body(3, "A")
    a(f"s_branch L_{name}_epi")
    a.lab(f"L_{name}_typeB")
    body(2, "B")
    a.lab(f"L_{name}_epi")
    stamp(a, 2)
    a(f"s_lshr_b32 s{sT}, s{sWave}, 2")
    a(f"v_lshlrev_b32 v{vT}, 4, v0")
    a(f"s_mul_i32 s{sT+1}, s{sWave}, 9216")
    a(f"v_add_u32 v{vT+1}, s{sT+1}, v{vT}")
    a(f"s_xor_b32 s{sT+2}, s{sWave}, 4")
    a(f"s_mul_i32 s{sT+2}, s{sT+2}, 9216")
    a(f"v_add_u32 v{vT+2}, s{sT+2}, v{vT}")
    a(f"s_cmp_eq_u32 s{sT}, 0")
    a("s_nop 4")
    a(f"s_cbranch_scc0 L_{name}_kh1")
    for kh in range(2):
        if kh == 1: a.lab(f"L_{name}_kh1")
        for nt in range(9):
            a(f"ds_write_b128 v{vT+1}, {vr(acc(nt,1-kh),4)} offset:{nt*1024}")
        a("s_waitcnt lgkmcnt(0)")
        a("s_barrier")
        for nt in range(9):
            a(f"ds_read_b128 {vr(XS+nt*4,4)}, v{vT+2} offset:{nt*1024}")
        for nt in range(9):
            a(f"s_waitcnt lgkmcnt({8-nt})")
            for r in range(4):
                a(f"v_add_f32 v{XS+nt*4+r}, v{XS+nt*4+r}, v{acc(nt,kh)+r}")
            if nt in (4, 8): a(f"s_add_u32 s{sPb}, s{sPb}, 4096")
            a(f"buffer_store_dwordx4 {vr(XS+nt*4,4)}, v{vT}, {sr(sP,4)}, s{sPb} offen offset:{(nt%4)*1024}")
        stamp(a, 3)
        a("s_waitcnt vmcnt(0)")
        a("s_barrier")
        stamp(a, 4); stamp(a, 6, True)
        stamp_dump(a, 7, 8, sWave, vT+4, 1)
        if kh == 0:
            a(f"s_cmp_lg_u32 s{sWave}, 0")
            a(f"s_cbranch_scc1 L_{name}_done")
            srd(a, 24, 10, 256)
            a(f"s_lshl_b32 s{sT}, s{sMb}, 2")
            a(f"v_mov_b32 v{vT}, s{sT}")
            a(f"v_mov_b32 v{vT+1}, 1")
            a("s_mov_b64 exec, 1")
            a(f"buffer_atomic_add v{vT+1}, v{vT}, s[24:27], 0 offen sc1")
        a("s_endpgm")
    a.lab(f"L_{name}_cons")
    a("s_load_dwordx2 s[4:5], s[0:1], 56")
    a("s_load_dwordx4 s[8:11], s[0:1], 64")
    a("v_lshrrev_b32 v1, 6, v0")
    a("v_and_b32 v0, 63, v0")
    a("s_sub_u32 s28, s2, 256")
    a("v_readfirstlane_b32 s29, v1")
    a("s_mul_i32 s30, s28, 7282")
    a("s_lshr_b32 s30, s30, 16")
    a("s_lshl_b32 s31, s28, 4")
    a("s_lshl_b32 s32, s29, 1")
    a("s_add_u32 s31, s31, s32")
    a("s_waitcnt lgkmcnt(0)")
    srd(a, 12, 10, H1_SZ, H1_OFF)
    srd(a, 16, 10, P_SZ, P_OFF)
    srd(a, 20, 4, 2048*576*2)
    srd(a, 24, 8, 256)
    a("v_lshlrev_b32 v1, 4, v0")
    a("s_lshl_b32 s32, s31, 10")
    a("buffer_load_dwordx4 v[4:7], v1, s[12:15], s32 offen")
    a("buffer_load_dwordx4 v[44:47], v1, s[12:15], s32 offen offset:1024")
    a("s_cmp_lg_u32 s29, 0")
    a(f"s_cbranch_scc1 L_{name}_wait")
    a("s_lshl_b32 s33, s30, 2")
    a("v_mov_b32 v2, s33")
    a.lab(f"L_{name}_poll")
    a("buffer_load_dword v3, v2, s[24:27], 0 offen sc1")
    a("s_waitcnt vmcnt(0)")
    a("v_readfirstlane_b32 s34, v3")
    a("s_cmp_ge_u32 s34, 16")
    a(f"s_cbranch_scc1 L_{name}_wait")
    a("s_sleep 2")
    a(f"s_branch L_{name}_poll")
    a.lab(f"L_{name}_wait")
    a("s_barrier")
    a("s_lshl_b32 s33, s31, 11")
    for t in range(2):
        B = 8 + t*40
        for k_ in range(4):
            a.l.append(f"    buffer_load_dwordx4 v[{B+k_*8}:{B+3+k_*8}], v1, s[16:19], s33 offen offset:{t*2048} sc1")
            a.l.append(f"    buffer_load_dwordx4 v[{B+4+k_*8}:{B+7+k_*8}], v1, s[16:19], s33 offen offset:{t*2048+1024} sc1")
            a(f"s_add_u32 s33, s33, {128*36*1024}")
        a(f"s_sub_u32 s33, s33, {4*128*36*1024}")
    for t in range(2):
        B = 8 + t*40; Hh = 4 + t*40
        a(f"s_add_u32 s35, s31, {t}")
        a("s_mul_i32 s36, s35, 3641")
        a("s_lshr_b32 s36, s36, 16")
        a("s_mul_i32 s37, s36, 18")
        a("s_sub_u32 s37, s35, s37")
        a("v_and_b32 v2, 15, v0")
        a("s_lshl_b32 s38, s36, 4")
        a("v_add_u32 v2, s38, v2")
        a("v_mul_u32_u24 v2, 1152, v2")
        a("v_lshrrev_b32 v3, 4, v0")
        a("v_lshl_add_u32 v2, v3, 3, v2")
        a("s_lshl_b32 s38, s37, 6")
        a(f"s_waitcnt vmcnt({8 if t == 0 else 2})")
        for i in range(8):
            a(f"v_add_f32 v{B+i}, v{B+i}, v{B+8+i}")
            a(f"v_add_f32 v{B+16+i}, v{B+16+i}, v{B+24+i}")
        for i in range(8):
            a(f"v_add_f32 v{B+i}, v{B+i}, v{B+16+i}")
        for p in range(4):
            a(f"v_cvt_pk_bf16_f32 v{B+8+p}, v{B+2*p}, v{B+1+2*p}")
        for p in range(4):
            a(f"v_lshlrev_b32 v{B+16+2*p}, 16, v{B+8+p}")
            a(f"v_and_b32 v{B+17+2*p}, 0xffff0000, v{B+8+p}")
            a(f"v_lshlrev_b32 v{B+24+2*p}, 16, v{Hh+p}")
            a(f"v_and_b32 v{B+25+2*p}, 0xffff0000, v{Hh+p}")
        for i in range(8):
            a(f"v_add_f32 v{B+16+i}, v{B+16+i}, v{B+24+i}")
        for p in range(4):
            a(f"v_cvt_pk_bf16_f32 v{B+8+p}, v{B+16+2*p}, v{B+17+2*p}")
        a(f"buffer_store_dwordx2 v[{B+8}:{B+9}], v2, s[20:23], s38 offen")
        a(f"buffer_store_dwordx2 v[{B+10}:{B+11}], v2, s[20:23], s38 offen offset:32")
    a.lab(f"L_{name}_done")
    a("s_endpgm")
    return a.text(), kernel_desc(name, NV), f"; @launch kernel={name} grid=({256+NC},1,1) block=(512,1,1) lds={NST*STG}"


def gen_k1v3(name="k1_kernel"):
    a = A(); vm = VM(a)
    kernel_head(a, name)
    XT = 0
    WB = 92160; STG = 16384; NST = 4; PITCH = 480
    QP = 624
    ACC = 4
    XF = 44
    WF = 84
    RAW = 100
    vD0, vD1 = 150, 151
    vWa, vXa, vXb = 152, 153, 154
    vNM, vR, vLW = 155, 156, 157
    vT = 160
    NV = 184
    sW, sXs, sO = 12, 16, 20
    sWave, sRb, sHg, sT = 28, 29, 30, 36
    sWo, sM0b = 31, 32
    a("s_cmp_ge_u32 s2, 256")
    a(f"s_cbranch_scc1 L_{name}_done")
    stamp(a, 0); stamp(a, 5, True)
    a("s_load_dwordx4 s[4:7], s[0:1], 0")
    a("s_load_dwordx2 s[8:9], s[0:1], 72")
    if "nowpf" not in OPT:
        a("s_load_dwordx4 s[48:51], s[0:1], 32")
        a("s_load_dwordx2 s[52:53], s[0:1], 48")
        a("s_load_dwordx2 s[92:93], s[0:1], 16")
    a("v_lshrrev_b32 v1, 6, v0")
    a("v_mov_b32 v3, v0")
    a("v_and_b32 v0, 63, v0")
    a(f"v_readfirstlane_b32 s{sWave}, v1")
    a(f"s_lshr_b32 s{sT}, s2, 3")
    a(f"s_and_b32 s{sHg}, s{sT}, 3")
    a(f"s_and_b32 s{sT+1}, s2, 1")
    a(f"s_lshl_b32 s{sT+1}, s{sT+1}, 2")
    a(f"s_add_u32 s{sHg}, s{sHg}, s{sT+1}")
    a(f"s_lshr_b32 s{sRb}, s{sT}, 2")
    a(f"s_bfe_u32 s{sT+1}, s2, 0x20001")
    a(f"s_lshl_b32 s{sT+1}, s{sT+1}, 3")
    a(f"s_add_u32 s{sRb}, s{sRb}, s{sT+1}")
    a(f"v_min_u32 v{vT+4}, 59, v0")
    a(f"v_mul_u32_u24 v{vT}, 10923, v{vT+4}")
    a(f"v_lshrrev_b32 v{vT}, 16, v{vT}")
    a(f"v_mul_u32_u24 v{vT+1}, 6, v{vT}")
    a(f"v_sub_u32 v{vT+1}, v{vT+4}, v{vT+1}")
    a(f"s_mul_i32 s{sT}, s{sWave}, 10")
    a(f"v_add_u32 v{vT+2}, s{sT}, v{vT}")
    a(f"s_lshl_b32 s{sT+1}, s{sRb}, 6")
    a(f"s_sub_u32 s{sT+1}, s{sT+1}, 16")
    a(f"v_add_u32 v{vT+3}, s{sT+1}, v{vT+2}")
    a(f"s_movk_i32 s{sT+2}, 1152")
    a(f"v_mul_lo_u32 v{vT+3}, v{vT+3}, s{sT+2}")
    a(f"v_lshl_add_u32 v{vT+3}, v{vT+1}, 4, v{vT+3}")
    a("s_waitcnt lgkmcnt(0)")
    srd(a, sXs, 4, 2048*576*2)
    for i in range(12):
        vm.op(("x", i), f"buffer_load_dwordx4 {vr(RAW+i*4,4)}, v{vT+3}, {sr(sXs,4)}, 0 offen offset:{i*96}")
    srd(a, sW, 6, 576*1728*2)
    srd(a, sO, 8, O_SZ, O_OFF)
    a(f"s_lshl_b32 s{sT}, s{sWave}, 7")
    a(f"s_mul_i32 s{sT+1}, s{sHg}, 144")
    a(f"s_mov_b32 s{sT+2}, 0x40000000")
    for t, vd in enumerate((vD0, vD1)):
        a(f"v_add_u32 v{vT+4}, s{sT}, v0")
        if t: a(f"v_add_u32 v{vT+4}, 64, v{vT+4}")
        a(f"v_mul_u32_u24 v{vT+5}, 2185, v{vT+4}")
        a(f"v_lshrrev_b32 v{vT+5}, 16, v{vT+5}")
        a(f"v_mul_u32_u24 v{vT+6}, 30, v{vT+5}")
        a(f"v_sub_u32 v{vT+6}, v{vT+4}, v{vT+6}")
        a(f"v_mul_u32_u24 v{vT+7}, 7282, v{vT+6}")
        a(f"v_lshrrev_b32 v{vT+7}, 16, v{vT+7}")
        a(f"v_mul_u32_u24 v{vT+8}, 9, v{vT+7}")
        a(f"v_sub_u32 v{vT+8}, v{vT+6}, v{vT+8}")
        a(f"v_mul_u32_u24 v{vT+7}, 1152, v{vT+7}")
        a(f"v_lshl_add_u32 v{vT+7}, v{vT+8}, 4, v{vT+7}")
        a(f"v_and_b32 v{vT+8}, 4, v{vT+5}")
        a(f"v_lshlrev_b32 v{vT+8}, 1, v{vT+8}")
        a(f"v_and_b32 v{vT+9}, 8, v{vT+5}")
        a(f"v_lshrrev_b32 v{vT+9}, 1, v{vT+9}")
        a(f"v_and_b32 v{vT+10}, 0x13, v{vT+5}")
        a(f"v_or3_b32 v{vT+8}, v{vT+8}, v{vT+9}, v{vT+10}")
        a(f"v_mul_u32_u24 v{vT+8}, 3456, v{vT+8}")
        a(f"v_add3_u32 v{vT+7}, v{vT+7}, v{vT+8}, s{sT+1}")
        a(f"v_cmp_gt_u32 vcc, 27, v{vT+6}")
        a(f"v_cmp_gt_u32 s[{sT+4}:{sT+5}], 32, v{vT+5}")
        a(f"s_and_b64 vcc, vcc, s[{sT+4}:{sT+5}]")
        a(f"v_mov_b32 v{vT+8}, s{sT+2}")
        a("s_nop 1")
        a(f"v_cndmask_b32 v{vd}, v{vT+8}, v{vT+7}, vcc")
    a(f"s_lshl_b32 s{sM0b}, s{sWave}, 11")
    a(f"s_add_u32 s{sM0b}, s{sM0b}, {WB}")
    def wdma(i):
        if i >= 18: return
        st = i % NST
        a(f"s_mov_b32 s{sWo}, {i*32*3456}")
        for t, vd in enumerate((vD0, vD1)):
            a(f"s_add_u32 m0, s{sM0b}, {st*STG + t*1024}")
            a("s_nop 0")
            vm.op(("W", i), f"buffer_load_dwordx4 v{vd}, {sr(sW,4)}, s{sWo} offen lds")
    for i in range(2): wdma(i)
    if "k1pf" in OPT:
        a(f"s_and_b32 s{sT+3}, s{sRb}, 7")
        a(f"s_mul_i32 s{sT+3}, s{sT+3}, {72*3456}")
        a(f"s_add_u32 s{sT+3}, s{sT+3}, s{sT+1}")
        for t in range(2):
            a(f"v_add_u32 v{vT+4}, s{sT}, v0")
            if t: a(f"v_add_u32 v{vT+4}, 64, v{vT+4}")
            a(f"v_mul_u32_u24 v{vT+5}, 7282, v{vT+4}")
            a(f"v_lshrrev_b32 v{vT+5}, 16, v{vT+5}")
            a(f"v_mul_u32_u24 v{vT+6}, 9, v{vT+5}")
            a(f"v_sub_u32 v{vT+6}, v{vT+4}, v{vT+6}")
            a(f"v_mul_u32_u24 v{vT+7}, 21846, v{vT+6}")
            a(f"v_lshrrev_b32 v{vT+7}, 16, v{vT+7}")
            a(f"v_mul_u32_u24 v{vT+8}, 3, v{vT+7}")
            a(f"v_sub_u32 v{vT+8}, v{vT+6}, v{vT+8}")
            a(f"v_mul_u32_u24 v{vT+8}, 70, v{vT+8}")
            a(f"v_and_b32 v{vT+8}, 0xfc, v{vT+8}")
            a(f"v_mul_u32_u24 v{vT+5}, 3456, v{vT+5}")
            a(f"v_mad_u32_u24 v{vT+5}, v{vT+7}, 1152, v{vT+5}") if False else None
            a(f"v_mul_u32_u24 v{vT+7}, 1152, v{vT+7}")
            a(f"v_add3_u32 v{vT+5}, v{vT+5}, v{vT+7}, v{vT+8}")
            a(f"v_cmp_gt_u32 vcc, 648, v{vT+4}")
            a(f"v_mov_b32 v{vT+8}, s{sT+2}")
            a("s_nop 1")
            a(f"v_cndmask_b32 v{vT+5}, v{vT+8}, v{vT+5}, vcc")
            vm.op(("P", t), f"buffer_load_dword v{vT+18+t}, v{vT+5}, {sr(sW,4)}, s{sT+3} offen")
    ONES = sT+8
    a(f"s_mov_b32 s{ONES}, 0x3f803f80")
    S, Q, S2, Q2 = vT+4, vT+5, vT+6, vT+7
    B3, B1, B2 = vT+8, vT+9, vT+10
    for d_, vb in ((3, B3), (1, B1), (2, B2)):
        a(f"v_add_u32 v{vb}, {d_}, v{vT+1}")
        a(f"v_subrev_u32 v{vT+11}, 6, v{vb}")
        a(f"v_min_u32 v{vb}, v{vb}, v{vT+11}")
        a(f"v_mad_u32_u24 v{vb}, v{vT}, 6, v{vb}")
        a(f"v_lshlrev_b32 v{vb}, 2, v{vb}")
    a(f"v_lshrrev_b32 v{vT+11}, 4, v{vT+2}")
    a(f"v_mul_u32_u24 v{vT+11}, 18432, v{vT+11}")
    a(f"v_and_b32 v{vT+12}, 15, v{vT+2}")
    a(f"v_lshl_add_u32 v{vT+11}, v{vT+12}, 4, v{vT+11}")
    a(f"v_lshl_add_u32 v{vLW}, v{vT+1}, 8, v{vT+11}")
    a(f"v_lshrrev_b32 v{vT+11}, 5, v0")
    a(f"v_lshlrev_b32 v{vT+11}, 4, v{vT+11}")
    a(f"v_bfe_u32 v{vT+12}, v0, 2, 3")
    a(f"v_add_u32 v{vT+11}, v{vT+11}, v{vT+12}")
    a(f"v_mul_u32_u24 v{vT+11}, {PITCH}, v{vT+11}")
    a(f"v_and_b32 v{vT+12}, 3, v0")
    a(f"v_lshl_add_u32 v{vWa}, v{vT+12}, 3, v{vT+11}")
    a(f"s_lshl_b32 s{sT}, s{sWave}, 6")
    a(f"s_add_u32 s{sT}, s{sT}, {WB}")
    a(f"v_add_u32 v{vWa}, s{sT}, v{vWa}")
    a(f"v_lshlrev_b32 v{vXa}, 4, v0")
    a(f"v_add_u32 v{vXb}, 65536, v{vXa}")
    for r in (S, Q, S2, Q2): a(f"v_mov_b32 v{r}, 0")
    for i in range(12):
        vm.wait(lambda t: t[0] == "x" and t[1] <= i)
        if i == 11 and "astamp" not in OPT: stamp(a, 1)
        for d_ in range(4):
            x = RAW + i*4 + d_
            s_, q_ = (S, Q) if d_ % 2 == 0 else (S2, Q2)
            a(f"v_dot2_f32_bf16 v{s_}, v{x}, s{ONES}, v{s_}")
            a(f"v_dot2_f32_bf16 v{q_}, v{x}, v{x}, v{q_}")
    wdma(2); wdma(3)
    a(f"v_add_f32 v{S}, v{S}, v{S2}")
    a(f"v_add_f32 v{Q}, v{Q}, v{Q2}")
    a(f"ds_bpermute_b32 v{S2}, v{B3}, v{S}")
    a(f"ds_bpermute_b32 v{Q2}, v{B3}, v{Q}")
    a("s_waitcnt lgkmcnt(0)")
    a(f"v_add_f32 v{S}, v{S}, v{S2}")
    a(f"v_add_f32 v{Q}, v{Q}, v{Q2}")
    a(f"ds_bpermute_b32 v{S2}, v{B1}, v{S}")
    a(f"ds_bpermute_b32 v{Q2}, v{B1}, v{Q}")
    a(f"ds_bpermute_b32 v{vT+11}, v{B2}, v{S}")
    a(f"ds_bpermute_b32 v{vT+12}, v{B2}, v{Q}")
    a("s_waitcnt lgkmcnt(0)")
    a(f"v_add3_u32 v{vT+13}, 0, 0, 0") if False else None
    a(f"v_add_f32 v{S}, v{S}, v{S2}")
    a(f"v_add_f32 v{Q}, v{Q}, v{Q2}")
    a(f"v_add_f32 v{S}, v{S}, v{vT+11}")
    a(f"v_add_f32 v{Q}, v{Q}, v{vT+12}")
    a(f"v_mul_f32 v{S}, {f32(1.0/576.0)}, v{S}")
    a(f"v_mul_f32 v{Q}, {f32(1.0/576.0)}, v{Q}")
    a(f"v_fma_f32 v{Q}, -v{S}, v{S}, v{Q}")
    a(f"v_max_f32 v{Q}, 0, v{Q}")
    round_bf16(a, vNM, S)
    round_bf16(a, Q, Q)
    a(f"v_add_f32 v{Q}, {f32(1e-5)}, v{Q}")
    round_bf16(a, Q, Q)
    a(f"v_sqrt_f32 v{Q}, v{Q}")
    a("s_nop 0")
    round_bf16(a, Q, Q)
    a(f"v_rcp_f32 v{vR}, v{Q}")
    a("s_nop 0")
    def norm_group(i):
        chains = []
        for d_ in range(4):
            x = RAW + i*4 + d_
            t = vT + 12 + d_ * 2
            chains.append([f"v_lshlrev_b32 v{t}, 16, v{x}", f"v_and_b32 v{t+1}, 0xffff0000, v{x}",
                    f"v_sub_f32 v{t}, v{t}, v{vNM}", f"v_sub_f32 v{t+1}, v{t+1}, v{vNM}",
                    f"v_cvt_pk_bf16_f32 v{t}, v{t}, v{t+1}",
                    f"v_and_b32 v{t+1}, 0xffff0000, v{t}", f"v_lshlrev_b32 v{t}, 16, v{t}",
                    f"v_mul_f32 v{t}, v{t}, v{vR}", f"v_mul_f32 v{t+1}, v{t+1}, v{vR}",
                    f"v_cvt_pk_bf16_f32 v{x}, v{t}, v{t+1}"])
        ops = []
        for stage in ((0, 1), (2, 3), (4,), (5, 6), (7, 8), (9,)):
            for c in chains:
                for j in stage: ops.append(c[j])
        ops.append(f"ds_write_b128 v{vLW}, {vr(RAW+i*4,4)} offset:{XT + i*6*256}")
        return ops
    gdone = 12
    for g_ in range(12):
        for op in norm_group(g_): a(op)
    if "astamp" not in OPT: stamp(a, 2)
    vm.wait(lambda t: t[0] == "W" and t[1] <= 0)
    a("s_waitcnt lgkmcnt(0)")
    a("s_barrier")
    if "astamp" not in OPT: stamp(a, 3)
    if "nowpf" not in OPT:
        a(f"s_lshl_b32 s{sT}, s2, 3")
        a(f"s_add_u32 s{sT}, s{sT}, s{sWave}")
        a(f"s_cmp_ge_u32 s{sT}, 2025")
        a(f"s_cbranch_scc1 L_{name}_nopf")
        a(f"s_cmp_ge_u32 s{sT}, 648")
        a(f"s_cselect_b32 s54, s50, s48")
        a(f"s_cselect_b32 s55, s51, s49")
        a(f"s_cselect_b32 s{sT+1}, 648, 0")
        a(f"s_cmp_ge_u32 s{sT}, 1296")
        a(f"s_cselect_b32 s54, s52, s54")
        a(f"s_cselect_b32 s55, s53, s55")
        a(f"s_cselect_b32 s{sT+1}, 1296, s{sT+1}")
        a(f"s_cmp_ge_u32 s{sT}, 1944")
        a(f"s_cselect_b32 s54, s92, s54")
        a(f"s_cselect_b32 s55, s93, s55")
        a(f"s_cselect_b32 s{sT+1}, 1944, s{sT+1}")
        a(f"s_cselect_b32 s{sT+2}, {576*576*2}, {576*4608*2}") if False else None
        a(f"s_sub_u32 s{sT}, s{sT}, s{sT+1}")
        a(f"s_lshl_b32 s{sT}, s{sT}, 13")
        srd(a, 56, 54, 576*4608*2)
        a(f"v_lshlrev_b32 v{vT+18}, 7, v0")
        a(f"buffer_load_dword v{vT+19}, v{vT+18}, s[56:59], s{sT} offen")
        a.lab(f"L_{name}_nopf")
    def reads(i):
        b = i % 2; st = i % NST
        for n in range(2):
            a(f"ds_read_b64_tr_b16 {vr(WF+b*8+n*4,2)}, v{vWa} offset:{st*STG + n*32}")
            a(f"ds_read_b64_tr_b16 {vr(WF+b*8+n*4+2,2)}, v{vWa} offset:{st*STG + n*32 + 8*PITCH}")
        for mt in range(5):
            off = (mt*18 + i)*1024
            if off < 65536:
                a(f"ds_read_b128 {vr(XF+b*20+mt*4,4)}, v{vXa} offset:{off}")
            else:
                a(f"ds_read_b128 {vr(XF+b*20+mt*4,4)}, v{vXb} offset:{off-65536}")
    for i in range(18):
        reads(i)
        if i >= 1: wdma(i+3)
        b = i % 2
        need = min(11, (4*(i+1)+3)//6)
        nops = []
        while gdone <= need:
            nops += norm_group(gdone); gdone += 1
        if "k1nonorm" in OPT: nops = []
        ni = 0
        for _ in range(10):
            if ni < len(nops) - 1: a(nops[ni]); ni += 1
        for mt in range(5):
            a(f"s_waitcnt lgkmcnt({4-mt})")
            for n in range(2):
                c = vr(ACC+(mt*2+n)*4,4)
                a(f"v_mfma_f32_16x16x32_bf16 {c}, {vr(WF+b*8+n*4,4)}, {vr(XF+b*20+mt*4,4)}, " + ("0" if i == 0 else c))
                for _ in range(3):
                    if ni < len(nops) - 1: a(nops[ni]); ni += 1
        while ni < len(nops):
            a(nops[ni]); ni += 1
        if i < 17:
            vm.wait(lambda t: t[0] == "W" and t[1] <= i+1)
            if nops: a("s_waitcnt lgkmcnt(0)")
            a("s_barrier")
    a("s_barrier")
    stamp(a, 1 if "astamp" in OPT else 4)
    a(f"v_lshrrev_b32 v{vT}, 4, v0")
    a(f"v_lshlrev_b32 v{vT}, 2, v{vT}")
    a(f"s_lshl_b32 s{sT}, s{sWave}, 5")
    a(f"v_add_u32 v{vT}, s{sT}, v{vT}")
    a(f"v_and_b32 v{vT+1}, 15, v0")
    a(f"v_mul_u32_u24 v{vT+1}, {QP}, v{vT+1}")
    AD = vT + 4
    for n in range(2):
        for p in range(2):
            ad = AD + n*2 + p
            a(f"v_add_u32 v{vT+2}, {n*16+p*2}, v{vT}")
            a(f"v_mul_u32_u24 v{vT+3}, 3641, v{vT+2}")
            a(f"v_lshrrev_b32 v{vT+3}, 16, v{vT+3}")
            a(f"v_mul_u32_u24 v{ad}, 18, v{vT+3}")
            a(f"v_sub_u32 v{ad}, v{vT+2}, v{ad}")
            a(f"v_lshl_add_u32 v{ad}, v{ad}, 1, v{vT+1}")
            a(f"v_mad_u32_u24 v{ad}, v{vT+3}, 48, v{ad}")
    a(f"s_cmp_ge_u32 s{sWave}, 7")
    a(f"s_cbranch_scc1 L_{name}_skipq")
    for mt in range(5):
        for n in range(2):
            c = ACC + (mt*2+n)*4
            t = vT + 8 + ((mt*2+n) % 2) * 2
            a(f"v_cvt_pk_bf16_f32 v{t}, v{c}, v{c+1}")
            a(f"v_cvt_pk_bf16_f32 v{t+1}, v{c+2}, v{c+3}")
            a(f"ds_write_b32 v{AD+n*2}, v{t} offset:{mt*16*QP}")
            a(f"ds_write_b32 v{AD+n*2+1}, v{t+1} offset:{mt*16*QP}")
    a.lab(f"L_{name}_skipq")
    QR = 4; KR = 16; LG = 64; LX = 68; VO = 72; VX = 104; OA = 136
    vAo, vAx, vPos, vHd, vHf = vT, vT+1, vT+2, vT+3, vT+12
    a(f"v_lshrrev_b32 v{vPos}, 3, v3")
    a(f"v_bfe_u32 v{vHd}, v3, 1, 2")
    a(f"v_and_b32 v{vHf}, 1, v3")
    a(f"v_add_u32 v{vT+13}, 2, v{vPos}")
    a(f"v_mul_u32_u24 v{vT+13}, {QP}, v{vT+13}")
    a(f"v_mad_u32_u24 v{vT+13}, v{vHd}, 48, v{vT+13}")
    a(f"v_xor_b32 v{vT+14}, 1, v{vHf}")
    a(f"s_movk_i32 s{sT}, {8*QP}")
    a(f"v_mad_u32_u24 v{vAo}, v{vT+14}, s{sT}, v{vT+13}")
    a(f"v_mad_u32_u24 v{vAx}, v{vHf}, s{sT}, v{vT+13}")
    a("s_waitcnt lgkmcnt(0)")
    a("s_barrier")
    if "astamp" in OPT: stamp(a, 2)
    for j in range(3):
        a(f"ds_read_b128 {vr(QR+j*4,4)}, v{vT+13} offset:{14*QP + j*16}")
    for i in range(4):
        for j in range(3):
            a(f"ds_read_b128 {vr(KR+i*12+j*4,4)}, v{vAo} offset:{(6-2*i)*QP + 192 + j*16}")
    a(f"v_lshl_add_u32 v{vAo}, v{vHf}, 4, v{vAo}")
    a(f"v_lshl_add_u32 v{vAx}, v{vHf}, 4, v{vAx}")
    a(f"s_lshl_b32 s{sT}, s{sRb}, 6")
    a(f"v_add_u32 v{vPos}, s{sT}, v{vPos}")
    a(f"v_lshlrev_b32 v{vT+14}, 3, v{vHf}")
    a(f"v_sub_u32 v{vT+14}, v{vPos}, v{vT+14}")
    a(f"s_mov_b32 s{sT+1}, {f32(18.0**-0.5)}")
    a(f"s_mov_b32 s{sT+2}, {f32(-1e9)}")
    a(f"v_cvt_pk_bf16_f32 v{vT+15}, s{sT+2}, s{sT+2}")
    a(f"v_lshlrev_b32 v{vT+15}, 16, v{vT+15}")
    for i in range(4): a(f"v_mov_b32 v{LG+i}, 0")
    a("s_waitcnt lgkmcnt(0)")
    for i in range(4):
        a(f"ds_read_b128 {vr(VO+i*8,4)}, v{vAo} offset:{(6-2*i)*QP + 384}")
        a(f"ds_read_b32 v{VO+i*8+4}, v{vAo} offset:{(6-2*i)*QP + 384 + 16}")
    for i in range(4):
        a(f"ds_read_b128 {vr(VX+i*8,4)}, v{vAx} offset:{(6-2*i)*QP + 384}")
        a(f"ds_read_b32 v{VX+i*8+4}, v{vAx} offset:{(6-2*i)*QP + 384 + 16}")
    for d_ in range(9):
        for i in range(4):
            a(f"v_dot2_f32_bf16 v{LG+i}, v{QR+d_}, v{KR+i*12+d_}, v{LG+i}")
    a("s_nop 2")
    a(f"v_cvt_pk_bf16_f32 v{LG}, v{LG}, v{LG+1}")
    a(f"v_cvt_pk_bf16_f32 v{LG+2}, v{LG+2}, v{LG+3}")
    a(f"v_and_b32 v{LG+1}, 0xffff0000, v{LG}")
    a(f"v_lshlrev_b32 v{LG}, 16, v{LG}")
    a(f"v_and_b32 v{LG+3}, 0xffff0000, v{LG+2}")
    a(f"v_lshlrev_b32 v{LG+2}, 16, v{LG+2}")
    for i in range(4): a(f"v_mul_f32 v{LG+i}, s{sT+1}, v{LG+i}")
    a(f"v_cvt_pk_bf16_f32 v{LG}, v{LG}, v{LG+1}")
    a(f"v_cvt_pk_bf16_f32 v{LG+2}, v{LG+2}, v{LG+3}")
    a(f"v_and_b32 v{LG+1}, 0xffff0000, v{LG}")
    a(f"v_lshlrev_b32 v{LG}, 16, v{LG}")
    a(f"v_and_b32 v{LG+3}, 0xffff0000, v{LG+2}")
    a(f"v_lshlrev_b32 v{LG+2}, 16, v{LG+2}")
    for i in range(4):
        a(f"v_cmp_le_i32 vcc, {2*i}, v{vT+14}")
        a("s_nop 1")
        a(f"v_cndmask_b32 v{LG+i}, v{vT+15}, v{LG+i}, vcc")
    a("s_nop 1")
    for i in range(4):
        a(f"v_mov_b32_dpp v{LX+i}, v{LG+i} quad_perm:[1,0,3,2] row_mask:0xf bank_mask:0xf")
    M_, SUM = vT+13, vT+14
    a(f"v_max3_f32 v{M_}, v{LG}, v{LG+1}, v{LG+2}")
    a(f"v_max3_f32 v{M_}, v{M_}, v{LG+3}, v{LX}")
    a(f"v_max3_f32 v{M_}, v{M_}, v{LX+1}, v{LX+2}")
    a(f"v_max_f32 v{M_}, v{M_}, v{LX+3}")
    a(f"s_mov_b32 s{sT+3}, {f32(math.log2(math.e))}")
    for w in range(8):
        a(f"v_sub_f32 v{LG+w}, v{LG+w}, v{M_}")
    for w in range(8):
        a(f"v_mul_f32 v{LG+w}, s{sT+3}, v{LG+w}")
    for w in range(8):
        a(f"v_exp_f32 v{LG+w}, v{LG+w}")
    a("s_nop 0")
    a(f"v_add_f32 v{SUM}, v{LG}, v{LX}")
    a(f"v_add_f32 v{M_}, v{LG+1}, v{LX+1}")
    a(f"v_add_f32 v{vT+15}, v{LG+2}, v{LX+2}")
    a(f"v_add_f32 v{vT+16}, v{LG+3}, v{LX+3}")
    a(f"v_add_f32 v{SUM}, v{SUM}, v{M_}")
    a(f"v_add_f32 v{vT+15}, v{vT+15}, v{vT+16}")
    a(f"v_add_f32 v{SUM}, v{SUM}, v{vT+15}")
    a(f"v_rcp_f32 v{SUM}, v{SUM}")
    a("s_nop 0")
    for w in range(8):
        a(f"v_mul_f32 v{LG+w}, v{LG+w}, v{SUM}")
    for wp in range(4):
        a(f"v_cvt_pk_bf16_f32 v{LG+wp}, v{LG+2*wp}, v{LG+2*wp+1}")
    if "astamp" in OPT: stamp(a, 3)
    a(f"s_mov_b32 s{sT+4}, 0x05040100")
    a(f"s_mov_b32 s{sT+5}, 0x07060302")
    a("s_waitcnt lgkmcnt(0)")
    for wp in range(4):
        base = (VO if wp < 2 else VX) + (wp % 2) * 16
        for d_ in range(5):
            x0 = base + d_; x1 = base + 8 + d_
            t = vT + 13 + (d_ % 2) * 2
            a(f"v_perm_b32 v{t}, v{x1}, v{x0}, s{sT+4}")
            a(f"v_perm_b32 v{t+1}, v{x1}, v{x0}, s{sT+5}")
            a(f"v_dot2_f32_bf16 v{OA+2*d_}, v{t}, v{LG+wp}, " + ("0" if wp == 0 else f"v{OA+2*d_}"))
            a(f"v_dot2_f32_bf16 v{OA+2*d_+1}, v{t+1}, v{LG+wp}, " + ("0" if wp == 0 else f"v{OA+2*d_+1}"))
    a("s_nop 2")
    for d_ in range(5):
        a(f"v_cvt_pk_bf16_f32 v{QR+d_}, v{OA+2*d_}, v{OA+2*d_+1}")
    OB = 65536; OP = 160
    a(f"v_lshrrev_b32 v{vT+13}, 3, v3")
    a(f"v_mul_u32_u24 v{vT+13}, {OP}, v{vT+13}")
    a(f"v_mad_u32_u24 v{vT+13}, v{vHd}, 36, v{vT+13}")
    a(f"v_lshl_add_u32 v{vT+13}, v{vHf}, 4, v{vT+13}")
    a(f"v_add_u32 v{vT+13}, {OB}, v{vT+13}")
    a(f"ds_write2_b32 v{vT+13}, v{QR}, v{QR+1} offset0:0 offset1:1")
    a(f"ds_write2_b32 v{vT+13}, v{QR+2}, v{QR+3} offset0:2 offset1:3")
    a(f"ds_write_b32 v{vT+13}, v{QR+4} offset:16")
    a(f"s_lshl_b32 s{sT}, s{sWave}, 2")
    a(f"v_lshrrev_b32 v{vT+14}, 4, v0")
    a(f"v_add_u32 v{vT+14}, s{sT}, v{vT+14}")
    a(f"s_mul_i32 s{sT+1}, s{sHg}, 9")
    a(f"s_lshl_b32 s{sT+2}, s{sRb}, 2")
    a(f"s_mul_i32 s{sT+2}, s{sT+2}, 18432")
    def piece_addr(vp, vl, vg):
        a(f"v_mul_u32_u24 v{vT+15}, 7282, v{vp}")
        a(f"v_lshrrev_b32 v{vT+15}, 16, v{vT+15}")
        a(f"v_mul_u32_u24 v{vT+16}, 9, v{vT+15}")
        a(f"v_sub_u32 v{vT+16}, v{vp}, v{vT+16}")
        a(f"v_and_b32 v{vT+17}, 15, v0")
        a(f"v_lshl_add_u32 v{vl}, v{vT+15}, 4, v{vT+17}")
        a(f"v_mul_u32_u24 v{vl}, {OP}, v{vl}")
        a(f"v_lshl_add_u32 v{vl}, v{vT+16}, 4, v{vl}")
        a(f"v_add_u32 v{vl}, {OB}, v{vl}")
        a(f"v_add_u32 v{vT+16}, s{sT+1}, v{vT+16}")
        a(f"v_mul_u32_u24 v{vg}, 18432, v{vT+15}")
        a(f"v_lshl_add_u32 v{vg}, v{vT+16}, 8, v{vg}")
        a(f"v_lshl_add_u32 v{vg}, v{vT+17}, 4, v{vg}")
    piece_addr(vT+14, vT+4, vT+5)
    a(f"v_add_u32 v{vT+14}, 32, v{vT+14}")
    piece_addr(vT+14, vT+6, vT+7)
    a("s_waitcnt lgkmcnt(0)")
    a("s_barrier")
    a(f"ds_read_b128 {vr(QR,4)}, v{vT+4}")
    a(f"ds_read_b128 {vr(QR+4,4)}, v{vT+6}")
    a("s_waitcnt lgkmcnt(1)")
    a(f"buffer_store_dwordx4 {vr(QR,4)}, v{vT+5}, {sr(sO,4)}, s{sT+2} offen")
    a(f"s_cmp_lg_u32 s{sWave}, 0")
    a(f"s_cbranch_scc1 L_{name}_nost2")
    a("s_waitcnt lgkmcnt(0)")
    a(f"buffer_store_dwordx4 {vr(QR+4,4)}, v{vT+7}, {sr(sO,4)}, s{sT+2} offen")
    a.lab(f"L_{name}_nost2")
    if "astamp" in OPT: stamp(a, 4)
    if "stamp" in OPT: a("s_waitcnt vmcnt(0)")
    stamp(a, 6, True)
    stamp_dump(a, 7, 8, sWave, vT+8, 3)
    a.lab(f"L_{name}_done")
    a("s_endpgm")
    return a.text(), kernel_desc(name, NV, 96), f"; @launch kernel={name} grid=(256,1,1) block=(512,1,1) lds={WB + NST*STG}"

GENS = {"k45": gen_k45, "k2v2": gen_k2v2, "k1v3": gen_k1v3, "k1": gen_k1, "k2": gen_k2, "k3": gen_k3, "k4": gen_k4, "k5": gen_k5, "k3v2": gen_k3v2, "k3m": gen_k3m, "k4v2": gen_k4v2}


def build(which):
    heads, texts, descs = [], [], []
    for w in which:
        t, d, h = GENS[w]()
        heads.append(h); texts.append(t); descs.append(d)
    out = "; generated by dev/gen.py\n" + "\n".join(heads) + "\n"
    out += '.amdgcn_target "amdgcn-amd-amdhsa--gfx950"\n.text\n'
    out += "\n".join(texts)
    out += '.section .rodata,"a"\n'
    for d in descs:
        out += ".p2align 6\n" + d
    return out

if __name__ == "__main__":
    which = sys.argv[2].split(",")
    open(sys.argv[1], "w").write(build(which))
```

```python
import sys, struct, math, os
OPT = set(os.environ.get("GENOPT", "").split(","))

KN = "sequential_preLN__sliding_local_dilated__geglu_ffn__prompt"

O_OFF  = 0
O_SZ   = 2048*576*2
H1_OFF = O_OFF + O_SZ
H1_SZ  = 2048*576*2
ST_OFF = H1_OFF + H1_SZ
ST_SZ  = 2048*6*8
HH_OFF = ST_OFF + ST_SZ
HH_SZ  = 2048*4608*2
P_OFF  = HH_OFF + HH_SZ
P_SZ   = 4*2048*576*4

def f32(x):
    return struct.unpack("<I", struct.pack("<f", x))[0]

class A:
    def __init__(self):
        self.l = []
    def __call__(self, s):
        if "nomfma" in OPT and s.startswith("v_mfma"): return
        if s.startswith("buffer_store_dwordx4") and "s[80:83]" not in s:
            pol = getattr(self, "stpol", "")
            if pol: s += " " + pol
        if "nods" in OPT and s.startswith("ds_read_b64_tr"): return
        if "now" in OPT and s.startswith("buffer_load_dwordx4") and s.endswith("lds"): return
        if "nox" in OPT and s.startswith("buffer_load_dwordx4 v[") and "s[16:19]" in s: return
        self.l.append("    " + s)
    def lab(self, s):
        self.l.append(s + ":")
    def c(self, s):
        self.l.append("    ; " + s)
    def text(self):
        return "\n".join(self.l) + "\n"

def vr(b, n=1):
    return f"v{b}" if n == 1 else f"v[{b}:{b+n-1}]"
def sr(b, n=1):
    return f"s{b}" if n == 1 else f"s[{b}:{b+n-1}]"

def kernel_head(a, name):
    a.l.append(f".globl {name}")
    a.l.append(".p2align 8")
    a.l.append(f".type {name},@function")
    a.lab(name)

def kernel_desc(name, vgpr, sgpr=96, accum=None):
    if accum is None:
        accum = (vgpr + 3) // 4 * 4
    return f""".amdhsa_kernel {name}
  .amdhsa_next_free_vgpr {vgpr}
  .amdhsa_next_free_sgpr {sgpr}
  .amdhsa_accum_offset {accum}
  .amdhsa_group_segment_fixed_size 0
  .amdhsa_kernarg_size 80
  .amdhsa_user_sgpr_count 2
  .amdhsa_user_sgpr_kernarg_segment_ptr 1
  .amdhsa_system_sgpr_workgroup_id_x 1
.end_amdhsa_kernel
"""

def srd(a, d, base, size, off=0):
    if off:
        a(f"s_add_u32 s{d}, s{base}, {off}")
        a(f"s_addc_u32 s{d+1}, s{base+1}, 0")
    else:
        a(f"s_mov_b32 s{d}, s{base}")
        a(f"s_mov_b32 s{d+1}, s{base+1}")
    a(f"s_and_b32 s{d+1}, s{d+1}, 0xffff")
    a(f"s_mov_b32 s{d+2}, {size}")
    a(f"s_mov_b32 s{d+3}, 0x00020000")

def round_bf16(a, d, s, tmp=None):
    a(f"v_cvt_pk_bf16_f32 v{d}, v{s}, v{s}")
    a(f"v_lshlrev_b32 v{d}, 16, v{d}")

GELU_A = -2.0 * math.log2(math.e) * math.sqrt(2.0 / math.pi)
GELU_B = GELU_A * 0.044715

import os
OPT = set(os.environ.get("GENOPT", "").split(","))
def stamp(a, i, real=False):
    if "stamp" in OPT:
        a(f"s_mem{'real' if real else ''}time s[{60+2*i}:{61+2*i}]")
def stamp_dump(a, n, sWs, sWave, tmpv, region=0):
    if "stamp" in OPT:
        a("s_waitcnt lgkmcnt(0)")
        a("s_mov_b64 exec, -1")
        srd(a, 80, sWs, 1<<20, (200+region)<<20)
        a(f"s_lshl_b32 s84, s2, 4")
        a(f"s_add_u32 s84, s84, s{sWave}")
        a(f"s_lshl_b32 s84, s84, 6")
        a(f"v_mov_b32 v{tmpv}, s84")
        for i in range(n):
            a(f"v_mov_b32 v{tmpv+2}, s{60+2*i}")
            a(f"v_mov_b32 v{tmpv+3}, s{61+2*i}")
            a(f"buffer_store_dwordx2 v[{tmpv+2}:{tmpv+3}], v{tmpv}, s[80:83], 0 offen offset:{8*i}")
            a("s_nop 1")
def gen_k3(name="k3_kernel"):
    a = A()
    kernel_head(a, name)
    NST = 6
    STG = 18432
    RING = 6
    ACC = 0
    XS = 144
    WR = 192
    vWa = 216
    vWb = 217
    vD0, vD1, vD2 = 218, 219, 220
    vX0, vX1 = 221, 222
    vM0, vR0, vM1, vR1 = 223, 224, 225, 226
    vT = 228
    vLane = 244
    NV = 246
    def acc(nt, mat, mt):
        return ACC + ((nt * 2 + mat) * 2 + mt) * 4
    sW, sX, sST, sH = 12, 16, 20, 24
    sWave, sFb, sMb = 28, 29, 30
    sWoff, sXoff, sIt = 31, 32, 33
    sM0b = 34
    sT = 36
    sA_, sB_ = 48, 49
    sExec = 50
    sHb = 52

    a("s_cmp_ge_u32 s2, 256")
    a(f"s_cbranch_scc1 L_{name}_done")
    stamp(a, 0)
    stamp(a, 5, True)
    a("s_load_dwordx4 s[4:7], s[0:1], 32")
    a("s_load_dwordx2 s[8:9], s[0:1], 72")
    a("v_lshrrev_b32 v1, 6, v0")
    a("v_and_b32 v0, 63, v0")
    a("s_nop 0")
    a(f"v_readfirstlane_b32 s{sWave}, v1")
    a(f"s_and_b32 s{sT}, s2, 7")
    a(f"s_lshr_b32 s{sT+1}, s2, 3")
    a(f"s_and_b32 s{sFb}, s{sT+1}, 3")
    a(f"s_lshl_b32 s{sT}, s{sT}, 2")
    a(f"s_add_u32 s{sFb}, s{sFb}, s{sT}")
    a(f"s_lshr_b32 s{sMb}, s{sT+1}, 2")
    a("s_waitcnt lgkmcnt(0)")
    a(f"s_cmp_ge_u32 s{sWave}, 4")
    a(f"s_cselect_b32 s{sT}, s6, s4")
    a(f"s_cselect_b32 s{sT+1}, s7, s5")
    srd(a, sW, sT, 576*4608*2)
    srd(a, sX, 8, H1_SZ, H1_OFF)
    srd(a, sST, 8, ST_SZ, ST_OFF)
    srd(a, sH, 8, HH_SZ, HH_OFF)
    a(f"v_and_b32 v{vT}, 15, v0")
    a(f"s_lshl_b32 s{sT}, s{sMb}, 8")
    a(f"s_lshl_b32 s{sT+1}, s{sWave}, 5")
    a(f"s_add_u32 s{sT}, s{sT}, s{sT+1}")
    a(f"v_add_u32 v{vT}, s{sT}, v{vT}")
    a(f"v_mul_u32_u24 v{vT}, 48, v{vT}")
    for mt in range(2):
        for q in range(3):
            a(f"buffer_load_dwordx4 {vr(WR+mt*12+q*4,4)}, v{vT}, {sr(sST,4)}, 0 offen offset:{mt*768+q*16}")
    for t, vd in enumerate((vD0, vD1, vD2)):
        a(f"v_add_u32 v{vT+1}, {t*64}, v0")
        a(f"v_mul_u32_u24 v{vT+2}, 3641, v{vT+1}")
        a(f"v_lshrrev_b32 v{vT+2}, 16, v{vT+2}")
        a(f"v_mul_u32_u24 v{vT+3}, 18, v{vT+2}")
        a(f"v_sub_u32 v{vT+3}, v{vT+1}, v{vT+3}")
        a(f"v_mul_u32_u24 v{vT+2}, 9216, v{vT+2}")
        a(f"v_lshl_add_u32 v{vd}, v{vT+3}, 4, v{vT+2}")
    a(f"s_and_b32 s{sT}, s{sWave}, 3")
    a(f"s_mul_i32 s{sT+1}, s{sT}, {8*9216}")
    a(f"s_mul_i32 s{sT+2}, s{sFb}, 288")
    a(f"s_add_u32 s{sT+1}, s{sT+1}, s{sT+2}")
    for vd in (vD0, vD1, vD2):
        a(f"v_add_u32 v{vd}, s{sT+1}, v{vd}")
    a(f"s_mul_i32 s{sM0b}, s{sWave}, 2304")
    a(f"s_lshl_b32 s{sT}, s{sMb}, 4")
    a(f"s_lshl_b32 s{sT+1}, s{sWave}, 1")
    a(f"s_add_u32 s{sT}, s{sT}, s{sT+1}")
    a(f"s_mul_i32 s{sT+1}, s{sT}, 18432")
    a(f"v_lshlrev_b32 v{vX0}, 4, v0")
    a(f"v_add_u32 v{vX0}, s{sT+1}, v{vX0}")
    a(f"v_add_u32 v{vX1}, 18432, v{vX0}")
    a(f"s_mul_i32 s{sHb}, s{sT}, 144")
    a(f"s_lshr_b32 s{sT+1}, s{sFb}, 1")
    a(f"s_mul_i32 s{sT+1}, s{sT+1}, 9")
    a(f"s_add_u32 s{sHb}, s{sHb}, s{sT+1}")
    a(f"s_lshl_b32 s{sHb}, s{sHb}, 10")
    a(f"v_lshrrev_b32 v{vT+1}, 2, v0")
    a(f"v_mul_u32_u24 v{vT+1}, 288, v{vT+1}")
    a(f"v_and_b32 v{vT+2}, 3, v0")
    a(f"v_lshl_add_u32 v{vWa}, v{vT+2}, 3, v{vT+1}")
    a(f"v_add_u32 v{vWb}, {3*STG}, v{vWa}")
    sRot, sCnt = 54, 55
    if "rot" in OPT:
        a(f"s_mul_i32 s{sRot}, s{sMb}, 9")
        a(f"s_and_b32 s{sT}, s{sFb}, 3")
        a(f"s_mul_i32 s{sT}, s{sT}, 18")
        a(f"s_add_u32 s{sRot}, s{sRot}, s{sT}")
        a(f"s_lshr_b32 s{sRot}, s{sRot}, 2")
        a(f"s_sub_u32 s{sT}, s{sRot}, 18")
        a(f"s_cmp_ge_u32 s{sRot}, 18")
        a(f"s_cselect_b32 s{sRot}, s{sT}, s{sRot}")
    else:
        a(f"s_mov_b32 s{sRot}, 0")
    if "samew" in OPT:
        a(f"s_mov_b32 s{sRot}, 0")
    a(f"s_mov_b32 s{sCnt}, 0")
    a(f"s_mul_i32 s{sWoff}, s{sRot}, {32*9216}")
    a(f"s_lshl_b32 s{sXoff}, s{sRot}, 10")
    a(f"s_mov_b64 s[{sExec}:{sExec+1}], 0xffff")
    a(f"v_mov_b32 v{vLane}, v0")

    def load_groups(stage, xset):
        gs = []
        for t, vd in enumerate((vD0, vD1, vD2)):
            g = [f"s_add_u32 m0, s{sM0b}, {stage*STG + t*1024}"]
            if t == 2:
                g.append(f"s_mov_b64 exec, s[{sExec}:{sExec+1}]")
            else:
                g.append("s_nop 0")
            g.append(f"buffer_load_dwordx4 v{vd}, {sr(sW,4)}, s{sWoff} offen lds")
            if t == 2:
                g.append("s_mov_b64 exec, -1")
            gs.append(g)
        gs.append([f"buffer_load_dwordx4 {vr(XS+xset*8,4)}, v{vX0}, {sr(sX,4)}, s{sXoff} offen"])
        gs.append([f"buffer_load_dwordx4 {vr(XS+xset*8+4,4)}, v{vX1}, {sr(sX,4)}, s{sXoff} offen",
                   f"s_add_u32 s{sRot}, s{sRot}, 1",
                   f"s_cmp_eq_u32 s{sRot}, {4 if 'hot4' in OPT else 18}",
                   f"s_cselect_b32 s{sRot}, 0, s{sRot}",
                   f"s_add_u32 s{sCnt}, s{sCnt}, 1",
                   f"s_mul_i32 s{sWoff}, s{sRot}, {32*9216}",
                   f"s_lshl_b32 s{sXoff}, s{sRot}, 10",
                   f"s_cmp_ge_u32 s{sCnt}, 18",
                   f"s_cselect_b32 s{sWoff}, 0x7f000000, s{sWoff}",
                   f"s_cselect_b32 s{sXoff}, 0x7f000000, s{sXoff}"])
        return gs
    def issue_loads(stage, xset):
        for g in load_groups(stage, xset):
            for x in g: a(x)

    for s in range(5):
        issue_loads(s, s)
    a("s_waitcnt vmcnt(25)")
    for mt, (vM, vR) in enumerate(((vM0, vR0), (vM1, vR1))):
        b = WR + mt * 12
        a(f"v_add_f32 v{vT}, v{b}, v{b+2}")
        a(f"v_add_f32 v{vT+1}, v{b+4}, v{b+6}")
        a(f"v_add_f32 v{vT+2}, v{b+8}, v{b+10}")
        a(f"v_add_f32 v{vT}, v{vT}, v{vT+1}")
        a(f"v_add_f32 v{vT}, v{vT}, v{vT+2}")
        a(f"v_mul_f32 v{vT}, {f32(1.0/6.0)}, v{vT}")
        a(f"v_add_f32 v{vT+1}, v{b+1}, v{b+3}")
        a(f"v_add_f32 v{vT+2}, v{b+5}, v{b+7}")
        a(f"v_add_f32 v{vT+3}, v{b+9}, v{b+11}")
        a(f"v_add_f32 v{vT+1}, v{vT+1}, v{vT+2}")
        a(f"v_add_f32 v{vT+1}, v{vT+1}, v{vT+3}")
        a(f"v_mov_b32 v{vT+2}, 0")
        for t in range(6):
            a(f"v_sub_f32 v{vT+3}, v{b+2*t}, v{vT}")
            a(f"v_fmac_f32 v{vT+2}, v{vT+3}, v{vT+3}")
        a(f"v_fmac_f32 v{vT+1}, {f32(96.0)}, v{vT+2}")
        a(f"v_mul_f32 v{vT+1}, {f32(1.0/576.0)}, v{vT+1}")
        round_bf16(a, vM, vT)
        round_bf16(a, vT+1, vT+1)
        a(f"v_add_f32 v{vT+1}, {f32(1e-5)}, v{vT+1}")
        round_bf16(a, vT+1, vT+1)
        a(f"v_sqrt_f32 v{vT+1}, v{vT+1}")
        a("s_nop 0")
        round_bf16(a, vT+1, vT+1)
        a(f"v_rcp_f32 v{vR}, v{vT+1}")
    for i in range(0, 144, 2):
        a(f"v_mov_b64 {vr(ACC+i,2)}, 0")

    def norm_ops(xset):
        ops = []
        for mt, (vM, vR) in enumerate(((vM0, vR0), (vM1, vR1))):
            for d in range(4):
                x = XS + xset * 8 + mt * 4 + d
                t0 = vT + (d % 2) * 2
                t1 = t0 + 1
                ops.append(f"v_lshlrev_b32 v{t0}, 16, v{x}")
                ops.append(f"v_and_b32 v{t1}, 0xffff0000, v{x}")
                if "fastnorm" in OPT:
                    ops.append(f"v_sub_f32 v{t0}, v{t0}, v{vM}")
                    ops.append(f"v_sub_f32 v{t1}, v{t1}, v{vM}")
                    ops.append(f"v_cvt_pk_bf16_f32 v{x}, v{t0}, v{t1}")
                    continue
                ops.append(f"v_sub_f32 v{t0}, v{t0}, v{vM}")
                ops.append(f"v_sub_f32 v{t1}, v{t1}, v{vM}")
                ops.append(f"v_cvt_pk_bf16_f32 v{t0}, v{t0}, v{t1}")
                ops.append(f"v_and_b32 v{t1}, 0xffff0000, v{t0}")
                ops.append(f"v_lshlrev_b32 v{t0}, 16, v{t0}")
                ops.append(f"v_mul_f32 v{t0}, v{t0}, v{vR}")
                ops.append(f"v_mul_f32 v{t1}, v{t1}, v{vR}")
                ops.append(f"v_cvt_pk_bf16_f32 v{x}, v{t0}, v{t1}")
        return ops

    def wread(fidx_global):
        st = (fidx_global // 18) % NST
        f = fidx_global % 18
        nt, mat = f // 2, f % 2
        slot = fidx_global % RING
        base = vWa if st < 3 else vWb
        off = (st % 3) * STG + mat * 9216 + nt * 32
        a(f"ds_read_b64_tr_b16 {vr(WR+slot*4,2)}, v{base} offset:{off}")
        a(f"ds_read_b64_tr_b16 {vr(WR+slot*4+2,2)}, v{base} offset:{off+4608}")

    PF = RING - 1
    a("s_waitcnt vmcnt(15)")
    for op in norm_ops(0):
        a(op)
    a("s_barrier")
    for f in range(PF):
        wread(f)
    stamp(a, 1)
    a(f"s_mov_b32 s{sIt}, 0")
    a(".p2align 6")
    a.lab(f"L_{name}_loop")
    for ph in range(NST):
        lg = load_groups((ph + 5) % NST, (ph + 5) % NST)
        spread = "spread" in OPT
        if not spread:
            issue_loads((ph + 5) % NST, (ph + 5) % NST)
        nops = norm_ops((ph + 1) % NST)
        if "nonorm" in OPT: nops = []
        ni = 0
        for f in range(18):
            g = ph * 18 + f
            nt, mat = f // 2, f % 2
            slot = g % RING
            wread(g + PF)
            a(f"s_waitcnt lgkmcnt({2*PF})")
            a(f"v_mfma_f32_16x16x32_bf16 {vr(acc(nt,mat,0),4)}, {vr(WR+slot*4,4)}, {vr(XS+ph*8,4)}, {vr(acc(nt,mat,0),4)}")
            a(f"v_mfma_f32_16x16x32_bf16 {vr(acc(nt,mat,1),4)}, {vr(WR+slot*4,4)}, {vr(XS+ph*8+4,4)}, {vr(acc(nt,mat,1),4)}")
            if f == 1:
                a("s_waitcnt vmcnt(%d)" % (15 if spread else 20))
            if spread and f % 3 == 2 and f // 3 < 5:
                for x in lg[f // 3]: a(x)
            if f >= 1:
                for _ in range(5):
                    if ni < len(nops):
                        a(nops[ni]); ni += 1
        assert ni == len(nops)
        a("s_waitcnt vmcnt(17)")
        a("s_barrier")
    a(f"s_add_u32 s{sIt}, s{sIt}, 1")
    a(f"s_cmp_lt_u32 s{sIt}, 3")
    a(f"s_cbranch_scc1 L_{name}_loop")
    stamp(a, 2)
    a("s_waitcnt vmcnt(0) lgkmcnt(0)")
    a(f"s_mov_b32 s{sA_}, {f32(GELU_A)}")
    a(f"s_mov_b32 s{sB_}, {f32(GELU_B)}")
    a(f"v_lshlrev_b32 v{vX0}, 4, v{vLane}")
    a(f"s_and_b32 s{sT}, s{sFb}, 1")
    a(f"s_lshl_b32 s{sT+1}, s{sT}, 12")
    a(f"s_add_u32 s{sT+1}, s{sT+1}, s{sHb}")
    a(f"s_lshl_b32 s{sT+2}, s{sT}, 3")
    a(f"s_add_u32 s{sT+2}, s{sT+2}, s{sHb}")
    a(f"s_add_u32 s{sT+2}, s{sT+2}, {8*1024}")
    a(f"s_add_u32 s{sT+3}, s{sT+1}, {144*1024}")
    a(f"s_add_u32 s{sT+4}, s{sT+2}, {144*1024}")
    OUT = XS
    def gelu_tile(nt, mt, dst):
        g = acc(nt, 0, mt); u = acc(nt, 1, mt)
        T = WR
        for h in range(2):
            g0, g1, u0, u1 = g+2*h, g+2*h+1, u+2*h, u+2*h+1
            x0, x1, y0, y1, t0, t1 = T+h*8, T+h*8+1, T+h*8+2, T+h*8+3, T+h*8+4, T+h*8+5
            if "relax" in OPT:
                x0, x1, y0, y1 = g0, g1, u0, u1
            else:
                a(f"v_cvt_pk_bf16_f32 v{x0}, v{g0}, v{g1}")
                a(f"v_cvt_pk_bf16_f32 v{y0}, v{u0}, v{u1}")
                a(f"v_and_b32 v{x1}, 0xffff0000, v{x0}")
                a(f"v_lshlrev_b32 v{x0}, 16, v{x0}")
                a(f"v_and_b32 v{y1}, 0xffff0000, v{y0}")
                a(f"v_lshlrev_b32 v{y0}, 16, v{y0}")
            a(f"v_mul_f32 v{t0}, v{x0}, v{x0}")
            a(f"v_mul_f32 v{t1}, v{x1}, v{x1}")
            a(f"v_fma_f32 v{t0}, v{t0}, s{sB_}, v{vT}")
            a(f"v_fma_f32 v{t1}, v{t1}, s{sB_}, v{vT}")
            a(f"v_mul_f32 v{t0}, v{t0}, v{x0}")
            a(f"v_mul_f32 v{t1}, v{t1}, v{x1}")
            a(f"v_exp_f32 v{t0}, v{t0}")
            a(f"v_exp_f32 v{t1}, v{t1}")
            a("s_nop 0")
            a(f"v_add_f32 v{t0}, 1.0, v{t0}")
            a(f"v_add_f32 v{t1}, 1.0, v{t1}")
            a(f"v_rcp_f32 v{t0}, v{t0}")
            a(f"v_rcp_f32 v{t1}, v{t1}")
            a("s_nop 0")
            a(f"v_mul_f32 v{t0}, v{t0}, v{x0}")
            a(f"v_mul_f32 v{t1}, v{t1}, v{x1}")
            if "relax" not in OPT:
                a(f"v_cvt_pk_bf16_f32 v{t0}, v{t0}, v{t1}")
                a(f"v_and_b32 v{t1}, 0xffff0000, v{t0}")
                a(f"v_lshlrev_b32 v{t0}, 16, v{t0}")
            a(f"v_mul_f32 v{t0}, v{t0}, v{y0}")
            a(f"v_mul_f32 v{t1}, v{t1}, v{y1}")
            a(f"v_cvt_pk_bf16_f32 v{dst+h}, v{t0}, v{t1}")
    a(f"v_mov_b32 v{vT}, s{sA_}")
    a("s_nop 7")
    k = 0
    for mt in range(2):
        for p in range(4):
            o = OUT + (k % 12) * 4; k += 1
            gelu_tile(2*p, mt, o)
            gelu_tile(2*p+1, mt, o+2)
            a(f"buffer_store_dwordx4 {vr(o,4)}, v{vX0}, {sr(sH,4)}, s{sT+1+2*mt} offen offset:{p*1024}")
        o = OUT + (k % 12) * 4; k += 1
        gelu_tile(8, mt, o)
        a(f"buffer_store_dwordx2 {vr(o,2)}, v{vX0}, {sr(sH,4)}, s{sT+2+2*mt} offen")
    stamp(a, 3)
    a("s_waitcnt vmcnt(0)")
    stamp(a, 4)
    stamp(a, 6, True)
    stamp_dump(a, 7, 8, sWave, vT)
    a.lab(f"L_{name}_done")
    a("s_endpgm")
    return a.text(), kernel_desc(name, NV), f"; @launch kernel={name} grid=(256,1,1) block=(512,1,1) lds={NST*STG}"


def lds_dump(a, nbytes, wg, tidv, tv, off_mb, nthreads=512, tag="d"):
    a(f"s_cmp_lg_u32 s2, {wg}")
    a(f"s_cbranch_scc1 L_dump_{tag}")
    srd(a, 80, 8, 1 << 20, off_mb << 20)
    a(f"v_lshlrev_b32 v{tv}, 4, v{tidv}")
    for i in range(0, nbytes, nthreads*16):
        a(f"v_add_u32 v{tv+1}, {i}, v{tv}")
        a(f"ds_read_b128 v[{tv+2}:{tv+5}], v{tv+1}")
        a("s_waitcnt lgkmcnt(0)")
        a(f"buffer_store_dwordx4 v[{tv+2}:{tv+5}], v{tv+1}, s[80:83], 0 offen")
        a("s_waitcnt vmcnt(0)")
    a.lab(f"L_dump_{tag}")
    a("s_barrier")

class VM:
    def __init__(self, a):
        self.a = a; self.ops = []
    def op(self, tag, text):
        if "noload" in OPT and tag[0] in ("W", "X") and tag[1] >= 2 and getattr(self.a, "k3", False): return
        self.a(text); self.ops.append(tag)
    def wait(self, tagpred, extra=""):
        last = -1
        for i, t in enumerate(self.ops):
            if tagpred(t): last = i
        n = len(self.ops) - 1 - last
        assert n <= 63
        if last >= 0:
            self.a(f"s_waitcnt vmcnt({n}){extra}")
            self.ops = self.ops[last+1:]

def gen_k4(name="k4_kernel"):
    a = A(); vm = VM(a)
    kernel_head(a, name)
    NST = 6; STG = 18432; RING = 6; PFD = 5
    ACC = 4
    XS = 76
    WR = 124
    vWa, vWb = 148, 149
    vD0, vD1, vD2 = 150, 151, 152
    vX0, vX1 = 153, 154
    vT = 156
    NV = 172
    def acc(nt, mt): return ACC + (nt*2+mt)*4
    sW, sX, sP = 12, 16, 20
    sWave, sKs, sMb, sNb = 28, 29, 30, 31
    sWb1, sWb2, sXb, sM0b = 32, 33, 34, 35
    sT = 36
    sExec = 50
    sWo = 52
    a("s_cmp_ge_u32 s2, 256")
    a(f"s_cbranch_scc1 L_{name}_done")
    stamp(a, 0); stamp(a, 5, True)
    a("s_load_dwordx2 s[4:5], s[0:1], 48")
    a("s_load_dwordx2 s[8:9], s[0:1], 72")
    a("v_lshrrev_b32 v1, 6, v0")
    a("v_and_b32 v0, 63, v0")
    a("s_nop 0")
    a(f"v_readfirstlane_b32 s{sWave}, v1")
    a(f"s_and_b32 s{sT}, s2, 7")
    a(f"s_lshr_b32 s{sT+1}, s2, 3")
    a(f"s_lshr_b32 s{sKs}, s{sT}, 1")
    a(f"s_and_b32 s{sNb}, s{sT+1}, 3")
    a(f"s_and_b32 s{sT}, s{sT}, 1")
    a(f"s_lshl_b32 s{sT}, s{sT}, 3")
    a(f"s_lshr_b32 s{sMb}, s{sT+1}, 2")
    a(f"s_add_u32 s{sMb}, s{sMb}, s{sT}")
    a("s_waitcnt lgkmcnt(0)")
    srd(a, sW, 4, 4608*576*2)
    srd(a, sX, 8, HH_SZ, HH_OFF)
    srd(a, sP, 8, P_SZ, P_OFF)
    for t, vd in enumerate((vD0, vD1, vD2)):
        a(f"v_add_u32 v{vT+1}, {t*64}, v0")
        a(f"v_mul_u32_u24 v{vT+2}, 3641, v{vT+1}")
        a(f"v_lshrrev_b32 v{vT+2}, 16, v{vT+2}")
        a(f"v_mul_u32_u24 v{vT+3}, 18, v{vT+2}")
        a(f"v_sub_u32 v{vT+3}, v{vT+1}, v{vT+3}")
        a(f"v_mul_u32_u24 v{vT+2}, 1152, v{vT+2}")
        a(f"v_lshl_add_u32 v{vd}, v{vT+3}, 4, v{vT+2}")
    a(f"s_lshr_b32 s{sT}, s{sWave}, 2")
    a(f"s_lshl_b32 s{sT+1}, s{sKs}, 1")
    a(f"s_add_u32 s{sT+1}, s{sT+1}, s{sT}")
    a(f"s_mul_i32 s{sWb1}, s{sT+1}, {576*1152}")
    a(f"s_and_b32 s{sT+2}, s{sWave}, 3")
    a(f"s_mul_i32 s{sT+3}, s{sT+2}, {8*1152}")
    a(f"s_add_u32 s{sWb1}, s{sWb1}, s{sT+3}")
    a(f"s_mul_i32 s{sT+3}, s{sNb}, 288")
    a(f"s_add_u32 s{sWb1}, s{sWb1}, s{sT+3}")
    a(f"s_cmp_ge_u32 s{sT+2}, 2")
    a(f"s_cselect_b32 s{sT+3}, {128*1152}, 0")
    a(f"s_add_u32 s{sWb2}, s{sWb1}, s{sT+3}")
    a(f"s_mul_i32 s{sM0b}, s{sWave}, 2304")
    a(f"s_lshl_b32 s{sXb}, s{sMb}, 3")
    a(f"s_lshl_b32 s{sT+3}, s{sT+2}, 1")
    a(f"s_add_u32 s{sXb}, s{sXb}, s{sT+3}")
    a(f"s_mov_b32 s{sT+4}, s{sXb}")
    a(f"s_mul_i32 s{sXb}, s{sXb}, 144")
    a(f"s_mul_i32 s{sT+3}, s{sT+1}, 18")
    a(f"s_add_u32 s{sXb}, s{sXb}, s{sT+3}")
    a(f"s_lshl_b32 s{sXb}, s{sXb}, 10")
    a(f"v_lshlrev_b32 v{vX0}, 4, v0")
    a(f"v_add_u32 v{vX0}, s{sXb}, v{vX0}")
    a(f"v_add_u32 v{vX1}, {144*1024}, v{vX0}")
    a(f"s_lshl_b32 s{sT+5}, s{sKs}, 7")
    a(f"s_add_u32 s{sT+5}, s{sT+5}, s{sT+4}")
    a(f"s_add_u32 s{sT+5}, s{sT+5}, s{sT}")
    a(f"s_mul_i32 s{sT+5}, s{sT+5}, 36")
    a(f"s_mul_i32 s{sT+6}, s{sNb}, 9")
    a(f"s_add_u32 s{sT+5}, s{sT+5}, s{sT+6}")
    a(f"s_lshl_b32 s{sT+5}, s{sT+5}, 10")
    a(f"v_lshrrev_b32 v{vT+1}, 2, v0")
    a(f"v_mul_u32_u24 v{vT+1}, 288, v{vT+1}")
    a(f"v_and_b32 v{vT+2}, 3, v0")
    a(f"v_lshl_add_u32 v{vWa}, v{vT+2}, 3, v{vT+1}")
    a(f"s_mul_i32 s{sT+6}, s{sT}, 9216")
    a(f"v_add_u32 v{vWa}, s{sT+6}, v{vWa}")
    a(f"v_add_u32 v{vWb}, {3*STG}, v{vWa}")
    a(f"s_mov_b64 s[{sExec}:{sExec+1}], 0xffff")

    def fa_rel(i):
        q, ii = divmod(i, 9)
        if ii < 4: return 288*q + 32*ii
        if ii < 8: return 288*q + 144 + 32*(ii-4)
        return 288*q + 128
    def load_groups(i):
        if i >= 18: return []
        st = i % NST
        gs = []
        base = sWb2 if i % 9 == 8 else sWb1
        for t, vd in enumerate((vD0, vD1, vD2)):
            g = []
            if t == 0:
                g.append(("s", f"s_add_u32 s{sWo}, s{base}, {fa_rel(i)*1152}"))
            g.append(("s", f"s_add_u32 m0, s{sM0b}, {st*STG + t*1024}"))
            g.append(("s", f"s_mov_b64 exec, s[{sExec}:{sExec+1}]" if t == 2 else "s_nop 0"))
            g.append((("W", i), f"buffer_load_dwordx4 v{vd}, {sr(sW,4)}, s{sWo} offen lds"))
            if t == 2: g.append(("s", "s_mov_b64 exec, -1"))
            gs.append(g)
        xs = XS + (i % NST) * 8
        gs.append([("s", f"s_mov_b32 s{sWo+1}, {i*1024}"),
                   (("X", i), f"buffer_load_dwordx4 {vr(xs,4)}, v{vX0}, {sr(sX,4)}, s{sWo+1} offen")])
        gs.append([(("X", i), f"buffer_load_dwordx4 {vr(xs+4,4)}, v{vX1}, {sr(sX,4)}, s{sWo+1} offen")])
        return gs
    def emit_group(g):
        for tag, txt in g:
            if tag == "s": a(txt)
            else: vm.op(tag, txt)
    for i in range(PFD):
        for g in load_groups(i): emit_group(g)
    for i in range(0, 72, 2):
        a(f"v_mov_b64 {vr(ACC+i,2)}, 0")
    def wread(gidx):
        i, nt = divmod(gidx, 9)
        if i >= 18: return False
        st = i % NST; slot = gidx % RING
        base = vWa if st < 3 else vWb
        off = (st % 3) * STG + nt * 32
        a(f"ds_read_b64_tr_b16 {vr(WR+slot*4,2)}, v{base} offset:{off}")
        a(f"ds_read_b64_tr_b16 {vr(WR+slot*4+2,2)}, v{base} offset:{off+4608}")
        return True
    PF = RING - 1
    vm.wait(lambda t: t[1] <= 1)
    a("s_barrier")
    for f in range(PF): wread(f)
    stamp(a, 1)
    for i in range(18):
        lg = load_groups(i + PFD)
        vm.wait(lambda t: t[0] == "X" and t[1] <= i)
        for nt in range(9):
            g = i*9 + nt; slot = g % RING
            ok = wread(g + PF)
            rem = min(PF, 18*9 - 1 - g)
            a(f"s_waitcnt lgkmcnt({2*rem})")
            xs = XS + (i % NST) * 8
            a(f"v_mfma_f32_16x16x32_bf16 {vr(acc(nt,0),4)}, {vr(WR+slot*4,4)}, {vr(xs,4)}, {vr(acc(nt,0),4)}")
            a(f"v_mfma_f32_16x16x32_bf16 {vr(acc(nt,1),4)}, {vr(WR+slot*4,4)}, {vr(xs+4,4)}, {vr(acc(nt,1),4)}")
            if nt % 2 == 0 and nt // 2 < len(lg):
                emit_group(lg[nt // 2])
        vm.wait(lambda t: t[0] == "W" and t[1] <= i + 2)
        a("s_barrier")
    stamp(a, 2)
    a(f"s_lshr_b32 s{sT}, s{sWave}, 2")
    a(f"v_lshlrev_b32 v{vT}, 4, v0")
    a(f"s_mul_i32 s{sT+1}, s{sWave}, 9216")
    a(f"v_add_u32 v{vT+1}, s{sT+1}, v{vT}")
    a(f"s_xor_b32 s{sT+2}, s{sWave}, 4")
    a(f"s_mul_i32 s{sT+2}, s{sT+2}, 9216")
    a(f"v_add_u32 v{vT+2}, s{sT+2}, v{vT}")
    a(f"s_cmp_eq_u32 s{sT}, 0")
    a("s_nop 4")
    a(f"s_cbranch_scc0 L_{name}_kh1")
    for kh in range(2):
        if kh == 1: a.lab(f"L_{name}_kh1")
        for nt in range(9):
            a(f"ds_write_b128 v{vT+1}, {vr(acc(nt,1-kh),4)} offset:{nt*1024}")
        a("s_waitcnt lgkmcnt(0)")
        a("s_barrier")
        for nt in range(9):
            a(f"ds_read_b128 {vr(XS+nt*4,4)}, v{vT+2} offset:{nt*1024}")
        for nt in range(9):
            a(f"s_waitcnt lgkmcnt({8-nt})")
            for r in range(4):
                a(f"v_add_f32 v{XS+nt*4+r}, v{XS+nt*4+r}, v{acc(nt,kh)+r}")
            if nt < 4:
                a(f"buffer_store_dwordx4 {vr(XS+nt*4,4)}, v{vT}, {sr(sP,4)}, s{sT+5} offen offset:{nt*1024}")
            else:
                if nt in (4, 8): a(f"s_add_u32 s{sT+5}, s{sT+5}, 4096")
                a(f"buffer_store_dwordx4 {vr(XS+nt*4,4)}, v{vT}, {sr(sP,4)}, s{sT+5} offen offset:{(nt%4)*1024}")
        stamp(a, 3)
        if "stamp" in OPT: a("s_waitcnt vmcnt(0)")
        stamp(a, 4); stamp(a, 6, True)
        stamp_dump(a, 7, 8, sWave, vT+4, 1)
        a("s_endpgm")
    a.lab(f"L_{name}_done")
    a("s_endpgm")
    return a.text(), kernel_desc(name, NV), f"; @launch kernel={name} grid=(256,1,1) block=(512,1,1) lds={NST*STG}"

def gen_k5(name="k5_kernel"):
    a = A()
    kernel_head(a, name)
    sH, sP, sO = 12, 16, 20
    a("s_cmp_ge_u32 s2, 576")
    a(f"s_cbranch_scc1 L_{name}_done")
    a("s_load_dwordx2 s[4:5], s[0:1], 56")
    a("s_load_dwordx2 s[8:9], s[0:1], 72")
    a("v_lshrrev_b32 v1, 6, v0")
    a("v_and_b32 v0, 63, v0")
    a("s_nop 0")
    a("v_readfirstlane_b32 s28, v1")
    a("s_lshl_b32 s29, s2, 2")
    a("s_add_u32 s29, s29, s28")
    a("s_mul_i32 s30, s29, 3641")
    a("s_lshr_b32 s30, s30, 16")
    a("s_mul_i32 s31, s30, 18")
    a("s_sub_u32 s31, s29, s31")
    a("s_waitcnt lgkmcnt(0)")
    srd(a, sH, 8, H1_SZ, H1_OFF)
    srd(a, sP, 8, P_SZ, P_OFF)
    srd(a, sO, 4, 2048*576*2)
    a("v_lshlrev_b32 v1, 4, v0")
    a("s_lshl_b32 s32, s29, 10")
    a("s_lshl_b32 s33, s29, 11")
    a(f"buffer_load_dwordx4 v[4:7], v1, {sr(sH,4)}, s32 offen")
    for k in range(4):
        a(f"buffer_load_dwordx4 v[{8+k*8}:{11+k*8}], v1, {sr(sP,4)}, s33 offen")
        a(f"buffer_load_dwordx4 v[{12+k*8}:{15+k*8}], v1, {sr(sP,4)}, s33 offen offset:1024")
        if k < 3: a(f"s_add_u32 s33, s33, {128*36*1024}")
    a("v_and_b32 v2, 15, v0")
    a("s_lshl_b32 s34, s30, 4")
    a("v_add_u32 v2, s34, v2")
    a("v_mul_u32_u24 v2, 1152, v2")
    a("v_lshrrev_b32 v3, 4, v0")
    a("v_lshl_add_u32 v2, v3, 3, v2")
    a("s_lshl_b32 s34, s31, 6")
    a("s_waitcnt vmcnt(0)")
    for i in range(8):
        a(f"v_add_f32 v{8+i}, v{8+i}, v{16+i}")
        a(f"v_add_f32 v{24+i}, v{24+i}, v{32+i}")
    for i in range(8):
        a(f"v_add_f32 v{8+i}, v{8+i}, v{24+i}")
    for p in range(4):
        a(f"v_cvt_pk_bf16_f32 v{16+p}, v{8+2*p}, v{9+2*p}")
    for p in range(4):
        a(f"v_lshlrev_b32 v{24+2*p}, 16, v{16+p}")
        a(f"v_and_b32 v{25+2*p}, 0xffff0000, v{16+p}")
        a(f"v_lshlrev_b32 v{32+2*p}, 16, v{4+p}")
        a(f"v_and_b32 v{33+2*p}, 0xffff0000, v{4+p}")
    for i in range(8):
        a(f"v_add_f32 v{24+i}, v{24+i}, v{32+i}")
    for p in range(4):
        a(f"v_cvt_pk_bf16_f32 v{16+p}, v{24+2*p}, v{25+2*p}")
    a(f"buffer_store_dwordx2 v[16:17], v2, {sr(sO,4)}, s34 offen")
    a(f"buffer_store_dwordx2 v[18:19], v2, {sr(sO,4)}, s34 offen offset:32")
    a.lab(f"L_{name}_done")
    a("s_endpgm")
    return a.text(), kernel_desc(name, 40, 48), f"; @launch kernel={name} grid=(576,1,1) block=(256,1,1) lds=0"


def gen_k2(name="k2_kernel"):
    a = A(); vm = VM(a)
    kernel_head(a, name)
    PITCH = 224; BLK = 32*PITCH
    ACC = 4
    OF = 28
    XR = 100
    WR = 112
    vD = 160
    vWa, vWb = 167, 168
    vT = 170
    NV = 188
    sW, sO, sXs, sH, sST = 12, 16, 20, 24, 28
    sWave, sRb, sNb, sT = 32, 33, 34, 36
    a("s_cmp_ge_u32 s2, 192")
    a(f"s_cbranch_scc1 L_{name}_done")
    stamp(a, 0); stamp(a, 5, True)
    a("s_load_dwordx2 s[4:5], s[0:1], 0")
    a("s_load_dwordx2 s[6:7], s[0:1], 16")
    a("s_load_dwordx2 s[8:9], s[0:1], 72")
    a("v_lshrrev_b32 v1, 6, v0")
    a("v_and_b32 v0, 63, v0")
    a("s_nop 0")
    a(f"v_readfirstlane_b32 s{sWave}, v1")
    a(f"s_lshr_b32 s{sT+1}, s2, 3")
    a(f"s_mul_i32 s{sRb}, s{sT+1}, 10923")
    a(f"s_lshr_b32 s{sRb}, s{sRb}, 16")
    a(f"s_mul_i32 s{sT}, s{sRb}, 6")
    a(f"s_sub_u32 s{sNb}, s{sT+1}, s{sT}")
    a(f"s_and_b32 s{sT}, s2, 7")
    a(f"s_lshl_b32 s{sT}, s{sT}, 2")
    a(f"s_add_u32 s{sRb}, s{sRb}, s{sT}")
    a("s_waitcnt lgkmcnt(0)")
    srd(a, sW, 6, 576*576*2)
    srd(a, sO, 8, O_SZ, O_OFF)
    srd(a, sXs, 4, 2048*576*2)
    srd(a, sH, 8, H1_SZ, H1_OFF)
    srd(a, sST, 8, ST_SZ, ST_OFF)
    a(f"s_mul_i32 s{sT}, s{sNb}, 192")
    a(f"s_mov_b32 s{sT+1}, 0x40000000")
    for t in range(7):
        a(f"v_add_u32 v{vT}, {t*64}, v0")
        a(f"v_mul_u32_u24 v{vT+1}, 4682, v{vT}")
        a(f"v_lshrrev_b32 v{vT+1}, 16, v{vT+1}")
        a(f"v_mul_u32_u24 v{vT+2}, 14, v{vT+1}")
        a(f"v_sub_u32 v{vT+2}, v{vT}, v{vT+2}")
        a(f"v_and_b32 v{vT+3}, 4, v{vT+1}")
        a(f"v_lshlrev_b32 v{vT+3}, 1, v{vT+3}")
        a(f"v_and_b32 v{vT+4}, 8, v{vT+1}")
        a(f"v_lshrrev_b32 v{vT+4}, 1, v{vT+4}")
        a(f"v_and_b32 v{vT+1}, 0x13, v{vT+1}")
        a(f"v_or3_b32 v{vT+1}, v{vT+1}, v{vT+3}, v{vT+4}")
        a(f"v_mul_u32_u24 v{vT+1}, 1152, v{vT+1}")
        a(f"v_lshl_add_u32 v{vT+1}, v{vT+2}, 4, v{vT+1}")
        a(f"v_add_u32 v{vT+1}, s{sT}, v{vT+1}")
        a(f"v_cmp_gt_u32 vcc, 12, v{vT+2}")
        a(f"v_mov_b32 v{vT+3}, s{sT+1}")
        a("s_nop 0")
        a(f"v_cndmask_b32 v{vD+t}, v{vT+3}, v{vT+1}, vcc")
    a(f"s_lshl_b32 s{sT}, s{sRb}, 6")
    a(f"s_lshl_b32 s{sT+1}, s{sWave}, 4")
    a(f"s_add_u32 s{sT}, s{sT}, s{sT+1}")
    a(f"v_and_b32 v{vT}, 15, v0")
    a(f"v_add_u32 v{vT}, s{sT}, v{vT}")
    a(f"v_mul_u32_u24 v{vT+1}, 1152, v{vT}")
    a(f"v_lshrrev_b32 v{vT+2}, 4, v0")
    a(f"s_lshr_b32 s{sT+4}, s{sT}, 4")
    a(f"s_mul_i32 s{sT+4}, s{sT+4}, 18432")
    a(f"v_lshlrev_b32 v{vT+3}, 4, v0")
    a(f"v_add_u32 v{vT+3}, s{sT+4}, v{vT+3}")
    a(f"v_lshl_add_u32 v{vT+4}, v{vT+2}, 3, v{vT+1}")
    for q in range(1, 5): a(f"s_movk_i32 s{sT+4+q}, {q*4096}")
    def osoff(s_): return ("s%d" % (sT+4+s_//4)) if s_ >= 4 else "0"
    a(f"s_mul_i32 s{sT+1}, s{sNb}, 192")
    a(f"s_mul_i32 s{sT+2}, s{sWave}, {32*1152}")
    a(f"s_mul_i32 s{sT+3}, s{sWave}, {BLK}")
    def chunk_ops(c):
        gs = []
        if c > 4: return gs
        for t in range(7):
            g = [("s", f"s_add_u32 m0, s{sT+3}, {c*4*BLK + t*1024}"), ("s", "s_nop 0"),
                 (("W", c), f"buffer_load_dwordx4 v{vD+t}, {sr(sW,4)}, s{sT+2} offen lds")]
            if t == 6: g.append(("s", f"s_add_u32 s{sT+2}, s{sT+2}, {4*32*1152}"))
            gs.append(g)
        for s_ in range(4*c, min(4*c+4, 18)):
            gs.append([(("O", c), f"buffer_load_dwordx4 {vr(OF+s_*4,4)}, v{vT+3}, {sr(sO,4)}, {osoff(s_)} offen offset:{(s_%4)*1024}")])
        return gs
    def emit_group(g):
        for tg, txt in g:
            if tg == "s": a(txt)
            else: vm.op(tg, txt)
    for c in range(2):
        for g in chunk_ops(c): emit_group(g)
    a(f"v_lshrrev_b32 v{vT+5}, 5, v0")
    a(f"v_lshlrev_b32 v{vT+5}, 4, v{vT+5}")
    a(f"v_bfe_u32 v{vT+6}, v0, 2, 3")
    a(f"v_add_u32 v{vT+5}, v{vT+5}, v{vT+6}")
    a(f"v_mul_u32_u24 v{vT+5}, {PITCH}, v{vT+5}")
    a(f"v_and_b32 v{vT+6}, 3, v0")
    a(f"v_lshl_add_u32 v{vWa}, v{vT+6}, 3, v{vT+5}")
    a(f"v_add_u32 v{vWb}, {9*BLK}, v{vWa}")
    def wread(s_, buf):
        base = vWa if s_ < 9 else vWb
        for nt in range(6):
            off = (s_ % 9) * BLK + nt * 32
            a(f"ds_read_b64_tr_b16 {vr(WR+buf*24+nt*4,2)}, v{base} offset:{off}")
            a(f"ds_read_b64_tr_b16 {vr(WR+buf*24+nt*4+2,2)}, v{base} offset:{off+8*PITCH}")
    for c in range(5):
        vm.wait(lambda t: t[1] <= c)
        a("s_barrier")
        if c == 0: stamp(a, 1)
        lg = chunk_ops(c+2)
        if c == 2:
            for nt in range(6):
                lg.append([(("X", 9), f"buffer_load_dwordx2 {vr(XR+nt*2,2)}, v{vT+4}, {sr(sXs,4)}, s{sT+1} offen offset:{nt*32}")])
        gi = 0
        steps = list(range(4*c, min(4*c+4, 18)))
        wread(steps[0], steps[0] % 2)
        for s_ in steps:
            if s_ != steps[-1]:
                wread(s_+1, (s_+1) % 2)
                a("s_waitcnt lgkmcnt(12)")
            else:
                a("s_waitcnt lgkmcnt(0)")
            for nt in range(6):
                cc = vr(ACC+nt*4,4)
                a(f"v_mfma_f32_16x16x32_bf16 {cc}, {vr(WR+(s_%2)*24+nt*4,4)}, {vr(OF+s_*4,4)}, " + ("0" if s_ == 0 else cc))
                if gi < len(lg):
                    emit_group(lg[gi]); gi += 1
        assert gi == len(lg)
    a("s_waitcnt vmcnt(0)")
    a("s_nop 7")
    stamp(a, 2)
    HP = WR
    for nt in range(6):
        for p in range(2):
            c0 = ACC + nt*4 + 2*p
            a(f"v_cvt_pk_bf16_f32 v{vT}, v{c0}, v{c0+1}")
            a(f"v_lshlrev_b32 v{c0}, 16, v{vT}")
            a(f"v_and_b32 v{c0+1}, 0xffff0000, v{vT}")
            a(f"v_lshlrev_b32 v{vT+1}, 16, v{XR+nt*2+p}")
            a(f"v_and_b32 v{vT+2}, 0xffff0000, v{XR+nt*2+p}")
            a(f"v_add_f32 v{c0}, v{c0}, v{vT+1}")
            a(f"v_add_f32 v{c0+1}, v{c0+1}, v{vT+2}")
            a(f"v_cvt_pk_bf16_f32 v{HP+nt*2+p}, v{c0}, v{c0+1}")
            a(f"v_lshlrev_b32 v{c0}, 16, v{HP+nt*2+p}")
            a(f"v_and_b32 v{c0+1}, 0xffff0000, v{HP+nt*2+p}")
    a(f"s_lshl_b32 s{sT}, s{sRb}, 2")
    a(f"s_add_u32 s{sT}, s{sT}, s{sWave}")
    a(f"s_mul_i32 s{sT+1}, s{sT}, 18")
    a(f"s_mul_i32 s{sT+2}, s{sNb}, 3")
    a(f"s_add_u32 s{sT+1}, s{sT+1}, s{sT+2}")
    a(f"s_lshl_b32 s{sT+1}, s{sT+1}, 10")
    a(f"v_lshlrev_b32 v{vT}, 4, v0")
    for p in range(3):
        a(f"buffer_store_dwordx4 {vr(HP+p*4,4)}, v{vT}, {sr(sH,4)}, s{sT+1} offen offset:{p*1024}")
    def xreduce(v, t):
        a(f"v_xor_b32 v{t}, 16, v0")
        a(f"v_lshlrev_b32 v{t}, 2, v{t}")
        a(f"ds_bpermute_b32 v{t+1}, v{t}, v{v}")
        a("s_waitcnt lgkmcnt(0)")
        a(f"v_add_f32 v{v}, v{v}, v{t+1}")
        a(f"v_xor_b32 v{t}, 32, v0")
        a(f"v_lshlrev_b32 v{t}, 2, v{t}")
        a(f"ds_bpermute_b32 v{t+1}, v{t}, v{v}")
        a("s_waitcnt lgkmcnt(0)")
        a(f"v_add_f32 v{v}, v{v}, v{t+1}")
    S0, S1 = vT+4, vT+5
    a(f"v_add_f32 v{S0}, v{ACC}, v{ACC+1}")
    for i in range(2, 24):
        a(f"v_add_f32 v{S0}, v{S0}, v{ACC+i}")
    xreduce(S0, vT+6)
    a(f"v_mul_f32 v{S0}, {f32(1.0/96.0)}, v{S0}")
    a(f"v_mov_b32 v{S1}, 0")
    for i in range(24):
        a(f"v_sub_f32 v{vT+1}, v{ACC+i}, v{S0}")
        a(f"v_fmac_f32 v{S1}, v{vT+1}, v{vT+1}")
    xreduce(S1, vT+6)
    a(f"s_lshl_b32 s{sT}, s{sT}, 4")
    a(f"v_add_u32 v{vT}, s{sT}, v0")
    a(f"v_mul_u32_u24 v{vT}, 48, v{vT}")
    a(f"s_lshl_b32 s{sT+1}, s{sNb}, 3")
    a("s_mov_b64 exec, 0xffff")
    a(f"buffer_store_dwordx2 {vr(S0,2)}, v{vT}, {sr(sST,4)}, s{sT+1} offen")
    stamp(a, 3)
    if "stamp" in OPT: a("s_waitcnt vmcnt(0)")
    stamp(a, 4); stamp(a, 6, True)
    stamp_dump(a, 7, 8, sWave, vT+8, 2)
    a.lab(f"L_{name}_done")
    a("s_endpgm")
    return a.text(), kernel_desc(name, NV, 96), f"; @launch kernel={name} grid=(192,1,1) block=(256,1,1) lds={20*BLK}"

def gen_k2v2(name="k2_kernel"):
    a = A(); vm = VM(a)
    kernel_head(a, name)
    PITCH = 224; BLK = 32*PITCH
    ACC = 4
    OF = 28
    XR = 100
    WR = 112
    vD = 160
    vWa, vWb = 167, 168
    vT = 170
    NV = 188
    sW, sO, sXs, sH, sST = 12, 16, 20, 24, 28
    sWave, sRb, sNb, sT = 32, 33, 34, 36
    a("s_cmp_ge_u32 s2, 192")
    a(f"s_cbranch_scc1 L_{name}_done")
    stamp(a, 0); stamp(a, 5, True)
    a("s_load_dwordx2 s[4:5], s[0:1], 0")
    a("s_load_dwordx2 s[6:7], s[0:1], 16")
    a("s_load_dwordx2 s[8:9], s[0:1], 72")
    a("v_lshrrev_b32 v1, 6, v0")
    a("v_and_b32 v0, 63, v0")
    a("s_nop 0")
    a(f"v_readfirstlane_b32 s{sWave}, v1")
    a(f"s_lshr_b32 s35, s{sWave}, 2")
    a(f"s_and_b32 s{sWave}, s{sWave}, 3")
    a(f"s_lshr_b32 s{sT+1}, s2, 3")
    a(f"s_mul_i32 s{sRb}, s{sT+1}, 10923")
    a(f"s_lshr_b32 s{sRb}, s{sRb}, 16")
    a(f"s_mul_i32 s{sT}, s{sRb}, 6")
    a(f"s_sub_u32 s{sNb}, s{sT+1}, s{sT}")
    a(f"s_and_b32 s{sT}, s2, 7")
    a(f"s_lshl_b32 s{sT}, s{sT}, 2")
    a(f"s_add_u32 s{sRb}, s{sRb}, s{sT}")
    a("s_waitcnt lgkmcnt(0)")
    srd(a, sW, 6, 576*576*2)
    srd(a, sO, 8, O_SZ, O_OFF)
    srd(a, sXs, 4, 2048*576*2)
    srd(a, sH, 8, H1_SZ, H1_OFF)
    srd(a, sST, 8, ST_SZ, ST_OFF)
    a(f"s_mul_i32 s{sT}, s{sNb}, 192")
    a(f"s_mov_b32 s{sT+1}, 0x40000000")
    for t in range(7):
        a(f"v_add_u32 v{vT}, {t*64}, v0")
        a(f"v_mul_u32_u24 v{vT+1}, 4682, v{vT}")
        a(f"v_lshrrev_b32 v{vT+1}, 16, v{vT+1}")
        a(f"v_mul_u32_u24 v{vT+2}, 14, v{vT+1}")
        a(f"v_sub_u32 v{vT+2}, v{vT}, v{vT+2}")
        a(f"v_and_b32 v{vT+3}, 4, v{vT+1}")
        a(f"v_lshlrev_b32 v{vT+3}, 1, v{vT+3}")
        a(f"v_and_b32 v{vT+4}, 8, v{vT+1}")
        a(f"v_lshrrev_b32 v{vT+4}, 1, v{vT+4}")
        a(f"v_and_b32 v{vT+1}, 0x13, v{vT+1}")
        a(f"v_or3_b32 v{vT+1}, v{vT+1}, v{vT+3}, v{vT+4}")
        a(f"v_mul_u32_u24 v{vT+1}, 1152, v{vT+1}")
        a(f"v_lshl_add_u32 v{vT+1}, v{vT+2}, 4, v{vT+1}")
        a(f"v_add_u32 v{vT+1}, s{sT}, v{vT+1}")
        a(f"v_cmp_gt_u32 vcc, 12, v{vT+2}")
        a(f"v_mov_b32 v{vT+3}, s{sT+1}")
        a("s_nop 0")
        a(f"v_cndmask_b32 v{vD+t}, v{vT+3}, v{vT+1}, vcc")
    a(f"s_lshl_b32 s{sT}, s{sRb}, 6")
    a(f"s_lshl_b32 s{sT+1}, s{sWave}, 4")
    a(f"s_add_u32 s{sT}, s{sT}, s{sT+1}")
    a(f"v_and_b32 v{vT}, 15, v0")
    a(f"v_add_u32 v{vT}, s{sT}, v{vT}")
    a(f"v_mul_u32_u24 v{vT+1}, 1152, v{vT}")
    a(f"v_lshrrev_b32 v{vT+2}, 4, v0")
    a(f"s_lshr_b32 s{sT+4}, s{sT}, 4")
    a(f"s_mul_i32 s{sT+4}, s{sT+4}, 18432")
    a(f"v_lshlrev_b32 v{vT+3}, 4, v0")
    a(f"v_add_u32 v{vT+3}, s{sT+4}, v{vT+3}")
    a(f"v_lshl_add_u32 v{vT+4}, v{vT+2}, 3, v{vT+1}")
    for q in range(1, 5): a(f"s_movk_i32 s{sT+4+q}, {q*4096}")
    def osoff(s_): return ("s%d" % (sT+4+s_//4)) if s_ >= 4 else "0"
    a(f"s_mul_i32 s{sT+1}, s{sNb}, 192")
    a(f"s_mul_i32 s{sT+2}, s{sWave}, {32*1152}")
    a(f"s_mul_i32 s{sT+3}, s{sWave}, {BLK}")
    a("s_cmp_eq_u32 s35, 0")
    a(f"s_cbranch_scc1 L_{name}_comp")
    for c in range(5):
        for t in range(7):
            a(f"s_add_u32 m0, s{sT+3}, {c*4*BLK + t*1024}")
            a("s_nop 0")
            a(f"buffer_load_dwordx4 v{vD+t}, {sr(sW,4)}, s{sT+2} offen lds")
        a(f"s_add_u32 s{sT+2}, s{sT+2}, {4*32*1152}")
    for c in range(5):
        a(f"s_waitcnt vmcnt({(4-c)*7})")
        a("s_barrier")
    a("s_endpgm")
    a.lab(f"L_{name}_comp")
    for s_ in range(18):
        vm.op(("O", s_), f"buffer_load_dwordx4 {vr(OF+s_*4,4)}, v{vT+3}, {sr(sO,4)}, {osoff(s_)} offen offset:{(s_%4)*1024}")
    for nt in range(6):
        vm.op(("X", 99), f"buffer_load_dwordx2 {vr(XR+nt*2,2)}, v{vT+4}, {sr(sXs,4)}, s{sT+1} offen offset:{nt*32}")
    a(f"v_lshrrev_b32 v{vT+5}, 5, v0")
    a(f"v_lshlrev_b32 v{vT+5}, 4, v{vT+5}")
    a(f"v_bfe_u32 v{vT+6}, v0, 2, 3")
    a(f"v_add_u32 v{vT+5}, v{vT+5}, v{vT+6}")
    a(f"v_mul_u32_u24 v{vT+5}, {PITCH}, v{vT+5}")
    a(f"v_and_b32 v{vT+6}, 3, v0")
    a(f"v_lshl_add_u32 v{vWa}, v{vT+6}, 3, v{vT+5}")
    a(f"v_add_u32 v{vWb}, {9*BLK}, v{vWa}")
    def wread(s_, buf):
        base = vWa if s_ < 9 else vWb
        for nt in range(6):
            off = (s_ % 9) * BLK + nt * 32
            a(f"ds_read_b64_tr_b16 {vr(WR+buf*24+nt*4,2)}, v{base} offset:{off}")
            a(f"ds_read_b64_tr_b16 {vr(WR+buf*24+nt*4+2,2)}, v{base} offset:{off+8*PITCH}")
    for c in range(5):
        a("s_barrier")
        if c == 0: stamp(a, 1)
        steps = list(range(4*c, min(4*c+4, 18)))
        wread(steps[0], steps[0] % 2)
        vm.wait(lambda t: t[0] == "O" and t[1] <= steps[-1])
        for s_ in steps:
            if s_ != steps[-1]:
                wread(s_+1, (s_+1) % 2)
                a("s_waitcnt lgkmcnt(12)")
            else:
                a("s_waitcnt lgkmcnt(0)")
            for nt in range(6):
                cc = vr(ACC+nt*4,4)
                a(f"v_mfma_f32_16x16x32_bf16 {cc}, {vr(WR+(s_%2)*24+nt*4,4)}, {vr(OF+s_*4,4)}, " + ("0" if s_ == 0 else cc))
    a("s_waitcnt vmcnt(0)")
    a("s_nop 7")
    stamp(a, 2)
    HP = WR
    for nt in range(6):
        for p in range(2):
            c0 = ACC + nt*4 + 2*p
            a(f"v_cvt_pk_bf16_f32 v{vT}, v{c0}, v{c0+1}")
            a(f"v_lshlrev_b32 v{c0}, 16, v{vT}")
            a(f"v_and_b32 v{c0+1}, 0xffff0000, v{vT}")
            a(f"v_lshlrev_b32 v{vT+1}, 16, v{XR+nt*2+p}")
            a(f"v_and_b32 v{vT+2}, 0xffff0000, v{XR+nt*2+p}")
            a(f"v_add_f32 v{c0}, v{c0}, v{vT+1}")
            a(f"v_add_f32 v{c0+1}, v{c0+1}, v{vT+2}")
            a(f"v_cvt_pk_bf16_f32 v{HP+nt*2+p}, v{c0}, v{c0+1}")
            a(f"v_lshlrev_b32 v{c0}, 16, v{HP+nt*2+p}")
            a(f"v_and_b32 v{c0+1}, 0xffff0000, v{HP+nt*2+p}")
    a(f"s_lshl_b32 s{sT}, s{sRb}, 2")
    a(f"s_add_u32 s{sT}, s{sT}, s{sWave}")
    a(f"s_mul_i32 s{sT+1}, s{sT}, 18")
    a(f"s_mul_i32 s{sT+2}, s{sNb}, 3")
    a(f"s_add_u32 s{sT+1}, s{sT+1}, s{sT+2}")
    a(f"s_lshl_b32 s{sT+1}, s{sT+1}, 10")
    a(f"v_lshlrev_b32 v{vT}, 4, v0")
    for p in range(3):
        a(f"buffer_store_dwordx4 {vr(HP+p*4,4)}, v{vT}, {sr(sH,4)}, s{sT+1} offen offset:{p*1024}")
    def xreduce(v, t):
        a(f"v_xor_b32 v{t}, 16, v0")
        a(f"v_lshlrev_b32 v{t}, 2, v{t}")
        a(f"ds_bpermute_b32 v{t+1}, v{t}, v{v}")
        a("s_waitcnt lgkmcnt(0)")
        a(f"v_add_f32 v{v}, v{v}, v{t+1}")
        a(f"v_xor_b32 v{t}, 32, v0")
        a(f"v_lshlrev_b32 v{t}, 2, v{t}")
        a(f"ds_bpermute_b32 v{t+1}, v{t}, v{v}")
        a("s_waitcnt lgkmcnt(0)")
        a(f"v_add_f32 v{v}, v{v}, v{t+1}")
    S0, S1 = vT+4, vT+5
    a(f"v_add_f32 v{S0}, v{ACC}, v{ACC+1}")
    for i in range(2, 24):
        a(f"v_add_f32 v{S0}, v{S0}, v{ACC+i}")
    xreduce(S0, vT+6)
    a(f"v_mul_f32 v{S0}, {f32(1.0/96.0)}, v{S0}")
    a(f"v_mov_b32 v{S1}, 0")
    for i in range(24):
        a(f"v_sub_f32 v{vT+1}, v{ACC+i}, v{S0}")
        a(f"v_fmac_f32 v{S1}, v{vT+1}, v{vT+1}")
    xreduce(S1, vT+6)
    a(f"s_lshl_b32 s{sT}, s{sT}, 4")
    a(f"v_add_u32 v{vT}, s{sT}, v0")
    a(f"v_mul_u32_u24 v{vT}, 48, v{vT}")
    a(f"s_lshl_b32 s{sT+1}, s{sNb}, 3")
    a("s_mov_b64 exec, 0xffff")
    a(f"buffer_store_dwordx2 {vr(S0,2)}, v{vT}, {sr(sST,4)}, s{sT+1} offen")
    stamp(a, 3)
    if "stamp" in OPT: a("s_waitcnt vmcnt(0)")
    stamp(a, 4); stamp(a, 6, True)
    stamp_dump(a, 7, 8, sWave, vT+8, 2)
    a.lab(f"L_{name}_done")
    a("s_endpgm")
    return a.text(), kernel_desc(name, NV, 96), f"; @launch kernel={name} grid=(192,1,1) block=(512,1,1) lds={20*BLK}"

def gen_k1(name="k1_kernel"):
    a = A(); vm = VM(a)
    kernel_head(a, name)
    XT = 0
    WB = 92160; STG = 16384; NST = 4; PITCH = 480
    QP = 624
    ACC = 4
    XF = 44
    WF = 84
    RAW = 100
    vD0, vD1 = 150, 151
    vWa, vXa = 152, 153
    vT = 156
    NV = 200
    sW, sXs, sO = 12, 16, 20
    sWave, sRb, sHg, sT = 28, 29, 30, 36
    sWo, sM0b = 31, 32
    a("s_cmp_ge_u32 s2, 256")
    a(f"s_cbranch_scc1 L_{name}_done")
    stamp(a, 0); stamp(a, 5, True)
    a("s_load_dwordx4 s[4:7], s[0:1], 0")
    a("s_load_dwordx2 s[8:9], s[0:1], 72")
    a("v_lshrrev_b32 v1, 6, v0")
    a("v_mov_b32 v3, v0")
    a("v_and_b32 v0, 63, v0")
    a(f"v_readfirstlane_b32 s{sWave}, v1")
    a(f"s_lshr_b32 s{sT}, s2, 3")
    a(f"s_and_b32 s{sHg}, s{sT}, 3")
    a(f"s_and_b32 s{sT+1}, s2, 1")
    a(f"s_lshl_b32 s{sT+1}, s{sT+1}, 2")
    a(f"s_add_u32 s{sHg}, s{sHg}, s{sT+1}")
    a(f"s_lshr_b32 s{sRb}, s{sT}, 2")
    a(f"s_bfe_u32 s{sT+1}, s2, 0x20001")
    a(f"s_lshl_b32 s{sT+1}, s{sT+1}, 3")
    a(f"s_add_u32 s{sRb}, s{sRb}, s{sT+1}")
    a("s_waitcnt lgkmcnt(0)")
    srd(a, sW, 6, 576*1728*2)
    srd(a, sXs, 4, 2048*576*2)
    srd(a, sO, 8, O_SZ, O_OFF)
    a(f"v_mul_u32_u24 v{vT}, 10923, v0")
    a(f"v_lshrrev_b32 v{vT}, 16, v{vT}")
    a(f"v_mul_u32_u24 v{vT+1}, 6, v{vT}")
    a(f"v_sub_u32 v{vT+1}, v0, v{vT+1}")
    a(f"s_mul_i32 s{sT}, s{sWave}, 10")
    a(f"v_add_u32 v{vT+2}, s{sT}, v{vT}")
    a(f"s_lshl_b32 s{sT+1}, s{sRb}, 6")
    a(f"s_sub_u32 s{sT+1}, s{sT+1}, 16")
    a(f"v_add_u32 v{vT+3}, s{sT+1}, v{vT+2}")
    a(f"s_movk_i32 s{sT+2}, 1152")
    a(f"v_mul_lo_u32 v{vT+3}, v{vT+3}, s{sT+2}")
    a(f"v_lshl_add_u32 v{vT+3}, v{vT+1}, 4, v{vT+3}")
    for i in range(12):
        vm.op(("x", i), f"buffer_load_dwordx4 {vr(RAW+i*4,4)}, v{vT+3}, {sr(sXs,4)}, 0 offen offset:{i*96}")
    a(f"s_lshl_b32 s{sT}, s{sWave}, 7")
    a(f"s_mul_i32 s{sT+1}, s{sHg}, 144")
    a(f"s_mov_b32 s{sT+2}, 0x40000000")
    for t, vd in enumerate((vD0, vD1)):
        a(f"v_add_u32 v{vT+4}, s{sT}, v0")
        if t: a(f"v_add_u32 v{vT+4}, 64, v{vT+4}")
        a(f"v_mul_u32_u24 v{vT+5}, 2185, v{vT+4}")
        a(f"v_lshrrev_b32 v{vT+5}, 16, v{vT+5}")
        a(f"v_mul_u32_u24 v{vT+6}, 30, v{vT+5}")
        a(f"v_sub_u32 v{vT+6}, v{vT+4}, v{vT+6}")
        a(f"v_mul_u32_u24 v{vT+7}, 7282, v{vT+6}")
        a(f"v_lshrrev_b32 v{vT+7}, 16, v{vT+7}")
        a(f"v_mul_u32_u24 v{vT+8}, 9, v{vT+7}")
        a(f"v_sub_u32 v{vT+8}, v{vT+6}, v{vT+8}")
        a(f"v_mul_u32_u24 v{vT+7}, 1152, v{vT+7}")
        a(f"v_lshl_add_u32 v{vT+7}, v{vT+8}, 4, v{vT+7}")
        a(f"v_and_b32 v{vT+8}, 4, v{vT+5}")
        a(f"v_lshlrev_b32 v{vT+8}, 1, v{vT+8}")
        a(f"v_and_b32 v{vT+9}, 8, v{vT+5}")
        a(f"v_lshrrev_b32 v{vT+9}, 1, v{vT+9}")
        a(f"v_and_b32 v{vT+10}, 0x13, v{vT+5}")
        a(f"v_or3_b32 v{vT+8}, v{vT+8}, v{vT+9}, v{vT+10}")
        a(f"v_mul_u32_u24 v{vT+8}, 3456, v{vT+8}")
        a(f"v_add3_u32 v{vT+7}, v{vT+7}, v{vT+8}, s{sT+1}")
        a(f"v_cmp_gt_u32 vcc, 27, v{vT+6}")
        a(f"v_cmp_gt_u32 s[{sT+4}:{sT+5}], 32, v{vT+5}")
        a(f"s_and_b64 vcc, vcc, s[{sT+4}:{sT+5}]")
        a(f"v_mov_b32 v{vT+8}, s{sT+2}")
        a("s_nop 1")
        a(f"v_cndmask_b32 v{vd}, v{vT+8}, v{vT+7}, vcc")
    a(f"s_lshl_b32 s{sM0b}, s{sWave}, 11")
    a(f"s_add_u32 s{sM0b}, s{sM0b}, {WB}")
    def wdma(i):
        if i >= 18: return
        st = i % NST
        a(f"s_mov_b32 s{sWo}, {i*32*3456}")
        for t, vd in enumerate((vD0, vD1)):
            a(f"s_add_u32 m0, s{sM0b}, {st*STG + t*1024}")
            a("s_nop 0")
            vm.op(("W", i), f"buffer_load_dwordx4 v{vd}, {sr(sW,4)}, s{sWo} offen lds")
    for i in range(4): wdma(i)
    ONES_LO, ONES_HI, ONES = sT+6, sT+7, sT+8
    a(f"s_mov_b32 s{ONES}, 0x3f803f80")
    S, M, Q = vT+4, vT+5, vT+6
    B3, B1, B2 = vT+8, vT+9, vT+10
    for d_, vb in ((3, B3), (1, B1), (2, B2)):
        a(f"v_add_u32 v{vb}, {d_}, v{vT+1}")
        a(f"v_subrev_u32 v{vT+11}, 6, v{vb}")
        a(f"v_min_u32 v{vb}, v{vb}, v{vT+11}")
        a(f"v_mad_u32_u24 v{vb}, v{vT}, 6, v{vb}")
        a(f"v_lshlrev_b32 v{vb}, 2, v{vb}")
    def reduce6(v):
        a(f"ds_bpermute_b32 v{vT+11}, v{B3}, v{v}")
        a("s_waitcnt lgkmcnt(0)")
        a(f"v_add_f32 v{v}, v{v}, v{vT+11}")
        a(f"ds_bpermute_b32 v{vT+11}, v{B1}, v{v}")
        a(f"ds_bpermute_b32 v{vT+12}, v{B2}, v{v}")
        a("s_waitcnt lgkmcnt(0)")
        a(f"v_add_f32 v{v}, v{v}, v{vT+11}")
        a(f"v_add_f32 v{v}, v{v}, v{vT+12}")
    vm.wait(lambda t: t[0] == "x")
    stamp(a, 1)
    if "wtest" in OPT:
        a("s_waitcnt vmcnt(6)")
        stamp(a, 2)
        a("s_waitcnt vmcnt(0)")
        stamp(a, 3)
        stamp(a, 4)
        OPT.discard("stamp"); OPT.add("stamp_off")
    a(f"v_mov_b32 v{S}, 0")
    a(f"v_mov_b32 v{Q}, 0")
    for i in range(48):
        a(f"v_dot2_f32_bf16 v{S if i%2==0 else Q}, v{RAW+i}, s{ONES}, v{S if i%2==0 else Q}")
    a("s_nop 2")
    a(f"v_add_f32 v{S}, v{S}, v{Q}")
    reduce6(S)
    a(f"v_mul_f32 v{S}, {f32(1.0/576.0)}, v{S}")
    round_bf16(a, M, S)
    PM, PQ = 172, 174
    a(f"v_sub_f32 v{PM}, 0, v{M}")
    a(f"v_mov_b32 v{PM+1}, v{PM}")
    a(f"v_mov_b64 {vr(PQ,2)}, 0")
    a(f"v_mov_b64 {vr(PQ+2,2)}, 0")
    for i in range(48):
        t = 178 + (i % 4) * 2
        q = PQ + (i % 2) * 2
        a(f"v_lshlrev_b32 v{t}, 16, v{RAW+i}")
        a(f"v_and_b32 v{t+1}, 0xffff0000, v{RAW+i}")
        a(f"v_pk_add_f32 {vr(t,2)}, {vr(t,2)}, {vr(PM,2)}")
        a(f"v_pk_fma_f32 {vr(q,2)}, {vr(t,2)}, {vr(t,2)}, {vr(q,2)}")
        a(f"v_cvt_pk_bf16_f32 v{RAW+i}, v{t}, v{t+1}")
    a(f"v_add_f32 v{Q}, v{PQ}, v{PQ+1}")
    a(f"v_add_f32 v{vT+13}, v{PQ+2}, v{PQ+3}")
    a(f"v_add_f32 v{Q}, v{Q}, v{vT+13}")
    reduce6(Q)
    a(f"v_mul_f32 v{Q}, {f32(1.0/576.0)}, v{Q}")
    a(f"v_sub_f32 v{vT+13}, v{S}, v{M}")
    a(f"v_fma_f32 v{Q}, -v{vT+13}, v{vT+13}, v{Q}")
    a(f"v_max_f32 v{Q}, 0, v{Q}")
    round_bf16(a, Q, Q)
    a(f"v_add_f32 v{Q}, {f32(1e-5)}, v{Q}")
    round_bf16(a, Q, Q)
    a(f"v_sqrt_f32 v{Q}, v{Q}")
    a("s_nop 0")
    round_bf16(a, Q, Q)
    a(f"v_rcp_f32 v{PM}, v{Q}")
    a(f"v_lshrrev_b32 v{vT+11}, 4, v{vT+2}")
    a(f"v_mov_b32 v{PM+1}, v{PM}")
    a(f"v_mul_u32_u24 v{vT+11}, 18432, v{vT+11}")
    a(f"v_and_b32 v{vT+12}, 15, v{vT+2}")
    a(f"v_lshl_add_u32 v{vT+11}, v{vT+12}, 4, v{vT+11}")
    a(f"v_lshl_add_u32 v{vT+14}, v{vT+1}, 8, v{vT+11}")
    a(f"v_cmp_gt_u32 vcc, 60, v0")
    a(f"s_and_saveexec_b64 s[{sT+4}:{sT+5}], vcc")
    for i in range(12):
        for d_ in range(4):
            x = RAW + i*4 + d_
            t = 178 + d_ * 2
            a(f"v_lshlrev_b32 v{t}, 16, v{x}")
            a(f"v_and_b32 v{t+1}, 0xffff0000, v{x}")
            a(f"v_pk_mul_f32 {vr(t,2)}, {vr(t,2)}, {vr(PM,2)}")
            a(f"v_cvt_pk_bf16_f32 v{x}, v{t}, v{t+1}")
        a(f"ds_write_b128 v{vT+14}, {vr(RAW+i*4,4)} offset:{XT + i*6*256}")
    a(f"s_mov_b64 exec, s[{sT+4}:{sT+5}]")
    stamp(a, 2)
    a(f"v_lshrrev_b32 v{vT+5}, 5, v0")
    a(f"v_lshlrev_b32 v{vT+5}, 4, v{vT+5}")
    a(f"v_bfe_u32 v{vT+6}, v0, 2, 3")
    a(f"v_add_u32 v{vT+5}, v{vT+5}, v{vT+6}")
    a(f"v_mul_u32_u24 v{vT+5}, {PITCH}, v{vT+5}")
    a(f"v_and_b32 v{vT+6}, 3, v0")
    a(f"v_lshl_add_u32 v{vWa}, v{vT+6}, 3, v{vT+5}")
    a(f"s_lshl_b32 s{sT}, s{sWave}, 6")
    a(f"s_add_u32 s{sT}, s{sT}, {WB}")
    a(f"v_add_u32 v{vWa}, s{sT}, v{vWa}")
    a(f"v_lshlrev_b32 v{vXa}, 4, v0")
    for i in range(0, 40, 2):
        a(f"v_mov_b64 {vr(ACC+i,2)}, 0")
    vm.wait(lambda t: t[0] == "W" and t[1] <= 1, " lgkmcnt(0)")
    a("s_barrier")
    def reads(i):
        b = i % 2; st = i % NST
        for n in range(2):
            a(f"ds_read_b64_tr_b16 {vr(WF+b*8+n*4,2)}, v{vWa} offset:{st*STG + n*32}")
            a(f"ds_read_b64_tr_b16 {vr(WF+b*8+n*4+2,2)}, v{vWa} offset:{st*STG + n*32 + 8*PITCH}")
        for mt in range(5):
            off = (mt*18 + i)*1024
            if off < 65536:
                a(f"ds_read_b128 {vr(XF+b*20+mt*4,4)}, v{vXa} offset:{off}")
            else:
                a(f"ds_read_b128 {vr(XF+b*20+mt*4,4)}, v{vT} offset:{off-65536}")
    a(f"v_add_u32 v{vT}, 65536, v{vXa}")
    stamp(a, 3)
    reads(0)
    for i in range(18):
        if i < 17:
            reads(i+1)
            a("s_waitcnt lgkmcnt(9)")
        else:
            a("s_waitcnt lgkmcnt(0)")
        b = i % 2
        k = 0
        for mt in range(5):
            for n in range(2):
                a(f"v_mfma_f32_16x16x32_bf16 {vr(ACC+(mt*2+n)*4,4)}, {vr(WF+b*8+n*4,4)}, {vr(XF+b*20+mt*4,4)}, {vr(ACC+(mt*2+n)*4,4)}")
                k += 1
                if k == 2 and i >= 1:
                    wdma(i+3)
        if i < 17:
            vm.wait(lambda t: t[0] == "W" and t[1] <= i+2)
            a("s_barrier")
    a("s_barrier")
    stamp(a, 4)
    a(f"v_lshrrev_b32 v{vT}, 4, v0")
    a(f"v_lshlrev_b32 v{vT}, 2, v{vT}")
    a(f"s_lshl_b32 s{sT}, s{sWave}, 5")
    a(f"v_add_u32 v{vT}, s{sT}, v{vT}")
    a(f"v_and_b32 v{vT+1}, 15, v0")
    a(f"v_mul_u32_u24 v{vT+1}, {QP}, v{vT+1}")
    AD = vT + 4
    for n in range(2):
        for p in range(2):
            ad = AD + n*2 + p
            a(f"v_add_u32 v{vT+2}, {n*16+p*2}, v{vT}")
            a(f"v_mul_u32_u24 v{vT+3}, 3641, v{vT+2}")
            a(f"v_lshrrev_b32 v{vT+3}, 16, v{vT+3}")
            a(f"v_mul_u32_u24 v{ad}, 18, v{vT+3}")
            a(f"v_sub_u32 v{ad}, v{vT+2}, v{ad}")
            a(f"v_lshl_add_u32 v{ad}, v{ad}, 1, v{vT+1}")
            a(f"v_mad_u32_u24 v{ad}, v{vT+3}, 48, v{ad}")
    a(f"s_cmp_ge_u32 s{sWave}, 7")
    a("s_nop 4")
    a(f"s_cbranch_scc1 L_{name}_skipq")
    for mt in range(5):
        for n in range(2):
            c = ACC + (mt*2+n)*4
            a(f"v_cvt_pk_bf16_f32 v{vT+8}, v{c}, v{c+1}")
            a(f"v_cvt_pk_bf16_f32 v{vT+9}, v{c+2}, v{c+3}")
            a(f"ds_write_b32 v{AD+n*2}, v{vT+8} offset:{mt*16*QP}")
            a(f"ds_write_b32 v{AD+n*2+1}, v{vT+9} offset:{mt*16*QP}")
    a.lab(f"L_{name}_skipq")
    a("s_waitcnt lgkmcnt(0)")
    a("s_barrier")
    if "dbg1" in OPT:
        lds_dump(a, 57344, 9, 3, 190, 210, tag="q")
    a(f"s_cmp_ge_u32 s{sWave}, 4")
    a(f"s_cbranch_scc1 L_{name}_done")
    QR = 4; KR = 16; LG = 120; OA = 130; VR_ = 16
    a(f"v_lshrrev_b32 v{vT}, 2, v3")
    a(f"v_and_b32 v{vT+1}, 3, v3")
    a(f"v_add_u32 v{vT+2}, 2, v{vT}")
    a(f"v_mul_u32_u24 v{vT+2}, {QP}, v{vT+2}")
    a(f"v_mad_u32_u24 v{vT+2}, v{vT+1}, 48, v{vT+2}")
    for j in range(3):
        a(f"ds_read_b128 {vr(QR+j*4,4)}, v{vT+2} offset:{14*QP + j*16}")
    for w in range(8):
        for j in range(3):
            a(f"ds_read_b128 {vr(KR+w*12+j*4,4)}, v{vT+2} offset:{(14-2*w)*QP + 192 + j*16}")
    a(f"s_lshl_b32 s{sT}, s{sRb}, 6")
    a(f"v_add_u32 v{vT+3}, s{sT}, v{vT}")
    a(f"s_mov_b32 s{sT+1}, {f32(18.0**-0.5)}")
    a(f"s_mov_b32 s{sT+2}, {f32(-1e9)}")
    a(f"v_cvt_pk_bf16_f32 v{vT+4}, s{sT+2}, s{sT+2}")
    a(f"v_lshlrev_b32 v{vT+4}, 16, v{vT+4}")
    for w in range(8):
        a(f"s_waitcnt lgkmcnt({min(15, (7-w)*3)})")
        a(f"v_mov_b32 v{LG+w}, 0")
        for d_ in range(9):
            a(f"v_dot2_f32_bf16 v{LG+w}, v{QR+d_}, v{KR+w*12+d_}, v{LG+w}")
        a("s_nop 2")
        round_bf16(a, LG+w, LG+w)
        a(f"v_mul_f32 v{LG+w}, s{sT+1}, v{LG+w}")
        round_bf16(a, LG+w, LG+w)
        a(f"v_cmp_le_u32 vcc, {2*w}, v{vT+3}")
        a("s_nop 1")
        a(f"v_cndmask_b32 v{LG+w}, v{vT+4}, v{LG+w}, vcc")
    for w in range(8):
        for j in range(3):
            a(f"ds_read_b128 {vr(VR_+w*12+j*4,4)}, v{vT+2} offset:{(14-2*w)*QP + 384 + j*16}")
    a(f"v_max3_f32 v{vT+5}, v{LG}, v{LG+1}, v{LG+2}")
    a(f"v_max3_f32 v{vT+5}, v{vT+5}, v{LG+3}, v{LG+4}")
    a(f"v_max3_f32 v{vT+5}, v{vT+5}, v{LG+5}, v{LG+6}")
    a(f"v_max_f32 v{vT+5}, v{vT+5}, v{LG+7}")
    a(f"s_mov_b32 s{sT+3}, {f32(math.log2(math.e))}")
    for w in range(8):
        a(f"v_sub_f32 v{LG+w}, v{LG+w}, v{vT+5}")
        a(f"v_mul_f32 v{LG+w}, s{sT+3}, v{LG+w}")
        a(f"v_exp_f32 v{LG+w}, v{LG+w}")
    a("s_nop 0")
    a(f"v_add_f32 v{vT+6}, v{LG}, v{LG+1}")
    for w in range(2, 8):
        a(f"v_add_f32 v{vT+6}, v{vT+6}, v{LG+w}")
    a(f"v_rcp_f32 v{vT+6}, v{vT+6}")
    a("s_nop 0")
    for w in range(8):
        a(f"v_mul_f32 v{LG+w}, v{LG+w}, v{vT+6}")
    for wp in range(4):
        a(f"v_cvt_pk_bf16_f32 v{LG+wp}, v{LG+2*wp}, v{LG+2*wp+1}")
    for d_ in range(18):
        a(f"v_mov_b32 v{OA+d_}, 0")
    a(f"s_mov_b32 s{sT+4}, 0x05040100")
    a(f"s_mov_b32 s{sT+5}, 0x07060302")
    for wp in range(4):
        a(f"s_waitcnt lgkmcnt({min(15, (3-wp)*6)})")
        for d_ in range(9):
            x0 = VR_ + (2*wp)*12 + d_; x1 = VR_ + (2*wp+1)*12 + d_
            t = vT + 8 + (d_ % 2) * 2
            a(f"v_perm_b32 v{t}, v{x1}, v{x0}, s{sT+4}")
            a(f"v_perm_b32 v{t+1}, v{x1}, v{x0}, s{sT+5}")
            a(f"v_dot2_f32_bf16 v{OA+2*d_}, v{t}, v{LG+wp}, v{OA+2*d_}")
            a(f"v_dot2_f32_bf16 v{OA+2*d_+1}, v{t+1}, v{LG+wp}, v{OA+2*d_+1}")
    a("s_nop 2")
    for d_ in range(9):
        a(f"v_cvt_pk_bf16_f32 v{QR+d_}, v{OA+2*d_}, v{OA+2*d_+1}")
    a(f"v_mul_u32_u24 v{vT+3}, 1152, v{vT+3}")
    a(f"v_mad_u32_u24 v{vT+3}, v{vT+1}, 36, v{vT+3}")
    a(f"s_mul_i32 s{sT}, s{sHg}, 144")
    a(f"buffer_store_dwordx4 {vr(QR,4)}, v{vT+3}, {sr(sO,4)}, s{sT} offen")
    a(f"buffer_store_dwordx4 {vr(QR+4,4)}, v{vT+3}, {sr(sO,4)}, s{sT} offen offset:16")
    a(f"buffer_store_dword v{QR+8}, v{vT+3}, {sr(sO,4)}, s{sT} offen offset:32")
    if "stamp_off" in OPT: OPT.add("stamp")
    if "stamp" in OPT: a("s_waitcnt vmcnt(0)")
    stamp(a, 6, True)
    stamp_dump(a, 7, 8, sWave, vT+8, 3)
    a.lab(f"L_{name}_done")
    a("s_endpgm")
    return a.text(), kernel_desc(name, NV, 96), f"; @launch kernel={name} grid=(256,1,1) block=(512,1,1) lds={WB + NST*STG}"


def dma_slots_setup(a, sWave, sT, vT, vD, rowbytes, sM0, upshift, extra_s=None):
    a(f"s_lshl_b32 s{sT}, s{sWave}, 6")
    a(f"s_sub_u32 s{sT+1}, s{sT}, 64")
    a(f"s_cmp_eq_u32 s{sWave}, 0")
    a(f"s_cselect_b32 s{sT+1}, 512, s{sT+1}")
    a(f"s_cselect_b32 s{sT+3}, 0, {upshift}")
    a(f"s_add_u32 s{sT+2}, s{sT}, 448")
    a(f"s_lshl_b32 s{sM0}, s{sWave}, 10")
    a(f"s_add_u32 s{sM0+1}, s{sM0}, 8192")
    a(f"s_add_u32 s{sM0+1}, s{sM0+1}, s{sT+3}")
    a(f"s_add_u32 s{sM0+2}, s{sM0}, {16384+upshift}")
    for k in range(3):
        a(f"v_add_u32 v{vT+1}, s{sT+k}, v0")
        a(f"v_mul_u32_u24 v{vT+2}, 3641, v{vT+1}")
        a(f"v_lshrrev_b32 v{vT+8+k}, 16, v{vT+2}")
        a(f"v_mul_u32_u24 v{vT+3}, 18, v{vT+8+k}")
        a(f"v_sub_u32 v{vT+3}, v{vT+1}, v{vT+3}")
        a(f"v_mul_u32_u24 v{vT+2}, {rowbytes}, v{vT+8+k}")
        a(f"v_lshl_add_u32 v{vD+k}, v{vT+3}, 4, v{vT+2}")

def gen_k3v2(name="k3_kernel"):
    a = A(); a.k3 = True; a.stpol = os.environ.get("K3ST", "sc1")
    kernel_head(a, name)
    NST = 6; STG = 18560; UP = 9344; RING = 6; PF = RING - 1
    ACC = 4; XS = 148; WR = 196
    vWa, vWb = 220, 221
    vD = 222
    vX0 = 225
    vNM, vR = 226, 227
    vT = 228
    NV = 254
    def acc(nt): return ACC + nt*16
    sWa, sWb_, sWc, sX, sST, sH = 12, 16, 20, 24, 28, 32
    sWave, sFb, sMb = 36, 37, 38
    sWoff, sXoff, sIt = 39, 40, 41
    sM0 = 42
    sT = 46
    sRot, sCnt, sHb = 56, 57, 58
    a("s_cmp_ge_u32 s2, 256")
    a(f"s_cbranch_scc1 L_{name}_done")
    stamp(a, 0); stamp(a, 5, True)
    a("s_load_dwordx4 s[4:7], s[0:1], 32")
    a("s_load_dwordx2 s[8:9], s[0:1], 72")
    a("v_lshrrev_b32 v1, 6, v0")
    a("v_and_b32 v0, 63, v0")
    a("s_nop 0")
    a(f"v_readfirstlane_b32 s{sWave}, v1")
    a(f"s_and_b32 s{sT}, s2, 7")
    a(f"s_lshr_b32 s{sT+1}, s2, 3")
    a(f"s_and_b32 s{sFb}, s{sT+1}, 3")
    a(f"s_lshl_b32 s{sT}, s{sT}, 2")
    a(f"s_add_u32 s{sFb}, s{sFb}, s{sT}")
    a(f"s_lshr_b32 s{sMb}, s{sT+1}, 2")
    dma_slots_setup(a, sWave, sT, vT, vD, 9216, sM0, 128)
    a(f"s_mul_i32 s{sT}, s{sFb}, 288")
    for k in range(3):
        a(f"v_add_u32 v{vD+k}, s{sT}, v{vD+k}")
    a(f"s_lshl_b32 s{sT}, s{sMb}, 4")
    a(f"s_lshl_b32 s{sT+1}, s{sWave}, 1")
    a(f"s_add_u32 s{sT}, s{sT}, s{sT+1}")
    a(f"s_mul_i32 s{sT+1}, s{sT}, 18432")
    a(f"v_bfe_u32 v{vT}, v0, 4, 1")
    a(f"v_mul_u32_u24 v{vT}, 18432, v{vT}")
    a(f"v_lshrrev_b32 v{vT+1}, 5, v0")
    a(f"v_lshl_add_u32 v{vT}, v{vT+1}, 8, v{vT}")
    a(f"v_and_b32 v{vT+1}, 15, v0")
    a(f"v_lshl_add_u32 v{vT}, v{vT+1}, 4, v{vT}")
    a(f"v_add_u32 v{vX0}, s{sT+1}, v{vT}")
    a(f"s_mul_i32 s{sHb}, s{sT}, 144")
    a(f"s_lshr_b32 s{sT+1}, s{sFb}, 1")
    a(f"s_mul_i32 s{sT+1}, s{sT+1}, 9")
    a(f"s_add_u32 s{sHb}, s{sHb}, s{sT+1}")
    a(f"s_lshl_b32 s{sHb}, s{sHb}, 10")
    a(f"s_lshl_b32 s{sT}, s{sT}, 4")
    a(f"v_and_b32 v{vT+4}, 31, v0")
    a(f"v_add_u32 v{vT+4}, s{sT}, v{vT+4}")
    a(f"v_mul_u32_u24 v{vT+4}, 48, v{vT+4}")
    a(f"v_bfe_u32 v{vT}, v0, 4, 1")
    a(f"v_mul_u32_u24 v{vT}, {UP}, v{vT}")
    a(f"v_lshrrev_b32 v{vT+1}, 5, v0")
    a(f"v_bfe_u32 v{vT+2}, v0, 2, 2")
    a(f"v_lshl_add_u32 v{vT+1}, v{vT+1}, 2, v{vT+2}")
    a(f"v_mad_u32_u24 v{vT}, v{vT+1}, 288, v{vT}") if False else None
    a(f"v_mul_u32_u24 v{vT+1}, 288, v{vT+1}")
    a(f"v_add_u32 v{vT}, v{vT}, v{vT+1}")
    a(f"v_and_b32 v{vT+2}, 3, v0")
    a(f"v_lshl_add_u32 v{vWa}, v{vT+2}, 3, v{vT}")
    a(f"v_add_u32 v{vWb}, {3*STG}, v{vWa}")
    if "rot" in OPT:
        a(f"s_mul_i32 s{sRot}, s{sMb}, 9")
        a(f"s_and_b32 s{sT}, s{sFb}, 3")
        a(f"s_mul_i32 s{sT}, s{sT}, 18")
        a(f"s_add_u32 s{sRot}, s{sRot}, s{sT}")
        a(f"s_lshr_b32 s{sRot}, s{sRot}, 2")
        a(f"s_sub_u32 s{sT}, s{sRot}, 18")
        a(f"s_cmp_ge_u32 s{sRot}, 18")
        a(f"s_cselect_b32 s{sRot}, s{sT}, s{sRot}")
    else:
        a(f"s_mov_b32 s{sRot}, 0")
    a(f"s_mov_b32 s{sCnt}, 0")
    a(f"s_mul_i32 s{sWoff}, s{sRot}, {32*9216}")
    a(f"s_lshl_b32 s{sXoff}, s{sRot}, 10")
    a("s_waitcnt lgkmcnt(0)")
    if "pstamp" in OPT: stamp(a, 1)
    srd(a, sWa, 4, 576*4608*2)
    srd(a, sWc, 6, 576*4608*2)
    a(f"s_cmp_eq_u32 s{sWave}, 0")
    a(f"s_cselect_b32 s{sT}, s4, s6")
    a(f"s_cselect_b32 s{sT+1}, s5, s7")
    srd(a, sWb_, sT, 576*4608*2)
    srd(a, sX, 8, H1_SZ, H1_OFF)
    srd(a, sST, 8, ST_SZ, ST_OFF)
    srd(a, sH, 8, HH_SZ, HH_OFF)
    for q in range(3):
        a(f"buffer_load_dwordx4 {vr(WR+q*4,4)}, v{vT+4}, {sr(sST,4)}, 0 offen offset:{q*16}")
    M16 = "m16" in OPT
    TM = int(os.environ.get("TM", "4"))
    sA_, sB_, sE1, sE2 = 60-1, 59-1, 57, 56
    sA_, sB_, sE1, sE2 = 88, 89, 90, 91
    vA, vHo = 244, 245
    EO = 246
    ET = vT + 4
    a(f"s_mov_b32 s{sA_}, {f32(GELU_A)}")
    a(f"s_mov_b32 s{sB_}, {f32(GELU_B)}")
    a(f"v_mov_b32 v{vA}, s{sA_}")
    a(f"v_bfe_u32 v{vHo}, v0, 4, 1")
    a(f"v_mul_u32_u24 v{vHo}, 147456, v{vHo}")
    a(f"v_lshrrev_b32 v{vT+8}, 5, v0")
    a(f"v_lshl_add_u32 v{vHo}, v{vT+8}, 8, v{vHo}")
    a(f"v_and_b32 v{vT+8}, 15, v0")
    a(f"v_lshl_add_u32 v{vHo}, v{vT+8}, 4, v{vHo}")
    a(f"s_and_b32 s{sE2}, s{sFb}, 1")
    a(f"s_lshl_b32 s{sE1}, s{sE2}, 12")
    a(f"s_add_u32 s{sE1}, s{sE1}, s{sHb}")
    a(f"s_lshl_b32 s{sE2}, s{sE2}, 9")
    a(f"s_add_u32 s{sE2}, s{sE2}, s{sHb}")
    a(f"s_add_u32 s{sE2}, s{sE2}, {8*1024}")
    def epi_ops(nt):
        o = EO + (nt % 2) * 4
        out = []
        for hh in range(2):
            lines = [[], []]
            for c in range(2):
                p = hh*2 + c
                x0, x1 = acc(nt) + 2*p, acc(nt) + 2*p + 1
                y0, y1 = x0 + 8, x1 + 8
                t0, t1 = ET + c*2, ET + c*2 + 1
                lines[c] = [f"v_mul_f32 v{t0}, v{x0}, v{x0}", f"v_mul_f32 v{t1}, v{x1}, v{x1}",
                      f"v_fma_f32 v{t0}, v{t0}, s{sB_}, v{vA}", f"v_fma_f32 v{t1}, v{t1}, s{sB_}, v{vA}",
                      f"v_mul_f32 v{t0}, v{t0}, v{x0}", f"v_mul_f32 v{t1}, v{t1}, v{x1}",
                      f"v_exp_f32 v{t0}, v{t0}", f"v_exp_f32 v{t1}, v{t1}",
                      f"v_mul_f32 v{y0}, v{y0}, v{x0}", f"v_mul_f32 v{y1}, v{y1}, v{x1}",
                      f"v_add_f32 v{t0}, 1.0, v{t0}", f"v_add_f32 v{t1}, 1.0, v{t1}",
                      f"v_rcp_f32 v{t0}, v{t0}", f"v_rcp_f32 v{t1}, v{t1}",
                      f"v_mul_f32 v{t0}, v{t0}, v{y0}", f"v_mul_f32 v{t1}, v{t1}, v{y1}",
                      f"v_cvt_pk_bf16_f32 v{o+p}, v{t0}, v{t1}"]
            i0 = i1 = 0
            while i0 < len(lines[0]) or i1 < len(lines[1]):
                for _ in range(2):
                    if i0 < len(lines[0]): out.append(lines[0][i0]); i0 += 1
                for _ in range(2):
                    if i1 < len(lines[1]): out.append(lines[1][i1]); i1 += 1
        if nt < 8:
            out.append(f"buffer_store_dwordx4 {vr(o,4)}, v{vHo}, {sr(sH,4)}, s{sE1} offen offset:{(nt//2)*1024 + (nt%2)*512}")
        else:
            out.append(f"buffer_store_dwordx4 {vr(o,4)}, v{vHo}, {sr(sH,4)}, s{sE2} offen")
        return out
    def body(nd, tag):
        vm = VM(a)
        vm.ops = [("S", 0)] * 3
        srds = (sWa, sWb_, sWc)
        def load_groups(i):
            if i >= 18: return []
            st = i % NST
            gs = []
            for k in range(2):
                gs.append([("s", f"s_add_u32 m0, s{sM0+k}, {st*STG}"), ("s", "s_nop 0"),
                           (("W", i), f"buffer_load_dwordx4 v{vD+k}, {sr(srds[k],4)}, s{sWoff} offen lds")])
            gs[0] = [("s", f"s_cmp_ge_u32 s{sWave}, 2"), ("s", f"s_cbranch_scc1 L_{name}_sk{i}"),
                     ("s", f"s_add_u32 m0, s{sM0+2}, {st*STG}"), ("s", "s_nop 0"),
                     ("s", f"buffer_load_dwordx4 v{vD+2}, {sr(srds[2],4)}, s{sWoff} offen lds"),
                     ("l", f"L_{name}_sk{i}")] + gs[0]
            gs.append([(("X", i), f"buffer_load_dwordx4 {vr(XS+st*8,4)}, v{vX0}, {sr(sX,4)}, s{sXoff} offen")])
            gs.append([(("X", i), f"buffer_load_dwordx4 {vr(XS+st*8+4,4)}, v{vX0}, {sr(sX,4)}, s{sXoff} offen offset:512"),
                       ("s", f"s_add_u32 s{sRot}, s{sRot}, 1"),
                       ("s", f"s_cmp_eq_u32 s{sRot}, {4 if 'hot4' in OPT else 18}"),
                       ("s", f"s_cselect_b32 s{sRot}, 0, s{sRot}"),
                       ("s", f"s_mul_i32 s{sWoff}, s{sRot}, {32*9216}"),
                       ("s", f"s_lshl_b32 s{sXoff}, s{sRot}, 10")])
            return gs
        def emit_group(g):
            for tg, txt in g:
                if tg == "s": a(txt)
                elif tg == "l": a.lab(txt)
                else: vm.op(tg, txt)
        for i in range(2):
            for g in load_groups(i): emit_group(g)
        vm.wait(lambda t: t[0] == "S")
        b = WR
        a(f"v_add_f32 v{vT}, v{b}, v{b+2}")
        a(f"v_add_f32 v{vT+1}, v{b+4}, v{b+6}")
        a(f"v_add_f32 v{vT+2}, v{b+8}, v{b+10}")
        a(f"v_add_f32 v{vT}, v{vT}, v{vT+1}")
        a(f"v_add_f32 v{vT}, v{vT}, v{vT+2}")
        a(f"v_mul_f32 v{vT}, {f32(1.0/6.0)}, v{vT}")
        a(f"v_add_f32 v{vT+1}, v{b+1}, v{b+3}")
        a(f"v_add_f32 v{vT+2}, v{b+5}, v{b+7}")
        a(f"v_add_f32 v{vT+3}, v{b+9}, v{b+11}")
        a(f"v_add_f32 v{vT+1}, v{vT+1}, v{vT+2}")
        a(f"v_add_f32 v{vT+1}, v{vT+1}, v{vT+3}")
        a(f"v_mov_b32 v{vT+2}, 0")
        for t in range(6):
            a(f"v_sub_f32 v{vT+3}, v{b+2*t}, v{vT}")
            a(f"v_fmac_f32 v{vT+2}, v{vT+3}, v{vT+3}")
        a(f"v_fmac_f32 v{vT+1}, {f32(96.0)}, v{vT+2}")
        a(f"v_mul_f32 v{vT+1}, {f32(1.0/576.0)}, v{vT+1}")
        round_bf16(a, vNM, vT)
        round_bf16(a, vT+1, vT+1)
        a(f"v_add_f32 v{vT+1}, {f32(1e-5)}, v{vT+1}")
        round_bf16(a, vT+1, vT+1)
        a(f"v_sqrt_f32 v{vT+1}, v{vT+1}")
        a("s_nop 0")
        round_bf16(a, vT+1, vT+1)
        a(f"v_rcp_f32 v{vR}, v{vT+1}")
        if "exactnorm" not in OPT:
            a("s_nop 0")
            a(f"v_mul_f32 v{vNM}, v{vNM}, v{vR}")
            a(f"v_sub_f32 v{vNM}, 0, v{vNM}")
        def norm_ops(i):
            ops = []
            if i >= 18: return ops
            for h4 in range(2):
                chains = []
                for d in range(4):
                    x = XS + (i % NST)*8 + h4*4 + d
                    t0 = vT + 8 + d * 2; t1 = t0 + 1
                    chains.append([f"v_lshlrev_b32 v{t0}, 16, v{x}", f"v_and_b32 v{t1}, 0xffff0000, v{x}",
                                   f"v_fma_f32 v{t0}, v{t0}, v{vR}, v{vNM}", f"v_fma_f32 v{t1}, v{t1}, v{vR}, v{vNM}",
                                   f"v_cvt_pk_bf16_f32 v{x}, v{t0}, v{t1}"])
                for stage in ((0, 1), (2, 3), (4,)):
                    for c in chains:
                        for j in stage: ops.append(c[j])
            return ops
        NS = 18 - TM
        seq = [(i, f // 9, f % 9) for i in range(NS) for f in range(18)]
        seq += [(i, half, nt) for nt in range(9) for i in range(NS, 18) for half in range(2)]
        def wread(g):
            if g >= len(seq): return
            i, half, nt = seq[g]
            st = i % NST
            slot = g % RING
            base = vWa if st < 3 else vWb
            off = (st % 3) * STG + half * 8 * 288 + nt * 32
            a(f"ds_read_b64_tr_b16 {vr(WR+slot*4,2)}, v{base} offset:{off}")
            a(f"ds_read_b64_tr_b16 {vr(WR+slot*4+2,2)}, v{base} offset:{off+4608}")
        vm.wait(lambda t: t[1] <= 0)
        for op in norm_ops(0): a(op)
        a("s_barrier")
        for f in range(PF): wread(f)
        stamp(a, 1)
        sched = {0: [2, 3], 1: [4, 5], 2: [6, 7]}
        nsched = {i: [i + 1] for i in range(NS)}
        if TM:
            extra = list(range(NS + 1, 18))
            nsched[NS-1] = [NS] + extra[-2:]
            nsched[NS-2] = [NS-1] + extra[:-2]
        for i in range(NS):
            lg = []
            for j in sched.get(i, [i + 5]): lg += load_groups(j)
            nlist = nsched[i]
            ni = 0; gi = 0
            gpos = [1 + (k_ * 16) // max(1, len(lg)) for k_ in range(len(lg))]
            nstart = 6 if i < 3 else 1
            nops = []
            for j in nlist: nops += [("w", j)] + norm_ops(j)
            per = (len(nops) + (16 - nstart)) // (17 - nstart) if nops else 0
            for f in range(18):
                g = i*18 + f
                half, nt = divmod(f, 9)
                slot = g % RING
                if i == 0 and f == 18 - PF:
                    vm.wait(lambda t: t[0] == "W" and t[1] <= 1)
                    a("s_barrier")
                if TM and i == NS - 1 and f == 18 - PF:
                    vm.wait(lambda t: t[0] == "W")
                    a("s_barrier")
                wread(g + PF)
                rem = min(PF, len(seq) - 1 - g)
                a(f"s_waitcnt lgkmcnt({2*rem})")
                if i == 0:
                    a(f"v_mfma_f32_32x32x16_bf16 {vr(acc(nt),16)}, {vr(WR+slot*4,4)}, {vr(XS+(i%NST)*8+half*4,4)}, " + ("0" if half == 0 else vr(acc(nt),16)))
                else:
                    a(f"v_mfma_f32_32x32x16_bf16 {vr(acc(nt),16)}, {vr(WR+slot*4,4)}, {vr(XS+(i%NST)*8+half*4,4)}, {vr(acc(nt),16)}")
                while gi < len(lg) and gpos[gi] <= f:
                    emit_group(lg[gi]); gi += 1
                if f >= nstart:
                    for _ in range(per):
                        if ni < len(nops):
                            op = nops[ni]; ni += 1
                            if isinstance(op, tuple):
                                vm.wait(lambda t: t[0] == "X" and t[1] <= op[1])
                            else: a(op)
            assert ni == len(nops) and gi == len(lg), (i, ni, len(nops), gi, len(lg))
            if i < 17 and not (TM and i == NS - 1):
                vm.wait(lambda t: t[0] == "W" and t[1] <= i + 2)
                a("s_barrier")
        stamp(a, 2)
        g = NS * 18
        pend = []
        for nt in range(9):
            nm = 2 * TM
            per = (len(pend) + nm - 3) // max(1, nm - 2) if pend else 0
            pi = 0
            for q in range(nm):
                i, half, nt_ = seq[g]
                assert nt_ == nt
                slot = g % RING
                wread(g + PF)
                rem = min(PF, len(seq) - 1 - g)
                a(f"s_waitcnt lgkmcnt({2*rem})")
                a(f"v_mfma_f32_32x32x16_bf16 {vr(acc(nt),16)}, {vr(WR+slot*4,4)}, {vr(XS+(i%NST)*8+half*4,4)}, {vr(acc(nt),16)}")
                g += 1
                if q >= 2:
                    for _ in range(per):
                        if pi < len(pend): a(pend[pi]); pi += 1
            assert pi == len(pend)
            pend = epi_ops(nt)
        if not TM:
            a("s_nop 7"); a("s_nop 7")
            for nt in range(8):
                for op in epi_ops(nt): a(op)
        a("s_nop 7"); a("s_nop 7")
        for op in pend: a(op)
    body(2, "B")
    a.lab(f"L_{name}_epi")
    if "pstamp" not in OPT: stamp(a, 3)
    if "stamp" in OPT: a("s_waitcnt vmcnt(0)")
    if "pstamp" not in OPT: stamp(a, 4)
    stamp(a, 6, True)
    stamp_dump(a, 7, 8, sWave, vT+4)
    a.lab(f"L_{name}_done")
    a("s_endpgm")
    return a.text(), kernel_desc(name, NV), f"; @launch kernel={name} grid=(256,1,1) block=(512,1,1) lds={NST*STG}"

def gen_k3m(name="k3_kernel"):
    a = A()
    kernel_head(a, name)
    NST = 6; STG = 18560; UP = 9344; RING = 6; PF = RING - 1
    ACC = 4; XS = 148; WR = 196
    vWa, vWb = 220, 221
    vD = 222
    vX0 = 225
    vNM, vR = 226, 227
    vT = 228
    vX1, vNM1, vR1 = 244, 245, 246
    NV = 248
    def acc(nt, mat, mt): return ACC + ((nt*2+mat)*2+mt)*4
    sWa, sWb_, sWc, sX, sST, sH = 12, 16, 20, 24, 28, 32
    sWave, sFb, sMb = 36, 37, 38
    sWoff, sXoff, sIt = 39, 40, 41
    sM0 = 42
    sT = 46
    sRot, sCnt, sHb = 56, 57, 58
    a("s_cmp_ge_u32 s2, 256")
    a(f"s_cbranch_scc1 L_{name}_done")
    stamp(a, 0); stamp(a, 5, True)
    a("s_load_dwordx4 s[4:7], s[0:1], 32")
    a("s_load_dwordx2 s[8:9], s[0:1], 72")
    a("v_lshrrev_b32 v1, 6, v0")
    a("v_and_b32 v0, 63, v0")
    a("s_nop 0")
    a(f"v_readfirstlane_b32 s{sWave}, v1")
    a(f"s_and_b32 s{sT}, s2, 7")
    a(f"s_lshr_b32 s{sT+1}, s2, 3")
    a(f"s_and_b32 s{sFb}, s{sT+1}, 3")
    a(f"s_lshl_b32 s{sT}, s{sT}, 2")
    a(f"s_add_u32 s{sFb}, s{sFb}, s{sT}")
    a(f"s_lshr_b32 s{sMb}, s{sT+1}, 2")
    dma_slots_setup(a, sWave, sT, vT, vD, 9216, sM0, 128)
    a(f"s_mul_i32 s{sT}, s{sFb}, 288")
    for k in range(3):
        a(f"v_add_u32 v{vD+k}, s{sT}, v{vD+k}")
    a(f"s_lshl_b32 s{sT}, s{sMb}, 4")
    a(f"s_lshl_b32 s{sT+1}, s{sWave}, 1")
    a(f"s_add_u32 s{sT}, s{sT}, s{sT+1}")
    a(f"s_mul_i32 s{sT+1}, s{sT}, 18432")
    a(f"v_lshlrev_b32 v{vT}, 4, v0")
    a(f"v_add_u32 v{vX0}, s{sT+1}, v{vT}")
    a(f"v_add_u32 v{vX1}, 18432, v{vX0}")
    a(f"s_mul_i32 s{sHb}, s{sT}, 144")
    a(f"s_lshr_b32 s{sT+1}, s{sFb}, 1")
    a(f"s_mul_i32 s{sT+1}, s{sT+1}, 9")
    a(f"s_add_u32 s{sHb}, s{sHb}, s{sT+1}")
    a(f"s_lshl_b32 s{sHb}, s{sHb}, 10")
    a(f"s_lshl_b32 s{sT}, s{sT}, 4")
    a(f"v_and_b32 v{vT+4}, 15, v0")
    a(f"v_add_u32 v{vT+4}, s{sT}, v{vT+4}")
    a(f"v_mul_u32_u24 v{vT+4}, 48, v{vT+4}")
    a(f"v_lshrrev_b32 v{vT+1}, 2, v0")
    a(f"v_mul_u32_u24 v{vT+1}, 288, v{vT+1}")
    a(f"v_and_b32 v{vT+2}, 3, v0")
    a(f"v_lshl_add_u32 v{vWa}, v{vT+2}, 3, v{vT+1}")
    a(f"v_add_u32 v{vWb}, {3*STG}, v{vWa}")
    if "rot" in OPT:
        a(f"s_mul_i32 s{sRot}, s{sMb}, 9")
        a(f"s_and_b32 s{sT}, s{sFb}, 3")
        a(f"s_mul_i32 s{sT}, s{sT}, 18")
        a(f"s_add_u32 s{sRot}, s{sRot}, s{sT}")
        a(f"s_lshr_b32 s{sRot}, s{sRot}, 2")
        a(f"s_sub_u32 s{sT}, s{sRot}, 18")
        a(f"s_cmp_ge_u32 s{sRot}, 18")
        a(f"s_cselect_b32 s{sRot}, s{sT}, s{sRot}")
    else:
        a(f"s_mov_b32 s{sRot}, 0")
    a(f"s_mov_b32 s{sCnt}, 0")
    a(f"s_mul_i32 s{sWoff}, s{sRot}, {32*9216}")
    a(f"s_lshl_b32 s{sXoff}, s{sRot}, 10")
    a("s_waitcnt lgkmcnt(0)")
    if "pstamp" in OPT: stamp(a, 1)
    srd(a, sWa, 4, 576*4608*2)
    srd(a, sWc, 6, 576*4608*2)
    a(f"s_cmp_eq_u32 s{sWave}, 0")
    a(f"s_cselect_b32 s{sT}, s4, s6")
    a(f"s_cselect_b32 s{sT+1}, s5, s7")
    srd(a, sWb_, sT, 576*4608*2)
    srd(a, sX, 8, H1_SZ, H1_OFF)
    srd(a, sST, 8, ST_SZ, ST_OFF)
    srd(a, sH, 8, HH_SZ, HH_OFF)
    for mt in range(2):
        for q in range(3):
            a(f"buffer_load_dwordx4 {vr(WR+mt*12+q*4,4)}, v{vT+4}, {sr(sST,4)}, 0 offen offset:{mt*768+q*16}")
    a(f"s_cmp_ge_u32 s{sWave}, 2")
    a(f"s_cbranch_scc1 L_{name}_typeB")

    M16 = "m16" in OPT
    def body(nd, tag):
        vm = VM(a)
        vm.ops = [("S", 0)] * 6
        srds = (sWa, sWb_, sWc)
        def load_groups(i):
            if i >= 18: return []
            st = i % NST
            gs = []
            for k in range(nd):
                gs.append([("s", f"s_add_u32 m0, s{sM0+k}, {st*STG}"), ("s", "s_nop 0"),
                           (("W", i), f"buffer_load_dwordx4 v{vD+k}, {sr(srds[k],4)}, s{sWoff} offen lds")])
            gs.append([(("X", i), f"buffer_load_dwordx4 {vr(XS+st*8,4)}, v{vX0}, {sr(sX,4)}, s{sXoff} offen")])
            gs.append([(("X", i), f"buffer_load_dwordx4 {vr(XS+st*8+4,4)}, v{vX1}, {sr(sX,4)}, s{sXoff} offen"),
                       ("s", f"s_add_u32 s{sRot}, s{sRot}, 1"),
                       ("s", f"s_cmp_eq_u32 s{sRot}, {4 if 'hot4' in OPT else 18}"),
                       ("s", f"s_cselect_b32 s{sRot}, 0, s{sRot}"),
                       ("s", f"s_mul_i32 s{sWoff}, s{sRot}, {32*9216}"),
                       ("s", f"s_lshl_b32 s{sXoff}, s{sRot}, 10")])
            return gs
        def emit_group(g):
            for tg, txt in g:
                if tg == "s": a(txt)
                else: vm.op(tg, txt)
        for i in range(2):
            for g in load_groups(i): emit_group(g)
        vm.wait(lambda t: t[0] == "S")
        for b, vNM_, vR_ in ((WR, vNM, vR), (WR+12, vNM1, vR1)):
            a(f"v_add_f32 v{vT}, v{b}, v{b+2}")
            a(f"v_add_f32 v{vT+1}, v{b+4}, v{b+6}")
            a(f"v_add_f32 v{vT+2}, v{b+8}, v{b+10}")
            a(f"v_add_f32 v{vT}, v{vT}, v{vT+1}")
            a(f"v_add_f32 v{vT}, v{vT}, v{vT+2}")
            a(f"v_mul_f32 v{vT}, {f32(1.0/6.0)}, v{vT}")
            a(f"v_add_f32 v{vT+1}, v{b+1}, v{b+3}")
            a(f"v_add_f32 v{vT+2}, v{b+5}, v{b+7}")
            a(f"v_add_f32 v{vT+3}, v{b+9}, v{b+11}")
            a(f"v_add_f32 v{vT+1}, v{vT+1}, v{vT+2}")
            a(f"v_add_f32 v{vT+1}, v{vT+1}, v{vT+3}")
            a(f"v_mov_b32 v{vT+2}, 0")
            for t in range(6):
                a(f"v_sub_f32 v{vT+3}, v{b+2*t}, v{vT}")
                a(f"v_fmac_f32 v{vT+2}, v{vT+3}, v{vT+3}")
            a(f"v_fmac_f32 v{vT+1}, {f32(96.0)}, v{vT+2}")
            a(f"v_mul_f32 v{vT+1}, {f32(1.0/576.0)}, v{vT+1}")
            round_bf16(a, vNM_, vT)
            round_bf16(a, vT+1, vT+1)
            a(f"v_add_f32 v{vT+1}, {f32(1e-5)}, v{vT+1}")
            round_bf16(a, vT+1, vT+1)
            a(f"v_sqrt_f32 v{vT+1}, v{vT+1}")
            a("s_nop 0")
            round_bf16(a, vT+1, vT+1)
            a(f"v_rcp_f32 v{vR_}, v{vT+1}")
            if "exactnorm" not in OPT:
                a("s_nop 0")
                a(f"v_mul_f32 v{vNM_}, v{vNM_}, v{vR_}")
                a(f"v_sub_f32 v{vNM_}, 0, v{vNM_}")
        def norm_ops(i):
            ops = []
            if i >= 18: return ops
            for d in range(8):
                x = XS + (i % NST)*8 + d
                t0 = vT + (d % 2) * 2; t1 = t0 + 1
                vNM, vR = (226, 227) if d < 4 else (vNM1, vR1)
                ops.append(f"v_lshlrev_b32 v{t0}, 16, v{x}")
                ops.append(f"v_and_b32 v{t1}, 0xffff0000, v{x}")
                if "exactnorm" in OPT:
                    ops.append(f"v_sub_f32 v{t0}, v{t0}, v{vNM}")
                    ops.append(f"v_sub_f32 v{t1}, v{t1}, v{vNM}")
                    ops.append(f"v_cvt_pk_bf16_f32 v{t0}, v{t0}, v{t1}")
                    ops.append(f"v_and_b32 v{t1}, 0xffff0000, v{t0}")
                    ops.append(f"v_lshlrev_b32 v{t0}, 16, v{t0}")
                    ops.append(f"v_mul_f32 v{t0}, v{t0}, v{vR}")
                    ops.append(f"v_mul_f32 v{t1}, v{t1}, v{vR}")
                else:
                    ops.append(f"v_fma_f32 v{t0}, v{t0}, v{vR}, v{vNM}")
                    ops.append(f"v_fma_f32 v{t1}, v{t1}, v{vR}, v{vNM}")
                ops.append(f"v_cvt_pk_bf16_f32 v{x}, v{t0}, v{t1}")
            return ops
        def wread(g):
            i, f = divmod(g, 18)
            if i >= 18: return
            st = i % NST
            nt, mat = divmod(f, 2)
            slot = g % RING
            base = vWa if st < 3 else vWb
            off = (st % 3) * STG + mat * UP + nt * 32
            a(f"ds_read_b64_tr_b16 {vr(WR+slot*4,2)}, v{base} offset:{off}")
            a(f"ds_read_b64_tr_b16 {vr(WR+slot*4+2,2)}, v{base} offset:{off+4608}")
        vm.wait(lambda t: t[1] <= 0)
        for op in norm_ops(0): a(op)
        a("s_barrier")
        for f in range(PF): wread(f)
        stamp(a, 1)
        sched = {0: [2, 3], 1: [4, 5], 2: [6, 7]}
        for i in range(18):
            lg = []
            for j in sched.get(i, [i + 5]): lg += load_groups(j)
            nops = norm_ops(i + 1)
            ni = 0; gi = 0
            gpos = [1 + (k * 16) // max(1, len(lg)) for k in range(len(lg))]
            nstart = 6 if i < 3 else 1
            per = (len(nops) + (16 - nstart)) // (17 - nstart) if nops else 0
            for f in range(18):
                g = i*18 + f
                half, nt = divmod(f, 9)
                slot = g % RING
                if i == 0 and f == 18 - PF:
                    vm.wait(lambda t: t[0] == "W" and t[1] <= 1)
                    a("s_barrier")
                wread(g + PF)
                rem = min(PF, 18*18 - 1 - g)
                a(f"s_waitcnt lgkmcnt({2*rem})")
                nt, mat = divmod(f, 2)
                for mt in range(2):
                    a(f"v_mfma_f32_16x16x32_bf16 {vr(acc(nt,mat,mt),4)}, {vr(WR+slot*4,4)}, {vr(XS+(i%NST)*8+mt*4,4)}, " + ("0" if i == 0 else vr(acc(nt,mat,mt),4)))
                if f == nstart and nops:
                    vm.wait(lambda t: t[0] == "X" and t[1] <= i + 1)
                while gi < len(lg) and gpos[gi] <= f:
                    emit_group(lg[gi]); gi += 1
                if f >= nstart:
                    for _ in range(per):
                        if ni < len(nops):
                            a(nops[ni]); ni += 1
            assert ni == len(nops) and gi == len(lg), (i, ni, len(nops), gi, len(lg))
            if i < 17:
                vm.wait(lambda t: t[0] == "W" and t[1] <= i + 2)
                a("s_barrier")
    body(3, "A")
    a(f"s_branch L_{name}_epi")
    a.lab(f"L_{name}_typeB")
    body(2, "B")
    a.lab(f"L_{name}_epi")
    if "pstamp" not in OPT: stamp(a, 2)
    a("s_waitcnt vmcnt(0) lgkmcnt(0)")
    sA_, sB_ = sT+6, sT+7
    a(f"s_mov_b32 s{sA_}, {f32(GELU_A)}")
    a(f"s_mov_b32 s{sB_}, {f32(GELU_B)}")
    a(f"v_lshlrev_b32 v{vX0}, 4, v0")
    a(f"s_and_b32 s{sT}, s{sFb}, 1")
    a(f"s_lshl_b32 s{sT+1}, s{sT}, 12")
    a(f"s_add_u32 s{sT+1}, s{sT+1}, s{sHb}")
    a(f"s_lshl_b32 s{sT+2}, s{sT}, 3")
    a(f"s_add_u32 s{sT+2}, s{sT+2}, s{sHb}")
    a(f"s_add_u32 s{sT+2}, s{sT+2}, {8*1024}")
    a(f"s_add_u32 s{sT+3}, s{sT+1}, {144*1024}")
    a(f"s_add_u32 s{sT+4}, s{sT+2}, {144*1024}")
    a(f"v_mov_b32 v{vT}, s{sA_}")
    a("s_nop 7")
    def gelu_tile(nt, mt, dst):
        T = WR
        lines = [[], []]
        for c in range(2):
            g0, g1 = acc(nt,0,mt) + 2*c, acc(nt,0,mt) + 2*c + 1
            u0, u1 = acc(nt,1,mt) + 2*c, acc(nt,1,mt) + 2*c + 1
            t0, t1 = T + c*8 + 4, T + c*8 + 5
            x0, x1, y0, y1 = g0, g1, u0, u1
            L = lines[c]
            L += [f"v_mul_f32 v{t0}, v{x0}, v{x0}", f"v_mul_f32 v{t1}, v{x1}, v{x1}",
                  f"v_fma_f32 v{t0}, v{t0}, s{sB_}, v{vT}", f"v_fma_f32 v{t1}, v{t1}, s{sB_}, v{vT}",
                  f"v_mul_f32 v{t0}, v{t0}, v{x0}", f"v_mul_f32 v{t1}, v{t1}, v{x1}",
                  f"v_exp_f32 v{t0}, v{t0}", f"v_exp_f32 v{t1}, v{t1}",
                  f"v_mul_f32 v{y0}, v{y0}, v{x0}", f"v_mul_f32 v{y1}, v{y1}, v{x1}",
                  f"v_add_f32 v{t0}, 1.0, v{t0}", f"v_add_f32 v{t1}, 1.0, v{t1}",
                  f"v_rcp_f32 v{t0}, v{t0}", f"v_rcp_f32 v{t1}, v{t1}",
                  f"v_mul_f32 v{t0}, v{t0}, v{y0}", f"v_mul_f32 v{t1}, v{t1}, v{y1}",
                  f"v_cvt_pk_bf16_f32 v{dst+c}, v{t0}, v{t1}"]
        i0 = i1 = 0
        while i0 < len(lines[0]) or i1 < len(lines[1]):
            for _ in range(2):
                if i0 < len(lines[0]): a(lines[0][i0]); i0 += 1
            for _ in range(2):
                if i1 < len(lines[1]): a(lines[1][i1]); i1 += 1
    k = 0
    for mt in range(2):
        for p in range(4):
            o = XS + (k % 12) * 4; k += 1
            gelu_tile(2*p, mt, o)
            gelu_tile(2*p+1, mt, o+2)
            a(f"buffer_store_dwordx4 {vr(o,4)}, v{vX0}, {sr(sH,4)}, s{sT+1+2*mt} offen offset:{p*1024}")
        o = XS + (k % 12) * 4; k += 1
        gelu_tile(8, mt, o)
        a(f"buffer_store_dwordx2 {vr(o,2)}, v{vX0}, {sr(sH,4)}, s{sT+2+2*mt} offen")
    if "pstamp" not in OPT: stamp(a, 3)
    if "stamp" in OPT: a("s_waitcnt vmcnt(0)")
    if "pstamp" not in OPT: stamp(a, 4)
    stamp(a, 6, True)
    stamp_dump(a, 7, 8, sWave, vT+4)
    a.lab(f"L_{name}_done")
    a("s_endpgm")
    return a.text(), kernel_desc(name, NV), f"; @launch kernel={name} grid=(256,1,1) block=(512,1,1) lds={NST*STG}"

def gen_k4v2(name="k4_kernel"):
    a = A(); a.stpol = os.environ.get("K4ST", "sc1")
    kernel_head(a, name)
    NST = 6; STG = 18432; RING = 6; PFD = 5; PF = RING - 1
    ROWB = 4608 if "m16" in OPT else 2304
    ACC = 4; XS = 76; WR = 124
    vWa, vWb = 148, 149
    vD = 150; vDm = 153
    vX0, vX1 = 156, 157
    vT = 160
    NV = 176
    def acc(nt, mt): return ACC + (nt*2+mt)*4
    sW, sX, sP = 12, 16, 20
    sWave, sKs, sMb, sNb = 28, 29, 30, 31
    sWb1, sXb, sPb = 32, 33, 34
    sM0 = 36
    sT = 40
    sWo = 52
    a("s_cmp_ge_u32 s2, 256")
    a(f"s_cbranch_scc1 L_{name}_done")
    stamp(a, 0); stamp(a, 5, True)
    a("s_load_dwordx2 s[4:5], s[0:1], 48")
    a("s_load_dwordx2 s[8:9], s[0:1], 72")
    a("v_lshrrev_b32 v1, 6, v0")
    a("v_and_b32 v0, 63, v0")
    a("s_nop 0")
    a(f"v_readfirstlane_b32 s{sWave}, v1")
    a(f"s_and_b32 s{sT}, s2, 7")
    a(f"s_lshr_b32 s{sT+1}, s2, 3")
    a(f"s_lshr_b32 s{sKs}, s{sT}, 1")
    a(f"s_and_b32 s{sNb}, s{sT+1}, 3")
    a(f"s_and_b32 s{sT}, s{sT}, 1")
    a(f"s_lshl_b32 s{sT}, s{sT}, 3")
    a(f"s_lshr_b32 s{sMb}, s{sT+1}, 2")
    a(f"s_add_u32 s{sMb}, s{sMb}, s{sT}")
    dma_slots_setup(a, sWave, sT, vT, vD, 1152, sM0, 0)
    a(f"s_cmp_eq_u32 s{sWave}, 0")
    a(f"s_cselect_b32 s{sT}, 0, {576*1152}")
    a(f"v_add_u32 v{vD+1}, s{sT}, v{vD+1}")
    a(f"v_add_u32 v{vD+2}, {576*1152}, v{vD+2}")
    a(f"s_mov_b32 s{sT}, {128*1152}")
    for k in range(3):
        a(f"v_cmp_lt_u32 vcc, 15, v{vT+8+k}")
        a(f"v_mov_b32 v{vT+1}, s{sT}")
        a("s_nop 0")
        a(f"v_cndmask_b32 v{vT+1}, 0, v{vT+1}, vcc")
        a(f"v_add_u32 v{vDm+k}, v{vD+k}, v{vT+1}")
    a(f"s_mul_i32 s{sWb1}, s{sKs}, {2*576*1152}")
    a(f"s_mul_i32 s{sT}, s{sNb}, 288")
    a(f"s_add_u32 s{sWb1}, s{sWb1}, s{sT}")
    a(f"s_lshr_b32 s{sT}, s{sWave}, 2")
    a(f"s_lshl_b32 s{sT+1}, s{sKs}, 1")
    a(f"s_add_u32 s{sT+1}, s{sT+1}, s{sT}")
    a(f"s_and_b32 s{sT+2}, s{sWave}, 3")
    a(f"s_lshl_b32 s{sXb}, s{sMb}, 3")
    a(f"s_lshl_b32 s{sT+3}, s{sT+2}, 1")
    a(f"s_add_u32 s{sXb}, s{sXb}, s{sT+3}")
    a(f"s_mov_b32 s{sT+4}, s{sXb}")
    a(f"s_mul_i32 s{sXb}, s{sXb}, 144")
    a(f"s_mul_i32 s{sT+3}, s{sT+1}, 18")
    a(f"s_add_u32 s{sXb}, s{sXb}, s{sT+3}")
    a(f"s_lshl_b32 s{sXb}, s{sXb}, 10")
    a(f"v_lshlrev_b32 v{vX0}, 4, v0")
    a(f"v_add_u32 v{vX0}, s{sXb}, v{vX0}")
    a(f"v_add_u32 v{vX1}, {144*1024}, v{vX0}")
    a(f"s_lshl_b32 s{sPb}, s{sKs}, 7")
    a(f"s_add_u32 s{sPb}, s{sPb}, s{sT+4}")
    a(f"s_add_u32 s{sPb}, s{sPb}, s{sT}")
    a(f"s_mul_i32 s{sPb}, s{sPb}, 36")
    a(f"s_mul_i32 s{sT+6}, s{sNb}, 9")
    a(f"s_add_u32 s{sPb}, s{sPb}, s{sT+6}")
    a(f"s_lshl_b32 s{sPb}, s{sPb}, 10")
    if "m16" in OPT:
        a(f"v_lshrrev_b32 v{vT+5}, 2, v0")
    else:
        a(f"v_lshrrev_b32 v{vT+5}, 5, v0")
        a(f"v_lshlrev_b32 v{vT+5}, 4, v{vT+5}")
        a(f"v_bfe_u32 v{vT+6}, v0, 2, 3")
        a(f"v_add_u32 v{vT+5}, v{vT+5}, v{vT+6}")
    a(f"v_mul_u32_u24 v{vT+5}, 288, v{vT+5}")
    a(f"v_and_b32 v{vT+6}, 3, v0")
    a(f"v_lshl_add_u32 v{vWa}, v{vT+6}, 3, v{vT+5}")
    a(f"s_mul_i32 s{sT+6}, s{sT}, 9216")
    a(f"v_add_u32 v{vWa}, s{sT+6}, v{vWa}")
    a(f"v_add_u32 v{vWb}, {3*STG}, v{vWa}")
    a("s_waitcnt lgkmcnt(0)")
    srd(a, sW, 4, 4608*576*2)
    srd(a, sX, 8, HH_SZ, HH_OFF)
    srd(a, sP, 8, P_SZ, P_OFF)
    def fa_rel(i):
        q, ii = divmod(i, 9)
        if ii < 4: return 288*q + 32*ii
        if ii < 8: return 288*q + 144 + 32*(ii-4)
        return 288*q + 128
    def body(nd, tag):
        vm = VM(a)
        def load_groups(i):
            if i >= 18: return []
            st = i % NST
            gs = []
            vv = vDm if i % 9 == 8 else vD
            for k in range(2):
                g = []
                if k == 0:
                    g.append(("s", f"s_add_u32 s{sWo}, s{sWb1}, {fa_rel(i)*1152}"))
                    g += [("s", f"s_cmp_ge_u32 s{sWave}, 2"), ("s", f"s_cbranch_scc1 L_{name}_sk{i}"),
                          ("s", f"s_add_u32 m0, s{sM0+2}, {st*STG}"), ("s", "s_nop 0"),
                          ("s", f"buffer_load_dwordx4 v{vv+2}, {sr(sW,4)}, s{sWo} offen lds"),
                          ("l", f"L_{name}_sk{i}")]
                g.append(("s", f"s_add_u32 m0, s{sM0+k}, {st*STG}"))
                g.append(("s", "s_nop 0"))
                g.append((("W", i), f"buffer_load_dwordx4 v{vv+k}, {sr(sW,4)}, s{sWo} offen lds"))
                gs.append(g)
            xs = XS + (i % NST) * 8
            gs.append([("s", f"s_mov_b32 s{sWo+1}, {i*1024}"),
                       (("X", i), f"buffer_load_dwordx4 {vr(xs,4)}, v{vX0}, {sr(sX,4)}, s{sWo+1} offen")])
            gs.append([(("X", i), f"buffer_load_dwordx4 {vr(xs+4,4)}, v{vX1}, {sr(sX,4)}, s{sWo+1} offen")])
            return gs
        def emit_group(g):
            for tg, txt in g:
                if tg == "s": a(txt)
                elif tg == "l": a.lab(txt)
                else: vm.op(tg, txt)
        for i in range(2):
            for g in load_groups(i): emit_group(g)
        for i in range(0, 72, 2):
            a(f"v_mov_b64 {vr(ACC+i,2)}, 0")
        sched = {0: [2, 3], 1: [4, 5], 2: [6, 7]}
        def wread(gidx):
            i, nt = divmod(gidx, 9)
            if i >= 18: return
            st = i % NST; slot = gidx % RING
            base = vWa if st < 3 else vWb
            off = (st % 3) * STG + nt * 32
            a(f"ds_read_b64_tr_b16 {vr(WR+slot*4,2)}, v{base} offset:{off}")
            a(f"ds_read_b64_tr_b16 {vr(WR+slot*4+2,2)}, v{base} offset:{off+ROWB}")
        vm.wait(lambda t: t[1] <= 0)
        a("s_barrier")
        for f in range(PF): wread(f)
        stamp(a, 1)
        for i in range(18):
            lg = []
            for j in sched.get(i, [i + PFD]): lg += load_groups(j)
            vm.wait(lambda t: t[0] == "X" and t[1] <= i)
            gi = 0
            gpos = [(k * 9) // max(1, len(lg)) for k in range(len(lg))]
            for nt in range(9):
                g = i*9 + nt; slot = g % RING
                if i == 0 and nt == 9 - PF:
                    vm.wait(lambda t: t[0] == "W" and t[1] <= 1)
                    a("s_barrier")
                wread(g + PF)
                rem = min(PF, 18*9 - 1 - g)
                a(f"s_waitcnt lgkmcnt({2*rem})")
                xs = XS + (i % NST) * 8
                a(f"v_mfma_f32_16x16x32_bf16 {vr(acc(nt,0),4)}, {vr(WR+slot*4,4)}, {vr(xs,4)}, {vr(acc(nt,0),4)}")
                a(f"v_mfma_f32_16x16x32_bf16 {vr(acc(nt,1),4)}, {vr(WR+slot*4,4)}, {vr(xs+4,4)}, {vr(acc(nt,1),4)}")
                while gi < len(lg) and gpos[gi] <= nt:
                    emit_group(lg[gi]); gi += 1
            assert gi == len(lg)
            vm.wait(lambda t: t[0] == "W" and t[1] <= i + 2)
            a("s_barrier")
    body(2, "B")
    a.lab(f"L_{name}_epi")
    stamp(a, 2)
    a(f"s_lshr_b32 s{sT}, s{sWave}, 2")
    a(f"v_lshlrev_b32 v{vT}, 4, v0")
    a(f"s_mul_i32 s{sT+1}, s{sWave}, 9216")
    a(f"v_add_u32 v{vT+1}, s{sT+1}, v{vT}")
    a(f"s_xor_b32 s{sT+2}, s{sWave}, 4")
    a(f"s_mul_i32 s{sT+2}, s{sT+2}, 9216")
    a(f"v_add_u32 v{vT+2}, s{sT+2}, v{vT}")
    a(f"s_cmp_eq_u32 s{sT}, 0")
    a("s_nop 4")
    a(f"s_cbranch_scc0 L_{name}_kh1")
    for kh in range(2):
        if kh == 1: a.lab(f"L_{name}_kh1")
        for nt in range(9):
            a(f"ds_write_b128 v{vT+1}, {vr(acc(nt,1-kh),4)} offset:{nt*1024}")
        a("s_waitcnt lgkmcnt(0)")
        a("s_barrier")
        for nt in range(9):
            a(f"ds_read_b128 {vr(XS+nt*4,4)}, v{vT+2} offset:{nt*1024}")
        for nt in range(9):
            a(f"s_waitcnt lgkmcnt({8-nt})")
            for r in range(4):
                a(f"v_add_f32 v{XS+nt*4+r}, v{XS+nt*4+r}, v{acc(nt,kh)+r}")
            if nt in (4, 8): a(f"s_add_u32 s{sPb}, s{sPb}, 4096")
            a(f"buffer_store_dwordx4 {vr(XS+nt*4,4)}, v{vT}, {sr(sP,4)}, s{sPb} offen offset:{(nt%4)*1024}")
        stamp(a, 3)
        if "stamp" in OPT: a("s_waitcnt vmcnt(0)")
        stamp(a, 4); stamp(a, 6, True)
        stamp_dump(a, 7, 8, sWave, vT+4, 1)
        a("s_endpgm")
    a.lab(f"L_{name}_done")
    a("s_endpgm")
    return a.text(), kernel_desc(name, NV), f"; @launch kernel={name} grid=(256,1,1) block=(512,1,1) lds={NST*STG}"


def gen_k45(name="k4_kernel"):
    a = A(); a.stpol = os.environ.get("K4ST", "sc1")
    kernel_head(a, name)
    NST = 6; STG = 18432; RING = 6; PFD = 5; PF = RING - 1
    ROWB = 4608 if "m16" in OPT else 2304
    ACC = 4; XS = 76; WR = 124
    vWa, vWb = 148, 149
    vD = 150; vDm = 153
    vX0, vX1 = 156, 157
    vT = 160
    NV = 176
    def acc(nt, mt): return ACC + (nt*2+mt)*4
    sW, sX, sP = 12, 16, 20
    sWave, sKs, sMb, sNb = 28, 29, 30, 31
    sWb1, sXb, sPb = 32, 33, 34
    sM0 = 36
    sT = 40
    sWo = 52
    NC = 144
    a(f"s_cmp_ge_u32 s2, {256+NC}")
    a(f"s_cbranch_scc1 L_{name}_done")
    a("s_cmp_ge_u32 s2, 256")
    a(f"s_cbranch_scc1 L_{name}_cons")
    stamp(a, 0); stamp(a, 5, True)
    a("s_load_dwordx2 s[4:5], s[0:1], 48")
    a("s_load_dwordx2 s[8:9], s[0:1], 72")
    a("s_load_dwordx2 s[10:11], s[0:1], 64")
    a("v_lshrrev_b32 v1, 6, v0")
    a("v_and_b32 v0, 63, v0")
    a("s_nop 0")
    a(f"v_readfirstlane_b32 s{sWave}, v1")
    a(f"s_and_b32 s{sT}, s2, 7")
    a(f"s_lshr_b32 s{sT+1}, s2, 3")
    a(f"s_lshr_b32 s{sKs}, s{sT}, 1")
    a(f"s_and_b32 s{sNb}, s{sT+1}, 3")
    a(f"s_and_b32 s{sT}, s{sT}, 1")
    a(f"s_lshl_b32 s{sT}, s{sT}, 3")
    a(f"s_lshr_b32 s{sMb}, s{sT+1}, 2")
    a(f"s_add_u32 s{sMb}, s{sMb}, s{sT}")
    dma_slots_setup(a, sWave, sT, vT, vD, 1152, sM0, 0)
    a(f"s_cmp_eq_u32 s{sWave}, 0")
    a(f"s_cselect_b32 s{sT}, 0, {576*1152}")
    a(f"v_add_u32 v{vD+1}, s{sT}, v{vD+1}")
    a(f"v_add_u32 v{vD+2}, {576*1152}, v{vD+2}")
    a(f"s_mov_b32 s{sT}, {128*1152}")
    for k in range(3):
        a(f"v_cmp_lt_u32 vcc, 15, v{vT+8+k}")
        a(f"v_mov_b32 v{vT+1}, s{sT}")
        a("s_nop 0")
        a(f"v_cndmask_b32 v{vT+1}, 0, v{vT+1}, vcc")
        a(f"v_add_u32 v{vDm+k}, v{vD+k}, v{vT+1}")
    a(f"s_mul_i32 s{sWb1}, s{sKs}, {2*576*1152}")
    a(f"s_mul_i32 s{sT}, s{sNb}, 288")
    a(f"s_add_u32 s{sWb1}, s{sWb1}, s{sT}")
    a(f"s_lshr_b32 s{sT}, s{sWave}, 2")
    a(f"s_lshl_b32 s{sT+1}, s{sKs}, 1")
    a(f"s_add_u32 s{sT+1}, s{sT+1}, s{sT}")
    a(f"s_and_b32 s{sT+2}, s{sWave}, 3")
    a(f"s_lshl_b32 s{sXb}, s{sMb}, 3")
    a(f"s_lshl_b32 s{sT+3}, s{sT+2}, 1")
    a(f"s_add_u32 s{sXb}, s{sXb}, s{sT+3}")
    a(f"s_mov_b32 s{sT+4}, s{sXb}")
    a(f"s_mul_i32 s{sXb}, s{sXb}, 144")
    a(f"s_mul_i32 s{sT+3}, s{sT+1}, 18")
    a(f"s_add_u32 s{sXb}, s{sXb}, s{sT+3}")
    a(f"s_lshl_b32 s{sXb}, s{sXb}, 10")
    a(f"v_lshlrev_b32 v{vX0}, 4, v0")
    a(f"v_add_u32 v{vX0}, s{sXb}, v{vX0}")
    a(f"v_add_u32 v{vX1}, {144*1024}, v{vX0}")
    a(f"s_lshl_b32 s{sPb}, s{sKs}, 7")
    a(f"s_add_u32 s{sPb}, s{sPb}, s{sT+4}")
    a(f"s_add_u32 s{sPb}, s{sPb}, s{sT}")
    a(f"s_mul_i32 s{sPb}, s{sPb}, 36")
    a(f"s_mul_i32 s{sT+6}, s{sNb}, 9")
    a(f"s_add_u32 s{sPb}, s{sPb}, s{sT+6}")
    a(f"s_lshl_b32 s{sPb}, s{sPb}, 10")
    if "m16" in OPT:
        a(f"v_lshrrev_b32 v{vT+5}, 2, v0")
    else:
        a(f"v_lshrrev_b32 v{vT+5}, 5, v0")
        a(f"v_lshlrev_b32 v{vT+5}, 4, v{vT+5}")
        a(f"v_bfe_u32 v{vT+6}, v0, 2, 3")
        a(f"v_add_u32 v{vT+5}, v{vT+5}, v{vT+6}")
    a(f"v_mul_u32_u24 v{vT+5}, 288, v{vT+5}")
    a(f"v_and_b32 v{vT+6}, 3, v0")
    a(f"v_lshl_add_u32 v{vWa}, v{vT+6}, 3, v{vT+5}")
    a(f"s_mul_i32 s{sT+6}, s{sT}, 9216")
    a(f"v_add_u32 v{vWa}, s{sT+6}, v{vWa}")
    a(f"v_add_u32 v{vWb}, {3*STG}, v{vWa}")
    a("s_waitcnt lgkmcnt(0)")
    srd(a, sW, 4, 4608*576*2)
    srd(a, sX, 8, HH_SZ, HH_OFF)
    srd(a, sP, 8, P_SZ, P_OFF)
    a(f"s_cmp_ge_u32 s{sWave}, 2")
    a(f"s_cbranch_scc1 L_{name}_typeB")
    def fa_rel(i):
        q, ii = divmod(i, 9)
        if ii < 4: return 288*q + 32*ii
        if ii < 8: return 288*q + 144 + 32*(ii-4)
        return 288*q + 128
    def body(nd, tag):
        vm = VM(a)
        def load_groups(i):
            if i >= 18: return []
            st = i % NST
            gs = []
            vv = vDm if i % 9 == 8 else vD
            for k in range(nd):
                g = []
                if k == 0:
                    g.append(("s", f"s_add_u32 s{sWo}, s{sWb1}, {fa_rel(i)*1152}"))
                g.append(("s", f"s_add_u32 m0, s{sM0+k}, {st*STG}"))
                g.append(("s", "s_nop 0"))
                g.append((("W", i), f"buffer_load_dwordx4 v{vv+k}, {sr(sW,4)}, s{sWo} offen lds"))
                gs.append(g)
            xs = XS + (i % NST) * 8
            gs.append([("s", f"s_mov_b32 s{sWo+1}, {i*1024}"),
                       (("X", i), f"buffer_load_dwordx4 {vr(xs,4)}, v{vX0}, {sr(sX,4)}, s{sWo+1} offen")])
            gs.append([(("X", i), f"buffer_load_dwordx4 {vr(xs+4,4)}, v{vX1}, {sr(sX,4)}, s{sWo+1} offen")])
            return gs
        def emit_group(g):
            for tg, txt in g:
                if tg == "s": a(txt)
                else: vm.op(tg, txt)
        for i in range(2):
            for g in load_groups(i): emit_group(g)
        for i in range(0, 72, 2):
            a(f"v_mov_b64 {vr(ACC+i,2)}, 0")
        sched = {0: [2, 3], 1: [4, 5], 2: [6, 7]}
        def wread(gidx):
            i, nt = divmod(gidx, 9)
            if i >= 18: return
            st = i % NST; slot = gidx % RING
            base = vWa if st < 3 else vWb
            off = (st % 3) * STG + nt * 32
            a(f"ds_read_b64_tr_b16 {vr(WR+slot*4,2)}, v{base} offset:{off}")
            a(f"ds_read_b64_tr_b16 {vr(WR+slot*4+2,2)}, v{base} offset:{off+ROWB}")
        vm.wait(lambda t: t[1] <= 0)
        a("s_barrier")
        for f in range(PF): wread(f)
        stamp(a, 1)
        for i in range(18):
            lg = []
            for j in sched.get(i, [i + PFD]): lg += load_groups(j)
            vm.wait(lambda t: t[0] == "X" and t[1] <= i)
            gi = 0
            gpos = [(k * 9) // max(1, len(lg)) for k in range(len(lg))]
            for nt in range(9):
                g = i*9 + nt; slot = g % RING
                if i == 0 and nt == 9 - PF:
                    vm.wait(lambda t: t[0] == "W" and t[1] <= 1)
                    a("s_barrier")
                wread(g + PF)
                rem = min(PF, 18*9 - 1 - g)
                a(f"s_waitcnt lgkmcnt({2*rem})")
                xs = XS + (i % NST) * 8
                a(f"v_mfma_f32_16x16x32_bf16 {vr(acc(nt,0),4)}, {vr(WR+slot*4,4)}, {vr(xs,4)}, {vr(acc(nt,0),4)}")
                a(f"v_mfma_f32_16x16x32_bf16 {vr(acc(nt,1),4)}, {vr(WR+slot*4,4)}, {vr(xs+4,4)}, {vr(acc(nt,1),4)}")
                while gi < len(lg) and gpos[gi] <= nt:
                    emit_group(lg[gi]); gi += 1
            assert gi == len(lg)
            vm.wait(lambda t: t[0] == "W" and t[1] <= i + 2)
            a("s_barrier")
    body(3, "A")
    a(f"s_branch L_{name}_epi")
    a.lab(f"L_{name}_typeB")
    body(2, "B")
    a.lab(f"L_{name}_epi")
    stamp(a, 2)
    a(f"s_lshr_b32 s{sT}, s{sWave}, 2")
    a(f"v_lshlrev_b32 v{vT}, 4, v0")
    a(f"s_mul_i32 s{sT+1}, s{sWave}, 9216")
    a(f"v_add_u32 v{vT+1}, s{sT+1}, v{vT}")
    a(f"s_xor_b32 s{sT+2}, s{sWave}, 4")
    a(f"s_mul_i32 s{sT+2}, s{sT+2}, 9216")
    a(f"v_add_u32 v{vT+2}, s{sT+2}, v{vT}")
    a(f"s_cmp_eq_u32 s{sT}, 0")
    a("s_nop 4")
    a(f"s_cbranch_scc0 L_{name}_kh1")
    for kh in range(2):
        if kh == 1: a.lab(f"L_{name}_kh1")
        for nt in range(9):
            a(f"ds_write_b128 v{vT+1}, {vr(acc(nt,1-kh),4)} offset:{nt*1024}")
        a("s_waitcnt lgkmcnt(0)")
        a("s_barrier")
        for nt in range(9):
            a(f"ds_read_b128 {vr(XS+nt*4,4)}, v{vT+2} offset:{nt*1024}")
        for nt in range(9):
            a(f"s_waitcnt lgkmcnt({8-nt})")
            for r in range(4):
                a(f"v_add_f32 v{XS+nt*4+r}, v{XS+nt*4+r}, v{acc(nt,kh)+r}")
            if nt in (4, 8): a(f"s_add_u32 s{sPb}, s{sPb}, 4096")
            a(f"buffer_store_dwordx4 {vr(XS+nt*4,4)}, v{vT}, {sr(sP,4)}, s{sPb} offen offset:{(nt%4)*1024}")
        stamp(a, 3)
        a("s_waitcnt vmcnt(0)")
        a("s_barrier")
        stamp(a, 4); stamp(a, 6, True)
        stamp_dump(a, 7, 8, sWave, vT+4, 1)
        if kh == 0:
            a(f"s_cmp_lg_u32 s{sWave}, 0")
            a(f"s_cbranch_scc1 L_{name}_done")
            srd(a, 24, 10, 256)
            a(f"s_lshl_b32 s{sT}, s{sMb}, 2")
            a(f"v_mov_b32 v{vT}, s{sT}")
            a(f"v_mov_b32 v{vT+1}, 1")
            a("s_mov_b64 exec, 1")
            a(f"buffer_atomic_add v{vT+1}, v{vT}, s[24:27], 0 offen sc1")
        a("s_endpgm")
    a.lab(f"L_{name}_cons")
    a("s_load_dwordx2 s[4:5], s[0:1], 56")
    a("s_load_dwordx4 s[8:11], s[0:1], 64")
    a("v_lshrrev_b32 v1, 6, v0")
    a("v_and_b32 v0, 63, v0")
    a("s_sub_u32 s28, s2, 256")
    a("v_readfirstlane_b32 s29, v1")
    a("s_mul_i32 s30, s28, 7282")
    a("s_lshr_b32 s30, s30, 16")
    a("s_lshl_b32 s31, s28, 4")
    a("s_lshl_b32 s32, s29, 1")
    a("s_add_u32 s31, s31, s32")
    a("s_waitcnt lgkmcnt(0)")
    srd(a, 12, 10, H1_SZ, H1_OFF)
    srd(a, 16, 10, P_SZ, P_OFF)
    srd(a, 20, 4, 2048*576*2)
    srd(a, 24, 8, 256)
    a("v_lshlrev_b32 v1, 4, v0")
    a("s_lshl_b32 s32, s31, 10")
    a("buffer_load_dwordx4 v[4:7], v1, s[12:15], s32 offen")
    a("buffer_load_dwordx4 v[44:47], v1, s[12:15], s32 offen offset:1024")
    a("s_cmp_lg_u32 s29, 0")
    a(f"s_cbranch_scc1 L_{name}_wait")
    a("s_lshl_b32 s33, s30, 2")
    a("v_mov_b32 v2, s33")
    a.lab(f"L_{name}_poll")
    a("buffer_load_dword v3, v2, s[24:27], 0 offen sc1")
    a("s_waitcnt vmcnt(0)")
    a("v_readfirstlane_b32 s34, v3")
    a("s_cmp_ge_u32 s34, 16")
    a(f"s_cbranch_scc1 L_{name}_wait")
    a("s_sleep 2")
    a(f"s_branch L_{name}_poll")
    a.lab(f"L_{name}_wait")
    a("s_barrier")
    a("s_lshl_b32 s33, s31, 11")
    for t in range(2):
        B = 8 + t*40
        for k_ in range(4):
            a.l.append(f"    buffer_load_dwordx4 v[{B+k_*8}:{B+3+k_*8}], v1, s[16:19], s33 offen offset:{t*2048} sc1")
            a.l.append(f"    buffer_load_dwordx4 v[{B+4+k_*8}:{B+7+k_*8}], v1, s[16:19], s33 offen offset:{t*2048+1024} sc1")
            a(f"s_add_u32 s33, s33, {128*36*1024}")
        a(f"s_sub_u32 s33, s33, {4*128*36*1024}")
    for t in range(2):
        B = 8 + t*40; Hh = 4 + t*40
        a(f"s_add_u32 s35, s31, {t}")
        a("s_mul_i32 s36, s35, 3641")
        a("s_lshr_b32 s36, s36, 16")
        a("s_mul_i32 s37, s36, 18")
        a("s_sub_u32 s37, s35, s37")
        a("v_and_b32 v2, 15, v0")
        a("s_lshl_b32 s38, s36, 4")
        a("v_add_u32 v2, s38, v2")
        a("v_mul_u32_u24 v2, 1152, v2")
        a("v_lshrrev_b32 v3, 4, v0")
        a("v_lshl_add_u32 v2, v3, 3, v2")
        a("s_lshl_b32 s38, s37, 6")
        a(f"s_waitcnt vmcnt({8 if t == 0 else 2})")
        for i in range(8):
            a(f"v_add_f32 v{B+i}, v{B+i}, v{B+8+i}")
            a(f"v_add_f32 v{B+16+i}, v{B+16+i}, v{B+24+i}")
        for i in range(8):
            a(f"v_add_f32 v{B+i}, v{B+i}, v{B+16+i}")
        for p in range(4):
            a(f"v_cvt_pk_bf16_f32 v{B+8+p}, v{B+2*p}, v{B+1+2*p}")
        for p in range(4):
            a(f"v_lshlrev_b32 v{B+16+2*p}, 16, v{B+8+p}")
            a(f"v_and_b32 v{B+17+2*p}, 0xffff0000, v{B+8+p}")
            a(f"v_lshlrev_b32 v{B+24+2*p}, 16, v{Hh+p}")
            a(f"v_and_b32 v{B+25+2*p}, 0xffff0000, v{Hh+p}")
        for i in range(8):
            a(f"v_add_f32 v{B+16+i}, v{B+16+i}, v{B+24+i}")
        for p in range(4):
            a(f"v_cvt_pk_bf16_f32 v{B+8+p}, v{B+16+2*p}, v{B+17+2*p}")
        a(f"buffer_store_dwordx2 v[{B+8}:{B+9}], v2, s[20:23], s38 offen")
        a(f"buffer_store_dwordx2 v[{B+10}:{B+11}], v2, s[20:23], s38 offen offset:32")
    a.lab(f"L_{name}_done")
    a("s_endpgm")
    return a.text(), kernel_desc(name, NV), f"; @launch kernel={name} grid=({256+NC},1,1) block=(512,1,1) lds={NST*STG}"


def gen_k1v3(name="k1_kernel"):
    a = A(); vm = VM(a)
    kernel_head(a, name)
    XT = 0
    WB = 92160; STG = 16384; NST = 4; PITCH = 480
    QP = 624
    ACC = 4
    XF = 44
    WF = 84
    RAW = 100
    vD0, vD1 = 150, 151
    vWa, vXa, vXb = 152, 153, 154
    vNM, vR, vLW = 155, 156, 157
    vT = 160
    NV = 184
    sW, sXs, sO = 12, 16, 20
    sWave, sRb, sHg, sT = 28, 29, 30, 36
    sWo, sM0b = 31, 32
    a("s_cmp_ge_u32 s2, 256")
    a(f"s_cbranch_scc1 L_{name}_done")
    stamp(a, 0); stamp(a, 5, True)
    a("s_load_dwordx4 s[4:7], s[0:1], 0")
    a("s_load_dwordx2 s[8:9], s[0:1], 72")
    if "nowpf" not in OPT:
        a("s_load_dwordx4 s[48:51], s[0:1], 32")
        a("s_load_dwordx2 s[52:53], s[0:1], 48")
        a("s_load_dwordx2 s[92:93], s[0:1], 16")
    a("v_lshrrev_b32 v1, 6, v0")
    a("v_mov_b32 v3, v0")
    a("v_and_b32 v0, 63, v0")
    a(f"v_readfirstlane_b32 s{sWave}, v1")
    a(f"s_lshr_b32 s{sT}, s2, 3")
    a(f"s_and_b32 s{sHg}, s{sT}, 3")
    a(f"s_and_b32 s{sT+1}, s2, 1")
    a(f"s_lshl_b32 s{sT+1}, s{sT+1}, 2")
    a(f"s_add_u32 s{sHg}, s{sHg}, s{sT+1}")
    a(f"s_lshr_b32 s{sRb}, s{sT}, 2")
    a(f"s_bfe_u32 s{sT+1}, s2, 0x20001")
    a(f"s_lshl_b32 s{sT+1}, s{sT+1}, 3")
    a(f"s_add_u32 s{sRb}, s{sRb}, s{sT+1}")
    a(f"v_min_u32 v{vT+4}, 59, v0")
    a(f"v_mul_u32_u24 v{vT}, 10923, v{vT+4}")
    a(f"v_lshrrev_b32 v{vT}, 16, v{vT}")
    a(f"v_mul_u32_u24 v{vT+1}, 6, v{vT}")
    a(f"v_sub_u32 v{vT+1}, v{vT+4}, v{vT+1}")
    a(f"s_mul_i32 s{sT}, s{sWave}, 10")
    a(f"v_add_u32 v{vT+2}, s{sT}, v{vT}")
    a(f"s_lshl_b32 s{sT+1}, s{sRb}, 6")
    a(f"s_sub_u32 s{sT+1}, s{sT+1}, 16")
    a(f"v_add_u32 v{vT+3}, s{sT+1}, v{vT+2}")
    a(f"s_movk_i32 s{sT+2}, 1152")
    a(f"v_mul_lo_u32 v{vT+3}, v{vT+3}, s{sT+2}")
    a(f"v_lshl_add_u32 v{vT+3}, v{vT+1}, 4, v{vT+3}")
    a("s_waitcnt lgkmcnt(0)")
    srd(a, sXs, 4, 2048*576*2)
    for i in range(12):
        vm.op(("x", i), f"buffer_load_dwordx4 {vr(RAW+i*4,4)}, v{vT+3}, {sr(sXs,4)}, 0 offen offset:{i*96}")
    srd(a, sW, 6, 576*1728*2)
    srd(a, sO, 8, O_SZ, O_OFF)
    a(f"s_lshl_b32 s{sT}, s{sWave}, 7")
    a(f"s_mul_i32 s{sT+1}, s{sHg}, 144")
    a(f"s_mov_b32 s{sT+2}, 0x40000000")
    for t, vd in enumerate((vD0, vD1)):
        a(f"v_add_u32 v{vT+4}, s{sT}, v0")
        if t: a(f"v_add_u32 v{vT+4}, 64, v{vT+4}")
        a(f"v_mul_u32_u24 v{vT+5}, 2185, v{vT+4}")
        a(f"v_lshrrev_b32 v{vT+5}, 16, v{vT+5}")
        a(f"v_mul_u32_u24 v{vT+6}, 30, v{vT+5}")
        a(f"v_sub_u32 v{vT+6}, v{vT+4}, v{vT+6}")
        a(f"v_mul_u32_u24 v{vT+7}, 7282, v{vT+6}")
        a(f"v_lshrrev_b32 v{vT+7}, 16, v{vT+7}")
        a(f"v_mul_u32_u24 v{vT+8}, 9, v{vT+7}")
        a(f"v_sub_u32 v{vT+8}, v{vT+6}, v{vT+8}")
        a(f"v_mul_u32_u24 v{vT+7}, 1152, v{vT+7}")
        a(f"v_lshl_add_u32 v{vT+7}, v{vT+8}, 4, v{vT+7}")
        a(f"v_and_b32 v{vT+8}, 4, v{vT+5}")
        a(f"v_lshlrev_b32 v{vT+8}, 1, v{vT+8}")
        a(f"v_and_b32 v{vT+9}, 8, v{vT+5}")
        a(f"v_lshrrev_b32 v{vT+9}, 1, v{vT+9}")
        a(f"v_and_b32 v{vT+10}, 0x13, v{vT+5}")
        a(f"v_or3_b32 v{vT+8}, v{vT+8}, v{vT+9}, v{vT+10}")
        a(f"v_mul_u32_u24 v{vT+8}, 3456, v{vT+8}")
        a(f"v_add3_u32 v{vT+7}, v{vT+7}, v{vT+8}, s{sT+1}")
        a(f"v_cmp_gt_u32 vcc, 27, v{vT+6}")
        a(f"v_cmp_gt_u32 s[{sT+4}:{sT+5}], 32, v{vT+5}")
        a(f"s_and_b64 vcc, vcc, s[{sT+4}:{sT+5}]")
        a(f"v_mov_b32 v{vT+8}, s{sT+2}")
        a("s_nop 1")
        a(f"v_cndmask_b32 v{vd}, v{vT+8}, v{vT+7}, vcc")
    a(f"s_lshl_b32 s{sM0b}, s{sWave}, 11")
    a(f"s_add_u32 s{sM0b}, s{sM0b}, {WB}")
    def wdma(i):
        if i >= 18: return
        st = i % NST
        a(f"s_mov_b32 s{sWo}, {i*32*3456}")
        for t, vd in enumerate((vD0, vD1)):
            a(f"s_add_u32 m0, s{sM0b}, {st*STG + t*1024}")
            a("s_nop 0")
            vm.op(("W", i), f"buffer_load_dwordx4 v{vd}, {sr(sW,4)}, s{sWo} offen lds")
    for i in range(2): wdma(i)
    if "k1pf" in OPT:
        a(f"s_and_b32 s{sT+3}, s{sRb}, 7")
        a(f"s_mul_i32 s{sT+3}, s{sT+3}, {72*3456}")
        a(f"s_add_u32 s{sT+3}, s{sT+3}, s{sT+1}")
        for t in range(2):
            a(f"v_add_u32 v{vT+4}, s{sT}, v0")
            if t: a(f"v_add_u32 v{vT+4}, 64, v{vT+4}")
            a(f"v_mul_u32_u24 v{vT+5}, 7282, v{vT+4}")
            a(f"v_lshrrev_b32 v{vT+5}, 16, v{vT+5}")
            a(f"v_mul_u32_u24 v{vT+6}, 9, v{vT+5}")
            a(f"v_sub_u32 v{vT+6}, v{vT+4}, v{vT+6}")
            a(f"v_mul_u32_u24 v{vT+7}, 21846, v{vT+6}")
            a(f"v_lshrrev_b32 v{vT+7}, 16, v{vT+7}")
            a(f"v_mul_u32_u24 v{vT+8}, 3, v{vT+7}")
            a(f"v_sub_u32 v{vT+8}, v{vT+6}, v{vT+8}")
            a(f"v_mul_u32_u24 v{vT+8}, 70, v{vT+8}")
            a(f"v_and_b32 v{vT+8}, 0xfc, v{vT+8}")
            a(f"v_mul_u32_u24 v{vT+5}, 3456, v{vT+5}")
            a(f"v_mad_u32_u24 v{vT+5}, v{vT+7}, 1152, v{vT+5}") if False else None
            a(f"v_mul_u32_u24 v{vT+7}, 1152, v{vT+7}")
            a(f"v_add3_u32 v{vT+5}, v{vT+5}, v{vT+7}, v{vT+8}")
            a(f"v_cmp_gt_u32 vcc, 648, v{vT+4}")
            a(f"v_mov_b32 v{vT+8}, s{sT+2}")
            a("s_nop 1")
            a(f"v_cndmask_b32 v{vT+5}, v{vT+8}, v{vT+5}, vcc")
            vm.op(("P", t), f"buffer_load_dword v{vT+18+t}, v{vT+5}, {sr(sW,4)}, s{sT+3} offen")
    ONES = sT+8
    a(f"s_mov_b32 s{ONES}, 0x3f803f80")
    S, Q, S2, Q2 = vT+4, vT+5, vT+6, vT+7
    B3, B1, B2 = vT+8, vT+9, vT+10
    for d_, vb in ((3, B3), (1, B1), (2, B2)):
        a(f"v_add_u32 v{vb}, {d_}, v{vT+1}")
        a(f"v_subrev_u32 v{vT+11}, 6, v{vb}")
        a(f"v_min_u32 v{vb}, v{vb}, v{vT+11}")
        a(f"v_mad_u32_u24 v{vb}, v{vT}, 6, v{vb}")
        a(f"v_lshlrev_b32 v{vb}, 2, v{vb}")
    a(f"v_lshrrev_b32 v{vT+11}, 4, v{vT+2}")
    a(f"v_mul_u32_u24 v{vT+11}, 18432, v{vT+11}")
    a(f"v_and_b32 v{vT+12}, 15, v{vT+2}")
    a(f"v_lshl_add_u32 v{vT+11}, v{vT+12}, 4, v{vT+11}")
    a(f"v_lshl_add_u32 v{vLW}, v{vT+1}, 8, v{vT+11}")
    a(f"v_lshrrev_b32 v{vT+11}, 5, v0")
    a(f"v_lshlrev_b32 v{vT+11}, 4, v{vT+11}")
    a(f"v_bfe_u32 v{vT+12}, v0, 2, 3")
    a(f"v_add_u32 v{vT+11}, v{vT+11}, v{vT+12}")
    a(f"v_mul_u32_u24 v{vT+11}, {PITCH}, v{vT+11}")
    a(f"v_and_b32 v{vT+12}, 3, v0")
    a(f"v_lshl_add_u32 v{vWa}, v{vT+12}, 3, v{vT+11}")
    a(f"s_lshl_b32 s{sT}, s{sWave}, 6")
    a(f"s_add_u32 s{sT}, s{sT}, {WB}")
    a(f"v_add_u32 v{vWa}, s{sT}, v{vWa}")
    a(f"v_lshlrev_b32 v{vXa}, 4, v0")
    a(f"v_add_u32 v{vXb}, 65536, v{vXa}")
    for r in (S, Q, S2, Q2): a(f"v_mov_b32 v{r}, 0")
    for i in range(12):
        vm.wait(lambda t: t[0] == "x" and t[1] <= i)
        if i == 11 and "astamp" not in OPT: stamp(a, 1)
        for d_ in range(4):
            x = RAW + i*4 + d_
            s_, q_ = (S, Q) if d_ % 2 == 0 else (S2, Q2)
            a(f"v_dot2_f32_bf16 v{s_}, v{x}, s{ONES}, v{s_}")
            a(f"v_dot2_f32_bf16 v{q_}, v{x}, v{x}, v{q_}")
    wdma(2); wdma(3)
    a(f"v_add_f32 v{S}, v{S}, v{S2}")
    a(f"v_add_f32 v{Q}, v{Q}, v{Q2}")
    a(f"ds_bpermute_b32 v{S2}, v{B3}, v{S}")
    a(f"ds_bpermute_b32 v{Q2}, v{B3}, v{Q}")
    a("s_waitcnt lgkmcnt(0)")
    a(f"v_add_f32 v{S}, v{S}, v{S2}")
    a(f"v_add_f32 v{Q}, v{Q}, v{Q2}")
    a(f"ds_bpermute_b32 v{S2}, v{B1}, v{S}")
    a(f"ds_bpermute_b32 v{Q2}, v{B1}, v{Q}")
    a(f"ds_bpermute_b32 v{vT+11}, v{B2}, v{S}")
    a(f"ds_bpermute_b32 v{vT+12}, v{B2}, v{Q}")
    a("s_waitcnt lgkmcnt(0)")
    a(f"v_add3_u32 v{vT+13}, 0, 0, 0") if False else None
    a(f"v_add_f32 v{S}, v{S}, v{S2}")
    a(f"v_add_f32 v{Q}, v{Q}, v{Q2}")
    a(f"v_add_f32 v{S}, v{S}, v{vT+11}")
    a(f"v_add_f32 v{Q}, v{Q}, v{vT+12}")
    a(f"v_mul_f32 v{S}, {f32(1.0/576.0)}, v{S}")
    a(f"v_mul_f32 v{Q}, {f32(1.0/576.0)}, v{Q}")
    a(f"v_fma_f32 v{Q}, -v{S}, v{S}, v{Q}")
    a(f"v_max_f32 v{Q}, 0, v{Q}")
    round_bf16(a, vNM, S)
    round_bf16(a, Q, Q)
    a(f"v_add_f32 v{Q}, {f32(1e-5)}, v{Q}")
    round_bf16(a, Q, Q)
    a(f"v_sqrt_f32 v{Q}, v{Q}")
    a("s_nop 0")
    round_bf16(a, Q, Q)
    a(f"v_rcp_f32 v{vR}, v{Q}")
    a("s_nop 0")
    def norm_group(i):
        chains = []
        for d_ in range(4):
            x = RAW + i*4 + d_
            t = vT + 12 + d_ * 2
            chains.append([f"v_lshlrev_b32 v{t}, 16, v{x}", f"v_and_b32 v{t+1}, 0xffff0000, v{x}",
                    f"v_sub_f32 v{t}, v{t}, v{vNM}", f"v_sub_f32 v{t+1}, v{t+1}, v{vNM}",
                    f"v_cvt_pk_bf16_f32 v{t}, v{t}, v{t+1}",
                    f"v_and_b32 v{t+1}, 0xffff0000, v{t}", f"v_lshlrev_b32 v{t}, 16, v{t}",
                    f"v_mul_f32 v{t}, v{t}, v{vR}", f"v_mul_f32 v{t+1}, v{t+1}, v{vR}",
                    f"v_cvt_pk_bf16_f32 v{x}, v{t}, v{t+1}"])
        ops = []
        for stage in ((0, 1), (2, 3), (4,), (5, 6), (7, 8), (9,)):
            for c in chains:
                for j in stage: ops.append(c[j])
        ops.append(f"ds_write_b128 v{vLW}, {vr(RAW+i*4,4)} offset:{XT + i*6*256}")
        return ops
    gdone = 12
    for g_ in range(12):
        for op in norm_group(g_): a(op)
    if "astamp" not in OPT: stamp(a, 2)
    vm.wait(lambda t: t[0] == "W" and t[1] <= 0)
    a("s_waitcnt lgkmcnt(0)")
    a("s_barrier")
    if "astamp" not in OPT: stamp(a, 3)
    if "nowpf" not in OPT:
        a(f"s_lshl_b32 s{sT}, s2, 3")
        a(f"s_add_u32 s{sT}, s{sT}, s{sWave}")
        a(f"s_cmp_ge_u32 s{sT}, 2025")
        a(f"s_cbranch_scc1 L_{name}_nopf")
        a(f"s_cmp_ge_u32 s{sT}, 648")
        a(f"s_cselect_b32 s54, s50, s48")
        a(f"s_cselect_b32 s55, s51, s49")
        a(f"s_cselect_b32 s{sT+1}, 648, 0")
        a(f"s_cmp_ge_u32 s{sT}, 1296")
        a(f"s_cselect_b32 s54, s52, s54")
        a(f"s_cselect_b32 s55, s53, s55")
        a(f"s_cselect_b32 s{sT+1}, 1296, s{sT+1}")
        a(f"s_cmp_ge_u32 s{sT}, 1944")
        a(f"s_cselect_b32 s54, s92, s54")
        a(f"s_cselect_b32 s55, s93, s55")
        a(f"s_cselect_b32 s{sT+1}, 1944, s{sT+1}")
        a(f"s_cselect_b32 s{sT+2}, {576*576*2}, {576*4608*2}") if False else None
        a(f"s_sub_u32 s{sT}, s{sT}, s{sT+1}")
        a(f"s_lshl_b32 s{sT}, s{sT}, 13")
        srd(a, 56, 54, 576*4608*2)
        a(f"v_lshlrev_b32 v{vT+18}, 7, v0")
        a(f"buffer_load_dword v{vT+19}, v{vT+18}, s[56:59], s{sT} offen")
        a.lab(f"L_{name}_nopf")
        if "pfcode" in OPT:
            a(f"s_lshl_b32 s{sT}, s2, 3")
            a(f"s_add_u32 s{sT}, s{sT}, s{sWave}")
            a(f"s_sub_u32 s{sT}, s{sT}, 2025")
            a(f"s_cmp_ge_u32 s{sT}, 8")
            a(f"s_cbranch_scc1 L_{name}_nopc")
            a("s_getpc_b64 s[54:55]")
            a(f"s_lshl_b32 s{sT}, s{sT}, 13")
            srd(a, 56, 54, 65536)
            a(f"v_lshlrev_b32 v{vT+18}, 7, v0")
            a(f"buffer_load_dword v{vT+19}, v{vT+18}, s[56:59], s{sT} offen")
            a.lab(f"L_{name}_nopc")
        if "pfws" in OPT:
            a(f"s_lshl_b32 s{sT}, s2, 3")
            a(f"s_add_u32 s{sT}, s{sT}, s{sWave}")
            a(f"s_cmp_ge_u32 s{sT}, {(P_OFF+P_SZ + 262143)//262144}")
            a(f"s_cbranch_scc1 L_{name}_nopw")
            a(f"s_lshl_b32 s{sT}, s{sT}, 18")
            srd(a, 56, 8, P_OFF+P_SZ)
            a(f"v_lshlrev_b32 v{vT+18}, 12, v0")
            a(f"buffer_load_dword v{vT+20}, v{vT+18}, s[56:59], s{sT} offen")
            a.lab(f"L_{name}_nopw")
    def reads(i):
        b = i % 2; st = i % NST
        for n in range(2):
            a(f"ds_read_b64_tr_b16 {vr(WF+b*8+n*4,2)}, v{vWa} offset:{st*STG + n*32}")
            a(f"ds_read_b64_tr_b16 {vr(WF+b*8+n*4+2,2)}, v{vWa} offset:{st*STG + n*32 + 8*PITCH}")
        for mt in range(5):
            off = (mt*18 + i)*1024
            if off < 65536:
                a(f"ds_read_b128 {vr(XF+b*20+mt*4,4)}, v{vXa} offset:{off}")
            else:
                a(f"ds_read_b128 {vr(XF+b*20+mt*4,4)}, v{vXb} offset:{off-65536}")
    for i in range(18):
        reads(i)
        if i >= 1: wdma(i+3)
        b = i % 2
        need = min(11, (4*(i+1)+3)//6)
        nops = []
        while gdone <= need:
            nops += norm_group(gdone); gdone += 1
        if "k1nonorm" in OPT: nops = []
        ni = 0
        for _ in range(10):
            if ni < len(nops) - 1: a(nops[ni]); ni += 1
        for mt in range(5):
            a(f"s_waitcnt lgkmcnt({4-mt})")
            for n in range(2):
                c = vr(ACC+(mt*2+n)*4,4)
                a(f"v_mfma_f32_16x16x32_bf16 {c}, {vr(WF+b*8+n*4,4)}, {vr(XF+b*20+mt*4,4)}, " + ("0" if i == 0 else c))
                for _ in range(3):
                    if ni < len(nops) - 1: a(nops[ni]); ni += 1
        while ni < len(nops):
            a(nops[ni]); ni += 1
        if i < 17:
            vm.wait(lambda t: t[0] == "W" and t[1] <= i+1)
            if nops: a("s_waitcnt lgkmcnt(0)")
            a("s_barrier")
    a("s_barrier")
    stamp(a, 1 if "astamp" in OPT else 4)
    a(f"v_lshrrev_b32 v{vT}, 4, v0")
    a(f"v_lshlrev_b32 v{vT}, 2, v{vT}")
    a(f"s_lshl_b32 s{sT}, s{sWave}, 5")
    a(f"v_add_u32 v{vT}, s{sT}, v{vT}")
    a(f"v_and_b32 v{vT+1}, 15, v0")
    a(f"v_mul_u32_u24 v{vT+1}, {QP}, v{vT+1}")
    AD = vT + 4
    for n in range(2):
        for p in range(2):
            ad = AD + n*2 + p
            a(f"v_add_u32 v{vT+2}, {n*16+p*2}, v{vT}")
            a(f"v_mul_u32_u24 v{vT+3}, 3641, v{vT+2}")
            a(f"v_lshrrev_b32 v{vT+3}, 16, v{vT+3}")
            a(f"v_mul_u32_u24 v{ad}, 18, v{vT+3}")
            a(f"v_sub_u32 v{ad}, v{vT+2}, v{ad}")
            a(f"v_lshl_add_u32 v{ad}, v{ad}, 1, v{vT+1}")
            a(f"v_mad_u32_u24 v{ad}, v{vT+3}, 48, v{ad}")
    a(f"s_cmp_ge_u32 s{sWave}, 7")
    a(f"s_cbranch_scc1 L_{name}_skipq")
    for mt in range(5):
        for n in range(2):
            c = ACC + (mt*2+n)*4
            t = vT + 8 + ((mt*2+n) % 2) * 2
            a(f"v_cvt_pk_bf16_f32 v{t}, v{c}, v{c+1}")
            a(f"v_cvt_pk_bf16_f32 v{t+1}, v{c+2}, v{c+3}")
            a(f"ds_write_b32 v{AD+n*2}, v{t} offset:{mt*16*QP}")
            a(f"ds_write_b32 v{AD+n*2+1}, v{t+1} offset:{mt*16*QP}")
    a.lab(f"L_{name}_skipq")
    QR = 4; KR = 16; LG = 64; LX = 68; VO = 72; VX = 104; OA = 136
    vAo, vAx, vPos, vHd, vHf = vT, vT+1, vT+2, vT+3, vT+12
    a(f"v_lshrrev_b32 v{vPos}, 3, v3")
    a(f"v_bfe_u32 v{vHd}, v3, 1, 2")
    a(f"v_and_b32 v{vHf}, 1, v3")
    a(f"v_add_u32 v{vT+13}, 2, v{vPos}")
    a(f"v_mul_u32_u24 v{vT+13}, {QP}, v{vT+13}")
    a(f"v_mad_u32_u24 v{vT+13}, v{vHd}, 48, v{vT+13}")
    a(f"v_xor_b32 v{vT+14}, 1, v{vHf}")
    a(f"s_movk_i32 s{sT}, {8*QP}")
    a(f"v_mad_u32_u24 v{vAo}, v{vT+14}, s{sT}, v{vT+13}")
    a(f"v_mad_u32_u24 v{vAx}, v{vHf}, s{sT}, v{vT+13}")
    a("s_waitcnt lgkmcnt(0)")
    a("s_barrier")
    if "astamp" in OPT: stamp(a, 2)
    for j in range(3):
        a(f"ds_read_b128 {vr(QR+j*4,4)}, v{vT+13} offset:{14*QP + j*16}")
    for i in range(4):
        for j in range(3):
            a(f"ds_read_b128 {vr(KR+i*12+j*4,4)}, v{vAo} offset:{(6-2*i)*QP + 192 + j*16}")
    a(f"v_lshl_add_u32 v{vAo}, v{vHf}, 4, v{vAo}")
    a(f"v_lshl_add_u32 v{vAx}, v{vHf}, 4, v{vAx}")
    a(f"s_lshl_b32 s{sT}, s{sRb}, 6")
    a(f"v_add_u32 v{vPos}, s{sT}, v{vPos}")
    a(f"v_lshlrev_b32 v{vT+14}, 3, v{vHf}")
    a(f"v_sub_u32 v{vT+14}, v{vPos}, v{vT+14}")
    a(f"s_mov_b32 s{sT+1}, {f32(18.0**-0.5)}")
    a(f"s_mov_b32 s{sT+2}, {f32(-1e9)}")
    a(f"v_cvt_pk_bf16_f32 v{vT+15}, s{sT+2}, s{sT+2}")
    a(f"v_lshlrev_b32 v{vT+15}, 16, v{vT+15}")
    for i in range(4): a(f"v_mov_b32 v{LG+i}, 0")
    a("s_waitcnt lgkmcnt(0)")
    for i in range(4):
        a(f"ds_read_b128 {vr(VO+i*8,4)}, v{vAo} offset:{(6-2*i)*QP + 384}")
        a(f"ds_read_b32 v{VO+i*8+4}, v{vAo} offset:{(6-2*i)*QP + 384 + 16}")
    for i in range(4):
        a(f"ds_read_b128 {vr(VX+i*8,4)}, v{vAx} offset:{(6-2*i)*QP + 384}")
        a(f"ds_read_b32 v{VX+i*8+4}, v{vAx} offset:{(6-2*i)*QP + 384 + 16}")
    for d_ in range(9):
        for i in range(4):
            a(f"v_dot2_f32_bf16 v{LG+i}, v{QR+d_}, v{KR+i*12+d_}, v{LG+i}")
    a("s_nop 2")
    a(f"v_cvt_pk_bf16_f32 v{LG}, v{LG}, v{LG+1}")
    a(f"v_cvt_pk_bf16_f32 v{LG+2}, v{LG+2}, v{LG+3}")
    a(f"v_and_b32 v{LG+1}, 0xffff0000, v{LG}")
    a(f"v_lshlrev_b32 v{LG}, 16, v{LG}")
    a(f"v_and_b32 v{LG+3}, 0xffff0000, v{LG+2}")
    a(f"v_lshlrev_b32 v{LG+2}, 16, v{LG+2}")
    for i in range(4): a(f"v_mul_f32 v{LG+i}, s{sT+1}, v{LG+i}")
    a(f"v_cvt_pk_bf16_f32 v{LG}, v{LG}, v{LG+1}")
    a(f"v_cvt_pk_bf16_f32 v{LG+2}, v{LG+2}, v{LG+3}")
    a(f"v_and_b32 v{LG+1}, 0xffff0000, v{LG}")
    a(f"v_lshlrev_b32 v{LG}, 16, v{LG}")
    a(f"v_and_b32 v{LG+3}, 0xffff0000, v{LG+2}")
    a(f"v_lshlrev_b32 v{LG+2}, 16, v{LG+2}")
    for i in range(4):
        a(f"v_cmp_le_i32 vcc, {2*i}, v{vT+14}")
        a("s_nop 1")
        a(f"v_cndmask_b32 v{LG+i}, v{vT+15}, v{LG+i}, vcc")
    a("s_nop 1")
    for i in range(4):
        a(f"v_mov_b32_dpp v{LX+i}, v{LG+i} quad_perm:[1,0,3,2] row_mask:0xf bank_mask:0xf")
    M_, SUM = vT+13, vT+14
    a(f"v_max3_f32 v{M_}, v{LG}, v{LG+1}, v{LG+2}")
    a(f"v_max3_f32 v{M_}, v{M_}, v{LG+3}, v{LX}")
    a(f"v_max3_f32 v{M_}, v{M_}, v{LX+1}, v{LX+2}")
    a(f"v_max_f32 v{M_}, v{M_}, v{LX+3}")
    a(f"s_mov_b32 s{sT+3}, {f32(math.log2(math.e))}")
    for w in range(8):
        a(f"v_sub_f32 v{LG+w}, v{LG+w}, v{M_}")
    for w in range(8):
        a(f"v_mul_f32 v{LG+w}, s{sT+3}, v{LG+w}")
    for w in range(8):
        a(f"v_exp_f32 v{LG+w}, v{LG+w}")
    a("s_nop 0")
    a(f"v_add_f32 v{SUM}, v{LG}, v{LX}")
    a(f"v_add_f32 v{M_}, v{LG+1}, v{LX+1}")
    a(f"v_add_f32 v{vT+15}, v{LG+2}, v{LX+2}")
    a(f"v_add_f32 v{vT+16}, v{LG+3}, v{LX+3}")
    a(f"v_add_f32 v{SUM}, v{SUM}, v{M_}")
    a(f"v_add_f32 v{vT+15}, v{vT+15}, v{vT+16}")
    a(f"v_add_f32 v{SUM}, v{SUM}, v{vT+15}")
    a(f"v_rcp_f32 v{SUM}, v{SUM}")
    a("s_nop 0")
    for w in range(8):
        a(f"v_mul_f32 v{LG+w}, v{LG+w}, v{SUM}")
    for wp in range(4):
        a(f"v_cvt_pk_bf16_f32 v{LG+wp}, v{LG+2*wp}, v{LG+2*wp+1}")
    if "astamp" in OPT: stamp(a, 3)
    a(f"s_mov_b32 s{sT+4}, 0x05040100")
    a(f"s_mov_b32 s{sT+5}, 0x07060302")
    a("s_waitcnt lgkmcnt(0)")
    for wp in range(4):
        base = (VO if wp < 2 else VX) + (wp % 2) * 16
        for d_ in range(5):
            x0 = base + d_; x1 = base + 8 + d_
            t = vT + 13 + (d_ % 2) * 2
            a(f"v_perm_b32 v{t}, v{x1}, v{x0}, s{sT+4}")
            a(f"v_perm_b32 v{t+1}, v{x1}, v{x0}, s{sT+5}")
            a(f"v_dot2_f32_bf16 v{OA+2*d_}, v{t}, v{LG+wp}, " + ("0" if wp == 0 else f"v{OA+2*d_}"))
            a(f"v_dot2_f32_bf16 v{OA+2*d_+1}, v{t+1}, v{LG+wp}, " + ("0" if wp == 0 else f"v{OA+2*d_+1}"))
    a("s_nop 2")
    for d_ in range(5):
        a(f"v_cvt_pk_bf16_f32 v{QR+d_}, v{OA+2*d_}, v{OA+2*d_+1}")
    OB = 65536; OP = 160
    a(f"v_lshrrev_b32 v{vT+13}, 3, v3")
    a(f"v_mul_u32_u24 v{vT+13}, {OP}, v{vT+13}")
    a(f"v_mad_u32_u24 v{vT+13}, v{vHd}, 36, v{vT+13}")
    a(f"v_lshl_add_u32 v{vT+13}, v{vHf}, 4, v{vT+13}")
    a(f"v_add_u32 v{vT+13}, {OB}, v{vT+13}")
    a(f"ds_write2_b32 v{vT+13}, v{QR}, v{QR+1} offset0:0 offset1:1")
    a(f"ds_write2_b32 v{vT+13}, v{QR+2}, v{QR+3} offset0:2 offset1:3")
    a(f"ds_write_b32 v{vT+13}, v{QR+4} offset:16")
    a(f"s_lshl_b32 s{sT}, s{sWave}, 2")
    a(f"v_lshrrev_b32 v{vT+14}, 4, v0")
    a(f"v_add_u32 v{vT+14}, s{sT}, v{vT+14}")
    a(f"s_mul_i32 s{sT+1}, s{sHg}, 9")
    a(f"s_lshl_b32 s{sT+2}, s{sRb}, 2")
    a(f"s_mul_i32 s{sT+2}, s{sT+2}, 18432")
    def piece_addr(vp, vl, vg):
        a(f"v_mul_u32_u24 v{vT+15}, 7282, v{vp}")
        a(f"v_lshrrev_b32 v{vT+15}, 16, v{vT+15}")
        a(f"v_mul_u32_u24 v{vT+16}, 9, v{vT+15}")
        a(f"v_sub_u32 v{vT+16}, v{vp}, v{vT+16}")
        a(f"v_and_b32 v{vT+17}, 15, v0")
        a(f"v_lshl_add_u32 v{vl}, v{vT+15}, 4, v{vT+17}")
        a(f"v_mul_u32_u24 v{vl}, {OP}, v{vl}")
        a(f"v_lshl_add_u32 v{vl}, v{vT+16}, 4, v{vl}")
        a(f"v_add_u32 v{vl}, {OB}, v{vl}")
        a(f"v_add_u32 v{vT+16}, s{sT+1}, v{vT+16}")
        a(f"v_mul_u32_u24 v{vg}, 18432, v{vT+15}")
        a(f"v_lshl_add_u32 v{vg}, v{vT+16}, 8, v{vg}")
        a(f"v_lshl_add_u32 v{vg}, v{vT+17}, 4, v{vg}")
    piece_addr(vT+14, vT+4, vT+5)
    a(f"v_add_u32 v{vT+14}, 32, v{vT+14}")
    piece_addr(vT+14, vT+6, vT+7)
    a("s_waitcnt lgkmcnt(0)")
    a("s_barrier")
    a(f"ds_read_b128 {vr(QR,4)}, v{vT+4}")
    a(f"ds_read_b128 {vr(QR+4,4)}, v{vT+6}")
    a("s_waitcnt lgkmcnt(1)")
    a(f"buffer_store_dwordx4 {vr(QR,4)}, v{vT+5}, {sr(sO,4)}, s{sT+2} offen")
    a(f"s_cmp_lg_u32 s{sWave}, 0")
    a(f"s_cbranch_scc1 L_{name}_nost2")
    a("s_waitcnt lgkmcnt(0)")
    a(f"buffer_store_dwordx4 {vr(QR+4,4)}, v{vT+7}, {sr(sO,4)}, s{sT+2} offen")
    a.lab(f"L_{name}_nost2")
    if "astamp" in OPT: stamp(a, 4)
    if "stamp" in OPT: a("s_waitcnt vmcnt(0)")
    stamp(a, 6, True)
    stamp_dump(a, 7, 8, sWave, vT+8, 3)
    a.lab(f"L_{name}_done")
    a("s_endpgm")
    return a.text(), kernel_desc(name, NV, 96), f"; @launch kernel={name} grid=(256,1,1) block=(512,1,1) lds={WB + NST*STG}"

GENS = {"k45": gen_k45, "k2v2": gen_k2v2, "k1v3": gen_k1v3, "k1": gen_k1, "k2": gen_k2, "k3": gen_k3, "k4": gen_k4, "k5": gen_k5, "k3v2": gen_k3v2, "k3m": gen_k3m, "k4v2": gen_k4v2}


def build(which):
    heads, texts, descs = [], [], []
    for w in which:
        t, d, h = GENS[w]()
        heads.append(h); texts.append(t); descs.append(d)
    out = "; generated by dev/gen.py\n" + "\n".join(heads) + "\n"
    out += '.amdgcn_target "amdgcn-amd-amdhsa--gfx950"\n.text\n'
    out += "\n".join(texts)
    out += '.section .rodata,"a"\n'
    for d in descs:
        out += ".p2align 6\n" + d
    return out

if __name__ == "__main__":
    which = sys.argv[2].split(",")
    open(sys.argv[1], "w").write(build(which))
```

```python
import sys, struct, math, os
OPT = set(os.environ.get("GENOPT", "").split(","))

KN = "sequential_preLN__sliding_local_dilated__geglu_ffn__prompt"

O_OFF  = 0
O_SZ   = 2048*576*2
H1_OFF = O_OFF + O_SZ
H1_SZ  = 2048*576*2
ST_OFF = H1_OFF + H1_SZ
ST_SZ  = 2048*6*8
HH_OFF = ST_OFF + ST_SZ
HH_SZ  = 2048*4608*2
P_OFF  = HH_OFF + HH_SZ
P_SZ   = 4*2048*576*4

def f32(x):
    return struct.unpack("<I", struct.pack("<f", x))[0]

class A:
    def __init__(self):
        self.l = []
    def __call__(self, s):
        if "nomfma" in OPT and s.startswith("v_mfma"): return
        if s.startswith("buffer_store_dwordx4") and "s[80:83]" not in s:
            pol = getattr(self, "stpol", "")
            if pol: s += " " + pol
        if "nods" in OPT and s.startswith("ds_read_b64_tr"): return
        if "now" in OPT and s.startswith("buffer_load_dwordx4") and s.endswith("lds"): return
        if "nox" in OPT and s.startswith("buffer_load_dwordx4 v[") and "s[16:19]" in s: return
        self.l.append("    " + s)
    def lab(self, s):
        self.l.append(s + ":")
    def c(self, s):
        self.l.append("    ; " + s)
    def text(self):
        return "\n".join(self.l) + "\n"

def vr(b, n=1):
    return f"v{b}" if n == 1 else f"v[{b}:{b+n-1}]"
def sr(b, n=1):
    return f"s{b}" if n == 1 else f"s[{b}:{b+n-1}]"

def kernel_head(a, name):
    a.l.append(f".globl {name}")
    a.l.append(".p2align 8")
    a.l.append(f".type {name},@function")
    a.lab(name)

def kernel_desc(name, vgpr, sgpr=96, accum=None):
    if accum is None:
        accum = (vgpr + 3) // 4 * 4
    return f""".amdhsa_kernel {name}
  .amdhsa_next_free_vgpr {vgpr}
  .amdhsa_next_free_sgpr {sgpr}
  .amdhsa_accum_offset {accum}
  .amdhsa_group_segment_fixed_size 0
  .amdhsa_kernarg_size 80
  .amdhsa_user_sgpr_count 2
  .amdhsa_user_sgpr_kernarg_segment_ptr 1
  .amdhsa_system_sgpr_workgroup_id_x 1
.end_amdhsa_kernel
"""

def srd(a, d, base, size, off=0):
    if off:
        a(f"s_add_u32 s{d}, s{base}, {off}")
        a(f"s_addc_u32 s{d+1}, s{base+1}, 0")
    else:
        a(f"s_mov_b32 s{d}, s{base}")
        a(f"s_mov_b32 s{d+1}, s{base+1}")
    a(f"s_and_b32 s{d+1}, s{d+1}, 0xffff")
    a(f"s_mov_b32 s{d+2}, {size}")
    a(f"s_mov_b32 s{d+3}, 0x00020000")

def round_bf16(a, d, s, tmp=None):
    a(f"v_cvt_pk_bf16_f32 v{d}, v{s}, v{s}")
    a(f"v_lshlrev_b32 v{d}, 16, v{d}")

GELU_A = -2.0 * math.log2(math.e) * math.sqrt(2.0 / math.pi)
GELU_B = GELU_A * 0.044715

import os
OPT = set(os.environ.get("GENOPT", "").split(","))
def stamp(a, i, real=False):
    if "stamp" in OPT:
        a(f"s_mem{'real' if real else ''}time s[{60+2*i}:{61+2*i}]")
def stamp_dump(a, n, sWs, sWave, tmpv, region=0):
    if "stamp" in OPT:
        a("s_waitcnt lgkmcnt(0)")
        a("s_mov_b64 exec, -1")
        srd(a, 80, sWs, 1<<20, (200+region)<<20)
        a(f"s_lshl_b32 s84, s2, 4")
        a(f"s_add_u32 s84, s84, s{sWave}")
        a(f"s_lshl_b32 s84, s84, 6")
        a(f"v_mov_b32 v{tmpv}, s84")
        for i in range(n):
            a(f"v_mov_b32 v{tmpv+2}, s{60+2*i}")
            a(f"v_mov_b32 v{tmpv+3}, s{61+2*i}")
            a(f"buffer_store_dwordx2 v[{tmpv+2}:{tmpv+3}], v{tmpv}, s[80:83], 0 offen offset:{8*i}")
            a("s_nop 1")
def gen_k3(name="k3_kernel"):
    a = A()
    kernel_head(a, name)
    NST = 6
    STG = 18432
    RING = 6
    ACC = 0
    XS = 144
    WR = 192
    vWa = 216
    vWb = 217
    vD0, vD1, vD2 = 218, 219, 220
    vX0, vX1 = 221, 222
    vM0, vR0, vM1, vR1 = 223, 224, 225, 226
    vT = 228
    vLane = 244
    NV = 246
    def acc(nt, mat, mt):
        return ACC + ((nt * 2 + mat) * 2 + mt) * 4
    sW, sX, sST, sH = 12, 16, 20, 24
    sWave, sFb, sMb = 28, 29, 30
    sWoff, sXoff, sIt = 31, 32, 33
    sM0b = 34
    sT = 36
    sA_, sB_ = 48, 49
    sExec = 50
    sHb = 52

    a("s_cmp_ge_u32 s2, 256")
    a(f"s_cbranch_scc1 L_{name}_done")
    stamp(a, 0)
    stamp(a, 5, True)
    a("s_load_dwordx4 s[4:7], s[0:1], 32")
    a("s_load_dwordx2 s[8:9], s[0:1], 72")
    a("v_lshrrev_b32 v1, 6, v0")
    a("v_and_b32 v0, 63, v0")
    a("s_nop 0")
    a(f"v_readfirstlane_b32 s{sWave}, v1")
    a(f"s_and_b32 s{sT}, s2, 7")
    a(f"s_lshr_b32 s{sT+1}, s2, 3")
    a(f"s_and_b32 s{sFb}, s{sT+1}, 3")
    a(f"s_lshl_b32 s{sT}, s{sT}, 2")
    a(f"s_add_u32 s{sFb}, s{sFb}, s{sT}")
    a(f"s_lshr_b32 s{sMb}, s{sT+1}, 2")
    a("s_waitcnt lgkmcnt(0)")
    a(f"s_cmp_ge_u32 s{sWave}, 4")
    a(f"s_cselect_b32 s{sT}, s6, s4")
    a(f"s_cselect_b32 s{sT+1}, s7, s5")
    srd(a, sW, sT, 576*4608*2)
    srd(a, sX, 8, H1_SZ, H1_OFF)
    srd(a, sST, 8, ST_SZ, ST_OFF)
    srd(a, sH, 8, HH_SZ, HH_OFF)
    a(f"v_and_b32 v{vT}, 15, v0")
    a(f"s_lshl_b32 s{sT}, s{sMb}, 8")
    a(f"s_lshl_b32 s{sT+1}, s{sWave}, 5")
    a(f"s_add_u32 s{sT}, s{sT}, s{sT+1}")
    a(f"v_add_u32 v{vT}, s{sT}, v{vT}")
    a(f"v_mul_u32_u24 v{vT}, 48, v{vT}")
    for mt in range(2):
        for q in range(3):
            a(f"buffer_load_dwordx4 {vr(WR+mt*12+q*4,4)}, v{vT}, {sr(sST,4)}, 0 offen offset:{mt*768+q*16}")
    for t, vd in enumerate((vD0, vD1, vD2)):
        a(f"v_add_u32 v{vT+1}, {t*64}, v0")
        a(f"v_mul_u32_u24 v{vT+2}, 3641, v{vT+1}")
        a(f"v_lshrrev_b32 v{vT+2}, 16, v{vT+2}")
        a(f"v_mul_u32_u24 v{vT+3}, 18, v{vT+2}")
        a(f"v_sub_u32 v{vT+3}, v{vT+1}, v{vT+3}")
        a(f"v_mul_u32_u24 v{vT+2}, 9216, v{vT+2}")
        a(f"v_lshl_add_u32 v{vd}, v{vT+3}, 4, v{vT+2}")
    a(f"s_and_b32 s{sT}, s{sWave}, 3")
    a(f"s_mul_i32 s{sT+1}, s{sT}, {8*9216}")
    a(f"s_mul_i32 s{sT+2}, s{sFb}, 288")
    a(f"s_add_u32 s{sT+1}, s{sT+1}, s{sT+2}")
    for vd in (vD0, vD1, vD2):
        a(f"v_add_u32 v{vd}, s{sT+1}, v{vd}")
    a(f"s_mul_i32 s{sM0b}, s{sWave}, 2304")
    a(f"s_lshl_b32 s{sT}, s{sMb}, 4")
    a(f"s_lshl_b32 s{sT+1}, s{sWave}, 1")
    a(f"s_add_u32 s{sT}, s{sT}, s{sT+1}")
    a(f"s_mul_i32 s{sT+1}, s{sT}, 18432")
    a(f"v_lshlrev_b32 v{vX0}, 4, v0")
    a(f"v_add_u32 v{vX0}, s{sT+1}, v{vX0}")
    a(f"v_add_u32 v{vX1}, 18432, v{vX0}")
    a(f"s_mul_i32 s{sHb}, s{sT}, 144")
    a(f"s_lshr_b32 s{sT+1}, s{sFb}, 1")
    a(f"s_mul_i32 s{sT+1}, s{sT+1}, 9")
    a(f"s_add_u32 s{sHb}, s{sHb}, s{sT+1}")
    a(f"s_lshl_b32 s{sHb}, s{sHb}, 10")
    a(f"v_lshrrev_b32 v{vT+1}, 2, v0")
    a(f"v_mul_u32_u24 v{vT+1}, 288, v{vT+1}")
    a(f"v_and_b32 v{vT+2}, 3, v0")
    a(f"v_lshl_add_u32 v{vWa}, v{vT+2}, 3, v{vT+1}")
    a(f"v_add_u32 v{vWb}, {3*STG}, v{vWa}")
    sRot, sCnt = 54, 55
    if "rot" in OPT:
        a(f"s_mul_i32 s{sRot}, s{sMb}, 9")
        a(f"s_and_b32 s{sT}, s{sFb}, 3")
        a(f"s_mul_i32 s{sT}, s{sT}, 18")
        a(f"s_add_u32 s{sRot}, s{sRot}, s{sT}")
        a(f"s_lshr_b32 s{sRot}, s{sRot}, 2")
        a(f"s_sub_u32 s{sT}, s{sRot}, 18")
        a(f"s_cmp_ge_u32 s{sRot}, 18")
        a(f"s_cselect_b32 s{sRot}, s{sT}, s{sRot}")
    else:
        a(f"s_mov_b32 s{sRot}, 0")
    if "samew" in OPT:
        a(f"s_mov_b32 s{sRot}, 0")
    a(f"s_mov_b32 s{sCnt}, 0")
    a(f"s_mul_i32 s{sWoff}, s{sRot}, {32*9216}")
    a(f"s_lshl_b32 s{sXoff}, s{sRot}, 10")
    a(f"s_mov_b64 s[{sExec}:{sExec+1}], 0xffff")
    a(f"v_mov_b32 v{vLane}, v0")

    def load_groups(stage, xset):
        gs = []
        for t, vd in enumerate((vD0, vD1, vD2)):
            g = [f"s_add_u32 m0, s{sM0b}, {stage*STG + t*1024}"]
            if t == 2:
                g.append(f"s_mov_b64 exec, s[{sExec}:{sExec+1}]")
            else:
                g.append("s_nop 0")
            g.append(f"buffer_load_dwordx4 v{vd}, {sr(sW,4)}, s{sWoff} offen lds")
            if t == 2:
                g.append("s_mov_b64 exec, -1")
            gs.append(g)
        gs.append([f"buffer_load_dwordx4 {vr(XS+xset*8,4)}, v{vX0}, {sr(sX,4)}, s{sXoff} offen"])
        gs.append([f"buffer_load_dwordx4 {vr(XS+xset*8+4,4)}, v{vX1}, {sr(sX,4)}, s{sXoff} offen",
                   f"s_add_u32 s{sRot}, s{sRot}, 1",
                   f"s_cmp_eq_u32 s{sRot}, {4 if 'hot4' in OPT else 18}",
                   f"s_cselect_b32 s{sRot}, 0, s{sRot}",
                   f"s_add_u32 s{sCnt}, s{sCnt}, 1",
                   f"s_mul_i32 s{sWoff}, s{sRot}, {32*9216}",
                   f"s_lshl_b32 s{sXoff}, s{sRot}, 10",
                   f"s_cmp_ge_u32 s{sCnt}, 18",
                   f"s_cselect_b32 s{sWoff}, 0x7f000000, s{sWoff}",
                   f"s_cselect_b32 s{sXoff}, 0x7f000000, s{sXoff}"])
        return gs
    def issue_loads(stage, xset):
        for g in load_groups(stage, xset):
            for x in g: a(x)

    for s in range(5):
        issue_loads(s, s)
    a("s_waitcnt vmcnt(25)")
    for mt, (vM, vR) in enumerate(((vM0, vR0), (vM1, vR1))):
        b = WR + mt * 12
        a(f"v_add_f32 v{vT}, v{b}, v{b+2}")
        a(f"v_add_f32 v{vT+1}, v{b+4}, v{b+6}")
        a(f"v_add_f32 v{vT+2}, v{b+8}, v{b+10}")
        a(f"v_add_f32 v{vT}, v{vT}, v{vT+1}")
        a(f"v_add_f32 v{vT}, v{vT}, v{vT+2}")
        a(f"v_mul_f32 v{vT}, {f32(1.0/6.0)}, v{vT}")
        a(f"v_add_f32 v{vT+1}, v{b+1}, v{b+3}")
        a(f"v_add_f32 v{vT+2}, v{b+5}, v{b+7}")
        a(f"v_add_f32 v{vT+3}, v{b+9}, v{b+11}")
        a(f"v_add_f32 v{vT+1}, v{vT+1}, v{vT+2}")
        a(f"v_add_f32 v{vT+1}, v{vT+1}, v{vT+3}")
        a(f"v_mov_b32 v{vT+2}, 0")
        for t in range(6):
            a(f"v_sub_f32 v{vT+3}, v{b+2*t}, v{vT}")
            a(f"v_fmac_f32 v{vT+2}, v{vT+3}, v{vT+3}")
        a(f"v_fmac_f32 v{vT+1}, {f32(96.0)}, v{vT+2}")
        a(f"v_mul_f32 v{vT+1}, {f32(1.0/576.0)}, v{vT+1}")
        round_bf16(a, vM, vT)
        round_bf16(a, vT+1, vT+1)
        a(f"v_add_f32 v{vT+1}, {f32(1e-5)}, v{vT+1}")
        round_bf16(a, vT+1, vT+1)
        a(f"v_sqrt_f32 v{vT+1}, v{vT+1}")
        a("s_nop 0")
        round_bf16(a, vT+1, vT+1)
        a(f"v_rcp_f32 v{vR}, v{vT+1}")
    for i in range(0, 144, 2):
        a(f"v_mov_b64 {vr(ACC+i,2)}, 0")

    def norm_ops(xset):
        ops = []
        for mt, (vM, vR) in enumerate(((vM0, vR0), (vM1, vR1))):
            for d in range(4):
                x = XS + xset * 8 + mt * 4 + d
                t0 = vT + (d % 2) * 2
                t1 = t0 + 1
                ops.append(f"v_lshlrev_b32 v{t0}, 16, v{x}")
                ops.append(f"v_and_b32 v{t1}, 0xffff0000, v{x}")
                if "fastnorm" in OPT:
                    ops.append(f"v_sub_f32 v{t0}, v{t0}, v{vM}")
                    ops.append(f"v_sub_f32 v{t1}, v{t1}, v{vM}")
                    ops.append(f"v_cvt_pk_bf16_f32 v{x}, v{t0}, v{t1}")
                    continue
                ops.append(f"v_sub_f32 v{t0}, v{t0}, v{vM}")
                ops.append(f"v_sub_f32 v{t1}, v{t1}, v{vM}")
                ops.append(f"v_cvt_pk_bf16_f32 v{t0}, v{t0}, v{t1}")
                ops.append(f"v_and_b32 v{t1}, 0xffff0000, v{t0}")
                ops.append(f"v_lshlrev_b32 v{t0}, 16, v{t0}")
                ops.append(f"v_mul_f32 v{t0}, v{t0}, v{vR}")
                ops.append(f"v_mul_f32 v{t1}, v{t1}, v{vR}")
                ops.append(f"v_cvt_pk_bf16_f32 v{x}, v{t0}, v{t1}")
        return ops

    def wread(fidx_global):
        st = (fidx_global // 18) % NST
        f = fidx_global % 18
        nt, mat = f // 2, f % 2
        slot = fidx_global % RING
        base = vWa if st < 3 else vWb
        off = (st % 3) * STG + mat * 9216 + nt * 32
        a(f"ds_read_b64_tr_b16 {vr(WR+slot*4,2)}, v{base} offset:{off}")
        a(f"ds_read_b64_tr_b16 {vr(WR+slot*4+2,2)}, v{base} offset:{off+4608}")

    PF = RING - 1
    a("s_waitcnt vmcnt(15)")
    for op in norm_ops(0):
        a(op)
    a("s_barrier")
    for f in range(PF):
        wread(f)
    stamp(a, 1)
    a(f"s_mov_b32 s{sIt}, 0")
    a(".p2align 6")
    a.lab(f"L_{name}_loop")
    for ph in range(NST):
        lg = load_groups((ph + 5) % NST, (ph + 5) % NST)
        spread = "spread" in OPT
        if not spread:
            issue_loads((ph + 5) % NST, (ph + 5) % NST)
        nops = norm_ops((ph + 1) % NST)
        if "nonorm" in OPT: nops = []
        ni = 0
        for f in range(18):
            g = ph * 18 + f
            nt, mat = f // 2, f % 2
            slot = g % RING
            wread(g + PF)
            a(f"s_waitcnt lgkmcnt({2*PF})")
            a(f"v_mfma_f32_16x16x32_bf16 {vr(acc(nt,mat,0),4)}, {vr(WR+slot*4,4)}, {vr(XS+ph*8,4)}, {vr(acc(nt,mat,0),4)}")
            a(f"v_mfma_f32_16x16x32_bf16 {vr(acc(nt,mat,1),4)}, {vr(WR+slot*4,4)}, {vr(XS+ph*8+4,4)}, {vr(acc(nt,mat,1),4)}")
            if f == 1:
                a("s_waitcnt vmcnt(%d)" % (15 if spread else 20))
            if spread and f % 3 == 2 and f // 3 < 5:
                for x in lg[f // 3]: a(x)
            if f >= 1:
                for _ in range(5):
                    if ni < len(nops):
                        a(nops[ni]); ni += 1
        assert ni == len(nops)
        a("s_waitcnt vmcnt(17)")
        a("s_barrier")
    a(f"s_add_u32 s{sIt}, s{sIt}, 1")
    a(f"s_cmp_lt_u32 s{sIt}, 3")
    a(f"s_cbranch_scc1 L_{name}_loop")
    stamp(a, 2)
    a("s_waitcnt vmcnt(0) lgkmcnt(0)")
    a(f"s_mov_b32 s{sA_}, {f32(GELU_A)}")
    a(f"s_mov_b32 s{sB_}, {f32(GELU_B)}")
    a(f"v_lshlrev_b32 v{vX0}, 4, v{vLane}")
    a(f"s_and_b32 s{sT}, s{sFb}, 1")
    a(f"s_lshl_b32 s{sT+1}, s{sT}, 12")
    a(f"s_add_u32 s{sT+1}, s{sT+1}, s{sHb}")
    a(f"s_lshl_b32 s{sT+2}, s{sT}, 3")
    a(f"s_add_u32 s{sT+2}, s{sT+2}, s{sHb}")
    a(f"s_add_u32 s{sT+2}, s{sT+2}, {8*1024}")
    a(f"s_add_u32 s{sT+3}, s{sT+1}, {144*1024}")
    a(f"s_add_u32 s{sT+4}, s{sT+2}, {144*1024}")
    OUT = XS
    def gelu_tile(nt, mt, dst):
        g = acc(nt, 0, mt); u = acc(nt, 1, mt)
        T = WR
        for h in range(2):
            g0, g1, u0, u1 = g+2*h, g+2*h+1, u+2*h, u+2*h+1
            x0, x1, y0, y1, t0, t1 = T+h*8, T+h*8+1, T+h*8+2, T+h*8+3, T+h*8+4, T+h*8+5
            if "relax" in OPT:
                x0, x1, y0, y1 = g0, g1, u0, u1
            else:
                a(f"v_cvt_pk_bf16_f32 v{x0}, v{g0}, v{g1}")
                a(f"v_cvt_pk_bf16_f32 v{y0}, v{u0}, v{u1}")
                a(f"v_and_b32 v{x1}, 0xffff0000, v{x0}")
                a(f"v_lshlrev_b32 v{x0}, 16, v{x0}")
                a(f"v_and_b32 v{y1}, 0xffff0000, v{y0}")
                a(f"v_lshlrev_b32 v{y0}, 16, v{y0}")
            a(f"v_mul_f32 v{t0}, v{x0}, v{x0}")
            a(f"v_mul_f32 v{t1}, v{x1}, v{x1}")
            a(f"v_fma_f32 v{t0}, v{t0}, s{sB_}, v{vT}")
            a(f"v_fma_f32 v{t1}, v{t1}, s{sB_}, v{vT}")
            a(f"v_mul_f32 v{t0}, v{t0}, v{x0}")
            a(f"v_mul_f32 v{t1}, v{t1}, v{x1}")
            a(f"v_exp_f32 v{t0}, v{t0}")
            a(f"v_exp_f32 v{t1}, v{t1}")
            a("s_nop 0")
            a(f"v_add_f32 v{t0}, 1.0, v{t0}")
            a(f"v_add_f32 v{t1}, 1.0, v{t1}")
            a(f"v_rcp_f32 v{t0}, v{t0}")
            a(f"v_rcp_f32 v{t1}, v{t1}")
            a("s_nop 0")
            a(f"v_mul_f32 v{t0}, v{t0}, v{x0}")
            a(f"v_mul_f32 v{t1}, v{t1}, v{x1}")
            if "relax" not in OPT:
                a(f"v_cvt_pk_bf16_f32 v{t0}, v{t0}, v{t1}")
                a(f"v_and_b32 v{t1}, 0xffff0000, v{t0}")
                a(f"v_lshlrev_b32 v{t0}, 16, v{t0}")
            a(f"v_mul_f32 v{t0}, v{t0}, v{y0}")
            a(f"v_mul_f32 v{t1}, v{t1}, v{y1}")
            a(f"v_cvt_pk_bf16_f32 v{dst+h}, v{t0}, v{t1}")
    a(f"v_mov_b32 v{vT}, s{sA_}")
    a("s_nop 7")
    k = 0
    for mt in range(2):
        for p in range(4):
            o = OUT + (k % 12) * 4; k += 1
            gelu_tile(2*p, mt, o)
            gelu_tile(2*p+1, mt, o+2)
            a(f"buffer_store_dwordx4 {vr(o,4)}, v{vX0}, {sr(sH,4)}, s{sT+1+2*mt} offen offset:{p*1024}")
        o = OUT + (k % 12) * 4; k += 1
        gelu_tile(8, mt, o)
        a(f"buffer_store_dwordx2 {vr(o,2)}, v{vX0}, {sr(sH,4)}, s{sT+2+2*mt} offen")
    stamp(a, 3)
    a("s_waitcnt vmcnt(0)")
    stamp(a, 4)
    stamp(a, 6, True)
    stamp_dump(a, 7, 8, sWave, vT)
    a.lab(f"L_{name}_done")
    a("s_endpgm")
    return a.text(), kernel_desc(name, NV), f"; @launch kernel={name} grid=(256,1,1) block=(512,1,1) lds={NST*STG}"


def lds_dump(a, nbytes, wg, tidv, tv, off_mb, nthreads=512, tag="d"):
    a(f"s_cmp_lg_u32 s2, {wg}")
    a(f"s_cbranch_scc1 L_dump_{tag}")
    srd(a, 80, 8, 1 << 20, off_mb << 20)
    a(f"v_lshlrev_b32 v{tv}, 4, v{tidv}")
    for i in range(0, nbytes, nthreads*16):
        a(f"v_add_u32 v{tv+1}, {i}, v{tv}")
        a(f"ds_read_b128 v[{tv+2}:{tv+5}], v{tv+1}")
        a("s_waitcnt lgkmcnt(0)")
        a(f"buffer_store_dwordx4 v[{tv+2}:{tv+5}], v{tv+1}, s[80:83], 0 offen")
        a("s_waitcnt vmcnt(0)")
    a.lab(f"L_dump_{tag}")
    a("s_barrier")

class VM:
    def __init__(self, a):
        self.a = a; self.ops = []
    def op(self, tag, text):
        if "noload" in OPT and tag[0] in ("W", "X") and tag[1] >= 2 and getattr(self.a, "k3", False): return
        self.a(text); self.ops.append(tag)
    def wait(self, tagpred, extra=""):
        last = -1
        for i, t in enumerate(self.ops):
            if tagpred(t): last = i
        n = len(self.ops) - 1 - last
        assert n <= 63
        if last >= 0:
            self.a(f"s_waitcnt vmcnt({n}){extra}")
            self.ops = self.ops[last+1:]

def gen_k4(name="k4_kernel"):
    a = A(); vm = VM(a)
    kernel_head(a, name)
    NST = 6; STG = 18432; RING = 6; PFD = 5
    ACC = 4
    XS = 76
    WR = 124
    vWa, vWb = 148, 149
    vD0, vD1, vD2 = 150, 151, 152
    vX0, vX1 = 153, 154
    vT = 156
    NV = 172
    def acc(nt, mt): return ACC + (nt*2+mt)*4
    sW, sX, sP = 12, 16, 20
    sWave, sKs, sMb, sNb = 28, 29, 30, 31
    sWb1, sWb2, sXb, sM0b = 32, 33, 34, 35
    sT = 36
    sExec = 50
    sWo = 52
    a("s_cmp_ge_u32 s2, 256")
    a(f"s_cbranch_scc1 L_{name}_done")
    stamp(a, 0); stamp(a, 5, True)
    a("s_load_dwordx2 s[4:5], s[0:1], 48")
    a("s_load_dwordx2 s[8:9], s[0:1], 72")
    a("v_lshrrev_b32 v1, 6, v0")
    a("v_and_b32 v0, 63, v0")
    a("s_nop 0")
    a(f"v_readfirstlane_b32 s{sWave}, v1")
    a(f"s_and_b32 s{sT}, s2, 7")
    a(f"s_lshr_b32 s{sT+1}, s2, 3")
    a(f"s_lshr_b32 s{sKs}, s{sT}, 1")
    a(f"s_and_b32 s{sNb}, s{sT+1}, 3")
    a(f"s_and_b32 s{sT}, s{sT}, 1")
    a(f"s_lshl_b32 s{sT}, s{sT}, 3")
    a(f"s_lshr_b32 s{sMb}, s{sT+1}, 2")
    a(f"s_add_u32 s{sMb}, s{sMb}, s{sT}")
    a("s_waitcnt lgkmcnt(0)")
    srd(a, sW, 4, 4608*576*2)
    srd(a, sX, 8, HH_SZ, HH_OFF)
    srd(a, sP, 8, P_SZ, P_OFF)
    for t, vd in enumerate((vD0, vD1, vD2)):
        a(f"v_add_u32 v{vT+1}, {t*64}, v0")
        a(f"v_mul_u32_u24 v{vT+2}, 3641, v{vT+1}")
        a(f"v_lshrrev_b32 v{vT+2}, 16, v{vT+2}")
        a(f"v_mul_u32_u24 v{vT+3}, 18, v{vT+2}")
        a(f"v_sub_u32 v{vT+3}, v{vT+1}, v{vT+3}")
        a(f"v_mul_u32_u24 v{vT+2}, 1152, v{vT+2}")
        a(f"v_lshl_add_u32 v{vd}, v{vT+3}, 4, v{vT+2}")
    a(f"s_lshr_b32 s{sT}, s{sWave}, 2")
    a(f"s_lshl_b32 s{sT+1}, s{sKs}, 1")
    a(f"s_add_u32 s{sT+1}, s{sT+1}, s{sT}")
    a(f"s_mul_i32 s{sWb1}, s{sT+1}, {576*1152}")
    a(f"s_and_b32 s{sT+2}, s{sWave}, 3")
    a(f"s_mul_i32 s{sT+3}, s{sT+2}, {8*1152}")
    a(f"s_add_u32 s{sWb1}, s{sWb1}, s{sT+3}")
    a(f"s_mul_i32 s{sT+3}, s{sNb}, 288")
    a(f"s_add_u32 s{sWb1}, s{sWb1}, s{sT+3}")
    a(f"s_cmp_ge_u32 s{sT+2}, 2")
    a(f"s_cselect_b32 s{sT+3}, {128*1152}, 0")
    a(f"s_add_u32 s{sWb2}, s{sWb1}, s{sT+3}")
    a(f"s_mul_i32 s{sM0b}, s{sWave}, 2304")
    a(f"s_lshl_b32 s{sXb}, s{sMb}, 3")
    a(f"s_lshl_b32 s{sT+3}, s{sT+2}, 1")
    a(f"s_add_u32 s{sXb}, s{sXb}, s{sT+3}")
    a(f"s_mov_b32 s{sT+4}, s{sXb}")
    a(f"s_mul_i32 s{sXb}, s{sXb}, 144")
    a(f"s_mul_i32 s{sT+3}, s{sT+1}, 18")
    a(f"s_add_u32 s{sXb}, s{sXb}, s{sT+3}")
    a(f"s_lshl_b32 s{sXb}, s{sXb}, 10")
    a(f"v_lshlrev_b32 v{vX0}, 4, v0")
    a(f"v_add_u32 v{vX0}, s{sXb}, v{vX0}")
    a(f"v_add_u32 v{vX1}, {144*1024}, v{vX0}")
    a(f"s_lshl_b32 s{sT+5}, s{sKs}, 7")
    a(f"s_add_u32 s{sT+5}, s{sT+5}, s{sT+4}")
    a(f"s_add_u32 s{sT+5}, s{sT+5}, s{sT}")
    a(f"s_mul_i32 s{sT+5}, s{sT+5}, 36")
    a(f"s_mul_i32 s{sT+6}, s{sNb}, 9")
    a(f"s_add_u32 s{sT+5}, s{sT+5}, s{sT+6}")
    a(f"s_lshl_b32 s{sT+5}, s{sT+5}, 10")
    a(f"v_lshrrev_b32 v{vT+1}, 2, v0")
    a(f"v_mul_u32_u24 v{vT+1}, 288, v{vT+1}")
    a(f"v_and_b32 v{vT+2}, 3, v0")
    a(f"v_lshl_add_u32 v{vWa}, v{vT+2}, 3, v{vT+1}")
    a(f"s_mul_i32 s{sT+6}, s{sT}, 9216")
    a(f"v_add_u32 v{vWa}, s{sT+6}, v{vWa}")
    a(f"v_add_u32 v{vWb}, {3*STG}, v{vWa}")
    a(f"s_mov_b64 s[{sExec}:{sExec+1}], 0xffff")

    def fa_rel(i):
        q, ii = divmod(i, 9)
        if ii < 4: return 288*q + 32*ii
        if ii < 8: return 288*q + 144 + 32*(ii-4)
        return 288*q + 128
    def load_groups(i):
        if i >= 18: return []
        st = i % NST
        gs = []
        base = sWb2 if i % 9 == 8 else sWb1
        for t, vd in enumerate((vD0, vD1, vD2)):
            g = []
            if t == 0:
                g.append(("s", f"s_add_u32 s{sWo}, s{base}, {fa_rel(i)*1152}"))
            g.append(("s", f"s_add_u32 m0, s{sM0b}, {st*STG + t*1024}"))
            g.append(("s", f"s_mov_b64 exec, s[{sExec}:{sExec+1}]" if t == 2 else "s_nop 0"))
            g.append((("W", i), f"buffer_load_dwordx4 v{vd}, {sr(sW,4)}, s{sWo} offen lds"))
            if t == 2: g.append(("s", "s_mov_b64 exec, -1"))
            gs.append(g)
        xs = XS + (i % NST) * 8
        gs.append([("s", f"s_mov_b32 s{sWo+1}, {i*1024}"),
                   (("X", i), f"buffer_load_dwordx4 {vr(xs,4)}, v{vX0}, {sr(sX,4)}, s{sWo+1} offen")])
        gs.append([(("X", i), f"buffer_load_dwordx4 {vr(xs+4,4)}, v{vX1}, {sr(sX,4)}, s{sWo+1} offen")])
        return gs
    def emit_group(g):
        for tag, txt in g:
            if tag == "s": a(txt)
            else: vm.op(tag, txt)
    for i in range(PFD):
        for g in load_groups(i): emit_group(g)
    for i in range(0, 72, 2):
        a(f"v_mov_b64 {vr(ACC+i,2)}, 0")
    def wread(gidx):
        i, nt = divmod(gidx, 9)
        if i >= 18: return False
        st = i % NST; slot = gidx % RING
        base = vWa if st < 3 else vWb
        off = (st % 3) * STG + nt * 32
        a(f"ds_read_b64_tr_b16 {vr(WR+slot*4,2)}, v{base} offset:{off}")
        a(f"ds_read_b64_tr_b16 {vr(WR+slot*4+2,2)}, v{base} offset:{off+4608}")
        return True
    PF = RING - 1
    vm.wait(lambda t: t[1] <= 1)
    a("s_barrier")
    for f in range(PF): wread(f)
    stamp(a, 1)
    for i in range(18):
        lg = load_groups(i + PFD)
        vm.wait(lambda t: t[0] == "X" and t[1] <= i)
        for nt in range(9):
            g = i*9 + nt; slot = g % RING
            ok = wread(g + PF)
            rem = min(PF, 18*9 - 1 - g)
            a(f"s_waitcnt lgkmcnt({2*rem})")
            xs = XS + (i % NST) * 8
            a(f"v_mfma_f32_16x16x32_bf16 {vr(acc(nt,0),4)}, {vr(WR+slot*4,4)}, {vr(xs,4)}, {vr(acc(nt,0),4)}")
            a(f"v_mfma_f32_16x16x32_bf16 {vr(acc(nt,1),4)}, {vr(WR+slot*4,4)}, {vr(xs+4,4)}, {vr(acc(nt,1),4)}")
            if nt % 2 == 0 and nt // 2 < len(lg):
                emit_group(lg[nt // 2])
        vm.wait(lambda t: t[0] == "W" and t[1] <= i + 2)
        a("s_barrier")
    stamp(a, 2)
    a(f"s_lshr_b32 s{sT}, s{sWave}, 2")
    a(f"v_lshlrev_b32 v{vT}, 4, v0")
    a(f"s_mul_i32 s{sT+1}, s{sWave}, 9216")
    a(f"v_add_u32 v{vT+1}, s{sT+1}, v{vT}")
    a(f"s_xor_b32 s{sT+2}, s{sWave}, 4")
    a(f"s_mul_i32 s{sT+2}, s{sT+2}, 9216")
    a(f"v_add_u32 v{vT+2}, s{sT+2}, v{vT}")
    a(f"s_cmp_eq_u32 s{sT}, 0")
    a("s_nop 4")
    a(f"s_cbranch_scc0 L_{name}_kh1")
    for kh in range(2):
        if kh == 1: a.lab(f"L_{name}_kh1")
        for nt in range(9):
            a(f"ds_write_b128 v{vT+1}, {vr(acc(nt,1-kh),4)} offset:{nt*1024}")
        a("s_waitcnt lgkmcnt(0)")
        a("s_barrier")
        for nt in range(9):
            a(f"ds_read_b128 {vr(XS+nt*4,4)}, v{vT+2} offset:{nt*1024}")
        for nt in range(9):
            a(f"s_waitcnt lgkmcnt({8-nt})")
            for r in range(4):
                a(f"v_add_f32 v{XS+nt*4+r}, v{XS+nt*4+r}, v{acc(nt,kh)+r}")
            if nt < 4:
                a(f"buffer_store_dwordx4 {vr(XS+nt*4,4)}, v{vT}, {sr(sP,4)}, s{sT+5} offen offset:{nt*1024}")
            else:
                if nt in (4, 8): a(f"s_add_u32 s{sT+5}, s{sT+5}, 4096")
                a(f"buffer_store_dwordx4 {vr(XS+nt*4,4)}, v{vT}, {sr(sP,4)}, s{sT+5} offen offset:{(nt%4)*1024}")
        stamp(a, 3)
        if "stamp" in OPT: a("s_waitcnt vmcnt(0)")
        stamp(a, 4); stamp(a, 6, True)
        stamp_dump(a, 7, 8, sWave, vT+4, 1)
        a("s_endpgm")
    a.lab(f"L_{name}_done")
    a("s_endpgm")
    return a.text(), kernel_desc(name, NV), f"; @launch kernel={name} grid=(256,1,1) block=(512,1,1) lds={NST*STG}"

def gen_k5(name="k5_kernel"):
    a = A()
    kernel_head(a, name)
    sH, sP, sO = 12, 16, 20
    a("s_cmp_ge_u32 s2, 576")
    a(f"s_cbranch_scc1 L_{name}_done")
    a("s_load_dwordx2 s[4:5], s[0:1], 56")
    a("s_load_dwordx2 s[8:9], s[0:1], 72")
    a("v_lshrrev_b32 v1, 6, v0")
    a("v_and_b32 v0, 63, v0")
    a("s_nop 0")
    a("v_readfirstlane_b32 s28, v1")
    a("s_lshl_b32 s29, s2, 2")
    a("s_add_u32 s29, s29, s28")
    a("s_mul_i32 s30, s29, 3641")
    a("s_lshr_b32 s30, s30, 16")
    a("s_mul_i32 s31, s30, 18")
    a("s_sub_u32 s31, s29, s31")
    a("s_waitcnt lgkmcnt(0)")
    srd(a, sH, 8, H1_SZ, H1_OFF)
    srd(a, sP, 8, P_SZ, P_OFF)
    srd(a, sO, 4, 2048*576*2)
    a("v_lshlrev_b32 v1, 4, v0")
    a("s_lshl_b32 s32, s29, 10")
    a("s_lshl_b32 s33, s29, 11")
    a(f"buffer_load_dwordx4 v[4:7], v1, {sr(sH,4)}, s32 offen")
    for k in range(4):
        a(f"buffer_load_dwordx4 v[{8+k*8}:{11+k*8}], v1, {sr(sP,4)}, s33 offen")
        a(f"buffer_load_dwordx4 v[{12+k*8}:{15+k*8}], v1, {sr(sP,4)}, s33 offen offset:1024")
        if k < 3: a(f"s_add_u32 s33, s33, {128*36*1024}")
    a("v_and_b32 v2, 15, v0")
    a("s_lshl_b32 s34, s30, 4")
    a("v_add_u32 v2, s34, v2")
    a("v_mul_u32_u24 v2, 1152, v2")
    a("v_lshrrev_b32 v3, 4, v0")
    a("v_lshl_add_u32 v2, v3, 3, v2")
    a("s_lshl_b32 s34, s31, 6")
    a("s_waitcnt vmcnt(0)")
    for i in range(8):
        a(f"v_add_f32 v{8+i}, v{8+i}, v{16+i}")
        a(f"v_add_f32 v{24+i}, v{24+i}, v{32+i}")
    for i in range(8):
        a(f"v_add_f32 v{8+i}, v{8+i}, v{24+i}")
    for p in range(4):
        a(f"v_cvt_pk_bf16_f32 v{16+p}, v{8+2*p}, v{9+2*p}")
    for p in range(4):
        a(f"v_lshlrev_b32 v{24+2*p}, 16, v{16+p}")
        a(f"v_and_b32 v{25+2*p}, 0xffff0000, v{16+p}")
        a(f"v_lshlrev_b32 v{32+2*p}, 16, v{4+p}")
        a(f"v_and_b32 v{33+2*p}, 0xffff0000, v{4+p}")
    for i in range(8):
        a(f"v_add_f32 v{24+i}, v{24+i}, v{32+i}")
    for p in range(4):
        a(f"v_cvt_pk_bf16_f32 v{16+p}, v{24+2*p}, v{25+2*p}")
    a(f"buffer_store_dwordx2 v[16:17], v2, {sr(sO,4)}, s34 offen")
    a(f"buffer_store_dwordx2 v[18:19], v2, {sr(sO,4)}, s34 offen offset:32")
    a.lab(f"L_{name}_done")
    a("s_endpgm")
    return a.text(), kernel_desc(name, 40, 48), f"; @launch kernel={name} grid=(576,1,1) block=(256,1,1) lds=0"


def gen_k2(name="k2_kernel"):
    a = A(); vm = VM(a)
    kernel_head(a, name)
    PITCH = 224; BLK = 32*PITCH
    ACC = 4
    OF = 28
    XR = 100
    WR = 112
    vD = 160
    vWa, vWb = 167, 168
    vT = 170
    NV = 188
    sW, sO, sXs, sH, sST = 12, 16, 20, 24, 28
    sWave, sRb, sNb, sT = 32, 33, 34, 36
    a("s_cmp_ge_u32 s2, 192")
    a(f"s_cbranch_scc1 L_{name}_done")
    stamp(a, 0); stamp(a, 5, True)
    a("s_load_dwordx2 s[4:5], s[0:1], 0")
    a("s_load_dwordx2 s[6:7], s[0:1], 16")
    a("s_load_dwordx2 s[8:9], s[0:1], 72")
    a("v_lshrrev_b32 v1, 6, v0")
    a("v_and_b32 v0, 63, v0")
    a("s_nop 0")
    a(f"v_readfirstlane_b32 s{sWave}, v1")
    a(f"s_lshr_b32 s{sT+1}, s2, 3")
    a(f"s_mul_i32 s{sRb}, s{sT+1}, 10923")
    a(f"s_lshr_b32 s{sRb}, s{sRb}, 16")
    a(f"s_mul_i32 s{sT}, s{sRb}, 6")
    a(f"s_sub_u32 s{sNb}, s{sT+1}, s{sT}")
    a(f"s_and_b32 s{sT}, s2, 7")
    a(f"s_lshl_b32 s{sT}, s{sT}, 2")
    a(f"s_add_u32 s{sRb}, s{sRb}, s{sT}")
    a("s_waitcnt lgkmcnt(0)")
    srd(a, sW, 6, 576*576*2)
    srd(a, sO, 8, O_SZ, O_OFF)
    srd(a, sXs, 4, 2048*576*2)
    srd(a, sH, 8, H1_SZ, H1_OFF)
    srd(a, sST, 8, ST_SZ, ST_OFF)
    a(f"s_mul_i32 s{sT}, s{sNb}, 192")
    a(f"s_mov_b32 s{sT+1}, 0x40000000")
    for t in range(7):
        a(f"v_add_u32 v{vT}, {t*64}, v0")
        a(f"v_mul_u32_u24 v{vT+1}, 4682, v{vT}")
        a(f"v_lshrrev_b32 v{vT+1}, 16, v{vT+1}")
        a(f"v_mul_u32_u24 v{vT+2}, 14, v{vT+1}")
        a(f"v_sub_u32 v{vT+2}, v{vT}, v{vT+2}")
        a(f"v_and_b32 v{vT+3}, 4, v{vT+1}")
        a(f"v_lshlrev_b32 v{vT+3}, 1, v{vT+3}")
        a(f"v_and_b32 v{vT+4}, 8, v{vT+1}")
        a(f"v_lshrrev_b32 v{vT+4}, 1, v{vT+4}")
        a(f"v_and_b32 v{vT+1}, 0x13, v{vT+1}")
        a(f"v_or3_b32 v{vT+1}, v{vT+1}, v{vT+3}, v{vT+4}")
        a(f"v_mul_u32_u24 v{vT+1}, 1152, v{vT+1}")
        a(f"v_lshl_add_u32 v{vT+1}, v{vT+2}, 4, v{vT+1}")
        a(f"v_add_u32 v{vT+1}, s{sT}, v{vT+1}")
        a(f"v_cmp_gt_u32 vcc, 12, v{vT+2}")
        a(f"v_mov_b32 v{vT+3}, s{sT+1}")
        a("s_nop 0")
        a(f"v_cndmask_b32 v{vD+t}, v{vT+3}, v{vT+1}, vcc")
    a(f"s_lshl_b32 s{sT}, s{sRb}, 6")
    a(f"s_lshl_b32 s{sT+1}, s{sWave}, 4")
    a(f"s_add_u32 s{sT}, s{sT}, s{sT+1}")
    a(f"v_and_b32 v{vT}, 15, v0")
    a(f"v_add_u32 v{vT}, s{sT}, v{vT}")
    a(f"v_mul_u32_u24 v{vT+1}, 1152, v{vT}")
    a(f"v_lshrrev_b32 v{vT+2}, 4, v0")
    a(f"s_lshr_b32 s{sT+4}, s{sT}, 4")
    a(f"s_mul_i32 s{sT+4}, s{sT+4}, 18432")
    a(f"v_lshlrev_b32 v{vT+3}, 4, v0")
    a(f"v_add_u32 v{vT+3}, s{sT+4}, v{vT+3}")
    a(f"v_lshl_add_u32 v{vT+4}, v{vT+2}, 3, v{vT+1}")
    for q in range(1, 5): a(f"s_movk_i32 s{sT+4+q}, {q*4096}")
    def osoff(s_): return ("s%d" % (sT+4+s_//4)) if s_ >= 4 else "0"
    a(f"s_mul_i32 s{sT+1}, s{sNb}, 192")
    a(f"s_mul_i32 s{sT+2}, s{sWave}, {32*1152}")
    a(f"s_mul_i32 s{sT+3}, s{sWave}, {BLK}")
    def chunk_ops(c):
        gs = []
        if c > 4: return gs
        for t in range(7):
            g = [("s", f"s_add_u32 m0, s{sT+3}, {c*4*BLK + t*1024}"), ("s", "s_nop 0"),
                 (("W", c), f"buffer_load_dwordx4 v{vD+t}, {sr(sW,4)}, s{sT+2} offen lds")]
            if t == 6: g.append(("s", f"s_add_u32 s{sT+2}, s{sT+2}, {4*32*1152}"))
            gs.append(g)
        for s_ in range(4*c, min(4*c+4, 18)):
            gs.append([(("O", c), f"buffer_load_dwordx4 {vr(OF+s_*4,4)}, v{vT+3}, {sr(sO,4)}, {osoff(s_)} offen offset:{(s_%4)*1024}")])
        return gs
    def emit_group(g):
        for tg, txt in g:
            if tg == "s": a(txt)
            else: vm.op(tg, txt)
    for c in range(2):
        for g in chunk_ops(c): emit_group(g)
    a(f"v_lshrrev_b32 v{vT+5}, 5, v0")
    a(f"v_lshlrev_b32 v{vT+5}, 4, v{vT+5}")
    a(f"v_bfe_u32 v{vT+6}, v0, 2, 3")
    a(f"v_add_u32 v{vT+5}, v{vT+5}, v{vT+6}")
    a(f"v_mul_u32_u24 v{vT+5}, {PITCH}, v{vT+5}")
    a(f"v_and_b32 v{vT+6}, 3, v0")
    a(f"v_lshl_add_u32 v{vWa}, v{vT+6}, 3, v{vT+5}")
    a(f"v_add_u32 v{vWb}, {9*BLK}, v{vWa}")
    def wread(s_, buf):
        base = vWa if s_ < 9 else vWb
        for nt in range(6):
            off = (s_ % 9) * BLK + nt * 32
            a(f"ds_read_b64_tr_b16 {vr(WR+buf*24+nt*4,2)}, v{base} offset:{off}")
            a(f"ds_read_b64_tr_b16 {vr(WR+buf*24+nt*4+2,2)}, v{base} offset:{off+8*PITCH}")
    for c in range(5):
        vm.wait(lambda t: t[1] <= c)
        a("s_barrier")
        if c == 0: stamp(a, 1)
        lg = chunk_ops(c+2)
        if c == 2:
            for nt in range(6):
                lg.append([(("X", 9), f"buffer_load_dwordx2 {vr(XR+nt*2,2)}, v{vT+4}, {sr(sXs,4)}, s{sT+1} offen offset:{nt*32}")])
        gi = 0
        steps = list(range(4*c, min(4*c+4, 18)))
        wread(steps[0], steps[0] % 2)
        for s_ in steps:
            if s_ != steps[-1]:
                wread(s_+1, (s_+1) % 2)
                a("s_waitcnt lgkmcnt(12)")
            else:
                a("s_waitcnt lgkmcnt(0)")
            for nt in range(6):
                cc = vr(ACC+nt*4,4)
                a(f"v_mfma_f32_16x16x32_bf16 {cc}, {vr(WR+(s_%2)*24+nt*4,4)}, {vr(OF+s_*4,4)}, " + ("0" if s_ == 0 else cc))
                if gi < len(lg):
                    emit_group(lg[gi]); gi += 1
        assert gi == len(lg)
    a("s_waitcnt vmcnt(0)")
    a("s_nop 7")
    stamp(a, 2)
    HP = WR
    for nt in range(6):
        for p in range(2):
            c0 = ACC + nt*4 + 2*p
            a(f"v_cvt_pk_bf16_f32 v{vT}, v{c0}, v{c0+1}")
            a(f"v_lshlrev_b32 v{c0}, 16, v{vT}")
            a(f"v_and_b32 v{c0+1}, 0xffff0000, v{vT}")
            a(f"v_lshlrev_b32 v{vT+1}, 16, v{XR+nt*2+p}")
            a(f"v_and_b32 v{vT+2}, 0xffff0000, v{XR+nt*2+p}")
            a(f"v_add_f32 v{c0}, v{c0}, v{vT+1}")
            a(f"v_add_f32 v{c0+1}, v{c0+1}, v{vT+2}")
            a(f"v_cvt_pk_bf16_f32 v{HP+nt*2+p}, v{c0}, v{c0+1}")
            a(f"v_lshlrev_b32 v{c0}, 16, v{HP+nt*2+p}")
            a(f"v_and_b32 v{c0+1}, 0xffff0000, v{HP+nt*2+p}")
    a(f"s_lshl_b32 s{sT}, s{sRb}, 2")
    a(f"s_add_u32 s{sT}, s{sT}, s{sWave}")
    a(f"s_mul_i32 s{sT+1}, s{sT}, 18")
    a(f"s_mul_i32 s{sT+2}, s{sNb}, 3")
    a(f"s_add_u32 s{sT+1}, s{sT+1}, s{sT+2}")
    a(f"s_lshl_b32 s{sT+1}, s{sT+1}, 10")
    a(f"v_lshlrev_b32 v{vT}, 4, v0")
    for p in range(3):
        a(f"buffer_store_dwordx4 {vr(HP+p*4,4)}, v{vT}, {sr(sH,4)}, s{sT+1} offen offset:{p*1024}")
    def xreduce(v, t):
        a(f"v_xor_b32 v{t}, 16, v0")
        a(f"v_lshlrev_b32 v{t}, 2, v{t}")
        a(f"ds_bpermute_b32 v{t+1}, v{t}, v{v}")
        a("s_waitcnt lgkmcnt(0)")
        a(f"v_add_f32 v{v}, v{v}, v{t+1}")
        a(f"v_xor_b32 v{t}, 32, v0")
        a(f"v_lshlrev_b32 v{t}, 2, v{t}")
        a(f"ds_bpermute_b32 v{t+1}, v{t}, v{v}")
        a("s_waitcnt lgkmcnt(0)")
        a(f"v_add_f32 v{v}, v{v}, v{t+1}")
    S0, S1 = vT+4, vT+5
    a(f"v_add_f32 v{S0}, v{ACC}, v{ACC+1}")
    for i in range(2, 24):
        a(f"v_add_f32 v{S0}, v{S0}, v{ACC+i}")
    xreduce(S0, vT+6)
    a(f"v_mul_f32 v{S0}, {f32(1.0/96.0)}, v{S0}")
    a(f"v_mov_b32 v{S1}, 0")
    for i in range(24):
        a(f"v_sub_f32 v{vT+1}, v{ACC+i}, v{S0}")
        a(f"v_fmac_f32 v{S1}, v{vT+1}, v{vT+1}")
    xreduce(S1, vT+6)
    a(f"s_lshl_b32 s{sT}, s{sT}, 4")
    a(f"v_add_u32 v{vT}, s{sT}, v0")
    a(f"v_mul_u32_u24 v{vT}, 48, v{vT}")
    a(f"s_lshl_b32 s{sT+1}, s{sNb}, 3")
    a("s_mov_b64 exec, 0xffff")
    a(f"buffer_store_dwordx2 {vr(S0,2)}, v{vT}, {sr(sST,4)}, s{sT+1} offen")
    stamp(a, 3)
    if "stamp" in OPT: a("s_waitcnt vmcnt(0)")
    stamp(a, 4); stamp(a, 6, True)
    stamp_dump(a, 7, 8, sWave, vT+8, 2)
    a.lab(f"L_{name}_done")
    a("s_endpgm")
    return a.text(), kernel_desc(name, NV, 96), f"; @launch kernel={name} grid=(192,1,1) block=(256,1,1) lds={20*BLK}"

def gen_k2v2(name="k2_kernel"):
    a = A(); vm = VM(a)
    kernel_head(a, name)
    PITCH = 224; BLK = 32*PITCH
    ACC = 4
    OF = 28
    XR = 100
    WR = 112
    vD = 160
    vWa, vWb = 167, 168
    vT = 170
    NV = 188
    sW, sO, sXs, sH, sST = 12, 16, 20, 24, 28
    sWave, sRb, sNb, sT = 32, 33, 34, 36
    a("s_cmp_ge_u32 s2, 192")
    a(f"s_cbranch_scc1 L_{name}_done")
    stamp(a, 0); stamp(a, 5, True)
    a("s_load_dwordx2 s[4:5], s[0:1], 0")
    a("s_load_dwordx2 s[6:7], s[0:1], 16")
    a("s_load_dwordx2 s[8:9], s[0:1], 72")
    a("v_lshrrev_b32 v1, 6, v0")
    a("v_and_b32 v0, 63, v0")
    a("s_nop 0")
    a(f"v_readfirstlane_b32 s{sWave}, v1")
    a(f"s_lshr_b32 s35, s{sWave}, 2")
    a(f"s_and_b32 s{sWave}, s{sWave}, 3")
    a(f"s_lshr_b32 s{sT+1}, s2, 3")
    a(f"s_mul_i32 s{sRb}, s{sT+1}, 10923")
    a(f"s_lshr_b32 s{sRb}, s{sRb}, 16")
    a(f"s_mul_i32 s{sT}, s{sRb}, 6")
    a(f"s_sub_u32 s{sNb}, s{sT+1}, s{sT}")
    a(f"s_and_b32 s{sT}, s2, 7")
    a(f"s_lshl_b32 s{sT}, s{sT}, 2")
    a(f"s_add_u32 s{sRb}, s{sRb}, s{sT}")
    a("s_waitcnt lgkmcnt(0)")
    srd(a, sW, 6, 576*576*2)
    srd(a, sO, 8, O_SZ, O_OFF)
    srd(a, sXs, 4, 2048*576*2)
    srd(a, sH, 8, H1_SZ, H1_OFF)
    srd(a, sST, 8, ST_SZ, ST_OFF)
    a(f"s_mul_i32 s{sT}, s{sNb}, 192")
    a(f"s_mov_b32 s{sT+1}, 0x40000000")
    for t in range(7):
        a(f"v_add_u32 v{vT}, {t*64}, v0")
        a(f"v_mul_u32_u24 v{vT+1}, 4682, v{vT}")
        a(f"v_lshrrev_b32 v{vT+1}, 16, v{vT+1}")
        a(f"v_mul_u32_u24 v{vT+2}, 14, v{vT+1}")
        a(f"v_sub_u32 v{vT+2}, v{vT}, v{vT+2}")
        a(f"v_and_b32 v{vT+3}, 4, v{vT+1}")
        a(f"v_lshlrev_b32 v{vT+3}, 1, v{vT+3}")
        a(f"v_and_b32 v{vT+4}, 8, v{vT+1}")
        a(f"v_lshrrev_b32 v{vT+4}, 1, v{vT+4}")
        a(f"v_and_b32 v{vT+1}, 0x13, v{vT+1}")
        a(f"v_or3_b32 v{vT+1}, v{vT+1}, v{vT+3}, v{vT+4}")
        a(f"v_mul_u32_u24 v{vT+1}, 1152, v{vT+1}")
        a(f"v_lshl_add_u32 v{vT+1}, v{vT+2}, 4, v{vT+1}")
        a(f"v_add_u32 v{vT+1}, s{sT}, v{vT+1}")
        a(f"v_cmp_gt_u32 vcc, 12, v{vT+2}")
        a(f"v_mov_b32 v{vT+3}, s{sT+1}")
        a("s_nop 0")
        a(f"v_cndmask_b32 v{vD+t}, v{vT+3}, v{vT+1}, vcc")
    a(f"s_lshl_b32 s{sT}, s{sRb}, 6")
    a(f"s_lshl_b32 s{sT+1}, s{sWave}, 4")
    a(f"s_add_u32 s{sT}, s{sT}, s{sT+1}")
    a(f"v_and_b32 v{vT}, 15, v0")
    a(f"v_add_u32 v{vT}, s{sT}, v{vT}")
    a(f"v_mul_u32_u24 v{vT+1}, 1152, v{vT}")
    a(f"v_lshrrev_b32 v{vT+2}, 4, v0")
    a(f"s_lshr_b32 s{sT+4}, s{sT}, 4")
    a(f"s_mul_i32 s{sT+4}, s{sT+4}, 18432")
    a(f"v_lshlrev_b32 v{vT+3}, 4, v0")
    a(f"v_add_u32 v{vT+3}, s{sT+4}, v{vT+3}")
    a(f"v_lshl_add_u32 v{vT+4}, v{vT+2}, 3, v{vT+1}")
    for q in range(1, 5): a(f"s_movk_i32 s{sT+4+q}, {q*4096}")
    def osoff(s_): return ("s%d" % (sT+4+s_//4)) if s_ >= 4 else "0"
    a(f"s_mul_i32 s{sT+1}, s{sNb}, 192")
    a(f"s_mul_i32 s{sT+2}, s{sWave}, {32*1152}")
    a(f"s_mul_i32 s{sT+3}, s{sWave}, {BLK}")
    a("s_cmp_eq_u32 s35, 0")
    a(f"s_cbranch_scc1 L_{name}_comp")
    for c in range(5):
        for t in range(7):
            a(f"s_add_u32 m0, s{sT+3}, {c*4*BLK + t*1024}")
            a("s_nop 0")
            a(f"buffer_load_dwordx4 v{vD+t}, {sr(sW,4)}, s{sT+2} offen lds")
        a(f"s_add_u32 s{sT+2}, s{sT+2}, {4*32*1152}")
    for c in range(5):
        a(f"s_waitcnt vmcnt({(4-c)*7})")
        a("s_barrier")
    a("s_endpgm")
    a.lab(f"L_{name}_comp")
    for s_ in range(18):
        vm.op(("O", s_), f"buffer_load_dwordx4 {vr(OF+s_*4,4)}, v{vT+3}, {sr(sO,4)}, {osoff(s_)} offen offset:{(s_%4)*1024}")
    for nt in range(6):
        vm.op(("X", 99), f"buffer_load_dwordx2 {vr(XR+nt*2,2)}, v{vT+4}, {sr(sXs,4)}, s{sT+1} offen offset:{nt*32}")
    a(f"v_lshrrev_b32 v{vT+5}, 5, v0")
    a(f"v_lshlrev_b32 v{vT+5}, 4, v{vT+5}")
    a(f"v_bfe_u32 v{vT+6}, v0, 2, 3")
    a(f"v_add_u32 v{vT+5}, v{vT+5}, v{vT+6}")
    a(f"v_mul_u32_u24 v{vT+5}, {PITCH}, v{vT+5}")
    a(f"v_and_b32 v{vT+6}, 3, v0")
    a(f"v_lshl_add_u32 v{vWa}, v{vT+6}, 3, v{vT+5}")
    a(f"v_add_u32 v{vWb}, {9*BLK}, v{vWa}")
    def wread(s_, buf):
        base = vWa if s_ < 9 else vWb
        for nt in range(6):
            off = (s_ % 9) * BLK + nt * 32
            a(f"ds_read_b64_tr_b16 {vr(WR+buf*24+nt*4,2)}, v{base} offset:{off}")
            a(f"ds_read_b64_tr_b16 {vr(WR+buf*24+nt*4+2,2)}, v{base} offset:{off+8*PITCH}")
    for c in range(5):
        a("s_barrier")
        if c == 0: stamp(a, 1)
        steps = list(range(4*c, min(4*c+4, 18)))
        wread(steps[0], steps[0] % 2)
        vm.wait(lambda t: t[0] == "O" and t[1] <= steps[-1])
        for s_ in steps:
            if s_ != steps[-1]:
                wread(s_+1, (s_+1) % 2)
                a("s_waitcnt lgkmcnt(12)")
            else:
                a("s_waitcnt lgkmcnt(0)")
            for nt in range(6):
                cc = vr(ACC+nt*4,4)
                a(f"v_mfma_f32_16x16x32_bf16 {cc}, {vr(WR+(s_%2)*24+nt*4,4)}, {vr(OF+s_*4,4)}, " + ("0" if s_ == 0 else cc))
    a("s_waitcnt vmcnt(0)")
    a("s_nop 7")
    stamp(a, 2)
    HP = WR
    for nt in range(6):
        for p in range(2):
            c0 = ACC + nt*4 + 2*p
            a(f"v_cvt_pk_bf16_f32 v{vT}, v{c0}, v{c0+1}")
            a(f"v_lshlrev_b32 v{c0}, 16, v{vT}")
            a(f"v_and_b32 v{c0+1}, 0xffff0000, v{vT}")
            a(f"v_lshlrev_b32 v{vT+1}, 16, v{XR+nt*2+p}")
            a(f"v_and_b32 v{vT+2}, 0xffff0000, v{XR+nt*2+p}")
            a(f"v_add_f32 v{c0}, v{c0}, v{vT+1}")
            a(f"v_add_f32 v{c0+1}, v{c0+1}, v{vT+2}")
            a(f"v_cvt_pk_bf16_f32 v{HP+nt*2+p}, v{c0}, v{c0+1}")
            a(f"v_lshlrev_b32 v{c0}, 16, v{HP+nt*2+p}")
            a(f"v_and_b32 v{c0+1}, 0xffff0000, v{HP+nt*2+p}")
    a(f"s_lshl_b32 s{sT}, s{sRb}, 2")
    a(f"s_add_u32 s{sT}, s{sT}, s{sWave}")
    a(f"s_mul_i32 s{sT+1}, s{sT}, 18")
    a(f"s_mul_i32 s{sT+2}, s{sNb}, 3")
    a(f"s_add_u32 s{sT+1}, s{sT+1}, s{sT+2}")
    a(f"s_lshl_b32 s{sT+1}, s{sT+1}, 10")
    a(f"v_lshlrev_b32 v{vT}, 4, v0")
    for p in range(3):
        a(f"buffer_store_dwordx4 {vr(HP+p*4,4)}, v{vT}, {sr(sH,4)}, s{sT+1} offen offset:{p*1024}")
    def xreduce(v, t):
        a(f"v_xor_b32 v{t}, 16, v0")
        a(f"v_lshlrev_b32 v{t}, 2, v{t}")
        a(f"ds_bpermute_b32 v{t+1}, v{t}, v{v}")
        a("s_waitcnt lgkmcnt(0)")
        a(f"v_add_f32 v{v}, v{v}, v{t+1}")
        a(f"v_xor_b32 v{t}, 32, v0")
        a(f"v_lshlrev_b32 v{t}, 2, v{t}")
        a(f"ds_bpermute_b32 v{t+1}, v{t}, v{v}")
        a("s_waitcnt lgkmcnt(0)")
        a(f"v_add_f32 v{v}, v{v}, v{t+1}")
    S0, S1 = vT+4, vT+5
    a(f"v_add_f32 v{S0}, v{ACC}, v{ACC+1}")
    for i in range(2, 24):
        a(f"v_add_f32 v{S0}, v{S0}, v{ACC+i}")
    xreduce(S0, vT+6)
    a(f"v_mul_f32 v{S0}, {f32(1.0/96.0)}, v{S0}")
    a(f"v_mov_b32 v{S1}, 0")
    for i in range(24):
        a(f"v_sub_f32 v{vT+1}, v{ACC+i}, v{S0}")
        a(f"v_fmac_f32 v{S1}, v{vT+1}, v{vT+1}")
    xreduce(S1, vT+6)
    a(f"s_lshl_b32 s{sT}, s{sT}, 4")
    a(f"v_add_u32 v{vT}, s{sT}, v0")
    a(f"v_mul_u32_u24 v{vT}, 48, v{vT}")
    a(f"s_lshl_b32 s{sT+1}, s{sNb}, 3")
    a("s_mov_b64 exec, 0xffff")
    a(f"buffer_store_dwordx2 {vr(S0,2)}, v{vT}, {sr(sST,4)}, s{sT+1} offen")
    stamp(a, 3)
    if "stamp" in OPT: a("s_waitcnt vmcnt(0)")
    stamp(a, 4); stamp(a, 6, True)
    stamp_dump(a, 7, 8, sWave, vT+8, 2)
    a.lab(f"L_{name}_done")
    a("s_endpgm")
    return a.text(), kernel_desc(name, NV, 96), f"; @launch kernel={name} grid=(192,1,1) block=(512,1,1) lds={20*BLK}"

def gen_k1(name="k1_kernel"):
    a = A(); vm = VM(a)
    kernel_head(a, name)
    XT = 0
    WB = 92160; STG = 16384; NST = 4; PITCH = 480
    QP = 624
    ACC = 4
    XF = 44
    WF = 84
    RAW = 100
    vD0, vD1 = 150, 151
    vWa, vXa = 152, 153
    vT = 156
    NV = 200
    sW, sXs, sO = 12, 16, 20
    sWave, sRb, sHg, sT = 28, 29, 30, 36
    sWo, sM0b = 31, 32
    a("s_cmp_ge_u32 s2, 256")
    a(f"s_cbranch_scc1 L_{name}_done")
    stamp(a, 0); stamp(a, 5, True)
    a("s_load_dwordx4 s[4:7], s[0:1], 0")
    a("s_load_dwordx2 s[8:9], s[0:1], 72")
    a("v_lshrrev_b32 v1, 6, v0")
    a("v_mov_b32 v3, v0")
    a("v_and_b32 v0, 63, v0")
    a(f"v_readfirstlane_b32 s{sWave}, v1")
    a(f"s_lshr_b32 s{sT}, s2, 3")
    a(f"s_and_b32 s{sHg}, s{sT}, 3")
    a(f"s_and_b32 s{sT+1}, s2, 1")
    a(f"s_lshl_b32 s{sT+1}, s{sT+1}, 2")
    a(f"s_add_u32 s{sHg}, s{sHg}, s{sT+1}")
    a(f"s_lshr_b32 s{sRb}, s{sT}, 2")
    a(f"s_bfe_u32 s{sT+1}, s2, 0x20001")
    a(f"s_lshl_b32 s{sT+1}, s{sT+1}, 3")
    a(f"s_add_u32 s{sRb}, s{sRb}, s{sT+1}")
    a("s_waitcnt lgkmcnt(0)")
    srd(a, sW, 6, 576*1728*2)
    srd(a, sXs, 4, 2048*576*2)
    srd(a, sO, 8, O_SZ, O_OFF)
    a(f"v_mul_u32_u24 v{vT}, 10923, v0")
    a(f"v_lshrrev_b32 v{vT}, 16, v{vT}")
    a(f"v_mul_u32_u24 v{vT+1}, 6, v{vT}")
    a(f"v_sub_u32 v{vT+1}, v0, v{vT+1}")
    a(f"s_mul_i32 s{sT}, s{sWave}, 10")
    a(f"v_add_u32 v{vT+2}, s{sT}, v{vT}")
    a(f"s_lshl_b32 s{sT+1}, s{sRb}, 6")
    a(f"s_sub_u32 s{sT+1}, s{sT+1}, 16")
    a(f"v_add_u32 v{vT+3}, s{sT+1}, v{vT+2}")
    a(f"s_movk_i32 s{sT+2}, 1152")
    a(f"v_mul_lo_u32 v{vT+3}, v{vT+3}, s{sT+2}")
    a(f"v_lshl_add_u32 v{vT+3}, v{vT+1}, 4, v{vT+3}")
    for i in range(12):
        vm.op(("x", i), f"buffer_load_dwordx4 {vr(RAW+i*4,4)}, v{vT+3}, {sr(sXs,4)}, 0 offen offset:{i*96}")
    a(f"s_lshl_b32 s{sT}, s{sWave}, 7")
    a(f"s_mul_i32 s{sT+1}, s{sHg}, 144")
    a(f"s_mov_b32 s{sT+2}, 0x40000000")
    for t, vd in enumerate((vD0, vD1)):
        a(f"v_add_u32 v{vT+4}, s{sT}, v0")
        if t: a(f"v_add_u32 v{vT+4}, 64, v{vT+4}")
        a(f"v_mul_u32_u24 v{vT+5}, 2185, v{vT+4}")
        a(f"v_lshrrev_b32 v{vT+5}, 16, v{vT+5}")
        a(f"v_mul_u32_u24 v{vT+6}, 30, v{vT+5}")
        a(f"v_sub_u32 v{vT+6}, v{vT+4}, v{vT+6}")
        a(f"v_mul_u32_u24 v{vT+7}, 7282, v{vT+6}")
        a(f"v_lshrrev_b32 v{vT+7}, 16, v{vT+7}")
        a(f"v_mul_u32_u24 v{vT+8}, 9, v{vT+7}")
        a(f"v_sub_u32 v{vT+8}, v{vT+6}, v{vT+8}")
        a(f"v_mul_u32_u24 v{vT+7}, 1152, v{vT+7}")
        a(f"v_lshl_add_u32 v{vT+7}, v{vT+8}, 4, v{vT+7}")
        a(f"v_and_b32 v{vT+8}, 4, v{vT+5}")
        a(f"v_lshlrev_b32 v{vT+8}, 1, v{vT+8}")
        a(f"v_and_b32 v{vT+9}, 8, v{vT+5}")
        a(f"v_lshrrev_b32 v{vT+9}, 1, v{vT+9}")
        a(f"v_and_b32 v{vT+10}, 0x13, v{vT+5}")
        a(f"v_or3_b32 v{vT+8}, v{vT+8}, v{vT+9}, v{vT+10}")
        a(f"v_mul_u32_u24 v{vT+8}, 3456, v{vT+8}")
        a(f"v_add3_u32 v{vT+7}, v{vT+7}, v{vT+8}, s{sT+1}")
        a(f"v_cmp_gt_u32 vcc, 27, v{vT+6}")
        a(f"v_cmp_gt_u32 s[{sT+4}:{sT+5}], 32, v{vT+5}")
        a(f"s_and_b64 vcc, vcc, s[{sT+4}:{sT+5}]")
        a(f"v_mov_b32 v{vT+8}, s{sT+2}")
        a("s_nop 1")
        a(f"v_cndmask_b32 v{vd}, v{vT+8}, v{vT+7}, vcc")
    a(f"s_lshl_b32 s{sM0b}, s{sWave}, 11")
    a(f"s_add_u32 s{sM0b}, s{sM0b}, {WB}")
    def wdma(i):
        if i >= 18: return
        st = i % NST
        a(f"s_mov_b32 s{sWo}, {i*32*3456}")
        for t, vd in enumerate((vD0, vD1)):
            a(f"s_add_u32 m0, s{sM0b}, {st*STG + t*1024}")
            a("s_nop 0")
            vm.op(("W", i), f"buffer_load_dwordx4 v{vd}, {sr(sW,4)}, s{sWo} offen lds")
    for i in range(4): wdma(i)
    ONES_LO, ONES_HI, ONES = sT+6, sT+7, sT+8
    a(f"s_mov_b32 s{ONES}, 0x3f803f80")
    S, M, Q = vT+4, vT+5, vT+6
    B3, B1, B2 = vT+8, vT+9, vT+10
    for d_, vb in ((3, B3), (1, B1), (2, B2)):
        a(f"v_add_u32 v{vb}, {d_}, v{vT+1}")
        a(f"v_subrev_u32 v{vT+11}, 6, v{vb}")
        a(f"v_min_u32 v{vb}, v{vb}, v{vT+11}")
        a(f"v_mad_u32_u24 v{vb}, v{vT}, 6, v{vb}")
        a(f"v_lshlrev_b32 v{vb}, 2, v{vb}")
    def reduce6(v):
        a(f"ds_bpermute_b32 v{vT+11}, v{B3}, v{v}")
        a("s_waitcnt lgkmcnt(0)")
        a(f"v_add_f32 v{v}, v{v}, v{vT+11}")
        a(f"ds_bpermute_b32 v{vT+11}, v{B1}, v{v}")
        a(f"ds_bpermute_b32 v{vT+12}, v{B2}, v{v}")
        a("s_waitcnt lgkmcnt(0)")
        a(f"v_add_f32 v{v}, v{v}, v{vT+11}")
        a(f"v_add_f32 v{v}, v{v}, v{vT+12}")
    vm.wait(lambda t: t[0] == "x")
    stamp(a, 1)
    if "wtest" in OPT:
        a("s_waitcnt vmcnt(6)")
        stamp(a, 2)
        a("s_waitcnt vmcnt(0)")
        stamp(a, 3)
        stamp(a, 4)
        OPT.discard("stamp"); OPT.add("stamp_off")
    a(f"v_mov_b32 v{S}, 0")
    a(f"v_mov_b32 v{Q}, 0")
    for i in range(48):
        a(f"v_dot2_f32_bf16 v{S if i%2==0 else Q}, v{RAW+i}, s{ONES}, v{S if i%2==0 else Q}")
    a("s_nop 2")
    a(f"v_add_f32 v{S}, v{S}, v{Q}")
    reduce6(S)
    a(f"v_mul_f32 v{S}, {f32(1.0/576.0)}, v{S}")
    round_bf16(a, M, S)
    PM, PQ = 172, 174
    a(f"v_sub_f32 v{PM}, 0, v{M}")
    a(f"v_mov_b32 v{PM+1}, v{PM}")
    a(f"v_mov_b64 {vr(PQ,2)}, 0")
    a(f"v_mov_b64 {vr(PQ+2,2)}, 0")
    for i in range(48):
        t = 178 + (i % 4) * 2
        q = PQ + (i % 2) * 2
        a(f"v_lshlrev_b32 v{t}, 16, v{RAW+i}")
        a(f"v_and_b32 v{t+1}, 0xffff0000, v{RAW+i}")
        a(f"v_pk_add_f32 {vr(t,2)}, {vr(t,2)}, {vr(PM,2)}")
        a(f"v_pk_fma_f32 {vr(q,2)}, {vr(t,2)}, {vr(t,2)}, {vr(q,2)}")
        a(f"v_cvt_pk_bf16_f32 v{RAW+i}, v{t}, v{t+1}")
    a(f"v_add_f32 v{Q}, v{PQ}, v{PQ+1}")
    a(f"v_add_f32 v{vT+13}, v{PQ+2}, v{PQ+3}")
    a(f"v_add_f32 v{Q}, v{Q}, v{vT+13}")
    reduce6(Q)
    a(f"v_mul_f32 v{Q}, {f32(1.0/576.0)}, v{Q}")
    a(f"v_sub_f32 v{vT+13}, v{S}, v{M}")
    a(f"v_fma_f32 v{Q}, -v{vT+13}, v{vT+13}, v{Q}")
    a(f"v_max_f32 v{Q}, 0, v{Q}")
    round_bf16(a, Q, Q)
    a(f"v_add_f32 v{Q}, {f32(1e-5)}, v{Q}")
    round_bf16(a, Q, Q)
    a(f"v_sqrt_f32 v{Q}, v{Q}")
    a("s_nop 0")
    round_bf16(a, Q, Q)
    a(f"v_rcp_f32 v{PM}, v{Q}")
    a(f"v_lshrrev_b32 v{vT+11}, 4, v{vT+2}")
    a(f"v_mov_b32 v{PM+1}, v{PM}")
    a(f"v_mul_u32_u24 v{vT+11}, 18432, v{vT+11}")
    a(f"v_and_b32 v{vT+12}, 15, v{vT+2}")
    a(f"v_lshl_add_u32 v{vT+11}, v{vT+12}, 4, v{vT+11}")
    a(f"v_lshl_add_u32 v{vT+14}, v{vT+1}, 8, v{vT+11}")
    a(f"v_cmp_gt_u32 vcc, 60, v0")
    a(f"s_and_saveexec_b64 s[{sT+4}:{sT+5}], vcc")
    for i in range(12):
        for d_ in range(4):
            x = RAW + i*4 + d_
            t = 178 + d_ * 2
            a(f"v_lshlrev_b32 v{t}, 16, v{x}")
            a(f"v_and_b32 v{t+1}, 0xffff0000, v{x}")
            a(f"v_pk_mul_f32 {vr(t,2)}, {vr(t,2)}, {vr(PM,2)}")
            a(f"v_cvt_pk_bf16_f32 v{x}, v{t}, v{t+1}")
        a(f"ds_write_b128 v{vT+14}, {vr(RAW+i*4,4)} offset:{XT + i*6*256}")
    a(f"s_mov_b64 exec, s[{sT+4}:{sT+5}]")
    stamp(a, 2)
    a(f"v_lshrrev_b32 v{vT+5}, 5, v0")
    a(f"v_lshlrev_b32 v{vT+5}, 4, v{vT+5}")
    a(f"v_bfe_u32 v{vT+6}, v0, 2, 3")
    a(f"v_add_u32 v{vT+5}, v{vT+5}, v{vT+6}")
    a(f"v_mul_u32_u24 v{vT+5}, {PITCH}, v{vT+5}")
    a(f"v_and_b32 v{vT+6}, 3, v0")
    a(f"v_lshl_add_u32 v{vWa}, v{vT+6}, 3, v{vT+5}")
    a(f"s_lshl_b32 s{sT}, s{sWave}, 6")
    a(f"s_add_u32 s{sT}, s{sT}, {WB}")
    a(f"v_add_u32 v{vWa}, s{sT}, v{vWa}")
    a(f"v_lshlrev_b32 v{vXa}, 4, v0")
    for i in range(0, 40, 2):
        a(f"v_mov_b64 {vr(ACC+i,2)}, 0")
    vm.wait(lambda t: t[0] == "W" and t[1] <= 1, " lgkmcnt(0)")
    a("s_barrier")
    def reads(i):
        b = i % 2; st = i % NST
        for n in range(2):
            a(f"ds_read_b64_tr_b16 {vr(WF+b*8+n*4,2)}, v{vWa} offset:{st*STG + n*32}")
            a(f"ds_read_b64_tr_b16 {vr(WF+b*8+n*4+2,2)}, v{vWa} offset:{st*STG + n*32 + 8*PITCH}")
        for mt in range(5):
            off = (mt*18 + i)*1024
            if off < 65536:
                a(f"ds_read_b128 {vr(XF+b*20+mt*4,4)}, v{vXa} offset:{off}")
            else:
                a(f"ds_read_b128 {vr(XF+b*20+mt*4,4)}, v{vT} offset:{off-65536}")
    a(f"v_add_u32 v{vT}, 65536, v{vXa}")
    stamp(a, 3)
    reads(0)
    for i in range(18):
        if i < 17:
            reads(i+1)
            a("s_waitcnt lgkmcnt(9)")
        else:
            a("s_waitcnt lgkmcnt(0)")
        b = i % 2
        k = 0
        for mt in range(5):
            for n in range(2):
                a(f"v_mfma_f32_16x16x32_bf16 {vr(ACC+(mt*2+n)*4,4)}, {vr(WF+b*8+n*4,4)}, {vr(XF+b*20+mt*4,4)}, {vr(ACC+(mt*2+n)*4,4)}")
                k += 1
                if k == 2 and i >= 1:
                    wdma(i+3)
        if i < 17:
            vm.wait(lambda t: t[0] == "W" and t[1] <= i+2)
            a("s_barrier")
    a("s_barrier")
    stamp(a, 4)
    a(f"v_lshrrev_b32 v{vT}, 4, v0")
    a(f"v_lshlrev_b32 v{vT}, 2, v{vT}")
    a(f"s_lshl_b32 s{sT}, s{sWave}, 5")
    a(f"v_add_u32 v{vT}, s{sT}, v{vT}")
    a(f"v_and_b32 v{vT+1}, 15, v0")
    a(f"v_mul_u32_u24 v{vT+1}, {QP}, v{vT+1}")
    AD = vT + 4
    for n in range(2):
        for p in range(2):
            ad = AD + n*2 + p
            a(f"v_add_u32 v{vT+2}, {n*16+p*2}, v{vT}")
            a(f"v_mul_u32_u24 v{vT+3}, 3641, v{vT+2}")
            a(f"v_lshrrev_b32 v{vT+3}, 16, v{vT+3}")
            a(f"v_mul_u32_u24 v{ad}, 18, v{vT+3}")
            a(f"v_sub_u32 v{ad}, v{vT+2}, v{ad}")
            a(f"v_lshl_add_u32 v{ad}, v{ad}, 1, v{vT+1}")
            a(f"v_mad_u32_u24 v{ad}, v{vT+3}, 48, v{ad}")
    a(f"s_cmp_ge_u32 s{sWave}, 7")
    a("s_nop 4")
    a(f"s_cbranch_scc1 L_{name}_skipq")
    for mt in range(5):
        for n in range(2):
            c = ACC + (mt*2+n)*4
            a(f"v_cvt_pk_bf16_f32 v{vT+8}, v{c}, v{c+1}")
            a(f"v_cvt_pk_bf16_f32 v{vT+9}, v{c+2}, v{c+3}")
            a(f"ds_write_b32 v{AD+n*2}, v{vT+8} offset:{mt*16*QP}")
            a(f"ds_write_b32 v{AD+n*2+1}, v{vT+9} offset:{mt*16*QP}")
    a.lab(f"L_{name}_skipq")
    a("s_waitcnt lgkmcnt(0)")
    a("s_barrier")
    if "dbg1" in OPT:
        lds_dump(a, 57344, 9, 3, 190, 210, tag="q")
    a(f"s_cmp_ge_u32 s{sWave}, 4")
    a(f"s_cbranch_scc1 L_{name}_done")
    QR = 4; KR = 16; LG = 120; OA = 130; VR_ = 16
    a(f"v_lshrrev_b32 v{vT}, 2, v3")
    a(f"v_and_b32 v{vT+1}, 3, v3")
    a(f"v_add_u32 v{vT+2}, 2, v{vT}")
    a(f"v_mul_u32_u24 v{vT+2}, {QP}, v{vT+2}")
    a(f"v_mad_u32_u24 v{vT+2}, v{vT+1}, 48, v{vT+2}")
    for j in range(3):
        a(f"ds_read_b128 {vr(QR+j*4,4)}, v{vT+2} offset:{14*QP + j*16}")
    for w in range(8):
        for j in range(3):
            a(f"ds_read_b128 {vr(KR+w*12+j*4,4)}, v{vT+2} offset:{(14-2*w)*QP + 192 + j*16}")
    a(f"s_lshl_b32 s{sT}, s{sRb}, 6")
    a(f"v_add_u32 v{vT+3}, s{sT}, v{vT}")
    a(f"s_mov_b32 s{sT+1}, {f32(18.0**-0.5)}")
    a(f"s_mov_b32 s{sT+2}, {f32(-1e9)}")
    a(f"v_cvt_pk_bf16_f32 v{vT+4}, s{sT+2}, s{sT+2}")
    a(f"v_lshlrev_b32 v{vT+4}, 16, v{vT+4}")
    for w in range(8):
        a(f"s_waitcnt lgkmcnt({min(15, (7-w)*3)})")
        a(f"v_mov_b32 v{LG+w}, 0")
        for d_ in range(9):
            a(f"v_dot2_f32_bf16 v{LG+w}, v{QR+d_}, v{KR+w*12+d_}, v{LG+w}")
        a("s_nop 2")
        round_bf16(a, LG+w, LG+w)
        a(f"v_mul_f32 v{LG+w}, s{sT+1}, v{LG+w}")
        round_bf16(a, LG+w, LG+w)
        a(f"v_cmp_le_u32 vcc, {2*w}, v{vT+3}")
        a("s_nop 1")
        a(f"v_cndmask_b32 v{LG+w}, v{vT+4}, v{LG+w}, vcc")
    for w in range(8):
        for j in range(3):
            a(f"ds_read_b128 {vr(VR_+w*12+j*4,4)}, v{vT+2} offset:{(14-2*w)*QP + 384 + j*16}")
    a(f"v_max3_f32 v{vT+5}, v{LG}, v{LG+1}, v{LG+2}")
    a(f"v_max3_f32 v{vT+5}, v{vT+5}, v{LG+3}, v{LG+4}")
    a(f"v_max3_f32 v{vT+5}, v{vT+5}, v{LG+5}, v{LG+6}")
    a(f"v_max_f32 v{vT+5}, v{vT+5}, v{LG+7}")
    a(f"s_mov_b32 s{sT+3}, {f32(math.log2(math.e))}")
    for w in range(8):
        a(f"v_sub_f32 v{LG+w}, v{LG+w}, v{vT+5}")
        a(f"v_mul_f32 v{LG+w}, s{sT+3}, v{LG+w}")
        a(f"v_exp_f32 v{LG+w}, v{LG+w}")
    a("s_nop 0")
    a(f"v_add_f32 v{vT+6}, v{LG}, v{LG+1}")
    for w in range(2, 8):
        a(f"v_add_f32 v{vT+6}, v{vT+6}, v{LG+w}")
    a(f"v_rcp_f32 v{vT+6}, v{vT+6}")
    a("s_nop 0")
    for w in range(8):
        a(f"v_mul_f32 v{LG+w}, v{LG+w}, v{vT+6}")
    for wp in range(4):
        a(f"v_cvt_pk_bf16_f32 v{LG+wp}, v{LG+2*wp}, v{LG+2*wp+1}")
    for d_ in range(18):
        a(f"v_mov_b32 v{OA+d_}, 0")
    a(f"s_mov_b32 s{sT+4}, 0x05040100")
    a(f"s_mov_b32 s{sT+5}, 0x07060302")
    for wp in range(4):
        a(f"s_waitcnt lgkmcnt({min(15, (3-wp)*6)})")
        for d_ in range(9):
            x0 = VR_ + (2*wp)*12 + d_; x1 = VR_ + (2*wp+1)*12 + d_
            t = vT + 8 + (d_ % 2) * 2
            a(f"v_perm_b32 v{t}, v{x1}, v{x0}, s{sT+4}")
            a(f"v_perm_b32 v{t+1}, v{x1}, v{x0}, s{sT+5}")
            a(f"v_dot2_f32_bf16 v{OA+2*d_}, v{t}, v{LG+wp}, v{OA+2*d_}")
            a(f"v_dot2_f32_bf16 v{OA+2*d_+1}, v{t+1}, v{LG+wp}, v{OA+2*d_+1}")
    a("s_nop 2")
    for d_ in range(9):
        a(f"v_cvt_pk_bf16_f32 v{QR+d_}, v{OA+2*d_}, v{OA+2*d_+1}")
    a(f"v_mul_u32_u24 v{vT+3}, 1152, v{vT+3}")
    a(f"v_mad_u32_u24 v{vT+3}, v{vT+1}, 36, v{vT+3}")
    a(f"s_mul_i32 s{sT}, s{sHg}, 144")
    a(f"buffer_store_dwordx4 {vr(QR,4)}, v{vT+3}, {sr(sO,4)}, s{sT} offen")
    a(f"buffer_store_dwordx4 {vr(QR+4,4)}, v{vT+3}, {sr(sO,4)}, s{sT} offen offset:16")
    a(f"buffer_store_dword v{QR+8}, v{vT+3}, {sr(sO,4)}, s{sT} offen offset:32")
    if "stamp_off" in OPT: OPT.add("stamp")
    if "stamp" in OPT: a("s_waitcnt vmcnt(0)")
    stamp(a, 6, True)
    stamp_dump(a, 7, 8, sWave, vT+8, 3)
    a.lab(f"L_{name}_done")
    a("s_endpgm")
    return a.text(), kernel_desc(name, NV, 96), f"; @launch kernel={name} grid=(256,1,1) block=(512,1,1) lds={WB + NST*STG}"


def dma_slots_setup(a, sWave, sT, vT, vD, rowbytes, sM0, upshift, extra_s=None):
    a(f"s_lshl_b32 s{sT}, s{sWave}, 6")
    a(f"s_sub_u32 s{sT+1}, s{sT}, 64")
    a(f"s_cmp_eq_u32 s{sWave}, 0")
    a(f"s_cselect_b32 s{sT+1}, 512, s{sT+1}")
    a(f"s_cselect_b32 s{sT+3}, 0, {upshift}")
    a(f"s_add_u32 s{sT+2}, s{sT}, 448")
    a(f"s_lshl_b32 s{sM0}, s{sWave}, 10")
    a(f"s_add_u32 s{sM0+1}, s{sM0}, 8192")
    a(f"s_add_u32 s{sM0+1}, s{sM0+1}, s{sT+3}")
    a(f"s_add_u32 s{sM0+2}, s{sM0}, {16384+upshift}")
    for k in range(3):
        a(f"v_add_u32 v{vT+1}, s{sT+k}, v0")
        a(f"v_mul_u32_u24 v{vT+2}, 3641, v{vT+1}")
        a(f"v_lshrrev_b32 v{vT+8+k}, 16, v{vT+2}")
        a(f"v_mul_u32_u24 v{vT+3}, 18, v{vT+8+k}")
        a(f"v_sub_u32 v{vT+3}, v{vT+1}, v{vT+3}")
        a(f"v_mul_u32_u24 v{vT+2}, {rowbytes}, v{vT+8+k}")
        a(f"v_lshl_add_u32 v{vD+k}, v{vT+3}, 4, v{vT+2}")

def gen_k3v2(name="k3_kernel"):
    a = A(); a.k3 = True; a.stpol = os.environ.get("K3ST", "sc1")
    kernel_head(a, name)
    NST = 6; STG = 18560; UP = 9344; RING = 6; PF = RING - 1
    ACC = 4; XS = 148; WR = 196
    vWa, vWb = 220, 221
    vD = 222
    vX0 = 225
    vNM, vR = 226, 227
    vT = 228
    NV = 254
    def acc(nt): return ACC + nt*16
    sWa, sWb_, sWc, sX, sST, sH = 12, 16, 20, 24, 28, 32
    sWave, sFb, sMb = 36, 37, 38
    sWoff, sXoff, sIt = 39, 40, 41
    sM0 = 42
    sT = 46
    sRot, sCnt, sHb = 56, 57, 58
    a("s_cmp_ge_u32 s2, 256")
    a(f"s_cbranch_scc1 L_{name}_done")
    stamp(a, 0); stamp(a, 5, True)
    a("s_load_dwordx4 s[4:7], s[0:1], 32")
    a("s_load_dwordx2 s[8:9], s[0:1], 72")
    a("v_lshrrev_b32 v1, 6, v0")
    a("v_and_b32 v0, 63, v0")
    a("s_nop 0")
    a(f"v_readfirstlane_b32 s{sWave}, v1")
    a(f"s_and_b32 s{sT}, s2, 7")
    a(f"s_lshr_b32 s{sT+1}, s2, 3")
    a(f"s_and_b32 s{sFb}, s{sT+1}, 3")
    a(f"s_lshl_b32 s{sT}, s{sT}, 2")
    a(f"s_add_u32 s{sFb}, s{sFb}, s{sT}")
    a(f"s_lshr_b32 s{sMb}, s{sT+1}, 2")
    dma_slots_setup(a, sWave, sT, vT, vD, 9216, sM0, 128)
    a(f"s_mul_i32 s{sT}, s{sFb}, 288")
    for k in range(3):
        a(f"v_add_u32 v{vD+k}, s{sT}, v{vD+k}")
    a(f"s_lshl_b32 s{sT}, s{sMb}, 4")
    a(f"s_lshl_b32 s{sT+1}, s{sWave}, 1")
    a(f"s_add_u32 s{sT}, s{sT}, s{sT+1}")
    a(f"s_mul_i32 s{sT+1}, s{sT}, 18432")
    a(f"v_bfe_u32 v{vT}, v0, 4, 1")
    a(f"v_mul_u32_u24 v{vT}, 18432, v{vT}")
    a(f"v_lshrrev_b32 v{vT+1}, 5, v0")
    a(f"v_lshl_add_u32 v{vT}, v{vT+1}, 8, v{vT}")
    a(f"v_and_b32 v{vT+1}, 15, v0")
    a(f"v_lshl_add_u32 v{vT}, v{vT+1}, 4, v{vT}")
    a(f"v_add_u32 v{vX0}, s{sT+1}, v{vT}")
    a(f"s_mul_i32 s{sHb}, s{sT}, 144")
    a(f"s_lshr_b32 s{sT+1}, s{sFb}, 1")
    a(f"s_mul_i32 s{sT+1}, s{sT+1}, 9")
    a(f"s_add_u32 s{sHb}, s{sHb}, s{sT+1}")
    a(f"s_lshl_b32 s{sHb}, s{sHb}, 10")
    a(f"s_lshl_b32 s{sT}, s{sT}, 4")
    a(f"v_and_b32 v{vT+4}, 31, v0")
    a(f"v_add_u32 v{vT+4}, s{sT}, v{vT+4}")
    a(f"v_mul_u32_u24 v{vT+4}, 48, v{vT+4}")
    a(f"v_bfe_u32 v{vT}, v0, 4, 1")
    a(f"v_mul_u32_u24 v{vT}, {UP}, v{vT}")
    a(f"v_lshrrev_b32 v{vT+1}, 5, v0")
    a(f"v_bfe_u32 v{vT+2}, v0, 2, 2")
    a(f"v_lshl_add_u32 v{vT+1}, v{vT+1}, 2, v{vT+2}")
    a(f"v_mad_u32_u24 v{vT}, v{vT+1}, 288, v{vT}") if False else None
    a(f"v_mul_u32_u24 v{vT+1}, 288, v{vT+1}")
    a(f"v_add_u32 v{vT}, v{vT}, v{vT+1}")
    a(f"v_and_b32 v{vT+2}, 3, v0")
    a(f"v_lshl_add_u32 v{vWa}, v{vT+2}, 3, v{vT}")
    a(f"v_add_u32 v{vWb}, {3*STG}, v{vWa}")
    if "rot" in OPT:
        a(f"s_mul_i32 s{sRot}, s{sMb}, 9")
        a(f"s_and_b32 s{sT}, s{sFb}, 3")
        a(f"s_mul_i32 s{sT}, s{sT}, 18")
        a(f"s_add_u32 s{sRot}, s{sRot}, s{sT}")
        a(f"s_lshr_b32 s{sRot}, s{sRot}, 2")
        a(f"s_sub_u32 s{sT}, s{sRot}, 18")
        a(f"s_cmp_ge_u32 s{sRot}, 18")
        a(f"s_cselect_b32 s{sRot}, s{sT}, s{sRot}")
    else:
        a(f"s_mov_b32 s{sRot}, 0")
    a(f"s_mov_b32 s{sCnt}, 0")
    a(f"s_mul_i32 s{sWoff}, s{sRot}, {32*9216}")
    a(f"s_lshl_b32 s{sXoff}, s{sRot}, 10")
    a("s_waitcnt lgkmcnt(0)")
    if "pstamp" in OPT: stamp(a, 1)
    srd(a, sWa, 4, 576*4608*2)
    srd(a, sWc, 6, 576*4608*2)
    a(f"s_cmp_eq_u32 s{sWave}, 0")
    a(f"s_cselect_b32 s{sT}, s4, s6")
    a(f"s_cselect_b32 s{sT+1}, s5, s7")
    srd(a, sWb_, sT, 576*4608*2)
    srd(a, sX, 8, H1_SZ, H1_OFF)
    srd(a, sST, 8, ST_SZ, ST_OFF)
    srd(a, sH, 8, HH_SZ, HH_OFF)
    for q in range(3):
        a(f"buffer_load_dwordx4 {vr(WR+q*4,4)}, v{vT+4}, {sr(sST,4)}, 0 offen offset:{q*16}")
    M16 = "m16" in OPT
    TM = int(os.environ.get("TM", "4"))
    sA_, sB_, sE1, sE2 = 60-1, 59-1, 57, 56
    sA_, sB_, sE1, sE2 = 88, 89, 90, 91
    vA, vHo = 244, 245
    EO = 246
    ET = vT + 4
    a(f"s_mov_b32 s{sA_}, {f32(GELU_A)}")
    a(f"s_mov_b32 s{sB_}, {f32(GELU_B)}")
    a(f"v_mov_b32 v{vA}, s{sA_}")
    a(f"v_bfe_u32 v{vHo}, v0, 4, 1")
    a(f"v_mul_u32_u24 v{vHo}, 147456, v{vHo}")
    a(f"v_lshrrev_b32 v{vT+8}, 5, v0")
    a(f"v_lshl_add_u32 v{vHo}, v{vT+8}, 8, v{vHo}")
    a(f"v_and_b32 v{vT+8}, 15, v0")
    a(f"v_lshl_add_u32 v{vHo}, v{vT+8}, 4, v{vHo}")
    a(f"s_and_b32 s{sE2}, s{sFb}, 1")
    a(f"s_lshl_b32 s{sE1}, s{sE2}, 12")
    a(f"s_add_u32 s{sE1}, s{sE1}, s{sHb}")
    a(f"s_lshl_b32 s{sE2}, s{sE2}, 9")
    a(f"s_add_u32 s{sE2}, s{sE2}, s{sHb}")
    a(f"s_add_u32 s{sE2}, s{sE2}, {8*1024}")
    def epi_ops(nt):
        o = EO + (nt % 2) * 4
        out = []
        for hh in range(2):
            lines = [[], []]
            for c in range(2):
                p = hh*2 + c
                x0, x1 = acc(nt) + 2*p, acc(nt) + 2*p + 1
                y0, y1 = x0 + 8, x1 + 8
                t0, t1 = ET + c*2, ET + c*2 + 1
                lines[c] = [f"v_mul_f32 v{t0}, v{x0}, v{x0}", f"v_mul_f32 v{t1}, v{x1}, v{x1}",
                      f"v_fma_f32 v{t0}, v{t0}, s{sB_}, v{vA}", f"v_fma_f32 v{t1}, v{t1}, s{sB_}, v{vA}",
                      f"v_mul_f32 v{t0}, v{t0}, v{x0}", f"v_mul_f32 v{t1}, v{t1}, v{x1}",
                      f"v_exp_f32 v{t0}, v{t0}", f"v_exp_f32 v{t1}, v{t1}",
                      f"v_mul_f32 v{y0}, v{y0}, v{x0}", f"v_mul_f32 v{y1}, v{y1}, v{x1}",
                      f"v_add_f32 v{t0}, 1.0, v{t0}", f"v_add_f32 v{t1}, 1.0, v{t1}",
                      f"v_rcp_f32 v{t0}, v{t0}", f"v_rcp_f32 v{t1}, v{t1}",
                      f"v_mul_f32 v{t0}, v{t0}, v{y0}", f"v_mul_f32 v{t1}, v{t1}, v{y1}",
                      f"v_cvt_pk_bf16_f32 v{o+p}, v{t0}, v{t1}"]
            i0 = i1 = 0
            while i0 < len(lines[0]) or i1 < len(lines[1]):
                for _ in range(2):
                    if i0 < len(lines[0]): out.append(lines[0][i0]); i0 += 1
                for _ in range(2):
                    if i1 < len(lines[1]): out.append(lines[1][i1]); i1 += 1
        if nt < 8:
            out.append(f"buffer_store_dwordx4 {vr(o,4)}, v{vHo}, {sr(sH,4)}, s{sE1} offen offset:{(nt//2)*1024 + (nt%2)*512}")
        else:
            out.append(f"buffer_store_dwordx4 {vr(o,4)}, v{vHo}, {sr(sH,4)}, s{sE2} offen")
        return out
    def body(nd, tag):
        vm = VM(a)
        vm.ops = [("S", 0)] * 3
        srds = (sWa, sWb_, sWc)
        def load_groups(i):
            if i >= 18: return []
            st = i % NST
            gs = []
            for k in range(2):
                gs.append([("s", f"s_add_u32 m0, s{sM0+k}, {st*STG}"), ("s", "s_nop 0"),
                           (("W", i), f"buffer_load_dwordx4 v{vD+k}, {sr(srds[k],4)}, s{sWoff} offen lds")])
            gs[0] = [("s", f"s_cmp_ge_u32 s{sWave}, 2"), ("s", f"s_cbranch_scc1 L_{name}_sk{i}"),
                     ("s", f"s_add_u32 m0, s{sM0+2}, {st*STG}"), ("s", "s_nop 0"),
                     ("s", f"buffer_load_dwordx4 v{vD+2}, {sr(srds[2],4)}, s{sWoff} offen lds"),
                     ("l", f"L_{name}_sk{i}")] + gs[0]
            gs.append([(("X", i), f"buffer_load_dwordx4 {vr(XS+st*8,4)}, v{vX0}, {sr(sX,4)}, s{sXoff} offen")])
            gs.append([(("X", i), f"buffer_load_dwordx4 {vr(XS+st*8+4,4)}, v{vX0}, {sr(sX,4)}, s{sXoff} offen offset:512"),
                       ("s", f"s_add_u32 s{sRot}, s{sRot}, 1"),
                       ("s", f"s_cmp_eq_u32 s{sRot}, {4 if 'hot4' in OPT else 18}"),
                       ("s", f"s_cselect_b32 s{sRot}, 0, s{sRot}"),
                       ("s", f"s_mul_i32 s{sWoff}, s{sRot}, {32*9216}"),
                       ("s", f"s_lshl_b32 s{sXoff}, s{sRot}, 10")])
            return gs
        def emit_group(g):
            for tg, txt in g:
                if tg == "s": a(txt)
                elif tg == "l": a.lab(txt)
                else: vm.op(tg, txt)
        for i in range(2):
            for g in load_groups(i): emit_group(g)
        vm.wait(lambda t: t[0] == "S")
        b = WR
        a(f"v_add_f32 v{vT}, v{b}, v{b+2}")
        a(f"v_add_f32 v{vT+1}, v{b+4}, v{b+6}")
        a(f"v_add_f32 v{vT+2}, v{b+8}, v{b+10}")
        a(f"v_add_f32 v{vT}, v{vT}, v{vT+1}")
        a(f"v_add_f32 v{vT}, v{vT}, v{vT+2}")
        a(f"v_mul_f32 v{vT}, {f32(1.0/6.0)}, v{vT}")
        a(f"v_add_f32 v{vT+1}, v{b+1}, v{b+3}")
        a(f"v_add_f32 v{vT+2}, v{b+5}, v{b+7}")
        a(f"v_add_f32 v{vT+3}, v{b+9}, v{b+11}")
        a(f"v_add_f32 v{vT+1}, v{vT+1}, v{vT+2}")
        a(f"v_add_f32 v{vT+1}, v{vT+1}, v{vT+3}")
        a(f"v_mov_b32 v{vT+2}, 0")
        for t in range(6):
            a(f"v_sub_f32 v{vT+3}, v{b+2*t}, v{vT}")
            a(f"v_fmac_f32 v{vT+2}, v{vT+3}, v{vT+3}")
        a(f"v_fmac_f32 v{vT+1}, {f32(96.0)}, v{vT+2}")
        a(f"v_mul_f32 v{vT+1}, {f32(1.0/576.0)}, v{vT+1}")
        round_bf16(a, vNM, vT)
        round_bf16(a, vT+1, vT+1)
        a(f"v_add_f32 v{vT+1}, {f32(1e-5)}, v{vT+1}")
        round_bf16(a, vT+1, vT+1)
        a(f"v_sqrt_f32 v{vT+1}, v{vT+1}")
        a("s_nop 0")
        round_bf16(a, vT+1, vT+1)
        a(f"v_rcp_f32 v{vR}, v{vT+1}")
        if "exactnorm" not in OPT:
            a("s_nop 0")
            a(f"v_mul_f32 v{vNM}, v{vNM}, v{vR}")
            a(f"v_sub_f32 v{vNM}, 0, v{vNM}")
        def norm_ops(i):
            ops = []
            if i >= 18: return ops
            for h4 in range(2):
                chains = []
                for d in range(4):
                    x = XS + (i % NST)*8 + h4*4 + d
                    t0 = vT + 8 + d * 2; t1 = t0 + 1
                    chains.append([f"v_lshlrev_b32 v{t0}, 16, v{x}", f"v_and_b32 v{t1}, 0xffff0000, v{x}",
                                   f"v_fma_f32 v{t0}, v{t0}, v{vR}, v{vNM}", f"v_fma_f32 v{t1}, v{t1}, v{vR}, v{vNM}",
                                   f"v_cvt_pk_bf16_f32 v{x}, v{t0}, v{t1}"])
                for stage in ((0, 1), (2, 3), (4,)):
                    for c in chains:
                        for j in stage: ops.append(c[j])
            return ops
        NS = 18 - TM
        seq = [(i, f // 9, f % 9) for i in range(NS) for f in range(18)]
        seq += [(i, half, nt) for nt in range(9) for i in range(NS, 18) for half in range(2)]
        def wread(g):
            if g >= len(seq): return
            i, half, nt = seq[g]
            st = i % NST
            slot = g % RING
            base = vWa if st < 3 else vWb
            off = (st % 3) * STG + half * 8 * 288 + nt * 32
            a(f"ds_read_b64_tr_b16 {vr(WR+slot*4,2)}, v{base} offset:{off}")
            a(f"ds_read_b64_tr_b16 {vr(WR+slot*4+2,2)}, v{base} offset:{off+4608}")
        vm.wait(lambda t: t[1] <= 0)
        for op in norm_ops(0): a(op)
        a("s_barrier")
        for f in range(PF): wread(f)
        stamp(a, 1)
        sched = {0: [2, 3], 1: [4, 5], 2: [6, 7]}
        nsched = {i: [i + 1] for i in range(NS)}
        if TM:
            extra = list(range(NS + 1, 18))
            nsched[NS-1] = [NS] + extra[-2:]
            nsched[NS-2] = [NS-1] + extra[:-2]
        for i in range(NS):
            lg = []
            for j in sched.get(i, [i + 5]): lg += load_groups(j)
            nlist = nsched[i]
            ni = 0; gi = 0
            gpos = [1 + (k_ * 16) // max(1, len(lg)) for k_ in range(len(lg))]
            nstart = 6 if i < 3 else 1
            nops = []
            for j in nlist: nops += [("w", j)] + norm_ops(j)
            per = (len(nops) + (16 - nstart)) // (17 - nstart) if nops else 0
            for f in range(18):
                g = i*18 + f
                half, nt = divmod(f, 9)
                slot = g % RING
                if i == 0 and f == 18 - PF:
                    vm.wait(lambda t: t[0] == "W" and t[1] <= 1)
                    a("s_barrier")
                if TM and i == NS - 1 and f == 18 - PF:
                    vm.wait(lambda t: t[0] == "W")
                    a("s_barrier")
                wread(g + PF)
                rem = min(PF, len(seq) - 1 - g)
                a(f"s_waitcnt lgkmcnt({2*rem})")
                if i == 0:
                    a(f"v_mfma_f32_32x32x16_bf16 {vr(acc(nt),16)}, {vr(WR+slot*4,4)}, {vr(XS+(i%NST)*8+half*4,4)}, " + ("0" if half == 0 else vr(acc(nt),16)))
                else:
                    a(f"v_mfma_f32_32x32x16_bf16 {vr(acc(nt),16)}, {vr(WR+slot*4,4)}, {vr(XS+(i%NST)*8+half*4,4)}, {vr(acc(nt),16)}")
                while gi < len(lg) and gpos[gi] <= f:
                    emit_group(lg[gi]); gi += 1
                if f >= nstart:
                    for _ in range(per):
                        if ni < len(nops):
                            op = nops[ni]; ni += 1
                            if isinstance(op, tuple):
                                vm.wait(lambda t: t[0] == "X" and t[1] <= op[1])
                            else: a(op)
            assert ni == len(nops) and gi == len(lg), (i, ni, len(nops), gi, len(lg))
            if i < 17 and not (TM and i == NS - 1):
                vm.wait(lambda t: t[0] == "W" and t[1] <= i + 2)
                a("s_barrier")
        stamp(a, 2)
        g = NS * 18
        pend = []
        for nt in range(9):
            nm = 2 * TM
            per = (len(pend) + nm - 3) // max(1, nm - 2) if pend else 0
            pi = 0
            for q in range(nm):
                i, half, nt_ = seq[g]
                assert nt_ == nt
                slot = g % RING
                wread(g + PF)
                rem = min(PF, len(seq) - 1 - g)
                a(f"s_waitcnt lgkmcnt({2*rem})")
                a(f"v_mfma_f32_32x32x16_bf16 {vr(acc(nt),16)}, {vr(WR+slot*4,4)}, {vr(XS+(i%NST)*8+half*4,4)}, {vr(acc(nt),16)}")
                g += 1
                if q >= 2:
                    for _ in range(per):
                        if pi < len(pend): a(pend[pi]); pi += 1
            assert pi == len(pend)
            pend = epi_ops(nt)
        if not TM:
            a("s_nop 7"); a("s_nop 7")
            for nt in range(8):
                for op in epi_ops(nt): a(op)
        a("s_nop 7"); a("s_nop 7")
        for op in pend: a(op)
    body(2, "B")
    a.lab(f"L_{name}_epi")
    if "pstamp" not in OPT: stamp(a, 3)
    if "stamp" in OPT: a("s_waitcnt vmcnt(0)")
    if "pstamp" not in OPT: stamp(a, 4)
    stamp(a, 6, True)
    stamp_dump(a, 7, 8, sWave, vT+4)
    a.lab(f"L_{name}_done")
    a("s_endpgm")
    return a.text(), kernel_desc(name, NV), f"; @launch kernel={name} grid=(256,1,1) block=(512,1,1) lds={NST*STG}"

def gen_k3m(name="k3_kernel"):
    a = A()
    kernel_head(a, name)
    NST = 6; STG = 18560; UP = 9344; RING = 6; PF = RING - 1
    ACC = 4; XS = 148; WR = 196
    vWa, vWb = 220, 221
    vD = 222
    vX0 = 225
    vNM, vR = 226, 227
    vT = 228
    vX1, vNM1, vR1 = 244, 245, 246
    NV = 248
    def acc(nt, mat, mt): return ACC + ((nt*2+mat)*2+mt)*4
    sWa, sWb_, sWc, sX, sST, sH = 12, 16, 20, 24, 28, 32
    sWave, sFb, sMb = 36, 37, 38
    sWoff, sXoff, sIt = 39, 40, 41
    sM0 = 42
    sT = 46
    sRot, sCnt, sHb = 56, 57, 58
    a("s_cmp_ge_u32 s2, 256")
    a(f"s_cbranch_scc1 L_{name}_done")
    stamp(a, 0); stamp(a, 5, True)
    a("s_load_dwordx4 s[4:7], s[0:1], 32")
    a("s_load_dwordx2 s[8:9], s[0:1], 72")
    a("v_lshrrev_b32 v1, 6, v0")
    a("v_and_b32 v0, 63, v0")
    a("s_nop 0")
    a(f"v_readfirstlane_b32 s{sWave}, v1")
    a(f"s_and_b32 s{sT}, s2, 7")
    a(f"s_lshr_b32 s{sT+1}, s2, 3")
    a(f"s_and_b32 s{sFb}, s{sT+1}, 3")
    a(f"s_lshl_b32 s{sT}, s{sT}, 2")
    a(f"s_add_u32 s{sFb}, s{sFb}, s{sT}")
    a(f"s_lshr_b32 s{sMb}, s{sT+1}, 2")
    dma_slots_setup(a, sWave, sT, vT, vD, 9216, sM0, 128)
    a(f"s_mul_i32 s{sT}, s{sFb}, 288")
    for k in range(3):
        a(f"v_add_u32 v{vD+k}, s{sT}, v{vD+k}")
    a(f"s_lshl_b32 s{sT}, s{sMb}, 4")
    a(f"s_lshl_b32 s{sT+1}, s{sWave}, 1")
    a(f"s_add_u32 s{sT}, s{sT}, s{sT+1}")
    a(f"s_mul_i32 s{sT+1}, s{sT}, 18432")
    a(f"v_lshlrev_b32 v{vT}, 4, v0")
    a(f"v_add_u32 v{vX0}, s{sT+1}, v{vT}")
    a(f"v_add_u32 v{vX1}, 18432, v{vX0}")
    a(f"s_mul_i32 s{sHb}, s{sT}, 144")
    a(f"s_lshr_b32 s{sT+1}, s{sFb}, 1")
    a(f"s_mul_i32 s{sT+1}, s{sT+1}, 9")
    a(f"s_add_u32 s{sHb}, s{sHb}, s{sT+1}")
    a(f"s_lshl_b32 s{sHb}, s{sHb}, 10")
    a(f"s_lshl_b32 s{sT}, s{sT}, 4")
    a(f"v_and_b32 v{vT+4}, 15, v0")
    a(f"v_add_u32 v{vT+4}, s{sT}, v{vT+4}")
    a(f"v_mul_u32_u24 v{vT+4}, 48, v{vT+4}")
    a(f"v_lshrrev_b32 v{vT+1}, 2, v0")
    a(f"v_mul_u32_u24 v{vT+1}, 288, v{vT+1}")
    a(f"v_and_b32 v{vT+2}, 3, v0")
    a(f"v_lshl_add_u32 v{vWa}, v{vT+2}, 3, v{vT+1}")
    a(f"v_add_u32 v{vWb}, {3*STG}, v{vWa}")
    if "rot" in OPT:
        a(f"s_mul_i32 s{sRot}, s{sMb}, 9")
        a(f"s_and_b32 s{sT}, s{sFb}, 3")
        a(f"s_mul_i32 s{sT}, s{sT}, 18")
        a(f"s_add_u32 s{sRot}, s{sRot}, s{sT}")
        a(f"s_lshr_b32 s{sRot}, s{sRot}, 2")
        a(f"s_sub_u32 s{sT}, s{sRot}, 18")
        a(f"s_cmp_ge_u32 s{sRot}, 18")
        a(f"s_cselect_b32 s{sRot}, s{sT}, s{sRot}")
    else:
        a(f"s_mov_b32 s{sRot}, 0")
    a(f"s_mov_b32 s{sCnt}, 0")
    a(f"s_mul_i32 s{sWoff}, s{sRot}, {32*9216}")
    a(f"s_lshl_b32 s{sXoff}, s{sRot}, 10")
    a("s_waitcnt lgkmcnt(0)")
    if "pstamp" in OPT: stamp(a, 1)
    srd(a, sWa, 4, 576*4608*2)
    srd(a, sWc, 6, 576*4608*2)
    a(f"s_cmp_eq_u32 s{sWave}, 0")
    a(f"s_cselect_b32 s{sT}, s4, s6")
    a(f"s_cselect_b32 s{sT+1}, s5, s7")
    srd(a, sWb_, sT, 576*4608*2)
    srd(a, sX, 8, H1_SZ, H1_OFF)
    srd(a, sST, 8, ST_SZ, ST_OFF)
    srd(a, sH, 8, HH_SZ, HH_OFF)
    for mt in range(2):
        for q in range(3):
            a(f"buffer_load_dwordx4 {vr(WR+mt*12+q*4,4)}, v{vT+4}, {sr(sST,4)}, 0 offen offset:{mt*768+q*16}")
    a(f"s_cmp_ge_u32 s{sWave}, 2")
    a(f"s_cbranch_scc1 L_{name}_typeB")

    M16 = "m16" in OPT
    def body(nd, tag):
        vm = VM(a)
        vm.ops = [("S", 0)] * 6
        srds = (sWa, sWb_, sWc)
        def load_groups(i):
            if i >= 18: return []
            st = i % NST
            gs = []
            for k in range(nd):
                gs.append([("s", f"s_add_u32 m0, s{sM0+k}, {st*STG}"), ("s", "s_nop 0"),
                           (("W", i), f"buffer_load_dwordx4 v{vD+k}, {sr(srds[k],4)}, s{sWoff} offen lds")])
            gs.append([(("X", i), f"buffer_load_dwordx4 {vr(XS+st*8,4)}, v{vX0}, {sr(sX,4)}, s{sXoff} offen")])
            gs.append([(("X", i), f"buffer_load_dwordx4 {vr(XS+st*8+4,4)}, v{vX1}, {sr(sX,4)}, s{sXoff} offen"),
                       ("s", f"s_add_u32 s{sRot}, s{sRot}, 1"),
                       ("s", f"s_cmp_eq_u32 s{sRot}, {4 if 'hot4' in OPT else 18}"),
                       ("s", f"s_cselect_b32 s{sRot}, 0, s{sRot}"),
                       ("s", f"s_mul_i32 s{sWoff}, s{sRot}, {32*9216}"),
                       ("s", f"s_lshl_b32 s{sXoff}, s{sRot}, 10")])
            return gs
        def emit_group(g):
            for tg, txt in g:
                if tg == "s": a(txt)
                else: vm.op(tg, txt)
        for i in range(2):
            for g in load_groups(i): emit_group(g)
        vm.wait(lambda t: t[0] == "S")
        for b, vNM_, vR_ in ((WR, vNM, vR), (WR+12, vNM1, vR1)):
            a(f"v_add_f32 v{vT}, v{b}, v{b+2}")
            a(f"v_add_f32 v{vT+1}, v{b+4}, v{b+6}")
            a(f"v_add_f32 v{vT+2}, v{b+8}, v{b+10}")
            a(f"v_add_f32 v{vT}, v{vT}, v{vT+1}")
            a(f"v_add_f32 v{vT}, v{vT}, v{vT+2}")
            a(f"v_mul_f32 v{vT}, {f32(1.0/6.0)}, v{vT}")
            a(f"v_add_f32 v{vT+1}, v{b+1}, v{b+3}")
            a(f"v_add_f32 v{vT+2}, v{b+5}, v{b+7}")
            a(f"v_add_f32 v{vT+3}, v{b+9}, v{b+11}")
            a(f"v_add_f32 v{vT+1}, v{vT+1}, v{vT+2}")
            a(f"v_add_f32 v{vT+1}, v{vT+1}, v{vT+3}")
            a(f"v_mov_b32 v{vT+2}, 0")
            for t in range(6):
                a(f"v_sub_f32 v{vT+3}, v{b+2*t}, v{vT}")
                a(f"v_fmac_f32 v{vT+2}, v{vT+3}, v{vT+3}")
            a(f"v_fmac_f32 v{vT+1}, {f32(96.0)}, v{vT+2}")
            a(f"v_mul_f32 v{vT+1}, {f32(1.0/576.0)}, v{vT+1}")
            round_bf16(a, vNM_, vT)
            round_bf16(a, vT+1, vT+1)
            a(f"v_add_f32 v{vT+1}, {f32(1e-5)}, v{vT+1}")
            round_bf16(a, vT+1, vT+1)
            a(f"v_sqrt_f32 v{vT+1}, v{vT+1}")
            a("s_nop 0")
            round_bf16(a, vT+1, vT+1)
            a(f"v_rcp_f32 v{vR_}, v{vT+1}")
            if "exactnorm" not in OPT:
                a("s_nop 0")
                a(f"v_mul_f32 v{vNM_}, v{vNM_}, v{vR_}")
                a(f"v_sub_f32 v{vNM_}, 0, v{vNM_}")
        def norm_ops(i):
            ops = []
            if i >= 18: return ops
            for d in range(8):
                x = XS + (i % NST)*8 + d
                t0 = vT + (d % 2) * 2; t1 = t0 + 1
                vNM, vR = (226, 227) if d < 4 else (vNM1, vR1)
                ops.append(f"v_lshlrev_b32 v{t0}, 16, v{x}")
                ops.append(f"v_and_b32 v{t1}, 0xffff0000, v{x}")
                if "exactnorm" in OPT:
                    ops.append(f"v_sub_f32 v{t0}, v{t0}, v{vNM}")
                    ops.append(f"v_sub_f32 v{t1}, v{t1}, v{vNM}")
                    ops.append(f"v_cvt_pk_bf16_f32 v{t0}, v{t0}, v{t1}")
                    ops.append(f"v_and_b32 v{t1}, 0xffff0000, v{t0}")
                    ops.append(f"v_lshlrev_b32 v{t0}, 16, v{t0}")
                    ops.append(f"v_mul_f32 v{t0}, v{t0}, v{vR}")
                    ops.append(f"v_mul_f32 v{t1}, v{t1}, v{vR}")
                else:
                    ops.append(f"v_fma_f32 v{t0}, v{t0}, v{vR}, v{vNM}")
                    ops.append(f"v_fma_f32 v{t1}, v{t1}, v{vR}, v{vNM}")
                ops.append(f"v_cvt_pk_bf16_f32 v{x}, v{t0}, v{t1}")
            return ops
        def wread(g):
            i, f = divmod(g, 18)
            if i >= 18: return
            st = i % NST
            nt, mat = divmod(f, 2)
            slot = g % RING
            base = vWa if st < 3 else vWb
            off = (st % 3) * STG + mat * UP + nt * 32
            a(f"ds_read_b64_tr_b16 {vr(WR+slot*4,2)}, v{base} offset:{off}")
            a(f"ds_read_b64_tr_b16 {vr(WR+slot*4+2,2)}, v{base} offset:{off+4608}")
        vm.wait(lambda t: t[1] <= 0)
        for op in norm_ops(0): a(op)
        a("s_barrier")
        for f in range(PF): wread(f)
        stamp(a, 1)
        sched = {0: [2, 3], 1: [4, 5], 2: [6, 7]}
        for i in range(18):
            lg = []
            for j in sched.get(i, [i + 5]): lg += load_groups(j)
            nops = norm_ops(i + 1)
            ni = 0; gi = 0
            gpos = [1 + (k * 16) // max(1, len(lg)) for k in range(len(lg))]
            nstart = 6 if i < 3 else 1
            per = (len(nops) + (16 - nstart)) // (17 - nstart) if nops else 0
            for f in range(18):
                g = i*18 + f
                half, nt = divmod(f, 9)
                slot = g % RING
                if i == 0 and f == 18 - PF:
                    vm.wait(lambda t: t[0] == "W" and t[1] <= 1)
                    a("s_barrier")
                wread(g + PF)
                rem = min(PF, 18*18 - 1 - g)
                a(f"s_waitcnt lgkmcnt({2*rem})")
                nt, mat = divmod(f, 2)
                for mt in range(2):
                    a(f"v_mfma_f32_16x16x32_bf16 {vr(acc(nt,mat,mt),4)}, {vr(WR+slot*4,4)}, {vr(XS+(i%NST)*8+mt*4,4)}, " + ("0" if i == 0 else vr(acc(nt,mat,mt),4)))
                if f == nstart and nops:
                    vm.wait(lambda t: t[0] == "X" and t[1] <= i + 1)
                while gi < len(lg) and gpos[gi] <= f:
                    emit_group(lg[gi]); gi += 1
                if f >= nstart:
                    for _ in range(per):
                        if ni < len(nops):
                            a(nops[ni]); ni += 1
            assert ni == len(nops) and gi == len(lg), (i, ni, len(nops), gi, len(lg))
            if i < 17:
                vm.wait(lambda t: t[0] == "W" and t[1] <= i + 2)
                a("s_barrier")
    body(3, "A")
    a(f"s_branch L_{name}_epi")
    a.lab(f"L_{name}_typeB")
    body(2, "B")
    a.lab(f"L_{name}_epi")
    if "pstamp" not in OPT: stamp(a, 2)
    a("s_waitcnt vmcnt(0) lgkmcnt(0)")
    sA_, sB_ = sT+6, sT+7
    a(f"s_mov_b32 s{sA_}, {f32(GELU_A)}")
    a(f"s_mov_b32 s{sB_}, {f32(GELU_B)}")
    a(f"v_lshlrev_b32 v{vX0}, 4, v0")
    a(f"s_and_b32 s{sT}, s{sFb}, 1")
    a(f"s_lshl_b32 s{sT+1}, s{sT}, 12")
    a(f"s_add_u32 s{sT+1}, s{sT+1}, s{sHb}")
    a(f"s_lshl_b32 s{sT+2}, s{sT}, 3")
    a(f"s_add_u32 s{sT+2}, s{sT+2}, s{sHb}")
    a(f"s_add_u32 s{sT+2}, s{sT+2}, {8*1024}")
    a(f"s_add_u32 s{sT+3}, s{sT+1}, {144*1024}")
    a(f"s_add_u32 s{sT+4}, s{sT+2}, {144*1024}")
    a(f"v_mov_b32 v{vT}, s{sA_}")
    a("s_nop 7")
    def gelu_tile(nt, mt, dst):
        T = WR
        lines = [[], []]
        for c in range(2):
            g0, g1 = acc(nt,0,mt) + 2*c, acc(nt,0,mt) + 2*c + 1
            u0, u1 = acc(nt,1,mt) + 2*c, acc(nt,1,mt) + 2*c + 1
            t0, t1 = T + c*8 + 4, T + c*8 + 5
            x0, x1, y0, y1 = g0, g1, u0, u1
            L = lines[c]
            L += [f"v_mul_f32 v{t0}, v{x0}, v{x0}", f"v_mul_f32 v{t1}, v{x1}, v{x1}",
                  f"v_fma_f32 v{t0}, v{t0}, s{sB_}, v{vT}", f"v_fma_f32 v{t1}, v{t1}, s{sB_}, v{vT}",
                  f"v_mul_f32 v{t0}, v{t0}, v{x0}", f"v_mul_f32 v{t1}, v{t1}, v{x1}",
                  f"v_exp_f32 v{t0}, v{t0}", f"v_exp_f32 v{t1}, v{t1}",
                  f"v_mul_f32 v{y0}, v{y0}, v{x0}", f"v_mul_f32 v{y1}, v{y1}, v{x1}",
                  f"v_add_f32 v{t0}, 1.0, v{t0}", f"v_add_f32 v{t1}, 1.0, v{t1}",
                  f"v_rcp_f32 v{t0}, v{t0}", f"v_rcp_f32 v{t1}, v{t1}",
                  f"v_mul_f32 v{t0}, v{t0}, v{y0}", f"v_mul_f32 v{t1}, v{t1}, v{y1}",
                  f"v_cvt_pk_bf16_f32 v{dst+c}, v{t0}, v{t1}"]
        i0 = i1 = 0
        while i0 < len(lines[0]) or i1 < len(lines[1]):
            for _ in range(2):
                if i0 < len(lines[0]): a(lines[0][i0]); i0 += 1
            for _ in range(2):
                if i1 < len(lines[1]): a(lines[1][i1]); i1 += 1
    k = 0
    for mt in range(2):
        for p in range(4):
            o = XS + (k % 12) * 4; k += 1
            gelu_tile(2*p, mt, o)
            gelu_tile(2*p+1, mt, o+2)
            a(f"buffer_store_dwordx4 {vr(o,4)}, v{vX0}, {sr(sH,4)}, s{sT+1+2*mt} offen offset:{p*1024}")
        o = XS + (k % 12) * 4; k += 1
        gelu_tile(8, mt, o)
        a(f"buffer_store_dwordx2 {vr(o,2)}, v{vX0}, {sr(sH,4)}, s{sT+2+2*mt} offen")
    if "pstamp" not in OPT: stamp(a, 3)
    if "stamp" in OPT: a("s_waitcnt vmcnt(0)")
    if "pstamp" not in OPT: stamp(a, 4)
    stamp(a, 6, True)
    stamp_dump(a, 7, 8, sWave, vT+4)
    a.lab(f"L_{name}_done")
    a("s_endpgm")
    return a.text(), kernel_desc(name, NV), f"; @launch kernel={name} grid=(256,1,1) block=(512,1,1) lds={NST*STG}"

def gen_k4v2(name="k4_kernel"):
    a = A(); a.stpol = os.environ.get("K4ST", "sc1")
    kernel_head(a, name)
    NST = 6; STG = 18432; RING = 6; PFD = 5; PF = RING - 1
    ROWB = 4608 if "m16" in OPT else 2304
    ACC = 4; XS = 76; WR = 124
    vWa, vWb = 148, 149
    vD = 150; vDm = 153
    vX0, vX1 = 156, 157
    vT = 160
    NV = 176
    def acc(nt, mt): return ACC + (nt*2+mt)*4
    sW, sX, sP = 12, 16, 20
    sWave, sKs, sMb, sNb = 28, 29, 30, 31
    sWb1, sXb, sPb = 32, 33, 34
    sM0 = 36
    sT = 40
    sWo = 52
    a("s_cmp_ge_u32 s2, 256")
    a(f"s_cbranch_scc1 L_{name}_done")
    stamp(a, 0); stamp(a, 5, True)
    a("s_load_dwordx2 s[4:5], s[0:1], 48")
    a("s_load_dwordx2 s[8:9], s[0:1], 72")
    a("v_lshrrev_b32 v1, 6, v0")
    a("v_and_b32 v0, 63, v0")
    a("s_nop 0")
    a(f"v_readfirstlane_b32 s{sWave}, v1")
    a(f"s_and_b32 s{sT}, s2, 7")
    a(f"s_lshr_b32 s{sT+1}, s2, 3")
    a(f"s_lshr_b32 s{sKs}, s{sT}, 1")
    a(f"s_and_b32 s{sNb}, s{sT+1}, 3")
    a(f"s_and_b32 s{sT}, s{sT}, 1")
    a(f"s_lshl_b32 s{sT}, s{sT}, 3")
    a(f"s_lshr_b32 s{sMb}, s{sT+1}, 2")
    a(f"s_add_u32 s{sMb}, s{sMb}, s{sT}")
    dma_slots_setup(a, sWave, sT, vT, vD, 1152, sM0, 0)
    a(f"s_cmp_eq_u32 s{sWave}, 0")
    a(f"s_cselect_b32 s{sT}, 0, {576*1152}")
    a(f"v_add_u32 v{vD+1}, s{sT}, v{vD+1}")
    a(f"v_add_u32 v{vD+2}, {576*1152}, v{vD+2}")
    a(f"s_mov_b32 s{sT}, {128*1152}")
    for k in range(3):
        a(f"v_cmp_lt_u32 vcc, 15, v{vT+8+k}")
        a(f"v_mov_b32 v{vT+1}, s{sT}")
        a("s_nop 0")
        a(f"v_cndmask_b32 v{vT+1}, 0, v{vT+1}, vcc")
        a(f"v_add_u32 v{vDm+k}, v{vD+k}, v{vT+1}")
    a(f"s_mul_i32 s{sWb1}, s{sKs}, {2*576*1152}")
    a(f"s_mul_i32 s{sT}, s{sNb}, 288")
    a(f"s_add_u32 s{sWb1}, s{sWb1}, s{sT}")
    a(f"s_lshr_b32 s{sT}, s{sWave}, 2")
    a(f"s_lshl_b32 s{sT+1}, s{sKs}, 1")
    a(f"s_add_u32 s{sT+1}, s{sT+1}, s{sT}")
    a(f"s_and_b32 s{sT+2}, s{sWave}, 3")
    a(f"s_lshl_b32 s{sXb}, s{sMb}, 3")
    a(f"s_lshl_b32 s{sT+3}, s{sT+2}, 1")
    a(f"s_add_u32 s{sXb}, s{sXb}, s{sT+3}")
    a(f"s_mov_b32 s{sT+4}, s{sXb}")
    a(f"s_mul_i32 s{sXb}, s{sXb}, 144")
    a(f"s_mul_i32 s{sT+3}, s{sT+1}, 18")
    a(f"s_add_u32 s{sXb}, s{sXb}, s{sT+3}")
    a(f"s_lshl_b32 s{sXb}, s{sXb}, 10")
    a(f"v_lshlrev_b32 v{vX0}, 4, v0")
    a(f"v_add_u32 v{vX0}, s{sXb}, v{vX0}")
    a(f"v_add_u32 v{vX1}, {144*1024}, v{vX0}")
    a(f"s_lshl_b32 s{sPb}, s{sKs}, 7")
    a(f"s_add_u32 s{sPb}, s{sPb}, s{sT+4}")
    a(f"s_add_u32 s{sPb}, s{sPb}, s{sT}")
    a(f"s_mul_i32 s{sPb}, s{sPb}, 36")
    a(f"s_mul_i32 s{sT+6}, s{sNb}, 9")
    a(f"s_add_u32 s{sPb}, s{sPb}, s{sT+6}")
    a(f"s_lshl_b32 s{sPb}, s{sPb}, 10")
    if "m16" in OPT:
        a(f"v_lshrrev_b32 v{vT+5}, 2, v0")
    else:
        a(f"v_lshrrev_b32 v{vT+5}, 5, v0")
        a(f"v_lshlrev_b32 v{vT+5}, 4, v{vT+5}")
        a(f"v_bfe_u32 v{vT+6}, v0, 2, 3")
        a(f"v_add_u32 v{vT+5}, v{vT+5}, v{vT+6}")
    a(f"v_mul_u32_u24 v{vT+5}, 288, v{vT+5}")
    a(f"v_and_b32 v{vT+6}, 3, v0")
    a(f"v_lshl_add_u32 v{vWa}, v{vT+6}, 3, v{vT+5}")
    a(f"s_mul_i32 s{sT+6}, s{sT}, 9216")
    a(f"v_add_u32 v{vWa}, s{sT+6}, v{vWa}")
    a(f"v_add_u32 v{vWb}, {3*STG}, v{vWa}")
    a("s_waitcnt lgkmcnt(0)")
    srd(a, sW, 4, 4608*576*2)
    srd(a, sX, 8, HH_SZ, HH_OFF)
    srd(a, sP, 8, P_SZ, P_OFF)
    def fa_rel(i):
        q, ii = divmod(i, 9)
        if ii < 4: return 288*q + 32*ii
        if ii < 8: return 288*q + 144 + 32*(ii-4)
        return 288*q + 128
    def body(nd, tag):
        vm = VM(a)
        def load_groups(i):
            if i >= 18: return []
            st = i % NST
            gs = []
            vv = vDm if i % 9 == 8 else vD
            for k in range(2):
                g = []
                if k == 0:
                    g.append(("s", f"s_add_u32 s{sWo}, s{sWb1}, {fa_rel(i)*1152}"))
                    g += [("s", f"s_cmp_ge_u32 s{sWave}, 2"), ("s", f"s_cbranch_scc1 L_{name}_sk{i}"),
                          ("s", f"s_add_u32 m0, s{sM0+2}, {st*STG}"), ("s", "s_nop 0"),
                          ("s", f"buffer_load_dwordx4 v{vv+2}, {sr(sW,4)}, s{sWo} offen lds"),
                          ("l", f"L_{name}_sk{i}")]
                g.append(("s", f"s_add_u32 m0, s{sM0+k}, {st*STG}"))
                g.append(("s", "s_nop 0"))
                g.append((("W", i), f"buffer_load_dwordx4 v{vv+k}, {sr(sW,4)}, s{sWo} offen lds"))
                gs.append(g)
            xs = XS + (i % NST) * 8
            gs.append([("s", f"s_mov_b32 s{sWo+1}, {i*1024}"),
                       (("X", i), f"buffer_load_dwordx4 {vr(xs,4)}, v{vX0}, {sr(sX,4)}, s{sWo+1} offen")])
            gs.append([(("X", i), f"buffer_load_dwordx4 {vr(xs+4,4)}, v{vX1}, {sr(sX,4)}, s{sWo+1} offen")])
            return gs
        def emit_group(g):
            for tg, txt in g:
                if tg == "s": a(txt)
                elif tg == "l": a.lab(txt)
                else: vm.op(tg, txt)
        for i in range(2):
            for g in load_groups(i): emit_group(g)
        for i in range(0, 72, 2):
            a(f"v_mov_b64 {vr(ACC+i,2)}, 0")
        sched = {0: [2, 3], 1: [4, 5], 2: [6, 7]}
        def wread(gidx):
            i, nt = divmod(gidx, 9)
            if i >= 18: return
            st = i % NST; slot = gidx % RING
            base = vWa if st < 3 else vWb
            off = (st % 3) * STG + nt * 32
            a(f"ds_read_b64_tr_b16 {vr(WR+slot*4,2)}, v{base} offset:{off}")
            a(f"ds_read_b64_tr_b16 {vr(WR+slot*4+2,2)}, v{base} offset:{off+ROWB}")
        vm.wait(lambda t: t[1] <= 0)
        a("s_barrier")
        for f in range(PF): wread(f)
        stamp(a, 1)
        for i in range(18):
            lg = []
            for j in sched.get(i, [i + PFD]): lg += load_groups(j)
            vm.wait(lambda t: t[0] == "X" and t[1] <= i)
            gi = 0
            gpos = [(k * 9) // max(1, len(lg)) for k in range(len(lg))]
            for nt in range(9):
                g = i*9 + nt; slot = g % RING
                if i == 0 and nt == 9 - PF:
                    vm.wait(lambda t: t[0] == "W" and t[1] <= 1)
                    a("s_barrier")
                wread(g + PF)
                rem = min(PF, 18*9 - 1 - g)
                a(f"s_waitcnt lgkmcnt({2*rem})")
                xs = XS + (i % NST) * 8
                a(f"v_mfma_f32_16x16x32_bf16 {vr(acc(nt,0),4)}, {vr(WR+slot*4,4)}, {vr(xs,4)}, {vr(acc(nt,0),4)}")
                a(f"v_mfma_f32_16x16x32_bf16 {vr(acc(nt,1),4)}, {vr(WR+slot*4,4)}, {vr(xs+4,4)}, {vr(acc(nt,1),4)}")
                while gi < len(lg) and gpos[gi] <= nt:
                    emit_group(lg[gi]); gi += 1
            assert gi == len(lg)
            vm.wait(lambda t: t[0] == "W" and t[1] <= i + 2)
            a("s_barrier")
    body(2, "B")
    a.lab(f"L_{name}_epi")
    stamp(a, 2)
    a(f"s_lshr_b32 s{sT}, s{sWave}, 2")
    a(f"v_lshlrev_b32 v{vT}, 4, v0")
    a(f"s_mul_i32 s{sT+1}, s{sWave}, 9216")
    a(f"v_add_u32 v{vT+1}, s{sT+1}, v{vT}")
    a(f"s_xor_b32 s{sT+2}, s{sWave}, 4")
    a(f"s_mul_i32 s{sT+2}, s{sT+2}, 9216")
    a(f"v_add_u32 v{vT+2}, s{sT+2}, v{vT}")
    a(f"s_cmp_eq_u32 s{sT}, 0")
    a("s_nop 4")
    a(f"s_cbranch_scc0 L_{name}_kh1")
    for kh in range(2):
        if kh == 1: a.lab(f"L_{name}_kh1")
        for nt in range(9):
            a(f"ds_write_b128 v{vT+1}, {vr(acc(nt,1-kh),4)} offset:{nt*1024}")
        a("s_waitcnt lgkmcnt(0)")
        a("s_barrier")
        for nt in range(9):
            a(f"ds_read_b128 {vr(XS+nt*4,4)}, v{vT+2} offset:{nt*1024}")
        for nt in range(9):
            a(f"s_waitcnt lgkmcnt({8-nt})")
            for r in range(4):
                a(f"v_add_f32 v{XS+nt*4+r}, v{XS+nt*4+r}, v{acc(nt,kh)+r}")
            if nt in (4, 8): a(f"s_add_u32 s{sPb}, s{sPb}, 4096")
            a(f"buffer_store_dwordx4 {vr(XS+nt*4,4)}, v{vT}, {sr(sP,4)}, s{sPb} offen offset:{(nt%4)*1024}")
        stamp(a, 3)
        if "stamp" in OPT: a("s_waitcnt vmcnt(0)")
        stamp(a, 4); stamp(a, 6, True)
        stamp_dump(a, 7, 8, sWave, vT+4, 1)
        a("s_endpgm")
    a.lab(f"L_{name}_done")
    a("s_endpgm")
    return a.text(), kernel_desc(name, NV), f"; @launch kernel={name} grid=(256,1,1) block=(512,1,1) lds={NST*STG}"


def gen_k45(name="k4_kernel"):
    a = A(); a.stpol = os.environ.get("K4ST", "sc1")
    kernel_head(a, name)
    NST = 6; STG = 18432; RING = 6; PFD = 5; PF = RING - 1
    ROWB = 4608 if "m16" in OPT else 2304
    ACC = 4; XS = 76; WR = 124
    vWa, vWb = 148, 149
    vD = 150; vDm = 153
    vX0, vX1 = 156, 157
    vT = 160
    NV = 176
    def acc(nt, mt): return ACC + (nt*2+mt)*4
    sW, sX, sP = 12, 16, 20
    sWave, sKs, sMb, sNb = 28, 29, 30, 31
    sWb1, sXb, sPb = 32, 33, 34
    sM0 = 36
    sT = 40
    sWo = 52
    NC = 144
    a(f"s_cmp_ge_u32 s2, {256+NC}")
    a(f"s_cbranch_scc1 L_{name}_done")
    a("s_cmp_ge_u32 s2, 256")
    a(f"s_cbranch_scc1 L_{name}_cons")
    stamp(a, 0); stamp(a, 5, True)
    a("s_load_dwordx2 s[4:5], s[0:1], 48")
    a("s_load_dwordx2 s[8:9], s[0:1], 72")
    a("s_load_dwordx2 s[10:11], s[0:1], 64")
    a("v_lshrrev_b32 v1, 6, v0")
    a("v_and_b32 v0, 63, v0")
    a("s_nop 0")
    a(f"v_readfirstlane_b32 s{sWave}, v1")
    a(f"s_and_b32 s{sT}, s2, 7")
    a(f"s_lshr_b32 s{sT+1}, s2, 3")
    a(f"s_lshr_b32 s{sKs}, s{sT}, 1")
    a(f"s_and_b32 s{sNb}, s{sT+1}, 3")
    a(f"s_and_b32 s{sT}, s{sT}, 1")
    a(f"s_lshl_b32 s{sT}, s{sT}, 3")
    a(f"s_lshr_b32 s{sMb}, s{sT+1}, 2")
    a(f"s_add_u32 s{sMb}, s{sMb}, s{sT}")
    dma_slots_setup(a, sWave, sT, vT, vD, 1152, sM0, 0)
    a(f"s_cmp_eq_u32 s{sWave}, 0")
    a(f"s_cselect_b32 s{sT}, 0, {576*1152}")
    a(f"v_add_u32 v{vD+1}, s{sT}, v{vD+1}")
    a(f"v_add_u32 v{vD+2}, {576*1152}, v{vD+2}")
    a(f"s_mov_b32 s{sT}, {128*1152}")
    for k in range(3):
        a(f"v_cmp_lt_u32 vcc, 15, v{vT+8+k}")
        a(f"v_mov_b32 v{vT+1}, s{sT}")
        a("s_nop 0")
        a(f"v_cndmask_b32 v{vT+1}, 0, v{vT+1}, vcc")
        a(f"v_add_u32 v{vDm+k}, v{vD+k}, v{vT+1}")
    a(f"s_mul_i32 s{sWb1}, s{sKs}, {2*576*1152}")
    a(f"s_mul_i32 s{sT}, s{sNb}, 288")
    a(f"s_add_u32 s{sWb1}, s{sWb1}, s{sT}")
    a(f"s_lshr_b32 s{sT}, s{sWave}, 2")
    a(f"s_lshl_b32 s{sT+1}, s{sKs}, 1")
    a(f"s_add_u32 s{sT+1}, s{sT+1}, s{sT}")
    a(f"s_and_b32 s{sT+2}, s{sWave}, 3")
    a(f"s_lshl_b32 s{sXb}, s{sMb}, 3")
    a(f"s_lshl_b32 s{sT+3}, s{sT+2}, 1")
    a(f"s_add_u32 s{sXb}, s{sXb}, s{sT+3}")
    a(f"s_mov_b32 s{sT+4}, s{sXb}")
    a(f"s_mul_i32 s{sXb}, s{sXb}, 144")
    a(f"s_mul_i32 s{sT+3}, s{sT+1}, 18")
    a(f"s_add_u32 s{sXb}, s{sXb}, s{sT+3}")
    a(f"s_lshl_b32 s{sXb}, s{sXb}, 10")
    a(f"v_lshlrev_b32 v{vX0}, 4, v0")
    a(f"v_add_u32 v{vX0}, s{sXb}, v{vX0}")
    a(f"v_add_u32 v{vX1}, {144*1024}, v{vX0}")
    a(f"s_lshl_b32 s{sPb}, s{sKs}, 7")
    a(f"s_add_u32 s{sPb}, s{sPb}, s{sT+4}")
    a(f"s_add_u32 s{sPb}, s{sPb}, s{sT}")
    a(f"s_mul_i32 s{sPb}, s{sPb}, 36")
    a(f"s_mul_i32 s{sT+6}, s{sNb}, 9")
    a(f"s_add_u32 s{sPb}, s{sPb}, s{sT+6}")
    a(f"s_lshl_b32 s{sPb}, s{sPb}, 10")
    if "m16" in OPT:
        a(f"v_lshrrev_b32 v{vT+5}, 2, v0")
    else:
        a(f"v_lshrrev_b32 v{vT+5}, 5, v0")
        a(f"v_lshlrev_b32 v{vT+5}, 4, v{vT+5}")
        a(f"v_bfe_u32 v{vT+6}, v0, 2, 3")
        a(f"v_add_u32 v{vT+5}, v{vT+5}, v{vT+6}")
    a(f"v_mul_u32_u24 v{vT+5}, 288, v{vT+5}")
    a(f"v_and_b32 v{vT+6}, 3, v0")
    a(f"v_lshl_add_u32 v{vWa}, v{vT+6}, 3, v{vT+5}")
    a(f"s_mul_i32 s{sT+6}, s{sT}, 9216")
    a(f"v_add_u32 v{vWa}, s{sT+6}, v{vWa}")
    a(f"v_add_u32 v{vWb}, {3*STG}, v{vWa}")
    a("s_waitcnt lgkmcnt(0)")
    srd(a, sW, 4, 4608*576*2)
    srd(a, sX, 8, HH_SZ, HH_OFF)
    srd(a, sP, 8, P_SZ, P_OFF)
    a(f"s_cmp_ge_u32 s{sWave}, 2")
    a(f"s_cbranch_scc1 L_{name}_typeB")
    def fa_rel(i):
        q, ii = divmod(i, 9)
        if ii < 4: return 288*q + 32*ii
        if ii < 8: return 288*q + 144 + 32*(ii-4)
        return 288*q + 128
    def body(nd, tag):
        vm = VM(a)
        def load_groups(i):
            if i >= 18: return []
            st = i % NST
            gs = []
            vv = vDm if i % 9 == 8 else vD
            for k in range(nd):
                g = []
                if k == 0:
                    g.append(("s", f"s_add_u32 s{sWo}, s{sWb1}, {fa_rel(i)*1152}"))
                g.append(("s", f"s_add_u32 m0, s{sM0+k}, {st*STG}"))
                g.append(("s", "s_nop 0"))
                g.append((("W", i), f"buffer_load_dwordx4 v{vv+k}, {sr(sW,4)}, s{sWo} offen lds"))
                gs.append(g)
            xs = XS + (i % NST) * 8
            gs.append([("s", f"s_mov_b32 s{sWo+1}, {i*1024}"),
                       (("X", i), f"buffer_load_dwordx4 {vr(xs,4)}, v{vX0}, {sr(sX,4)}, s{sWo+1} offen")])
            gs.append([(("X", i), f"buffer_load_dwordx4 {vr(xs+4,4)}, v{vX1}, {sr(sX,4)}, s{sWo+1} offen")])
            return gs
        def emit_group(g):
            for tg, txt in g:
                if tg == "s": a(txt)
                else: vm.op(tg, txt)
        for i in range(2):
            for g in load_groups(i): emit_group(g)
        for i in range(0, 72, 2):
            a(f"v_mov_b64 {vr(ACC+i,2)}, 0")
        sched = {0: [2, 3], 1: [4, 5], 2: [6, 7]}
        def wread(gidx):
            i, nt = divmod(gidx, 9)
            if i >= 18: return
            st = i % NST; slot = gidx % RING
            base = vWa if st < 3 else vWb
            off = (st % 3) * STG + nt * 32
            a(f"ds_read_b64_tr_b16 {vr(WR+slot*4,2)}, v{base} offset:{off}")
            a(f"ds_read_b64_tr_b16 {vr(WR+slot*4+2,2)}, v{base} offset:{off+ROWB}")
        vm.wait(lambda t: t[1] <= 0)
        a("s_barrier")
        for f in range(PF): wread(f)
        stamp(a, 1)
        for i in range(18):
            lg = []
            for j in sched.get(i, [i + PFD]): lg += load_groups(j)
            vm.wait(lambda t: t[0] == "X" and t[1] <= i)
            gi = 0
            gpos = [(k * 9) // max(1, len(lg)) for k in range(len(lg))]
            for nt in range(9):
                g = i*9 + nt; slot = g % RING
                if i == 0 and nt == 9 - PF:
                    vm.wait(lambda t: t[0] == "W" and t[1] <= 1)
                    a("s_barrier")
                wread(g + PF)
                rem = min(PF, 18*9 - 1 - g)
                a(f"s_waitcnt lgkmcnt({2*rem})")
                xs = XS + (i % NST) * 8
                a(f"v_mfma_f32_16x16x32_bf16 {vr(acc(nt,0),4)}, {vr(WR+slot*4,4)}, {vr(xs,4)}, {vr(acc(nt,0),4)}")
                a(f"v_mfma_f32_16x16x32_bf16 {vr(acc(nt,1),4)}, {vr(WR+slot*4,4)}, {vr(xs+4,4)}, {vr(acc(nt,1),4)}")
                while gi < len(lg) and gpos[gi] <= nt:
                    emit_group(lg[gi]); gi += 1
            assert gi == len(lg)
            vm.wait(lambda t: t[0] == "W" and t[1] <= i + 2)
            a("s_barrier")
    body(3, "A")
    a(f"s_branch L_{name}_epi")
    a.lab(f"L_{name}_typeB")
    body(2, "B")
    a.lab(f"L_{name}_epi")
    stamp(a, 2)
    a(f"s_lshr_b32 s{sT}, s{sWave}, 2")
    a(f"v_lshlrev_b32 v{vT}, 4, v0")
    a(f"s_mul_i32 s{sT+1}, s{sWave}, 9216")
    a(f"v_add_u32 v{vT+1}, s{sT+1}, v{vT}")
    a(f"s_xor_b32 s{sT+2}, s{sWave}, 4")
    a(f"s_mul_i32 s{sT+2}, s{sT+2}, 9216")
    a(f"v_add_u32 v{vT+2}, s{sT+2}, v{vT}")
    a(f"s_cmp_eq_u32 s{sT}, 0")
    a("s_nop 4")
    a(f"s_cbranch_scc0 L_{name}_kh1")
    for kh in range(2):
        if kh == 1: a.lab(f"L_{name}_kh1")
        for nt in range(9):
            a(f"ds_write_b128 v{vT+1}, {vr(acc(nt,1-kh),4)} offset:{nt*1024}")
        a("s_waitcnt lgkmcnt(0)")
        a("s_barrier")
        for nt in range(9):
            a(f"ds_read_b128 {vr(XS+nt*4,4)}, v{vT+2} offset:{nt*1024}")
        for nt in range(9):
            a(f"s_waitcnt lgkmcnt({8-nt})")
            for r in range(4):
                a(f"v_add_f32 v{XS+nt*4+r}, v{XS+nt*4+r}, v{acc(nt,kh)+r}")
            if nt in (4, 8): a(f"s_add_u32 s{sPb}, s{sPb}, 4096")
            a(f"buffer_store_dwordx4 {vr(XS+nt*4,4)}, v{vT}, {sr(sP,4)}, s{sPb} offen offset:{(nt%4)*1024}")
        stamp(a, 3)
        a("s_waitcnt vmcnt(0)")
        a("s_barrier")
        stamp(a, 4); stamp(a, 6, True)
        stamp_dump(a, 7, 8, sWave, vT+4, 1)
        if kh == 0:
            a(f"s_cmp_lg_u32 s{sWave}, 0")
            a(f"s_cbranch_scc1 L_{name}_done")
            srd(a, 24, 10, 256)
            a(f"s_lshl_b32 s{sT}, s{sMb}, 2")
            a(f"v_mov_b32 v{vT}, s{sT}")
            a(f"v_mov_b32 v{vT+1}, 1")
            a("s_mov_b64 exec, 1")
            a(f"buffer_atomic_add v{vT+1}, v{vT}, s[24:27], 0 offen sc1")
        a("s_endpgm")
    a.lab(f"L_{name}_cons")
    a("s_load_dwordx2 s[4:5], s[0:1], 56")
    a("s_load_dwordx4 s[8:11], s[0:1], 64")
    a("v_lshrrev_b32 v1, 6, v0")
    a("v_and_b32 v0, 63, v0")
    a("s_sub_u32 s28, s2, 256")
    a("v_readfirstlane_b32 s29, v1")
    a("s_mul_i32 s30, s28, 7282")
    a("s_lshr_b32 s30, s30, 16")
    a("s_lshl_b32 s31, s28, 4")
    a("s_lshl_b32 s32, s29, 1")
    a("s_add_u32 s31, s31, s32")
    a("s_waitcnt lgkmcnt(0)")
    srd(a, 12, 10, H1_SZ, H1_OFF)
    srd(a, 16, 10, P_SZ, P_OFF)
    srd(a, 20, 4, 2048*576*2)
    srd(a, 24, 8, 256)
    a("v_lshlrev_b32 v1, 4, v0")
    a("s_lshl_b32 s32, s31, 10")
    a("buffer_load_dwordx4 v[4:7], v1, s[12:15], s32 offen")
    a("buffer_load_dwordx4 v[44:47], v1, s[12:15], s32 offen offset:1024")
    a("s_cmp_lg_u32 s29, 0")
    a(f"s_cbranch_scc1 L_{name}_wait")
    a("s_lshl_b32 s33, s30, 2")
    a("v_mov_b32 v2, s33")
    a.lab(f"L_{name}_poll")
    a("buffer_load_dword v3, v2, s[24:27], 0 offen sc1")
    a("s_waitcnt vmcnt(0)")
    a("v_readfirstlane_b32 s34, v3")
    a("s_cmp_ge_u32 s34, 16")
    a(f"s_cbranch_scc1 L_{name}_wait")
    a("s_sleep 2")
    a(f"s_branch L_{name}_poll")
    a.lab(f"L_{name}_wait")
    a("s_barrier")
    a("s_lshl_b32 s33, s31, 11")
    for t in range(2):
        B = 8 + t*40
        for k_ in range(4):
            a.l.append(f"    buffer_load_dwordx4 v[{B+k_*8}:{B+3+k_*8}], v1, s[16:19], s33 offen offset:{t*2048} sc1")
            a.l.append(f"    buffer_load_dwordx4 v[{B+4+k_*8}:{B+7+k_*8}], v1, s[16:19], s33 offen offset:{t*2048+1024} sc1")
            a(f"s_add_u32 s33, s33, {128*36*1024}")
        a(f"s_sub_u32 s33, s33, {4*128*36*1024}")
    for t in range(2):
        B = 8 + t*40; Hh = 4 + t*40
        a(f"s_add_u32 s35, s31, {t}")
        a("s_mul_i32 s36, s35, 3641")
        a("s_lshr_b32 s36, s36, 16")
        a("s_mul_i32 s37, s36, 18")
        a("s_sub_u32 s37, s35, s37")
        a("v_and_b32 v2, 15, v0")
        a("s_lshl_b32 s38, s36, 4")
        a("v_add_u32 v2, s38, v2")
        a("v_mul_u32_u24 v2, 1152, v2")
        a("v_lshrrev_b32 v3, 4, v0")
        a("v_lshl_add_u32 v2, v3, 3, v2")
        a("s_lshl_b32 s38, s37, 6")
        a(f"s_waitcnt vmcnt({8 if t == 0 else 2})")
        for i in range(8):
            a(f"v_add_f32 v{B+i}, v{B+i}, v{B+8+i}")
            a(f"v_add_f32 v{B+16+i}, v{B+16+i}, v{B+24+i}")
        for i in range(8):
            a(f"v_add_f32 v{B+i}, v{B+i}, v{B+16+i}")
        for p in range(4):
            a(f"v_cvt_pk_bf16_f32 v{B+8+p}, v{B+2*p}, v{B+1+2*p}")
        for p in range(4):
            a(f"v_lshlrev_b32 v{B+16+2*p}, 16, v{B+8+p}")
            a(f"v_and_b32 v{B+17+2*p}, 0xffff0000, v{B+8+p}")
            a(f"v_lshlrev_b32 v{B+24+2*p}, 16, v{Hh+p}")
            a(f"v_and_b32 v{B+25+2*p}, 0xffff0000, v{Hh+p}")
        for i in range(8):
            a(f"v_add_f32 v{B+16+i}, v{B+16+i}, v{B+24+i}")
        for p in range(4):
            a(f"v_cvt_pk_bf16_f32 v{B+8+p}, v{B+16+2*p}, v{B+17+2*p}")
        a(f"buffer_store_dwordx2 v[{B+8}:{B+9}], v2, s[20:23], s38 offen")
        a(f"buffer_store_dwordx2 v[{B+10}:{B+11}], v2, s[20:23], s38 offen offset:32")
    a.lab(f"L_{name}_done")
    a("s_endpgm")
    return a.text(), kernel_desc(name, NV), f"; @launch kernel={name} grid=({256+NC},1,1) block=(512,1,1) lds={NST*STG}"


def gen_k1v3(name="k1_kernel"):
    a = A(); vm = VM(a)
    kernel_head(a, name)
    XT = 0
    WB = 92160; STG = 16384; NST = 4; PITCH = 480
    QP = 624
    ACC = 4
    XF = 44
    WF = 84
    RAW = 100
    vD0, vD1 = 150, 151
    vWa, vXa, vXb = 152, 153, 154
    vNM, vR, vLW = 155, 156, 157
    vT = 160
    NV = 184
    sW, sXs, sO = 12, 16, 20
    sWave, sRb, sHg, sT = 28, 29, 30, 36
    sWo, sM0b = 31, 32
    a("s_cmp_ge_u32 s2, 256")
    a(f"s_cbranch_scc1 L_{name}_done")
    stamp(a, 0); stamp(a, 5, True)
    a("s_load_dwordx4 s[4:7], s[0:1], 0")
    a("s_load_dwordx2 s[8:9], s[0:1], 72")
    if "nowpf" not in OPT:
        a("s_load_dwordx4 s[48:51], s[0:1], 32")
        a("s_load_dwordx2 s[52:53], s[0:1], 48")
        a("s_load_dwordx2 s[92:93], s[0:1], 16")
    a("v_lshrrev_b32 v1, 6, v0")
    a("v_mov_b32 v3, v0")
    a("v_and_b32 v0, 63, v0")
    a(f"v_readfirstlane_b32 s{sWave}, v1")
    a(f"s_lshr_b32 s{sT}, s2, 3")
    a(f"s_and_b32 s{sHg}, s{sT}, 3")
    a(f"s_and_b32 s{sT+1}, s2, 1")
    a(f"s_lshl_b32 s{sT+1}, s{sT+1}, 2")
    a(f"s_add_u32 s{sHg}, s{sHg}, s{sT+1}")
    a(f"s_lshr_b32 s{sRb}, s{sT}, 2")
    a(f"s_bfe_u32 s{sT+1}, s2, 0x20001")
    a(f"s_lshl_b32 s{sT+1}, s{sT+1}, 3")
    a(f"s_add_u32 s{sRb}, s{sRb}, s{sT+1}")
    a(f"v_min_u32 v{vT+4}, 59, v0")
    a(f"v_mul_u32_u24 v{vT}, 10923, v{vT+4}")
    a(f"v_lshrrev_b32 v{vT}, 16, v{vT}")
    a(f"v_mul_u32_u24 v{vT+1}, 6, v{vT}")
    a(f"v_sub_u32 v{vT+1}, v{vT+4}, v{vT+1}")
    a(f"s_mul_i32 s{sT}, s{sWave}, 10")
    a(f"v_add_u32 v{vT+2}, s{sT}, v{vT}")
    a(f"s_lshl_b32 s{sT+1}, s{sRb}, 6")
    a(f"s_sub_u32 s{sT+1}, s{sT+1}, 16")
    a(f"v_add_u32 v{vT+3}, s{sT+1}, v{vT+2}")
    a(f"s_movk_i32 s{sT+2}, 1152")
    a(f"v_mul_lo_u32 v{vT+3}, v{vT+3}, s{sT+2}")
    a(f"v_lshl_add_u32 v{vT+3}, v{vT+1}, 4, v{vT+3}")
    a("s_waitcnt lgkmcnt(0)")
    srd(a, sXs, 4, 2048*576*2)
    for i in range(12):
        vm.op(("x", i), f"buffer_load_dwordx4 {vr(RAW+i*4,4)}, v{vT+3}, {sr(sXs,4)}, 0 offen offset:{i*96}")
    srd(a, sW, 6, 576*1728*2)
    srd(a, sO, 8, O_SZ, O_OFF)
    a(f"s_lshl_b32 s{sT}, s{sWave}, 7")
    a(f"s_mul_i32 s{sT+1}, s{sHg}, 144")
    a(f"s_mov_b32 s{sT+2}, 0x40000000")
    for t, vd in enumerate((vD0, vD1)):
        a(f"v_add_u32 v{vT+4}, s{sT}, v0")
        if t: a(f"v_add_u32 v{vT+4}, 64, v{vT+4}")
        a(f"v_mul_u32_u24 v{vT+5}, 2185, v{vT+4}")
        a(f"v_lshrrev_b32 v{vT+5}, 16, v{vT+5}")
        a(f"v_mul_u32_u24 v{vT+6}, 30, v{vT+5}")
        a(f"v_sub_u32 v{vT+6}, v{vT+4}, v{vT+6}")
        a(f"v_mul_u32_u24 v{vT+7}, 7282, v{vT+6}")
        a(f"v_lshrrev_b32 v{vT+7}, 16, v{vT+7}")
        a(f"v_mul_u32_u24 v{vT+8}, 9, v{vT+7}")
        a(f"v_sub_u32 v{vT+8}, v{vT+6}, v{vT+8}")
        a(f"v_mul_u32_u24 v{vT+7}, 1152, v{vT+7}")
        a(f"v_lshl_add_u32 v{vT+7}, v{vT+8}, 4, v{vT+7}")
        a(f"v_and_b32 v{vT+8}, 4, v{vT+5}")
        a(f"v_lshlrev_b32 v{vT+8}, 1, v{vT+8}")
        a(f"v_and_b32 v{vT+9}, 8, v{vT+5}")
        a(f"v_lshrrev_b32 v{vT+9}, 1, v{vT+9}")
        a(f"v_and_b32 v{vT+10}, 0x13, v{vT+5}")
        a(f"v_or3_b32 v{vT+8}, v{vT+8}, v{vT+9}, v{vT+10}")
        a(f"v_mul_u32_u24 v{vT+8}, 3456, v{vT+8}")
        a(f"v_add3_u32 v{vT+7}, v{vT+7}, v{vT+8}, s{sT+1}")
        a(f"v_cmp_gt_u32 vcc, 27, v{vT+6}")
        a(f"v_cmp_gt_u32 s[{sT+4}:{sT+5}], 32, v{vT+5}")
        a(f"s_and_b64 vcc, vcc, s[{sT+4}:{sT+5}]")
        a(f"v_mov_b32 v{vT+8}, s{sT+2}")
        a("s_nop 1")
        a(f"v_cndmask_b32 v{vd}, v{vT+8}, v{vT+7}, vcc")
    a(f"s_lshl_b32 s{sM0b}, s{sWave}, 11")
    a(f"s_add_u32 s{sM0b}, s{sM0b}, {WB}")
    def wdma(i):
        if i >= 18: return
        st = i % NST
        a(f"s_mov_b32 s{sWo}, {i*32*3456}")
        for t, vd in enumerate((vD0, vD1)):
            a(f"s_add_u32 m0, s{sM0b}, {st*STG + t*1024}")
            a("s_nop 0")
            vm.op(("W", i), f"buffer_load_dwordx4 v{vd}, {sr(sW,4)}, s{sWo} offen lds")
    for i in range(2): wdma(i)
    if "k1pf" in OPT:
        a(f"s_and_b32 s{sT+3}, s{sRb}, 7")
        a(f"s_mul_i32 s{sT+3}, s{sT+3}, {72*3456}")
        a(f"s_add_u32 s{sT+3}, s{sT+3}, s{sT+1}")
        for t in range(2):
            a(f"v_add_u32 v{vT+4}, s{sT}, v0")
            if t: a(f"v_add_u32 v{vT+4}, 64, v{vT+4}")
            a(f"v_mul_u32_u24 v{vT+5}, 7282, v{vT+4}")
            a(f"v_lshrrev_b32 v{vT+5}, 16, v{vT+5}")
            a(f"v_mul_u32_u24 v{vT+6}, 9, v{vT+5}")
            a(f"v_sub_u32 v{vT+6}, v{vT+4}, v{vT+6}")
            a(f"v_mul_u32_u24 v{vT+7}, 21846, v{vT+6}")
            a(f"v_lshrrev_b32 v{vT+7}, 16, v{vT+7}")
            a(f"v_mul_u32_u24 v{vT+8}, 3, v{vT+7}")
            a(f"v_sub_u32 v{vT+8}, v{vT+6}, v{vT+8}")
            a(f"v_mul_u32_u24 v{vT+8}, 70, v{vT+8}")
            a(f"v_and_b32 v{vT+8}, 0xfc, v{vT+8}")
            a(f"v_mul_u32_u24 v{vT+5}, 3456, v{vT+5}")
            a(f"v_mad_u32_u24 v{vT+5}, v{vT+7}, 1152, v{vT+5}") if False else None
            a(f"v_mul_u32_u24 v{vT+7}, 1152, v{vT+7}")
            a(f"v_add3_u32 v{vT+5}, v{vT+5}, v{vT+7}, v{vT+8}")
            a(f"v_cmp_gt_u32 vcc, 648, v{vT+4}")
            a(f"v_mov_b32 v{vT+8}, s{sT+2}")
            a("s_nop 1")
            a(f"v_cndmask_b32 v{vT+5}, v{vT+8}, v{vT+5}, vcc")
            vm.op(("P", t), f"buffer_load_dword v{vT+20+t}, v{vT+5}, {sr(sW,4)}, s{sT+3} offen")
    ONES = sT+8
    a(f"s_mov_b32 s{ONES}, 0x3f803f80")
    S, Q, S2, Q2 = vT+4, vT+5, vT+6, vT+7
    B3, B1, B2 = vT+8, vT+9, vT+10
    for d_, vb in ((3, B3), (1, B1), (2, B2)):
        a(f"v_add_u32 v{vb}, {d_}, v{vT+1}")
        a(f"v_subrev_u32 v{vT+11}, 6, v{vb}")
        a(f"v_min_u32 v{vb}, v{vb}, v{vT+11}")
        a(f"v_mad_u32_u24 v{vb}, v{vT}, 6, v{vb}")
        a(f"v_lshlrev_b32 v{vb}, 2, v{vb}")
    a(f"v_lshrrev_b32 v{vT+11}, 4, v{vT+2}")
    a(f"v_mul_u32_u24 v{vT+11}, 18432, v{vT+11}")
    a(f"v_and_b32 v{vT+12}, 15, v{vT+2}")
    a(f"v_lshl_add_u32 v{vT+11}, v{vT+12}, 4, v{vT+11}")
    a(f"v_lshl_add_u32 v{vLW}, v{vT+1}, 8, v{vT+11}")
    a(f"v_lshrrev_b32 v{vT+11}, 5, v0")
    a(f"v_lshlrev_b32 v{vT+11}, 4, v{vT+11}")
    a(f"v_bfe_u32 v{vT+12}, v0, 2, 3")
    a(f"v_add_u32 v{vT+11}, v{vT+11}, v{vT+12}")
    a(f"v_mul_u32_u24 v{vT+11}, {PITCH}, v{vT+11}")
    a(f"v_and_b32 v{vT+12}, 3, v0")
    a(f"v_lshl_add_u32 v{vWa}, v{vT+12}, 3, v{vT+11}")
    a(f"s_lshl_b32 s{sT}, s{sWave}, 6")
    a(f"s_add_u32 s{sT}, s{sT}, {WB}")
    a(f"v_add_u32 v{vWa}, s{sT}, v{vWa}")
    a(f"v_lshlrev_b32 v{vXa}, 4, v0")
    a(f"v_add_u32 v{vXb}, 65536, v{vXa}")
    for r in (S, Q, S2, Q2): a(f"v_mov_b32 v{r}, 0")
    for i in range(12):
        vm.wait(lambda t: t[0] == "x" and t[1] <= i)
        if i == 11 and "astamp" not in OPT: stamp(a, 1)
        for d_ in range(4):
            x = RAW + i*4 + d_
            s_, q_ = (S, Q) if d_ % 2 == 0 else (S2, Q2)
            a(f"v_dot2_f32_bf16 v{s_}, v{x}, s{ONES}, v{s_}")
            a(f"v_dot2_f32_bf16 v{q_}, v{x}, v{x}, v{q_}")
    wdma(2); wdma(3)
    a(f"v_add_f32 v{S}, v{S}, v{S2}")
    a(f"v_add_f32 v{Q}, v{Q}, v{Q2}")
    a(f"ds_bpermute_b32 v{S2}, v{B3}, v{S}")
    a(f"ds_bpermute_b32 v{Q2}, v{B3}, v{Q}")
    a("s_waitcnt lgkmcnt(0)")
    a(f"v_add_f32 v{S}, v{S}, v{S2}")
    a(f"v_add_f32 v{Q}, v{Q}, v{Q2}")
    a(f"ds_bpermute_b32 v{S2}, v{B1}, v{S}")
    a(f"ds_bpermute_b32 v{Q2}, v{B1}, v{Q}")
    a(f"ds_bpermute_b32 v{vT+11}, v{B2}, v{S}")
    a(f"ds_bpermute_b32 v{vT+12}, v{B2}, v{Q}")
    a("s_waitcnt lgkmcnt(0)")
    a(f"v_add3_u32 v{vT+13}, 0, 0, 0") if False else None
    a(f"v_add_f32 v{S}, v{S}, v{S2}")
    a(f"v_add_f32 v{Q}, v{Q}, v{Q2}")
    a(f"v_add_f32 v{S}, v{S}, v{vT+11}")
    a(f"v_add_f32 v{Q}, v{Q}, v{vT+12}")
    a(f"v_mul_f32 v{S}, {f32(1.0/576.0)}, v{S}")
    a(f"v_mul_f32 v{Q}, {f32(1.0/576.0)}, v{Q}")
    a(f"v_fma_f32 v{Q}, -v{S}, v{S}, v{Q}")
    a(f"v_max_f32 v{Q}, 0, v{Q}")
    round_bf16(a, vNM, S)
    round_bf16(a, Q, Q)
    a(f"v_add_f32 v{Q}, {f32(1e-5)}, v{Q}")
    round_bf16(a, Q, Q)
    a(f"v_sqrt_f32 v{Q}, v{Q}")
    a("s_nop 0")
    round_bf16(a, Q, Q)
    a(f"v_rcp_f32 v{vR}, v{Q}")
    a("s_nop 0")
    FAST1 = "fast1" in OPT
    if FAST1:
        a(f"v_mul_f32 v{vNM}, v{vNM}, v{vR}")
        a(f"v_sub_f32 v{vNM}, 0, v{vNM}")
    def norm_group(i):
        if FAST1:
            ops = []
            chains = []
            for d_ in range(4):
                x = RAW + i*4 + d_
                t = vT + 12 + d_ * 2
                chains.append([f"v_lshlrev_b32 v{t}, 16, v{x}", f"v_and_b32 v{t+1}, 0xffff0000, v{x}",
                               f"v_fma_f32 v{t}, v{t}, v{vR}, v{vNM}", f"v_fma_f32 v{t+1}, v{t+1}, v{vR}, v{vNM}",
                               f"v_cvt_pk_bf16_f32 v{x}, v{t}, v{t+1}"])
            for stage in ((0, 1), (2, 3), (4,)):
                for c in chains:
                    for j in stage: ops.append(c[j])
            ops.append(f"ds_write_b128 v{vLW}, {vr(RAW+i*4,4)} offset:{XT + i*6*256}")
            return ops
        chains = []
        for d_ in range(4):
            x = RAW + i*4 + d_
            t = vT + 12 + d_ * 2
            chains.append([f"v_lshlrev_b32 v{t}, 16, v{x}", f"v_and_b32 v{t+1}, 0xffff0000, v{x}",
                    f"v_sub_f32 v{t}, v{t}, v{vNM}", f"v_sub_f32 v{t+1}, v{t+1}, v{vNM}",
                    f"v_cvt_pk_bf16_f32 v{t}, v{t}, v{t+1}",
                    f"v_and_b32 v{t+1}, 0xffff0000, v{t}", f"v_lshlrev_b32 v{t}, 16, v{t}",
                    f"v_mul_f32 v{t}, v{t}, v{vR}", f"v_mul_f32 v{t+1}, v{t+1}, v{vR}",
                    f"v_cvt_pk_bf16_f32 v{x}, v{t}, v{t+1}"])
        ops = []
        for stage in ((0, 1), (2, 3), (4,), (5, 6), (7, 8), (9,)):
            for c in chains:
                for j in stage: ops.append(c[j])
        ops.append(f"ds_write_b128 v{vLW}, {vr(RAW+i*4,4)} offset:{XT + i*6*256}")
        return ops
    gdone = 12
    for g_ in range(12):
        for op in norm_group(g_): a(op)
    if "astamp" not in OPT: stamp(a, 2)
    vm.wait(lambda t: t[0] == "W" and t[1] <= 0)
    a("s_waitcnt lgkmcnt(0)")
    a("s_barrier")
    if "astamp" not in OPT: stamp(a, 3)
    if "nowpf" not in OPT:
        a(f"s_lshl_b32 s{sT}, s2, 3")
        a(f"s_add_u32 s{sT}, s{sT}, s{sWave}")
        a(f"s_cmp_ge_u32 s{sT}, 2025")
        a(f"s_cbranch_scc1 L_{name}_nopf")
        a(f"s_cmp_ge_u32 s{sT}, 648")
        a(f"s_cselect_b32 s54, s50, s48")
        a(f"s_cselect_b32 s55, s51, s49")
        a(f"s_cselect_b32 s{sT+1}, 648, 0")
        a(f"s_cmp_ge_u32 s{sT}, 1296")
        a(f"s_cselect_b32 s54, s52, s54")
        a(f"s_cselect_b32 s55, s53, s55")
        a(f"s_cselect_b32 s{sT+1}, 1296, s{sT+1}")
        a(f"s_cmp_ge_u32 s{sT}, 1944")
        a(f"s_cselect_b32 s54, s92, s54")
        a(f"s_cselect_b32 s55, s93, s55")
        a(f"s_cselect_b32 s{sT+1}, 1944, s{sT+1}")
        a(f"s_cselect_b32 s{sT+2}, {576*576*2}, {576*4608*2}") if False else None
        a(f"s_sub_u32 s{sT}, s{sT}, s{sT+1}")
        a(f"s_lshl_b32 s{sT}, s{sT}, 13")
        srd(a, 56, 54, 576*4608*2)
        a(f"v_lshlrev_b32 v{vT+18}, 7, v0")
        a(f"buffer_load_dword v{vT+19}, v{vT+18}, s[56:59], s{sT} offen")
        a.lab(f"L_{name}_nopf")
        if "pfcode" in OPT:
            a(f"s_lshl_b32 s{sT}, s2, 3")
            a(f"s_add_u32 s{sT}, s{sT}, s{sWave}")
            a(f"s_sub_u32 s{sT}, s{sT}, 2025")
            a(f"s_cmp_ge_u32 s{sT}, 8")
            a(f"s_cbranch_scc1 L_{name}_nopc")
            a("s_getpc_b64 s[54:55]")
            a(f"s_lshl_b32 s{sT}, s{sT}, 13")
            srd(a, 56, 54, 65536)
            a(f"v_lshlrev_b32 v{vT+18}, 7, v0")
            a(f"buffer_load_dword v{vT+19}, v{vT+18}, s[56:59], s{sT} offen")
            a.lab(f"L_{name}_nopc")
        if "pfws" in OPT:
            a(f"s_lshl_b32 s{sT}, s2, 3")
            a(f"s_add_u32 s{sT}, s{sT}, s{sWave}")
            a(f"s_cmp_ge_u32 s{sT}, {(P_OFF+P_SZ + 262143)//262144}")
            a(f"s_cbranch_scc1 L_{name}_nopw")
            a(f"s_lshl_b32 s{sT}, s{sT}, 18")
            srd(a, 56, 8, P_OFF+P_SZ)
            a(f"v_lshlrev_b32 v{vT+18}, 12, v0")
            a(f"buffer_load_dword v{vT+20}, v{vT+18}, s[56:59], s{sT} offen")
            a.lab(f"L_{name}_nopw")
    def reads(i):
        b = i % 2; st = i % NST
        for n in range(2):
            a(f"ds_read_b64_tr_b16 {vr(WF+b*8+n*4,2)}, v{vWa} offset:{st*STG + n*32}")
            a(f"ds_read_b64_tr_b16 {vr(WF+b*8+n*4+2,2)}, v{vWa} offset:{st*STG + n*32 + 8*PITCH}")
        for mt in range(5):
            off = (mt*18 + i)*1024
            if off < 65536:
                a(f"ds_read_b128 {vr(XF+b*20+mt*4,4)}, v{vXa} offset:{off}")
            else:
                a(f"ds_read_b128 {vr(XF+b*20+mt*4,4)}, v{vXb} offset:{off-65536}")
    for i in range(18):
        reads(i)
        if i >= 1: wdma(i+3)
        b = i % 2
        need = min(11, (4*(i+1)+3)//6)
        nops = []
        while gdone <= need:
            nops += norm_group(gdone); gdone += 1
        if "k1nonorm" in OPT: nops = []
        ni = 0
        for _ in range(10):
            if ni < len(nops) - 1: a(nops[ni]); ni += 1
        for mt in range(5):
            a(f"s_waitcnt lgkmcnt({4-mt})")
            for n in range(2):
                c = vr(ACC+(mt*2+n)*4,4)
                a(f"v_mfma_f32_16x16x32_bf16 {c}, {vr(WF+b*8+n*4,4)}, {vr(XF+b*20+mt*4,4)}, " + ("0" if i == 0 else c))
                for _ in range(3):
                    if ni < len(nops) - 1: a(nops[ni]); ni += 1
        while ni < len(nops):
            a(nops[ni]); ni += 1
        if i < 17:
            vm.wait(lambda t: t[0] == "W" and t[1] <= i+1)
            if nops: a("s_waitcnt lgkmcnt(0)")
            a("s_barrier")
    a("s_barrier")
    stamp(a, 1 if "astamp" in OPT else 4)
    a(f"v_lshrrev_b32 v{vT}, 4, v0")
    a(f"v_lshlrev_b32 v{vT}, 2, v{vT}")
    a(f"s_lshl_b32 s{sT}, s{sWave}, 5")
    a(f"v_add_u32 v{vT}, s{sT}, v{vT}")
    a(f"v_and_b32 v{vT+1}, 15, v0")
    a(f"v_mul_u32_u24 v{vT+1}, {QP}, v{vT+1}")
    AD = vT + 4
    for n in range(2):
        for p in range(2):
            ad = AD + n*2 + p
            a(f"v_add_u32 v{vT+2}, {n*16+p*2}, v{vT}")
            a(f"v_mul_u32_u24 v{vT+3}, 3641, v{vT+2}")
            a(f"v_lshrrev_b32 v{vT+3}, 16, v{vT+3}")
            a(f"v_mul_u32_u24 v{ad}, 18, v{vT+3}")
            a(f"v_sub_u32 v{ad}, v{vT+2}, v{ad}")
            a(f"v_lshl_add_u32 v{ad}, v{ad}, 1, v{vT+1}")
            a(f"v_mad_u32_u24 v{ad}, v{vT+3}, 48, v{ad}")
    a(f"s_cmp_ge_u32 s{sWave}, 7")
    a(f"s_cbranch_scc1 L_{name}_skipq")
    for mt in range(5):
        for n in range(2):
            c = ACC + (mt*2+n)*4
            t = vT + 8 + ((mt*2+n) % 2) * 2
            a(f"v_cvt_pk_bf16_f32 v{t}, v{c}, v{c+1}")
            a(f"v_cvt_pk_bf16_f32 v{t+1}, v{c+2}, v{c+3}")
            a(f"ds_write_b32 v{AD+n*2}, v{t} offset:{mt*16*QP}")
            a(f"ds_write_b32 v{AD+n*2+1}, v{t+1} offset:{mt*16*QP}")
    a.lab(f"L_{name}_skipq")
    QR = 4; KR = 16; LG = 64; LX = 68; VO = 72; VX = 104; OA = 136
    vAo, vAx, vPos, vHd, vHf = vT, vT+1, vT+2, vT+3, vT+12
    a(f"v_lshrrev_b32 v{vPos}, 3, v3")
    a(f"v_bfe_u32 v{vHd}, v3, 1, 2")
    a(f"v_and_b32 v{vHf}, 1, v3")
    a(f"v_add_u32 v{vT+13}, 2, v{vPos}")
    a(f"v_mul_u32_u24 v{vT+13}, {QP}, v{vT+13}")
    a(f"v_mad_u32_u24 v{vT+13}, v{vHd}, 48, v{vT+13}")
    a(f"v_xor_b32 v{vT+14}, 1, v{vHf}")
    a(f"s_movk_i32 s{sT}, {8*QP}")
    a(f"v_mad_u32_u24 v{vAo}, v{vT+14}, s{sT}, v{vT+13}")
    a(f"v_mad_u32_u24 v{vAx}, v{vHf}, s{sT}, v{vT+13}")
    a("s_waitcnt lgkmcnt(0)")
    a("s_barrier")
    if "astamp" in OPT: stamp(a, 2)
    for j in range(3):
        a(f"ds_read_b128 {vr(QR+j*4,4)}, v{vT+13} offset:{14*QP + j*16}")
    for i in range(4):
        for j in range(3):
            a(f"ds_read_b128 {vr(KR+i*12+j*4,4)}, v{vAo} offset:{(6-2*i)*QP + 192 + j*16}")
    a(f"v_lshl_add_u32 v{vAo}, v{vHf}, 4, v{vAo}")
    a(f"v_lshl_add_u32 v{vAx}, v{vHf}, 4, v{vAx}")
    a(f"s_lshl_b32 s{sT}, s{sRb}, 6")
    a(f"v_add_u32 v{vPos}, s{sT}, v{vPos}")
    a(f"v_lshlrev_b32 v{vT+14}, 3, v{vHf}")
    a(f"v_sub_u32 v{vT+14}, v{vPos}, v{vT+14}")
    a(f"s_mov_b32 s{sT+1}, {f32(18.0**-0.5)}")
    a(f"s_mov_b32 s{sT+2}, {f32(-1e9)}")
    a(f"v_cvt_pk_bf16_f32 v{vT+15}, s{sT+2}, s{sT+2}")
    a(f"v_lshlrev_b32 v{vT+15}, 16, v{vT+15}")
    for i in range(4): a(f"v_mov_b32 v{LG+i}, 0")
    a("s_waitcnt lgkmcnt(0)")
    for i in range(4):
        a(f"ds_read_b128 {vr(VO+i*8,4)}, v{vAo} offset:{(6-2*i)*QP + 384}")
        a(f"ds_read_b32 v{VO+i*8+4}, v{vAo} offset:{(6-2*i)*QP + 384 + 16}")
    for i in range(4):
        a(f"ds_read_b128 {vr(VX+i*8,4)}, v{vAx} offset:{(6-2*i)*QP + 384}")
        a(f"ds_read_b32 v{VX+i*8+4}, v{vAx} offset:{(6-2*i)*QP + 384 + 16}")
    for d_ in range(9):
        for i in range(4):
            a(f"v_dot2_f32_bf16 v{LG+i}, v{QR+d_}, v{KR+i*12+d_}, v{LG+i}")
    a("s_nop 2")
    a(f"v_cvt_pk_bf16_f32 v{LG}, v{LG}, v{LG+1}")
    a(f"v_cvt_pk_bf16_f32 v{LG+2}, v{LG+2}, v{LG+3}")
    a(f"v_and_b32 v{LG+1}, 0xffff0000, v{LG}")
    a(f"v_lshlrev_b32 v{LG}, 16, v{LG}")
    a(f"v_and_b32 v{LG+3}, 0xffff0000, v{LG+2}")
    a(f"v_lshlrev_b32 v{LG+2}, 16, v{LG+2}")
    for i in range(4): a(f"v_mul_f32 v{LG+i}, s{sT+1}, v{LG+i}")
    a(f"v_cvt_pk_bf16_f32 v{LG}, v{LG}, v{LG+1}")
    a(f"v_cvt_pk_bf16_f32 v{LG+2}, v{LG+2}, v{LG+3}")
    a(f"v_and_b32 v{LG+1}, 0xffff0000, v{LG}")
    a(f"v_lshlrev_b32 v{LG}, 16, v{LG}")
    a(f"v_and_b32 v{LG+3}, 0xffff0000, v{LG+2}")
    a(f"v_lshlrev_b32 v{LG+2}, 16, v{LG+2}")
    for i in range(4):
        a(f"v_cmp_le_i32 vcc, {2*i}, v{vT+14}")
        a("s_nop 1")
        a(f"v_cndmask_b32 v{LG+i}, v{vT+15}, v{LG+i}, vcc")
    a("s_nop 1")
    for i in range(4):
        a(f"v_mov_b32_dpp v{LX+i}, v{LG+i} quad_perm:[1,0,3,2] row_mask:0xf bank_mask:0xf")
    M_, SUM = vT+13, vT+14
    a(f"v_max3_f32 v{M_}, v{LG}, v{LG+1}, v{LG+2}")
    a(f"v_max3_f32 v{M_}, v{M_}, v{LG+3}, v{LX}")
    a(f"v_max3_f32 v{M_}, v{M_}, v{LX+1}, v{LX+2}")
    a(f"v_max_f32 v{M_}, v{M_}, v{LX+3}")
    a(f"s_mov_b32 s{sT+3}, {f32(math.log2(math.e))}")
    for w in range(8):
        a(f"v_sub_f32 v{LG+w}, v{LG+w}, v{M_}")
    for w in range(8):
        a(f"v_mul_f32 v{LG+w}, s{sT+3}, v{LG+w}")
    for w in range(8):
        a(f"v_exp_f32 v{LG+w}, v{LG+w}")
    a("s_nop 0")
    a(f"v_add_f32 v{SUM}, v{LG}, v{LX}")
    a(f"v_add_f32 v{M_}, v{LG+1}, v{LX+1}")
    a(f"v_add_f32 v{vT+15}, v{LG+2}, v{LX+2}")
    a(f"v_add_f32 v{vT+16}, v{LG+3}, v{LX+3}")
    a(f"v_add_f32 v{SUM}, v{SUM}, v{M_}")
    a(f"v_add_f32 v{vT+15}, v{vT+15}, v{vT+16}")
    a(f"v_add_f32 v{SUM}, v{SUM}, v{vT+15}")
    a(f"v_rcp_f32 v{SUM}, v{SUM}")
    a("s_nop 0")
    for w in range(8):
        a(f"v_mul_f32 v{LG+w}, v{LG+w}, v{SUM}")
    for wp in range(4):
        a(f"v_cvt_pk_bf16_f32 v{LG+wp}, v{LG+2*wp}, v{LG+2*wp+1}")
    if "astamp" in OPT: stamp(a, 3)
    a(f"s_mov_b32 s{sT+4}, 0x05040100")
    a(f"s_mov_b32 s{sT+5}, 0x07060302")
    a("s_waitcnt lgkmcnt(0)")
    for wp in range(4):
        base = (VO if wp < 2 else VX) + (wp % 2) * 16
        for d_ in range(5):
            x0 = base + d_; x1 = base + 8 + d_
            t = vT + 13 + (d_ % 2) * 2
            a(f"v_perm_b32 v{t}, v{x1}, v{x0}, s{sT+4}")
            a(f"v_perm_b32 v{t+1}, v{x1}, v{x0}, s{sT+5}")
            a(f"v_dot2_f32_bf16 v{OA+2*d_}, v{t}, v{LG+wp}, " + ("0" if wp == 0 else f"v{OA+2*d_}"))
            a(f"v_dot2_f32_bf16 v{OA+2*d_+1}, v{t+1}, v{LG+wp}, " + ("0" if wp == 0 else f"v{OA+2*d_+1}"))
    a("s_nop 2")
    for d_ in range(5):
        a(f"v_cvt_pk_bf16_f32 v{QR+d_}, v{OA+2*d_}, v{OA+2*d_+1}")
    OB = 65536; OP = 160
    a(f"v_lshrrev_b32 v{vT+13}, 3, v3")
    a(f"v_mul_u32_u24 v{vT+13}, {OP}, v{vT+13}")
    a(f"v_mad_u32_u24 v{vT+13}, v{vHd}, 36, v{vT+13}")
    a(f"v_lshl_add_u32 v{vT+13}, v{vHf}, 4, v{vT+13}")
    a(f"v_add_u32 v{vT+13}, {OB}, v{vT+13}")
    a(f"ds_write2_b32 v{vT+13}, v{QR}, v{QR+1} offset0:0 offset1:1")
    a(f"ds_write2_b32 v{vT+13}, v{QR+2}, v{QR+3} offset0:2 offset1:3")
    a(f"ds_write_b32 v{vT+13}, v{QR+4} offset:16")
    a(f"s_lshl_b32 s{sT}, s{sWave}, 2")
    a(f"v_lshrrev_b32 v{vT+14}, 4, v0")
    a(f"v_add_u32 v{vT+14}, s{sT}, v{vT+14}")
    a(f"s_mul_i32 s{sT+1}, s{sHg}, 9")
    a(f"s_lshl_b32 s{sT+2}, s{sRb}, 2")
    a(f"s_mul_i32 s{sT+2}, s{sT+2}, 18432")
    def piece_addr(vp, vl, vg):
        a(f"v_mul_u32_u24 v{vT+15}, 7282, v{vp}")
        a(f"v_lshrrev_b32 v{vT+15}, 16, v{vT+15}")
        a(f"v_mul_u32_u24 v{vT+16}, 9, v{vT+15}")
        a(f"v_sub_u32 v{vT+16}, v{vp}, v{vT+16}")
        a(f"v_and_b32 v{vT+17}, 15, v0")
        a(f"v_lshl_add_u32 v{vl}, v{vT+15}, 4, v{vT+17}")
        a(f"v_mul_u32_u24 v{vl}, {OP}, v{vl}")
        a(f"v_lshl_add_u32 v{vl}, v{vT+16}, 4, v{vl}")
        a(f"v_add_u32 v{vl}, {OB}, v{vl}")
        a(f"v_add_u32 v{vT+16}, s{sT+1}, v{vT+16}")
        a(f"v_mul_u32_u24 v{vg}, 18432, v{vT+15}")
        a(f"v_lshl_add_u32 v{vg}, v{vT+16}, 8, v{vg}")
        a(f"v_lshl_add_u32 v{vg}, v{vT+17}, 4, v{vg}")
    piece_addr(vT+14, vT+4, vT+5)
    a(f"v_add_u32 v{vT+14}, 32, v{vT+14}")
    piece_addr(vT+14, vT+6, vT+7)
    a("s_waitcnt lgkmcnt(0)")
    a("s_barrier")
    a(f"ds_read_b128 {vr(QR,4)}, v{vT+4}")
    a(f"ds_read_b128 {vr(QR+4,4)}, v{vT+6}")
    a("s_waitcnt lgkmcnt(1)")
    a(f"buffer_store_dwordx4 {vr(QR,4)}, v{vT+5}, {sr(sO,4)}, s{sT+2} offen")
    a(f"s_cmp_lg_u32 s{sWave}, 0")
    a(f"s_cbranch_scc1 L_{name}_nost2")
    a("s_waitcnt lgkmcnt(0)")
    a(f"buffer_store_dwordx4 {vr(QR+4,4)}, v{vT+7}, {sr(sO,4)}, s{sT+2} offen")
    a.lab(f"L_{name}_nost2")
    if "astamp" in OPT: stamp(a, 4)
    if "stamp" in OPT: a("s_waitcnt vmcnt(0)")
    stamp(a, 6, True)
    stamp_dump(a, 7, 8, sWave, vT+8, 3)
    a.lab(f"L_{name}_done")
    a("s_endpgm")
    return a.text(), kernel_desc(name, NV, 96), f"; @launch kernel={name} grid=(256,1,1) block=(512,1,1) lds={WB + NST*STG}"

GENS = {"k45": gen_k45, "k2v2": gen_k2v2, "k1v3": gen_k1v3, "k1": gen_k1, "k2": gen_k2, "k3": gen_k3, "k4": gen_k4, "k5": gen_k5, "k3v2": gen_k3v2, "k3m": gen_k3m, "k4v2": gen_k4v2}


def build(which):
    heads, texts, descs = [], [], []
    for w in which:
        t, d, h = GENS[w]()
        heads.append(h); texts.append(t); descs.append(d)
    out = "; generated by dev/gen.py\n" + "\n".join(heads) + "\n"
    out += '.amdgcn_target "amdgcn-amd-amdhsa--gfx950"\n.text\n'
    out += "\n".join(texts)
    out += '.section .rodata,"a"\n'
    for d in descs:
        out += ".p2align 6\n" + d
    return out

if __name__ == "__main__":
    which = sys.argv[2].split(",")
    open(sys.argv[1], "w").write(build(which))
```

```python
import sys, struct, math, os
OPT = set(os.environ.get("GENOPT", "").split(","))

KN = "sequential_preLN__sliding_local_dilated__geglu_ffn__prompt"

O_OFF  = 0
O_SZ   = 2048*576*2
H1_OFF = O_OFF + O_SZ
H1_SZ  = 2048*576*2
ST_OFF = H1_OFF + H1_SZ
ST_SZ  = 2048*6*8
HH_OFF = ST_OFF + ST_SZ
HH_SZ  = 2048*4608*2
P_OFF  = HH_OFF + HH_SZ
P_SZ   = 4*2048*576*4

def f32(x):
    return struct.unpack("<I", struct.pack("<f", x))[0]

class A:
    def __init__(self):
        self.l = []
    def __call__(self, s):
        if "nomfma" in OPT and s.startswith("v_mfma"): return
        if s.startswith("buffer_store_dwordx4") and "s[80:83]" not in s:
            pol = getattr(self, "stpol", "")
            if pol: s += " " + pol
        if "nods" in OPT and s.startswith("ds_read_b64_tr"): return
        if "now" in OPT and s.startswith("buffer_load_dwordx4") and s.endswith("lds"): return
        if "nox" in OPT and s.startswith("buffer_load_dwordx4 v[") and "s[16:19]" in s: return
        self.l.append("    " + s)
    def lab(self, s):
        self.l.append(s + ":")
    def c(self, s):
        self.l.append("    ; " + s)
    def text(self):
        return "\n".join(self.l) + "\n"

def vr(b, n=1):
    return f"v{b}" if n == 1 else f"v[{b}:{b+n-1}]"
def sr(b, n=1):
    return f"s{b}" if n == 1 else f"s[{b}:{b+n-1}]"

def kernel_head(a, name):
    a.l.append(f".globl {name}")
    a.l.append(".p2align 8")
    a.l.append(f".type {name},@function")
    a.lab(name)

def kernel_desc(name, vgpr, sgpr=96, accum=None):
    if accum is None:
        accum = (vgpr + 3) // 4 * 4
    return f""".amdhsa_kernel {name}
  .amdhsa_next_free_vgpr {vgpr}
  .amdhsa_next_free_sgpr {sgpr}
  .amdhsa_accum_offset {accum}
  .amdhsa_group_segment_fixed_size 0
  .amdhsa_kernarg_size 80
  .amdhsa_user_sgpr_count 2
  .amdhsa_user_sgpr_kernarg_segment_ptr 1
  .amdhsa_system_sgpr_workgroup_id_x 1
.end_amdhsa_kernel
"""

def srd(a, d, base, size, off=0):
    if off:
        a(f"s_add_u32 s{d}, s{base}, {off}")
        a(f"s_addc_u32 s{d+1}, s{base+1}, 0")
    else:
        a(f"s_mov_b32 s{d}, s{base}")
        a(f"s_mov_b32 s{d+1}, s{base+1}")
    a(f"s_and_b32 s{d+1}, s{d+1}, 0xffff")
    a(f"s_mov_b32 s{d+2}, {size}")
    a(f"s_mov_b32 s{d+3}, 0x00020000")

def round_bf16(a, d, s, tmp=None):
    a(f"v_cvt_pk_bf16_f32 v{d}, v{s}, v{s}")
    a(f"v_lshlrev_b32 v{d}, 16, v{d}")

GELU_A = -2.0 * math.log2(math.e) * math.sqrt(2.0 / math.pi)
GELU_B = GELU_A * 0.044715

import os
OPT = set(os.environ.get("GENOPT", "").split(","))
def stamp(a, i, real=False):
    if "stamp" in OPT:
        a(f"s_mem{'real' if real else ''}time s[{60+2*i}:{61+2*i}]")
def stamp_dump(a, n, sWs, sWave, tmpv, region=0):
    if "stamp" in OPT:
        a("s_waitcnt lgkmcnt(0)")
        a("s_mov_b64 exec, -1")
        srd(a, 80, sWs, 1<<20, (200+region)<<20)
        a(f"s_lshl_b32 s84, s2, 4")
        a(f"s_add_u32 s84, s84, s{sWave}")
        a(f"s_lshl_b32 s84, s84, 6")
        a(f"v_mov_b32 v{tmpv}, s84")
        for i in range(n):
            a(f"v_mov_b32 v{tmpv+2}, s{60+2*i}")
            a(f"v_mov_b32 v{tmpv+3}, s{61+2*i}")
            a(f"buffer_store_dwordx2 v[{tmpv+2}:{tmpv+3}], v{tmpv}, s[80:83], 0 offen offset:{8*i}")
            a("s_nop 1")
def gen_k3(name="k3_kernel"):
    a = A()
    kernel_head(a, name)
    NST = 6
    STG = 18432
    RING = 6
    ACC = 0
    XS = 144
    WR = 192
    vWa = 216
    vWb = 217
    vD0, vD1, vD2 = 218, 219, 220
    vX0, vX1 = 221, 222
    vM0, vR0, vM1, vR1 = 223, 224, 225, 226
    vT = 228
    vLane = 244
    NV = 246
    def acc(nt, mat, mt):
        return ACC + ((nt * 2 + mat) * 2 + mt) * 4
    sW, sX, sST, sH = 12, 16, 20, 24
    sWave, sFb, sMb = 28, 29, 30
    sWoff, sXoff, sIt = 31, 32, 33
    sM0b = 34
    sT = 36
    sA_, sB_ = 48, 49
    sExec = 50
    sHb = 52

    a("s_cmp_ge_u32 s2, 256")
    a(f"s_cbranch_scc1 L_{name}_done")
    stamp(a, 0)
    stamp(a, 5, True)
    a("s_load_dwordx4 s[4:7], s[0:1], 32")
    a("s_load_dwordx2 s[8:9], s[0:1], 72")
    a("v_lshrrev_b32 v1, 6, v0")
    a("v_and_b32 v0, 63, v0")
    a("s_nop 0")
    a(f"v_readfirstlane_b32 s{sWave}, v1")
    a(f"s_and_b32 s{sT}, s2, 7")
    a(f"s_lshr_b32 s{sT+1}, s2, 3")
    a(f"s_and_b32 s{sFb}, s{sT+1}, 3")
    a(f"s_lshl_b32 s{sT}, s{sT}, 2")
    a(f"s_add_u32 s{sFb}, s{sFb}, s{sT}")
    a(f"s_lshr_b32 s{sMb}, s{sT+1}, 2")
    a("s_waitcnt lgkmcnt(0)")
    a(f"s_cmp_ge_u32 s{sWave}, 4")
    a(f"s_cselect_b32 s{sT}, s6, s4")
    a(f"s_cselect_b32 s{sT+1}, s7, s5")
    srd(a, sW, sT, 576*4608*2)
    srd(a, sX, 8, H1_SZ, H1_OFF)
    srd(a, sST, 8, ST_SZ, ST_OFF)
    srd(a, sH, 8, HH_SZ, HH_OFF)
    a(f"v_and_b32 v{vT}, 15, v0")
    a(f"s_lshl_b32 s{sT}, s{sMb}, 8")
    a(f"s_lshl_b32 s{sT+1}, s{sWave}, 5")
    a(f"s_add_u32 s{sT}, s{sT}, s{sT+1}")
    a(f"v_add_u32 v{vT}, s{sT}, v{vT}")
    a(f"v_mul_u32_u24 v{vT}, 48, v{vT}")
    for mt in range(2):
        for q in range(3):
            a(f"buffer_load_dwordx4 {vr(WR+mt*12+q*4,4)}, v{vT}, {sr(sST,4)}, 0 offen offset:{mt*768+q*16}")
    for t, vd in enumerate((vD0, vD1, vD2)):
        a(f"v_add_u32 v{vT+1}, {t*64}, v0")
        a(f"v_mul_u32_u24 v{vT+2}, 3641, v{vT+1}")
        a(f"v_lshrrev_b32 v{vT+2}, 16, v{vT+2}")
        a(f"v_mul_u32_u24 v{vT+3}, 18, v{vT+2}")
        a(f"v_sub_u32 v{vT+3}, v{vT+1}, v{vT+3}")
        a(f"v_mul_u32_u24 v{vT+2}, 9216, v{vT+2}")
        a(f"v_lshl_add_u32 v{vd}, v{vT+3}, 4, v{vT+2}")
    a(f"s_and_b32 s{sT}, s{sWave}, 3")
    a(f"s_mul_i32 s{sT+1}, s{sT}, {8*9216}")
    a(f"s_mul_i32 s{sT+2}, s{sFb}, 288")
    a(f"s_add_u32 s{sT+1}, s{sT+1}, s{sT+2}")
    for vd in (vD0, vD1, vD2):
        a(f"v_add_u32 v{vd}, s{sT+1}, v{vd}")
    a(f"s_mul_i32 s{sM0b}, s{sWave}, 2304")
    a(f"s_lshl_b32 s{sT}, s{sMb}, 4")
    a(f"s_lshl_b32 s{sT+1}, s{sWave}, 1")
    a(f"s_add_u32 s{sT}, s{sT}, s{sT+1}")
    a(f"s_mul_i32 s{sT+1}, s{sT}, 18432")
    a(f"v_lshlrev_b32 v{vX0}, 4, v0")
    a(f"v_add_u32 v{vX0}, s{sT+1}, v{vX0}")
    a(f"v_add_u32 v{vX1}, 18432, v{vX0}")
    a(f"s_mul_i32 s{sHb}, s{sT}, 144")
    a(f"s_lshr_b32 s{sT+1}, s{sFb}, 1")
    a(f"s_mul_i32 s{sT+1}, s{sT+1}, 9")
    a(f"s_add_u32 s{sHb}, s{sHb}, s{sT+1}")
    a(f"s_lshl_b32 s{sHb}, s{sHb}, 10")
    a(f"v_lshrrev_b32 v{vT+1}, 2, v0")
    a(f"v_mul_u32_u24 v{vT+1}, 288, v{vT+1}")
    a(f"v_and_b32 v{vT+2}, 3, v0")
    a(f"v_lshl_add_u32 v{vWa}, v{vT+2}, 3, v{vT+1}")
    a(f"v_add_u32 v{vWb}, {3*STG}, v{vWa}")
    sRot, sCnt = 54, 55
    if "rot" in OPT:
        a(f"s_mul_i32 s{sRot}, s{sMb}, 9")
        a(f"s_and_b32 s{sT}, s{sFb}, 3")
        a(f"s_mul_i32 s{sT}, s{sT}, 18")
        a(f"s_add_u32 s{sRot}, s{sRot}, s{sT}")
        a(f"s_lshr_b32 s{sRot}, s{sRot}, 2")
        a(f"s_sub_u32 s{sT}, s{sRot}, 18")
        a(f"s_cmp_ge_u32 s{sRot}, 18")
        a(f"s_cselect_b32 s{sRot}, s{sT}, s{sRot}")
    else:
        a(f"s_mov_b32 s{sRot}, 0")
    if "samew" in OPT:
        a(f"s_mov_b32 s{sRot}, 0")
    a(f"s_mov_b32 s{sCnt}, 0")
    a(f"s_mul_i32 s{sWoff}, s{sRot}, {32*9216}")
    a(f"s_lshl_b32 s{sXoff}, s{sRot}, 10")
    a(f"s_mov_b64 s[{sExec}:{sExec+1}], 0xffff")
    a(f"v_mov_b32 v{vLane}, v0")

    def load_groups(stage, xset):
        gs = []
        for t, vd in enumerate((vD0, vD1, vD2)):
            g = [f"s_add_u32 m0, s{sM0b}, {stage*STG + t*1024}"]
            if t == 2:
                g.append(f"s_mov_b64 exec, s[{sExec}:{sExec+1}]")
            else:
                g.append("s_nop 0")
            g.append(f"buffer_load_dwordx4 v{vd}, {sr(sW,4)}, s{sWoff} offen lds")
            if t == 2:
                g.append("s_mov_b64 exec, -1")
            gs.append(g)
        gs.append([f"buffer_load_dwordx4 {vr(XS+xset*8,4)}, v{vX0}, {sr(sX,4)}, s{sXoff} offen"])
        gs.append([f"buffer_load_dwordx4 {vr(XS+xset*8+4,4)}, v{vX1}, {sr(sX,4)}, s{sXoff} offen",
                   f"s_add_u32 s{sRot}, s{sRot}, 1",
                   f"s_cmp_eq_u32 s{sRot}, {4 if 'hot4' in OPT else 18}",
                   f"s_cselect_b32 s{sRot}, 0, s{sRot}",
                   f"s_add_u32 s{sCnt}, s{sCnt}, 1",
                   f"s_mul_i32 s{sWoff}, s{sRot}, {32*9216}",
                   f"s_lshl_b32 s{sXoff}, s{sRot}, 10",
                   f"s_cmp_ge_u32 s{sCnt}, 18",
                   f"s_cselect_b32 s{sWoff}, 0x7f000000, s{sWoff}",
                   f"s_cselect_b32 s{sXoff}, 0x7f000000, s{sXoff}"])
        return gs
    def issue_loads(stage, xset):
        for g in load_groups(stage, xset):
            for x in g: a(x)

    for s in range(5):
        issue_loads(s, s)
    a("s_waitcnt vmcnt(25)")
    for mt, (vM, vR) in enumerate(((vM0, vR0), (vM1, vR1))):
        b = WR + mt * 12
        a(f"v_add_f32 v{vT}, v{b}, v{b+2}")
        a(f"v_add_f32 v{vT+1}, v{b+4}, v{b+6}")
        a(f"v_add_f32 v{vT+2}, v{b+8}, v{b+10}")
        a(f"v_add_f32 v{vT}, v{vT}, v{vT+1}")
        a(f"v_add_f32 v{vT}, v{vT}, v{vT+2}")
        a(f"v_mul_f32 v{vT}, {f32(1.0/6.0)}, v{vT}")
        a(f"v_add_f32 v{vT+1}, v{b+1}, v{b+3}")
        a(f"v_add_f32 v{vT+2}, v{b+5}, v{b+7}")
        a(f"v_add_f32 v{vT+3}, v{b+9}, v{b+11}")
        a(f"v_add_f32 v{vT+1}, v{vT+1}, v{vT+2}")
        a(f"v_add_f32 v{vT+1}, v{vT+1}, v{vT+3}")
        a(f"v_mov_b32 v{vT+2}, 0")
        for t in range(6):
            a(f"v_sub_f32 v{vT+3}, v{b+2*t}, v{vT}")
            a(f"v_fmac_f32 v{vT+2}, v{vT+3}, v{vT+3}")
        a(f"v_fmac_f32 v{vT+1}, {f32(96.0)}, v{vT+2}")
        a(f"v_mul_f32 v{vT+1}, {f32(1.0/576.0)}, v{vT+1}")
        round_bf16(a, vM, vT)
        round_bf16(a, vT+1, vT+1)
        a(f"v_add_f32 v{vT+1}, {f32(1e-5)}, v{vT+1}")
        round_bf16(a, vT+1, vT+1)
        a(f"v_sqrt_f32 v{vT+1}, v{vT+1}")
        a("s_nop 0")
        round_bf16(a, vT+1, vT+1)
        a(f"v_rcp_f32 v{vR}, v{vT+1}")
    for i in range(0, 144, 2):
        a(f"v_mov_b64 {vr(ACC+i,2)}, 0")

    def norm_ops(xset):
        ops = []
        for mt, (vM, vR) in enumerate(((vM0, vR0), (vM1, vR1))):
            for d in range(4):
                x = XS + xset * 8 + mt * 4 + d
                t0 = vT + (d % 2) * 2
                t1 = t0 + 1
                ops.append(f"v_lshlrev_b32 v{t0}, 16, v{x}")
                ops.append(f"v_and_b32 v{t1}, 0xffff0000, v{x}")
                if "fastnorm" in OPT:
                    ops.append(f"v_sub_f32 v{t0}, v{t0}, v{vM}")
                    ops.append(f"v_sub_f32 v{t1}, v{t1}, v{vM}")
                    ops.append(f"v_cvt_pk_bf16_f32 v{x}, v{t0}, v{t1}")
                    continue
                ops.append(f"v_sub_f32 v{t0}, v{t0}, v{vM}")
                ops.append(f"v_sub_f32 v{t1}, v{t1}, v{vM}")
                ops.append(f"v_cvt_pk_bf16_f32 v{t0}, v{t0}, v{t1}")
                ops.append(f"v_and_b32 v{t1}, 0xffff0000, v{t0}")
                ops.append(f"v_lshlrev_b32 v{t0}, 16, v{t0}")
                ops.append(f"v_mul_f32 v{t0}, v{t0}, v{vR}")
                ops.append(f"v_mul_f32 v{t1}, v{t1}, v{vR}")
                ops.append(f"v_cvt_pk_bf16_f32 v{x}, v{t0}, v{t1}")
        return ops

    def wread(fidx_global):
        st = (fidx_global // 18) % NST
        f = fidx_global % 18
        nt, mat = f // 2, f % 2
        slot = fidx_global % RING
        base = vWa if st < 3 else vWb
        off = (st % 3) * STG + mat * 9216 + nt * 32
        a(f"ds_read_b64_tr_b16 {vr(WR+slot*4,2)}, v{base} offset:{off}")
        a(f"ds_read_b64_tr_b16 {vr(WR+slot*4+2,2)}, v{base} offset:{off+4608}")

    PF = RING - 1
    a("s_waitcnt vmcnt(15)")
    for op in norm_ops(0):
        a(op)
    a("s_barrier")
    for f in range(PF):
        wread(f)
    stamp(a, 1)
    a(f"s_mov_b32 s{sIt}, 0")
    a(".p2align 6")
    a.lab(f"L_{name}_loop")
    for ph in range(NST):
        lg = load_groups((ph + 5) % NST, (ph + 5) % NST)
        spread = "spread" in OPT
        if not spread:
            issue_loads((ph + 5) % NST, (ph + 5) % NST)
        nops = norm_ops((ph + 1) % NST)
        if "nonorm" in OPT: nops = []
        ni = 0
        for f in range(18):
            g = ph * 18 + f
            nt, mat = f // 2, f % 2
            slot = g % RING
            wread(g + PF)
            a(f"s_waitcnt lgkmcnt({2*PF})")
            a(f"v_mfma_f32_16x16x32_bf16 {vr(acc(nt,mat,0),4)}, {vr(WR+slot*4,4)}, {vr(XS+ph*8,4)}, {vr(acc(nt,mat,0),4)}")
            a(f"v_mfma_f32_16x16x32_bf16 {vr(acc(nt,mat,1),4)}, {vr(WR+slot*4,4)}, {vr(XS+ph*8+4,4)}, {vr(acc(nt,mat,1),4)}")
            if f == 1:
                a("s_waitcnt vmcnt(%d)" % (15 if spread else 20))
            if spread and f % 3 == 2 and f // 3 < 5:
                for x in lg[f // 3]: a(x)
            if f >= 1:
                for _ in range(5):
                    if ni < len(nops):
                        a(nops[ni]); ni += 1
        assert ni == len(nops)
        a("s_waitcnt vmcnt(17)")
        a("s_barrier")
    a(f"s_add_u32 s{sIt}, s{sIt}, 1")
    a(f"s_cmp_lt_u32 s{sIt}, 3")
    a(f"s_cbranch_scc1 L_{name}_loop")
    stamp(a, 2)
    a("s_waitcnt vmcnt(0) lgkmcnt(0)")
    a(f"s_mov_b32 s{sA_}, {f32(GELU_A)}")
    a(f"s_mov_b32 s{sB_}, {f32(GELU_B)}")
    a(f"v_lshlrev_b32 v{vX0}, 4, v{vLane}")
    a(f"s_and_b32 s{sT}, s{sFb}, 1")
    a(f"s_lshl_b32 s{sT+1}, s{sT}, 12")
    a(f"s_add_u32 s{sT+1}, s{sT+1}, s{sHb}")
    a(f"s_lshl_b32 s{sT+2}, s{sT}, 3")
    a(f"s_add_u32 s{sT+2}, s{sT+2}, s{sHb}")
    a(f"s_add_u32 s{sT+2}, s{sT+2}, {8*1024}")
    a(f"s_add_u32 s{sT+3}, s{sT+1}, {144*1024}")
    a(f"s_add_u32 s{sT+4}, s{sT+2}, {144*1024}")
    OUT = XS
    def gelu_tile(nt, mt, dst):
        g = acc(nt, 0, mt); u = acc(nt, 1, mt)
        T = WR
        for h in range(2):
            g0, g1, u0, u1 = g+2*h, g+2*h+1, u+2*h, u+2*h+1
            x0, x1, y0, y1, t0, t1 = T+h*8, T+h*8+1, T+h*8+2, T+h*8+3, T+h*8+4, T+h*8+5
            if "relax" in OPT:
                x0, x1, y0, y1 = g0, g1, u0, u1
            else:
                a(f"v_cvt_pk_bf16_f32 v{x0}, v{g0}, v{g1}")
                a(f"v_cvt_pk_bf16_f32 v{y0}, v{u0}, v{u1}")
                a(f"v_and_b32 v{x1}, 0xffff0000, v{x0}")
                a(f"v_lshlrev_b32 v{x0}, 16, v{x0}")
                a(f"v_and_b32 v{y1}, 0xffff0000, v{y0}")
                a(f"v_lshlrev_b32 v{y0}, 16, v{y0}")
            a(f"v_mul_f32 v{t0}, v{x0}, v{x0}")
            a(f"v_mul_f32 v{t1}, v{x1}, v{x1}")
            a(f"v_fma_f32 v{t0}, v{t0}, s{sB_}, v{vT}")
            a(f"v_fma_f32 v{t1}, v{t1}, s{sB_}, v{vT}")
            a(f"v_mul_f32 v{t0}, v{t0}, v{x0}")
            a(f"v_mul_f32 v{t1}, v{t1}, v{x1}")
            a(f"v_exp_f32 v{t0}, v{t0}")
            a(f"v_exp_f32 v{t1}, v{t1}")
            a("s_nop 0")
            a(f"v_add_f32 v{t0}, 1.0, v{t0}")
            a(f"v_add_f32 v{t1}, 1.0, v{t1}")
            a(f"v_rcp_f32 v{t0}, v{t0}")
            a(f"v_rcp_f32 v{t1}, v{t1}")
            a("s_nop 0")
            a(f"v_mul_f32 v{t0}, v{t0}, v{x0}")
            a(f"v_mul_f32 v{t1}, v{t1}, v{x1}")
            if "relax" not in OPT:
                a(f"v_cvt_pk_bf16_f32 v{t0}, v{t0}, v{t1}")
                a(f"v_and_b32 v{t1}, 0xffff0000, v{t0}")
                a(f"v_lshlrev_b32 v{t0}, 16, v{t0}")
            a(f"v_mul_f32 v{t0}, v{t0}, v{y0}")
            a(f"v_mul_f32 v{t1}, v{t1}, v{y1}")
            a(f"v_cvt_pk_bf16_f32 v{dst+h}, v{t0}, v{t1}")
    a(f"v_mov_b32 v{vT}, s{sA_}")
    a("s_nop 7")
    k = 0
    for mt in range(2):
        for p in range(4):
            o = OUT + (k % 12) * 4; k += 1
            gelu_tile(2*p, mt, o)
            gelu_tile(2*p+1, mt, o+2)
            a(f"buffer_store_dwordx4 {vr(o,4)}, v{vX0}, {sr(sH,4)}, s{sT+1+2*mt} offen offset:{p*1024}")
        o = OUT + (k % 12) * 4; k += 1
        gelu_tile(8, mt, o)
        a(f"buffer_store_dwordx2 {vr(o,2)}, v{vX0}, {sr(sH,4)}, s{sT+2+2*mt} offen")
    stamp(a, 3)
    a("s_waitcnt vmcnt(0)")
    stamp(a, 4)
    stamp(a, 6, True)
    stamp_dump(a, 7, 8, sWave, vT)
    a.lab(f"L_{name}_done")
    a("s_endpgm")
    return a.text(), kernel_desc(name, NV), f"; @launch kernel={name} grid=(256,1,1) block=(512,1,1) lds={NST*STG}"


def lds_dump(a, nbytes, wg, tidv, tv, off_mb, nthreads=512, tag="d"):
    a(f"s_cmp_lg_u32 s2, {wg}")
    a(f"s_cbranch_scc1 L_dump_{tag}")
    srd(a, 80, 8, 1 << 20, off_mb << 20)
    a(f"v_lshlrev_b32 v{tv}, 4, v{tidv}")
    for i in range(0, nbytes, nthreads*16):
        a(f"v_add_u32 v{tv+1}, {i}, v{tv}")
        a(f"ds_read_b128 v[{tv+2}:{tv+5}], v{tv+1}")
        a("s_waitcnt lgkmcnt(0)")
        a(f"buffer_store_dwordx4 v[{tv+2}:{tv+5}], v{tv+1}, s[80:83], 0 offen")
        a("s_waitcnt vmcnt(0)")
    a.lab(f"L_dump_{tag}")
    a("s_barrier")

class VM:
    def __init__(self, a):
        self.a = a; self.ops = []
    def op(self, tag, text):
        if "noload" in OPT and tag[0] in ("W", "X") and tag[1] >= 2 and getattr(self.a, "k3", False): return
        self.a(text); self.ops.append(tag)
    def wait(self, tagpred, extra=""):
        last = -1
        for i, t in enumerate(self.ops):
            if tagpred(t): last = i
        n = len(self.ops) - 1 - last
        assert n <= 63
        if last >= 0:
            self.a(f"s_waitcnt vmcnt({n}){extra}")
            self.ops = self.ops[last+1:]

def gen_k4(name="k4_kernel"):
    a = A(); vm = VM(a)
    kernel_head(a, name)
    NST = 6; STG = 18432; RING = 6; PFD = 5
    ACC = 4
    XS = 76
    WR = 124
    vWa, vWb = 148, 149
    vD0, vD1, vD2 = 150, 151, 152
    vX0, vX1 = 153, 154
    vT = 156
    NV = 172
    def acc(nt, mt): return ACC + (nt*2+mt)*4
    sW, sX, sP = 12, 16, 20
    sWave, sKs, sMb, sNb = 28, 29, 30, 31
    sWb1, sWb2, sXb, sM0b = 32, 33, 34, 35
    sT = 36
    sExec = 50
    sWo = 52
    a("s_cmp_ge_u32 s2, 256")
    a(f"s_cbranch_scc1 L_{name}_done")
    stamp(a, 0); stamp(a, 5, True)
    a("s_load_dwordx2 s[4:5], s[0:1], 48")
    a("s_load_dwordx2 s[8:9], s[0:1], 72")
    a("v_lshrrev_b32 v1, 6, v0")
    a("v_and_b32 v0, 63, v0")
    a("s_nop 0")
    a(f"v_readfirstlane_b32 s{sWave}, v1")
    a(f"s_and_b32 s{sT}, s2, 7")
    a(f"s_lshr_b32 s{sT+1}, s2, 3")
    a(f"s_lshr_b32 s{sKs}, s{sT}, 1")
    a(f"s_and_b32 s{sNb}, s{sT+1}, 3")
    a(f"s_and_b32 s{sT}, s{sT}, 1")
    a(f"s_lshl_b32 s{sT}, s{sT}, 3")
    a(f"s_lshr_b32 s{sMb}, s{sT+1}, 2")
    a(f"s_add_u32 s{sMb}, s{sMb}, s{sT}")
    a("s_waitcnt lgkmcnt(0)")
    srd(a, sW, 4, 4608*576*2)
    srd(a, sX, 8, HH_SZ, HH_OFF)
    srd(a, sP, 8, P_SZ, P_OFF)
    for t, vd in enumerate((vD0, vD1, vD2)):
        a(f"v_add_u32 v{vT+1}, {t*64}, v0")
        a(f"v_mul_u32_u24 v{vT+2}, 3641, v{vT+1}")
        a(f"v_lshrrev_b32 v{vT+2}, 16, v{vT+2}")
        a(f"v_mul_u32_u24 v{vT+3}, 18, v{vT+2}")
        a(f"v_sub_u32 v{vT+3}, v{vT+1}, v{vT+3}")
        a(f"v_mul_u32_u24 v{vT+2}, 1152, v{vT+2}")
        a(f"v_lshl_add_u32 v{vd}, v{vT+3}, 4, v{vT+2}")
    a(f"s_lshr_b32 s{sT}, s{sWave}, 2")
    a(f"s_lshl_b32 s{sT+1}, s{sKs}, 1")
    a(f"s_add_u32 s{sT+1}, s{sT+1}, s{sT}")
    a(f"s_mul_i32 s{sWb1}, s{sT+1}, {576*1152}")
    a(f"s_and_b32 s{sT+2}, s{sWave}, 3")
    a(f"s_mul_i32 s{sT+3}, s{sT+2}, {8*1152}")
    a(f"s_add_u32 s{sWb1}, s{sWb1}, s{sT+3}")
    a(f"s_mul_i32 s{sT+3}, s{sNb}, 288")
    a(f"s_add_u32 s{sWb1}, s{sWb1}, s{sT+3}")
    a(f"s_cmp_ge_u32 s{sT+2}, 2")
    a(f"s_cselect_b32 s{sT+3}, {128*1152}, 0")
    a(f"s_add_u32 s{sWb2}, s{sWb1}, s{sT+3}")
    a(f"s_mul_i32 s{sM0b}, s{sWave}, 2304")
    a(f"s_lshl_b32 s{sXb}, s{sMb}, 3")
    a(f"s_lshl_b32 s{sT+3}, s{sT+2}, 1")
    a(f"s_add_u32 s{sXb}, s{sXb}, s{sT+3}")
    a(f"s_mov_b32 s{sT+4}, s{sXb}")
    a(f"s_mul_i32 s{sXb}, s{sXb}, 144")
    a(f"s_mul_i32 s{sT+3}, s{sT+1}, 18")
    a(f"s_add_u32 s{sXb}, s{sXb}, s{sT+3}")
    a(f"s_lshl_b32 s{sXb}, s{sXb}, 10")
    a(f"v_lshlrev_b32 v{vX0}, 4, v0")
    a(f"v_add_u32 v{vX0}, s{sXb}, v{vX0}")
    a(f"v_add_u32 v{vX1}, {144*1024}, v{vX0}")
    a(f"s_lshl_b32 s{sT+5}, s{sKs}, 7")
    a(f"s_add_u32 s{sT+5}, s{sT+5}, s{sT+4}")
    a(f"s_add_u32 s{sT+5}, s{sT+5}, s{sT}")
    a(f"s_mul_i32 s{sT+5}, s{sT+5}, 36")
    a(f"s_mul_i32 s{sT+6}, s{sNb}, 9")
    a(f"s_add_u32 s{sT+5}, s{sT+5}, s{sT+6}")
    a(f"s_lshl_b32 s{sT+5}, s{sT+5}, 10")
    a(f"v_lshrrev_b32 v{vT+1}, 2, v0")
    a(f"v_mul_u32_u24 v{vT+1}, 288, v{vT+1}")
    a(f"v_and_b32 v{vT+2}, 3, v0")
    a(f"v_lshl_add_u32 v{vWa}, v{vT+2}, 3, v{vT+1}")
    a(f"s_mul_i32 s{sT+6}, s{sT}, 9216")
    a(f"v_add_u32 v{vWa}, s{sT+6}, v{vWa}")
    a(f"v_add_u32 v{vWb}, {3*STG}, v{vWa}")
    a(f"s_mov_b64 s[{sExec}:{sExec+1}], 0xffff")

    def fa_rel(i):
        q, ii = divmod(i, 9)
        if ii < 4: return 288*q + 32*ii
        if ii < 8: return 288*q + 144 + 32*(ii-4)
        return 288*q + 128
    def load_groups(i):
        if i >= 18: return []
        st = i % NST
        gs = []
        base = sWb2 if i % 9 == 8 else sWb1
        for t, vd in enumerate((vD0, vD1, vD2)):
            g = []
            if t == 0:
                g.append(("s", f"s_add_u32 s{sWo}, s{base}, {fa_rel(i)*1152}"))
            g.append(("s", f"s_add_u32 m0, s{sM0b}, {st*STG + t*1024}"))
            g.append(("s", f"s_mov_b64 exec, s[{sExec}:{sExec+1}]" if t == 2 else "s_nop 0"))
            g.append((("W", i), f"buffer_load_dwordx4 v{vd}, {sr(sW,4)}, s{sWo} offen lds"))
            if t == 2: g.append(("s", "s_mov_b64 exec, -1"))
            gs.append(g)
        xs = XS + (i % NST) * 8
        gs.append([("s", f"s_mov_b32 s{sWo+1}, {i*1024}"),
                   (("X", i), f"buffer_load_dwordx4 {vr(xs,4)}, v{vX0}, {sr(sX,4)}, s{sWo+1} offen")])
        gs.append([(("X", i), f"buffer_load_dwordx4 {vr(xs+4,4)}, v{vX1}, {sr(sX,4)}, s{sWo+1} offen")])
        return gs
    def emit_group(g):
        for tag, txt in g:
            if tag == "s": a(txt)
            else: vm.op(tag, txt)
    for i in range(PFD):
        for g in load_groups(i): emit_group(g)
    for i in range(0, 72, 2):
        a(f"v_mov_b64 {vr(ACC+i,2)}, 0")
    def wread(gidx):
        i, nt = divmod(gidx, 9)
        if i >= 18: return False
        st = i % NST; slot = gidx % RING
        base = vWa if st < 3 else vWb
        off = (st % 3) * STG + nt * 32
        a(f"ds_read_b64_tr_b16 {vr(WR+slot*4,2)}, v{base} offset:{off}")
        a(f"ds_read_b64_tr_b16 {vr(WR+slot*4+2,2)}, v{base} offset:{off+4608}")
        return True
    PF = RING - 1
    vm.wait(lambda t: t[1] <= 1)
    a("s_barrier")
    for f in range(PF): wread(f)
    stamp(a, 1)
    for i in range(18):
        lg = load_groups(i + PFD)
        vm.wait(lambda t: t[0] == "X" and t[1] <= i)
        for nt in range(9):
            g = i*9 + nt; slot = g % RING
            ok = wread(g + PF)
            rem = min(PF, 18*9 - 1 - g)
            a(f"s_waitcnt lgkmcnt({2*rem})")
            xs = XS + (i % NST) * 8
            a(f"v_mfma_f32_16x16x32_bf16 {vr(acc(nt,0),4)}, {vr(WR+slot*4,4)}, {vr(xs,4)}, {vr(acc(nt,0),4)}")
            a(f"v_mfma_f32_16x16x32_bf16 {vr(acc(nt,1),4)}, {vr(WR+slot*4,4)}, {vr(xs+4,4)}, {vr(acc(nt,1),4)}")
            if nt % 2 == 0 and nt // 2 < len(lg):
                emit_group(lg[nt // 2])
        vm.wait(lambda t: t[0] == "W" and t[1] <= i + 2)
        a("s_barrier")
    stamp(a, 2)
    a(f"s_lshr_b32 s{sT}, s{sWave}, 2")
    a(f"v_lshlrev_b32 v{vT}, 4, v0")
    a(f"s_mul_i32 s{sT+1}, s{sWave}, 9216")
    a(f"v_add_u32 v{vT+1}, s{sT+1}, v{vT}")
    a(f"s_xor_b32 s{sT+2}, s{sWave}, 4")
    a(f"s_mul_i32 s{sT+2}, s{sT+2}, 9216")
    a(f"v_add_u32 v{vT+2}, s{sT+2}, v{vT}")
    a(f"s_cmp_eq_u32 s{sT}, 0")
    a("s_nop 4")
    a(f"s_cbranch_scc0 L_{name}_kh1")
    for kh in range(2):
        if kh == 1: a.lab(f"L_{name}_kh1")
        for nt in range(9):
            a(f"ds_write_b128 v{vT+1}, {vr(acc(nt,1-kh),4)} offset:{nt*1024}")
        a("s_waitcnt lgkmcnt(0)")
        a("s_barrier")
        for nt in range(9):
            a(f"ds_read_b128 {vr(XS+nt*4,4)}, v{vT+2} offset:{nt*1024}")
        for nt in range(9):
            a(f"s_waitcnt lgkmcnt({8-nt})")
            for r in range(4):
                a(f"v_add_f32 v{XS+nt*4+r}, v{XS+nt*4+r}, v{acc(nt,kh)+r}")
            if nt < 4:
                a(f"buffer_store_dwordx4 {vr(XS+nt*4,4)}, v{vT}, {sr(sP,4)}, s{sT+5} offen offset:{nt*1024}")
            else:
                if nt in (4, 8): a(f"s_add_u32 s{sT+5}, s{sT+5}, 4096")
                a(f"buffer_store_dwordx4 {vr(XS+nt*4,4)}, v{vT}, {sr(sP,4)}, s{sT+5} offen offset:{(nt%4)*1024}")
        stamp(a, 3)
        if "stamp" in OPT: a("s_waitcnt vmcnt(0)")
        stamp(a, 4); stamp(a, 6, True)
        stamp_dump(a, 7, 8, sWave, vT+4, 1)
        a("s_endpgm")
    a.lab(f"L_{name}_done")
    a("s_endpgm")
    return a.text(), kernel_desc(name, NV), f"; @launch kernel={name} grid=(256,1,1) block=(512,1,1) lds={NST*STG}"

def gen_k5(name="k5_kernel"):
    a = A()
    kernel_head(a, name)
    sH, sP, sO = 12, 16, 20
    a("s_cmp_ge_u32 s2, 576")
    a(f"s_cbranch_scc1 L_{name}_done")
    a("s_load_dwordx2 s[4:5], s[0:1], 56")
    a("s_load_dwordx2 s[8:9], s[0:1], 72")
    a("v_lshrrev_b32 v1, 6, v0")
    a("v_and_b32 v0, 63, v0")
    a("s_nop 0")
    a("v_readfirstlane_b32 s28, v1")
    a("s_lshl_b32 s29, s2, 2")
    a("s_add_u32 s29, s29, s28")
    a("s_mul_i32 s30, s29, 3641")
    a("s_lshr_b32 s30, s30, 16")
    a("s_mul_i32 s31, s30, 18")
    a("s_sub_u32 s31, s29, s31")
    a("s_waitcnt lgkmcnt(0)")
    srd(a, sH, 8, H1_SZ, H1_OFF)
    srd(a, sP, 8, P_SZ, P_OFF)
    srd(a, sO, 4, 2048*576*2)
    a("v_lshlrev_b32 v1, 4, v0")
    a("s_lshl_b32 s32, s29, 10")
    if "pb16" in OPT:
        a("s_lshl_b32 s33, s29, 10")
        a("v_lshlrev_b32 v3, 3, v0")
        a(f"buffer_load_dwordx4 v[4:7], v1, {sr(sH,4)}, s32 offen")
        for k in range(4):
            a(f"buffer_load_dwordx2 v[{40+k*4}:{41+k*4}], v3, {sr(sP,4)}, s33 offen")
            a(f"buffer_load_dwordx2 v[{42+k*4}:{43+k*4}], v3, {sr(sP,4)}, s33 offen offset:512")
            if k < 3: a(f"s_add_u32 s33, s33, {128*36*512}")
    else:
        a("s_lshl_b32 s33, s29, 11")
        a(f"buffer_load_dwordx4 v[4:7], v1, {sr(sH,4)}, s32 offen")
        for k in range(4):
            a(f"buffer_load_dwordx4 v[{8+k*8}:{11+k*8}], v1, {sr(sP,4)}, s33 offen")
            a(f"buffer_load_dwordx4 v[{12+k*8}:{15+k*8}], v1, {sr(sP,4)}, s33 offen offset:1024")
            if k < 3: a(f"s_add_u32 s33, s33, {128*36*1024}")
    a("v_and_b32 v2, 15, v0")
    a("s_lshl_b32 s34, s30, 4")
    a("v_add_u32 v2, s34, v2")
    a("v_mul_u32_u24 v2, 1152, v2")
    a("v_lshrrev_b32 v3, 4, v0")
    a("v_lshl_add_u32 v2, v3, 3, v2")
    a("s_lshl_b32 s34, s31, 6")
    a("s_waitcnt vmcnt(0)")
    if "pb16" in OPT:
        for k in range(4):
            for d in range(4):
                a(f"v_lshlrev_b32 v{8+k*8+2*d}, 16, v{40+k*4+d}")
                a(f"v_and_b32 v{9+k*8+2*d}, 0xffff0000, v{40+k*4+d}")
    for i in range(8):
        a(f"v_add_f32 v{8+i}, v{8+i}, v{16+i}")
        a(f"v_add_f32 v{24+i}, v{24+i}, v{32+i}")
    for i in range(8):
        a(f"v_add_f32 v{8+i}, v{8+i}, v{24+i}")
    for p in range(4):
        a(f"v_cvt_pk_bf16_f32 v{16+p}, v{8+2*p}, v{9+2*p}")
    for p in range(4):
        a(f"v_lshlrev_b32 v{24+2*p}, 16, v{16+p}")
        a(f"v_and_b32 v{25+2*p}, 0xffff0000, v{16+p}")
        a(f"v_lshlrev_b32 v{32+2*p}, 16, v{4+p}")
        a(f"v_and_b32 v{33+2*p}, 0xffff0000, v{4+p}")
    for i in range(8):
        a(f"v_add_f32 v{24+i}, v{24+i}, v{32+i}")
    for p in range(4):
        a(f"v_cvt_pk_bf16_f32 v{16+p}, v{24+2*p}, v{25+2*p}")
    a(f"buffer_store_dwordx2 v[16:17], v2, {sr(sO,4)}, s34 offen")
    a(f"buffer_store_dwordx2 v[18:19], v2, {sr(sO,4)}, s34 offen offset:32")
    a.lab(f"L_{name}_done")
    a("s_endpgm")
    return a.text(), kernel_desc(name, 56, 48), f"; @launch kernel={name} grid=(576,1,1) block=(256,1,1) lds=0"


def gen_k2(name="k2_kernel"):
    a = A(); vm = VM(a)
    kernel_head(a, name)
    PITCH = 224; BLK = 32*PITCH
    ACC = 4
    OF = 28
    XR = 100
    WR = 112
    vD = 160
    vWa, vWb = 167, 168
    vT = 170
    NV = 188
    sW, sO, sXs, sH, sST = 12, 16, 20, 24, 28
    sWave, sRb, sNb, sT = 32, 33, 34, 36
    a("s_cmp_ge_u32 s2, 192")
    a(f"s_cbranch_scc1 L_{name}_done")
    stamp(a, 0); stamp(a, 5, True)
    a("s_load_dwordx2 s[4:5], s[0:1], 0")
    a("s_load_dwordx2 s[6:7], s[0:1], 16")
    a("s_load_dwordx2 s[8:9], s[0:1], 72")
    a("v_lshrrev_b32 v1, 6, v0")
    a("v_and_b32 v0, 63, v0")
    a("s_nop 0")
    a(f"v_readfirstlane_b32 s{sWave}, v1")
    a(f"s_lshr_b32 s{sT+1}, s2, 3")
    a(f"s_mul_i32 s{sRb}, s{sT+1}, 10923")
    a(f"s_lshr_b32 s{sRb}, s{sRb}, 16")
    a(f"s_mul_i32 s{sT}, s{sRb}, 6")
    a(f"s_sub_u32 s{sNb}, s{sT+1}, s{sT}")
    a(f"s_and_b32 s{sT}, s2, 7")
    a(f"s_lshl_b32 s{sT}, s{sT}, 2")
    a(f"s_add_u32 s{sRb}, s{sRb}, s{sT}")
    a("s_waitcnt lgkmcnt(0)")
    srd(a, sW, 6, 576*576*2)
    srd(a, sO, 8, O_SZ, O_OFF)
    srd(a, sXs, 4, 2048*576*2)
    srd(a, sH, 8, H1_SZ, H1_OFF)
    srd(a, sST, 8, ST_SZ, ST_OFF)
    a(f"s_mul_i32 s{sT}, s{sNb}, 192")
    a(f"s_mov_b32 s{sT+1}, 0x40000000")
    for t in range(7):
        a(f"v_add_u32 v{vT}, {t*64}, v0")
        a(f"v_mul_u32_u24 v{vT+1}, 4682, v{vT}")
        a(f"v_lshrrev_b32 v{vT+1}, 16, v{vT+1}")
        a(f"v_mul_u32_u24 v{vT+2}, 14, v{vT+1}")
        a(f"v_sub_u32 v{vT+2}, v{vT}, v{vT+2}")
        a(f"v_and_b32 v{vT+3}, 4, v{vT+1}")
        a(f"v_lshlrev_b32 v{vT+3}, 1, v{vT+3}")
        a(f"v_and_b32 v{vT+4}, 8, v{vT+1}")
        a(f"v_lshrrev_b32 v{vT+4}, 1, v{vT+4}")
        a(f"v_and_b32 v{vT+1}, 0x13, v{vT+1}")
        a(f"v_or3_b32 v{vT+1}, v{vT+1}, v{vT+3}, v{vT+4}")
        a(f"v_mul_u32_u24 v{vT+1}, 1152, v{vT+1}")
        a(f"v_lshl_add_u32 v{vT+1}, v{vT+2}, 4, v{vT+1}")
        a(f"v_add_u32 v{vT+1}, s{sT}, v{vT+1}")
        a(f"v_cmp_gt_u32 vcc, 12, v{vT+2}")
        a(f"v_mov_b32 v{vT+3}, s{sT+1}")
        a("s_nop 0")
        a(f"v_cndmask_b32 v{vD+t}, v{vT+3}, v{vT+1}, vcc")
    a(f"s_lshl_b32 s{sT}, s{sRb}, 6")
    a(f"s_lshl_b32 s{sT+1}, s{sWave}, 4")
    a(f"s_add_u32 s{sT}, s{sT}, s{sT+1}")
    a(f"v_and_b32 v{vT}, 15, v0")
    a(f"v_add_u32 v{vT}, s{sT}, v{vT}")
    a(f"v_mul_u32_u24 v{vT+1}, 1152, v{vT}")
    a(f"v_lshrrev_b32 v{vT+2}, 4, v0")
    a(f"s_lshr_b32 s{sT+4}, s{sT}, 4")
    a(f"s_mul_i32 s{sT+4}, s{sT+4}, 18432")
    a(f"v_lshlrev_b32 v{vT+3}, 4, v0")
    a(f"v_add_u32 v{vT+3}, s{sT+4}, v{vT+3}")
    a(f"v_lshl_add_u32 v{vT+4}, v{vT+2}, 3, v{vT+1}")
    for q in range(1, 5): a(f"s_movk_i32 s{sT+4+q}, {q*4096}")
    def osoff(s_): return ("s%d" % (sT+4+s_//4)) if s_ >= 4 else "0"
    a(f"s_mul_i32 s{sT+1}, s{sNb}, 192")
    a(f"s_mul_i32 s{sT+2}, s{sWave}, {32*1152}")
    a(f"s_mul_i32 s{sT+3}, s{sWave}, {BLK}")
    def chunk_ops(c):
        gs = []
        if c > 4: return gs
        for t in range(7):
            g = [("s", f"s_add_u32 m0, s{sT+3}, {c*4*BLK + t*1024}"), ("s", "s_nop 0"),
                 (("W", c), f"buffer_load_dwordx4 v{vD+t}, {sr(sW,4)}, s{sT+2} offen lds")]
            if t == 6: g.append(("s", f"s_add_u32 s{sT+2}, s{sT+2}, {4*32*1152}"))
            gs.append(g)
        for s_ in range(4*c, min(4*c+4, 18)):
            gs.append([(("O", c), f"buffer_load_dwordx4 {vr(OF+s_*4,4)}, v{vT+3}, {sr(sO,4)}, {osoff(s_)} offen offset:{(s_%4)*1024}")])
        return gs
    def emit_group(g):
        for tg, txt in g:
            if tg == "s": a(txt)
            else: vm.op(tg, txt)
    for c in range(2):
        for g in chunk_ops(c): emit_group(g)
    a(f"v_lshrrev_b32 v{vT+5}, 5, v0")
    a(f"v_lshlrev_b32 v{vT+5}, 4, v{vT+5}")
    a(f"v_bfe_u32 v{vT+6}, v0, 2, 3")
    a(f"v_add_u32 v{vT+5}, v{vT+5}, v{vT+6}")
    a(f"v_mul_u32_u24 v{vT+5}, {PITCH}, v{vT+5}")
    a(f"v_and_b32 v{vT+6}, 3, v0")
    a(f"v_lshl_add_u32 v{vWa}, v{vT+6}, 3, v{vT+5}")
    a(f"v_add_u32 v{vWb}, {9*BLK}, v{vWa}")
    def wread(s_, buf):
        base = vWa if s_ < 9 else vWb
        for nt in range(6):
            off = (s_ % 9) * BLK + nt * 32
            a(f"ds_read_b64_tr_b16 {vr(WR+buf*24+nt*4,2)}, v{base} offset:{off}")
            a(f"ds_read_b64_tr_b16 {vr(WR+buf*24+nt*4+2,2)}, v{base} offset:{off+8*PITCH}")
    for c in range(5):
        vm.wait(lambda t: t[1] <= c)
        a("s_barrier")
        if c == 0: stamp(a, 1)
        lg = chunk_ops(c+2)
        if c == 2:
            for nt in range(6):
                lg.append([(("X", 9), f"buffer_load_dwordx2 {vr(XR+nt*2,2)}, v{vT+4}, {sr(sXs,4)}, s{sT+1} offen offset:{nt*32}")])
        gi = 0
        steps = list(range(4*c, min(4*c+4, 18)))
        wread(steps[0], steps[0] % 2)
        for s_ in steps:
            if s_ != steps[-1]:
                wread(s_+1, (s_+1) % 2)
                a("s_waitcnt lgkmcnt(12)")
            else:
                a("s_waitcnt lgkmcnt(0)")
            for nt in range(6):
                cc = vr(ACC+nt*4,4)
                a(f"v_mfma_f32_16x16x32_bf16 {cc}, {vr(WR+(s_%2)*24+nt*4,4)}, {vr(OF+s_*4,4)}, " + ("0" if s_ == 0 else cc))
                if gi < len(lg):
                    emit_group(lg[gi]); gi += 1
        assert gi == len(lg)
    a("s_waitcnt vmcnt(0)")
    a("s_nop 7")
    stamp(a, 2)
    HP = WR
    for nt in range(6):
        for p in range(2):
            c0 = ACC + nt*4 + 2*p
            a(f"v_cvt_pk_bf16_f32 v{vT}, v{c0}, v{c0+1}")
            a(f"v_lshlrev_b32 v{c0}, 16, v{vT}")
            a(f"v_and_b32 v{c0+1}, 0xffff0000, v{vT}")
            a(f"v_lshlrev_b32 v{vT+1}, 16, v{XR+nt*2+p}")
            a(f"v_and_b32 v{vT+2}, 0xffff0000, v{XR+nt*2+p}")
            a(f"v_add_f32 v{c0}, v{c0}, v{vT+1}")
            a(f"v_add_f32 v{c0+1}, v{c0+1}, v{vT+2}")
            a(f"v_cvt_pk_bf16_f32 v{HP+nt*2+p}, v{c0}, v{c0+1}")
            a(f"v_lshlrev_b32 v{c0}, 16, v{HP+nt*2+p}")
            a(f"v_and_b32 v{c0+1}, 0xffff0000, v{HP+nt*2+p}")
    a(f"s_lshl_b32 s{sT}, s{sRb}, 2")
    a(f"s_add_u32 s{sT}, s{sT}, s{sWave}")
    a(f"s_mul_i32 s{sT+1}, s{sT}, 18")
    a(f"s_mul_i32 s{sT+2}, s{sNb}, 3")
    a(f"s_add_u32 s{sT+1}, s{sT+1}, s{sT+2}")
    a(f"s_lshl_b32 s{sT+1}, s{sT+1}, 10")
    a(f"v_lshlrev_b32 v{vT}, 4, v0")
    for p in range(3):
        a(f"buffer_store_dwordx4 {vr(HP+p*4,4)}, v{vT}, {sr(sH,4)}, s{sT+1} offen offset:{p*1024}")
    def xreduce(v, t):
        a(f"v_xor_b32 v{t}, 16, v0")
        a(f"v_lshlrev_b32 v{t}, 2, v{t}")
        a(f"ds_bpermute_b32 v{t+1}, v{t}, v{v}")
        a("s_waitcnt lgkmcnt(0)")
        a(f"v_add_f32 v{v}, v{v}, v{t+1}")
        a(f"v_xor_b32 v{t}, 32, v0")
        a(f"v_lshlrev_b32 v{t}, 2, v{t}")
        a(f"ds_bpermute_b32 v{t+1}, v{t}, v{v}")
        a("s_waitcnt lgkmcnt(0)")
        a(f"v_add_f32 v{v}, v{v}, v{t+1}")
    S0, S1 = vT+4, vT+5
    a(f"v_add_f32 v{S0}, v{ACC}, v{ACC+1}")
    for i in range(2, 24):
        a(f"v_add_f32 v{S0}, v{S0}, v{ACC+i}")
    xreduce(S0, vT+6)
    a(f"v_mul_f32 v{S0}, {f32(1.0/96.0)}, v{S0}")
    a(f"v_mov_b32 v{S1}, 0")
    for i in range(24):
        a(f"v_sub_f32 v{vT+1}, v{ACC+i}, v{S0}")
        a(f"v_fmac_f32 v{S1}, v{vT+1}, v{vT+1}")
    xreduce(S1, vT+6)
    a(f"s_lshl_b32 s{sT}, s{sT}, 4")
    a(f"v_add_u32 v{vT}, s{sT}, v0")
    a(f"v_mul_u32_u24 v{vT}, 48, v{vT}")
    a(f"s_lshl_b32 s{sT+1}, s{sNb}, 3")
    a("s_mov_b64 exec, 0xffff")
    a(f"buffer_store_dwordx2 {vr(S0,2)}, v{vT}, {sr(sST,4)}, s{sT+1} offen")
    stamp(a, 3)
    if "stamp" in OPT: a("s_waitcnt vmcnt(0)")
    stamp(a, 4); stamp(a, 6, True)
    stamp_dump(a, 7, 8, sWave, vT+8, 2)
    a.lab(f"L_{name}_done")
    a("s_endpgm")
    return a.text(), kernel_desc(name, NV, 96), f"; @launch kernel={name} grid=(192,1,1) block=(256,1,1) lds={20*BLK}"

def gen_k2v2(name="k2_kernel"):
    a = A(); vm = VM(a)
    kernel_head(a, name)
    PITCH = 224; BLK = 32*PITCH
    ACC = 4
    OF = 28
    XR = 100
    WR = 112
    vD = 160
    vWa, vWb = 167, 168
    vT = 170
    NV = 188
    sW, sO, sXs, sH, sST = 12, 16, 20, 24, 28
    sWave, sRb, sNb, sT = 32, 33, 34, 36
    a("s_cmp_ge_u32 s2, 192")
    a(f"s_cbranch_scc1 L_{name}_done")
    stamp(a, 0); stamp(a, 5, True)
    a("s_load_dwordx2 s[4:5], s[0:1], 0")
    a("s_load_dwordx2 s[6:7], s[0:1], 16")
    a("s_load_dwordx2 s[8:9], s[0:1], 72")
    a("v_lshrrev_b32 v1, 6, v0")
    a("v_and_b32 v0, 63, v0")
    a("s_nop 0")
    a(f"v_readfirstlane_b32 s{sWave}, v1")
    a(f"s_lshr_b32 s35, s{sWave}, 2")
    a(f"s_and_b32 s{sWave}, s{sWave}, 3")
    a(f"s_lshr_b32 s{sT+1}, s2, 3")
    a(f"s_mul_i32 s{sRb}, s{sT+1}, 10923")
    a(f"s_lshr_b32 s{sRb}, s{sRb}, 16")
    a(f"s_mul_i32 s{sT}, s{sRb}, 6")
    a(f"s_sub_u32 s{sNb}, s{sT+1}, s{sT}")
    a(f"s_and_b32 s{sT}, s2, 7")
    a(f"s_lshl_b32 s{sT}, s{sT}, 2")
    a(f"s_add_u32 s{sRb}, s{sRb}, s{sT}")
    a("s_waitcnt lgkmcnt(0)")
    srd(a, sW, 6, 576*576*2)
    srd(a, sO, 8, O_SZ, O_OFF)
    srd(a, sXs, 4, 2048*576*2)
    srd(a, sH, 8, H1_SZ, H1_OFF)
    srd(a, sST, 8, ST_SZ, ST_OFF)
    a(f"s_mul_i32 s{sT}, s{sNb}, 192")
    a(f"s_mov_b32 s{sT+1}, 0x40000000")
    for t in range(7):
        a(f"v_add_u32 v{vT}, {t*64}, v0")
        a(f"v_mul_u32_u24 v{vT+1}, 4682, v{vT}")
        a(f"v_lshrrev_b32 v{vT+1}, 16, v{vT+1}")
        a(f"v_mul_u32_u24 v{vT+2}, 14, v{vT+1}")
        a(f"v_sub_u32 v{vT+2}, v{vT}, v{vT+2}")
        a(f"v_and_b32 v{vT+3}, 4, v{vT+1}")
        a(f"v_lshlrev_b32 v{vT+3}, 1, v{vT+3}")
        a(f"v_and_b32 v{vT+4}, 8, v{vT+1}")
        a(f"v_lshrrev_b32 v{vT+4}, 1, v{vT+4}")
        a(f"v_and_b32 v{vT+1}, 0x13, v{vT+1}")
        a(f"v_or3_b32 v{vT+1}, v{vT+1}, v{vT+3}, v{vT+4}")
        a(f"v_mul_u32_u24 v{vT+1}, 1152, v{vT+1}")
        a(f"v_lshl_add_u32 v{vT+1}, v{vT+2}, 4, v{vT+1}")
        a(f"v_add_u32 v{vT+1}, s{sT}, v{vT+1}")
        a(f"v_cmp_gt_u32 vcc, 12, v{vT+2}")
        a(f"v_mov_b32 v{vT+3}, s{sT+1}")
        a("s_nop 0")
        a(f"v_cndmask_b32 v{vD+t}, v{vT+3}, v{vT+1}, vcc")
    a(f"s_lshl_b32 s{sT}, s{sRb}, 6")
    a(f"s_lshl_b32 s{sT+1}, s{sWave}, 4")
    a(f"s_add_u32 s{sT}, s{sT}, s{sT+1}")
    a(f"v_and_b32 v{vT}, 15, v0")
    a(f"v_add_u32 v{vT}, s{sT}, v{vT}")
    a(f"v_mul_u32_u24 v{vT+1}, 1152, v{vT}")
    a(f"v_lshrrev_b32 v{vT+2}, 4, v0")
    a(f"s_lshr_b32 s{sT+4}, s{sT}, 4")
    a(f"s_mul_i32 s{sT+4}, s{sT+4}, 18432")
    a(f"v_lshlrev_b32 v{vT+3}, 4, v0")
    a(f"v_add_u32 v{vT+3}, s{sT+4}, v{vT+3}")
    a(f"v_lshl_add_u32 v{vT+4}, v{vT+2}, 3, v{vT+1}")
    for q in range(1, 5): a(f"s_movk_i32 s{sT+4+q}, {q*4096}")
    def osoff(s_): return ("s%d" % (sT+4+s_//4)) if s_ >= 4 else "0"
    a(f"s_mul_i32 s{sT+1}, s{sNb}, 192")
    a(f"s_mul_i32 s{sT+2}, s{sWave}, {32*1152}")
    a(f"s_mul_i32 s{sT+3}, s{sWave}, {BLK}")
    a("s_cmp_eq_u32 s35, 0")
    a(f"s_cbranch_scc1 L_{name}_comp")
    for c in range(5):
        for t in range(7):
            a(f"s_add_u32 m0, s{sT+3}, {c*4*BLK + t*1024}")
            a("s_nop 0")
            a(f"buffer_load_dwordx4 v{vD+t}, {sr(sW,4)}, s{sT+2} offen lds")
        a(f"s_add_u32 s{sT+2}, s{sT+2}, {4*32*1152}")
    for c in range(5):
        a(f"s_waitcnt vmcnt({(4-c)*7})")
        a("s_barrier")
    a("s_endpgm")
    a.lab(f"L_{name}_comp")
    for s_ in range(18):
        vm.op(("O", s_), f"buffer_load_dwordx4 {vr(OF+s_*4,4)}, v{vT+3}, {sr(sO,4)}, {osoff(s_)} offen offset:{(s_%4)*1024}")
    for nt in range(6):
        vm.op(("X", 99), f"buffer_load_dwordx2 {vr(XR+nt*2,2)}, v{vT+4}, {sr(sXs,4)}, s{sT+1} offen offset:{nt*32}")
    a(f"v_lshrrev_b32 v{vT+5}, 5, v0")
    a(f"v_lshlrev_b32 v{vT+5}, 4, v{vT+5}")
    a(f"v_bfe_u32 v{vT+6}, v0, 2, 3")
    a(f"v_add_u32 v{vT+5}, v{vT+5}, v{vT+6}")
    a(f"v_mul_u32_u24 v{vT+5}, {PITCH}, v{vT+5}")
    a(f"v_and_b32 v{vT+6}, 3, v0")
    a(f"v_lshl_add_u32 v{vWa}, v{vT+6}, 3, v{vT+5}")
    a(f"v_add_u32 v{vWb}, {9*BLK}, v{vWa}")
    def wread(s_, buf):
        base = vWa if s_ < 9 else vWb
        for nt in range(6):
            off = (s_ % 9) * BLK + nt * 32
            a(f"ds_read_b64_tr_b16 {vr(WR+buf*24+nt*4,2)}, v{base} offset:{off}")
            a(f"ds_read_b64_tr_b16 {vr(WR+buf*24+nt*4+2,2)}, v{base} offset:{off+8*PITCH}")
    for c in range(5):
        a("s_barrier")
        if c == 0: stamp(a, 1)
        steps = list(range(4*c, min(4*c+4, 18)))
        wread(steps[0], steps[0] % 2)
        vm.wait(lambda t: t[0] == "O" and t[1] <= steps[-1])
        for s_ in steps:
            if s_ != steps[-1]:
                wread(s_+1, (s_+1) % 2)
                a("s_waitcnt lgkmcnt(12)")
            else:
                a("s_waitcnt lgkmcnt(0)")
            for nt in range(6):
                cc = vr(ACC+nt*4,4)
                a(f"v_mfma_f32_16x16x32_bf16 {cc}, {vr(WR+(s_%2)*24+nt*4,4)}, {vr(OF+s_*4,4)}, " + ("0" if s_ == 0 else cc))
    a("s_waitcnt vmcnt(0)")
    a("s_nop 7")
    stamp(a, 2)
    HP = WR
    for nt in range(6):
        for p in range(2):
            c0 = ACC + nt*4 + 2*p
            a(f"v_cvt_pk_bf16_f32 v{vT}, v{c0}, v{c0+1}")
            a(f"v_lshlrev_b32 v{c0}, 16, v{vT}")
            a(f"v_and_b32 v{c0+1}, 0xffff0000, v{vT}")
            a(f"v_lshlrev_b32 v{vT+1}, 16, v{XR+nt*2+p}")
            a(f"v_and_b32 v{vT+2}, 0xffff0000, v{XR+nt*2+p}")
            a(f"v_add_f32 v{c0}, v{c0}, v{vT+1}")
            a(f"v_add_f32 v{c0+1}, v{c0+1}, v{vT+2}")
            a(f"v_cvt_pk_bf16_f32 v{HP+nt*2+p}, v{c0}, v{c0+1}")
            a(f"v_lshlrev_b32 v{c0}, 16, v{HP+nt*2+p}")
            a(f"v_and_b32 v{c0+1}, 0xffff0000, v{HP+nt*2+p}")
    a(f"s_lshl_b32 s{sT}, s{sRb}, 2")
    a(f"s_add_u32 s{sT}, s{sT}, s{sWave}")
    a(f"s_mul_i32 s{sT+1}, s{sT}, 18")
    a(f"s_mul_i32 s{sT+2}, s{sNb}, 3")
    a(f"s_add_u32 s{sT+1}, s{sT+1}, s{sT+2}")
    a(f"s_lshl_b32 s{sT+1}, s{sT+1}, 10")
    a(f"v_lshlrev_b32 v{vT}, 4, v0")
    for p in range(3):
        a(f"buffer_store_dwordx4 {vr(HP+p*4,4)}, v{vT}, {sr(sH,4)}, s{sT+1} offen offset:{p*1024}")
    def xreduce(v, t):
        a(f"v_xor_b32 v{t}, 16, v0")
        a(f"v_lshlrev_b32 v{t}, 2, v{t}")
        a(f"ds_bpermute_b32 v{t+1}, v{t}, v{v}")
        a("s_waitcnt lgkmcnt(0)")
        a(f"v_add_f32 v{v}, v{v}, v{t+1}")
        a(f"v_xor_b32 v{t}, 32, v0")
        a(f"v_lshlrev_b32 v{t}, 2, v{t}")
        a(f"ds_bpermute_b32 v{t+1}, v{t}, v{v}")
        a("s_waitcnt lgkmcnt(0)")
        a(f"v_add_f32 v{v}, v{v}, v{t+1}")
    S0, S1 = vT+4, vT+5
    a(f"v_add_f32 v{S0}, v{ACC}, v{ACC+1}")
    for i in range(2, 24):
        a(f"v_add_f32 v{S0}, v{S0}, v{ACC+i}")
    xreduce(S0, vT+6)
    a(f"v_mul_f32 v{S0}, {f32(1.0/96.0)}, v{S0}")
    a(f"v_mov_b32 v{S1}, 0")
    for i in range(24):
        a(f"v_sub_f32 v{vT+1}, v{ACC+i}, v{S0}")
        a(f"v_fmac_f32 v{S1}, v{vT+1}, v{vT+1}")
    xreduce(S1, vT+6)
    a(f"s_lshl_b32 s{sT}, s{sT}, 4")
    a(f"v_add_u32 v{vT}, s{sT}, v0")
    a(f"v_mul_u32_u24 v{vT}, 48, v{vT}")
    a(f"s_lshl_b32 s{sT+1}, s{sNb}, 3")
    a("s_mov_b64 exec, 0xffff")
    a(f"buffer_store_dwordx2 {vr(S0,2)}, v{vT}, {sr(sST,4)}, s{sT+1} offen")
    stamp(a, 3)
    if "stamp" in OPT: a("s_waitcnt vmcnt(0)")
    stamp(a, 4); stamp(a, 6, True)
    stamp_dump(a, 7, 8, sWave, vT+8, 2)
    a.lab(f"L_{name}_done")
    a("s_endpgm")
    return a.text(), kernel_desc(name, NV, 96), f"; @launch kernel={name} grid=(192,1,1) block=(512,1,1) lds={20*BLK}"

def gen_k1(name="k1_kernel"):
    a = A(); vm = VM(a)
    kernel_head(a, name)
    XT = 0
    WB = 92160; STG = 16384; NST = 4; PITCH = 480
    QP = 624
    ACC = 4
    XF = 44
    WF = 84
    RAW = 100
    vD0, vD1 = 150, 151
    vWa, vXa = 152, 153
    vT = 156
    NV = 200
    sW, sXs, sO = 12, 16, 20
    sWave, sRb, sHg, sT = 28, 29, 30, 36
    sWo, sM0b = 31, 32
    a("s_cmp_ge_u32 s2, 256")
    a(f"s_cbranch_scc1 L_{name}_done")
    stamp(a, 0); stamp(a, 5, True)
    a("s_load_dwordx4 s[4:7], s[0:1], 0")
    a("s_load_dwordx2 s[8:9], s[0:1], 72")
    a("v_lshrrev_b32 v1, 6, v0")
    a("v_mov_b32 v3, v0")
    a("v_and_b32 v0, 63, v0")
    a(f"v_readfirstlane_b32 s{sWave}, v1")
    a(f"s_lshr_b32 s{sT}, s2, 3")
    a(f"s_and_b32 s{sHg}, s{sT}, 3")
    a(f"s_and_b32 s{sT+1}, s2, 1")
    a(f"s_lshl_b32 s{sT+1}, s{sT+1}, 2")
    a(f"s_add_u32 s{sHg}, s{sHg}, s{sT+1}")
    a(f"s_lshr_b32 s{sRb}, s{sT}, 2")
    a(f"s_bfe_u32 s{sT+1}, s2, 0x20001")
    a(f"s_lshl_b32 s{sT+1}, s{sT+1}, 3")
    a(f"s_add_u32 s{sRb}, s{sRb}, s{sT+1}")
    a("s_waitcnt lgkmcnt(0)")
    srd(a, sW, 6, 576*1728*2)
    srd(a, sXs, 4, 2048*576*2)
    srd(a, sO, 8, O_SZ, O_OFF)
    a(f"v_mul_u32_u24 v{vT}, 10923, v0")
    a(f"v_lshrrev_b32 v{vT}, 16, v{vT}")
    a(f"v_mul_u32_u24 v{vT+1}, 6, v{vT}")
    a(f"v_sub_u32 v{vT+1}, v0, v{vT+1}")
    a(f"s_mul_i32 s{sT}, s{sWave}, 10")
    a(f"v_add_u32 v{vT+2}, s{sT}, v{vT}")
    a(f"s_lshl_b32 s{sT+1}, s{sRb}, 6")
    a(f"s_sub_u32 s{sT+1}, s{sT+1}, 16")
    a(f"v_add_u32 v{vT+3}, s{sT+1}, v{vT+2}")
    a(f"s_movk_i32 s{sT+2}, 1152")
    a(f"v_mul_lo_u32 v{vT+3}, v{vT+3}, s{sT+2}")
    a(f"v_lshl_add_u32 v{vT+3}, v{vT+1}, 4, v{vT+3}")
    for i in range(12):
        vm.op(("x", i), f"buffer_load_dwordx4 {vr(RAW+i*4,4)}, v{vT+3}, {sr(sXs,4)}, 0 offen offset:{i*96}")
    a(f"s_lshl_b32 s{sT}, s{sWave}, 7")
    a(f"s_mul_i32 s{sT+1}, s{sHg}, 144")
    a(f"s_mov_b32 s{sT+2}, 0x40000000")
    for t, vd in enumerate((vD0, vD1)):
        a(f"v_add_u32 v{vT+4}, s{sT}, v0")
        if t: a(f"v_add_u32 v{vT+4}, 64, v{vT+4}")
        a(f"v_mul_u32_u24 v{vT+5}, 2185, v{vT+4}")
        a(f"v_lshrrev_b32 v{vT+5}, 16, v{vT+5}")
        a(f"v_mul_u32_u24 v{vT+6}, 30, v{vT+5}")
        a(f"v_sub_u32 v{vT+6}, v{vT+4}, v{vT+6}")
        a(f"v_mul_u32_u24 v{vT+7}, 7282, v{vT+6}")
        a(f"v_lshrrev_b32 v{vT+7}, 16, v{vT+7}")
        a(f"v_mul_u32_u24 v{vT+8}, 9, v{vT+7}")
        a(f"v_sub_u32 v{vT+8}, v{vT+6}, v{vT+8}")
        a(f"v_mul_u32_u24 v{vT+7}, 1152, v{vT+7}")
        a(f"v_lshl_add_u32 v{vT+7}, v{vT+8}, 4, v{vT+7}")
        a(f"v_and_b32 v{vT+8}, 4, v{vT+5}")
        a(f"v_lshlrev_b32 v{vT+8}, 1, v{vT+8}")
        a(f"v_and_b32 v{vT+9}, 8, v{vT+5}")
        a(f"v_lshrrev_b32 v{vT+9}, 1, v{vT+9}")
        a(f"v_and_b32 v{vT+10}, 0x13, v{vT+5}")
        a(f"v_or3_b32 v{vT+8}, v{vT+8}, v{vT+9}, v{vT+10}")
        a(f"v_mul_u32_u24 v{vT+8}, 3456, v{vT+8}")
        a(f"v_add3_u32 v{vT+7}, v{vT+7}, v{vT+8}, s{sT+1}")
        a(f"v_cmp_gt_u32 vcc, 27, v{vT+6}")
        a(f"v_cmp_gt_u32 s[{sT+4}:{sT+5}], 32, v{vT+5}")
        a(f"s_and_b64 vcc, vcc, s[{sT+4}:{sT+5}]")
        a(f"v_mov_b32 v{vT+8}, s{sT+2}")
        a("s_nop 1")
        a(f"v_cndmask_b32 v{vd}, v{vT+8}, v{vT+7}, vcc")
    a(f"s_lshl_b32 s{sM0b}, s{sWave}, 11")
    a(f"s_add_u32 s{sM0b}, s{sM0b}, {WB}")
    def wdma(i):
        if i >= 18: return
        st = i % NST
        a(f"s_mov_b32 s{sWo}, {i*32*3456}")
        for t, vd in enumerate((vD0, vD1)):
            a(f"s_add_u32 m0, s{sM0b}, {st*STG + t*1024}")
            a("s_nop 0")
            vm.op(("W", i), f"buffer_load_dwordx4 v{vd}, {sr(sW,4)}, s{sWo} offen lds")
    for i in range(4): wdma(i)
    ONES_LO, ONES_HI, ONES = sT+6, sT+7, sT+8
    a(f"s_mov_b32 s{ONES}, 0x3f803f80")
    S, M, Q = vT+4, vT+5, vT+6
    B3, B1, B2 = vT+8, vT+9, vT+10
    for d_, vb in ((3, B3), (1, B1), (2, B2)):
        a(f"v_add_u32 v{vb}, {d_}, v{vT+1}")
        a(f"v_subrev_u32 v{vT+11}, 6, v{vb}")
        a(f"v_min_u32 v{vb}, v{vb}, v{vT+11}")
        a(f"v_mad_u32_u24 v{vb}, v{vT}, 6, v{vb}")
        a(f"v_lshlrev_b32 v{vb}, 2, v{vb}")
    def reduce6(v):
        a(f"ds_bpermute_b32 v{vT+11}, v{B3}, v{v}")
        a("s_waitcnt lgkmcnt(0)")
        a(f"v_add_f32 v{v}, v{v}, v{vT+11}")
        a(f"ds_bpermute_b32 v{vT+11}, v{B1}, v{v}")
        a(f"ds_bpermute_b32 v{vT+12}, v{B2}, v{v}")
        a("s_waitcnt lgkmcnt(0)")
        a(f"v_add_f32 v{v}, v{v}, v{vT+11}")
        a(f"v_add_f32 v{v}, v{v}, v{vT+12}")
    vm.wait(lambda t: t[0] == "x")
    stamp(a, 1)
    if "wtest" in OPT:
        a("s_waitcnt vmcnt(6)")
        stamp(a, 2)
        a("s_waitcnt vmcnt(0)")
        stamp(a, 3)
        stamp(a, 4)
        OPT.discard("stamp"); OPT.add("stamp_off")
    a(f"v_mov_b32 v{S}, 0")
    a(f"v_mov_b32 v{Q}, 0")
    for i in range(48):
        a(f"v_dot2_f32_bf16 v{S if i%2==0 else Q}, v{RAW+i}, s{ONES}, v{S if i%2==0 else Q}")
    a("s_nop 2")
    a(f"v_add_f32 v{S}, v{S}, v{Q}")
    reduce6(S)
    a(f"v_mul_f32 v{S}, {f32(1.0/576.0)}, v{S}")
    round_bf16(a, M, S)
    PM, PQ = 172, 174
    a(f"v_sub_f32 v{PM}, 0, v{M}")
    a(f"v_mov_b32 v{PM+1}, v{PM}")
    a(f"v_mov_b64 {vr(PQ,2)}, 0")
    a(f"v_mov_b64 {vr(PQ+2,2)}, 0")
    for i in range(48):
        t = 178 + (i % 4) * 2
        q = PQ + (i % 2) * 2
        a(f"v_lshlrev_b32 v{t}, 16, v{RAW+i}")
        a(f"v_and_b32 v{t+1}, 0xffff0000, v{RAW+i}")
        a(f"v_pk_add_f32 {vr(t,2)}, {vr(t,2)}, {vr(PM,2)}")
        a(f"v_pk_fma_f32 {vr(q,2)}, {vr(t,2)}, {vr(t,2)}, {vr(q,2)}")
        a(f"v_cvt_pk_bf16_f32 v{RAW+i}, v{t}, v{t+1}")
    a(f"v_add_f32 v{Q}, v{PQ}, v{PQ+1}")
    a(f"v_add_f32 v{vT+13}, v{PQ+2}, v{PQ+3}")
    a(f"v_add_f32 v{Q}, v{Q}, v{vT+13}")
    reduce6(Q)
    a(f"v_mul_f32 v{Q}, {f32(1.0/576.0)}, v{Q}")
    a(f"v_sub_f32 v{vT+13}, v{S}, v{M}")
    a(f"v_fma_f32 v{Q}, -v{vT+13}, v{vT+13}, v{Q}")
    a(f"v_max_f32 v{Q}, 0, v{Q}")
    round_bf16(a, Q, Q)
    a(f"v_add_f32 v{Q}, {f32(1e-5)}, v{Q}")
    round_bf16(a, Q, Q)
    a(f"v_sqrt_f32 v{Q}, v{Q}")
    a("s_nop 0")
    round_bf16(a, Q, Q)
    a(f"v_rcp_f32 v{PM}, v{Q}")
    a(f"v_lshrrev_b32 v{vT+11}, 4, v{vT+2}")
    a(f"v_mov_b32 v{PM+1}, v{PM}")
    a(f"v_mul_u32_u24 v{vT+11}, 18432, v{vT+11}")
    a(f"v_and_b32 v{vT+12}, 15, v{vT+2}")
    a(f"v_lshl_add_u32 v{vT+11}, v{vT+12}, 4, v{vT+11}")
    a(f"v_lshl_add_u32 v{vT+14}, v{vT+1}, 8, v{vT+11}")
    a(f"v_cmp_gt_u32 vcc, 60, v0")
    a(f"s_and_saveexec_b64 s[{sT+4}:{sT+5}], vcc")
    for i in range(12):
        for d_ in range(4):
            x = RAW + i*4 + d_
            t = 178 + d_ * 2
            a(f"v_lshlrev_b32 v{t}, 16, v{x}")
            a(f"v_and_b32 v{t+1}, 0xffff0000, v{x}")
            a(f"v_pk_mul_f32 {vr(t,2)}, {vr(t,2)}, {vr(PM,2)}")
            a(f"v_cvt_pk_bf16_f32 v{x}, v{t}, v{t+1}")
        a(f"ds_write_b128 v{vT+14}, {vr(RAW+i*4,4)} offset:{XT + i*6*256}")
    a(f"s_mov_b64 exec, s[{sT+4}:{sT+5}]")
    stamp(a, 2)
    a(f"v_lshrrev_b32 v{vT+5}, 5, v0")
    a(f"v_lshlrev_b32 v{vT+5}, 4, v{vT+5}")
    a(f"v_bfe_u32 v{vT+6}, v0, 2, 3")
    a(f"v_add_u32 v{vT+5}, v{vT+5}, v{vT+6}")
    a(f"v_mul_u32_u24 v{vT+5}, {PITCH}, v{vT+5}")
    a(f"v_and_b32 v{vT+6}, 3, v0")
    a(f"v_lshl_add_u32 v{vWa}, v{vT+6}, 3, v{vT+5}")
    a(f"s_lshl_b32 s{sT}, s{sWave}, 6")
    a(f"s_add_u32 s{sT}, s{sT}, {WB}")
    a(f"v_add_u32 v{vWa}, s{sT}, v{vWa}")
    a(f"v_lshlrev_b32 v{vXa}, 4, v0")
    for i in range(0, 40, 2):
        a(f"v_mov_b64 {vr(ACC+i,2)}, 0")
    vm.wait(lambda t: t[0] == "W" and t[1] <= 1, " lgkmcnt(0)")
    a("s_barrier")
    def reads(i):
        b = i % 2; st = i % NST
        for n in range(2):
            a(f"ds_read_b64_tr_b16 {vr(WF+b*8+n*4,2)}, v{vWa} offset:{st*STG + n*32}")
            a(f"ds_read_b64_tr_b16 {vr(WF+b*8+n*4+2,2)}, v{vWa} offset:{st*STG + n*32 + 8*PITCH}")
        for mt in range(5):
            off = (mt*18 + i)*1024
            if off < 65536:
                a(f"ds_read_b128 {vr(XF+b*20+mt*4,4)}, v{vXa} offset:{off}")
            else:
                a(f"ds_read_b128 {vr(XF+b*20+mt*4,4)}, v{vT} offset:{off-65536}")
    a(f"v_add_u32 v{vT}, 65536, v{vXa}")
    stamp(a, 3)
    reads(0)
    for i in range(18):
        if i < 17:
            reads(i+1)
            a("s_waitcnt lgkmcnt(9)")
        else:
            a("s_waitcnt lgkmcnt(0)")
        b = i % 2
        k = 0
        for mt in range(5):
            for n in range(2):
                a(f"v_mfma_f32_16x16x32_bf16 {vr(ACC+(mt*2+n)*4,4)}, {vr(WF+b*8+n*4,4)}, {vr(XF+b*20+mt*4,4)}, {vr(ACC+(mt*2+n)*4,4)}")
                k += 1
                if k == 2 and i >= 1:
                    wdma(i+3)
        if i < 17:
            vm.wait(lambda t: t[0] == "W" and t[1] <= i+2)
            a("s_barrier")
    a("s_barrier")
    stamp(a, 4)
    a(f"v_lshrrev_b32 v{vT}, 4, v0")
    a(f"v_lshlrev_b32 v{vT}, 2, v{vT}")
    a(f"s_lshl_b32 s{sT}, s{sWave}, 5")
    a(f"v_add_u32 v{vT}, s{sT}, v{vT}")
    a(f"v_and_b32 v{vT+1}, 15, v0")
    a(f"v_mul_u32_u24 v{vT+1}, {QP}, v{vT+1}")
    AD = vT + 4
    for n in range(2):
        for p in range(2):
            ad = AD + n*2 + p
            a(f"v_add_u32 v{vT+2}, {n*16+p*2}, v{vT}")
            a(f"v_mul_u32_u24 v{vT+3}, 3641, v{vT+2}")
            a(f"v_lshrrev_b32 v{vT+3}, 16, v{vT+3}")
            a(f"v_mul_u32_u24 v{ad}, 18, v{vT+3}")
            a(f"v_sub_u32 v{ad}, v{vT+2}, v{ad}")
            a(f"v_lshl_add_u32 v{ad}, v{ad}, 1, v{vT+1}")
            a(f"v_mad_u32_u24 v{ad}, v{vT+3}, 48, v{ad}")
    a(f"s_cmp_ge_u32 s{sWave}, 7")
    a("s_nop 4")
    a(f"s_cbranch_scc1 L_{name}_skipq")
    for mt in range(5):
        for n in range(2):
            c = ACC + (mt*2+n)*4
            a(f"v_cvt_pk_bf16_f32 v{vT+8}, v{c}, v{c+1}")
            a(f"v_cvt_pk_bf16_f32 v{vT+9}, v{c+2}, v{c+3}")
            a(f"ds_write_b32 v{AD+n*2}, v{vT+8} offset:{mt*16*QP}")
            a(f"ds_write_b32 v{AD+n*2+1}, v{vT+9} offset:{mt*16*QP}")
    a.lab(f"L_{name}_skipq")
    a("s_waitcnt lgkmcnt(0)")
    a("s_barrier")
    if "dbg1" in OPT:
        lds_dump(a, 57344, 9, 3, 190, 210, tag="q")
    a(f"s_cmp_ge_u32 s{sWave}, 4")
    a(f"s_cbranch_scc1 L_{name}_done")
    QR = 4; KR = 16; LG = 120; OA = 130; VR_ = 16
    a(f"v_lshrrev_b32 v{vT}, 2, v3")
    a(f"v_and_b32 v{vT+1}, 3, v3")
    a(f"v_add_u32 v{vT+2}, 2, v{vT}")
    a(f"v_mul_u32_u24 v{vT+2}, {QP}, v{vT+2}")
    a(f"v_mad_u32_u24 v{vT+2}, v{vT+1}, 48, v{vT+2}")
    for j in range(3):
        a(f"ds_read_b128 {vr(QR+j*4,4)}, v{vT+2} offset:{14*QP + j*16}")
    for w in range(8):
        for j in range(3):
            a(f"ds_read_b128 {vr(KR+w*12+j*4,4)}, v{vT+2} offset:{(14-2*w)*QP + 192 + j*16}")
    a(f"s_lshl_b32 s{sT}, s{sRb}, 6")
    a(f"v_add_u32 v{vT+3}, s{sT}, v{vT}")
    a(f"s_mov_b32 s{sT+1}, {f32(18.0**-0.5)}")
    a(f"s_mov_b32 s{sT+2}, {f32(-1e9)}")
    a(f"v_cvt_pk_bf16_f32 v{vT+4}, s{sT+2}, s{sT+2}")
    a(f"v_lshlrev_b32 v{vT+4}, 16, v{vT+4}")
    for w in range(8):
        a(f"s_waitcnt lgkmcnt({min(15, (7-w)*3)})")
        a(f"v_mov_b32 v{LG+w}, 0")
        for d_ in range(9):
            a(f"v_dot2_f32_bf16 v{LG+w}, v{QR+d_}, v{KR+w*12+d_}, v{LG+w}")
        a("s_nop 2")
        round_bf16(a, LG+w, LG+w)
        a(f"v_mul_f32 v{LG+w}, s{sT+1}, v{LG+w}")
        round_bf16(a, LG+w, LG+w)
        a(f"v_cmp_le_u32 vcc, {2*w}, v{vT+3}")
        a("s_nop 1")
        a(f"v_cndmask_b32 v{LG+w}, v{vT+4}, v{LG+w}, vcc")
    for w in range(8):
        for j in range(3):
            a(f"ds_read_b128 {vr(VR_+w*12+j*4,4)}, v{vT+2} offset:{(14-2*w)*QP + 384 + j*16}")
    a(f"v_max3_f32 v{vT+5}, v{LG}, v{LG+1}, v{LG+2}")
    a(f"v_max3_f32 v{vT+5}, v{vT+5}, v{LG+3}, v{LG+4}")
    a(f"v_max3_f32 v{vT+5}, v{vT+5}, v{LG+5}, v{LG+6}")
    a(f"v_max_f32 v{vT+5}, v{vT+5}, v{LG+7}")
    a(f"s_mov_b32 s{sT+3}, {f32(math.log2(math.e))}")
    for w in range(8):
        a(f"v_sub_f32 v{LG+w}, v{LG+w}, v{vT+5}")
        a(f"v_mul_f32 v{LG+w}, s{sT+3}, v{LG+w}")
        a(f"v_exp_f32 v{LG+w}, v{LG+w}")
    a("s_nop 0")
    a(f"v_add_f32 v{vT+6}, v{LG}, v{LG+1}")
    for w in range(2, 8):
        a(f"v_add_f32 v{vT+6}, v{vT+6}, v{LG+w}")
    a(f"v_rcp_f32 v{vT+6}, v{vT+6}")
    a("s_nop 0")
    for w in range(8):
        a(f"v_mul_f32 v{LG+w}, v{LG+w}, v{vT+6}")
    for wp in range(4):
        a(f"v_cvt_pk_bf16_f32 v{LG+wp}, v{LG+2*wp}, v{LG+2*wp+1}")
    for d_ in range(18):
        a(f"v_mov_b32 v{OA+d_}, 0")
    a(f"s_mov_b32 s{sT+4}, 0x05040100")
    a(f"s_mov_b32 s{sT+5}, 0x07060302")
    for wp in range(4):
        a(f"s_waitcnt lgkmcnt({min(15, (3-wp)*6)})")
        for d_ in range(9):
            x0 = VR_ + (2*wp)*12 + d_; x1 = VR_ + (2*wp+1)*12 + d_
            t = vT + 8 + (d_ % 2) * 2
            a(f"v_perm_b32 v{t}, v{x1}, v{x0}, s{sT+4}")
            a(f"v_perm_b32 v{t+1}, v{x1}, v{x0}, s{sT+5}")
            a(f"v_dot2_f32_bf16 v{OA+2*d_}, v{t}, v{LG+wp}, v{OA+2*d_}")
            a(f"v_dot2_f32_bf16 v{OA+2*d_+1}, v{t+1}, v{LG+wp}, v{OA+2*d_+1}")
    a("s_nop 2")
    for d_ in range(9):
        a(f"v_cvt_pk_bf16_f32 v{QR+d_}, v{OA+2*d_}, v{OA+2*d_+1}")
    a(f"v_mul_u32_u24 v{vT+3}, 1152, v{vT+3}")
    a(f"v_mad_u32_u24 v{vT+3}, v{vT+1}, 36, v{vT+3}")
    a(f"s_mul_i32 s{sT}, s{sHg}, 144")
    a(f"buffer_store_dwordx4 {vr(QR,4)}, v{vT+3}, {sr(sO,4)}, s{sT} offen")
    a(f"buffer_store_dwordx4 {vr(QR+4,4)}, v{vT+3}, {sr(sO,4)}, s{sT} offen offset:16")
    a(f"buffer_store_dword v{QR+8}, v{vT+3}, {sr(sO,4)}, s{sT} offen offset:32")
    if "stamp_off" in OPT: OPT.add("stamp")
    if "stamp" in OPT: a("s_waitcnt vmcnt(0)")
    stamp(a, 6, True)
    stamp_dump(a, 7, 8, sWave, vT+8, 3)
    a.lab(f"L_{name}_done")
    a("s_endpgm")
    return a.text(), kernel_desc(name, NV, 96), f"; @launch kernel={name} grid=(256,1,1) block=(512,1,1) lds={WB + NST*STG}"


def dma_slots_setup(a, sWave, sT, vT, vD, rowbytes, sM0, upshift, extra_s=None):
    a(f"s_lshl_b32 s{sT}, s{sWave}, 6")
    a(f"s_sub_u32 s{sT+1}, s{sT}, 64")
    a(f"s_cmp_eq_u32 s{sWave}, 0")
    a(f"s_cselect_b32 s{sT+1}, 512, s{sT+1}")
    a(f"s_cselect_b32 s{sT+3}, 0, {upshift}")
    a(f"s_add_u32 s{sT+2}, s{sT}, 448")
    a(f"s_lshl_b32 s{sM0}, s{sWave}, 10")
    a(f"s_add_u32 s{sM0+1}, s{sM0}, 8192")
    a(f"s_add_u32 s{sM0+1}, s{sM0+1}, s{sT+3}")
    a(f"s_add_u32 s{sM0+2}, s{sM0}, {16384+upshift}")
    for k in range(3):
        a(f"v_add_u32 v{vT+1}, s{sT+k}, v0")
        a(f"v_mul_u32_u24 v{vT+2}, 3641, v{vT+1}")
        a(f"v_lshrrev_b32 v{vT+8+k}, 16, v{vT+2}")
        a(f"v_mul_u32_u24 v{vT+3}, 18, v{vT+8+k}")
        a(f"v_sub_u32 v{vT+3}, v{vT+1}, v{vT+3}")
        a(f"v_mul_u32_u24 v{vT+2}, {rowbytes}, v{vT+8+k}")
        a(f"v_lshl_add_u32 v{vD+k}, v{vT+3}, 4, v{vT+2}")

def gen_k3v2(name="k3_kernel"):
    a = A(); a.k3 = True; a.stpol = os.environ.get("K3ST", "sc1")
    kernel_head(a, name)
    NST = 6; STG = 18560; UP = 9344; RING = 6; PF = RING - 1
    ACC = 4; XS = 148; WR = 196
    vWa, vWb = 220, 221
    vD = 222
    vX0 = 225
    vNM, vR = 226, 227
    vT = 228
    NV = 254
    def acc(nt): return ACC + nt*16
    sWa, sWb_, sWc, sX, sST, sH = 12, 16, 20, 24, 28, 32
    sWave, sFb, sMb = 36, 37, 38
    sWoff, sXoff, sIt = 39, 40, 41
    sM0 = 42
    sT = 46
    sRot, sCnt, sHb = 56, 57, 58
    a("s_cmp_ge_u32 s2, 256")
    a(f"s_cbranch_scc1 L_{name}_done")
    stamp(a, 0); stamp(a, 5, True)
    a("s_load_dwordx4 s[4:7], s[0:1], 32")
    a("s_load_dwordx2 s[8:9], s[0:1], 72")
    a("v_lshrrev_b32 v1, 6, v0")
    a("v_and_b32 v0, 63, v0")
    a("s_nop 0")
    a(f"v_readfirstlane_b32 s{sWave}, v1")
    a(f"s_and_b32 s{sT}, s2, 7")
    a(f"s_lshr_b32 s{sT+1}, s2, 3")
    a(f"s_and_b32 s{sFb}, s{sT+1}, 3")
    a(f"s_lshl_b32 s{sT}, s{sT}, 2")
    a(f"s_add_u32 s{sFb}, s{sFb}, s{sT}")
    a(f"s_lshr_b32 s{sMb}, s{sT+1}, 2")
    dma_slots_setup(a, sWave, sT, vT, vD, 9216, sM0, 128)
    a(f"s_mul_i32 s{sT}, s{sFb}, 288")
    for k in range(3):
        a(f"v_add_u32 v{vD+k}, s{sT}, v{vD+k}")
    a(f"s_lshl_b32 s{sT}, s{sMb}, 4")
    a(f"s_lshl_b32 s{sT+1}, s{sWave}, 1")
    a(f"s_add_u32 s{sT}, s{sT}, s{sT+1}")
    a(f"s_mul_i32 s{sT+1}, s{sT}, 18432")
    a(f"v_bfe_u32 v{vT}, v0, 4, 1")
    a(f"v_mul_u32_u24 v{vT}, 18432, v{vT}")
    a(f"v_lshrrev_b32 v{vT+1}, 5, v0")
    a(f"v_lshl_add_u32 v{vT}, v{vT+1}, 8, v{vT}")
    a(f"v_and_b32 v{vT+1}, 15, v0")
    a(f"v_lshl_add_u32 v{vT}, v{vT+1}, 4, v{vT}")
    a(f"v_add_u32 v{vX0}, s{sT+1}, v{vT}")
    a(f"s_mul_i32 s{sHb}, s{sT}, 144")
    a(f"s_lshr_b32 s{sT+1}, s{sFb}, 1")
    a(f"s_mul_i32 s{sT+1}, s{sT+1}, 9")
    a(f"s_add_u32 s{sHb}, s{sHb}, s{sT+1}")
    a(f"s_lshl_b32 s{sHb}, s{sHb}, 10")
    a(f"s_lshl_b32 s{sT}, s{sT}, 4")
    a(f"v_and_b32 v{vT+4}, 31, v0")
    a(f"v_add_u32 v{vT+4}, s{sT}, v{vT+4}")
    a(f"v_mul_u32_u24 v{vT+4}, 48, v{vT+4}")
    a(f"v_bfe_u32 v{vT}, v0, 4, 1")
    a(f"v_mul_u32_u24 v{vT}, {UP}, v{vT}")
    a(f"v_lshrrev_b32 v{vT+1}, 5, v0")
    a(f"v_bfe_u32 v{vT+2}, v0, 2, 2")
    a(f"v_lshl_add_u32 v{vT+1}, v{vT+1}, 2, v{vT+2}")
    a(f"v_mad_u32_u24 v{vT}, v{vT+1}, 288, v{vT}") if False else None
    a(f"v_mul_u32_u24 v{vT+1}, 288, v{vT+1}")
    a(f"v_add_u32 v{vT}, v{vT}, v{vT+1}")
    a(f"v_and_b32 v{vT+2}, 3, v0")
    a(f"v_lshl_add_u32 v{vWa}, v{vT+2}, 3, v{vT}")
    a(f"v_add_u32 v{vWb}, {3*STG}, v{vWa}")
    if "rot" in OPT:
        a(f"s_mul_i32 s{sRot}, s{sMb}, 9")
        a(f"s_and_b32 s{sT}, s{sFb}, 3")
        a(f"s_mul_i32 s{sT}, s{sT}, 18")
        a(f"s_add_u32 s{sRot}, s{sRot}, s{sT}")
        a(f"s_lshr_b32 s{sRot}, s{sRot}, 2")
        a(f"s_sub_u32 s{sT}, s{sRot}, 18")
        a(f"s_cmp_ge_u32 s{sRot}, 18")
        a(f"s_cselect_b32 s{sRot}, s{sT}, s{sRot}")
    else:
        a(f"s_mov_b32 s{sRot}, 0")
    a(f"s_mov_b32 s{sCnt}, 0")
    a(f"s_mul_i32 s{sWoff}, s{sRot}, {32*9216}")
    a(f"s_lshl_b32 s{sXoff}, s{sRot}, 10")
    a("s_waitcnt lgkmcnt(0)")
    if "pstamp" in OPT: stamp(a, 1)
    srd(a, sWa, 4, 576*4608*2)
    srd(a, sWc, 6, 576*4608*2)
    a(f"s_cmp_eq_u32 s{sWave}, 0")
    a(f"s_cselect_b32 s{sT}, s4, s6")
    a(f"s_cselect_b32 s{sT+1}, s5, s7")
    srd(a, sWb_, sT, 576*4608*2)
    srd(a, sX, 8, H1_SZ, H1_OFF)
    srd(a, sST, 8, ST_SZ, ST_OFF)
    srd(a, sH, 8, HH_SZ, HH_OFF)
    for q in range(3):
        a(f"buffer_load_dwordx4 {vr(WR+q*4,4)}, v{vT+4}, {sr(sST,4)}, 0 offen offset:{q*16}")
    M16 = "m16" in OPT
    TM = int(os.environ.get("TM", "4"))
    sA_, sB_, sE1, sE2 = 60-1, 59-1, 57, 56
    sA_, sB_, sE1, sE2 = 88, 89, 90, 91
    vA, vHo = 244, 245
    EO = 246
    ET = vT + 4
    a(f"s_mov_b32 s{sA_}, {f32(GELU_A)}")
    a(f"s_mov_b32 s{sB_}, {f32(GELU_B)}")
    a(f"v_mov_b32 v{vA}, s{sA_}")
    a(f"v_bfe_u32 v{vHo}, v0, 4, 1")
    a(f"v_mul_u32_u24 v{vHo}, 147456, v{vHo}")
    a(f"v_lshrrev_b32 v{vT+8}, 5, v0")
    a(f"v_lshl_add_u32 v{vHo}, v{vT+8}, 8, v{vHo}")
    a(f"v_and_b32 v{vT+8}, 15, v0")
    a(f"v_lshl_add_u32 v{vHo}, v{vT+8}, 4, v{vHo}")
    a(f"s_and_b32 s{sE2}, s{sFb}, 1")
    a(f"s_lshl_b32 s{sE1}, s{sE2}, 12")
    a(f"s_add_u32 s{sE1}, s{sE1}, s{sHb}")
    a(f"s_lshl_b32 s{sE2}, s{sE2}, 9")
    a(f"s_add_u32 s{sE2}, s{sE2}, s{sHb}")
    a(f"s_add_u32 s{sE2}, s{sE2}, {8*1024}")
    def epi_ops(nt):
        o = EO + (nt % 2) * 4
        out = []
        for hh in range(2):
            lines = [[], []]
            for c in range(2):
                p = hh*2 + c
                x0, x1 = acc(nt) + 2*p, acc(nt) + 2*p + 1
                y0, y1 = x0 + 8, x1 + 8
                t0, t1 = ET + c*2, ET + c*2 + 1
                lines[c] = [f"v_mul_f32 v{t0}, v{x0}, v{x0}", f"v_mul_f32 v{t1}, v{x1}, v{x1}",
                      f"v_fma_f32 v{t0}, v{t0}, s{sB_}, v{vA}", f"v_fma_f32 v{t1}, v{t1}, s{sB_}, v{vA}",
                      f"v_mul_f32 v{t0}, v{t0}, v{x0}", f"v_mul_f32 v{t1}, v{t1}, v{x1}",
                      f"v_exp_f32 v{t0}, v{t0}", f"v_exp_f32 v{t1}, v{t1}",
                      f"v_mul_f32 v{y0}, v{y0}, v{x0}", f"v_mul_f32 v{y1}, v{y1}, v{x1}",
                      f"v_add_f32 v{t0}, 1.0, v{t0}", f"v_add_f32 v{t1}, 1.0, v{t1}",
                      f"v_rcp_f32 v{t0}, v{t0}", f"v_rcp_f32 v{t1}, v{t1}",
                      f"v_mul_f32 v{t0}, v{t0}, v{y0}", f"v_mul_f32 v{t1}, v{t1}, v{y1}",
                      f"v_cvt_pk_bf16_f32 v{o+p}, v{t0}, v{t1}"]
            i0 = i1 = 0
            while i0 < len(lines[0]) or i1 < len(lines[1]):
                for _ in range(2):
                    if i0 < len(lines[0]): out.append(lines[0][i0]); i0 += 1
                for _ in range(2):
                    if i1 < len(lines[1]): out.append(lines[1][i1]); i1 += 1
        if nt < 8:
            out.append(f"buffer_store_dwordx4 {vr(o,4)}, v{vHo}, {sr(sH,4)}, s{sE1} offen offset:{(nt//2)*1024 + (nt%2)*512}")
        else:
            out.append(f"buffer_store_dwordx4 {vr(o,4)}, v{vHo}, {sr(sH,4)}, s{sE2} offen")
        return out
    def body(nd, tag):
        vm = VM(a)
        vm.ops = [("S", 0)] * 3
        srds = (sWa, sWb_, sWc)
        def load_groups(i):
            if i >= 18: return []
            st = i % NST
            gs = []
            for k in range(2):
                gs.append([("s", f"s_add_u32 m0, s{sM0+k}, {st*STG}"), ("s", "s_nop 0"),
                           (("W", i), f"buffer_load_dwordx4 v{vD+k}, {sr(srds[k],4)}, s{sWoff} offen lds")])
            gs[0] = [("s", f"s_cmp_ge_u32 s{sWave}, 2"), ("s", f"s_cbranch_scc1 L_{name}_sk{i}"),
                     ("s", f"s_add_u32 m0, s{sM0+2}, {st*STG}"), ("s", "s_nop 0"),
                     ("s", f"buffer_load_dwordx4 v{vD+2}, {sr(srds[2],4)}, s{sWoff} offen lds"),
                     ("l", f"L_{name}_sk{i}")] + gs[0]
            gs.append([(("X", i), f"buffer_load_dwordx4 {vr(XS+st*8,4)}, v{vX0}, {sr(sX,4)}, s{sXoff} offen")])
            gs.append([(("X", i), f"buffer_load_dwordx4 {vr(XS+st*8+4,4)}, v{vX0}, {sr(sX,4)}, s{sXoff} offen offset:512"),
                       ("s", f"s_add_u32 s{sRot}, s{sRot}, 1"),
                       ("s", f"s_cmp_eq_u32 s{sRot}, {4 if 'hot4' in OPT else 18}"),
                       ("s", f"s_cselect_b32 s{sRot}, 0, s{sRot}"),
                       ("s", f"s_mul_i32 s{sWoff}, s{sRot}, {32*9216}"),
                       ("s", f"s_lshl_b32 s{sXoff}, s{sRot}, 10")])
            return gs
        def emit_group(g):
            for tg, txt in g:
                if tg == "s": a(txt)
                elif tg == "l": a.lab(txt)
                else: vm.op(tg, txt)
        for i in range(2):
            for g in load_groups(i): emit_group(g)
        vm.wait(lambda t: t[0] == "S")
        b = WR
        a(f"v_add_f32 v{vT}, v{b}, v{b+2}")
        a(f"v_add_f32 v{vT+1}, v{b+4}, v{b+6}")
        a(f"v_add_f32 v{vT+2}, v{b+8}, v{b+10}")
        a(f"v_add_f32 v{vT}, v{vT}, v{vT+1}")
        a(f"v_add_f32 v{vT}, v{vT}, v{vT+2}")
        a(f"v_mul_f32 v{vT}, {f32(1.0/6.0)}, v{vT}")
        a(f"v_add_f32 v{vT+1}, v{b+1}, v{b+3}")
        a(f"v_add_f32 v{vT+2}, v{b+5}, v{b+7}")
        a(f"v_add_f32 v{vT+3}, v{b+9}, v{b+11}")
        a(f"v_add_f32 v{vT+1}, v{vT+1}, v{vT+2}")
        a(f"v_add_f32 v{vT+1}, v{vT+1}, v{vT+3}")
        a(f"v_mov_b32 v{vT+2}, 0")
        for t in range(6):
            a(f"v_sub_f32 v{vT+3}, v{b+2*t}, v{vT}")
            a(f"v_fmac_f32 v{vT+2}, v{vT+3}, v{vT+3}")
        a(f"v_fmac_f32 v{vT+1}, {f32(96.0)}, v{vT+2}")
        a(f"v_mul_f32 v{vT+1}, {f32(1.0/576.0)}, v{vT+1}")
        round_bf16(a, vNM, vT)
        round_bf16(a, vT+1, vT+1)
        a(f"v_add_f32 v{vT+1}, {f32(1e-5)}, v{vT+1}")
        round_bf16(a, vT+1, vT+1)
        a(f"v_sqrt_f32 v{vT+1}, v{vT+1}")
        a("s_nop 0")
        round_bf16(a, vT+1, vT+1)
        a(f"v_rcp_f32 v{vR}, v{vT+1}")
        if "exactnorm" not in OPT:
            a("s_nop 0")
            a(f"v_mul_f32 v{vNM}, v{vNM}, v{vR}")
            a(f"v_sub_f32 v{vNM}, 0, v{vNM}")
        def norm_ops(i):
            ops = []
            if i >= 18: return ops
            for h4 in range(2):
                chains = []
                for d in range(4):
                    x = XS + (i % NST)*8 + h4*4 + d
                    t0 = vT + 8 + d * 2; t1 = t0 + 1
                    chains.append([f"v_lshlrev_b32 v{t0}, 16, v{x}", f"v_and_b32 v{t1}, 0xffff0000, v{x}",
                                   f"v_fma_f32 v{t0}, v{t0}, v{vR}, v{vNM}", f"v_fma_f32 v{t1}, v{t1}, v{vR}, v{vNM}",
                                   f"v_cvt_pk_bf16_f32 v{x}, v{t0}, v{t1}"])
                for stage in ((0, 1), (2, 3), (4,)):
                    for c in chains:
                        for j in stage: ops.append(c[j])
            return ops
        NS = 18 - TM
        seq = [(i, f // 9, f % 9) for i in range(NS) for f in range(18)]
        seq += [(i, half, nt) for nt in range(9) for i in range(NS, 18) for half in range(2)]
        def wread(g):
            if g >= len(seq): return
            i, half, nt = seq[g]
            st = i % NST
            slot = g % RING
            base = vWa if st < 3 else vWb
            off = (st % 3) * STG + half * 8 * 288 + nt * 32
            a(f"ds_read_b64_tr_b16 {vr(WR+slot*4,2)}, v{base} offset:{off}")
            a(f"ds_read_b64_tr_b16 {vr(WR+slot*4+2,2)}, v{base} offset:{off+4608}")
        vm.wait(lambda t: t[1] <= 0)
        for op in norm_ops(0): a(op)
        a("s_barrier")
        for f in range(PF): wread(f)
        stamp(a, 1)
        sched = {0: [2, 3], 1: [4, 5], 2: [6, 7]}
        nsched = {i: [i + 1] for i in range(NS)}
        if TM:
            extra = list(range(NS + 1, 18))
            nsched[NS-1] = [NS] + extra[-2:]
            nsched[NS-2] = [NS-1] + extra[:-2]
        for i in range(NS):
            lg = []
            for j in sched.get(i, [i + 5]): lg += load_groups(j)
            nlist = nsched[i]
            ni = 0; gi = 0
            gpos = [1 + (k_ * 16) // max(1, len(lg)) for k_ in range(len(lg))]
            nstart = 6 if i < 3 else 1
            nops = []
            for j in nlist: nops += [("w", j)] + norm_ops(j)
            per = (len(nops) + (16 - nstart)) // (17 - nstart) if nops else 0
            for f in range(18):
                g = i*18 + f
                half, nt = divmod(f, 9)
                slot = g % RING
                if i == 0 and f == 18 - PF:
                    vm.wait(lambda t: t[0] == "W" and t[1] <= 1)
                    a("s_barrier")
                if TM and i == NS - 1 and f == 18 - PF:
                    vm.wait(lambda t: t[0] == "W")
                    a("s_barrier")
                wread(g + PF)
                rem = min(PF, len(seq) - 1 - g)
                a(f"s_waitcnt lgkmcnt({2*rem})")
                if i == 0:
                    a(f"v_mfma_f32_32x32x16_bf16 {vr(acc(nt),16)}, {vr(WR+slot*4,4)}, {vr(XS+(i%NST)*8+half*4,4)}, " + ("0" if half == 0 else vr(acc(nt),16)))
                else:
                    a(f"v_mfma_f32_32x32x16_bf16 {vr(acc(nt),16)}, {vr(WR+slot*4,4)}, {vr(XS+(i%NST)*8+half*4,4)}, {vr(acc(nt),16)}")
                while gi < len(lg) and gpos[gi] <= f:
                    emit_group(lg[gi]); gi += 1
                if f >= nstart:
                    for _ in range(per):
                        if ni < len(nops):
                            op = nops[ni]; ni += 1
                            if isinstance(op, tuple):
                                vm.wait(lambda t: t[0] == "X" and t[1] <= op[1])
                            else: a(op)
            assert ni == len(nops) and gi == len(lg), (i, ni, len(nops), gi, len(lg))
            if i < 17 and not (TM and i == NS - 1):
                vm.wait(lambda t: t[0] == "W" and t[1] <= i + 2)
                a("s_barrier")
        stamp(a, 2)
        g = NS * 18
        pend = []
        for nt in range(9):
            nm = 2 * TM
            per = (len(pend) + nm - 3) // max(1, nm - 2) if pend else 0
            pi = 0
            for q in range(nm):
                i, half, nt_ = seq[g]
                assert nt_ == nt
                slot = g % RING
                wread(g + PF)
                rem = min(PF, len(seq) - 1 - g)
                a(f"s_waitcnt lgkmcnt({2*rem})")
                a(f"v_mfma_f32_32x32x16_bf16 {vr(acc(nt),16)}, {vr(WR+slot*4,4)}, {vr(XS+(i%NST)*8+half*4,4)}, {vr(acc(nt),16)}")
                g += 1
                if q >= 2:
                    for _ in range(per):
                        if pi < len(pend): a(pend[pi]); pi += 1
            assert pi == len(pend)
            pend = epi_ops(nt)
        if not TM:
            a("s_nop 7"); a("s_nop 7")
            for nt in range(8):
                for op in epi_ops(nt): a(op)
        a("s_nop 7"); a("s_nop 7")
        for op in pend: a(op)
    body(2, "B")
    a.lab(f"L_{name}_epi")
    if "pstamp" not in OPT: stamp(a, 3)
    if "stamp" in OPT: a("s_waitcnt vmcnt(0)")
    if "pstamp" not in OPT: stamp(a, 4)
    stamp(a, 6, True)
    stamp_dump(a, 7, 8, sWave, vT+4)
    a.lab(f"L_{name}_done")
    a("s_endpgm")
    return a.text(), kernel_desc(name, NV), f"; @launch kernel={name} grid=(256,1,1) block=(512,1,1) lds={NST*STG}"

def gen_k3m(name="k3_kernel"):
    a = A()
    kernel_head(a, name)
    NST = 6; STG = 18560; UP = 9344; RING = 6; PF = RING - 1
    ACC = 4; XS = 148; WR = 196
    vWa, vWb = 220, 221
    vD = 222
    vX0 = 225
    vNM, vR = 226, 227
    vT = 228
    vX1, vNM1, vR1 = 244, 245, 246
    NV = 248
    def acc(nt, mat, mt): return ACC + ((nt*2+mat)*2+mt)*4
    sWa, sWb_, sWc, sX, sST, sH = 12, 16, 20, 24, 28, 32
    sWave, sFb, sMb = 36, 37, 38
    sWoff, sXoff, sIt = 39, 40, 41
    sM0 = 42
    sT = 46
    sRot, sCnt, sHb = 56, 57, 58
    a("s_cmp_ge_u32 s2, 256")
    a(f"s_cbranch_scc1 L_{name}_done")
    stamp(a, 0); stamp(a, 5, True)
    a("s_load_dwordx4 s[4:7], s[0:1], 32")
    a("s_load_dwordx2 s[8:9], s[0:1], 72")
    a("v_lshrrev_b32 v1, 6, v0")
    a("v_and_b32 v0, 63, v0")
    a("s_nop 0")
    a(f"v_readfirstlane_b32 s{sWave}, v1")
    a(f"s_and_b32 s{sT}, s2, 7")
    a(f"s_lshr_b32 s{sT+1}, s2, 3")
    a(f"s_and_b32 s{sFb}, s{sT+1}, 3")
    a(f"s_lshl_b32 s{sT}, s{sT}, 2")
    a(f"s_add_u32 s{sFb}, s{sFb}, s{sT}")
    a(f"s_lshr_b32 s{sMb}, s{sT+1}, 2")
    dma_slots_setup(a, sWave, sT, vT, vD, 9216, sM0, 128)
    a(f"s_mul_i32 s{sT}, s{sFb}, 288")
    for k in range(3):
        a(f"v_add_u32 v{vD+k}, s{sT}, v{vD+k}")
    a(f"s_lshl_b32 s{sT}, s{sMb}, 4")
    a(f"s_lshl_b32 s{sT+1}, s{sWave}, 1")
    a(f"s_add_u32 s{sT}, s{sT}, s{sT+1}")
    a(f"s_mul_i32 s{sT+1}, s{sT}, 18432")
    a(f"v_lshlrev_b32 v{vT}, 4, v0")
    a(f"v_add_u32 v{vX0}, s{sT+1}, v{vT}")
    a(f"v_add_u32 v{vX1}, 18432, v{vX0}")
    a(f"s_mul_i32 s{sHb}, s{sT}, 144")
    a(f"s_lshr_b32 s{sT+1}, s{sFb}, 1")
    a(f"s_mul_i32 s{sT+1}, s{sT+1}, 9")
    a(f"s_add_u32 s{sHb}, s{sHb}, s{sT+1}")
    a(f"s_lshl_b32 s{sHb}, s{sHb}, 10")
    a(f"s_lshl_b32 s{sT}, s{sT}, 4")
    a(f"v_and_b32 v{vT+4}, 15, v0")
    a(f"v_add_u32 v{vT+4}, s{sT}, v{vT+4}")
    a(f"v_mul_u32_u24 v{vT+4}, 48, v{vT+4}")
    a(f"v_lshrrev_b32 v{vT+1}, 2, v0")
    a(f"v_mul_u32_u24 v{vT+1}, 288, v{vT+1}")
    a(f"v_and_b32 v{vT+2}, 3, v0")
    a(f"v_lshl_add_u32 v{vWa}, v{vT+2}, 3, v{vT+1}")
    a(f"v_add_u32 v{vWb}, {3*STG}, v{vWa}")
    if "rot" in OPT:
        a(f"s_mul_i32 s{sRot}, s{sMb}, 9")
        a(f"s_and_b32 s{sT}, s{sFb}, 3")
        a(f"s_mul_i32 s{sT}, s{sT}, 18")
        a(f"s_add_u32 s{sRot}, s{sRot}, s{sT}")
        a(f"s_lshr_b32 s{sRot}, s{sRot}, 2")
        a(f"s_sub_u32 s{sT}, s{sRot}, 18")
        a(f"s_cmp_ge_u32 s{sRot}, 18")
        a(f"s_cselect_b32 s{sRot}, s{sT}, s{sRot}")
    else:
        a(f"s_mov_b32 s{sRot}, 0")
    a(f"s_mov_b32 s{sCnt}, 0")
    a(f"s_mul_i32 s{sWoff}, s{sRot}, {32*9216}")
    a(f"s_lshl_b32 s{sXoff}, s{sRot}, 10")
    a("s_waitcnt lgkmcnt(0)")
    if "pstamp" in OPT: stamp(a, 1)
    srd(a, sWa, 4, 576*4608*2)
    srd(a, sWc, 6, 576*4608*2)
    a(f"s_cmp_eq_u32 s{sWave}, 0")
    a(f"s_cselect_b32 s{sT}, s4, s6")
    a(f"s_cselect_b32 s{sT+1}, s5, s7")
    srd(a, sWb_, sT, 576*4608*2)
    srd(a, sX, 8, H1_SZ, H1_OFF)
    srd(a, sST, 8, ST_SZ, ST_OFF)
    srd(a, sH, 8, HH_SZ, HH_OFF)
    for mt in range(2):
        for q in range(3):
            a(f"buffer_load_dwordx4 {vr(WR+mt*12+q*4,4)}, v{vT+4}, {sr(sST,4)}, 0 offen offset:{mt*768+q*16}")
    a(f"s_cmp_ge_u32 s{sWave}, 2")
    a(f"s_cbranch_scc1 L_{name}_typeB")

    M16 = "m16" in OPT
    def body(nd, tag):
        vm = VM(a)
        vm.ops = [("S", 0)] * 6
        srds = (sWa, sWb_, sWc)
        def load_groups(i):
            if i >= 18: return []
            st = i % NST
            gs = []
            for k in range(nd):
                gs.append([("s", f"s_add_u32 m0, s{sM0+k}, {st*STG}"), ("s", "s_nop 0"),
                           (("W", i), f"buffer_load_dwordx4 v{vD+k}, {sr(srds[k],4)}, s{sWoff} offen lds")])
            gs.append([(("X", i), f"buffer_load_dwordx4 {vr(XS+st*8,4)}, v{vX0}, {sr(sX,4)}, s{sXoff} offen")])
            gs.append([(("X", i), f"buffer_load_dwordx4 {vr(XS+st*8+4,4)}, v{vX1}, {sr(sX,4)}, s{sXoff} offen"),
                       ("s", f"s_add_u32 s{sRot}, s{sRot}, 1"),
                       ("s", f"s_cmp_eq_u32 s{sRot}, {4 if 'hot4' in OPT else 18}"),
                       ("s", f"s_cselect_b32 s{sRot}, 0, s{sRot}"),
                       ("s", f"s_mul_i32 s{sWoff}, s{sRot}, {32*9216}"),
                       ("s", f"s_lshl_b32 s{sXoff}, s{sRot}, 10")])
            return gs
        def emit_group(g):
            for tg, txt in g:
                if tg == "s": a(txt)
                else: vm.op(tg, txt)
        for i in range(2):
            for g in load_groups(i): emit_group(g)
        vm.wait(lambda t: t[0] == "S")
        for b, vNM_, vR_ in ((WR, vNM, vR), (WR+12, vNM1, vR1)):
            a(f"v_add_f32 v{vT}, v{b}, v{b+2}")
            a(f"v_add_f32 v{vT+1}, v{b+4}, v{b+6}")
            a(f"v_add_f32 v{vT+2}, v{b+8}, v{b+10}")
            a(f"v_add_f32 v{vT}, v{vT}, v{vT+1}")
            a(f"v_add_f32 v{vT}, v{vT}, v{vT+2}")
            a(f"v_mul_f32 v{vT}, {f32(1.0/6.0)}, v{vT}")
            a(f"v_add_f32 v{vT+1}, v{b+1}, v{b+3}")
            a(f"v_add_f32 v{vT+2}, v{b+5}, v{b+7}")
            a(f"v_add_f32 v{vT+3}, v{b+9}, v{b+11}")
            a(f"v_add_f32 v{vT+1}, v{vT+1}, v{vT+2}")
            a(f"v_add_f32 v{vT+1}, v{vT+1}, v{vT+3}")
            a(f"v_mov_b32 v{vT+2}, 0")
            for t in range(6):
                a(f"v_sub_f32 v{vT+3}, v{b+2*t}, v{vT}")
                a(f"v_fmac_f32 v{vT+2}, v{vT+3}, v{vT+3}")
            a(f"v_fmac_f32 v{vT+1}, {f32(96.0)}, v{vT+2}")
            a(f"v_mul_f32 v{vT+1}, {f32(1.0/576.0)}, v{vT+1}")
            round_bf16(a, vNM_, vT)
            round_bf16(a, vT+1, vT+1)
            a(f"v_add_f32 v{vT+1}, {f32(1e-5)}, v{vT+1}")
            round_bf16(a, vT+1, vT+1)
            a(f"v_sqrt_f32 v{vT+1}, v{vT+1}")
            a("s_nop 0")
            round_bf16(a, vT+1, vT+1)
            a(f"v_rcp_f32 v{vR_}, v{vT+1}")
            if "exactnorm" not in OPT:
                a("s_nop 0")
                a(f"v_mul_f32 v{vNM_}, v{vNM_}, v{vR_}")
                a(f"v_sub_f32 v{vNM_}, 0, v{vNM_}")
        def norm_ops(i):
            ops = []
            if i >= 18: return ops
            for d in range(8):
                x = XS + (i % NST)*8 + d
                t0 = vT + (d % 2) * 2; t1 = t0 + 1
                vNM, vR = (226, 227) if d < 4 else (vNM1, vR1)
                ops.append(f"v_lshlrev_b32 v{t0}, 16, v{x}")
                ops.append(f"v_and_b32 v{t1}, 0xffff0000, v{x}")
                if "exactnorm" in OPT:
                    ops.append(f"v_sub_f32 v{t0}, v{t0}, v{vNM}")
                    ops.append(f"v_sub_f32 v{t1}, v{t1}, v{vNM}")
                    ops.append(f"v_cvt_pk_bf16_f32 v{t0}, v{t0}, v{t1}")
                    ops.append(f"v_and_b32 v{t1}, 0xffff0000, v{t0}")
                    ops.append(f"v_lshlrev_b32 v{t0}, 16, v{t0}")
                    ops.append(f"v_mul_f32 v{t0}, v{t0}, v{vR}")
                    ops.append(f"v_mul_f32 v{t1}, v{t1}, v{vR}")
                else:
                    ops.append(f"v_fma_f32 v{t0}, v{t0}, v{vR}, v{vNM}")
                    ops.append(f"v_fma_f32 v{t1}, v{t1}, v{vR}, v{vNM}")
                ops.append(f"v_cvt_pk_bf16_f32 v{x}, v{t0}, v{t1}")
            return ops
        def wread(g):
            i, f = divmod(g, 18)
            if i >= 18: return
            st = i % NST
            nt, mat = divmod(f, 2)
            slot = g % RING
            base = vWa if st < 3 else vWb
            off = (st % 3) * STG + mat * UP + nt * 32
            a(f"ds_read_b64_tr_b16 {vr(WR+slot*4,2)}, v{base} offset:{off}")
            a(f"ds_read_b64_tr_b16 {vr(WR+slot*4+2,2)}, v{base} offset:{off+4608}")
        vm.wait(lambda t: t[1] <= 0)
        for op in norm_ops(0): a(op)
        a("s_barrier")
        for f in range(PF): wread(f)
        stamp(a, 1)
        sched = {0: [2, 3], 1: [4, 5], 2: [6, 7]}
        for i in range(18):
            lg = []
            for j in sched.get(i, [i + 5]): lg += load_groups(j)
            nops = norm_ops(i + 1)
            ni = 0; gi = 0
            gpos = [1 + (k * 16) // max(1, len(lg)) for k in range(len(lg))]
            nstart = 6 if i < 3 else 1
            per = (len(nops) + (16 - nstart)) // (17 - nstart) if nops else 0
            for f in range(18):
                g = i*18 + f
                half, nt = divmod(f, 9)
                slot = g % RING
                if i == 0 and f == 18 - PF:
                    vm.wait(lambda t: t[0] == "W" and t[1] <= 1)
                    a("s_barrier")
                wread(g + PF)
                rem = min(PF, 18*18 - 1 - g)
                a(f"s_waitcnt lgkmcnt({2*rem})")
                nt, mat = divmod(f, 2)
                for mt in range(2):
                    a(f"v_mfma_f32_16x16x32_bf16 {vr(acc(nt,mat,mt),4)}, {vr(WR+slot*4,4)}, {vr(XS+(i%NST)*8+mt*4,4)}, " + ("0" if i == 0 else vr(acc(nt,mat,mt),4)))
                if f == nstart and nops:
                    vm.wait(lambda t: t[0] == "X" and t[1] <= i + 1)
                while gi < len(lg) and gpos[gi] <= f:
                    emit_group(lg[gi]); gi += 1
                if f >= nstart:
                    for _ in range(per):
                        if ni < len(nops):
                            a(nops[ni]); ni += 1
            assert ni == len(nops) and gi == len(lg), (i, ni, len(nops), gi, len(lg))
            if i < 17:
                vm.wait(lambda t: t[0] == "W" and t[1] <= i + 2)
                a("s_barrier")
    body(3, "A")
    a(f"s_branch L_{name}_epi")
    a.lab(f"L_{name}_typeB")
    body(2, "B")
    a.lab(f"L_{name}_epi")
    if "pstamp" not in OPT: stamp(a, 2)
    a("s_waitcnt vmcnt(0) lgkmcnt(0)")
    sA_, sB_ = sT+6, sT+7
    a(f"s_mov_b32 s{sA_}, {f32(GELU_A)}")
    a(f"s_mov_b32 s{sB_}, {f32(GELU_B)}")
    a(f"v_lshlrev_b32 v{vX0}, 4, v0")
    a(f"s_and_b32 s{sT}, s{sFb}, 1")
    a(f"s_lshl_b32 s{sT+1}, s{sT}, 12")
    a(f"s_add_u32 s{sT+1}, s{sT+1}, s{sHb}")
    a(f"s_lshl_b32 s{sT+2}, s{sT}, 3")
    a(f"s_add_u32 s{sT+2}, s{sT+2}, s{sHb}")
    a(f"s_add_u32 s{sT+2}, s{sT+2}, {8*1024}")
    a(f"s_add_u32 s{sT+3}, s{sT+1}, {144*1024}")
    a(f"s_add_u32 s{sT+4}, s{sT+2}, {144*1024}")
    a(f"v_mov_b32 v{vT}, s{sA_}")
    a("s_nop 7")
    def gelu_tile(nt, mt, dst):
        T = WR
        lines = [[], []]
        for c in range(2):
            g0, g1 = acc(nt,0,mt) + 2*c, acc(nt,0,mt) + 2*c + 1
            u0, u1 = acc(nt,1,mt) + 2*c, acc(nt,1,mt) + 2*c + 1
            t0, t1 = T + c*8 + 4, T + c*8 + 5
            x0, x1, y0, y1 = g0, g1, u0, u1
            L = lines[c]
            L += [f"v_mul_f32 v{t0}, v{x0}, v{x0}", f"v_mul_f32 v{t1}, v{x1}, v{x1}",
                  f"v_fma_f32 v{t0}, v{t0}, s{sB_}, v{vT}", f"v_fma_f32 v{t1}, v{t1}, s{sB_}, v{vT}",
                  f"v_mul_f32 v{t0}, v{t0}, v{x0}", f"v_mul_f32 v{t1}, v{t1}, v{x1}",
                  f"v_exp_f32 v{t0}, v{t0}", f"v_exp_f32 v{t1}, v{t1}",
                  f"v_mul_f32 v{y0}, v{y0}, v{x0}", f"v_mul_f32 v{y1}, v{y1}, v{x1}",
                  f"v_add_f32 v{t0}, 1.0, v{t0}", f"v_add_f32 v{t1}, 1.0, v{t1}",
                  f"v_rcp_f32 v{t0}, v{t0}", f"v_rcp_f32 v{t1}, v{t1}",
                  f"v_mul_f32 v{t0}, v{t0}, v{y0}", f"v_mul_f32 v{t1}, v{t1}, v{y1}",
                  f"v_cvt_pk_bf16_f32 v{dst+c}, v{t0}, v{t1}"]
        i0 = i1 = 0
        while i0 < len(lines[0]) or i1 < len(lines[1]):
            for _ in range(2):
                if i0 < len(lines[0]): a(lines[0][i0]); i0 += 1
            for _ in range(2):
                if i1 < len(lines[1]): a(lines[1][i1]); i1 += 1
    k = 0
    for mt in range(2):
        for p in range(4):
            o = XS + (k % 12) * 4; k += 1
            gelu_tile(2*p, mt, o)
            gelu_tile(2*p+1, mt, o+2)
            a(f"buffer_store_dwordx4 {vr(o,4)}, v{vX0}, {sr(sH,4)}, s{sT+1+2*mt} offen offset:{p*1024}")
        o = XS + (k % 12) * 4; k += 1
        gelu_tile(8, mt, o)
        a(f"buffer_store_dwordx2 {vr(o,2)}, v{vX0}, {sr(sH,4)}, s{sT+2+2*mt} offen")
    if "pstamp" not in OPT: stamp(a, 3)
    if "stamp" in OPT: a("s_waitcnt vmcnt(0)")
    if "pstamp" not in OPT: stamp(a, 4)
    stamp(a, 6, True)
    stamp_dump(a, 7, 8, sWave, vT+4)
    a.lab(f"L_{name}_done")
    a("s_endpgm")
    return a.text(), kernel_desc(name, NV), f"; @launch kernel={name} grid=(256,1,1) block=(512,1,1) lds={NST*STG}"

def gen_k4v2(name="k4_kernel"):
    a = A(); a.stpol = os.environ.get("K4ST", "sc1")
    kernel_head(a, name)
    NST = 6; STG = 18432; RING = 6; PFD = 5; PF = RING - 1
    ROWB = 4608 if "m16" in OPT else 2304
    ACC = 4; XS = 76; WR = 124
    vWa, vWb = 148, 149
    vD = 150; vDm = 153
    vX0, vX1 = 156, 157
    vT = 160
    NV = 176
    def acc(nt, mt): return ACC + (nt*2+mt)*4
    sW, sX, sP = 12, 16, 20
    sWave, sKs, sMb, sNb = 28, 29, 30, 31
    sWb1, sXb, sPb = 32, 33, 34
    sM0 = 36
    sT = 40
    sWo = 52
    a("s_cmp_ge_u32 s2, 256")
    a(f"s_cbranch_scc1 L_{name}_done")
    stamp(a, 0); stamp(a, 5, True)
    a("s_load_dwordx2 s[4:5], s[0:1], 48")
    a("s_load_dwordx2 s[8:9], s[0:1], 72")
    a("v_lshrrev_b32 v1, 6, v0")
    a("v_and_b32 v0, 63, v0")
    a("s_nop 0")
    a(f"v_readfirstlane_b32 s{sWave}, v1")
    a(f"s_and_b32 s{sT}, s2, 7")
    a(f"s_lshr_b32 s{sT+1}, s2, 3")
    a(f"s_lshr_b32 s{sKs}, s{sT}, 1")
    a(f"s_and_b32 s{sNb}, s{sT+1}, 3")
    a(f"s_and_b32 s{sT}, s{sT}, 1")
    a(f"s_lshl_b32 s{sT}, s{sT}, 3")
    a(f"s_lshr_b32 s{sMb}, s{sT+1}, 2")
    a(f"s_add_u32 s{sMb}, s{sMb}, s{sT}")
    dma_slots_setup(a, sWave, sT, vT, vD, 1152, sM0, 0)
    a(f"s_cmp_eq_u32 s{sWave}, 0")
    a(f"s_cselect_b32 s{sT}, 0, {576*1152}")
    a(f"v_add_u32 v{vD+1}, s{sT}, v{vD+1}")
    a(f"v_add_u32 v{vD+2}, {576*1152}, v{vD+2}")
    a(f"s_mov_b32 s{sT}, {128*1152}")
    for k in range(3):
        a(f"v_cmp_lt_u32 vcc, 15, v{vT+8+k}")
        a(f"v_mov_b32 v{vT+1}, s{sT}")
        a("s_nop 0")
        a(f"v_cndmask_b32 v{vT+1}, 0, v{vT+1}, vcc")
        a(f"v_add_u32 v{vDm+k}, v{vD+k}, v{vT+1}")
    a(f"s_mul_i32 s{sWb1}, s{sKs}, {2*576*1152}")
    a(f"s_mul_i32 s{sT}, s{sNb}, 288")
    a(f"s_add_u32 s{sWb1}, s{sWb1}, s{sT}")
    a(f"s_lshr_b32 s{sT}, s{sWave}, 2")
    a(f"s_lshl_b32 s{sT+1}, s{sKs}, 1")
    a(f"s_add_u32 s{sT+1}, s{sT+1}, s{sT}")
    a(f"s_and_b32 s{sT+2}, s{sWave}, 3")
    a(f"s_lshl_b32 s{sXb}, s{sMb}, 3")
    a(f"s_lshl_b32 s{sT+3}, s{sT+2}, 1")
    a(f"s_add_u32 s{sXb}, s{sXb}, s{sT+3}")
    a(f"s_mov_b32 s{sT+4}, s{sXb}")
    a(f"s_mul_i32 s{sXb}, s{sXb}, 144")
    a(f"s_mul_i32 s{sT+3}, s{sT+1}, 18")
    a(f"s_add_u32 s{sXb}, s{sXb}, s{sT+3}")
    a(f"s_lshl_b32 s{sXb}, s{sXb}, 10")
    a(f"v_lshlrev_b32 v{vX0}, 4, v0")
    a(f"v_add_u32 v{vX0}, s{sXb}, v{vX0}")
    a(f"v_add_u32 v{vX1}, {144*1024}, v{vX0}")
    a(f"s_lshl_b32 s{sPb}, s{sKs}, 7")
    a(f"s_add_u32 s{sPb}, s{sPb}, s{sT+4}")
    a(f"s_add_u32 s{sPb}, s{sPb}, s{sT}")
    a(f"s_mul_i32 s{sPb}, s{sPb}, 36")
    a(f"s_mul_i32 s{sT+6}, s{sNb}, 9")
    a(f"s_add_u32 s{sPb}, s{sPb}, s{sT+6}")
    a(f"s_lshl_b32 s{sPb}, s{sPb}, {9 if 'pb16' in OPT else 10}")
    if "m16" in OPT:
        a(f"v_lshrrev_b32 v{vT+5}, 2, v0")
    else:
        a(f"v_lshrrev_b32 v{vT+5}, 5, v0")
        a(f"v_lshlrev_b32 v{vT+5}, 4, v{vT+5}")
        a(f"v_bfe_u32 v{vT+6}, v0, 2, 3")
        a(f"v_add_u32 v{vT+5}, v{vT+5}, v{vT+6}")
    a(f"v_mul_u32_u24 v{vT+5}, 288, v{vT+5}")
    a(f"v_and_b32 v{vT+6}, 3, v0")
    a(f"v_lshl_add_u32 v{vWa}, v{vT+6}, 3, v{vT+5}")
    a(f"s_mul_i32 s{sT+6}, s{sT}, 9216")
    a(f"v_add_u32 v{vWa}, s{sT+6}, v{vWa}")
    a(f"v_add_u32 v{vWb}, {3*STG}, v{vWa}")
    a("s_waitcnt lgkmcnt(0)")
    srd(a, sW, 4, 4608*576*2)
    srd(a, sX, 8, HH_SZ, HH_OFF)
    srd(a, sP, 8, P_SZ, P_OFF)
    def fa_rel(i):
        q, ii = divmod(i, 9)
        if ii < 4: return 288*q + 32*ii
        if ii < 8: return 288*q + 144 + 32*(ii-4)
        return 288*q + 128
    def body(nd, tag):
        vm = VM(a)
        def load_groups(i):
            if i >= 18: return []
            st = i % NST
            gs = []
            vv = vDm if i % 9 == 8 else vD
            for k in range(2):
                g = []
                if k == 0:
                    g.append(("s", f"s_add_u32 s{sWo}, s{sWb1}, {fa_rel(i)*1152}"))
                    g += [("s", f"s_cmp_ge_u32 s{sWave}, 2"), ("s", f"s_cbranch_scc1 L_{name}_sk{i}"),
                          ("s", f"s_add_u32 m0, s{sM0+2}, {st*STG}"), ("s", "s_nop 0"),
                          ("s", f"buffer_load_dwordx4 v{vv+2}, {sr(sW,4)}, s{sWo} offen lds"),
                          ("l", f"L_{name}_sk{i}")]
                g.append(("s", f"s_add_u32 m0, s{sM0+k}, {st*STG}"))
                g.append(("s", "s_nop 0"))
                g.append((("W", i), f"buffer_load_dwordx4 v{vv+k}, {sr(sW,4)}, s{sWo} offen lds"))
                gs.append(g)
            xs = XS + (i % NST) * 8
            gs.append([("s", f"s_mov_b32 s{sWo+1}, {i*1024}"),
                       (("X", i), f"buffer_load_dwordx4 {vr(xs,4)}, v{vX0}, {sr(sX,4)}, s{sWo+1} offen")])
            gs.append([(("X", i), f"buffer_load_dwordx4 {vr(xs+4,4)}, v{vX1}, {sr(sX,4)}, s{sWo+1} offen")])
            return gs
        def emit_group(g):
            for tg, txt in g:
                if tg == "s": a(txt)
                elif tg == "l": a.lab(txt)
                else: vm.op(tg, txt)
        for i in range(2):
            for g in load_groups(i): emit_group(g)
        for i in range(0, 72, 2):
            a(f"v_mov_b64 {vr(ACC+i,2)}, 0")
        sched = {0: [2, 3], 1: [4, 5], 2: [6, 7]}
        def wread(gidx):
            i, nt = divmod(gidx, 9)
            if i >= 18: return
            st = i % NST; slot = gidx % RING
            base = vWa if st < 3 else vWb
            off = (st % 3) * STG + nt * 32
            a(f"ds_read_b64_tr_b16 {vr(WR+slot*4,2)}, v{base} offset:{off}")
            a(f"ds_read_b64_tr_b16 {vr(WR+slot*4+2,2)}, v{base} offset:{off+ROWB}")
        vm.wait(lambda t: t[1] <= 0)
        a("s_barrier")
        for f in range(PF): wread(f)
        stamp(a, 1)
        for i in range(18):
            lg = []
            for j in sched.get(i, [i + PFD]): lg += load_groups(j)
            vm.wait(lambda t: t[0] == "X" and t[1] <= i)
            gi = 0
            gpos = [(k * 9) // max(1, len(lg)) for k in range(len(lg))]
            for nt in range(9):
                g = i*9 + nt; slot = g % RING
                if i == 0 and nt == 9 - PF:
                    vm.wait(lambda t: t[0] == "W" and t[1] <= 1)
                    a("s_barrier")
                wread(g + PF)
                rem = min(PF, 18*9 - 1 - g)
                a(f"s_waitcnt lgkmcnt({2*rem})")
                xs = XS + (i % NST) * 8
                a(f"v_mfma_f32_16x16x32_bf16 {vr(acc(nt,0),4)}, {vr(WR+slot*4,4)}, {vr(xs,4)}, {vr(acc(nt,0),4)}")
                a(f"v_mfma_f32_16x16x32_bf16 {vr(acc(nt,1),4)}, {vr(WR+slot*4,4)}, {vr(xs+4,4)}, {vr(acc(nt,1),4)}")
                while gi < len(lg) and gpos[gi] <= nt:
                    emit_group(lg[gi]); gi += 1
            assert gi == len(lg)
            vm.wait(lambda t: t[0] == "W" and t[1] <= i + 2)
            a("s_barrier")
    body(2, "B")
    a.lab(f"L_{name}_epi")
    stamp(a, 2)
    a(f"s_lshr_b32 s{sT}, s{sWave}, 2")
    a(f"v_lshlrev_b32 v{vT}, 4, v0")
    a(f"v_lshlrev_b32 v{vT+3}, 3, v0")
    a(f"s_mul_i32 s{sT+1}, s{sWave}, 9216")
    a(f"v_add_u32 v{vT+1}, s{sT+1}, v{vT}")
    a(f"s_xor_b32 s{sT+2}, s{sWave}, 4")
    a(f"s_mul_i32 s{sT+2}, s{sT+2}, 9216")
    a(f"v_add_u32 v{vT+2}, s{sT+2}, v{vT}")
    a(f"s_cmp_eq_u32 s{sT}, 0")
    a("s_nop 4")
    a(f"s_cbranch_scc0 L_{name}_kh1")
    for kh in range(2):
        if kh == 1: a.lab(f"L_{name}_kh1")
        for nt in range(9):
            a(f"ds_write_b128 v{vT+1}, {vr(acc(nt,1-kh),4)} offset:{nt*1024}")
        a("s_waitcnt lgkmcnt(0)")
        a("s_barrier")
        for nt in range(9):
            a(f"ds_read_b128 {vr(XS+nt*4,4)}, v{vT+2} offset:{nt*1024}")
        for nt in range(9):
            a(f"s_waitcnt lgkmcnt({8-nt})")
            for r in range(4):
                a(f"v_add_f32 v{XS+nt*4+r}, v{XS+nt*4+r}, v{acc(nt,kh)+r}")
            if "pb16" in OPT:
                a(f"v_cvt_pk_bf16_f32 v{XS+nt*4}, v{XS+nt*4}, v{XS+nt*4+1}")
                a(f"v_cvt_pk_bf16_f32 v{XS+nt*4+1}, v{XS+nt*4+2}, v{XS+nt*4+3}")
                if nt == 8: a(f"s_add_u32 s{sPb}, s{sPb}, 4096")
                a(f"buffer_store_dwordx2 {vr(XS+nt*4,2)}, v{vT+3}, {sr(sP,4)}, s{sPb} offen offset:{(nt%8)*512} sc1")
            else:
                if nt in (4, 8): a(f"s_add_u32 s{sPb}, s{sPb}, 4096")
                a(f"buffer_store_dwordx4 {vr(XS+nt*4,4)}, v{vT}, {sr(sP,4)}, s{sPb} offen offset:{(nt%4)*1024}")
        stamp(a, 3)
        if "stamp" in OPT: a("s_waitcnt vmcnt(0)")
        stamp(a, 4); stamp(a, 6, True)
        stamp_dump(a, 7, 8, sWave, vT+4, 1)
        a("s_endpgm")
    a.lab(f"L_{name}_done")
    a("s_endpgm")
    return a.text(), kernel_desc(name, NV), f"; @launch kernel={name} grid=(256,1,1) block=(512,1,1) lds={NST*STG}"


def gen_k45(name="k4_kernel"):
    a = A(); a.stpol = os.environ.get("K4ST", "sc1")
    kernel_head(a, name)
    NST = 6; STG = 18432; RING = 6; PFD = 5; PF = RING - 1
    ROWB = 4608 if "m16" in OPT else 2304
    ACC = 4; XS = 76; WR = 124
    vWa, vWb = 148, 149
    vD = 150; vDm = 153
    vX0, vX1 = 156, 157
    vT = 160
    NV = 176
    def acc(nt, mt): return ACC + (nt*2+mt)*4
    sW, sX, sP = 12, 16, 20
    sWave, sKs, sMb, sNb = 28, 29, 30, 31
    sWb1, sXb, sPb = 32, 33, 34
    sM0 = 36
    sT = 40
    sWo = 52
    NC = 144
    a(f"s_cmp_ge_u32 s2, {256+NC}")
    a(f"s_cbranch_scc1 L_{name}_done")
    a("s_cmp_ge_u32 s2, 256")
    a(f"s_cbranch_scc1 L_{name}_cons")
    stamp(a, 0); stamp(a, 5, True)
    a("s_load_dwordx2 s[4:5], s[0:1], 48")
    a("s_load_dwordx2 s[8:9], s[0:1], 72")
    a("s_load_dwordx2 s[10:11], s[0:1], 64")
    a("v_lshrrev_b32 v1, 6, v0")
    a("v_and_b32 v0, 63, v0")
    a("s_nop 0")
    a(f"v_readfirstlane_b32 s{sWave}, v1")
    a(f"s_and_b32 s{sT}, s2, 7")
    a(f"s_lshr_b32 s{sT+1}, s2, 3")
    a(f"s_lshr_b32 s{sKs}, s{sT}, 1")
    a(f"s_and_b32 s{sNb}, s{sT+1}, 3")
    a(f"s_and_b32 s{sT}, s{sT}, 1")
    a(f"s_lshl_b32 s{sT}, s{sT}, 3")
    a(f"s_lshr_b32 s{sMb}, s{sT+1}, 2")
    a(f"s_add_u32 s{sMb}, s{sMb}, s{sT}")
    dma_slots_setup(a, sWave, sT, vT, vD, 1152, sM0, 0)
    a(f"s_cmp_eq_u32 s{sWave}, 0")
    a(f"s_cselect_b32 s{sT}, 0, {576*1152}")
    a(f"v_add_u32 v{vD+1}, s{sT}, v{vD+1}")
    a(f"v_add_u32 v{vD+2}, {576*1152}, v{vD+2}")
    a(f"s_mov_b32 s{sT}, {128*1152}")
    for k in range(3):
        a(f"v_cmp_lt_u32 vcc, 15, v{vT+8+k}")
        a(f"v_mov_b32 v{vT+1}, s{sT}")
        a("s_nop 0")
        a(f"v_cndmask_b32 v{vT+1}, 0, v{vT+1}, vcc")
        a(f"v_add_u32 v{vDm+k}, v{vD+k}, v{vT+1}")
    a(f"s_mul_i32 s{sWb1}, s{sKs}, {2*576*1152}")
    a(f"s_mul_i32 s{sT}, s{sNb}, 288")
    a(f"s_add_u32 s{sWb1}, s{sWb1}, s{sT}")
    a(f"s_lshr_b32 s{sT}, s{sWave}, 2")
    a(f"s_lshl_b32 s{sT+1}, s{sKs}, 1")
    a(f"s_add_u32 s{sT+1}, s{sT+1}, s{sT}")
    a(f"s_and_b32 s{sT+2}, s{sWave}, 3")
    a(f"s_lshl_b32 s{sXb}, s{sMb}, 3")
    a(f"s_lshl_b32 s{sT+3}, s{sT+2}, 1")
    a(f"s_add_u32 s{sXb}, s{sXb}, s{sT+3}")
    a(f"s_mov_b32 s{sT+4}, s{sXb}")
    a(f"s_mul_i32 s{sXb}, s{sXb}, 144")
    a(f"s_mul_i32 s{sT+3}, s{sT+1}, 18")
    a(f"s_add_u32 s{sXb}, s{sXb}, s{sT+3}")
    a(f"s_lshl_b32 s{sXb}, s{sXb}, 10")
    a(f"v_lshlrev_b32 v{vX0}, 4, v0")
    a(f"v_add_u32 v{vX0}, s{sXb}, v{vX0}")
    a(f"v_add_u32 v{vX1}, {144*1024}, v{vX0}")
    a(f"s_lshl_b32 s{sPb}, s{sKs}, 7")
    a(f"s_add_u32 s{sPb}, s{sPb}, s{sT+4}")
    a(f"s_add_u32 s{sPb}, s{sPb}, s{sT}")
    a(f"s_mul_i32 s{sPb}, s{sPb}, 36")
    a(f"s_mul_i32 s{sT+6}, s{sNb}, 9")
    a(f"s_add_u32 s{sPb}, s{sPb}, s{sT+6}")
    a(f"s_lshl_b32 s{sPb}, s{sPb}, 10")
    if "m16" in OPT:
        a(f"v_lshrrev_b32 v{vT+5}, 2, v0")
    else:
        a(f"v_lshrrev_b32 v{vT+5}, 5, v0")
        a(f"v_lshlrev_b32 v{vT+5}, 4, v{vT+5}")
        a(f"v_bfe_u32 v{vT+6}, v0, 2, 3")
        a(f"v_add_u32 v{vT+5}, v{vT+5}, v{vT+6}")
    a(f"v_mul_u32_u24 v{vT+5}, 288, v{vT+5}")
    a(f"v_and_b32 v{vT+6}, 3, v0")
    a(f"v_lshl_add_u32 v{vWa}, v{vT+6}, 3, v{vT+5}")
    a(f"s_mul_i32 s{sT+6}, s{sT}, 9216")
    a(f"v_add_u32 v{vWa}, s{sT+6}, v{vWa}")
    a(f"v_add_u32 v{vWb}, {3*STG}, v{vWa}")
    a("s_waitcnt lgkmcnt(0)")
    srd(a, sW, 4, 4608*576*2)
    srd(a, sX, 8, HH_SZ, HH_OFF)
    srd(a, sP, 8, P_SZ, P_OFF)
    a(f"s_cmp_ge_u32 s{sWave}, 2")
    a(f"s_cbranch_scc1 L_{name}_typeB")
    def fa_rel(i):
        q, ii = divmod(i, 9)
        if ii < 4: return 288*q + 32*ii
        if ii < 8: return 288*q + 144 + 32*(ii-4)
        return 288*q + 128
    def body(nd, tag):
        vm = VM(a)
        def load_groups(i):
            if i >= 18: return []
            st = i % NST
            gs = []
            vv = vDm if i % 9 == 8 else vD
            for k in range(nd):
                g = []
                if k == 0:
                    g.append(("s", f"s_add_u32 s{sWo}, s{sWb1}, {fa_rel(i)*1152}"))
                g.append(("s", f"s_add_u32 m0, s{sM0+k}, {st*STG}"))
                g.append(("s", "s_nop 0"))
                g.append((("W", i), f"buffer_load_dwordx4 v{vv+k}, {sr(sW,4)}, s{sWo} offen lds"))
                gs.append(g)
            xs = XS + (i % NST) * 8
            gs.append([("s", f"s_mov_b32 s{sWo+1}, {i*1024}"),
                       (("X", i), f"buffer_load_dwordx4 {vr(xs,4)}, v{vX0}, {sr(sX,4)}, s{sWo+1} offen")])
            gs.append([(("X", i), f"buffer_load_dwordx4 {vr(xs+4,4)}, v{vX1}, {sr(sX,4)}, s{sWo+1} offen")])
            return gs
        def emit_group(g):
            for tg, txt in g:
                if tg == "s": a(txt)
                else: vm.op(tg, txt)
        for i in range(2):
            for g in load_groups(i): emit_group(g)
        for i in range(0, 72, 2):
            a(f"v_mov_b64 {vr(ACC+i,2)}, 0")
        sched = {0: [2, 3], 1: [4, 5], 2: [6, 7]}
        def wread(gidx):
            i, nt = divmod(gidx, 9)
            if i >= 18: return
            st = i % NST; slot = gidx % RING
            base = vWa if st < 3 else vWb
            off = (st % 3) * STG + nt * 32
            a(f"ds_read_b64_tr_b16 {vr(WR+slot*4,2)}, v{base} offset:{off}")
            a(f"ds_read_b64_tr_b16 {vr(WR+slot*4+2,2)}, v{base} offset:{off+ROWB}")
        vm.wait(lambda t: t[1] <= 0)
        a("s_barrier")
        for f in range(PF): wread(f)
        stamp(a, 1)
        for i in range(18):
            lg = []
            for j in sched.get(i, [i + PFD]): lg += load_groups(j)
            vm.wait(lambda t: t[0] == "X" and t[1] <= i)
            gi = 0
            gpos = [(k * 9) // max(1, len(lg)) for k in range(len(lg))]
            for nt in range(9):
                g = i*9 + nt; slot = g % RING
                if i == 0 and nt == 9 - PF:
                    vm.wait(lambda t: t[0] == "W" and t[1] <= 1)
                    a("s_barrier")
                wread(g + PF)
                rem = min(PF, 18*9 - 1 - g)
                a(f"s_waitcnt lgkmcnt({2*rem})")
                xs = XS + (i % NST) * 8
                a(f"v_mfma_f32_16x16x32_bf16 {vr(acc(nt,0),4)}, {vr(WR+slot*4,4)}, {vr(xs,4)}, {vr(acc(nt,0),4)}")
                a(f"v_mfma_f32_16x16x32_bf16 {vr(acc(nt,1),4)}, {vr(WR+slot*4,4)}, {vr(xs+4,4)}, {vr(acc(nt,1),4)}")
                while gi < len(lg) and gpos[gi] <= nt:
                    emit_group(lg[gi]); gi += 1
            assert gi == len(lg)
            vm.wait(lambda t: t[0] == "W" and t[1] <= i + 2)
            a("s_barrier")
    body(3, "A")
    a(f"s_branch L_{name}_epi")
    a.lab(f"L_{name}_typeB")
    body(2, "B")
    a.lab(f"L_{name}_epi")
    stamp(a, 2)
    a(f"s_lshr_b32 s{sT}, s{sWave}, 2")
    a(f"v_lshlrev_b32 v{vT}, 4, v0")
    a(f"s_mul_i32 s{sT+1}, s{sWave}, 9216")
    a(f"v_add_u32 v{vT+1}, s{sT+1}, v{vT}")
    a(f"s_xor_b32 s{sT+2}, s{sWave}, 4")
    a(f"s_mul_i32 s{sT+2}, s{sT+2}, 9216")
    a(f"v_add_u32 v{vT+2}, s{sT+2}, v{vT}")
    a(f"s_cmp_eq_u32 s{sT}, 0")
    a("s_nop 4")
    a(f"s_cbranch_scc0 L_{name}_kh1")
    for kh in range(2):
        if kh == 1: a.lab(f"L_{name}_kh1")
        for nt in range(9):
            a(f"ds_write_b128 v{vT+1}, {vr(acc(nt,1-kh),4)} offset:{nt*1024}")
        a("s_waitcnt lgkmcnt(0)")
        a("s_barrier")
        for nt in range(9):
            a(f"ds_read_b128 {vr(XS+nt*4,4)}, v{vT+2} offset:{nt*1024}")
        for nt in range(9):
            a(f"s_waitcnt lgkmcnt({8-nt})")
            for r in range(4):
                a(f"v_add_f32 v{XS+nt*4+r}, v{XS+nt*4+r}, v{acc(nt,kh)+r}")
            if nt in (4, 8): a(f"s_add_u32 s{sPb}, s{sPb}, 4096")
            a(f"buffer_store_dwordx4 {vr(XS+nt*4,4)}, v{vT}, {sr(sP,4)}, s{sPb} offen offset:{(nt%4)*1024}")
        stamp(a, 3)
        a("s_waitcnt vmcnt(0)")
        a("s_barrier")
        stamp(a, 4); stamp(a, 6, True)
        stamp_dump(a, 7, 8, sWave, vT+4, 1)
        if kh == 0:
            a(f"s_cmp_lg_u32 s{sWave}, 0")
            a(f"s_cbranch_scc1 L_{name}_done")
            srd(a, 24, 10, 256)
            a(f"s_lshl_b32 s{sT}, s{sMb}, 2")
            a(f"v_mov_b32 v{vT}, s{sT}")
            a(f"v_mov_b32 v{vT+1}, 1")
            a("s_mov_b64 exec, 1")
            a(f"buffer_atomic_add v{vT+1}, v{vT}, s[24:27], 0 offen sc1")
        a("s_endpgm")
    a.lab(f"L_{name}_cons")
    a("s_load_dwordx2 s[4:5], s[0:1], 56")
    a("s_load_dwordx4 s[8:11], s[0:1], 64")
    a("v_lshrrev_b32 v1, 6, v0")
    a("v_and_b32 v0, 63, v0")
    a("s_sub_u32 s28, s2, 256")
    a("v_readfirstlane_b32 s29, v1")
    a("s_mul_i32 s30, s28, 7282")
    a("s_lshr_b32 s30, s30, 16")
    a("s_lshl_b32 s31, s28, 4")
    a("s_lshl_b32 s32, s29, 1")
    a("s_add_u32 s31, s31, s32")
    a("s_waitcnt lgkmcnt(0)")
    srd(a, 12, 10, H1_SZ, H1_OFF)
    srd(a, 16, 10, P_SZ, P_OFF)
    srd(a, 20, 4, 2048*576*2)
    srd(a, 24, 8, 256)
    a("v_lshlrev_b32 v1, 4, v0")
    a("s_lshl_b32 s32, s31, 10")
    a("buffer_load_dwordx4 v[4:7], v1, s[12:15], s32 offen")
    a("buffer_load_dwordx4 v[44:47], v1, s[12:15], s32 offen offset:1024")
    a("s_cmp_lg_u32 s29, 0")
    a(f"s_cbranch_scc1 L_{name}_wait")
    a("s_lshl_b32 s33, s30, 2")
    a("v_mov_b32 v2, s33")
    a.lab(f"L_{name}_poll")
    a("buffer_load_dword v3, v2, s[24:27], 0 offen sc1")
    a("s_waitcnt vmcnt(0)")
    a("v_readfirstlane_b32 s34, v3")
    a("s_cmp_ge_u32 s34, 16")
    a(f"s_cbranch_scc1 L_{name}_wait")
    a("s_sleep 2")
    a(f"s_branch L_{name}_poll")
    a.lab(f"L_{name}_wait")
    a("s_barrier")
    a("s_lshl_b32 s33, s31, 11")
    for t in range(2):
        B = 8 + t*40
        for k_ in range(4):
            a.l.append(f"    buffer_load_dwordx4 v[{B+k_*8}:{B+3+k_*8}], v1, s[16:19], s33 offen offset:{t*2048} sc1")
            a.l.append(f"    buffer_load_dwordx4 v[{B+4+k_*8}:{B+7+k_*8}], v1, s[16:19], s33 offen offset:{t*2048+1024} sc1")
            a(f"s_add_u32 s33, s33, {128*36*1024}")
        a(f"s_sub_u32 s33, s33, {4*128*36*1024}")
    for t in range(2):
        B = 8 + t*40; Hh = 4 + t*40
        a(f"s_add_u32 s35, s31, {t}")
        a("s_mul_i32 s36, s35, 3641")
        a("s_lshr_b32 s36, s36, 16")
        a("s_mul_i32 s37, s36, 18")
        a("s_sub_u32 s37, s35, s37")
        a("v_and_b32 v2, 15, v0")
        a("s_lshl_b32 s38, s36, 4")
        a("v_add_u32 v2, s38, v2")
        a("v_mul_u32_u24 v2, 1152, v2")
        a("v_lshrrev_b32 v3, 4, v0")
        a("v_lshl_add_u32 v2, v3, 3, v2")
        a("s_lshl_b32 s38, s37, 6")
        a(f"s_waitcnt vmcnt({8 if t == 0 else 2})")
        for i in range(8):
            a(f"v_add_f32 v{B+i}, v{B+i}, v{B+8+i}")
            a(f"v_add_f32 v{B+16+i}, v{B+16+i}, v{B+24+i}")
        for i in range(8):
            a(f"v_add_f32 v{B+i}, v{B+i}, v{B+16+i}")
        for p in range(4):
            a(f"v_cvt_pk_bf16_f32 v{B+8+p}, v{B+2*p}, v{B+1+2*p}")
        for p in range(4):
            a(f"v_lshlrev_b32 v{B+16+2*p}, 16, v{B+8+p}")
            a(f"v_and_b32 v{B+17+2*p}, 0xffff0000, v{B+8+p}")
            a(f"v_lshlrev_b32 v{B+24+2*p}, 16, v{Hh+p}")
            a(f"v_and_b32 v{B+25+2*p}, 0xffff0000, v{Hh+p}")
        for i in range(8):
            a(f"v_add_f32 v{B+16+i}, v{B+16+i}, v{B+24+i}")
        for p in range(4):
            a(f"v_cvt_pk_bf16_f32 v{B+8+p}, v{B+16+2*p}, v{B+17+2*p}")
        a(f"buffer_store_dwordx2 v[{B+8}:{B+9}], v2, s[20:23], s38 offen")
        a(f"buffer_store_dwordx2 v[{B+10}:{B+11}], v2, s[20:23], s38 offen offset:32")
    a.lab(f"L_{name}_done")
    a("s_endpgm")
    return a.text(), kernel_desc(name, NV), f"; @launch kernel={name} grid=({256+NC},1,1) block=(512,1,1) lds={NST*STG}"


def gen_k1v3(name="k1_kernel"):
    a = A(); vm = VM(a)
    kernel_head(a, name)
    XT = 0
    WB = 92160; STG = 16384; NST = 4; PITCH = 480
    QP = 624
    ACC = 4
    XF = 44
    WF = 84
    RAW = 100
    vD0, vD1 = 150, 151
    vWa, vXa, vXb = 152, 153, 154
    vNM, vR, vLW = 155, 156, 157
    vT = 160
    NV = 184
    sW, sXs, sO = 12, 16, 20
    sWave, sRb, sHg, sT = 28, 29, 30, 36
    sWo, sM0b = 31, 32
    a("s_cmp_ge_u32 s2, 256")
    a(f"s_cbranch_scc1 L_{name}_done")
    stamp(a, 0); stamp(a, 5, True)
    a("s_load_dwordx4 s[4:7], s[0:1], 0")
    a("s_load_dwordx2 s[8:9], s[0:1], 72")
    if "nowpf" not in OPT:
        a("s_load_dwordx4 s[48:51], s[0:1], 32")
        a("s_load_dwordx2 s[52:53], s[0:1], 48")
        a("s_load_dwordx2 s[92:93], s[0:1], 16")
    a("v_lshrrev_b32 v1, 6, v0")
    a("v_mov_b32 v3, v0")
    a("v_and_b32 v0, 63, v0")
    a(f"v_readfirstlane_b32 s{sWave}, v1")
    a(f"s_lshr_b32 s{sT}, s2, 3")
    a(f"s_and_b32 s{sHg}, s{sT}, 3")
    a(f"s_and_b32 s{sT+1}, s2, 1")
    a(f"s_lshl_b32 s{sT+1}, s{sT+1}, 2")
    a(f"s_add_u32 s{sHg}, s{sHg}, s{sT+1}")
    a(f"s_lshr_b32 s{sRb}, s{sT}, 2")
    a(f"s_bfe_u32 s{sT+1}, s2, 0x20001")
    a(f"s_lshl_b32 s{sT+1}, s{sT+1}, 3")
    a(f"s_add_u32 s{sRb}, s{sRb}, s{sT+1}")
    a(f"v_min_u32 v{vT+4}, 59, v0")
    a(f"v_mul_u32_u24 v{vT}, 10923, v{vT+4}")
    a(f"v_lshrrev_b32 v{vT}, 16, v{vT}")
    a(f"v_mul_u32_u24 v{vT+1}, 6, v{vT}")
    a(f"v_sub_u32 v{vT+1}, v{vT+4}, v{vT+1}")
    a(f"s_mul_i32 s{sT}, s{sWave}, 10")
    a(f"v_add_u32 v{vT+2}, s{sT}, v{vT}")
    a(f"s_lshl_b32 s{sT+1}, s{sRb}, 6")
    a(f"s_sub_u32 s{sT+1}, s{sT+1}, 16")
    a(f"v_add_u32 v{vT+3}, s{sT+1}, v{vT+2}")
    a(f"s_movk_i32 s{sT+2}, 1152")
    a(f"v_mul_lo_u32 v{vT+3}, v{vT+3}, s{sT+2}")
    a(f"v_lshl_add_u32 v{vT+3}, v{vT+1}, 4, v{vT+3}")
    a("s_waitcnt lgkmcnt(0)")
    srd(a, sXs, 4, 2048*576*2)
    for i in range(12):
        vm.op(("x", i), f"buffer_load_dwordx4 {vr(RAW+i*4,4)}, v{vT+3}, {sr(sXs,4)}, 0 offen offset:{i*96}")
    srd(a, sW, 6, 576*1728*2)
    srd(a, sO, 8, O_SZ, O_OFF)
    a(f"s_lshl_b32 s{sT}, s{sWave}, 7")
    a(f"s_mul_i32 s{sT+1}, s{sHg}, 144")
    a(f"s_mov_b32 s{sT+2}, 0x40000000")
    for t, vd in enumerate((vD0, vD1)):
        a(f"v_add_u32 v{vT+4}, s{sT}, v0")
        if t: a(f"v_add_u32 v{vT+4}, 64, v{vT+4}")
        a(f"v_mul_u32_u24 v{vT+5}, 2185, v{vT+4}")
        a(f"v_lshrrev_b32 v{vT+5}, 16, v{vT+5}")
        a(f"v_mul_u32_u24 v{vT+6}, 30, v{vT+5}")
        a(f"v_sub_u32 v{vT+6}, v{vT+4}, v{vT+6}")
        a(f"v_mul_u32_u24 v{vT+7}, 7282, v{vT+6}")
        a(f"v_lshrrev_b32 v{vT+7}, 16, v{vT+7}")
        a(f"v_mul_u32_u24 v{vT+8}, 9, v{vT+7}")
        a(f"v_sub_u32 v{vT+8}, v{vT+6}, v{vT+8}")
        a(f"v_mul_u32_u24 v{vT+7}, 1152, v{vT+7}")
        a(f"v_lshl_add_u32 v{vT+7}, v{vT+8}, 4, v{vT+7}")
        a(f"v_and_b32 v{vT+8}, 4, v{vT+5}")
        a(f"v_lshlrev_b32 v{vT+8}, 1, v{vT+8}")
        a(f"v_and_b32 v{vT+9}, 8, v{vT+5}")
        a(f"v_lshrrev_b32 v{vT+9}, 1, v{vT+9}")
        a(f"v_and_b32 v{vT+10}, 0x13, v{vT+5}")
        a(f"v_or3_b32 v{vT+8}, v{vT+8}, v{vT+9}, v{vT+10}")
        a(f"v_mul_u32_u24 v{vT+8}, 3456, v{vT+8}")
        a(f"v_add3_u32 v{vT+7}, v{vT+7}, v{vT+8}, s{sT+1}")
        a(f"v_cmp_gt_u32 vcc, 27, v{vT+6}")
        a(f"v_cmp_gt_u32 s[{sT+4}:{sT+5}], 32, v{vT+5}")
        a(f"s_and_b64 vcc, vcc, s[{sT+4}:{sT+5}]")
        a(f"v_mov_b32 v{vT+8}, s{sT+2}")
        a("s_nop 1")
        a(f"v_cndmask_b32 v{vd}, v{vT+8}, v{vT+7}, vcc")
    a(f"s_lshl_b32 s{sM0b}, s{sWave}, 11")
    a(f"s_add_u32 s{sM0b}, s{sM0b}, {WB}")
    def wdma(i):
        if i >= 18: return
        st = i % NST
        a(f"s_mov_b32 s{sWo}, {i*32*3456}")
        for t, vd in enumerate((vD0, vD1)):
            a(f"s_add_u32 m0, s{sM0b}, {st*STG + t*1024}")
            a("s_nop 0")
            vm.op(("W", i), f"buffer_load_dwordx4 v{vd}, {sr(sW,4)}, s{sWo} offen lds")
    for i in range(2): wdma(i)
    if "k1pf" in OPT:
        a(f"s_and_b32 s{sT+3}, s{sRb}, 7")
        a(f"s_mul_i32 s{sT+3}, s{sT+3}, {72*3456}")
        a(f"s_add_u32 s{sT+3}, s{sT+3}, s{sT+1}")
        for t in range(2):
            a(f"v_add_u32 v{vT+4}, s{sT}, v0")
            if t: a(f"v_add_u32 v{vT+4}, 64, v{vT+4}")
            a(f"v_mul_u32_u24 v{vT+5}, 7282, v{vT+4}")
            a(f"v_lshrrev_b32 v{vT+5}, 16, v{vT+5}")
            a(f"v_mul_u32_u24 v{vT+6}, 9, v{vT+5}")
            a(f"v_sub_u32 v{vT+6}, v{vT+4}, v{vT+6}")
            a(f"v_mul_u32_u24 v{vT+7}, 21846, v{vT+6}")
            a(f"v_lshrrev_b32 v{vT+7}, 16, v{vT+7}")
            a(f"v_mul_u32_u24 v{vT+8}, 3, v{vT+7}")
            a(f"v_sub_u32 v{vT+8}, v{vT+6}, v{vT+8}")
            a(f"v_mul_u32_u24 v{vT+8}, 70, v{vT+8}")
            a(f"v_and_b32 v{vT+8}, 0xfc, v{vT+8}")
            a(f"v_mul_u32_u24 v{vT+5}, 3456, v{vT+5}")
            a(f"v_mad_u32_u24 v{vT+5}, v{vT+7}, 1152, v{vT+5}") if False else None
            a(f"v_mul_u32_u24 v{vT+7}, 1152, v{vT+7}")
            a(f"v_add3_u32 v{vT+5}, v{vT+5}, v{vT+7}, v{vT+8}")
            a(f"v_cmp_gt_u32 vcc, 648, v{vT+4}")
            a(f"v_mov_b32 v{vT+8}, s{sT+2}")
            a("s_nop 1")
            a(f"v_cndmask_b32 v{vT+5}, v{vT+8}, v{vT+5}, vcc")
            vm.op(("P", t), f"buffer_load_dword v{vT+20+t}, v{vT+5}, {sr(sW,4)}, s{sT+3} offen")
    ONES = sT+8
    a(f"s_mov_b32 s{ONES}, 0x3f803f80")
    S, Q, S2, Q2 = vT+4, vT+5, vT+6, vT+7
    B3, B1, B2 = vT+8, vT+9, vT+10
    for d_, vb in ((3, B3), (1, B1), (2, B2)):
        a(f"v_add_u32 v{vb}, {d_}, v{vT+1}")
        a(f"v_subrev_u32 v{vT+11}, 6, v{vb}")
        a(f"v_min_u32 v{vb}, v{vb}, v{vT+11}")
        a(f"v_mad_u32_u24 v{vb}, v{vT}, 6, v{vb}")
        a(f"v_lshlrev_b32 v{vb}, 2, v{vb}")
    a(f"v_lshrrev_b32 v{vT+11}, 4, v{vT+2}")
    a(f"v_mul_u32_u24 v{vT+11}, 18432, v{vT+11}")
    a(f"v_and_b32 v{vT+12}, 15, v{vT+2}")
    a(f"v_lshl_add_u32 v{vT+11}, v{vT+12}, 4, v{vT+11}")
    a(f"v_lshl_add_u32 v{vLW}, v{vT+1}, 8, v{vT+11}")
    a(f"v_lshrrev_b32 v{vT+11}, 5, v0")
    a(f"v_lshlrev_b32 v{vT+11}, 4, v{vT+11}")
    a(f"v_bfe_u32 v{vT+12}, v0, 2, 3")
    a(f"v_add_u32 v{vT+11}, v{vT+11}, v{vT+12}")
    a(f"v_mul_u32_u24 v{vT+11}, {PITCH}, v{vT+11}")
    a(f"v_and_b32 v{vT+12}, 3, v0")
    a(f"v_lshl_add_u32 v{vWa}, v{vT+12}, 3, v{vT+11}")
    a(f"s_lshl_b32 s{sT}, s{sWave}, 6")
    a(f"s_add_u32 s{sT}, s{sT}, {WB}")
    a(f"v_add_u32 v{vWa}, s{sT}, v{vWa}")
    a(f"v_lshlrev_b32 v{vXa}, 4, v0")
    a(f"v_add_u32 v{vXb}, 65536, v{vXa}")
    for r in (S, Q, S2, Q2): a(f"v_mov_b32 v{r}, 0")
    for i in range(12):
        vm.wait(lambda t: t[0] == "x" and t[1] <= i)
        if i == 11 and "astamp" not in OPT: stamp(a, 1)
        for d_ in range(4):
            x = RAW + i*4 + d_
            s_, q_ = (S, Q) if d_ % 2 == 0 else (S2, Q2)
            a(f"v_dot2_f32_bf16 v{s_}, v{x}, s{ONES}, v{s_}")
            a(f"v_dot2_f32_bf16 v{q_}, v{x}, v{x}, v{q_}")
    wdma(2); wdma(3)
    a(f"v_add_f32 v{S}, v{S}, v{S2}")
    a(f"v_add_f32 v{Q}, v{Q}, v{Q2}")
    a(f"ds_bpermute_b32 v{S2}, v{B3}, v{S}")
    a(f"ds_bpermute_b32 v{Q2}, v{B3}, v{Q}")
    a("s_waitcnt lgkmcnt(0)")
    a(f"v_add_f32 v{S}, v{S}, v{S2}")
    a(f"v_add_f32 v{Q}, v{Q}, v{Q2}")
    a(f"ds_bpermute_b32 v{S2}, v{B1}, v{S}")
    a(f"ds_bpermute_b32 v{Q2}, v{B1}, v{Q}")
    a(f"ds_bpermute_b32 v{vT+11}, v{B2}, v{S}")
    a(f"ds_bpermute_b32 v{vT+12}, v{B2}, v{Q}")
    a("s_waitcnt lgkmcnt(0)")
    a(f"v_add3_u32 v{vT+13}, 0, 0, 0") if False else None
    a(f"v_add_f32 v{S}, v{S}, v{S2}")
    a(f"v_add_f32 v{Q}, v{Q}, v{Q2}")
    a(f"v_add_f32 v{S}, v{S}, v{vT+11}")
    a(f"v_add_f32 v{Q}, v{Q}, v{vT+12}")
    a(f"v_mul_f32 v{S}, {f32(1.0/576.0)}, v{S}")
    a(f"v_mul_f32 v{Q}, {f32(1.0/576.0)}, v{Q}")
    a(f"v_fma_f32 v{Q}, -v{S}, v{S}, v{Q}")
    a(f"v_max_f32 v{Q}, 0, v{Q}")
    round_bf16(a, vNM, S)
    round_bf16(a, Q, Q)
    a(f"v_add_f32 v{Q}, {f32(1e-5)}, v{Q}")
    round_bf16(a, Q, Q)
    a(f"v_sqrt_f32 v{Q}, v{Q}")
    a("s_nop 0")
    round_bf16(a, Q, Q)
    a(f"v_rcp_f32 v{vR}, v{Q}")
    a("s_nop 0")
    FAST1 = "fast1" in OPT
    if FAST1:
        a(f"v_mul_f32 v{vNM}, v{vNM}, v{vR}")
        a(f"v_sub_f32 v{vNM}, 0, v{vNM}")
    def norm_group(i):
        if FAST1:
            ops = []
            chains = []
            for d_ in range(4):
                x = RAW + i*4 + d_
                t = vT + 12 + d_ * 2
                chains.append([f"v_lshlrev_b32 v{t}, 16, v{x}", f"v_and_b32 v{t+1}, 0xffff0000, v{x}",
                               f"v_fma_f32 v{t}, v{t}, v{vR}, v{vNM}", f"v_fma_f32 v{t+1}, v{t+1}, v{vR}, v{vNM}",
                               f"v_cvt_pk_bf16_f32 v{x}, v{t}, v{t+1}"])
            for stage in ((0, 1), (2, 3), (4,)):
                for c in chains:
                    for j in stage: ops.append(c[j])
            ops.append(f"ds_write_b128 v{vLW}, {vr(RAW+i*4,4)} offset:{XT + i*6*256}")
            return ops
        chains = []
        for d_ in range(4):
            x = RAW + i*4 + d_
            t = vT + 12 + d_ * 2
            chains.append([f"v_lshlrev_b32 v{t}, 16, v{x}", f"v_and_b32 v{t+1}, 0xffff0000, v{x}",
                    f"v_sub_f32 v{t}, v{t}, v{vNM}", f"v_sub_f32 v{t+1}, v{t+1}, v{vNM}",
                    f"v_cvt_pk_bf16_f32 v{t}, v{t}, v{t+1}",
                    f"v_and_b32 v{t+1}, 0xffff0000, v{t}", f"v_lshlrev_b32 v{t}, 16, v{t}",
                    f"v_mul_f32 v{t}, v{t}, v{vR}", f"v_mul_f32 v{t+1}, v{t+1}, v{vR}",
                    f"v_cvt_pk_bf16_f32 v{x}, v{t}, v{t+1}"])
        ops = []
        for stage in ((0, 1), (2, 3), (4,), (5, 6), (7, 8), (9,)):
            for c in chains:
                for j in stage: ops.append(c[j])
        ops.append(f"ds_write_b128 v{vLW}, {vr(RAW+i*4,4)} offset:{XT + i*6*256}")
        return ops
    gdone = 12
    for g_ in range(12):
        for op in norm_group(g_): a(op)
    if "astamp" not in OPT: stamp(a, 2)
    vm.wait(lambda t: t[0] == "W" and t[1] <= 0)
    a("s_waitcnt lgkmcnt(0)")
    a("s_barrier")
    if "astamp" not in OPT: stamp(a, 3)
    if "nowpf" not in OPT:
        a(f"s_lshl_b32 s{sT}, s2, 3")
        a(f"s_add_u32 s{sT}, s{sT}, s{sWave}")
        a(f"s_cmp_ge_u32 s{sT}, 2025")
        a(f"s_cbranch_scc1 L_{name}_nopf")
        a(f"s_cmp_ge_u32 s{sT}, 648")
        a(f"s_cselect_b32 s54, s50, s48")
        a(f"s_cselect_b32 s55, s51, s49")
        a(f"s_cselect_b32 s{sT+1}, 648, 0")
        a(f"s_cmp_ge_u32 s{sT}, 1296")
        a(f"s_cselect_b32 s54, s52, s54")
        a(f"s_cselect_b32 s55, s53, s55")
        a(f"s_cselect_b32 s{sT+1}, 1296, s{sT+1}")
        a(f"s_cmp_ge_u32 s{sT}, 1944")
        a(f"s_cselect_b32 s54, s92, s54")
        a(f"s_cselect_b32 s55, s93, s55")
        a(f"s_cselect_b32 s{sT+1}, 1944, s{sT+1}")
        a(f"s_cselect_b32 s{sT+2}, {576*576*2}, {576*4608*2}") if False else None
        a(f"s_sub_u32 s{sT}, s{sT}, s{sT+1}")
        a(f"s_lshl_b32 s{sT}, s{sT}, 13")
        srd(a, 56, 54, 576*4608*2)
        a(f"v_lshlrev_b32 v{vT+18}, 7, v0")
        a(f"buffer_load_dword v{vT+19}, v{vT+18}, s[56:59], s{sT} offen")
        a.lab(f"L_{name}_nopf")
        if "pfcode" in OPT:
            a(f"s_lshl_b32 s{sT}, s2, 3")
            a(f"s_add_u32 s{sT}, s{sT}, s{sWave}")
            a(f"s_sub_u32 s{sT}, s{sT}, 2025")
            a(f"s_cmp_ge_u32 s{sT}, 8")
            a(f"s_cbranch_scc1 L_{name}_nopc")
            a("s_getpc_b64 s[54:55]")
            a(f"s_lshl_b32 s{sT}, s{sT}, 13")
            srd(a, 56, 54, 65536)
            a(f"v_lshlrev_b32 v{vT+18}, 7, v0")
            a(f"buffer_load_dword v{vT+19}, v{vT+18}, s[56:59], s{sT} offen")
            a.lab(f"L_{name}_nopc")
        if "pfws" in OPT:
            a(f"s_lshl_b32 s{sT}, s2, 3")
            a(f"s_add_u32 s{sT}, s{sT}, s{sWave}")
            a(f"s_cmp_ge_u32 s{sT}, {(P_OFF+P_SZ + 262143)//262144}")
            a(f"s_cbranch_scc1 L_{name}_nopw")
            a(f"s_lshl_b32 s{sT}, s{sT}, 18")
            srd(a, 56, 8, P_OFF+P_SZ)
            a(f"v_lshlrev_b32 v{vT+18}, 12, v0")
            a(f"buffer_load_dword v{vT+20}, v{vT+18}, s[56:59], s{sT} offen")
            a.lab(f"L_{name}_nopw")
    def reads(i):
        b = i % 2; st = i % NST
        for n in range(2):
            a(f"ds_read_b64_tr_b16 {vr(WF+b*8+n*4,2)}, v{vWa} offset:{st*STG + n*32}")
            a(f"ds_read_b64_tr_b16 {vr(WF+b*8+n*4+2,2)}, v{vWa} offset:{st*STG + n*32 + 8*PITCH}")
        for mt in range(5):
            off = (mt*18 + i)*1024
            if off < 65536:
                a(f"ds_read_b128 {vr(XF+b*20+mt*4,4)}, v{vXa} offset:{off}")
            else:
                a(f"ds_read_b128 {vr(XF+b*20+mt*4,4)}, v{vXb} offset:{off-65536}")
    for i in range(18):
        reads(i)
        if i >= 1: wdma(i+3)
        b = i % 2
        need = min(11, (4*(i+1)+3)//6)
        nops = []
        while gdone <= need:
            nops += norm_group(gdone); gdone += 1
        if "k1nonorm" in OPT: nops = []
        ni = 0
        for _ in range(10):
            if ni < len(nops) - 1: a(nops[ni]); ni += 1
        for mt in range(5):
            a(f"s_waitcnt lgkmcnt({4-mt})")
            for n in range(2):
                c = vr(ACC+(mt*2+n)*4,4)
                a(f"v_mfma_f32_16x16x32_bf16 {c}, {vr(WF+b*8+n*4,4)}, {vr(XF+b*20+mt*4,4)}, " + ("0" if i == 0 else c))
                for _ in range(3):
                    if ni < len(nops) - 1: a(nops[ni]); ni += 1
        while ni < len(nops):
            a(nops[ni]); ni += 1
        if i < 17:
            vm.wait(lambda t: t[0] == "W" and t[1] <= i+1)
            if nops: a("s_waitcnt lgkmcnt(0)")
            a("s_barrier")
    a("s_barrier")
    stamp(a, 1 if "astamp" in OPT else 4)
    a(f"v_lshrrev_b32 v{vT}, 4, v0")
    a(f"v_lshlrev_b32 v{vT}, 2, v{vT}")
    a(f"s_lshl_b32 s{sT}, s{sWave}, 5")
    a(f"v_add_u32 v{vT}, s{sT}, v{vT}")
    a(f"v_and_b32 v{vT+1}, 15, v0")
    a(f"v_mul_u32_u24 v{vT+1}, {QP}, v{vT+1}")
    AD = vT + 4
    for n in range(2):
        for p in range(2):
            ad = AD + n*2 + p
            a(f"v_add_u32 v{vT+2}, {n*16+p*2}, v{vT}")
            a(f"v_mul_u32_u24 v{vT+3}, 3641, v{vT+2}")
            a(f"v_lshrrev_b32 v{vT+3}, 16, v{vT+3}")
            a(f"v_mul_u32_u24 v{ad}, 18, v{vT+3}")
            a(f"v_sub_u32 v{ad}, v{vT+2}, v{ad}")
            a(f"v_lshl_add_u32 v{ad}, v{ad}, 1, v{vT+1}")
            a(f"v_mad_u32_u24 v{ad}, v{vT+3}, 48, v{ad}")
    a(f"s_cmp_ge_u32 s{sWave}, 7")
    a(f"s_cbranch_scc1 L_{name}_skipq")
    for mt in range(5):
        for n in range(2):
            c = ACC + (mt*2+n)*4
            t = vT + 8 + ((mt*2+n) % 2) * 2
            a(f"v_cvt_pk_bf16_f32 v{t}, v{c}, v{c+1}")
            a(f"v_cvt_pk_bf16_f32 v{t+1}, v{c+2}, v{c+3}")
            a(f"ds_write_b32 v{AD+n*2}, v{t} offset:{mt*16*QP}")
            a(f"ds_write_b32 v{AD+n*2+1}, v{t+1} offset:{mt*16*QP}")
    a.lab(f"L_{name}_skipq")
    QR = 4; KR = 16; LG = 64; LX = 68; VO = 72; VX = 104; OA = 136
    vAo, vAx, vPos, vHd, vHf = vT, vT+1, vT+2, vT+3, vT+12
    a(f"v_lshrrev_b32 v{vPos}, 3, v3")
    a(f"v_bfe_u32 v{vHd}, v3, 1, 2")
    a(f"v_and_b32 v{vHf}, 1, v3")
    a(f"v_add_u32 v{vT+13}, 2, v{vPos}")
    a(f"v_mul_u32_u24 v{vT+13}, {QP}, v{vT+13}")
    a(f"v_mad_u32_u24 v{vT+13}, v{vHd}, 48, v{vT+13}")
    a(f"v_xor_b32 v{vT+14}, 1, v{vHf}")
    a(f"s_movk_i32 s{sT}, {8*QP}")
    a(f"v_mad_u32_u24 v{vAo}, v{vT+14}, s{sT}, v{vT+13}")
    a(f"v_mad_u32_u24 v{vAx}, v{vHf}, s{sT}, v{vT+13}")
    a("s_waitcnt lgkmcnt(0)")
    a("s_barrier")
    if "astamp" in OPT: stamp(a, 2)
    for j in range(3):
        a(f"ds_read_b128 {vr(QR+j*4,4)}, v{vT+13} offset:{14*QP + j*16}")
    for i in range(4):
        for j in range(3):
            a(f"ds_read_b128 {vr(KR+i*12+j*4,4)}, v{vAo} offset:{(6-2*i)*QP + 192 + j*16}")
    a(f"v_lshl_add_u32 v{vAo}, v{vHf}, 4, v{vAo}")
    a(f"v_lshl_add_u32 v{vAx}, v{vHf}, 4, v{vAx}")
    a(f"s_lshl_b32 s{sT}, s{sRb}, 6")
    a(f"v_add_u32 v{vPos}, s{sT}, v{vPos}")
    a(f"v_lshlrev_b32 v{vT+14}, 3, v{vHf}")
    a(f"v_sub_u32 v{vT+14}, v{vPos}, v{vT+14}")
    a(f"s_mov_b32 s{sT+1}, {f32(18.0**-0.5)}")
    a(f"s_mov_b32 s{sT+2}, {f32(-1e9)}")
    a(f"v_cvt_pk_bf16_f32 v{vT+15}, s{sT+2}, s{sT+2}")
    a(f"v_lshlrev_b32 v{vT+15}, 16, v{vT+15}")
    for i in range(4): a(f"v_mov_b32 v{LG+i}, 0")
    a("s_waitcnt lgkmcnt(0)")
    for i in range(4):
        a(f"ds_read_b128 {vr(VO+i*8,4)}, v{vAo} offset:{(6-2*i)*QP + 384}")
        a(f"ds_read_b32 v{VO+i*8+4}, v{vAo} offset:{(6-2*i)*QP + 384 + 16}")
    for i in range(4):
        a(f"ds_read_b128 {vr(VX+i*8,4)}, v{vAx} offset:{(6-2*i)*QP + 384}")
        a(f"ds_read_b32 v{VX+i*8+4}, v{vAx} offset:{(6-2*i)*QP + 384 + 16}")
    for d_ in range(9):
        for i in range(4):
            a(f"v_dot2_f32_bf16 v{LG+i}, v{QR+d_}, v{KR+i*12+d_}, v{LG+i}")
    a("s_nop 2")
    a(f"v_cvt_pk_bf16_f32 v{LG}, v{LG}, v{LG+1}")
    a(f"v_cvt_pk_bf16_f32 v{LG+2}, v{LG+2}, v{LG+3}")
    a(f"v_and_b32 v{LG+1}, 0xffff0000, v{LG}")
    a(f"v_lshlrev_b32 v{LG}, 16, v{LG}")
    a(f"v_and_b32 v{LG+3}, 0xffff0000, v{LG+2}")
    a(f"v_lshlrev_b32 v{LG+2}, 16, v{LG+2}")
    for i in range(4): a(f"v_mul_f32 v{LG+i}, s{sT+1}, v{LG+i}")
    a(f"v_cvt_pk_bf16_f32 v{LG}, v{LG}, v{LG+1}")
    a(f"v_cvt_pk_bf16_f32 v{LG+2}, v{LG+2}, v{LG+3}")
    a(f"v_and_b32 v{LG+1}, 0xffff0000, v{LG}")
    a(f"v_lshlrev_b32 v{LG}, 16, v{LG}")
    a(f"v_and_b32 v{LG+3}, 0xffff0000, v{LG+2}")
    a(f"v_lshlrev_b32 v{LG+2}, 16, v{LG+2}")
    for i in range(4):
        a(f"v_cmp_le_i32 vcc, {2*i}, v{vT+14}")
        a("s_nop 1")
        a(f"v_cndmask_b32 v{LG+i}, v{vT+15}, v{LG+i}, vcc")
    a("s_nop 1")
    for i in range(4):
        a(f"v_mov_b32_dpp v{LX+i}, v{LG+i} quad_perm:[1,0,3,2] row_mask:0xf bank_mask:0xf")
    M_, SUM = vT+13, vT+14
    a(f"v_max3_f32 v{M_}, v{LG}, v{LG+1}, v{LG+2}")
    a(f"v_max3_f32 v{M_}, v{M_}, v{LG+3}, v{LX}")
    a(f"v_max3_f32 v{M_}, v{M_}, v{LX+1}, v{LX+2}")
    a(f"v_max_f32 v{M_}, v{M_}, v{LX+3}")
    a(f"s_mov_b32 s{sT+3}, {f32(math.log2(math.e))}")
    for w in range(8):
        a(f"v_sub_f32 v{LG+w}, v{LG+w}, v{M_}")
    for w in range(8):
        a(f"v_mul_f32 v{LG+w}, s{sT+3}, v{LG+w}")
    for w in range(8):
        a(f"v_exp_f32 v{LG+w}, v{LG+w}")
    a("s_nop 0")
    a(f"v_add_f32 v{SUM}, v{LG}, v{LX}")
    a(f"v_add_f32 v{M_}, v{LG+1}, v{LX+1}")
    a(f"v_add_f32 v{vT+15}, v{LG+2}, v{LX+2}")
    a(f"v_add_f32 v{vT+16}, v{LG+3}, v{LX+3}")
    a(f"v_add_f32 v{SUM}, v{SUM}, v{M_}")
    a(f"v_add_f32 v{vT+15}, v{vT+15}, v{vT+16}")
    a(f"v_add_f32 v{SUM}, v{SUM}, v{vT+15}")
    a(f"v_rcp_f32 v{SUM}, v{SUM}")
    a("s_nop 0")
    for w in range(8):
        a(f"v_mul_f32 v{LG+w}, v{LG+w}, v{SUM}")
    for wp in range(4):
        a(f"v_cvt_pk_bf16_f32 v{LG+wp}, v{LG+2*wp}, v{LG+2*wp+1}")
    if "astamp" in OPT: stamp(a, 3)
    a(f"s_mov_b32 s{sT+4}, 0x05040100")
    a(f"s_mov_b32 s{sT+5}, 0x07060302")
    a("s_waitcnt lgkmcnt(0)")
    for wp in range(4):
        base = (VO if wp < 2 else VX) + (wp % 2) * 16
        for d_ in range(5):
            x0 = base + d_; x1 = base + 8 + d_
            t = vT + 13 + (d_ % 2) * 2
            a(f"v_perm_b32 v{t}, v{x1}, v{x0}, s{sT+4}")
            a(f"v_perm_b32 v{t+1}, v{x1}, v{x0}, s{sT+5}")
            a(f"v_dot2_f32_bf16 v{OA+2*d_}, v{t}, v{LG+wp}, " + ("0" if wp == 0 else f"v{OA+2*d_}"))
            a(f"v_dot2_f32_bf16 v{OA+2*d_+1}, v{t+1}, v{LG+wp}, " + ("0" if wp == 0 else f"v{OA+2*d_+1}"))
    a("s_nop 2")
    for d_ in range(5):
        a(f"v_cvt_pk_bf16_f32 v{QR+d_}, v{OA+2*d_}, v{OA+2*d_+1}")
    OB = 65536; OP = 160
    a(f"v_lshrrev_b32 v{vT+13}, 3, v3")
    a(f"v_mul_u32_u24 v{vT+13}, {OP}, v{vT+13}")
    a(f"v_mad_u32_u24 v{vT+13}, v{vHd}, 36, v{vT+13}")
    a(f"v_lshl_add_u32 v{vT+13}, v{vHf}, 4, v{vT+13}")
    a(f"v_add_u32 v{vT+13}, {OB}, v{vT+13}")
    a(f"ds_write2_b32 v{vT+13}, v{QR}, v{QR+1} offset0:0 offset1:1")
    a(f"ds_write2_b32 v{vT+13}, v{QR+2}, v{QR+3} offset0:2 offset1:3")
    a(f"ds_write_b32 v{vT+13}, v{QR+4} offset:16")
    a(f"s_lshl_b32 s{sT}, s{sWave}, 2")
    a(f"v_lshrrev_b32 v{vT+14}, 4, v0")
    a(f"v_add_u32 v{vT+14}, s{sT}, v{vT+14}")
    a(f"s_mul_i32 s{sT+1}, s{sHg}, 9")
    a(f"s_lshl_b32 s{sT+2}, s{sRb}, 2")
    a(f"s_mul_i32 s{sT+2}, s{sT+2}, 18432")
    def piece_addr(vp, vl, vg):
        a(f"v_mul_u32_u24 v{vT+15}, 7282, v{vp}")
        a(f"v_lshrrev_b32 v{vT+15}, 16, v{vT+15}")
        a(f"v_mul_u32_u24 v{vT+16}, 9, v{vT+15}")
        a(f"v_sub_u32 v{vT+16}, v{vp}, v{vT+16}")
        a(f"v_and_b32 v{vT+17}, 15, v0")
        a(f"v_lshl_add_u32 v{vl}, v{vT+15}, 4, v{vT+17}")
        a(f"v_mul_u32_u24 v{vl}, {OP}, v{vl}")
        a(f"v_lshl_add_u32 v{vl}, v{vT+16}, 4, v{vl}")
        a(f"v_add_u32 v{vl}, {OB}, v{vl}")
        a(f"v_add_u32 v{vT+16}, s{sT+1}, v{vT+16}")
        a(f"v_mul_u32_u24 v{vg}, 18432, v{vT+15}")
        a(f"v_lshl_add_u32 v{vg}, v{vT+16}, 8, v{vg}")
        a(f"v_lshl_add_u32 v{vg}, v{vT+17}, 4, v{vg}")
    piece_addr(vT+14, vT+4, vT+5)
    a(f"v_add_u32 v{vT+14}, 32, v{vT+14}")
    piece_addr(vT+14, vT+6, vT+7)
    a("s_waitcnt lgkmcnt(0)")
    a("s_barrier")
    a(f"ds_read_b128 {vr(QR,4)}, v{vT+4}")
    a(f"ds_read_b128 {vr(QR+4,4)}, v{vT+6}")
    a("s_waitcnt lgkmcnt(1)")
    a(f"buffer_store_dwordx4 {vr(QR,4)}, v{vT+5}, {sr(sO,4)}, s{sT+2} offen")
    a(f"s_cmp_lg_u32 s{sWave}, 0")
    a(f"s_cbranch_scc1 L_{name}_nost2")
    a("s_waitcnt lgkmcnt(0)")
    a(f"buffer_store_dwordx4 {vr(QR+4,4)}, v{vT+7}, {sr(sO,4)}, s{sT+2} offen")
    a.lab(f"L_{name}_nost2")
    if "astamp" in OPT: stamp(a, 4)
    if "stamp" in OPT: a("s_waitcnt vmcnt(0)")
    stamp(a, 6, True)
    stamp_dump(a, 7, 8, sWave, vT+8, 3)
    a.lab(f"L_{name}_done")
    a("s_endpgm")
    return a.text(), kernel_desc(name, NV, 96), f"; @launch kernel={name} grid=(256,1,1) block=(512,1,1) lds={WB + NST*STG}"


PB_OFF = HH_OFF
PB_SZ = 16*2048*576*2
def gen_k34(name="k3_kernel"):
    a = A(); a.stpol = os.environ.get("K34ST", "sc1")
    vm = VM(a)
    kernel_head(a, name)
    NST = 6; STG = 18560; UP = 9248
    XB = NST*STG
    HB = 4*STG
    LDS = HB + 73728
    assert XB + 3*8192 <= LDS
    RING = 6; PF = RING - 1
    ACC = 4; WR = 148; XF = 172
    XR = 180
    vWa, vWb = 196, 197
    vD = 198
    vD2 = 201
    vX0, vXw, vXr = 204, 205, 206
    vNM, vR = 207, 208
    vW2e, vW2o = 209, 210
    vHw, vHr, vA, vPo = 211, 212, 213, 214
    vT = 216
    NV = 232
    def acc(nt): return ACC + nt*16
    sWa, sWb_, sWc, sX, sST, sP, sWd = 12, 16, 20, 24, 28, 32, 36
    sWave, sFb, sMb = 40, 41, 42
    sWoff, sXoff = 43, 44
    sM0 = 45
    sT = 48
    sA_, sB_, sPb = 88, 89, 90
    a("s_cmp_ge_u32 s2, 256")
    a(f"s_cbranch_scc1 L_{name}_done")
    stamp(a, 0); stamp(a, 5, True)
    a("s_load_dwordx4 s[4:7], s[0:1], 32")
    a("s_load_dwordx2 s[10:11], s[0:1], 48")
    a("s_load_dwordx2 s[8:9], s[0:1], 72")
    a("v_lshrrev_b32 v1, 6, v0")
    a("v_and_b32 v0, 63, v0")
    a("s_nop 0")
    a(f"v_readfirstlane_b32 s{sWave}, v1")
    a(f"s_and_b32 s{sT}, s2, 7")
    a(f"s_lshr_b32 s{sT+1}, s2, 3")
    a(f"s_and_b32 s{sFb}, s{sT+1}, 1")
    a(f"s_lshl_b32 s{sT}, s{sT}, 1")
    a(f"s_add_u32 s{sFb}, s{sFb}, s{sT}")
    a(f"s_lshr_b32 s{sMb}, s{sT+1}, 1")
    a(f"s_lshl_b32 s{sT}, s{sWave}, 6")
    a(f"s_sub_u32 s{sT+1}, s{sT}, 64")
    a(f"s_cmp_eq_u32 s{sWave}, 0")
    a(f"s_cselect_b32 s{sT+1}, 512, s{sT+1}")
    a(f"s_cselect_b32 s{sT+3}, 0, 32")
    a(f"s_add_u32 s{sT+2}, s{sT}, 448")
    a(f"s_lshl_b32 s{sM0}, s{sWave}, 10")
    a(f"s_add_u32 s{sM0+1}, s{sM0}, 8192")
    a(f"s_add_u32 s{sM0+1}, s{sM0+1}, s{sT+3}")
    a(f"s_add_u32 s{sM0+2}, s{sM0}, {16384+32}")
    a(f"s_mul_i32 s{sT+4}, s{sFb}, 576")
    for k in range(3):
        a(f"v_add_u32 v{vT+1}, s{sT+k}, v0")
        a(f"v_mul_u32_u24 v{vT+2}, 1821, v{vT+1}")
        a(f"v_lshrrev_b32 v{vT+2}, 16, v{vT+2}")
        a(f"v_mul_u32_u24 v{vT+3}, 36, v{vT+2}")
        a(f"v_sub_u32 v{vT+3}, v{vT+1}, v{vT+3}")
        a(f"v_and_b32 v{vT+4}, 8, v{vT+2}")
        a(f"v_add_u32 v{vT+2}, v{vT+2}, v{vT+4}")
        a(f"v_mul_u32_u24 v{vT+2}, 9216, v{vT+2}")
        a(f"v_lshl_add_u32 v{vT+2}, v{vT+3}, 4, v{vT+2}")
        a(f"v_add_u32 v{vD+k}, s{sT+4}, v{vT+2}")
    for k, add in enumerate((0, 512, 1024)):
        a(f"v_add_u32 v{vT+1}, s{sT}, v0")
        if add: a(f"v_add_u32 v{vT+1}, {add}, v{vT+1}")
        a(f"v_mul_u32_u24 v{vT+2}, 911, v{vT+1}")
        a(f"v_lshrrev_b32 v{vT+2}, 16, v{vT+2}")
        a(f"v_mul_u32_u24 v{vT+3}, 72, v{vT+2}")
        a(f"v_sub_u32 v{vT+3}, v{vT+1}, v{vT+3}")
        a(f"v_and_b32 v{vT+4}, 2, v{vT+2}")
        a(f"v_lshlrev_b32 v{vT+4}, 1, v{vT+4}")
        a(f"v_xor_b32 v{vT+3}, v{vT+3}, v{vT+4}")
        a(f"v_mul_u32_u24 v{vT+2}, 1152, v{vT+2}")
        a(f"v_lshl_add_u32 v{vD2+k}, v{vT+3}, 4, v{vT+2}")
    a(f"s_lshl_b32 s{sT}, s{sMb}, 3")
    a(f"s_add_u32 s{sT}, s{sT}, s{sWave}")
    a(f"s_mul_i32 s{sT+1}, s{sT}, 18432")
    a(f"v_lshlrev_b32 v{vT}, 4, v0")
    a(f"v_add_u32 v{vX0}, s{sT+1}, v{vT}")
    a(f"s_lshl_b32 s{sT+1}, s{sWave}, 10")
    a(f"s_add_u32 s{sT+1}, s{sT+1}, {XB}")
    a(f"v_add_u32 v{vXw}, s{sT+1}, v{vT}")
    a(f"s_lshl_b32 s{sT}, s{sT}, 4")
    a(f"v_and_b32 v{vT+4}, 15, v0")
    a(f"v_add_u32 v{vT+4}, s{sT}, v{vT+4}")
    a(f"v_mul_u32_u24 v{vT+4}, 48, v{vT+4}")
    a(f"s_and_b32 s{sT}, s{sWave}, 3")
    a(f"s_lshr_b32 s{sT+1}, s{sWave}, 2")
    a(f"v_bfe_u32 v{vT}, v0, 4, 1")
    a(f"v_lshlrev_b32 v{vT}, 10, v{vT}")
    a(f"v_lshrrev_b32 v{vT+1}, 5, v0")
    a(f"v_lshl_add_u32 v{vT}, v{vT+1}, 8, v{vT}")
    a(f"v_and_b32 v{vT+1}, 15, v0")
    a(f"v_lshl_add_u32 v{vT}, v{vT+1}, 4, v{vT}")
    a(f"s_lshl_b32 s{sT+2}, s{sT}, 11")
    a(f"s_add_u32 s{sT+2}, s{sT+2}, {XB}")
    a(f"v_add_u32 v{vXr}, s{sT+2}, v{vT}")
    a(f"v_bfe_u32 v{vT}, v0, 4, 1")
    a(f"v_mul_u32_u24 v{vT}, {UP}, v{vT}")
    a(f"v_lshrrev_b32 v{vT+1}, 5, v0")
    a(f"v_bfe_u32 v{vT+2}, v0, 2, 2")
    a(f"v_lshl_add_u32 v{vT+1}, v{vT+1}, 2, v{vT+2}")
    a(f"v_mul_u32_u24 v{vT+3}, 576, v{vT+1}")
    a(f"v_add_u32 v{vT}, v{vT}, v{vT+3}")
    a(f"v_and_b32 v{vT+3}, 3, v0")
    a(f"v_lshl_add_u32 v{vT}, v{vT+3}, 3, v{vT}")
    a(f"s_mul_i32 s{sT+2}, s{sT+1}, 288")
    a(f"v_add_u32 v{vWa}, s{sT+2}, v{vT}")
    a(f"v_add_u32 v{vWb}, {3*STG}, v{vWa}")
    a(f"v_mul_u32_u24 v{vT}, 1152, v{vT+1}")
    a(f"v_bfe_u32 v{vT+4+1}, v0, 4, 1")
    a(f"v_lshl_add_u32 v{vT}, v{vT+5}, 5, v{vT}")
    a(f"v_lshl_add_u32 v{vT}, v{vT+3}, 3, v{vT}")
    a(f"v_bfe_u32 v{vT+5}, v0, 3, 1")
    a(f"v_lshlrev_b32 v{vT+5}, 6, v{vT+5}")
    a(f"v_add_u32 v{vW2e}, v{vT}, v{vT+5}")
    a(f"v_sub_u32 v{vW2o}, v{vT}, v{vT+5}")
    a(f"v_lshlrev_b32 v{vT}, 4, v0")
    a(f"s_lshl_b32 s{sT+2}, s{sT}, 10")
    a(f"s_add_u32 s{sT+2}, s{sT+2}, {HB}")
    a(f"v_add_u32 v{vHr}, s{sT+2}, v{vT}")
    a(f"s_mul_i32 s{sT+3}, s{sT+1}, {9*4096}")
    a(f"v_add_u32 v{vHw}, s{sT+3}, v{vHr}")
    a(f"s_lshl_b32 s{sPb}, s{sFb}, 6")
    a(f"s_lshl_b32 s{sT+2}, s{sMb}, 2")
    a(f"s_add_u32 s{sPb}, s{sPb}, s{sT+2}")
    a(f"s_add_u32 s{sPb}, s{sPb}, s{sT}")
    a(f"s_mul_i32 s{sPb}, s{sPb}, 18")
    a(f"s_mul_i32 s{sT+2}, s{sT+1}, 9")
    a(f"s_add_u32 s{sPb}, s{sPb}, s{sT+2}")
    a(f"s_lshl_b32 s{sPb}, s{sPb}, 11")
    a(f"v_mov_b32 v{vPo}, v{vT}")
    a(f"s_mov_b32 s{sA_}, {f32(GELU_A)}")
    a(f"s_mov_b32 s{sB_}, {f32(GELU_B)}")
    a(f"v_mov_b32 v{vA}, s{sA_}")
    a(f"s_mov_b32 s91, s{sT+1}")
    a("s_waitcnt lgkmcnt(0)")
    srd(a, sWa, 4, 576*4608*2)
    srd(a, sWc, 6, 576*4608*2)
    a(f"s_cmp_eq_u32 s{sWave}, 0")
    a(f"s_cselect_b32 s{sT}, s4, s6")
    a(f"s_cselect_b32 s{sT+1}, s5, s7")
    srd(a, sWb_, sT, 576*4608*2)
    srd(a, sX, 8, H1_SZ, H1_OFF)
    srd(a, sST, 8, ST_SZ, ST_OFF)
    srd(a, sP, 8, PB_SZ, PB_OFF)
    srd(a, sWd, 10, 4608*576*2)
    for q in range(3):
        vm.op(("S", 0), f"buffer_load_dwordx4 {vr(WR+q*4,4)}, v{vT+4}, {sr(sST,4)}, 0 offen offset:{q*16}")
    a(f"s_mul_i32 s92, s{sFb}, {288*1152}")
    srds = (sWa, sWb_, sWc)
    lab = [0]
    def w1_groups(i):
        if i >= 36: return []
        st = i % NST
        ks, half = divmod(i, 2)
        lab[0] += 1
        L = f"L_{name}_sk{lab[0]}"
        g0 = [("s", f"s_mov_b32 s{sWoff}, {(ks*32 + half*8)*9216}"),
              ("s", f"s_cmp_ge_u32 s{sWave}, 2"), ("s", f"s_cbranch_scc1 {L}"),
              ("s", f"s_add_u32 m0, s{sM0+2}, {st*STG}"), ("s", "s_nop 0"),
              ("s", f"buffer_load_dwordx4 v{vD+2}, {sr(srds[2],4)}, s{sWoff} offen lds"), ("l", L),
              ("s", f"s_add_u32 m0, s{sM0}, {st*STG}"), ("s", "s_nop 0"),
              (("W", i), f"buffer_load_dwordx4 v{vD}, {sr(srds[0],4)}, s{sWoff} offen lds")]
        g1 = [("s", f"s_add_u32 m0, s{sM0+1}, {st*STG}"), ("s", "s_nop 0"),
              (("W", i), f"buffer_load_dwordx4 v{vD+1}, {sr(srds[1],4)}, s{sWoff} offen lds")]
        return [g0, g1]
    def w2_groups(t):
        if t >= 18: return []
        st = t % 4
        lab[0] += 1
        L = f"L_{name}_sk{lab[0]}"
        g0 = [("s", f"s_add_u32 s{sWoff}, s92, {t*16*1152}"),
              ("s", f"s_cmp_ge_u32 s{sWave}, 2"), ("s", f"s_cbranch_scc1 {L}"),
              ("s", f"s_add_u32 m0, s{sM0}, {st*STG + 16384}"), ("s", "s_nop 0"),
              ("s", f"buffer_load_dwordx4 v{vD2+2}, {sr(sWd,4)}, s{sWoff} offen lds"), ("l", L),
              ("s", f"s_add_u32 m0, s{sM0}, {st*STG}"), ("s", "s_nop 0"),
              (("W", 36+t), f"buffer_load_dwordx4 v{vD2}, {sr(sWd,4)}, s{sWoff} offen lds")]
        g1 = [("s", f"s_add_u32 m0, s{sM0}, {st*STG + 8192}"), ("s", "s_nop 0"),
              (("W", 36+t), f"buffer_load_dwordx4 v{vD2+1}, {sr(sWd,4)}, s{sWoff} offen lds")]
        return [g0, g1]
    def x_group(ks):
        if ks >= 18: return []
        return [[("s", f"s_mov_b32 s{sXoff}, {ks*1024}"),
                 (("X", ks), f"buffer_load_dwordx4 {vr(XR+(ks%4)*4,4)}, v{vX0}, {sr(sX,4)}, s{sXoff} offen")]]
    def emit_group(g):
        for tg, txt in g:
            if tg == "s": a(txt)
            elif tg == "l": a.lab(txt)
            else: vm.op(tg, txt)
    def norm_ops(ks):
        if ks >= 18: return []
        chains = []
        for d in range(4):
            x = XR + (ks % 4)*4 + d
            t0 = vT + 8 + d*2; t1 = t0 + 1
            chains.append([f"v_lshlrev_b32 v{t0}, 16, v{x}", f"v_and_b32 v{t1}, 0xffff0000, v{x}",
                           f"v_fma_f32 v{t0}, v{t0}, v{vR}, v{vNM}", f"v_fma_f32 v{t1}, v{t1}, v{vR}, v{vNM}",
                           f"v_cvt_pk_bf16_f32 v{x}, v{t0}, v{t1}"])
        ops = [("w", ks)]
        for stage in ((0, 1), (2, 3), (4,)):
            for c in chains:
                for j in stage: ops.append(c[j])
        ops.append(f"ds_write_b128 v{vXw}, {vr(XR+(ks%4)*4,4)} offset:{(ks%3)*8192}")
        return ops
    def emit_op(op):
        if isinstance(op, tuple): vm.wait(lambda t: t[0] == "X" and t[1] <= op[1])
        else: a(op)
    for g in x_group(0) + w1_groups(0) + w1_groups(1) + x_group(1) + w1_groups(2): emit_group(g)
    vm.wait(lambda t: t[0] == "S")
    b = WR
    a(f"v_add_f32 v{vT}, v{b}, v{b+2}")
    a(f"v_add_f32 v{vT+1}, v{b+4}, v{b+6}")
    a(f"v_add_f32 v{vT+2}, v{b+8}, v{b+10}")
    a(f"v_add_f32 v{vT}, v{vT}, v{vT+1}")
    a(f"v_add_f32 v{vT}, v{vT}, v{vT+2}")
    a(f"v_mul_f32 v{vT}, {f32(1.0/6.0)}, v{vT}")
    a(f"v_add_f32 v{vT+1}, v{b+1}, v{b+3}")
    a(f"v_add_f32 v{vT+2}, v{b+5}, v{b+7}")
    a(f"v_add_f32 v{vT+3}, v{b+9}, v{b+11}")
    a(f"v_add_f32 v{vT+1}, v{vT+1}, v{vT+2}")
    a(f"v_add_f32 v{vT+1}, v{vT+1}, v{vT+3}")
    a(f"v_mov_b32 v{vT+2}, 0")
    for t in range(6):
        a(f"v_sub_f32 v{vT+3}, v{b+2*t}, v{vT}")
        a(f"v_fmac_f32 v{vT+2}, v{vT+3}, v{vT+3}")
    a(f"v_fmac_f32 v{vT+1}, {f32(96.0)}, v{vT+2}")
    a(f"v_mul_f32 v{vT+1}, {f32(1.0/576.0)}, v{vT+1}")
    round_bf16(a, vNM, vT)
    round_bf16(a, vT+1, vT+1)
    a(f"v_add_f32 v{vT+1}, {f32(1e-5)}, v{vT+1}")
    round_bf16(a, vT+1, vT+1)
    a(f"v_sqrt_f32 v{vT+1}, v{vT+1}")
    a("s_nop 0")
    round_bf16(a, vT+1, vT+1)
    a(f"v_rcp_f32 v{vR}, v{vT+1}")
    a("s_nop 0")
    a(f"v_mul_f32 v{vNM}, v{vNM}, v{vR}")
    a(f"v_sub_f32 v{vNM}, 0, v{vNM}")
    for op in norm_ops(0): emit_op(op)
    vm.wait(lambda t: t[0] == "W" and t[1] <= 1)
    a("s_waitcnt lgkmcnt(0)")
    a("s_barrier")
    lds = []
    def lds_issue(tag, txt):
        a(txt); lds.append(tag)
    def lds_wait(pred):
        last = -1
        for i_, t in enumerate(lds):
            if pred(t): last = i_
        if last >= 0:
            n = len(lds) - 1 - last
            assert n <= 15, n
            a(f"s_waitcnt lgkmcnt({n})")
            del lds[:last+1]
    def wread1(g):
        i, nt = divmod(g, 9)
        if i >= 36: return
        st = i % NST; slot = g % RING
        base = vWa if st < 3 else vWb
        off = (st % 3)*STG + nt*32
        if nt == 0:
            ks, half = divmod(i, 2)
            lds_issue(("x", i), f"ds_read_b128 {vr(XF+(i%2)*4,4)}, v{vXr} offset:{(ks%3)*8192 + half*512}")
        lds_issue(("w", g), f"ds_read_b64_tr_b16 {vr(WR+slot*4,2)}, v{base} offset:{off}")
        lds_issue(("w", g), f"ds_read_b64_tr_b16 {vr(WR+slot*4+2,2)}, v{base} offset:{off+8*576}")
    for f in range(PF): wread1(f)
    sched = {0: [3, 4], 1: [5, 6]}
    for i in range(36):
        ks, half = divmod(i, 2)
        lg = []
        for j in sched.get(i, [i + 5]): lg += w1_groups(j)
        if 31 <= i <= 34: lg += w2_groups(i - 31)
        if half == 0: lg += x_group(ks + 2)
        nops = norm_ops(ks + 1) if half == 0 else []
        gi = ni = 0
        gpos = [(k_*8)//max(1, len(lg)) for k_ in range(len(lg))]
        for nt in range(9):
            g = i*9 + nt; slot = g % RING
            wread1(g + PF)
            lds_wait(lambda t: (t[0] == "w" and t[1] <= g) or (t[0] == "x" and t[1] <= i))
            a(f"v_mfma_f32_32x32x16_bf16 {vr(acc(nt),16)}, {vr(WR+slot*4,4)}, {vr(XF+(i%2)*4,4)}, " + ("0" if i == 0 else vr(acc(nt),16)))
            while gi < len(lg) and gpos[gi] <= nt:
                emit_group(lg[gi]); gi += 1
            if nt >= 2:
                for _ in range(4):
                    if ni < len(nops):
                        op = nops[ni]; ni += 1
                        if isinstance(op, str) and op.startswith("ds_write"): lds_issue(("xw", ks), op)
                        else: emit_op(op)
        assert gi == len(lg) and ni == len(nops)
        if i < 35:
            vm.wait(lambda t: t[0] == "W" and t[1] <= i + 2)
            lds_wait(lambda t: t[0] == "xw")
            a("s_barrier")
    stamp(a, 1)
    a("s_waitcnt lgkmcnt(0)"); del lds[:]
    a("s_barrier")
    a("s_nop 7")
    ET = vT + 8
    for nt in range(9):
        o = WR + (nt % 2)*4
        for hh in range(2):
            lines = [[], []]
            for c in range(2):
                p = hh*2 + c
                x0, x1 = acc(nt) + 2*p, acc(nt) + 2*p + 1
                y0, y1 = x0 + 8, x1 + 8
                t0, t1 = ET + c*2, ET + c*2 + 1
                lines[c] = [f"v_mul_f32 v{t0}, v{x0}, v{x0}", f"v_mul_f32 v{t1}, v{x1}, v{x1}",
                      f"v_fma_f32 v{t0}, v{t0}, s{sB_}, v{vA}", f"v_fma_f32 v{t1}, v{t1}, s{sB_}, v{vA}",
                      f"v_mul_f32 v{t0}, v{t0}, v{x0}", f"v_mul_f32 v{t1}, v{t1}, v{x1}",
                      f"v_exp_f32 v{t0}, v{t0}", f"v_exp_f32 v{t1}, v{t1}",
                      f"v_mul_f32 v{y0}, v{y0}, v{x0}", f"v_mul_f32 v{y1}, v{y1}, v{x1}",
                      f"v_add_f32 v{t0}, 1.0, v{t0}", f"v_add_f32 v{t1}, 1.0, v{t1}",
                      f"v_rcp_f32 v{t0}, v{t0}", f"v_rcp_f32 v{t1}, v{t1}",
                      f"v_mul_f32 v{t0}, v{t0}, v{y0}", f"v_mul_f32 v{t1}, v{t1}, v{y1}",
                      f"v_cvt_pk_bf16_f32 v{o+p}, v{t0}, v{t1}"]
            i0 = i1 = 0
            while i0 < len(lines[0]) or i1 < len(lines[1]):
                for _ in range(2):
                    if i0 < len(lines[0]): a(lines[0][i0]); i0 += 1
                for _ in range(2):
                    if i1 < len(lines[1]): a(lines[1][i1]); i1 += 1
        a(f"ds_write_b128 v{vHw}, {vr(o,4)} offset:{nt*4096}")
    vm.wait(lambda t: t[0] == "W" and t[1] <= 37)
    a("s_waitcnt lgkmcnt(0)")
    a("s_barrier")
    stamp(a, 2)
    a("s_cmp_eq_u32 s91, 0")
    a(f"s_cbranch_scc1 L_{name}_noswap")
    a(f"v_mov_b32 v{vT}, v{vW2e}")
    a(f"v_add_u32 v{vW2e}, 576, v{vW2o}")
    a(f"v_add_u32 v{vW2o}, 576, v{vT}")
    a.lab(f"L_{name}_noswap")
    a(f"v_add_u32 v{vT+1}, 65536, v{vHr}")
    def wread2(g):
        t, nt = divmod(g, 9)
        if t >= 18: return
        st = t % 4; slot = g % RING
        base = vW2e if nt % 2 == 0 else vW2o
        off = st*STG + nt*64
        if nt == 0:
            if t*4096 < 65536 - 0:
                lds_issue(("x", t), f"ds_read_b128 {vr(XF+(t%2)*4,4)}, v{vHr} offset:{t*4096}")
            else:
                lds_issue(("x", t), f"ds_read_b128 {vr(XF+(t%2)*4,4)}, v{vT+1} offset:{t*4096-65536}")
        lds_issue(("w", g), f"ds_read_b64_tr_b16 {vr(WR+slot*4,2)}, v{base} offset:{off}")
        lds_issue(("w", g), f"ds_read_b64_tr_b16 {vr(WR+slot*4+2,2)}, v{base} offset:{off+8*1152}")
    for f in range(PF): wread2(f)
    for t in range(18):
        lg = w2_groups(t + 3) if t >= 1 else []
        gi = 0
        for nt in range(9):
            g = t*9 + nt; slot = g % RING
            wread2(g + PF)
            lds_wait(lambda tg: (tg[0] == "w" and tg[1] <= g) or (tg[0] == "x" and tg[1] <= t))
            a(f"v_mfma_f32_32x32x16_bf16 {vr(acc(nt),16)}, {vr(WR+slot*4,4)}, {vr(XF+(t%2)*4,4)}, " + ("0" if t == 0 else vr(acc(nt),16)))
            if nt in (1, 4) and gi < len(lg):
                emit_group(lg[gi]); gi += 1
        assert gi == len(lg)
        if t < 17:
            vm.wait(lambda tg: tg[0] == "W" and tg[1] <= 36 + t + 2)
            a("s_barrier")
    stamp(a, 3)
    a("s_nop 7"); a("s_nop 7")
    for nt in range(9):
        o = WR + (nt % 3)*8
        for p in range(8):
            a(f"v_cvt_pk_bf16_f32 v{o+p}, v{acc(nt)+2*p}, v{acc(nt)+2*p+1}")
        if nt % 2 == 0 and nt: a(f"s_add_u32 s{sPb}, s{sPb}, 4096")
        a(f"buffer_store_dwordx4 {vr(o,4)}, v{vPo}, {sr(sP,4)}, s{sPb} offen offset:{(nt%2)*2048}")
        a(f"buffer_store_dwordx4 {vr(o+4,4)}, v{vPo}, {sr(sP,4)}, s{sPb} offen offset:{(nt%2)*2048+1024}")
    if "stamp" in OPT: a("s_waitcnt vmcnt(0)")
    stamp(a, 4); stamp(a, 6, True)
    stamp_dump(a, 7, 8, sWave, vT+4)
    a.lab(f"L_{name}_done")
    a("s_endpgm")
    return a.text(), kernel_desc(name, NV), f"; @launch kernel={name} grid=(256,1,1) block=(512,1,1) lds={LDS}"

def gen_k5b(name="k5_kernel"):
    a = A()
    kernel_head(a, name)
    sH, sP, sO = 12, 16, 20
    a("s_cmp_ge_u32 s2, 576")
    a(f"s_cbranch_scc1 L_{name}_done")
    a("s_load_dwordx2 s[4:5], s[0:1], 56")
    a("s_load_dwordx2 s[8:9], s[0:1], 72")
    a("v_lshrrev_b32 v1, 6, v0")
    a("v_and_b32 v0, 63, v0")
    a("s_nop 0")
    a("v_readfirstlane_b32 s28, v1")
    a("s_lshl_b32 s29, s2, 2")
    a("s_add_u32 s29, s29, s28")
    a("s_and_b32 s36, s29, 1")
    a("s_lshr_b32 s37, s29, 1")
    a("s_mul_i32 s30, s37, 3641")
    a("s_lshr_b32 s30, s30, 16")
    a("s_mul_i32 s31, s30, 18")
    a("s_sub_u32 s31, s37, s31")
    a("s_waitcnt lgkmcnt(0)")
    srd(a, sH, 8, H1_SZ, H1_OFF)
    srd(a, sP, 8, PB_SZ, PB_OFF)
    srd(a, sO, 4, 2048*576*2)
    a("v_lshlrev_b32 v1, 4, v0")
    a("s_lshl_b32 s33, s29, 10")
    PR = 16
    for k in range(16):
        a(f"buffer_load_dwordx4 v[{PR+k*4}:{PR+3+k*4}], v1, {sr(sP,4)}, s33 offen")
        if k < 15: a(f"s_add_u32 s33, s33, {64*18*2048}")
    a("v_bfe_u32 v2, v0, 4, 1")
    a("v_mul_u32_u24 v2, 18432, v2")
    a("v_lshrrev_b32 v3, 5, v0")
    a("v_lshl_add_u32 v2, v3, 8, v2")
    a("v_and_b32 v4, 15, v0")
    a("v_lshl_add_u32 v2, v4, 4, v2")
    a("s_mul_i32 s34, s30, 36864")
    a("s_lshl_b32 s35, s31, 10")
    a("s_add_u32 s34, s34, s35")
    a("s_lshl_b32 s35, s36, 3")
    a("s_add_u32 s34, s34, s35")
    a(f"buffer_load_dwordx2 v[8:9], v2, {sr(sH,4)}, s34 offen")
    a(f"buffer_load_dwordx2 v[10:11], v2, {sr(sH,4)}, s34 offen offset:512")
    a("v_and_b32 v4, 31, v0")
    a("s_lshl_b32 s35, s30, 5")
    a("v_add_u32 v4, s35, v4")
    a("v_mul_u32_u24 v4, 1152, v4")
    a("v_lshl_add_u32 v4, v3, 3, v4")
    a("s_lshl_b32 s35, s31, 6")
    a("s_lshl_b32 s38, s36, 5")
    a("s_add_u32 s35, s35, s38")
    S = 84
    for k in range(16):
        a(f"s_waitcnt vmcnt({(15-k)+2})")
        for d in range(4):
            x = PR + k*4 + d
            if k == 0:
                a(f"v_lshlrev_b32 v{S+2*d}, 16, v{x}")
                a(f"v_and_b32 v{S+2*d+1}, 0xffff0000, v{x}")
            else:
                a(f"v_lshlrev_b32 v{92+d*2}, 16, v{x}")
                a(f"v_and_b32 v{93+d*2}, 0xffff0000, v{x}")
        if k:
            for d in range(8):
                a(f"v_add_f32 v{S+d}, v{S+d}, v{92+d}")
    a("s_waitcnt vmcnt(0)")
    for d in range(4):
        a(f"v_cvt_pk_bf16_f32 v92, v{S+2*d}, v{S+2*d+1}")
        a(f"v_lshlrev_b32 v93, 16, v92")
        a(f"v_and_b32 v94, 0xffff0000, v92")
        a(f"v_lshlrev_b32 v95, 16, v{8+d}")
        a(f"v_and_b32 v96, 0xffff0000, v{8+d}")
        a(f"v_add_f32 v93, v93, v95")
        a(f"v_add_f32 v94, v94, v96")
        a(f"v_cvt_pk_bf16_f32 v{PR+d}, v93, v94")
    for q in range(2):
        a(f"buffer_store_dwordx2 v[{PR+2*q}:{PR+2*q+1}], v4, {sr(sO,4)}, s35 offen offset:{q*16}")
    a.lab(f"L_{name}_done")
    a("s_endpgm")
    return a.text(), kernel_desc(name, 100, 48), f"; @launch kernel={name} grid=(576,1,1) block=(256,1,1) lds=0"

GENS = {"k34": gen_k34, "k5b": gen_k5b, "k45": gen_k45, "k2v2": gen_k2v2, "k1v3": gen_k1v3, "k1": gen_k1, "k2": gen_k2, "k3": gen_k3, "k4": gen_k4, "k5": gen_k5, "k3v2": gen_k3v2, "k3m": gen_k3m, "k4v2": gen_k4v2}


def build(which):
    heads, texts, descs = [], [], []
    for w in which:
        t, d, h = GENS[w]()
        heads.append(h); texts.append(t); descs.append(d)
    out = "; generated by dev/gen.py\n" + "\n".join(heads) + "\n"
    out += '.amdgcn_target "amdgcn-amd-amdhsa--gfx950"\n.text\n'
    out += "\n".join(texts)
    out += '.section .rodata,"a"\n'
    for d in descs:
        out += ".p2align 6\n" + d
    return out

if __name__ == "__main__":
    which = sys.argv[2].split(",")
    open(sys.argv[1], "w").write(build(which))
```

```python
import sys, struct, math, os
OPT = set(os.environ.get("GENOPT", "").split(","))

KN = "sequential_preLN__sliding_local_dilated__geglu_ffn__prompt"

O_OFF  = 0
O_SZ   = 2048*576*2
H1_OFF = O_OFF + O_SZ
H1_SZ  = 2048*576*2
ST_OFF = H1_OFF + H1_SZ
ST_SZ  = 2048*6*8
HH_OFF = ST_OFF + ST_SZ
HH_SZ  = 2048*4608*2
P_OFF  = HH_OFF + HH_SZ
P_SZ   = 4*2048*576*4

def f32(x):
    return struct.unpack("<I", struct.pack("<f", x))[0]

class A:
    def __init__(self):
        self.l = []
    def __call__(self, s):
        if "nomfma" in OPT and s.startswith("v_mfma"): return
        if s.startswith("buffer_store_dwordx4") and "s[80:83]" not in s:
            pol = getattr(self, "stpol", "")
            if pol: s += " " + pol
        if "nods" in OPT and s.startswith("ds_read_b64_tr"): return
        if "now" in OPT and s.startswith("buffer_load_dwordx4") and s.endswith("lds"): return
        if "nox" in OPT and s.startswith("buffer_load_dwordx4 v[") and "s[16:19]" in s: return
        self.l.append("    " + s)
    def lab(self, s):
        self.l.append(s + ":")
    def c(self, s):
        self.l.append("    ; " + s)
    def text(self):
        return "\n".join(self.l) + "\n"

def vr(b, n=1):
    return f"v{b}" if n == 1 else f"v[{b}:{b+n-1}]"
def sr(b, n=1):
    return f"s{b}" if n == 1 else f"s[{b}:{b+n-1}]"

def kernel_head(a, name):
    a.l.append(f".globl {name}")
    a.l.append(".p2align 8")
    a.l.append(f".type {name},@function")
    a.lab(name)

def kernel_desc(name, vgpr, sgpr=96, accum=None):
    if accum is None:
        accum = (vgpr + 3) // 4 * 4
    return f""".amdhsa_kernel {name}
  .amdhsa_next_free_vgpr {vgpr}
  .amdhsa_next_free_sgpr {sgpr}
  .amdhsa_accum_offset {accum}
  .amdhsa_group_segment_fixed_size 0
  .amdhsa_kernarg_size 80
  .amdhsa_user_sgpr_count 2
  .amdhsa_user_sgpr_kernarg_segment_ptr 1
  .amdhsa_system_sgpr_workgroup_id_x 1
.end_amdhsa_kernel
"""

def srd(a, d, base, size, off=0):
    if off:
        a(f"s_add_u32 s{d}, s{base}, {off}")
        a(f"s_addc_u32 s{d+1}, s{base+1}, 0")
    else:
        a(f"s_mov_b32 s{d}, s{base}")
        a(f"s_mov_b32 s{d+1}, s{base+1}")
    a(f"s_and_b32 s{d+1}, s{d+1}, 0xffff")
    a(f"s_mov_b32 s{d+2}, {size}")
    a(f"s_mov_b32 s{d+3}, 0x00020000")

def round_bf16(a, d, s, tmp=None):
    a(f"v_cvt_pk_bf16_f32 v{d}, v{s}, v{s}")
    a(f"v_lshlrev_b32 v{d}, 16, v{d}")

GELU_A = -2.0 * math.log2(math.e) * math.sqrt(2.0 / math.pi)
GELU_B = GELU_A * 0.044715

import os
OPT = set(os.environ.get("GENOPT", "").split(","))
def stamp(a, i, real=False):
    if "stamp" in OPT:
        a(f"s_mem{'real' if real else ''}time s[{60+2*i}:{61+2*i}]")
def stamp_dump(a, n, sWs, sWave, tmpv, region=0):
    if "stamp" in OPT:
        a("s_waitcnt lgkmcnt(0)")
        a("s_mov_b64 exec, -1")
        srd(a, 80, sWs, 1<<20, (200+region)<<20)
        a(f"s_lshl_b32 s84, s2, 4")
        a(f"s_add_u32 s84, s84, s{sWave}")
        a(f"s_lshl_b32 s84, s84, 6")
        a(f"v_mov_b32 v{tmpv}, s84")
        for i in range(n):
            a(f"v_mov_b32 v{tmpv+2}, s{60+2*i}")
            a(f"v_mov_b32 v{tmpv+3}, s{61+2*i}")
            a(f"buffer_store_dwordx2 v[{tmpv+2}:{tmpv+3}], v{tmpv}, s[80:83], 0 offen offset:{8*i}")
            a("s_nop 1")
def gen_k3(name="k3_kernel"):
    a = A()
    kernel_head(a, name)
    NST = 6
    STG = 18432
    RING = 6
    ACC = 0
    XS = 144
    WR = 192
    vWa = 216
    vWb = 217
    vD0, vD1, vD2 = 218, 219, 220
    vX0, vX1 = 221, 222
    vM0, vR0, vM1, vR1 = 223, 224, 225, 226
    vT = 228
    vLane = 244
    NV = 246
    def acc(nt, mat, mt):
        return ACC + ((nt * 2 + mat) * 2 + mt) * 4
    sW, sX, sST, sH = 12, 16, 20, 24
    sWave, sFb, sMb = 28, 29, 30
    sWoff, sXoff, sIt = 31, 32, 33
    sM0b = 34
    sT = 36
    sA_, sB_ = 48, 49
    sExec = 50
    sHb = 52

    a("s_cmp_ge_u32 s2, 256")
    a(f"s_cbranch_scc1 L_{name}_done")
    stamp(a, 0)
    stamp(a, 5, True)
    a("s_load_dwordx4 s[4:7], s[0:1], 32")
    a("s_load_dwordx2 s[8:9], s[0:1], 72")
    a("v_lshrrev_b32 v1, 6, v0")
    a("v_and_b32 v0, 63, v0")
    a("s_nop 0")
    a(f"v_readfirstlane_b32 s{sWave}, v1")
    a(f"s_and_b32 s{sT}, s2, 7")
    a(f"s_lshr_b32 s{sT+1}, s2, 3")
    a(f"s_and_b32 s{sFb}, s{sT+1}, 3")
    a(f"s_lshl_b32 s{sT}, s{sT}, 2")
    a(f"s_add_u32 s{sFb}, s{sFb}, s{sT}")
    a(f"s_lshr_b32 s{sMb}, s{sT+1}, 2")
    a("s_waitcnt lgkmcnt(0)")
    a(f"s_cmp_ge_u32 s{sWave}, 4")
    a(f"s_cselect_b32 s{sT}, s6, s4")
    a(f"s_cselect_b32 s{sT+1}, s7, s5")
    srd(a, sW, sT, 576*4608*2)
    srd(a, sX, 8, H1_SZ, H1_OFF)
    srd(a, sST, 8, ST_SZ, ST_OFF)
    srd(a, sH, 8, HH_SZ, HH_OFF)
    a(f"v_and_b32 v{vT}, 15, v0")
    a(f"s_lshl_b32 s{sT}, s{sMb}, 8")
    a(f"s_lshl_b32 s{sT+1}, s{sWave}, 5")
    a(f"s_add_u32 s{sT}, s{sT}, s{sT+1}")
    a(f"v_add_u32 v{vT}, s{sT}, v{vT}")
    a(f"v_mul_u32_u24 v{vT}, 48, v{vT}")
    for mt in range(2):
        for q in range(3):
            a(f"buffer_load_dwordx4 {vr(WR+mt*12+q*4,4)}, v{vT}, {sr(sST,4)}, 0 offen offset:{mt*768+q*16}")
    for t, vd in enumerate((vD0, vD1, vD2)):
        a(f"v_add_u32 v{vT+1}, {t*64}, v0")
        a(f"v_mul_u32_u24 v{vT+2}, 3641, v{vT+1}")
        a(f"v_lshrrev_b32 v{vT+2}, 16, v{vT+2}")
        a(f"v_mul_u32_u24 v{vT+3}, 18, v{vT+2}")
        a(f"v_sub_u32 v{vT+3}, v{vT+1}, v{vT+3}")
        a(f"v_mul_u32_u24 v{vT+2}, 9216, v{vT+2}")
        a(f"v_lshl_add_u32 v{vd}, v{vT+3}, 4, v{vT+2}")
    a(f"s_and_b32 s{sT}, s{sWave}, 3")
    a(f"s_mul_i32 s{sT+1}, s{sT}, {8*9216}")
    a(f"s_mul_i32 s{sT+2}, s{sFb}, 288")
    a(f"s_add_u32 s{sT+1}, s{sT+1}, s{sT+2}")
    for vd in (vD0, vD1, vD2):
        a(f"v_add_u32 v{vd}, s{sT+1}, v{vd}")
    a(f"s_mul_i32 s{sM0b}, s{sWave}, 2304")
    a(f"s_lshl_b32 s{sT}, s{sMb}, 4")
    a(f"s_lshl_b32 s{sT+1}, s{sWave}, 1")
    a(f"s_add_u32 s{sT}, s{sT}, s{sT+1}")
    a(f"s_mul_i32 s{sT+1}, s{sT}, 18432")
    a(f"v_lshlrev_b32 v{vX0}, 4, v0")
    a(f"v_add_u32 v{vX0}, s{sT+1}, v{vX0}")
    a(f"v_add_u32 v{vX1}, 18432, v{vX0}")
    a(f"s_mul_i32 s{sHb}, s{sT}, 144")
    a(f"s_lshr_b32 s{sT+1}, s{sFb}, 1")
    a(f"s_mul_i32 s{sT+1}, s{sT+1}, 9")
    a(f"s_add_u32 s{sHb}, s{sHb}, s{sT+1}")
    a(f"s_lshl_b32 s{sHb}, s{sHb}, 10")
    a(f"v_lshrrev_b32 v{vT+1}, 2, v0")
    a(f"v_mul_u32_u24 v{vT+1}, 288, v{vT+1}")
    a(f"v_and_b32 v{vT+2}, 3, v0")
    a(f"v_lshl_add_u32 v{vWa}, v{vT+2}, 3, v{vT+1}")
    a(f"v_add_u32 v{vWb}, {3*STG}, v{vWa}")
    sRot, sCnt = 54, 55
    if "rot" in OPT:
        a(f"s_mul_i32 s{sRot}, s{sMb}, 9")
        a(f"s_and_b32 s{sT}, s{sFb}, 3")
        a(f"s_mul_i32 s{sT}, s{sT}, 18")
        a(f"s_add_u32 s{sRot}, s{sRot}, s{sT}")
        a(f"s_lshr_b32 s{sRot}, s{sRot}, 2")
        a(f"s_sub_u32 s{sT}, s{sRot}, 18")
        a(f"s_cmp_ge_u32 s{sRot}, 18")
        a(f"s_cselect_b32 s{sRot}, s{sT}, s{sRot}")
    else:
        a(f"s_mov_b32 s{sRot}, 0")
    if "samew" in OPT:
        a(f"s_mov_b32 s{sRot}, 0")
    a(f"s_mov_b32 s{sCnt}, 0")
    a(f"s_mul_i32 s{sWoff}, s{sRot}, {32*9216}")
    a(f"s_lshl_b32 s{sXoff}, s{sRot}, 10")
    a(f"s_mov_b64 s[{sExec}:{sExec+1}], 0xffff")
    a(f"v_mov_b32 v{vLane}, v0")

    def load_groups(stage, xset):
        gs = []
        for t, vd in enumerate((vD0, vD1, vD2)):
            g = [f"s_add_u32 m0, s{sM0b}, {stage*STG + t*1024}"]
            if t == 2:
                g.append(f"s_mov_b64 exec, s[{sExec}:{sExec+1}]")
            else:
                g.append("s_nop 0")
            g.append(f"buffer_load_dwordx4 v{vd}, {sr(sW,4)}, s{sWoff} offen lds")
            if t == 2:
                g.append("s_mov_b64 exec, -1")
            gs.append(g)
        gs.append([f"buffer_load_dwordx4 {vr(XS+xset*8,4)}, v{vX0}, {sr(sX,4)}, s{sXoff} offen"])
        gs.append([f"buffer_load_dwordx4 {vr(XS+xset*8+4,4)}, v{vX1}, {sr(sX,4)}, s{sXoff} offen",
                   f"s_add_u32 s{sRot}, s{sRot}, 1",
                   f"s_cmp_eq_u32 s{sRot}, {4 if 'hot4' in OPT else 18}",
                   f"s_cselect_b32 s{sRot}, 0, s{sRot}",
                   f"s_add_u32 s{sCnt}, s{sCnt}, 1",
                   f"s_mul_i32 s{sWoff}, s{sRot}, {32*9216}",
                   f"s_lshl_b32 s{sXoff}, s{sRot}, 10",
                   f"s_cmp_ge_u32 s{sCnt}, 18",
                   f"s_cselect_b32 s{sWoff}, 0x7f000000, s{sWoff}",
                   f"s_cselect_b32 s{sXoff}, 0x7f000000, s{sXoff}"])
        return gs
    def issue_loads(stage, xset):
        for g in load_groups(stage, xset):
            for x in g: a(x)

    for s in range(5):
        issue_loads(s, s)
    a("s_waitcnt vmcnt(25)")
    for mt, (vM, vR) in enumerate(((vM0, vR0), (vM1, vR1))):
        b = WR + mt * 12
        a(f"v_add_f32 v{vT}, v{b}, v{b+2}")
        a(f"v_add_f32 v{vT+1}, v{b+4}, v{b+6}")
        a(f"v_add_f32 v{vT+2}, v{b+8}, v{b+10}")
        a(f"v_add_f32 v{vT}, v{vT}, v{vT+1}")
        a(f"v_add_f32 v{vT}, v{vT}, v{vT+2}")
        a(f"v_mul_f32 v{vT}, {f32(1.0/6.0)}, v{vT}")
        a(f"v_add_f32 v{vT+1}, v{b+1}, v{b+3}")
        a(f"v_add_f32 v{vT+2}, v{b+5}, v{b+7}")
        a(f"v_add_f32 v{vT+3}, v{b+9}, v{b+11}")
        a(f"v_add_f32 v{vT+1}, v{vT+1}, v{vT+2}")
        a(f"v_add_f32 v{vT+1}, v{vT+1}, v{vT+3}")
        a(f"v_mov_b32 v{vT+2}, 0")
        for t in range(6):
            a(f"v_sub_f32 v{vT+3}, v{b+2*t}, v{vT}")
            a(f"v_fmac_f32 v{vT+2}, v{vT+3}, v{vT+3}")
        a(f"v_fmac_f32 v{vT+1}, {f32(96.0)}, v{vT+2}")
        a(f"v_mul_f32 v{vT+1}, {f32(1.0/576.0)}, v{vT+1}")
        round_bf16(a, vM, vT)
        round_bf16(a, vT+1, vT+1)
        a(f"v_add_f32 v{vT+1}, {f32(1e-5)}, v{vT+1}")
        round_bf16(a, vT+1, vT+1)
        a(f"v_sqrt_f32 v{vT+1}, v{vT+1}")
        a("s_nop 0")
        round_bf16(a, vT+1, vT+1)
        a(f"v_rcp_f32 v{vR}, v{vT+1}")
    for i in range(0, 144, 2):
        a(f"v_mov_b64 {vr(ACC+i,2)}, 0")

    def norm_ops(xset):
        ops = []
        for mt, (vM, vR) in enumerate(((vM0, vR0), (vM1, vR1))):
            for d in range(4):
                x = XS + xset * 8 + mt * 4 + d
                t0 = vT + (d % 2) * 2
                t1 = t0 + 1
                ops.append(f"v_lshlrev_b32 v{t0}, 16, v{x}")
                ops.append(f"v_and_b32 v{t1}, 0xffff0000, v{x}")
                if "fastnorm" in OPT:
                    ops.append(f"v_sub_f32 v{t0}, v{t0}, v{vM}")
                    ops.append(f"v_sub_f32 v{t1}, v{t1}, v{vM}")
                    ops.append(f"v_cvt_pk_bf16_f32 v{x}, v{t0}, v{t1}")
                    continue
                ops.append(f"v_sub_f32 v{t0}, v{t0}, v{vM}")
                ops.append(f"v_sub_f32 v{t1}, v{t1}, v{vM}")
                ops.append(f"v_cvt_pk_bf16_f32 v{t0}, v{t0}, v{t1}")
                ops.append(f"v_and_b32 v{t1}, 0xffff0000, v{t0}")
                ops.append(f"v_lshlrev_b32 v{t0}, 16, v{t0}")
                ops.append(f"v_mul_f32 v{t0}, v{t0}, v{vR}")
                ops.append(f"v_mul_f32 v{t1}, v{t1}, v{vR}")
                ops.append(f"v_cvt_pk_bf16_f32 v{x}, v{t0}, v{t1}")
        return ops

    def wread(fidx_global):
        st = (fidx_global // 18) % NST
        f = fidx_global % 18
        nt, mat = f // 2, f % 2
        slot = fidx_global % RING
        base = vWa if st < 3 else vWb
        off = (st % 3) * STG + mat * 9216 + nt * 32
        a(f"ds_read_b64_tr_b16 {vr(WR+slot*4,2)}, v{base} offset:{off}")
        a(f"ds_read_b64_tr_b16 {vr(WR+slot*4+2,2)}, v{base} offset:{off+4608}")

    PF = RING - 1
    a("s_waitcnt vmcnt(15)")
    for op in norm_ops(0):
        a(op)
    a("s_barrier")
    for f in range(PF):
        wread(f)
    stamp(a, 1)
    a(f"s_mov_b32 s{sIt}, 0")
    a(".p2align 6")
    a.lab(f"L_{name}_loop")
    for ph in range(NST):
        lg = load_groups((ph + 5) % NST, (ph + 5) % NST)
        spread = "spread" in OPT
        if not spread:
            issue_loads((ph + 5) % NST, (ph + 5) % NST)
        nops = norm_ops((ph + 1) % NST)
        if "nonorm" in OPT: nops = []
        ni = 0
        for f in range(18):
            g = ph * 18 + f
            nt, mat = f // 2, f % 2
            slot = g % RING
            wread(g + PF)
            a(f"s_waitcnt lgkmcnt({2*PF})")
            a(f"v_mfma_f32_16x16x32_bf16 {vr(acc(nt,mat,0),4)}, {vr(WR+slot*4,4)}, {vr(XS+ph*8,4)}, {vr(acc(nt,mat,0),4)}")
            a(f"v_mfma_f32_16x16x32_bf16 {vr(acc(nt,mat,1),4)}, {vr(WR+slot*4,4)}, {vr(XS+ph*8+4,4)}, {vr(acc(nt,mat,1),4)}")
            if f == 1:
                a("s_waitcnt vmcnt(%d)" % (15 if spread else 20))
            if spread and f % 3 == 2 and f // 3 < 5:
                for x in lg[f // 3]: a(x)
            if f >= 1:
                for _ in range(5):
                    if ni < len(nops):
                        a(nops[ni]); ni += 1
        assert ni == len(nops)
        a("s_waitcnt vmcnt(17)")
        a("s_barrier")
    a(f"s_add_u32 s{sIt}, s{sIt}, 1")
    a(f"s_cmp_lt_u32 s{sIt}, 3")
    a(f"s_cbranch_scc1 L_{name}_loop")
    stamp(a, 2)
    a("s_waitcnt vmcnt(0) lgkmcnt(0)")
    a(f"s_mov_b32 s{sA_}, {f32(GELU_A)}")
    a(f"s_mov_b32 s{sB_}, {f32(GELU_B)}")
    a(f"v_lshlrev_b32 v{vX0}, 4, v{vLane}")
    a(f"s_and_b32 s{sT}, s{sFb}, 1")
    a(f"s_lshl_b32 s{sT+1}, s{sT}, 12")
    a(f"s_add_u32 s{sT+1}, s{sT+1}, s{sHb}")
    a(f"s_lshl_b32 s{sT+2}, s{sT}, 3")
    a(f"s_add_u32 s{sT+2}, s{sT+2}, s{sHb}")
    a(f"s_add_u32 s{sT+2}, s{sT+2}, {8*1024}")
    a(f"s_add_u32 s{sT+3}, s{sT+1}, {144*1024}")
    a(f"s_add_u32 s{sT+4}, s{sT+2}, {144*1024}")
    OUT = XS
    def gelu_tile(nt, mt, dst):
        g = acc(nt, 0, mt); u = acc(nt, 1, mt)
        T = WR
        for h in range(2):
            g0, g1, u0, u1 = g+2*h, g+2*h+1, u+2*h, u+2*h+1
            x0, x1, y0, y1, t0, t1 = T+h*8, T+h*8+1, T+h*8+2, T+h*8+3, T+h*8+4, T+h*8+5
            if "relax" in OPT:
                x0, x1, y0, y1 = g0, g1, u0, u1
            else:
                a(f"v_cvt_pk_bf16_f32 v{x0}, v{g0}, v{g1}")
                a(f"v_cvt_pk_bf16_f32 v{y0}, v{u0}, v{u1}")
                a(f"v_and_b32 v{x1}, 0xffff0000, v{x0}")
                a(f"v_lshlrev_b32 v{x0}, 16, v{x0}")
                a(f"v_and_b32 v{y1}, 0xffff0000, v{y0}")
                a(f"v_lshlrev_b32 v{y0}, 16, v{y0}")
            a(f"v_mul_f32 v{t0}, v{x0}, v{x0}")
            a(f"v_mul_f32 v{t1}, v{x1}, v{x1}")
            a(f"v_fma_f32 v{t0}, v{t0}, s{sB_}, v{vT}")
            a(f"v_fma_f32 v{t1}, v{t1}, s{sB_}, v{vT}")
            a(f"v_mul_f32 v{t0}, v{t0}, v{x0}")
            a(f"v_mul_f32 v{t1}, v{t1}, v{x1}")
            a(f"v_exp_f32 v{t0}, v{t0}")
            a(f"v_exp_f32 v{t1}, v{t1}")
            a("s_nop 0")
            a(f"v_add_f32 v{t0}, 1.0, v{t0}")
            a(f"v_add_f32 v{t1}, 1.0, v{t1}")
            a(f"v_rcp_f32 v{t0}, v{t0}")
            a(f"v_rcp_f32 v{t1}, v{t1}")
            a("s_nop 0")
            a(f"v_mul_f32 v{t0}, v{t0}, v{x0}")
            a(f"v_mul_f32 v{t1}, v{t1}, v{x1}")
            if "relax" not in OPT:
                a(f"v_cvt_pk_bf16_f32 v{t0}, v{t0}, v{t1}")
                a(f"v_and_b32 v{t1}, 0xffff0000, v{t0}")
                a(f"v_lshlrev_b32 v{t0}, 16, v{t0}")
            a(f"v_mul_f32 v{t0}, v{t0}, v{y0}")
            a(f"v_mul_f32 v{t1}, v{t1}, v{y1}")
            a(f"v_cvt_pk_bf16_f32 v{dst+h}, v{t0}, v{t1}")
    a(f"v_mov_b32 v{vT}, s{sA_}")
    a("s_nop 7")
    k = 0
    for mt in range(2):
        for p in range(4):
            o = OUT + (k % 12) * 4; k += 1
            gelu_tile(2*p, mt, o)
            gelu_tile(2*p+1, mt, o+2)
            a(f"buffer_store_dwordx4 {vr(o,4)}, v{vX0}, {sr(sH,4)}, s{sT+1+2*mt} offen offset:{p*1024}")
        o = OUT + (k % 12) * 4; k += 1
        gelu_tile(8, mt, o)
        a(f"buffer_store_dwordx2 {vr(o,2)}, v{vX0}, {sr(sH,4)}, s{sT+2+2*mt} offen")
    stamp(a, 3)
    a("s_waitcnt vmcnt(0)")
    stamp(a, 4)
    stamp(a, 6, True)
    stamp_dump(a, 7, 8, sWave, vT)
    a.lab(f"L_{name}_done")
    a("s_endpgm")
    return a.text(), kernel_desc(name, NV), f"; @launch kernel={name} grid=(256,1,1) block=(512,1,1) lds={NST*STG}"


def lds_dump(a, nbytes, wg, tidv, tv, off_mb, nthreads=512, tag="d"):
    a(f"s_cmp_lg_u32 s2, {wg}")
    a(f"s_cbranch_scc1 L_dump_{tag}")
    srd(a, 80, 8, 1 << 20, off_mb << 20)
    a(f"v_lshlrev_b32 v{tv}, 4, v{tidv}")
    for i in range(0, nbytes, nthreads*16):
        a(f"v_add_u32 v{tv+1}, {i}, v{tv}")
        a(f"ds_read_b128 v[{tv+2}:{tv+5}], v{tv+1}")
        a("s_waitcnt lgkmcnt(0)")
        a(f"buffer_store_dwordx4 v[{tv+2}:{tv+5}], v{tv+1}, s[80:83], 0 offen")
        a("s_waitcnt vmcnt(0)")
    a.lab(f"L_dump_{tag}")
    a("s_barrier")

class VM:
    def __init__(self, a):
        self.a = a; self.ops = []
    def op(self, tag, text):
        if "noload" in OPT and tag[0] in ("W", "X") and tag[1] >= 2 and getattr(self.a, "k3", False): return
        self.a(text); self.ops.append(tag)
    def wait(self, tagpred, extra=""):
        last = -1
        for i, t in enumerate(self.ops):
            if tagpred(t): last = i
        n = len(self.ops) - 1 - last
        assert n <= 63
        if last >= 0:
            self.a(f"s_waitcnt vmcnt({n}){extra}")
            self.ops = self.ops[last+1:]

def gen_k4(name="k4_kernel"):
    a = A(); vm = VM(a)
    kernel_head(a, name)
    NST = 6; STG = 18432; RING = 6; PFD = 5
    ACC = 4
    XS = 76
    WR = 124
    vWa, vWb = 148, 149
    vD0, vD1, vD2 = 150, 151, 152
    vX0, vX1 = 153, 154
    vT = 156
    NV = 172
    def acc(nt, mt): return ACC + (nt*2+mt)*4
    sW, sX, sP = 12, 16, 20
    sWave, sKs, sMb, sNb = 28, 29, 30, 31
    sWb1, sWb2, sXb, sM0b = 32, 33, 34, 35
    sT = 36
    sExec = 50
    sWo = 52
    a("s_cmp_ge_u32 s2, 256")
    a(f"s_cbranch_scc1 L_{name}_done")
    stamp(a, 0); stamp(a, 5, True)
    a("s_load_dwordx2 s[4:5], s[0:1], 48")
    a("s_load_dwordx2 s[8:9], s[0:1], 72")
    a("v_lshrrev_b32 v1, 6, v0")
    a("v_and_b32 v0, 63, v0")
    a("s_nop 0")
    a(f"v_readfirstlane_b32 s{sWave}, v1")
    a(f"s_and_b32 s{sT}, s2, 7")
    a(f"s_lshr_b32 s{sT+1}, s2, 3")
    a(f"s_lshr_b32 s{sKs}, s{sT}, 1")
    a(f"s_and_b32 s{sNb}, s{sT+1}, 3")
    a(f"s_and_b32 s{sT}, s{sT}, 1")
    a(f"s_lshl_b32 s{sT}, s{sT}, 3")
    a(f"s_lshr_b32 s{sMb}, s{sT+1}, 2")
    a(f"s_add_u32 s{sMb}, s{sMb}, s{sT}")
    a("s_waitcnt lgkmcnt(0)")
    srd(a, sW, 4, 4608*576*2)
    srd(a, sX, 8, HH_SZ, HH_OFF)
    srd(a, sP, 8, P_SZ, P_OFF)
    for t, vd in enumerate((vD0, vD1, vD2)):
        a(f"v_add_u32 v{vT+1}, {t*64}, v0")
        a(f"v_mul_u32_u24 v{vT+2}, 3641, v{vT+1}")
        a(f"v_lshrrev_b32 v{vT+2}, 16, v{vT+2}")
        a(f"v_mul_u32_u24 v{vT+3}, 18, v{vT+2}")
        a(f"v_sub_u32 v{vT+3}, v{vT+1}, v{vT+3}")
        a(f"v_mul_u32_u24 v{vT+2}, 1152, v{vT+2}")
        a(f"v_lshl_add_u32 v{vd}, v{vT+3}, 4, v{vT+2}")
    a(f"s_lshr_b32 s{sT}, s{sWave}, 2")
    a(f"s_lshl_b32 s{sT+1}, s{sKs}, 1")
    a(f"s_add_u32 s{sT+1}, s{sT+1}, s{sT}")
    a(f"s_mul_i32 s{sWb1}, s{sT+1}, {576*1152}")
    a(f"s_and_b32 s{sT+2}, s{sWave}, 3")
    a(f"s_mul_i32 s{sT+3}, s{sT+2}, {8*1152}")
    a(f"s_add_u32 s{sWb1}, s{sWb1}, s{sT+3}")
    a(f"s_mul_i32 s{sT+3}, s{sNb}, 288")
    a(f"s_add_u32 s{sWb1}, s{sWb1}, s{sT+3}")
    a(f"s_cmp_ge_u32 s{sT+2}, 2")
    a(f"s_cselect_b32 s{sT+3}, {128*1152}, 0")
    a(f"s_add_u32 s{sWb2}, s{sWb1}, s{sT+3}")
    a(f"s_mul_i32 s{sM0b}, s{sWave}, 2304")
    a(f"s_lshl_b32 s{sXb}, s{sMb}, 3")
    a(f"s_lshl_b32 s{sT+3}, s{sT+2}, 1")
    a(f"s_add_u32 s{sXb}, s{sXb}, s{sT+3}")
    a(f"s_mov_b32 s{sT+4}, s{sXb}")
    a(f"s_mul_i32 s{sXb}, s{sXb}, 144")
    a(f"s_mul_i32 s{sT+3}, s{sT+1}, 18")
    a(f"s_add_u32 s{sXb}, s{sXb}, s{sT+3}")
    a(f"s_lshl_b32 s{sXb}, s{sXb}, 10")
    a(f"v_lshlrev_b32 v{vX0}, 4, v0")
    a(f"v_add_u32 v{vX0}, s{sXb}, v{vX0}")
    a(f"v_add_u32 v{vX1}, {144*1024}, v{vX0}")
    a(f"s_lshl_b32 s{sT+5}, s{sKs}, 7")
    a(f"s_add_u32 s{sT+5}, s{sT+5}, s{sT+4}")
    a(f"s_add_u32 s{sT+5}, s{sT+5}, s{sT}")
    a(f"s_mul_i32 s{sT+5}, s{sT+5}, 36")
    a(f"s_mul_i32 s{sT+6}, s{sNb}, 9")
    a(f"s_add_u32 s{sT+5}, s{sT+5}, s{sT+6}")
    a(f"s_lshl_b32 s{sT+5}, s{sT+5}, 10")
    a(f"v_lshrrev_b32 v{vT+1}, 2, v0")
    a(f"v_mul_u32_u24 v{vT+1}, 288, v{vT+1}")
    a(f"v_and_b32 v{vT+2}, 3, v0")
    a(f"v_lshl_add_u32 v{vWa}, v{vT+2}, 3, v{vT+1}")
    a(f"s_mul_i32 s{sT+6}, s{sT}, 9216")
    a(f"v_add_u32 v{vWa}, s{sT+6}, v{vWa}")
    a(f"v_add_u32 v{vWb}, {3*STG}, v{vWa}")
    a(f"s_mov_b64 s[{sExec}:{sExec+1}], 0xffff")

    def fa_rel(i):
        q, ii = divmod(i, 9)
        if ii < 4: return 288*q + 32*ii
        if ii < 8: return 288*q + 144 + 32*(ii-4)
        return 288*q + 128
    def load_groups(i):
        if i >= 18: return []
        st = i % NST
        gs = []
        base = sWb2 if i % 9 == 8 else sWb1
        for t, vd in enumerate((vD0, vD1, vD2)):
            g = []
            if t == 0:
                g.append(("s", f"s_add_u32 s{sWo}, s{base}, {fa_rel(i)*1152}"))
            g.append(("s", f"s_add_u32 m0, s{sM0b}, {st*STG + t*1024}"))
            g.append(("s", f"s_mov_b64 exec, s[{sExec}:{sExec+1}]" if t == 2 else "s_nop 0"))
            g.append((("W", i), f"buffer_load_dwordx4 v{vd}, {sr(sW,4)}, s{sWo} offen lds"))
            if t == 2: g.append(("s", "s_mov_b64 exec, -1"))
            gs.append(g)
        xs = XS + (i % NST) * 8
        gs.append([("s", f"s_mov_b32 s{sWo+1}, {i*1024}"),
                   (("X", i), f"buffer_load_dwordx4 {vr(xs,4)}, v{vX0}, {sr(sX,4)}, s{sWo+1} offen")])
        gs.append([(("X", i), f"buffer_load_dwordx4 {vr(xs+4,4)}, v{vX1}, {sr(sX,4)}, s{sWo+1} offen")])
        return gs
    def emit_group(g):
        for tag, txt in g:
            if tag == "s": a(txt)
            else: vm.op(tag, txt)
    for i in range(PFD):
        for g in load_groups(i): emit_group(g)
    for i in range(0, 72, 2):
        a(f"v_mov_b64 {vr(ACC+i,2)}, 0")
    def wread(gidx):
        i, nt = divmod(gidx, 9)
        if i >= 18: return False
        st = i % NST; slot = gidx % RING
        base = vWa if st < 3 else vWb
        off = (st % 3) * STG + nt * 32
        a(f"ds_read_b64_tr_b16 {vr(WR+slot*4,2)}, v{base} offset:{off}")
        a(f"ds_read_b64_tr_b16 {vr(WR+slot*4+2,2)}, v{base} offset:{off+4608}")
        return True
    PF = RING - 1
    vm.wait(lambda t: t[1] <= 1)
    a("s_barrier")
    for f in range(PF): wread(f)
    stamp(a, 1)
    for i in range(18):
        lg = load_groups(i + PFD)
        vm.wait(lambda t: t[0] == "X" and t[1] <= i)
        for nt in range(9):
            g = i*9 + nt; slot = g % RING
            ok = wread(g + PF)
            rem = min(PF, 18*9 - 1 - g)
            a(f"s_waitcnt lgkmcnt({2*rem})")
            xs = XS + (i % NST) * 8
            a(f"v_mfma_f32_16x16x32_bf16 {vr(acc(nt,0),4)}, {vr(WR+slot*4,4)}, {vr(xs,4)}, {vr(acc(nt,0),4)}")
            a(f"v_mfma_f32_16x16x32_bf16 {vr(acc(nt,1),4)}, {vr(WR+slot*4,4)}, {vr(xs+4,4)}, {vr(acc(nt,1),4)}")
            if nt % 2 == 0 and nt // 2 < len(lg):
                emit_group(lg[nt // 2])
        vm.wait(lambda t: t[0] == "W" and t[1] <= i + 2)
        a("s_barrier")
    stamp(a, 2)
    a(f"s_lshr_b32 s{sT}, s{sWave}, 2")
    a(f"v_lshlrev_b32 v{vT}, 4, v0")
    a(f"s_mul_i32 s{sT+1}, s{sWave}, 9216")
    a(f"v_add_u32 v{vT+1}, s{sT+1}, v{vT}")
    a(f"s_xor_b32 s{sT+2}, s{sWave}, 4")
    a(f"s_mul_i32 s{sT+2}, s{sT+2}, 9216")
    a(f"v_add_u32 v{vT+2}, s{sT+2}, v{vT}")
    a(f"s_cmp_eq_u32 s{sT}, 0")
    a("s_nop 4")
    a(f"s_cbranch_scc0 L_{name}_kh1")
    for kh in range(2):
        if kh == 1: a.lab(f"L_{name}_kh1")
        for nt in range(9):
            a(f"ds_write_b128 v{vT+1}, {vr(acc(nt,1-kh),4)} offset:{nt*1024}")
        a("s_waitcnt lgkmcnt(0)")
        a("s_barrier")
        for nt in range(9):
            a(f"ds_read_b128 {vr(XS+nt*4,4)}, v{vT+2} offset:{nt*1024}")
        for nt in range(9):
            a(f"s_waitcnt lgkmcnt({8-nt})")
            for r in range(4):
                a(f"v_add_f32 v{XS+nt*4+r}, v{XS+nt*4+r}, v{acc(nt,kh)+r}")
            if nt < 4:
                a(f"buffer_store_dwordx4 {vr(XS+nt*4,4)}, v{vT}, {sr(sP,4)}, s{sT+5} offen offset:{nt*1024}")
            else:
                if nt in (4, 8): a(f"s_add_u32 s{sT+5}, s{sT+5}, 4096")
                a(f"buffer_store_dwordx4 {vr(XS+nt*4,4)}, v{vT}, {sr(sP,4)}, s{sT+5} offen offset:{(nt%4)*1024}")
        stamp(a, 3)
        if "stamp" in OPT: a("s_waitcnt vmcnt(0)")
        stamp(a, 4); stamp(a, 6, True)
        stamp_dump(a, 7, 8, sWave, vT+4, 1)
        a("s_endpgm")
    a.lab(f"L_{name}_done")
    a("s_endpgm")
    return a.text(), kernel_desc(name, NV), f"; @launch kernel={name} grid=(256,1,1) block=(512,1,1) lds={NST*STG}"

def gen_k5(name="k5_kernel"):
    a = A()
    kernel_head(a, name)
    sH, sP, sO = 12, 16, 20
    a("s_cmp_ge_u32 s2, 576")
    a(f"s_cbranch_scc1 L_{name}_done")
    a("s_load_dwordx2 s[4:5], s[0:1], 56")
    a("s_load_dwordx2 s[8:9], s[0:1], 72")
    a("v_lshrrev_b32 v1, 6, v0")
    a("v_and_b32 v0, 63, v0")
    a("s_nop 0")
    a("v_readfirstlane_b32 s28, v1")
    a("s_lshl_b32 s29, s2, 2")
    a("s_add_u32 s29, s29, s28")
    a("s_mul_i32 s30, s29, 3641")
    a("s_lshr_b32 s30, s30, 16")
    a("s_mul_i32 s31, s30, 18")
    a("s_sub_u32 s31, s29, s31")
    a("s_waitcnt lgkmcnt(0)")
    srd(a, sH, 8, H1_SZ, H1_OFF)
    srd(a, sP, 8, P_SZ, P_OFF)
    srd(a, sO, 4, 2048*576*2)
    a("v_lshlrev_b32 v1, 4, v0")
    a("s_lshl_b32 s32, s29, 10")
    if "pb16" in OPT:
        a("s_lshl_b32 s33, s29, 10")
        a("v_lshlrev_b32 v3, 3, v0")
        a(f"buffer_load_dwordx4 v[4:7], v1, {sr(sH,4)}, s32 offen")
        for k in range(4):
            a(f"buffer_load_dwordx2 v[{40+k*4}:{41+k*4}], v3, {sr(sP,4)}, s33 offen")
            a(f"buffer_load_dwordx2 v[{42+k*4}:{43+k*4}], v3, {sr(sP,4)}, s33 offen offset:512")
            if k < 3: a(f"s_add_u32 s33, s33, {128*36*512}")
    else:
        a("s_lshl_b32 s33, s29, 11")
        a(f"buffer_load_dwordx4 v[4:7], v1, {sr(sH,4)}, s32 offen")
        for k in range(4):
            a(f"buffer_load_dwordx4 v[{8+k*8}:{11+k*8}], v1, {sr(sP,4)}, s33 offen")
            a(f"buffer_load_dwordx4 v[{12+k*8}:{15+k*8}], v1, {sr(sP,4)}, s33 offen offset:1024")
            if k < 3: a(f"s_add_u32 s33, s33, {128*36*1024}")
    a("v_and_b32 v2, 15, v0")
    a("s_lshl_b32 s34, s30, 4")
    a("v_add_u32 v2, s34, v2")
    a("v_mul_u32_u24 v2, 1152, v2")
    a("v_lshrrev_b32 v3, 4, v0")
    a("v_lshl_add_u32 v2, v3, 3, v2")
    a("s_lshl_b32 s34, s31, 6")
    a("s_waitcnt vmcnt(0)")
    if "pb16" in OPT:
        for k in range(4):
            for d in range(4):
                a(f"v_lshlrev_b32 v{8+k*8+2*d}, 16, v{40+k*4+d}")
                a(f"v_and_b32 v{9+k*8+2*d}, 0xffff0000, v{40+k*4+d}")
    for i in range(8):
        a(f"v_add_f32 v{8+i}, v{8+i}, v{16+i}")
        a(f"v_add_f32 v{24+i}, v{24+i}, v{32+i}")
    for i in range(8):
        a(f"v_add_f32 v{8+i}, v{8+i}, v{24+i}")
    for p in range(4):
        a(f"v_cvt_pk_bf16_f32 v{16+p}, v{8+2*p}, v{9+2*p}")
    for p in range(4):
        a(f"v_lshlrev_b32 v{24+2*p}, 16, v{16+p}")
        a(f"v_and_b32 v{25+2*p}, 0xffff0000, v{16+p}")
        a(f"v_lshlrev_b32 v{32+2*p}, 16, v{4+p}")
        a(f"v_and_b32 v{33+2*p}, 0xffff0000, v{4+p}")
    for i in range(8):
        a(f"v_add_f32 v{24+i}, v{24+i}, v{32+i}")
    for p in range(4):
        a(f"v_cvt_pk_bf16_f32 v{16+p}, v{24+2*p}, v{25+2*p}")
    a(f"buffer_store_dwordx2 v[16:17], v2, {sr(sO,4)}, s34 offen")
    a(f"buffer_store_dwordx2 v[18:19], v2, {sr(sO,4)}, s34 offen offset:32")
    a.lab(f"L_{name}_done")
    a("s_endpgm")
    return a.text(), kernel_desc(name, 56, 48), f"; @launch kernel={name} grid=(576,1,1) block=(256,1,1) lds=0"


def gen_k2(name="k2_kernel"):
    a = A(); vm = VM(a)
    kernel_head(a, name)
    PITCH = 224; BLK = 32*PITCH
    ACC = 4
    OF = 28
    XR = 100
    WR = 112
    vD = 160
    vWa, vWb = 167, 168
    vT = 170
    NV = 188
    sW, sO, sXs, sH, sST = 12, 16, 20, 24, 28
    sWave, sRb, sNb, sT = 32, 33, 34, 36
    a("s_cmp_ge_u32 s2, 192")
    a(f"s_cbranch_scc1 L_{name}_done")
    stamp(a, 0); stamp(a, 5, True)
    a("s_load_dwordx2 s[4:5], s[0:1], 0")
    a("s_load_dwordx2 s[6:7], s[0:1], 16")
    a("s_load_dwordx2 s[8:9], s[0:1], 72")
    a("v_lshrrev_b32 v1, 6, v0")
    a("v_and_b32 v0, 63, v0")
    a("s_nop 0")
    a(f"v_readfirstlane_b32 s{sWave}, v1")
    a(f"s_lshr_b32 s{sT+1}, s2, 3")
    a(f"s_mul_i32 s{sRb}, s{sT+1}, 10923")
    a(f"s_lshr_b32 s{sRb}, s{sRb}, 16")
    a(f"s_mul_i32 s{sT}, s{sRb}, 6")
    a(f"s_sub_u32 s{sNb}, s{sT+1}, s{sT}")
    a(f"s_and_b32 s{sT}, s2, 7")
    a(f"s_lshl_b32 s{sT}, s{sT}, 2")
    a(f"s_add_u32 s{sRb}, s{sRb}, s{sT}")
    a("s_waitcnt lgkmcnt(0)")
    srd(a, sW, 6, 576*576*2)
    srd(a, sO, 8, O_SZ, O_OFF)
    srd(a, sXs, 4, 2048*576*2)
    srd(a, sH, 8, H1_SZ, H1_OFF)
    srd(a, sST, 8, ST_SZ, ST_OFF)
    a(f"s_mul_i32 s{sT}, s{sNb}, 192")
    a(f"s_mov_b32 s{sT+1}, 0x40000000")
    for t in range(7):
        a(f"v_add_u32 v{vT}, {t*64}, v0")
        a(f"v_mul_u32_u24 v{vT+1}, 4682, v{vT}")
        a(f"v_lshrrev_b32 v{vT+1}, 16, v{vT+1}")
        a(f"v_mul_u32_u24 v{vT+2}, 14, v{vT+1}")
        a(f"v_sub_u32 v{vT+2}, v{vT}, v{vT+2}")
        a(f"v_and_b32 v{vT+3}, 4, v{vT+1}")
        a(f"v_lshlrev_b32 v{vT+3}, 1, v{vT+3}")
        a(f"v_and_b32 v{vT+4}, 8, v{vT+1}")
        a(f"v_lshrrev_b32 v{vT+4}, 1, v{vT+4}")
        a(f"v_and_b32 v{vT+1}, 0x13, v{vT+1}")
        a(f"v_or3_b32 v{vT+1}, v{vT+1}, v{vT+3}, v{vT+4}")
        a(f"v_mul_u32_u24 v{vT+1}, 1152, v{vT+1}")
        a(f"v_lshl_add_u32 v{vT+1}, v{vT+2}, 4, v{vT+1}")
        a(f"v_add_u32 v{vT+1}, s{sT}, v{vT+1}")
        a(f"v_cmp_gt_u32 vcc, 12, v{vT+2}")
        a(f"v_mov_b32 v{vT+3}, s{sT+1}")
        a("s_nop 0")
        a(f"v_cndmask_b32 v{vD+t}, v{vT+3}, v{vT+1}, vcc")
    a(f"s_lshl_b32 s{sT}, s{sRb}, 6")
    a(f"s_lshl_b32 s{sT+1}, s{sWave}, 4")
    a(f"s_add_u32 s{sT}, s{sT}, s{sT+1}")
    a(f"v_and_b32 v{vT}, 15, v0")
    a(f"v_add_u32 v{vT}, s{sT}, v{vT}")
    a(f"v_mul_u32_u24 v{vT+1}, 1152, v{vT}")
    a(f"v_lshrrev_b32 v{vT+2}, 4, v0")
    a(f"s_lshr_b32 s{sT+4}, s{sT}, 4")
    a(f"s_mul_i32 s{sT+4}, s{sT+4}, 18432")
    a(f"v_lshlrev_b32 v{vT+3}, 4, v0")
    a(f"v_add_u32 v{vT+3}, s{sT+4}, v{vT+3}")
    a(f"v_lshl_add_u32 v{vT+4}, v{vT+2}, 3, v{vT+1}")
    for q in range(1, 5): a(f"s_movk_i32 s{sT+4+q}, {q*4096}")
    def osoff(s_): return ("s%d" % (sT+4+s_//4)) if s_ >= 4 else "0"
    a(f"s_mul_i32 s{sT+1}, s{sNb}, 192")
    a(f"s_mul_i32 s{sT+2}, s{sWave}, {32*1152}")
    a(f"s_mul_i32 s{sT+3}, s{sWave}, {BLK}")
    def chunk_ops(c):
        gs = []
        if c > 4: return gs
        for t in range(7):
            g = [("s", f"s_add_u32 m0, s{sT+3}, {c*4*BLK + t*1024}"), ("s", "s_nop 0"),
                 (("W", c), f"buffer_load_dwordx4 v{vD+t}, {sr(sW,4)}, s{sT+2} offen lds")]
            if t == 6: g.append(("s", f"s_add_u32 s{sT+2}, s{sT+2}, {4*32*1152}"))
            gs.append(g)
        for s_ in range(4*c, min(4*c+4, 18)):
            gs.append([(("O", c), f"buffer_load_dwordx4 {vr(OF+s_*4,4)}, v{vT+3}, {sr(sO,4)}, {osoff(s_)} offen offset:{(s_%4)*1024}")])
        return gs
    def emit_group(g):
        for tg, txt in g:
            if tg == "s": a(txt)
            else: vm.op(tg, txt)
    for c in range(2):
        for g in chunk_ops(c): emit_group(g)
    a(f"v_lshrrev_b32 v{vT+5}, 5, v0")
    a(f"v_lshlrev_b32 v{vT+5}, 4, v{vT+5}")
    a(f"v_bfe_u32 v{vT+6}, v0, 2, 3")
    a(f"v_add_u32 v{vT+5}, v{vT+5}, v{vT+6}")
    a(f"v_mul_u32_u24 v{vT+5}, {PITCH}, v{vT+5}")
    a(f"v_and_b32 v{vT+6}, 3, v0")
    a(f"v_lshl_add_u32 v{vWa}, v{vT+6}, 3, v{vT+5}")
    a(f"v_add_u32 v{vWb}, {9*BLK}, v{vWa}")
    def wread(s_, buf):
        base = vWa if s_ < 9 else vWb
        for nt in range(6):
            off = (s_ % 9) * BLK + nt * 32
            a(f"ds_read_b64_tr_b16 {vr(WR+buf*24+nt*4,2)}, v{base} offset:{off}")
            a(f"ds_read_b64_tr_b16 {vr(WR+buf*24+nt*4+2,2)}, v{base} offset:{off+8*PITCH}")
    for c in range(5):
        vm.wait(lambda t: t[1] <= c)
        a("s_barrier")
        if c == 0: stamp(a, 1)
        lg = chunk_ops(c+2)
        if c == 2:
            for nt in range(6):
                lg.append([(("X", 9), f"buffer_load_dwordx2 {vr(XR+nt*2,2)}, v{vT+4}, {sr(sXs,4)}, s{sT+1} offen offset:{nt*32}")])
        gi = 0
        steps = list(range(4*c, min(4*c+4, 18)))
        wread(steps[0], steps[0] % 2)
        for s_ in steps:
            if s_ != steps[-1]:
                wread(s_+1, (s_+1) % 2)
                a("s_waitcnt lgkmcnt(12)")
            else:
                a("s_waitcnt lgkmcnt(0)")
            for nt in range(6):
                cc = vr(ACC+nt*4,4)
                a(f"v_mfma_f32_16x16x32_bf16 {cc}, {vr(WR+(s_%2)*24+nt*4,4)}, {vr(OF+s_*4,4)}, " + ("0" if s_ == 0 else cc))
                if gi < len(lg):
                    emit_group(lg[gi]); gi += 1
        assert gi == len(lg)
    a("s_waitcnt vmcnt(0)")
    a("s_nop 7")
    stamp(a, 2)
    HP = WR
    for nt in range(6):
        for p in range(2):
            c0 = ACC + nt*4 + 2*p
            a(f"v_cvt_pk_bf16_f32 v{vT}, v{c0}, v{c0+1}")
            a(f"v_lshlrev_b32 v{c0}, 16, v{vT}")
            a(f"v_and_b32 v{c0+1}, 0xffff0000, v{vT}")
            a(f"v_lshlrev_b32 v{vT+1}, 16, v{XR+nt*2+p}")
            a(f"v_and_b32 v{vT+2}, 0xffff0000, v{XR+nt*2+p}")
            a(f"v_add_f32 v{c0}, v{c0}, v{vT+1}")
            a(f"v_add_f32 v{c0+1}, v{c0+1}, v{vT+2}")
            a(f"v_cvt_pk_bf16_f32 v{HP+nt*2+p}, v{c0}, v{c0+1}")
            a(f"v_lshlrev_b32 v{c0}, 16, v{HP+nt*2+p}")
            a(f"v_and_b32 v{c0+1}, 0xffff0000, v{HP+nt*2+p}")
    a(f"s_lshl_b32 s{sT}, s{sRb}, 2")
    a(f"s_add_u32 s{sT}, s{sT}, s{sWave}")
    a(f"s_mul_i32 s{sT+1}, s{sT}, 18")
    a(f"s_mul_i32 s{sT+2}, s{sNb}, 3")
    a(f"s_add_u32 s{sT+1}, s{sT+1}, s{sT+2}")
    a(f"s_lshl_b32 s{sT+1}, s{sT+1}, 10")
    a(f"v_lshlrev_b32 v{vT}, 4, v0")
    for p in range(3):
        a(f"buffer_store_dwordx4 {vr(HP+p*4,4)}, v{vT}, {sr(sH,4)}, s{sT+1} offen offset:{p*1024}")
    def xreduce(v, t):
        a(f"v_xor_b32 v{t}, 16, v0")
        a(f"v_lshlrev_b32 v{t}, 2, v{t}")
        a(f"ds_bpermute_b32 v{t+1}, v{t}, v{v}")
        a("s_waitcnt lgkmcnt(0)")
        a(f"v_add_f32 v{v}, v{v}, v{t+1}")
        a(f"v_xor_b32 v{t}, 32, v0")
        a(f"v_lshlrev_b32 v{t}, 2, v{t}")
        a(f"ds_bpermute_b32 v{t+1}, v{t}, v{v}")
        a("s_waitcnt lgkmcnt(0)")
        a(f"v_add_f32 v{v}, v{v}, v{t+1}")
    S0, S1 = vT+4, vT+5
    a(f"v_add_f32 v{S0}, v{ACC}, v{ACC+1}")
    for i in range(2, 24):
        a(f"v_add_f32 v{S0}, v{S0}, v{ACC+i}")
    xreduce(S0, vT+6)
    a(f"v_mul_f32 v{S0}, {f32(1.0/96.0)}, v{S0}")
    a(f"v_mov_b32 v{S1}, 0")
    for i in range(24):
        a(f"v_sub_f32 v{vT+1}, v{ACC+i}, v{S0}")
        a(f"v_fmac_f32 v{S1}, v{vT+1}, v{vT+1}")
    xreduce(S1, vT+6)
    a(f"s_lshl_b32 s{sT}, s{sT}, 4")
    a(f"v_add_u32 v{vT}, s{sT}, v0")
    a(f"v_mul_u32_u24 v{vT}, 48, v{vT}")
    a(f"s_lshl_b32 s{sT+1}, s{sNb}, 3")
    a("s_mov_b64 exec, 0xffff")
    a(f"buffer_store_dwordx2 {vr(S0,2)}, v{vT}, {sr(sST,4)}, s{sT+1} offen")
    stamp(a, 3)
    if "stamp" in OPT: a("s_waitcnt vmcnt(0)")
    stamp(a, 4); stamp(a, 6, True)
    stamp_dump(a, 7, 8, sWave, vT+8, 2)
    a.lab(f"L_{name}_done")
    a("s_endpgm")
    return a.text(), kernel_desc(name, NV, 96), f"; @launch kernel={name} grid=(192,1,1) block=(256,1,1) lds={20*BLK}"

def gen_k2v2(name="k2_kernel"):
    a = A(); vm = VM(a)
    kernel_head(a, name)
    PITCH = 224; BLK = 32*PITCH
    ACC = 4
    OF = 28
    XR = 100
    WR = 112
    vD = 160
    vWa, vWb = 167, 168
    vT = 170
    NV = 188
    sW, sO, sXs, sH, sST = 12, 16, 20, 24, 28
    sWave, sRb, sNb, sT = 32, 33, 34, 36
    a("s_cmp_ge_u32 s2, 192")
    a(f"s_cbranch_scc1 L_{name}_done")
    stamp(a, 0); stamp(a, 5, True)
    a("s_load_dwordx2 s[4:5], s[0:1], 0")
    a("s_load_dwordx2 s[6:7], s[0:1], 16")
    a("s_load_dwordx2 s[8:9], s[0:1], 72")
    a("v_lshrrev_b32 v1, 6, v0")
    a("v_and_b32 v0, 63, v0")
    a("s_nop 0")
    a(f"v_readfirstlane_b32 s{sWave}, v1")
    a(f"s_lshr_b32 s35, s{sWave}, 2")
    a(f"s_and_b32 s{sWave}, s{sWave}, 3")
    a(f"s_lshr_b32 s{sT+1}, s2, 3")
    a(f"s_mul_i32 s{sRb}, s{sT+1}, 10923")
    a(f"s_lshr_b32 s{sRb}, s{sRb}, 16")
    a(f"s_mul_i32 s{sT}, s{sRb}, 6")
    a(f"s_sub_u32 s{sNb}, s{sT+1}, s{sT}")
    a(f"s_and_b32 s{sT}, s2, 7")
    a(f"s_lshl_b32 s{sT}, s{sT}, 2")
    a(f"s_add_u32 s{sRb}, s{sRb}, s{sT}")
    a("s_waitcnt lgkmcnt(0)")
    srd(a, sW, 6, 576*576*2)
    srd(a, sO, 8, O_SZ, O_OFF)
    srd(a, sXs, 4, 2048*576*2)
    srd(a, sH, 8, H1_SZ, H1_OFF)
    srd(a, sST, 8, ST_SZ, ST_OFF)
    a(f"s_mul_i32 s{sT}, s{sNb}, 192")
    a(f"s_mov_b32 s{sT+1}, 0x40000000")
    for t in range(7):
        a(f"v_add_u32 v{vT}, {t*64}, v0")
        a(f"v_mul_u32_u24 v{vT+1}, 4682, v{vT}")
        a(f"v_lshrrev_b32 v{vT+1}, 16, v{vT+1}")
        a(f"v_mul_u32_u24 v{vT+2}, 14, v{vT+1}")
        a(f"v_sub_u32 v{vT+2}, v{vT}, v{vT+2}")
        a(f"v_and_b32 v{vT+3}, 4, v{vT+1}")
        a(f"v_lshlrev_b32 v{vT+3}, 1, v{vT+3}")
        a(f"v_and_b32 v{vT+4}, 8, v{vT+1}")
        a(f"v_lshrrev_b32 v{vT+4}, 1, v{vT+4}")
        a(f"v_and_b32 v{vT+1}, 0x13, v{vT+1}")
        a(f"v_or3_b32 v{vT+1}, v{vT+1}, v{vT+3}, v{vT+4}")
        a(f"v_mul_u32_u24 v{vT+1}, 1152, v{vT+1}")
        a(f"v_lshl_add_u32 v{vT+1}, v{vT+2}, 4, v{vT+1}")
        a(f"v_add_u32 v{vT+1}, s{sT}, v{vT+1}")
        a(f"v_cmp_gt_u32 vcc, 12, v{vT+2}")
        a(f"v_mov_b32 v{vT+3}, s{sT+1}")
        a("s_nop 0")
        a(f"v_cndmask_b32 v{vD+t}, v{vT+3}, v{vT+1}, vcc")
    a(f"s_lshl_b32 s{sT}, s{sRb}, 6")
    a(f"s_lshl_b32 s{sT+1}, s{sWave}, 4")
    a(f"s_add_u32 s{sT}, s{sT}, s{sT+1}")
    a(f"v_and_b32 v{vT}, 15, v0")
    a(f"v_add_u32 v{vT}, s{sT}, v{vT}")
    a(f"v_mul_u32_u24 v{vT+1}, 1152, v{vT}")
    a(f"v_lshrrev_b32 v{vT+2}, 4, v0")
    a(f"s_lshr_b32 s{sT+4}, s{sT}, 4")
    a(f"s_mul_i32 s{sT+4}, s{sT+4}, 18432")
    a(f"v_lshlrev_b32 v{vT+3}, 4, v0")
    a(f"v_add_u32 v{vT+3}, s{sT+4}, v{vT+3}")
    a(f"v_lshl_add_u32 v{vT+4}, v{vT+2}, 3, v{vT+1}")
    for q in range(1, 5): a(f"s_movk_i32 s{sT+4+q}, {q*4096}")
    def osoff(s_): return ("s%d" % (sT+4+s_//4)) if s_ >= 4 else "0"
    a(f"s_mul_i32 s{sT+1}, s{sNb}, 192")
    a(f"s_mul_i32 s{sT+2}, s{sWave}, {32*1152}")
    a(f"s_mul_i32 s{sT+3}, s{sWave}, {BLK}")
    a("s_cmp_eq_u32 s35, 0")
    a(f"s_cbranch_scc1 L_{name}_comp")
    for c in range(5):
        for t in range(7):
            a(f"s_add_u32 m0, s{sT+3}, {c*4*BLK + t*1024}")
            a("s_nop 0")
            a(f"buffer_load_dwordx4 v{vD+t}, {sr(sW,4)}, s{sT+2} offen lds")
        a(f"s_add_u32 s{sT+2}, s{sT+2}, {4*32*1152}")
    for c in range(5):
        a(f"s_waitcnt vmcnt({(4-c)*7})")
        a("s_barrier")
    a("s_endpgm")
    a.lab(f"L_{name}_comp")
    for s_ in range(18):
        vm.op(("O", s_), f"buffer_load_dwordx4 {vr(OF+s_*4,4)}, v{vT+3}, {sr(sO,4)}, {osoff(s_)} offen offset:{(s_%4)*1024}")
    for nt in range(6):
        vm.op(("X", 99), f"buffer_load_dwordx2 {vr(XR+nt*2,2)}, v{vT+4}, {sr(sXs,4)}, s{sT+1} offen offset:{nt*32}")
    a(f"v_lshrrev_b32 v{vT+5}, 5, v0")
    a(f"v_lshlrev_b32 v{vT+5}, 4, v{vT+5}")
    a(f"v_bfe_u32 v{vT+6}, v0, 2, 3")
    a(f"v_add_u32 v{vT+5}, v{vT+5}, v{vT+6}")
    a(f"v_mul_u32_u24 v{vT+5}, {PITCH}, v{vT+5}")
    a(f"v_and_b32 v{vT+6}, 3, v0")
    a(f"v_lshl_add_u32 v{vWa}, v{vT+6}, 3, v{vT+5}")
    a(f"v_add_u32 v{vWb}, {9*BLK}, v{vWa}")
    def wread(s_, buf):
        base = vWa if s_ < 9 else vWb
        for nt in range(6):
            off = (s_ % 9) * BLK + nt * 32
            a(f"ds_read_b64_tr_b16 {vr(WR+buf*24+nt*4,2)}, v{base} offset:{off}")
            a(f"ds_read_b64_tr_b16 {vr(WR+buf*24+nt*4+2,2)}, v{base} offset:{off+8*PITCH}")
    for c in range(5):
        a("s_barrier")
        if c == 0: stamp(a, 1)
        steps = list(range(4*c, min(4*c+4, 18)))
        wread(steps[0], steps[0] % 2)
        vm.wait(lambda t: t[0] == "O" and t[1] <= steps[-1])
        for s_ in steps:
            if s_ != steps[-1]:
                wread(s_+1, (s_+1) % 2)
                a("s_waitcnt lgkmcnt(12)")
            else:
                a("s_waitcnt lgkmcnt(0)")
            for nt in range(6):
                cc = vr(ACC+nt*4,4)
                a(f"v_mfma_f32_16x16x32_bf16 {cc}, {vr(WR+(s_%2)*24+nt*4,4)}, {vr(OF+s_*4,4)}, " + ("0" if s_ == 0 else cc))
    a("s_waitcnt vmcnt(0)")
    a("s_nop 7")
    stamp(a, 2)
    HP = WR
    for nt in range(6):
        for p in range(2):
            c0 = ACC + nt*4 + 2*p
            a(f"v_cvt_pk_bf16_f32 v{vT}, v{c0}, v{c0+1}")
            a(f"v_lshlrev_b32 v{c0}, 16, v{vT}")
            a(f"v_and_b32 v{c0+1}, 0xffff0000, v{vT}")
            a(f"v_lshlrev_b32 v{vT+1}, 16, v{XR+nt*2+p}")
            a(f"v_and_b32 v{vT+2}, 0xffff0000, v{XR+nt*2+p}")
            a(f"v_add_f32 v{c0}, v{c0}, v{vT+1}")
            a(f"v_add_f32 v{c0+1}, v{c0+1}, v{vT+2}")
            a(f"v_cvt_pk_bf16_f32 v{HP+nt*2+p}, v{c0}, v{c0+1}")
            a(f"v_lshlrev_b32 v{c0}, 16, v{HP+nt*2+p}")
            a(f"v_and_b32 v{c0+1}, 0xffff0000, v{HP+nt*2+p}")
    a(f"s_lshl_b32 s{sT}, s{sRb}, 2")
    a(f"s_add_u32 s{sT}, s{sT}, s{sWave}")
    a(f"s_mul_i32 s{sT+1}, s{sT}, 18")
    a(f"s_mul_i32 s{sT+2}, s{sNb}, 3")
    a(f"s_add_u32 s{sT+1}, s{sT+1}, s{sT+2}")
    a(f"s_lshl_b32 s{sT+1}, s{sT+1}, 10")
    a(f"v_lshlrev_b32 v{vT}, 4, v0")
    for p in range(3):
        a(f"buffer_store_dwordx4 {vr(HP+p*4,4)}, v{vT}, {sr(sH,4)}, s{sT+1} offen offset:{p*1024}")
    def xreduce(v, t):
        a(f"v_xor_b32 v{t}, 16, v0")
        a(f"v_lshlrev_b32 v{t}, 2, v{t}")
        a(f"ds_bpermute_b32 v{t+1}, v{t}, v{v}")
        a("s_waitcnt lgkmcnt(0)")
        a(f"v_add_f32 v{v}, v{v}, v{t+1}")
        a(f"v_xor_b32 v{t}, 32, v0")
        a(f"v_lshlrev_b32 v{t}, 2, v{t}")
        a(f"ds_bpermute_b32 v{t+1}, v{t}, v{v}")
        a("s_waitcnt lgkmcnt(0)")
        a(f"v_add_f32 v{v}, v{v}, v{t+1}")
    S0, S1 = vT+4, vT+5
    a(f"v_add_f32 v{S0}, v{ACC}, v{ACC+1}")
    for i in range(2, 24):
        a(f"v_add_f32 v{S0}, v{S0}, v{ACC+i}")
    xreduce(S0, vT+6)
    a(f"v_mul_f32 v{S0}, {f32(1.0/96.0)}, v{S0}")
    a(f"v_mov_b32 v{S1}, 0")
    for i in range(24):
        a(f"v_sub_f32 v{vT+1}, v{ACC+i}, v{S0}")
        a(f"v_fmac_f32 v{S1}, v{vT+1}, v{vT+1}")
    xreduce(S1, vT+6)
    a(f"s_lshl_b32 s{sT}, s{sT}, 4")
    a(f"v_add_u32 v{vT}, s{sT}, v0")
    a(f"v_mul_u32_u24 v{vT}, 48, v{vT}")
    a(f"s_lshl_b32 s{sT+1}, s{sNb}, 3")
    a("s_mov_b64 exec, 0xffff")
    a(f"buffer_store_dwordx2 {vr(S0,2)}, v{vT}, {sr(sST,4)}, s{sT+1} offen")
    stamp(a, 3)
    if "stamp" in OPT: a("s_waitcnt vmcnt(0)")
    stamp(a, 4); stamp(a, 6, True)
    stamp_dump(a, 7, 8, sWave, vT+8, 2)
    a.lab(f"L_{name}_done")
    a("s_endpgm")
    return a.text(), kernel_desc(name, NV, 96), f"; @launch kernel={name} grid=(192,1,1) block=(512,1,1) lds={20*BLK}"

def gen_k1(name="k1_kernel"):
    a = A(); vm = VM(a)
    kernel_head(a, name)
    XT = 0
    WB = 92160; STG = 16384; NST = 4; PITCH = 480
    QP = 624
    ACC = 4
    XF = 44
    WF = 84
    RAW = 100
    vD0, vD1 = 150, 151
    vWa, vXa = 152, 153
    vT = 156
    NV = 200
    sW, sXs, sO = 12, 16, 20
    sWave, sRb, sHg, sT = 28, 29, 30, 36
    sWo, sM0b = 31, 32
    a("s_cmp_ge_u32 s2, 256")
    a(f"s_cbranch_scc1 L_{name}_done")
    stamp(a, 0); stamp(a, 5, True)
    a("s_load_dwordx4 s[4:7], s[0:1], 0")
    a("s_load_dwordx2 s[8:9], s[0:1], 72")
    a("v_lshrrev_b32 v1, 6, v0")
    a("v_mov_b32 v3, v0")
    a("v_and_b32 v0, 63, v0")
    a(f"v_readfirstlane_b32 s{sWave}, v1")
    a(f"s_lshr_b32 s{sT}, s2, 3")
    a(f"s_and_b32 s{sHg}, s{sT}, 3")
    a(f"s_and_b32 s{sT+1}, s2, 1")
    a(f"s_lshl_b32 s{sT+1}, s{sT+1}, 2")
    a(f"s_add_u32 s{sHg}, s{sHg}, s{sT+1}")
    a(f"s_lshr_b32 s{sRb}, s{sT}, 2")
    a(f"s_bfe_u32 s{sT+1}, s2, 0x20001")
    a(f"s_lshl_b32 s{sT+1}, s{sT+1}, 3")
    a(f"s_add_u32 s{sRb}, s{sRb}, s{sT+1}")
    a("s_waitcnt lgkmcnt(0)")
    srd(a, sW, 6, 576*1728*2)
    srd(a, sXs, 4, 2048*576*2)
    srd(a, sO, 8, O_SZ, O_OFF)
    a(f"v_mul_u32_u24 v{vT}, 10923, v0")
    a(f"v_lshrrev_b32 v{vT}, 16, v{vT}")
    a(f"v_mul_u32_u24 v{vT+1}, 6, v{vT}")
    a(f"v_sub_u32 v{vT+1}, v0, v{vT+1}")
    a(f"s_mul_i32 s{sT}, s{sWave}, 10")
    a(f"v_add_u32 v{vT+2}, s{sT}, v{vT}")
    a(f"s_lshl_b32 s{sT+1}, s{sRb}, 6")
    a(f"s_sub_u32 s{sT+1}, s{sT+1}, 16")
    a(f"v_add_u32 v{vT+3}, s{sT+1}, v{vT+2}")
    a(f"s_movk_i32 s{sT+2}, 1152")
    a(f"v_mul_lo_u32 v{vT+3}, v{vT+3}, s{sT+2}")
    a(f"v_lshl_add_u32 v{vT+3}, v{vT+1}, 4, v{vT+3}")
    for i in range(12):
        vm.op(("x", i), f"buffer_load_dwordx4 {vr(RAW+i*4,4)}, v{vT+3}, {sr(sXs,4)}, 0 offen offset:{i*96}")
    a(f"s_lshl_b32 s{sT}, s{sWave}, 7")
    a(f"s_mul_i32 s{sT+1}, s{sHg}, 144")
    a(f"s_mov_b32 s{sT+2}, 0x40000000")
    for t, vd in enumerate((vD0, vD1)):
        a(f"v_add_u32 v{vT+4}, s{sT}, v0")
        if t: a(f"v_add_u32 v{vT+4}, 64, v{vT+4}")
        a(f"v_mul_u32_u24 v{vT+5}, 2185, v{vT+4}")
        a(f"v_lshrrev_b32 v{vT+5}, 16, v{vT+5}")
        a(f"v_mul_u32_u24 v{vT+6}, 30, v{vT+5}")
        a(f"v_sub_u32 v{vT+6}, v{vT+4}, v{vT+6}")
        a(f"v_mul_u32_u24 v{vT+7}, 7282, v{vT+6}")
        a(f"v_lshrrev_b32 v{vT+7}, 16, v{vT+7}")
        a(f"v_mul_u32_u24 v{vT+8}, 9, v{vT+7}")
        a(f"v_sub_u32 v{vT+8}, v{vT+6}, v{vT+8}")
        a(f"v_mul_u32_u24 v{vT+7}, 1152, v{vT+7}")
        a(f"v_lshl_add_u32 v{vT+7}, v{vT+8}, 4, v{vT+7}")
        a(f"v_and_b32 v{vT+8}, 4, v{vT+5}")
        a(f"v_lshlrev_b32 v{vT+8}, 1, v{vT+8}")
        a(f"v_and_b32 v{vT+9}, 8, v{vT+5}")
        a(f"v_lshrrev_b32 v{vT+9}, 1, v{vT+9}")
        a(f"v_and_b32 v{vT+10}, 0x13, v{vT+5}")
        a(f"v_or3_b32 v{vT+8}, v{vT+8}, v{vT+9}, v{vT+10}")
        a(f"v_mul_u32_u24 v{vT+8}, 3456, v{vT+8}")
        a(f"v_add3_u32 v{vT+7}, v{vT+7}, v{vT+8}, s{sT+1}")
        a(f"v_cmp_gt_u32 vcc, 27, v{vT+6}")
        a(f"v_cmp_gt_u32 s[{sT+4}:{sT+5}], 32, v{vT+5}")
        a(f"s_and_b64 vcc, vcc, s[{sT+4}:{sT+5}]")
        a(f"v_mov_b32 v{vT+8}, s{sT+2}")
        a("s_nop 1")
        a(f"v_cndmask_b32 v{vd}, v{vT+8}, v{vT+7}, vcc")
    a(f"s_lshl_b32 s{sM0b}, s{sWave}, 11")
    a(f"s_add_u32 s{sM0b}, s{sM0b}, {WB}")
    def wdma(i):
        if i >= 18: return
        st = i % NST
        a(f"s_mov_b32 s{sWo}, {i*32*3456}")
        for t, vd in enumerate((vD0, vD1)):
            a(f"s_add_u32 m0, s{sM0b}, {st*STG + t*1024}")
            a("s_nop 0")
            vm.op(("W", i), f"buffer_load_dwordx4 v{vd}, {sr(sW,4)}, s{sWo} offen lds")
    for i in range(4): wdma(i)
    ONES_LO, ONES_HI, ONES = sT+6, sT+7, sT+8
    a(f"s_mov_b32 s{ONES}, 0x3f803f80")
    S, M, Q = vT+4, vT+5, vT+6
    B3, B1, B2 = vT+8, vT+9, vT+10
    for d_, vb in ((3, B3), (1, B1), (2, B2)):
        a(f"v_add_u32 v{vb}, {d_}, v{vT+1}")
        a(f"v_subrev_u32 v{vT+11}, 6, v{vb}")
        a(f"v_min_u32 v{vb}, v{vb}, v{vT+11}")
        a(f"v_mad_u32_u24 v{vb}, v{vT}, 6, v{vb}")
        a(f"v_lshlrev_b32 v{vb}, 2, v{vb}")
    def reduce6(v):
        a(f"ds_bpermute_b32 v{vT+11}, v{B3}, v{v}")
        a("s_waitcnt lgkmcnt(0)")
        a(f"v_add_f32 v{v}, v{v}, v{vT+11}")
        a(f"ds_bpermute_b32 v{vT+11}, v{B1}, v{v}")
        a(f"ds_bpermute_b32 v{vT+12}, v{B2}, v{v}")
        a("s_waitcnt lgkmcnt(0)")
        a(f"v_add_f32 v{v}, v{v}, v{vT+11}")
        a(f"v_add_f32 v{v}, v{v}, v{vT+12}")
    vm.wait(lambda t: t[0] == "x")
    stamp(a, 1)
    if "wtest" in OPT:
        a("s_waitcnt vmcnt(6)")
        stamp(a, 2)
        a("s_waitcnt vmcnt(0)")
        stamp(a, 3)
        stamp(a, 4)
        OPT.discard("stamp"); OPT.add("stamp_off")
    a(f"v_mov_b32 v{S}, 0")
    a(f"v_mov_b32 v{Q}, 0")
    for i in range(48):
        a(f"v_dot2_f32_bf16 v{S if i%2==0 else Q}, v{RAW+i}, s{ONES}, v{S if i%2==0 else Q}")
    a("s_nop 2")
    a(f"v_add_f32 v{S}, v{S}, v{Q}")
    reduce6(S)
    a(f"v_mul_f32 v{S}, {f32(1.0/576.0)}, v{S}")
    round_bf16(a, M, S)
    PM, PQ = 172, 174
    a(f"v_sub_f32 v{PM}, 0, v{M}")
    a(f"v_mov_b32 v{PM+1}, v{PM}")
    a(f"v_mov_b64 {vr(PQ,2)}, 0")
    a(f"v_mov_b64 {vr(PQ+2,2)}, 0")
    for i in range(48):
        t = 178 + (i % 4) * 2
        q = PQ + (i % 2) * 2
        a(f"v_lshlrev_b32 v{t}, 16, v{RAW+i}")
        a(f"v_and_b32 v{t+1}, 0xffff0000, v{RAW+i}")
        a(f"v_pk_add_f32 {vr(t,2)}, {vr(t,2)}, {vr(PM,2)}")
        a(f"v_pk_fma_f32 {vr(q,2)}, {vr(t,2)}, {vr(t,2)}, {vr(q,2)}")
        a(f"v_cvt_pk_bf16_f32 v{RAW+i}, v{t}, v{t+1}")
    a(f"v_add_f32 v{Q}, v{PQ}, v{PQ+1}")
    a(f"v_add_f32 v{vT+13}, v{PQ+2}, v{PQ+3}")
    a(f"v_add_f32 v{Q}, v{Q}, v{vT+13}")
    reduce6(Q)
    a(f"v_mul_f32 v{Q}, {f32(1.0/576.0)}, v{Q}")
    a(f"v_sub_f32 v{vT+13}, v{S}, v{M}")
    a(f"v_fma_f32 v{Q}, -v{vT+13}, v{vT+13}, v{Q}")
    a(f"v_max_f32 v{Q}, 0, v{Q}")
    round_bf16(a, Q, Q)
    a(f"v_add_f32 v{Q}, {f32(1e-5)}, v{Q}")
    round_bf16(a, Q, Q)
    a(f"v_sqrt_f32 v{Q}, v{Q}")
    a("s_nop 0")
    round_bf16(a, Q, Q)
    a(f"v_rcp_f32 v{PM}, v{Q}")
    a(f"v_lshrrev_b32 v{vT+11}, 4, v{vT+2}")
    a(f"v_mov_b32 v{PM+1}, v{PM}")
    a(f"v_mul_u32_u24 v{vT+11}, 18432, v{vT+11}")
    a(f"v_and_b32 v{vT+12}, 15, v{vT+2}")
    a(f"v_lshl_add_u32 v{vT+11}, v{vT+12}, 4, v{vT+11}")
    a(f"v_lshl_add_u32 v{vT+14}, v{vT+1}, 8, v{vT+11}")
    a(f"v_cmp_gt_u32 vcc, 60, v0")
    a(f"s_and_saveexec_b64 s[{sT+4}:{sT+5}], vcc")
    for i in range(12):
        for d_ in range(4):
            x = RAW + i*4 + d_
            t = 178 + d_ * 2
            a(f"v_lshlrev_b32 v{t}, 16, v{x}")
            a(f"v_and_b32 v{t+1}, 0xffff0000, v{x}")
            a(f"v_pk_mul_f32 {vr(t,2)}, {vr(t,2)}, {vr(PM,2)}")
            a(f"v_cvt_pk_bf16_f32 v{x}, v{t}, v{t+1}")
        a(f"ds_write_b128 v{vT+14}, {vr(RAW+i*4,4)} offset:{XT + i*6*256}")
    a(f"s_mov_b64 exec, s[{sT+4}:{sT+5}]")
    stamp(a, 2)
    a(f"v_lshrrev_b32 v{vT+5}, 5, v0")
    a(f"v_lshlrev_b32 v{vT+5}, 4, v{vT+5}")
    a(f"v_bfe_u32 v{vT+6}, v0, 2, 3")
    a(f"v_add_u32 v{vT+5}, v{vT+5}, v{vT+6}")
    a(f"v_mul_u32_u24 v{vT+5}, {PITCH}, v{vT+5}")
    a(f"v_and_b32 v{vT+6}, 3, v0")
    a(f"v_lshl_add_u32 v{vWa}, v{vT+6}, 3, v{vT+5}")
    a(f"s_lshl_b32 s{sT}, s{sWave}, 6")
    a(f"s_add_u32 s{sT}, s{sT}, {WB}")
    a(f"v_add_u32 v{vWa}, s{sT}, v{vWa}")
    a(f"v_lshlrev_b32 v{vXa}, 4, v0")
    for i in range(0, 40, 2):
        a(f"v_mov_b64 {vr(ACC+i,2)}, 0")
    vm.wait(lambda t: t[0] == "W" and t[1] <= 1, " lgkmcnt(0)")
    a("s_barrier")
    def reads(i):
        b = i % 2; st = i % NST
        for n in range(2):
            a(f"ds_read_b64_tr_b16 {vr(WF+b*8+n*4,2)}, v{vWa} offset:{st*STG + n*32}")
            a(f"ds_read_b64_tr_b16 {vr(WF+b*8+n*4+2,2)}, v{vWa} offset:{st*STG + n*32 + 8*PITCH}")
        for mt in range(5):
            off = (mt*18 + i)*1024
            if off < 65536:
                a(f"ds_read_b128 {vr(XF+b*20+mt*4,4)}, v{vXa} offset:{off}")
            else:
                a(f"ds_read_b128 {vr(XF+b*20+mt*4,4)}, v{vT} offset:{off-65536}")
    a(f"v_add_u32 v{vT}, 65536, v{vXa}")
    stamp(a, 3)
    reads(0)
    for i in range(18):
        if i < 17:
            reads(i+1)
            a("s_waitcnt lgkmcnt(9)")
        else:
            a("s_waitcnt lgkmcnt(0)")
        b = i % 2
        k = 0
        for mt in range(5):
            for n in range(2):
                a(f"v_mfma_f32_16x16x32_bf16 {vr(ACC+(mt*2+n)*4,4)}, {vr(WF+b*8+n*4,4)}, {vr(XF+b*20+mt*4,4)}, {vr(ACC+(mt*2+n)*4,4)}")
                k += 1
                if k == 2 and i >= 1:
                    wdma(i+3)
        if i < 17:
            vm.wait(lambda t: t[0] == "W" and t[1] <= i+2)
            a("s_barrier")
    a("s_barrier")
    stamp(a, 4)
    a(f"v_lshrrev_b32 v{vT}, 4, v0")
    a(f"v_lshlrev_b32 v{vT}, 2, v{vT}")
    a(f"s_lshl_b32 s{sT}, s{sWave}, 5")
    a(f"v_add_u32 v{vT}, s{sT}, v{vT}")
    a(f"v_and_b32 v{vT+1}, 15, v0")
    a(f"v_mul_u32_u24 v{vT+1}, {QP}, v{vT+1}")
    AD = vT + 4
    for n in range(2):
        for p in range(2):
            ad = AD + n*2 + p
            a(f"v_add_u32 v{vT+2}, {n*16+p*2}, v{vT}")
            a(f"v_mul_u32_u24 v{vT+3}, 3641, v{vT+2}")
            a(f"v_lshrrev_b32 v{vT+3}, 16, v{vT+3}")
            a(f"v_mul_u32_u24 v{ad}, 18, v{vT+3}")
            a(f"v_sub_u32 v{ad}, v{vT+2}, v{ad}")
            a(f"v_lshl_add_u32 v{ad}, v{ad}, 1, v{vT+1}")
            a(f"v_mad_u32_u24 v{ad}, v{vT+3}, 48, v{ad}")
    a(f"s_cmp_ge_u32 s{sWave}, 7")
    a("s_nop 4")
    a(f"s_cbranch_scc1 L_{name}_skipq")
    for mt in range(5):
        for n in range(2):
            c = ACC + (mt*2+n)*4
            a(f"v_cvt_pk_bf16_f32 v{vT+8}, v{c}, v{c+1}")
            a(f"v_cvt_pk_bf16_f32 v{vT+9}, v{c+2}, v{c+3}")
            a(f"ds_write_b32 v{AD+n*2}, v{vT+8} offset:{mt*16*QP}")
            a(f"ds_write_b32 v{AD+n*2+1}, v{vT+9} offset:{mt*16*QP}")
    a.lab(f"L_{name}_skipq")
    a("s_waitcnt lgkmcnt(0)")
    a("s_barrier")
    if "dbg1" in OPT:
        lds_dump(a, 57344, 9, 3, 190, 210, tag="q")
    a(f"s_cmp_ge_u32 s{sWave}, 4")
    a(f"s_cbranch_scc1 L_{name}_done")
    QR = 4; KR = 16; LG = 120; OA = 130; VR_ = 16
    a(f"v_lshrrev_b32 v{vT}, 2, v3")
    a(f"v_and_b32 v{vT+1}, 3, v3")
    a(f"v_add_u32 v{vT+2}, 2, v{vT}")
    a(f"v_mul_u32_u24 v{vT+2}, {QP}, v{vT+2}")
    a(f"v_mad_u32_u24 v{vT+2}, v{vT+1}, 48, v{vT+2}")
    for j in range(3):
        a(f"ds_read_b128 {vr(QR+j*4,4)}, v{vT+2} offset:{14*QP + j*16}")
    for w in range(8):
        for j in range(3):
            a(f"ds_read_b128 {vr(KR+w*12+j*4,4)}, v{vT+2} offset:{(14-2*w)*QP + 192 + j*16}")
    a(f"s_lshl_b32 s{sT}, s{sRb}, 6")
    a(f"v_add_u32 v{vT+3}, s{sT}, v{vT}")
    a(f"s_mov_b32 s{sT+1}, {f32(18.0**-0.5)}")
    a(f"s_mov_b32 s{sT+2}, {f32(-1e9)}")
    a(f"v_cvt_pk_bf16_f32 v{vT+4}, s{sT+2}, s{sT+2}")
    a(f"v_lshlrev_b32 v{vT+4}, 16, v{vT+4}")
    for w in range(8):
        a(f"s_waitcnt lgkmcnt({min(15, (7-w)*3)})")
        a(f"v_mov_b32 v{LG+w}, 0")
        for d_ in range(9):
            a(f"v_dot2_f32_bf16 v{LG+w}, v{QR+d_}, v{KR+w*12+d_}, v{LG+w}")
        a("s_nop 2")
        round_bf16(a, LG+w, LG+w)
        a(f"v_mul_f32 v{LG+w}, s{sT+1}, v{LG+w}")
        round_bf16(a, LG+w, LG+w)
        a(f"v_cmp_le_u32 vcc, {2*w}, v{vT+3}")
        a("s_nop 1")
        a(f"v_cndmask_b32 v{LG+w}, v{vT+4}, v{LG+w}, vcc")
    for w in range(8):
        for j in range(3):
            a(f"ds_read_b128 {vr(VR_+w*12+j*4,4)}, v{vT+2} offset:{(14-2*w)*QP + 384 + j*16}")
    a(f"v_max3_f32 v{vT+5}, v{LG}, v{LG+1}, v{LG+2}")
    a(f"v_max3_f32 v{vT+5}, v{vT+5}, v{LG+3}, v{LG+4}")
    a(f"v_max3_f32 v{vT+5}, v{vT+5}, v{LG+5}, v{LG+6}")
    a(f"v_max_f32 v{vT+5}, v{vT+5}, v{LG+7}")
    a(f"s_mov_b32 s{sT+3}, {f32(math.log2(math.e))}")
    for w in range(8):
        a(f"v_sub_f32 v{LG+w}, v{LG+w}, v{vT+5}")
        a(f"v_mul_f32 v{LG+w}, s{sT+3}, v{LG+w}")
        a(f"v_exp_f32 v{LG+w}, v{LG+w}")
    a("s_nop 0")
    a(f"v_add_f32 v{vT+6}, v{LG}, v{LG+1}")
    for w in range(2, 8):
        a(f"v_add_f32 v{vT+6}, v{vT+6}, v{LG+w}")
    a(f"v_rcp_f32 v{vT+6}, v{vT+6}")
    a("s_nop 0")
    for w in range(8):
        a(f"v_mul_f32 v{LG+w}, v{LG+w}, v{vT+6}")
    for wp in range(4):
        a(f"v_cvt_pk_bf16_f32 v{LG+wp}, v{LG+2*wp}, v{LG+2*wp+1}")
    for d_ in range(18):
        a(f"v_mov_b32 v{OA+d_}, 0")
    a(f"s_mov_b32 s{sT+4}, 0x05040100")
    a(f"s_mov_b32 s{sT+5}, 0x07060302")
    for wp in range(4):
        a(f"s_waitcnt lgkmcnt({min(15, (3-wp)*6)})")
        for d_ in range(9):
            x0 = VR_ + (2*wp)*12 + d_; x1 = VR_ + (2*wp+1)*12 + d_
            t = vT + 8 + (d_ % 2) * 2
            a(f"v_perm_b32 v{t}, v{x1}, v{x0}, s{sT+4}")
            a(f"v_perm_b32 v{t+1}, v{x1}, v{x0}, s{sT+5}")
            a(f"v_dot2_f32_bf16 v{OA+2*d_}, v{t}, v{LG+wp}, v{OA+2*d_}")
            a(f"v_dot2_f32_bf16 v{OA+2*d_+1}, v{t+1}, v{LG+wp}, v{OA+2*d_+1}")
    a("s_nop 2")
    for d_ in range(9):
        a(f"v_cvt_pk_bf16_f32 v{QR+d_}, v{OA+2*d_}, v{OA+2*d_+1}")
    a(f"v_mul_u32_u24 v{vT+3}, 1152, v{vT+3}")
    a(f"v_mad_u32_u24 v{vT+3}, v{vT+1}, 36, v{vT+3}")
    a(f"s_mul_i32 s{sT}, s{sHg}, 144")
    a(f"buffer_store_dwordx4 {vr(QR,4)}, v{vT+3}, {sr(sO,4)}, s{sT} offen")
    a(f"buffer_store_dwordx4 {vr(QR+4,4)}, v{vT+3}, {sr(sO,4)}, s{sT} offen offset:16")
    a(f"buffer_store_dword v{QR+8}, v{vT+3}, {sr(sO,4)}, s{sT} offen offset:32")
    if "stamp_off" in OPT: OPT.add("stamp")
    if "stamp" in OPT: a("s_waitcnt vmcnt(0)")
    stamp(a, 6, True)
    stamp_dump(a, 7, 8, sWave, vT+8, 3)
    a.lab(f"L_{name}_done")
    a("s_endpgm")
    return a.text(), kernel_desc(name, NV, 96), f"; @launch kernel={name} grid=(256,1,1) block=(512,1,1) lds={WB + NST*STG}"


def dma_slots_setup(a, sWave, sT, vT, vD, rowbytes, sM0, upshift, extra_s=None):
    a(f"s_lshl_b32 s{sT}, s{sWave}, 6")
    a(f"s_sub_u32 s{sT+1}, s{sT}, 64")
    a(f"s_cmp_eq_u32 s{sWave}, 0")
    a(f"s_cselect_b32 s{sT+1}, 512, s{sT+1}")
    a(f"s_cselect_b32 s{sT+3}, 0, {upshift}")
    a(f"s_add_u32 s{sT+2}, s{sT}, 448")
    a(f"s_lshl_b32 s{sM0}, s{sWave}, 10")
    a(f"s_add_u32 s{sM0+1}, s{sM0}, 8192")
    a(f"s_add_u32 s{sM0+1}, s{sM0+1}, s{sT+3}")
    a(f"s_add_u32 s{sM0+2}, s{sM0}, {16384+upshift}")
    for k in range(3):
        a(f"v_add_u32 v{vT+1}, s{sT+k}, v0")
        a(f"v_mul_u32_u24 v{vT+2}, 3641, v{vT+1}")
        a(f"v_lshrrev_b32 v{vT+8+k}, 16, v{vT+2}")
        a(f"v_mul_u32_u24 v{vT+3}, 18, v{vT+8+k}")
        a(f"v_sub_u32 v{vT+3}, v{vT+1}, v{vT+3}")
        a(f"v_mul_u32_u24 v{vT+2}, {rowbytes}, v{vT+8+k}")
        a(f"v_lshl_add_u32 v{vD+k}, v{vT+3}, 4, v{vT+2}")

def gen_k3v2(name="k3_kernel"):
    a = A(); a.k3 = True; a.stpol = os.environ.get("K3ST", "sc1")
    kernel_head(a, name)
    NST = 6; STG = 18560; UP = 9344; RING = 6; PF = RING - 1
    ACC = 4; XS = 148; WR = 196
    vWa, vWb = 220, 221
    vD = 222
    vX0 = 225
    vNM, vR = 226, 227
    vT = 228
    NV = 254
    def acc(nt): return ACC + nt*16
    sWa, sWb_, sWc, sX, sST, sH = 12, 16, 20, 24, 28, 32
    sWave, sFb, sMb = 36, 37, 38
    sWoff, sXoff, sIt = 39, 40, 41
    sM0 = 42
    sT = 46
    sRot, sCnt, sHb = 56, 57, 58
    a("s_cmp_ge_u32 s2, 256")
    a(f"s_cbranch_scc1 L_{name}_done")
    stamp(a, 0); stamp(a, 5, True)
    a("s_load_dwordx4 s[4:7], s[0:1], 32")
    a("s_load_dwordx2 s[8:9], s[0:1], 72")
    a("v_lshrrev_b32 v1, 6, v0")
    a("v_and_b32 v0, 63, v0")
    a("s_nop 0")
    a(f"v_readfirstlane_b32 s{sWave}, v1")
    a(f"s_and_b32 s{sT}, s2, 7")
    a(f"s_lshr_b32 s{sT+1}, s2, 3")
    a(f"s_and_b32 s{sFb}, s{sT+1}, 3")
    a(f"s_lshl_b32 s{sT}, s{sT}, 2")
    a(f"s_add_u32 s{sFb}, s{sFb}, s{sT}")
    a(f"s_lshr_b32 s{sMb}, s{sT+1}, 2")
    dma_slots_setup(a, sWave, sT, vT, vD, 9216, sM0, 128)
    a(f"s_mul_i32 s{sT}, s{sFb}, 288")
    for k in range(3):
        a(f"v_add_u32 v{vD+k}, s{sT}, v{vD+k}")
    a(f"s_lshl_b32 s{sT}, s{sMb}, 4")
    a(f"s_lshl_b32 s{sT+1}, s{sWave}, 1")
    a(f"s_add_u32 s{sT}, s{sT}, s{sT+1}")
    a(f"s_mul_i32 s{sT+1}, s{sT}, 18432")
    a(f"v_bfe_u32 v{vT}, v0, 4, 1")
    a(f"v_mul_u32_u24 v{vT}, 18432, v{vT}")
    a(f"v_lshrrev_b32 v{vT+1}, 5, v0")
    a(f"v_lshl_add_u32 v{vT}, v{vT+1}, 8, v{vT}")
    a(f"v_and_b32 v{vT+1}, 15, v0")
    a(f"v_lshl_add_u32 v{vT}, v{vT+1}, 4, v{vT}")
    a(f"v_add_u32 v{vX0}, s{sT+1}, v{vT}")
    a(f"s_mul_i32 s{sHb}, s{sT}, 144")
    a(f"s_lshr_b32 s{sT+1}, s{sFb}, 1")
    a(f"s_mul_i32 s{sT+1}, s{sT+1}, 9")
    a(f"s_add_u32 s{sHb}, s{sHb}, s{sT+1}")
    a(f"s_lshl_b32 s{sHb}, s{sHb}, 10")
    a(f"s_lshl_b32 s{sT}, s{sT}, 4")
    a(f"v_and_b32 v{vT+4}, 31, v0")
    a(f"v_add_u32 v{vT+4}, s{sT}, v{vT+4}")
    a(f"v_mul_u32_u24 v{vT+4}, 48, v{vT+4}")
    a(f"v_bfe_u32 v{vT}, v0, 4, 1")
    a(f"v_mul_u32_u24 v{vT}, {UP}, v{vT}")
    a(f"v_lshrrev_b32 v{vT+1}, 5, v0")
    a(f"v_bfe_u32 v{vT+2}, v0, 2, 2")
    a(f"v_lshl_add_u32 v{vT+1}, v{vT+1}, 2, v{vT+2}")
    a(f"v_mad_u32_u24 v{vT}, v{vT+1}, 288, v{vT}") if False else None
    a(f"v_mul_u32_u24 v{vT+1}, 288, v{vT+1}")
    a(f"v_add_u32 v{vT}, v{vT}, v{vT+1}")
    a(f"v_and_b32 v{vT+2}, 3, v0")
    a(f"v_lshl_add_u32 v{vWa}, v{vT+2}, 3, v{vT}")
    a(f"v_add_u32 v{vWb}, {3*STG}, v{vWa}")
    if "rot" in OPT:
        a(f"s_mul_i32 s{sRot}, s{sMb}, 9")
        a(f"s_and_b32 s{sT}, s{sFb}, 3")
        a(f"s_mul_i32 s{sT}, s{sT}, 18")
        a(f"s_add_u32 s{sRot}, s{sRot}, s{sT}")
        a(f"s_lshr_b32 s{sRot}, s{sRot}, 2")
        a(f"s_sub_u32 s{sT}, s{sRot}, 18")
        a(f"s_cmp_ge_u32 s{sRot}, 18")
        a(f"s_cselect_b32 s{sRot}, s{sT}, s{sRot}")
    else:
        a(f"s_mov_b32 s{sRot}, 0")
    a(f"s_mov_b32 s{sCnt}, 0")
    a(f"s_mul_i32 s{sWoff}, s{sRot}, {32*9216}")
    a(f"s_lshl_b32 s{sXoff}, s{sRot}, 10")
    a("s_waitcnt lgkmcnt(0)")
    if "pstamp" in OPT: stamp(a, 1)
    srd(a, sWa, 4, 576*4608*2)
    srd(a, sWc, 6, 576*4608*2)
    a(f"s_cmp_eq_u32 s{sWave}, 0")
    a(f"s_cselect_b32 s{sT}, s4, s6")
    a(f"s_cselect_b32 s{sT+1}, s5, s7")
    srd(a, sWb_, sT, 576*4608*2)
    srd(a, sX, 8, H1_SZ, H1_OFF)
    srd(a, sST, 8, ST_SZ, ST_OFF)
    srd(a, sH, 8, HH_SZ, HH_OFF)
    for q in range(3):
        a(f"buffer_load_dwordx4 {vr(WR+q*4,4)}, v{vT+4}, {sr(sST,4)}, 0 offen offset:{q*16}")
    M16 = "m16" in OPT
    TM = int(os.environ.get("TM", "4"))
    sA_, sB_, sE1, sE2 = 60-1, 59-1, 57, 56
    sA_, sB_, sE1, sE2 = 88, 89, 90, 91
    vA, vHo = 244, 245
    EO = 246
    ET = vT + 4
    a(f"s_mov_b32 s{sA_}, {f32(GELU_A)}")
    a(f"s_mov_b32 s{sB_}, {f32(GELU_B)}")
    a(f"v_mov_b32 v{vA}, s{sA_}")
    a(f"v_bfe_u32 v{vHo}, v0, 4, 1")
    a(f"v_mul_u32_u24 v{vHo}, 147456, v{vHo}")
    a(f"v_lshrrev_b32 v{vT+8}, 5, v0")
    a(f"v_lshl_add_u32 v{vHo}, v{vT+8}, 8, v{vHo}")
    a(f"v_and_b32 v{vT+8}, 15, v0")
    a(f"v_lshl_add_u32 v{vHo}, v{vT+8}, 4, v{vHo}")
    a(f"s_and_b32 s{sE2}, s{sFb}, 1")
    a(f"s_lshl_b32 s{sE1}, s{sE2}, 12")
    a(f"s_add_u32 s{sE1}, s{sE1}, s{sHb}")
    a(f"s_lshl_b32 s{sE2}, s{sE2}, 9")
    a(f"s_add_u32 s{sE2}, s{sE2}, s{sHb}")
    a(f"s_add_u32 s{sE2}, s{sE2}, {8*1024}")
    def epi_ops(nt):
        o = EO + (nt % 2) * 4
        out = []
        for hh in range(2):
            lines = [[], []]
            for c in range(2):
                p = hh*2 + c
                x0, x1 = acc(nt) + 2*p, acc(nt) + 2*p + 1
                y0, y1 = x0 + 8, x1 + 8
                t0, t1 = ET + c*2, ET + c*2 + 1
                lines[c] = [f"v_mul_f32 v{t0}, v{x0}, v{x0}", f"v_mul_f32 v{t1}, v{x1}, v{x1}",
                      f"v_fma_f32 v{t0}, v{t0}, s{sB_}, v{vA}", f"v_fma_f32 v{t1}, v{t1}, s{sB_}, v{vA}",
                      f"v_mul_f32 v{t0}, v{t0}, v{x0}", f"v_mul_f32 v{t1}, v{t1}, v{x1}",
                      f"v_exp_f32 v{t0}, v{t0}", f"v_exp_f32 v{t1}, v{t1}",
                      f"v_mul_f32 v{y0}, v{y0}, v{x0}", f"v_mul_f32 v{y1}, v{y1}, v{x1}",
                      f"v_add_f32 v{t0}, 1.0, v{t0}", f"v_add_f32 v{t1}, 1.0, v{t1}",
                      f"v_rcp_f32 v{t0}, v{t0}", f"v_rcp_f32 v{t1}, v{t1}",
                      f"v_mul_f32 v{t0}, v{t0}, v{y0}", f"v_mul_f32 v{t1}, v{t1}, v{y1}",
                      f"v_cvt_pk_bf16_f32 v{o+p}, v{t0}, v{t1}"]
            i0 = i1 = 0
            while i0 < len(lines[0]) or i1 < len(lines[1]):
                for _ in range(2):
                    if i0 < len(lines[0]): out.append(lines[0][i0]); i0 += 1
                for _ in range(2):
                    if i1 < len(lines[1]): out.append(lines[1][i1]); i1 += 1
        if nt < 8:
            out.append(f"buffer_store_dwordx4 {vr(o,4)}, v{vHo}, {sr(sH,4)}, s{sE1} offen offset:{(nt//2)*1024 + (nt%2)*512}")
        else:
            out.append(f"buffer_store_dwordx4 {vr(o,4)}, v{vHo}, {sr(sH,4)}, s{sE2} offen")
        return out
    def body(nd, tag):
        vm = VM(a)
        vm.ops = [("S", 0)] * 3
        srds = (sWa, sWb_, sWc)
        def load_groups(i):
            if i >= 18: return []
            st = i % NST
            gs = []
            for k in range(2):
                gs.append([("s", f"s_add_u32 m0, s{sM0+k}, {st*STG}"), ("s", "s_nop 0"),
                           (("W", i), f"buffer_load_dwordx4 v{vD+k}, {sr(srds[k],4)}, s{sWoff} offen lds")])
            gs[0] = [("s", f"s_cmp_ge_u32 s{sWave}, 2"), ("s", f"s_cbranch_scc1 L_{name}_sk{i}"),
                     ("s", f"s_add_u32 m0, s{sM0+2}, {st*STG}"), ("s", "s_nop 0"),
                     ("s", f"buffer_load_dwordx4 v{vD+2}, {sr(srds[2],4)}, s{sWoff} offen lds"),
                     ("l", f"L_{name}_sk{i}")] + gs[0]
            gs.append([(("X", i), f"buffer_load_dwordx4 {vr(XS+st*8,4)}, v{vX0}, {sr(sX,4)}, s{sXoff} offen")])
            gs.append([(("X", i), f"buffer_load_dwordx4 {vr(XS+st*8+4,4)}, v{vX0}, {sr(sX,4)}, s{sXoff} offen offset:512"),
                       ("s", f"s_add_u32 s{sRot}, s{sRot}, 1"),
                       ("s", f"s_cmp_eq_u32 s{sRot}, {4 if 'hot4' in OPT else 18}"),
                       ("s", f"s_cselect_b32 s{sRot}, 0, s{sRot}"),
                       ("s", f"s_mul_i32 s{sWoff}, s{sRot}, {32*9216}"),
                       ("s", f"s_lshl_b32 s{sXoff}, s{sRot}, 10")])
            return gs
        def emit_group(g):
            for tg, txt in g:
                if tg == "s": a(txt)
                elif tg == "l": a.lab(txt)
                else: vm.op(tg, txt)
        for i in range(2):
            for g in load_groups(i): emit_group(g)
        vm.wait(lambda t: t[0] == "S")
        b = WR
        a(f"v_add_f32 v{vT}, v{b}, v{b+2}")
        a(f"v_add_f32 v{vT+1}, v{b+4}, v{b+6}")
        a(f"v_add_f32 v{vT+2}, v{b+8}, v{b+10}")
        a(f"v_add_f32 v{vT}, v{vT}, v{vT+1}")
        a(f"v_add_f32 v{vT}, v{vT}, v{vT+2}")
        a(f"v_mul_f32 v{vT}, {f32(1.0/6.0)}, v{vT}")
        a(f"v_add_f32 v{vT+1}, v{b+1}, v{b+3}")
        a(f"v_add_f32 v{vT+2}, v{b+5}, v{b+7}")
        a(f"v_add_f32 v{vT+3}, v{b+9}, v{b+11}")
        a(f"v_add_f32 v{vT+1}, v{vT+1}, v{vT+2}")
        a(f"v_add_f32 v{vT+1}, v{vT+1}, v{vT+3}")
        a(f"v_mov_b32 v{vT+2}, 0")
        for t in range(6):
            a(f"v_sub_f32 v{vT+3}, v{b+2*t}, v{vT}")
            a(f"v_fmac_f32 v{vT+2}, v{vT+3}, v{vT+3}")
        a(f"v_fmac_f32 v{vT+1}, {f32(96.0)}, v{vT+2}")
        a(f"v_mul_f32 v{vT+1}, {f32(1.0/576.0)}, v{vT+1}")
        round_bf16(a, vNM, vT)
        round_bf16(a, vT+1, vT+1)
        a(f"v_add_f32 v{vT+1}, {f32(1e-5)}, v{vT+1}")
        round_bf16(a, vT+1, vT+1)
        a(f"v_sqrt_f32 v{vT+1}, v{vT+1}")
        a("s_nop 0")
        round_bf16(a, vT+1, vT+1)
        a(f"v_rcp_f32 v{vR}, v{vT+1}")
        if "exactnorm" not in OPT:
            a("s_nop 0")
            a(f"v_mul_f32 v{vNM}, v{vNM}, v{vR}")
            a(f"v_sub_f32 v{vNM}, 0, v{vNM}")
        def norm_ops(i):
            ops = []
            if i >= 18: return ops
            for h4 in range(2):
                chains = []
                for d in range(4):
                    x = XS + (i % NST)*8 + h4*4 + d
                    t0 = vT + 8 + d * 2; t1 = t0 + 1
                    chains.append([f"v_lshlrev_b32 v{t0}, 16, v{x}", f"v_and_b32 v{t1}, 0xffff0000, v{x}",
                                   f"v_fma_f32 v{t0}, v{t0}, v{vR}, v{vNM}", f"v_fma_f32 v{t1}, v{t1}, v{vR}, v{vNM}",
                                   f"v_cvt_pk_bf16_f32 v{x}, v{t0}, v{t1}"])
                for stage in ((0, 1), (2, 3), (4,)):
                    for c in chains:
                        for j in stage: ops.append(c[j])
            return ops
        NS = 18 - TM
        seq = [(i, f // 9, f % 9) for i in range(NS) for f in range(18)]
        seq += [(i, half, nt) for nt in range(9) for i in range(NS, 18) for half in range(2)]
        def wread(g):
            if g >= len(seq): return
            i, half, nt = seq[g]
            st = i % NST
            slot = g % RING
            base = vWa if st < 3 else vWb
            off = (st % 3) * STG + half * 8 * 288 + nt * 32
            a(f"ds_read_b64_tr_b16 {vr(WR+slot*4,2)}, v{base} offset:{off}")
            a(f"ds_read_b64_tr_b16 {vr(WR+slot*4+2,2)}, v{base} offset:{off+4608}")
        vm.wait(lambda t: t[1] <= 0)
        for op in norm_ops(0): a(op)
        a("s_barrier")
        for f in range(PF): wread(f)
        stamp(a, 1)
        sched = {0: [2, 3], 1: [4, 5], 2: [6, 7]}
        nsched = {i: [i + 1] for i in range(NS)}
        if TM:
            extra = list(range(NS + 1, 18))
            nsched[NS-1] = [NS] + extra[-2:]
            nsched[NS-2] = [NS-1] + extra[:-2]
        for i in range(NS):
            lg = []
            for j in sched.get(i, [i + 5]): lg += load_groups(j)
            nlist = nsched[i]
            ni = 0; gi = 0
            gpos = [1 + (k_ * 16) // max(1, len(lg)) for k_ in range(len(lg))]
            nstart = 6 if i < 3 else 1
            nops = []
            for j in nlist: nops += [("w", j)] + norm_ops(j)
            per = (len(nops) + (16 - nstart)) // (17 - nstart) if nops else 0
            for f in range(18):
                g = i*18 + f
                half, nt = divmod(f, 9)
                slot = g % RING
                if i == 0 and f == 18 - PF:
                    vm.wait(lambda t: t[0] == "W" and t[1] <= 1)
                    a("s_barrier")
                if TM and i == NS - 1 and f == 18 - PF:
                    vm.wait(lambda t: t[0] == "W")
                    a("s_barrier")
                wread(g + PF)
                rem = min(PF, len(seq) - 1 - g)
                a(f"s_waitcnt lgkmcnt({2*rem})")
                if i == 0:
                    a(f"v_mfma_f32_32x32x16_bf16 {vr(acc(nt),16)}, {vr(WR+slot*4,4)}, {vr(XS+(i%NST)*8+half*4,4)}, " + ("0" if half == 0 else vr(acc(nt),16)))
                else:
                    a(f"v_mfma_f32_32x32x16_bf16 {vr(acc(nt),16)}, {vr(WR+slot*4,4)}, {vr(XS+(i%NST)*8+half*4,4)}, {vr(acc(nt),16)}")
                while gi < len(lg) and gpos[gi] <= f:
                    emit_group(lg[gi]); gi += 1
                if f >= nstart:
                    for _ in range(per):
                        if ni < len(nops):
                            op = nops[ni]; ni += 1
                            if isinstance(op, tuple):
                                vm.wait(lambda t: t[0] == "X" and t[1] <= op[1])
                            else: a(op)
            assert ni == len(nops) and gi == len(lg), (i, ni, len(nops), gi, len(lg))
            if i < 17 and not (TM and i == NS - 1):
                vm.wait(lambda t: t[0] == "W" and t[1] <= i + 2)
                a("s_barrier")
        stamp(a, 2)
        g = NS * 18
        pend = []
        for nt in range(9):
            nm = 2 * TM
            per = (len(pend) + nm - 3) // max(1, nm - 2) if pend else 0
            pi = 0
            for q in range(nm):
                i, half, nt_ = seq[g]
                assert nt_ == nt
                slot = g % RING
                wread(g + PF)
                rem = min(PF, len(seq) - 1 - g)
                a(f"s_waitcnt lgkmcnt({2*rem})")
                a(f"v_mfma_f32_32x32x16_bf16 {vr(acc(nt),16)}, {vr(WR+slot*4,4)}, {vr(XS+(i%NST)*8+half*4,4)}, {vr(acc(nt),16)}")
                g += 1
                if q >= 2:
                    for _ in range(per):
                        if pi < len(pend): a(pend[pi]); pi += 1
            assert pi == len(pend)
            pend = epi_ops(nt)
        if not TM:
            a("s_nop 7"); a("s_nop 7")
            for nt in range(8):
                for op in epi_ops(nt): a(op)
        a("s_nop 7"); a("s_nop 7")
        for op in pend: a(op)
    body(2, "B")
    a.lab(f"L_{name}_epi")
    if "pstamp" not in OPT: stamp(a, 3)
    if "stamp" in OPT: a("s_waitcnt vmcnt(0)")
    if "pstamp" not in OPT: stamp(a, 4)
    stamp(a, 6, True)
    stamp_dump(a, 7, 8, sWave, vT+4)
    a.lab(f"L_{name}_done")
    a("s_endpgm")
    return a.text(), kernel_desc(name, NV), f"; @launch kernel={name} grid=(256,1,1) block=(512,1,1) lds={NST*STG}"

def gen_k3m(name="k3_kernel"):
    a = A()
    kernel_head(a, name)
    NST = 6; STG = 18560; UP = 9344; RING = 6; PF = RING - 1
    ACC = 4; XS = 148; WR = 196
    vWa, vWb = 220, 221
    vD = 222
    vX0 = 225
    vNM, vR = 226, 227
    vT = 228
    vX1, vNM1, vR1 = 244, 245, 246
    NV = 248
    def acc(nt, mat, mt): return ACC + ((nt*2+mat)*2+mt)*4
    sWa, sWb_, sWc, sX, sST, sH = 12, 16, 20, 24, 28, 32
    sWave, sFb, sMb = 36, 37, 38
    sWoff, sXoff, sIt = 39, 40, 41
    sM0 = 42
    sT = 46
    sRot, sCnt, sHb = 56, 57, 58
    a("s_cmp_ge_u32 s2, 256")
    a(f"s_cbranch_scc1 L_{name}_done")
    stamp(a, 0); stamp(a, 5, True)
    a("s_load_dwordx4 s[4:7], s[0:1], 32")
    a("s_load_dwordx2 s[8:9], s[0:1], 72")
    a("v_lshrrev_b32 v1, 6, v0")
    a("v_and_b32 v0, 63, v0")
    a("s_nop 0")
    a(f"v_readfirstlane_b32 s{sWave}, v1")
    a(f"s_and_b32 s{sT}, s2, 7")
    a(f"s_lshr_b32 s{sT+1}, s2, 3")
    a(f"s_and_b32 s{sFb}, s{sT+1}, 3")
    a(f"s_lshl_b32 s{sT}, s{sT}, 2")
    a(f"s_add_u32 s{sFb}, s{sFb}, s{sT}")
    a(f"s_lshr_b32 s{sMb}, s{sT+1}, 2")
    dma_slots_setup(a, sWave, sT, vT, vD, 9216, sM0, 128)
    a(f"s_mul_i32 s{sT}, s{sFb}, 288")
    for k in range(3):
        a(f"v_add_u32 v{vD+k}, s{sT}, v{vD+k}")
    a(f"s_lshl_b32 s{sT}, s{sMb}, 4")
    a(f"s_lshl_b32 s{sT+1}, s{sWave}, 1")
    a(f"s_add_u32 s{sT}, s{sT}, s{sT+1}")
    a(f"s_mul_i32 s{sT+1}, s{sT}, 18432")
    a(f"v_lshlrev_b32 v{vT}, 4, v0")
    a(f"v_add_u32 v{vX0}, s{sT+1}, v{vT}")
    a(f"v_add_u32 v{vX1}, 18432, v{vX0}")
    a(f"s_mul_i32 s{sHb}, s{sT}, 144")
    a(f"s_lshr_b32 s{sT+1}, s{sFb}, 1")
    a(f"s_mul_i32 s{sT+1}, s{sT+1}, 9")
    a(f"s_add_u32 s{sHb}, s{sHb}, s{sT+1}")
    a(f"s_lshl_b32 s{sHb}, s{sHb}, 10")
    a(f"s_lshl_b32 s{sT}, s{sT}, 4")
    a(f"v_and_b32 v{vT+4}, 15, v0")
    a(f"v_add_u32 v{vT+4}, s{sT}, v{vT+4}")
    a(f"v_mul_u32_u24 v{vT+4}, 48, v{vT+4}")
    a(f"v_lshrrev_b32 v{vT+1}, 2, v0")
    a(f"v_mul_u32_u24 v{vT+1}, 288, v{vT+1}")
    a(f"v_and_b32 v{vT+2}, 3, v0")
    a(f"v_lshl_add_u32 v{vWa}, v{vT+2}, 3, v{vT+1}")
    a(f"v_add_u32 v{vWb}, {3*STG}, v{vWa}")
    if "rot" in OPT:
        a(f"s_mul_i32 s{sRot}, s{sMb}, 9")
        a(f"s_and_b32 s{sT}, s{sFb}, 3")
        a(f"s_mul_i32 s{sT}, s{sT}, 18")
        a(f"s_add_u32 s{sRot}, s{sRot}, s{sT}")
        a(f"s_lshr_b32 s{sRot}, s{sRot}, 2")
        a(f"s_sub_u32 s{sT}, s{sRot}, 18")
        a(f"s_cmp_ge_u32 s{sRot}, 18")
        a(f"s_cselect_b32 s{sRot}, s{sT}, s{sRot}")
    else:
        a(f"s_mov_b32 s{sRot}, 0")
    a(f"s_mov_b32 s{sCnt}, 0")
    a(f"s_mul_i32 s{sWoff}, s{sRot}, {32*9216}")
    a(f"s_lshl_b32 s{sXoff}, s{sRot}, 10")
    a("s_waitcnt lgkmcnt(0)")
    if "pstamp" in OPT: stamp(a, 1)
    srd(a, sWa, 4, 576*4608*2)
    srd(a, sWc, 6, 576*4608*2)
    a(f"s_cmp_eq_u32 s{sWave}, 0")
    a(f"s_cselect_b32 s{sT}, s4, s6")
    a(f"s_cselect_b32 s{sT+1}, s5, s7")
    srd(a, sWb_, sT, 576*4608*2)
    srd(a, sX, 8, H1_SZ, H1_OFF)
    srd(a, sST, 8, ST_SZ, ST_OFF)
    srd(a, sH, 8, HH_SZ, HH_OFF)
    for mt in range(2):
        for q in range(3):
            a(f"buffer_load_dwordx4 {vr(WR+mt*12+q*4,4)}, v{vT+4}, {sr(sST,4)}, 0 offen offset:{mt*768+q*16}")
    a(f"s_cmp_ge_u32 s{sWave}, 2")
    a(f"s_cbranch_scc1 L_{name}_typeB")

    M16 = "m16" in OPT
    def body(nd, tag):
        vm = VM(a)
        vm.ops = [("S", 0)] * 6
        srds = (sWa, sWb_, sWc)
        def load_groups(i):
            if i >= 18: return []
            st = i % NST
            gs = []
            for k in range(nd):
                gs.append([("s", f"s_add_u32 m0, s{sM0+k}, {st*STG}"), ("s", "s_nop 0"),
                           (("W", i), f"buffer_load_dwordx4 v{vD+k}, {sr(srds[k],4)}, s{sWoff} offen lds")])
            gs.append([(("X", i), f"buffer_load_dwordx4 {vr(XS+st*8,4)}, v{vX0}, {sr(sX,4)}, s{sXoff} offen")])
            gs.append([(("X", i), f"buffer_load_dwordx4 {vr(XS+st*8+4,4)}, v{vX1}, {sr(sX,4)}, s{sXoff} offen"),
                       ("s", f"s_add_u32 s{sRot}, s{sRot}, 1"),
                       ("s", f"s_cmp_eq_u32 s{sRot}, {4 if 'hot4' in OPT else 18}"),
                       ("s", f"s_cselect_b32 s{sRot}, 0, s{sRot}"),
                       ("s", f"s_mul_i32 s{sWoff}, s{sRot}, {32*9216}"),
                       ("s", f"s_lshl_b32 s{sXoff}, s{sRot}, 10")])
            return gs
        def emit_group(g):
            for tg, txt in g:
                if tg == "s": a(txt)
                else: vm.op(tg, txt)
        for i in range(2):
            for g in load_groups(i): emit_group(g)
        vm.wait(lambda t: t[0] == "S")
        for b, vNM_, vR_ in ((WR, vNM, vR), (WR+12, vNM1, vR1)):
            a(f"v_add_f32 v{vT}, v{b}, v{b+2}")
            a(f"v_add_f32 v{vT+1}, v{b+4}, v{b+6}")
            a(f"v_add_f32 v{vT+2}, v{b+8}, v{b+10}")
            a(f"v_add_f32 v{vT}, v{vT}, v{vT+1}")
            a(f"v_add_f32 v{vT}, v{vT}, v{vT+2}")
            a(f"v_mul_f32 v{vT}, {f32(1.0/6.0)}, v{vT}")
            a(f"v_add_f32 v{vT+1}, v{b+1}, v{b+3}")
            a(f"v_add_f32 v{vT+2}, v{b+5}, v{b+7}")
            a(f"v_add_f32 v{vT+3}, v{b+9}, v{b+11}")
            a(f"v_add_f32 v{vT+1}, v{vT+1}, v{vT+2}")
            a(f"v_add_f32 v{vT+1}, v{vT+1}, v{vT+3}")
            a(f"v_mov_b32 v{vT+2}, 0")
            for t in range(6):
                a(f"v_sub_f32 v{vT+3}, v{b+2*t}, v{vT}")
                a(f"v_fmac_f32 v{vT+2}, v{vT+3}, v{vT+3}")
            a(f"v_fmac_f32 v{vT+1}, {f32(96.0)}, v{vT+2}")
            a(f"v_mul_f32 v{vT+1}, {f32(1.0/576.0)}, v{vT+1}")
            round_bf16(a, vNM_, vT)
            round_bf16(a, vT+1, vT+1)
            a(f"v_add_f32 v{vT+1}, {f32(1e-5)}, v{vT+1}")
            round_bf16(a, vT+1, vT+1)
            a(f"v_sqrt_f32 v{vT+1}, v{vT+1}")
            a("s_nop 0")
            round_bf16(a, vT+1, vT+1)
            a(f"v_rcp_f32 v{vR_}, v{vT+1}")
            if "exactnorm" not in OPT:
                a("s_nop 0")
                a(f"v_mul_f32 v{vNM_}, v{vNM_}, v{vR_}")
                a(f"v_sub_f32 v{vNM_}, 0, v{vNM_}")
        def norm_ops(i):
            ops = []
            if i >= 18: return ops
            for d in range(8):
                x = XS + (i % NST)*8 + d
                t0 = vT + (d % 2) * 2; t1 = t0 + 1
                vNM, vR = (226, 227) if d < 4 else (vNM1, vR1)
                ops.append(f"v_lshlrev_b32 v{t0}, 16, v{x}")
                ops.append(f"v_and_b32 v{t1}, 0xffff0000, v{x}")
                if "exactnorm" in OPT:
                    ops.append(f"v_sub_f32 v{t0}, v{t0}, v{vNM}")
                    ops.append(f"v_sub_f32 v{t1}, v{t1}, v{vNM}")
                    ops.append(f"v_cvt_pk_bf16_f32 v{t0}, v{t0}, v{t1}")
                    ops.append(f"v_and_b32 v{t1}, 0xffff0000, v{t0}")
                    ops.append(f"v_lshlrev_b32 v{t0}, 16, v{t0}")
                    ops.append(f"v_mul_f32 v{t0}, v{t0}, v{vR}")
                    ops.append(f"v_mul_f32 v{t1}, v{t1}, v{vR}")
                else:
                    ops.append(f"v_fma_f32 v{t0}, v{t0}, v{vR}, v{vNM}")
                    ops.append(f"v_fma_f32 v{t1}, v{t1}, v{vR}, v{vNM}")
                ops.append(f"v_cvt_pk_bf16_f32 v{x}, v{t0}, v{t1}")
            return ops
        def wread(g):
            i, f = divmod(g, 18)
            if i >= 18: return
            st = i % NST
            nt, mat = divmod(f, 2)
            slot = g % RING
            base = vWa if st < 3 else vWb
            off = (st % 3) * STG + mat * UP + nt * 32
            a(f"ds_read_b64_tr_b16 {vr(WR+slot*4,2)}, v{base} offset:{off}")
            a(f"ds_read_b64_tr_b16 {vr(WR+slot*4+2,2)}, v{base} offset:{off+4608}")
        vm.wait(lambda t: t[1] <= 0)
        for op in norm_ops(0): a(op)
        a("s_barrier")
        for f in range(PF): wread(f)
        stamp(a, 1)
        sched = {0: [2, 3], 1: [4, 5], 2: [6, 7]}
        for i in range(18):
            lg = []
            for j in sched.get(i, [i + 5]): lg += load_groups(j)
            nops = norm_ops(i + 1)
            ni = 0; gi = 0
            gpos = [1 + (k * 16) // max(1, len(lg)) for k in range(len(lg))]
            nstart = 6 if i < 3 else 1
            per = (len(nops) + (16 - nstart)) // (17 - nstart) if nops else 0
            for f in range(18):
                g = i*18 + f
                half, nt = divmod(f, 9)
                slot = g % RING
                if i == 0 and f == 18 - PF:
                    vm.wait(lambda t: t[0] == "W" and t[1] <= 1)
                    a("s_barrier")
                wread(g + PF)
                rem = min(PF, 18*18 - 1 - g)
                a(f"s_waitcnt lgkmcnt({2*rem})")
                nt, mat = divmod(f, 2)
                for mt in range(2):
                    a(f"v_mfma_f32_16x16x32_bf16 {vr(acc(nt,mat,mt),4)}, {vr(WR+slot*4,4)}, {vr(XS+(i%NST)*8+mt*4,4)}, " + ("0" if i == 0 else vr(acc(nt,mat,mt),4)))
                if f == nstart and nops:
                    vm.wait(lambda t: t[0] == "X" and t[1] <= i + 1)
                while gi < len(lg) and gpos[gi] <= f:
                    emit_group(lg[gi]); gi += 1
                if f >= nstart:
                    for _ in range(per):
                        if ni < len(nops):
                            a(nops[ni]); ni += 1
            assert ni == len(nops) and gi == len(lg), (i, ni, len(nops), gi, len(lg))
            if i < 17:
                vm.wait(lambda t: t[0] == "W" and t[1] <= i + 2)
                a("s_barrier")
    body(3, "A")
    a(f"s_branch L_{name}_epi")
    a.lab(f"L_{name}_typeB")
    body(2, "B")
    a.lab(f"L_{name}_epi")
    if "pstamp" not in OPT: stamp(a, 2)
    a("s_waitcnt vmcnt(0) lgkmcnt(0)")
    sA_, sB_ = sT+6, sT+7
    a(f"s_mov_b32 s{sA_}, {f32(GELU_A)}")
    a(f"s_mov_b32 s{sB_}, {f32(GELU_B)}")
    a(f"v_lshlrev_b32 v{vX0}, 4, v0")
    a(f"s_and_b32 s{sT}, s{sFb}, 1")
    a(f"s_lshl_b32 s{sT+1}, s{sT}, 12")
    a(f"s_add_u32 s{sT+1}, s{sT+1}, s{sHb}")
    a(f"s_lshl_b32 s{sT+2}, s{sT}, 3")
    a(f"s_add_u32 s{sT+2}, s{sT+2}, s{sHb}")
    a(f"s_add_u32 s{sT+2}, s{sT+2}, {8*1024}")
    a(f"s_add_u32 s{sT+3}, s{sT+1}, {144*1024}")
    a(f"s_add_u32 s{sT+4}, s{sT+2}, {144*1024}")
    a(f"v_mov_b32 v{vT}, s{sA_}")
    a("s_nop 7")
    def gelu_tile(nt, mt, dst):
        T = WR
        lines = [[], []]
        for c in range(2):
            g0, g1 = acc(nt,0,mt) + 2*c, acc(nt,0,mt) + 2*c + 1
            u0, u1 = acc(nt,1,mt) + 2*c, acc(nt,1,mt) + 2*c + 1
            t0, t1 = T + c*8 + 4, T + c*8 + 5
            x0, x1, y0, y1 = g0, g1, u0, u1
            L = lines[c]
            L += [f"v_mul_f32 v{t0}, v{x0}, v{x0}", f"v_mul_f32 v{t1}, v{x1}, v{x1}",
                  f"v_fma_f32 v{t0}, v{t0}, s{sB_}, v{vT}", f"v_fma_f32 v{t1}, v{t1}, s{sB_}, v{vT}",
                  f"v_mul_f32 v{t0}, v{t0}, v{x0}", f"v_mul_f32 v{t1}, v{t1}, v{x1}",
                  f"v_exp_f32 v{t0}, v{t0}", f"v_exp_f32 v{t1}, v{t1}",
                  f"v_mul_f32 v{y0}, v{y0}, v{x0}", f"v_mul_f32 v{y1}, v{y1}, v{x1}",
                  f"v_add_f32 v{t0}, 1.0, v{t0}", f"v_add_f32 v{t1}, 1.0, v{t1}",
                  f"v_rcp_f32 v{t0}, v{t0}", f"v_rcp_f32 v{t1}, v{t1}",
                  f"v_mul_f32 v{t0}, v{t0}, v{y0}", f"v_mul_f32 v{t1}, v{t1}, v{y1}",
                  f"v_cvt_pk_bf16_f32 v{dst+c}, v{t0}, v{t1}"]
        i0 = i1 = 0
        while i0 < len(lines[0]) or i1 < len(lines[1]):
            for _ in range(2):
                if i0 < len(lines[0]): a(lines[0][i0]); i0 += 1
            for _ in range(2):
                if i1 < len(lines[1]): a(lines[1][i1]); i1 += 1
    k = 0
    for mt in range(2):
        for p in range(4):
            o = XS + (k % 12) * 4; k += 1
            gelu_tile(2*p, mt, o)
            gelu_tile(2*p+1, mt, o+2)
            a(f"buffer_store_dwordx4 {vr(o,4)}, v{vX0}, {sr(sH,4)}, s{sT+1+2*mt} offen offset:{p*1024}")
        o = XS + (k % 12) * 4; k += 1
        gelu_tile(8, mt, o)
        a(f"buffer_store_dwordx2 {vr(o,2)}, v{vX0}, {sr(sH,4)}, s{sT+2+2*mt} offen")
    if "pstamp" not in OPT: stamp(a, 3)
    if "stamp" in OPT: a("s_waitcnt vmcnt(0)")
    if "pstamp" not in OPT: stamp(a, 4)
    stamp(a, 6, True)
    stamp_dump(a, 7, 8, sWave, vT+4)
    a.lab(f"L_{name}_done")
    a("s_endpgm")
    return a.text(), kernel_desc(name, NV), f"; @launch kernel={name} grid=(256,1,1) block=(512,1,1) lds={NST*STG}"

def gen_k4v2(name="k4_kernel"):
    a = A(); a.stpol = os.environ.get("K4ST", "sc1")
    kernel_head(a, name)
    NST = 6; STG = 18432; RING = 6; PFD = 5; PF = RING - 1
    ROWB = 4608 if "m16" in OPT else 2304
    ACC = 4; XS = 76; WR = 124
    vWa, vWb = 148, 149
    vD = 150; vDm = 153
    vX0, vX1 = 156, 157
    vT = 160
    NV = 176
    def acc(nt, mt): return ACC + (nt*2+mt)*4
    sW, sX, sP = 12, 16, 20
    sWave, sKs, sMb, sNb = 28, 29, 30, 31
    sWb1, sXb, sPb = 32, 33, 34
    sM0 = 36
    sT = 40
    sWo = 52
    a("s_cmp_ge_u32 s2, 256")
    a(f"s_cbranch_scc1 L_{name}_done")
    stamp(a, 0); stamp(a, 5, True)
    a("s_load_dwordx2 s[4:5], s[0:1], 48")
    a("s_load_dwordx2 s[8:9], s[0:1], 72")
    a("v_lshrrev_b32 v1, 6, v0")
    a("v_and_b32 v0, 63, v0")
    a("s_nop 0")
    a(f"v_readfirstlane_b32 s{sWave}, v1")
    a(f"s_and_b32 s{sT}, s2, 7")
    a(f"s_lshr_b32 s{sT+1}, s2, 3")
    a(f"s_lshr_b32 s{sKs}, s{sT}, 1")
    a(f"s_and_b32 s{sNb}, s{sT+1}, 3")
    a(f"s_and_b32 s{sT}, s{sT}, 1")
    a(f"s_lshl_b32 s{sT}, s{sT}, 3")
    a(f"s_lshr_b32 s{sMb}, s{sT+1}, 2")
    a(f"s_add_u32 s{sMb}, s{sMb}, s{sT}")
    dma_slots_setup(a, sWave, sT, vT, vD, 1152, sM0, 0)
    a(f"s_cmp_eq_u32 s{sWave}, 0")
    a(f"s_cselect_b32 s{sT}, 0, {576*1152}")
    a(f"v_add_u32 v{vD+1}, s{sT}, v{vD+1}")
    a(f"v_add_u32 v{vD+2}, {576*1152}, v{vD+2}")
    a(f"s_mov_b32 s{sT}, {128*1152}")
    for k in range(3):
        a(f"v_cmp_lt_u32 vcc, 15, v{vT+8+k}")
        a(f"v_mov_b32 v{vT+1}, s{sT}")
        a("s_nop 0")
        a(f"v_cndmask_b32 v{vT+1}, 0, v{vT+1}, vcc")
        a(f"v_add_u32 v{vDm+k}, v{vD+k}, v{vT+1}")
    a(f"s_mul_i32 s{sWb1}, s{sKs}, {2*576*1152}")
    a(f"s_mul_i32 s{sT}, s{sNb}, 288")
    a(f"s_add_u32 s{sWb1}, s{sWb1}, s{sT}")
    a(f"s_lshr_b32 s{sT}, s{sWave}, 2")
    a(f"s_lshl_b32 s{sT+1}, s{sKs}, 1")
    a(f"s_add_u32 s{sT+1}, s{sT+1}, s{sT}")
    a(f"s_and_b32 s{sT+2}, s{sWave}, 3")
    a(f"s_lshl_b32 s{sXb}, s{sMb}, 3")
    a(f"s_lshl_b32 s{sT+3}, s{sT+2}, 1")
    a(f"s_add_u32 s{sXb}, s{sXb}, s{sT+3}")
    a(f"s_mov_b32 s{sT+4}, s{sXb}")
    a(f"s_mul_i32 s{sXb}, s{sXb}, 144")
    a(f"s_mul_i32 s{sT+3}, s{sT+1}, 18")
    a(f"s_add_u32 s{sXb}, s{sXb}, s{sT+3}")
    a(f"s_lshl_b32 s{sXb}, s{sXb}, 10")
    a(f"v_lshlrev_b32 v{vX0}, 4, v0")
    a(f"v_add_u32 v{vX0}, s{sXb}, v{vX0}")
    a(f"v_add_u32 v{vX1}, {144*1024}, v{vX0}")
    a(f"s_lshl_b32 s{sPb}, s{sKs}, 7")
    a(f"s_add_u32 s{sPb}, s{sPb}, s{sT+4}")
    a(f"s_add_u32 s{sPb}, s{sPb}, s{sT}")
    a(f"s_mul_i32 s{sPb}, s{sPb}, 36")
    a(f"s_mul_i32 s{sT+6}, s{sNb}, 9")
    a(f"s_add_u32 s{sPb}, s{sPb}, s{sT+6}")
    a(f"s_lshl_b32 s{sPb}, s{sPb}, {9 if 'pb16' in OPT else 10}")
    if "m16" in OPT:
        a(f"v_lshrrev_b32 v{vT+5}, 2, v0")
    else:
        a(f"v_lshrrev_b32 v{vT+5}, 5, v0")
        a(f"v_lshlrev_b32 v{vT+5}, 4, v{vT+5}")
        a(f"v_bfe_u32 v{vT+6}, v0, 2, 3")
        a(f"v_add_u32 v{vT+5}, v{vT+5}, v{vT+6}")
    a(f"v_mul_u32_u24 v{vT+5}, 288, v{vT+5}")
    a(f"v_and_b32 v{vT+6}, 3, v0")
    a(f"v_lshl_add_u32 v{vWa}, v{vT+6}, 3, v{vT+5}")
    a(f"s_mul_i32 s{sT+6}, s{sT}, 9216")
    a(f"v_add_u32 v{vWa}, s{sT+6}, v{vWa}")
    a(f"v_add_u32 v{vWb}, {3*STG}, v{vWa}")
    a("s_waitcnt lgkmcnt(0)")
    srd(a, sW, 4, 4608*576*2)
    srd(a, sX, 8, HH_SZ, HH_OFF)
    srd(a, sP, 8, P_SZ, P_OFF)
    def fa_rel(i):
        q, ii = divmod(i, 9)
        if ii < 4: return 288*q + 32*ii
        if ii < 8: return 288*q + 144 + 32*(ii-4)
        return 288*q + 128
    def body(nd, tag):
        vm = VM(a)
        def load_groups(i):
            if i >= 18: return []
            st = i % NST
            gs = []
            vv = vDm if i % 9 == 8 else vD
            for k in range(2):
                g = []
                if k == 0:
                    g.append(("s", f"s_add_u32 s{sWo}, s{sWb1}, {fa_rel(i)*1152}"))
                    g += [("s", f"s_cmp_ge_u32 s{sWave}, 2"), ("s", f"s_cbranch_scc1 L_{name}_sk{i}"),
                          ("s", f"s_add_u32 m0, s{sM0+2}, {st*STG}"), ("s", "s_nop 0"),
                          ("s", f"buffer_load_dwordx4 v{vv+2}, {sr(sW,4)}, s{sWo} offen lds"),
                          ("l", f"L_{name}_sk{i}")]
                g.append(("s", f"s_add_u32 m0, s{sM0+k}, {st*STG}"))
                g.append(("s", "s_nop 0"))
                g.append((("W", i), f"buffer_load_dwordx4 v{vv+k}, {sr(sW,4)}, s{sWo} offen lds"))
                gs.append(g)
            xs = XS + (i % NST) * 8
            gs.append([("s", f"s_mov_b32 s{sWo+1}, {i*1024}"),
                       (("X", i), f"buffer_load_dwordx4 {vr(xs,4)}, v{vX0}, {sr(sX,4)}, s{sWo+1} offen")])
            gs.append([(("X", i), f"buffer_load_dwordx4 {vr(xs+4,4)}, v{vX1}, {sr(sX,4)}, s{sWo+1} offen")])
            return gs
        def emit_group(g):
            for tg, txt in g:
                if tg == "s": a(txt)
                elif tg == "l": a.lab(txt)
                else: vm.op(tg, txt)
        for i in range(2):
            for g in load_groups(i): emit_group(g)
        for i in range(0, 72, 2):
            a(f"v_mov_b64 {vr(ACC+i,2)}, 0")
        sched = {0: [2, 3], 1: [4, 5], 2: [6, 7]}
        def wread(gidx):
            i, nt = divmod(gidx, 9)
            if i >= 18: return
            st = i % NST; slot = gidx % RING
            base = vWa if st < 3 else vWb
            off = (st % 3) * STG + nt * 32
            a(f"ds_read_b64_tr_b16 {vr(WR+slot*4,2)}, v{base} offset:{off}")
            a(f"ds_read_b64_tr_b16 {vr(WR+slot*4+2,2)}, v{base} offset:{off+ROWB}")
        vm.wait(lambda t: t[1] <= 0)
        a("s_barrier")
        for f in range(PF): wread(f)
        stamp(a, 1)
        for i in range(18):
            lg = []
            for j in sched.get(i, [i + PFD]): lg += load_groups(j)
            vm.wait(lambda t: t[0] == "X" and t[1] <= i)
            gi = 0
            gpos = [(k * 9) // max(1, len(lg)) for k in range(len(lg))]
            for nt in range(9):
                g = i*9 + nt; slot = g % RING
                if i == 0 and nt == 9 - PF:
                    vm.wait(lambda t: t[0] == "W" and t[1] <= 1)
                    a("s_barrier")
                wread(g + PF)
                rem = min(PF, 18*9 - 1 - g)
                a(f"s_waitcnt lgkmcnt({2*rem})")
                xs = XS + (i % NST) * 8
                a(f"v_mfma_f32_16x16x32_bf16 {vr(acc(nt,0),4)}, {vr(WR+slot*4,4)}, {vr(xs,4)}, {vr(acc(nt,0),4)}")
                a(f"v_mfma_f32_16x16x32_bf16 {vr(acc(nt,1),4)}, {vr(WR+slot*4,4)}, {vr(xs+4,4)}, {vr(acc(nt,1),4)}")
                while gi < len(lg) and gpos[gi] <= nt:
                    emit_group(lg[gi]); gi += 1
            assert gi == len(lg)
            vm.wait(lambda t: t[0] == "W" and t[1] <= i + 2)
            a("s_barrier")
    body(2, "B")
    a.lab(f"L_{name}_epi")
    stamp(a, 2)
    a(f"s_lshr_b32 s{sT}, s{sWave}, 2")
    a(f"v_lshlrev_b32 v{vT}, 4, v0")
    a(f"v_lshlrev_b32 v{vT+3}, 3, v0")
    a(f"s_mul_i32 s{sT+1}, s{sWave}, 9216")
    a(f"v_add_u32 v{vT+1}, s{sT+1}, v{vT}")
    a(f"s_xor_b32 s{sT+2}, s{sWave}, 4")
    a(f"s_mul_i32 s{sT+2}, s{sT+2}, 9216")
    a(f"v_add_u32 v{vT+2}, s{sT+2}, v{vT}")
    a(f"s_cmp_eq_u32 s{sT}, 0")
    a("s_nop 4")
    a(f"s_cbranch_scc0 L_{name}_kh1")
    for kh in range(2):
        if kh == 1: a.lab(f"L_{name}_kh1")
        for nt in range(9):
            a(f"ds_write_b128 v{vT+1}, {vr(acc(nt,1-kh),4)} offset:{nt*1024}")
        a("s_waitcnt lgkmcnt(0)")
        a("s_barrier")
        for nt in range(9):
            a(f"ds_read_b128 {vr(XS+nt*4,4)}, v{vT+2} offset:{nt*1024}")
        for nt in range(9):
            a(f"s_waitcnt lgkmcnt({8-nt})")
            for r in range(4):
                a(f"v_add_f32 v{XS+nt*4+r}, v{XS+nt*4+r}, v{acc(nt,kh)+r}")
            if "pb16" in OPT:
                a(f"v_cvt_pk_bf16_f32 v{XS+nt*4}, v{XS+nt*4}, v{XS+nt*4+1}")
                a(f"v_cvt_pk_bf16_f32 v{XS+nt*4+1}, v{XS+nt*4+2}, v{XS+nt*4+3}")
                if nt == 8: a(f"s_add_u32 s{sPb}, s{sPb}, 4096")
                a(f"buffer_store_dwordx2 {vr(XS+nt*4,2)}, v{vT+3}, {sr(sP,4)}, s{sPb} offen offset:{(nt%8)*512} sc1")
            else:
                if nt in (4, 8): a(f"s_add_u32 s{sPb}, s{sPb}, 4096")
                a(f"buffer_store_dwordx4 {vr(XS+nt*4,4)}, v{vT}, {sr(sP,4)}, s{sPb} offen offset:{(nt%4)*1024}")
        stamp(a, 3)
        if "stamp" in OPT: a("s_waitcnt vmcnt(0)")
        stamp(a, 4); stamp(a, 6, True)
        stamp_dump(a, 7, 8, sWave, vT+4, 1)
        a("s_endpgm")
    a.lab(f"L_{name}_done")
    a("s_endpgm")
    return a.text(), kernel_desc(name, NV), f"; @launch kernel={name} grid=(256,1,1) block=(512,1,1) lds={NST*STG}"


def gen_k45(name="k4_kernel"):
    a = A(); a.stpol = os.environ.get("K4ST", "sc1")
    kernel_head(a, name)
    NST = 6; STG = 18432; RING = 6; PFD = 5; PF = RING - 1
    ROWB = 4608 if "m16" in OPT else 2304
    ACC = 4; XS = 76; WR = 124
    vWa, vWb = 148, 149
    vD = 150; vDm = 153
    vX0, vX1 = 156, 157
    vT = 160
    NV = 176
    def acc(nt, mt): return ACC + (nt*2+mt)*4
    sW, sX, sP = 12, 16, 20
    sWave, sKs, sMb, sNb = 28, 29, 30, 31
    sWb1, sXb, sPb = 32, 33, 34
    sM0 = 36
    sT = 40
    sWo = 52
    NC = 144
    a(f"s_cmp_ge_u32 s2, {256+NC}")
    a(f"s_cbranch_scc1 L_{name}_done")
    a("s_cmp_ge_u32 s2, 256")
    a(f"s_cbranch_scc1 L_{name}_cons")
    stamp(a, 0); stamp(a, 5, True)
    a("s_load_dwordx2 s[4:5], s[0:1], 48")
    a("s_load_dwordx2 s[8:9], s[0:1], 72")
    a("s_load_dwordx2 s[10:11], s[0:1], 64")
    a("v_lshrrev_b32 v1, 6, v0")
    a("v_and_b32 v0, 63, v0")
    a("s_nop 0")
    a(f"v_readfirstlane_b32 s{sWave}, v1")
    a(f"s_and_b32 s{sT}, s2, 7")
    a(f"s_lshr_b32 s{sT+1}, s2, 3")
    a(f"s_lshr_b32 s{sKs}, s{sT}, 1")
    a(f"s_and_b32 s{sNb}, s{sT+1}, 3")
    a(f"s_and_b32 s{sT}, s{sT}, 1")
    a(f"s_lshl_b32 s{sT}, s{sT}, 3")
    a(f"s_lshr_b32 s{sMb}, s{sT+1}, 2")
    a(f"s_add_u32 s{sMb}, s{sMb}, s{sT}")
    dma_slots_setup(a, sWave, sT, vT, vD, 1152, sM0, 0)
    a(f"s_cmp_eq_u32 s{sWave}, 0")
    a(f"s_cselect_b32 s{sT}, 0, {576*1152}")
    a(f"v_add_u32 v{vD+1}, s{sT}, v{vD+1}")
    a(f"v_add_u32 v{vD+2}, {576*1152}, v{vD+2}")
    a(f"s_mov_b32 s{sT}, {128*1152}")
    for k in range(3):
        a(f"v_cmp_lt_u32 vcc, 15, v{vT+8+k}")
        a(f"v_mov_b32 v{vT+1}, s{sT}")
        a("s_nop 0")
        a(f"v_cndmask_b32 v{vT+1}, 0, v{vT+1}, vcc")
        a(f"v_add_u32 v{vDm+k}, v{vD+k}, v{vT+1}")
    a(f"s_mul_i32 s{sWb1}, s{sKs}, {2*576*1152}")
    a(f"s_mul_i32 s{sT}, s{sNb}, 288")
    a(f"s_add_u32 s{sWb1}, s{sWb1}, s{sT}")
    a(f"s_lshr_b32 s{sT}, s{sWave}, 2")
    a(f"s_lshl_b32 s{sT+1}, s{sKs}, 1")
    a(f"s_add_u32 s{sT+1}, s{sT+1}, s{sT}")
    a(f"s_and_b32 s{sT+2}, s{sWave}, 3")
    a(f"s_lshl_b32 s{sXb}, s{sMb}, 3")
    a(f"s_lshl_b32 s{sT+3}, s{sT+2}, 1")
    a(f"s_add_u32 s{sXb}, s{sXb}, s{sT+3}")
    a(f"s_mov_b32 s{sT+4}, s{sXb}")
    a(f"s_mul_i32 s{sXb}, s{sXb}, 144")
    a(f"s_mul_i32 s{sT+3}, s{sT+1}, 18")
    a(f"s_add_u32 s{sXb}, s{sXb}, s{sT+3}")
    a(f"s_lshl_b32 s{sXb}, s{sXb}, 10")
    a(f"v_lshlrev_b32 v{vX0}, 4, v0")
    a(f"v_add_u32 v{vX0}, s{sXb}, v{vX0}")
    a(f"v_add_u32 v{vX1}, {144*1024}, v{vX0}")
    a(f"s_lshl_b32 s{sPb}, s{sKs}, 7")
    a(f"s_add_u32 s{sPb}, s{sPb}, s{sT+4}")
    a(f"s_add_u32 s{sPb}, s{sPb}, s{sT}")
    a(f"s_mul_i32 s{sPb}, s{sPb}, 36")
    a(f"s_mul_i32 s{sT+6}, s{sNb}, 9")
    a(f"s_add_u32 s{sPb}, s{sPb}, s{sT+6}")
    a(f"s_lshl_b32 s{sPb}, s{sPb}, 10")
    if "m16" in OPT:
        a(f"v_lshrrev_b32 v{vT+5}, 2, v0")
    else:
        a(f"v_lshrrev_b32 v{vT+5}, 5, v0")
        a(f"v_lshlrev_b32 v{vT+5}, 4, v{vT+5}")
        a(f"v_bfe_u32 v{vT+6}, v0, 2, 3")
        a(f"v_add_u32 v{vT+5}, v{vT+5}, v{vT+6}")
    a(f"v_mul_u32_u24 v{vT+5}, 288, v{vT+5}")
    a(f"v_and_b32 v{vT+6}, 3, v0")
    a(f"v_lshl_add_u32 v{vWa}, v{vT+6}, 3, v{vT+5}")
    a(f"s_mul_i32 s{sT+6}, s{sT}, 9216")
    a(f"v_add_u32 v{vWa}, s{sT+6}, v{vWa}")
    a(f"v_add_u32 v{vWb}, {3*STG}, v{vWa}")
    a("s_waitcnt lgkmcnt(0)")
    srd(a, sW, 4, 4608*576*2)
    srd(a, sX, 8, HH_SZ, HH_OFF)
    srd(a, sP, 8, P_SZ, P_OFF)
    a(f"s_cmp_ge_u32 s{sWave}, 2")
    a(f"s_cbranch_scc1 L_{name}_typeB")
    def fa_rel(i):
        q, ii = divmod(i, 9)
        if ii < 4: return 288*q + 32*ii
        if ii < 8: return 288*q + 144 + 32*(ii-4)
        return 288*q + 128
    def body(nd, tag):
        vm = VM(a)
        def load_groups(i):
            if i >= 18: return []
            st = i % NST
            gs = []
            vv = vDm if i % 9 == 8 else vD
            for k in range(nd):
                g = []
                if k == 0:
                    g.append(("s", f"s_add_u32 s{sWo}, s{sWb1}, {fa_rel(i)*1152}"))
                g.append(("s", f"s_add_u32 m0, s{sM0+k}, {st*STG}"))
                g.append(("s", "s_nop 0"))
                g.append((("W", i), f"buffer_load_dwordx4 v{vv+k}, {sr(sW,4)}, s{sWo} offen lds"))
                gs.append(g)
            xs = XS + (i % NST) * 8
            gs.append([("s", f"s_mov_b32 s{sWo+1}, {i*1024}"),
                       (("X", i), f"buffer_load_dwordx4 {vr(xs,4)}, v{vX0}, {sr(sX,4)}, s{sWo+1} offen")])
            gs.append([(("X", i), f"buffer_load_dwordx4 {vr(xs+4,4)}, v{vX1}, {sr(sX,4)}, s{sWo+1} offen")])
            return gs
        def emit_group(g):
            for tg, txt in g:
                if tg == "s": a(txt)
                else: vm.op(tg, txt)
        for i in range(2):
            for g in load_groups(i): emit_group(g)
        for i in range(0, 72, 2):
            a(f"v_mov_b64 {vr(ACC+i,2)}, 0")
        sched = {0: [2, 3], 1: [4, 5], 2: [6, 7]}
        def wread(gidx):
            i, nt = divmod(gidx, 9)
            if i >= 18: return
            st = i % NST; slot = gidx % RING
            base = vWa if st < 3 else vWb
            off = (st % 3) * STG + nt * 32
            a(f"ds_read_b64_tr_b16 {vr(WR+slot*4,2)}, v{base} offset:{off}")
            a(f"ds_read_b64_tr_b16 {vr(WR+slot*4+2,2)}, v{base} offset:{off+ROWB}")
        vm.wait(lambda t: t[1] <= 0)
        a("s_barrier")
        for f in range(PF): wread(f)
        stamp(a, 1)
        for i in range(18):
            lg = []
            for j in sched.get(i, [i + PFD]): lg += load_groups(j)
            vm.wait(lambda t: t[0] == "X" and t[1] <= i)
            gi = 0
            gpos = [(k * 9) // max(1, len(lg)) for k in range(len(lg))]
            for nt in range(9):
                g = i*9 + nt; slot = g % RING
                if i == 0 and nt == 9 - PF:
                    vm.wait(lambda t: t[0] == "W" and t[1] <= 1)
                    a("s_barrier")
                wread(g + PF)
                rem = min(PF, 18*9 - 1 - g)
                a(f"s_waitcnt lgkmcnt({2*rem})")
                xs = XS + (i % NST) * 8
                a(f"v_mfma_f32_16x16x32_bf16 {vr(acc(nt,0),4)}, {vr(WR+slot*4,4)}, {vr(xs,4)}, {vr(acc(nt,0),4)}")
                a(f"v_mfma_f32_16x16x32_bf16 {vr(acc(nt,1),4)}, {vr(WR+slot*4,4)}, {vr(xs+4,4)}, {vr(acc(nt,1),4)}")
                while gi < len(lg) and gpos[gi] <= nt:
                    emit_group(lg[gi]); gi += 1
            assert gi == len(lg)
            vm.wait(lambda t: t[0] == "W" and t[1] <= i + 2)
            a("s_barrier")
    body(3, "A")
    a(f"s_branch L_{name}_epi")
    a.lab(f"L_{name}_typeB")
    body(2, "B")
    a.lab(f"L_{name}_epi")
    stamp(a, 2)
    a(f"s_lshr_b32 s{sT}, s{sWave}, 2")
    a(f"v_lshlrev_b32 v{vT}, 4, v0")
    a(f"s_mul_i32 s{sT+1}, s{sWave}, 9216")
    a(f"v_add_u32 v{vT+1}, s{sT+1}, v{vT}")
    a(f"s_xor_b32 s{sT+2}, s{sWave}, 4")
    a(f"s_mul_i32 s{sT+2}, s{sT+2}, 9216")
    a(f"v_add_u32 v{vT+2}, s{sT+2}, v{vT}")
    a(f"s_cmp_eq_u32 s{sT}, 0")
    a("s_nop 4")
    a(f"s_cbranch_scc0 L_{name}_kh1")
    for kh in range(2):
        if kh == 1: a.lab(f"L_{name}_kh1")
        for nt in range(9):
            a(f"ds_write_b128 v{vT+1}, {vr(acc(nt,1-kh),4)} offset:{nt*1024}")
        a("s_waitcnt lgkmcnt(0)")
        a("s_barrier")
        for nt in range(9):
            a(f"ds_read_b128 {vr(XS+nt*4,4)}, v{vT+2} offset:{nt*1024}")
        for nt in range(9):
            a(f"s_waitcnt lgkmcnt({8-nt})")
            for r in range(4):
                a(f"v_add_f32 v{XS+nt*4+r}, v{XS+nt*4+r}, v{acc(nt,kh)+r}")
            if nt in (4, 8): a(f"s_add_u32 s{sPb}, s{sPb}, 4096")
            a(f"buffer_store_dwordx4 {vr(XS+nt*4,4)}, v{vT}, {sr(sP,4)}, s{sPb} offen offset:{(nt%4)*1024}")
        stamp(a, 3)
        a("s_waitcnt vmcnt(0)")
        a("s_barrier")
        stamp(a, 4); stamp(a, 6, True)
        stamp_dump(a, 7, 8, sWave, vT+4, 1)
        if kh == 0:
            a(f"s_cmp_lg_u32 s{sWave}, 0")
            a(f"s_cbranch_scc1 L_{name}_done")
            srd(a, 24, 10, 256)
            a(f"s_lshl_b32 s{sT}, s{sMb}, 2")
            a(f"v_mov_b32 v{vT}, s{sT}")
            a(f"v_mov_b32 v{vT+1}, 1")
            a("s_mov_b64 exec, 1")
            a(f"buffer_atomic_add v{vT+1}, v{vT}, s[24:27], 0 offen sc1")
        a("s_endpgm")
    a.lab(f"L_{name}_cons")
    a("s_load_dwordx2 s[4:5], s[0:1], 56")
    a("s_load_dwordx4 s[8:11], s[0:1], 64")
    a("v_lshrrev_b32 v1, 6, v0")
    a("v_and_b32 v0, 63, v0")
    a("s_sub_u32 s28, s2, 256")
    a("v_readfirstlane_b32 s29, v1")
    a("s_mul_i32 s30, s28, 7282")
    a("s_lshr_b32 s30, s30, 16")
    a("s_lshl_b32 s31, s28, 4")
    a("s_lshl_b32 s32, s29, 1")
    a("s_add_u32 s31, s31, s32")
    a("s_waitcnt lgkmcnt(0)")
    srd(a, 12, 10, H1_SZ, H1_OFF)
    srd(a, 16, 10, P_SZ, P_OFF)
    srd(a, 20, 4, 2048*576*2)
    srd(a, 24, 8, 256)
    a("v_lshlrev_b32 v1, 4, v0")
    a("s_lshl_b32 s32, s31, 10")
    a("buffer_load_dwordx4 v[4:7], v1, s[12:15], s32 offen")
    a("buffer_load_dwordx4 v[44:47], v1, s[12:15], s32 offen offset:1024")
    a("s_cmp_lg_u32 s29, 0")
    a(f"s_cbranch_scc1 L_{name}_wait")
    a("s_lshl_b32 s33, s30, 2")
    a("v_mov_b32 v2, s33")
    a.lab(f"L_{name}_poll")
    a("buffer_load_dword v3, v2, s[24:27], 0 offen sc1")
    a("s_waitcnt vmcnt(0)")
    a("v_readfirstlane_b32 s34, v3")
    a("s_cmp_ge_u32 s34, 16")
    a(f"s_cbranch_scc1 L_{name}_wait")
    a("s_sleep 2")
    a(f"s_branch L_{name}_poll")
    a.lab(f"L_{name}_wait")
    a("s_barrier")
    a("s_lshl_b32 s33, s31, 11")
    for t in range(2):
        B = 8 + t*40
        for k_ in range(4):
            a.l.append(f"    buffer_load_dwordx4 v[{B+k_*8}:{B+3+k_*8}], v1, s[16:19], s33 offen offset:{t*2048} sc1")
            a.l.append(f"    buffer_load_dwordx4 v[{B+4+k_*8}:{B+7+k_*8}], v1, s[16:19], s33 offen offset:{t*2048+1024} sc1")
            a(f"s_add_u32 s33, s33, {128*36*1024}")
        a(f"s_sub_u32 s33, s33, {4*128*36*1024}")
    for t in range(2):
        B = 8 + t*40; Hh = 4 + t*40
        a(f"s_add_u32 s35, s31, {t}")
        a("s_mul_i32 s36, s35, 3641")
        a("s_lshr_b32 s36, s36, 16")
        a("s_mul_i32 s37, s36, 18")
        a("s_sub_u32 s37, s35, s37")
        a("v_and_b32 v2, 15, v0")
        a("s_lshl_b32 s38, s36, 4")
        a("v_add_u32 v2, s38, v2")
        a("v_mul_u32_u24 v2, 1152, v2")
        a("v_lshrrev_b32 v3, 4, v0")
        a("v_lshl_add_u32 v2, v3, 3, v2")
        a("s_lshl_b32 s38, s37, 6")
        a(f"s_waitcnt vmcnt({8 if t == 0 else 2})")
        for i in range(8):
            a(f"v_add_f32 v{B+i}, v{B+i}, v{B+8+i}")
            a(f"v_add_f32 v{B+16+i}, v{B+16+i}, v{B+24+i}")
        for i in range(8):
            a(f"v_add_f32 v{B+i}, v{B+i}, v{B+16+i}")
        for p in range(4):
            a(f"v_cvt_pk_bf16_f32 v{B+8+p}, v{B+2*p}, v{B+1+2*p}")
        for p in range(4):
            a(f"v_lshlrev_b32 v{B+16+2*p}, 16, v{B+8+p}")
            a(f"v_and_b32 v{B+17+2*p}, 0xffff0000, v{B+8+p}")
            a(f"v_lshlrev_b32 v{B+24+2*p}, 16, v{Hh+p}")
            a(f"v_and_b32 v{B+25+2*p}, 0xffff0000, v{Hh+p}")
        for i in range(8):
            a(f"v_add_f32 v{B+16+i}, v{B+16+i}, v{B+24+i}")
        for p in range(4):
            a(f"v_cvt_pk_bf16_f32 v{B+8+p}, v{B+16+2*p}, v{B+17+2*p}")
        a(f"buffer_store_dwordx2 v[{B+8}:{B+9}], v2, s[20:23], s38 offen")
        a(f"buffer_store_dwordx2 v[{B+10}:{B+11}], v2, s[20:23], s38 offen offset:32")
    a.lab(f"L_{name}_done")
    a("s_endpgm")
    return a.text(), kernel_desc(name, NV), f"; @launch kernel={name} grid=({256+NC},1,1) block=(512,1,1) lds={NST*STG}"


def gen_k1v3(name="k1_kernel"):
    a = A(); vm = VM(a)
    kernel_head(a, name)
    XT = 0
    WB = 92160; STG = 16384; NST = 4; PITCH = 480
    QP = 624
    ACC = 4
    XF = 44
    WF = 84
    RAW = 100
    vD0, vD1 = 150, 151
    vWa, vXa, vXb = 152, 153, 154
    vNM, vR, vLW = 155, 156, 157
    vT = 160
    NV = 184
    sW, sXs, sO = 12, 16, 20
    sWave, sRb, sHg, sT = 28, 29, 30, 36
    sWo, sM0b = 31, 32
    a("s_cmp_ge_u32 s2, 256")
    a(f"s_cbranch_scc1 L_{name}_done")
    stamp(a, 0); stamp(a, 5, True)
    a("s_load_dwordx4 s[4:7], s[0:1], 0")
    a("s_load_dwordx2 s[8:9], s[0:1], 72")
    if "nowpf" not in OPT:
        a("s_load_dwordx4 s[48:51], s[0:1], 32")
        a("s_load_dwordx2 s[52:53], s[0:1], 48")
        a("s_load_dwordx2 s[92:93], s[0:1], 16")
    a("v_lshrrev_b32 v1, 6, v0")
    a("v_mov_b32 v3, v0")
    a("v_and_b32 v0, 63, v0")
    a(f"v_readfirstlane_b32 s{sWave}, v1")
    a(f"s_lshr_b32 s{sT}, s2, 3")
    a(f"s_and_b32 s{sHg}, s{sT}, 3")
    a(f"s_and_b32 s{sT+1}, s2, 1")
    a(f"s_lshl_b32 s{sT+1}, s{sT+1}, 2")
    a(f"s_add_u32 s{sHg}, s{sHg}, s{sT+1}")
    a(f"s_lshr_b32 s{sRb}, s{sT}, 2")
    a(f"s_bfe_u32 s{sT+1}, s2, 0x20001")
    a(f"s_lshl_b32 s{sT+1}, s{sT+1}, 3")
    a(f"s_add_u32 s{sRb}, s{sRb}, s{sT+1}")
    a(f"v_min_u32 v{vT+4}, 59, v0")
    a(f"v_mul_u32_u24 v{vT}, 10923, v{vT+4}")
    a(f"v_lshrrev_b32 v{vT}, 16, v{vT}")
    a(f"v_mul_u32_u24 v{vT+1}, 6, v{vT}")
    a(f"v_sub_u32 v{vT+1}, v{vT+4}, v{vT+1}")
    a(f"s_mul_i32 s{sT}, s{sWave}, 10")
    a(f"v_add_u32 v{vT+2}, s{sT}, v{vT}")
    a(f"s_lshl_b32 s{sT+1}, s{sRb}, 6")
    a(f"s_sub_u32 s{sT+1}, s{sT+1}, 16")
    a(f"v_add_u32 v{vT+3}, s{sT+1}, v{vT+2}")
    a(f"s_movk_i32 s{sT+2}, 1152")
    a(f"v_mul_lo_u32 v{vT+3}, v{vT+3}, s{sT+2}")
    a(f"v_lshl_add_u32 v{vT+3}, v{vT+1}, 4, v{vT+3}")
    a("s_waitcnt lgkmcnt(0)")
    srd(a, sXs, 4, 2048*576*2)
    for i in range(12):
        vm.op(("x", i), f"buffer_load_dwordx4 {vr(RAW+i*4,4)}, v{vT+3}, {sr(sXs,4)}, 0 offen offset:{i*96}")
    srd(a, sW, 6, 576*1728*2)
    srd(a, sO, 8, O_SZ, O_OFF)
    a(f"s_lshl_b32 s{sT}, s{sWave}, 7")
    a(f"s_mul_i32 s{sT+1}, s{sHg}, 144")
    a(f"s_mov_b32 s{sT+2}, 0x40000000")
    for t, vd in enumerate((vD0, vD1)):
        a(f"v_add_u32 v{vT+4}, s{sT}, v0")
        if t: a(f"v_add_u32 v{vT+4}, 64, v{vT+4}")
        a(f"v_mul_u32_u24 v{vT+5}, 2185, v{vT+4}")
        a(f"v_lshrrev_b32 v{vT+5}, 16, v{vT+5}")
        a(f"v_mul_u32_u24 v{vT+6}, 30, v{vT+5}")
        a(f"v_sub_u32 v{vT+6}, v{vT+4}, v{vT+6}")
        a(f"v_mul_u32_u24 v{vT+7}, 7282, v{vT+6}")
        a(f"v_lshrrev_b32 v{vT+7}, 16, v{vT+7}")
        a(f"v_mul_u32_u24 v{vT+8}, 9, v{vT+7}")
        a(f"v_sub_u32 v{vT+8}, v{vT+6}, v{vT+8}")
        a(f"v_mul_u32_u24 v{vT+7}, 1152, v{vT+7}")
        a(f"v_lshl_add_u32 v{vT+7}, v{vT+8}, 4, v{vT+7}")
        a(f"v_and_b32 v{vT+8}, 4, v{vT+5}")
        a(f"v_lshlrev_b32 v{vT+8}, 1, v{vT+8}")
        a(f"v_and_b32 v{vT+9}, 8, v{vT+5}")
        a(f"v_lshrrev_b32 v{vT+9}, 1, v{vT+9}")
        a(f"v_and_b32 v{vT+10}, 0x13, v{vT+5}")
        a(f"v_or3_b32 v{vT+8}, v{vT+8}, v{vT+9}, v{vT+10}")
        a(f"v_mul_u32_u24 v{vT+8}, 3456, v{vT+8}")
        a(f"v_add3_u32 v{vT+7}, v{vT+7}, v{vT+8}, s{sT+1}")
        a(f"v_cmp_gt_u32 vcc, 27, v{vT+6}")
        a(f"v_cmp_gt_u32 s[{sT+4}:{sT+5}], 32, v{vT+5}")
        a(f"s_and_b64 vcc, vcc, s[{sT+4}:{sT+5}]")
        a(f"v_mov_b32 v{vT+8}, s{sT+2}")
        a("s_nop 1")
        a(f"v_cndmask_b32 v{vd}, v{vT+8}, v{vT+7}, vcc")
    a(f"s_lshl_b32 s{sM0b}, s{sWave}, 11")
    a(f"s_add_u32 s{sM0b}, s{sM0b}, {WB}")
    def wdma(i):
        if i >= 18: return
        st = i % NST
        a(f"s_mov_b32 s{sWo}, {i*32*3456}")
        for t, vd in enumerate((vD0, vD1)):
            a(f"s_add_u32 m0, s{sM0b}, {st*STG + t*1024}")
            a("s_nop 0")
            vm.op(("W", i), f"buffer_load_dwordx4 v{vd}, {sr(sW,4)}, s{sWo} offen lds")
    for i in range(2): wdma(i)
    if "k1pf" in OPT:
        a(f"s_and_b32 s{sT+3}, s{sRb}, 7")
        a(f"s_mul_i32 s{sT+3}, s{sT+3}, {72*3456}")
        a(f"s_add_u32 s{sT+3}, s{sT+3}, s{sT+1}")
        for t in range(2):
            a(f"v_add_u32 v{vT+4}, s{sT}, v0")
            if t: a(f"v_add_u32 v{vT+4}, 64, v{vT+4}")
            a(f"v_mul_u32_u24 v{vT+5}, 7282, v{vT+4}")
            a(f"v_lshrrev_b32 v{vT+5}, 16, v{vT+5}")
            a(f"v_mul_u32_u24 v{vT+6}, 9, v{vT+5}")
            a(f"v_sub_u32 v{vT+6}, v{vT+4}, v{vT+6}")
            a(f"v_mul_u32_u24 v{vT+7}, 21846, v{vT+6}")
            a(f"v_lshrrev_b32 v{vT+7}, 16, v{vT+7}")
            a(f"v_mul_u32_u24 v{vT+8}, 3, v{vT+7}")
            a(f"v_sub_u32 v{vT+8}, v{vT+6}, v{vT+8}")
            a(f"v_mul_u32_u24 v{vT+8}, 70, v{vT+8}")
            a(f"v_and_b32 v{vT+8}, 0xfc, v{vT+8}")
            a(f"v_mul_u32_u24 v{vT+5}, 3456, v{vT+5}")
            a(f"v_mad_u32_u24 v{vT+5}, v{vT+7}, 1152, v{vT+5}") if False else None
            a(f"v_mul_u32_u24 v{vT+7}, 1152, v{vT+7}")
            a(f"v_add3_u32 v{vT+5}, v{vT+5}, v{vT+7}, v{vT+8}")
            a(f"v_cmp_gt_u32 vcc, 648, v{vT+4}")
            a(f"v_mov_b32 v{vT+8}, s{sT+2}")
            a("s_nop 1")
            a(f"v_cndmask_b32 v{vT+5}, v{vT+8}, v{vT+5}, vcc")
            vm.op(("P", t), f"buffer_load_dword v{vT+20+t}, v{vT+5}, {sr(sW,4)}, s{sT+3} offen")
    ONES = sT+8
    a(f"s_mov_b32 s{ONES}, 0x3f803f80")
    S, Q, S2, Q2 = vT+4, vT+5, vT+6, vT+7
    B3, B1, B2 = vT+8, vT+9, vT+10
    for d_, vb in ((3, B3), (1, B1), (2, B2)):
        a(f"v_add_u32 v{vb}, {d_}, v{vT+1}")
        a(f"v_subrev_u32 v{vT+11}, 6, v{vb}")
        a(f"v_min_u32 v{vb}, v{vb}, v{vT+11}")
        a(f"v_mad_u32_u24 v{vb}, v{vT}, 6, v{vb}")
        a(f"v_lshlrev_b32 v{vb}, 2, v{vb}")
    a(f"v_lshrrev_b32 v{vT+11}, 4, v{vT+2}")
    a(f"v_mul_u32_u24 v{vT+11}, 18432, v{vT+11}")
    a(f"v_and_b32 v{vT+12}, 15, v{vT+2}")
    a(f"v_lshl_add_u32 v{vT+11}, v{vT+12}, 4, v{vT+11}")
    a(f"v_lshl_add_u32 v{vLW}, v{vT+1}, 8, v{vT+11}")
    a(f"v_lshrrev_b32 v{vT+11}, 5, v0")
    a(f"v_lshlrev_b32 v{vT+11}, 4, v{vT+11}")
    a(f"v_bfe_u32 v{vT+12}, v0, 2, 3")
    a(f"v_add_u32 v{vT+11}, v{vT+11}, v{vT+12}")
    a(f"v_mul_u32_u24 v{vT+11}, {PITCH}, v{vT+11}")
    a(f"v_and_b32 v{vT+12}, 3, v0")
    a(f"v_lshl_add_u32 v{vWa}, v{vT+12}, 3, v{vT+11}")
    a(f"s_lshl_b32 s{sT}, s{sWave}, 6")
    a(f"s_add_u32 s{sT}, s{sT}, {WB}")
    a(f"v_add_u32 v{vWa}, s{sT}, v{vWa}")
    a(f"v_lshlrev_b32 v{vXa}, 4, v0")
    a(f"v_add_u32 v{vXb}, 65536, v{vXa}")
    for r in (S, Q, S2, Q2): a(f"v_mov_b32 v{r}, 0")
    for i in range(12):
        vm.wait(lambda t: t[0] == "x" and t[1] <= i)
        if i == 11 and "astamp" not in OPT: stamp(a, 1)
        for d_ in range(4):
            x = RAW + i*4 + d_
            s_, q_ = (S, Q) if d_ % 2 == 0 else (S2, Q2)
            a(f"v_dot2_f32_bf16 v{s_}, v{x}, s{ONES}, v{s_}")
            a(f"v_dot2_f32_bf16 v{q_}, v{x}, v{x}, v{q_}")
    wdma(2); wdma(3)
    if "nowpf" not in OPT:
        a(f"s_lshl_b32 s{sT}, s2, 3")
        a(f"s_add_u32 s{sT}, s{sT}, s{sWave}")
        a(f"s_cmp_ge_u32 s{sT}, 2025")
        a(f"s_cbranch_scc1 L_{name}_nopf")
        a(f"s_cmp_ge_u32 s{sT}, 648")
        a(f"s_cselect_b32 s54, s50, s48")
        a(f"s_cselect_b32 s55, s51, s49")
        a(f"s_cselect_b32 s{sT+1}, 648, 0")
        a(f"s_cmp_ge_u32 s{sT}, 1296")
        a(f"s_cselect_b32 s54, s52, s54")
        a(f"s_cselect_b32 s55, s53, s55")
        a(f"s_cselect_b32 s{sT+1}, 1296, s{sT+1}")
        a(f"s_cmp_ge_u32 s{sT}, 1944")
        a(f"s_cselect_b32 s54, s92, s54")
        a(f"s_cselect_b32 s55, s93, s55")
        a(f"s_cselect_b32 s{sT+1}, 1944, s{sT+1}")
        a(f"s_cselect_b32 s{sT+2}, {576*576*2}, {576*4608*2}") if False else None
        a(f"s_sub_u32 s{sT}, s{sT}, s{sT+1}")
        a(f"s_lshl_b32 s{sT}, s{sT}, 13")
        srd(a, 56, 54, 576*4608*2)
        a(f"v_lshlrev_b32 v{vT+20}, 7, v0")
        a(f"buffer_load_dword v{vT+21}, v{vT+20}, s[56:59], s{sT} offen")
        a.lab(f"L_{name}_nopf")
        if "pfcode" in OPT:
            a(f"s_lshl_b32 s{sT}, s2, 3")
            a(f"s_add_u32 s{sT}, s{sT}, s{sWave}")
            a(f"s_sub_u32 s{sT}, s{sT}, 2025")
            a(f"s_cmp_ge_u32 s{sT}, 8")
            a(f"s_cbranch_scc1 L_{name}_nopc")
            a("s_getpc_b64 s[54:55]")
            a(f"s_lshl_b32 s{sT}, s{sT}, 13")
            srd(a, 56, 54, 65536)
            a(f"v_lshlrev_b32 v{vT+20}, 7, v0")
            a(f"buffer_load_dword v{vT+21}, v{vT+20}, s[56:59], s{sT} offen")
            a.lab(f"L_{name}_nopc")
        if "pfws" in OPT:
            a(f"s_lshl_b32 s{sT}, s2, 3")
            a(f"s_add_u32 s{sT}, s{sT}, s{sWave}")
            a(f"s_cmp_ge_u32 s{sT}, {(P_OFF+P_SZ + 262143)//262144}")
            a(f"s_cbranch_scc1 L_{name}_nopw")
            a(f"s_lshl_b32 s{sT}, s{sT}, 18")
            srd(a, 56, 8, P_OFF+P_SZ)
            a(f"v_lshlrev_b32 v{vT+20}, 12, v0")
            a(f"buffer_load_dword v{vT+20}, v{vT+20}, s[56:59], s{sT} offen")
            a.lab(f"L_{name}_nopw")
    a(f"v_add_f32 v{S}, v{S}, v{S2}")
    a(f"v_add_f32 v{Q}, v{Q}, v{Q2}")
    a(f"ds_bpermute_b32 v{S2}, v{B3}, v{S}")
    a(f"ds_bpermute_b32 v{Q2}, v{B3}, v{Q}")
    a("s_waitcnt lgkmcnt(0)")
    a(f"v_add_f32 v{S}, v{S}, v{S2}")
    a(f"v_add_f32 v{Q}, v{Q}, v{Q2}")
    a(f"ds_bpermute_b32 v{S2}, v{B1}, v{S}")
    a(f"ds_bpermute_b32 v{Q2}, v{B1}, v{Q}")
    a(f"ds_bpermute_b32 v{vT+11}, v{B2}, v{S}")
    a(f"ds_bpermute_b32 v{vT+12}, v{B2}, v{Q}")
    a("s_waitcnt lgkmcnt(0)")
    a(f"v_add3_u32 v{vT+13}, 0, 0, 0") if False else None
    a(f"v_add_f32 v{S}, v{S}, v{S2}")
    a(f"v_add_f32 v{Q}, v{Q}, v{Q2}")
    a(f"v_add_f32 v{S}, v{S}, v{vT+11}")
    a(f"v_add_f32 v{Q}, v{Q}, v{vT+12}")
    a(f"v_mul_f32 v{S}, {f32(1.0/576.0)}, v{S}")
    a(f"v_mul_f32 v{Q}, {f32(1.0/576.0)}, v{Q}")
    a(f"v_fma_f32 v{Q}, -v{S}, v{S}, v{Q}")
    a(f"v_max_f32 v{Q}, 0, v{Q}")
    round_bf16(a, vNM, S)
    round_bf16(a, Q, Q)
    a(f"v_add_f32 v{Q}, {f32(1e-5)}, v{Q}")
    round_bf16(a, Q, Q)
    a(f"v_sqrt_f32 v{Q}, v{Q}")
    a("s_nop 0")
    round_bf16(a, Q, Q)
    a(f"v_rcp_f32 v{vR}, v{Q}")
    a("s_nop 0")
    FAST1 = "fast1" in OPT
    if FAST1:
        a(f"v_mul_f32 v{vNM}, v{vNM}, v{vR}")
        a(f"v_sub_f32 v{vNM}, 0, v{vNM}")
    def norm_group(i):
        if FAST1:
            ops = []
            chains = []
            for d_ in range(4):
                x = RAW + i*4 + d_
                t = vT + 12 + d_ * 2
                chains.append([f"v_lshlrev_b32 v{t}, 16, v{x}", f"v_and_b32 v{t+1}, 0xffff0000, v{x}",
                               f"v_fma_f32 v{t}, v{t}, v{vR}, v{vNM}", f"v_fma_f32 v{t+1}, v{t+1}, v{vR}, v{vNM}",
                               f"v_cvt_pk_bf16_f32 v{x}, v{t}, v{t+1}"])
            for stage in ((0, 1), (2, 3), (4,)):
                for c in chains:
                    for j in stage: ops.append(c[j])
            ops.append(f"ds_write_b128 v{vLW}, {vr(RAW+i*4,4)} offset:{XT + i*6*256}")
            return ops
        chains = []
        for d_ in range(4):
            x = RAW + i*4 + d_
            t = vT + 12 + d_ * 2
            chains.append([f"v_lshlrev_b32 v{t}, 16, v{x}", f"v_and_b32 v{t+1}, 0xffff0000, v{x}",
                    f"v_sub_f32 v{t}, v{t}, v{vNM}", f"v_sub_f32 v{t+1}, v{t+1}, v{vNM}",
                    f"v_cvt_pk_bf16_f32 v{t}, v{t}, v{t+1}",
                    f"v_and_b32 v{t+1}, 0xffff0000, v{t}", f"v_lshlrev_b32 v{t}, 16, v{t}",
                    f"v_mul_f32 v{t}, v{t}, v{vR}", f"v_mul_f32 v{t+1}, v{t+1}, v{vR}",
                    f"v_cvt_pk_bf16_f32 v{x}, v{t}, v{t+1}"])
        ops = []
        for stage in ((0, 1), (2, 3), (4,), (5, 6), (7, 8), (9,)):
            for c in chains:
                for j in stage: ops.append(c[j])
        ops.append(f"ds_write_b128 v{vLW}, {vr(RAW+i*4,4)} offset:{XT + i*6*256}")
        return ops
    gdone = 12
    for g_ in range(12):
        for op in norm_group(g_): a(op)
    if "astamp" not in OPT: stamp(a, 2)
    vm.wait(lambda t: t[0] == "W" and t[1] <= 0)
    a("s_waitcnt lgkmcnt(0)")
    a("s_barrier")
    if "astamp" not in OPT: stamp(a, 3)
    def reads(i):
        b = i % 2; st = i % NST
        for n in range(2):
            a(f"ds_read_b64_tr_b16 {vr(WF+b*8+n*4,2)}, v{vWa} offset:{st*STG + n*32}")
            a(f"ds_read_b64_tr_b16 {vr(WF+b*8+n*4+2,2)}, v{vWa} offset:{st*STG + n*32 + 8*PITCH}")
        for mt in range(5):
            off = (mt*18 + i)*1024
            if off < 65536:
                a(f"ds_read_b128 {vr(XF+b*20+mt*4,4)}, v{vXa} offset:{off}")
            else:
                a(f"ds_read_b128 {vr(XF+b*20+mt*4,4)}, v{vXb} offset:{off-65536}")
    for i in range(18):
        reads(i)
        if i >= 1: wdma(i+3)
        b = i % 2
        need = min(11, (4*(i+1)+3)//6)
        nops = []
        while gdone <= need:
            nops += norm_group(gdone); gdone += 1
        if "k1nonorm" in OPT: nops = []
        ni = 0
        for _ in range(10):
            if ni < len(nops) - 1: a(nops[ni]); ni += 1
        for mt in range(5):
            a(f"s_waitcnt lgkmcnt({4-mt})")
            for n in range(2):
                c = vr(ACC+(mt*2+n)*4,4)
                a(f"v_mfma_f32_16x16x32_bf16 {c}, {vr(WF+b*8+n*4,4)}, {vr(XF+b*20+mt*4,4)}, " + ("0" if i == 0 else c))
                for _ in range(3):
                    if ni < len(nops) - 1: a(nops[ni]); ni += 1
        while ni < len(nops):
            a(nops[ni]); ni += 1
        if i < 17:
            vm.wait(lambda t: t[0] == "W" and t[1] <= i+1)
            if nops: a("s_waitcnt lgkmcnt(0)")
            a("s_barrier")
    a("s_barrier")
    stamp(a, 1 if "astamp" in OPT else 4)
    a(f"v_lshrrev_b32 v{vT}, 4, v0")
    a(f"v_lshlrev_b32 v{vT}, 2, v{vT}")
    a(f"s_lshl_b32 s{sT}, s{sWave}, 5")
    a(f"v_add_u32 v{vT}, s{sT}, v{vT}")
    a(f"v_and_b32 v{vT+1}, 15, v0")
    a(f"v_mul_u32_u24 v{vT+1}, {QP}, v{vT+1}")
    AD = vT + 4
    for n in range(2):
        for p in range(2):
            ad = AD + n*2 + p
            a(f"v_add_u32 v{vT+2}, {n*16+p*2}, v{vT}")
            a(f"v_mul_u32_u24 v{vT+3}, 3641, v{vT+2}")
            a(f"v_lshrrev_b32 v{vT+3}, 16, v{vT+3}")
            a(f"v_mul_u32_u24 v{ad}, 18, v{vT+3}")
            a(f"v_sub_u32 v{ad}, v{vT+2}, v{ad}")
            a(f"v_lshl_add_u32 v{ad}, v{ad}, 1, v{vT+1}")
            a(f"v_mad_u32_u24 v{ad}, v{vT+3}, 48, v{ad}")
    a(f"s_cmp_ge_u32 s{sWave}, 7")
    a(f"s_cbranch_scc1 L_{name}_skipq")
    for mt in range(5):
        for n in range(2):
            c = ACC + (mt*2+n)*4
            t = vT + 8 + ((mt*2+n) % 2) * 2
            a(f"v_cvt_pk_bf16_f32 v{t}, v{c}, v{c+1}")
            a(f"v_cvt_pk_bf16_f32 v{t+1}, v{c+2}, v{c+3}")
            a(f"ds_write_b32 v{AD+n*2}, v{t} offset:{mt*16*QP}")
            a(f"ds_write_b32 v{AD+n*2+1}, v{t+1} offset:{mt*16*QP}")
    a.lab(f"L_{name}_skipq")
    QR = 4; KR = 16; LG = 64; LX = 68; VO = 72; VX = 104; OA = 136
    vAo, vAx, vPos, vHd, vHf = vT, vT+1, vT+2, vT+3, vT+12
    a(f"v_lshrrev_b32 v{vPos}, 3, v3")
    a(f"v_bfe_u32 v{vHd}, v3, 1, 2")
    a(f"v_and_b32 v{vHf}, 1, v3")
    a(f"v_add_u32 v{vT+13}, 2, v{vPos}")
    a(f"v_mul_u32_u24 v{vT+13}, {QP}, v{vT+13}")
    a(f"v_mad_u32_u24 v{vT+13}, v{vHd}, 48, v{vT+13}")
    a(f"v_xor_b32 v{vT+14}, 1, v{vHf}")
    a(f"s_movk_i32 s{sT}, {8*QP}")
    a(f"v_mad_u32_u24 v{vAo}, v{vT+14}, s{sT}, v{vT+13}")
    a(f"v_mad_u32_u24 v{vAx}, v{vHf}, s{sT}, v{vT+13}")
    a("s_waitcnt lgkmcnt(0)")
    a("s_barrier")
    if "astamp" in OPT: stamp(a, 2)
    for j in range(3):
        a(f"ds_read_b128 {vr(QR+j*4,4)}, v{vT+13} offset:{14*QP + j*16}")
    for i in range(4):
        for j in range(3):
            a(f"ds_read_b128 {vr(KR+i*12+j*4,4)}, v{vAo} offset:{(6-2*i)*QP + 192 + j*16}")
    a(f"v_lshl_add_u32 v{vAo}, v{vHf}, 4, v{vAo}")
    a(f"v_lshl_add_u32 v{vAx}, v{vHf}, 4, v{vAx}")
    a(f"s_lshl_b32 s{sT}, s{sRb}, 6")
    a(f"v_add_u32 v{vPos}, s{sT}, v{vPos}")
    a(f"v_lshlrev_b32 v{vT+14}, 3, v{vHf}")
    a(f"v_sub_u32 v{vT+14}, v{vPos}, v{vT+14}")
    a(f"s_mov_b32 s{sT+1}, {f32(18.0**-0.5)}")
    a(f"s_mov_b32 s{sT+2}, {f32(-1e9)}")
    a(f"v_cvt_pk_bf16_f32 v{vT+15}, s{sT+2}, s{sT+2}")
    a(f"v_lshlrev_b32 v{vT+15}, 16, v{vT+15}")
    for i in range(4): a(f"v_mov_b32 v{LG+i}, 0")
    a("s_waitcnt lgkmcnt(0)")
    for i in range(4):
        a(f"ds_read_b128 {vr(VO+i*8,4)}, v{vAo} offset:{(6-2*i)*QP + 384}")
        a(f"ds_read_b32 v{VO+i*8+4}, v{vAo} offset:{(6-2*i)*QP + 384 + 16}")
    for i in range(4):
        a(f"ds_read_b128 {vr(VX+i*8,4)}, v{vAx} offset:{(6-2*i)*QP + 384}")
        a(f"ds_read_b32 v{VX+i*8+4}, v{vAx} offset:{(6-2*i)*QP + 384 + 16}")
    for d_ in range(9):
        for i in range(4):
            a(f"v_dot2_f32_bf16 v{LG+i}, v{QR+d_}, v{KR+i*12+d_}, v{LG+i}")
    a("s_nop 2")
    a(f"v_cvt_pk_bf16_f32 v{LG}, v{LG}, v{LG+1}")
    a(f"v_cvt_pk_bf16_f32 v{LG+2}, v{LG+2}, v{LG+3}")
    a(f"v_and_b32 v{LG+1}, 0xffff0000, v{LG}")
    a(f"v_lshlrev_b32 v{LG}, 16, v{LG}")
    a(f"v_and_b32 v{LG+3}, 0xffff0000, v{LG+2}")
    a(f"v_lshlrev_b32 v{LG+2}, 16, v{LG+2}")
    for i in range(4): a(f"v_mul_f32 v{LG+i}, s{sT+1}, v{LG+i}")
    a(f"v_cvt_pk_bf16_f32 v{LG}, v{LG}, v{LG+1}")
    a(f"v_cvt_pk_bf16_f32 v{LG+2}, v{LG+2}, v{LG+3}")
    a(f"v_and_b32 v{LG+1}, 0xffff0000, v{LG}")
    a(f"v_lshlrev_b32 v{LG}, 16, v{LG}")
    a(f"v_and_b32 v{LG+3}, 0xffff0000, v{LG+2}")
    a(f"v_lshlrev_b32 v{LG+2}, 16, v{LG+2}")
    for i in range(4):
        a(f"v_cmp_le_i32 vcc, {2*i}, v{vT+14}")
        a("s_nop 1")
        a(f"v_cndmask_b32 v{LG+i}, v{vT+15}, v{LG+i}, vcc")
    a("s_nop 1")
    for i in range(4):
        a(f"v_mov_b32_dpp v{LX+i}, v{LG+i} quad_perm:[1,0,3,2] row_mask:0xf bank_mask:0xf")
    M_, SUM = vT+13, vT+14
    a(f"v_max3_f32 v{M_}, v{LG}, v{LG+1}, v{LG+2}")
    a(f"v_max3_f32 v{M_}, v{M_}, v{LG+3}, v{LX}")
    a(f"v_max3_f32 v{M_}, v{M_}, v{LX+1}, v{LX+2}")
    a(f"v_max_f32 v{M_}, v{M_}, v{LX+3}")
    a(f"s_mov_b32 s{sT+3}, {f32(math.log2(math.e))}")
    for w in range(8):
        a(f"v_sub_f32 v{LG+w}, v{LG+w}, v{M_}")
    for w in range(8):
        a(f"v_mul_f32 v{LG+w}, s{sT+3}, v{LG+w}")
    for w in range(8):
        a(f"v_exp_f32 v{LG+w}, v{LG+w}")
    a("s_nop 0")
    a(f"v_add_f32 v{SUM}, v{LG}, v{LX}")
    a(f"v_add_f32 v{M_}, v{LG+1}, v{LX+1}")
    a(f"v_add_f32 v{vT+15}, v{LG+2}, v{LX+2}")
    a(f"v_add_f32 v{vT+16}, v{LG+3}, v{LX+3}")
    a(f"v_add_f32 v{SUM}, v{SUM}, v{M_}")
    a(f"v_add_f32 v{vT+15}, v{vT+15}, v{vT+16}")
    a(f"v_add_f32 v{SUM}, v{SUM}, v{vT+15}")
    a(f"v_rcp_f32 v{SUM}, v{SUM}")
    a("s_nop 0")
    for w in range(8):
        a(f"v_mul_f32 v{LG+w}, v{LG+w}, v{SUM}")
    for wp in range(4):
        a(f"v_cvt_pk_bf16_f32 v{LG+wp}, v{LG+2*wp}, v{LG+2*wp+1}")
    if "astamp" in OPT: stamp(a, 3)
    a(f"s_mov_b32 s{sT+4}, 0x05040100")
    a(f"s_mov_b32 s{sT+5}, 0x07060302")
    a("s_waitcnt lgkmcnt(0)")
    for wp in range(4):
        base = (VO if wp < 2 else VX) + (wp % 2) * 16
        for d_ in range(5):
            x0 = base + d_; x1 = base + 8 + d_
            t = vT + 13 + (d_ % 2) * 2
            a(f"v_perm_b32 v{t}, v{x1}, v{x0}, s{sT+4}")
            a(f"v_perm_b32 v{t+1}, v{x1}, v{x0}, s{sT+5}")
            a(f"v_dot2_f32_bf16 v{OA+2*d_}, v{t}, v{LG+wp}, " + ("0" if wp == 0 else f"v{OA+2*d_}"))
            a(f"v_dot2_f32_bf16 v{OA+2*d_+1}, v{t+1}, v{LG+wp}, " + ("0" if wp == 0 else f"v{OA+2*d_+1}"))
    a("s_nop 2")
    for d_ in range(5):
        a(f"v_cvt_pk_bf16_f32 v{QR+d_}, v{OA+2*d_}, v{OA+2*d_+1}")
    OB = 65536; OP = 160
    a(f"v_lshrrev_b32 v{vT+13}, 3, v3")
    a(f"v_mul_u32_u24 v{vT+13}, {OP}, v{vT+13}")
    a(f"v_mad_u32_u24 v{vT+13}, v{vHd}, 36, v{vT+13}")
    a(f"v_lshl_add_u32 v{vT+13}, v{vHf}, 4, v{vT+13}")
    a(f"v_add_u32 v{vT+13}, {OB}, v{vT+13}")
    a(f"ds_write2_b32 v{vT+13}, v{QR}, v{QR+1} offset0:0 offset1:1")
    a(f"ds_write2_b32 v{vT+13}, v{QR+2}, v{QR+3} offset0:2 offset1:3")
    a(f"ds_write_b32 v{vT+13}, v{QR+4} offset:16")
    a(f"s_lshl_b32 s{sT}, s{sWave}, 2")
    a(f"v_lshrrev_b32 v{vT+14}, 4, v0")
    a(f"v_add_u32 v{vT+14}, s{sT}, v{vT+14}")
    a(f"s_mul_i32 s{sT+1}, s{sHg}, 9")
    a(f"s_lshl_b32 s{sT+2}, s{sRb}, 2")
    a(f"s_mul_i32 s{sT+2}, s{sT+2}, 18432")
    def piece_addr(vp, vl, vg):
        a(f"v_mul_u32_u24 v{vT+15}, 7282, v{vp}")
        a(f"v_lshrrev_b32 v{vT+15}, 16, v{vT+15}")
        a(f"v_mul_u32_u24 v{vT+16}, 9, v{vT+15}")
        a(f"v_sub_u32 v{vT+16}, v{vp}, v{vT+16}")
        a(f"v_and_b32 v{vT+17}, 15, v0")
        a(f"v_lshl_add_u32 v{vl}, v{vT+15}, 4, v{vT+17}")
        a(f"v_mul_u32_u24 v{vl}, {OP}, v{vl}")
        a(f"v_lshl_add_u32 v{vl}, v{vT+16}, 4, v{vl}")
        a(f"v_add_u32 v{vl}, {OB}, v{vl}")
        a(f"v_add_u32 v{vT+16}, s{sT+1}, v{vT+16}")
        a(f"v_mul_u32_u24 v{vg}, 18432, v{vT+15}")
        a(f"v_lshl_add_u32 v{vg}, v{vT+16}, 8, v{vg}")
        a(f"v_lshl_add_u32 v{vg}, v{vT+17}, 4, v{vg}")
    piece_addr(vT+14, vT+4, vT+5)
    a(f"v_add_u32 v{vT+14}, 32, v{vT+14}")
    piece_addr(vT+14, vT+6, vT+7)
    a("s_waitcnt lgkmcnt(0)")
    a("s_barrier")
    a(f"ds_read_b128 {vr(QR,4)}, v{vT+4}")
    a(f"ds_read_b128 {vr(QR+4,4)}, v{vT+6}")
    a("s_waitcnt lgkmcnt(1)")
    a(f"buffer_store_dwordx4 {vr(QR,4)}, v{vT+5}, {sr(sO,4)}, s{sT+2} offen")
    a(f"s_cmp_lg_u32 s{sWave}, 0")
    a(f"s_cbranch_scc1 L_{name}_nost2")
    a("s_waitcnt lgkmcnt(0)")
    a(f"buffer_store_dwordx4 {vr(QR+4,4)}, v{vT+7}, {sr(sO,4)}, s{sT+2} offen")
    a.lab(f"L_{name}_nost2")
    if "astamp" in OPT: stamp(a, 4)
    if "stamp" in OPT: a("s_waitcnt vmcnt(0)")
    stamp(a, 6, True)
    stamp_dump(a, 7, 8, sWave, vT+8, 3)
    a.lab(f"L_{name}_done")
    a("s_endpgm")
    return a.text(), kernel_desc(name, NV, 96), f"; @launch kernel={name} grid=(256,1,1) block=(512,1,1) lds={WB + NST*STG}"


PB_OFF = HH_OFF
PB_SZ = 16*2048*576*2
def gen_k34(name="k3_kernel"):
    a = A(); a.stpol = os.environ.get("K34ST", "sc1")
    vm = VM(a)
    kernel_head(a, name)
    NST = 6; STG = 18560; UP = 9248
    XB = NST*STG
    HB = 4*STG
    LDS = HB + 73728
    assert XB + 3*8192 <= LDS
    RING = 6; PF = RING - 1
    ACC = 4; WR = 148; XF = 172
    XR = 180
    vWa, vWb = 196, 197
    vD = 198
    vD2 = 201
    vX0, vXw, vXr = 204, 205, 206
    vNM, vR = 207, 208
    vW2e, vW2o = 209, 210
    vHw, vHr, vA, vPo = 211, 212, 213, 214
    vT = 216
    NV = 232
    def acc(nt): return ACC + nt*16
    sWa, sWb_, sWc, sX, sST, sP, sWd = 12, 16, 20, 24, 28, 32, 36
    sWave, sFb, sMb = 40, 41, 42
    sWoff, sXoff = 43, 44
    sM0 = 45
    sT = 48
    sA_, sB_, sPb = 88, 89, 90
    a("s_cmp_ge_u32 s2, 256")
    a(f"s_cbranch_scc1 L_{name}_done")
    stamp(a, 0); stamp(a, 5, True)
    a("s_load_dwordx4 s[4:7], s[0:1], 32")
    a("s_load_dwordx2 s[10:11], s[0:1], 48")
    a("s_load_dwordx2 s[8:9], s[0:1], 72")
    a("v_lshrrev_b32 v1, 6, v0")
    a("v_and_b32 v0, 63, v0")
    a("s_nop 0")
    a(f"v_readfirstlane_b32 s{sWave}, v1")
    a(f"s_and_b32 s{sT}, s2, 7")
    a(f"s_lshr_b32 s{sT+1}, s2, 3")
    a(f"s_and_b32 s{sFb}, s{sT+1}, 1")
    a(f"s_lshl_b32 s{sT}, s{sT}, 1")
    a(f"s_add_u32 s{sFb}, s{sFb}, s{sT}")
    a(f"s_lshr_b32 s{sMb}, s{sT+1}, 1")
    a(f"s_lshl_b32 s{sT}, s{sWave}, 6")
    a(f"s_sub_u32 s{sT+1}, s{sT}, 64")
    a(f"s_cmp_eq_u32 s{sWave}, 0")
    a(f"s_cselect_b32 s{sT+1}, 512, s{sT+1}")
    a(f"s_cselect_b32 s{sT+3}, 0, 32")
    a(f"s_add_u32 s{sT+2}, s{sT}, 448")
    a(f"s_lshl_b32 s{sM0}, s{sWave}, 10")
    a(f"s_add_u32 s{sM0+1}, s{sM0}, 8192")
    a(f"s_add_u32 s{sM0+1}, s{sM0+1}, s{sT+3}")
    a(f"s_add_u32 s{sM0+2}, s{sM0}, {16384+32}")
    a(f"s_mul_i32 s{sT+4}, s{sFb}, 576")
    for k in range(3):
        a(f"v_add_u32 v{vT+1}, s{sT+k}, v0")
        a(f"v_mul_u32_u24 v{vT+2}, 1821, v{vT+1}")
        a(f"v_lshrrev_b32 v{vT+2}, 16, v{vT+2}")
        a(f"v_mul_u32_u24 v{vT+3}, 36, v{vT+2}")
        a(f"v_sub_u32 v{vT+3}, v{vT+1}, v{vT+3}")
        a(f"v_and_b32 v{vT+4}, 8, v{vT+2}")
        a(f"v_add_u32 v{vT+2}, v{vT+2}, v{vT+4}")
        a(f"v_mul_u32_u24 v{vT+2}, 9216, v{vT+2}")
        a(f"v_lshl_add_u32 v{vT+2}, v{vT+3}, 4, v{vT+2}")
        a(f"v_add_u32 v{vD+k}, s{sT+4}, v{vT+2}")
    for k, add in enumerate((0, 512, 1024)):
        a(f"v_add_u32 v{vT+1}, s{sT}, v0")
        if add: a(f"v_add_u32 v{vT+1}, {add}, v{vT+1}")
        a(f"v_mul_u32_u24 v{vT+2}, 911, v{vT+1}")
        a(f"v_lshrrev_b32 v{vT+2}, 16, v{vT+2}")
        a(f"v_mul_u32_u24 v{vT+3}, 72, v{vT+2}")
        a(f"v_sub_u32 v{vT+3}, v{vT+1}, v{vT+3}")
        a(f"v_and_b32 v{vT+4}, 2, v{vT+2}")
        a(f"v_lshlrev_b32 v{vT+4}, 1, v{vT+4}")
        a(f"v_xor_b32 v{vT+3}, v{vT+3}, v{vT+4}")
        a(f"v_mul_u32_u24 v{vT+2}, 1152, v{vT+2}")
        a(f"v_lshl_add_u32 v{vD2+k}, v{vT+3}, 4, v{vT+2}")
    a(f"s_lshl_b32 s{sT}, s{sMb}, 3")
    a(f"s_add_u32 s{sT}, s{sT}, s{sWave}")
    a(f"s_mul_i32 s{sT+1}, s{sT}, 18432")
    a(f"v_lshlrev_b32 v{vT}, 4, v0")
    a(f"v_add_u32 v{vX0}, s{sT+1}, v{vT}")
    a(f"s_lshl_b32 s{sT+1}, s{sWave}, 10")
    a(f"s_add_u32 s{sT+1}, s{sT+1}, {XB}")
    a(f"v_add_u32 v{vXw}, s{sT+1}, v{vT}")
    a(f"s_lshl_b32 s{sT}, s{sT}, 4")
    a(f"v_and_b32 v{vT+4}, 15, v0")
    a(f"v_add_u32 v{vT+4}, s{sT}, v{vT+4}")
    a(f"v_mul_u32_u24 v{vT+4}, 48, v{vT+4}")
    a(f"s_and_b32 s{sT}, s{sWave}, 3")
    a(f"s_lshr_b32 s{sT+1}, s{sWave}, 2")
    a(f"v_bfe_u32 v{vT}, v0, 4, 1")
    a(f"v_lshlrev_b32 v{vT}, 10, v{vT}")
    a(f"v_lshrrev_b32 v{vT+1}, 5, v0")
    a(f"v_lshl_add_u32 v{vT}, v{vT+1}, 8, v{vT}")
    a(f"v_and_b32 v{vT+1}, 15, v0")
    a(f"v_lshl_add_u32 v{vT}, v{vT+1}, 4, v{vT}")
    a(f"s_lshl_b32 s{sT+2}, s{sT}, 11")
    a(f"s_add_u32 s{sT+2}, s{sT+2}, {XB}")
    a(f"v_add_u32 v{vXr}, s{sT+2}, v{vT}")
    a(f"v_bfe_u32 v{vT}, v0, 4, 1")
    a(f"v_mul_u32_u24 v{vT}, {UP}, v{vT}")
    a(f"v_lshrrev_b32 v{vT+1}, 5, v0")
    a(f"v_bfe_u32 v{vT+2}, v0, 2, 2")
    a(f"v_lshl_add_u32 v{vT+1}, v{vT+1}, 2, v{vT+2}")
    a(f"v_mul_u32_u24 v{vT+3}, 576, v{vT+1}")
    a(f"v_add_u32 v{vT}, v{vT}, v{vT+3}")
    a(f"v_and_b32 v{vT+3}, 3, v0")
    a(f"v_lshl_add_u32 v{vT}, v{vT+3}, 3, v{vT}")
    a(f"s_mul_i32 s{sT+2}, s{sT+1}, 288")
    a(f"v_add_u32 v{vWa}, s{sT+2}, v{vT}")
    a(f"v_add_u32 v{vWb}, {3*STG}, v{vWa}")
    a(f"v_mul_u32_u24 v{vT}, 1152, v{vT+1}")
    a(f"v_bfe_u32 v{vT+4+1}, v0, 4, 1")
    a(f"v_lshl_add_u32 v{vT}, v{vT+5}, 5, v{vT}")
    a(f"v_lshl_add_u32 v{vT}, v{vT+3}, 3, v{vT}")
    a(f"v_bfe_u32 v{vT+5}, v0, 3, 1")
    a(f"v_lshlrev_b32 v{vT+5}, 6, v{vT+5}")
    a(f"v_add_u32 v{vW2e}, v{vT}, v{vT+5}")
    a(f"v_sub_u32 v{vW2o}, v{vT}, v{vT+5}")
    a(f"v_lshlrev_b32 v{vT}, 4, v0")
    a(f"s_lshl_b32 s{sT+2}, s{sT}, 10")
    a(f"s_add_u32 s{sT+2}, s{sT+2}, {HB}")
    a(f"v_add_u32 v{vHr}, s{sT+2}, v{vT}")
    a(f"s_mul_i32 s{sT+3}, s{sT+1}, {9*4096}")
    a(f"v_add_u32 v{vHw}, s{sT+3}, v{vHr}")
    a(f"s_lshl_b32 s{sPb}, s{sFb}, 6")
    a(f"s_lshl_b32 s{sT+2}, s{sMb}, 2")
    a(f"s_add_u32 s{sPb}, s{sPb}, s{sT+2}")
    a(f"s_add_u32 s{sPb}, s{sPb}, s{sT}")
    a(f"s_mul_i32 s{sPb}, s{sPb}, 18")
    a(f"s_mul_i32 s{sT+2}, s{sT+1}, 9")
    a(f"s_add_u32 s{sPb}, s{sPb}, s{sT+2}")
    a(f"s_lshl_b32 s{sPb}, s{sPb}, 11")
    a(f"v_mov_b32 v{vPo}, v{vT}")
    a(f"s_mov_b32 s{sA_}, {f32(GELU_A)}")
    a(f"s_mov_b32 s{sB_}, {f32(GELU_B)}")
    a(f"v_mov_b32 v{vA}, s{sA_}")
    a(f"s_mov_b32 s91, s{sT+1}")
    a("s_waitcnt lgkmcnt(0)")
    srd(a, sWa, 4, 576*4608*2)
    srd(a, sWc, 6, 576*4608*2)
    a(f"s_cmp_eq_u32 s{sWave}, 0")
    a(f"s_cselect_b32 s{sT}, s4, s6")
    a(f"s_cselect_b32 s{sT+1}, s5, s7")
    srd(a, sWb_, sT, 576*4608*2)
    srd(a, sX, 8, H1_SZ, H1_OFF)
    srd(a, sST, 8, ST_SZ, ST_OFF)
    srd(a, sP, 8, PB_SZ, PB_OFF)
    srd(a, sWd, 10, 4608*576*2)
    for q in range(3):
        vm.op(("S", 0), f"buffer_load_dwordx4 {vr(WR+q*4,4)}, v{vT+4}, {sr(sST,4)}, 0 offen offset:{q*16}")
    a(f"s_mul_i32 s92, s{sFb}, {288*1152}")
    srds = (sWa, sWb_, sWc)
    lab = [0]
    def w1_groups(i):
        if i >= 36: return []
        st = i % NST
        ks, half = divmod(i, 2)
        lab[0] += 1
        L = f"L_{name}_sk{lab[0]}"
        g0 = [("s", f"s_mov_b32 s{sWoff}, {(ks*32 + half*8)*9216}"),
              ("s", f"s_cmp_ge_u32 s{sWave}, 2"), ("s", f"s_cbranch_scc1 {L}"),
              ("s", f"s_add_u32 m0, s{sM0+2}, {st*STG}"), ("s", "s_nop 0"),
              ("s", f"buffer_load_dwordx4 v{vD+2}, {sr(srds[2],4)}, s{sWoff} offen lds"), ("l", L),
              ("s", f"s_add_u32 m0, s{sM0}, {st*STG}"), ("s", "s_nop 0"),
              (("W", i), f"buffer_load_dwordx4 v{vD}, {sr(srds[0],4)}, s{sWoff} offen lds")]
        g1 = [("s", f"s_add_u32 m0, s{sM0+1}, {st*STG}"), ("s", "s_nop 0"),
              (("W", i), f"buffer_load_dwordx4 v{vD+1}, {sr(srds[1],4)}, s{sWoff} offen lds")]
        return [g0, g1]
    def w2_groups(t):
        if t >= 18: return []
        st = t % 4
        lab[0] += 1
        L = f"L_{name}_sk{lab[0]}"
        g0 = [("s", f"s_add_u32 s{sWoff}, s92, {t*16*1152}"),
              ("s", f"s_cmp_ge_u32 s{sWave}, 2"), ("s", f"s_cbranch_scc1 {L}"),
              ("s", f"s_add_u32 m0, s{sM0}, {st*STG + 16384}"), ("s", "s_nop 0"),
              ("s", f"buffer_load_dwordx4 v{vD2+2}, {sr(sWd,4)}, s{sWoff} offen lds"), ("l", L),
              ("s", f"s_add_u32 m0, s{sM0}, {st*STG}"), ("s", "s_nop 0"),
              (("W", 36+t), f"buffer_load_dwordx4 v{vD2}, {sr(sWd,4)}, s{sWoff} offen lds")]
        g1 = [("s", f"s_add_u32 m0, s{sM0}, {st*STG + 8192}"), ("s", "s_nop 0"),
              (("W", 36+t), f"buffer_load_dwordx4 v{vD2+1}, {sr(sWd,4)}, s{sWoff} offen lds")]
        return [g0, g1]
    def x_group(ks):
        if ks >= 18: return []
        return [[("s", f"s_mov_b32 s{sXoff}, {ks*1024}"),
                 (("X", ks), f"buffer_load_dwordx4 {vr(XR+(ks%4)*4,4)}, v{vX0}, {sr(sX,4)}, s{sXoff} offen")]]
    def emit_group(g):
        for tg, txt in g:
            if tg == "s": a(txt)
            elif tg == "l": a.lab(txt)
            else: vm.op(tg, txt)
    def norm_ops(ks):
        if ks >= 18: return []
        chains = []
        for d in range(4):
            x = XR + (ks % 4)*4 + d
            t0 = vT + 8 + d*2; t1 = t0 + 1
            chains.append([f"v_lshlrev_b32 v{t0}, 16, v{x}", f"v_and_b32 v{t1}, 0xffff0000, v{x}",
                           f"v_fma_f32 v{t0}, v{t0}, v{vR}, v{vNM}", f"v_fma_f32 v{t1}, v{t1}, v{vR}, v{vNM}",
                           f"v_cvt_pk_bf16_f32 v{x}, v{t0}, v{t1}"])
        ops = [("w", ks)]
        for stage in ((0, 1), (2, 3), (4,)):
            for c in chains:
                for j in stage: ops.append(c[j])
        ops.append(f"ds_write_b128 v{vXw}, {vr(XR+(ks%4)*4,4)} offset:{(ks%3)*8192}")
        return ops
    def emit_op(op):
        if isinstance(op, tuple): vm.wait(lambda t: t[0] == "X" and t[1] <= op[1])
        else: a(op)
    for g in x_group(0) + w1_groups(0) + w1_groups(1) + x_group(1) + w1_groups(2): emit_group(g)
    vm.wait(lambda t: t[0] == "S")
    b = WR
    a(f"v_add_f32 v{vT}, v{b}, v{b+2}")
    a(f"v_add_f32 v{vT+1}, v{b+4}, v{b+6}")
    a(f"v_add_f32 v{vT+2}, v{b+8}, v{b+10}")
    a(f"v_add_f32 v{vT}, v{vT}, v{vT+1}")
    a(f"v_add_f32 v{vT}, v{vT}, v{vT+2}")
    a(f"v_mul_f32 v{vT}, {f32(1.0/6.0)}, v{vT}")
    a(f"v_add_f32 v{vT+1}, v{b+1}, v{b+3}")
    a(f"v_add_f32 v{vT+2}, v{b+5}, v{b+7}")
    a(f"v_add_f32 v{vT+3}, v{b+9}, v{b+11}")
    a(f"v_add_f32 v{vT+1}, v{vT+1}, v{vT+2}")
    a(f"v_add_f32 v{vT+1}, v{vT+1}, v{vT+3}")
    a(f"v_mov_b32 v{vT+2}, 0")
    for t in range(6):
        a(f"v_sub_f32 v{vT+3}, v{b+2*t}, v{vT}")
        a(f"v_fmac_f32 v{vT+2}, v{vT+3}, v{vT+3}")
    a(f"v_fmac_f32 v{vT+1}, {f32(96.0)}, v{vT+2}")
    a(f"v_mul_f32 v{vT+1}, {f32(1.0/576.0)}, v{vT+1}")
    round_bf16(a, vNM, vT)
    round_bf16(a, vT+1, vT+1)
    a(f"v_add_f32 v{vT+1}, {f32(1e-5)}, v{vT+1}")
    round_bf16(a, vT+1, vT+1)
    a(f"v_sqrt_f32 v{vT+1}, v{vT+1}")
    a("s_nop 0")
    round_bf16(a, vT+1, vT+1)
    a(f"v_rcp_f32 v{vR}, v{vT+1}")
    a("s_nop 0")
    a(f"v_mul_f32 v{vNM}, v{vNM}, v{vR}")
    a(f"v_sub_f32 v{vNM}, 0, v{vNM}")
    for op in norm_ops(0): emit_op(op)
    vm.wait(lambda t: t[0] == "W" and t[1] <= 1)
    a("s_waitcnt lgkmcnt(0)")
    a("s_barrier")
    lds = []
    def lds_issue(tag, txt):
        a(txt); lds.append(tag)
    def lds_wait(pred):
        last = -1
        for i_, t in enumerate(lds):
            if pred(t): last = i_
        if last >= 0:
            n = len(lds) - 1 - last
            assert n <= 15, n
            a(f"s_waitcnt lgkmcnt({n})")
            del lds[:last+1]
    def wread1(g):
        i, nt = divmod(g, 9)
        if i >= 36: return
        st = i % NST; slot = g % RING
        base = vWa if st < 3 else vWb
        off = (st % 3)*STG + nt*32
        if nt == 0:
            ks, half = divmod(i, 2)
            lds_issue(("x", i), f"ds_read_b128 {vr(XF+(i%2)*4,4)}, v{vXr} offset:{(ks%3)*8192 + half*512}")
        lds_issue(("w", g), f"ds_read_b64_tr_b16 {vr(WR+slot*4,2)}, v{base} offset:{off}")
        lds_issue(("w", g), f"ds_read_b64_tr_b16 {vr(WR+slot*4+2,2)}, v{base} offset:{off+8*576}")
    for f in range(PF): wread1(f)
    sched = {0: [3, 4], 1: [5, 6]}
    for i in range(36):
        ks, half = divmod(i, 2)
        lg = []
        for j in sched.get(i, [i + 5]): lg += w1_groups(j)
        if 31 <= i <= 34: lg += w2_groups(i - 31)
        if half == 0: lg += x_group(ks + 2)
        nops = norm_ops(ks + 1) if half == 0 else []
        gi = ni = 0
        gpos = [(k_*8)//max(1, len(lg)) for k_ in range(len(lg))]
        for nt in range(9):
            g = i*9 + nt; slot = g % RING
            wread1(g + PF)
            lds_wait(lambda t: (t[0] == "w" and t[1] <= g) or (t[0] == "x" and t[1] <= i))
            a(f"v_mfma_f32_32x32x16_bf16 {vr(acc(nt),16)}, {vr(WR+slot*4,4)}, {vr(XF+(i%2)*4,4)}, " + ("0" if i == 0 else vr(acc(nt),16)))
            while gi < len(lg) and gpos[gi] <= nt:
                emit_group(lg[gi]); gi += 1
            if nt >= 2:
                for _ in range(4):
                    if ni < len(nops):
                        op = nops[ni]; ni += 1
                        if isinstance(op, str) and op.startswith("ds_write"): lds_issue(("xw", ks), op)
                        else: emit_op(op)
        assert gi == len(lg) and ni == len(nops)
        if i < 35:
            vm.wait(lambda t: t[0] == "W" and t[1] <= i + 2)
            lds_wait(lambda t: t[0] == "xw")
            a("s_barrier")
    stamp(a, 1)
    a("s_waitcnt lgkmcnt(0)"); del lds[:]
    a("s_barrier")
    a("s_nop 7")
    ET = vT + 8
    for nt in range(9):
        o = WR + (nt % 2)*4
        for hh in range(2):
            lines = [[], []]
            for c in range(2):
                p = hh*2 + c
                x0, x1 = acc(nt) + 2*p, acc(nt) + 2*p + 1
                y0, y1 = x0 + 8, x1 + 8
                t0, t1 = ET + c*2, ET + c*2 + 1
                lines[c] = [f"v_mul_f32 v{t0}, v{x0}, v{x0}", f"v_mul_f32 v{t1}, v{x1}, v{x1}",
                      f"v_fma_f32 v{t0}, v{t0}, s{sB_}, v{vA}", f"v_fma_f32 v{t1}, v{t1}, s{sB_}, v{vA}",
                      f"v_mul_f32 v{t0}, v{t0}, v{x0}", f"v_mul_f32 v{t1}, v{t1}, v{x1}",
                      f"v_exp_f32 v{t0}, v{t0}", f"v_exp_f32 v{t1}, v{t1}",
                      f"v_mul_f32 v{y0}, v{y0}, v{x0}", f"v_mul_f32 v{y1}, v{y1}, v{x1}",
                      f"v_add_f32 v{t0}, 1.0, v{t0}", f"v_add_f32 v{t1}, 1.0, v{t1}",
                      f"v_rcp_f32 v{t0}, v{t0}", f"v_rcp_f32 v{t1}, v{t1}",
                      f"v_mul_f32 v{t0}, v{t0}, v{y0}", f"v_mul_f32 v{t1}, v{t1}, v{y1}",
                      f"v_cvt_pk_bf16_f32 v{o+p}, v{t0}, v{t1}"]
            i0 = i1 = 0
            while i0 < len(lines[0]) or i1 < len(lines[1]):
                for _ in range(2):
                    if i0 < len(lines[0]): a(lines[0][i0]); i0 += 1
                for _ in range(2):
                    if i1 < len(lines[1]): a(lines[1][i1]); i1 += 1
        a(f"ds_write_b128 v{vHw}, {vr(o,4)} offset:{nt*4096}")
    vm.wait(lambda t: t[0] == "W" and t[1] <= 37)
    a("s_waitcnt lgkmcnt(0)")
    a("s_barrier")
    stamp(a, 2)
    a("s_cmp_eq_u32 s91, 0")
    a(f"s_cbranch_scc1 L_{name}_noswap")
    a(f"v_mov_b32 v{vT}, v{vW2e}")
    a(f"v_add_u32 v{vW2e}, 576, v{vW2o}")
    a(f"v_add_u32 v{vW2o}, 576, v{vT}")
    a.lab(f"L_{name}_noswap")
    a(f"v_add_u32 v{vT+1}, 65536, v{vHr}")
    def wread2(g):
        t, nt = divmod(g, 9)
        if t >= 18: return
        st = t % 4; slot = g % RING
        base = vW2e if nt % 2 == 0 else vW2o
        off = st*STG + nt*64
        if nt == 0:
            if t*4096 < 65536 - 0:
                lds_issue(("x", t), f"ds_read_b128 {vr(XF+(t%2)*4,4)}, v{vHr} offset:{t*4096}")
            else:
                lds_issue(("x", t), f"ds_read_b128 {vr(XF+(t%2)*4,4)}, v{vT+1} offset:{t*4096-65536}")
        lds_issue(("w", g), f"ds_read_b64_tr_b16 {vr(WR+slot*4,2)}, v{base} offset:{off}")
        lds_issue(("w", g), f"ds_read_b64_tr_b16 {vr(WR+slot*4+2,2)}, v{base} offset:{off+8*1152}")
    for f in range(PF): wread2(f)
    for t in range(18):
        lg = w2_groups(t + 3) if t >= 1 else []
        gi = 0
        for nt in range(9):
            g = t*9 + nt; slot = g % RING
            wread2(g + PF)
            lds_wait(lambda tg: (tg[0] == "w" and tg[1] <= g) or (tg[0] == "x" and tg[1] <= t))
            a(f"v_mfma_f32_32x32x16_bf16 {vr(acc(nt),16)}, {vr(WR+slot*4,4)}, {vr(XF+(t%2)*4,4)}, " + ("0" if t == 0 else vr(acc(nt),16)))
            if nt in (1, 4) and gi < len(lg):
                emit_group(lg[gi]); gi += 1
        assert gi == len(lg)
        if t < 17:
            vm.wait(lambda tg: tg[0] == "W" and tg[1] <= 36 + t + 2)
            a("s_barrier")
    stamp(a, 3)
    a("s_nop 7"); a("s_nop 7")
    for nt in range(9):
        o = WR + (nt % 3)*8
        for p in range(8):
            a(f"v_cvt_pk_bf16_f32 v{o+p}, v{acc(nt)+2*p}, v{acc(nt)+2*p+1}")
        if nt % 2 == 0 and nt: a(f"s_add_u32 s{sPb}, s{sPb}, 4096")
        a(f"buffer_store_dwordx4 {vr(o,4)}, v{vPo}, {sr(sP,4)}, s{sPb} offen offset:{(nt%2)*2048}")
        a(f"buffer_store_dwordx4 {vr(o+4,4)}, v{vPo}, {sr(sP,4)}, s{sPb} offen offset:{(nt%2)*2048+1024}")
    if "stamp" in OPT: a("s_waitcnt vmcnt(0)")
    stamp(a, 4); stamp(a, 6, True)
    stamp_dump(a, 7, 8, sWave, vT+4)
    a.lab(f"L_{name}_done")
    a("s_endpgm")
    return a.text(), kernel_desc(name, NV), f"; @launch kernel={name} grid=(256,1,1) block=(512,1,1) lds={LDS}"

def gen_k5b(name="k5_kernel"):
    a = A()
    kernel_head(a, name)
    sH, sP, sO = 12, 16, 20
    a("s_cmp_ge_u32 s2, 576")
    a(f"s_cbranch_scc1 L_{name}_done")
    a("s_load_dwordx2 s[4:5], s[0:1], 56")
    a("s_load_dwordx2 s[8:9], s[0:1], 72")
    a("v_lshrrev_b32 v1, 6, v0")
    a("v_and_b32 v0, 63, v0")
    a("s_nop 0")
    a("v_readfirstlane_b32 s28, v1")
    a("s_lshl_b32 s29, s2, 2")
    a("s_add_u32 s29, s29, s28")
    a("s_and_b32 s36, s29, 1")
    a("s_lshr_b32 s37, s29, 1")
    a("s_mul_i32 s30, s37, 3641")
    a("s_lshr_b32 s30, s30, 16")
    a("s_mul_i32 s31, s30, 18")
    a("s_sub_u32 s31, s37, s31")
    a("s_waitcnt lgkmcnt(0)")
    srd(a, sH, 8, H1_SZ, H1_OFF)
    srd(a, sP, 8, PB_SZ, PB_OFF)
    srd(a, sO, 4, 2048*576*2)
    a("v_lshlrev_b32 v1, 4, v0")
    a("s_lshl_b32 s33, s29, 10")
    PR = 16
    for k in range(16):
        a(f"buffer_load_dwordx4 v[{PR+k*4}:{PR+3+k*4}], v1, {sr(sP,4)}, s33 offen")
        if k < 15: a(f"s_add_u32 s33, s33, {64*18*2048}")
    a("v_bfe_u32 v2, v0, 4, 1")
    a("v_mul_u32_u24 v2, 18432, v2")
    a("v_lshrrev_b32 v3, 5, v0")
    a("v_lshl_add_u32 v2, v3, 8, v2")
    a("v_and_b32 v4, 15, v0")
    a("v_lshl_add_u32 v2, v4, 4, v2")
    a("s_mul_i32 s34, s30, 36864")
    a("s_lshl_b32 s35, s31, 10")
    a("s_add_u32 s34, s34, s35")
    a("s_lshl_b32 s35, s36, 3")
    a("s_add_u32 s34, s34, s35")
    a(f"buffer_load_dwordx2 v[8:9], v2, {sr(sH,4)}, s34 offen")
    a(f"buffer_load_dwordx2 v[10:11], v2, {sr(sH,4)}, s34 offen offset:512")
    a("v_and_b32 v4, 31, v0")
    a("s_lshl_b32 s35, s30, 5")
    a("v_add_u32 v4, s35, v4")
    a("v_mul_u32_u24 v4, 1152, v4")
    a("v_lshl_add_u32 v4, v3, 3, v4")
    a("s_lshl_b32 s35, s31, 6")
    a("s_lshl_b32 s38, s36, 5")
    a("s_add_u32 s35, s35, s38")
    S = 84
    for k in range(16):
        a(f"s_waitcnt vmcnt({(15-k)+2})")
        for d in range(4):
            x = PR + k*4 + d
            if k == 0:
                a(f"v_lshlrev_b32 v{S+2*d}, 16, v{x}")
                a(f"v_and_b32 v{S+2*d+1}, 0xffff0000, v{x}")
            else:
                a(f"v_lshlrev_b32 v{92+d*2}, 16, v{x}")
                a(f"v_and_b32 v{93+d*2}, 0xffff0000, v{x}")
        if k:
            for d in range(8):
                a(f"v_add_f32 v{S+d}, v{S+d}, v{92+d}")
    a("s_waitcnt vmcnt(0)")
    for d in range(4):
        a(f"v_cvt_pk_bf16_f32 v92, v{S+2*d}, v{S+2*d+1}")
        a(f"v_lshlrev_b32 v93, 16, v92")
        a(f"v_and_b32 v94, 0xffff0000, v92")
        a(f"v_lshlrev_b32 v95, 16, v{8+d}")
        a(f"v_and_b32 v96, 0xffff0000, v{8+d}")
        a(f"v_add_f32 v93, v93, v95")
        a(f"v_add_f32 v94, v94, v96")
        a(f"v_cvt_pk_bf16_f32 v{PR+d}, v93, v94")
    for q in range(2):
        a(f"buffer_store_dwordx2 v[{PR+2*q}:{PR+2*q+1}], v4, {sr(sO,4)}, s35 offen offset:{q*16}")
    a.lab(f"L_{name}_done")
    a("s_endpgm")
    return a.text(), kernel_desc(name, 100, 48), f"; @launch kernel={name} grid=(576,1,1) block=(256,1,1) lds=0"

GENS = {"k34": gen_k34, "k5b": gen_k5b, "k45": gen_k45, "k2v2": gen_k2v2, "k1v3": gen_k1v3, "k1": gen_k1, "k2": gen_k2, "k3": gen_k3, "k4": gen_k4, "k5": gen_k5, "k3v2": gen_k3v2, "k3m": gen_k3m, "k4v2": gen_k4v2}


def build(which):
    heads, texts, descs = [], [], []
    for w in which:
        t, d, h = GENS[w]()
        heads.append(h); texts.append(t); descs.append(d)
    out = "; generated by dev/gen.py\n" + "\n".join(heads) + "\n"
    out += '.amdgcn_target "amdgcn-amd-amdhsa--gfx950"\n.text\n'
    out += "\n".join(texts)
    out += '.section .rodata,"a"\n'
    for d in descs:
        out += ".p2align 6\n" + d
    return out

if __name__ == "__main__":
    which = sys.argv[2].split(",")
    open(sys.argv[1], "w").write(build(which))
```

```python
import sys, struct, math, os
OPT = set(os.environ.get("GENOPT", "").split(","))

KN = "sequential_preLN__sliding_local_dilated__geglu_ffn__prompt"

O_OFF  = 0
O_SZ   = 2048*576*2
H1_OFF = O_OFF + O_SZ
H1_SZ  = 2048*576*2
ST_OFF = H1_OFF + H1_SZ
ST_SZ  = 2048*6*8
HH_OFF = ST_OFF + ST_SZ
HH_SZ  = 2048*4608*2
P_OFF  = HH_OFF + HH_SZ
P_SZ   = 4*2048*576*4

def f32(x):
    return struct.unpack("<I", struct.pack("<f", x))[0]

class A:
    def __init__(self):
        self.l = []
    def __call__(self, s):
        if "nomfma" in OPT and s.startswith("v_mfma"): return
        if s.startswith("buffer_store_dwordx4") and "s[80:83]" not in s:
            pol = getattr(self, "stpol", "")
            if pol: s += " " + pol
        if "nods" in OPT and s.startswith("ds_read_b64_tr"): return
        if "now" in OPT and s.startswith("buffer_load_dwordx4") and s.endswith("lds"): return
        if "nox" in OPT and s.startswith("buffer_load_dwordx4 v[") and "s[16:19]" in s: return
        self.l.append("    " + s)
    def lab(self, s):
        self.l.append(s + ":")
    def c(self, s):
        self.l.append("    ; " + s)
    def text(self):
        return "\n".join(self.l) + "\n"

def vr(b, n=1):
    return f"v{b}" if n == 1 else f"v[{b}:{b+n-1}]"
def sr(b, n=1):
    return f"s{b}" if n == 1 else f"s[{b}:{b+n-1}]"

def kernel_head(a, name):
    a.l.append(f".globl {name}")
    a.l.append(".p2align 8")
    a.l.append(f".type {name},@function")
    a.lab(name)

def kernel_desc(name, vgpr, sgpr=96, accum=None):
    if accum is None:
        accum = (vgpr + 3) // 4 * 4
    return f""".amdhsa_kernel {name}
  .amdhsa_next_free_vgpr {vgpr}
  .amdhsa_next_free_sgpr {sgpr}
  .amdhsa_accum_offset {accum}
  .amdhsa_group_segment_fixed_size 0
  .amdhsa_kernarg_size 80
  .amdhsa_user_sgpr_count 2
  .amdhsa_user_sgpr_kernarg_segment_ptr 1
  .amdhsa_system_sgpr_workgroup_id_x 1
.end_amdhsa_kernel
"""

def srd(a, d, base, size, off=0):
    if off:
        a(f"s_add_u32 s{d}, s{base}, {off}")
        a(f"s_addc_u32 s{d+1}, s{base+1}, 0")
    else:
        a(f"s_mov_b32 s{d}, s{base}")
        a(f"s_mov_b32 s{d+1}, s{base+1}")
    a(f"s_and_b32 s{d+1}, s{d+1}, 0xffff")
    a(f"s_mov_b32 s{d+2}, {size}")
    a(f"s_mov_b32 s{d+3}, 0x00020000")

def round_bf16(a, d, s, tmp=None):
    a(f"v_cvt_pk_bf16_f32 v{d}, v{s}, v{s}")
    a(f"v_lshlrev_b32 v{d}, 16, v{d}")

GELU_A = -2.0 * math.log2(math.e) * math.sqrt(2.0 / math.pi)
GELU_B = GELU_A * 0.044715

import os
OPT = set(os.environ.get("GENOPT", "").split(","))
def stamp(a, i, real=False):
    if "stamp" in OPT:
        a(f"s_mem{'real' if real else ''}time s[{60+2*i}:{61+2*i}]")
def stamp_dump(a, n, sWs, sWave, tmpv, region=0):
    if "stamp" in OPT:
        a("s_waitcnt lgkmcnt(0)")
        a("s_mov_b64 exec, -1")
        srd(a, 80, sWs, 1<<20, (200+region)<<20)
        a(f"s_lshl_b32 s84, s2, 4")
        a(f"s_add_u32 s84, s84, s{sWave}")
        a(f"s_lshl_b32 s84, s84, 6")
        a(f"v_mov_b32 v{tmpv}, s84")
        for i in range(n):
            a(f"v_mov_b32 v{tmpv+2}, s{60+2*i}")
            a(f"v_mov_b32 v{tmpv+3}, s{61+2*i}")
            a(f"buffer_store_dwordx2 v[{tmpv+2}:{tmpv+3}], v{tmpv}, s[80:83], 0 offen offset:{8*i}")
            a("s_nop 1")
def gen_k3(name="k3_kernel"):
    a = A()
    kernel_head(a, name)
    NST = 6
    STG = 18432
    RING = 6
    ACC = 0
    XS = 144
    WR = 192
    vWa = 216
    vWb = 217
    vD0, vD1, vD2 = 218, 219, 220
    vX0, vX1 = 221, 222
    vM0, vR0, vM1, vR1 = 223, 224, 225, 226
    vT = 228
    vLane = 244
    NV = 246
    def acc(nt, mat, mt):
        return ACC + ((nt * 2 + mat) * 2 + mt) * 4
    sW, sX, sST, sH = 12, 16, 20, 24
    sWave, sFb, sMb = 28, 29, 30
    sWoff, sXoff, sIt = 31, 32, 33
    sM0b = 34
    sT = 36
    sA_, sB_ = 48, 49
    sExec = 50
    sHb = 52

    a("s_cmp_ge_u32 s2, 256")
    a(f"s_cbranch_scc1 L_{name}_done")
    stamp(a, 0)
    stamp(a, 5, True)
    a("s_load_dwordx4 s[4:7], s[0:1], 32")
    a("s_load_dwordx2 s[8:9], s[0:1], 72")
    a("v_lshrrev_b32 v1, 6, v0")
    a("v_and_b32 v0, 63, v0")
    a("s_nop 0")
    a(f"v_readfirstlane_b32 s{sWave}, v1")
    a(f"s_and_b32 s{sT}, s2, 7")
    a(f"s_lshr_b32 s{sT+1}, s2, 3")
    a(f"s_and_b32 s{sFb}, s{sT+1}, 3")
    a(f"s_lshl_b32 s{sT}, s{sT}, 2")
    a(f"s_add_u32 s{sFb}, s{sFb}, s{sT}")
    a(f"s_lshr_b32 s{sMb}, s{sT+1}, 2")
    a("s_waitcnt lgkmcnt(0)")
    a(f"s_cmp_ge_u32 s{sWave}, 4")
    a(f"s_cselect_b32 s{sT}, s6, s4")
    a(f"s_cselect_b32 s{sT+1}, s7, s5")
    srd(a, sW, sT, 576*4608*2)
    srd(a, sX, 8, H1_SZ, H1_OFF)
    srd(a, sST, 8, ST_SZ, ST_OFF)
    srd(a, sH, 8, HH_SZ, HH_OFF)
    a(f"v_and_b32 v{vT}, 15, v0")
    a(f"s_lshl_b32 s{sT}, s{sMb}, 8")
    a(f"s_lshl_b32 s{sT+1}, s{sWave}, 5")
    a(f"s_add_u32 s{sT}, s{sT}, s{sT+1}")
    a(f"v_add_u32 v{vT}, s{sT}, v{vT}")
    a(f"v_mul_u32_u24 v{vT}, 48, v{vT}")
    for mt in range(2):
        for q in range(3):
            a(f"buffer_load_dwordx4 {vr(WR+mt*12+q*4,4)}, v{vT}, {sr(sST,4)}, 0 offen offset:{mt*768+q*16}")
    for t, vd in enumerate((vD0, vD1, vD2)):
        a(f"v_add_u32 v{vT+1}, {t*64}, v0")
        a(f"v_mul_u32_u24 v{vT+2}, 3641, v{vT+1}")
        a(f"v_lshrrev_b32 v{vT+2}, 16, v{vT+2}")
        a(f"v_mul_u32_u24 v{vT+3}, 18, v{vT+2}")
        a(f"v_sub_u32 v{vT+3}, v{vT+1}, v{vT+3}")
        a(f"v_mul_u32_u24 v{vT+2}, 9216, v{vT+2}")
        a(f"v_lshl_add_u32 v{vd}, v{vT+3}, 4, v{vT+2}")
    a(f"s_and_b32 s{sT}, s{sWave}, 3")
    a(f"s_mul_i32 s{sT+1}, s{sT}, {8*9216}")
    a(f"s_mul_i32 s{sT+2}, s{sFb}, 288")
    a(f"s_add_u32 s{sT+1}, s{sT+1}, s{sT+2}")
    for vd in (vD0, vD1, vD2):
        a(f"v_add_u32 v{vd}, s{sT+1}, v{vd}")
    a(f"s_mul_i32 s{sM0b}, s{sWave}, 2304")
    a(f"s_lshl_b32 s{sT}, s{sMb}, 4")
    a(f"s_lshl_b32 s{sT+1}, s{sWave}, 1")
    a(f"s_add_u32 s{sT}, s{sT}, s{sT+1}")
    a(f"s_mul_i32 s{sT+1}, s{sT}, 18432")
    a(f"v_lshlrev_b32 v{vX0}, 4, v0")
    a(f"v_add_u32 v{vX0}, s{sT+1}, v{vX0}")
    a(f"v_add_u32 v{vX1}, 18432, v{vX0}")
    a(f"s_mul_i32 s{sHb}, s{sT}, 144")
    a(f"s_lshr_b32 s{sT+1}, s{sFb}, 1")
    a(f"s_mul_i32 s{sT+1}, s{sT+1}, 9")
    a(f"s_add_u32 s{sHb}, s{sHb}, s{sT+1}")
    a(f"s_lshl_b32 s{sHb}, s{sHb}, 10")
    a(f"v_lshrrev_b32 v{vT+1}, 2, v0")
    a(f"v_mul_u32_u24 v{vT+1}, 288, v{vT+1}")
    a(f"v_and_b32 v{vT+2}, 3, v0")
    a(f"v_lshl_add_u32 v{vWa}, v{vT+2}, 3, v{vT+1}")
    a(f"v_add_u32 v{vWb}, {3*STG}, v{vWa}")
    sRot, sCnt = 54, 55
    if "rot" in OPT:
        a(f"s_mul_i32 s{sRot}, s{sMb}, 9")
        a(f"s_and_b32 s{sT}, s{sFb}, 3")
        a(f"s_mul_i32 s{sT}, s{sT}, 18")
        a(f"s_add_u32 s{sRot}, s{sRot}, s{sT}")
        a(f"s_lshr_b32 s{sRot}, s{sRot}, 2")
        a(f"s_sub_u32 s{sT}, s{sRot}, 18")
        a(f"s_cmp_ge_u32 s{sRot}, 18")
        a(f"s_cselect_b32 s{sRot}, s{sT}, s{sRot}")
    else:
        a(f"s_mov_b32 s{sRot}, 0")
    if "samew" in OPT:
        a(f"s_mov_b32 s{sRot}, 0")
    a(f"s_mov_b32 s{sCnt}, 0")
    a(f"s_mul_i32 s{sWoff}, s{sRot}, {32*9216}")
    a(f"s_lshl_b32 s{sXoff}, s{sRot}, 10")
    a(f"s_mov_b64 s[{sExec}:{sExec+1}], 0xffff")
    a(f"v_mov_b32 v{vLane}, v0")

    def load_groups(stage, xset):
        gs = []
        for t, vd in enumerate((vD0, vD1, vD2)):
            g = [f"s_add_u32 m0, s{sM0b}, {stage*STG + t*1024}"]
            if t == 2:
                g.append(f"s_mov_b64 exec, s[{sExec}:{sExec+1}]")
            else:
                g.append("s_nop 0")
            g.append(f"buffer_load_dwordx4 v{vd}, {sr(sW,4)}, s{sWoff} offen lds")
            if t == 2:
                g.append("s_mov_b64 exec, -1")
            gs.append(g)
        gs.append([f"buffer_load_dwordx4 {vr(XS+xset*8,4)}, v{vX0}, {sr(sX,4)}, s{sXoff} offen"])
        gs.append([f"buffer_load_dwordx4 {vr(XS+xset*8+4,4)}, v{vX1}, {sr(sX,4)}, s{sXoff} offen",
                   f"s_add_u32 s{sRot}, s{sRot}, 1",
                   f"s_cmp_eq_u32 s{sRot}, {4 if 'hot4' in OPT else 18}",
                   f"s_cselect_b32 s{sRot}, 0, s{sRot}",
                   f"s_add_u32 s{sCnt}, s{sCnt}, 1",
                   f"s_mul_i32 s{sWoff}, s{sRot}, {32*9216}",
                   f"s_lshl_b32 s{sXoff}, s{sRot}, 10",
                   f"s_cmp_ge_u32 s{sCnt}, 18",
                   f"s_cselect_b32 s{sWoff}, 0x7f000000, s{sWoff}",
                   f"s_cselect_b32 s{sXoff}, 0x7f000000, s{sXoff}"])
        return gs
    def issue_loads(stage, xset):
        for g in load_groups(stage, xset):
            for x in g: a(x)

    for s in range(5):
        issue_loads(s, s)
    a("s_waitcnt vmcnt(25)")
    for mt, (vM, vR) in enumerate(((vM0, vR0), (vM1, vR1))):
        b = WR + mt * 12
        a(f"v_add_f32 v{vT}, v{b}, v{b+2}")
        a(f"v_add_f32 v{vT+1}, v{b+4}, v{b+6}")
        a(f"v_add_f32 v{vT+2}, v{b+8}, v{b+10}")
        a(f"v_add_f32 v{vT}, v{vT}, v{vT+1}")
        a(f"v_add_f32 v{vT}, v{vT}, v{vT+2}")
        a(f"v_mul_f32 v{vT}, {f32(1.0/6.0)}, v{vT}")
        a(f"v_add_f32 v{vT+1}, v{b+1}, v{b+3}")
        a(f"v_add_f32 v{vT+2}, v{b+5}, v{b+7}")
        a(f"v_add_f32 v{vT+3}, v{b+9}, v{b+11}")
        a(f"v_add_f32 v{vT+1}, v{vT+1}, v{vT+2}")
        a(f"v_add_f32 v{vT+1}, v{vT+1}, v{vT+3}")
        a(f"v_mov_b32 v{vT+2}, 0")
        for t in range(6):
            a(f"v_sub_f32 v{vT+3}, v{b+2*t}, v{vT}")
            a(f"v_fmac_f32 v{vT+2}, v{vT+3}, v{vT+3}")
        a(f"v_fmac_f32 v{vT+1}, {f32(96.0)}, v{vT+2}")
        a(f"v_mul_f32 v{vT+1}, {f32(1.0/576.0)}, v{vT+1}")
        round_bf16(a, vM, vT)
        round_bf16(a, vT+1, vT+1)
        a(f"v_add_f32 v{vT+1}, {f32(1e-5)}, v{vT+1}")
        round_bf16(a, vT+1, vT+1)
        a(f"v_sqrt_f32 v{vT+1}, v{vT+1}")
        a("s_nop 0")
        round_bf16(a, vT+1, vT+1)
        a(f"v_rcp_f32 v{vR}, v{vT+1}")
    for i in range(0, 144, 2):
        a(f"v_mov_b64 {vr(ACC+i,2)}, 0")

    def norm_ops(xset):
        ops = []
        for mt, (vM, vR) in enumerate(((vM0, vR0), (vM1, vR1))):
            for d in range(4):
                x = XS + xset * 8 + mt * 4 + d
                t0 = vT + (d % 2) * 2
                t1 = t0 + 1
                ops.append(f"v_lshlrev_b32 v{t0}, 16, v{x}")
                ops.append(f"v_and_b32 v{t1}, 0xffff0000, v{x}")
                if "fastnorm" in OPT:
                    ops.append(f"v_sub_f32 v{t0}, v{t0}, v{vM}")
                    ops.append(f"v_sub_f32 v{t1}, v{t1}, v{vM}")
                    ops.append(f"v_cvt_pk_bf16_f32 v{x}, v{t0}, v{t1}")
                    continue
                ops.append(f"v_sub_f32 v{t0}, v{t0}, v{vM}")
                ops.append(f"v_sub_f32 v{t1}, v{t1}, v{vM}")
                ops.append(f"v_cvt_pk_bf16_f32 v{t0}, v{t0}, v{t1}")
                ops.append(f"v_and_b32 v{t1}, 0xffff0000, v{t0}")
                ops.append(f"v_lshlrev_b32 v{t0}, 16, v{t0}")
                ops.append(f"v_mul_f32 v{t0}, v{t0}, v{vR}")
                ops.append(f"v_mul_f32 v{t1}, v{t1}, v{vR}")
                ops.append(f"v_cvt_pk_bf16_f32 v{x}, v{t0}, v{t1}")
        return ops

    def wread(fidx_global):
        st = (fidx_global // 18) % NST
        f = fidx_global % 18
        nt, mat = f // 2, f % 2
        slot = fidx_global % RING
        base = vWa if st < 3 else vWb
        off = (st % 3) * STG + mat * 9216 + nt * 32
        a(f"ds_read_b64_tr_b16 {vr(WR+slot*4,2)}, v{base} offset:{off}")
        a(f"ds_read_b64_tr_b16 {vr(WR+slot*4+2,2)}, v{base} offset:{off+4608}")

    PF = RING - 1
    a("s_waitcnt vmcnt(15)")
    for op in norm_ops(0):
        a(op)
    a("s_barrier")
    for f in range(PF):
        wread(f)
    stamp(a, 1)
    a(f"s_mov_b32 s{sIt}, 0")
    a(".p2align 6")
    a.lab(f"L_{name}_loop")
    for ph in range(NST):
        lg = load_groups((ph + 5) % NST, (ph + 5) % NST)
        spread = "spread" in OPT
        if not spread:
            issue_loads((ph + 5) % NST, (ph + 5) % NST)
        nops = norm_ops((ph + 1) % NST)
        if "nonorm" in OPT: nops = []
        ni = 0
        for f in range(18):
            g = ph * 18 + f
            nt, mat = f // 2, f % 2
            slot = g % RING
            wread(g + PF)
            a(f"s_waitcnt lgkmcnt({2*PF})")
            a(f"v_mfma_f32_16x16x32_bf16 {vr(acc(nt,mat,0),4)}, {vr(WR+slot*4,4)}, {vr(XS+ph*8,4)}, {vr(acc(nt,mat,0),4)}")
            a(f"v_mfma_f32_16x16x32_bf16 {vr(acc(nt,mat,1),4)}, {vr(WR+slot*4,4)}, {vr(XS+ph*8+4,4)}, {vr(acc(nt,mat,1),4)}")
            if f == 1:
                a("s_waitcnt vmcnt(%d)" % (15 if spread else 20))
            if spread and f % 3 == 2 and f // 3 < 5:
                for x in lg[f // 3]: a(x)
            if f >= 1:
                for _ in range(5):
                    if ni < len(nops):
                        a(nops[ni]); ni += 1
        assert ni == len(nops)
        a("s_waitcnt vmcnt(17)")
        a("s_barrier")
    a(f"s_add_u32 s{sIt}, s{sIt}, 1")
    a(f"s_cmp_lt_u32 s{sIt}, 3")
    a(f"s_cbranch_scc1 L_{name}_loop")
    stamp(a, 2)
    a("s_waitcnt vmcnt(0) lgkmcnt(0)")
    a(f"s_mov_b32 s{sA_}, {f32(GELU_A)}")
    a(f"s_mov_b32 s{sB_}, {f32(GELU_B)}")
    a(f"v_lshlrev_b32 v{vX0}, 4, v{vLane}")
    a(f"s_and_b32 s{sT}, s{sFb}, 1")
    a(f"s_lshl_b32 s{sT+1}, s{sT}, 12")
    a(f"s_add_u32 s{sT+1}, s{sT+1}, s{sHb}")
    a(f"s_lshl_b32 s{sT+2}, s{sT}, 3")
    a(f"s_add_u32 s{sT+2}, s{sT+2}, s{sHb}")
    a(f"s_add_u32 s{sT+2}, s{sT+2}, {8*1024}")
    a(f"s_add_u32 s{sT+3}, s{sT+1}, {144*1024}")
    a(f"s_add_u32 s{sT+4}, s{sT+2}, {144*1024}")
    OUT = XS
    def gelu_tile(nt, mt, dst):
        g = acc(nt, 0, mt); u = acc(nt, 1, mt)
        T = WR
        for h in range(2):
            g0, g1, u0, u1 = g+2*h, g+2*h+1, u+2*h, u+2*h+1
            x0, x1, y0, y1, t0, t1 = T+h*8, T+h*8+1, T+h*8+2, T+h*8+3, T+h*8+4, T+h*8+5
            if "relax" in OPT:
                x0, x1, y0, y1 = g0, g1, u0, u1
            else:
                a(f"v_cvt_pk_bf16_f32 v{x0}, v{g0}, v{g1}")
                a(f"v_cvt_pk_bf16_f32 v{y0}, v{u0}, v{u1}")
                a(f"v_and_b32 v{x1}, 0xffff0000, v{x0}")
                a(f"v_lshlrev_b32 v{x0}, 16, v{x0}")
                a(f"v_and_b32 v{y1}, 0xffff0000, v{y0}")
                a(f"v_lshlrev_b32 v{y0}, 16, v{y0}")
            a(f"v_mul_f32 v{t0}, v{x0}, v{x0}")
            a(f"v_mul_f32 v{t1}, v{x1}, v{x1}")
            a(f"v_fma_f32 v{t0}, v{t0}, s{sB_}, v{vT}")
            a(f"v_fma_f32 v{t1}, v{t1}, s{sB_}, v{vT}")
            a(f"v_mul_f32 v{t0}, v{t0}, v{x0}")
            a(f"v_mul_f32 v{t1}, v{t1}, v{x1}")
            a(f"v_exp_f32 v{t0}, v{t0}")
            a(f"v_exp_f32 v{t1}, v{t1}")
            a("s_nop 0")
            a(f"v_add_f32 v{t0}, 1.0, v{t0}")
            a(f"v_add_f32 v{t1}, 1.0, v{t1}")
            a(f"v_rcp_f32 v{t0}, v{t0}")
            a(f"v_rcp_f32 v{t1}, v{t1}")
            a("s_nop 0")
            a(f"v_mul_f32 v{t0}, v{t0}, v{x0}")
            a(f"v_mul_f32 v{t1}, v{t1}, v{x1}")
            if "relax" not in OPT:
                a(f"v_cvt_pk_bf16_f32 v{t0}, v{t0}, v{t1}")
                a(f"v_and_b32 v{t1}, 0xffff0000, v{t0}")
                a(f"v_lshlrev_b32 v{t0}, 16, v{t0}")
            a(f"v_mul_f32 v{t0}, v{t0}, v{y0}")
            a(f"v_mul_f32 v{t1}, v{t1}, v{y1}")
            a(f"v_cvt_pk_bf16_f32 v{dst+h}, v{t0}, v{t1}")
    a(f"v_mov_b32 v{vT}, s{sA_}")
    a("s_nop 7")
    k = 0
    for mt in range(2):
        for p in range(4):
            o = OUT + (k % 12) * 4; k += 1
            gelu_tile(2*p, mt, o)
            gelu_tile(2*p+1, mt, o+2)
            a(f"buffer_store_dwordx4 {vr(o,4)}, v{vX0}, {sr(sH,4)}, s{sT+1+2*mt} offen offset:{p*1024}")
        o = OUT + (k % 12) * 4; k += 1
        gelu_tile(8, mt, o)
        a(f"buffer_store_dwordx2 {vr(o,2)}, v{vX0}, {sr(sH,4)}, s{sT+2+2*mt} offen")
    stamp(a, 3)
    a("s_waitcnt vmcnt(0)")
    stamp(a, 4)
    stamp(a, 6, True)
    stamp_dump(a, 7, 8, sWave, vT)
    a.lab(f"L_{name}_done")
    a("s_endpgm")
    return a.text(), kernel_desc(name, NV), f"; @launch kernel={name} grid=(256,1,1) block=(512,1,1) lds={NST*STG}"


def lds_dump(a, nbytes, wg, tidv, tv, off_mb, nthreads=512, tag="d"):
    a(f"s_cmp_lg_u32 s2, {wg}")
    a(f"s_cbranch_scc1 L_dump_{tag}")
    srd(a, 80, 8, 1 << 20, off_mb << 20)
    a(f"v_lshlrev_b32 v{tv}, 4, v{tidv}")
    for i in range(0, nbytes, nthreads*16):
        a(f"v_add_u32 v{tv+1}, {i}, v{tv}")
        a(f"ds_read_b128 v[{tv+2}:{tv+5}], v{tv+1}")
        a("s_waitcnt lgkmcnt(0)")
        a(f"buffer_store_dwordx4 v[{tv+2}:{tv+5}], v{tv+1}, s[80:83], 0 offen")
        a("s_waitcnt vmcnt(0)")
    a.lab(f"L_dump_{tag}")
    a("s_barrier")

class VM:
    def __init__(self, a):
        self.a = a; self.ops = []
    def op(self, tag, text):
        if "noload" in OPT and tag[0] in ("W", "X") and tag[1] >= 2 and getattr(self.a, "k3", False): return
        self.a(text); self.ops.append(tag)
    def wait(self, tagpred, extra=""):
        last = -1
        for i, t in enumerate(self.ops):
            if tagpred(t): last = i
        n = len(self.ops) - 1 - last
        assert n <= 63
        if last >= 0:
            self.a(f"s_waitcnt vmcnt({n}){extra}")
            self.ops = self.ops[last+1:]

def gen_k4(name="k4_kernel"):
    a = A(); vm = VM(a)
    kernel_head(a, name)
    NST = 6; STG = 18432; RING = 6; PFD = 5
    ACC = 4
    XS = 76
    WR = 124
    vWa, vWb = 148, 149
    vD0, vD1, vD2 = 150, 151, 152
    vX0, vX1 = 153, 154
    vT = 156
    NV = 172
    def acc(nt, mt): return ACC + (nt*2+mt)*4
    sW, sX, sP = 12, 16, 20
    sWave, sKs, sMb, sNb = 28, 29, 30, 31
    sWb1, sWb2, sXb, sM0b = 32, 33, 34, 35
    sT = 36
    sExec = 50
    sWo = 52
    a("s_cmp_ge_u32 s2, 256")
    a(f"s_cbranch_scc1 L_{name}_done")
    stamp(a, 0); stamp(a, 5, True)
    a("s_load_dwordx2 s[4:5], s[0:1], 48")
    a("s_load_dwordx2 s[8:9], s[0:1], 72")
    a("v_lshrrev_b32 v1, 6, v0")
    a("v_and_b32 v0, 63, v0")
    a("s_nop 0")
    a(f"v_readfirstlane_b32 s{sWave}, v1")
    a(f"s_and_b32 s{sT}, s2, 7")
    a(f"s_lshr_b32 s{sT+1}, s2, 3")
    a(f"s_lshr_b32 s{sKs}, s{sT}, 1")
    a(f"s_and_b32 s{sNb}, s{sT+1}, 3")
    a(f"s_and_b32 s{sT}, s{sT}, 1")
    a(f"s_lshl_b32 s{sT}, s{sT}, 3")
    a(f"s_lshr_b32 s{sMb}, s{sT+1}, 2")
    a(f"s_add_u32 s{sMb}, s{sMb}, s{sT}")
    a("s_waitcnt lgkmcnt(0)")
    srd(a, sW, 4, 4608*576*2)
    srd(a, sX, 8, HH_SZ, HH_OFF)
    srd(a, sP, 8, P_SZ, P_OFF)
    for t, vd in enumerate((vD0, vD1, vD2)):
        a(f"v_add_u32 v{vT+1}, {t*64}, v0")
        a(f"v_mul_u32_u24 v{vT+2}, 3641, v{vT+1}")
        a(f"v_lshrrev_b32 v{vT+2}, 16, v{vT+2}")
        a(f"v_mul_u32_u24 v{vT+3}, 18, v{vT+2}")
        a(f"v_sub_u32 v{vT+3}, v{vT+1}, v{vT+3}")
        a(f"v_mul_u32_u24 v{vT+2}, 1152, v{vT+2}")
        a(f"v_lshl_add_u32 v{vd}, v{vT+3}, 4, v{vT+2}")
    a(f"s_lshr_b32 s{sT}, s{sWave}, 2")
    a(f"s_lshl_b32 s{sT+1}, s{sKs}, 1")
    a(f"s_add_u32 s{sT+1}, s{sT+1}, s{sT}")
    a(f"s_mul_i32 s{sWb1}, s{sT+1}, {576*1152}")
    a(f"s_and_b32 s{sT+2}, s{sWave}, 3")
    a(f"s_mul_i32 s{sT+3}, s{sT+2}, {8*1152}")
    a(f"s_add_u32 s{sWb1}, s{sWb1}, s{sT+3}")
    a(f"s_mul_i32 s{sT+3}, s{sNb}, 288")
    a(f"s_add_u32 s{sWb1}, s{sWb1}, s{sT+3}")
    a(f"s_cmp_ge_u32 s{sT+2}, 2")
    a(f"s_cselect_b32 s{sT+3}, {128*1152}, 0")
    a(f"s_add_u32 s{sWb2}, s{sWb1}, s{sT+3}")
    a(f"s_mul_i32 s{sM0b}, s{sWave}, 2304")
    a(f"s_lshl_b32 s{sXb}, s{sMb}, 3")
    a(f"s_lshl_b32 s{sT+3}, s{sT+2}, 1")
    a(f"s_add_u32 s{sXb}, s{sXb}, s{sT+3}")
    a(f"s_mov_b32 s{sT+4}, s{sXb}")
    a(f"s_mul_i32 s{sXb}, s{sXb}, 144")
    a(f"s_mul_i32 s{sT+3}, s{sT+1}, 18")
    a(f"s_add_u32 s{sXb}, s{sXb}, s{sT+3}")
    a(f"s_lshl_b32 s{sXb}, s{sXb}, 10")
    a(f"v_lshlrev_b32 v{vX0}, 4, v0")
    a(f"v_add_u32 v{vX0}, s{sXb}, v{vX0}")
    a(f"v_add_u32 v{vX1}, {144*1024}, v{vX0}")
    a(f"s_lshl_b32 s{sT+5}, s{sKs}, 7")
    a(f"s_add_u32 s{sT+5}, s{sT+5}, s{sT+4}")
    a(f"s_add_u32 s{sT+5}, s{sT+5}, s{sT}")
    a(f"s_mul_i32 s{sT+5}, s{sT+5}, 36")
    a(f"s_mul_i32 s{sT+6}, s{sNb}, 9")
    a(f"s_add_u32 s{sT+5}, s{sT+5}, s{sT+6}")
    a(f"s_lshl_b32 s{sT+5}, s{sT+5}, 10")
    a(f"v_lshrrev_b32 v{vT+1}, 2, v0")
    a(f"v_mul_u32_u24 v{vT+1}, 288, v{vT+1}")
    a(f"v_and_b32 v{vT+2}, 3, v0")
    a(f"v_lshl_add_u32 v{vWa}, v{vT+2}, 3, v{vT+1}")
    a(f"s_mul_i32 s{sT+6}, s{sT}, 9216")
    a(f"v_add_u32 v{vWa}, s{sT+6}, v{vWa}")
    a(f"v_add_u32 v{vWb}, {3*STG}, v{vWa}")
    a(f"s_mov_b64 s[{sExec}:{sExec+1}], 0xffff")

    def fa_rel(i):
        q, ii = divmod(i, 9)
        if ii < 4: return 288*q + 32*ii
        if ii < 8: return 288*q + 144 + 32*(ii-4)
        return 288*q + 128
    def load_groups(i):
        if i >= 18: return []
        st = i % NST
        gs = []
        base = sWb2 if i % 9 == 8 else sWb1
        for t, vd in enumerate((vD0, vD1, vD2)):
            g = []
            if t == 0:
                g.append(("s", f"s_add_u32 s{sWo}, s{base}, {fa_rel(i)*1152}"))
            g.append(("s", f"s_add_u32 m0, s{sM0b}, {st*STG + t*1024}"))
            g.append(("s", f"s_mov_b64 exec, s[{sExec}:{sExec+1}]" if t == 2 else "s_nop 0"))
            g.append((("W", i), f"buffer_load_dwordx4 v{vd}, {sr(sW,4)}, s{sWo} offen lds"))
            if t == 2: g.append(("s", "s_mov_b64 exec, -1"))
            gs.append(g)
        xs = XS + (i % NST) * 8
        gs.append([("s", f"s_mov_b32 s{sWo+1}, {i*1024}"),
                   (("X", i), f"buffer_load_dwordx4 {vr(xs,4)}, v{vX0}, {sr(sX,4)}, s{sWo+1} offen")])
        gs.append([(("X", i), f"buffer_load_dwordx4 {vr(xs+4,4)}, v{vX1}, {sr(sX,4)}, s{sWo+1} offen")])
        return gs
    def emit_group(g):
        for tag, txt in g:
            if tag == "s": a(txt)
            else: vm.op(tag, txt)
    for i in range(PFD):
        for g in load_groups(i): emit_group(g)
    for i in range(0, 72, 2):
        a(f"v_mov_b64 {vr(ACC+i,2)}, 0")
    def wread(gidx):
        i, nt = divmod(gidx, 9)
        if i >= 18: return False
        st = i % NST; slot = gidx % RING
        base = vWa if st < 3 else vWb
        off = (st % 3) * STG + nt * 32
        a(f"ds_read_b64_tr_b16 {vr(WR+slot*4,2)}, v{base} offset:{off}")
        a(f"ds_read_b64_tr_b16 {vr(WR+slot*4+2,2)}, v{base} offset:{off+4608}")
        return True
    PF = RING - 1
    vm.wait(lambda t: t[1] <= 1)
    a("s_barrier")
    for f in range(PF): wread(f)
    stamp(a, 1)
    for i in range(18):
        lg = load_groups(i + PFD)
        vm.wait(lambda t: t[0] == "X" and t[1] <= i)
        for nt in range(9):
            g = i*9 + nt; slot = g % RING
            ok = wread(g + PF)
            rem = min(PF, 18*9 - 1 - g)
            a(f"s_waitcnt lgkmcnt({2*rem})")
            xs = XS + (i % NST) * 8
            a(f"v_mfma_f32_16x16x32_bf16 {vr(acc(nt,0),4)}, {vr(WR+slot*4,4)}, {vr(xs,4)}, {vr(acc(nt,0),4)}")
            a(f"v_mfma_f32_16x16x32_bf16 {vr(acc(nt,1),4)}, {vr(WR+slot*4,4)}, {vr(xs+4,4)}, {vr(acc(nt,1),4)}")
            if nt % 2 == 0 and nt // 2 < len(lg):
                emit_group(lg[nt // 2])
        vm.wait(lambda t: t[0] == "W" and t[1] <= i + 2)
        a("s_barrier")
    stamp(a, 2)
    a(f"s_lshr_b32 s{sT}, s{sWave}, 2")
    a(f"v_lshlrev_b32 v{vT}, 4, v0")
    a(f"s_mul_i32 s{sT+1}, s{sWave}, 9216")
    a(f"v_add_u32 v{vT+1}, s{sT+1}, v{vT}")
    a(f"s_xor_b32 s{sT+2}, s{sWave}, 4")
    a(f"s_mul_i32 s{sT+2}, s{sT+2}, 9216")
    a(f"v_add_u32 v{vT+2}, s{sT+2}, v{vT}")
    a(f"s_cmp_eq_u32 s{sT}, 0")
    a("s_nop 4")
    a(f"s_cbranch_scc0 L_{name}_kh1")
    for kh in range(2):
        if kh == 1: a.lab(f"L_{name}_kh1")
        for nt in range(9):
            a(f"ds_write_b128 v{vT+1}, {vr(acc(nt,1-kh),4)} offset:{nt*1024}")
        a("s_waitcnt lgkmcnt(0)")
        a("s_barrier")
        for nt in range(9):
            a(f"ds_read_b128 {vr(XS+nt*4,4)}, v{vT+2} offset:{nt*1024}")
        for nt in range(9):
            a(f"s_waitcnt lgkmcnt({8-nt})")
            for r in range(4):
                a(f"v_add_f32 v{XS+nt*4+r}, v{XS+nt*4+r}, v{acc(nt,kh)+r}")
            if nt < 4:
                a(f"buffer_store_dwordx4 {vr(XS+nt*4,4)}, v{vT}, {sr(sP,4)}, s{sT+5} offen offset:{nt*1024}")
            else:
                if nt in (4, 8): a(f"s_add_u32 s{sT+5}, s{sT+5}, 4096")
                a(f"buffer_store_dwordx4 {vr(XS+nt*4,4)}, v{vT}, {sr(sP,4)}, s{sT+5} offen offset:{(nt%4)*1024}")
        stamp(a, 3)
        if "stamp" in OPT: a("s_waitcnt vmcnt(0)")
        stamp(a, 4); stamp(a, 6, True)
        stamp_dump(a, 7, 8, sWave, vT+4, 1)
        a("s_endpgm")
    a.lab(f"L_{name}_done")
    a("s_endpgm")
    return a.text(), kernel_desc(name, NV), f"; @launch kernel={name} grid=(256,1,1) block=(512,1,1) lds={NST*STG}"

def gen_k5(name="k5_kernel"):
    a = A()
    kernel_head(a, name)
    sH, sP, sO = 12, 16, 20
    a("s_cmp_ge_u32 s2, 576")
    a(f"s_cbranch_scc1 L_{name}_done")
    a("s_load_dwordx2 s[4:5], s[0:1], 56")
    a("s_load_dwordx2 s[8:9], s[0:1], 72")
    a("v_lshrrev_b32 v1, 6, v0")
    a("v_and_b32 v0, 63, v0")
    a("s_nop 0")
    a("v_readfirstlane_b32 s28, v1")
    a("s_lshl_b32 s29, s2, 2")
    a("s_add_u32 s29, s29, s28")
    a("s_mul_i32 s30, s29, 3641")
    a("s_lshr_b32 s30, s30, 16")
    a("s_mul_i32 s31, s30, 18")
    a("s_sub_u32 s31, s29, s31")
    a("s_waitcnt lgkmcnt(0)")
    srd(a, sH, 8, H1_SZ, H1_OFF)
    srd(a, sP, 8, P_SZ, P_OFF)
    srd(a, sO, 4, 2048*576*2)
    a("v_lshlrev_b32 v1, 4, v0")
    a("s_lshl_b32 s32, s29, 10")
    if "pb16" in OPT:
        a("s_lshl_b32 s33, s29, 10")
        a("v_lshlrev_b32 v3, 3, v0")
        a(f"buffer_load_dwordx4 v[4:7], v1, {sr(sH,4)}, s32 offen")
        for k in range(4):
            a(f"buffer_load_dwordx2 v[{40+k*4}:{41+k*4}], v3, {sr(sP,4)}, s33 offen")
            a(f"buffer_load_dwordx2 v[{42+k*4}:{43+k*4}], v3, {sr(sP,4)}, s33 offen offset:512")
            if k < 3: a(f"s_add_u32 s33, s33, {128*36*512}")
    else:
        a("s_lshl_b32 s33, s29, 11")
        a(f"buffer_load_dwordx4 v[4:7], v1, {sr(sH,4)}, s32 offen")
        for k in range(4):
            a(f"buffer_load_dwordx4 v[{8+k*8}:{11+k*8}], v1, {sr(sP,4)}, s33 offen")
            a(f"buffer_load_dwordx4 v[{12+k*8}:{15+k*8}], v1, {sr(sP,4)}, s33 offen offset:1024")
            if k < 3: a(f"s_add_u32 s33, s33, {128*36*1024}")
    a("v_and_b32 v2, 15, v0")
    a("s_lshl_b32 s34, s30, 4")
    a("v_add_u32 v2, s34, v2")
    a("v_mul_u32_u24 v2, 1152, v2")
    a("v_lshrrev_b32 v3, 4, v0")
    a("v_lshl_add_u32 v2, v3, 3, v2")
    a("s_lshl_b32 s34, s31, 6")
    a("s_waitcnt vmcnt(0)")
    if "pb16" in OPT:
        for k in range(4):
            for d in range(4):
                a(f"v_lshlrev_b32 v{8+k*8+2*d}, 16, v{40+k*4+d}")
                a(f"v_and_b32 v{9+k*8+2*d}, 0xffff0000, v{40+k*4+d}")
    for i in range(8):
        a(f"v_add_f32 v{8+i}, v{8+i}, v{16+i}")
        a(f"v_add_f32 v{24+i}, v{24+i}, v{32+i}")
    for i in range(8):
        a(f"v_add_f32 v{8+i}, v{8+i}, v{24+i}")
    for p in range(4):
        a(f"v_cvt_pk_bf16_f32 v{16+p}, v{8+2*p}, v{9+2*p}")
    for p in range(4):
        a(f"v_lshlrev_b32 v{24+2*p}, 16, v{16+p}")
        a(f"v_and_b32 v{25+2*p}, 0xffff0000, v{16+p}")
        a(f"v_lshlrev_b32 v{32+2*p}, 16, v{4+p}")
        a(f"v_and_b32 v{33+2*p}, 0xffff0000, v{4+p}")
    for i in range(8):
        a(f"v_add_f32 v{24+i}, v{24+i}, v{32+i}")
    for p in range(4):
        a(f"v_cvt_pk_bf16_f32 v{16+p}, v{24+2*p}, v{25+2*p}")
    a(f"buffer_store_dwordx2 v[16:17], v2, {sr(sO,4)}, s34 offen")
    a(f"buffer_store_dwordx2 v[18:19], v2, {sr(sO,4)}, s34 offen offset:32")
    a.lab(f"L_{name}_done")
    a("s_endpgm")
    return a.text(), kernel_desc(name, 56, 48), f"; @launch kernel={name} grid=(576,1,1) block=(256,1,1) lds=0"


def gen_k2(name="k2_kernel"):
    a = A(); vm = VM(a)
    kernel_head(a, name)
    PITCH = 224; BLK = 32*PITCH
    ACC = 4
    OF = 28
    XR = 100
    WR = 112
    vD = 160
    vWa, vWb = 167, 168
    vT = 170
    NV = 188
    sW, sO, sXs, sH, sST = 12, 16, 20, 24, 28
    sWave, sRb, sNb, sT = 32, 33, 34, 36
    a("s_cmp_ge_u32 s2, 192")
    a(f"s_cbranch_scc1 L_{name}_done")
    stamp(a, 0); stamp(a, 5, True)
    a("s_load_dwordx2 s[4:5], s[0:1], 0")
    a("s_load_dwordx2 s[6:7], s[0:1], 16")
    a("s_load_dwordx2 s[8:9], s[0:1], 72")
    a("v_lshrrev_b32 v1, 6, v0")
    a("v_and_b32 v0, 63, v0")
    a("s_nop 0")
    a(f"v_readfirstlane_b32 s{sWave}, v1")
    a(f"s_lshr_b32 s{sT+1}, s2, 3")
    a(f"s_mul_i32 s{sRb}, s{sT+1}, 10923")
    a(f"s_lshr_b32 s{sRb}, s{sRb}, 16")
    a(f"s_mul_i32 s{sT}, s{sRb}, 6")
    a(f"s_sub_u32 s{sNb}, s{sT+1}, s{sT}")
    a(f"s_and_b32 s{sT}, s2, 7")
    a(f"s_lshl_b32 s{sT}, s{sT}, 2")
    a(f"s_add_u32 s{sRb}, s{sRb}, s{sT}")
    a("s_waitcnt lgkmcnt(0)")
    srd(a, sW, 6, 576*576*2)
    srd(a, sO, 8, O_SZ, O_OFF)
    srd(a, sXs, 4, 2048*576*2)
    srd(a, sH, 8, H1_SZ, H1_OFF)
    srd(a, sST, 8, ST_SZ, ST_OFF)
    a(f"s_mul_i32 s{sT}, s{sNb}, 192")
    a(f"s_mov_b32 s{sT+1}, 0x40000000")
    for t in range(7):
        a(f"v_add_u32 v{vT}, {t*64}, v0")
        a(f"v_mul_u32_u24 v{vT+1}, 4682, v{vT}")
        a(f"v_lshrrev_b32 v{vT+1}, 16, v{vT+1}")
        a(f"v_mul_u32_u24 v{vT+2}, 14, v{vT+1}")
        a(f"v_sub_u32 v{vT+2}, v{vT}, v{vT+2}")
        a(f"v_and_b32 v{vT+3}, 4, v{vT+1}")
        a(f"v_lshlrev_b32 v{vT+3}, 1, v{vT+3}")
        a(f"v_and_b32 v{vT+4}, 8, v{vT+1}")
        a(f"v_lshrrev_b32 v{vT+4}, 1, v{vT+4}")
        a(f"v_and_b32 v{vT+1}, 0x13, v{vT+1}")
        a(f"v_or3_b32 v{vT+1}, v{vT+1}, v{vT+3}, v{vT+4}")
        a(f"v_mul_u32_u24 v{vT+1}, 1152, v{vT+1}")
        a(f"v_lshl_add_u32 v{vT+1}, v{vT+2}, 4, v{vT+1}")
        a(f"v_add_u32 v{vT+1}, s{sT}, v{vT+1}")
        a(f"v_cmp_gt_u32 vcc, 12, v{vT+2}")
        a(f"v_mov_b32 v{vT+3}, s{sT+1}")
        a("s_nop 0")
        a(f"v_cndmask_b32 v{vD+t}, v{vT+3}, v{vT+1}, vcc")
    a(f"s_lshl_b32 s{sT}, s{sRb}, 6")
    a(f"s_lshl_b32 s{sT+1}, s{sWave}, 4")
    a(f"s_add_u32 s{sT}, s{sT}, s{sT+1}")
    a(f"v_and_b32 v{vT}, 15, v0")
    a(f"v_add_u32 v{vT}, s{sT}, v{vT}")
    a(f"v_mul_u32_u24 v{vT+1}, 1152, v{vT}")
    a(f"v_lshrrev_b32 v{vT+2}, 4, v0")
    a(f"s_lshr_b32 s{sT+4}, s{sT}, 4")
    a(f"s_mul_i32 s{sT+4}, s{sT+4}, 18432")
    a(f"v_lshlrev_b32 v{vT+3}, 4, v0")
    a(f"v_add_u32 v{vT+3}, s{sT+4}, v{vT+3}")
    a(f"v_lshl_add_u32 v{vT+4}, v{vT+2}, 3, v{vT+1}")
    for q in range(1, 5): a(f"s_movk_i32 s{sT+4+q}, {q*4096}")
    def osoff(s_): return ("s%d" % (sT+4+s_//4)) if s_ >= 4 else "0"
    a(f"s_mul_i32 s{sT+1}, s{sNb}, 192")
    a(f"s_mul_i32 s{sT+2}, s{sWave}, {32*1152}")
    a(f"s_mul_i32 s{sT+3}, s{sWave}, {BLK}")
    def chunk_ops(c):
        gs = []
        if c > 4: return gs
        for t in range(7):
            g = [("s", f"s_add_u32 m0, s{sT+3}, {c*4*BLK + t*1024}"), ("s", "s_nop 0"),
                 (("W", c), f"buffer_load_dwordx4 v{vD+t}, {sr(sW,4)}, s{sT+2} offen lds")]
            if t == 6: g.append(("s", f"s_add_u32 s{sT+2}, s{sT+2}, {4*32*1152}"))
            gs.append(g)
        for s_ in range(4*c, min(4*c+4, 18)):
            gs.append([(("O", c), f"buffer_load_dwordx4 {vr(OF+s_*4,4)}, v{vT+3}, {sr(sO,4)}, {osoff(s_)} offen offset:{(s_%4)*1024}")])
        return gs
    def emit_group(g):
        for tg, txt in g:
            if tg == "s": a(txt)
            else: vm.op(tg, txt)
    for c in range(2):
        for g in chunk_ops(c): emit_group(g)
    a(f"v_lshrrev_b32 v{vT+5}, 5, v0")
    a(f"v_lshlrev_b32 v{vT+5}, 4, v{vT+5}")
    a(f"v_bfe_u32 v{vT+6}, v0, 2, 3")
    a(f"v_add_u32 v{vT+5}, v{vT+5}, v{vT+6}")
    a(f"v_mul_u32_u24 v{vT+5}, {PITCH}, v{vT+5}")
    a(f"v_and_b32 v{vT+6}, 3, v0")
    a(f"v_lshl_add_u32 v{vWa}, v{vT+6}, 3, v{vT+5}")
    a(f"v_add_u32 v{vWb}, {9*BLK}, v{vWa}")
    def wread(s_, buf):
        base = vWa if s_ < 9 else vWb
        for nt in range(6):
            off = (s_ % 9) * BLK + nt * 32
            a(f"ds_read_b64_tr_b16 {vr(WR+buf*24+nt*4,2)}, v{base} offset:{off}")
            a(f"ds_read_b64_tr_b16 {vr(WR+buf*24+nt*4+2,2)}, v{base} offset:{off+8*PITCH}")
    for c in range(5):
        vm.wait(lambda t: t[1] <= c)
        a("s_barrier")
        if c == 0: stamp(a, 1)
        lg = chunk_ops(c+2)
        if c == 2:
            for nt in range(6):
                lg.append([(("X", 9), f"buffer_load_dwordx2 {vr(XR+nt*2,2)}, v{vT+4}, {sr(sXs,4)}, s{sT+1} offen offset:{nt*32}")])
        gi = 0
        steps = list(range(4*c, min(4*c+4, 18)))
        wread(steps[0], steps[0] % 2)
        for s_ in steps:
            if s_ != steps[-1]:
                wread(s_+1, (s_+1) % 2)
                a("s_waitcnt lgkmcnt(12)")
            else:
                a("s_waitcnt lgkmcnt(0)")
            for nt in range(6):
                cc = vr(ACC+nt*4,4)
                a(f"v_mfma_f32_16x16x32_bf16 {cc}, {vr(WR+(s_%2)*24+nt*4,4)}, {vr(OF+s_*4,4)}, " + ("0" if s_ == 0 else cc))
                if gi < len(lg):
                    emit_group(lg[gi]); gi += 1
        assert gi == len(lg)
    a("s_waitcnt vmcnt(0)")
    a("s_nop 7")
    stamp(a, 2)
    HP = WR
    for nt in range(6):
        for p in range(2):
            c0 = ACC + nt*4 + 2*p
            a(f"v_cvt_pk_bf16_f32 v{vT}, v{c0}, v{c0+1}")
            a(f"v_lshlrev_b32 v{c0}, 16, v{vT}")
            a(f"v_and_b32 v{c0+1}, 0xffff0000, v{vT}")
            a(f"v_lshlrev_b32 v{vT+1}, 16, v{XR+nt*2+p}")
            a(f"v_and_b32 v{vT+2}, 0xffff0000, v{XR+nt*2+p}")
            a(f"v_add_f32 v{c0}, v{c0}, v{vT+1}")
            a(f"v_add_f32 v{c0+1}, v{c0+1}, v{vT+2}")
            a(f"v_cvt_pk_bf16_f32 v{HP+nt*2+p}, v{c0}, v{c0+1}")
            a(f"v_lshlrev_b32 v{c0}, 16, v{HP+nt*2+p}")
            a(f"v_and_b32 v{c0+1}, 0xffff0000, v{HP+nt*2+p}")
    a(f"s_lshl_b32 s{sT}, s{sRb}, 2")
    a(f"s_add_u32 s{sT}, s{sT}, s{sWave}")
    a(f"s_mul_i32 s{sT+1}, s{sT}, 18")
    a(f"s_mul_i32 s{sT+2}, s{sNb}, 3")
    a(f"s_add_u32 s{sT+1}, s{sT+1}, s{sT+2}")
    a(f"s_lshl_b32 s{sT+1}, s{sT+1}, 10")
    a(f"v_lshlrev_b32 v{vT}, 4, v0")
    for p in range(3):
        a(f"buffer_store_dwordx4 {vr(HP+p*4,4)}, v{vT}, {sr(sH,4)}, s{sT+1} offen offset:{p*1024}")
    def xreduce(v, t):
        a(f"v_xor_b32 v{t}, 16, v0")
        a(f"v_lshlrev_b32 v{t}, 2, v{t}")
        a(f"ds_bpermute_b32 v{t+1}, v{t}, v{v}")
        a("s_waitcnt lgkmcnt(0)")
        a(f"v_add_f32 v{v}, v{v}, v{t+1}")
        a(f"v_xor_b32 v{t}, 32, v0")
        a(f"v_lshlrev_b32 v{t}, 2, v{t}")
        a(f"ds_bpermute_b32 v{t+1}, v{t}, v{v}")
        a("s_waitcnt lgkmcnt(0)")
        a(f"v_add_f32 v{v}, v{v}, v{t+1}")
    S0, S1 = vT+4, vT+5
    a(f"v_add_f32 v{S0}, v{ACC}, v{ACC+1}")
    for i in range(2, 24):
        a(f"v_add_f32 v{S0}, v{S0}, v{ACC+i}")
    xreduce(S0, vT+6)
    a(f"v_mul_f32 v{S0}, {f32(1.0/96.0)}, v{S0}")
    a(f"v_mov_b32 v{S1}, 0")
    for i in range(24):
        a(f"v_sub_f32 v{vT+1}, v{ACC+i}, v{S0}")
        a(f"v_fmac_f32 v{S1}, v{vT+1}, v{vT+1}")
    xreduce(S1, vT+6)
    a(f"s_lshl_b32 s{sT}, s{sT}, 4")
    a(f"v_add_u32 v{vT}, s{sT}, v0")
    a(f"v_mul_u32_u24 v{vT}, 48, v{vT}")
    a(f"s_lshl_b32 s{sT+1}, s{sNb}, 3")
    a("s_mov_b64 exec, 0xffff")
    a(f"buffer_store_dwordx2 {vr(S0,2)}, v{vT}, {sr(sST,4)}, s{sT+1} offen")
    stamp(a, 3)
    if "stamp" in OPT: a("s_waitcnt vmcnt(0)")
    stamp(a, 4); stamp(a, 6, True)
    stamp_dump(a, 7, 8, sWave, vT+8, 2)
    a.lab(f"L_{name}_done")
    a("s_endpgm")
    return a.text(), kernel_desc(name, NV, 96), f"; @launch kernel={name} grid=(192,1,1) block=(256,1,1) lds={20*BLK}"

def gen_k2v2(name="k2_kernel"):
    a = A(); vm = VM(a)
    kernel_head(a, name)
    PITCH = 224; BLK = 32*PITCH
    ACC = 4
    OF = 28
    XR = 100
    WR = 112
    vD = 160
    vWa, vWb = 167, 168
    vT = 170
    NV = 188
    sW, sO, sXs, sH, sST = 12, 16, 20, 24, 28
    sWave, sRb, sNb, sT = 32, 33, 34, 36
    a("s_cmp_ge_u32 s2, 192")
    a(f"s_cbranch_scc1 L_{name}_done")
    stamp(a, 0); stamp(a, 5, True)
    a("s_load_dwordx2 s[4:5], s[0:1], 0")
    a("s_load_dwordx2 s[6:7], s[0:1], 16")
    a("s_load_dwordx2 s[8:9], s[0:1], 72")
    a("v_lshrrev_b32 v1, 6, v0")
    a("v_and_b32 v0, 63, v0")
    a("s_nop 0")
    a(f"v_readfirstlane_b32 s{sWave}, v1")
    a(f"s_lshr_b32 s35, s{sWave}, 2")
    a(f"s_and_b32 s{sWave}, s{sWave}, 3")
    a(f"s_lshr_b32 s{sT+1}, s2, 3")
    a(f"s_mul_i32 s{sRb}, s{sT+1}, 10923")
    a(f"s_lshr_b32 s{sRb}, s{sRb}, 16")
    a(f"s_mul_i32 s{sT}, s{sRb}, 6")
    a(f"s_sub_u32 s{sNb}, s{sT+1}, s{sT}")
    a(f"s_and_b32 s{sT}, s2, 7")
    a(f"s_lshl_b32 s{sT}, s{sT}, 2")
    a(f"s_add_u32 s{sRb}, s{sRb}, s{sT}")
    a("s_waitcnt lgkmcnt(0)")
    srd(a, sW, 6, 576*576*2)
    srd(a, sO, 8, O_SZ, O_OFF)
    srd(a, sXs, 4, 2048*576*2)
    srd(a, sH, 8, H1_SZ, H1_OFF)
    srd(a, sST, 8, ST_SZ, ST_OFF)
    a(f"s_mul_i32 s{sT}, s{sNb}, 192")
    a(f"s_mov_b32 s{sT+1}, 0x40000000")
    for t in range(7):
        a(f"v_add_u32 v{vT}, {t*64}, v0")
        a(f"v_mul_u32_u24 v{vT+1}, 4682, v{vT}")
        a(f"v_lshrrev_b32 v{vT+1}, 16, v{vT+1}")
        a(f"v_mul_u32_u24 v{vT+2}, 14, v{vT+1}")
        a(f"v_sub_u32 v{vT+2}, v{vT}, v{vT+2}")
        a(f"v_and_b32 v{vT+3}, 4, v{vT+1}")
        a(f"v_lshlrev_b32 v{vT+3}, 1, v{vT+3}")
        a(f"v_and_b32 v{vT+4}, 8, v{vT+1}")
        a(f"v_lshrrev_b32 v{vT+4}, 1, v{vT+4}")
        a(f"v_and_b32 v{vT+1}, 0x13, v{vT+1}")
        a(f"v_or3_b32 v{vT+1}, v{vT+1}, v{vT+3}, v{vT+4}")
        a(f"v_mul_u32_u24 v{vT+1}, 1152, v{vT+1}")
        a(f"v_lshl_add_u32 v{vT+1}, v{vT+2}, 4, v{vT+1}")
        a(f"v_add_u32 v{vT+1}, s{sT}, v{vT+1}")
        a(f"v_cmp_gt_u32 vcc, 12, v{vT+2}")
        a(f"v_mov_b32 v{vT+3}, s{sT+1}")
        a("s_nop 0")
        a(f"v_cndmask_b32 v{vD+t}, v{vT+3}, v{vT+1}, vcc")
    a(f"s_lshl_b32 s{sT}, s{sRb}, 6")
    a(f"s_lshl_b32 s{sT+1}, s{sWave}, 4")
    a(f"s_add_u32 s{sT}, s{sT}, s{sT+1}")
    a(f"v_and_b32 v{vT}, 15, v0")
    a(f"v_add_u32 v{vT}, s{sT}, v{vT}")
    a(f"v_mul_u32_u24 v{vT+1}, 1152, v{vT}")
    a(f"v_lshrrev_b32 v{vT+2}, 4, v0")
    a(f"s_lshr_b32 s{sT+4}, s{sT}, 4")
    a(f"s_mul_i32 s{sT+4}, s{sT+4}, 18432")
    a(f"v_lshlrev_b32 v{vT+3}, 4, v0")
    a(f"v_add_u32 v{vT+3}, s{sT+4}, v{vT+3}")
    a(f"v_lshl_add_u32 v{vT+4}, v{vT+2}, 3, v{vT+1}")
    for q in range(1, 5): a(f"s_movk_i32 s{sT+4+q}, {q*4096}")
    def osoff(s_): return ("s%d" % (sT+4+s_//4)) if s_ >= 4 else "0"
    a(f"s_mul_i32 s{sT+1}, s{sNb}, 192")
    a(f"s_mul_i32 s{sT+2}, s{sWave}, {32*1152}")
    a(f"s_mul_i32 s{sT+3}, s{sWave}, {BLK}")
    a("s_cmp_eq_u32 s35, 0")
    a(f"s_cbranch_scc1 L_{name}_comp")
    for c in range(5):
        for t in range(7):
            a(f"s_add_u32 m0, s{sT+3}, {c*4*BLK + t*1024}")
            a("s_nop 0")
            a(f"buffer_load_dwordx4 v{vD+t}, {sr(sW,4)}, s{sT+2} offen lds")
        a(f"s_add_u32 s{sT+2}, s{sT+2}, {4*32*1152}")
    for c in range(5):
        a(f"s_waitcnt vmcnt({(4-c)*7})")
        a("s_barrier")
    a("s_endpgm")
    a.lab(f"L_{name}_comp")
    for s_ in range(18):
        vm.op(("O", s_), f"buffer_load_dwordx4 {vr(OF+s_*4,4)}, v{vT+3}, {sr(sO,4)}, {osoff(s_)} offen offset:{(s_%4)*1024}")
    for nt in range(6):
        vm.op(("X", 99), f"buffer_load_dwordx2 {vr(XR+nt*2,2)}, v{vT+4}, {sr(sXs,4)}, s{sT+1} offen offset:{nt*32}")
    a(f"v_lshrrev_b32 v{vT+5}, 5, v0")
    a(f"v_lshlrev_b32 v{vT+5}, 4, v{vT+5}")
    a(f"v_bfe_u32 v{vT+6}, v0, 2, 3")
    a(f"v_add_u32 v{vT+5}, v{vT+5}, v{vT+6}")
    a(f"v_mul_u32_u24 v{vT+5}, {PITCH}, v{vT+5}")
    a(f"v_and_b32 v{vT+6}, 3, v0")
    a(f"v_lshl_add_u32 v{vWa}, v{vT+6}, 3, v{vT+5}")
    a(f"v_add_u32 v{vWb}, {9*BLK}, v{vWa}")
    def wread(s_, buf):
        base = vWa if s_ < 9 else vWb
        for nt in range(6):
            off = (s_ % 9) * BLK + nt * 32
            a(f"ds_read_b64_tr_b16 {vr(WR+buf*24+nt*4,2)}, v{base} offset:{off}")
            a(f"ds_read_b64_tr_b16 {vr(WR+buf*24+nt*4+2,2)}, v{base} offset:{off+8*PITCH}")
    for c in range(5):
        a("s_barrier")
        if c == 0: stamp(a, 1)
        steps = list(range(4*c, min(4*c+4, 18)))
        wread(steps[0], steps[0] % 2)
        vm.wait(lambda t: t[0] == "O" and t[1] <= steps[-1])
        for s_ in steps:
            if s_ != steps[-1]:
                wread(s_+1, (s_+1) % 2)
                a("s_waitcnt lgkmcnt(12)")
            else:
                a("s_waitcnt lgkmcnt(0)")
            for nt in range(6):
                cc = vr(ACC+nt*4,4)
                a(f"v_mfma_f32_16x16x32_bf16 {cc}, {vr(WR+(s_%2)*24+nt*4,4)}, {vr(OF+s_*4,4)}, " + ("0" if s_ == 0 else cc))
    a("s_waitcnt vmcnt(0)")
    a("s_nop 7")
    stamp(a, 2)
    HP = WR
    for nt in range(6):
        for p in range(2):
            c0 = ACC + nt*4 + 2*p
            a(f"v_cvt_pk_bf16_f32 v{vT}, v{c0}, v{c0+1}")
            a(f"v_lshlrev_b32 v{c0}, 16, v{vT}")
            a(f"v_and_b32 v{c0+1}, 0xffff0000, v{vT}")
            a(f"v_lshlrev_b32 v{vT+1}, 16, v{XR+nt*2+p}")
            a(f"v_and_b32 v{vT+2}, 0xffff0000, v{XR+nt*2+p}")
            a(f"v_add_f32 v{c0}, v{c0}, v{vT+1}")
            a(f"v_add_f32 v{c0+1}, v{c0+1}, v{vT+2}")
            a(f"v_cvt_pk_bf16_f32 v{HP+nt*2+p}, v{c0}, v{c0+1}")
            a(f"v_lshlrev_b32 v{c0}, 16, v{HP+nt*2+p}")
            a(f"v_and_b32 v{c0+1}, 0xffff0000, v{HP+nt*2+p}")
    a(f"s_lshl_b32 s{sT}, s{sRb}, 2")
    a(f"s_add_u32 s{sT}, s{sT}, s{sWave}")
    a(f"s_mul_i32 s{sT+1}, s{sT}, 18")
    a(f"s_mul_i32 s{sT+2}, s{sNb}, 3")
    a(f"s_add_u32 s{sT+1}, s{sT+1}, s{sT+2}")
    a(f"s_lshl_b32 s{sT+1}, s{sT+1}, 10")
    a(f"v_lshlrev_b32 v{vT}, 4, v0")
    for p in range(3):
        a(f"buffer_store_dwordx4 {vr(HP+p*4,4)}, v{vT}, {sr(sH,4)}, s{sT+1} offen offset:{p*1024}")
    def xreduce(v, t):
        a(f"v_xor_b32 v{t}, 16, v0")
        a(f"v_lshlrev_b32 v{t}, 2, v{t}")
        a(f"ds_bpermute_b32 v{t+1}, v{t}, v{v}")
        a("s_waitcnt lgkmcnt(0)")
        a(f"v_add_f32 v{v}, v{v}, v{t+1}")
        a(f"v_xor_b32 v{t}, 32, v0")
        a(f"v_lshlrev_b32 v{t}, 2, v{t}")
        a(f"ds_bpermute_b32 v{t+1}, v{t}, v{v}")
        a("s_waitcnt lgkmcnt(0)")
        a(f"v_add_f32 v{v}, v{v}, v{t+1}")
    S0, S1 = vT+4, vT+5
    a(f"v_add_f32 v{S0}, v{ACC}, v{ACC+1}")
    for i in range(2, 24):
        a(f"v_add_f32 v{S0}, v{S0}, v{ACC+i}")
    xreduce(S0, vT+6)
    a(f"v_mul_f32 v{S0}, {f32(1.0/96.0)}, v{S0}")
    a(f"v_mov_b32 v{S1}, 0")
    for i in range(24):
        a(f"v_sub_f32 v{vT+1}, v{ACC+i}, v{S0}")
        a(f"v_fmac_f32 v{S1}, v{vT+1}, v{vT+1}")
    xreduce(S1, vT+6)
    a(f"s_lshl_b32 s{sT}, s{sT}, 4")
    a(f"v_add_u32 v{vT}, s{sT}, v0")
    a(f"v_mul_u32_u24 v{vT}, 48, v{vT}")
    a(f"s_lshl_b32 s{sT+1}, s{sNb}, 3")
    a("s_mov_b64 exec, 0xffff")
    a(f"buffer_store_dwordx2 {vr(S0,2)}, v{vT}, {sr(sST,4)}, s{sT+1} offen")
    stamp(a, 3)
    if "stamp" in OPT: a("s_waitcnt vmcnt(0)")
    stamp(a, 4); stamp(a, 6, True)
    stamp_dump(a, 7, 8, sWave, vT+8, 2)
    a.lab(f"L_{name}_done")
    a("s_endpgm")
    return a.text(), kernel_desc(name, NV, 96), f"; @launch kernel={name} grid=(192,1,1) block=(512,1,1) lds={20*BLK}"

def gen_k1(name="k1_kernel"):
    a = A(); vm = VM(a)
    kernel_head(a, name)
    XT = 0
    WB = 92160; STG = 16384; NST = 4; PITCH = 480
    QP = 624
    ACC = 4
    XF = 44
    WF = 84
    RAW = 100
    vD0, vD1 = 150, 151
    vWa, vXa = 152, 153
    vT = 156
    NV = 200
    sW, sXs, sO = 12, 16, 20
    sWave, sRb, sHg, sT = 28, 29, 30, 36
    sWo, sM0b = 31, 32
    a("s_cmp_ge_u32 s2, 256")
    a(f"s_cbranch_scc1 L_{name}_done")
    stamp(a, 0); stamp(a, 5, True)
    a("s_load_dwordx4 s[4:7], s[0:1], 0")
    a("s_load_dwordx2 s[8:9], s[0:1], 72")
    a("v_lshrrev_b32 v1, 6, v0")
    a("v_mov_b32 v3, v0")
    a("v_and_b32 v0, 63, v0")
    a(f"v_readfirstlane_b32 s{sWave}, v1")
    a(f"s_lshr_b32 s{sT}, s2, 3")
    a(f"s_and_b32 s{sHg}, s{sT}, 3")
    a(f"s_and_b32 s{sT+1}, s2, 1")
    a(f"s_lshl_b32 s{sT+1}, s{sT+1}, 2")
    a(f"s_add_u32 s{sHg}, s{sHg}, s{sT+1}")
    a(f"s_lshr_b32 s{sRb}, s{sT}, 2")
    a(f"s_bfe_u32 s{sT+1}, s2, 0x20001")
    a(f"s_lshl_b32 s{sT+1}, s{sT+1}, 3")
    a(f"s_add_u32 s{sRb}, s{sRb}, s{sT+1}")
    a("s_waitcnt lgkmcnt(0)")
    srd(a, sW, 6, 576*1728*2)
    srd(a, sXs, 4, 2048*576*2)
    srd(a, sO, 8, O_SZ, O_OFF)
    a(f"v_mul_u32_u24 v{vT}, 10923, v0")
    a(f"v_lshrrev_b32 v{vT}, 16, v{vT}")
    a(f"v_mul_u32_u24 v{vT+1}, 6, v{vT}")
    a(f"v_sub_u32 v{vT+1}, v0, v{vT+1}")
    a(f"s_mul_i32 s{sT}, s{sWave}, 10")
    a(f"v_add_u32 v{vT+2}, s{sT}, v{vT}")
    a(f"s_lshl_b32 s{sT+1}, s{sRb}, 6")
    a(f"s_sub_u32 s{sT+1}, s{sT+1}, 16")
    a(f"v_add_u32 v{vT+3}, s{sT+1}, v{vT+2}")
    a(f"s_movk_i32 s{sT+2}, 1152")
    a(f"v_mul_lo_u32 v{vT+3}, v{vT+3}, s{sT+2}")
    a(f"v_lshl_add_u32 v{vT+3}, v{vT+1}, 4, v{vT+3}")
    for i in range(12):
        vm.op(("x", i), f"buffer_load_dwordx4 {vr(RAW+i*4,4)}, v{vT+3}, {sr(sXs,4)}, 0 offen offset:{i*96}")
    a(f"s_lshl_b32 s{sT}, s{sWave}, 7")
    a(f"s_mul_i32 s{sT+1}, s{sHg}, 144")
    a(f"s_mov_b32 s{sT+2}, 0x40000000")
    for t, vd in enumerate((vD0, vD1)):
        a(f"v_add_u32 v{vT+4}, s{sT}, v0")
        if t: a(f"v_add_u32 v{vT+4}, 64, v{vT+4}")
        a(f"v_mul_u32_u24 v{vT+5}, 2185, v{vT+4}")
        a(f"v_lshrrev_b32 v{vT+5}, 16, v{vT+5}")
        a(f"v_mul_u32_u24 v{vT+6}, 30, v{vT+5}")
        a(f"v_sub_u32 v{vT+6}, v{vT+4}, v{vT+6}")
        a(f"v_mul_u32_u24 v{vT+7}, 7282, v{vT+6}")
        a(f"v_lshrrev_b32 v{vT+7}, 16, v{vT+7}")
        a(f"v_mul_u32_u24 v{vT+8}, 9, v{vT+7}")
        a(f"v_sub_u32 v{vT+8}, v{vT+6}, v{vT+8}")
        a(f"v_mul_u32_u24 v{vT+7}, 1152, v{vT+7}")
        a(f"v_lshl_add_u32 v{vT+7}, v{vT+8}, 4, v{vT+7}")
        a(f"v_and_b32 v{vT+8}, 4, v{vT+5}")
        a(f"v_lshlrev_b32 v{vT+8}, 1, v{vT+8}")
        a(f"v_and_b32 v{vT+9}, 8, v{vT+5}")
        a(f"v_lshrrev_b32 v{vT+9}, 1, v{vT+9}")
        a(f"v_and_b32 v{vT+10}, 0x13, v{vT+5}")
        a(f"v_or3_b32 v{vT+8}, v{vT+8}, v{vT+9}, v{vT+10}")
        a(f"v_mul_u32_u24 v{vT+8}, 3456, v{vT+8}")
        a(f"v_add3_u32 v{vT+7}, v{vT+7}, v{vT+8}, s{sT+1}")
        a(f"v_cmp_gt_u32 vcc, 27, v{vT+6}")
        a(f"v_cmp_gt_u32 s[{sT+4}:{sT+5}], 32, v{vT+5}")
        a(f"s_and_b64 vcc, vcc, s[{sT+4}:{sT+5}]")
        a(f"v_mov_b32 v{vT+8}, s{sT+2}")
        a("s_nop 1")
        a(f"v_cndmask_b32 v{vd}, v{vT+8}, v{vT+7}, vcc")
    a(f"s_lshl_b32 s{sM0b}, s{sWave}, 11")
    a(f"s_add_u32 s{sM0b}, s{sM0b}, {WB}")
    def wdma(i):
        if i >= 18: return
        st = i % NST
        a(f"s_mov_b32 s{sWo}, {i*32*3456}")
        for t, vd in enumerate((vD0, vD1)):
            a(f"s_add_u32 m0, s{sM0b}, {st*STG + t*1024}")
            a("s_nop 0")
            vm.op(("W", i), f"buffer_load_dwordx4 v{vd}, {sr(sW,4)}, s{sWo} offen lds")
    for i in range(4): wdma(i)
    ONES_LO, ONES_HI, ONES = sT+6, sT+7, sT+8
    a(f"s_mov_b32 s{ONES}, 0x3f803f80")
    S, M, Q = vT+4, vT+5, vT+6
    B3, B1, B2 = vT+8, vT+9, vT+10
    for d_, vb in ((3, B3), (1, B1), (2, B2)):
        a(f"v_add_u32 v{vb}, {d_}, v{vT+1}")
        a(f"v_subrev_u32 v{vT+11}, 6, v{vb}")
        a(f"v_min_u32 v{vb}, v{vb}, v{vT+11}")
        a(f"v_mad_u32_u24 v{vb}, v{vT}, 6, v{vb}")
        a(f"v_lshlrev_b32 v{vb}, 2, v{vb}")
    def reduce6(v):
        a(f"ds_bpermute_b32 v{vT+11}, v{B3}, v{v}")
        a("s_waitcnt lgkmcnt(0)")
        a(f"v_add_f32 v{v}, v{v}, v{vT+11}")
        a(f"ds_bpermute_b32 v{vT+11}, v{B1}, v{v}")
        a(f"ds_bpermute_b32 v{vT+12}, v{B2}, v{v}")
        a("s_waitcnt lgkmcnt(0)")
        a(f"v_add_f32 v{v}, v{v}, v{vT+11}")
        a(f"v_add_f32 v{v}, v{v}, v{vT+12}")
    vm.wait(lambda t: t[0] == "x")
    stamp(a, 1)
    if "wtest" in OPT:
        a("s_waitcnt vmcnt(6)")
        stamp(a, 2)
        a("s_waitcnt vmcnt(0)")
        stamp(a, 3)
        stamp(a, 4)
        OPT.discard("stamp"); OPT.add("stamp_off")
    a(f"v_mov_b32 v{S}, 0")
    a(f"v_mov_b32 v{Q}, 0")
    for i in range(48):
        a(f"v_dot2_f32_bf16 v{S if i%2==0 else Q}, v{RAW+i}, s{ONES}, v{S if i%2==0 else Q}")
    a("s_nop 2")
    a(f"v_add_f32 v{S}, v{S}, v{Q}")
    reduce6(S)
    a(f"v_mul_f32 v{S}, {f32(1.0/576.0)}, v{S}")
    round_bf16(a, M, S)
    PM, PQ = 172, 174
    a(f"v_sub_f32 v{PM}, 0, v{M}")
    a(f"v_mov_b32 v{PM+1}, v{PM}")
    a(f"v_mov_b64 {vr(PQ,2)}, 0")
    a(f"v_mov_b64 {vr(PQ+2,2)}, 0")
    for i in range(48):
        t = 178 + (i % 4) * 2
        q = PQ + (i % 2) * 2
        a(f"v_lshlrev_b32 v{t}, 16, v{RAW+i}")
        a(f"v_and_b32 v{t+1}, 0xffff0000, v{RAW+i}")
        a(f"v_pk_add_f32 {vr(t,2)}, {vr(t,2)}, {vr(PM,2)}")
        a(f"v_pk_fma_f32 {vr(q,2)}, {vr(t,2)}, {vr(t,2)}, {vr(q,2)}")
        a(f"v_cvt_pk_bf16_f32 v{RAW+i}, v{t}, v{t+1}")
    a(f"v_add_f32 v{Q}, v{PQ}, v{PQ+1}")
    a(f"v_add_f32 v{vT+13}, v{PQ+2}, v{PQ+3}")
    a(f"v_add_f32 v{Q}, v{Q}, v{vT+13}")
    reduce6(Q)
    a(f"v_mul_f32 v{Q}, {f32(1.0/576.0)}, v{Q}")
    a(f"v_sub_f32 v{vT+13}, v{S}, v{M}")
    a(f"v_fma_f32 v{Q}, -v{vT+13}, v{vT+13}, v{Q}")
    a(f"v_max_f32 v{Q}, 0, v{Q}")
    round_bf16(a, Q, Q)
    a(f"v_add_f32 v{Q}, {f32(1e-5)}, v{Q}")
    round_bf16(a, Q, Q)
    a(f"v_sqrt_f32 v{Q}, v{Q}")
    a("s_nop 0")
    round_bf16(a, Q, Q)
    a(f"v_rcp_f32 v{PM}, v{Q}")
    a(f"v_lshrrev_b32 v{vT+11}, 4, v{vT+2}")
    a(f"v_mov_b32 v{PM+1}, v{PM}")
    a(f"v_mul_u32_u24 v{vT+11}, 18432, v{vT+11}")
    a(f"v_and_b32 v{vT+12}, 15, v{vT+2}")
    a(f"v_lshl_add_u32 v{vT+11}, v{vT+12}, 4, v{vT+11}")
    a(f"v_lshl_add_u32 v{vT+14}, v{vT+1}, 8, v{vT+11}")
    a(f"v_cmp_gt_u32 vcc, 60, v0")
    a(f"s_and_saveexec_b64 s[{sT+4}:{sT+5}], vcc")
    for i in range(12):
        for d_ in range(4):
            x = RAW + i*4 + d_
            t = 178 + d_ * 2
            a(f"v_lshlrev_b32 v{t}, 16, v{x}")
            a(f"v_and_b32 v{t+1}, 0xffff0000, v{x}")
            a(f"v_pk_mul_f32 {vr(t,2)}, {vr(t,2)}, {vr(PM,2)}")
            a(f"v_cvt_pk_bf16_f32 v{x}, v{t}, v{t+1}")
        a(f"ds_write_b128 v{vT+14}, {vr(RAW+i*4,4)} offset:{XT + i*6*256}")
    a(f"s_mov_b64 exec, s[{sT+4}:{sT+5}]")
    stamp(a, 2)
    a(f"v_lshrrev_b32 v{vT+5}, 5, v0")
    a(f"v_lshlrev_b32 v{vT+5}, 4, v{vT+5}")
    a(f"v_bfe_u32 v{vT+6}, v0, 2, 3")
    a(f"v_add_u32 v{vT+5}, v{vT+5}, v{vT+6}")
    a(f"v_mul_u32_u24 v{vT+5}, {PITCH}, v{vT+5}")
    a(f"v_and_b32 v{vT+6}, 3, v0")
    a(f"v_lshl_add_u32 v{vWa}, v{vT+6}, 3, v{vT+5}")
    a(f"s_lshl_b32 s{sT}, s{sWave}, 6")
    a(f"s_add_u32 s{sT}, s{sT}, {WB}")
    a(f"v_add_u32 v{vWa}, s{sT}, v{vWa}")
    a(f"v_lshlrev_b32 v{vXa}, 4, v0")
    for i in range(0, 40, 2):
        a(f"v_mov_b64 {vr(ACC+i,2)}, 0")
    vm.wait(lambda t: t[0] == "W" and t[1] <= 1, " lgkmcnt(0)")
    a("s_barrier")
    def reads(i):
        b = i % 2; st = i % NST
        for n in range(2):
            a(f"ds_read_b64_tr_b16 {vr(WF+b*8+n*4,2)}, v{vWa} offset:{st*STG + n*32}")
            a(f"ds_read_b64_tr_b16 {vr(WF+b*8+n*4+2,2)}, v{vWa} offset:{st*STG + n*32 + 8*PITCH}")
        for mt in range(5):
            off = (mt*18 + i)*1024
            if off < 65536:
                a(f"ds_read_b128 {vr(XF+b*20+mt*4,4)}, v{vXa} offset:{off}")
            else:
                a(f"ds_read_b128 {vr(XF+b*20+mt*4,4)}, v{vT} offset:{off-65536}")
    a(f"v_add_u32 v{vT}, 65536, v{vXa}")
    stamp(a, 3)
    reads(0)
    for i in range(18):
        if i < 17:
            reads(i+1)
            a("s_waitcnt lgkmcnt(9)")
        else:
            a("s_waitcnt lgkmcnt(0)")
        b = i % 2
        k = 0
        for mt in range(5):
            for n in range(2):
                a(f"v_mfma_f32_16x16x32_bf16 {vr(ACC+(mt*2+n)*4,4)}, {vr(WF+b*8+n*4,4)}, {vr(XF+b*20+mt*4,4)}, {vr(ACC+(mt*2+n)*4,4)}")
                k += 1
                if k == 2 and i >= 1:
                    wdma(i+3)
        if i < 17:
            vm.wait(lambda t: t[0] == "W" and t[1] <= i+2)
            a("s_barrier")
    a("s_barrier")
    stamp(a, 4)
    a(f"v_lshrrev_b32 v{vT}, 4, v0")
    a(f"v_lshlrev_b32 v{vT}, 2, v{vT}")
    a(f"s_lshl_b32 s{sT}, s{sWave}, 5")
    a(f"v_add_u32 v{vT}, s{sT}, v{vT}")
    a(f"v_and_b32 v{vT+1}, 15, v0")
    a(f"v_mul_u32_u24 v{vT+1}, {QP}, v{vT+1}")
    AD = vT + 4
    for n in range(2):
        for p in range(2):
            ad = AD + n*2 + p
            a(f"v_add_u32 v{vT+2}, {n*16+p*2}, v{vT}")
            a(f"v_mul_u32_u24 v{vT+3}, 3641, v{vT+2}")
            a(f"v_lshrrev_b32 v{vT+3}, 16, v{vT+3}")
            a(f"v_mul_u32_u24 v{ad}, 18, v{vT+3}")
            a(f"v_sub_u32 v{ad}, v{vT+2}, v{ad}")
            a(f"v_lshl_add_u32 v{ad}, v{ad}, 1, v{vT+1}")
            a(f"v_mad_u32_u24 v{ad}, v{vT+3}, 48, v{ad}")
    a(f"s_cmp_ge_u32 s{sWave}, 7")
    a("s_nop 4")
    a(f"s_cbranch_scc1 L_{name}_skipq")
    for mt in range(5):
        for n in range(2):
            c = ACC + (mt*2+n)*4
            a(f"v_cvt_pk_bf16_f32 v{vT+8}, v{c}, v{c+1}")
            a(f"v_cvt_pk_bf16_f32 v{vT+9}, v{c+2}, v{c+3}")
            a(f"ds_write_b32 v{AD+n*2}, v{vT+8} offset:{mt*16*QP}")
            a(f"ds_write_b32 v{AD+n*2+1}, v{vT+9} offset:{mt*16*QP}")
    a.lab(f"L_{name}_skipq")
    a("s_waitcnt lgkmcnt(0)")
    a("s_barrier")
    if "dbg1" in OPT:
        lds_dump(a, 57344, 9, 3, 190, 210, tag="q")
    a(f"s_cmp_ge_u32 s{sWave}, 4")
    a(f"s_cbranch_scc1 L_{name}_done")
    QR = 4; KR = 16; LG = 120; OA = 130; VR_ = 16
    a(f"v_lshrrev_b32 v{vT}, 2, v3")
    a(f"v_and_b32 v{vT+1}, 3, v3")
    a(f"v_add_u32 v{vT+2}, 2, v{vT}")
    a(f"v_mul_u32_u24 v{vT+2}, {QP}, v{vT+2}")
    a(f"v_mad_u32_u24 v{vT+2}, v{vT+1}, 48, v{vT+2}")
    for j in range(3):
        a(f"ds_read_b128 {vr(QR+j*4,4)}, v{vT+2} offset:{14*QP + j*16}")
    for w in range(8):
        for j in range(3):
            a(f"ds_read_b128 {vr(KR+w*12+j*4,4)}, v{vT+2} offset:{(14-2*w)*QP + 192 + j*16}")
    a(f"s_lshl_b32 s{sT}, s{sRb}, 6")
    a(f"v_add_u32 v{vT+3}, s{sT}, v{vT}")
    a(f"s_mov_b32 s{sT+1}, {f32(18.0**-0.5)}")
    a(f"s_mov_b32 s{sT+2}, {f32(-1e9)}")
    a(f"v_cvt_pk_bf16_f32 v{vT+4}, s{sT+2}, s{sT+2}")
    a(f"v_lshlrev_b32 v{vT+4}, 16, v{vT+4}")
    for w in range(8):
        a(f"s_waitcnt lgkmcnt({min(15, (7-w)*3)})")
        a(f"v_mov_b32 v{LG+w}, 0")
        for d_ in range(9):
            a(f"v_dot2_f32_bf16 v{LG+w}, v{QR+d_}, v{KR+w*12+d_}, v{LG+w}")
        a("s_nop 2")
        round_bf16(a, LG+w, LG+w)
        a(f"v_mul_f32 v{LG+w}, s{sT+1}, v{LG+w}")
        round_bf16(a, LG+w, LG+w)
        a(f"v_cmp_le_u32 vcc, {2*w}, v{vT+3}")
        a("s_nop 1")
        a(f"v_cndmask_b32 v{LG+w}, v{vT+4}, v{LG+w}, vcc")
    for w in range(8):
        for j in range(3):
            a(f"ds_read_b128 {vr(VR_+w*12+j*4,4)}, v{vT+2} offset:{(14-2*w)*QP + 384 + j*16}")
    a(f"v_max3_f32 v{vT+5}, v{LG}, v{LG+1}, v{LG+2}")
    a(f"v_max3_f32 v{vT+5}, v{vT+5}, v{LG+3}, v{LG+4}")
    a(f"v_max3_f32 v{vT+5}, v{vT+5}, v{LG+5}, v{LG+6}")
    a(f"v_max_f32 v{vT+5}, v{vT+5}, v{LG+7}")
    a(f"s_mov_b32 s{sT+3}, {f32(math.log2(math.e))}")
    for w in range(8):
        a(f"v_sub_f32 v{LG+w}, v{LG+w}, v{vT+5}")
        a(f"v_mul_f32 v{LG+w}, s{sT+3}, v{LG+w}")
        a(f"v_exp_f32 v{LG+w}, v{LG+w}")
    a("s_nop 0")
    a(f"v_add_f32 v{vT+6}, v{LG}, v{LG+1}")
    for w in range(2, 8):
        a(f"v_add_f32 v{vT+6}, v{vT+6}, v{LG+w}")
    a(f"v_rcp_f32 v{vT+6}, v{vT+6}")
    a("s_nop 0")
    for w in range(8):
        a(f"v_mul_f32 v{LG+w}, v{LG+w}, v{vT+6}")
    for wp in range(4):
        a(f"v_cvt_pk_bf16_f32 v{LG+wp}, v{LG+2*wp}, v{LG+2*wp+1}")
    for d_ in range(18):
        a(f"v_mov_b32 v{OA+d_}, 0")
    a(f"s_mov_b32 s{sT+4}, 0x05040100")
    a(f"s_mov_b32 s{sT+5}, 0x07060302")
    for wp in range(4):
        a(f"s_waitcnt lgkmcnt({min(15, (3-wp)*6)})")
        for d_ in range(9):
            x0 = VR_ + (2*wp)*12 + d_; x1 = VR_ + (2*wp+1)*12 + d_
            t = vT + 8 + (d_ % 2) * 2
            a(f"v_perm_b32 v{t}, v{x1}, v{x0}, s{sT+4}")
            a(f"v_perm_b32 v{t+1}, v{x1}, v{x0}, s{sT+5}")
            a(f"v_dot2_f32_bf16 v{OA+2*d_}, v{t}, v{LG+wp}, v{OA+2*d_}")
            a(f"v_dot2_f32_bf16 v{OA+2*d_+1}, v{t+1}, v{LG+wp}, v{OA+2*d_+1}")
    a("s_nop 2")
    for d_ in range(9):
        a(f"v_cvt_pk_bf16_f32 v{QR+d_}, v{OA+2*d_}, v{OA+2*d_+1}")
    a(f"v_mul_u32_u24 v{vT+3}, 1152, v{vT+3}")
    a(f"v_mad_u32_u24 v{vT+3}, v{vT+1}, 36, v{vT+3}")
    a(f"s_mul_i32 s{sT}, s{sHg}, 144")
    a(f"buffer_store_dwordx4 {vr(QR,4)}, v{vT+3}, {sr(sO,4)}, s{sT} offen")
    a(f"buffer_store_dwordx4 {vr(QR+4,4)}, v{vT+3}, {sr(sO,4)}, s{sT} offen offset:16")
    a(f"buffer_store_dword v{QR+8}, v{vT+3}, {sr(sO,4)}, s{sT} offen offset:32")
    if "stamp_off" in OPT: OPT.add("stamp")
    if "stamp" in OPT: a("s_waitcnt vmcnt(0)")
    stamp(a, 6, True)
    stamp_dump(a, 7, 8, sWave, vT+8, 3)
    a.lab(f"L_{name}_done")
    a("s_endpgm")
    return a.text(), kernel_desc(name, NV, 96), f"; @launch kernel={name} grid=(256,1,1) block=(512,1,1) lds={WB + NST*STG}"


def dma_slots_setup(a, sWave, sT, vT, vD, rowbytes, sM0, upshift, extra_s=None):
    a(f"s_lshl_b32 s{sT}, s{sWave}, 6")
    a(f"s_sub_u32 s{sT+1}, s{sT}, 64")
    a(f"s_cmp_eq_u32 s{sWave}, 0")
    a(f"s_cselect_b32 s{sT+1}, 512, s{sT+1}")
    a(f"s_cselect_b32 s{sT+3}, 0, {upshift}")
    a(f"s_add_u32 s{sT+2}, s{sT}, 448")
    a(f"s_lshl_b32 s{sM0}, s{sWave}, 10")
    a(f"s_add_u32 s{sM0+1}, s{sM0}, 8192")
    a(f"s_add_u32 s{sM0+1}, s{sM0+1}, s{sT+3}")
    a(f"s_add_u32 s{sM0+2}, s{sM0}, {16384+upshift}")
    for k in range(3):
        a(f"v_add_u32 v{vT+1}, s{sT+k}, v0")
        a(f"v_mul_u32_u24 v{vT+2}, 3641, v{vT+1}")
        a(f"v_lshrrev_b32 v{vT+8+k}, 16, v{vT+2}")
        a(f"v_mul_u32_u24 v{vT+3}, 18, v{vT+8+k}")
        a(f"v_sub_u32 v{vT+3}, v{vT+1}, v{vT+3}")
        a(f"v_mul_u32_u24 v{vT+2}, {rowbytes}, v{vT+8+k}")
        a(f"v_lshl_add_u32 v{vD+k}, v{vT+3}, 4, v{vT+2}")

def gen_k3v2(name="k3_kernel"):
    a = A(); a.k3 = True; a.stpol = os.environ.get("K3ST", "sc1")
    kernel_head(a, name)
    NST = 6; STG = 18560; UP = 9344; RING = 6; PF = RING - 1
    ACC = 4; XS = 148; WR = 196
    vWa, vWb = 220, 221
    vD = 222
    vX0 = 225
    vNM, vR = 226, 227
    vT = 228
    NV = 254
    def acc(nt): return ACC + nt*16
    sWa, sWb_, sWc, sX, sST, sH = 12, 16, 20, 24, 28, 32
    sWave, sFb, sMb = 36, 37, 38
    sWoff, sXoff, sIt = 39, 40, 41
    sM0 = 42
    sT = 46
    sRot, sCnt, sHb = 56, 57, 58
    a("s_cmp_ge_u32 s2, 256")
    a(f"s_cbranch_scc1 L_{name}_done")
    stamp(a, 0); stamp(a, 5, True)
    a("s_load_dwordx4 s[4:7], s[0:1], 32")
    a("s_load_dwordx2 s[8:9], s[0:1], 72")
    a("v_lshrrev_b32 v1, 6, v0")
    a("v_and_b32 v0, 63, v0")
    a("s_nop 0")
    a(f"v_readfirstlane_b32 s{sWave}, v1")
    a(f"s_and_b32 s{sT}, s2, 7")
    a(f"s_lshr_b32 s{sT+1}, s2, 3")
    a(f"s_and_b32 s{sFb}, s{sT+1}, 3")
    a(f"s_lshl_b32 s{sT}, s{sT}, 2")
    a(f"s_add_u32 s{sFb}, s{sFb}, s{sT}")
    a(f"s_lshr_b32 s{sMb}, s{sT+1}, 2")
    dma_slots_setup(a, sWave, sT, vT, vD, 9216, sM0, 128)
    a(f"s_mul_i32 s{sT}, s{sFb}, 288")
    for k in range(3):
        a(f"v_add_u32 v{vD+k}, s{sT}, v{vD+k}")
    a(f"s_lshl_b32 s{sT}, s{sMb}, 4")
    a(f"s_lshl_b32 s{sT+1}, s{sWave}, 1")
    a(f"s_add_u32 s{sT}, s{sT}, s{sT+1}")
    a(f"s_mul_i32 s{sT+1}, s{sT}, 18432")
    a(f"v_bfe_u32 v{vT}, v0, 4, 1")
    a(f"v_mul_u32_u24 v{vT}, 18432, v{vT}")
    a(f"v_lshrrev_b32 v{vT+1}, 5, v0")
    a(f"v_lshl_add_u32 v{vT}, v{vT+1}, 8, v{vT}")
    a(f"v_and_b32 v{vT+1}, 15, v0")
    a(f"v_lshl_add_u32 v{vT}, v{vT+1}, 4, v{vT}")
    a(f"v_add_u32 v{vX0}, s{sT+1}, v{vT}")
    a(f"s_mul_i32 s{sHb}, s{sT}, 144")
    a(f"s_lshr_b32 s{sT+1}, s{sFb}, 1")
    a(f"s_mul_i32 s{sT+1}, s{sT+1}, 9")
    a(f"s_add_u32 s{sHb}, s{sHb}, s{sT+1}")
    a(f"s_lshl_b32 s{sHb}, s{sHb}, 10")
    a(f"s_lshl_b32 s{sT}, s{sT}, 4")
    a(f"v_and_b32 v{vT+4}, 31, v0")
    a(f"v_add_u32 v{vT+4}, s{sT}, v{vT+4}")
    a(f"v_mul_u32_u24 v{vT+4}, 48, v{vT+4}")
    a(f"v_bfe_u32 v{vT}, v0, 4, 1")
    a(f"v_mul_u32_u24 v{vT}, {UP}, v{vT}")
    a(f"v_lshrrev_b32 v{vT+1}, 5, v0")
    a(f"v_bfe_u32 v{vT+2}, v0, 2, 2")
    a(f"v_lshl_add_u32 v{vT+1}, v{vT+1}, 2, v{vT+2}")
    a(f"v_mad_u32_u24 v{vT}, v{vT+1}, 288, v{vT}") if False else None
    a(f"v_mul_u32_u24 v{vT+1}, 288, v{vT+1}")
    a(f"v_add_u32 v{vT}, v{vT}, v{vT+1}")
    a(f"v_and_b32 v{vT+2}, 3, v0")
    a(f"v_lshl_add_u32 v{vWa}, v{vT+2}, 3, v{vT}")
    a(f"v_add_u32 v{vWb}, {3*STG}, v{vWa}")
    if "rot" in OPT:
        a(f"s_mul_i32 s{sRot}, s{sMb}, 9")
        a(f"s_and_b32 s{sT}, s{sFb}, 3")
        a(f"s_mul_i32 s{sT}, s{sT}, 18")
        a(f"s_add_u32 s{sRot}, s{sRot}, s{sT}")
        a(f"s_lshr_b32 s{sRot}, s{sRot}, 2")
        a(f"s_sub_u32 s{sT}, s{sRot}, 18")
        a(f"s_cmp_ge_u32 s{sRot}, 18")
        a(f"s_cselect_b32 s{sRot}, s{sT}, s{sRot}")
    else:
        a(f"s_mov_b32 s{sRot}, 0")
    a(f"s_mov_b32 s{sCnt}, 0")
    a(f"s_mul_i32 s{sWoff}, s{sRot}, {32*9216}")
    a(f"s_lshl_b32 s{sXoff}, s{sRot}, 10")
    a("s_waitcnt lgkmcnt(0)")
    if "pstamp" in OPT: stamp(a, 1)
    srd(a, sWa, 4, 576*4608*2)
    srd(a, sWc, 6, 576*4608*2)
    a(f"s_cmp_eq_u32 s{sWave}, 0")
    a(f"s_cselect_b32 s{sT}, s4, s6")
    a(f"s_cselect_b32 s{sT+1}, s5, s7")
    srd(a, sWb_, sT, 576*4608*2)
    srd(a, sX, 8, H1_SZ, H1_OFF)
    srd(a, sST, 8, ST_SZ, ST_OFF)
    srd(a, sH, 8, HH_SZ, HH_OFF)
    for q in range(3):
        a(f"buffer_load_dwordx4 {vr(WR+q*4,4)}, v{vT+4}, {sr(sST,4)}, 0 offen offset:{q*16}")
    M16 = "m16" in OPT
    TM = int(os.environ.get("TM", "4"))
    sA_, sB_, sE1, sE2 = 60-1, 59-1, 57, 56
    sA_, sB_, sE1, sE2 = 88, 89, 90, 91
    vA, vHo = 244, 245
    EO = 246
    ET = vT + 4
    a(f"s_mov_b32 s{sA_}, {f32(GELU_A)}")
    a(f"s_mov_b32 s{sB_}, {f32(GELU_B)}")
    a(f"v_mov_b32 v{vA}, s{sA_}")
    a(f"v_bfe_u32 v{vHo}, v0, 4, 1")
    a(f"v_mul_u32_u24 v{vHo}, 147456, v{vHo}")
    a(f"v_lshrrev_b32 v{vT+8}, 5, v0")
    a(f"v_lshl_add_u32 v{vHo}, v{vT+8}, 8, v{vHo}")
    a(f"v_and_b32 v{vT+8}, 15, v0")
    a(f"v_lshl_add_u32 v{vHo}, v{vT+8}, 4, v{vHo}")
    a(f"s_and_b32 s{sE2}, s{sFb}, 1")
    a(f"s_lshl_b32 s{sE1}, s{sE2}, 12")
    a(f"s_add_u32 s{sE1}, s{sE1}, s{sHb}")
    a(f"s_lshl_b32 s{sE2}, s{sE2}, 9")
    a(f"s_add_u32 s{sE2}, s{sE2}, s{sHb}")
    a(f"s_add_u32 s{sE2}, s{sE2}, {8*1024}")
    def epi_ops(nt):
        o = EO + (nt % 2) * 4
        out = []
        for hh in range(2):
            lines = [[], []]
            for c in range(2):
                p = hh*2 + c
                x0, x1 = acc(nt) + 2*p, acc(nt) + 2*p + 1
                y0, y1 = x0 + 8, x1 + 8
                t0, t1 = ET + c*2, ET + c*2 + 1
                lines[c] = [f"v_mul_f32 v{t0}, v{x0}, v{x0}", f"v_mul_f32 v{t1}, v{x1}, v{x1}",
                      f"v_fma_f32 v{t0}, v{t0}, s{sB_}, v{vA}", f"v_fma_f32 v{t1}, v{t1}, s{sB_}, v{vA}",
                      f"v_mul_f32 v{t0}, v{t0}, v{x0}", f"v_mul_f32 v{t1}, v{t1}, v{x1}",
                      f"v_exp_f32 v{t0}, v{t0}", f"v_exp_f32 v{t1}, v{t1}",
                      f"v_mul_f32 v{y0}, v{y0}, v{x0}", f"v_mul_f32 v{y1}, v{y1}, v{x1}",
                      f"v_add_f32 v{t0}, 1.0, v{t0}", f"v_add_f32 v{t1}, 1.0, v{t1}",
                      f"v_rcp_f32 v{t0}, v{t0}", f"v_rcp_f32 v{t1}, v{t1}",
                      f"v_mul_f32 v{t0}, v{t0}, v{y0}", f"v_mul_f32 v{t1}, v{t1}, v{y1}",
                      f"v_cvt_pk_bf16_f32 v{o+p}, v{t0}, v{t1}"]
            i0 = i1 = 0
            while i0 < len(lines[0]) or i1 < len(lines[1]):
                for _ in range(2):
                    if i0 < len(lines[0]): out.append(lines[0][i0]); i0 += 1
                for _ in range(2):
                    if i1 < len(lines[1]): out.append(lines[1][i1]); i1 += 1
        if nt < 8:
            out.append(f"buffer_store_dwordx4 {vr(o,4)}, v{vHo}, {sr(sH,4)}, s{sE1} offen offset:{(nt//2)*1024 + (nt%2)*512}")
        else:
            out.append(f"buffer_store_dwordx4 {vr(o,4)}, v{vHo}, {sr(sH,4)}, s{sE2} offen")
        return out
    def body(nd, tag):
        vm = VM(a)
        vm.ops = [("S", 0)] * 3
        srds = (sWa, sWb_, sWc)
        def load_groups(i):
            if i >= 18: return []
            st = i % NST
            gs = []
            for k in range(2):
                gs.append([("s", f"s_add_u32 m0, s{sM0+k}, {st*STG}"), ("s", "s_nop 0"),
                           (("W", i), f"buffer_load_dwordx4 v{vD+k}, {sr(srds[k],4)}, s{sWoff} offen lds")])
            gs[0] = [("s", f"s_cmp_ge_u32 s{sWave}, 2"), ("s", f"s_cbranch_scc1 L_{name}_sk{i}"),
                     ("s", f"s_add_u32 m0, s{sM0+2}, {st*STG}"), ("s", "s_nop 0"),
                     ("s", f"buffer_load_dwordx4 v{vD+2}, {sr(srds[2],4)}, s{sWoff} offen lds"),
                     ("l", f"L_{name}_sk{i}")] + gs[0]
            gs.append([(("X", i), f"buffer_load_dwordx4 {vr(XS+st*8,4)}, v{vX0}, {sr(sX,4)}, s{sXoff} offen")])
            gs.append([(("X", i), f"buffer_load_dwordx4 {vr(XS+st*8+4,4)}, v{vX0}, {sr(sX,4)}, s{sXoff} offen offset:512"),
                       ("s", f"s_add_u32 s{sRot}, s{sRot}, 1"),
                       ("s", f"s_cmp_eq_u32 s{sRot}, {4 if 'hot4' in OPT else 18}"),
                       ("s", f"s_cselect_b32 s{sRot}, 0, s{sRot}"),
                       ("s", f"s_mul_i32 s{sWoff}, s{sRot}, {32*9216}"),
                       ("s", f"s_lshl_b32 s{sXoff}, s{sRot}, 10")])
            return gs
        def emit_group(g):
            for tg, txt in g:
                if tg == "s": a(txt)
                elif tg == "l": a.lab(txt)
                else: vm.op(tg, txt)
        for i in range(2):
            for g in load_groups(i): emit_group(g)
        vm.wait(lambda t: t[0] == "S")
        b = WR
        a(f"v_add_f32 v{vT}, v{b}, v{b+2}")
        a(f"v_add_f32 v{vT+1}, v{b+4}, v{b+6}")
        a(f"v_add_f32 v{vT+2}, v{b+8}, v{b+10}")
        a(f"v_add_f32 v{vT}, v{vT}, v{vT+1}")
        a(f"v_add_f32 v{vT}, v{vT}, v{vT+2}")
        a(f"v_mul_f32 v{vT}, {f32(1.0/6.0)}, v{vT}")
        a(f"v_add_f32 v{vT+1}, v{b+1}, v{b+3}")
        a(f"v_add_f32 v{vT+2}, v{b+5}, v{b+7}")
        a(f"v_add_f32 v{vT+3}, v{b+9}, v{b+11}")
        a(f"v_add_f32 v{vT+1}, v{vT+1}, v{vT+2}")
        a(f"v_add_f32 v{vT+1}, v{vT+1}, v{vT+3}")
        a(f"v_mov_b32 v{vT+2}, 0")
        for t in range(6):
            a(f"v_sub_f32 v{vT+3}, v{b+2*t}, v{vT}")
            a(f"v_fmac_f32 v{vT+2}, v{vT+3}, v{vT+3}")
        a(f"v_fmac_f32 v{vT+1}, {f32(96.0)}, v{vT+2}")
        a(f"v_mul_f32 v{vT+1}, {f32(1.0/576.0)}, v{vT+1}")
        round_bf16(a, vNM, vT)
        round_bf16(a, vT+1, vT+1)
        a(f"v_add_f32 v{vT+1}, {f32(1e-5)}, v{vT+1}")
        round_bf16(a, vT+1, vT+1)
        a(f"v_sqrt_f32 v{vT+1}, v{vT+1}")
        a("s_nop 0")
        round_bf16(a, vT+1, vT+1)
        a(f"v_rcp_f32 v{vR}, v{vT+1}")
        if "exactnorm" not in OPT:
            a("s_nop 0")
            a(f"v_mul_f32 v{vNM}, v{vNM}, v{vR}")
            a(f"v_sub_f32 v{vNM}, 0, v{vNM}")
        def norm_ops(i):
            ops = []
            if i >= 18: return ops
            for h4 in range(2):
                chains = []
                for d in range(4):
                    x = XS + (i % NST)*8 + h4*4 + d
                    t0 = vT + 8 + d * 2; t1 = t0 + 1
                    chains.append([f"v_lshlrev_b32 v{t0}, 16, v{x}", f"v_and_b32 v{t1}, 0xffff0000, v{x}",
                                   f"v_fma_f32 v{t0}, v{t0}, v{vR}, v{vNM}", f"v_fma_f32 v{t1}, v{t1}, v{vR}, v{vNM}",
                                   f"v_cvt_pk_bf16_f32 v{x}, v{t0}, v{t1}"])
                for stage in ((0, 1), (2, 3), (4,)):
                    for c in chains:
                        for j in stage: ops.append(c[j])
            return ops
        NS = 18 - TM
        seq = [(i, f // 9, f % 9) for i in range(NS) for f in range(18)]
        seq += [(i, half, nt) for nt in range(9) for i in range(NS, 18) for half in range(2)]
        def wread(g):
            if g >= len(seq): return
            i, half, nt = seq[g]
            st = i % NST
            slot = g % RING
            base = vWa if st < 3 else vWb
            off = (st % 3) * STG + half * 8 * 288 + nt * 32
            a(f"ds_read_b64_tr_b16 {vr(WR+slot*4,2)}, v{base} offset:{off}")
            a(f"ds_read_b64_tr_b16 {vr(WR+slot*4+2,2)}, v{base} offset:{off+4608}")
        vm.wait(lambda t: t[1] <= 0)
        for op in norm_ops(0): a(op)
        a("s_barrier")
        for f in range(PF): wread(f)
        stamp(a, 1)
        sched = {0: [2, 3], 1: [4, 5], 2: [6, 7]}
        nsched = {i: [i + 1] for i in range(NS)}
        if TM:
            extra = list(range(NS + 1, 18))
            nsched[NS-1] = [NS] + extra[-2:]
            nsched[NS-2] = [NS-1] + extra[:-2]
        for i in range(NS):
            lg = []
            for j in sched.get(i, [i + 5]): lg += load_groups(j)
            nlist = nsched[i]
            ni = 0; gi = 0
            gpos = [1 + (k_ * 16) // max(1, len(lg)) for k_ in range(len(lg))]
            nstart = 6 if i < 3 else 1
            nops = []
            for j in nlist: nops += [("w", j)] + norm_ops(j)
            per = (len(nops) + (16 - nstart)) // (17 - nstart) if nops else 0
            for f in range(18):
                g = i*18 + f
                half, nt = divmod(f, 9)
                slot = g % RING
                if i == 0 and f == 18 - PF:
                    vm.wait(lambda t: t[0] == "W" and t[1] <= 1)
                    a("s_barrier")
                if TM and i == NS - 1 and f == 18 - PF:
                    vm.wait(lambda t: t[0] == "W")
                    a("s_barrier")
                wread(g + PF)
                rem = min(PF, len(seq) - 1 - g)
                a(f"s_waitcnt lgkmcnt({2*rem})")
                if i == 0:
                    a(f"v_mfma_f32_32x32x16_bf16 {vr(acc(nt),16)}, {vr(WR+slot*4,4)}, {vr(XS+(i%NST)*8+half*4,4)}, " + ("0" if half == 0 else vr(acc(nt),16)))
                else:
                    a(f"v_mfma_f32_32x32x16_bf16 {vr(acc(nt),16)}, {vr(WR+slot*4,4)}, {vr(XS+(i%NST)*8+half*4,4)}, {vr(acc(nt),16)}")
                while gi < len(lg) and gpos[gi] <= f:
                    emit_group(lg[gi]); gi += 1
                if f >= nstart:
                    for _ in range(per):
                        if ni < len(nops):
                            op = nops[ni]; ni += 1
                            if isinstance(op, tuple):
                                vm.wait(lambda t: t[0] == "X" and t[1] <= op[1])
                            else: a(op)
            assert ni == len(nops) and gi == len(lg), (i, ni, len(nops), gi, len(lg))
            if i < 17 and not (TM and i == NS - 1):
                vm.wait(lambda t: t[0] == "W" and t[1] <= i + 2)
                a("s_barrier")
        stamp(a, 2)
        g = NS * 18
        pend = []
        for nt in range(9):
            nm = 2 * TM
            per = (len(pend) + nm - 3) // max(1, nm - 2) if pend else 0
            pi = 0
            for q in range(nm):
                i, half, nt_ = seq[g]
                assert nt_ == nt
                slot = g % RING
                wread(g + PF)
                rem = min(PF, len(seq) - 1 - g)
                a(f"s_waitcnt lgkmcnt({2*rem})")
                a(f"v_mfma_f32_32x32x16_bf16 {vr(acc(nt),16)}, {vr(WR+slot*4,4)}, {vr(XS+(i%NST)*8+half*4,4)}, {vr(acc(nt),16)}")
                g += 1
                if q >= 2:
                    for _ in range(per):
                        if pi < len(pend): a(pend[pi]); pi += 1
            assert pi == len(pend)
            pend = epi_ops(nt)
        if not TM:
            a("s_nop 7"); a("s_nop 7")
            for nt in range(8):
                for op in epi_ops(nt): a(op)
        a("s_nop 7"); a("s_nop 7")
        for op in pend: a(op)
    body(2, "B")
    a.lab(f"L_{name}_epi")
    if "pstamp" not in OPT: stamp(a, 3)
    if "stamp" in OPT: a("s_waitcnt vmcnt(0)")
    if "pstamp" not in OPT: stamp(a, 4)
    stamp(a, 6, True)
    stamp_dump(a, 7, 8, sWave, vT+4)
    a.lab(f"L_{name}_done")
    a("s_endpgm")
    return a.text(), kernel_desc(name, NV), f"; @launch kernel={name} grid=(256,1,1) block=(512,1,1) lds={NST*STG}"

def gen_k3m(name="k3_kernel"):
    a = A()
    kernel_head(a, name)
    NST = 6; STG = 18560; UP = 9344; RING = 6; PF = RING - 1
    ACC = 4; XS = 148; WR = 196
    vWa, vWb = 220, 221
    vD = 222
    vX0 = 225
    vNM, vR = 226, 227
    vT = 228
    vX1, vNM1, vR1 = 244, 245, 246
    NV = 248
    def acc(nt, mat, mt): return ACC + ((nt*2+mat)*2+mt)*4
    sWa, sWb_, sWc, sX, sST, sH = 12, 16, 20, 24, 28, 32
    sWave, sFb, sMb = 36, 37, 38
    sWoff, sXoff, sIt = 39, 40, 41
    sM0 = 42
    sT = 46
    sRot, sCnt, sHb = 56, 57, 58
    a("s_cmp_ge_u32 s2, 256")
    a(f"s_cbranch_scc1 L_{name}_done")
    stamp(a, 0); stamp(a, 5, True)
    a("s_load_dwordx4 s[4:7], s[0:1], 32")
    a("s_load_dwordx2 s[8:9], s[0:1], 72")
    a("v_lshrrev_b32 v1, 6, v0")
    a("v_and_b32 v0, 63, v0")
    a("s_nop 0")
    a(f"v_readfirstlane_b32 s{sWave}, v1")
    a(f"s_and_b32 s{sT}, s2, 7")
    a(f"s_lshr_b32 s{sT+1}, s2, 3")
    a(f"s_and_b32 s{sFb}, s{sT+1}, 3")
    a(f"s_lshl_b32 s{sT}, s{sT}, 2")
    a(f"s_add_u32 s{sFb}, s{sFb}, s{sT}")
    a(f"s_lshr_b32 s{sMb}, s{sT+1}, 2")
    dma_slots_setup(a, sWave, sT, vT, vD, 9216, sM0, 128)
    a(f"s_mul_i32 s{sT}, s{sFb}, 288")
    for k in range(3):
        a(f"v_add_u32 v{vD+k}, s{sT}, v{vD+k}")
    a(f"s_lshl_b32 s{sT}, s{sMb}, 4")
    a(f"s_lshl_b32 s{sT+1}, s{sWave}, 1")
    a(f"s_add_u32 s{sT}, s{sT}, s{sT+1}")
    a(f"s_mul_i32 s{sT+1}, s{sT}, 18432")
    a(f"v_lshlrev_b32 v{vT}, 4, v0")
    a(f"v_add_u32 v{vX0}, s{sT+1}, v{vT}")
    a(f"v_add_u32 v{vX1}, 18432, v{vX0}")
    a(f"s_mul_i32 s{sHb}, s{sT}, 144")
    a(f"s_lshr_b32 s{sT+1}, s{sFb}, 1")
    a(f"s_mul_i32 s{sT+1}, s{sT+1}, 9")
    a(f"s_add_u32 s{sHb}, s{sHb}, s{sT+1}")
    a(f"s_lshl_b32 s{sHb}, s{sHb}, 10")
    a(f"s_lshl_b32 s{sT}, s{sT}, 4")
    a(f"v_and_b32 v{vT+4}, 15, v0")
    a(f"v_add_u32 v{vT+4}, s{sT}, v{vT+4}")
    a(f"v_mul_u32_u24 v{vT+4}, 48, v{vT+4}")
    a(f"v_lshrrev_b32 v{vT+1}, 2, v0")
    a(f"v_mul_u32_u24 v{vT+1}, 288, v{vT+1}")
    a(f"v_and_b32 v{vT+2}, 3, v0")
    a(f"v_lshl_add_u32 v{vWa}, v{vT+2}, 3, v{vT+1}")
    a(f"v_add_u32 v{vWb}, {3*STG}, v{vWa}")
    if "rot" in OPT:
        a(f"s_mul_i32 s{sRot}, s{sMb}, 9")
        a(f"s_and_b32 s{sT}, s{sFb}, 3")
        a(f"s_mul_i32 s{sT}, s{sT}, 18")
        a(f"s_add_u32 s{sRot}, s{sRot}, s{sT}")
        a(f"s_lshr_b32 s{sRot}, s{sRot}, 2")
        a(f"s_sub_u32 s{sT}, s{sRot}, 18")
        a(f"s_cmp_ge_u32 s{sRot}, 18")
        a(f"s_cselect_b32 s{sRot}, s{sT}, s{sRot}")
    else:
        a(f"s_mov_b32 s{sRot}, 0")
    a(f"s_mov_b32 s{sCnt}, 0")
    a(f"s_mul_i32 s{sWoff}, s{sRot}, {32*9216}")
    a(f"s_lshl_b32 s{sXoff}, s{sRot}, 10")
    a("s_waitcnt lgkmcnt(0)")
    if "pstamp" in OPT: stamp(a, 1)
    srd(a, sWa, 4, 576*4608*2)
    srd(a, sWc, 6, 576*4608*2)
    a(f"s_cmp_eq_u32 s{sWave}, 0")
    a(f"s_cselect_b32 s{sT}, s4, s6")
    a(f"s_cselect_b32 s{sT+1}, s5, s7")
    srd(a, sWb_, sT, 576*4608*2)
    srd(a, sX, 8, H1_SZ, H1_OFF)
    srd(a, sST, 8, ST_SZ, ST_OFF)
    srd(a, sH, 8, HH_SZ, HH_OFF)
    for mt in range(2):
        for q in range(3):
            a(f"buffer_load_dwordx4 {vr(WR+mt*12+q*4,4)}, v{vT+4}, {sr(sST,4)}, 0 offen offset:{mt*768+q*16}")
    a(f"s_cmp_ge_u32 s{sWave}, 2")
    a(f"s_cbranch_scc1 L_{name}_typeB")

    M16 = "m16" in OPT
    def body(nd, tag):
        vm = VM(a)
        vm.ops = [("S", 0)] * 6
        srds = (sWa, sWb_, sWc)
        def load_groups(i):
            if i >= 18: return []
            st = i % NST
            gs = []
            for k in range(nd):
                gs.append([("s", f"s_add_u32 m0, s{sM0+k}, {st*STG}"), ("s", "s_nop 0"),
                           (("W", i), f"buffer_load_dwordx4 v{vD+k}, {sr(srds[k],4)}, s{sWoff} offen lds")])
            gs.append([(("X", i), f"buffer_load_dwordx4 {vr(XS+st*8,4)}, v{vX0}, {sr(sX,4)}, s{sXoff} offen")])
            gs.append([(("X", i), f"buffer_load_dwordx4 {vr(XS+st*8+4,4)}, v{vX1}, {sr(sX,4)}, s{sXoff} offen"),
                       ("s", f"s_add_u32 s{sRot}, s{sRot}, 1"),
                       ("s", f"s_cmp_eq_u32 s{sRot}, {4 if 'hot4' in OPT else 18}"),
                       ("s", f"s_cselect_b32 s{sRot}, 0, s{sRot}"),
                       ("s", f"s_mul_i32 s{sWoff}, s{sRot}, {32*9216}"),
                       ("s", f"s_lshl_b32 s{sXoff}, s{sRot}, 10")])
            return gs
        def emit_group(g):
            for tg, txt in g:
                if tg == "s": a(txt)
                else: vm.op(tg, txt)
        for i in range(2):
            for g in load_groups(i): emit_group(g)
        vm.wait(lambda t: t[0] == "S")
        for b, vNM_, vR_ in ((WR, vNM, vR), (WR+12, vNM1, vR1)):
            a(f"v_add_f32 v{vT}, v{b}, v{b+2}")
            a(f"v_add_f32 v{vT+1}, v{b+4}, v{b+6}")
            a(f"v_add_f32 v{vT+2}, v{b+8}, v{b+10}")
            a(f"v_add_f32 v{vT}, v{vT}, v{vT+1}")
            a(f"v_add_f32 v{vT}, v{vT}, v{vT+2}")
            a(f"v_mul_f32 v{vT}, {f32(1.0/6.0)}, v{vT}")
            a(f"v_add_f32 v{vT+1}, v{b+1}, v{b+3}")
            a(f"v_add_f32 v{vT+2}, v{b+5}, v{b+7}")
            a(f"v_add_f32 v{vT+3}, v{b+9}, v{b+11}")
            a(f"v_add_f32 v{vT+1}, v{vT+1}, v{vT+2}")
            a(f"v_add_f32 v{vT+1}, v{vT+1}, v{vT+3}")
            a(f"v_mov_b32 v{vT+2}, 0")
            for t in range(6):
                a(f"v_sub_f32 v{vT+3}, v{b+2*t}, v{vT}")
                a(f"v_fmac_f32 v{vT+2}, v{vT+3}, v{vT+3}")
            a(f"v_fmac_f32 v{vT+1}, {f32(96.0)}, v{vT+2}")
            a(f"v_mul_f32 v{vT+1}, {f32(1.0/576.0)}, v{vT+1}")
            round_bf16(a, vNM_, vT)
            round_bf16(a, vT+1, vT+1)
            a(f"v_add_f32 v{vT+1}, {f32(1e-5)}, v{vT+1}")
            round_bf16(a, vT+1, vT+1)
            a(f"v_sqrt_f32 v{vT+1}, v{vT+1}")
            a("s_nop 0")
            round_bf16(a, vT+1, vT+1)
            a(f"v_rcp_f32 v{vR_}, v{vT+1}")
            if "exactnorm" not in OPT:
                a("s_nop 0")
                a(f"v_mul_f32 v{vNM_}, v{vNM_}, v{vR_}")
                a(f"v_sub_f32 v{vNM_}, 0, v{vNM_}")
        def norm_ops(i):
            ops = []
            if i >= 18: return ops
            for d in range(8):
                x = XS + (i % NST)*8 + d
                t0 = vT + (d % 2) * 2; t1 = t0 + 1
                vNM, vR = (226, 227) if d < 4 else (vNM1, vR1)
                ops.append(f"v_lshlrev_b32 v{t0}, 16, v{x}")
                ops.append(f"v_and_b32 v{t1}, 0xffff0000, v{x}")
                if "exactnorm" in OPT:
                    ops.append(f"v_sub_f32 v{t0}, v{t0}, v{vNM}")
                    ops.append(f"v_sub_f32 v{t1}, v{t1}, v{vNM}")
                    ops.append(f"v_cvt_pk_bf16_f32 v{t0}, v{t0}, v{t1}")
                    ops.append(f"v_and_b32 v{t1}, 0xffff0000, v{t0}")
                    ops.append(f"v_lshlrev_b32 v{t0}, 16, v{t0}")
                    ops.append(f"v_mul_f32 v{t0}, v{t0}, v{vR}")
                    ops.append(f"v_mul_f32 v{t1}, v{t1}, v{vR}")
                else:
                    ops.append(f"v_fma_f32 v{t0}, v{t0}, v{vR}, v{vNM}")
                    ops.append(f"v_fma_f32 v{t1}, v{t1}, v{vR}, v{vNM}")
                ops.append(f"v_cvt_pk_bf16_f32 v{x}, v{t0}, v{t1}")
            return ops
        def wread(g):
            i, f = divmod(g, 18)
            if i >= 18: return
            st = i % NST
            nt, mat = divmod(f, 2)
            slot = g % RING
            base = vWa if st < 3 else vWb
            off = (st % 3) * STG + mat * UP + nt * 32
            a(f"ds_read_b64_tr_b16 {vr(WR+slot*4,2)}, v{base} offset:{off}")
            a(f"ds_read_b64_tr_b16 {vr(WR+slot*4+2,2)}, v{base} offset:{off+4608}")
        vm.wait(lambda t: t[1] <= 0)
        for op in norm_ops(0): a(op)
        a("s_barrier")
        for f in range(PF): wread(f)
        stamp(a, 1)
        sched = {0: [2, 3], 1: [4, 5], 2: [6, 7]}
        for i in range(18):
            lg = []
            for j in sched.get(i, [i + 5]): lg += load_groups(j)
            nops = norm_ops(i + 1)
            ni = 0; gi = 0
            gpos = [1 + (k * 16) // max(1, len(lg)) for k in range(len(lg))]
            nstart = 6 if i < 3 else 1
            per = (len(nops) + (16 - nstart)) // (17 - nstart) if nops else 0
            for f in range(18):
                g = i*18 + f
                half, nt = divmod(f, 9)
                slot = g % RING
                if i == 0 and f == 18 - PF:
                    vm.wait(lambda t: t[0] == "W" and t[1] <= 1)
                    a("s_barrier")
                wread(g + PF)
                rem = min(PF, 18*18 - 1 - g)
                a(f"s_waitcnt lgkmcnt({2*rem})")
                nt, mat = divmod(f, 2)
                for mt in range(2):
                    a(f"v_mfma_f32_16x16x32_bf16 {vr(acc(nt,mat,mt),4)}, {vr(WR+slot*4,4)}, {vr(XS+(i%NST)*8+mt*4,4)}, " + ("0" if i == 0 else vr(acc(nt,mat,mt),4)))
                if f == nstart and nops:
                    vm.wait(lambda t: t[0] == "X" and t[1] <= i + 1)
                while gi < len(lg) and gpos[gi] <= f:
                    emit_group(lg[gi]); gi += 1
                if f >= nstart:
                    for _ in range(per):
                        if ni < len(nops):
                            a(nops[ni]); ni += 1
            assert ni == len(nops) and gi == len(lg), (i, ni, len(nops), gi, len(lg))
            if i < 17:
                vm.wait(lambda t: t[0] == "W" and t[1] <= i + 2)
                a("s_barrier")
    body(3, "A")
    a(f"s_branch L_{name}_epi")
    a.lab(f"L_{name}_typeB")
    body(2, "B")
    a.lab(f"L_{name}_epi")
    if "pstamp" not in OPT: stamp(a, 2)
    a("s_waitcnt vmcnt(0) lgkmcnt(0)")
    sA_, sB_ = sT+6, sT+7
    a(f"s_mov_b32 s{sA_}, {f32(GELU_A)}")
    a(f"s_mov_b32 s{sB_}, {f32(GELU_B)}")
    a(f"v_lshlrev_b32 v{vX0}, 4, v0")
    a(f"s_and_b32 s{sT}, s{sFb}, 1")
    a(f"s_lshl_b32 s{sT+1}, s{sT}, 12")
    a(f"s_add_u32 s{sT+1}, s{sT+1}, s{sHb}")
    a(f"s_lshl_b32 s{sT+2}, s{sT}, 3")
    a(f"s_add_u32 s{sT+2}, s{sT+2}, s{sHb}")
    a(f"s_add_u32 s{sT+2}, s{sT+2}, {8*1024}")
    a(f"s_add_u32 s{sT+3}, s{sT+1}, {144*1024}")
    a(f"s_add_u32 s{sT+4}, s{sT+2}, {144*1024}")
    a(f"v_mov_b32 v{vT}, s{sA_}")
    a("s_nop 7")
    def gelu_tile(nt, mt, dst):
        T = WR
        lines = [[], []]
        for c in range(2):
            g0, g1 = acc(nt,0,mt) + 2*c, acc(nt,0,mt) + 2*c + 1
            u0, u1 = acc(nt,1,mt) + 2*c, acc(nt,1,mt) + 2*c + 1
            t0, t1 = T + c*8 + 4, T + c*8 + 5
            x0, x1, y0, y1 = g0, g1, u0, u1
            L = lines[c]
            L += [f"v_mul_f32 v{t0}, v{x0}, v{x0}", f"v_mul_f32 v{t1}, v{x1}, v{x1}",
                  f"v_fma_f32 v{t0}, v{t0}, s{sB_}, v{vT}", f"v_fma_f32 v{t1}, v{t1}, s{sB_}, v{vT}",
                  f"v_mul_f32 v{t0}, v{t0}, v{x0}", f"v_mul_f32 v{t1}, v{t1}, v{x1}",
                  f"v_exp_f32 v{t0}, v{t0}", f"v_exp_f32 v{t1}, v{t1}",
                  f"v_mul_f32 v{y0}, v{y0}, v{x0}", f"v_mul_f32 v{y1}, v{y1}, v{x1}",
                  f"v_add_f32 v{t0}, 1.0, v{t0}", f"v_add_f32 v{t1}, 1.0, v{t1}",
                  f"v_rcp_f32 v{t0}, v{t0}", f"v_rcp_f32 v{t1}, v{t1}",
                  f"v_mul_f32 v{t0}, v{t0}, v{y0}", f"v_mul_f32 v{t1}, v{t1}, v{y1}",
                  f"v_cvt_pk_bf16_f32 v{dst+c}, v{t0}, v{t1}"]
        i0 = i1 = 0
        while i0 < len(lines[0]) or i1 < len(lines[1]):
            for _ in range(2):
                if i0 < len(lines[0]): a(lines[0][i0]); i0 += 1
            for _ in range(2):
                if i1 < len(lines[1]): a(lines[1][i1]); i1 += 1
    k = 0
    for mt in range(2):
        for p in range(4):
            o = XS + (k % 12) * 4; k += 1
            gelu_tile(2*p, mt, o)
            gelu_tile(2*p+1, mt, o+2)
            a(f"buffer_store_dwordx4 {vr(o,4)}, v{vX0}, {sr(sH,4)}, s{sT+1+2*mt} offen offset:{p*1024}")
        o = XS + (k % 12) * 4; k += 1
        gelu_tile(8, mt, o)
        a(f"buffer_store_dwordx2 {vr(o,2)}, v{vX0}, {sr(sH,4)}, s{sT+2+2*mt} offen")
    if "pstamp" not in OPT: stamp(a, 3)
    if "stamp" in OPT: a("s_waitcnt vmcnt(0)")
    if "pstamp" not in OPT: stamp(a, 4)
    stamp(a, 6, True)
    stamp_dump(a, 7, 8, sWave, vT+4)
    a.lab(f"L_{name}_done")
    a("s_endpgm")
    return a.text(), kernel_desc(name, NV), f"; @launch kernel={name} grid=(256,1,1) block=(512,1,1) lds={NST*STG}"

def gen_k4v2(name="k4_kernel"):
    a = A(); a.stpol = os.environ.get("K4ST", "sc1")
    kernel_head(a, name)
    NST = 6; STG = 18432; RING = 6; PFD = 5; PF = RING - 1
    ROWB = 4608 if "m16" in OPT else 2304
    ACC = 4; XS = 76; WR = 124
    vWa, vWb = 148, 149
    vD = 150; vDm = 153
    vX0, vX1 = 156, 157
    vT = 160
    NV = 176
    def acc(nt, mt): return ACC + (nt*2+mt)*4
    sW, sX, sP = 12, 16, 20
    sWave, sKs, sMb, sNb = 28, 29, 30, 31
    sWb1, sXb, sPb = 32, 33, 34
    sM0 = 36
    sT = 40
    sWo = 52
    a("s_cmp_ge_u32 s2, 256")
    a(f"s_cbranch_scc1 L_{name}_done")
    stamp(a, 0); stamp(a, 5, True)
    a("s_load_dwordx2 s[4:5], s[0:1], 48")
    a("s_load_dwordx2 s[8:9], s[0:1], 72")
    a("v_lshrrev_b32 v1, 6, v0")
    a("v_and_b32 v0, 63, v0")
    a("s_nop 0")
    a(f"v_readfirstlane_b32 s{sWave}, v1")
    a(f"s_and_b32 s{sT}, s2, 7")
    a(f"s_lshr_b32 s{sT+1}, s2, 3")
    a(f"s_lshr_b32 s{sKs}, s{sT}, 1")
    a(f"s_and_b32 s{sNb}, s{sT+1}, 3")
    a(f"s_and_b32 s{sT}, s{sT}, 1")
    a(f"s_lshl_b32 s{sT}, s{sT}, 3")
    a(f"s_lshr_b32 s{sMb}, s{sT+1}, 2")
    a(f"s_add_u32 s{sMb}, s{sMb}, s{sT}")
    dma_slots_setup(a, sWave, sT, vT, vD, 1152, sM0, 0)
    a(f"s_cmp_eq_u32 s{sWave}, 0")
    a(f"s_cselect_b32 s{sT}, 0, {576*1152}")
    a(f"v_add_u32 v{vD+1}, s{sT}, v{vD+1}")
    a(f"v_add_u32 v{vD+2}, {576*1152}, v{vD+2}")
    a(f"s_mov_b32 s{sT}, {128*1152}")
    for k in range(3):
        a(f"v_cmp_lt_u32 vcc, 15, v{vT+8+k}")
        a(f"v_mov_b32 v{vT+1}, s{sT}")
        a("s_nop 0")
        a(f"v_cndmask_b32 v{vT+1}, 0, v{vT+1}, vcc")
        a(f"v_add_u32 v{vDm+k}, v{vD+k}, v{vT+1}")
    a(f"s_mul_i32 s{sWb1}, s{sKs}, {2*576*1152}")
    a(f"s_mul_i32 s{sT}, s{sNb}, 288")
    a(f"s_add_u32 s{sWb1}, s{sWb1}, s{sT}")
    a(f"s_lshr_b32 s{sT}, s{sWave}, 2")
    a(f"s_lshl_b32 s{sT+1}, s{sKs}, 1")
    a(f"s_add_u32 s{sT+1}, s{sT+1}, s{sT}")
    a(f"s_and_b32 s{sT+2}, s{sWave}, 3")
    a(f"s_lshl_b32 s{sXb}, s{sMb}, 3")
    a(f"s_lshl_b32 s{sT+3}, s{sT+2}, 1")
    a(f"s_add_u32 s{sXb}, s{sXb}, s{sT+3}")
    a(f"s_mov_b32 s{sT+4}, s{sXb}")
    a(f"s_mul_i32 s{sXb}, s{sXb}, 144")
    a(f"s_mul_i32 s{sT+3}, s{sT+1}, 18")
    a(f"s_add_u32 s{sXb}, s{sXb}, s{sT+3}")
    a(f"s_lshl_b32 s{sXb}, s{sXb}, 10")
    a(f"v_lshlrev_b32 v{vX0}, 4, v0")
    a(f"v_add_u32 v{vX0}, s{sXb}, v{vX0}")
    a(f"v_add_u32 v{vX1}, {144*1024}, v{vX0}")
    a(f"s_lshl_b32 s{sPb}, s{sKs}, 7")
    a(f"s_add_u32 s{sPb}, s{sPb}, s{sT+4}")
    a(f"s_add_u32 s{sPb}, s{sPb}, s{sT}")
    a(f"s_mul_i32 s{sPb}, s{sPb}, 36")
    a(f"s_mul_i32 s{sT+6}, s{sNb}, 9")
    a(f"s_add_u32 s{sPb}, s{sPb}, s{sT+6}")
    a(f"s_lshl_b32 s{sPb}, s{sPb}, {9 if 'pb16' in OPT else 10}")
    if "m16" in OPT:
        a(f"v_lshrrev_b32 v{vT+5}, 2, v0")
    else:
        a(f"v_lshrrev_b32 v{vT+5}, 5, v0")
        a(f"v_lshlrev_b32 v{vT+5}, 4, v{vT+5}")
        a(f"v_bfe_u32 v{vT+6}, v0, 2, 3")
        a(f"v_add_u32 v{vT+5}, v{vT+5}, v{vT+6}")
    a(f"v_mul_u32_u24 v{vT+5}, 288, v{vT+5}")
    a(f"v_and_b32 v{vT+6}, 3, v0")
    a(f"v_lshl_add_u32 v{vWa}, v{vT+6}, 3, v{vT+5}")
    a(f"s_mul_i32 s{sT+6}, s{sT}, 9216")
    a(f"v_add_u32 v{vWa}, s{sT+6}, v{vWa}")
    a(f"v_add_u32 v{vWb}, {3*STG}, v{vWa}")
    a("s_waitcnt lgkmcnt(0)")
    srd(a, sW, 4, 4608*576*2)
    srd(a, sX, 8, HH_SZ, HH_OFF)
    srd(a, sP, 8, P_SZ, P_OFF)
    def fa_rel(i):
        q, ii = divmod(i, 9)
        if ii < 4: return 288*q + 32*ii
        if ii < 8: return 288*q + 144 + 32*(ii-4)
        return 288*q + 128
    def body(nd, tag):
        vm = VM(a)
        def load_groups(i):
            if i >= 18: return []
            st = i % NST
            gs = []
            vv = vDm if i % 9 == 8 else vD
            for k in range(2):
                g = []
                if k == 0:
                    g.append(("s", f"s_add_u32 s{sWo}, s{sWb1}, {fa_rel(i)*1152}"))
                    g += [("s", f"s_cmp_ge_u32 s{sWave}, 2"), ("s", f"s_cbranch_scc1 L_{name}_sk{i}"),
                          ("s", f"s_add_u32 m0, s{sM0+2}, {st*STG}"), ("s", "s_nop 0"),
                          ("s", f"buffer_load_dwordx4 v{vv+2}, {sr(sW,4)}, s{sWo} offen lds"),
                          ("l", f"L_{name}_sk{i}")]
                g.append(("s", f"s_add_u32 m0, s{sM0+k}, {st*STG}"))
                g.append(("s", "s_nop 0"))
                g.append((("W", i), f"buffer_load_dwordx4 v{vv+k}, {sr(sW,4)}, s{sWo} offen lds"))
                gs.append(g)
            xs = XS + (i % NST) * 8
            gs.append([("s", f"s_mov_b32 s{sWo+1}, {i*1024}"),
                       (("X", i), f"buffer_load_dwordx4 {vr(xs,4)}, v{vX0}, {sr(sX,4)}, s{sWo+1} offen")])
            gs.append([(("X", i), f"buffer_load_dwordx4 {vr(xs+4,4)}, v{vX1}, {sr(sX,4)}, s{sWo+1} offen")])
            return gs
        def emit_group(g):
            for tg, txt in g:
                if tg == "s": a(txt)
                elif tg == "l": a.lab(txt)
                else: vm.op(tg, txt)
        for i in range(2):
            for g in load_groups(i): emit_group(g)
        for i in range(0, 72, 2):
            a(f"v_mov_b64 {vr(ACC+i,2)}, 0")
        sched = {0: [2, 3], 1: [4, 5], 2: [6, 7]}
        def wread(gidx):
            i, nt = divmod(gidx, 9)
            if i >= 18: return
            st = i % NST; slot = gidx % RING
            base = vWa if st < 3 else vWb
            off = (st % 3) * STG + nt * 32
            a(f"ds_read_b64_tr_b16 {vr(WR+slot*4,2)}, v{base} offset:{off}")
            a(f"ds_read_b64_tr_b16 {vr(WR+slot*4+2,2)}, v{base} offset:{off+ROWB}")
        vm.wait(lambda t: t[1] <= 0)
        a("s_barrier")
        for f in range(PF): wread(f)
        stamp(a, 1)
        for i in range(18):
            lg = []
            for j in sched.get(i, [i + PFD]): lg += load_groups(j)
            vm.wait(lambda t: t[0] == "X" and t[1] <= i)
            gi = 0
            gpos = [(k * 9) // max(1, len(lg)) for k in range(len(lg))]
            for nt in range(9):
                g = i*9 + nt; slot = g % RING
                if i == 0 and nt == 9 - PF:
                    vm.wait(lambda t: t[0] == "W" and t[1] <= 1)
                    a("s_barrier")
                wread(g + PF)
                rem = min(PF, 18*9 - 1 - g)
                a(f"s_waitcnt lgkmcnt({2*rem})")
                xs = XS + (i % NST) * 8
                a(f"v_mfma_f32_16x16x32_bf16 {vr(acc(nt,0),4)}, {vr(WR+slot*4,4)}, {vr(xs,4)}, {vr(acc(nt,0),4)}")
                a(f"v_mfma_f32_16x16x32_bf16 {vr(acc(nt,1),4)}, {vr(WR+slot*4,4)}, {vr(xs+4,4)}, {vr(acc(nt,1),4)}")
                while gi < len(lg) and gpos[gi] <= nt:
                    emit_group(lg[gi]); gi += 1
            assert gi == len(lg)
            vm.wait(lambda t: t[0] == "W" and t[1] <= i + 2)
            a("s_barrier")
    body(2, "B")
    a.lab(f"L_{name}_epi")
    stamp(a, 2)
    a(f"s_lshr_b32 s{sT}, s{sWave}, 2")
    a(f"v_lshlrev_b32 v{vT}, 4, v0")
    a(f"v_lshlrev_b32 v{vT+3}, 3, v0")
    a(f"s_mul_i32 s{sT+1}, s{sWave}, 9216")
    a(f"v_add_u32 v{vT+1}, s{sT+1}, v{vT}")
    a(f"s_xor_b32 s{sT+2}, s{sWave}, 4")
    a(f"s_mul_i32 s{sT+2}, s{sT+2}, 9216")
    a(f"v_add_u32 v{vT+2}, s{sT+2}, v{vT}")
    a(f"s_cmp_eq_u32 s{sT}, 0")
    a("s_nop 4")
    a(f"s_cbranch_scc0 L_{name}_kh1")
    for kh in range(2):
        if kh == 1: a.lab(f"L_{name}_kh1")
        for nt in range(9):
            a(f"ds_write_b128 v{vT+1}, {vr(acc(nt,1-kh),4)} offset:{nt*1024}")
        a("s_waitcnt lgkmcnt(0)")
        a("s_barrier")
        for nt in range(9):
            a(f"ds_read_b128 {vr(XS+nt*4,4)}, v{vT+2} offset:{nt*1024}")
        for nt in range(9):
            a(f"s_waitcnt lgkmcnt({8-nt})")
            for r in range(4):
                a(f"v_add_f32 v{XS+nt*4+r}, v{XS+nt*4+r}, v{acc(nt,kh)+r}")
            if "pb16" in OPT:
                a(f"v_cvt_pk_bf16_f32 v{XS+nt*4}, v{XS+nt*4}, v{XS+nt*4+1}")
                a(f"v_cvt_pk_bf16_f32 v{XS+nt*4+1}, v{XS+nt*4+2}, v{XS+nt*4+3}")
                if nt == 8: a(f"s_add_u32 s{sPb}, s{sPb}, 4096")
                a(f"buffer_store_dwordx2 {vr(XS+nt*4,2)}, v{vT+3}, {sr(sP,4)}, s{sPb} offen offset:{(nt%8)*512} sc1")
            else:
                if nt in (4, 8): a(f"s_add_u32 s{sPb}, s{sPb}, 4096")
                a(f"buffer_store_dwordx4 {vr(XS+nt*4,4)}, v{vT}, {sr(sP,4)}, s{sPb} offen offset:{(nt%4)*1024}")
        stamp(a, 3)
        if "stamp" in OPT: a("s_waitcnt vmcnt(0)")
        stamp(a, 4); stamp(a, 6, True)
        stamp_dump(a, 7, 8, sWave, vT+4, 1)
        a("s_endpgm")
    a.lab(f"L_{name}_done")
    a("s_endpgm")
    return a.text(), kernel_desc(name, NV), f"; @launch kernel={name} grid=(256,1,1) block=(512,1,1) lds={NST*STG}"


def gen_k45(name="k4_kernel"):
    a = A(); a.stpol = os.environ.get("K4ST", "sc1")
    kernel_head(a, name)
    NST = 6; STG = 18432; RING = 6; PFD = 5; PF = RING - 1
    ROWB = 4608 if "m16" in OPT else 2304
    ACC = 4; XS = 76; WR = 124
    vWa, vWb = 148, 149
    vD = 150; vDm = 153
    vX0, vX1 = 156, 157
    vT = 160
    NV = 176
    def acc(nt, mt): return ACC + (nt*2+mt)*4
    sW, sX, sP = 12, 16, 20
    sWave, sKs, sMb, sNb = 28, 29, 30, 31
    sWb1, sXb, sPb = 32, 33, 34
    sM0 = 36
    sT = 40
    sWo = 52
    NC = 144
    a(f"s_cmp_ge_u32 s2, {256+NC}")
    a(f"s_cbranch_scc1 L_{name}_done")
    a("s_cmp_ge_u32 s2, 256")
    a(f"s_cbranch_scc1 L_{name}_cons")
    stamp(a, 0); stamp(a, 5, True)
    a("s_load_dwordx2 s[4:5], s[0:1], 48")
    a("s_load_dwordx2 s[8:9], s[0:1], 72")
    a("s_load_dwordx2 s[10:11], s[0:1], 64")
    a("v_lshrrev_b32 v1, 6, v0")
    a("v_and_b32 v0, 63, v0")
    a("s_nop 0")
    a(f"v_readfirstlane_b32 s{sWave}, v1")
    a(f"s_and_b32 s{sT}, s2, 7")
    a(f"s_lshr_b32 s{sT+1}, s2, 3")
    a(f"s_lshr_b32 s{sKs}, s{sT}, 1")
    a(f"s_and_b32 s{sNb}, s{sT+1}, 3")
    a(f"s_and_b32 s{sT}, s{sT}, 1")
    a(f"s_lshl_b32 s{sT}, s{sT}, 3")
    a(f"s_lshr_b32 s{sMb}, s{sT+1}, 2")
    a(f"s_add_u32 s{sMb}, s{sMb}, s{sT}")
    dma_slots_setup(a, sWave, sT, vT, vD, 1152, sM0, 0)
    a(f"s_cmp_eq_u32 s{sWave}, 0")
    a(f"s_cselect_b32 s{sT}, 0, {576*1152}")
    a(f"v_add_u32 v{vD+1}, s{sT}, v{vD+1}")
    a(f"v_add_u32 v{vD+2}, {576*1152}, v{vD+2}")
    a(f"s_mov_b32 s{sT}, {128*1152}")
    for k in range(3):
        a(f"v_cmp_lt_u32 vcc, 15, v{vT+8+k}")
        a(f"v_mov_b32 v{vT+1}, s{sT}")
        a("s_nop 0")
        a(f"v_cndmask_b32 v{vT+1}, 0, v{vT+1}, vcc")
        a(f"v_add_u32 v{vDm+k}, v{vD+k}, v{vT+1}")
    a(f"s_mul_i32 s{sWb1}, s{sKs}, {2*576*1152}")
    a(f"s_mul_i32 s{sT}, s{sNb}, 288")
    a(f"s_add_u32 s{sWb1}, s{sWb1}, s{sT}")
    a(f"s_lshr_b32 s{sT}, s{sWave}, 2")
    a(f"s_lshl_b32 s{sT+1}, s{sKs}, 1")
    a(f"s_add_u32 s{sT+1}, s{sT+1}, s{sT}")
    a(f"s_and_b32 s{sT+2}, s{sWave}, 3")
    a(f"s_lshl_b32 s{sXb}, s{sMb}, 3")
    a(f"s_lshl_b32 s{sT+3}, s{sT+2}, 1")
    a(f"s_add_u32 s{sXb}, s{sXb}, s{sT+3}")
    a(f"s_mov_b32 s{sT+4}, s{sXb}")
    a(f"s_mul_i32 s{sXb}, s{sXb}, 144")
    a(f"s_mul_i32 s{sT+3}, s{sT+1}, 18")
    a(f"s_add_u32 s{sXb}, s{sXb}, s{sT+3}")
    a(f"s_lshl_b32 s{sXb}, s{sXb}, 10")
    a(f"v_lshlrev_b32 v{vX0}, 4, v0")
    a(f"v_add_u32 v{vX0}, s{sXb}, v{vX0}")
    a(f"v_add_u32 v{vX1}, {144*1024}, v{vX0}")
    a(f"s_lshl_b32 s{sPb}, s{sKs}, 7")
    a(f"s_add_u32 s{sPb}, s{sPb}, s{sT+4}")
    a(f"s_add_u32 s{sPb}, s{sPb}, s{sT}")
    a(f"s_mul_i32 s{sPb}, s{sPb}, 36")
    a(f"s_mul_i32 s{sT+6}, s{sNb}, 9")
    a(f"s_add_u32 s{sPb}, s{sPb}, s{sT+6}")
    a(f"s_lshl_b32 s{sPb}, s{sPb}, 10")
    if "m16" in OPT:
        a(f"v_lshrrev_b32 v{vT+5}, 2, v0")
    else:
        a(f"v_lshrrev_b32 v{vT+5}, 5, v0")
        a(f"v_lshlrev_b32 v{vT+5}, 4, v{vT+5}")
        a(f"v_bfe_u32 v{vT+6}, v0, 2, 3")
        a(f"v_add_u32 v{vT+5}, v{vT+5}, v{vT+6}")
    a(f"v_mul_u32_u24 v{vT+5}, 288, v{vT+5}")
    a(f"v_and_b32 v{vT+6}, 3, v0")
    a(f"v_lshl_add_u32 v{vWa}, v{vT+6}, 3, v{vT+5}")
    a(f"s_mul_i32 s{sT+6}, s{sT}, 9216")
    a(f"v_add_u32 v{vWa}, s{sT+6}, v{vWa}")
    a(f"v_add_u32 v{vWb}, {3*STG}, v{vWa}")
    a("s_waitcnt lgkmcnt(0)")
    srd(a, sW, 4, 4608*576*2)
    srd(a, sX, 8, HH_SZ, HH_OFF)
    srd(a, sP, 8, P_SZ, P_OFF)
    a(f"s_cmp_ge_u32 s{sWave}, 2")
    a(f"s_cbranch_scc1 L_{name}_typeB")
    def fa_rel(i):
        q, ii = divmod(i, 9)
        if ii < 4: return 288*q + 32*ii
        if ii < 8: return 288*q + 144 + 32*(ii-4)
        return 288*q + 128
    def body(nd, tag):
        vm = VM(a)
        def load_groups(i):
            if i >= 18: return []
            st = i % NST
            gs = []
            vv = vDm if i % 9 == 8 else vD
            for k in range(nd):
                g = []
                if k == 0:
                    g.append(("s", f"s_add_u32 s{sWo}, s{sWb1}, {fa_rel(i)*1152}"))
                g.append(("s", f"s_add_u32 m0, s{sM0+k}, {st*STG}"))
                g.append(("s", "s_nop 0"))
                g.append((("W", i), f"buffer_load_dwordx4 v{vv+k}, {sr(sW,4)}, s{sWo} offen lds"))
                gs.append(g)
            xs = XS + (i % NST) * 8
            gs.append([("s", f"s_mov_b32 s{sWo+1}, {i*1024}"),
                       (("X", i), f"buffer_load_dwordx4 {vr(xs,4)}, v{vX0}, {sr(sX,4)}, s{sWo+1} offen")])
            gs.append([(("X", i), f"buffer_load_dwordx4 {vr(xs+4,4)}, v{vX1}, {sr(sX,4)}, s{sWo+1} offen")])
            return gs
        def emit_group(g):
            for tg, txt in g:
                if tg == "s": a(txt)
                else: vm.op(tg, txt)
        for i in range(2):
            for g in load_groups(i): emit_group(g)
        for i in range(0, 72, 2):
            a(f"v_mov_b64 {vr(ACC+i,2)}, 0")
        sched = {0: [2, 3], 1: [4, 5], 2: [6, 7]}
        def wread(gidx):
            i, nt = divmod(gidx, 9)
            if i >= 18: return
            st = i % NST; slot = gidx % RING
            base = vWa if st < 3 else vWb
            off = (st % 3) * STG + nt * 32
            a(f"ds_read_b64_tr_b16 {vr(WR+slot*4,2)}, v{base} offset:{off}")
            a(f"ds_read_b64_tr_b16 {vr(WR+slot*4+2,2)}, v{base} offset:{off+ROWB}")
        vm.wait(lambda t: t[1] <= 0)
        a("s_barrier")
        for f in range(PF): wread(f)
        stamp(a, 1)
        for i in range(18):
            lg = []
            for j in sched.get(i, [i + PFD]): lg += load_groups(j)
            vm.wait(lambda t: t[0] == "X" and t[1] <= i)
            gi = 0
            gpos = [(k * 9) // max(1, len(lg)) for k in range(len(lg))]
            for nt in range(9):
                g = i*9 + nt; slot = g % RING
                if i == 0 and nt == 9 - PF:
                    vm.wait(lambda t: t[0] == "W" and t[1] <= 1)
                    a("s_barrier")
                wread(g + PF)
                rem = min(PF, 18*9 - 1 - g)
                a(f"s_waitcnt lgkmcnt({2*rem})")
                xs = XS + (i % NST) * 8
                a(f"v_mfma_f32_16x16x32_bf16 {vr(acc(nt,0),4)}, {vr(WR+slot*4,4)}, {vr(xs,4)}, {vr(acc(nt,0),4)}")
                a(f"v_mfma_f32_16x16x32_bf16 {vr(acc(nt,1),4)}, {vr(WR+slot*4,4)}, {vr(xs+4,4)}, {vr(acc(nt,1),4)}")
                while gi < len(lg) and gpos[gi] <= nt:
                    emit_group(lg[gi]); gi += 1
            assert gi == len(lg)
            vm.wait(lambda t: t[0] == "W" and t[1] <= i + 2)
            a("s_barrier")
    body(3, "A")
    a(f"s_branch L_{name}_epi")
    a.lab(f"L_{name}_typeB")
    body(2, "B")
    a.lab(f"L_{name}_epi")
    stamp(a, 2)
    a(f"s_lshr_b32 s{sT}, s{sWave}, 2")
    a(f"v_lshlrev_b32 v{vT}, 4, v0")
    a(f"s_mul_i32 s{sT+1}, s{sWave}, 9216")
    a(f"v_add_u32 v{vT+1}, s{sT+1}, v{vT}")
    a(f"s_xor_b32 s{sT+2}, s{sWave}, 4")
    a(f"s_mul_i32 s{sT+2}, s{sT+2}, 9216")
    a(f"v_add_u32 v{vT+2}, s{sT+2}, v{vT}")
    a(f"s_cmp_eq_u32 s{sT}, 0")
    a("s_nop 4")
    a(f"s_cbranch_scc0 L_{name}_kh1")
    for kh in range(2):
        if kh == 1: a.lab(f"L_{name}_kh1")
        for nt in range(9):
            a(f"ds_write_b128 v{vT+1}, {vr(acc(nt,1-kh),4)} offset:{nt*1024}")
        a("s_waitcnt lgkmcnt(0)")
        a("s_barrier")
        for nt in range(9):
            a(f"ds_read_b128 {vr(XS+nt*4,4)}, v{vT+2} offset:{nt*1024}")
        for nt in range(9):
            a(f"s_waitcnt lgkmcnt({8-nt})")
            for r in range(4):
                a(f"v_add_f32 v{XS+nt*4+r}, v{XS+nt*4+r}, v{acc(nt,kh)+r}")
            if nt in (4, 8): a(f"s_add_u32 s{sPb}, s{sPb}, 4096")
            a(f"buffer_store_dwordx4 {vr(XS+nt*4,4)}, v{vT}, {sr(sP,4)}, s{sPb} offen offset:{(nt%4)*1024}")
        stamp(a, 3)
        a("s_waitcnt vmcnt(0)")
        a("s_barrier")
        stamp(a, 4); stamp(a, 6, True)
        stamp_dump(a, 7, 8, sWave, vT+4, 1)
        if kh == 0:
            a(f"s_cmp_lg_u32 s{sWave}, 0")
            a(f"s_cbranch_scc1 L_{name}_done")
            srd(a, 24, 10, 256)
            a(f"s_lshl_b32 s{sT}, s{sMb}, 2")
            a(f"v_mov_b32 v{vT}, s{sT}")
            a(f"v_mov_b32 v{vT+1}, 1")
            a("s_mov_b64 exec, 1")
            a(f"buffer_atomic_add v{vT+1}, v{vT}, s[24:27], 0 offen sc1")
        a("s_endpgm")
    a.lab(f"L_{name}_cons")
    a("s_load_dwordx2 s[4:5], s[0:1], 56")
    a("s_load_dwordx4 s[8:11], s[0:1], 64")
    a("v_lshrrev_b32 v1, 6, v0")
    a("v_and_b32 v0, 63, v0")
    a("s_sub_u32 s28, s2, 256")
    a("v_readfirstlane_b32 s29, v1")
    a("s_mul_i32 s30, s28, 7282")
    a("s_lshr_b32 s30, s30, 16")
    a("s_lshl_b32 s31, s28, 4")
    a("s_lshl_b32 s32, s29, 1")
    a("s_add_u32 s31, s31, s32")
    a("s_waitcnt lgkmcnt(0)")
    srd(a, 12, 10, H1_SZ, H1_OFF)
    srd(a, 16, 10, P_SZ, P_OFF)
    srd(a, 20, 4, 2048*576*2)
    srd(a, 24, 8, 256)
    a("v_lshlrev_b32 v1, 4, v0")
    a("s_lshl_b32 s32, s31, 10")
    a("buffer_load_dwordx4 v[4:7], v1, s[12:15], s32 offen")
    a("buffer_load_dwordx4 v[44:47], v1, s[12:15], s32 offen offset:1024")
    a("s_cmp_lg_u32 s29, 0")
    a(f"s_cbranch_scc1 L_{name}_wait")
    a("s_lshl_b32 s33, s30, 2")
    a("v_mov_b32 v2, s33")
    a.lab(f"L_{name}_poll")
    a("buffer_load_dword v3, v2, s[24:27], 0 offen sc1")
    a("s_waitcnt vmcnt(0)")
    a("v_readfirstlane_b32 s34, v3")
    a("s_cmp_ge_u32 s34, 16")
    a(f"s_cbranch_scc1 L_{name}_wait")
    a("s_sleep 2")
    a(f"s_branch L_{name}_poll")
    a.lab(f"L_{name}_wait")
    a("s_barrier")
    a("s_lshl_b32 s33, s31, 11")
    for t in range(2):
        B = 8 + t*40
        for k_ in range(4):
            a.l.append(f"    buffer_load_dwordx4 v[{B+k_*8}:{B+3+k_*8}], v1, s[16:19], s33 offen offset:{t*2048} sc1")
            a.l.append(f"    buffer_load_dwordx4 v[{B+4+k_*8}:{B+7+k_*8}], v1, s[16:19], s33 offen offset:{t*2048+1024} sc1")
            a(f"s_add_u32 s33, s33, {128*36*1024}")
        a(f"s_sub_u32 s33, s33, {4*128*36*1024}")
    for t in range(2):
        B = 8 + t*40; Hh = 4 + t*40
        a(f"s_add_u32 s35, s31, {t}")
        a("s_mul_i32 s36, s35, 3641")
        a("s_lshr_b32 s36, s36, 16")
        a("s_mul_i32 s37, s36, 18")
        a("s_sub_u32 s37, s35, s37")
        a("v_and_b32 v2, 15, v0")
        a("s_lshl_b32 s38, s36, 4")
        a("v_add_u32 v2, s38, v2")
        a("v_mul_u32_u24 v2, 1152, v2")
        a("v_lshrrev_b32 v3, 4, v0")
        a("v_lshl_add_u32 v2, v3, 3, v2")
        a("s_lshl_b32 s38, s37, 6")
        a(f"s_waitcnt vmcnt({8 if t == 0 else 2})")
        for i in range(8):
            a(f"v_add_f32 v{B+i}, v{B+i}, v{B+8+i}")
            a(f"v_add_f32 v{B+16+i}, v{B+16+i}, v{B+24+i}")
        for i in range(8):
            a(f"v_add_f32 v{B+i}, v{B+i}, v{B+16+i}")
        for p in range(4):
            a(f"v_cvt_pk_bf16_f32 v{B+8+p}, v{B+2*p}, v{B+1+2*p}")
        for p in range(4):
            a(f"v_lshlrev_b32 v{B+16+2*p}, 16, v{B+8+p}")
            a(f"v_and_b32 v{B+17+2*p}, 0xffff0000, v{B+8+p}")
            a(f"v_lshlrev_b32 v{B+24+2*p}, 16, v{Hh+p}")
            a(f"v_and_b32 v{B+25+2*p}, 0xffff0000, v{Hh+p}")
        for i in range(8):
            a(f"v_add_f32 v{B+16+i}, v{B+16+i}, v{B+24+i}")
        for p in range(4):
            a(f"v_cvt_pk_bf16_f32 v{B+8+p}, v{B+16+2*p}, v{B+17+2*p}")
        a(f"buffer_store_dwordx2 v[{B+8}:{B+9}], v2, s[20:23], s38 offen")
        a(f"buffer_store_dwordx2 v[{B+10}:{B+11}], v2, s[20:23], s38 offen offset:32")
    a.lab(f"L_{name}_done")
    a("s_endpgm")
    return a.text(), kernel_desc(name, NV), f"; @launch kernel={name} grid=({256+NC},1,1) block=(512,1,1) lds={NST*STG}"


def gen_k1v3(name="k1_kernel"):
    a = A(); vm = VM(a)
    kernel_head(a, name)
    XT = 0
    WB = 92160; STG = 16384; NST = 4; PITCH = 480
    QP = 624
    ACC = 4
    XF = 44
    WF = 84
    RAW = 100
    vD0, vD1 = 150, 151
    vWa, vXa, vXb = 152, 153, 154
    vNM, vR, vLW = 155, 156, 157
    vT = 160
    NV = 184
    sW, sXs, sO = 12, 16, 20
    sWave, sRb, sHg, sT = 28, 29, 30, 36
    sWo, sM0b = 31, 32
    a("s_cmp_ge_u32 s2, 256")
    a(f"s_cbranch_scc1 L_{name}_done")
    stamp(a, 0); stamp(a, 5, True)
    a("s_load_dwordx4 s[4:7], s[0:1], 0")
    a("s_load_dwordx2 s[8:9], s[0:1], 72")
    if "nowpf" not in OPT:
        a("s_load_dwordx4 s[48:51], s[0:1], 32")
        a("s_load_dwordx2 s[52:53], s[0:1], 48")
        a("s_load_dwordx2 s[92:93], s[0:1], 16")
    a("v_lshrrev_b32 v1, 6, v0")
    a("v_mov_b32 v3, v0")
    a("v_and_b32 v0, 63, v0")
    a(f"v_readfirstlane_b32 s{sWave}, v1")
    a(f"s_lshr_b32 s{sT}, s2, 3")
    a(f"s_and_b32 s{sHg}, s{sT}, 3")
    a(f"s_and_b32 s{sT+1}, s2, 1")
    a(f"s_lshl_b32 s{sT+1}, s{sT+1}, 2")
    a(f"s_add_u32 s{sHg}, s{sHg}, s{sT+1}")
    a(f"s_lshr_b32 s{sRb}, s{sT}, 2")
    a(f"s_bfe_u32 s{sT+1}, s2, 0x20001")
    a(f"s_lshl_b32 s{sT+1}, s{sT+1}, 3")
    a(f"s_add_u32 s{sRb}, s{sRb}, s{sT+1}")
    a(f"v_min_u32 v{vT+4}, 59, v0")
    a(f"v_mul_u32_u24 v{vT}, 10923, v{vT+4}")
    a(f"v_lshrrev_b32 v{vT}, 16, v{vT}")
    a(f"v_mul_u32_u24 v{vT+1}, 6, v{vT}")
    a(f"v_sub_u32 v{vT+1}, v{vT+4}, v{vT+1}")
    a(f"s_mul_i32 s{sT}, s{sWave}, 10")
    a(f"v_add_u32 v{vT+2}, s{sT}, v{vT}")
    a(f"s_lshl_b32 s{sT+1}, s{sRb}, 6")
    a(f"s_sub_u32 s{sT+1}, s{sT+1}, 16")
    a(f"v_add_u32 v{vT+3}, s{sT+1}, v{vT+2}")
    a(f"s_movk_i32 s{sT+2}, 1152")
    a(f"v_mul_lo_u32 v{vT+3}, v{vT+3}, s{sT+2}")
    a(f"v_lshl_add_u32 v{vT+3}, v{vT+1}, 4, v{vT+3}")
    a("s_waitcnt lgkmcnt(0)")
    srd(a, sXs, 4, 2048*576*2)
    for i in range(12):
        vm.op(("x", i), f"buffer_load_dwordx4 {vr(RAW+i*4,4)}, v{vT+3}, {sr(sXs,4)}, 0 offen offset:{i*96}")
    srd(a, sW, 6, 576*1728*2)
    srd(a, sO, 8, O_SZ, O_OFF)
    a(f"s_lshl_b32 s{sT}, s{sWave}, 7")
    a(f"s_mul_i32 s{sT+1}, s{sHg}, 144")
    a(f"s_mov_b32 s{sT+2}, 0x40000000")
    for t, vd in enumerate((vD0, vD1)):
        a(f"v_add_u32 v{vT+4}, s{sT}, v0")
        if t: a(f"v_add_u32 v{vT+4}, 64, v{vT+4}")
        a(f"v_mul_u32_u24 v{vT+5}, 2185, v{vT+4}")
        a(f"v_lshrrev_b32 v{vT+5}, 16, v{vT+5}")
        a(f"v_mul_u32_u24 v{vT+6}, 30, v{vT+5}")
        a(f"v_sub_u32 v{vT+6}, v{vT+4}, v{vT+6}")
        a(f"v_mul_u32_u24 v{vT+7}, 7282, v{vT+6}")
        a(f"v_lshrrev_b32 v{vT+7}, 16, v{vT+7}")
        a(f"v_mul_u32_u24 v{vT+8}, 9, v{vT+7}")
        a(f"v_sub_u32 v{vT+8}, v{vT+6}, v{vT+8}")
        a(f"v_mul_u32_u24 v{vT+7}, 1152, v{vT+7}")
        a(f"v_lshl_add_u32 v{vT+7}, v{vT+8}, 4, v{vT+7}")
        a(f"v_and_b32 v{vT+8}, 4, v{vT+5}")
        a(f"v_lshlrev_b32 v{vT+8}, 1, v{vT+8}")
        a(f"v_and_b32 v{vT+9}, 8, v{vT+5}")
        a(f"v_lshrrev_b32 v{vT+9}, 1, v{vT+9}")
        a(f"v_and_b32 v{vT+10}, 0x13, v{vT+5}")
        a(f"v_or3_b32 v{vT+8}, v{vT+8}, v{vT+9}, v{vT+10}")
        a(f"v_mul_u32_u24 v{vT+8}, 3456, v{vT+8}")
        a(f"v_add3_u32 v{vT+7}, v{vT+7}, v{vT+8}, s{sT+1}")
        a(f"v_cmp_gt_u32 vcc, 27, v{vT+6}")
        a(f"v_cmp_gt_u32 s[{sT+4}:{sT+5}], 32, v{vT+5}")
        a(f"s_and_b64 vcc, vcc, s[{sT+4}:{sT+5}]")
        a(f"v_mov_b32 v{vT+8}, s{sT+2}")
        a("s_nop 1")
        a(f"v_cndmask_b32 v{vd}, v{vT+8}, v{vT+7}, vcc")
    a(f"s_lshl_b32 s{sM0b}, s{sWave}, 11")
    a(f"s_add_u32 s{sM0b}, s{sM0b}, {WB}")
    def wdma(i):
        if i >= 18: return
        st = i % NST
        a(f"s_mov_b32 s{sWo}, {i*32*3456}")
        for t, vd in enumerate((vD0, vD1)):
            a(f"s_add_u32 m0, s{sM0b}, {st*STG + t*1024}")
            a("s_nop 0")
            vm.op(("W", i), f"buffer_load_dwordx4 v{vd}, {sr(sW,4)}, s{sWo} offen lds")
    for i in range(2): wdma(i)
    if "k1pf" in OPT:
        a(f"s_and_b32 s{sT+3}, s{sRb}, 7")
        a(f"s_mul_i32 s{sT+3}, s{sT+3}, {72*3456}")
        a(f"s_add_u32 s{sT+3}, s{sT+3}, s{sT+1}")
        for t in range(2):
            a(f"v_add_u32 v{vT+4}, s{sT}, v0")
            if t: a(f"v_add_u32 v{vT+4}, 64, v{vT+4}")
            a(f"v_mul_u32_u24 v{vT+5}, 7282, v{vT+4}")
            a(f"v_lshrrev_b32 v{vT+5}, 16, v{vT+5}")
            a(f"v_mul_u32_u24 v{vT+6}, 9, v{vT+5}")
            a(f"v_sub_u32 v{vT+6}, v{vT+4}, v{vT+6}")
            a(f"v_mul_u32_u24 v{vT+7}, 21846, v{vT+6}")
            a(f"v_lshrrev_b32 v{vT+7}, 16, v{vT+7}")
            a(f"v_mul_u32_u24 v{vT+8}, 3, v{vT+7}")
            a(f"v_sub_u32 v{vT+8}, v{vT+6}, v{vT+8}")
            a(f"v_mul_u32_u24 v{vT+8}, 70, v{vT+8}")
            a(f"v_and_b32 v{vT+8}, 0xfc, v{vT+8}")
            a(f"v_mul_u32_u24 v{vT+5}, 3456, v{vT+5}")
            a(f"v_mad_u32_u24 v{vT+5}, v{vT+7}, 1152, v{vT+5}") if False else None
            a(f"v_mul_u32_u24 v{vT+7}, 1152, v{vT+7}")
            a(f"v_add3_u32 v{vT+5}, v{vT+5}, v{vT+7}, v{vT+8}")
            a(f"v_cmp_gt_u32 vcc, 648, v{vT+4}")
            a(f"v_mov_b32 v{vT+8}, s{sT+2}")
            a("s_nop 1")
            a(f"v_cndmask_b32 v{vT+5}, v{vT+8}, v{vT+5}, vcc")
            vm.op(("P", t), f"buffer_load_dword v{vT+20+t}, v{vT+5}, {sr(sW,4)}, s{sT+3} offen")
    ONES = sT+8
    a(f"s_mov_b32 s{ONES}, 0x3f803f80")
    S, Q, S2, Q2 = vT+4, vT+5, vT+6, vT+7
    B3, B1, B2 = vT+8, vT+9, vT+10
    for d_, vb in ((3, B3), (1, B1), (2, B2)):
        a(f"v_add_u32 v{vb}, {d_}, v{vT+1}")
        a(f"v_subrev_u32 v{vT+11}, 6, v{vb}")
        a(f"v_min_u32 v{vb}, v{vb}, v{vT+11}")
        a(f"v_mad_u32_u24 v{vb}, v{vT}, 6, v{vb}")
        a(f"v_lshlrev_b32 v{vb}, 2, v{vb}")
    a(f"v_lshrrev_b32 v{vT+11}, 4, v{vT+2}")
    a(f"v_mul_u32_u24 v{vT+11}, 18432, v{vT+11}")
    a(f"v_and_b32 v{vT+12}, 15, v{vT+2}")
    a(f"v_lshl_add_u32 v{vT+11}, v{vT+12}, 4, v{vT+11}")
    a(f"v_lshl_add_u32 v{vLW}, v{vT+1}, 8, v{vT+11}")
    a(f"v_lshrrev_b32 v{vT+11}, 5, v0")
    a(f"v_lshlrev_b32 v{vT+11}, 4, v{vT+11}")
    a(f"v_bfe_u32 v{vT+12}, v0, 2, 3")
    a(f"v_add_u32 v{vT+11}, v{vT+11}, v{vT+12}")
    a(f"v_mul_u32_u24 v{vT+11}, {PITCH}, v{vT+11}")
    a(f"v_and_b32 v{vT+12}, 3, v0")
    a(f"v_lshl_add_u32 v{vWa}, v{vT+12}, 3, v{vT+11}")
    a(f"s_lshl_b32 s{sT}, s{sWave}, 6")
    a(f"s_add_u32 s{sT}, s{sT}, {WB}")
    a(f"v_add_u32 v{vWa}, s{sT}, v{vWa}")
    a(f"v_lshlrev_b32 v{vXa}, 4, v0")
    a(f"v_add_u32 v{vXb}, 65536, v{vXa}")
    for r in (S, Q, S2, Q2): a(f"v_mov_b32 v{r}, 0")
    for i in range(12):
        vm.wait(lambda t: t[0] == "x" and t[1] <= i)
        if i == 11 and "astamp" not in OPT: stamp(a, 1)
        for d_ in range(4):
            x = RAW + i*4 + d_
            s_, q_ = (S, Q) if d_ % 2 == 0 else (S2, Q2)
            a(f"v_dot2_f32_bf16 v{s_}, v{x}, s{ONES}, v{s_}")
            a(f"v_dot2_f32_bf16 v{q_}, v{x}, v{x}, v{q_}")
    wdma(2); wdma(3)
    if "nowpf" not in OPT:
        a(f"s_lshl_b32 s{sT}, s2, 3")
        a(f"s_add_u32 s{sT}, s{sT}, s{sWave}")
        a(f"s_cmp_ge_u32 s{sT}, 2025")
        a(f"s_cbranch_scc1 L_{name}_nopf")
        a(f"s_cmp_ge_u32 s{sT}, 648")
        a(f"s_cselect_b32 s54, s50, s48")
        a(f"s_cselect_b32 s55, s51, s49")
        a(f"s_cselect_b32 s{sT+1}, 648, 0")
        a(f"s_cmp_ge_u32 s{sT}, 1296")
        a(f"s_cselect_b32 s54, s52, s54")
        a(f"s_cselect_b32 s55, s53, s55")
        a(f"s_cselect_b32 s{sT+1}, 1296, s{sT+1}")
        a(f"s_cmp_ge_u32 s{sT}, 1944")
        a(f"s_cselect_b32 s54, s92, s54")
        a(f"s_cselect_b32 s55, s93, s55")
        a(f"s_cselect_b32 s{sT+1}, 1944, s{sT+1}")
        a(f"s_cselect_b32 s{sT+2}, {576*576*2}, {576*4608*2}") if False else None
        a(f"s_sub_u32 s{sT}, s{sT}, s{sT+1}")
        a(f"s_lshl_b32 s{sT}, s{sT}, 13")
        srd(a, 56, 54, 576*4608*2)
        a(f"v_lshlrev_b32 v{vT+20}, 7, v0")
        a(f"buffer_load_dword v{vT+21}, v{vT+20}, s[56:59], s{sT} offen")
        a.lab(f"L_{name}_nopf")
        if "pfcode" in OPT:
            a(f"s_lshl_b32 s{sT}, s2, 3")
            a(f"s_add_u32 s{sT}, s{sT}, s{sWave}")
            a(f"s_sub_u32 s{sT}, s{sT}, 2025")
            a(f"s_cmp_ge_u32 s{sT}, 8")
            a(f"s_cbranch_scc1 L_{name}_nopc")
            a("s_getpc_b64 s[54:55]")
            a(f"s_lshl_b32 s{sT}, s{sT}, 13")
            srd(a, 56, 54, 65536)
            a(f"v_lshlrev_b32 v{vT+20}, 7, v0")
            a(f"buffer_load_dword v{vT+21}, v{vT+20}, s[56:59], s{sT} offen")
            a.lab(f"L_{name}_nopc")
        if "pfws" in OPT:
            a(f"s_lshl_b32 s{sT}, s2, 3")
            a(f"s_add_u32 s{sT}, s{sT}, s{sWave}")
            a(f"s_cmp_ge_u32 s{sT}, {(P_OFF+P_SZ + 262143)//262144}")
            a(f"s_cbranch_scc1 L_{name}_nopw")
            a(f"s_lshl_b32 s{sT}, s{sT}, 18")
            srd(a, 56, 8, P_OFF+P_SZ)
            a(f"v_lshlrev_b32 v{vT+20}, 12, v0")
            a(f"buffer_load_dword v{vT+20}, v{vT+20}, s[56:59], s{sT} offen")
            a.lab(f"L_{name}_nopw")
    a(f"v_add_f32 v{S}, v{S}, v{S2}")
    a(f"v_add_f32 v{Q}, v{Q}, v{Q2}")
    a(f"ds_bpermute_b32 v{S2}, v{B3}, v{S}")
    a(f"ds_bpermute_b32 v{Q2}, v{B3}, v{Q}")
    a("s_waitcnt lgkmcnt(0)")
    a(f"v_add_f32 v{S}, v{S}, v{S2}")
    a(f"v_add_f32 v{Q}, v{Q}, v{Q2}")
    a(f"ds_bpermute_b32 v{S2}, v{B1}, v{S}")
    a(f"ds_bpermute_b32 v{Q2}, v{B1}, v{Q}")
    a(f"ds_bpermute_b32 v{vT+11}, v{B2}, v{S}")
    a(f"ds_bpermute_b32 v{vT+12}, v{B2}, v{Q}")
    a("s_waitcnt lgkmcnt(0)")
    a(f"v_add3_u32 v{vT+13}, 0, 0, 0") if False else None
    a(f"v_add_f32 v{S}, v{S}, v{S2}")
    a(f"v_add_f32 v{Q}, v{Q}, v{Q2}")
    a(f"v_add_f32 v{S}, v{S}, v{vT+11}")
    a(f"v_add_f32 v{Q}, v{Q}, v{vT+12}")
    a(f"v_mul_f32 v{S}, {f32(1.0/576.0)}, v{S}")
    a(f"v_mul_f32 v{Q}, {f32(1.0/576.0)}, v{Q}")
    a(f"v_fma_f32 v{Q}, -v{S}, v{S}, v{Q}")
    a(f"v_max_f32 v{Q}, 0, v{Q}")
    round_bf16(a, vNM, S)
    round_bf16(a, Q, Q)
    a(f"v_add_f32 v{Q}, {f32(1e-5)}, v{Q}")
    round_bf16(a, Q, Q)
    a(f"v_sqrt_f32 v{Q}, v{Q}")
    a("s_nop 0")
    round_bf16(a, Q, Q)
    a(f"v_rcp_f32 v{vR}, v{Q}")
    a("s_nop 0")
    FAST1 = "fast1" in OPT
    if FAST1:
        a(f"v_mul_f32 v{vNM}, v{vNM}, v{vR}")
        a(f"v_sub_f32 v{vNM}, 0, v{vNM}")
    def norm_group(i):
        if FAST1:
            ops = []
            chains = []
            for d_ in range(4):
                x = RAW + i*4 + d_
                t = vT + 12 + d_ * 2
                chains.append([f"v_lshlrev_b32 v{t}, 16, v{x}", f"v_and_b32 v{t+1}, 0xffff0000, v{x}",
                               f"v_fma_f32 v{t}, v{t}, v{vR}, v{vNM}", f"v_fma_f32 v{t+1}, v{t+1}, v{vR}, v{vNM}",
                               f"v_cvt_pk_bf16_f32 v{x}, v{t}, v{t+1}"])
            for stage in ((0, 1), (2, 3), (4,)):
                for c in chains:
                    for j in stage: ops.append(c[j])
            ops.append(f"ds_write_b128 v{vLW}, {vr(RAW+i*4,4)} offset:{XT + i*6*256}")
            return ops
        chains = []
        for d_ in range(4):
            x = RAW + i*4 + d_
            t = vT + 12 + d_ * 2
            chains.append([f"v_lshlrev_b32 v{t}, 16, v{x}", f"v_and_b32 v{t+1}, 0xffff0000, v{x}",
                    f"v_sub_f32 v{t}, v{t}, v{vNM}", f"v_sub_f32 v{t+1}, v{t+1}, v{vNM}",
                    f"v_cvt_pk_bf16_f32 v{t}, v{t}, v{t+1}",
                    f"v_and_b32 v{t+1}, 0xffff0000, v{t}", f"v_lshlrev_b32 v{t}, 16, v{t}",
                    f"v_mul_f32 v{t}, v{t}, v{vR}", f"v_mul_f32 v{t+1}, v{t+1}, v{vR}",
                    f"v_cvt_pk_bf16_f32 v{x}, v{t}, v{t+1}"])
        ops = []
        for stage in ((0, 1), (2, 3), (4,), (5, 6), (7, 8), (9,)):
            for c in chains:
                for j in stage: ops.append(c[j])
        ops.append(f"ds_write_b128 v{vLW}, {vr(RAW+i*4,4)} offset:{XT + i*6*256}")
        return ops
    gdone = 12
    for g_ in range(12):
        for op in norm_group(g_): a(op)
    if "astamp" not in OPT: stamp(a, 2)
    vm.wait(lambda t: t[0] == "W" and t[1] <= 0)
    a("s_waitcnt lgkmcnt(0)")
    a("s_barrier")
    if "astamp" not in OPT: stamp(a, 3)
    def readsW(i):
        b = i % 2; st = i % NST
        for n in range(2):
            a(f"ds_read_b64_tr_b16 {vr(WF+b*8+n*4,2)}, v{vWa} offset:{st*STG + n*32}")
            a(f"ds_read_b64_tr_b16 {vr(WF+b*8+n*4+2,2)}, v{vWa} offset:{st*STG + n*32 + 8*PITCH}")
    def readsX(i):
        if i >= 18: return
        b = i % 2
        for mt in range(5):
            off = (mt*18 + i)*1024
            if off < 65536:
                a(f"ds_read_b128 {vr(XF+b*20+mt*4,4)}, v{vXa} offset:{off}")
            else:
                a(f"ds_read_b128 {vr(XF+b*20+mt*4,4)}, v{vXb} offset:{off-65536}")
    readsX(0)
    for i in range(18):
        readsW(i)
        if i >= 1: wdma(i+3)
        b = i % 2
        readsX(i+1)
        nx = 5 if i < 17 else 0
        a(f"s_waitcnt lgkmcnt({nx+2})")
        for mt in range(5):
            a(f"v_mfma_f32_16x16x32_bf16 {vr(ACC+(mt*2)*4,4)}, {vr(WF+b*8,4)}, {vr(XF+b*20+mt*4,4)}, " + ("0" if i == 0 else vr(ACC+(mt*2)*4,4)))
        a(f"s_waitcnt lgkmcnt({nx})")
        for mt in range(5):
            a(f"v_mfma_f32_16x16x32_bf16 {vr(ACC+(mt*2+1)*4,4)}, {vr(WF+b*8+4,4)}, {vr(XF+b*20+mt*4,4)}, " + ("0" if i == 0 else vr(ACC+(mt*2+1)*4,4)))
        if i < 17:
            vm.wait(lambda t: t[0] == "W" and t[1] <= i+1)
            a("s_barrier")
    a("s_barrier")
    stamp(a, 1 if "astamp" in OPT else 4)
    a(f"v_lshrrev_b32 v{vT}, 4, v0")
    a(f"v_lshlrev_b32 v{vT}, 2, v{vT}")
    a(f"s_lshl_b32 s{sT}, s{sWave}, 5")
    a(f"v_add_u32 v{vT}, s{sT}, v{vT}")
    a(f"v_and_b32 v{vT+1}, 15, v0")
    a(f"v_mul_u32_u24 v{vT+1}, {QP}, v{vT+1}")
    AD = vT + 4
    for n in range(2):
        for p in range(2):
            ad = AD + n*2 + p
            a(f"v_add_u32 v{vT+2}, {n*16+p*2}, v{vT}")
            a(f"v_mul_u32_u24 v{vT+3}, 3641, v{vT+2}")
            a(f"v_lshrrev_b32 v{vT+3}, 16, v{vT+3}")
            a(f"v_mul_u32_u24 v{ad}, 18, v{vT+3}")
            a(f"v_sub_u32 v{ad}, v{vT+2}, v{ad}")
            a(f"v_lshl_add_u32 v{ad}, v{ad}, 1, v{vT+1}")
            a(f"v_mad_u32_u24 v{ad}, v{vT+3}, 48, v{ad}")
    a(f"s_cmp_ge_u32 s{sWave}, 7")
    a(f"s_cbranch_scc1 L_{name}_skipq")
    for mt in range(5):
        for n in range(2):
            c = ACC + (mt*2+n)*4
            t = vT + 8 + ((mt*2+n) % 2) * 2
            a(f"v_cvt_pk_bf16_f32 v{t}, v{c}, v{c+1}")
            a(f"v_cvt_pk_bf16_f32 v{t+1}, v{c+2}, v{c+3}")
            a(f"ds_write_b32 v{AD+n*2}, v{t} offset:{mt*16*QP}")
            a(f"ds_write_b32 v{AD+n*2+1}, v{t+1} offset:{mt*16*QP}")
    a.lab(f"L_{name}_skipq")
    QR = 4; KR = 16; LG = 64; LX = 68; VO = 72; VX = 104; OA = 136
    vAo, vAx, vPos, vHd, vHf = vT, vT+1, vT+2, vT+3, vT+12
    a(f"v_lshrrev_b32 v{vPos}, 3, v3")
    a(f"v_bfe_u32 v{vHd}, v3, 1, 2")
    a(f"v_and_b32 v{vHf}, 1, v3")
    a(f"v_add_u32 v{vT+13}, 2, v{vPos}")
    a(f"v_mul_u32_u24 v{vT+13}, {QP}, v{vT+13}")
    a(f"v_mad_u32_u24 v{vT+13}, v{vHd}, 48, v{vT+13}")
    a(f"v_xor_b32 v{vT+14}, 1, v{vHf}")
    a(f"s_movk_i32 s{sT}, {8*QP}")
    a(f"v_mad_u32_u24 v{vAo}, v{vT+14}, s{sT}, v{vT+13}")
    a(f"v_mad_u32_u24 v{vAx}, v{vHf}, s{sT}, v{vT+13}")
    a("s_waitcnt lgkmcnt(0)")
    a("s_barrier")
    if "astamp" in OPT: stamp(a, 2)
    for j in range(3):
        a(f"ds_read_b128 {vr(QR+j*4,4)}, v{vT+13} offset:{14*QP + j*16}")
    for i in range(4):
        for j in range(3):
            a(f"ds_read_b128 {vr(KR+i*12+j*4,4)}, v{vAo} offset:{(6-2*i)*QP + 192 + j*16}")
    a(f"v_lshl_add_u32 v{vAo}, v{vHf}, 4, v{vAo}")
    a(f"v_lshl_add_u32 v{vAx}, v{vHf}, 4, v{vAx}")
    a(f"s_lshl_b32 s{sT}, s{sRb}, 6")
    a(f"v_add_u32 v{vPos}, s{sT}, v{vPos}")
    a(f"v_lshlrev_b32 v{vT+14}, 3, v{vHf}")
    a(f"v_sub_u32 v{vT+14}, v{vPos}, v{vT+14}")
    a(f"s_mov_b32 s{sT+1}, {f32(18.0**-0.5)}")
    a(f"s_mov_b32 s{sT+2}, {f32(-1e9)}")
    a(f"v_cvt_pk_bf16_f32 v{vT+15}, s{sT+2}, s{sT+2}")
    a(f"v_lshlrev_b32 v{vT+15}, 16, v{vT+15}")
    for i in range(4): a(f"v_mov_b32 v{LG+i}, 0")
    a("s_waitcnt lgkmcnt(0)")
    for i in range(4):
        a(f"ds_read_b128 {vr(VO+i*8,4)}, v{vAo} offset:{(6-2*i)*QP + 384}")
        a(f"ds_read_b32 v{VO+i*8+4}, v{vAo} offset:{(6-2*i)*QP + 384 + 16}")
    for i in range(4):
        a(f"ds_read_b128 {vr(VX+i*8,4)}, v{vAx} offset:{(6-2*i)*QP + 384}")
        a(f"ds_read_b32 v{VX+i*8+4}, v{vAx} offset:{(6-2*i)*QP + 384 + 16}")
    for d_ in range(9):
        for i in range(4):
            a(f"v_dot2_f32_bf16 v{LG+i}, v{QR+d_}, v{KR+i*12+d_}, v{LG+i}")
    a("s_nop 2")
    a(f"v_cvt_pk_bf16_f32 v{LG}, v{LG}, v{LG+1}")
    a(f"v_cvt_pk_bf16_f32 v{LG+2}, v{LG+2}, v{LG+3}")
    a(f"v_and_b32 v{LG+1}, 0xffff0000, v{LG}")
    a(f"v_lshlrev_b32 v{LG}, 16, v{LG}")
    a(f"v_and_b32 v{LG+3}, 0xffff0000, v{LG+2}")
    a(f"v_lshlrev_b32 v{LG+2}, 16, v{LG+2}")
    for i in range(4): a(f"v_mul_f32 v{LG+i}, s{sT+1}, v{LG+i}")
    a(f"v_cvt_pk_bf16_f32 v{LG}, v{LG}, v{LG+1}")
    a(f"v_cvt_pk_bf16_f32 v{LG+2}, v{LG+2}, v{LG+3}")
    a(f"v_and_b32 v{LG+1}, 0xffff0000, v{LG}")
    a(f"v_lshlrev_b32 v{LG}, 16, v{LG}")
    a(f"v_and_b32 v{LG+3}, 0xffff0000, v{LG+2}")
    a(f"v_lshlrev_b32 v{LG+2}, 16, v{LG+2}")
    for i in range(4):
        a(f"v_cmp_le_i32 vcc, {2*i}, v{vT+14}")
        a("s_nop 1")
        a(f"v_cndmask_b32 v{LG+i}, v{vT+15}, v{LG+i}, vcc")
    a("s_nop 1")
    for i in range(4):
        a(f"v_mov_b32_dpp v{LX+i}, v{LG+i} quad_perm:[1,0,3,2] row_mask:0xf bank_mask:0xf")
    M_, SUM = vT+13, vT+14
    a(f"v_max3_f32 v{M_}, v{LG}, v{LG+1}, v{LG+2}")
    a(f"v_max3_f32 v{M_}, v{M_}, v{LG+3}, v{LX}")
    a(f"v_max3_f32 v{M_}, v{M_}, v{LX+1}, v{LX+2}")
    a(f"v_max_f32 v{M_}, v{M_}, v{LX+3}")
    a(f"s_mov_b32 s{sT+3}, {f32(math.log2(math.e))}")
    for w in range(8):
        a(f"v_sub_f32 v{LG+w}, v{LG+w}, v{M_}")
    for w in range(8):
        a(f"v_mul_f32 v{LG+w}, s{sT+3}, v{LG+w}")
    for w in range(8):
        a(f"v_exp_f32 v{LG+w}, v{LG+w}")
    a("s_nop 0")
    a(f"v_add_f32 v{SUM}, v{LG}, v{LX}")
    a(f"v_add_f32 v{M_}, v{LG+1}, v{LX+1}")
    a(f"v_add_f32 v{vT+15}, v{LG+2}, v{LX+2}")
    a(f"v_add_f32 v{vT+16}, v{LG+3}, v{LX+3}")
    a(f"v_add_f32 v{SUM}, v{SUM}, v{M_}")
    a(f"v_add_f32 v{vT+15}, v{vT+15}, v{vT+16}")
    a(f"v_add_f32 v{SUM}, v{SUM}, v{vT+15}")
    a(f"v_rcp_f32 v{SUM}, v{SUM}")
    a("s_nop 0")
    for w in range(8):
        a(f"v_mul_f32 v{LG+w}, v{LG+w}, v{SUM}")
    for wp in range(4):
        a(f"v_cvt_pk_bf16_f32 v{LG+wp}, v{LG+2*wp}, v{LG+2*wp+1}")
    if "astamp" in OPT: stamp(a, 3)
    a(f"s_mov_b32 s{sT+4}, 0x05040100")
    a(f"s_mov_b32 s{sT+5}, 0x07060302")
    a("s_waitcnt lgkmcnt(0)")
    for wp in range(4):
        base = (VO if wp < 2 else VX) + (wp % 2) * 16
        for d_ in range(5):
            x0 = base + d_; x1 = base + 8 + d_
            t = vT + 13 + (d_ % 2) * 2
            a(f"v_perm_b32 v{t}, v{x1}, v{x0}, s{sT+4}")
            a(f"v_perm_b32 v{t+1}, v{x1}, v{x0}, s{sT+5}")
            a(f"v_dot2_f32_bf16 v{OA+2*d_}, v{t}, v{LG+wp}, " + ("0" if wp == 0 else f"v{OA+2*d_}"))
            a(f"v_dot2_f32_bf16 v{OA+2*d_+1}, v{t+1}, v{LG+wp}, " + ("0" if wp == 0 else f"v{OA+2*d_+1}"))
    a("s_nop 2")
    for d_ in range(5):
        a(f"v_cvt_pk_bf16_f32 v{QR+d_}, v{OA+2*d_}, v{OA+2*d_+1}")
    OB = 65536; OP = 160
    a(f"v_lshrrev_b32 v{vT+13}, 3, v3")
    a(f"v_mul_u32_u24 v{vT+13}, {OP}, v{vT+13}")
    a(f"v_mad_u32_u24 v{vT+13}, v{vHd}, 36, v{vT+13}")
    a(f"v_lshl_add_u32 v{vT+13}, v{vHf}, 4, v{vT+13}")
    a(f"v_add_u32 v{vT+13}, {OB}, v{vT+13}")
    a(f"ds_write2_b32 v{vT+13}, v{QR}, v{QR+1} offset0:0 offset1:1")
    a(f"ds_write2_b32 v{vT+13}, v{QR+2}, v{QR+3} offset0:2 offset1:3")
    a(f"ds_write_b32 v{vT+13}, v{QR+4} offset:16")
    a(f"s_lshl_b32 s{sT}, s{sWave}, 2")
    a(f"v_lshrrev_b32 v{vT+14}, 4, v0")
    a(f"v_add_u32 v{vT+14}, s{sT}, v{vT+14}")
    a(f"s_mul_i32 s{sT+1}, s{sHg}, 9")
    a(f"s_lshl_b32 s{sT+2}, s{sRb}, 2")
    a(f"s_mul_i32 s{sT+2}, s{sT+2}, 18432")
    def piece_addr(vp, vl, vg):
        a(f"v_mul_u32_u24 v{vT+15}, 7282, v{vp}")
        a(f"v_lshrrev_b32 v{vT+15}, 16, v{vT+15}")
        a(f"v_mul_u32_u24 v{vT+16}, 9, v{vT+15}")
        a(f"v_sub_u32 v{vT+16}, v{vp}, v{vT+16}")
        a(f"v_and_b32 v{vT+17}, 15, v0")
        a(f"v_lshl_add_u32 v{vl}, v{vT+15}, 4, v{vT+17}")
        a(f"v_mul_u32_u24 v{vl}, {OP}, v{vl}")
        a(f"v_lshl_add_u32 v{vl}, v{vT+16}, 4, v{vl}")
        a(f"v_add_u32 v{vl}, {OB}, v{vl}")
        a(f"v_add_u32 v{vT+16}, s{sT+1}, v{vT+16}")
        a(f"v_mul_u32_u24 v{vg}, 18432, v{vT+15}")
        a(f"v_lshl_add_u32 v{vg}, v{vT+16}, 8, v{vg}")
        a(f"v_lshl_add_u32 v{vg}, v{vT+17}, 4, v{vg}")
    piece_addr(vT+14, vT+4, vT+5)
    a(f"v_add_u32 v{vT+14}, 32, v{vT+14}")
    piece_addr(vT+14, vT+6, vT+7)
    a("s_waitcnt lgkmcnt(0)")
    a("s_barrier")
    a(f"ds_read_b128 {vr(QR,4)}, v{vT+4}")
    a(f"ds_read_b128 {vr(QR+4,4)}, v{vT+6}")
    a("s_waitcnt lgkmcnt(1)")
    a(f"buffer_store_dwordx4 {vr(QR,4)}, v{vT+5}, {sr(sO,4)}, s{sT+2} offen")
    a(f"s_cmp_lg_u32 s{sWave}, 0")
    a(f"s_cbranch_scc1 L_{name}_nost2")
    a("s_waitcnt lgkmcnt(0)")
    a(f"buffer_store_dwordx4 {vr(QR+4,4)}, v{vT+7}, {sr(sO,4)}, s{sT+2} offen")
    a.lab(f"L_{name}_nost2")
    if "astamp" in OPT: stamp(a, 4)
    if "stamp" in OPT: a("s_waitcnt vmcnt(0)")
    stamp(a, 6, True)
    stamp_dump(a, 7, 8, sWave, vT+8, 3)
    a.lab(f"L_{name}_done")
    a("s_endpgm")
    return a.text(), kernel_desc(name, NV, 96), f"; @launch kernel={name} grid=(256,1,1) block=(512,1,1) lds={WB + NST*STG}"


PB_OFF = HH_OFF
PB_SZ = 16*2048*576*2
def gen_k34(name="k3_kernel"):
    a = A(); a.stpol = os.environ.get("K34ST", "sc1")
    vm = VM(a)
    kernel_head(a, name)
    NST = 6; STG = 18560; UP = 9248
    XB = NST*STG
    HB = 4*STG
    LDS = HB + 73728
    assert XB + 3*8192 <= LDS
    RING = 6; PF = RING - 1
    ACC = 4; WR = 148; XF = 172
    XR = 180
    vWa, vWb = 196, 197
    vD = 198
    vD2 = 201
    vX0, vXw, vXr = 204, 205, 206
    vNM, vR = 207, 208
    vW2e, vW2o = 209, 210
    vHw, vHr, vA, vPo = 211, 212, 213, 214
    vT = 216
    NV = 232
    def acc(nt): return ACC + nt*16
    sWa, sWb_, sWc, sX, sST, sP, sWd = 12, 16, 20, 24, 28, 32, 36
    sWave, sFb, sMb = 40, 41, 42
    sWoff, sXoff = 43, 44
    sM0 = 45
    sT = 48
    sA_, sB_, sPb = 88, 89, 90
    a("s_cmp_ge_u32 s2, 256")
    a(f"s_cbranch_scc1 L_{name}_done")
    stamp(a, 0); stamp(a, 5, True)
    a("s_load_dwordx4 s[4:7], s[0:1], 32")
    a("s_load_dwordx2 s[10:11], s[0:1], 48")
    a("s_load_dwordx2 s[8:9], s[0:1], 72")
    a("v_lshrrev_b32 v1, 6, v0")
    a("v_and_b32 v0, 63, v0")
    a("s_nop 0")
    a(f"v_readfirstlane_b32 s{sWave}, v1")
    a(f"s_and_b32 s{sT}, s2, 7")
    a(f"s_lshr_b32 s{sT+1}, s2, 3")
    a(f"s_and_b32 s{sFb}, s{sT+1}, 1")
    a(f"s_lshl_b32 s{sT}, s{sT}, 1")
    a(f"s_add_u32 s{sFb}, s{sFb}, s{sT}")
    a(f"s_lshr_b32 s{sMb}, s{sT+1}, 1")
    a(f"s_lshl_b32 s{sT}, s{sWave}, 6")
    a(f"s_sub_u32 s{sT+1}, s{sT}, 64")
    a(f"s_cmp_eq_u32 s{sWave}, 0")
    a(f"s_cselect_b32 s{sT+1}, 512, s{sT+1}")
    a(f"s_cselect_b32 s{sT+3}, 0, 32")
    a(f"s_add_u32 s{sT+2}, s{sT}, 448")
    a(f"s_lshl_b32 s{sM0}, s{sWave}, 10")
    a(f"s_add_u32 s{sM0+1}, s{sM0}, 8192")
    a(f"s_add_u32 s{sM0+1}, s{sM0+1}, s{sT+3}")
    a(f"s_add_u32 s{sM0+2}, s{sM0}, {16384+32}")
    a(f"s_mul_i32 s{sT+4}, s{sFb}, 576")
    for k in range(3):
        a(f"v_add_u32 v{vT+1}, s{sT+k}, v0")
        a(f"v_mul_u32_u24 v{vT+2}, 1821, v{vT+1}")
        a(f"v_lshrrev_b32 v{vT+2}, 16, v{vT+2}")
        a(f"v_mul_u32_u24 v{vT+3}, 36, v{vT+2}")
        a(f"v_sub_u32 v{vT+3}, v{vT+1}, v{vT+3}")
        a(f"v_and_b32 v{vT+4}, 8, v{vT+2}")
        a(f"v_add_u32 v{vT+2}, v{vT+2}, v{vT+4}")
        a(f"v_mul_u32_u24 v{vT+2}, 9216, v{vT+2}")
        a(f"v_lshl_add_u32 v{vT+2}, v{vT+3}, 4, v{vT+2}")
        a(f"v_add_u32 v{vD+k}, s{sT+4}, v{vT+2}")
    for k, add in enumerate((0, 512, 1024)):
        a(f"v_add_u32 v{vT+1}, s{sT}, v0")
        if add: a(f"v_add_u32 v{vT+1}, {add}, v{vT+1}")
        a(f"v_mul_u32_u24 v{vT+2}, 911, v{vT+1}")
        a(f"v_lshrrev_b32 v{vT+2}, 16, v{vT+2}")
        a(f"v_mul_u32_u24 v{vT+3}, 72, v{vT+2}")
        a(f"v_sub_u32 v{vT+3}, v{vT+1}, v{vT+3}")
        a(f"v_and_b32 v{vT+4}, 2, v{vT+2}")
        a(f"v_lshlrev_b32 v{vT+4}, 1, v{vT+4}")
        a(f"v_xor_b32 v{vT+3}, v{vT+3}, v{vT+4}")
        a(f"v_mul_u32_u24 v{vT+2}, 1152, v{vT+2}")
        a(f"v_lshl_add_u32 v{vD2+k}, v{vT+3}, 4, v{vT+2}")
    a(f"s_lshl_b32 s{sT}, s{sMb}, 3")
    a(f"s_add_u32 s{sT}, s{sT}, s{sWave}")
    a(f"s_mul_i32 s{sT+1}, s{sT}, 18432")
    a(f"v_lshlrev_b32 v{vT}, 4, v0")
    a(f"v_add_u32 v{vX0}, s{sT+1}, v{vT}")
    a(f"s_lshl_b32 s{sT+1}, s{sWave}, 10")
    a(f"s_add_u32 s{sT+1}, s{sT+1}, {XB}")
    a(f"v_add_u32 v{vXw}, s{sT+1}, v{vT}")
    a(f"s_lshl_b32 s{sT}, s{sT}, 4")
    a(f"v_and_b32 v{vT+4}, 15, v0")
    a(f"v_add_u32 v{vT+4}, s{sT}, v{vT+4}")
    a(f"v_mul_u32_u24 v{vT+4}, 48, v{vT+4}")
    a(f"s_and_b32 s{sT}, s{sWave}, 3")
    a(f"s_lshr_b32 s{sT+1}, s{sWave}, 2")
    a(f"v_bfe_u32 v{vT}, v0, 4, 1")
    a(f"v_lshlrev_b32 v{vT}, 10, v{vT}")
    a(f"v_lshrrev_b32 v{vT+1}, 5, v0")
    a(f"v_lshl_add_u32 v{vT}, v{vT+1}, 8, v{vT}")
    a(f"v_and_b32 v{vT+1}, 15, v0")
    a(f"v_lshl_add_u32 v{vT}, v{vT+1}, 4, v{vT}")
    a(f"s_lshl_b32 s{sT+2}, s{sT}, 11")
    a(f"s_add_u32 s{sT+2}, s{sT+2}, {XB}")
    a(f"v_add_u32 v{vXr}, s{sT+2}, v{vT}")
    a(f"v_bfe_u32 v{vT}, v0, 4, 1")
    a(f"v_mul_u32_u24 v{vT}, {UP}, v{vT}")
    a(f"v_lshrrev_b32 v{vT+1}, 5, v0")
    a(f"v_bfe_u32 v{vT+2}, v0, 2, 2")
    a(f"v_lshl_add_u32 v{vT+1}, v{vT+1}, 2, v{vT+2}")
    a(f"v_mul_u32_u24 v{vT+3}, 576, v{vT+1}")
    a(f"v_add_u32 v{vT}, v{vT}, v{vT+3}")
    a(f"v_and_b32 v{vT+3}, 3, v0")
    a(f"v_lshl_add_u32 v{vT}, v{vT+3}, 3, v{vT}")
    a(f"s_mul_i32 s{sT+2}, s{sT+1}, 288")
    a(f"v_add_u32 v{vWa}, s{sT+2}, v{vT}")
    a(f"v_add_u32 v{vWb}, {3*STG}, v{vWa}")
    a(f"v_mul_u32_u24 v{vT}, 1152, v{vT+1}")
    a(f"v_bfe_u32 v{vT+4+1}, v0, 4, 1")
    a(f"v_lshl_add_u32 v{vT}, v{vT+5}, 5, v{vT}")
    a(f"v_lshl_add_u32 v{vT}, v{vT+3}, 3, v{vT}")
    a(f"v_bfe_u32 v{vT+5}, v0, 3, 1")
    a(f"v_lshlrev_b32 v{vT+5}, 6, v{vT+5}")
    a(f"v_add_u32 v{vW2e}, v{vT}, v{vT+5}")
    a(f"v_sub_u32 v{vW2o}, v{vT}, v{vT+5}")
    a(f"v_lshlrev_b32 v{vT}, 4, v0")
    a(f"s_lshl_b32 s{sT+2}, s{sT}, 10")
    a(f"s_add_u32 s{sT+2}, s{sT+2}, {HB}")
    a(f"v_add_u32 v{vHr}, s{sT+2}, v{vT}")
    a(f"s_mul_i32 s{sT+3}, s{sT+1}, {9*4096}")
    a(f"v_add_u32 v{vHw}, s{sT+3}, v{vHr}")
    a(f"s_lshl_b32 s{sPb}, s{sFb}, 6")
    a(f"s_lshl_b32 s{sT+2}, s{sMb}, 2")
    a(f"s_add_u32 s{sPb}, s{sPb}, s{sT+2}")
    a(f"s_add_u32 s{sPb}, s{sPb}, s{sT}")
    a(f"s_mul_i32 s{sPb}, s{sPb}, 18")
    a(f"s_mul_i32 s{sT+2}, s{sT+1}, 9")
    a(f"s_add_u32 s{sPb}, s{sPb}, s{sT+2}")
    a(f"s_lshl_b32 s{sPb}, s{sPb}, 11")
    a(f"v_mov_b32 v{vPo}, v{vT}")
    a(f"s_mov_b32 s{sA_}, {f32(GELU_A)}")
    a(f"s_mov_b32 s{sB_}, {f32(GELU_B)}")
    a(f"v_mov_b32 v{vA}, s{sA_}")
    a(f"s_mov_b32 s91, s{sT+1}")
    a("s_waitcnt lgkmcnt(0)")
    srd(a, sWa, 4, 576*4608*2)
    srd(a, sWc, 6, 576*4608*2)
    a(f"s_cmp_eq_u32 s{sWave}, 0")
    a(f"s_cselect_b32 s{sT}, s4, s6")
    a(f"s_cselect_b32 s{sT+1}, s5, s7")
    srd(a, sWb_, sT, 576*4608*2)
    srd(a, sX, 8, H1_SZ, H1_OFF)
    srd(a, sST, 8, ST_SZ, ST_OFF)
    srd(a, sP, 8, PB_SZ, PB_OFF)
    srd(a, sWd, 10, 4608*576*2)
    for q in range(3):
        vm.op(("S", 0), f"buffer_load_dwordx4 {vr(WR+q*4,4)}, v{vT+4}, {sr(sST,4)}, 0 offen offset:{q*16}")
    a(f"s_mul_i32 s92, s{sFb}, {288*1152}")
    srds = (sWa, sWb_, sWc)
    lab = [0]
    def w1_groups(i):
        if i >= 36: return []
        st = i % NST
        ks, half = divmod(i, 2)
        lab[0] += 1
        L = f"L_{name}_sk{lab[0]}"
        g0 = [("s", f"s_mov_b32 s{sWoff}, {(ks*32 + half*8)*9216}"),
              ("s", f"s_cmp_ge_u32 s{sWave}, 2"), ("s", f"s_cbranch_scc1 {L}"),
              ("s", f"s_add_u32 m0, s{sM0+2}, {st*STG}"), ("s", "s_nop 0"),
              ("s", f"buffer_load_dwordx4 v{vD+2}, {sr(srds[2],4)}, s{sWoff} offen lds"), ("l", L),
              ("s", f"s_add_u32 m0, s{sM0}, {st*STG}"), ("s", "s_nop 0"),
              (("W", i), f"buffer_load_dwordx4 v{vD}, {sr(srds[0],4)}, s{sWoff} offen lds")]
        g1 = [("s", f"s_add_u32 m0, s{sM0+1}, {st*STG}"), ("s", "s_nop 0"),
              (("W", i), f"buffer_load_dwordx4 v{vD+1}, {sr(srds[1],4)}, s{sWoff} offen lds")]
        return [g0, g1]
    def w2_groups(t):
        if t >= 18: return []
        st = t % 4
        lab[0] += 1
        L = f"L_{name}_sk{lab[0]}"
        g0 = [("s", f"s_add_u32 s{sWoff}, s92, {t*16*1152}"),
              ("s", f"s_cmp_ge_u32 s{sWave}, 2"), ("s", f"s_cbranch_scc1 {L}"),
              ("s", f"s_add_u32 m0, s{sM0}, {st*STG + 16384}"), ("s", "s_nop 0"),
              ("s", f"buffer_load_dwordx4 v{vD2+2}, {sr(sWd,4)}, s{sWoff} offen lds"), ("l", L),
              ("s", f"s_add_u32 m0, s{sM0}, {st*STG}"), ("s", "s_nop 0"),
              (("W", 36+t), f"buffer_load_dwordx4 v{vD2}, {sr(sWd,4)}, s{sWoff} offen lds")]
        g1 = [("s", f"s_add_u32 m0, s{sM0}, {st*STG + 8192}"), ("s", "s_nop 0"),
              (("W", 36+t), f"buffer_load_dwordx4 v{vD2+1}, {sr(sWd,4)}, s{sWoff} offen lds")]
        return [g0, g1]
    def x_group(ks):
        if ks >= 18: return []
        return [[("s", f"s_mov_b32 s{sXoff}, {ks*1024}"),
                 (("X", ks), f"buffer_load_dwordx4 {vr(XR+(ks%4)*4,4)}, v{vX0}, {sr(sX,4)}, s{sXoff} offen")]]
    def emit_group(g):
        for tg, txt in g:
            if tg == "s": a(txt)
            elif tg == "l": a.lab(txt)
            else: vm.op(tg, txt)
    def norm_ops(ks):
        if ks >= 18: return []
        chains = []
        for d in range(4):
            x = XR + (ks % 4)*4 + d
            t0 = vT + 8 + d*2; t1 = t0 + 1
            chains.append([f"v_lshlrev_b32 v{t0}, 16, v{x}", f"v_and_b32 v{t1}, 0xffff0000, v{x}",
                           f"v_fma_f32 v{t0}, v{t0}, v{vR}, v{vNM}", f"v_fma_f32 v{t1}, v{t1}, v{vR}, v{vNM}",
                           f"v_cvt_pk_bf16_f32 v{x}, v{t0}, v{t1}"])
        ops = [("w", ks)]
        for stage in ((0, 1), (2, 3), (4,)):
            for c in chains:
                for j in stage: ops.append(c[j])
        ops.append(f"ds_write_b128 v{vXw}, {vr(XR+(ks%4)*4,4)} offset:{(ks%3)*8192}")
        return ops
    def emit_op(op):
        if isinstance(op, tuple): vm.wait(lambda t: t[0] == "X" and t[1] <= op[1])
        else: a(op)
    for g in x_group(0) + w1_groups(0) + w1_groups(1) + x_group(1) + w1_groups(2): emit_group(g)
    vm.wait(lambda t: t[0] == "S")
    b = WR
    a(f"v_add_f32 v{vT}, v{b}, v{b+2}")
    a(f"v_add_f32 v{vT+1}, v{b+4}, v{b+6}")
    a(f"v_add_f32 v{vT+2}, v{b+8}, v{b+10}")
    a(f"v_add_f32 v{vT}, v{vT}, v{vT+1}")
    a(f"v_add_f32 v{vT}, v{vT}, v{vT+2}")
    a(f"v_mul_f32 v{vT}, {f32(1.0/6.0)}, v{vT}")
    a(f"v_add_f32 v{vT+1}, v{b+1}, v{b+3}")
    a(f"v_add_f32 v{vT+2}, v{b+5}, v{b+7}")
    a(f"v_add_f32 v{vT+3}, v{b+9}, v{b+11}")
    a(f"v_add_f32 v{vT+1}, v{vT+1}, v{vT+2}")
    a(f"v_add_f32 v{vT+1}, v{vT+1}, v{vT+3}")
    a(f"v_mov_b32 v{vT+2}, 0")
    for t in range(6):
        a(f"v_sub_f32 v{vT+3}, v{b+2*t}, v{vT}")
        a(f"v_fmac_f32 v{vT+2}, v{vT+3}, v{vT+3}")
    a(f"v_fmac_f32 v{vT+1}, {f32(96.0)}, v{vT+2}")
    a(f"v_mul_f32 v{vT+1}, {f32(1.0/576.0)}, v{vT+1}")
    round_bf16(a, vNM, vT)
    round_bf16(a, vT+1, vT+1)
    a(f"v_add_f32 v{vT+1}, {f32(1e-5)}, v{vT+1}")
    round_bf16(a, vT+1, vT+1)
    a(f"v_sqrt_f32 v{vT+1}, v{vT+1}")
    a("s_nop 0")
    round_bf16(a, vT+1, vT+1)
    a(f"v_rcp_f32 v{vR}, v{vT+1}")
    a("s_nop 0")
    a(f"v_mul_f32 v{vNM}, v{vNM}, v{vR}")
    a(f"v_sub_f32 v{vNM}, 0, v{vNM}")
    for op in norm_ops(0): emit_op(op)
    vm.wait(lambda t: t[0] == "W" and t[1] <= 1)
    a("s_waitcnt lgkmcnt(0)")
    a("s_barrier")
    lds = []
    def lds_issue(tag, txt):
        a(txt); lds.append(tag)
    def lds_wait(pred):
        last = -1
        for i_, t in enumerate(lds):
            if pred(t): last = i_
        if last >= 0:
            n = len(lds) - 1 - last
            assert n <= 15, n
            a(f"s_waitcnt lgkmcnt({n})")
            del lds[:last+1]
    def wread1(g):
        i, nt = divmod(g, 9)
        if i >= 36: return
        st = i % NST; slot = g % RING
        base = vWa if st < 3 else vWb
        off = (st % 3)*STG + nt*32
        if nt == 0:
            ks, half = divmod(i, 2)
            lds_issue(("x", i), f"ds_read_b128 {vr(XF+(i%2)*4,4)}, v{vXr} offset:{(ks%3)*8192 + half*512}")
        lds_issue(("w", g), f"ds_read_b64_tr_b16 {vr(WR+slot*4,2)}, v{base} offset:{off}")
        lds_issue(("w", g), f"ds_read_b64_tr_b16 {vr(WR+slot*4+2,2)}, v{base} offset:{off+8*576}")
    for f in range(PF): wread1(f)
    sched = {0: [3, 4], 1: [5, 6]}
    for i in range(36):
        ks, half = divmod(i, 2)
        lg = []
        for j in sched.get(i, [i + 5]): lg += w1_groups(j)
        if 31 <= i <= 34: lg += w2_groups(i - 31)
        if half == 0: lg += x_group(ks + 2)
        nops = norm_ops(ks + 1) if half == 0 else []
        gi = ni = 0
        gpos = [(k_*8)//max(1, len(lg)) for k_ in range(len(lg))]
        for nt in range(9):
            g = i*9 + nt; slot = g % RING
            wread1(g + PF)
            lds_wait(lambda t: (t[0] == "w" and t[1] <= g) or (t[0] == "x" and t[1] <= i))
            a(f"v_mfma_f32_32x32x16_bf16 {vr(acc(nt),16)}, {vr(WR+slot*4,4)}, {vr(XF+(i%2)*4,4)}, " + ("0" if i == 0 else vr(acc(nt),16)))
            while gi < len(lg) and gpos[gi] <= nt:
                emit_group(lg[gi]); gi += 1
            if nt >= 2:
                for _ in range(4):
                    if ni < len(nops):
                        op = nops[ni]; ni += 1
                        if isinstance(op, str) and op.startswith("ds_write"): lds_issue(("xw", ks), op)
                        else: emit_op(op)
        assert gi == len(lg) and ni == len(nops)
        if i < 35:
            vm.wait(lambda t: t[0] == "W" and t[1] <= i + 2)
            lds_wait(lambda t: t[0] == "xw")
            a("s_barrier")
    stamp(a, 1)
    a("s_waitcnt lgkmcnt(0)"); del lds[:]
    a("s_barrier")
    a("s_nop 7")
    ET = vT + 8
    for nt in range(9):
        o = WR + (nt % 2)*4
        for hh in range(2):
            lines = [[], []]
            for c in range(2):
                p = hh*2 + c
                x0, x1 = acc(nt) + 2*p, acc(nt) + 2*p + 1
                y0, y1 = x0 + 8, x1 + 8
                t0, t1 = ET + c*2, ET + c*2 + 1
                lines[c] = [f"v_mul_f32 v{t0}, v{x0}, v{x0}", f"v_mul_f32 v{t1}, v{x1}, v{x1}",
                      f"v_fma_f32 v{t0}, v{t0}, s{sB_}, v{vA}", f"v_fma_f32 v{t1}, v{t1}, s{sB_}, v{vA}",
                      f"v_mul_f32 v{t0}, v{t0}, v{x0}", f"v_mul_f32 v{t1}, v{t1}, v{x1}",
                      f"v_exp_f32 v{t0}, v{t0}", f"v_exp_f32 v{t1}, v{t1}",
                      f"v_mul_f32 v{y0}, v{y0}, v{x0}", f"v_mul_f32 v{y1}, v{y1}, v{x1}",
                      f"v_add_f32 v{t0}, 1.0, v{t0}", f"v_add_f32 v{t1}, 1.0, v{t1}",
                      f"v_rcp_f32 v{t0}, v{t0}", f"v_rcp_f32 v{t1}, v{t1}",
                      f"v_mul_f32 v{t0}, v{t0}, v{y0}", f"v_mul_f32 v{t1}, v{t1}, v{y1}",
                      f"v_cvt_pk_bf16_f32 v{o+p}, v{t0}, v{t1}"]
            i0 = i1 = 0
            while i0 < len(lines[0]) or i1 < len(lines[1]):
                for _ in range(2):
                    if i0 < len(lines[0]): a(lines[0][i0]); i0 += 1
                for _ in range(2):
                    if i1 < len(lines[1]): a(lines[1][i1]); i1 += 1
        a(f"ds_write_b128 v{vHw}, {vr(o,4)} offset:{nt*4096}")
    vm.wait(lambda t: t[0] == "W" and t[1] <= 37)
    a("s_waitcnt lgkmcnt(0)")
    a("s_barrier")
    stamp(a, 2)
    a("s_cmp_eq_u32 s91, 0")
    a(f"s_cbranch_scc1 L_{name}_noswap")
    a(f"v_mov_b32 v{vT}, v{vW2e}")
    a(f"v_add_u32 v{vW2e}, 576, v{vW2o}")
    a(f"v_add_u32 v{vW2o}, 576, v{vT}")
    a.lab(f"L_{name}_noswap")
    a(f"v_add_u32 v{vT+1}, 65536, v{vHr}")
    def wread2(g):
        t, nt = divmod(g, 9)
        if t >= 18: return
        st = t % 4; slot = g % RING
        base = vW2e if nt % 2 == 0 else vW2o
        off = st*STG + nt*64
        if nt == 0:
            if t*4096 < 65536 - 0:
                lds_issue(("x", t), f"ds_read_b128 {vr(XF+(t%2)*4,4)}, v{vHr} offset:{t*4096}")
            else:
                lds_issue(("x", t), f"ds_read_b128 {vr(XF+(t%2)*4,4)}, v{vT+1} offset:{t*4096-65536}")
        lds_issue(("w", g), f"ds_read_b64_tr_b16 {vr(WR+slot*4,2)}, v{base} offset:{off}")
        lds_issue(("w", g), f"ds_read_b64_tr_b16 {vr(WR+slot*4+2,2)}, v{base} offset:{off+8*1152}")
    for f in range(PF): wread2(f)
    for t in range(18):
        lg = w2_groups(t + 3) if t >= 1 else []
        gi = 0
        for nt in range(9):
            g = t*9 + nt; slot = g % RING
            wread2(g + PF)
            lds_wait(lambda tg: (tg[0] == "w" and tg[1] <= g) or (tg[0] == "x" and tg[1] <= t))
            a(f"v_mfma_f32_32x32x16_bf16 {vr(acc(nt),16)}, {vr(WR+slot*4,4)}, {vr(XF+(t%2)*4,4)}, " + ("0" if t == 0 else vr(acc(nt),16)))
            if nt in (1, 4) and gi < len(lg):
                emit_group(lg[gi]); gi += 1
        assert gi == len(lg)
        if t < 17:
            vm.wait(lambda tg: tg[0] == "W" and tg[1] <= 36 + t + 2)
            a("s_barrier")
    stamp(a, 3)
    a("s_nop 7"); a("s_nop 7")
    for nt in range(9):
        o = WR + (nt % 3)*8
        for p in range(8):
            a(f"v_cvt_pk_bf16_f32 v{o+p}, v{acc(nt)+2*p}, v{acc(nt)+2*p+1}")
        if nt % 2 == 0 and nt: a(f"s_add_u32 s{sPb}, s{sPb}, 4096")
        a(f"buffer_store_dwordx4 {vr(o,4)}, v{vPo}, {sr(sP,4)}, s{sPb} offen offset:{(nt%2)*2048}")
        a(f"buffer_store_dwordx4 {vr(o+4,4)}, v{vPo}, {sr(sP,4)}, s{sPb} offen offset:{(nt%2)*2048+1024}")
    if "stamp" in OPT: a("s_waitcnt vmcnt(0)")
    stamp(a, 4); stamp(a, 6, True)
    stamp_dump(a, 7, 8, sWave, vT+4)
    a.lab(f"L_{name}_done")
    a("s_endpgm")
    return a.text(), kernel_desc(name, NV), f"; @launch kernel={name} grid=(256,1,1) block=(512,1,1) lds={LDS}"

def gen_k5b(name="k5_kernel"):
    a = A()
    kernel_head(a, name)
    sH, sP, sO = 12, 16, 20
    a("s_cmp_ge_u32 s2, 576")
    a(f"s_cbranch_scc1 L_{name}_done")
    a("s_load_dwordx2 s[4:5], s[0:1], 56")
    a("s_load_dwordx2 s[8:9], s[0:1], 72")
    a("v_lshrrev_b32 v1, 6, v0")
    a("v_and_b32 v0, 63, v0")
    a("s_nop 0")
    a("v_readfirstlane_b32 s28, v1")
    a("s_lshl_b32 s29, s2, 2")
    a("s_add_u32 s29, s29, s28")
    a("s_and_b32 s36, s29, 1")
    a("s_lshr_b32 s37, s29, 1")
    a("s_mul_i32 s30, s37, 3641")
    a("s_lshr_b32 s30, s30, 16")
    a("s_mul_i32 s31, s30, 18")
    a("s_sub_u32 s31, s37, s31")
    a("s_waitcnt lgkmcnt(0)")
    srd(a, sH, 8, H1_SZ, H1_OFF)
    srd(a, sP, 8, PB_SZ, PB_OFF)
    srd(a, sO, 4, 2048*576*2)
    a("v_lshlrev_b32 v1, 4, v0")
    a("s_lshl_b32 s33, s29, 10")
    PR = 16
    for k in range(16):
        a(f"buffer_load_dwordx4 v[{PR+k*4}:{PR+3+k*4}], v1, {sr(sP,4)}, s33 offen")
        if k < 15: a(f"s_add_u32 s33, s33, {64*18*2048}")
    a("v_bfe_u32 v2, v0, 4, 1")
    a("v_mul_u32_u24 v2, 18432, v2")
    a("v_lshrrev_b32 v3, 5, v0")
    a("v_lshl_add_u32 v2, v3, 8, v2")
    a("v_and_b32 v4, 15, v0")
    a("v_lshl_add_u32 v2, v4, 4, v2")
    a("s_mul_i32 s34, s30, 36864")
    a("s_lshl_b32 s35, s31, 10")
    a("s_add_u32 s34, s34, s35")
    a("s_lshl_b32 s35, s36, 3")
    a("s_add_u32 s34, s34, s35")
    a(f"buffer_load_dwordx2 v[8:9], v2, {sr(sH,4)}, s34 offen")
    a(f"buffer_load_dwordx2 v[10:11], v2, {sr(sH,4)}, s34 offen offset:512")
    a("v_and_b32 v4, 31, v0")
    a("s_lshl_b32 s35, s30, 5")
    a("v_add_u32 v4, s35, v4")
    a("v_mul_u32_u24 v4, 1152, v4")
    a("v_lshl_add_u32 v4, v3, 3, v4")
    a("s_lshl_b32 s35, s31, 6")
    a("s_lshl_b32 s38, s36, 5")
    a("s_add_u32 s35, s35, s38")
    S = 84
    for k in range(16):
        a(f"s_waitcnt vmcnt({(15-k)+2})")
        for d in range(4):
            x = PR + k*4 + d
            if k == 0:
                a(f"v_lshlrev_b32 v{S+2*d}, 16, v{x}")
                a(f"v_and_b32 v{S+2*d+1}, 0xffff0000, v{x}")
            else:
                a(f"v_lshlrev_b32 v{92+d*2}, 16, v{x}")
                a(f"v_and_b32 v{93+d*2}, 0xffff0000, v{x}")
        if k:
            for d in range(8):
                a(f"v_add_f32 v{S+d}, v{S+d}, v{92+d}")
    a("s_waitcnt vmcnt(0)")
    for d in range(4):
        a(f"v_cvt_pk_bf16_f32 v92, v{S+2*d}, v{S+2*d+1}")
        a(f"v_lshlrev_b32 v93, 16, v92")
        a(f"v_and_b32 v94, 0xffff0000, v92")
        a(f"v_lshlrev_b32 v95, 16, v{8+d}")
        a(f"v_and_b32 v96, 0xffff0000, v{8+d}")
        a(f"v_add_f32 v93, v93, v95")
        a(f"v_add_f32 v94, v94, v96")
        a(f"v_cvt_pk_bf16_f32 v{PR+d}, v93, v94")
    for q in range(2):
        a(f"buffer_store_dwordx2 v[{PR+2*q}:{PR+2*q+1}], v4, {sr(sO,4)}, s35 offen offset:{q*16}")
    a.lab(f"L_{name}_done")
    a("s_endpgm")
    return a.text(), kernel_desc(name, 100, 48), f"; @launch kernel={name} grid=(576,1,1) block=(256,1,1) lds=0"

GENS = {"k34": gen_k34, "k5b": gen_k5b, "k45": gen_k45, "k2v2": gen_k2v2, "k1v3": gen_k1v3, "k1": gen_k1, "k2": gen_k2, "k3": gen_k3, "k4": gen_k4, "k5": gen_k5, "k3v2": gen_k3v2, "k3m": gen_k3m, "k4v2": gen_k4v2}


def build(which):
    heads, texts, descs = [], [], []
    for w in which:
        t, d, h = GENS[w]()
        heads.append(h); texts.append(t); descs.append(d)
    out = "; generated by dev/gen.py\n" + "\n".join(heads) + "\n"
    out += '.amdgcn_target "amdgcn-amd-amdhsa--gfx950"\n.text\n'
    out += "\n".join(texts)
    out += '.section .rodata,"a"\n'
    for d in descs:
        out += ".p2align 6\n" + d
    return out

if __name__ == "__main__":
    which = sys.argv[2].split(",")
    open(sys.argv[1], "w").write(build(which))
```
